```python
import torch

def _softmax(x, axis=-1):
    return torch.softmax(x, dim=axis)
def _gelu(x):
    return torch.nn.functional.gelu(x, approximate="tanh")
def _silu(x):
    return torch.nn.functional.silu(x)
def _sigmoid(x):
    return torch.sigmoid(x)
def _layernorm(x, axis=-1, eps=1e-5):
    m = x.mean(dim=axis, keepdim=True)
    v = x.var(dim=axis, keepdim=True, unbiased=False)
    return (x - m) / torch.sqrt(v + eps)
def _scatter_add(tgt, idx, src, axis=0):
    return tgt.clone().index_add_(axis, idx, src)
def _segment_sum(src, seg, n):
    out = torch.zeros((n,) + src.shape[1:], dtype=src.dtype)
    return out.index_add_(0, seg, src)
def _pad(x, pw):
    flat = tuple(v for pair in reversed(pw) for v in pair)
    return torch.nn.functional.pad(x, flat)

kernel_name = 'standalone__mha_block_cached__near_ridge'

def setup_inputs():

    _w = (lambda a: (lambda t: t.to(torch.bfloat16) if t.is_floating_point() else t)(torch.as_tensor(a)))
    B, Sq, D = 8, 256, 512
    H, Sk, Dh = 32, 1024, 128
    return {
        "x": _w((lambda *s: torch.randn(*s, dtype=torch.bfloat16) * 0.8)(B, Sq, D)),
        "k_cache": _w((lambda *s: torch.randn(*s, dtype=torch.bfloat16) * 0.8)(B, H, Sk, Dh)),
        "v_cache": _w((lambda *s: torch.randn(*s, dtype=torch.bfloat16) * 0.05)(B, H, Sk, Dh)),
        "wq": _w((lambda *s: torch.randn(*s, dtype=torch.bfloat16) * 0.8)(D, H * Dh) * (D ** -0.5)),
        "wo": _w((lambda *s: torch.randn(*s, dtype=torch.bfloat16) * 0.05)(H * Dh, D) * ((H * Dh) ** -0.5)),
    }

def reference(x, k_cache, v_cache, wq, wo):
    B, Sq, D = x.shape
    H, Dh = 32, 128
    q = (lambda x, *d: x.permute(*d))((x @ wq).reshape(B, Sq, H, Dh), 0, 2, 1, 3)
    scores = torch.einsum("bhqd,bhkd->bhqk", q, k_cache) * (Dh ** -0.5)
    p = _softmax(scores, axis=-1)
    o = torch.einsum("bhqk,bhkd->bhqd", p, v_cache)
    return (lambda x, *d: x.permute(*d))(o, 0, 2, 1, 3).reshape(B, Sq, H * Dh) @ wo
```

```python
NAME = "standalone__mha_block_cached__near_ridge"

HEADER_COMMENT = """; Kernarg layout for this problem (64 bytes, ptrs only, base s[0:1]):
"""

def kernel_text(label, body):
    return f""".globl {label}
.p2align 8
.type {label},@function
{label}:
{body}
"""

def kd(label, vgpr, accum, sgpr=102):
    return f""".p2align 6
.amdhsa_kernel {label}
  .amdhsa_next_free_vgpr {vgpr}
  .amdhsa_next_free_sgpr {sgpr}
  .amdhsa_accum_offset {accum}
  .amdhsa_group_segment_fixed_size 0
  .amdhsa_kernarg_size 64
  .amdhsa_user_sgpr_count 2
  .amdhsa_user_sgpr_kernarg_segment_ptr 1
  .amdhsa_system_sgpr_workgroup_id_x 1
  .amdhsa_float_denorm_mode_32 3
  .amdhsa_float_denorm_mode_16_64 3
.end_amdhsa_kernel
"""

def file_text(kernels, single=False):
    s = HEADER_COMMENT
    if single:
        k = kernels[0]
        s += f"; @launch grid=({k['grid']},1,1) block=({k['block']},1,1) lds={k['lds']}\n"
    else:
        for k in kernels:
            s += f"; @launch kernel={k['label']} grid=({k['grid']},1,1) block=({k['block']},1,1) lds={k['lds']}\n"
    s += '.amdgcn_target "amdgcn-amd-amdhsa--gfx950"\n.text\n'
    for k in kernels:
        s += kernel_text(k['label'], k['body'])
    s += '.section .rodata,"a"\n'
    for k in kernels:
        s += kd(k['label'], k['vgpr'], k['accum'], k.get('sgpr', 102))
    return s
```

```python
import re

def regs_of(tok):
    tok = tok.strip()
    neg = tok.startswith('-')
    if neg: tok = tok[1:]
    m = re.fullmatch(r'abs\((.*)\)', tok)
    if m: tok = m.group(1)
    m = re.fullmatch(r'([vas])(\d+)', tok)
    if m: return [(m.group(1), int(m.group(2)))]
    m = re.fullmatch(r'([vas])\[(\d+):(\d+)\]', tok)
    if m: return [(m.group(1), i) for i in range(int(m.group(2)), int(m.group(3)) + 1)]
    if tok == 'vcc': return [('s', 'vcc')]
    if tok == 'exec': return [('s', 'exec')]
    if tok == 'm0': return [('s', 'm0')]
    return []

TRANS = ('v_exp_f32', 'v_log_f32', 'v_rcp_f32', 'v_rsq_f32', 'v_sqrt_f32')

class I:
    def __init__(self, text):
        self.text = text
        t = text.split(';')[0].strip()
        parts = t.split(None, 1)
        self.op = parts[0]
        for suf in ('_e32', '_e64'):
            if self.op.endswith(suf): self.op = self.op[:-4]
        rest = parts[1] if len(parts) > 1 else ''
        ops = [o.strip() for o in rest.split(',')] if rest else []
        self.mods = ''
        if ops:
            sp = ops[-1].split(None, 1)
            ops[-1] = sp[0]
            self.mods = sp[1] if len(sp) > 1 else ''
        self.ops = ops
        op = self.op
        R = lambda i: regs_of(ops[i]) if i < len(ops) else []
        self.kind = 'other'; self.w = []; self.r = []; self.rc = []; self.states = 1
        if op.startswith('v_mfma'):
            self.kind = 'mfma'; self.w = R(0); self.r = R(1) + R(2); self.rc = R(3)
            self.passes = 8 if '32x32x16' in op else 4
        elif op.startswith('v_'):
            self.kind = 'valu'
            if op.startswith('v_permlane'):
                self.w = R(0) + R(1); self.r = R(0) + R(1)
            elif op.startswith('v_cmp'):
                self.w = R(0); self.r = R(1) + R(2)
            elif op in ('v_add_co_u32', 'v_addc_co_u32'):
                self.w = R(0) + R(1); self.r = sum([R(i) for i in range(2, len(ops))], [])
            else:
                self.w = R(0); self.r = sum([R(i) for i in range(1, len(ops))], [])
                if op.startswith('v_fmac'): self.r += R(0)
                if op == 'v_cndmask_b32' and len(ops) == 3: self.r += [('s', 'vcc')]
        elif op.startswith('ds_read'):
            self.kind = 'dsr'; self.w = R(0); self.r = R(1)
        elif op.startswith('ds_write'):
            self.kind = 'dsw'; self.r = R(0) + R(1)
        elif op.startswith('buffer_load'):
            if re.search(r'\blds\b', self.mods):
                self.kind = 'dma'; self.r = R(0) + R(1) + R(2) + [('s', 'm0')]
            else:
                self.kind = 'vld'; self.w = R(0); self.r = R(1) + R(2) + R(3)
        elif op.startswith('global_load'):
            self.kind = 'vld'; self.w = R(0); self.r = R(1) + R(2)
        elif op.startswith('buffer_store') or op.startswith('buffer_atomic'):
            self.kind = 'vst'; self.r = R(0) + R(1) + R(2) + R(3); self.data = R(0)
            if 'atomic' in op and 'sc0' in self.mods: self.w = R(0)
        elif op in ('buffer_wbl2', 'buffer_inv'):
            self.kind = 'vst'; self.data = []
        elif op == 's_waitcnt':
            self.kind = 'wait'
            self.vm = self.lgkm = None
            m = re.search(r'vmcnt\((\d+)\)', t); self.vm = int(m.group(1)) if m else None
            m = re.search(r'lgkmcnt\((\d+)\)', t); self.lgkm = int(m.group(1)) if m else None
        elif op == 's_nop':
            self.kind = 'nop'; self.states = int(ops[0], 0) + 1
        elif op.startswith('s_load') or op.startswith('s_memtime') or op.startswith('s_memrealtime'):
            self.kind = 'smem'; self.w = R(0); self.r = R(1)
        elif op.startswith('s_'):
            self.kind = 'salu'
            if op.startswith('s_cmp') or op.startswith('s_cbranch') or op in ('s_barrier', 's_branch', 's_endpgm', 's_setprio', 's_sleep', 's_setpc_b64'):
                self.r = sum([R(i) for i in range(len(ops))], [])
                if 'vcc' in op: self.r += [('s', 'vcc')]
            else:
                self.w = R(0); self.r = sum([R(i) for i in range(1, len(ops))], [])
                if 'saveexec' in op: self.w += [('s', 'exec')]
        else:
            raise ValueError("unknown instr: " + text)

def check(trace, name="trace", verbose=True):
    ins = [I(t) for t in trace if t.strip() and not t.strip().endswith(':') and not t.strip().startswith('.') and not t.strip().startswith(';')]
    errs = []
    lg = []
    vm = []
    pos = 0
    pos_m = 0
    lastw = {}
    lastrc = {}
    laststore = {}
    maxlg = maxvm = 0
    last_mfma = None
    for n, x in enumerate(ins):
        if x.kind == 'mfma' and last_mfma is not None:
            pos_m = max(pos_m, last_mfma[0] + last_mfma[1] - 1)
        def err(msg): errs.append(f"{name}[{n}] {x.text.strip()} :: {msg}")
        touched = set(x.r) | set(x.w) | set(x.rc)
        if x.kind == 'wait':
            if x.lgkm is not None:
                if any(s for (_, _, s) in lg) and x.lgkm != 0: err("counted lgkmcnt with SMEM outstanding")
                while len(lg) > x.lgkm: lg.pop(0)
            if x.vm is not None:
                while len(vm) > x.vm: vm.pop(0)
        for (regs, idx, s) in lg:
            c = touched & set(regs)
            if c: err(f"uses regs {sorted(c, key=str)[:4]} pending from LDS/SMEM op [{idx}] {ins[idx].text.strip()}")
        for (regs, idx) in vm:
            c = touched & set(regs)
            if c: err(f"uses regs {sorted(c, key=str)[:4]} pending from VMEM load [{idx}] {ins[idx].text.strip()}")
        def need(reg, rec, k, why):
            d = pos - rec[0]
            if rec[2].kind == 'mfma': d = max(d, pos_m - rec[3])
            if d < k: err(f"{why}: reg {reg} needs {k} wait states, has {d} (producer: {rec[2].text.strip()})")
        for reg in set(x.r) | set(x.rc):
            rec = lastw.get(reg)
            if not rec: continue
            p = rec[2]
            if p.kind == 'valu':
                if x.kind == 'mfma' and reg[0] != 's': need(reg, rec, 2, "VALU->MFMA")
                if x.kind == 'valu' and p.op in TRANS and x.op not in TRANS: need(reg, rec, 1, "trans->VALU")
                if x.op.startswith('v_permlane'): need(reg, rec, 2, "VALU->permlane")
                if x.op in ('v_readfirstlane_b32', 'v_readlane_b32') and reg[0] == 'v': need(reg, rec, 1, "VALU->readlane")
                if reg[0] == 's':
                    if x.kind in ('vld', 'vst', 'dma'): need(reg, rec, 5, "VALU sgpr->VMEM")
                    if x.kind == 'valu': need(reg, rec, 2, "VALU sgpr->VALU")
            if p.kind == 'mfma':
                ps = p.passes
                if x.kind == 'mfma':
                    if reg in x.r: need(reg, rec, {4: 8, 8: 12}[ps], "MFMA D->MFMA A/B")
                    if reg in x.rc and not (x.rc == p.w and x.passes == ps): need(reg, rec, {4: 6, 8: 10}[ps], "MFMA D->MFMA C overlap")
                else:
                    need(reg, rec, {4: 8, 8: 12}[ps], "MFMA D->read")
            if p.kind == 'salu' and reg == ('s', 'm0') and x.kind == 'dma': need(reg, rec, 1, "m0->DMA")
        for reg in set(x.w):
            rec = lastw.get(reg)
            if rec and rec[2].kind == 'mfma' and x.kind != 'mfma':
                need(reg, rec, {4: 8, 8: 12}[rec[2].passes], "MFMA D->WAW")
            if rec and rec[2].kind == 'mfma' and x.kind == 'mfma' and not (x.rc == rec[2].w and x.w == rec[2].w):
                need(reg, rec, {4: 6, 8: 10}[rec[2].passes], "MFMA D->MFMA D WAW (conservative)")
            rc = lastrc.get(reg)
            if rc and x.kind == 'valu': need(reg, rc, {4: 3, 8: 7}[rc[2].passes], "MFMA C read->VALU write")
            st = laststore.get(reg)
            if st: need(reg, st, 2, "store data WAR")
        if x.kind == 'mfma' and ('s', 'exec') in lastw and lastw[('s', 'exec')][2].kind == 'valu':
            need('exec', lastw[('s', 'exec')], 4, "VALU exec->MFMA")
        if x.kind == 'mfma': last_mfma = (pos_m, x.passes)
        pos += x.states; pos_m += x.states
        for reg in x.w: lastw[reg] = (pos, x.kind, x, pos_m)
        for reg in x.rc: lastrc[reg] = (pos, x.kind, x, pos_m)
        if x.kind == 'vst' and len(x.data) > 2:
            for reg in x.data: laststore[reg] = (pos, x.kind, x)
        if x.kind in ('dsr', 'dsw'): lg.append((x.w, n, False))
        if x.kind == 'smem': lg.append((x.w, n, True))
        if x.kind in ('vld', 'vst', 'dma'): vm.append((x.w, n))
        maxlg = max(maxlg, len(lg)); maxvm = max(maxvm, len(vm))
    if verbose:
        print(f"check {name}: {len(ins)} instrs, {len(errs)} errors, max un-waited lgkm {maxlg}, vm {maxvm}")
        for e in errs[:40]: print("  ", e)
    return errs
```

```python
import sys, math
from asmlib import *
from check import check

CFG = dict(nt_kv=True, stamps=False, xcdmap="4x8", codepf=True)
for a in sys.argv[2:]:
    k, v = a.split("=")
    CFG[k] = {"0": False, "1": True}.get(v, v)

MF = "v_mfma_f32_32x32x16_bf16"
def vr(b, n=1): return f"v{b}" if n == 1 else f"v[{b}:{b+n-1}]"
def ar(b, n=1): return f"a{b}" if n == 1 else f"a[{b}:{b+n-1}]"
def sr(b, n=1): return f"s{b}" if n == 1 else f"s[{b}:{b+n-1}]"

def vcost(t):
    return 8 if t.startswith(("v_exp", "v_rcp")) else 4

sX, sWQ, sK, sV, sO = 4, 8, 12, 16, 20
sWAVE, sB, sH, sW4K, sW8K = 24, 25, 26, 27, 28
sXO, sWO = 32, 40
sTILE, sCNT, sTHR, sSC = 44, 46, 47, 48
sRET = 50
sT = 52
sARG = 56
sST = 72
vKA, vVA, vDK, vDV = 1, 9, 13, 17
vL, vMX, vT, vOST = 18, 20, 22, 28
vNEG, vQ, vS = 32, 64, 128
vXA, vWA, vDX, vDW = 32, 40, 44, 46
aO, aF = 0, 128
LK, LV, LW = 0, 65536, 131072
LX = [32768, 98304]
LWQ = [131072, 147456]

def Sreg(p, kb, qb): return vS + 64 * p + 16 * (kb * 2 + qb)
def Oreg(qb, dt): return aO + 16 * (qb * 4 + dt)
def Qreg(qb, s): return vQ + 32 * qb + 4 * s
def Freg(n): return aF + 4 * n
NT = " nt" if CFG["nt_kv"] else ""

nstamp = [0]
def stamp():
    if not CFG["stamps"]: return []
    i = nstamp[0]; nstamp[0] += 1
    return [f"s_memtime {sr(sST + 2*i, 2)}"]

def srd(s, lo, hi, size):
    return [f"s_and_b32 {sr(s+1)}, {sr(s+1)}, 0xffff", f"s_mov_b32 {sr(s+2)}, {size}", f"s_mov_b32 {sr(s+3)}, 0x20000"]

def dma_k(p, soff): return f"buffer_load_dwordx4 {vr(vDK+p)}, {sr(sK,4)}, {soff} offen offset:{1024*p}{NT} lds"
def dma_v(p, soff): return f"buffer_load_dwordx4 {vr(vDV)}, {sr(sV,4)}, {soff} offen offset:{1024*p}{NT} lds"
def m0_k(slot): return f"s_add_u32 m0, {sr(sW4K)}, {LK + slot*16384}"
def m0_v(slot): return f"s_add_u32 m0, {sr(sW4K)}, {LV + slot*16384}"
def kv_batch(which, tile):
    out = [f"s_mov_b32 {sr(sT)}, {tile*16384}"]
    out.insert(0, m0_k(tile % 4) if which == "K" else m0_v(tile % 4))
    for p in range(4): out.append(dma_k(p, sr(sT)) if which == "K" else dma_v(p, sr(sT)))
    return out

def rd_k(slot, n):
    kb, s = n // 8, n % 8
    return f"ds_read_b128 {ar(Freg(n),4)}, {vr(vKA+s)} offset:{slot*16384 + kb*8192}"
def rd_v(slot, n, t):
    ks, dt = n // 4, n % 4
    return f"ds_read_b64_tr_b16 {ar(Freg(n)+2*t,2)}, {vr(vVA+dt)} offset:{slot*16384 + (16*ks+8*t)*256}"

def qk_mfma(p, g, czero=False):
    kb, s, qb = g // 16, (g % 16) // 2, g % 2
    d = Sreg(p, kb, qb)
    c = vr(d, 16) if s else ("0" if czero else vr(vNEG + 16*qb, 16))
    return f"{MF} {vr(d,16)}, {ar(Freg(g//2),4)}, {vr(Qreg(qb,s),4)}, {c}"
def pv_mfma(p, g):
    ks, dt, qb = g // 8, (g % 8) // 2, g % 2
    o = Oreg(qb, dt)
    pr = Sreg(p, ks // 2, qb) + 8 * (ks % 2)
    return f"{MF} {ar(o,16)}, {ar(Freg(g//2),4)}, {vr(pr,4)}, {ar(o,16)}"

def estream(p):
    def reg(e):
        n, j = e // 8, e % 8
        ks, qb = n // 2, n % 2
        return Sreg(p, ks // 2, qb) + 8 * (ks % 2) + j, qb
    out = []
    def add(e):
        r, qb = reg(e); out.append((f"v_add_f32 {vr(vL+qb)}, {vr(r)}, {vr(vL+qb)}", e // 8))
        if e % 2 == 1:
            base = r - (e % 8)
            out.append((f"v_cvt_pk_bf16_f32 {vr(base + (e % 8)//2)}, {vr(r-1)}, {vr(r)}", e // 8))
    for e in range(64):
        r, qb = reg(e)
        out.append((f"v_exp_f32 {vr(r)}, {vr(r)}", e // 8))
        if e: add(e - 1)
    add(63)
    return out

def mstream(p):
    out = []
    ch = {0: [], 1: []}
    for qb in range(2):
        regs = [(Sreg(p, kb, qb) + j, kb) for kb in range(2) for j in range(16)]
        m = vr(vMX + qb)
        ch[qb].append((f"v_max3_f32 {m}, {vr(regs[0][0])}, {vr(regs[1][0])}, {vr(regs[2][0])}", 0))
        i = 3
        while i + 1 < 32:
            ch[qb].append((f"v_max3_f32 {m}, {vr(regs[i][0])}, {vr(regs[i+1][0])}, {m}", regs[i+1][1])); i += 2
        ch[qb].append((f"v_max_f32 {m}, {vr(regs[31][0])}, {m}", 1))
    for a, b in zip(ch[0], ch[1]): out += [a, b]
    return out

BARG = 56
def nv_plan():
    nv = {g: [] for g in range(64)}
    dma_gaps = [3, 7, 11, 15, 19, 23, 27, 31]
    for i, g in enumerate(dma_gaps): nv[g].append(("dma", i))
    nv[2].append(("m0k",)); nv[18].append(("m0v",)); nv[33].append(("tile",))
    free = [g for g in list(range(57, 63)) + list(range(0, 52)) if g not in dma_gaps]
    skip = {35, 43}
    free = [g for g in free if g not in skip]
    assert len(free) == 48, len(free)
    items = [("k", n) for n in range(16)] + [("v", n, t) for n in range(16) for t in range(2)]
    for it, g in zip(items, free): nv[g].insert(0, it)
    return nv
NV = nv_plan()

def lgkm_waits():
    seq = []
    for g in list(range(57, 64)) + list(range(0, 57)):
        for it in NV[g]:
            if it[0] in ("k", "v"): seq.append((g if g < 57 else g - 64, it))
    w = {}
    for g in range(0, 64, 8):
        n0 = g // 2
        kind = "k" if g < 32 else "v"
        last = max(i for i, (_, it) in enumerate(seq) if it[0] == kind and (it[1] + (0 if kind == "k" else 16)) in range(n0, n0 + 4))
        assert seq[last][0] < g - 2, (g, seq[last])
        cnt = sum(1 for i, (gg, _) in enumerate(seq) if i > last and gg < g)
        w[g] = min(cnt, 15)
    return w
LW_ = lgkm_waits()

def valu_plan(p_e, p_m):
    E = estream(p_e); M = mstream(p_m)
    M = M + [(f"v_max_f32 {vr(vT)}, {vr(vMX)}, {vr(vMX+1)}", 1), (f"v_cmp_lt_f32 vcc, {sr(sTHR)}, {vr(vT)}", 1)]
    plan = {g: [] for g in range(64)}
    EG = 55
    tot = sum(vcost(t) for t, _ in E)
    cum = 0
    for t, u in E:
        g = min(EG - 1, int((cum + vcost(t) / 2) * EG / tot))
        plan[g].append(t); cum += vcost(t)
    late = [55, 57, 58, 59, 60, 61, 62]
    nearly = len(M) - 4 * len(late)
    mi = 0
    for g in range(36, EG):
        if mi >= nearly: break
        if sum(vcost(t) for t in plan[g]) <= 12:
            plan[g].append(M[mi][0]); mi += 1
    rest = M[mi:]
    for i, (t, _) in enumerate(rest):
        plan[late[i * len(late) // len(rest)]].append(t)
    return plan

def iteration(u, label_rare):
    p = u % 2
    out = []
    plan = valu_plan(p, 1 - p)
    for g in range(64):
        if g % 8 == 0:
            if g == BARG: out.append("s_waitcnt vmcnt(16) lgkmcnt(0)")
            else: out.append(f"s_waitcnt lgkmcnt({LW_[g]})")
        out.append(qk_mfma(1 - p, g) if g < 32 else pv_mfma(p, g - 32))
        if g == BARG: out.append("s_barrier")
        if g == 63:
            out.append(f"s_cbranch_vccnz {label_rare}")
            out.append(f"{label_rare}_back:")
        for it in NV[g]:
            if it[0] == "k": out.append(rd_k((u + (2 if g > BARG else 1)) % 4, it[1]))
            elif it[0] == "v": out.append(rd_v(u % 4, it[1], it[2]))
            elif it[0] == "dma": out.append(dma_k(it[1], sr(sTILE)) if it[1] < 4 else dma_v(it[1] - 4, sr(sTILE)))
            elif it[0] == "m0k": out.append(m0_k(u % 4))
            elif it[0] == "m0v": out.append(m0_v((u + 3) % 4))
            elif it[0] == "tile": out.append(f"s_add_u32 {sr(sTILE)}, {sr(sTILE)}, 0x4000")
        out += plan[g]
    return out

def tail_iteration(u):
    p = u % 2
    E = estream(p)
    out = []
    out.append("s_waitcnt lgkmcnt(0)")
    reads = [rd_v(u % 4, n, t) for n in range(16) for t in range(2)]
    ei = 0
    def emit_until(unit):
        nonlocal ei
        o = []
        while ei < len(E) and any(uu <= unit for _, uu in E[ei:]):
            o.append(E[ei][0]); ei += 1
        return o
    out += reads[:8]
    out += emit_until(1)
    ri = 8
    for g in range(32):
        ks = g // 8
        if g % 8 == 0:
            pre = emit_until(2 * ks + 1)
            out += pre
            out.append(f"s_waitcnt lgkmcnt({min(15, ri - 8*(ks+1))})")
            out.append("s_nop 0")
        out.append(pv_mfma(p, g))
        for _ in range(2):
            if ri < 32: out.append(reads[ri]); ri += 1
        c = 0
        while ei < len(E) and c + vcost(E[ei][0]) <= 24:
            c += vcost(E[ei][0]); out.append(E[ei][0]); ei += 1
    assert ei == len(E)
    return out

def rowmax_both(qb, dst, tmp):
    return [f"v_mov_b32 {vr(dst)}, {vr(vMX+qb)}", f"v_mov_b32 {vr(tmp)}, {vr(vMX+qb)}", "s_nop 1",
            f"v_permlane32_swap_b32 {vr(dst)}, {vr(tmp)}", "s_nop 1",
            f"v_max_f32 {vr(dst)}, {vr(dst)}, {vr(tmp)}"]

def rare_routine(p, label):
    out = [f"{label}:", "s_nop 15", "s_nop 3"]
    for qb in range(2):
        d, f_, t = vT, vT + 1, vT + 2
        out += rowmax_both(qb, d, t)
        out.append(f"v_max_f32 {vr(d)}, 0, {vr(d)}")
        out.append(f"v_exp_f32 {vr(f_)}, -{vr(d)}")
        for j in range(16): out.append(f"v_sub_f32 {vr(vNEG+16*qb+j)}, {vr(vNEG+16*qb+j)}, {vr(d)}")
        for kb in range(2):
            for j in range(16):
                r = Sreg(p, kb, qb) + j
                out.append(f"v_sub_f32 {vr(r)}, {vr(r)}, {vr(d)}")
        out.append(f"v_mul_f32 {vr(vL+qb)}, {vr(vL+qb)}, {vr(f_)}")
        for j in range(0, 64, 2):
            a0 = Oreg(qb, 0) + j
            out.append(f"v_accvgpr_read_b32 {vr(t)}, {ar(a0)}")
            out.append(f"v_accvgpr_read_b32 {vr(t+1)}, {ar(a0+1)}")
            out.append(f"v_mul_f32 {vr(t)}, {vr(t)}, {vr(f_)}")
            out.append(f"v_mul_f32 {vr(t+1)}, {vr(t+1)}, {vr(f_)}")
            out.append(f"v_accvgpr_write_b32 {ar(a0)}, {vr(t)}")
            out.append(f"v_accvgpr_write_b32 {ar(a0+1)}, {vr(t+1)}")
    out += ["s_nop 3", f"s_setpc_b64 {sr(sRET,2)}"]
    return out

def wfrag(st, s, dt): return (96 if st % 2 == 0 else 192) + 4 * (s * 4 + dt)
def xfrag(st, s, qb): return (160 if st % 2 == 0 else 0) + 4 * (s * 2 + qb)
def qacc(qb, dt): return vS + 16 * (qb * 4 + dt)
def qp_reads(st):
    out = []
    for s in range(4):
        for qb in range(2):
            out.append(f"ds_read_b128 {ar(xfrag(st,s,qb),4)}, {vr(vXA + 4*(st%2) + s)} offset:{qb*4096}")
        for dt in range(4):
            for t in range(2):
                out.append(f"ds_read_b64_tr_b16 {ar(wfrag(st,s,dt)+2*t,2)}, {vr(vWA+dt)} offset:{(st%2)*16384 + (16*s+4*t)*256}")
    return out
def qp_dma(st):
    out = []
    out.append(f"s_add_u32 m0, {sr(sW4K)}, {LWQ[st%2]}")
    out.append("s_nop 0")
    for p in range(4):
        out.append(f"buffer_load_dwordx4 {vr(vDW)}, {sr(sWQ,4)}, {sr(sWO+p)} offen offset:{1024*p} lds")
    for p in range(8):
        if p % 4 == 0:
            out.append(f"s_add_u32 m0, {sr(sW8K)}, {LX[st%2] + (p//4)*4096}")
            out.append("s_nop 0")
        out.append(f"buffer_load_dwordx4 {vr(vDX + p%2)}, {sr(sX,4)}, {sr(sXO+p)} offen offset:{1024*(p%4)} lds")
    out.append(f"v_add_u32 {vr(vDW)}, 0x80000, {vr(vDW)}")
    out.append(f"v_add_u32 {vr(vDX)}, 0x80, {vr(vDX)}")
    out.append(f"v_add_u32 {vr(vDX+1)}, 0x80, {vr(vDX+1)}")
    return out
def ndma(lst): return sum(1 for t in lst if t.startswith("buffer_load"))
def qp_mfmas(st):
    out = []
    if st < 7:
        order = [(s, dt, qb) for s in range(4) for dt in range(4) for qb in range(2)]
    else:
        order = [(s, dt, qb) for dt in range(4) for qb in range(2) for s in range(4)]
    for (s, dt, qb) in order:
        d = qacc(qb, dt)
        c = "0" if (st == 0 and s == 0) else vr(d, 16)
        out.append(f"{MF} {vr(d,16)}, {ar(wfrag(st,s,dt),4)}, {ar(xfrag(st,s,qb),4)}, {c}")
    return out
def qconv(qb, dt):
    out = []
    d = qacc(qb, dt)
    for j in range(0, 16, 2):
        out.append(f"v_mul_f32 {vr(d+j)}, {sr(sSC)}, {vr(d+j)}")
        out.append(f"v_mul_f32 {vr(d+j+1)}, {sr(sSC)}, {vr(d+j+1)}")
        out.append(f"v_cvt_pk_bf16_f32 {vr(Qreg(qb, 2*dt + j//8) + (j%8)//2)}, {vr(d+j)}, {vr(d+j+1)}")
    return out

def setup1():
    o = []
    A = o.append
    A("s_cmp_ge_u32 s2, 256")
    A("s_cbranch_scc1 L1_end")
    o += stamp()
    A(f"s_load_dwordx16 {sr(sARG,16)}, s[0:1], 0")
    if CFG["codepf"]:
        A(f"s_getpc_b64 {sr(sT,2)}")
        A("L1_pc:")
    A(f"s_and_b32 {sr(sT+2)}, s2, 7")
    A(f"s_lshr_b32 {sr(sT+3)}, s2, 3")
    if CFG["xcdmap"] == "4x8":
        A(f"s_and_b32 {sr(sB)}, {sr(sT+2)}, 1"); A(f"s_lshl_b32 {sr(sB)}, {sr(sB)}, 2")
        A(f"s_and_b32 {sr(sH)}, {sr(sT+3)}, 3"); A(f"s_add_u32 {sr(sB)}, {sr(sB)}, {sr(sH)}")
        A(f"s_lshr_b32 {sr(sH)}, {sr(sT+2)}, 1"); A(f"s_lshl_b32 {sr(sH)}, {sr(sH)}, 3")
        A(f"s_lshr_b32 {sr(sT+3)}, {sr(sT+3)}, 2"); A(f"s_add_u32 {sr(sH)}, {sr(sH)}, {sr(sT+3)}")
    else:
        A(f"s_mov_b32 {sr(sB)}, {sr(sT+2)}"); A(f"s_mov_b32 {sr(sH)}, {sr(sT+3)}")
    t0, t1, t2, t3, ln = vT, vT+1, vT+2, vT+3, vT+4
    if CFG["codepf"]:
        A(f"v_lshlrev_b32 {vr(t0)}, 7, v0")
        A(f"v_min_u32 {vr(t0)}, L1_end-L1_pc, {vr(t0)}")
        A(f"global_load_dword {vr(vS)}, {vr(t0)}, {sr(sT,2)}")
    A(f"v_lshrrev_b32 {vr(t0)}, 6, v0")
    A(f"v_and_b32 {vr(ln)}, 63, v0")
    A(f"v_readfirstlane_b32 {sr(sWAVE)}, {vr(t0)}")
    A(f"v_lshrrev_b32 {vr(t1)}, 4, {vr(ln)}")
    A(f"v_and_b32 {vr(t2)}, 15, {vr(ln)}")
    A(f"v_lshl_add_u32 {vr(t0)}, {vr(t0)}, 4, {vr(t1)}")
    A(f"v_lshlrev_b32 {vr(t3)}, 2, {vr(t1)}")
    A(f"v_xor_b32 {vr(t3)}, {vr(t3)}, {vr(t2)}")
    A(f"v_lshlrev_b32 {vr(t3)}, 4, {vr(t3)}")
    A(f"v_lshl_add_u32 {vr(vDW)}, {vr(t0)}, 13, {vr(t3)}")
    A(f"v_lshl_add_u32 {vr(vDV)}, {vr(t0)}, 8, {vr(t3)}")
    for p in range(4):
        A(f"v_add_u32 {vr(t3)}, {4*p}, {vr(t1)}")
        A(f"v_xor_b32 {vr(t3)}, {vr(t3)}, {vr(t2)}")
        A(f"v_lshlrev_b32 {vr(t3)}, 4, {vr(t3)}")
        A(f"v_lshl_add_u32 {vr(vDK+p)}, {vr(t0)}, 8, {vr(t3)}")
    A(f"v_lshrrev_b32 {vr(t0)}, 6, v0")
    A(f"v_lshrrev_b32 {vr(t1)}, 3, {vr(ln)}")
    A(f"v_lshl_add_u32 {vr(t0)}, {vr(t0)}, 6, {vr(t1)}")
    A(f"v_lshrrev_b32 {vr(t1)}, 1, {vr(t1)}")
    A(f"v_and_b32 {vr(t2)}, 7, {vr(ln)}")
    for par in range(2):
        A(f"v_add_u32 {vr(t3)}, {4*par}, {vr(t1)}")
        A(f"v_xor_b32 {vr(t3)}, {vr(t3)}, {vr(t2)}")
        A(f"v_lshlrev_b32 {vr(t3)}, 4, {vr(t3)}")
        A(f"v_lshl_add_u32 {vr(vDX+par)}, {vr(t0)}, 10, {vr(t3)}")
    A(f"s_lshl_b32 {sr(sW4K)}, {sr(sWAVE)}, 12")
    A(f"s_lshl_b32 {sr(sW8K)}, {sr(sWAVE)}, 13")
    for p in range(8): A(f"s_mov_b32 {sr(sXO+p)}, {p*8192 - 1024*(p%4)}")
    for p in range(4): A(f"s_mov_b32 {sr(sWO+p)}, {p*(32768-1024)}")
    A("s_waitcnt lgkmcnt(0)")
    A(f"s_lshl_b32 {sr(sT)}, {sr(sB)}, 18")
    A(f"s_add_u32 {sr(sX)}, {sr(sARG)}, {sr(sT)}"); A(f"s_addc_u32 {sr(sX+1)}, {sr(sARG+1)}, 0")
    o += srd(sX, 0, 0, 0x40000)
    A(f"s_lshl_b32 {sr(sT)}, {sr(sH)}, 8")
    A(f"s_add_u32 {sr(sWQ)}, {sr(sARG+6)}, {sr(sT)}"); A(f"s_addc_u32 {sr(sWQ+1)}, {sr(sARG+7)}, 0")
    o += srd(sWQ, 0, 0, 511*8192 + 256)
    return o

def setup1b():
    o = []
    A = o.append
    t0, t1, t2, t3, ln = vT, vT+1, vT+2, vT+3, vT+4
    A(f"s_lshl_b32 {sr(sT)}, {sr(sB)}, 5"); A(f"s_add_u32 {sr(sT)}, {sr(sT)}, {sr(sH)}"); A(f"s_lshl_b32 {sr(sT)}, {sr(sT)}, 18")
    A(f"s_add_u32 {sr(sK)}, {sr(sARG+2)}, {sr(sT)}"); A(f"s_addc_u32 {sr(sK+1)}, {sr(sARG+3)}, 0")
    o += srd(sK, 0, 0, 0x40000)
    A(f"s_add_u32 {sr(sV)}, {sr(sARG+4)}, {sr(sT)}"); A(f"s_addc_u32 {sr(sV+1)}, {sr(sARG+5)}, 0")
    o += srd(sV, 0, 0, 0x40000)
    A(f"s_lshl_b32 {sr(sT)}, {sr(sB)}, 21"); A(f"s_lshl_b32 {sr(sT+1)}, {sr(sH)}, 13"); A(f"s_add_u32 {sr(sT)}, {sr(sT)}, {sr(sT+1)}")
    A(f"s_add_u32 {sr(sO)}, {sr(sARG+14)}, {sr(sT)}"); A(f"s_addc_u32 {sr(sO+1)}, {sr(sARG+15)}, 0")
    o += srd(sO, 0, 0, 7*262144 + 8192)
    A(f"s_mov_b32 {sr(sTHR)}, 0x41000000")
    import struct
    c = math.log2(math.e) / math.sqrt(128.0)
    A(f"s_mov_b32 {sr(sSC)}, 0x{struct.unpack('<I', struct.pack('<f', c))[0]:08x}")
    hf, r32 = t0, t1
    A(f"v_lshrrev_b32 {vr(hf)}, 5, {vr(ln)}")
    A(f"v_and_b32 {vr(r32)}, 31, {vr(ln)}")
    A(f"v_and_b32 {vr(t2)}, 15, {vr(ln)}")
    for s in range(8):
        A(f"v_add_u32 {vr(t3)}, {2*s}, {vr(hf)}")
        A(f"v_xor_b32 {vr(t3)}, {vr(t3)}, {vr(t2)}")
        A(f"v_lshlrev_b32 {vr(t3)}, 4, {vr(t3)}")
        A(f"v_lshl_add_u32 {vr(vKA+s)}, {vr(r32)}, 8, {vr(t3)}")
    A(f"v_bfe_u32 {vr(t2)}, {vr(ln)}, 1, 3")
    for s in range(4):
        A(f"v_add_u32 {vr(t3)}, {2*s}, {vr(hf)}")
        A(f"v_xor_b32 {vr(t3)}, {vr(t3)}, {vr(t2)}")
        A(f"v_lshlrev_b32 {vr(t3)}, 4, {vr(t3)}")
        A(f"v_lshl_add_u32 {vr(t3)}, {vr(r32)}, 7, {vr(t3)}")
        A(f"v_add_u32 {vr(t3)}, {sr(sW8K)}, {vr(t3)}")
        A(f"v_add_u32 {vr(vXA+s)}, {LX[0]}, {vr(t3)}")
        A(f"v_add_u32 {vr(vXA+4+s)}, {LX[1]}, {vr(t3)}")
    r_, g32, c_ = t1, t2, vT + 5
    A(f"v_bfe_u32 {vr(r_)}, {vr(ln)}, 2, 2")
    A(f"v_bfe_u32 {vr(g32)}, {vr(ln)}, 4, 1")
    A(f"v_lshlrev_b32 {vr(g32)}, 5, {vr(g32)}")
    A(f"v_and_b32 {vr(c_)}, 3, {vr(ln)}")
    A(f"v_lshl_add_u32 {vr(t3)}, {vr(hf)}, 2, {vr(r_)}")
    A(f"v_lshl_add_u32 {vr(t3)}, {vr(t3)}, 8, {vr(g32)}")
    A(f"v_lshl_add_u32 {vr(t3)}, {vr(c_)}, 3, {vr(t3)}")
    A(f"v_add_u32 {vr(t3)}, {LV}, {vr(t3)}")
    for dt in range(4):
        A(f"v_xor_b32 {vr(vVA+dt)}, {dt}, {vr(r_)}")
        A(f"v_lshl_add_u32 {vr(vVA+dt)}, {vr(vVA+dt)}, 6, {vr(t3)}")
    A(f"v_lshl_add_u32 {vr(t3)}, {vr(hf)}, 3, {vr(r_)}")
    A(f"v_lshl_add_u32 {vr(t3)}, {vr(t3)}, 8, {vr(g32)}")
    A(f"v_and_b32 {vr(g32)}, 1, {vr(c_)}")
    A(f"v_lshl_add_u32 {vr(t3)}, {vr(g32)}, 4, {vr(t3)}")
    A(f"v_lshrrev_b32 {vr(g32)}, 1, {vr(c_)}")
    A(f"v_lshl_add_u32 {vr(t3)}, {vr(g32)}, 3, {vr(t3)}")
    A(f"v_add_u32 {vr(t3)}, {LW}, {vr(t3)}")
    for dt in range(4):
        A(f"v_xor_b32 {vr(vWA+dt)}, {dt}, {vr(r_)}")
        A(f"v_lshl_add_u32 {vr(vWA+dt)}, {vr(vWA+dt)}, 6, {vr(t3)}")
    A(f"v_lshlrev_b32 {vr(vOST)}, 4, {vr(ln)}")
    A(f"s_lshl_b32 {sr(sT)}, {sr(sWAVE)}, 19")
    A(f"v_add_u32 {vr(vOST)}, {sr(sT)}, {vr(vOST)}")
    A(f"v_mov_b32 {vr(vL)}, 0"); A(f"v_mov_b32 {vr(vL+1)}, 0")
    for r in range(32, 96): A(f"v_accvgpr_write_b32 {ar(r)}, 0")
    return o

def interleave(mf, nv, va, nv_per_gap=2, vcap=24, nv_start=0, va_start=0, pre=None):
    out = []
    nv = list(nv); va = list(va)
    for g, m in enumerate(mf):
        if pre and g in pre: out += pre[g]
        out.append(m)
        if g >= nv_start:
            k = 0
            while nv and k < nv_per_gap:
                t = nv.pop(0); out.append(t)
                if not t.startswith(("s_nop", "s_add", "s_mov", "v_")): k += 1
        c = 0
        while va and va[0][1] <= g and c + vcost(va[0][0]) <= vcap:
            c += vcost(va[0][0]); out.append(va.pop(0)[0])
    return out, nv, va

def qproj():
    o = []
    issued = []
    def emit_dma(lst, tag):
        issued.extend([tag] * ndma(lst)); return lst
    def wait_for(tag):
        last = max(i for i, t in enumerate(issued) if t == tag)
        return len(issued) - 1 - last
    if CFG["codepf"]: issued.extend(["pf"])
    o += emit_dma(qp_dma(0), "st0")
    o += emit_dma(qp_dma(1), "st1")
    o += setup1b()
    o += emit_dma(kv_batch("K", 0), "K0")
    o.append(f"s_waitcnt vmcnt({wait_for('st0')})")
    o.append("s_barrier")
    o += stamp()
    o += qp_reads(0)
    o.append("s_waitcnt lgkmcnt(0)")
    o.append("s_barrier")
    o += emit_dma(qp_dma(2), "st2")
    extra = {0: [("K", 1)], 1: [("V", 0)], 2: [("V", 1)], 5: [("K", 2), ("K", 3)], 6: [("V", 2)]}
    for st in range(8):
        mf = qp_mfmas(st)
        if st < 7:
            o.append(f"s_waitcnt vmcnt({wait_for('st%d' % (st+1))})")
            o.append(mf[0]); o.append("s_barrier")
            part1, left, _ = interleave(mf[1:21], qp_reads(st + 1), [], nv_per_gap=2)
            assert not left
            o += part1
            o.append(mf[21]); o.append(mf[22])
            o.append("s_waitcnt lgkmcnt(0)")
            o.append(mf[23]); o.append("s_barrier")
            d = []
            if st + 3 <= 7: d += emit_dma(qp_dma(st + 3), "st%d" % (st + 3))
            for (w, t) in extra.get(st, []): d += emit_dma(kv_batch(w, t), f"{w}{t}")
            part2, left, _ = interleave(mf[24:], d, [], nv_per_gap=2)
            o += part2 + left
        else:
            va = [(f"v_accvgpr_write_b32 {ar(r)}, 0", 0) for r in range(96, 128)]
            for dt in range(4):
                for qb in range(2):
                    e = 4 * (dt * 2 + qb) + 3 + 3
                    va += [(t, e) for t in qconv(qb, dt)]
            part, left, va_left = interleave(mf, [rd_k(0, n) for n in range(16)], va, nv_per_gap=1, nv_start=8)
            assert not left
            o += part
    o += stamp()
    va = [(t, 0 if e < 32 + 0 else e - 32 + 2) for t, e in va_left]
    zero = [(f"v_accvgpr_write_b32 {ar(r)}, 0", 4) for r in list(range(0, 32))]
    bias = [(f"v_add_u32 {vr(vDK+p)}, 0x4000, {vr(vDK+p)}", 0) for p in range(4)]
    M = mstream(0)
    m0 = [(t, 20) for t, kb in M if kb == 0]
    m1 = [t for t, kb in M if kb == 1]
    mf = [qk_mfma(0, g, czero=True) for g in range(32)]
    pre = {0: ["s_waitcnt lgkmcnt(0)"], 1: [f"s_waitcnt vmcnt({wait_for('V1')})", "s_barrier"]}
    part, _, left = interleave(mf, [], va + bias + zero + m0, pre=pre)
    o += part
    o += [t for t, _ in left]
    early = [it for g in range(57, 64) for it in NV[g] if it[0] == "k"]
    o += [rd_k(1, it[1]) for it in early]
    o.append(f"s_mov_b32 {sr(sTILE)}, {3*16384}")
    o.append(f"s_mov_b32 {sr(sCNT)}, 0")
    o.append("s_nop 7")
    o += m1
    for qb in range(2):
        o += rowmax_both(qb, vT + qb, vT + 2)
    for qb in range(2):
        for j in range(16): o.append(f"v_sub_f32 {vr(vNEG+16*qb+j)}, 0, {vr(vT+qb)}")
    for kb in range(2):
        for qb in range(2):
            for j in range(16):
                r = Sreg(0, kb, qb) + j
                o.append(f"v_sub_f32 {vr(r)}, {vr(r)}, {vr(vT+qb)}")
    assert issued[-8:] == ["K3"] * 4 + ["V2"] * 4, issued
    o += stamp()
    return o

def epilogue1():
    o = []
    A = o.append
    o += stamp()
    for qb in range(2):
        d, t = vT + 2 * qb, vT + 2 * qb + 1
        A(f"v_mov_b32 {vr(d)}, {vr(vL+qb)}"); A(f"v_mov_b32 {vr(t)}, {vr(vL+qb)}"); A("s_nop 1")
        A(f"v_permlane32_swap_b32 {vr(d)}, {vr(t)}"); A("s_nop 1")
        A(f"v_add_f32 {vr(d)}, {vr(d)}, {vr(t)}")
        A(f"v_rcp_f32 {vr(d)}, {vr(d)}")
    A(f"s_mov_b32 {sr(sT)}, 0"); A(f"s_mov_b32 {sr(sT+1)}, 4096"); A(f"s_mov_b32 {sr(sT+2)}, {262144}"); A(f"s_mov_b32 {sr(sT+3)}, {262144+4096}")
    A("s_nop 7")
    for qb in range(2):
        for dt in range(4):
            base = vNEG + 24 * ((qb * 4 + dt) % 8)
            for j in range(16): A(f"v_accvgpr_read_b32 {vr(base+j)}, {ar(Oreg(qb,dt)+j)}")
            for j in range(0, 16, 2):
                A(f"v_pk_mul_f32 {vr(base+j,2)}, {vr(base+j,2)}, {vr(vT+2*qb,2)} op_sel_hi:[1,0]")
            for j in range(0, 16, 2):
                A(f"v_cvt_pk_bf16_f32 {vr(base+16+j//2)}, {vr(base+j)}, {vr(base+j+1)}")
            for s in range(2):
                ks = 2 * dt + s
                A(f"buffer_store_dwordx4 {vr(base+16+4*s,4)}, {vr(vOST)}, {sr(sO,4)}, {sr(sT + 2*qb + ks//4)} offen offset:{1024*(ks%4)}")
    return o

def stamp_out(label, wsarg):
    if not CFG["stamps"]: return []
    o = ["s_waitcnt vmcnt(0)"] + stamp() + ["s_waitcnt lgkmcnt(0)"]
    n = nstamp[0]
    A = o.append
    A(f"s_add_u32 s4, {sr(wsarg)}, {CFG['stampoff']}"); A(f"s_addc_u32 s5, {sr(wsarg+1)}, 0")
    A("s_and_b32 s5, s5, 0xffff"); A("s_mov_b32 s6, 0x100000"); A("s_mov_b32 s7, 0x20000")
    A("s_lshl_b32 s3, s2, 9")
    A("v_lshrrev_b32 v1, 6, v0"); A("v_lshlrev_b32 v1, 7, v1"); A("v_add_u32 v1, s3, v1")
    A("v_and_b32 v2, 63, v0")
    A("v_cmp_eq_u32 vcc, 0, v2")
    A("s_and_saveexec_b64 s[30:31], vcc")
    A(f"s_cbranch_execz {label}")
    for i in range(n):
        A(f"v_mov_b32 v4, {sr(sST+2*i)}"); A(f"v_mov_b32 v5, {sr(sST+2*i+1)}")
        A(f"buffer_store_dwordx2 v[4:5], v1, s[4:7], 0 offen offset:{8*i}")
        A("s_waitcnt vmcnt(0)")
    return o

def kernel1():
    nstamp[0] = 0
    CFG["stampoff"] = 0x4000000
    pro = setup1() + qproj()
    its = [iteration(u, f"L1_rare{u}") for u in range(4)]
    tail = tail_iteration(3)
    epi = epilogue1()
    body = list(pro)
    body.append("L1_loop:")
    for u in range(4):
        it = list(its[u])
        if u == 2:
            it.append(f"s_cmp_eq_u32 {sr(sCNT)}, 3")
            it.append("s_cbranch_scc1 L1_tail")
        if u == 3:
            it.append(f"s_add_u32 {sr(sCNT)}, {sr(sCNT)}, 1")
            it.append("s_branch L1_loop")
        body += it
    body.append("L1_tail:")
    body += tail + epi
    body += stamp_out("L1_end", sARG + 14)
    body.append("L1_end:")
    body.append("s_endpgm")
    for u in range(4):
        body.append(f"L1_rare{u}:")
        body.append(f"s_call_b64 {sr(sRET,2)}, L1_rr{1 - u % 2}")
        body.append(f"s_branch L1_rare{u}_back")
    for p in range(2): body += rare_routine(p, f"L1_rr{p}")
    trace = pro + its[0] + its[1] + its[2] + its[3] + its[0] + its[1] + its[2] + tail + epi
    check(trace, "k1")
    for p in range(2):
        u = 1 - p
        it = its[u]; k = it.index(f"L1_rare{u}_back:")
        check(its[(u+3) % 4] + it[:k] + rare_routine(p, "x")[1:] + it[k:] + its[(u+1) % 4], f"rare{p}")
    return "\n".join(body)

def kernel2():
    nstamp[0] = 0
    CFG["stampoff"] = 0x4100000
    o = []
    A = o.append
    sOO, sWo, sOUT = 4, 8, 12
    sW32K, sOoff, sWoff, sMT, sNT = 24, 25, 26, 27, 28
    vOA, vWD, vWR, vOF, vWF = 1, 3, 4, 32, 16
    D = 14
    A("s_cmp_ge_u32 s2, 256")
    A("s_cbranch_scc1 L2_end")
    o += stamp()
    A(f"s_load_dwordx8 {sr(sARG,8)}, s[0:1], 32")
    if CFG["codepf"]:
        A(f"s_getpc_b64 {sr(sT,2)}")
        A("L2_pc:")
        A(f"v_lshlrev_b32 v6, 7, v0")
        A(f"v_min_u32 v6, L2_end-L2_pc, v6")
        A(f"global_load_dword v200, v6, {sr(sT,2)}")
    A(f"s_and_b32 {sr(sT+2)}, s2, 7")
    A(f"s_lshr_b32 {sr(sT+3)}, s2, 3")
    A(f"s_and_b32 {sr(sMT)}, {sr(sT+3)}, 3")
    A(f"s_lshr_b32 {sr(sNT)}, {sr(sT+3)}, 2")
    A("v_lshrrev_b32 v6, 6, v0")
    A("v_and_b32 v7, 63, v0")
    A(f"v_readfirstlane_b32 {sr(sW32K)}, v6")
    A(f"v_lshlrev_b32 {vr(vOA)}, 4, v7")
    A(f"v_lshl_add_u32 {vr(vOA)}, v6, 16, {vr(vOA)}")
    A(f"v_add_u32 {vr(vOA+1)}, 0x40000, {vr(vOA)}")
    A("v_lshrrev_b32 v8, 3, v7")
    A("v_lshl_add_u32 v9, v6, 10, v8")
    A("v_bfe_u32 v8, v7, 4, 1")
    A("v_lshlrev_b32 v8, 2, v8")
    A("v_and_b32 v10, 7, v7")
    A("v_xor_b32 v8, v8, v10")
    A("v_lshlrev_b32 v8, 4, v8")
    A(f"v_lshl_add_u32 {vr(vWD)}, v9, 10, v8")
    A(f"s_lshl_b32 {sr(sW32K)}, {sr(sW32K)}, 15")
    A("v_lshrrev_b32 v8, 5, v7")
    A("v_bfe_u32 v9, v7, 2, 2")
    A("v_lshl_add_u32 v8, v8, 2, v9")
    A("v_lshlrev_b32 v8, 7, v8")
    A("v_bfe_u32 v10, v7, 4, 1")
    A("v_lshl_add_u32 v8, v10, 5, v8")
    A("v_and_b32 v10, 3, v7")
    A("v_lshl_add_u32 v8, v10, 3, v8")
    A(f"v_add_u32 v8, {sr(sW32K)}, v8")
    A("v_lshrrev_b32 v9, 1, v9")
    A(f"v_lshl_add_u32 {vr(vWR)}, v9, 6, v8")
    A("v_xor_b32 v9, 1, v9")
    A(f"v_lshl_add_u32 {vr(vWR+1)}, v9, 6, v8")
    A("s_waitcnt lgkmcnt(0)")
    A(f"s_lshl_b32 {sr(sT)}, {sr(sT+2)}, 21"); A(f"s_lshl_b32 {sr(sT+1)}, {sr(sMT)}, 19"); A(f"s_add_u32 {sr(sT)}, {sr(sT)}, {sr(sT+1)}")
    A(f"s_add_u32 {sr(sOO)}, {sr(sARG+6)}, {sr(sT)}"); A(f"s_addc_u32 {sr(sOO+1)}, {sr(sARG+7)}, 0")
    o += srd(sOO, 0, 0, 0x80000)
    A(f"s_lshl_b32 {sr(sT)}, {sr(sNT)}, 7")
    A(f"s_add_u32 {sr(sWo)}, {sr(sARG)}, {sr(sT)}"); A(f"s_addc_u32 {sr(sWo+1)}, {sr(sARG+1)}, 0")
    o += srd(sWo, 0, 0, 4095*1024 + 128)
    A(f"s_lshl_b32 {sr(sT+1)}, {sr(sT+2)}, 18"); A(f"s_add_u32 {sr(sT)}, {sr(sT)}, {sr(sT+1)}")
    A(f"s_lshl_b32 {sr(sT+1)}, {sr(sMT)}, 16"); A(f"s_add_u32 {sr(sT)}, {sr(sT)}, {sr(sT+1)}")
    A(f"s_add_u32 {sr(sOUT)}, {sr(sARG+2)}, {sr(sT)}"); A(f"s_addc_u32 {sr(sOUT+1)}, {sr(sARG+3)}, 0")
    o += srd(sOUT, 0, 0, 63*1024 + 128)
    def of(k, qb): return vOF + 8 * (k % 16) + 4 * qb
    def loads(k):
        l = []
        if k % 2 == 0: l.append(f"s_add_u32 m0, {sr(sW32K)}, {(k % 16) * 2048}")
        if k % 4 == 0: l.append(f"s_mov_b32 {sr(sOoff)}, {k * 1024}")
        for h in range(2):
            io = (k % 2) * 2048 + h * 1024
            l.append(f"s_mov_b32 {sr(sWoff)}, {(16*k + 8*h)*1024 - io}")
            l.append(f"buffer_load_dwordx4 {vr(vWD)}, {sr(sWo,4)}, {sr(sWoff)} offen offset:{io} lds")
        for qb in range(2):
            l.append(f"buffer_load_dwordx4 {vr(of(k,qb),4)}, {vr(vOA+qb)}, {sr(sOO,4)}, {sr(sOoff)} offen offset:{(k%4)*1024}")
        return l
    def wreads(k):
        return [f"ds_read_b64_tr_b16 {vr(vWF + 8*(k%2) + 4*n + 2*t, 2)}, {vr(vWR+n)} offset:{(k%16)*2048 + t*1024}" for n in range(2) for t in range(2)]
    for k in range(D): o += loads(k)
    A(f"s_waitcnt vmcnt({4*(D-1)})")
    o += stamp()
    o += wreads(0)
    for k in range(64):
        nld = min(64, k + D)
        if k + 1 < 64:
            A(f"s_waitcnt vmcnt({4*(nld - (k+2))})")
            o += wreads(k + 1)
            A("s_waitcnt lgkmcnt(4)")
        else:
            A("s_waitcnt lgkmcnt(0)")
        mf = []
        for n in range(2):
            for qb in range(2):
                d = ar(16 * (n * 2 + qb), 16)
                mf.append(f"{MF} {d}, {vr(vWF + 8*(k%2) + 4*n, 4)}, {vr(of(k,qb),4)}, {d if k else 0}")
        ld = loads(k + D) if k + D < 64 else []
        part, left, _ = interleave(mf, ld, [], nv_per_gap=1)
        o += part + left
    o += stamp()
    A("v_and_b32 v8, 31, v7"); A("v_lshrrev_b32 v9, 5, v7"); A("v_and_b32 v10, 15, v7")
    A("v_xor_b32 v10, v10, v9"); A("v_lshlrev_b32 v10, 4, v10")
    A("v_lshl_add_u32 v8, v8, 8, v10")
    A(f"v_add_u32 v8, {sr(sW32K)}, v8")
    for c in range(8): A(f"v_xor_b32 {vr(16+c)}, {c*32}, v8")
    A("s_nop 7")
    for n in range(2):
        for qb in range(2):
            for a in range(4):
                A(f"ds_write_b128 {vr(16 + n*4 + a)}, {ar(16*(n*2+qb) + 4*a, 4)} offset:{qb*8192}")
    A("v_lshrrev_b32 v8, 3, v0"); A("v_and_b32 v9, 7, v0"); A("v_lshlrev_b32 v10, 1, v9")
    A("v_and_b32 v11, 15, v8"); A("v_xor_b32 v10, v10, v11"); A("v_lshlrev_b32 v10, 4, v10")
    A("v_lshl_add_u32 v10, v8, 8, v10"); A("v_xor_b32 v11, 16, v10")
    A("v_add_u32 v12, 0x10000, v10"); A("v_add_u32 v13, 0x10000, v11")
    A("v_lshlrev_b32 v9, 4, v9"); A("v_lshl_add_u32 v14, v8, 10, v9")
    A("s_waitcnt lgkmcnt(0)")
    A("s_barrier")
    for z in range(2):
        for w in range(4):
            for i in range(2):
                A(f"ds_read_b128 {vr(32 + z*32 + w*8 + i*4, 4)}, {vr(10 + 2*(w//2) + i)} offset:{(w%2)*32768 + z*8192}")
    A(f"s_mov_b32 {sr(sT)}, {32*1024}")
    for z in range(2):
        A(f"s_waitcnt lgkmcnt({8 if z == 0 else 0})")
        b = 32 + z * 32
        for j in range(8):
            A(f"v_add_f32 {vr(b+j)}, {vr(b+j)}, {vr(b+8+j)}")
            A(f"v_add_f32 {vr(b+16+j)}, {vr(b+16+j)}, {vr(b+24+j)}")
        for j in range(8): A(f"v_add_f32 {vr(b+j)}, {vr(b+j)}, {vr(b+16+j)}")
        for j in range(4): A(f"v_cvt_pk_bf16_f32 {vr(b+8+j)}, {vr(b+2*j)}, {vr(b+2*j+1)}")
        A(f"buffer_store_dwordx4 {vr(b+8,4)}, v14, {sr(sOUT,4)}, {sr(sT) if z else 0} offen")
    o += stamp_out("L2_end", sARG + 6)
    A("L2_end:")
    A("s_endpgm")
    check(o, "k2")
    return "\n".join(o)

if __name__ == "__main__":
    k1 = kernel1(); k2 = kernel2()
    txt = file_text([
        dict(label="mha_attn_kernel", body=k1, grid=256, block=256, lds=163840, vgpr=512, accum=256),
        dict(label="mha_oproj_kernel", body=k2, grid=256, block=256, lds=131072, vgpr=512, accum=256),
    ])
    open(sys.argv[1], "w").write(txt)
    pl = valu_plan(0, 1)
    print("valu cost per gap:", [sum(vcost(t) for t in pl[g]) for g in range(64)])
    print("lgkm waits:", LW_)
```

```python
import sys, math
from asmlib import *
from check import check

CFG = dict(nt_kv=True, stamps=False, xcdmap="4x8", codepf=True, ost="", wold="", old="", xld="", wqld="", k2skip="", rot=True, wst="", rot2=True, map2="b")
for a in sys.argv[2:]:
    k, v = a.split("=")
    CFG[k] = {"0": False, "1": True}.get(v, v)

MF = "v_mfma_f32_32x32x16_bf16"
def vr(b, n=1): return f"v{b}" if n == 1 else f"v[{b}:{b+n-1}]"
def ar(b, n=1): return f"a{b}" if n == 1 else f"a[{b}:{b+n-1}]"
def sr(b, n=1): return f"s{b}" if n == 1 else f"s[{b}:{b+n-1}]"

def vcost(t):
    return 8 if t.startswith(("v_exp", "v_rcp")) else 4

sX, sWQ, sK, sV, sO = 4, 8, 12, 16, 20
sWAVE, sB, sH, sW4K, sW8K = 24, 25, 26, 27, 28
sXO, sWO = 32, 40
sTILE, sCNT, sTHR, sSC = 44, 46, 47, 48
sRET = 50
sROT = 29
sWF = 84
sWOs = 88
vDXB, vDWB = 47, 49
WOF_OFF = 0x1000000
sT = 52
sARG = 56
sST = 72
vKA, vVA, vDK, vDV = 1, 9, 13, 17
vL, vMX, vT, vOST = 18, 20, 22, 28
vNEG, vQ, vS = 32, 64, 128
vXA, vWA, vDX, vDW = 32, 40, 44, 46
aO, aF = 0, 128
LK, LV, LW = 0, 65536, 131072
LX = [32768, 98304]
LWQ = [131072, 147456]

def Sreg(p, kb, qb): return vS + 64 * p + 16 * (kb * 2 + qb)
def Oreg(qb, dt): return aO + 16 * (qb * 4 + dt)
def Qreg(qb, s): return vQ + 32 * qb + 4 * s
def Freg(n): return aF + 4 * n
NT = " nt" if CFG["nt_kv"] else ""

nstamp = [0]
def stamp():
    if not CFG["stamps"]: return []
    i = nstamp[0]; nstamp[0] += 1
    return [f"s_memtime {sr(sST + 2*i, 2)}"] + ([f"s_memrealtime s[98:99]"] if i == 0 else [])

def srd(s, lo, hi, size):
    return [f"s_and_b32 {sr(s+1)}, {sr(s+1)}, 0xffff", f"s_mov_b32 {sr(s+2)}, {size}", f"s_mov_b32 {sr(s+3)}, 0x20000"]

def dma_k(p, soff): return f"buffer_load_dwordx4 {vr(vDK+p)}, {sr(sK,4)}, {soff} offen offset:{1024*p}{NT} lds"
def dma_v(p, soff): return f"buffer_load_dwordx4 {vr(vDV)}, {sr(sV,4)}, {soff} offen offset:{1024*p}{NT} lds"
def m0_k(slot): return f"s_add_u32 m0, {sr(sW4K)}, {LK + slot*16384}"
def m0_v(slot): return f"s_add_u32 m0, {sr(sW4K)}, {LV + slot*16384}"
def kv_batch(which, tile):
    out = [f"s_mov_b32 {sr(sT)}, {tile*16384}"]
    out.insert(0, m0_k(tile % 4) if which == "K" else m0_v(tile % 4))
    for p in range(4): out.append(dma_k(p, sr(sT)) if which == "K" else dma_v(p, sr(sT)))
    return out

def rd_k(slot, n):
    kb, s = n // 8, n % 8
    return f"ds_read_b128 {ar(Freg(n),4)}, {vr(vKA+s)} offset:{slot*16384 + kb*8192}"
def rd_v(slot, n, t):
    ks, dt = n // 4, n % 4
    return f"ds_read_b64_tr_b16 {ar(Freg(n)+2*t,2)}, {vr(vVA+dt)} offset:{slot*16384 + (16*ks+8*t)*256}"

def qk_mfma(p, g, czero=False):
    kb, s, qb = g // 16, (g % 16) // 2, g % 2
    d = Sreg(p, kb, qb)
    c = vr(d, 16) if s else ("0" if czero else vr(vNEG + 16*qb, 16))
    return f"{MF} {vr(d,16)}, {ar(Freg(g//2),4)}, {vr(Qreg(qb,s),4)}, {c}"
def pv_mfma(p, g):
    ks, dt, qb = g // 8, (g % 8) // 2, g % 2
    o = Oreg(qb, dt)
    pr = Sreg(p, ks // 2, qb) + 8 * (ks % 2)
    return f"{MF} {ar(o,16)}, {ar(Freg(g//2),4)}, {vr(pr,4)}, {ar(o,16)}"

def estream(p):
    def reg(e):
        n, j = e // 8, e % 8
        ks, qb = n // 2, n % 2
        return Sreg(p, ks // 2, qb) + 8 * (ks % 2) + j, qb
    out = []
    def add(e):
        r, qb = reg(e); out.append((f"v_add_f32 {vr(vL+qb)}, {vr(r)}, {vr(vL+qb)}", e // 8))
        if e % 2 == 1:
            base = r - (e % 8)
            out.append((f"v_cvt_pk_bf16_f32 {vr(base + (e % 8)//2)}, {vr(r-1)}, {vr(r)}", e // 8))
    for e in range(64):
        r, qb = reg(e)
        out.append((f"v_exp_f32 {vr(r)}, {vr(r)}", e // 8))
        if e: add(e - 1)
    add(63)
    return out

def mstream(p):
    out = []
    ch = {0: [], 1: []}
    for qb in range(2):
        regs = [(Sreg(p, kb, qb) + j, kb) for kb in range(2) for j in range(16)]
        m = vr(vMX + qb)
        ch[qb].append((f"v_max3_f32 {m}, {vr(regs[0][0])}, {vr(regs[1][0])}, {vr(regs[2][0])}", 0))
        i = 3
        while i + 1 < 32:
            ch[qb].append((f"v_max3_f32 {m}, {vr(regs[i][0])}, {vr(regs[i+1][0])}, {m}", regs[i+1][1])); i += 2
        ch[qb].append((f"v_max_f32 {m}, {vr(regs[31][0])}, {m}", 1))
    for a, b in zip(ch[0], ch[1]): out += [a, b]
    return out

BARG = 56
def nv_plan():
    nv = {g: [] for g in range(64)}
    dma_gaps = [3, 7, 11, 15, 19, 23, 27, 31]
    for i, g in enumerate(dma_gaps): nv[g].append(("dma", i))
    nv[2].append(("m0k",)); nv[18].append(("m0v",)); nv[33].append(("tile",))
    free = [g for g in list(range(57, 63)) + list(range(0, 52)) if g not in dma_gaps]
    skip = {35, 43}
    free = [g for g in free if g not in skip]
    assert len(free) == 48, len(free)
    items = [("k", n) for n in range(16)] + [("v", n, t) for n in range(16) for t in range(2)]
    for it, g in zip(items, free): nv[g].insert(0, it)
    return nv
NV = nv_plan()

def lgkm_waits():
    seq = []
    for g in list(range(57, 64)) + list(range(0, 57)):
        for it in NV[g]:
            if it[0] in ("k", "v"): seq.append((g if g < 57 else g - 64, it))
    w = {}
    for g in range(0, 64, 8):
        n0 = g // 2
        kind = "k" if g < 32 else "v"
        last = max(i for i, (_, it) in enumerate(seq) if it[0] == kind and (it[1] + (0 if kind == "k" else 16)) in range(n0, n0 + 4))
        assert seq[last][0] < g - 2, (g, seq[last])
        cnt = sum(1 for i, (gg, _) in enumerate(seq) if i > last and gg < g)
        w[g] = min(cnt, 15)
    return w
LW_ = lgkm_waits()

def valu_plan(p_e, p_m):
    E = estream(p_e); M = mstream(p_m)
    M = M + [(f"v_max_f32 {vr(vT)}, {vr(vMX)}, {vr(vMX+1)}", 1), (f"v_cmp_lt_f32 vcc, {sr(sTHR)}, {vr(vT)}", 1)]
    plan = {g: [] for g in range(64)}
    EG = 55
    tot = sum(vcost(t) for t, _ in E)
    cum = 0
    for t, u in E:
        g = min(EG - 1, int((cum + vcost(t) / 2) * EG / tot))
        plan[g].append(t); cum += vcost(t)
    late = [55, 57, 58, 59, 60, 61, 62]
    nearly = len(M) - 4 * len(late)
    mi = 0
    for g in range(36, EG):
        if mi >= nearly: break
        if sum(vcost(t) for t in plan[g]) <= 12:
            plan[g].append(M[mi][0]); mi += 1
    rest = M[mi:]
    for i, (t, _) in enumerate(rest):
        plan[late[i * len(late) // len(rest)]].append(t)
    return plan

def iteration(u, label_rare):
    p = u % 2
    out = []
    plan = valu_plan(p, 1 - p)
    for g in range(64):
        if g % 8 == 0:
            if g == BARG: out.append("s_waitcnt vmcnt(16) lgkmcnt(0)")
            else: out.append(f"s_waitcnt lgkmcnt({LW_[g]})")
        out.append(qk_mfma(1 - p, g) if g < 32 else pv_mfma(p, g - 32))
        if g == BARG: out.append("s_barrier")
        if g == 63:
            out.append(f"s_cbranch_vccnz {label_rare}")
            out.append(f"{label_rare}_back:")
        for it in NV[g]:
            if it[0] == "k": out.append(rd_k((u + (2 if g > BARG else 1)) % 4, it[1]))
            elif it[0] == "v": out.append(rd_v(u % 4, it[1], it[2]))
            elif it[0] == "dma": out.append(dma_k(it[1], sr(sTILE)) if it[1] < 4 else dma_v(it[1] - 4, sr(sTILE)))
            elif it[0] == "m0k": out.append(m0_k(u % 4))
            elif it[0] == "m0v": out.append(m0_v((u + 3) % 4))
            elif it[0] == "tile": out.append(f"s_add_u32 {sr(sTILE)}, {sr(sTILE)}, 0x4000")
        out += plan[g]
    return out

def tail_iteration(u):
    p = u % 2
    E = estream(p)
    out = []
    out.append("s_waitcnt lgkmcnt(0)")
    reads = [rd_v(u % 4, n, t) for n in range(16) for t in range(2)]
    ei = 0
    def emit_until(unit):
        nonlocal ei
        o = []
        while ei < len(E) and any(uu <= unit for _, uu in E[ei:]):
            o.append(E[ei][0]); ei += 1
        return o
    out += reads[:8]
    out += emit_until(1)
    ri = 8
    for g in range(32):
        ks = g // 8
        if g % 8 == 0:
            pre = emit_until(2 * ks + 1)
            out += pre
            out.append(f"s_waitcnt lgkmcnt({min(15, ri - 8*(ks+1))})")
            out.append("s_nop 0")
        out.append(pv_mfma(p, g))
        for _ in range(2):
            if ri < 32: out.append(reads[ri]); ri += 1
        c = 0
        while ei < len(E) and c + vcost(E[ei][0]) <= 24:
            c += vcost(E[ei][0]); out.append(E[ei][0]); ei += 1
    assert ei == len(E)
    return out

def rowmax_both(qb, dst, tmp):
    return [f"v_mov_b32 {vr(dst)}, {vr(vMX+qb)}", f"v_mov_b32 {vr(tmp)}, {vr(vMX+qb)}", "s_nop 1",
            f"v_permlane32_swap_b32 {vr(dst)}, {vr(tmp)}", "s_nop 1",
            f"v_max_f32 {vr(dst)}, {vr(dst)}, {vr(tmp)}"]

def rare_routine(p, label):
    out = [f"{label}:", "s_nop 15", "s_nop 3"]
    for qb in range(2):
        d, f_, t = vT, vT + 1, vT + 2
        out += rowmax_both(qb, d, t)
        out.append(f"v_max_f32 {vr(d)}, 0, {vr(d)}")
        out.append(f"v_exp_f32 {vr(f_)}, -{vr(d)}")
        for j in range(16): out.append(f"v_sub_f32 {vr(vNEG+16*qb+j)}, {vr(vNEG+16*qb+j)}, {vr(d)}")
        for kb in range(2):
            for j in range(16):
                r = Sreg(p, kb, qb) + j
                out.append(f"v_sub_f32 {vr(r)}, {vr(r)}, {vr(d)}")
        out.append(f"v_mul_f32 {vr(vL+qb)}, {vr(vL+qb)}, {vr(f_)}")
        for j in range(0, 64, 2):
            a0 = Oreg(qb, 0) + j
            out.append(f"v_accvgpr_read_b32 {vr(t)}, {ar(a0)}")
            out.append(f"v_accvgpr_read_b32 {vr(t+1)}, {ar(a0+1)}")
            out.append(f"v_mul_f32 {vr(t)}, {vr(t)}, {vr(f_)}")
            out.append(f"v_mul_f32 {vr(t+1)}, {vr(t+1)}, {vr(f_)}")
            out.append(f"v_accvgpr_write_b32 {ar(a0)}, {vr(t)}")
            out.append(f"v_accvgpr_write_b32 {ar(a0+1)}, {vr(t+1)}")
    out += ["s_nop 3", f"s_setpc_b64 {sr(sRET,2)}"]
    return out

def wfrag(st, s, dt): return (96 if st % 2 == 0 else 192) + 4 * (s * 4 + dt)
def xfrag(st, s, qb): return (160 if st % 2 == 0 else 0) + 4 * (s * 2 + qb)
def qacc(qb, dt): return vS + 16 * (qb * 4 + dt)
def qp_reads(st):
    out = []
    for s in range(4):
        for qb in range(2):
            out.append(f"ds_read_b128 {ar(xfrag(st,s,qb),4)}, {vr(vXA + 4*(st%2) + s)} offset:{qb*4096}")
        for dt in range(4):
            for t in range(2):
                out.append(f"ds_read_b64_tr_b16 {ar(wfrag(st,s,dt)+2*t,2)}, {vr(vWA+dt)} offset:{(st%2)*16384 + (16*s+4*t)*256}")
    return out
def qp_dma(st):
    out = []
    out.append(f"s_add_u32 {sr(sT)}, {sr(sROT)}, {st}")
    out.append(f"s_and_b32 {sr(sT)}, {sr(sT)}, 7")
    out.append(f"s_lshl_b32 {sr(sT+1)}, {sr(sT)}, 19")
    out.append(f"s_lshl_b32 {sr(sT)}, {sr(sT)}, 7")
    out.append(f"s_add_u32 m0, {sr(sW4K)}, {LWQ[st%2]}")
    out.append(f"v_add_u32 {vr(vDW)}, {sr(sT+1)}, {vr(vDWB)}")
    out.append(f"v_add_u32 {vr(vDX)}, {sr(sT)}, {vr(vDXB)}")
    out.append(f"v_add_u32 {vr(vDX+1)}, {sr(sT)}, {vr(vDXB+1)}")
    wf = (" " + CFG["wqld"]) if CFG["wqld"] else ""
    xf = (" " + CFG["xld"]) if CFG["xld"] else ""
    for p in range(4):
        out.append(f"buffer_load_dwordx4 {vr(vDW)}, {sr(sWQ,4)}, {sr(sWO+p)} offen offset:{1024*p}{wf} lds")
    for p in range(8):
        if p % 4 == 0:
            out.append(f"s_add_u32 m0, {sr(sW8K)}, {LX[st%2] + (p//4)*4096}")
            out.append("s_nop 0")
        out.append(f"buffer_load_dwordx4 {vr(vDX + p%2)}, {sr(sX,4)}, {sr(sXO+p)} offen offset:{1024*(p%4)}{xf} lds")
    return out
def ndma(lst): return sum(1 for t in lst if t.startswith("buffer_"))
def qp_mfmas(st):
    out = []
    if st < 7:
        order = [(s, dt, qb) for s in range(4) for dt in range(4) for qb in range(2)]
    else:
        order = [(s, dt, qb) for dt in range(4) for qb in range(2) for s in range(4)]
    for (s, dt, qb) in order:
        d = qacc(qb, dt)
        c = "0" if (st == 0 and s == 0) else vr(d, 16)
        out.append(f"{MF} {vr(d,16)}, {ar(wfrag(st,s,dt),4)}, {ar(xfrag(st,s,qb),4)}, {c}")
    return out
def qconv(qb, dt):
    out = []
    d = qacc(qb, dt)
    for j in range(0, 16, 2):
        out.append(f"v_mul_f32 {vr(d+j)}, {sr(sSC)}, {vr(d+j)}")
        out.append(f"v_mul_f32 {vr(d+j+1)}, {sr(sSC)}, {vr(d+j+1)}")
        out.append(f"v_cvt_pk_bf16_f32 {vr(Qreg(qb, 2*dt + j//8) + (j%8)//2)}, {vr(d+j)}, {vr(d+j+1)}")
    return out

def setup1():
    o = []
    A = o.append
    A("s_cmp_ge_u32 s2, 256")
    A("s_cbranch_scc1 L1_end")
    o += stamp()
    A(f"s_load_dwordx16 {sr(sARG,16)}, s[0:1], 0")
    if CFG["codepf"]:
        A(f"s_getpc_b64 {sr(sT,2)}")
        A("L1_pc:")
    A(f"s_and_b32 {sr(sT+2)}, s2, 7")
    A(f"s_lshr_b32 {sr(sT+3)}, s2, 3")
    if CFG["xcdmap"] == "4x8":
        A(f"s_and_b32 {sr(sB)}, {sr(sT+2)}, 1"); A(f"s_lshl_b32 {sr(sB)}, {sr(sB)}, 2")
        A(f"s_and_b32 {sr(sH)}, {sr(sT+3)}, 3"); A(f"s_add_u32 {sr(sB)}, {sr(sB)}, {sr(sH)}")
        A(f"s_lshr_b32 {sr(sH)}, {sr(sT+2)}, 1"); A(f"s_lshl_b32 {sr(sH)}, {sr(sH)}, 3")
        A(f"s_lshr_b32 {sr(sT+3)}, {sr(sT+3)}, 2"); A(f"s_add_u32 {sr(sH)}, {sr(sH)}, {sr(sT+3)}")
    else:
        A(f"s_mov_b32 {sr(sB)}, {sr(sT+2)}"); A(f"s_mov_b32 {sr(sH)}, {sr(sT+3)}")
    if CFG["rot"]:
        A(f"s_lshl_b32 {sr(sROT)}, {sr(sB)}, 1"); A(f"s_add_u32 {sr(sROT)}, {sr(sROT)}, {sr(sH)}")
    else:
        A(f"s_mov_b32 {sr(sROT)}, 0")
    t0, t1, t2, t3, ln = vT, vT+1, vT+2, vT+3, vT+4
    if CFG["codepf"]:
        A(f"v_lshlrev_b32 {vr(t0)}, 7, v0")
        A(f"v_min_u32 {vr(t0)}, L1_end-L1_pc, {vr(t0)}")
        A(f"global_load_dword {vr(vS)}, {vr(t0)}, {sr(sT,2)}")
    A(f"v_lshrrev_b32 {vr(t0)}, 6, v0")
    A(f"v_and_b32 {vr(ln)}, 63, v0")
    A(f"v_readfirstlane_b32 {sr(sWAVE)}, {vr(t0)}")
    A(f"v_lshrrev_b32 {vr(t1)}, 4, {vr(ln)}")
    A(f"v_and_b32 {vr(t2)}, 15, {vr(ln)}")
    A(f"v_lshl_add_u32 {vr(t0)}, {vr(t0)}, 4, {vr(t1)}")
    A(f"v_lshlrev_b32 {vr(t3)}, 2, {vr(t1)}")
    A(f"v_xor_b32 {vr(t3)}, {vr(t3)}, {vr(t2)}")
    A(f"v_lshlrev_b32 {vr(t3)}, 4, {vr(t3)}")
    A(f"v_lshl_add_u32 {vr(vDWB)}, {vr(t0)}, 13, {vr(t3)}")
    A(f"v_lshl_add_u32 {vr(vDV)}, {vr(t0)}, 8, {vr(t3)}")
    for p in range(4):
        A(f"v_add_u32 {vr(t3)}, {4*p}, {vr(t1)}")
        A(f"v_xor_b32 {vr(t3)}, {vr(t3)}, {vr(t2)}")
        A(f"v_lshlrev_b32 {vr(t3)}, 4, {vr(t3)}")
        A(f"v_lshl_add_u32 {vr(vDK+p)}, {vr(t0)}, 8, {vr(t3)}")
    A(f"v_lshrrev_b32 {vr(t0)}, 6, v0")
    A(f"v_lshrrev_b32 {vr(t1)}, 3, {vr(ln)}")
    A(f"v_lshl_add_u32 {vr(t0)}, {vr(t0)}, 6, {vr(t1)}")
    A(f"v_lshrrev_b32 {vr(t1)}, 1, {vr(t1)}")
    A(f"v_and_b32 {vr(t2)}, 7, {vr(ln)}")
    for par in range(2):
        A(f"v_add_u32 {vr(t3)}, {4*par}, {vr(t1)}")
        A(f"v_xor_b32 {vr(t3)}, {vr(t3)}, {vr(t2)}")
        A(f"v_lshlrev_b32 {vr(t3)}, 4, {vr(t3)}")
        A(f"v_lshl_add_u32 {vr(vDXB+par)}, {vr(t0)}, 10, {vr(t3)}")
    A(f"s_lshl_b32 {sr(sW4K)}, {sr(sWAVE)}, 12")
    A(f"s_lshl_b32 {sr(sW8K)}, {sr(sWAVE)}, 13")
    for p in range(8): A(f"s_mov_b32 {sr(sXO+p)}, {p*8192 - 1024*(p%4)}")
    for p in range(4): A(f"s_mov_b32 {sr(sWO+p)}, {p*(32768-1024)}")
    A("s_waitcnt lgkmcnt(0)")
    A(f"s_lshl_b32 {sr(sT)}, {sr(sB)}, 18")
    A(f"s_add_u32 {sr(sX)}, {sr(sARG)}, {sr(sT)}"); A(f"s_addc_u32 {sr(sX+1)}, {sr(sARG+1)}, 0")
    o += srd(sX, 0, 0, 0x40000)
    A(f"s_lshl_b32 {sr(sT)}, {sr(sH)}, 8")
    A(f"s_add_u32 {sr(sWQ)}, {sr(sARG+6)}, {sr(sT)}"); A(f"s_addc_u32 {sr(sWQ+1)}, {sr(sARG+7)}, 0")
    o += srd(sWQ, 0, 0, 511*8192 + 256)
    return o

def setup1b():
    o = []
    A = o.append
    t0, t1, t2, t3, ln = vT, vT+1, vT+2, vT+3, vT+4
    A(f"s_lshl_b32 {sr(sT)}, {sr(sB)}, 5"); A(f"s_add_u32 {sr(sT)}, {sr(sT)}, {sr(sH)}"); A(f"s_lshl_b32 {sr(sT)}, {sr(sT)}, 18")
    A(f"s_add_u32 {sr(sK)}, {sr(sARG+2)}, {sr(sT)}"); A(f"s_addc_u32 {sr(sK+1)}, {sr(sARG+3)}, 0")
    o += srd(sK, 0, 0, 0x40000)
    A(f"s_add_u32 {sr(sV)}, {sr(sARG+4)}, {sr(sT)}"); A(f"s_addc_u32 {sr(sV+1)}, {sr(sARG+5)}, 0")
    o += srd(sV, 0, 0, 0x40000)
    A(f"s_lshl_b32 {sr(sT)}, {sr(sB)}, 21"); A(f"s_lshl_b32 {sr(sT+1)}, {sr(sH)}, 13"); A(f"s_add_u32 {sr(sT)}, {sr(sT)}, {sr(sT+1)}")
    A(f"s_add_u32 {sr(sO)}, {sr(sARG+14)}, {sr(sT)}"); A(f"s_addc_u32 {sr(sO+1)}, {sr(sARG+15)}, 0")
    o += srd(sO, 0, 0, 7*262144 + 8192)
    A(f"s_lshl_b32 {sr(sT)}, {sr(sH)}, 3"); A(f"s_add_u32 {sr(sT)}, {sr(sT)}, {sr(sB)}")
    A(f"s_lshl_b32 {sr(sT+1)}, {sr(sT)}, 14")
    A(f"s_add_u32 {sr(sWOs)}, {sr(sARG+8)}, {sr(sT+1)}"); A(f"s_addc_u32 {sr(sWOs+1)}, {sr(sARG+9)}, 0")
    o += srd(sWOs, 0, 0, 16384)
    A(f"s_lshl_b32 {sr(sT+1)}, {sr(sT)}, 10"); A(f"s_add_u32 {sr(sT+1)}, {sr(sT+1)}, {WOF_OFF}")
    A(f"s_add_u32 {sr(sWF)}, {sr(sARG+14)}, {sr(sT+1)}"); A(f"s_addc_u32 {sr(sWF+1)}, {sr(sARG+15)}, 0")
    o += srd(sWF, 0, 0, 15*262144 + 1024)
    A(f"s_mov_b32 {sr(sTHR)}, 0x41000000")
    import struct
    c = math.log2(math.e) / math.sqrt(128.0)
    A(f"s_mov_b32 {sr(sSC)}, 0x{struct.unpack('<I', struct.pack('<f', c))[0]:08x}")
    hf, r32 = t0, t1
    A(f"v_lshrrev_b32 {vr(hf)}, 5, {vr(ln)}")
    A(f"v_and_b32 {vr(r32)}, 31, {vr(ln)}")
    A(f"v_and_b32 {vr(t2)}, 15, {vr(ln)}")
    for s in range(8):
        A(f"v_add_u32 {vr(t3)}, {2*s}, {vr(hf)}")
        A(f"v_xor_b32 {vr(t3)}, {vr(t3)}, {vr(t2)}")
        A(f"v_lshlrev_b32 {vr(t3)}, 4, {vr(t3)}")
        A(f"v_lshl_add_u32 {vr(vKA+s)}, {vr(r32)}, 8, {vr(t3)}")
    A(f"v_bfe_u32 {vr(t2)}, {vr(ln)}, 1, 3")
    for s in range(4):
        A(f"v_add_u32 {vr(t3)}, {2*s}, {vr(hf)}")
        A(f"v_xor_b32 {vr(t3)}, {vr(t3)}, {vr(t2)}")
        A(f"v_lshlrev_b32 {vr(t3)}, 4, {vr(t3)}")
        A(f"v_lshl_add_u32 {vr(t3)}, {vr(r32)}, 7, {vr(t3)}")
        A(f"v_add_u32 {vr(t3)}, {sr(sW8K)}, {vr(t3)}")
        A(f"v_add_u32 {vr(vXA+s)}, {LX[0]}, {vr(t3)}")
        A(f"v_add_u32 {vr(vXA+4+s)}, {LX[1]}, {vr(t3)}")
    r_, g32, c_ = t1, t2, vT + 5
    A(f"v_bfe_u32 {vr(r_)}, {vr(ln)}, 2, 2")
    A(f"v_bfe_u32 {vr(g32)}, {vr(ln)}, 4, 1")
    A(f"v_lshlrev_b32 {vr(g32)}, 5, {vr(g32)}")
    A(f"v_and_b32 {vr(c_)}, 3, {vr(ln)}")
    A(f"v_lshl_add_u32 {vr(t3)}, {vr(hf)}, 2, {vr(r_)}")
    A(f"v_lshl_add_u32 {vr(t3)}, {vr(t3)}, 8, {vr(g32)}")
    A(f"v_lshl_add_u32 {vr(t3)}, {vr(c_)}, 3, {vr(t3)}")
    A(f"v_add_u32 {vr(t3)}, {LV}, {vr(t3)}")
    for dt in range(4):
        A(f"v_xor_b32 {vr(vVA+dt)}, {dt}, {vr(r_)}")
        A(f"v_lshl_add_u32 {vr(vVA+dt)}, {vr(vVA+dt)}, 6, {vr(t3)}")
    A(f"v_lshl_add_u32 {vr(t3)}, {vr(hf)}, 3, {vr(r_)}")
    A(f"v_lshl_add_u32 {vr(t3)}, {vr(t3)}, 8, {vr(g32)}")
    A(f"v_and_b32 {vr(g32)}, 1, {vr(c_)}")
    A(f"v_lshl_add_u32 {vr(t3)}, {vr(g32)}, 4, {vr(t3)}")
    A(f"v_lshrrev_b32 {vr(g32)}, 1, {vr(c_)}")
    A(f"v_lshl_add_u32 {vr(t3)}, {vr(g32)}, 3, {vr(t3)}")
    A(f"v_add_u32 {vr(t3)}, {LW}, {vr(t3)}")
    for dt in range(4):
        A(f"v_xor_b32 {vr(vWA+dt)}, {dt}, {vr(r_)}")
        A(f"v_lshl_add_u32 {vr(vWA+dt)}, {vr(vWA+dt)}, 6, {vr(t3)}")
    A(f"v_lshlrev_b32 {vr(vOST)}, 4, {vr(ln)}")
    A(f"s_lshl_b32 {sr(sT)}, {sr(sWAVE)}, 19")
    A(f"v_add_u32 {vr(vOST)}, {sr(sT)}, {vr(vOST)}")
    A(f"v_mov_b32 {vr(vL)}, 0"); A(f"v_mov_b32 {vr(vL+1)}, 0")
    for r in range(32, 96): A(f"v_accvgpr_write_b32 {ar(r)}, 0")
    return o

def wo_dma():
    o = [f"v_and_b32 {vr(vQ)}, 63, v0", f"v_lshlrev_b32 {vr(vQ)}, 4, {vr(vQ)}", m0_v(1), "s_nop 0"]
    for p in range(4):
        o.append(f"buffer_load_dwordx4 {vr(vQ)}, {sr(sWOs,4)}, {sr(sW4K)} offen offset:{1024*p} nt lds")
    return o
def wo_reads():
    a, t = vQ + 1, vQ + 2
    o = [f"v_bfe_u32 {vr(a)}, v0, 5, 1", f"v_bfe_u32 {vr(t)}, v0, 2, 2", f"v_lshl_add_u32 {vr(a)}, {vr(a)}, 2, {vr(t)}",
         f"v_lshlrev_b32 {vr(a)}, 10, {vr(a)}", f"v_bfe_u32 {vr(t)}, v0, 4, 1", f"v_lshl_add_u32 {vr(a)}, {vr(t)}, 5, {vr(a)}",
         f"v_and_b32 {vr(t)}, 3, v0", f"v_lshl_add_u32 {vr(a)}, {vr(t)}, 3, {vr(a)}",
         f"v_lshrrev_b32 {vr(t)}, 6, v0", f"v_lshl_add_u32 {vr(a)}, {vr(t)}, 8, {vr(a)}", f"v_add_u32 {vr(a)}, {LV+16384}, {vr(a)}",
         f"v_lshl_add_u32 {vr(vQ)}, {vr(t)}, 20, {vr(vQ)}"]
    r = []
    for i in range(4):
        for tt in range(2):
            r.append(f"ds_read_b64_tr_b16 {vr(vQ+4+4*i+2*tt,2)}, {vr(a)} offset:{i*64 + tt*8192}")
    return o, r
def wo_stores():
    o = []
    fl = (" " + CFG["wst"].replace("+", " ")) if CFG["wst"] else ""
    for i in range(4):
        o.append(f"s_mov_b32 {sr(sT+2)}, {i*262144}")
        o.append(f"buffer_store_dwordx4 {vr(vQ+4+4*i,4)}, {vr(vQ)}, {sr(sWF,4)}, {sr(sT+2)} offen{fl}")
    return o

def interleave(mf, nv, va, nv_per_gap=2, vcap=24, nv_start=0, va_start=0, pre=None):
    out = []
    nv = list(nv); va = list(va)
    for g, m in enumerate(mf):
        if pre and g in pre: out += pre[g]
        out.append(m)
        if g >= nv_start:
            k = 0
            while nv and k < nv_per_gap:
                t = nv.pop(0); out.append(t)
                if not t.startswith(("s_nop", "s_add", "s_mov", "s_and", "s_lshl", "v_")): k += 1
        c = 0
        while va and va[0][1] <= g and c + vcost(va[0][0]) <= vcap:
            c += vcost(va[0][0]); out.append(va.pop(0)[0])
    return out, nv, va

def qproj():
    o = []
    issued = []
    def emit_dma(lst, tag):
        issued.extend([tag] * ndma(lst)); return lst
    def wait_for(tag):
        last = max(i for i, t in enumerate(issued) if t == tag)
        return len(issued) - 1 - last
    if CFG["codepf"]: issued.extend(["pf"])
    o += emit_dma(qp_dma(0), "st0")
    o += emit_dma(qp_dma(1), "st1")
    o += setup1b()
    o += emit_dma(wo_dma(), "wo")
    o += emit_dma(kv_batch("K", 0), "K0")
    wa, wr = wo_reads()
    o += wa
    o.append(f"s_waitcnt vmcnt({wait_for('st0')})")
    o.append("s_barrier")
    o += stamp()
    o += qp_reads(0)
    o.append("s_waitcnt lgkmcnt(0)")
    o.append("s_barrier")
    o += emit_dma(qp_dma(2), "st2")
    extra = {0: [("K", 1)], 2: [("V", 0)], 3: [("V", 1)], 5: [("K", 2), ("K", 3)], 6: [("V", 2)]}
    for st in range(8):
        mf = qp_mfmas(st)
        if st < 7:
            o.append(f"s_waitcnt vmcnt({wait_for('st%d' % (st+1))})")
            o.append(mf[0]); o.append("s_barrier")
            part1, left, _ = interleave(mf[1:21], qp_reads(st + 1) + (wr if st == 1 else []), [], nv_per_gap=(3 if st == 1 else 2))
            assert not left
            o += part1
            o.append(mf[21]); o.append(mf[22])
            o.append("s_waitcnt lgkmcnt(0)")
            o.append(mf[23]); o.append("s_barrier")
            d = []
            if st + 3 <= 7: d += emit_dma(qp_dma(st + 3), "st%d" % (st + 3))
            if st == 1: d += emit_dma(wo_stores(), "wst")
            for (w, t) in extra.get(st, []): d += emit_dma(kv_batch(w, t), f"{w}{t}")
            part2, left, _ = interleave(mf[24:], d, [], nv_per_gap=2)
            o += part2 + left
        else:
            va = [(f"v_accvgpr_write_b32 {ar(r)}, 0", 0) for r in range(96, 128)]
            for dt in range(4):
                for qb in range(2):
                    e = 4 * (dt * 2 + qb) + 3 + 3
                    va += [(t, e) for t in qconv(qb, dt)]
            part, left, va_left = interleave(mf, [rd_k(0, n) for n in range(16)], va, nv_per_gap=1, nv_start=8)
            assert not left
            o += part
    o += stamp()
    va = [(t, 0 if e < 32 + 0 else e - 32 + 2) for t, e in va_left]
    zero = [(f"v_accvgpr_write_b32 {ar(r)}, 0", 4) for r in list(range(0, 32))]
    bias = [(f"v_add_u32 {vr(vDK+p)}, 0x4000, {vr(vDK+p)}", 0) for p in range(4)]
    M = mstream(0)
    m0 = [(t, 20) for t, kb in M if kb == 0]
    m1 = [t for t, kb in M if kb == 1]
    mf = [qk_mfma(0, g, czero=True) for g in range(32)]
    pre = {0: ["s_waitcnt lgkmcnt(0)"], 1: [f"s_waitcnt vmcnt({wait_for('V1')})", "s_barrier"]}
    part, _, left = interleave(mf, [], va + bias + zero + m0, pre=pre)
    o += part
    o += [t for t, _ in left]
    early = [it for g in range(57, 64) for it in NV[g] if it[0] == "k"]
    o += [rd_k(1, it[1]) for it in early]
    o.append(f"s_mov_b32 {sr(sTILE)}, {3*16384}")
    o.append(f"s_mov_b32 {sr(sCNT)}, 0")
    o.append("s_nop 7")
    o += m1
    for qb in range(2):
        o += rowmax_both(qb, vT + qb, vT + 2)
    for qb in range(2):
        for j in range(16): o.append(f"v_sub_f32 {vr(vNEG+16*qb+j)}, 0, {vr(vT+qb)}")
    for kb in range(2):
        for qb in range(2):
            for j in range(16):
                r = Sreg(0, kb, qb) + j
                o.append(f"v_sub_f32 {vr(r)}, {vr(r)}, {vr(vT+qb)}")
    assert issued[-8:] == ["K3"] * 4 + ["V2"] * 4, issued
    o += stamp()
    return o

def epilogue1():
    o = []
    A = o.append
    o += stamp()
    for qb in range(2):
        d, t = vT + 2 * qb, vT + 2 * qb + 1
        A(f"v_mov_b32 {vr(d)}, {vr(vL+qb)}"); A(f"v_mov_b32 {vr(t)}, {vr(vL+qb)}"); A("s_nop 1")
        A(f"v_permlane32_swap_b32 {vr(d)}, {vr(t)}"); A("s_nop 1")
        A(f"v_add_f32 {vr(d)}, {vr(d)}, {vr(t)}")
        A(f"v_rcp_f32 {vr(d)}, {vr(d)}")
    A(f"s_mov_b32 {sr(sT)}, 0"); A(f"s_mov_b32 {sr(sT+1)}, 4096"); A(f"s_mov_b32 {sr(sT+2)}, {262144}"); A(f"s_mov_b32 {sr(sT+3)}, {262144+4096}")
    A("s_nop 7")
    for qb in range(2):
        for dt in range(4):
            base = vNEG + 24 * ((qb * 4 + dt) % 8)
            for j in range(16): A(f"v_accvgpr_read_b32 {vr(base+j)}, {ar(Oreg(qb,dt)+j)}")
            for j in range(0, 16, 2):
                A(f"v_pk_mul_f32 {vr(base+j,2)}, {vr(base+j,2)}, {vr(vT+2*qb,2)} op_sel_hi:[1,0]")
            for j in range(0, 16, 2):
                A(f"v_cvt_pk_bf16_f32 {vr(base+16+j//2)}, {vr(base+j)}, {vr(base+j+1)}")
            for s in range(2):
                ks = 2 * dt + s
                A(f"buffer_store_dwordx4 {vr(base+16+4*s,4)}, {vr(vOST)}, {sr(sO,4)}, {sr(sT + 2*qb + ks//4)} offen offset:{1024*(ks%4)}{(' ' + CFG['ost'].replace('+', ' ')) if CFG['ost'] else ''}")
    return o

def stamp_out(label, wsarg):
    if not CFG["stamps"]: return []
    o = ["s_waitcnt vmcnt(0)"] + stamp() + ["s_memrealtime s[100:101]", "s_waitcnt lgkmcnt(0)"]
    n = nstamp[0]
    A = o.append
    A(f"s_add_u32 s4, {sr(wsarg)}, {CFG['stampoff']}"); A(f"s_addc_u32 s5, {sr(wsarg+1)}, 0")
    A("s_and_b32 s5, s5, 0xffff"); A("s_mov_b32 s6, 0x100000"); A("s_mov_b32 s7, 0x20000")
    A("s_lshl_b32 s3, s2, 9")
    A("v_lshrrev_b32 v1, 6, v0"); A("v_lshlrev_b32 v1, 7, v1"); A("v_add_u32 v1, s3, v1")
    A("v_and_b32 v2, 63, v0")
    A("v_cmp_eq_u32 vcc, 0, v2")
    A("s_and_saveexec_b64 s[30:31], vcc")
    A(f"s_cbranch_execz {label}")
    for i in range(n):
        A(f"v_mov_b32 v4, {sr(sST+2*i)}"); A(f"v_mov_b32 v5, {sr(sST+2*i+1)}")
        A(f"buffer_store_dwordx2 v[4:5], v1, s[4:7], 0 offen offset:{8*i}")
        A("s_waitcnt vmcnt(0)")
    for i in range(2):
        A(f"v_mov_b32 v4, s{98+2*i}"); A(f"v_mov_b32 v5, s{99+2*i}")
        A(f"buffer_store_dwordx2 v[4:5], v1, s[4:7], 0 offen offset:{8*(14+i)}")
        A("s_waitcnt vmcnt(0)")
    return o

def kernel1():
    nstamp[0] = 0
    CFG["stampoff"] = 0x4000000
    pro = setup1() + qproj()
    its = [iteration(u, f"L1_rare{u}") for u in range(4)]
    tail = tail_iteration(3)
    epi = epilogue1()
    body = list(pro)
    body.append("L1_loop:")
    for u in range(4):
        it = list(its[u])
        if u == 2:
            it.append(f"s_cmp_eq_u32 {sr(sCNT)}, 3")
            it.append("s_cbranch_scc1 L1_tail")
        if u == 3:
            it.append(f"s_add_u32 {sr(sCNT)}, {sr(sCNT)}, 1")
            it.append("s_branch L1_loop")
        body += it
    body.append("L1_tail:")
    body += tail + epi
    body += stamp_out("L1_end", sARG + 14)
    body.append("L1_end:")
    body.append("s_endpgm")
    for u in range(4):
        body.append(f"L1_rare{u}:")
        body.append(f"s_call_b64 {sr(sRET,2)}, L1_rr{1 - u % 2}")
        body.append(f"s_branch L1_rare{u}_back")
    for p in range(2): body += rare_routine(p, f"L1_rr{p}")
    trace = pro + its[0] + its[1] + its[2] + its[3] + its[0] + its[1] + its[2] + tail + epi
    check(trace, "k1")
    for p in range(2):
        u = 1 - p
        it = its[u]; k = it.index(f"L1_rare{u}_back:")
        check(its[(u+3) % 4] + it[:k] + rare_routine(p, "x")[1:] + it[k:] + its[(u+1) % 4], f"rare{p}")
    return "\n".join(body)

def kernel2():
    nstamp[0] = 0
    CFG["stampoff"] = 0x4100000
    o = []
    A = o.append
    sOO, sWo, sOUT = 4, 8, 12
    sW32K, sOoff, sMT, sNT = 24, 25, 27, 28
    vOA, vOF = 1, 16
    D = 15
    A("s_cmp_ge_u32 s2, 256")
    A("s_cbranch_scc1 L2_end")
    o += stamp()
    A(f"s_load_dwordx8 {sr(sARG,8)}, s[0:1], 32")
    if CFG["codepf"]:
        A(f"s_getpc_b64 {sr(sT,2)}")
        A("L2_pc:")
        A(f"v_lshlrev_b32 v6, 7, v0")
        A(f"v_min_u32 v6, L2_end-L2_pc, v6")
        A(f"global_load_dword v3, v6, {sr(sT,2)}")
    A(f"s_and_b32 {sr(sT+2)}, s2, 7")
    A(f"s_lshr_b32 {sr(sT+3)}, s2, 3")
    A(f"s_lshl_b32 {sr(sROT)}, {sr(sT+2)}, 13")
    if not CFG["rot2"]: A(f"s_mov_b32 {sr(sROT)}, 0")
    A(f"s_and_b32 {sr(sMT)}, {sr(sT+3)}, 3")
    if CFG["map2"] == "b":
        A(f"s_lshr_b32 {sr(sNT)}, {sr(sT+3)}, 2")
    elif CFG["map2"] == "p":
        A(f"s_and_b32 {sr(sNT)}, {sr(sT+2)}, 1"); A(f"s_lshl_b32 {sr(sNT)}, {sr(sNT)}, 2")
        A(f"s_lshr_b32 {sr(sOoff)}, {sr(sT+3)}, 3"); A(f"s_add_u32 {sr(sNT)}, {sr(sNT)}, {sr(sOoff)}")
        A(f"s_and_b32 {sr(sT+2)}, {sr(sT+2)}, 6"); A(f"s_bfe_u32 {sr(sOoff)}, {sr(sT+3)}, 0x10002"); A(f"s_add_u32 {sr(sT+2)}, {sr(sT+2)}, {sr(sOoff)}")
    else:
        A(f"s_and_b32 {sr(sNT)}, {sr(sT+2)}, 3"); A(f"s_lshl_b32 {sr(sNT)}, {sr(sNT)}, 1")
        A(f"s_lshr_b32 {sr(sOoff)}, {sr(sT+3)}, 4"); A(f"s_add_u32 {sr(sNT)}, {sr(sNT)}, {sr(sOoff)}")
        A(f"s_and_b32 {sr(sT+2)}, {sr(sT+2)}, 4"); A(f"s_bfe_u32 {sr(sOoff)}, {sr(sT+3)}, 0x20002"); A(f"s_add_u32 {sr(sT+2)}, {sr(sT+2)}, {sr(sOoff)}")
    A("v_lshrrev_b32 v6, 6, v0")
    A("v_and_b32 v7, 63, v0")
    A(f"v_readfirstlane_b32 {sr(sW32K)}, v6")
    A(f"v_lshlrev_b32 {vr(vOA)}, 4, v7")
    A(f"v_lshl_add_u32 {vr(vOA)}, v6, 16, {vr(vOA)}")
    A(f"v_add_u32 {vr(vOA+1)}, 0x40000, {vr(vOA)}")
    A(f"s_lshl_b32 {sr(sW32K)}, {sr(sW32K)}, 15")
    A("s_waitcnt lgkmcnt(0)")
    A(f"s_lshl_b32 {sr(sT)}, {sr(sT+2)}, 21"); A(f"s_lshl_b32 {sr(sT+1)}, {sr(sMT)}, 19"); A(f"s_add_u32 {sr(sT)}, {sr(sT)}, {sr(sT+1)}")
    A(f"s_add_u32 {sr(sOO)}, {sr(sARG+6)}, {sr(sT)}"); A(f"s_addc_u32 {sr(sOO+1)}, {sr(sARG+7)}, 0")
    o += srd(sOO, 0, 0, 0x80000)
    A(f"s_lshl_b32 {sr(sT)}, {sr(sNT)}, 19"); A(f"s_add_u32 {sr(sT)}, {sr(sT)}, {WOF_OFF}")
    A(f"s_add_u32 {sr(sWo)}, {sr(sARG+6)}, {sr(sT)}"); A(f"s_addc_u32 {sr(sWo+1)}, {sr(sARG+7)}, 0")
    o += srd(sWo, 0, 0, 0x80000)
    def fr(k, i): return vOF + 16 * (k % D) + 4 * i
    def loads(k):
        l = []
        if k % 4 == 0:
            l.append(f"s_add_u32 {sr(sOoff)}, {sr(sROT)}, {k * 1024}")
            l.append(f"s_and_b32 {sr(sOoff)}, {sr(sOoff)}, 0xffff")
        for i in range(4):
            l.append(f"buffer_load_dwordx4 {vr(fr(k,i),4)}, {vr(vOA+i%2)}, {sr(sWo if i < 2 else sOO,4)}, {sr(sOoff)} offen offset:{(k%4)*1024}{(' ' + CFG['old'].replace('+', ' ')) if CFG['old'] else ''}")
        return l
    for k in range(D): o += loads(k)
    A(f"s_lshl_b32 {sr(sT)}, {sr(sNT)}, 7")
    A(f"s_lshl_b32 {sr(sT+1)}, {sr(sT+2)}, 18"); A(f"s_add_u32 {sr(sT)}, {sr(sT)}, {sr(sT+1)}")
    A(f"s_lshl_b32 {sr(sT+1)}, {sr(sMT)}, 16"); A(f"s_add_u32 {sr(sT)}, {sr(sT)}, {sr(sT+1)}")
    A(f"s_add_u32 {sr(sOUT)}, {sr(sARG+2)}, {sr(sT)}"); A(f"s_addc_u32 {sr(sOUT+1)}, {sr(sARG+3)}, 0")
    o += srd(sOUT, 0, 0, 63*1024 + 128)
    for k in range(64):
        nld = min(64, k + D)
        A(f"s_waitcnt vmcnt({4*(nld - (k+1))})")
        if k == 0: o += stamp()
        for n in range(2):
            for qb in range(2):
                d = ar(16 * (n * 2 + qb), 16)
                A(f"{MF} {d}, {vr(fr(k,n), 4)}, {vr(fr(k,2+qb),4)}, {d if k else 0}")
        if k + D < 64: o += loads(k + D)
    o += stamp()
    A("v_and_b32 v8, 31, v7"); A("v_lshrrev_b32 v9, 5, v7"); A("v_and_b32 v10, 15, v7")
    A("v_xor_b32 v10, v10, v9"); A("v_lshlrev_b32 v10, 4, v10")
    A("v_lshl_add_u32 v8, v8, 8, v10")
    A(f"v_add_u32 v8, {sr(sW32K)}, v8")
    for c in range(8): A(f"v_xor_b32 {vr(16+c)}, {c*32}, v8")
    A("s_nop 7")
    for n in range(2):
        for qb in range(2):
            for a in range(4):
                A(f"ds_write_b128 {vr(16 + n*4 + a)}, {ar(16*(n*2+qb) + 4*a, 4)} offset:{qb*8192}")
    A("v_lshrrev_b32 v8, 3, v0"); A("v_and_b32 v9, 7, v0"); A("v_lshlrev_b32 v10, 1, v9")
    A("v_and_b32 v11, 15, v8"); A("v_xor_b32 v10, v10, v11"); A("v_lshlrev_b32 v10, 4, v10")
    A("v_lshl_add_u32 v10, v8, 8, v10"); A("v_xor_b32 v11, 16, v10")
    A("v_add_u32 v12, 0x10000, v10"); A("v_add_u32 v13, 0x10000, v11")
    A("v_lshlrev_b32 v9, 4, v9"); A("v_lshl_add_u32 v14, v8, 10, v9")
    A("s_waitcnt lgkmcnt(0)")
    A("s_barrier")
    for z in range(2):
        for w in range(4):
            for i in range(2):
                A(f"ds_read_b128 {vr(32 + z*32 + w*8 + i*4, 4)}, {vr(10 + 2*(w//2) + i)} offset:{(w%2)*32768 + z*8192}")
    A(f"s_mov_b32 {sr(sT)}, {32*1024}")
    for z in range(2):
        A(f"s_waitcnt lgkmcnt({8 if z == 0 else 0})")
        b = 32 + z * 32
        for j in range(8):
            A(f"v_add_f32 {vr(b+j)}, {vr(b+j)}, {vr(b+8+j)}")
            A(f"v_add_f32 {vr(b+16+j)}, {vr(b+16+j)}, {vr(b+24+j)}")
        for j in range(8): A(f"v_add_f32 {vr(b+j)}, {vr(b+j)}, {vr(b+16+j)}")
        for j in range(4): A(f"v_cvt_pk_bf16_f32 {vr(b+8+j)}, {vr(b+2*j)}, {vr(b+2*j+1)}")
        A(f"buffer_store_dwordx4 {vr(b+8,4)}, v14, {sr(sOUT,4)}, {sr(sT) if z else 0} offen")
    o += stamp_out("L2_end", sARG + 6)
    A("L2_end:")
    A("s_endpgm")
    check(o, "k2")
    return "\n".join(o)

if __name__ == "__main__":
    k1 = kernel1(); k2 = kernel2()
    txt = file_text([
        dict(label="mha_attn_kernel", body=k1, grid=256, block=256, lds=163840, vgpr=512, accum=256),
        dict(label="mha_oproj_kernel", body=k2, grid=256, block=256, lds=131072, vgpr=512, accum=256),
    ])
    open(sys.argv[1], "w").write(txt)
    pl = valu_plan(0, 1)
    print("valu cost per gap:", [sum(vcost(t) for t in pl[g]) for g in range(64)])
    print("lgkm waits:", LW_)
```

```python
import sys, math, struct, re
from asmlib import *
from check import check

CFG = dict(qst=False, stamps=False, codepf=True, warm=True, spin=200000, verbose=False)
for a in sys.argv[2:]:
    k, v = a.split("=")
    CFG[k] = {"0": False, "1": True}.get(v, v)

MF = "v_mfma_f32_16x16x32_bf16"
def vr(b, n=1): return f"v{b}" if n == 1 else f"v[{b}:{b+n-1}]"
def ar(b, n=1): return f"a{b}" if n == 1 else f"a[{b}:{b+n-1}]"
def sr(b, n=1): return f"s{b}" if n == 1 else f"s[{b}:{b+n-1}]"
def rr(r, n=1): return vr(r, n) if r < 256 else ar(r - 256, n)
def slots(t):
    if t.startswith(("v_exp", "v_rcp", "buffer_", "global_", "v_permlane")): return 2
    if t.startswith(("s_", "@", "L_")): return 0
    return 1

sX, sWQ, sK, sV, sO = 4, 8, 12, 16, 20
sWFL, sOL = 4, 8
sWAVE, sB, sH, sW4K, sW8K = 24, 25, 26, 27, 28
sCB, sMT, sNT = 29, 30, 31
sXO, sWO = 32, 40
sOUT, sFLR = 32, 36
sTILE, sCNT, sTHR, sSC, sSP = 44, 45, 46, 47, 48
sRET = 50
sTK, sROT = 49, 92
sT = 52
sARG = 56
sFL, sDB, sDBW = 72, 76, 88
sWS2, sWO2 = 80, 84
vKA, vVA, vDK, vDV = 1, 5, 13, 17
vMX, vLIN, vCW, STV = 19, 21, 22, 23
vT = 24
vONES = 28
vNEG, vL, vQ, vS = 32, 48, 64, 128
vWA, vXA, vDX, vDW = 32, 56, 62, 64
vWOA, vWOS, vDUM = 66, 20, 68
u0, u1, u2, u3, u4, u5, ln = 72, 73, 74, 75, 76, 77, 78
aO, aF, aWO = 0, 128, 32
LK, LV, LW = 0, 65536, 131072
LX = [81920, 131072]
LWQ = [49152, 114688, 32768]
WOF_OFF, FLAG_OFF, STAMP_OFF = 0x1000000, 0x1400000, 0x4000000

def Ureg(p, ks, qb): return vS + 64 * p + 8 * (ks * 4 + qb)
def Sreg(p, kb, qb): return Ureg(p, kb // 2, qb) + 4 * (kb % 2)
def Oreg(qb, dt): return aO + 4 * (qb * 8 + dt)
def Qreg(qb, s): return vQ + 16 * qb + 4 * s
def Freg(n): return aF + 4 * n

nstamp = [0]
def stamp():
    if not CFG["stamps"]: return []
    i = nstamp[0]; nstamp[0] += 1
    assert i < 30
    return ["s_memtime s[100:101]", "s_waitcnt lgkmcnt(0)", f"v_writelane_b32 v{STV}, s100, {2*i}",
            "s_memrealtime s[100:101]", "s_waitcnt lgkmcnt(0)", f"v_writelane_b32 v{STV}, s100, {2*i+1}"]

def srd(s, size):
    return [f"s_and_b32 {sr(s+1)}, {sr(s+1)}, 0xffff", f"s_mov_b32 {sr(s+2)}, {size}", f"s_mov_b32 {sr(s+3)}, 0x20000"]
def srd_at(s, arg, offreg, size):
    return [f"s_add_u32 {sr(s)}, {sr(sARG+arg)}, {offreg}", f"s_addc_u32 {sr(s+1)}, {sr(sARG+arg+1)}, 0"] + srd(s, size)

def tag(lst, t): return [(x + f" ; #{t}") if x.startswith(("buffer_", "global_")) and "#" not in x else x for x in lst]
def resolve(seq, fifo, lfifo=()):
    fifo = list(fifo); lf = list(lfifo); out = []
    def cut(f, n): return f[len(f) - n:] if 0 < n < len(f) else (f if n else [])
    for x in seq:
        if x.startswith("@wait"):
            parts = x.split()
            w = []
            idx = [i for i, t in enumerate(fifo) if t in parts[1].split(",")]
            if idx:
                n = min(63, len(fifo) - 1 - max(idx)); fifo = cut(fifo, n); w.append(f"vmcnt({n})")
            for p in parts[2:]:
                if p.startswith("vm="): n = int(p[3:]); fifo = cut(fifo, n); w.append(f"vmcnt({n})")
                if p.startswith("lgkm="): n = int(p[5:]); lf = cut(lf, n); w.append(f"lgkmcnt({n})")
                if p.startswith("lds="):
                    idx = [i for i, t in enumerate(lf) if t in p[4:].split(",")]
                    if idx:
                        n = min(15, len(lf) - 1 - max(idx)); lf = cut(lf, n); w.append(f"lgkmcnt({n})")
            if w: out.append("s_waitcnt " + " ".join(w))
            continue
        m = re.search(r"#(\S+)", x)
        if x.startswith(("buffer_", "global_")): fifo.append(m.group(1) if m else "?")
        if x.startswith("ds_"): lf.append(m.group(1) if m else "?")
        m = re.match(r"s_waitcnt.*vmcnt\((\d+)\)", x)
        if m: fifo = cut(fifo, int(m.group(1)))
        m = re.match(r"s_waitcnt.*lgkmcnt\((\d+)\)", x)
        if m: lf = cut(lf, int(m.group(1)))
        out.append(x)
    return out, fifo, lf

def dma_k(p, soff): return f"buffer_load_dwordx4 {vr(vDK+p)}, {sr(sK,4)}, {soff} offen offset:{1024*p} nt lds"
def dma_v(p, soff): return f"buffer_load_dwordx4 {vr(vDV + p%2)}, {sr(sV,4)}, {soff} offen offset:{1024*p} nt lds"
def m0_at(addr): return f"s_add_u32 m0, {sr(sW4K)}, {addr}"
def kv_batch(which, tile):
    out = [m0_at((LK if which == "K" else LV) + (tile % 4) * 16384), f"s_add_u32 {sr(sT)}, {sr(sROT)}, {tile*16384}", f"s_and_b32 {sr(sT)}, {sr(sT)}, 0x3ffff"]
    for p in range(4): out.append(dma_k(p, sr(sT)) if which == "K" else dma_v(p, sr(sT)))
    return tag(out, f"{which}{tile}")

def rd_k(slot, n):
    kb, s = n // 4, n % 4
    return f"ds_read_b128 {ar(Freg(n),4)}, {vr(vKA+s)} offset:{slot*16384 + kb*4096} ; #k{n}"
def rd_v(slot, n, t):
    dt, ks = n // 2, n % 2
    return f"ds_read_b64_tr_b16 {ar(Freg(n)+2*t,2)}, {vr(vVA+dt)} offset:{slot*16384 + (32*ks+16*t)*256} ; #v{n}"

def qk_one(p, kb, qb, s, first, czero=False):
    d = Sreg(p, kb, qb)
    c = vr(d, 4) if not first else ("0" if czero else vr(vNEG + 4*qb, 4))
    return f"{MF} {vr(d,4)}, {ar(Freg(kb*4+s),4)}, {vr(Qreg(qb,s),4)}, {c}"
def qk_list(p):
    return [qk_one(p, kb, qb, (i if qb % 2 == 0 else 3 - i), i == 0) for kb in range(4) for qb in range(4) for i in range(4)]
def pv_one(p, dt, qb, ks):
    o = Oreg(qb, dt)
    return f"{MF} {ar(o,4)}, {ar(Freg(dt*2+ks),4)}, {vr(Ureg(p,ks,qb),4)}, {ar(o,4)}"
def sum_one(p, qb, ks):
    return f"{MF} {vr(vL+4*qb,4)}, {vr(vONES,4)}, {vr(Ureg(p,ks,qb),4)}, {vr(vL+4*qb,4)}"
def pv_list(p):
    return ([pv_one(p, dt, qb, (i if qb % 2 == 0 else 1 - i)) for dt in range(8) for qb in range(4) for i in range(2)]
            + [sum_one(p, qb, ks) for qb in range(4) for ks in range(2)])

UNITS = [(0, 0), (1, 0), (1, 1), (0, 1), (0, 2), (1, 2), (1, 3), (0, 3)]
def ereg(p, e): ks, qb = UNITS[e // 8]; return Ureg(p, ks, qb) + e % 8
def exp_i(p, e): r = ereg(p, e); return f"v_exp_f32 {vr(r)}, {vr(r)}"
def cvt_i(p, k):
    r = ereg(p, 2 * k); return f"v_cvt_pk_bf16_f32 {vr(r - (2*k) % 8 + k % 4)}, {vr(r)}, {vr(r+1)}"
def max_items(p):
    out = []
    for kb in range(4):
        for qb in range(4):
            r = Sreg(p, kb, qb); m = vr(vMX + qb % 2); done = 16 * kb + 4 * qb + 3
            if kb == 0 and qb < 2:
                out.append((f"v_max3_f32 {m}, {vr(r)}, {vr(r+1)}, {vr(r+2)}", done))
                out.append((f"v_max_f32 {m}, {vr(r+3)}, {m}", done))
            else:
                out.append((f"v_max3_f32 {m}, {vr(r)}, {vr(r+1)}, {m}", done))
                out.append((f"v_max3_f32 {m}, {vr(r+2)}, {vr(r+3)}, {m}", done))
    return out

NG = 136
HOOKA = 69
BARG = 118
LAT = 8
def make_plan():
    plan = {g: [] for g in range(NG)}
    T0 = HOOKA
    dma_t = [NG + g for g in (4, 12, 20, 28, 36, 44, 52, 60)]
    NX2 = int(CFG.get('nx2', 44))
    r2 = [t for t in range(T0, NG) if t != BARG]
    r1 = [t for t in range(NG, NG + 64) if t not in dma_t]
    xt = [r2[i * len(r2) // NX2] for i in range(NX2)] + [r1[i * len(r1) // (64 - NX2)] for i in range(64 - NX2)]
    assert len(set(xt)) == 64
    for e, t in enumerate(xt): plan[t % NG].append(("exp", e, t >= NG))
    for i, t in enumerate(dma_t): plan[t % NG].append(("dma", i))
    Y = []
    for k in range(32):
        Y.append((xt[2*k+1] + 1, NG + 64 + k // 4 - 2, ("cvt", k)))
    for i, (_, done) in enumerate(max_items(0)):
        Y.append((NG + done + 3, NG + HOOKA - 3, ("max", i)))
    Y.append((NG + 66, NG + HOOKA - 2, ("max", 32))); Y.append((NG + 66, NG + HOOKA - 1, ("max", 33)))
    for n in range(16):
        Y.append((max(BARG + 1, 64 + 8 * (n // 2) + 7), NG + 16 * (n // 4) - LAT, ("k", n)))
    NV1 = int(CFG.get("nv1", 10))
    for n in range(16):
        e, d = 16 * (n // 4) + 15, min(64 + 8 * (n // 2) - LAT, BARG - 10)
        for t in range(2):
            if n < NV1: Y.append((NG + e, NG + min(d, HOOKA - 1), ("v", n, t)))
            else: Y.append((T0, d, ("v", n, t)))
    def kind(y): return y[2][0] + ("1" if y[2][0] == "v" and y[0] >= NG else "")
    ygaps = [t for t in range(T0, T0 + NG) if not plan[t % NG] and t % NG != BARG]
    pend = list(Y)
    for t in ygaps:
        g = t % NG
        picked = []
        for _ in range(2):
            heads = {}
            for y in pend: heads.setdefault(kind(y), y)
            c = [y for y in heads.values() if y[0] <= t]
            if not c: break
            def eff(y):
                same = [z for z in pend if kind(z) == kind(y)]
                return min(z[1] - i / 1.2 for i, z in enumerate(same))
            y = min(c, key=eff)
            assert t <= y[1], ("deadline miss", t, y)
            picked.append(y); pend.remove(y)
        picked.sort(key=lambda y: 0 if y[2][0] in ("k", "v") else 1)
        for y in picked: plan[g].append(y[2] + ((t >= NG,) if y[2][0] == "cvt" else ()))
    assert not pend, pend
    return plan
PLAN = make_plan()

def iteration(u, lab, extra=None, barwait="vm=16", nextk=True):
    p = u % 2
    steady = extra is None
    sc = {g: [] for g in range(NG)}
    for kb in range(4): sc[16 * kb - 1 if kb else NG - 2].append(f"@wait - lds=" + ",".join(f"k{kb*4+s}" for s in range(4)))
    for dt in range(8):
        if 64 + 8 * dt - 1 < BARG - 1: sc[64 + 8 * dt - 1].append(f"@wait - lds=v{2*dt},v{2*dt+1}")
    sc[BARG - 1].append(f"@wait {barwait} lgkm=0" if not barwait.startswith("vm=") else f"@wait - {barwait} lgkm=0")
    sc[BARG].append("s_barrier")
    sc[HOOKA] += [f"s_cbranch_vccnz {lab}a", f"{lab}a_back:"]
    sc[NG - 1] = [f"s_cbranch_vccnz {lab}b", f"{lab}b_back:"] + sc[NG - 1]
    if steady:
        extra = {}
        sc[2].append(m0_at(LK + (u % 4) * 16384))
        sc[34].append(m0_at(LV + ((u + 3) % 4) * 16384))
        sc[61].append(f"s_mov_b32 {sr(sTILE)}, {sr(sTK)}")
        sc[62].append(f"s_add_u32 {sr(sTK)}, {sr(sTK)}, 0x4000")
        sc[64].append(f"s_and_b32 {sr(sTK)}, {sr(sTK)}, 0x3ffff")
        if u == 1:
            extra[64] = [f"v_and_b32 {vr(vCW)}, 3, v0", f"v_lshlrev_b32 {vr(vCW)}, 6, {vr(vCW)}"]
            sc[40].append(f"s_cmp_eq_u32 {sr(sCNT)}, 2")
            sc[41].append(f"s_cselect_b32 {sr(sDB+2)}, 256, 0")
            extra[65] = [f"buffer_load_dword {vr(vCW)}, {vr(vCW)}, {sr(sDB,4)}, 0 offen sc1"]
        if u == 2:
            extra[65] = [f"buffer_atomic_add {vr(vONES)}, {vr(vLIN)}, {sr(sDBW,4)}, 0 offen sc1"]
            sc[70].append(f"s_mov_b32 {sr(sDBW+2)}, 0")
    mf = qk_list(1 - p) + pv_list(p)
    MX = [t for t, _ in max_items(1 - p)] + [f"v_max_f32 {vr(vMX)}, {vr(vMX)}, {vr(vMX+1)}", f"v_cmp_lt_f32 vcc, {sr(sTHR)}, {vr(vMX)}"]
    out = []
    for g in range(NG):
        out.append(mf[g])
        out += sc[g]
        ex = extra.get(g, [])
        out += [x for x in ex if not x.startswith("v_")]
        for it in PLAN[g]:
            k = it[0]
            if k == "exp": out.append(exp_i(p if it[2] else 1 - p, it[1]))
            elif k == "cvt": out.append(cvt_i(p if it[2] else 1 - p, it[1]))
            elif k == "max": out.append(MX[it[1]])
            elif k == "k":
                if g > BARG and not nextk: continue
                out.append(rd_k((u + (2 if g > BARG else 1)) % 4, it[1]))
            elif k == "v": out.append(rd_v(u % 4, it[1], it[2]))
            elif k == "dma" and steady:
                out.append(dma_k(it[1], sr(sTK)) if it[1] < 4 else dma_v(it[1] - 4, sr(sTILE)))
        out += [x for x in ex if x.startswith("v_")]
    return out
EARLY_K = [it[1] for g in range(BARG + 1, NG) for it in PLAN[g] if it[0] == "k"]
E_FIRST = [it for g in range(HOOKA, NG) for it in PLAN[g] if it[0] in ("exp", "cvt")]
E_REST = [it for g in range(0, HOOKA) for it in PLAN[g] if it[0] in ("exp", "cvt")]
DMA_GAPS = [g for g in range(NG) if any(it[0] == "dma" for it in PLAN[g])]
LIGHT = sorted(range(NG), key=lambda g: (sum(2 if it[0] in ("exp",) else (0 if it[0] == "dma" else 1) for it in PLAN[g])))

def spread(items, gaps):
    d = {}
    for i, it in enumerate(items):
        d.setdefault(gaps[i * len(gaps) // len(items)], []).extend(it)
    return d
def place(groups, lo, hi):
    cand = [g for g in LIGHT if lo <= g < hi and g not in (BARG, BARG - 1, HOOKA, NG - 1)]
    gs = sorted(cand[:len(groups)])
    assert len(gs) == len(groups)
    return {g: list(x) for g, x in zip(gs, groups)}
def merge(*maps):
    d = {}
    for m in maps:
        for k, v in m.items(): d.setdefault(k, []).extend(v)
    return d
def flat(G): return [x for g in G for x in g]
def groups_of(lst):
    G = []; cur = []
    for x in lst:
        cur.append(x)
        if x.startswith("buffer_"): G.append(cur); cur = []
    if cur: G[-1] += cur
    return G

WCLASS = {}
def plan_wo():
    P = {}; c = 0
    def add(name, kind, base, n):
        nonlocal c
        P[name] = list(range(c, c + n))
        for i in range(n): WCLASS[c] = (kind, base + 16 * i); c += 1
    add("R1", "r", 256 + 192, 4); add("R2", "r", vQ, 4); add("R3", "r", vS, 4)
    for nm, addr in (("W0", LW), ("W1", LW + 16384), ("K0", LK), ("K1", LK + 16384), ("V0", LV), ("K2", LK + 32768),
                     ("V1", LV + 16384), ("K3", LK + 49152), ("V2", LV + 32768)):
        add(nm, "l", addr, 1)
    add("R5", "r", 256 + aF, 4); add("R6", "r", 256 + 64, 4); add("R4", "r", vNEG, 2); add("V3", "l", LV + 49152, 1)
    assert c == 32
    return P
WP = plan_wo()
def wo_loads(name):
    groups = []
    for c in WP[name]:
        kind, where = WCLASS[c]
        for n in range(4):
            g = []
            if n == 0:
                if kind == "l": g.append(m0_at(where))
                g.append(f"s_mov_b32 {sr(sSP)}, {c * 4096}")
            if kind == "r":
                g.append(f"buffer_load_dwordx4 {rr(where + 4*n, 4)}, {vr(vLIN)}, {sr(sWFL,4)}, {sr(sSP)} offen offset:{n*1024} sc1 ; #w{c}")
            else:
                g.append(f"buffer_load_dwordx4 {vr(vLIN)}, {sr(sWFL,4)}, {sr(sSP)} offen offset:{n*1024} sc1 lds ; #w{c}")
            groups.append(g)
    return groups

def weave(mf, nvmap, va=(), pre=None, need=None):
    out = []; va = list(va)
    for g, m in enumerate(mf):
        if need and g in need:
            last = max([i for i, x in enumerate(va) if x[2] == need[g]], default=-1)
            if last >= 0:
                if va[last][1] > g - 1: out.append("s_nop 7")
                out += [x[0] for x in va[:last + 1]] + ["s_nop 1"]; va = va[last + 1:]
        if pre and g in pre: out += pre[g]
        out.append(m)
        nv = nvmap.get(g, [])
        out += nv
        c = sum(slots(x) for x in nv)
        while va and va[0][1] <= g and c + slots(va[0][0]) <= 2:
            c += slots(va[0][0]); out.append(va.pop(0)[0])
    return out, va

def allreduce(op, a, b):
    return [f"v_mov_b32 {vr(b)}, {vr(a)}", "s_nop 1", f"v_permlane32_swap_b32 {vr(a)}, {vr(b)}", "s_nop 1", f"{op} {vr(a)}, {vr(a)}, {vr(b)}",
            f"v_mov_b32 {vr(b)}, {vr(a)}", "s_nop 1", f"v_permlane16_swap_b32 {vr(a)}, {vr(b)}", "s_nop 1", f"{op} {vr(a)}, {vr(a)}, {vr(b)}"]
def qmax(p, qb, d):
    regs = [Sreg(p, kb, qb) + j for kb in range(4) for j in range(4)]
    o = [f"v_max3_f32 {vr(d)}, {vr(regs[0])}, {vr(regs[1])}, {vr(regs[2])}"]
    for i in range(3, 15, 2): o.append(f"v_max3_f32 {vr(d)}, {vr(regs[i])}, {vr(regs[i+1])}, {vr(d)}")
    o.append(f"v_max_f32 {vr(d)}, {vr(regs[15])}, {vr(d)}")
    return o
def rare_a(p, label):
    out = [f"{label}:", "s_nop 7"]
    for qb in range(4):
        d = vT + qb
        out += qmax(p, qb, d) + allreduce("v_max_f32", d, vMX)
        out.append(f"v_max_f32 {vr(d)}, 0, {vr(d)}")
        for j in range(4): out.append(f"v_sub_f32 {vr(vNEG+4*qb+j)}, {vr(vNEG+4*qb+j)}, {vr(d)}")
        for kb in range(4):
            for j in range(4):
                r = Sreg(p, kb, qb) + j
                out.append(f"v_sub_f32 {vr(r)}, {vr(r)}, {vr(d)}")
        out.append(f"v_exp_f32 {vr(d)}, -{vr(d)}")
    out += ["s_nop 3", f"s_setpc_b64 {sr(sRET,2)}"]
    return out
def rare_b(label):
    out = [f"{label}:", "s_nop 15"]
    for qb in range(4):
        f_ = vT + qb
        for j in range(4): out.append(f"v_mul_f32 {vr(vL+4*qb+j)}, {vr(vL+4*qb+j)}, {vr(f_)}")
        for j in range(0, 32, 2):
            a0 = Oreg(qb, 0) + j
            out += [f"v_accvgpr_read_b32 {vr(vMX)}, {ar(a0)}", f"v_accvgpr_read_b32 {vr(vMX+1)}, {ar(a0+1)}",
                    f"v_mul_f32 {vr(vMX)}, {vr(vMX)}, {vr(f_)}", f"v_mul_f32 {vr(vMX+1)}, {vr(vMX+1)}, {vr(f_)}",
                    f"v_accvgpr_write_b32 {ar(a0)}, {vr(vMX)}", f"v_accvgpr_write_b32 {ar(a0+1)}, {vr(vMX+1)}"]
    out += ["s_nop 3", f"s_setpc_b64 {sr(sRET,2)}"]
    return out

def wfrag(st, s, dt): return (96 if st % 2 == 0 else 192) + 4 * (dt * 2 + s)
def xfrag(st, s, qb): return (160 if st % 2 == 0 else 0) + 4 * (qb * 2 + s)
def qacc(qb, dt): return Ureg(dt // 4, (dt // 2) % 2, qb) + 4 * (dt % 2)
def qp_reads(st):
    out = []
    for qb in range(4):
        for s in range(2):
            out.append(f"ds_read_b128 {ar(xfrag(st,s,qb),4)}, {vr(vXA + 2*(st%2) + s)} offset:{qb*2048} ; #x")
    for dt in range(8):
        for s in range(2):
            for t in range(2):
                out.append(f"ds_read_b64_tr_b16 {ar(wfrag(st,s,dt)+2*t,2)}, {vr(vWA + 8*(st%3) + dt)} offset:{(32*s+4*t)*256}")
    return out
def qp_dma(st):
    G = []
    for p in range(4):
        g = [m0_at(LWQ[st % 3]), "s_nop 0"] if p == 0 else []
        g.append(f"buffer_load_dwordx4 {vr(vDW + p//2)}, {sr(sWQ,4)}, {sr(sWO+p)} offen offset:{1024*p} lds ; #st{st}")
        if p % 2: g.append(f"v_add_u32 {vr(vDW + p//2)}, 0x80000, {vr(vDW + p//2)}")
        G.append(g)
    for p in range(8):
        g = [f"s_add_u32 m0, {sr(sW8K)}, {LX[st%2] + (p//4)*4096}", "s_nop 0"] if p % 4 == 0 else []
        g.append(f"buffer_load_dwordx4 {vr(vDX + p%2)}, {sr(sX,4)}, {sr(sXO+p)} offen offset:{1024*(p%4)} lds ; #st{st}")
        if p >= 6: g.append(f"v_add_u32 {vr(vDX + p%2)}, 0x80, {vr(vDX + p%2)}")
        G.append(g)
    return G
def qp_mfmas(st):
    out = []
    if st < 7: order = [(dt, qb, (i if qb % 2 == 0 else 1 - i), i) for dt in range(8) for qb in range(4) for i in range(2)]
    else: order = [(dt, qb, (i if dt % 2 == 0 else 1 - i), i) for qb in range(4) for dt in range(8) for i in range(2)]
    for (dt, qb, s, i) in order:
        d = qacc(qb, dt)
        c = "0" if (st == 0 and i == 0) else vr(d, 4)
        out.append(f"{MF} {vr(d,4)}, {ar(wfrag(st,s,dt),4)}, {ar(xfrag(st,s,qb),4)}, {c}")
    return out
def qconv(qb, s):
    d = qacc(qb, 2 * s); q = Qreg(qb, s)
    out = [f"v_mul_f32 {vr(d+j)}, {sr(sSC)}, {vr(d+j)}" for j in range(8)]
    out += [f"v_cvt_pk_bf16_f32 {vr(q+j)}, {vr(d+2*j)}, {vr(d+2*j+1)}" for j in (0, 2, 1, 3)]
    return out, [f"v_permlane32_swap_b32 {vr(q)}, {vr(q+2)}", f"v_permlane32_swap_b32 {vr(q+1)}, {vr(q+3)}"], \
                [f"v_permlane16_swap_b32 {vr(q)}, {vr(q+2)}", f"v_permlane16_swap_b32 {vr(q+1)}, {vr(q+3)}"]
def qconv_stream(qb):
    parts = [qconv(qb, s) for s in range(4)]
    out = []
    for s in range(4):
        a = parts[s][0]
        if s == 0: out += [(x, s) for x in a]
        else: out += [(x, s) for x in a[:4]] + [(x, s) for x in parts[s-1][1]] + [(x, s) for x in a[4:8]] + [(x, s) for x in parts[s-1][2]] + [(x, s) for x in a[8:]]
    out += [("s_nop 1", 3)] + [(x, 3) for x in parts[3][1]] + [("s_nop 1", 3)] + [(x, 3) for x in parts[3][2]]
    return out

def setup_a():
    o = []; A = o.append
    A("s_cmp_ge_u32 s2, 256")
    A("s_cbranch_scc1 L_end")
    A(f"s_load_dwordx16 {sr(sARG,16)}, s[0:1], 0")
    if CFG["codepf"]:
        A(f"s_getpc_b64 {sr(sT,2)}")
        A("L_pc:")
        A(f"v_lshlrev_b32 {vr(u0)}, 7, v0")
        A(f"v_add_u32 {vr(u1)}, 0x8000, {vr(u0)}")
        A(f"v_min_u32 {vr(u1)}, L_end-L_pc, {vr(u1)}")
        A(f"global_load_dword {vr(vDUM)}, {vr(u0)}, {sr(sT,2)} ; #pf")
        A(f"global_load_dword {vr(vDUM+1)}, {vr(u1)}, {sr(sT,2)} ; #pf")
    A(f"s_and_b32 {sr(sCB)}, s2, 7")
    A(f"s_lshr_b32 {sr(sT+3)}, s2, 3")
    A(f"s_and_b32 {sr(sB)}, {sr(sCB)}, 1"); A(f"s_lshl_b32 {sr(sB)}, {sr(sB)}, 2")
    A(f"s_and_b32 {sr(sMT)}, {sr(sT+3)}, 3"); A(f"s_add_u32 {sr(sB)}, {sr(sB)}, {sr(sMT)}")
    A(f"s_lshr_b32 {sr(sH)}, {sr(sCB)}, 1"); A(f"s_lshl_b32 {sr(sH)}, {sr(sH)}, 3")
    A(f"s_lshr_b32 {sr(sNT)}, {sr(sT+3)}, 2"); A(f"s_add_u32 {sr(sH)}, {sr(sH)}, {sr(sNT)}")
    A(f"v_lshrrev_b32 {vr(u0)}, 6, v0")
    A(f"v_and_b32 {vr(ln)}, 63, v0")
    A(f"v_readfirstlane_b32 {sr(sWAVE)}, {vr(u0)}")
    A(f"v_lshrrev_b32 {vr(u1)}, 4, {vr(ln)}")
    A(f"v_and_b32 {vr(u2)}, 15, {vr(ln)}")
    A(f"v_lshl_add_u32 {vr(u4)}, {vr(u0)}, 4, {vr(u1)}")
    A(f"v_lshlrev_b32 {vr(u3)}, 1, {vr(u1)}")
    A(f"v_xor_b32 {vr(u3)}, {vr(u3)}, {vr(u2)}")
    A(f"v_lshlrev_b32 {vr(u5)}, 4, {vr(u3)}")
    A(f"v_lshl_add_u32 {vr(vDW)}, {vr(u4)}, 13, {vr(u5)}")
    A(f"v_xor_b32 {vr(vDW+1)}, 0x80, {vr(vDW)}")
    A(f"v_lshrrev_b32 {vr(u3)}, 3, {vr(ln)}")
    A(f"v_lshl_add_u32 {vr(u0)}, {vr(u0)}, 6, {vr(u3)}")
    A(f"v_and_b32 {vr(u3)}, 7, {vr(ln)}")
    A(f"v_xor_b32 {vr(u3)}, {vr(u1)}, {vr(u3)}")
    A(f"v_lshlrev_b32 {vr(u3)}, 4, {vr(u3)}")
    A(f"v_lshl_add_u32 {vr(vDX)}, {vr(u0)}, 10, {vr(u3)}")
    A(f"v_xor_b32 {vr(vDX+1)}, 64, {vr(vDX)}")
    A(f"s_lshl_b32 {sr(sW4K)}, {sr(sWAVE)}, 12")
    A(f"s_lshl_b32 {sr(sW8K)}, {sr(sWAVE)}, 13")
    for p in range(8): A(f"s_mov_b32 {sr(sXO+p)}, {p*8192 - 1024*(p%4)}")
    for p in range(4): A(f"s_mov_b32 {sr(sWO+p)}, {p*(32768-1024)}")
    A(f"s_lshl_b32 {sr(sT)}, {sr(sB)}, 18")
    A(f"s_lshl_b32 {sr(sT+1)}, {sr(sH)}, 8")
    A("s_waitcnt lgkmcnt(0)")
    o += stamp()
    o += srd_at(sWQ, 6, sr(sT+1), 511*8192 + 256)
    o += srd_at(sX, 0, sr(sT), 0x40000)
    return o

def wo_piece_dma():
    o = [f"v_lshrrev_b32 {vr(u0)}, 5, v0", f"v_and_b32 {vr(u1)}, 0x1e, {vr(u0)}", f"v_and_b32 {vr(u0)}, 1, {vr(u0)}",
         f"v_lshl_add_u32 {vr(u0)}, {vr(u1)}, 2, {vr(u0)}",
         f"v_and_b32 {vr(u1)}, 31, v0", f"v_lshlrev_b32 {vr(u1)}, 4, {vr(u1)}", f"v_lshl_add_u32 {vr(u0)}, {vr(u0)}, 10, {vr(u1)}", m0_at(LV)]
    for p in range(4):
        o.append(f"s_mov_b32 {sr(sT)}, {1024*p}")
        o.append(f"buffer_load_dwordx4 {vr(u0)}, {sr(sWO2,4)}, {sr(sT)} offen offset:{1024*p} nt lds ; #wo")
    return o

def warm_loads(part):
    if not CFG["warm"]: return []
    o = []; A = o.append
    d = vDUM + (2 if part != "b" else 0)
    if part == "all":
        A(f"v_lshlrev_b32 {vr(u0)}, 7, v0")
        A(f"v_lshrrev_b32 {vr(u2)}, 1, v0")
    elif part == "a":
        A(f"v_lshrrev_b32 {vr(u3)}, 6, v0"); A(f"v_and_b32 {vr(u2)}, 15, v0"); A(f"v_lshl_add_u32 {vr(u3)}, {vr(u3)}, 4, {vr(u2)}")
        A(f"v_and_b32 {vr(u1)}, 48, v0"); A(f"v_lshl_add_u32 {vr(u3)}, {vr(u1)}, 12, {vr(u3)}")
        A(f"v_lshrrev_b32 {vr(u2)}, 1, {vr(u3)}")
        A(f"v_and_b32 {vr(u1)}, 1, v0"); A(f"v_lshlrev_b32 {vr(u0)}, 7, {vr(u1)}"); A(f"v_lshl_add_u32 {vr(u0)}, {vr(u2)}, 10, {vr(u0)}")
        A(f"v_add_u32 {vr(u0)}, 0x80, {vr(u0)}")
        A(f"v_add_u32 {vr(u2)}, 16, {vr(u2)}")
    else:
        A(f"v_lshlrev_b32 {vr(u0)}, 7, v0")
        A(f"v_and_b32 {vr(u1)}, 7, v0"); A(f"v_cmp_gt_u32 vcc, 3, {vr(u1)}"); A(f"v_mov_b32 {vr(u1)}, 0x1000000")
        A(f"v_lshrrev_b32 {vr(u2)}, 1, v0"); A(f"v_add_u32 {vr(u2)}, 48, {vr(u2)}")
        A(f"v_cndmask_b32 {vr(u0)}, {vr(u0)}, {vr(u1)}, vcc")
    A(f"s_and_b32 {sr(sT)}, {sr(sH)}, 7"); A(f"s_lshl_b32 {sr(sT)}, {sr(sT)}, 15")
    A(f"buffer_load_dword {vr(d)}, {vr(u0)}, {sr(sX,4)}, {sr(sT)} offen ; #warm")
    A(f"v_and_b32 {vr(u1)}, 1, v0")
    A(f"v_lshlrev_b32 {vr(u1)}, 7, {vr(u1)}"); A(f"v_min_u32 {vr(u2)}, 0x1000, {vr(u2)}"); A(f"v_lshl_add_u32 {vr(u0)}, {vr(u2)}, 15, {vr(u1)}")
    A(f"s_and_b32 {sr(sT)}, {sr(sB)}, 3"); A(f"s_lshl_b32 {sr(sT)}, {sr(sT)}, 13")
    A(f"buffer_load_dword {vr(d+1)}, {vr(u0)}, {sr(sWQ,4)}, {sr(sT)} offen ; #warm")
    return o

def setup_b():
    o = []; A = o.append
    A(f"s_lshl_b32 {sr(sT+2)}, {sr(sB)}, 5"); A(f"s_add_u32 {sr(sT+2)}, {sr(sT+2)}, {sr(sH)}")
    A(f"s_lshl_b32 {sr(sT)}, {sr(sT+2)}, 18")
    o += srd_at(sK, 2, sr(sT), 0x40000)
    o += srd_at(sV, 4, sr(sT), 0x40000)
    A(f"s_lshl_b32 {sr(sT+1)}, {sr(sT+2)}, 7"); A(f"s_add_u32 {sr(sT+1)}, {sr(sT+1)}, {FLAG_OFF}")
    o += srd_at(sFL, 14, sr(sT+1), 4)
    o += srd_at(sDB, 12, "0", 256)
    A(f"s_and_b32 {sr(sT+1)}, {sr(sT+2)}, 3"); A(f"s_lshl_b32 {sr(sT+1)}, {sr(sT+1)}, 6")
    o += srd_at(sDBW, 12, sr(sT+1), 4)
    A(f"s_lshr_b32 {sr(sT)}, {sr(sT+2)}, 1"); A(f"s_and_b32 {sr(sT+2)}, {sr(sT+2)}, 1")
    A(f"s_lshl_b32 {sr(sT+1)}, {sr(sT)}, 15"); A(f"s_lshl_b32 {sr(sT+3)}, {sr(sT+2)}, 9"); A(f"s_add_u32 {sr(sT+1)}, {sr(sT+1)}, {sr(sT+3)}")
    o += srd_at(sWO2, 8, sr(sT+1), 31*1024 + 512)
    A(f"s_lshl_b32 {sr(sT+2)}, {sr(sT+2)}, 2"); A(f"s_add_u32 {sr(sT+2)}, {sr(sT+2)}, {sr(sWAVE)}"); A(f"s_lshl_b32 {sr(sT+2)}, {sr(sT+2)}, 19")
    A(f"s_lshl_b32 {sr(sT)}, {sr(sT)}, 12"); A(f"s_add_u32 {sr(sT)}, {sr(sT)}, {sr(sT+2)}"); A(f"s_add_u32 {sr(sT)}, {sr(sT)}, {WOF_OFF}")
    o += srd_at(sWS2, 14, sr(sT), 4096)
    A(f"s_lshl_b32 {sr(sT)}, {sr(sB)}, 2"); A(f"s_add_u32 {sr(sT)}, {sr(sT)}, {sr(sWAVE)}"); A(f"s_lshl_b32 {sr(sT)}, {sr(sT)}, 19")
    A(f"s_lshl_b32 {sr(sT+1)}, {sr(sH)}, 14"); A(f"s_add_u32 {sr(sT)}, {sr(sT)}, {sr(sT+1)}")
    o += srd_at(sO, 14, sr(sT), 16384)
    rot = CFG.get("rot", "j")
    if rot == "j": A(f"s_lshr_b32 {sr(sROT)}, s2, 3"); A(f"s_add_u32 {sr(sROT)}, {sr(sROT)}, s2"); A(f"s_and_b32 {sr(sROT)}, {sr(sROT)}, 15"); A(f"s_lshl_b32 {sr(sROT)}, {sr(sROT)}, 14")
    else: A(f"s_mov_b32 {sr(sROT)}, 0")
    A(f"s_mov_b32 {sr(sTHR)}, 0x41000000")
    c = math.log2(math.e) / math.sqrt(128.0)
    A(f"s_mov_b32 {sr(sSC)}, 0x{struct.unpack('<I', struct.pack('<f', c))[0]:08x}")
    A(f"v_lshl_add_u32 {vr(vDV)}, {vr(u4)}, 8, {vr(u5)}")
    A(f"v_xor_b32 {vr(vDV+1)}, 0x80, {vr(vDV)}")
    g_, c16 = u1, u2
    A(f"v_lshrrev_b32 {vr(g_)}, 4, {vr(ln)}")
    A(f"v_and_b32 {vr(c16)}, 15, {vr(ln)}")
    A(f"v_xor_b32 {vr(u3)}, {vr(g_)}, {vr(c16)}")
    A(f"v_lshlrev_b32 {vr(u3)}, 4, {vr(u3)}")
    A(f"v_lshl_add_u32 {vr(vDK)}, {vr(u4)}, 8, {vr(u3)}")
    for p in range(1, 4): A(f"v_xor_b32 {vr(vDK+p)}, {64*p}, {vr(vDK)}")
    A(f"v_lshl_add_u32 {vr(vKA)}, {vr(c16)}, 8, {vr(u3)}")
    for s in range(1, 4): A(f"v_xor_b32 {vr(vKA+s)}, {64*s}, {vr(vKA)}")
    A(f"v_lshrrev_b32 {vr(u3)}, 1, {vr(c16)}")
    A(f"v_xor_b32 {vr(u3)}, {vr(g_)}, {vr(u3)}")
    A(f"v_lshlrev_b32 {vr(u3)}, 4, {vr(u3)}")
    A(f"v_lshl_add_u32 {vr(u3)}, {vr(c16)}, 7, {vr(u3)}")
    A(f"v_add_u32 {vr(u3)}, {sr(sW8K)}, {vr(u3)}")
    for sl in range(2):
        A(f"v_add_u32 {vr(vXA+2*sl)}, {LX[sl]}, {vr(u3)}")
        A(f"v_xor_b32 {vr(vXA+2*sl+1)}, 64, {vr(vXA+2*sl)}")
    A(f"v_cmp_eq_u32 vcc, 0, {vr(c16)}")
    A(f"v_mov_b32 {vr(u3)}, 0x3f803f80")
    r_, f_, c8 = u0, u4, u5
    A(f"v_bfe_u32 {vr(r_)}, {vr(ln)}, 2, 2")
    for j in range(4): A(f"v_cndmask_b32 {vr(vONES+j)}, 0, {vr(u3)}, vcc")
    A(f"v_bfe_u32 {vr(f_)}, {vr(ln)}, 2, 3")
    A(f"v_and_b32 {vr(c8)}, 3, {vr(ln)}")
    A(f"v_lshlrev_b32 {vr(c8)}, 3, {vr(c8)}")
    A(f"v_lshrrev_b32 {vr(u3)}, 2, {vr(ln)}")
    A(f"v_lshl_add_u32 {vr(vWOA)}, {vr(u3)}, 9, {vr(c8)}")
    A(f"s_lshl_b32 {sr(sT)}, {sr(sWAVE)}, 7"); A(f"s_add_u32 {sr(sT)}, {sr(sT)}, {LV}")
    A(f"v_add_u32 {vr(vWOA)}, {sr(sT)}, {vr(vWOA)}")
    A(f"v_lshl_add_u32 {vr(c8)}, {vr(f_)}, 5, {vr(c8)}")
    A(f"v_lshl_add_u32 {vr(u3)}, {vr(u3)}, 8, {vr(c8)}")
    A(f"v_add_u32 {vr(vVA)}, {LV}, {vr(u3)}")
    for dt in range(1, 8): A(f"v_xor_b32 {vr(vVA+dt)}, {32*dt}, {vr(vVA)}")
    A(f"v_lshl_add_u32 {vr(u3)}, {vr(g_)}, 3, {vr(r_)}")
    A(f"v_lshl_add_u32 {vr(u3)}, {vr(u3)}, 8, {vr(c8)}")
    for sl in range(3):
        A(f"v_add_u32 {vr(vWA+8*sl)}, {LWQ[sl]}, {vr(u3)}")
        for dt in range(1, 8): A(f"v_xor_b32 {vr(vWA+8*sl+dt)}, {32*dt}, {vr(vWA+8*sl)}")
    A(f"v_lshlrev_b32 {vr(vWOS)}, 4, {vr(ln)}")
    A(f"s_lshl_b32 {sr(sT)}, {sr(sWAVE)}, 17")
    A(f"v_add_u32 {vr(vLIN)}, {sr(sT)}, {vr(vWOS)}")
    A(f"v_mov_b32 {vr(vCW)}, 0")
    for r in range(48, 96): A(f"v_accvgpr_write_b32 {ar(r)}, 0")
    return o

def wo_reads():
    return [f"ds_read_b64_tr_b16 {ar(aWO+4*i+2*tt,2)}, {vr(vWOA)} offset:{i*32 + tt*8192}" for i in range(4) for tt in range(2)]
def wo_stores():
    return [[f"buffer_store_dwordx4 {ar(aWO+4*i,4)}, {vr(vWOS)}, {sr(sWS2,4)}, 0 offen offset:{i*1024} sc1 ; #wst"] for i in range(4)] + \
           [[f"buffer_store_dword {vr(vCW)}, {vr(vLIN)}, {sr(sFL,4)}, 0 offen sc1 ; #wst"]]

def pairs(lst): return [lst[i:i+2] for i in range(0, len(lst), 2)]
def prologue():
    qs = stamp if CFG["qst"] else (lambda: [])
    order = CFG.get("order", "G")
    o = setup_a()
    o += flat(qp_dma(0))
    o += qs()
    sb = setup_b()
    st0_extra = []
    if order == "F":
        o += sb[:len(sb) - 48] + warm_loads("a") + sb[len(sb) - 48:]
        o += qs()
        o += ["@wait st0", "s_barrier"] + stamp() + flat(qp_dma(1)) + qp_reads(0)
        st0_extra = qp_dma(2) + groups_of(warm_loads("b") + wo_piece_dma())
    elif order == "G":
        o += sb[:len(sb) - 48] + wo_piece_dma() + sb[len(sb) - 48:]
        o += qs()
        o += ["@wait st0", "s_barrier"] + stamp() + flat(qp_dma(1)) + qp_reads(0)
        st0_extra = qp_dma(2)
    elif order == "H":
        o += sb + flat(qp_dma(1))
        o += qs()
        o += ["@wait st0", "s_barrier"] + stamp() + qp_reads(0)
        st0_extra = qp_dma(2) + groups_of(wo_piece_dma())
    elif order == "I":
        o += sb[:len(sb) - 48] + warm_loads("a") + sb[len(sb) - 48:]
        o += qs()
        o += ["@wait st0", "s_barrier"] + stamp() + qp_reads(0) + flat(qp_dma(1))
        st0_extra = qp_dma(2) + groups_of(wo_piece_dma())
    kv = lambda *l: groups_of(sum([kv_batch(x[0], int(x[1:])) for x in l], []))
    late = {5: kv("K0", "K1"), 6: kv("V0"), 7: kv("K2")}
    for st in range(8):
        mf = qp_mfmas(st)
        o += qs()
        if st < 7:
            reads = qp_reads(st + 1) + (wo_reads() if st == 3 else [])
            d = qp_dma(st + 3) if st + 3 <= 7 else []
            bg = int(CFG.get("bg0", 24)) if st == 0 else 0
            rg = list(range(bg + 2, 58, 2)) if st else list(range(bg + 1, 60))
            nvm = merge({bg: ["s_barrier"]}, spread(pairs(reads), rg))
            xw = bg + (16 if st else 12)
            if st == 0: nvm = merge(nvm, spread(st0_extra, list(range(0, bg))))
            if d:
                nvm = merge(nvm, spread(d[:4], list(range(bg + 1, xw, 2))), {xw: ["@wait - lds=x"]}, spread(d[4:] + late.get(st, []), list(range(xw + 1, 64, 2))))
            else:
                nvm = merge(nvm, spread(late[st], list(range(1, 64, 2))))
            for g in nvm: nvm[g].sort(key=lambda x: 0 if x.startswith("@") else 1)
            pre = {0: [f"@wait st{st+1} lgkm=0"]} if st else {0: ["@wait - lgkm=0"], bg: ["@wait st1"]}
            part, _ = weave(mf, nvm, pre=pre)
            o += part
        else:
            va = [(f"v_accvgpr_write_b32 {ar(r)}, 0", 0, "z") for r in range(96, 112)]
            for qb in range(4):
                va += [(t, 16 * qb + 4 * s + 3 + 3, f"q{qb}") for t, s in qconv_stream(qb)]
            nvm = merge(spread(late[7], [1, 9, 17, 25]), {42: ["s_barrier"]}, spread(pairs([rd_k(0, n) for n in range(16)]), list(range(43, 59, 2))))
            part, va_left = weave(mf, nvm, va, pre={0: ["s_waitcnt lgkmcnt(0)"], 42: ["@wait K0"]})
            o += part
    o += stamp()
    va = [(t, max(0, e - 64), k) for t, e, k in va_left]
    va += [(f"v_accvgpr_write_b32 {ar(r)}, 0", 0 if not 32 <= r < 48 else 62, "z") for r in list(range(112, 128)) + list(range(0, 48))]
    va += [(f"v_mov_b32 {vr(vL+j)}, 0", 0, "z") for j in range(16)]
    mf = [qk_one(0, kb, qb, (i if kb % 2 == 0 else 3 - i), i == 0, czero=True) for qb in range(4) for kb in range(4) for i in range(4)]
    nvm = merge({56: ["s_barrier"], 57: [f"s_add_u32 {sr(sTILE)}, {sr(sROT)}, {3*16384}"], 58: [f"s_and_b32 {sr(sTILE)}, {sr(sTILE)}, 0x3ffff"],
                 59: [f"s_add_u32 {sr(sTK)}, {sr(sROT)}, {4*16384}"], 60: [f"s_and_b32 {sr(sTK)}, {sr(sTK)}, 0x3ffff"], 2: [f"s_mov_b32 {sr(sCNT)}, 0"]},
                spread(kv("V1") + wo_stores(), list(range(3, 56))))
    part, left = weave(mf, nvm, va, pre={0: ["s_waitcnt lgkmcnt(0)"], 56: ["@wait K1,V0"]}, need={16 * q: f"q{q}" for q in range(4)})
    o += part
    o += [rd_k(1, n) for n in EARLY_K]
    o += [t for t, _, _ in left]
    o.append("s_nop 7")
    ini = []
    for qb in range(4): ini += qmax(0, qb, vT + qb)
    for sw in ("v_permlane32_swap_b32", "v_permlane16_swap_b32"):
        ini += [f"v_mov_b32 {vr(vNEG+qb)}, {vr(vT+qb)}" for qb in range(4)]
        ini += [f"{sw} {vr(vT+qb)}, {vr(vNEG+qb)}" for qb in range(4)]
        ini += [f"v_max_f32 {vr(vT+qb)}, {vr(vT+qb)}, {vr(vNEG+qb)}" for qb in range(4)]
    for qb in range(4):
        ini += [f"v_sub_f32 {vr(vNEG+4*qb+j)}, 0, {vr(vT+qb)}" for j in range(4)]
    for ks, qb in UNITS:
        r = Ureg(0, ks, qb)
        ini += [f"v_pk_add_f32 {vr(r+j,2)}, {vr(r+j,2)}, {vr(vNEG+4*qb,2)}" for j in range(0, 8, 2)]
    ex_ = [exp_i(0, it[1]) for it in E_FIRST if it[0] == "exp"]; cv_ = [cvt_i(0, it[1]) for it in E_FIRST if it[0] == "cvt"]
    ini += ex_ + cv_
    G = kv("K3", "V2")
    for i, g in enumerate(G):
        k = (i + 1) * len(ini) // (len(G) + 1)
        ini = ini[:k] + g + ini[k:]
    o += ini
    o.append("@wait - lds=k0,k1,k2,k3")
    o += stamp()
    o, fifo, lf = resolve(o, [])
    return o, fifo, lf

def phase_c_srds():
    o = []; A = o.append
    A(f"s_lshl_b32 {sr(sT)}, {sr(sNT)}, 19"); A(f"s_add_u32 {sr(sT)}, {sr(sT)}, {WOF_OFF}")
    o += srd_at(sWFL, 14, sr(sT), 0x80000)
    A(f"s_lshl_b32 {sr(sT)}, {sr(sCB)}, 2"); A(f"s_add_u32 {sr(sT)}, {sr(sT)}, {sr(sMT)}"); A(f"s_lshl_b32 {sr(sT+1)}, {sr(sT)}, 19")
    o += srd_at(sOL, 14, sr(sT+1), 0x80000)
    A(f"s_lshl_b32 {sr(sT)}, {sr(sT)}, 16"); A(f"s_lshl_b32 {sr(sT+1)}, {sr(sNT)}, 7"); A(f"s_add_u32 {sr(sT)}, {sr(sT)}, {sr(sT+1)}")
    o += srd_at(sOUT, 10, sr(sT), 63*1024 + 128)
    A(f"s_lshl_b32 {sr(sT)}, {sr(sCB)}, 12"); A(f"s_add_u32 {sr(sT)}, {sr(sT)}, {FLAG_OFF}")
    o += srd_at(sFLR, 14, sr(sT), 4096)
    return o

def tail_and_epilogue(u):
    p = u % 2
    o = []
    reads = [rd_v(u % 4, n, t) for n in range(16) for t in range(2)]
    er = [(exp_i(p, it[1]), UNITS[it[1] // 8][1]) if it[0] == "exp" else (cvt_i(p, it[1]), UNITS[it[1] // 4][1]) for it in E_REST]
    va = []
    for i, (t, q) in enumerate(er):
        if t.startswith("v_cvt") and i and er[i-1][0].startswith("v_exp"): va.append(("s_nop 0", 0, f"e{q}"))
        va.append((t, 0, f"e{q}"))
    mf = []
    for qb in range(4):
        mf += [sum_one(p, qb, 0), sum_one(p, qb, 1)]
        mf += [pv_one(p, dt, qb, (i if dt % 2 == 0 else 1 - i)) for dt in range(8) for i in range(2)]
    vOST = vCW
    va.append((f"v_and_b32 {vr(vOST)}, 0x3ff, {vr(vLIN)}", 0, "x"))
    tmp = vNEG
    for qb in range(4):
        e0 = 18 * qb
        lsum = [f"v_mov_b32 {vr(vT+qb)}, {vr(vL+4*qb)}"] + allreduce("v_add_f32", vT + qb, vMX) + [f"v_rcp_f32 {vr(vT+qb)}, {vr(vT+qb)}"]
        va += [(t, e0 + 1 + 3, "o") for t in lsum]
        for s in range(4):
            e = e0 + 2 + 4 * s + 3 + 3
            b = tmp + 8 * (s % 2)
            pk = vKA + 3 + 4 * (s % 2) if False else None
            va += [(f"v_accvgpr_read_b32 {vr(b+j)}, {ar(Oreg(qb,2*s)+j)}", e, "o") for j in range(8)]
            va += [(f"v_mul_f32 {vr(b+j)}, {vr(b+j)}, {vr(vT+qb)}", e, "o") for j in range(8)]
            d = Ureg(p, s // 2, qb) + 4 * (1 - s % 2)
            ee = e0 + 17 if s % 2 == 1 else e
            va += [(f"v_cvt_pk_bf16_f32 {vr(d+j)}, {vr(b+2*j)}, {vr(b+2*j+1)}", max(e, ee), "o") for j in range(4)]
            va += [(f"s_mov_b32 {sr(sT)}, {s*4096}", e, "o"),
                   (f"buffer_store_dwordx4 {vr(d,4)}, {vr(vOST)}, {sr(sO,4)}, {sr(sT)} offen offset:{qb*1024} sc1 ; #ost", e, "o")]
    o += reads[:12]
    nvm = spread(pairs(reads[12:]), list(range(0, 10)))
    pre = {2 + 2 * dt: [f"@wait - lds=v{2*dt},v{2*dt+1}"] for dt in range(8)}
    nvm = merge(nvm, spread(wo_loads("K3") + wo_loads("V2") + wo_loads("R3"), list(range(11, 72, 2))))
    part, left = weave(mf, nvm, va, pre=pre, need={18 * q: f"e{q}" for q in range(4)})
    o += part
    o += stamp()
    o.append("s_nop 7")
    o += [t for t, _, _ in left]
    A = o.append
    o += flat(wo_loads("R5"))
    A(f"v_mov_b32 {vr(vMX)}, 1")
    A(f"v_and_b32 {vr(vT)}, 7, v0"); A(f"v_lshlrev_b32 {vr(vT)}, 7, {vr(vT)}")
    A(f"s_lshl_b32 {sr(sT)}, {sr(sWAVE)}, 10"); A(f"v_add_u32 {vr(vT)}, {sr(sT)}, {vr(vT)}")
    A(f"v_add_u32 {vr(vKA)}, {sr(sW4K)}, {vr(vOST)}")
    A(f"v_add_u32 {vr(vKA+1)}, 0x10000, {vr(vKA)}")
    A(f"v_add_u32 {vr(vKA+2)}, 0x20000, {vr(vKA)}")
    A(f"s_mov_b32 {sr(sCNT)}, 0")
    A("@wait ost")
    A("s_barrier")
    A(f"buffer_store_dword {vr(vMX)}, {vr(vLIN)}, {sr(sFL,4)}, 0 offen sc1 ; #flag")
    o += stamp()
    o += flat(wo_loads("R6") + wo_loads("R4") + wo_loads("V3"))
    A("L_poll:")
    A(f"buffer_load_dword {vr(vT+1)}, {vr(vT)}, {sr(sFLR,4)}, 0 offen sc1 ; #poll")
    A("s_waitcnt vmcnt(0)")
    A(f"v_cmp_ne_u32 vcc, 1, {vr(vT+1)}")
    A("s_cbranch_vccz L_go")
    A(f"s_add_u32 {sr(sCNT)}, {sr(sCNT)}, 1")
    A(f"s_cmp_lt_u32 {sr(sCNT)}, {CFG['spin']}")
    A("s_cbranch_scc1 L_poll")
    A("L_go:")
    o += stamp()
    return o

def phase_c():
    o = []; A = o.append
    pool = [vS + 64 + 16 * i for i in range(4)]
    oreg = {}; wtmp = {}
    nxt = 0
    MAXFLY = 14
    def issue_o(c):
        nonlocal nxt
        G = []
        reserve = sum(1 for k in range(c + 3, min(32, c + 5)) if WCLASS[k][0] == "l")
        while nxt < 32 and len(pool) > reserve and nxt - c <= MAXFLY:
            r = pool.pop(0); oreg[nxt] = r
            for qb in range(4):
                g = [f"s_mov_b32 {sr(sSP)}, {nxt * 4096}"] if qb == 0 else []
                g.append(f"buffer_load_dwordx4 {rr(r + 4*qb, 4)}, {vr(vLIN)}, {sr(sOL,4)}, {sr(sSP)} offen offset:{qb*1024} sc1 ; #o{nxt}")
                G.append(g)
            nxt += 1
        return G
    def lds_reads(c):
        addr = WCLASS[c][1]
        r = pool.pop(0); wtmp[c] = r
        return [f"ds_read_b128 {rr(r + 4*n, 4)}, {vr(vKA + addr // 65536)} offset:{addr % 65536 + n*1024} ; #w{c}" for n in range(4)]
    o += flat(issue_o(-1))
    carry = []
    for c in range(0, 32, 2):
        rd = []
        for k in (c + 2, c + 3):
            if k < 32 and WCLASS[k][0] == "l": rd += lds_reads(k)
        A(f"@wait o{c},o{c+1} lds=w{c},w{c+1}")
        if c == 0: o += stamp()
        w = [WCLASS[k][1] if WCLASS[k][0] == "r" else wtmp[k] for k in (c, c + 1)]
        mf = []
        for n in range(4):
            for qb in range(4):
                d = ar(4 * (n * 4 + qb), 4)
                for i in range(2):
                    k = i if qb % 2 == 0 else 1 - i
                    mf.append(f"{MF} {d}, {rr(w[k] + 4*n, 4)}, {rr(oreg[c+k] + 4*qb, 4)}, {d if (c or i) else 0}")
        nvm = merge(spread(carry, list(range(0, 24))) if carry else {}, spread(pairs(rd), list(range(24, 28))) if rd else {})
        part, _ = weave(mf, nvm)
        o += part
        pool.extend([oreg[c], oreg[c+1]] + w)
        carry = issue_o(c + 1)
    assert not carry
    o += stamp()
    A("v_and_b32 v7, 63, v0")
    A("v_and_b32 v8, 15, v7"); A("v_lshrrev_b32 v9, 4, v7")
    A("v_xor_b32 v10, v8, v9"); A("v_lshlrev_b32 v10, 4, v10")
    A("v_lshl_add_u32 v8, v8, 8, v10")
    A(f"v_add_u32 v32, {sr(sW4K)}, v8")
    for n in range(1, 4): A(f"v_xor_b32 {vr(32+n)}, {n*64}, v32")
    A("v_lshrrev_b32 v8, 3, v0"); A("v_and_b32 v9, 7, v0"); A("v_lshlrev_b32 v10, 1, v9")
    A("v_and_b32 v11, 15, v8"); A("v_xor_b32 v10, v10, v11"); A("v_lshlrev_b32 v10, 4, v10")
    A("v_lshl_add_u32 v10, v11, 8, v10")
    A("v_lshrrev_b32 v11, 4, v8"); A("v_lshl_add_u32 v10, v11, 14, v10"); A("v_xor_b32 v11, 16, v10")
    A("v_lshlrev_b32 v9, 4, v9"); A("v_lshl_add_u32 v14, v8, 10, v9")
    for n in range(4):
        for qb in range(4):
            A(f"ds_write_b128 {vr(32 + n)}, {ar(4*(n*4+qb), 4)} offset:{qb*16384}")
    A("s_waitcnt lgkmcnt(0)")
    A("s_barrier")
    for z in range(2):
        for w in range(4):
            for i in range(2):
                A(f"ds_read_b128 {vr(64 + z*32 + w*8 + i*4, 4)}, {vr(10 + i)} offset:{w*4096 + z*32768}")
    A(f"s_mov_b32 {sr(sT)}, {32*1024}")
    for z in range(2):
        A(f"s_waitcnt lgkmcnt({8 if z == 0 else 0})")
        b = 64 + z * 32
        for j in range(8):
            A(f"v_add_f32 {vr(b+j)}, {vr(b+j)}, {vr(b+8+j)}")
            A(f"v_add_f32 {vr(b+16+j)}, {vr(b+16+j)}, {vr(b+24+j)}")
        for j in range(8): A(f"v_add_f32 {vr(b+j)}, {vr(b+j)}, {vr(b+16+j)}")
        for j in range(4): A(f"v_cvt_pk_bf16_f32 {vr(b+8+j)}, {vr(b+2*j)}, {vr(b+2*j+1)}")
        A(f"buffer_store_dwordx4 {vr(b+8,4)}, v14, {sr(sOUT,4)}, {sr(sT) if z else 0} offen")
    return o

def peeled(lf):
    o = [f"s_mov_b32 {sr(sT)}, 0xe00fe000", f"v_cmp_ne_u32 vcc, {sr(sT)}, {vr(vCW)}", "s_cbranch_vccnz L_cw", "L_cw_back:"]
    srds = phase_c_srds()
    sg = [g for g in range(0, 40) if g not in (15, 31)]
    ex12 = merge({g: [x] for g, x in zip(sg, srds)},
                 place(groups_of(kv_batch("V", 15)) + wo_loads("K0") + wo_loads("W0") + wo_loads("W1"), 40, NG))
    assert len(srds) <= len(sg)
    o += iteration(0, "L_r4", ex12, "K14,V13")
    o += iteration(1, "L_r5", place(wo_loads("K1") + wo_loads("V0") + wo_loads("R1"), 0, NG), "K15,V14")
    ex14 = merge(place(wo_loads("K2") + wo_loads("V1"), 0, 64), place(wo_loads("R2"), 64, NG))
    o += iteration(2, "L_r6", ex14, "V15", nextk=False)
    o += stamp()
    o += tail_and_epilogue(3)
    o += phase_c()
    fifo = ["K14"] * 4 + ["V13"] * 4 + ["K15"] * 4 + ["V14"] * 4
    o, _, _ = resolve(o, fifo, lf)
    return o

def stamp_out():
    if not CFG["stamps"]: return []
    o = ["s_waitcnt vmcnt(0)"] + stamp()
    A = o.append
    A(f"s_lshl_b32 {sr(sT)}, s2, 10"); A(f"s_add_u32 {sr(sT)}, {sr(sT)}, {STAMP_OFF}")
    o += srd_at(4, 14, sr(sT), 1024)
    A("v_lshlrev_b32 v1, 2, v0")
    A(f"buffer_store_dword v{STV}, v1, s[4:7], 0 offen")
    return o

def kernel():
    pro, fifo, lf0 = prologue()
    _, _, lf = resolve(iteration(0, "x") + iteration(1, "x"), [])
    its = []
    for u in range(4):
        it, _, lf2 = resolve(iteration(u, f"L_r{u}"), [], lf)
        assert lf2 == lf
        its.append(it)
    assert len(lf0) >= len(lf) and lf0[len(lf0)-len(lf):] == lf or CFG["stamps"], (lf0, lf)
    pe = peeled(lf)
    body = list(pro)
    body.append("L_loop:")
    for u in range(4):
        it = list(its[u])
        if u == 3:
            k = [i for i, x in enumerate(it) if x.startswith(MF)]
            it.insert(k[-3] + 1, f"s_cmp_lt_u32 {sr(sCNT)}, 3")
            it.insert(k[-4] + 1, f"s_add_u32 {sr(sCNT)}, {sr(sCNT)}, 1")
            it.append("s_cbranch_scc1 L_loop")
            its[3] = it
        body += it
    body += pe
    body += stamp_out()
    body.append("L_end:")
    body.append("s_endpgm")
    for u in range(7):
        body += [f"L_r{u}a:", f"s_call_b64 {sr(sRET,2)}, L_ra{1 - u % 2}", f"s_branch L_r{u}a_back"]
        body += [f"L_r{u}b:", f"s_call_b64 {sr(sRET,2)}, L_rb", f"s_branch L_r{u}b_back"]
    body += ["L_cw:", f"s_mov_b32 {sr(sCNT)}, 0", "L_cw_loop:",
             f"v_and_b32 {vr(vCW)}, 3, v0", f"v_lshlrev_b32 {vr(vCW)}, 6, {vr(vCW)}",
             f"buffer_load_dword {vr(vCW)}, {vr(vCW)}, {sr(sDB,4)}, 0 offen sc1", "s_waitcnt vmcnt(0)",
             f"v_cmp_ne_u32 vcc, {sr(sT)}, {vr(vCW)}", "s_cbranch_vccz L_cw_back",
             f"s_add_u32 {sr(sCNT)}, {sr(sCNT)}, 1", f"s_cmp_lt_u32 {sr(sCNT)}, {CFG['spin']}", "s_cbranch_scc1 L_cw_loop",
             "s_branch L_cw_back"]
    for p in range(2): body += rare_a(p, f"L_ra{p}")
    body += rare_b("L_rb")
    loop = its[0] + its[1] + its[2] + its[3]
    check(pro + loop + loop + pe, "main")
    def with_rare(seq):
        o = []
        for x in seq:
            m = re.match(r"L_r(\d)([ab])_back:", x)
            if m: o += (rare_a(1 - int(m.group(1)) % 2, "x") if m.group(2) == "a" else rare_b("x"))[1:]
            o.append(x)
        return o
    check(pro + with_rare(loop + pe), "rare")
    if CFG["verbose"]:
        for g in range(NG): print(g, PLAN[g])
    return "\n".join(body)

if __name__ == "__main__":
    k = kernel()
    txt = file_text([dict(label=NAME + "_kernel", body=k, grid=256, block=256, lds=163840, vgpr=512, accum=256)], single=True)
    open(sys.argv[1], "w").write(txt)
```

```python
import sys, math, struct, re
from asmlib import *
from check import check

CFG = dict(qst=False, stamps=False, codepf=True, warm=True, spin=200000, verbose=False)
for a in sys.argv[2:]:
    k, v = a.split("=")
    CFG[k] = {"0": False, "1": True}.get(v, v)

MF = "v_mfma_f32_16x16x32_bf16"
def vr(b, n=1): return f"v{b}" if n == 1 else f"v[{b}:{b+n-1}]"
def ar(b, n=1): return f"a{b}" if n == 1 else f"a[{b}:{b+n-1}]"
def sr(b, n=1): return f"s{b}" if n == 1 else f"s[{b}:{b+n-1}]"
def rr(r, n=1): return vr(r, n) if r < 256 else ar(r - 256, n)
def slots(t):
    if t.startswith(("v_exp", "v_rcp", "buffer_", "global_", "v_permlane")): return 2
    if t.startswith(("s_", "@", "L_")): return 0
    return 1

sX, sWQ, sK, sV, sO = 4, 8, 12, 16, 20
sWFL, sOL = 4, 8
sWAVE, sB, sH, sW4K, sW8K = 24, 25, 26, 27, 28
sCB, sMT, sNT = 29, 30, 31
sXO, sWO = 32, 40
sOUT, sFLR = 32, 36
sTILE, sCNT, sTHR, sSC, sSP = 44, 45, 46, 47, 48
sRET = 50
sTK, sROT = 49, 92
sT = 52
sARG = 56
sFL, sDB, sDBW = 72, 76, 88
sWS2, sWO2 = 80, 84
vKA, vVA, vDK, vDV = 1, 5, 13, 17
vMX, vLIN, vCW, STV = 19, 21, 22, 23
vT = 24
vONES = 28
vNEG, vL, vQ, vS = 32, 48, 64, 128
vWA, vXA, vDX, vDW = 32, 56, 62, 64
vWOA, vWOS, vDUM = 66, 20, 68
u0, u1, u2, u3, u4, u5, ln = 72, 73, 74, 75, 76, 77, 78
aO, aF, aWO = 0, 128, 32
LK, LV, LW = 0, 65536, 131072
LX = [81920, 131072]
LWQ = [49152, 114688, 32768]
WOF_OFF, FLAG_OFF, STAMP_OFF = 0x1000000, 0x1400000, 0x4000000

def Ureg(p, ks, qb): return vS + 64 * p + 8 * (ks * 4 + qb)
def Sreg(p, kb, qb): return Ureg(p, kb // 2, qb) + 4 * (kb % 2)
def Oreg(qb, dt): return aO + 4 * (qb * 8 + dt)
def Qreg(qb, s): return vQ + 16 * qb + 4 * s
def Freg(n): return aF + 4 * n

nstamp = [0]
def stamp():
    if not CFG["stamps"]: return []
    i = nstamp[0]; nstamp[0] += 1
    assert i < 30
    return ["s_memtime s[100:101]", "s_waitcnt lgkmcnt(0)", f"v_writelane_b32 v{STV}, s100, {2*i}",
            "s_memrealtime s[100:101]", "s_waitcnt lgkmcnt(0)", f"v_writelane_b32 v{STV}, s100, {2*i+1}"]

def srd(s, size):
    return [f"s_and_b32 {sr(s+1)}, {sr(s+1)}, 0xffff", f"s_mov_b32 {sr(s+2)}, {size}", f"s_mov_b32 {sr(s+3)}, 0x20000"]
def srd_at(s, arg, offreg, size):
    return [f"s_add_u32 {sr(s)}, {sr(sARG+arg)}, {offreg}", f"s_addc_u32 {sr(s+1)}, {sr(sARG+arg+1)}, 0"] + srd(s, size)

def tag(lst, t): return [(x + f" ; #{t}") if x.startswith(("buffer_", "global_")) and "#" not in x else x for x in lst]
def resolve(seq, fifo, lfifo=()):
    fifo = list(fifo); lf = list(lfifo); out = []
    def cut(f, n): return f[len(f) - n:] if 0 < n < len(f) else (f if n else [])
    for x in seq:
        if x.startswith("@wait"):
            parts = x.split()
            w = []
            idx = [i for i, t in enumerate(fifo) if t in parts[1].split(",")]
            if idx:
                n = min(63, len(fifo) - 1 - max(idx)); fifo = cut(fifo, n); w.append(f"vmcnt({n})")
            for p in parts[2:]:
                if p.startswith("vm="): n = int(p[3:]); fifo = cut(fifo, n); w.append(f"vmcnt({n})")
                if p.startswith("lgkm="): n = int(p[5:]); lf = cut(lf, n); w.append(f"lgkmcnt({n})")
                if p.startswith("lds="):
                    idx = [i for i, t in enumerate(lf) if t in p[4:].split(",")]
                    if idx:
                        n = min(15, len(lf) - 1 - max(idx)); lf = cut(lf, n); w.append(f"lgkmcnt({n})")
            if w: out.append("s_waitcnt " + " ".join(w))
            continue
        m = re.search(r"#(\S+)", x)
        if x.startswith(("buffer_", "global_")): fifo.append(m.group(1) if m else "?")
        if x.startswith("ds_"): lf.append(m.group(1) if m else "?")
        m = re.match(r"s_waitcnt.*vmcnt\((\d+)\)", x)
        if m: fifo = cut(fifo, int(m.group(1)))
        m = re.match(r"s_waitcnt.*lgkmcnt\((\d+)\)", x)
        if m: lf = cut(lf, int(m.group(1)))
        out.append(x)
    return out, fifo, lf

def dma_k(p, soff): return f"buffer_load_dwordx4 {vr(vDK+p)}, {sr(sK,4)}, {soff} offen offset:{1024*p} nt lds"
def dma_v(p, soff): return f"buffer_load_dwordx4 {vr(vDV + p%2)}, {sr(sV,4)}, {soff} offen offset:{1024*p} nt lds"
def m0_at(addr): return f"s_add_u32 m0, {sr(sW4K)}, {addr}"
def kv_batch(which, tile):
    out = [m0_at((LK if which == "K" else LV) + (tile % 4) * 16384), f"s_add_u32 {sr(sT)}, {sr(sROT)}, {tile*16384}", f"s_and_b32 {sr(sT)}, {sr(sT)}, 0x3ffff"]
    for p in range(4): out.append(dma_k(p, sr(sT)) if which == "K" else dma_v(p, sr(sT)))
    return tag(out, f"{which}{tile}")

def rd_k(slot, n):
    kb, s = n // 4, n % 4
    return f"ds_read_b128 {ar(Freg(n),4)}, {vr(vKA+s)} offset:{slot*16384 + kb*4096} ; #k{n}"
def rd_v(slot, n, t):
    dt, ks = n // 2, n % 2
    return f"ds_read_b64_tr_b16 {ar(Freg(n)+2*t,2)}, {vr(vVA+dt)} offset:{slot*16384 + (32*ks+16*t)*256} ; #v{n}"

def qk_one(p, kb, qb, s, first, czero=False):
    d = Sreg(p, kb, qb)
    c = vr(d, 4) if not first else ("0" if czero else vr(vNEG + 4*qb, 4))
    return f"{MF} {vr(d,4)}, {ar(Freg(kb*4+s),4)}, {vr(Qreg(qb,s),4)}, {c}"
def qk_list(p):
    return [qk_one(p, kb, qb, (i if qb % 2 == 0 else 3 - i), i == 0) for kb in range(4) for qb in range(4) for i in range(4)]
def pv_one(p, dt, qb, ks):
    o = Oreg(qb, dt)
    return f"{MF} {ar(o,4)}, {ar(Freg(dt*2+ks),4)}, {vr(Ureg(p,ks,qb),4)}, {ar(o,4)}"
def sum_one(p, qb, ks):
    return f"{MF} {vr(vL+4*qb,4)}, {vr(vONES,4)}, {vr(Ureg(p,ks,qb),4)}, {vr(vL+4*qb,4)}"
def pv_list(p):
    return ([pv_one(p, dt, qb, (i if qb % 2 == 0 else 1 - i)) for dt in range(8) for qb in range(4) for i in range(2)]
            + [sum_one(p, qb, ks) for qb in range(4) for ks in range(2)])

UNITS = [(0, 0), (1, 0), (1, 1), (0, 1), (0, 2), (1, 2), (1, 3), (0, 3)]
def ereg(p, e): ks, qb = UNITS[e // 8]; return Ureg(p, ks, qb) + e % 8
def exp_i(p, e): r = ereg(p, e); return f"v_exp_f32 {vr(r)}, {vr(r)}"
def cvt_i(p, k):
    r = ereg(p, 2 * k); return f"v_cvt_pk_bf16_f32 {vr(r - (2*k) % 8 + k % 4)}, {vr(r)}, {vr(r+1)}"
def max_items(p):
    out = []
    for kb in range(4):
        for qb in range(4):
            r = Sreg(p, kb, qb); m = vr(vMX + qb % 2); done = 16 * kb + 4 * qb + 3
            if kb == 0 and qb < 2:
                out.append((f"v_max3_f32 {m}, {vr(r)}, {vr(r+1)}, {vr(r+2)}", done))
                out.append((f"v_max_f32 {m}, {vr(r+3)}, {m}", done))
            else:
                out.append((f"v_max3_f32 {m}, {vr(r)}, {vr(r+1)}, {m}", done))
                out.append((f"v_max3_f32 {m}, {vr(r+2)}, {vr(r+3)}, {m}", done))
    return out

NG = 136
HOOKA = 69
BARG = 118
LAT = 8
def make_plan():
    plan = {g: [] for g in range(NG)}
    T0 = HOOKA
    dma_t = [NG + g for g in (4, 12, 20, 28, 36, 44, 52, 60)]
    NX2 = int(CFG.get('nx2', 44))
    r2 = [t for t in range(T0, NG) if t != BARG]
    r1 = [t for t in range(NG, NG + 64) if t not in dma_t]
    xt = [r2[i * len(r2) // NX2] for i in range(NX2)] + [r1[i * len(r1) // (64 - NX2)] for i in range(64 - NX2)]
    assert len(set(xt)) == 64
    for e, t in enumerate(xt): plan[t % NG].append(("exp", e, t >= NG))
    for i, t in enumerate(dma_t): plan[t % NG].append(("dma", i))
    Y = []
    for k in range(32):
        Y.append((xt[2*k+1] + 1, NG + 64 + k // 4 - 2, ("cvt", k)))
    for i, (_, done) in enumerate(max_items(0)):
        Y.append((NG + done + 3, NG + HOOKA - 3, ("max", i)))
    Y.append((NG + 66, NG + HOOKA - 2, ("max", 32))); Y.append((NG + 66, NG + HOOKA - 1, ("max", 33)))
    for n in range(16):
        Y.append((max(BARG + 1, 64 + 8 * (n // 2) + 7), NG + 16 * (n // 4) - LAT, ("k", n)))
    NV1 = int(CFG.get("nv1", 10))
    for n in range(16):
        e, d = 16 * (n // 4) + 15, min(64 + 8 * (n // 2) - LAT, BARG - 10)
        for t in range(2):
            if n < NV1: Y.append((NG + e, NG + min(d, HOOKA - 1), ("v", n, t)))
            else: Y.append((T0, d, ("v", n, t)))
    def kind(y): return y[2][0] + ("1" if y[2][0] == "v" and y[0] >= NG else "")
    ygaps = [t for t in range(T0, T0 + NG) if not plan[t % NG] and t % NG != BARG]
    pend = list(Y)
    for t in ygaps:
        g = t % NG
        picked = []
        for _ in range(2):
            heads = {}
            for y in pend: heads.setdefault(kind(y), y)
            c = [y for y in heads.values() if y[0] <= t]
            if not c: break
            def eff(y):
                same = [z for z in pend if kind(z) == kind(y)]
                return min(z[1] - i / 1.2 for i, z in enumerate(same))
            y = min(c, key=eff)
            assert t <= y[1], ("deadline miss", t, y)
            picked.append(y); pend.remove(y)
        picked.sort(key=lambda y: 0 if y[2][0] in ("k", "v") else 1)
        for y in picked: plan[g].append(y[2] + ((t >= NG,) if y[2][0] == "cvt" else ()))
    assert not pend, pend
    return plan
PLAN = make_plan()

def iteration(u, lab, extra=None, barwait="vm=16", nextk=True):
    p = u % 2
    steady = extra is None
    sc = {g: [] for g in range(NG)}
    for kb in range(4): sc[16 * kb - 1 if kb else NG - 2].append(f"@wait - lds=" + ",".join(f"k{kb*4+s}" for s in range(4)))
    for dt in range(8):
        if 64 + 8 * dt - 1 < BARG - 1: sc[64 + 8 * dt - 1].append(f"@wait - lds=v{2*dt},v{2*dt+1}")
    sc[BARG - 1].append(f"@wait {barwait} lgkm=0" if not barwait.startswith("vm=") else f"@wait - {barwait} lgkm=0")
    sc[BARG].append("s_barrier")
    sc[HOOKA] += [f"s_cbranch_vccnz {lab}a", f"{lab}a_back:"]
    sc[NG - 1] = [f"s_cbranch_vccnz {lab}b", f"{lab}b_back:"] + sc[NG - 1]
    if steady:
        extra = {}
        sc[2].append(m0_at(LK + (u % 4) * 16384))
        sc[34].append(m0_at(LV + ((u + 3) % 4) * 16384))
        sc[61].append(f"s_mov_b32 {sr(sTILE)}, {sr(sTK)}")
        sc[62].append(f"s_add_u32 {sr(sTK)}, {sr(sTK)}, 0x4000")
        sc[64].append(f"s_and_b32 {sr(sTK)}, {sr(sTK)}, 0x3ffff")
        if u == 1:
            extra[64] = [f"v_and_b32 {vr(vCW)}, 3, v0", f"v_lshlrev_b32 {vr(vCW)}, 6, {vr(vCW)}"]
            sc[40].append(f"s_cmp_eq_u32 {sr(sCNT)}, 2")
            sc[41].append(f"s_cselect_b32 {sr(sDB+2)}, 256, 0")
            extra[65] = [f"buffer_load_dword {vr(vCW)}, {vr(vCW)}, {sr(sDB,4)}, 0 offen sc1"]
        if u == 2:
            extra[65] = [f"buffer_atomic_add {vr(vONES)}, {vr(vLIN)}, {sr(sDBW,4)}, 0 offen sc1"]
            sc[70].append(f"s_mov_b32 {sr(sDBW+2)}, 0")
    mf = qk_list(1 - p) + pv_list(p)
    MX = [t for t, _ in max_items(1 - p)] + [f"v_max_f32 {vr(vMX)}, {vr(vMX)}, {vr(vMX+1)}", f"v_cmp_lt_f32 vcc, {sr(sTHR)}, {vr(vMX)}"]
    out = []
    for g in range(NG):
        out.append(mf[g])
        out += sc[g]
        ex = extra.get(g, [])
        out += [x for x in ex if not x.startswith("v_")]
        for it in PLAN[g]:
            k = it[0]
            if k == "exp": out.append(exp_i(p if it[2] else 1 - p, it[1]))
            elif k == "cvt": out.append(cvt_i(p if it[2] else 1 - p, it[1]))
            elif k == "max": out.append(MX[it[1]])
            elif k == "k":
                if g > BARG and not nextk: continue
                out.append(rd_k((u + (2 if g > BARG else 1)) % 4, it[1]))
            elif k == "v": out.append(rd_v(u % 4, it[1], it[2]))
            elif k == "dma" and steady:
                out.append(dma_k(it[1], sr(sTK)) if it[1] < 4 else dma_v(it[1] - 4, sr(sTILE)))
        out += [x for x in ex if x.startswith("v_")]
    return out
EARLY_K = [it[1] for g in range(BARG + 1, NG) for it in PLAN[g] if it[0] == "k"]
E_FIRST = [it for g in range(HOOKA, NG) for it in PLAN[g] if it[0] in ("exp", "cvt")]
E_REST = [it for g in range(0, HOOKA) for it in PLAN[g] if it[0] in ("exp", "cvt")]
DMA_GAPS = [g for g in range(NG) if any(it[0] == "dma" for it in PLAN[g])]
LIGHT = sorted(range(NG), key=lambda g: (sum(2 if it[0] in ("exp",) else (0 if it[0] == "dma" else 1) for it in PLAN[g])))

def spread(items, gaps):
    d = {}
    for i, it in enumerate(items):
        d.setdefault(gaps[i * len(gaps) // len(items)], []).extend(it)
    return d
def place(groups, lo, hi):
    cand = [g for g in LIGHT if lo <= g < hi and g not in (BARG, BARG - 1, HOOKA, NG - 1)]
    gs = sorted(cand[:len(groups)])
    assert len(gs) == len(groups)
    return {g: list(x) for g, x in zip(gs, groups)}
def merge(*maps):
    d = {}
    for m in maps:
        for k, v in m.items(): d.setdefault(k, []).extend(v)
    return d
def flat(G): return [x for g in G for x in g]
def groups_of(lst):
    G = []; cur = []
    for x in lst:
        cur.append(x)
        if x.startswith("buffer_"): G.append(cur); cur = []
    if cur: G[-1] += cur
    return G

WCLASS = {}
def plan_wo():
    P = {}; c = 0
    def add(name, kind, base, n):
        nonlocal c
        P[name] = list(range(c, c + n))
        for i in range(n): WCLASS[c] = (kind, base + 16 * i); c += 1
    add("R1", "r", 256 + 192, 4); add("R2", "r", vQ, 4); add("R3", "r", vS, 4)
    for nm, addr in (("W0", LW), ("W1", LW + 16384), ("K0", LK), ("K1", LK + 16384), ("V0", LV), ("K2", LK + 32768),
                     ("V1", LV + 16384), ("K3", LK + 49152), ("V2", LV + 32768)):
        add(nm, "l", addr, 1)
    add("R5", "r", 256 + aF, 4); add("R6", "r", 256 + 64, 4); add("R4", "r", vNEG, 2); add("V3", "l", LV + 49152, 1)
    assert c == 32
    return P
WP = plan_wo()
def wo_loads(name):
    groups = []
    for c in WP[name]:
        kind, where = WCLASS[c]
        for n in range(4):
            g = []
            if n == 0:
                if kind == "l": g.append(m0_at(where))
                g.append(f"s_mov_b32 {sr(sSP)}, {c * 4096}")
            if kind == "r":
                g.append(f"buffer_load_dwordx4 {rr(where + 4*n, 4)}, {vr(vLIN)}, {sr(sWFL,4)}, {sr(sSP)} offen offset:{n*1024} sc1 ; #w{c}")
            else:
                g.append(f"buffer_load_dwordx4 {vr(vLIN)}, {sr(sWFL,4)}, {sr(sSP)} offen offset:{n*1024} sc1 lds ; #w{c}")
            groups.append(g)
    return groups

def weave(mf, nvmap, va=(), pre=None, need=None):
    out = []; va = list(va)
    for g, m in enumerate(mf):
        if need and g in need:
            last = max([i for i, x in enumerate(va) if x[2] == need[g]], default=-1)
            if last >= 0:
                if va[last][1] > g - 1: out.append("s_nop 7")
                out += [x[0] for x in va[:last + 1]] + ["s_nop 1"]; va = va[last + 1:]
        if pre and g in pre: out += pre[g]
        out.append(m)
        nv = nvmap.get(g, [])
        out += nv
        c = sum(slots(x) for x in nv)
        while va and va[0][1] <= g and c + slots(va[0][0]) <= 2:
            c += slots(va[0][0]); out.append(va.pop(0)[0])
    return out, va

def allreduce(op, a, b):
    return [f"v_mov_b32 {vr(b)}, {vr(a)}", "s_nop 1", f"v_permlane32_swap_b32 {vr(a)}, {vr(b)}", "s_nop 1", f"{op} {vr(a)}, {vr(a)}, {vr(b)}",
            f"v_mov_b32 {vr(b)}, {vr(a)}", "s_nop 1", f"v_permlane16_swap_b32 {vr(a)}, {vr(b)}", "s_nop 1", f"{op} {vr(a)}, {vr(a)}, {vr(b)}"]
def qmax(p, qb, d):
    regs = [Sreg(p, kb, qb) + j for kb in range(4) for j in range(4)]
    o = [f"v_max3_f32 {vr(d)}, {vr(regs[0])}, {vr(regs[1])}, {vr(regs[2])}"]
    for i in range(3, 15, 2): o.append(f"v_max3_f32 {vr(d)}, {vr(regs[i])}, {vr(regs[i+1])}, {vr(d)}")
    o.append(f"v_max_f32 {vr(d)}, {vr(regs[15])}, {vr(d)}")
    return o
def rare_a(p, label):
    out = [f"{label}:", "s_nop 7"]
    for qb in range(4):
        d = vT + qb
        out += qmax(p, qb, d) + allreduce("v_max_f32", d, vMX)
        out.append(f"v_max_f32 {vr(d)}, 0, {vr(d)}")
        for j in range(4): out.append(f"v_sub_f32 {vr(vNEG+4*qb+j)}, {vr(vNEG+4*qb+j)}, {vr(d)}")
        for kb in range(4):
            for j in range(4):
                r = Sreg(p, kb, qb) + j
                out.append(f"v_sub_f32 {vr(r)}, {vr(r)}, {vr(d)}")
        out.append(f"v_exp_f32 {vr(d)}, -{vr(d)}")
    out += ["s_nop 3", f"s_setpc_b64 {sr(sRET,2)}"]
    return out
def rare_b(label):
    out = [f"{label}:", "s_nop 15"]
    for qb in range(4):
        f_ = vT + qb
        for j in range(4): out.append(f"v_mul_f32 {vr(vL+4*qb+j)}, {vr(vL+4*qb+j)}, {vr(f_)}")
        for j in range(0, 32, 2):
            a0 = Oreg(qb, 0) + j
            out += [f"v_accvgpr_read_b32 {vr(vMX)}, {ar(a0)}", f"v_accvgpr_read_b32 {vr(vMX+1)}, {ar(a0+1)}",
                    f"v_mul_f32 {vr(vMX)}, {vr(vMX)}, {vr(f_)}", f"v_mul_f32 {vr(vMX+1)}, {vr(vMX+1)}, {vr(f_)}",
                    f"v_accvgpr_write_b32 {ar(a0)}, {vr(vMX)}", f"v_accvgpr_write_b32 {ar(a0+1)}, {vr(vMX+1)}"]
    out += ["s_nop 3", f"s_setpc_b64 {sr(sRET,2)}"]
    return out

def wfrag(st, s, dt): return (96 if st % 2 == 0 else 192) + 4 * (dt * 2 + s)
def xfrag(st, s, qb): return (160 if st % 2 == 0 else 0) + 4 * (qb * 2 + s)
def qacc(qb, dt): return Ureg(dt // 4, (dt // 2) % 2, qb) + 4 * (dt % 2)
def qp_reads(st):
    out = []
    for qb in range(4):
        for s in range(2):
            out.append(f"ds_read_b128 {ar(xfrag(st,s,qb),4)}, {vr(vXA + 2*(st%2) + s)} offset:{qb*2048} ; #x")
    for dt in range(8):
        for s in range(2):
            for t in range(2):
                out.append(f"ds_read_b64_tr_b16 {ar(wfrag(st,s,dt)+2*t,2)}, {vr(vWA + 8*(st%3) + dt)} offset:{(32*s+4*t)*256}")
    return out
def qp_dma(st):
    G = []
    for p in range(4):
        g = [m0_at(LWQ[st % 3]), "s_nop 0"] if p == 0 else []
        g.append(f"buffer_load_dwordx4 {vr(vDW + p//2)}, {sr(sWQ,4)}, {sr(sWO+p)} offen offset:{1024*p} lds ; #st{st}")
        if p % 2: g.append(f"v_add_u32 {vr(vDW + p//2)}, 0x80000, {vr(vDW + p//2)}")
        G.append(g)
    for p in range(8):
        g = [f"s_add_u32 m0, {sr(sW8K)}, {LX[st%2] + (p//4)*4096}", "s_nop 0"] if p % 4 == 0 else []
        g.append(f"buffer_load_dwordx4 {vr(vDX + p%2)}, {sr(sX,4)}, {sr(sXO+p)} offen offset:{1024*(p%4)} lds ; #st{st}")
        if p >= 6: g.append(f"v_add_u32 {vr(vDX + p%2)}, 0x80, {vr(vDX + p%2)}")
        G.append(g)
    return G
def qp_mfmas(st):
    out = []
    if st < 7: order = [(dt, qb, (i if qb % 2 == 0 else 1 - i), i) for dt in range(8) for qb in range(4) for i in range(2)]
    else: order = [(dt, qb, (i if dt % 2 == 0 else 1 - i), i) for qb in range(4) for dt in range(8) for i in range(2)]
    for (dt, qb, s, i) in order:
        d = qacc(qb, dt)
        c = "0" if (st == 0 and i == 0) else vr(d, 4)
        out.append(f"{MF} {vr(d,4)}, {ar(wfrag(st,s,dt),4)}, {ar(xfrag(st,s,qb),4)}, {c}")
    return out
def qconv(qb, s):
    d = qacc(qb, 2 * s); q = Qreg(qb, s)
    out = [f"v_mul_f32 {vr(d+j)}, {sr(sSC)}, {vr(d+j)}" for j in range(8)]
    out += [f"v_cvt_pk_bf16_f32 {vr(q+j)}, {vr(d+2*j)}, {vr(d+2*j+1)}" for j in (0, 2, 1, 3)]
    return out, [f"v_permlane32_swap_b32 {vr(q)}, {vr(q+2)}", f"v_permlane32_swap_b32 {vr(q+1)}, {vr(q+3)}"], \
                [f"v_permlane16_swap_b32 {vr(q)}, {vr(q+2)}", f"v_permlane16_swap_b32 {vr(q+1)}, {vr(q+3)}"]
def qconv_stream(qb):
    parts = [qconv(qb, s) for s in range(4)]
    out = []
    for s in range(4):
        a = parts[s][0]
        if s == 0: out += [(x, s) for x in a]
        else: out += [(x, s) for x in a[:4]] + [(x, s) for x in parts[s-1][1]] + [(x, s) for x in a[4:8]] + [(x, s) for x in parts[s-1][2]] + [(x, s) for x in a[8:]]
    out += [("s_nop 1", 3)] + [(x, 3) for x in parts[3][1]] + [("s_nop 1", 3)] + [(x, 3) for x in parts[3][2]]
    return out

def setup_a():
    o = []; A = o.append
    A("s_cmp_ge_u32 s2, 256")
    A("s_cbranch_scc1 L_end")
    A(f"s_load_dwordx16 {sr(sARG,16)}, s[0:1], 0")
    if CFG["codepf"]:
        A(f"s_getpc_b64 {sr(sT,2)}")
        A("L_pc:")
        A(f"v_lshlrev_b32 {vr(u0)}, 7, v0")
        A(f"v_add_u32 {vr(u1)}, 0x8000, {vr(u0)}")
        A(f"v_min_u32 {vr(u1)}, L_end-L_pc, {vr(u1)}")
        A(f"global_load_dword {vr(vDUM)}, {vr(u0)}, {sr(sT,2)} ; #pf")
        A(f"global_load_dword {vr(vDUM+1)}, {vr(u1)}, {sr(sT,2)} ; #pf")
    A(f"s_and_b32 {sr(sCB)}, s2, 7")
    A(f"s_lshr_b32 {sr(sT+3)}, s2, 3")
    A(f"s_and_b32 {sr(sB)}, {sr(sCB)}, 1"); A(f"s_lshl_b32 {sr(sB)}, {sr(sB)}, 2")
    A(f"s_and_b32 {sr(sMT)}, {sr(sT+3)}, 3"); A(f"s_add_u32 {sr(sB)}, {sr(sB)}, {sr(sMT)}")
    A(f"s_lshr_b32 {sr(sH)}, {sr(sCB)}, 1"); A(f"s_lshl_b32 {sr(sH)}, {sr(sH)}, 3")
    A(f"s_lshr_b32 {sr(sNT)}, {sr(sT+3)}, 2"); A(f"s_add_u32 {sr(sH)}, {sr(sH)}, {sr(sNT)}")
    A(f"v_lshrrev_b32 {vr(u0)}, 6, v0")
    A(f"v_and_b32 {vr(ln)}, 63, v0")
    A(f"v_readfirstlane_b32 {sr(sWAVE)}, {vr(u0)}")
    A(f"v_lshrrev_b32 {vr(u1)}, 4, {vr(ln)}")
    A(f"v_and_b32 {vr(u2)}, 15, {vr(ln)}")
    A(f"v_lshl_add_u32 {vr(u4)}, {vr(u0)}, 4, {vr(u1)}")
    A(f"v_lshlrev_b32 {vr(u3)}, 1, {vr(u1)}")
    A(f"v_xor_b32 {vr(u3)}, {vr(u3)}, {vr(u2)}")
    A(f"v_lshlrev_b32 {vr(u5)}, 4, {vr(u3)}")
    A(f"v_lshl_add_u32 {vr(vDW)}, {vr(u4)}, 13, {vr(u5)}")
    A(f"v_xor_b32 {vr(vDW+1)}, 0x80, {vr(vDW)}")
    A(f"v_lshrrev_b32 {vr(u3)}, 3, {vr(ln)}")
    A(f"v_lshl_add_u32 {vr(u0)}, {vr(u0)}, 6, {vr(u3)}")
    A(f"v_and_b32 {vr(u3)}, 7, {vr(ln)}")
    A(f"v_xor_b32 {vr(u3)}, {vr(u1)}, {vr(u3)}")
    A(f"v_lshlrev_b32 {vr(u3)}, 4, {vr(u3)}")
    A(f"v_lshl_add_u32 {vr(vDX)}, {vr(u0)}, 10, {vr(u3)}")
    A(f"v_xor_b32 {vr(vDX+1)}, 64, {vr(vDX)}")
    A(f"s_lshl_b32 {sr(sW4K)}, {sr(sWAVE)}, 12")
    A(f"s_lshl_b32 {sr(sW8K)}, {sr(sWAVE)}, 13")
    for p in range(8): A(f"s_mov_b32 {sr(sXO+p)}, {p*8192 - 1024*(p%4)}")
    for p in range(4): A(f"s_mov_b32 {sr(sWO+p)}, {p*(32768-1024)}")
    A(f"s_lshl_b32 {sr(sT)}, {sr(sB)}, 18")
    A(f"s_lshl_b32 {sr(sT+1)}, {sr(sH)}, 8")
    A("s_waitcnt lgkmcnt(0)")
    o += stamp()
    o += srd_at(sWQ, 6, sr(sT+1), 511*8192 + 256)
    o += srd_at(sX, 0, sr(sT), 0x40000)
    return o

def wo_piece_dma():
    o = [f"v_lshrrev_b32 {vr(u0)}, 5, v0", f"v_and_b32 {vr(u1)}, 0x1e, {vr(u0)}", f"v_and_b32 {vr(u0)}, 1, {vr(u0)}",
         f"v_lshl_add_u32 {vr(u0)}, {vr(u1)}, 2, {vr(u0)}",
         f"v_and_b32 {vr(u1)}, 31, v0", f"v_lshlrev_b32 {vr(u1)}, 4, {vr(u1)}", f"v_lshl_add_u32 {vr(u0)}, {vr(u0)}, 10, {vr(u1)}", m0_at(LV)]
    for p in range(4):
        o.append(f"s_mov_b32 {sr(sT)}, {1024*p}")
        o.append(f"buffer_load_dwordx4 {vr(u0)}, {sr(sWO2,4)}, {sr(sT)} offen offset:{1024*p} nt lds ; #wo")
    return o

def warm_loads(part):
    if not CFG["warm"]: return []
    o = []; A = o.append
    d = vDUM + (2 if part != "b" else 0)
    if part == "all":
        A(f"v_lshlrev_b32 {vr(u0)}, 7, v0")
        A(f"v_lshrrev_b32 {vr(u2)}, 1, v0")
    elif part == "a":
        A(f"v_lshrrev_b32 {vr(u3)}, 6, v0"); A(f"v_and_b32 {vr(u2)}, 15, v0"); A(f"v_lshl_add_u32 {vr(u3)}, {vr(u3)}, 4, {vr(u2)}")
        A(f"v_and_b32 {vr(u1)}, 48, v0"); A(f"v_lshl_add_u32 {vr(u3)}, {vr(u1)}, 12, {vr(u3)}")
        A(f"v_lshrrev_b32 {vr(u2)}, 1, {vr(u3)}")
        A(f"v_and_b32 {vr(u1)}, 1, v0"); A(f"v_lshlrev_b32 {vr(u0)}, 7, {vr(u1)}"); A(f"v_lshl_add_u32 {vr(u0)}, {vr(u2)}, 10, {vr(u0)}")
        A(f"v_add_u32 {vr(u0)}, 0x80, {vr(u0)}")
        A(f"v_add_u32 {vr(u2)}, 16, {vr(u2)}")
    else:
        A(f"v_lshlrev_b32 {vr(u0)}, 7, v0")
        A(f"v_and_b32 {vr(u1)}, 7, v0"); A(f"v_cmp_gt_u32 vcc, 3, {vr(u1)}"); A(f"v_mov_b32 {vr(u1)}, 0x1000000")
        A(f"v_lshrrev_b32 {vr(u2)}, 1, v0"); A(f"v_add_u32 {vr(u2)}, 48, {vr(u2)}")
        A(f"v_cndmask_b32 {vr(u0)}, {vr(u0)}, {vr(u1)}, vcc")
    A(f"s_and_b32 {sr(sT)}, {sr(sH)}, 7"); A(f"s_lshl_b32 {sr(sT)}, {sr(sT)}, 15")
    A(f"buffer_load_dword {vr(d)}, {vr(u0)}, {sr(sX,4)}, {sr(sT)} offen ; #warm")
    A(f"v_and_b32 {vr(u1)}, 1, v0")
    A(f"v_lshlrev_b32 {vr(u1)}, 7, {vr(u1)}"); A(f"v_min_u32 {vr(u2)}, 0x1000, {vr(u2)}"); A(f"v_lshl_add_u32 {vr(u0)}, {vr(u2)}, 15, {vr(u1)}")
    A(f"s_and_b32 {sr(sT)}, {sr(sB)}, 3"); A(f"s_lshl_b32 {sr(sT)}, {sr(sT)}, 13")
    A(f"buffer_load_dword {vr(d+1)}, {vr(u0)}, {sr(sWQ,4)}, {sr(sT)} offen ; #warm")
    return o

def setup_b():
    o = []; A = o.append
    A(f"s_lshl_b32 {sr(sT+2)}, {sr(sB)}, 5"); A(f"s_add_u32 {sr(sT+2)}, {sr(sT+2)}, {sr(sH)}")
    A(f"s_lshl_b32 {sr(sT)}, {sr(sT+2)}, 18")
    o += srd_at(sK, 2, sr(sT), 0x40000)
    o += srd_at(sV, 4, sr(sT), 0x40000)
    A(f"s_lshl_b32 {sr(sT+1)}, {sr(sT+2)}, 7"); A(f"s_add_u32 {sr(sT+1)}, {sr(sT+1)}, {FLAG_OFF}")
    o += srd_at(sFL, 14, sr(sT+1), 4)
    o += srd_at(sDB, 12, "0", 256)
    A(f"s_and_b32 {sr(sT+1)}, {sr(sT+2)}, 3"); A(f"s_lshl_b32 {sr(sT+1)}, {sr(sT+1)}, 6")
    o += srd_at(sDBW, 12, sr(sT+1), 4)
    A(f"s_lshr_b32 {sr(sT)}, {sr(sT+2)}, 1"); A(f"s_and_b32 {sr(sT+2)}, {sr(sT+2)}, 1")
    A(f"s_lshl_b32 {sr(sT+1)}, {sr(sT)}, 15"); A(f"s_lshl_b32 {sr(sT+3)}, {sr(sT+2)}, 9"); A(f"s_add_u32 {sr(sT+1)}, {sr(sT+1)}, {sr(sT+3)}")
    o += srd_at(sWO2, 8, sr(sT+1), 31*1024 + 512)
    A(f"s_lshl_b32 {sr(sT+2)}, {sr(sT+2)}, 2"); A(f"s_add_u32 {sr(sT+2)}, {sr(sT+2)}, {sr(sWAVE)}"); A(f"s_lshl_b32 {sr(sT+2)}, {sr(sT+2)}, 19")
    A(f"s_lshl_b32 {sr(sT)}, {sr(sT)}, 12"); A(f"s_add_u32 {sr(sT)}, {sr(sT)}, {sr(sT+2)}"); A(f"s_add_u32 {sr(sT)}, {sr(sT)}, {WOF_OFF}")
    o += srd_at(sWS2, 14, sr(sT), 4096)
    A(f"s_lshl_b32 {sr(sT)}, {sr(sB)}, 2"); A(f"s_add_u32 {sr(sT)}, {sr(sT)}, {sr(sWAVE)}"); A(f"s_lshl_b32 {sr(sT)}, {sr(sT)}, 19")
    A(f"s_lshl_b32 {sr(sT+1)}, {sr(sH)}, 14"); A(f"s_add_u32 {sr(sT)}, {sr(sT)}, {sr(sT+1)}")
    o += srd_at(sO, 14, sr(sT), 16384)
    rot = CFG.get("rot", "j")
    if rot == "j": A(f"s_lshr_b32 {sr(sROT)}, s2, 3"); A(f"s_add_u32 {sr(sROT)}, {sr(sROT)}, s2"); A(f"s_and_b32 {sr(sROT)}, {sr(sROT)}, 15"); A(f"s_lshl_b32 {sr(sROT)}, {sr(sROT)}, 14")
    else: A(f"s_mov_b32 {sr(sROT)}, 0")
    A(f"s_mov_b32 {sr(sTHR)}, 0x41000000")
    c = math.log2(math.e) / math.sqrt(128.0)
    A(f"s_mov_b32 {sr(sSC)}, 0x{struct.unpack('<I', struct.pack('<f', c))[0]:08x}")
    A(f"v_lshl_add_u32 {vr(vDV)}, {vr(u4)}, 8, {vr(u5)}")
    A(f"v_xor_b32 {vr(vDV+1)}, 0x80, {vr(vDV)}")
    g_, c16 = u1, u2
    A(f"v_lshrrev_b32 {vr(g_)}, 4, {vr(ln)}")
    A(f"v_and_b32 {vr(c16)}, 15, {vr(ln)}")
    A(f"v_xor_b32 {vr(u3)}, {vr(g_)}, {vr(c16)}")
    A(f"v_lshlrev_b32 {vr(u3)}, 4, {vr(u3)}")
    A(f"v_lshl_add_u32 {vr(vDK)}, {vr(u4)}, 8, {vr(u3)}")
    for p in range(1, 4): A(f"v_xor_b32 {vr(vDK+p)}, {64*p}, {vr(vDK)}")
    A(f"v_lshl_add_u32 {vr(vKA)}, {vr(c16)}, 8, {vr(u3)}")
    for s in range(1, 4): A(f"v_xor_b32 {vr(vKA+s)}, {64*s}, {vr(vKA)}")
    A(f"v_lshrrev_b32 {vr(u3)}, 1, {vr(c16)}")
    A(f"v_xor_b32 {vr(u3)}, {vr(g_)}, {vr(u3)}")
    A(f"v_lshlrev_b32 {vr(u3)}, 4, {vr(u3)}")
    A(f"v_lshl_add_u32 {vr(u3)}, {vr(c16)}, 7, {vr(u3)}")
    A(f"v_add_u32 {vr(u3)}, {sr(sW8K)}, {vr(u3)}")
    for sl in range(2):
        A(f"v_add_u32 {vr(vXA+2*sl)}, {LX[sl]}, {vr(u3)}")
        A(f"v_xor_b32 {vr(vXA+2*sl+1)}, 64, {vr(vXA+2*sl)}")
    A(f"v_cmp_eq_u32 vcc, 0, {vr(c16)}")
    A(f"v_mov_b32 {vr(u3)}, 0x3f803f80")
    r_, f_, c8 = u0, u4, u5
    A(f"v_bfe_u32 {vr(r_)}, {vr(ln)}, 2, 2")
    for j in range(4): A(f"v_cndmask_b32 {vr(vONES+j)}, 0, {vr(u3)}, vcc")
    A(f"v_bfe_u32 {vr(f_)}, {vr(ln)}, 2, 3")
    A(f"v_and_b32 {vr(c8)}, 3, {vr(ln)}")
    A(f"v_lshlrev_b32 {vr(c8)}, 3, {vr(c8)}")
    A(f"v_lshrrev_b32 {vr(u3)}, 2, {vr(ln)}")
    A(f"v_lshl_add_u32 {vr(vWOA)}, {vr(u3)}, 9, {vr(c8)}")
    A(f"s_lshl_b32 {sr(sT)}, {sr(sWAVE)}, 7"); A(f"s_add_u32 {sr(sT)}, {sr(sT)}, {LV}")
    A(f"v_add_u32 {vr(vWOA)}, {sr(sT)}, {vr(vWOA)}")
    A(f"v_lshl_add_u32 {vr(c8)}, {vr(f_)}, 5, {vr(c8)}")
    A(f"v_lshl_add_u32 {vr(u3)}, {vr(u3)}, 8, {vr(c8)}")
    A(f"v_add_u32 {vr(vVA)}, {LV}, {vr(u3)}")
    for dt in range(1, 8): A(f"v_xor_b32 {vr(vVA+dt)}, {32*dt}, {vr(vVA)}")
    A(f"v_lshl_add_u32 {vr(u3)}, {vr(g_)}, 3, {vr(r_)}")
    A(f"v_lshl_add_u32 {vr(u3)}, {vr(u3)}, 8, {vr(c8)}")
    for sl in range(3):
        A(f"v_add_u32 {vr(vWA+8*sl)}, {LWQ[sl]}, {vr(u3)}")
        for dt in range(1, 8): A(f"v_xor_b32 {vr(vWA+8*sl+dt)}, {32*dt}, {vr(vWA+8*sl)}")
    A(f"v_lshlrev_b32 {vr(vWOS)}, 4, {vr(ln)}")
    A(f"s_lshl_b32 {sr(sT)}, {sr(sWAVE)}, 17")
    A(f"v_add_u32 {vr(vLIN)}, {sr(sT)}, {vr(vWOS)}")
    A(f"v_mov_b32 {vr(vCW)}, 0")
    for r in range(48, 96): A(f"v_accvgpr_write_b32 {ar(r)}, 0")
    return o

def wo_reads():
    return [f"ds_read_b64_tr_b16 {ar(aWO+4*i+2*tt,2)}, {vr(vWOA)} offset:{i*32 + tt*8192}" for i in range(4) for tt in range(2)]
def wo_stores():
    return [[f"buffer_store_dwordx4 {ar(aWO+4*i,4)}, {vr(vWOS)}, {sr(sWS2,4)}, 0 offen offset:{i*1024} sc1 ; #wst"] for i in range(4)] + \
           [[f"buffer_store_dword {vr(vCW)}, {vr(vLIN)}, {sr(sFL,4)}, 0 offen sc1 ; #wst"]]

def pairs(lst): return [lst[i:i+2] for i in range(0, len(lst), 2)]
def prologue():
    qs = stamp if CFG["qst"] else (lambda: [])
    order = CFG.get("order", "G")
    o = setup_a()
    o += flat(qp_dma(0))
    o += qs()
    sb = setup_b()
    st0_extra = []
    if order == "F":
        o += sb[:len(sb) - 48] + warm_loads("a") + sb[len(sb) - 48:]
        o += qs()
        o += ["@wait st0", "s_barrier"] + stamp() + flat(qp_dma(1)) + qp_reads(0)
        st0_extra = qp_dma(2) + groups_of(warm_loads("b") + wo_piece_dma())
    elif order == "G":
        o += sb[:len(sb) - 48] + wo_piece_dma() + sb[len(sb) - 48:]
        o += qs()
        o += ["@wait st0", "s_barrier"] + stamp() + flat(qp_dma(1)) + qp_reads(0)
        st0_extra = qp_dma(2)
    elif order == "H":
        o += sb + flat(qp_dma(1))
        o += qs()
        o += ["@wait st0", "s_barrier"] + stamp() + qp_reads(0)
        st0_extra = qp_dma(2) + groups_of(wo_piece_dma())
    elif order == "I":
        o += sb[:len(sb) - 48] + warm_loads("a") + sb[len(sb) - 48:]
        o += qs()
        o += ["@wait st0", "s_barrier"] + stamp() + qp_reads(0) + flat(qp_dma(1))
        st0_extra = qp_dma(2) + groups_of(wo_piece_dma())
    kv = lambda *l: groups_of(sum([kv_batch(x[0], int(x[1:])) for x in l], []))
    late = {5: kv("K0", "K1"), 6: kv("V0"), 7: kv("K2")}
    for st in range(8):
        mf = qp_mfmas(st)
        o += qs()
        if st < 7:
            reads = qp_reads(st + 1) + (wo_reads() if st == 3 else [])
            d = qp_dma(st + 3) if st + 3 <= 7 else []
            bg = int(CFG.get("bg0", 24)) if st == 0 else 0
            rg = list(range(bg + 2, 58, 2)) if st else list(range(bg + 1, 60))
            nvm = merge({bg: ["s_barrier"]}, spread(pairs(reads), rg))
            xw = bg + (16 if st else 12)
            if st == 0: nvm = merge(nvm, spread(st0_extra, list(range(0, bg))))
            if d:
                nvm = merge(nvm, spread(d[:4], list(range(bg + 1, xw, 2))), {xw: ["@wait - lds=x"]}, spread(d[4:] + late.get(st, []), list(range(xw + 1, 64, 2))))
            else:
                nvm = merge(nvm, spread(late[st], list(range(1, 64, 2))))
            for g in nvm: nvm[g].sort(key=lambda x: 0 if x.startswith("@") else 1)
            pre = {0: [f"@wait st{st+1} lgkm=0"]} if st else {0: ["@wait - lgkm=0"], bg: ["@wait st1"]}
            part, _ = weave(mf, nvm, pre=pre)
            o += part
        else:
            va = [(f"v_accvgpr_write_b32 {ar(r)}, 0", 0, "z") for r in range(96, 112)]
            for qb in range(4):
                va += [(t, 16 * qb + 4 * s + 3 + 3, f"q{qb}") for t, s in qconv_stream(qb)]
            nvm = merge(spread(late[7], [1, 9, 17, 25]), {42: ["s_barrier"]}, spread(pairs([rd_k(0, n) for n in range(16)]), list(range(43, 59, 2))))
            part, va_left = weave(mf, nvm, va, pre={0: ["s_waitcnt lgkmcnt(0)"], 42: ["@wait K0"]})
            o += part
    o += stamp()
    va = [(t, max(0, e - 64), k) for t, e, k in va_left]
    va += [(f"v_accvgpr_write_b32 {ar(r)}, 0", 0 if not 32 <= r < 48 else 62, "z") for r in list(range(112, 128)) + list(range(0, 48))]
    va += [(f"v_mov_b32 {vr(vL+j)}, 0", 0, "z") for j in range(16)]
    mf = [qk_one(0, kb, qb, (i if kb % 2 == 0 else 3 - i), i == 0, czero=True) for qb in range(4) for kb in range(4) for i in range(4)]
    nvm = merge({56: ["s_barrier"], 57: [f"s_add_u32 {sr(sTILE)}, {sr(sROT)}, {3*16384}"], 58: [f"s_and_b32 {sr(sTILE)}, {sr(sTILE)}, 0x3ffff"],
                 59: [f"s_add_u32 {sr(sTK)}, {sr(sROT)}, {4*16384}"], 60: [f"s_and_b32 {sr(sTK)}, {sr(sTK)}, 0x3ffff"], 2: [f"s_mov_b32 {sr(sCNT)}, 0"]},
                spread(kv("V1") + wo_stores(), list(range(3, 56))))
    part, left = weave(mf, nvm, va, pre={0: ["s_waitcnt lgkmcnt(0)"], 56: ["@wait K1,V0"]}, need={16 * q: f"q{q}" for q in range(4)})
    o += part
    o += [rd_k(1, n) for n in EARLY_K]
    o += [t for t, _, _ in left]
    o.append("s_nop 7")
    ini = []
    for qb in range(4): ini += qmax(0, qb, vT + qb)
    for sw in ("v_permlane32_swap_b32", "v_permlane16_swap_b32"):
        ini += [f"v_mov_b32 {vr(vNEG+qb)}, {vr(vT+qb)}" for qb in range(4)]
        ini += [f"{sw} {vr(vT+qb)}, {vr(vNEG+qb)}" for qb in range(4)]
        ini += [f"v_max_f32 {vr(vT+qb)}, {vr(vT+qb)}, {vr(vNEG+qb)}" for qb in range(4)]
    for qb in range(4):
        ini += [f"v_sub_f32 {vr(vNEG+4*qb+j)}, 0, {vr(vT+qb)}" for j in range(4)]
    for ks, qb in UNITS:
        r = Ureg(0, ks, qb)
        ini += [f"v_pk_add_f32 {vr(r+j,2)}, {vr(r+j,2)}, {vr(vNEG+4*qb,2)}" for j in range(0, 8, 2)]
    ex_ = [exp_i(0, it[1]) for it in E_FIRST if it[0] == "exp"]; cv_ = [cvt_i(0, it[1]) for it in E_FIRST if it[0] == "cvt"]
    ini += ex_ + cv_
    G = kv("K3", "V2")
    for i, g in enumerate(G):
        k = (i + 1) * len(ini) // (len(G) + 1)
        ini = ini[:k] + g + ini[k:]
    o += ini
    o.append("@wait - lds=k0,k1,k2,k3")
    o += stamp()
    o, fifo, lf = resolve(o, [])
    return o, fifo, lf

def phase_c_srds():
    o = []; A = o.append
    A(f"s_lshl_b32 {sr(sT)}, {sr(sNT)}, 19"); A(f"s_add_u32 {sr(sT)}, {sr(sT)}, {WOF_OFF}")
    o += srd_at(sWFL, 14, sr(sT), 0x80000)
    A(f"s_lshl_b32 {sr(sT)}, {sr(sCB)}, 2"); A(f"s_add_u32 {sr(sT)}, {sr(sT)}, {sr(sMT)}"); A(f"s_lshl_b32 {sr(sT+1)}, {sr(sT)}, 19")
    o += srd_at(sOL, 14, sr(sT+1), 0x80000)
    A(f"s_lshl_b32 {sr(sT)}, {sr(sT)}, 16"); A(f"s_lshl_b32 {sr(sT+1)}, {sr(sNT)}, 7"); A(f"s_add_u32 {sr(sT)}, {sr(sT)}, {sr(sT+1)}")
    o += srd_at(sOUT, 10, sr(sT), 63*1024 + 128)
    A(f"s_lshl_b32 {sr(sT)}, {sr(sCB)}, 12"); A(f"s_add_u32 {sr(sT)}, {sr(sT)}, {FLAG_OFF}")
    o += srd_at(sFLR, 14, sr(sT), 4096)
    return o

def tail_and_epilogue(u):
    p = u % 2
    o = []
    reads = [rd_v(u % 4, n, t) for n in range(16) for t in range(2)]
    er = [(exp_i(p, it[1]), UNITS[it[1] // 8][1]) if it[0] == "exp" else (cvt_i(p, it[1]), UNITS[it[1] // 4][1]) for it in E_REST]
    va = []
    for i, (t, q) in enumerate(er):
        if t.startswith("v_cvt") and i and er[i-1][0].startswith("v_exp"): va.append(("s_nop 0", 0, f"e{q}"))
        va.append((t, 0, f"e{q}"))
    mf = []
    for qb in range(4):
        mf += [sum_one(p, qb, 0), sum_one(p, qb, 1)]
        mf += [pv_one(p, dt, qb, (i if dt % 2 == 0 else 1 - i)) for dt in range(8) for i in range(2)]
    vOST = vCW
    va.append((f"v_and_b32 {vr(vOST)}, 0x3ff, {vr(vLIN)}", 0, "x"))
    tmp = vNEG
    for qb in range(4):
        e0 = 18 * qb
        lsum = [f"v_mov_b32 {vr(vT+qb)}, {vr(vL+4*qb)}"] + allreduce("v_add_f32", vT + qb, vMX) + [f"v_rcp_f32 {vr(vT+qb)}, {vr(vT+qb)}"]
        va += [(t, e0 + 1 + 3, "o") for t in lsum]
        for s in range(4):
            e = e0 + 2 + 4 * s + 3 + 3
            b = tmp + 8 * (s % 2)
            pk = vKA + 3 + 4 * (s % 2) if False else None
            va += [(f"v_accvgpr_read_b32 {vr(b+j)}, {ar(Oreg(qb,2*s)+j)}", e, "o") for j in range(8)]
            va += [(f"v_mul_f32 {vr(b+j)}, {vr(b+j)}, {vr(vT+qb)}", e, "o") for j in range(8)]
            d = Ureg(p, s // 2, qb) + 4 * (1 - s % 2)
            ee = e0 + 17 if s % 2 == 1 else e
            va += [(f"v_cvt_pk_bf16_f32 {vr(d+j)}, {vr(b+2*j)}, {vr(b+2*j+1)}", max(e, ee), "o") for j in range(4)]
            va += [(f"s_mov_b32 {sr(sT)}, {s*4096}", e, "o"),
                   (f"buffer_store_dwordx4 {vr(d,4)}, {vr(vOST)}, {sr(sO,4)}, {sr(sT)} offen offset:{qb*1024} sc1 ; #ost", e, "o")]
    o += reads[:12]
    nvm = spread(pairs(reads[12:]), list(range(0, 10)))
    pre = {2 + 2 * dt: [f"@wait - lds=v{2*dt},v{2*dt+1}"] for dt in range(8)}
    nvm = merge(nvm, spread(wo_loads("K3") + wo_loads("V2") + wo_loads("R3"), list(range(11, 72, 2))))
    part, left = weave(mf, nvm, va, pre=pre, need={18 * q: f"e{q}" for q in range(4)})
    o += part
    o += stamp()
    o.append("s_nop 7")
    o += [t for t, _, _ in left]
    A = o.append
    o += flat(wo_loads("R5"))
    A(f"v_mov_b32 {vr(vMX)}, 1")
    A(f"v_and_b32 {vr(vT)}, 7, v0"); A(f"v_lshlrev_b32 {vr(vT)}, 7, {vr(vT)}")
    A(f"s_lshl_b32 {sr(sT)}, {sr(sWAVE)}, 10"); A(f"v_add_u32 {vr(vT)}, {sr(sT)}, {vr(vT)}")
    A(f"v_add_u32 {vr(vKA)}, {sr(sW4K)}, {vr(vOST)}")
    A(f"v_add_u32 {vr(vKA+1)}, 0x10000, {vr(vKA)}")
    A(f"v_add_u32 {vr(vKA+2)}, 0x20000, {vr(vKA)}")
    A(f"s_mov_b32 {sr(sCNT)}, 0")
    A("@wait ost")
    A("s_barrier")
    A(f"buffer_store_dword {vr(vMX)}, {vr(vLIN)}, {sr(sFL,4)}, 0 offen sc1 ; #flag")
    o += stamp()
    o += flat(wo_loads("R6") + wo_loads("R4") + wo_loads("V3"))
    A("L_poll:")
    A(f"buffer_load_dword {vr(vT+1)}, {vr(vT)}, {sr(sFLR,4)}, 0 offen sc1 ; #poll")
    A("s_waitcnt vmcnt(0)")
    A(f"v_cmp_ne_u32 vcc, 1, {vr(vT+1)}")
    A("s_cbranch_vccz L_go")
    A(f"s_add_u32 {sr(sCNT)}, {sr(sCNT)}, 1")
    A(f"s_cmp_lt_u32 {sr(sCNT)}, {CFG['spin']}")
    A("s_cbranch_scc1 L_poll")
    A("L_go:")
    o += stamp()
    return o

def phase_c():
    o = []; A = o.append
    pool = [vS + 64 + 16 * i for i in range(4)]
    oreg = {}; wtmp = {}
    nxt = 0
    MAXFLY = 14
    def issue_o(c):
        nonlocal nxt
        G = []
        reserve = sum(1 for k in range(c + 3, min(32, c + 5)) if WCLASS[k][0] == "l")
        while nxt < 32 and len(pool) > reserve and nxt - c <= MAXFLY:
            r = pool.pop(0); oreg[nxt] = r
            for qb in range(4):
                g = [f"s_mov_b32 {sr(sSP)}, {nxt * 4096}"] if qb == 0 else []
                g.append(f"buffer_load_dwordx4 {rr(r + 4*qb, 4)}, {vr(vLIN)}, {sr(sOL,4)}, {sr(sSP)} offen offset:{qb*1024} sc1 ; #o{nxt}")
                G.append(g)
            nxt += 1
        return G
    def lds_reads(c):
        addr = WCLASS[c][1]
        r = pool.pop(0); wtmp[c] = r
        return [f"ds_read_b128 {rr(r + 4*n, 4)}, {vr(vKA + addr // 65536)} offset:{addr % 65536 + n*1024} ; #w{c}" for n in range(4)]
    o += flat(issue_o(-1))
    carry = []
    for c in range(0, 32, 2):
        rd = []
        for k in (c + 2, c + 3):
            if k < 32 and WCLASS[k][0] == "l": rd += lds_reads(k)
        A(f"@wait o{c},o{c+1} lds=w{c},w{c+1}")
        if c == 0: o += stamp()
        w = [WCLASS[k][1] if WCLASS[k][0] == "r" else wtmp[k] for k in (c, c + 1)]
        mf = []
        for n in range(4):
            for qb in range(4):
                d = ar(4 * (n * 4 + qb), 4)
                for i in range(2):
                    k = i if qb % 2 == 0 else 1 - i
                    mf.append(f"{MF} {d}, {rr(w[k] + 4*n, 4)}, {rr(oreg[c+k] + 4*qb, 4)}, {d if (c or i) else 0}")
        nvm = merge(spread(carry, list(range(0, 24))) if carry else {}, spread(pairs(rd), list(range(24, 28))) if rd else {})
        part, _ = weave(mf, nvm)
        o += part
        pool.extend([oreg[c], oreg[c+1]] + w)
        carry = issue_o(c + 1)
    assert not carry
    o += stamp()
    A("v_and_b32 v7, 63, v0")
    A("v_and_b32 v8, 15, v7"); A("v_lshrrev_b32 v9, 4, v7")
    A("v_xor_b32 v10, v8, v9"); A("v_lshlrev_b32 v10, 4, v10")
    A("v_lshl_add_u32 v8, v8, 8, v10")
    A(f"v_add_u32 v32, {sr(sW4K)}, v8")
    for n in range(1, 4): A(f"v_xor_b32 {vr(32+n)}, {n*64}, v32")
    A("v_lshrrev_b32 v8, 3, v0"); A("v_and_b32 v9, 7, v0"); A("v_lshlrev_b32 v10, 1, v9")
    A("v_and_b32 v11, 15, v8"); A("v_xor_b32 v10, v10, v11"); A("v_lshlrev_b32 v10, 4, v10")
    A("v_lshl_add_u32 v10, v11, 8, v10")
    A("v_lshrrev_b32 v11, 4, v8"); A("v_lshl_add_u32 v10, v11, 14, v10"); A("v_xor_b32 v11, 16, v10")
    A("v_lshlrev_b32 v9, 4, v9"); A("v_lshl_add_u32 v14, v8, 10, v9")
    for n in range(4):
        for qb in range(4):
            A(f"ds_write_b128 {vr(32 + n)}, {ar(4*(n*4+qb), 4)} offset:{qb*16384}")
    A("s_waitcnt lgkmcnt(0)")
    A("s_barrier")
    for z in range(2):
        for w in range(4):
            for i in range(2):
                A(f"ds_read_b128 {vr(64 + z*32 + w*8 + i*4, 4)}, {vr(10 + i)} offset:{w*4096 + z*32768}")
    A(f"s_mov_b32 {sr(sT)}, {32*1024}")
    for z in range(2):
        A(f"s_waitcnt lgkmcnt({8 if z == 0 else 0})")
        b = 64 + z * 32
        for j in range(8):
            A(f"v_add_f32 {vr(b+j)}, {vr(b+j)}, {vr(b+8+j)}")
            A(f"v_add_f32 {vr(b+16+j)}, {vr(b+16+j)}, {vr(b+24+j)}")
        for j in range(8): A(f"v_add_f32 {vr(b+j)}, {vr(b+j)}, {vr(b+16+j)}")
        for j in range(4): A(f"v_cvt_pk_bf16_f32 {vr(b+8+j)}, {vr(b+2*j)}, {vr(b+2*j+1)}")
        A(f"buffer_store_dwordx4 {vr(b+8,4)}, v14, {sr(sOUT,4)}, {sr(sT) if z else 0} offen")
    return o

def peeled(lf):
    o = [f"s_mov_b32 {sr(sT)}, 0xe00fe000", f"v_cmp_ne_u32 vcc, {sr(sT)}, {vr(vCW)}", "s_cbranch_vccnz L_cw", "L_cw_back:"]
    srds = phase_c_srds()
    sg = [g for g in range(0, 40) if g not in (15, 31)]
    ex12 = merge({g: [x] for g, x in zip(sg, srds)},
                 place(groups_of(kv_batch("V", 15)) + wo_loads("K0") + wo_loads("W0") + wo_loads("W1"), 40, NG))
    assert len(srds) <= len(sg)
    o += iteration(0, "L_r4", ex12, "K14,V13")
    o += iteration(1, "L_r5", place(wo_loads("K1") + wo_loads("V0") + wo_loads("R1"), 0, NG), "K15,V14")
    ex14 = merge(place(wo_loads("K2") + wo_loads("V1"), 0, 64), place(wo_loads("R2"), 64, NG))
    o += iteration(2, "L_r6", ex14, "V15", nextk=False)
    o += stamp()
    o += tail_and_epilogue(3)
    o += phase_c()
    fifo = ["K14"] * 4 + ["V13"] * 4 + ["K15"] * 4 + ["V14"] * 4
    o, _, _ = resolve(o, fifo, lf)
    return o

def stamp_out():
    if not CFG["stamps"]: return []
    o = ["s_waitcnt vmcnt(0)"] + stamp()
    A = o.append
    A(f"s_lshl_b32 {sr(sT)}, s2, 10"); A(f"s_add_u32 {sr(sT)}, {sr(sT)}, {STAMP_OFF}")
    o += srd_at(4, 14, sr(sT), 1024)
    A("v_lshlrev_b32 v1, 2, v0")
    A(f"buffer_store_dword v{STV}, v1, s[4:7], 0 offen")
    if CFG.get("dbgout"):
        o += srd_at(4, 12, "0", 64)
        A("v_and_b32 v2, 63, v0")
        A("v_lshlrev_b32 v1, 1, v2"); A("v_add_u32 v1, 6, v1")
        A("v_and_b32 v3, 1, v2"); A("v_cmp_eq_u32 vcc, 0, v3"); A("v_mov_b32 v3, 0x1000"); A("s_nop 1")
        A("v_cndmask_b32 v1, v1, v3, vcc")
        A(f"v_cmp_lt_u32 vcc, {2*nstamp[0]}, v2"); A("s_nop 1"); A("v_cndmask_b32 v1, v1, v3, vcc")
        A(f"buffer_atomic_umax v{STV}, v1, s[4:7], 0 offen sc1")
        A(f"v_not_b32 v4, v{STV}")
        A("v_cmp_eq_u32 vcc, 1, v2"); A("s_nop 1"); A("v_cndmask_b32 v1, v3, 4, vcc")
        A(f"buffer_atomic_umax v4, v1, s[4:7], 0 offen sc1")
    return o

def kernel():
    pro, fifo, lf0 = prologue()
    _, _, lf = resolve(iteration(0, "x") + iteration(1, "x"), [])
    its = []
    for u in range(4):
        it, _, lf2 = resolve(iteration(u, f"L_r{u}"), [], lf)
        assert lf2 == lf
        its.append(it)
    assert len(lf0) >= len(lf) and lf0[len(lf0)-len(lf):] == lf or CFG["stamps"], (lf0, lf)
    pe = peeled(lf)
    body = list(pro)
    body.append("L_loop:")
    for u in range(4):
        it = list(its[u])
        if u == 3:
            k = [i for i, x in enumerate(it) if x.startswith(MF)]
            it.insert(k[-3] + 1, f"s_cmp_lt_u32 {sr(sCNT)}, 3")
            it.insert(k[-4] + 1, f"s_add_u32 {sr(sCNT)}, {sr(sCNT)}, 1")
            it.append("s_cbranch_scc1 L_loop")
            its[3] = it
        body += it
    body += pe
    body += stamp_out()
    body.append("L_end:")
    body.append("s_endpgm")
    for u in range(7):
        body += [f"L_r{u}a:", f"s_call_b64 {sr(sRET,2)}, L_ra{1 - u % 2}", f"s_branch L_r{u}a_back"]
        body += [f"L_r{u}b:", f"s_call_b64 {sr(sRET,2)}, L_rb", f"s_branch L_r{u}b_back"]
    body += ["L_cw:", f"s_mov_b32 {sr(sCNT)}, 0", "L_cw_loop:",
             f"v_and_b32 {vr(vCW)}, 3, v0", f"v_lshlrev_b32 {vr(vCW)}, 6, {vr(vCW)}",
             f"buffer_load_dword {vr(vCW)}, {vr(vCW)}, {sr(sDB,4)}, 0 offen sc1", "s_waitcnt vmcnt(0)",
             f"v_cmp_ne_u32 vcc, {sr(sT)}, {vr(vCW)}", "s_cbranch_vccz L_cw_back",
             f"s_add_u32 {sr(sCNT)}, {sr(sCNT)}, 1", f"s_cmp_lt_u32 {sr(sCNT)}, {CFG['spin']}", "s_cbranch_scc1 L_cw_loop",
             "s_branch L_cw_back"]
    for p in range(2): body += rare_a(p, f"L_ra{p}")
    body += rare_b("L_rb")
    loop = its[0] + its[1] + its[2] + its[3]
    check(pro + loop + loop + pe, "main")
    def with_rare(seq):
        o = []
        for x in seq:
            m = re.match(r"L_r(\d)([ab])_back:", x)
            if m: o += (rare_a(1 - int(m.group(1)) % 2, "x") if m.group(2) == "a" else rare_b("x"))[1:]
            o.append(x)
        return o
    check(pro + with_rare(loop + pe), "rare")
    if CFG["verbose"]:
        for g in range(NG): print(g, PLAN[g])
    return "\n".join(body)

if __name__ == "__main__":
    k = kernel()
    txt = file_text([dict(label=NAME + "_kernel", body=k, grid=256, block=256, lds=163840, vgpr=512, accum=256)], single=True)
    open(sys.argv[1], "w").write(txt)
```

```python
import sys, math, struct, re
from asmlib import *
from check import check

CFG = dict(qst=False, stamps=False, codepf=True, warm=True, spin=200000, verbose=False)
for a in sys.argv[2:]:
    k, v = a.split("=")
    CFG[k] = {"0": False, "1": True}.get(v, v)

MF = "v_mfma_f32_16x16x32_bf16"
def vr(b, n=1): return f"v{b}" if n == 1 else f"v[{b}:{b+n-1}]"
def ar(b, n=1): return f"a{b}" if n == 1 else f"a[{b}:{b+n-1}]"
def sr(b, n=1): return f"s{b}" if n == 1 else f"s[{b}:{b+n-1}]"
def rr(r, n=1): return vr(r, n) if r < 256 else ar(r - 256, n)
def slots(t):
    if t.startswith(("v_exp", "v_rcp", "buffer_", "global_", "v_permlane")): return 2
    if t.startswith(("s_", "@", "L_")): return 0
    return 1

sX, sWQ, sK, sV, sO = 4, 8, 12, 16, 20
sWFL, sOL = 4, 8
sWAVE, sB, sH, sW4K, sW8K = 24, 25, 26, 27, 28
sCB, sMT, sNT = 29, 30, 31
sXO, sWO = 32, 40
sOUT, sFLR = 32, 36
sTILE, sCNT, sTHR, sSC, sSP = 44, 45, 46, 47, 48
sRET = 50
sTK, sROT = 49, 92
sT = 52
sARG = 56
sFL, sDB, sDBW = 72, 76, 88
sWS2, sWO2 = 80, 84
vKA, vVA, vDK, vDV = 1, 5, 13, 17
vMX, vLIN, vCW, STV = 19, 21, 22, 23
vT = 24
vONES = 28
vNEG, vL, vQ, vS = 32, 48, 64, 128
vWA, vXA, vDX, vDW = 32, 56, 62, 64
vWOA, vWOS, vDUM = 66, 20, 68
u0, u1, u2, u3, u4, u5, ln = 72, 73, 74, 75, 76, 77, 78
aO, aF, aWO = 0, 128, 32
LK, LV, LW = 0, 65536, 131072
LX = [81920, 131072]
LWQ = [49152, 114688, 32768]
WOF_OFF, FLAG_OFF, STAMP_OFF = 0x1000000, 0x1400000, 0x4000000

def Ureg(p, ks, qb): return vS + 64 * p + 8 * (ks * 4 + qb)
def Sreg(p, kb, qb): return Ureg(p, kb // 2, qb) + 4 * (kb % 2)
def Oreg(qb, dt): return aO + 4 * (qb * 8 + dt)
def Qreg(qb, s): return vQ + 16 * qb + 4 * s
def Freg(n): return aF + 4 * n

nstamp = [0]
def stamp():
    if CFG.get("probe"):
        i = nstamp[0]; nstamp[0] += 1
        return ["s_memrealtime s[96:97]", "s_waitcnt lgkmcnt(0)"] if i == int(CFG["probe"][1:]) else []
    if not CFG["stamps"]: return []
    i = nstamp[0]; nstamp[0] += 1
    assert i < 30
    return ["s_memtime s[100:101]", "s_waitcnt lgkmcnt(0)", f"v_writelane_b32 v{STV}, s100, {2*i}",
            "s_memrealtime s[100:101]", "s_waitcnt lgkmcnt(0)", f"v_writelane_b32 v{STV}, s100, {2*i+1}"]

def srd(s, size):
    return [f"s_and_b32 {sr(s+1)}, {sr(s+1)}, 0xffff", f"s_mov_b32 {sr(s+2)}, {size}", f"s_mov_b32 {sr(s+3)}, 0x20000"]
def srd_at(s, arg, offreg, size):
    return [f"s_add_u32 {sr(s)}, {sr(sARG+arg)}, {offreg}", f"s_addc_u32 {sr(s+1)}, {sr(sARG+arg+1)}, 0"] + srd(s, size)

def tag(lst, t): return [(x + f" ; #{t}") if x.startswith(("buffer_", "global_")) and "#" not in x else x for x in lst]
def resolve(seq, fifo, lfifo=()):
    fifo = list(fifo); lf = list(lfifo); out = []
    def cut(f, n): return f[len(f) - n:] if 0 < n < len(f) else (f if n else [])
    for x in seq:
        if x.startswith("@wait"):
            parts = x.split()
            w = []
            idx = [i for i, t in enumerate(fifo) if t in parts[1].split(",")]
            if idx:
                n = min(63, len(fifo) - 1 - max(idx)); fifo = cut(fifo, n); w.append(f"vmcnt({n})")
            for p in parts[2:]:
                if p.startswith("vm="): n = int(p[3:]); fifo = cut(fifo, n); w.append(f"vmcnt({n})")
                if p.startswith("lgkm="): n = int(p[5:]); lf = cut(lf, n); w.append(f"lgkmcnt({n})")
                if p.startswith("lds="):
                    idx = [i for i, t in enumerate(lf) if t in p[4:].split(",")]
                    if idx:
                        n = min(15, len(lf) - 1 - max(idx)); lf = cut(lf, n); w.append(f"lgkmcnt({n})")
            if w: out.append("s_waitcnt " + " ".join(w))
            continue
        m = re.search(r"#(\S+)", x)
        if x.startswith(("buffer_", "global_")): fifo.append(m.group(1) if m else "?")
        if x.startswith("ds_"): lf.append(m.group(1) if m else "?")
        m = re.match(r"s_waitcnt.*vmcnt\((\d+)\)", x)
        if m: fifo = cut(fifo, int(m.group(1)))
        m = re.match(r"s_waitcnt.*lgkmcnt\((\d+)\)", x)
        if m: lf = cut(lf, int(m.group(1)))
        out.append(x)
    return out, fifo, lf

def dma_k(p, soff): return f"buffer_load_dwordx4 {vr(vDK+p)}, {sr(sK,4)}, {soff} offen offset:{1024*p} nt lds"
def dma_v(p, soff): return f"buffer_load_dwordx4 {vr(vDV + p%2)}, {sr(sV,4)}, {soff} offen offset:{1024*p} nt lds"
def m0_at(addr): return f"s_add_u32 m0, {sr(sW4K)}, {addr}"
def kv_batch(which, tile):
    out = [m0_at((LK if which == "K" else LV) + (tile % 4) * 16384), f"s_add_u32 {sr(sT)}, {sr(sROT)}, {tile*16384}", f"s_and_b32 {sr(sT)}, {sr(sT)}, 0x3ffff"]
    for p in range(4): out.append(dma_k(p, sr(sT)) if which == "K" else dma_v(p, sr(sT)))
    return tag(out, f"{which}{tile}")

def rd_k(slot, n):
    kb, s = n // 4, n % 4
    return f"ds_read_b128 {ar(Freg(n),4)}, {vr(vKA+s)} offset:{slot*16384 + kb*4096} ; #k{n}"
def rd_v(slot, n, t):
    dt, ks = n // 2, n % 2
    return f"ds_read_b64_tr_b16 {ar(Freg(n)+2*t,2)}, {vr(vVA+dt)} offset:{slot*16384 + (32*ks+16*t)*256} ; #v{n}"

def qk_one(p, kb, qb, s, first, czero=False):
    d = Sreg(p, kb, qb)
    c = vr(d, 4) if not first else ("0" if czero else vr(vNEG + 4*qb, 4))
    return f"{MF} {vr(d,4)}, {ar(Freg(kb*4+s),4)}, {vr(Qreg(qb,s),4)}, {c}"
def qk_list(p):
    return [qk_one(p, kb, qb, (i if qb % 2 == 0 else 3 - i), i == 0) for kb in range(4) for qb in range(4) for i in range(4)]
def pv_one(p, dt, qb, ks):
    o = Oreg(qb, dt)
    return f"{MF} {ar(o,4)}, {ar(Freg(dt*2+ks),4)}, {vr(Ureg(p,ks,qb),4)}, {ar(o,4)}"
def sum_one(p, qb, ks):
    return f"{MF} {vr(vL+4*qb,4)}, {vr(vONES,4)}, {vr(Ureg(p,ks,qb),4)}, {vr(vL+4*qb,4)}"
def pv_list(p):
    return ([pv_one(p, dt, qb, (i if qb % 2 == 0 else 1 - i)) for dt in range(8) for qb in range(4) for i in range(2)]
            + [sum_one(p, qb, ks) for qb in range(4) for ks in range(2)])

UNITS = [(0, 0), (1, 0), (1, 1), (0, 1), (0, 2), (1, 2), (1, 3), (0, 3)]
def ereg(p, e): ks, qb = UNITS[e // 8]; return Ureg(p, ks, qb) + e % 8
def exp_i(p, e): r = ereg(p, e); return f"v_exp_f32 {vr(r)}, {vr(r)}"
def cvt_i(p, k):
    r = ereg(p, 2 * k); return f"v_cvt_pk_bf16_f32 {vr(r - (2*k) % 8 + k % 4)}, {vr(r)}, {vr(r+1)}"
def max_items(p):
    out = []
    for kb in range(4):
        for qb in range(4):
            r = Sreg(p, kb, qb); m = vr(vMX + qb % 2); done = 16 * kb + 4 * qb + 3
            if kb == 0 and qb < 2:
                out.append((f"v_max3_f32 {m}, {vr(r)}, {vr(r+1)}, {vr(r+2)}", done))
                out.append((f"v_max_f32 {m}, {vr(r+3)}, {m}", done))
            else:
                out.append((f"v_max3_f32 {m}, {vr(r)}, {vr(r+1)}, {m}", done))
                out.append((f"v_max3_f32 {m}, {vr(r+2)}, {vr(r+3)}, {m}", done))
    return out

NG = 136
HOOKA = 69
BARG = 118
LAT = 8
def make_plan():
    plan = {g: [] for g in range(NG)}
    T0 = HOOKA
    dma_t = [NG + g for g in (4, 12, 20, 28, 36, 44, 52, 60)]
    NX2 = int(CFG.get('nx2', 44))
    r2 = [t for t in range(T0, NG) if t != BARG]
    r1 = [t for t in range(NG, NG + 64) if t not in dma_t]
    xt = [r2[i * len(r2) // NX2] for i in range(NX2)] + [r1[i * len(r1) // (64 - NX2)] for i in range(64 - NX2)]
    assert len(set(xt)) == 64
    for e, t in enumerate(xt): plan[t % NG].append(("exp", e, t >= NG))
    for i, t in enumerate(dma_t): plan[t % NG].append(("dma", i))
    Y = []
    for k in range(32):
        Y.append((xt[2*k+1] + 1, NG + 64 + k // 4 - 2, ("cvt", k)))
    for i, (_, done) in enumerate(max_items(0)):
        Y.append((NG + done + 3, NG + HOOKA - 3, ("max", i)))
    Y.append((NG + 66, NG + HOOKA - 2, ("max", 32))); Y.append((NG + 66, NG + HOOKA - 1, ("max", 33)))
    for n in range(16):
        Y.append((max(BARG + 1, 64 + 8 * (n // 2) + 7), NG + 16 * (n // 4) - LAT, ("k", n)))
    NV1 = int(CFG.get("nv1", 10))
    for n in range(16):
        e, d = 16 * (n // 4) + 15, min(64 + 8 * (n // 2) - LAT, BARG - 10)
        for t in range(2):
            if n < NV1: Y.append((NG + e, NG + min(d, HOOKA - 1), ("v", n, t)))
            else: Y.append((T0, d, ("v", n, t)))
    def kind(y): return y[2][0] + ("1" if y[2][0] == "v" and y[0] >= NG else "")
    ygaps = [t for t in range(T0, T0 + NG) if not plan[t % NG] and t % NG != BARG]
    pend = list(Y)
    for t in ygaps:
        g = t % NG
        picked = []
        for _ in range(2):
            heads = {}
            for y in pend: heads.setdefault(kind(y), y)
            c = [y for y in heads.values() if y[0] <= t]
            if not c: break
            def eff(y):
                same = [z for z in pend if kind(z) == kind(y)]
                return min(z[1] - i / 1.2 for i, z in enumerate(same))
            y = min(c, key=eff)
            assert t <= y[1], ("deadline miss", t, y)
            picked.append(y); pend.remove(y)
        picked.sort(key=lambda y: 0 if y[2][0] in ("k", "v") else 1)
        for y in picked: plan[g].append(y[2] + ((t >= NG,) if y[2][0] == "cvt" else ()))
    assert not pend, pend
    return plan
PLAN = make_plan()

def iteration(u, lab, extra=None, barwait="vm=16", nextk=True):
    p = u % 2
    steady = extra is None
    sc = {g: [] for g in range(NG)}
    for kb in range(4): sc[16 * kb - 1 if kb else NG - 2].append(f"@wait - lds=" + ",".join(f"k{kb*4+s}" for s in range(4)))
    for dt in range(8):
        if 64 + 8 * dt - 1 < BARG - 1: sc[64 + 8 * dt - 1].append(f"@wait - lds=v{2*dt},v{2*dt+1}")
    sc[BARG - 1].append(f"@wait {barwait} lgkm=0" if not barwait.startswith("vm=") else f"@wait - {barwait} lgkm=0")
    sc[BARG].append("s_barrier")
    sc[HOOKA] += [f"s_cbranch_vccnz {lab}a", f"{lab}a_back:"]
    sc[NG - 1] = [f"s_cbranch_vccnz {lab}b", f"{lab}b_back:"] + sc[NG - 1]
    if steady:
        extra = {}
        sc[2].append(m0_at(LK + (u % 4) * 16384))
        sc[34].append(m0_at(LV + ((u + 3) % 4) * 16384))
        sc[61].append(f"s_mov_b32 {sr(sTILE)}, {sr(sTK)}")
        sc[62].append(f"s_add_u32 {sr(sTK)}, {sr(sTK)}, 0x4000")
        sc[64].append(f"s_and_b32 {sr(sTK)}, {sr(sTK)}, 0x3ffff")
        if u == 1:
            extra[64] = [f"v_and_b32 {vr(vCW)}, 3, v0", f"v_lshlrev_b32 {vr(vCW)}, 6, {vr(vCW)}"]
            sc[40].append(f"s_cmp_eq_u32 {sr(sCNT)}, 2")
            sc[41].append(f"s_cselect_b32 {sr(sDB+2)}, 256, 0")
            extra[65] = [f"buffer_load_dword {vr(vCW)}, {vr(vCW)}, {sr(sDB,4)}, 0 offen sc1"]
        if u == 2:
            extra[65] = [f"buffer_atomic_add {vr(vONES)}, {vr(vLIN)}, {sr(sDBW,4)}, 0 offen sc1"]
            sc[70].append(f"s_mov_b32 {sr(sDBW+2)}, 0")
    mf = qk_list(1 - p) + pv_list(p)
    MX = [t for t, _ in max_items(1 - p)] + [f"v_max_f32 {vr(vMX)}, {vr(vMX)}, {vr(vMX+1)}", f"v_cmp_lt_f32 vcc, {sr(sTHR)}, {vr(vMX)}"]
    out = []
    for g in range(NG):
        out.append(mf[g])
        out += sc[g]
        ex = extra.get(g, [])
        out += [x for x in ex if not x.startswith("v_")]
        for it in PLAN[g]:
            k = it[0]
            if k == "exp": out.append(exp_i(p if it[2] else 1 - p, it[1]))
            elif k == "cvt": out.append(cvt_i(p if it[2] else 1 - p, it[1]))
            elif k == "max": out.append(MX[it[1]])
            elif k == "k":
                if g > BARG and not nextk: continue
                out.append(rd_k((u + (2 if g > BARG else 1)) % 4, it[1]))
            elif k == "v": out.append(rd_v(u % 4, it[1], it[2]))
            elif k == "dma" and steady:
                out.append(dma_k(it[1], sr(sTK)) if it[1] < 4 else dma_v(it[1] - 4, sr(sTILE)))
        out += [x for x in ex if x.startswith("v_")]
    return out
EARLY_K = [it[1] for g in range(BARG + 1, NG) for it in PLAN[g] if it[0] == "k"]
E_FIRST = [it for g in range(HOOKA, NG) for it in PLAN[g] if it[0] in ("exp", "cvt")]
E_REST = [it for g in range(0, HOOKA) for it in PLAN[g] if it[0] in ("exp", "cvt")]
DMA_GAPS = [g for g in range(NG) if any(it[0] == "dma" for it in PLAN[g])]
LIGHT = sorted(range(NG), key=lambda g: (sum(2 if it[0] in ("exp",) else (0 if it[0] == "dma" else 1) for it in PLAN[g])))

def spread(items, gaps):
    d = {}
    for i, it in enumerate(items):
        d.setdefault(gaps[i * len(gaps) // len(items)], []).extend(it)
    return d
def place(groups, lo, hi):
    cand = [g for g in LIGHT if lo <= g < hi and g not in (BARG, BARG - 1, HOOKA, NG - 1)]
    gs = sorted(cand[:len(groups)])
    assert len(gs) == len(groups)
    return {g: list(x) for g, x in zip(gs, groups)}
def merge(*maps):
    d = {}
    for m in maps:
        for k, v in m.items(): d.setdefault(k, []).extend(v)
    return d
def flat(G): return [x for g in G for x in g]
def groups_of(lst):
    G = []; cur = []
    for x in lst:
        cur.append(x)
        if x.startswith("buffer_"): G.append(cur); cur = []
    if cur: G[-1] += cur
    return G

WCLASS = {}
def plan_wo():
    P = {}; c = 0
    def add(name, kind, base, n):
        nonlocal c
        P[name] = list(range(c, c + n))
        for i in range(n): WCLASS[c] = (kind, base + 16 * i); c += 1
    add("R1", "r", 256 + 192, 4); add("R2", "r", vQ, 4); add("R3", "r", vS, 4)
    for nm, addr in (("W0", LW), ("W1", LW + 16384), ("K0", LK), ("K1", LK + 16384), ("V0", LV), ("K2", LK + 32768),
                     ("V1", LV + 16384), ("K3", LK + 49152), ("V2", LV + 32768)):
        add(nm, "l", addr, 1)
    add("R5", "r", 256 + aF, 4); add("R6", "r", 256 + 64, 4); add("R4", "r", vNEG, 2); add("V3", "l", LV + 49152, 1)
    assert c == 32
    return P
WP = plan_wo()
def wo_loads(name):
    groups = []
    for c in WP[name]:
        kind, where = WCLASS[c]
        for n in range(4):
            g = []
            if n == 0:
                if kind == "l": g.append(m0_at(where))
                g.append(f"s_mov_b32 {sr(sSP)}, {c * 4096}")
            if kind == "r":
                g.append(f"buffer_load_dwordx4 {rr(where + 4*n, 4)}, {vr(vLIN)}, {sr(sWFL,4)}, {sr(sSP)} offen offset:{n*1024} sc1 ; #w{c}")
            else:
                g.append(f"buffer_load_dwordx4 {vr(vLIN)}, {sr(sWFL,4)}, {sr(sSP)} offen offset:{n*1024} sc1 lds ; #w{c}")
            groups.append(g)
    return groups

def weave(mf, nvmap, va=(), pre=None, need=None):
    out = []; va = list(va)
    for g, m in enumerate(mf):
        if need and g in need:
            last = max([i for i, x in enumerate(va) if x[2] == need[g]], default=-1)
            if last >= 0:
                if va[last][1] > g - 1: out.append("s_nop 7")
                out += [x[0] for x in va[:last + 1]] + ["s_nop 1"]; va = va[last + 1:]
        if pre and g in pre: out += pre[g]
        out.append(m)
        nv = nvmap.get(g, [])
        out += nv
        c = sum(slots(x) for x in nv)
        while va and va[0][1] <= g and c + slots(va[0][0]) <= 2:
            c += slots(va[0][0]); out.append(va.pop(0)[0])
    return out, va

def allreduce(op, a, b):
    return [f"v_mov_b32 {vr(b)}, {vr(a)}", "s_nop 1", f"v_permlane32_swap_b32 {vr(a)}, {vr(b)}", "s_nop 1", f"{op} {vr(a)}, {vr(a)}, {vr(b)}",
            f"v_mov_b32 {vr(b)}, {vr(a)}", "s_nop 1", f"v_permlane16_swap_b32 {vr(a)}, {vr(b)}", "s_nop 1", f"{op} {vr(a)}, {vr(a)}, {vr(b)}"]
def qmax(p, qb, d):
    regs = [Sreg(p, kb, qb) + j for kb in range(4) for j in range(4)]
    o = [f"v_max3_f32 {vr(d)}, {vr(regs[0])}, {vr(regs[1])}, {vr(regs[2])}"]
    for i in range(3, 15, 2): o.append(f"v_max3_f32 {vr(d)}, {vr(regs[i])}, {vr(regs[i+1])}, {vr(d)}")
    o.append(f"v_max_f32 {vr(d)}, {vr(regs[15])}, {vr(d)}")
    return o
def rare_a(p, label):
    out = [f"{label}:", "s_nop 7"]
    for qb in range(4):
        d = vT + qb
        out += qmax(p, qb, d) + allreduce("v_max_f32", d, vMX)
        out.append(f"v_max_f32 {vr(d)}, 0, {vr(d)}")
        for j in range(4): out.append(f"v_sub_f32 {vr(vNEG+4*qb+j)}, {vr(vNEG+4*qb+j)}, {vr(d)}")
        for kb in range(4):
            for j in range(4):
                r = Sreg(p, kb, qb) + j
                out.append(f"v_sub_f32 {vr(r)}, {vr(r)}, {vr(d)}")
        out.append(f"v_exp_f32 {vr(d)}, -{vr(d)}")
    out += ["s_nop 3", f"s_setpc_b64 {sr(sRET,2)}"]
    return out
def rare_b(label):
    out = [f"{label}:", "s_nop 15"]
    for qb in range(4):
        f_ = vT + qb
        for j in range(4): out.append(f"v_mul_f32 {vr(vL+4*qb+j)}, {vr(vL+4*qb+j)}, {vr(f_)}")
        for j in range(0, 32, 2):
            a0 = Oreg(qb, 0) + j
            out += [f"v_accvgpr_read_b32 {vr(vMX)}, {ar(a0)}", f"v_accvgpr_read_b32 {vr(vMX+1)}, {ar(a0+1)}",
                    f"v_mul_f32 {vr(vMX)}, {vr(vMX)}, {vr(f_)}", f"v_mul_f32 {vr(vMX+1)}, {vr(vMX+1)}, {vr(f_)}",
                    f"v_accvgpr_write_b32 {ar(a0)}, {vr(vMX)}", f"v_accvgpr_write_b32 {ar(a0+1)}, {vr(vMX+1)}"]
    out += ["s_nop 3", f"s_setpc_b64 {sr(sRET,2)}"]
    return out

def wfrag(st, s, dt): return (96 if st % 2 == 0 else 192) + 4 * (dt * 2 + s)
def xfrag(st, s, qb): return (160 if st % 2 == 0 else 0) + 4 * (qb * 2 + s)
def qacc(qb, dt): return Ureg(dt // 4, (dt // 2) % 2, qb) + 4 * (dt % 2)
def qp_reads(st):
    out = []
    for qb in range(4):
        for s in range(2):
            out.append(f"ds_read_b128 {ar(xfrag(st,s,qb),4)}, {vr(vXA + 2*(st%2) + s)} offset:{qb*2048} ; #x")
    for dt in range(8):
        for s in range(2):
            for t in range(2):
                out.append(f"ds_read_b64_tr_b16 {ar(wfrag(st,s,dt)+2*t,2)}, {vr(vWA + 8*(st%3) + dt)} offset:{(32*s+4*t)*256}")
    return out
def qp_dma(st):
    G = []
    for p in range(4):
        g = [m0_at(LWQ[st % 3]), "s_nop 0"] if p == 0 else []
        g.append(f"buffer_load_dwordx4 {vr(vDW + p//2)}, {sr(sWQ,4)}, {sr(sWO+p)} offen offset:{1024*p} lds ; #st{st}")
        if p % 2: g.append(f"v_add_u32 {vr(vDW + p//2)}, 0x80000, {vr(vDW + p//2)}")
        G.append(g)
    for p in range(8):
        g = [f"s_add_u32 m0, {sr(sW8K)}, {LX[st%2] + (p//4)*4096}", "s_nop 0"] if p % 4 == 0 else []
        g.append(f"buffer_load_dwordx4 {vr(vDX + p%2)}, {sr(sX,4)}, {sr(sXO+p)} offen offset:{1024*(p%4)} lds ; #st{st}")
        if p >= 6: g.append(f"v_add_u32 {vr(vDX + p%2)}, 0x80, {vr(vDX + p%2)}")
        G.append(g)
    return G
def qp_mfmas(st):
    out = []
    if st < 7: order = [(dt, qb, (i if qb % 2 == 0 else 1 - i), i) for dt in range(8) for qb in range(4) for i in range(2)]
    else: order = [(dt, qb, (i if dt % 2 == 0 else 1 - i), i) for qb in range(4) for dt in range(8) for i in range(2)]
    for (dt, qb, s, i) in order:
        d = qacc(qb, dt)
        c = "0" if (st == 0 and i == 0) else vr(d, 4)
        out.append(f"{MF} {vr(d,4)}, {ar(wfrag(st,s,dt),4)}, {ar(xfrag(st,s,qb),4)}, {c}")
    return out
def qconv(qb, s):
    d = qacc(qb, 2 * s); q = Qreg(qb, s)
    out = [f"v_mul_f32 {vr(d+j)}, {sr(sSC)}, {vr(d+j)}" for j in range(8)]
    out += [f"v_cvt_pk_bf16_f32 {vr(q+j)}, {vr(d+2*j)}, {vr(d+2*j+1)}" for j in (0, 2, 1, 3)]
    return out, [f"v_permlane32_swap_b32 {vr(q)}, {vr(q+2)}", f"v_permlane32_swap_b32 {vr(q+1)}, {vr(q+3)}"], \
                [f"v_permlane16_swap_b32 {vr(q)}, {vr(q+2)}", f"v_permlane16_swap_b32 {vr(q+1)}, {vr(q+3)}"]
def qconv_stream(qb):
    parts = [qconv(qb, s) for s in range(4)]
    out = []
    for s in range(4):
        a = parts[s][0]
        if s == 0: out += [(x, s) for x in a]
        else: out += [(x, s) for x in a[:4]] + [(x, s) for x in parts[s-1][1]] + [(x, s) for x in a[4:8]] + [(x, s) for x in parts[s-1][2]] + [(x, s) for x in a[8:]]
    out += [("s_nop 1", 3)] + [(x, 3) for x in parts[3][1]] + [("s_nop 1", 3)] + [(x, 3) for x in parts[3][2]]
    return out

def setup_a():
    o = []; A = o.append
    A("s_cmp_ge_u32 s2, 256")
    A("s_cbranch_scc1 L_end")
    if CFG.get("fixdur"): A("s_memrealtime s[96:97]")
    A(f"s_load_dwordx16 {sr(sARG,16)}, s[0:1], 0")
    if CFG["codepf"]:
        A(f"s_getpc_b64 {sr(sT,2)}")
        A("L_pc:")
        A(f"v_lshlrev_b32 {vr(u0)}, 7, v0")
        A(f"v_add_u32 {vr(u1)}, 0x8000, {vr(u0)}")
        A(f"v_min_u32 {vr(u1)}, L_end-L_pc, {vr(u1)}")
        A(f"global_load_dword {vr(vDUM)}, {vr(u0)}, {sr(sT,2)} ; #pf")
        A(f"global_load_dword {vr(vDUM+1)}, {vr(u1)}, {sr(sT,2)} ; #pf")
    A(f"s_and_b32 {sr(sCB)}, s2, 7")
    A(f"s_lshr_b32 {sr(sT+3)}, s2, 3")
    A(f"s_and_b32 {sr(sB)}, {sr(sCB)}, 1"); A(f"s_lshl_b32 {sr(sB)}, {sr(sB)}, 2")
    A(f"s_and_b32 {sr(sMT)}, {sr(sT+3)}, 3"); A(f"s_add_u32 {sr(sB)}, {sr(sB)}, {sr(sMT)}")
    A(f"s_lshr_b32 {sr(sH)}, {sr(sCB)}, 1"); A(f"s_lshl_b32 {sr(sH)}, {sr(sH)}, 3")
    A(f"s_lshr_b32 {sr(sNT)}, {sr(sT+3)}, 2"); A(f"s_add_u32 {sr(sH)}, {sr(sH)}, {sr(sNT)}")
    A(f"v_lshrrev_b32 {vr(u0)}, 6, v0")
    A(f"v_and_b32 {vr(ln)}, 63, v0")
    A(f"v_readfirstlane_b32 {sr(sWAVE)}, {vr(u0)}")
    A(f"v_lshrrev_b32 {vr(u1)}, 4, {vr(ln)}")
    A(f"v_and_b32 {vr(u2)}, 15, {vr(ln)}")
    A(f"v_lshl_add_u32 {vr(u4)}, {vr(u0)}, 4, {vr(u1)}")
    A(f"v_lshlrev_b32 {vr(u3)}, 1, {vr(u1)}")
    A(f"v_xor_b32 {vr(u3)}, {vr(u3)}, {vr(u2)}")
    A(f"v_lshlrev_b32 {vr(u5)}, 4, {vr(u3)}")
    A(f"v_lshl_add_u32 {vr(vDW)}, {vr(u4)}, 13, {vr(u5)}")
    A(f"v_xor_b32 {vr(vDW+1)}, 0x80, {vr(vDW)}")
    A(f"v_lshrrev_b32 {vr(u3)}, 3, {vr(ln)}")
    A(f"v_lshl_add_u32 {vr(u0)}, {vr(u0)}, 6, {vr(u3)}")
    A(f"v_and_b32 {vr(u3)}, 7, {vr(ln)}")
    A(f"v_xor_b32 {vr(u3)}, {vr(u1)}, {vr(u3)}")
    A(f"v_lshlrev_b32 {vr(u3)}, 4, {vr(u3)}")
    A(f"v_lshl_add_u32 {vr(vDX)}, {vr(u0)}, 10, {vr(u3)}")
    A(f"v_xor_b32 {vr(vDX+1)}, 64, {vr(vDX)}")
    A(f"s_lshl_b32 {sr(sW4K)}, {sr(sWAVE)}, 12")
    A(f"s_lshl_b32 {sr(sW8K)}, {sr(sWAVE)}, 13")
    for p in range(8): A(f"s_mov_b32 {sr(sXO+p)}, {p*8192 - 1024*(p%4)}")
    for p in range(4): A(f"s_mov_b32 {sr(sWO+p)}, {p*(32768-1024)}")
    A(f"s_lshl_b32 {sr(sT)}, {sr(sB)}, 18")
    A(f"s_lshl_b32 {sr(sT+1)}, {sr(sH)}, 8")
    A("s_waitcnt lgkmcnt(0)")
    o += stamp()
    o += srd_at(sWQ, 6, sr(sT+1), 511*8192 + 256)
    o += srd_at(sX, 0, sr(sT), 0x40000)
    return o

def wo_piece_dma():
    o = [f"v_lshrrev_b32 {vr(u0)}, 5, v0", f"v_and_b32 {vr(u1)}, 0x1e, {vr(u0)}", f"v_and_b32 {vr(u0)}, 1, {vr(u0)}",
         f"v_lshl_add_u32 {vr(u0)}, {vr(u1)}, 2, {vr(u0)}",
         f"v_and_b32 {vr(u1)}, 31, v0", f"v_lshlrev_b32 {vr(u1)}, 4, {vr(u1)}", f"v_lshl_add_u32 {vr(u0)}, {vr(u0)}, 10, {vr(u1)}", m0_at(LV)]
    for p in range(4):
        o.append(f"s_mov_b32 {sr(sT)}, {1024*p}")
        o.append(f"buffer_load_dwordx4 {vr(u0)}, {sr(sWO2,4)}, {sr(sT)} offen offset:{1024*p} nt lds ; #wo")
    return o

def warm_loads(part):
    if not CFG["warm"]: return []
    o = []; A = o.append
    d = vDUM + (2 if part != "b" else 0)
    if part == "all":
        A(f"v_lshlrev_b32 {vr(u0)}, 7, v0")
        A(f"v_lshrrev_b32 {vr(u2)}, 1, v0")
    elif part == "a":
        A(f"v_lshrrev_b32 {vr(u3)}, 6, v0"); A(f"v_and_b32 {vr(u2)}, 15, v0"); A(f"v_lshl_add_u32 {vr(u3)}, {vr(u3)}, 4, {vr(u2)}")
        A(f"v_and_b32 {vr(u1)}, 48, v0"); A(f"v_lshl_add_u32 {vr(u3)}, {vr(u1)}, 12, {vr(u3)}")
        A(f"v_lshrrev_b32 {vr(u2)}, 1, {vr(u3)}")
        A(f"v_and_b32 {vr(u1)}, 1, v0"); A(f"v_lshlrev_b32 {vr(u0)}, 7, {vr(u1)}"); A(f"v_lshl_add_u32 {vr(u0)}, {vr(u2)}, 10, {vr(u0)}")
        A(f"v_add_u32 {vr(u0)}, 0x80, {vr(u0)}")
        A(f"v_add_u32 {vr(u2)}, 16, {vr(u2)}")
    else:
        A(f"v_lshlrev_b32 {vr(u0)}, 7, v0")
        A(f"v_and_b32 {vr(u1)}, 7, v0"); A(f"v_cmp_gt_u32 vcc, 3, {vr(u1)}"); A(f"v_mov_b32 {vr(u1)}, 0x1000000")
        A(f"v_lshrrev_b32 {vr(u2)}, 1, v0"); A(f"v_add_u32 {vr(u2)}, 48, {vr(u2)}")
        A(f"v_cndmask_b32 {vr(u0)}, {vr(u0)}, {vr(u1)}, vcc")
    A(f"s_and_b32 {sr(sT)}, {sr(sH)}, 7"); A(f"s_lshl_b32 {sr(sT)}, {sr(sT)}, 15")
    A(f"buffer_load_dword {vr(d)}, {vr(u0)}, {sr(sX,4)}, {sr(sT)} offen ; #warm")
    A(f"v_and_b32 {vr(u1)}, 1, v0")
    A(f"v_lshlrev_b32 {vr(u1)}, 7, {vr(u1)}"); A(f"v_min_u32 {vr(u2)}, 0x1000, {vr(u2)}"); A(f"v_lshl_add_u32 {vr(u0)}, {vr(u2)}, 15, {vr(u1)}")
    A(f"s_and_b32 {sr(sT)}, {sr(sB)}, 3"); A(f"s_lshl_b32 {sr(sT)}, {sr(sT)}, 13")
    A(f"buffer_load_dword {vr(d+1)}, {vr(u0)}, {sr(sWQ,4)}, {sr(sT)} offen ; #warm")
    return o

def setup_b():
    o = []; A = o.append
    A(f"s_lshl_b32 {sr(sT+2)}, {sr(sB)}, 5"); A(f"s_add_u32 {sr(sT+2)}, {sr(sT+2)}, {sr(sH)}")
    A(f"s_lshl_b32 {sr(sT)}, {sr(sT+2)}, 18")
    o += srd_at(sK, 2, sr(sT), 0x40000)
    o += srd_at(sV, 4, sr(sT), 0x40000)
    A(f"s_lshl_b32 {sr(sT+1)}, {sr(sT+2)}, 7"); A(f"s_add_u32 {sr(sT+1)}, {sr(sT+1)}, {FLAG_OFF}")
    o += srd_at(sFL, 14, sr(sT+1), 4)
    o += srd_at(sDB, 12, "0", 256)
    A(f"s_and_b32 {sr(sT+1)}, {sr(sT+2)}, 3"); A(f"s_lshl_b32 {sr(sT+1)}, {sr(sT+1)}, 6")
    o += srd_at(sDBW, 12, sr(sT+1), 4)
    A(f"s_lshr_b32 {sr(sT)}, {sr(sT+2)}, 1"); A(f"s_and_b32 {sr(sT+2)}, {sr(sT+2)}, 1")
    A(f"s_lshl_b32 {sr(sT+1)}, {sr(sT)}, 15"); A(f"s_lshl_b32 {sr(sT+3)}, {sr(sT+2)}, 9"); A(f"s_add_u32 {sr(sT+1)}, {sr(sT+1)}, {sr(sT+3)}")
    o += srd_at(sWO2, 8, sr(sT+1), 31*1024 + 512)
    A(f"s_lshl_b32 {sr(sT+2)}, {sr(sT+2)}, 2"); A(f"s_add_u32 {sr(sT+2)}, {sr(sT+2)}, {sr(sWAVE)}"); A(f"s_lshl_b32 {sr(sT+2)}, {sr(sT+2)}, 19")
    A(f"s_lshl_b32 {sr(sT)}, {sr(sT)}, 12"); A(f"s_add_u32 {sr(sT)}, {sr(sT)}, {sr(sT+2)}"); A(f"s_add_u32 {sr(sT)}, {sr(sT)}, {WOF_OFF}")
    o += srd_at(sWS2, 14, sr(sT), 4096)
    A(f"s_lshl_b32 {sr(sT)}, {sr(sB)}, 2"); A(f"s_add_u32 {sr(sT)}, {sr(sT)}, {sr(sWAVE)}"); A(f"s_lshl_b32 {sr(sT)}, {sr(sT)}, 19")
    A(f"s_lshl_b32 {sr(sT+1)}, {sr(sH)}, 14"); A(f"s_add_u32 {sr(sT)}, {sr(sT)}, {sr(sT+1)}")
    o += srd_at(sO, 14, sr(sT), 16384)
    rot = CFG.get("rot", "j")
    if rot == "j": A(f"s_lshr_b32 {sr(sROT)}, s2, 3"); A(f"s_add_u32 {sr(sROT)}, {sr(sROT)}, s2"); A(f"s_and_b32 {sr(sROT)}, {sr(sROT)}, 15"); A(f"s_lshl_b32 {sr(sROT)}, {sr(sROT)}, 14")
    else: A(f"s_mov_b32 {sr(sROT)}, 0")
    A(f"s_mov_b32 {sr(sTHR)}, 0x41000000")
    c = math.log2(math.e) / math.sqrt(128.0)
    A(f"s_mov_b32 {sr(sSC)}, 0x{struct.unpack('<I', struct.pack('<f', c))[0]:08x}")
    A(f"v_lshl_add_u32 {vr(vDV)}, {vr(u4)}, 8, {vr(u5)}")
    A(f"v_xor_b32 {vr(vDV+1)}, 0x80, {vr(vDV)}")
    g_, c16 = u1, u2
    A(f"v_lshrrev_b32 {vr(g_)}, 4, {vr(ln)}")
    A(f"v_and_b32 {vr(c16)}, 15, {vr(ln)}")
    A(f"v_xor_b32 {vr(u3)}, {vr(g_)}, {vr(c16)}")
    A(f"v_lshlrev_b32 {vr(u3)}, 4, {vr(u3)}")
    A(f"v_lshl_add_u32 {vr(vDK)}, {vr(u4)}, 8, {vr(u3)}")
    for p in range(1, 4): A(f"v_xor_b32 {vr(vDK+p)}, {64*p}, {vr(vDK)}")
    A(f"v_lshl_add_u32 {vr(vKA)}, {vr(c16)}, 8, {vr(u3)}")
    for s in range(1, 4): A(f"v_xor_b32 {vr(vKA+s)}, {64*s}, {vr(vKA)}")
    A(f"v_lshrrev_b32 {vr(u3)}, 1, {vr(c16)}")
    A(f"v_xor_b32 {vr(u3)}, {vr(g_)}, {vr(u3)}")
    A(f"v_lshlrev_b32 {vr(u3)}, 4, {vr(u3)}")
    A(f"v_lshl_add_u32 {vr(u3)}, {vr(c16)}, 7, {vr(u3)}")
    A(f"v_add_u32 {vr(u3)}, {sr(sW8K)}, {vr(u3)}")
    for sl in range(2):
        A(f"v_add_u32 {vr(vXA+2*sl)}, {LX[sl]}, {vr(u3)}")
        A(f"v_xor_b32 {vr(vXA+2*sl+1)}, 64, {vr(vXA+2*sl)}")
    A(f"v_cmp_eq_u32 vcc, 0, {vr(c16)}")
    A(f"v_mov_b32 {vr(u3)}, 0x3f803f80")
    r_, f_, c8 = u0, u4, u5
    A(f"v_bfe_u32 {vr(r_)}, {vr(ln)}, 2, 2")
    for j in range(4): A(f"v_cndmask_b32 {vr(vONES+j)}, 0, {vr(u3)}, vcc")
    A(f"v_bfe_u32 {vr(f_)}, {vr(ln)}, 2, 3")
    A(f"v_and_b32 {vr(c8)}, 3, {vr(ln)}")
    A(f"v_lshlrev_b32 {vr(c8)}, 3, {vr(c8)}")
    A(f"v_lshrrev_b32 {vr(u3)}, 2, {vr(ln)}")
    A(f"v_lshl_add_u32 {vr(vWOA)}, {vr(u3)}, 9, {vr(c8)}")
    A(f"s_lshl_b32 {sr(sT)}, {sr(sWAVE)}, 7"); A(f"s_add_u32 {sr(sT)}, {sr(sT)}, {LV}")
    A(f"v_add_u32 {vr(vWOA)}, {sr(sT)}, {vr(vWOA)}")
    A(f"v_lshl_add_u32 {vr(c8)}, {vr(f_)}, 5, {vr(c8)}")
    A(f"v_lshl_add_u32 {vr(u3)}, {vr(u3)}, 8, {vr(c8)}")
    A(f"v_add_u32 {vr(vVA)}, {LV}, {vr(u3)}")
    for dt in range(1, 8): A(f"v_xor_b32 {vr(vVA+dt)}, {32*dt}, {vr(vVA)}")
    A(f"v_lshl_add_u32 {vr(u3)}, {vr(g_)}, 3, {vr(r_)}")
    A(f"v_lshl_add_u32 {vr(u3)}, {vr(u3)}, 8, {vr(c8)}")
    for sl in range(3):
        A(f"v_add_u32 {vr(vWA+8*sl)}, {LWQ[sl]}, {vr(u3)}")
        for dt in range(1, 8): A(f"v_xor_b32 {vr(vWA+8*sl+dt)}, {32*dt}, {vr(vWA+8*sl)}")
    A(f"v_lshlrev_b32 {vr(vWOS)}, 4, {vr(ln)}")
    A(f"s_lshl_b32 {sr(sT)}, {sr(sWAVE)}, 17")
    A(f"v_add_u32 {vr(vLIN)}, {sr(sT)}, {vr(vWOS)}")
    A(f"v_mov_b32 {vr(vCW)}, 0")
    for r in range(48, 96): A(f"v_accvgpr_write_b32 {ar(r)}, 0")
    return o

def wo_reads():
    return [f"ds_read_b64_tr_b16 {ar(aWO+4*i+2*tt,2)}, {vr(vWOA)} offset:{i*32 + tt*8192}" for i in range(4) for tt in range(2)]
def wo_stores():
    return [[f"buffer_store_dwordx4 {ar(aWO+4*i,4)}, {vr(vWOS)}, {sr(sWS2,4)}, 0 offen offset:{i*1024} sc1 ; #wst"] for i in range(4)] + \
           [[f"buffer_store_dword {vr(vCW)}, {vr(vLIN)}, {sr(sFL,4)}, 0 offen sc1 ; #wst"]]

def pairs(lst): return [lst[i:i+2] for i in range(0, len(lst), 2)]
def prologue():
    qs = stamp if CFG["qst"] else (lambda: [])
    order = CFG.get("order", "G")
    o = setup_a()
    o += flat(qp_dma(0))
    o += qs()
    sb = setup_b()
    st0_extra = []
    if order == "F":
        o += sb[:len(sb) - 48] + warm_loads("a") + sb[len(sb) - 48:]
        o += qs()
        o += ["@wait st0", "s_barrier"] + stamp() + flat(qp_dma(1)) + qp_reads(0)
        st0_extra = qp_dma(2) + groups_of(warm_loads("b") + wo_piece_dma())
    elif order == "G":
        o += sb[:len(sb) - 48] + wo_piece_dma() + sb[len(sb) - 48:]
        o += qs()
        o += ["@wait st0", "s_barrier"] + stamp() + flat(qp_dma(1)) + qp_reads(0)
        st0_extra = qp_dma(2)
    elif order == "H":
        o += sb + flat(qp_dma(1))
        o += qs()
        o += ["@wait st0", "s_barrier"] + stamp() + qp_reads(0)
        st0_extra = qp_dma(2) + groups_of(wo_piece_dma())
    elif order == "I":
        o += sb[:len(sb) - 48] + warm_loads("a") + sb[len(sb) - 48:]
        o += qs()
        o += ["@wait st0", "s_barrier"] + stamp() + qp_reads(0) + flat(qp_dma(1))
        st0_extra = qp_dma(2) + groups_of(wo_piece_dma())
    kv = lambda *l: groups_of(sum([kv_batch(x[0], int(x[1:])) for x in l], []))
    late = {5: kv("K0", "K1"), 6: kv("V0"), 7: kv("K2")}
    for st in range(8):
        mf = qp_mfmas(st)
        o += qs()
        if st < 7:
            reads = qp_reads(st + 1) + (wo_reads() if st == 3 else [])
            d = qp_dma(st + 3) if st + 3 <= 7 else []
            bg = int(CFG.get("bg0", 24)) if st == 0 else 0
            rg = list(range(bg + 2, 58, 2)) if st else list(range(bg + 1, 60))
            nvm = merge({bg: ["s_barrier"]}, spread(pairs(reads), rg))
            xw = bg + (16 if st else 12)
            if st == 0: nvm = merge(nvm, spread(st0_extra, list(range(0, bg))))
            if d:
                nvm = merge(nvm, spread(d[:4], list(range(bg + 1, xw, 2))), {xw: ["@wait - lds=x"]}, spread(d[4:] + late.get(st, []), list(range(xw + 1, 64, 2))))
            else:
                nvm = merge(nvm, spread(late[st], list(range(1, 64, 2))))
            for g in nvm: nvm[g].sort(key=lambda x: 0 if x.startswith("@") else 1)
            pre = {0: [f"@wait st{st+1} lgkm=0"]} if st else {0: ["@wait - lgkm=0"], bg: ["@wait st1"]}
            part, _ = weave(mf, nvm, pre=pre)
            o += part
        else:
            va = [(f"v_accvgpr_write_b32 {ar(r)}, 0", 0, "z") for r in range(96, 112)]
            for qb in range(4):
                va += [(t, 16 * qb + 4 * s + 3 + 3, f"q{qb}") for t, s in qconv_stream(qb)]
            nvm = merge(spread(late[7], [1, 9, 17, 25]), {42: ["s_barrier"]}, spread(pairs([rd_k(0, n) for n in range(16)]), list(range(43, 59, 2))))
            part, va_left = weave(mf, nvm, va, pre={0: ["s_waitcnt lgkmcnt(0)"], 42: ["@wait K0"]})
            o += part
    o += stamp()
    va = [(t, max(0, e - 64), k) for t, e, k in va_left]
    va += [(f"v_accvgpr_write_b32 {ar(r)}, 0", 0 if not 32 <= r < 48 else 62, "z") for r in list(range(112, 128)) + list(range(0, 48))]
    va += [(f"v_mov_b32 {vr(vL+j)}, 0", 0, "z") for j in range(16)]
    mf = [qk_one(0, kb, qb, (i if kb % 2 == 0 else 3 - i), i == 0, czero=True) for qb in range(4) for kb in range(4) for i in range(4)]
    nvm = merge({56: ["s_barrier"], 57: [f"s_add_u32 {sr(sTILE)}, {sr(sROT)}, {3*16384}"], 58: [f"s_and_b32 {sr(sTILE)}, {sr(sTILE)}, 0x3ffff"],
                 59: [f"s_add_u32 {sr(sTK)}, {sr(sROT)}, {4*16384}"], 60: [f"s_and_b32 {sr(sTK)}, {sr(sTK)}, 0x3ffff"], 2: [f"s_mov_b32 {sr(sCNT)}, 0"]},
                spread(kv("V1") + wo_stores(), list(range(3, 56))))
    part, left = weave(mf, nvm, va, pre={0: ["s_waitcnt lgkmcnt(0)"], 56: ["@wait K1,V0"]}, need={16 * q: f"q{q}" for q in range(4)})
    o += part
    o += [rd_k(1, n) for n in EARLY_K]
    o += [t for t, _, _ in left]
    o.append("s_nop 7")
    ini = []
    for qb in range(4): ini += qmax(0, qb, vT + qb)
    for sw in ("v_permlane32_swap_b32", "v_permlane16_swap_b32"):
        ini += [f"v_mov_b32 {vr(vNEG+qb)}, {vr(vT+qb)}" for qb in range(4)]
        ini += [f"{sw} {vr(vT+qb)}, {vr(vNEG+qb)}" for qb in range(4)]
        ini += [f"v_max_f32 {vr(vT+qb)}, {vr(vT+qb)}, {vr(vNEG+qb)}" for qb in range(4)]
    for qb in range(4):
        ini += [f"v_sub_f32 {vr(vNEG+4*qb+j)}, 0, {vr(vT+qb)}" for j in range(4)]
    for ks, qb in UNITS:
        r = Ureg(0, ks, qb)
        ini += [f"v_pk_add_f32 {vr(r+j,2)}, {vr(r+j,2)}, {vr(vNEG+4*qb,2)}" for j in range(0, 8, 2)]
    ex_ = [exp_i(0, it[1]) for it in E_FIRST if it[0] == "exp"]; cv_ = [cvt_i(0, it[1]) for it in E_FIRST if it[0] == "cvt"]
    ini += ex_ + cv_
    G = kv("K3", "V2")
    for i, g in enumerate(G):
        k = (i + 1) * len(ini) // (len(G) + 1)
        ini = ini[:k] + g + ini[k:]
    o += ini
    o.append("@wait - lds=k0,k1,k2,k3")
    o += stamp()
    o, fifo, lf = resolve(o, [])
    return o, fifo, lf

def phase_c_srds():
    o = []; A = o.append
    A(f"s_lshl_b32 {sr(sT)}, {sr(sNT)}, 19"); A(f"s_add_u32 {sr(sT)}, {sr(sT)}, {WOF_OFF}")
    o += srd_at(sWFL, 14, sr(sT), 0x80000)
    A(f"s_lshl_b32 {sr(sT)}, {sr(sCB)}, 2"); A(f"s_add_u32 {sr(sT)}, {sr(sT)}, {sr(sMT)}"); A(f"s_lshl_b32 {sr(sT+1)}, {sr(sT)}, 19")
    o += srd_at(sOL, 14, sr(sT+1), 0x80000)
    A(f"s_lshl_b32 {sr(sT)}, {sr(sT)}, 16"); A(f"s_lshl_b32 {sr(sT+1)}, {sr(sNT)}, 7"); A(f"s_add_u32 {sr(sT)}, {sr(sT)}, {sr(sT+1)}")
    o += srd_at(sOUT, 10, sr(sT), 63*1024 + 128)
    A(f"s_lshl_b32 {sr(sT)}, {sr(sCB)}, 12"); A(f"s_add_u32 {sr(sT)}, {sr(sT)}, {FLAG_OFF}")
    o += srd_at(sFLR, 14, sr(sT), 4096)
    return o

def tail_and_epilogue(u):
    p = u % 2
    o = []
    reads = [rd_v(u % 4, n, t) for n in range(16) for t in range(2)]
    er = [(exp_i(p, it[1]), UNITS[it[1] // 8][1]) if it[0] == "exp" else (cvt_i(p, it[1]), UNITS[it[1] // 4][1]) for it in E_REST]
    va = []
    for i, (t, q) in enumerate(er):
        if t.startswith("v_cvt") and i and er[i-1][0].startswith("v_exp"): va.append(("s_nop 0", 0, f"e{q}"))
        va.append((t, 0, f"e{q}"))
    mf = []
    for qb in range(4):
        mf += [sum_one(p, qb, 0), sum_one(p, qb, 1)]
        mf += [pv_one(p, dt, qb, (i if dt % 2 == 0 else 1 - i)) for dt in range(8) for i in range(2)]
    vOST = vCW
    va.append((f"v_and_b32 {vr(vOST)}, 0x3ff, {vr(vLIN)}", 0, "x"))
    tmp = vNEG
    for qb in range(4):
        e0 = 18 * qb
        lsum = [f"v_mov_b32 {vr(vT+qb)}, {vr(vL+4*qb)}"] + allreduce("v_add_f32", vT + qb, vMX) + [f"v_rcp_f32 {vr(vT+qb)}, {vr(vT+qb)}"]
        va += [(t, e0 + 1 + 3, "o") for t in lsum]
        for s in range(4):
            e = e0 + 2 + 4 * s + 3 + 3
            b = tmp + 8 * (s % 2)
            pk = vKA + 3 + 4 * (s % 2) if False else None
            va += [(f"v_accvgpr_read_b32 {vr(b+j)}, {ar(Oreg(qb,2*s)+j)}", e, "o") for j in range(8)]
            va += [(f"v_mul_f32 {vr(b+j)}, {vr(b+j)}, {vr(vT+qb)}", e, "o") for j in range(8)]
            d = Ureg(p, s // 2, qb) + 4 * (1 - s % 2)
            ee = e0 + 17 if s % 2 == 1 else e
            va += [(f"v_cvt_pk_bf16_f32 {vr(d+j)}, {vr(b+2*j)}, {vr(b+2*j+1)}", max(e, ee), "o") for j in range(4)]
            va += [(f"s_mov_b32 {sr(sT)}, {s*4096}", e, "o"),
                   (f"buffer_store_dwordx4 {vr(d,4)}, {vr(vOST)}, {sr(sO,4)}, {sr(sT)} offen offset:{qb*1024} sc1 ; #ost", e, "o")]
    o += reads[:12]
    nvm = spread(pairs(reads[12:]), list(range(0, 10)))
    pre = {2 + 2 * dt: [f"@wait - lds=v{2*dt},v{2*dt+1}"] for dt in range(8)}
    nvm = merge(nvm, spread(wo_loads("K3") + wo_loads("V2") + wo_loads("R3"), list(range(11, 72, 2))))
    part, left = weave(mf, nvm, va, pre=pre, need={18 * q: f"e{q}" for q in range(4)})
    o += part
    o += stamp()
    o.append("s_nop 7")
    o += [t for t, _, _ in left]
    A = o.append
    o += flat(wo_loads("R5"))
    A(f"v_mov_b32 {vr(vMX)}, 1")
    A(f"v_and_b32 {vr(vT)}, 7, v0"); A(f"v_lshlrev_b32 {vr(vT)}, 7, {vr(vT)}")
    A(f"s_lshl_b32 {sr(sT)}, {sr(sWAVE)}, 10"); A(f"v_add_u32 {vr(vT)}, {sr(sT)}, {vr(vT)}")
    A(f"v_add_u32 {vr(vKA)}, {sr(sW4K)}, {vr(vOST)}")
    A(f"v_add_u32 {vr(vKA+1)}, 0x10000, {vr(vKA)}")
    A(f"v_add_u32 {vr(vKA+2)}, 0x20000, {vr(vKA)}")
    A(f"s_mov_b32 {sr(sCNT)}, 0")
    A("@wait ost")
    A("s_barrier")
    A(f"buffer_store_dword {vr(vMX)}, {vr(vLIN)}, {sr(sFL,4)}, 0 offen sc1 ; #flag")
    o += stamp()
    o += flat(wo_loads("R6") + wo_loads("R4") + wo_loads("V3"))
    A("L_poll:")
    A(f"buffer_load_dword {vr(vT+1)}, {vr(vT)}, {sr(sFLR,4)}, 0 offen sc1 ; #poll")
    A("s_waitcnt vmcnt(0)")
    A(f"v_cmp_ne_u32 vcc, 1, {vr(vT+1)}")
    A("s_cbranch_vccz L_go")
    A(f"s_add_u32 {sr(sCNT)}, {sr(sCNT)}, 1")
    A(f"s_cmp_lt_u32 {sr(sCNT)}, {CFG['spin']}")
    A("s_cbranch_scc1 L_poll")
    A("L_go:")
    o += stamp()
    return o

def phase_c():
    o = []; A = o.append
    pool = [vS + 64 + 16 * i for i in range(4)]
    oreg = {}; wtmp = {}
    nxt = 0
    MAXFLY = 14
    def issue_o(c):
        nonlocal nxt
        G = []
        reserve = sum(1 for k in range(c + 3, min(32, c + 5)) if WCLASS[k][0] == "l")
        while nxt < 32 and len(pool) > reserve and nxt - c <= MAXFLY:
            r = pool.pop(0); oreg[nxt] = r
            for qb in range(4):
                g = [f"s_mov_b32 {sr(sSP)}, {nxt * 4096}"] if qb == 0 else []
                g.append(f"buffer_load_dwordx4 {rr(r + 4*qb, 4)}, {vr(vLIN)}, {sr(sOL,4)}, {sr(sSP)} offen offset:{qb*1024} sc1 ; #o{nxt}")
                G.append(g)
            nxt += 1
        return G
    def lds_reads(c):
        addr = WCLASS[c][1]
        r = pool.pop(0); wtmp[c] = r
        return [f"ds_read_b128 {rr(r + 4*n, 4)}, {vr(vKA + addr // 65536)} offset:{addr % 65536 + n*1024} ; #w{c}" for n in range(4)]
    o += flat(issue_o(-1))
    carry = []
    for c in range(0, 32, 2):
        rd = []
        for k in (c + 2, c + 3):
            if k < 32 and WCLASS[k][0] == "l": rd += lds_reads(k)
        A(f"@wait o{c},o{c+1} lds=w{c},w{c+1}")
        if c == 0: o += stamp()
        w = [WCLASS[k][1] if WCLASS[k][0] == "r" else wtmp[k] for k in (c, c + 1)]
        mf = []
        for n in range(4):
            for qb in range(4):
                d = ar(4 * (n * 4 + qb), 4)
                for i in range(2):
                    k = i if qb % 2 == 0 else 1 - i
                    mf.append(f"{MF} {d}, {rr(w[k] + 4*n, 4)}, {rr(oreg[c+k] + 4*qb, 4)}, {d if (c or i) else 0}")
        nvm = merge(spread(carry, list(range(0, 24))) if carry else {}, spread(pairs(rd), list(range(24, 28))) if rd else {})
        part, _ = weave(mf, nvm)
        o += part
        pool.extend([oreg[c], oreg[c+1]] + w)
        carry = issue_o(c + 1)
    assert not carry
    o += stamp()
    A("v_and_b32 v7, 63, v0")
    A("v_and_b32 v8, 15, v7"); A("v_lshrrev_b32 v9, 4, v7")
    A("v_xor_b32 v10, v8, v9"); A("v_lshlrev_b32 v10, 4, v10")
    A("v_lshl_add_u32 v8, v8, 8, v10")
    A(f"v_add_u32 v32, {sr(sW4K)}, v8")
    for n in range(1, 4): A(f"v_xor_b32 {vr(32+n)}, {n*64}, v32")
    A("v_lshrrev_b32 v8, 3, v0"); A("v_and_b32 v9, 7, v0"); A("v_lshlrev_b32 v10, 1, v9")
    A("v_and_b32 v11, 15, v8"); A("v_xor_b32 v10, v10, v11"); A("v_lshlrev_b32 v10, 4, v10")
    A("v_lshl_add_u32 v10, v11, 8, v10")
    A("v_lshrrev_b32 v11, 4, v8"); A("v_lshl_add_u32 v10, v11, 14, v10"); A("v_xor_b32 v11, 16, v10")
    A("v_lshlrev_b32 v9, 4, v9"); A("v_lshl_add_u32 v14, v8, 10, v9")
    for n in range(4):
        for qb in range(4):
            A(f"ds_write_b128 {vr(32 + n)}, {ar(4*(n*4+qb), 4)} offset:{qb*16384}")
    A("s_waitcnt lgkmcnt(0)")
    A("s_barrier")
    for z in range(2):
        for w in range(4):
            for i in range(2):
                A(f"ds_read_b128 {vr(64 + z*32 + w*8 + i*4, 4)}, {vr(10 + i)} offset:{w*4096 + z*32768}")
    A(f"s_mov_b32 {sr(sT)}, {32*1024}")
    for z in range(2):
        A(f"s_waitcnt lgkmcnt({8 if z == 0 else 0})")
        b = 64 + z * 32
        for j in range(8):
            A(f"v_add_f32 {vr(b+j)}, {vr(b+j)}, {vr(b+8+j)}")
            A(f"v_add_f32 {vr(b+16+j)}, {vr(b+16+j)}, {vr(b+24+j)}")
        for j in range(8): A(f"v_add_f32 {vr(b+j)}, {vr(b+j)}, {vr(b+16+j)}")
        for j in range(4): A(f"v_cvt_pk_bf16_f32 {vr(b+8+j)}, {vr(b+2*j)}, {vr(b+2*j+1)}")
        A(f"buffer_store_dwordx4 {vr(b+8,4)}, v14, {sr(sOUT,4)}, {sr(sT) if z else 0} offen {CFG.get('outst', '').replace('+', ' ')}")
    return o

def peeled(lf):
    o = [f"s_mov_b32 {sr(sT)}, 0xe00fe000", f"v_cmp_ne_u32 vcc, {sr(sT)}, {vr(vCW)}", "s_cbranch_vccnz L_cw", "L_cw_back:"]
    srds = phase_c_srds()
    sg = [g for g in range(0, 40) if g not in (15, 31)]
    ex12 = merge({g: [x] for g, x in zip(sg, srds)},
                 place(groups_of(kv_batch("V", 15)) + wo_loads("K0") + wo_loads("W0") + wo_loads("W1"), 40, NG))
    assert len(srds) <= len(sg)
    o += iteration(0, "L_r4", ex12, "K14,V13")
    o += iteration(1, "L_r5", place(wo_loads("K1") + wo_loads("V0") + wo_loads("R1"), 0, NG), "K15,V14")
    ex14 = merge(place(wo_loads("K2") + wo_loads("V1"), 0, 64), place(wo_loads("R2"), 64, NG))
    o += iteration(2, "L_r6", ex14, "V15", nextk=False)
    o += stamp()
    o += tail_and_epilogue(3)
    o += phase_c()
    fifo = ["K14"] * 4 + ["V13"] * 4 + ["K15"] * 4 + ["V14"] * 4
    o, _, _ = resolve(o, fifo, lf)
    return o

def stamp_out():
    if not CFG["stamps"]: return []
    o = ["s_waitcnt vmcnt(0)"] + stamp()
    A = o.append
    A(f"s_lshl_b32 {sr(sT)}, s2, 10"); A(f"s_add_u32 {sr(sT)}, {sr(sT)}, {STAMP_OFF}")
    o += srd_at(4, 14, sr(sT), 1024)
    A("v_lshlrev_b32 v1, 2, v0")
    A(f"buffer_store_dword v{STV}, v1, s[4:7], 0 offen")
    if CFG.get("dbgout"):
        o += srd_at(4, 12, "0", 64)
        A("v_and_b32 v2, 63, v0")
        A("v_lshlrev_b32 v1, 1, v2"); A("v_add_u32 v1, 6, v1")
        A("v_and_b32 v3, 1, v2"); A("v_cmp_eq_u32 vcc, 0, v3"); A("v_mov_b32 v3, 0x1000"); A("s_nop 1")
        A("v_cndmask_b32 v1, v1, v3, vcc")
        A(f"v_cmp_lt_u32 vcc, {2*nstamp[0]}, v2"); A("s_nop 1"); A("v_cndmask_b32 v1, v1, v3, vcc")
        A(f"buffer_atomic_umax v{STV}, v1, s[4:7], 0 offen sc1")
        A(f"v_not_b32 v4, v{STV}")
        A("v_cmp_eq_u32 vcc, 1, v2"); A("s_nop 1"); A("v_cndmask_b32 v1, v3, 4, vcc")
        A(f"buffer_atomic_umax v4, v1, s[4:7], 0 offen sc1")
    return o

def kernel():
    pro, fifo, lf0 = prologue()
    _, _, lf = resolve(iteration(0, "x") + iteration(1, "x"), [])
    its = []
    for u in range(4):
        it, _, lf2 = resolve(iteration(u, f"L_r{u}"), [], lf)
        assert lf2 == lf
        its.append(it)
    assert len(lf0) >= len(lf) and lf0[len(lf0)-len(lf):] == lf or CFG["stamps"] or CFG.get("probe"), (lf0, lf)
    pe = peeled(lf)
    body = list(pro)
    body.append("L_loop:")
    for u in range(4):
        it = list(its[u])
        if u == 3:
            k = [i for i, x in enumerate(it) if x.startswith(MF)]
            it.insert(k[-3] + 1, f"s_cmp_lt_u32 {sr(sCNT)}, 3")
            it.insert(k[-4] + 1, f"s_add_u32 {sr(sCNT)}, {sr(sCNT)}, 1")
            it.append("s_cbranch_scc1 L_loop")
            its[3] = it
        body += it
    body += pe
    body += stamp_out()
    if CFG.get("fixdur"):
        body += ["L_fix:", "s_memrealtime s[98:99]", "s_waitcnt lgkmcnt(0)", "s_sub_u32 s98, s98, s96", f"s_cmp_lt_u32 s98, {int(CFG['fixdur'])*100}", "s_cbranch_scc1 L_fix"]
    body.append("L_end:")
    body.append("s_endpgm")
    for u in range(7):
        body += [f"L_r{u}a:", f"s_call_b64 {sr(sRET,2)}, L_ra{1 - u % 2}", f"s_branch L_r{u}a_back"]
        body += [f"L_r{u}b:", f"s_call_b64 {sr(sRET,2)}, L_rb", f"s_branch L_r{u}b_back"]
    body += ["L_cw:", f"s_mov_b32 {sr(sCNT)}, 0", "L_cw_loop:",
             f"v_and_b32 {vr(vCW)}, 3, v0", f"v_lshlrev_b32 {vr(vCW)}, 6, {vr(vCW)}",
             f"buffer_load_dword {vr(vCW)}, {vr(vCW)}, {sr(sDB,4)}, 0 offen sc1", "s_waitcnt vmcnt(0)",
             f"v_cmp_ne_u32 vcc, {sr(sT)}, {vr(vCW)}", "s_cbranch_vccz L_cw_back",
             f"s_add_u32 {sr(sCNT)}, {sr(sCNT)}, 1", f"s_cmp_lt_u32 {sr(sCNT)}, {CFG['spin']}", "s_cbranch_scc1 L_cw_loop",
             "s_branch L_cw_back"]
    for p in range(2): body += rare_a(p, f"L_ra{p}")
    body += rare_b("L_rb")
    loop = its[0] + its[1] + its[2] + its[3]
    check(pro + loop + loop + pe, "main")
    def with_rare(seq):
        o = []
        for x in seq:
            m = re.match(r"L_r(\d)([ab])_back:", x)
            if m: o += (rare_a(1 - int(m.group(1)) % 2, "x") if m.group(2) == "a" else rare_b("x"))[1:]
            o.append(x)
        return o
    check(pro + with_rare(loop + pe), "rare")
    if CFG["verbose"]:
        for g in range(NG): print(g, PLAN[g])
    return "\n".join(body)

if __name__ == "__main__":
    k = kernel()
    txt = file_text([dict(label=NAME + "_kernel", body=k, grid=256, block=256, lds=163840, vgpr=512, accum=256)], single=True)
    open(sys.argv[1], "w").write(txt)
```

```python
import sys, math, struct, re
from asmlib import *
from check import check

CFG = dict(qst=False, stamps=False, codepf=True, warm=True, spin=200000, verbose=False)
for a in sys.argv[2:]:
    k, v = a.split("=")
    CFG[k] = {"0": False, "1": True}.get(v, v)

MF = "v_mfma_f32_16x16x32_bf16"
def vr(b, n=1): return f"v{b}" if n == 1 else f"v[{b}:{b+n-1}]"
def ar(b, n=1): return f"a{b}" if n == 1 else f"a[{b}:{b+n-1}]"
def sr(b, n=1): return f"s{b}" if n == 1 else f"s[{b}:{b+n-1}]"
def rr(r, n=1): return vr(r, n) if r < 256 else ar(r - 256, n)
def slots(t):
    if t.startswith(("v_exp", "v_rcp", "buffer_", "global_", "v_permlane")): return 2
    if t.startswith(("s_", "@", "L_")): return 0
    return 1

sX, sWQ, sK, sV, sO = 4, 8, 12, 16, 20
sWFL, sOL = 4, 8
sWAVE, sB, sH, sW4K, sW8K = 24, 25, 26, 27, 28
sCB, sMT, sNT = 29, 30, 31
sXO, sWO = 32, 40
sOUT, sFLR = 32, 36
sTILE, sCNT, sTHR, sSC, sSP = 44, 45, 46, 47, 48
sRET = 50
sTK, sROT, sRQ, sRX, sRW = 49, 92, 93, 94, 95
sW1K, sDT = 96, 97
sRC = 93
sXCC, sGLB = 3, 40
sT = 52
sARG = 56
sFL, sDB, sDBW = 72, 76, 88
sWS2, sWO2 = 80, 84
vKA, vVA, vDK, vDV = 1, 5, 13, 17
vMX, vLIN, vCW, STV = 19, 21, 22, 23
vT = 24
vONES = 28
vNEG, vL, vQ, vS = 32, 48, 64, 128
vWA, vXA, vDX, vDW, vWOF = 64, 72, 76, 78, 80
vWOA, vWOS = 19, 20
vDUM = [22, 26, 27]
u0, u1, u2, u3, u4, u5, ln = 128, 129, 130, 131, 132, 133, 134
aO, aF = 0, 128
LK, LV, LW = 0, 65536, 131072
LX = [81920, 131072]
LWQ = [32768, 49152, 65536]
LWO = 114688
WOF_OFF, FLAG_OFF, STAMP_OFF = 0x1000000, 0x1400000, 0x4000000

def Ureg(p, ks, qb): return vS + 64 * p + 8 * (ks * 4 + qb)
def Sreg(p, kb, qb): return Ureg(p, kb // 2, qb) + 4 * (kb % 2)
def Oreg(qb, dt): return aO + 4 * (qb * 8 + dt)
def Qreg(qb, s): return vQ + 16 * qb + 4 * s
def Freg(n): return aF + 4 * n

nstamp = [0]
def stamp():
    if CFG.get("probe"):
        i = nstamp[0]; nstamp[0] += 1
        return ["s_memrealtime s[96:97]", "s_waitcnt lgkmcnt(0)"] if i == int(CFG["probe"][1:]) else []
    if not CFG["stamps"]: return []
    i = nstamp[0]; nstamp[0] += 1
    assert i < 30
    return ["s_memtime s[100:101]", "s_waitcnt lgkmcnt(0)", f"v_writelane_b32 v{STV}, s100, {2*i}",
            "s_memrealtime s[100:101]", "s_waitcnt lgkmcnt(0)", f"v_writelane_b32 v{STV}, s100, {2*i+1}"]

def srd(s, size):
    return [f"s_and_b32 {sr(s+1)}, {sr(s+1)}, 0xffff", f"s_mov_b32 {sr(s+2)}, {size}", f"s_mov_b32 {sr(s+3)}, 0x20000"]
def srd_at(s, arg, offreg, size):
    return [f"s_add_u32 {sr(s)}, {sr(sARG+arg)}, {offreg}", f"s_addc_u32 {sr(s+1)}, {sr(sARG+arg+1)}, 0"] + srd(s, size)

def tag(lst, t): return [(x + f" ; #{t}") if x.startswith(("buffer_", "global_")) and "#" not in x else x for x in lst]
def resolve(seq, fifo, lfifo=()):
    fifo = list(fifo); lf = list(lfifo); out = []
    def cut(f, n): return f[len(f) - n:] if 0 < n < len(f) else (f if n else [])
    for x in seq:
        if x.startswith("@wait"):
            parts = x.split()
            w = []
            idx = [i for i, t in enumerate(fifo) if t in parts[1].split(",")]
            if idx:
                n = min(63, len(fifo) - 1 - max(idx)); fifo = cut(fifo, n); w.append(f"vmcnt({n})")
            for p in parts[2:]:
                if p.startswith("vm="): n = int(p[3:]); fifo = cut(fifo, n); w.append(f"vmcnt({n})")
                if p.startswith("lgkm="): n = int(p[5:]); lf = cut(lf, n); w.append(f"lgkmcnt({n})")
                if p.startswith("lds="):
                    idx = [i for i, t in enumerate(lf) if t in p[4:].split(",")]
                    if idx:
                        n = min(15, len(lf) - 1 - max(idx)); lf = cut(lf, n); w.append(f"lgkmcnt({n})")
            if w: out.append("s_waitcnt " + " ".join(w))
            continue
        m = re.search(r"#(\S+)", x)
        if x.startswith(("buffer_", "global_")): fifo.append(m.group(1) if m else "?")
        if x.startswith("ds_"): lf.append(m.group(1) if m else "?")
        m = re.match(r"s_waitcnt.*vmcnt\((\d+)\)", x)
        if m: fifo = cut(fifo, int(m.group(1)))
        m = re.match(r"s_waitcnt.*lgkmcnt\((\d+)\)", x)
        if m: lf = cut(lf, int(m.group(1)))
        out.append(x)
    return out, fifo, lf

CONT = CFG.get("cont", False)
DIST = int(CFG.get("dist", 3))
def dma_k(p, soff):
    if CONT: return f"buffer_load_dwordx4 {vr(vDK)}, {sr(sK,4)}, {sr(sDT)} offen nt lds"
    return f"buffer_load_dwordx4 {vr(vDK+p)}, {sr(sK,4)}, {soff} offen offset:{1024*p} nt lds"
def dma_v(p, soff):
    if CONT: return f"buffer_load_dwordx4 {vr(vDV)}, {sr(sV,4)}, {sr(sDT)} offen nt lds"
    return f"buffer_load_dwordx4 {vr(vDV + p%2)}, {sr(sV,4)}, {soff} offen offset:{1024*p} nt lds"
def cont_pre(base, p, soff): return [f"s_add_u32 m0, {sr(sW1K)}, {base + p*4096}", f"s_add_u32 {sr(sDT)}, {soff}, {p*4096}"]
def m0_at(addr): return f"s_add_u32 m0, {sr(sW4K)}, {addr}"
def kv_batch(which, tile):
    out = [m0_at((LK if which == "K" else LV) + (tile % 4) * 16384), f"s_add_u32 {sr(sT)}, {sr(sROT)}, {tile*16384}", f"s_and_b32 {sr(sT)}, {sr(sT)}, 0x3ffff"]
    for p in range(4):
        if CONT: out += cont_pre((LK if which == "K" else LV) + (tile % 4) * 16384, p, sr(sT))
        out.append(dma_k(p, sr(sT)) if which == "K" else dma_v(p, sr(sT)))
    return tag(out, f"{which}{tile}")

def rd_k(slot, n):
    kb, s = n // 4, n % 4
    return f"ds_read_b128 {ar(Freg(n),4)}, {vr(vKA+s)} offset:{slot*16384 + kb*4096} ; #k{n}"
def rd_v(slot, n, t):
    dt, ks = n // 2, n % 2
    return f"ds_read_b64_tr_b16 {ar(Freg(n)+2*t,2)}, {vr(vVA+dt)} offset:{slot*16384 + (32*ks+16*t)*256} ; #v{n}"

def qk_one(p, kb, qb, s, first, czero=False):
    d = Sreg(p, kb, qb)
    c = vr(d, 4) if not first else ("0" if czero else vr(vNEG + 4*qb, 4))
    return f"{MF} {vr(d,4)}, {ar(Freg(kb*4+s),4)}, {vr(Qreg(qb,s),4)}, {c}"
def qk_list(p):
    return [qk_one(p, kb, qb, (i if qb % 2 == 0 else 3 - i), i == 0) for kb in range(4) for qb in range(4) for i in range(4)]
def pv_one(p, dt, qb, ks):
    o = Oreg(qb, dt)
    return f"{MF} {ar(o,4)}, {ar(Freg(dt*2+ks),4)}, {vr(Ureg(p,ks,qb),4)}, {ar(o,4)}"
def sum_one(p, qb, ks):
    return f"{MF} {vr(vL+4*qb,4)}, {vr(vONES,4)}, {vr(Ureg(p,ks,qb),4)}, {vr(vL+4*qb,4)}"
def pv_list(p):
    return ([pv_one(p, dt, qb, (i if qb % 2 == 0 else 1 - i)) for dt in range(8) for qb in range(4) for i in range(2)]
            + [sum_one(p, qb, ks) for qb in range(4) for ks in range(2)])

UNITS = [(0, 0), (1, 0), (1, 1), (0, 1), (0, 2), (1, 2), (1, 3), (0, 3)]
def ereg(p, e): ks, qb = UNITS[e // 8]; return Ureg(p, ks, qb) + e % 8
def exp_i(p, e): r = ereg(p, e); return f"v_exp_f32 {vr(r)}, {vr(r)}"
def cvt_i(p, k):
    r = ereg(p, 2 * k); return f"v_cvt_pk_bf16_f32 {vr(r - (2*k) % 8 + k % 4)}, {vr(r)}, {vr(r+1)}"
def max_items(p):
    out = []
    for kb in range(4):
        for qb in range(4):
            r = Sreg(p, kb, qb); m = vr(vMX + qb % 2); done = 16 * kb + 4 * qb + 3
            if kb == 0 and qb < 2:
                out.append((f"v_max3_f32 {m}, {vr(r)}, {vr(r+1)}, {vr(r+2)}", done))
                out.append((f"v_max_f32 {m}, {vr(r+3)}, {m}", done))
            else:
                out.append((f"v_max3_f32 {m}, {vr(r)}, {vr(r+1)}, {m}", done))
                out.append((f"v_max3_f32 {m}, {vr(r+2)}, {vr(r+3)}, {m}", done))
    return out

NG = 136
HOOKA = 69
BARG = 118
LAT = 8
def make_plan():
    plan = {g: [] for g in range(NG)}
    T0 = HOOKA
    dsp = int(CFG.get("dsp", 14))
    dv0 = int(CFG.get("dv0", 72))
    dma_g = [4 + dsp * i for i in range(4)] + [dv0 + dsp * i for i in range(4)]
    dma_t = [g + NG if g < HOOKA else g for g in dma_g]
    NX2 = int(CFG.get('nx2', 40))
    r2 = [t for t in range(T0, NG) if t != BARG and t not in dma_t]
    r1 = [t for t in range(NG, NG + 64) if t not in dma_t]
    xt = [r2[i * len(r2) // NX2] for i in range(NX2)] + [r1[i * len(r1) // (64 - NX2)] for i in range(64 - NX2)]
    assert len(set(xt)) == 64
    for e, t in enumerate(xt): plan[t % NG].append(("exp", e, t >= NG))
    for i, t in enumerate(dma_t): plan[t % NG].append(("dma", i))
    Y = []
    for k in range(32):
        Y.append((xt[2*k+1] + 1, NG + 64 + k // 4 - 2, ("cvt", k)))
    for i, (_, done) in enumerate(max_items(0)):
        Y.append((NG + done + 3, NG + HOOKA - 3, ("max", i)))
    Y.append((NG + 66, NG + HOOKA - 2, ("max", 32))); Y.append((NG + 66, NG + HOOKA - 1, ("max", 33)))
    for n in range(16):
        Y.append((max(BARG + 1, 64 + 8 * (n // 2) + 7), NG + 16 * (n // 4) - LAT, ("k", n)))
    NV1 = int(CFG.get("nv1", 10))
    for n in range(16):
        e, d = 16 * (n // 4) + 15, min(64 + 8 * (n // 2) - LAT, BARG - 10)
        for t in range(2):
            if n < NV1: Y.append((NG + e, NG + min(d, HOOKA - 1), ("v", n, t)))
            else: Y.append((T0, d, ("v", n, t)))
    def kind(y): return y[2][0] + ("1" if y[2][0] == "v" and y[0] >= NG else "")
    ygaps = [t for t in range(T0, T0 + NG) if not plan[t % NG] and t % NG != BARG]
    pend = list(Y)
    for t in ygaps:
        g = t % NG
        picked = []
        for _ in range(2):
            heads = {}
            for y in pend: heads.setdefault(kind(y), y)
            c = [y for y in heads.values() if y[0] <= t]
            if not c: break
            def eff(y):
                same = [z for z in pend if kind(z) == kind(y)]
                return min(z[1] - i / 1.2 for i, z in enumerate(same))
            y = min(c, key=eff)
            assert t <= y[1], ("deadline miss", t, y)
            picked.append(y); pend.remove(y)
        picked.sort(key=lambda y: 0 if y[2][0] in ("k", "v") else 1)
        for y in picked: plan[g].append(y[2] + ((t >= NG,) if y[2][0] == "cvt" else ()))
    assert not pend, pend
    return plan
PLAN = make_plan()

def iteration(u, lab, extra=None, barwait=None, nextk=True):
    p = u % 2
    steady = extra is None
    if barwait is None: barwait = f"vm={8 * (DIST - 2)}"
    sc = {g: [] for g in range(NG)}
    for kb in range(4): sc[16 * kb - 1 if kb else NG - 2].append(f"@wait - lds=" + ",".join(f"k{kb*4+s}" for s in range(4)))
    for dt in range(8):
        if 64 + 8 * dt - 1 < BARG - 1: sc[64 + 8 * dt - 1].append(f"@wait - lds=v{2*dt},v{2*dt+1}")
    sc[BARG - 1].append(f"@wait {barwait} lgkm=0" if not barwait.startswith("vm=") else f"@wait - {barwait} lgkm=0")
    sc[BARG].append("s_barrier")
    if CFG.get("itst"):
        sc[BARG - 2].append("s_memrealtime s[98:99]")
        sc[BARG] += ["s_mov_b64 exec, s[96:97]", f"v_mov_b32 v{STV}, s98", "s_mov_b64 exec, -1", "s_lshl_b64 s[96:97], s[96:97], 1"]
    sc[HOOKA] += [f"s_cbranch_vccnz {lab}a", f"{lab}a_back:"]
    sc[NG - 1] = [f"s_cbranch_vccnz {lab}b", f"{lab}b_back:"] + sc[NG - 1]
    if steady:
        extra = {}
        def free_sc(g):
            while sc[g] or g in (40, 41, 70): g -= 1
            return g
        if CONT:
            for i, g in enumerate(DMA_GAPS):
                pr = cont_pre(LK + ((u + DIST) % 4) * 16384, i, sr(sTK)) if i < 4 else cont_pre(LV + ((u + DIST - 1) % 4) * 16384, i - 4, sr(sTILE))
                g1 = free_sc(g); sc[g1].append(pr[1]); g2 = free_sc(g - 1); sc[g2].append(pr[0])
                assert i == 0 or min(g1, g2) > DMA_GAPS[i-1]
        else:
            sc[2].append(m0_at(LK + ((u + DIST) % 4) * 16384))
            sc[free_sc(DMA_GAPS[4] - 1)].append(m0_at(LV + ((u + DIST - 1) % 4) * 16384))
        sc[120].append(f"s_mov_b32 {sr(sTILE)}, {sr(sTK)}")
        sc[121].append(f"s_add_u32 {sr(sTK)}, {sr(sTK)}, 0x4000")
        sc[122].append(f"s_and_b32 {sr(sTK)}, {sr(sTK)}, 0x3ffff")
        if u == 1:
            extra[64] = [f"v_and_b32 {vr(vCW)}, 3, v0", f"v_lshlrev_b32 {vr(vCW)}, 6, {vr(vCW)}"]
            sc[40].append(f"s_cmp_eq_u32 {sr(sCNT)}, 2")
            sc[41].append(f"s_cselect_b32 {sr(sDB+2)}, 256, 0")
            extra[65] = [f"buffer_load_dword {vr(vCW)}, {vr(vCW)}, {sr(sDB,4)}, 0 offen sc1"]
        if u == 2:
            extra[65] = [f"buffer_atomic_add {vr(vONES)}, {vr(vLIN)}, {sr(sDBW,4)}, 0 offen sc1"]
            sc[70].append(f"s_mov_b32 {sr(sDBW+2)}, 0")
    mf = qk_list(1 - p) + pv_list(p)
    MX = [t for t, _ in max_items(1 - p)] + [f"v_max_f32 {vr(vMX)}, {vr(vMX)}, {vr(vMX+1)}", f"v_cmp_lt_f32 vcc, {sr(sTHR)}, {vr(vMX)}"]
    out = []
    for g in range(NG):
        out.append(mf[g])
        out += sc[g]
        ex = extra.get(g, [])
        out += [x for x in ex if not x.startswith("v_")]
        for it in PLAN[g]:
            k = it[0]
            if k == "exp": out.append(exp_i(p if it[2] else 1 - p, it[1]))
            elif k == "cvt": out.append(cvt_i(p if it[2] else 1 - p, it[1]))
            elif k == "max": out.append(MX[it[1]])
            elif k == "k":
                if g > BARG and not nextk: continue
                out.append(rd_k((u + (2 if g > BARG else 1)) % 4, it[1]))
            elif k == "v": out.append(rd_v(u % 4, it[1], it[2]))
            elif k == "dma" and steady:
                out.append(dma_k(it[1], sr(sTK)) if it[1] < 4 else dma_v(it[1] - 4, sr(sTILE)))
        out += [x for x in ex if x.startswith("v_")]
    return out
EARLY_K = [it[1] for g in range(BARG + 1, NG) for it in PLAN[g] if it[0] == "k"]
E_FIRST = [it for g in range(HOOKA, NG) for it in PLAN[g] if it[0] in ("exp", "cvt")]
E_REST = [it for g in range(0, HOOKA) for it in PLAN[g] if it[0] in ("exp", "cvt")]
DMA_GAPS = [g for g in range(NG) if any(it[0] == "dma" for it in PLAN[g])]
LIGHT = sorted(range(NG), key=lambda g: (sum(2 if it[0] in ("exp",) else (0 if it[0] == "dma" else 1) for it in PLAN[g])))

def spread(items, gaps):
    d = {}
    for i, it in enumerate(items):
        d.setdefault(gaps[i * len(gaps) // len(items)], []).extend(it)
    return d
def place(groups, lo, hi):
    cand = [g for g in LIGHT if lo <= g < hi and g not in (BARG, BARG - 1, HOOKA, NG - 1)]
    gs = sorted(cand[:len(groups)])
    assert len(gs) == len(groups)
    return {g: list(x) for g, x in zip(gs, groups)}
def merge(*maps):
    d = {}
    for m in maps:
        for k, v in m.items(): d.setdefault(k, []).extend(v)
    return d
def flat(G): return [x for g in G for x in g]
def groups_of(lst):
    G = []; cur = []
    for x in lst:
        cur.append(x)
        if x.startswith("buffer_"): G.append(cur); cur = []
    if cur: G[-1] += cur
    return G

WCLASS = {}
def plan_wo():
    P = {}; c = 0
    def add(name, kind, base, n):
        nonlocal c
        P[name] = list(range(c, c + n))
        for i in range(n): WCLASS[c] = (kind, base + 16 * i); c += 1
    add("R1", "r", 256 + 192, 4); add("R2", "r", vQ, 4); add("R3", "r", vS, 4)
    for nm, addr in (("W0", LW), ("W1", LW + 16384), ("K0", LK), ("K1", LK + 16384), ("V0", LV), ("K2", LK + 32768),
                     ("V1", LV + 16384), ("K3", LK + 49152), ("V2", LV + 32768)):
        add(nm, "l", addr, 1)
    add("R4a", "r", vNEG, 1); add("R6a", "r", 256, 2); add("R6b", "r", 256 + 32, 2); add("R4b", "r", vL, 1); add("V3", "l", LV + 49152, 1)
    ns = int(CFG.get("nstream", 0))
    add("R5", "r", 256 + aF, 4 - ns); add("ST", "s", 0, ns)
    assert c == 32
    return P
WP = plan_wo()
def step_off(c):
    if CFG.get("rc", "0x") != "n": return [f"s_mov_b32 {sr(sSP)}, {c * 4096}"]
    return [f"s_add_u32 {sr(sSP)}, {sr(sRC)}, {c * 4096}", f"s_and_b32 {sr(sSP)}, {sr(sSP)}, 0x1ffff"]
def wo_loads(name):
    groups = []
    if name in CFG.get("skipw", "").split(","): return [["s_nop 0"]] * 4
    for c in WP[name]:
        kind, where = WCLASS[c]
        for n in range(4):
            g = []
            if n == 0:
                if kind == "l": g.append(m0_at(where))
                g += step_off(c)
            if kind == "r":
                g.append(f"buffer_load_dwordx4 {rr(where + 4*n, 4)}, {vr(vLIN)}, {sr(sWFL,4)}, {sr(sSP)} offen offset:{n*1024} sc1 ; #w{c}")
            else:
                g.append(f"buffer_load_dwordx4 {vr(vLIN)}, {sr(sWFL,4)}, {sr(sSP)} offen offset:{n*1024} sc1 lds ; #w{c}")
            groups.append(g)
    return groups

def weave(mf, nvmap, va=(), pre=None, need=None):
    out = []; va = list(va)
    for g, m in enumerate(mf):
        if need and g in need:
            last = max([i for i, x in enumerate(va) if x[2] == need[g]], default=-1)
            if last >= 0:
                if va[last][1] > g - 1: out.append("s_nop 7")
                out += [x[0] for x in va[:last + 1]] + ["s_nop 1"]; va = va[last + 1:]
        if pre and g in pre: out += pre[g]
        out.append(m)
        nv = nvmap.get(g, [])
        out += nv
        c = sum(slots(x) for x in nv)
        while va and va[0][1] <= g and c + slots(va[0][0]) <= 2:
            c += slots(va[0][0]); out.append(va.pop(0)[0])
    return out, va

def allreduce(op, a, b):
    return [f"v_mov_b32 {vr(b)}, {vr(a)}", "s_nop 1", f"v_permlane32_swap_b32 {vr(a)}, {vr(b)}", "s_nop 1", f"{op} {vr(a)}, {vr(a)}, {vr(b)}",
            f"v_mov_b32 {vr(b)}, {vr(a)}", "s_nop 1", f"v_permlane16_swap_b32 {vr(a)}, {vr(b)}", "s_nop 1", f"{op} {vr(a)}, {vr(a)}, {vr(b)}"]
def qmax(p, qb, d):
    regs = [Sreg(p, kb, qb) + j for kb in range(4) for j in range(4)]
    o = [f"v_max3_f32 {vr(d)}, {vr(regs[0])}, {vr(regs[1])}, {vr(regs[2])}"]
    for i in range(3, 15, 2): o.append(f"v_max3_f32 {vr(d)}, {vr(regs[i])}, {vr(regs[i+1])}, {vr(d)}")
    o.append(f"v_max_f32 {vr(d)}, {vr(regs[15])}, {vr(d)}")
    return o
def rare_a(p, label):
    out = [f"{label}:", "s_nop 7"]
    for qb in range(4):
        d = vT + qb
        out += qmax(p, qb, d) + allreduce("v_max_f32", d, vMX)
        out.append(f"v_max_f32 {vr(d)}, 0, {vr(d)}")
        for j in range(4): out.append(f"v_sub_f32 {vr(vNEG+4*qb+j)}, {vr(vNEG+4*qb+j)}, {vr(d)}")
        for kb in range(4):
            for j in range(4):
                r = Sreg(p, kb, qb) + j
                out.append(f"v_sub_f32 {vr(r)}, {vr(r)}, {vr(d)}")
        out.append(f"v_exp_f32 {vr(d)}, -{vr(d)}")
    out += ["s_nop 3", f"s_setpc_b64 {sr(sRET,2)}"]
    return out
def rare_b(label):
    out = [f"{label}:", "s_nop 15"]
    for qb in range(4):
        f_ = vT + qb
        for j in range(4): out.append(f"v_mul_f32 {vr(vL+4*qb+j)}, {vr(vL+4*qb+j)}, {vr(f_)}")
        for j in range(0, 32, 2):
            a0 = Oreg(qb, 0) + j
            out += [f"v_accvgpr_read_b32 {vr(vMX)}, {ar(a0)}", f"v_accvgpr_read_b32 {vr(vMX+1)}, {ar(a0+1)}",
                    f"v_mul_f32 {vr(vMX)}, {vr(vMX)}, {vr(f_)}", f"v_mul_f32 {vr(vMX+1)}, {vr(vMX+1)}, {vr(f_)}",
                    f"v_accvgpr_write_b32 {ar(a0)}, {vr(vMX)}", f"v_accvgpr_write_b32 {ar(a0+1)}, {vr(vMX+1)}"]
    out += ["s_nop 3", f"s_setpc_b64 {sr(sRET,2)}"]
    return out

def wfrag(st, s, dt): return (128 if st % 2 == 0 else 192) + 4 * (dt * 2 + s)
def xfrag(st, s, qb): return (96 if st % 2 == 0 else 32) + 4 * (qb * 2 + s)
def qacc(qb, dt): return Ureg(dt // 4, (dt // 2) % 2, qb) + 4 * (dt % 2)
def qp_reads(st):
    out = []
    for qb in range(4):
        for s in range(2):
            out.append(f"ds_read_b128 {vr(xfrag(st,s,qb),4)}, {vr(vXA + 2*(st%2) + s)} offset:{qb*2048} ; #x{st}")
    for dt in range(8):
        for s in range(2):
            for t in range(2):
                out.append(f"ds_read_b64_tr_b16 {ar(wfrag(st,s,dt)+2*t,2)}, {vr(vWA + dt)} offset:{(st%3)*16384 + (32*s+4*t)*256} ; #w{st}")
    return out
def qp_dma(st):
    G = []
    wf = (" " + CFG["wqld"]) if CFG.get("wqld") else ""
    xf = (" " + CFG["xld"]) if CFG.get("xld") else ""
    for p in range(4):
        g = []
        if p == 0:
            g = [f"s_add_u32 {sr(sRX)}, {sr(sRQ)}, {st}", f"s_and_b32 {sr(sRX)}, {sr(sRX)}, 7", f"s_lshl_b32 {sr(sRW)}, {sr(sRX)}, 19",
                 f"s_lshl_b32 {sr(sRX)}, {sr(sRX)}, 7", m0_at(LWQ[st % 3])]
        g.append(f"s_add_u32 {sr(sDT)}, {sr(sRW)}, {p*(32768-1024)}")
        g.append(f"buffer_load_dwordx4 {vr(vDW + p//2)}, {sr(sWQ,4)}, {sr(sDT)} offen offset:{1024*p}{wf} lds ; #st{st}")
        G.append(g)
    for p in range(8):
        g = [f"s_add_u32 m0, {sr(sW8K)}, {LX[st%2] + (p//4)*4096}"] if p % 4 == 0 else []
        g.append(f"s_add_u32 {sr(sDT)}, {sr(sRX)}, {p*8192 - 1024*(p%4)}")
        g.append(f"buffer_load_dwordx4 {vr(vDX + p%2)}, {sr(sX,4)}, {sr(sDT)} offen offset:{1024*(p%4)}{xf} lds ; #st{st}")
        G.append(g)
    return G
def qp_one(st, dt, qb, s, first):
    d = qacc(qb, dt)
    return f"{MF} {vr(d,4)}, {ar(wfrag(st,s,dt),4)}, {vr(xfrag(st,s,qb),4)}, {'0' if first else vr(d, 4)}"
def qp_mfmas(st):
    return [qp_one(st, dt, qb, (i if qb % 2 == 0 else 1 - i), st == 0 and i == 0) for dt in range(8) for qb in range(4) for i in range(2)]
def qp_q(st, qb):
    return [qp_one(st, dt, qb, (i if dt % 2 == 0 else 1 - i), False) for dt in range(8) for i in range(2)]
def qconv(qb, s):
    d = qacc(qb, 2 * s); q = Qreg(qb, s)
    out = [f"v_mul_f32 {vr(d+j)}, {sr(sSC)}, {vr(d+j)}" for j in range(8)]
    out += [f"v_cvt_pk_bf16_f32 {vr(q+j)}, {vr(d+2*j)}, {vr(d+2*j+1)}" for j in (0, 2, 1, 3)]
    return out, [f"v_permlane32_swap_b32 {vr(q)}, {vr(q+2)}", f"v_permlane32_swap_b32 {vr(q+1)}, {vr(q+3)}"], \
                [f"v_permlane16_swap_b32 {vr(q)}, {vr(q+2)}", f"v_permlane16_swap_b32 {vr(q+1)}, {vr(q+3)}"]
def qconv_stream(qb):
    parts = [qconv(qb, s) for s in range(4)]
    out = []
    for s in range(4):
        a = parts[s][0]
        if s == 0: out += [(x, s) for x in a]
        else: out += [(x, s) for x in a[:4]] + [(x, s) for x in parts[s-1][1]] + [(x, s) for x in a[4:8]] + [(x, s) for x in parts[s-1][2]] + [(x, s) for x in a[8:]]
    out += [("s_nop 1", 3)] + [(x, 3) for x in parts[3][1]] + [("s_nop 1", 3)] + [(x, 3) for x in parts[3][2]]
    return out

def setup_a():
    o = []; A = o.append
    A("s_cmp_ge_u32 s2, 256")
    A("s_cbranch_scc1 L_end")
    if CFG.get("fixdur"): A("s_memrealtime s[96:97]")
    A(f"s_load_dwordx16 {sr(sARG,16)}, s[0:1], 0")
    if CFG["codepf"]:
        A(f"s_getpc_b64 {sr(sT,2)}")
        A("L_pc:")
        A(f"s_bfe_u32 {sr(sT+2)}, s2, 0x30003")
        A(f"v_lshrrev_b32 {vr(u0)}, 6, v0"); A(f"v_and_b32 {vr(u1)}, 15, v0"); A(f"v_lshl_add_u32 {vr(u0)}, {vr(u0)}, 4, {vr(u1)}")
        A(f"v_lshlrev_b32 {vr(u0)}, 10, {vr(u0)}"); A(f"s_lshl_b32 {sr(sT+2)}, {sr(sT+2)}, 7"); A(f"v_add_u32 {vr(u0)}, {sr(sT+2)}, {vr(u0)}")
        A(f"v_min_u32 {vr(u0)}, L_end-L_pc, {vr(u0)}")
        A(f"global_load_dword {vr(vDUM[0])}, {vr(u0)}, {sr(sT,2)} ; #pf")
    A(f"s_and_b32 {sr(sCB)}, s2, 7")
    A(f"s_lshr_b32 {sr(sT+3)}, s2, 3")
    A(f"s_and_b32 {sr(sMT)}, {sr(sT+3)}, 3"); A(f"s_lshr_b32 {sr(sNT)}, {sr(sT+3)}, 2")
    if CFG.get("pmap", "4x8") == "4x8":
        A(f"s_and_b32 {sr(sB)}, {sr(sCB)}, 1"); A(f"s_lshl_b32 {sr(sB)}, {sr(sB)}, 2"); A(f"s_add_u32 {sr(sB)}, {sr(sB)}, {sr(sMT)}")
        A(f"s_lshr_b32 {sr(sH)}, {sr(sCB)}, 1"); A(f"s_lshl_b32 {sr(sH)}, {sr(sH)}, 3"); A(f"s_add_u32 {sr(sH)}, {sr(sH)}, {sr(sNT)}")
    else:
        A(f"s_mov_b32 {sr(sB)}, {sr(sCB)}"); A(f"s_mov_b32 {sr(sH)}, {sr(sT+3)}")
    rq = CFG.get("rq", "x")
    if rq == "n": A(f"s_mov_b32 {sr(sRQ)}, 0")
    elif rq == "x": A(f"s_mov_b32 {sr(sRQ)}, {sr(sCB)}")
    elif rq == "h": A(f"s_mov_b32 {sr(sRQ)}, {sr(sH)}")
    elif rq == "f": A(f"s_lshl_b32 {sr(sRQ)}, {sr(sB)}, 1"); A(f"s_add_u32 {sr(sRQ)}, {sr(sRQ)}, {sr(sH)}")
    elif rq == "g": A(f"s_add_u32 {sr(sRQ)}, {sr(sB)}, {sr(sH)}")
    A(f"v_lshrrev_b32 {vr(u0)}, 6, v0")
    A(f"v_and_b32 {vr(ln)}, 63, v0")
    A(f"v_readfirstlane_b32 {sr(sWAVE)}, {vr(u0)}")
    A(f"v_lshrrev_b32 {vr(u1)}, 4, {vr(ln)}")
    A(f"v_and_b32 {vr(u2)}, 15, {vr(ln)}")
    A(f"v_lshl_add_u32 {vr(u4)}, {vr(u0)}, 4, {vr(u1)}")
    A(f"v_lshlrev_b32 {vr(u3)}, 1, {vr(u1)}")
    A(f"v_xor_b32 {vr(u3)}, {vr(u3)}, {vr(u2)}")
    A(f"v_lshlrev_b32 {vr(u5)}, 4, {vr(u3)}")
    A(f"v_lshl_add_u32 {vr(vDW)}, {vr(u4)}, 13, {vr(u5)}")
    A(f"v_xor_b32 {vr(vDW+1)}, 0x80, {vr(vDW)}")
    A(f"v_lshrrev_b32 {vr(u3)}, 3, {vr(ln)}")
    A(f"v_lshl_add_u32 {vr(u0)}, {vr(u0)}, 6, {vr(u3)}")
    A(f"v_and_b32 {vr(u3)}, 7, {vr(ln)}")
    A(f"v_xor_b32 {vr(u3)}, {vr(u1)}, {vr(u3)}")
    A(f"v_lshlrev_b32 {vr(u3)}, 4, {vr(u3)}")
    A(f"v_lshl_add_u32 {vr(vDX)}, {vr(u0)}, 10, {vr(u3)}")
    A(f"v_xor_b32 {vr(vDX+1)}, 64, {vr(vDX)}")
    A(f"s_lshl_b32 {sr(sW4K)}, {sr(sWAVE)}, 12")
    A(f"s_lshl_b32 {sr(sW8K)}, {sr(sWAVE)}, 13")
    A(f"s_lshl_b32 {sr(sT)}, {sr(sB)}, 18")
    A(f"s_lshl_b32 {sr(sT+1)}, {sr(sH)}, 8")
    A("s_waitcnt lgkmcnt(0)")
    o += stamp()
    o += srd_at(sWQ, 6, sr(sT+1), 511*8192 + 256)
    o += srd_at(sX, 0, sr(sT), 0x40000)
    return o

def wo_piece_addr():
    return [f"v_lshrrev_b32 {vr(u0)}, 5, v0", f"v_and_b32 {vr(u1)}, 0x1e, {vr(u0)}", f"v_and_b32 {vr(u0)}, 1, {vr(u0)}",
            f"v_lshl_add_u32 {vr(u0)}, {vr(u1)}, 2, {vr(u0)}",
            f"v_and_b32 {vr(u1)}, 31, v0", f"v_lshlrev_b32 {vr(u1)}, 4, {vr(u1)}", f"v_lshl_add_u32 {vr(vWOF)}, {vr(u0)}, 10, {vr(u1)}"]
def wo_piece_dma():
    o = [m0_at(LWO)]
    for p in range(4):
        o.append(f"s_mov_b32 {sr(sDT)}, {1024*p}")
        o.append(f"buffer_load_dwordx4 {vr(vWOF)}, {sr(sWO2,4)}, {sr(sDT)} offen offset:{1024*p} nt lds ; #wo")
    return o

def warm_loads(nst):
    o = []; A = o.append
    A(f"v_lshrrev_b32 {vr(u3)}, 6, v0"); A(f"v_and_b32 {vr(u2)}, 15, v0"); A(f"v_lshl_add_u32 {vr(u3)}, {vr(u3)}, 4, {vr(u2)}")
    A(f"v_and_b32 {vr(u1)}, {nst - 1}, {vr(u3)}"); A(f"v_add_u32 {vr(u1)}, {sr(sRQ)}, {vr(u1)}"); A(f"v_add_u32 {vr(u1)}, 1, {vr(u1)}")
    A(f"v_and_b32 {vr(u1)}, 7, {vr(u1)}")
    A(f"v_lshrrev_b32 {vr(u2)}, 1, {vr(u3)}")
    A(f"v_lshlrev_b32 {vr(u0)}, 7, {vr(u1)}"); A(f"v_lshl_add_u32 {vr(u0)}, {vr(u2)}, 10, {vr(u0)}")
    A(f"s_and_b32 {sr(sT)}, {sr(sH)}, 7"); A(f"s_lshl_b32 {sr(sT)}, {sr(sT)}, 15")
    A(f"buffer_load_dword {vr(vDUM[1])}, {vr(u0)}, {sr(sX,4)}, {sr(sT)} offen ; #warm")
    A(f"v_lshlrev_b32 {vr(u0)}, 19, {vr(u1)}")
    A(f"v_lshrrev_b32 {vr(u3)}, 1, {vr(u2)}"); A(f"v_lshl_add_u32 {vr(u0)}, {vr(u3)}, 13, {vr(u0)}")
    A(f"v_and_b32 {vr(u3)}, 1, {vr(u2)}"); A(f"v_lshl_add_u32 {vr(u0)}, {vr(u3)}, 7, {vr(u0)}")
    A(f"s_and_b32 {sr(sT)}, {sr(sB)}, 3"); A(f"s_lshl_b32 {sr(sT)}, {sr(sT)}, 17")
    A(f"buffer_load_dword {vr(vDUM[2])}, {vr(u0)}, {sr(sWQ,4)}, {sr(sT)} offen ; #warm")
    return o

def setup_b():
    o = []; A = o.append
    A(f"s_lshl_b32 {sr(sT+2)}, {sr(sB)}, 5"); A(f"s_add_u32 {sr(sT+2)}, {sr(sT+2)}, {sr(sH)}")
    A(f"s_lshl_b32 {sr(sT)}, {sr(sT+2)}, 18")
    o += srd_at(sK, 2, sr(sT), 0x40000)
    o += srd_at(sV, 4, sr(sT), 0x40000)
    A(f"s_lshl_b32 {sr(sT+1)}, {sr(sT+2)}, 7"); A(f"s_add_u32 {sr(sT+1)}, {sr(sT+1)}, {FLAG_OFF}")
    o += srd_at(sFL, 14, sr(sT+1), 8)
    A(f"s_getreg_b32 {sr(sXCC)}, hwreg(HW_REG_XCC_ID, 0, 4)")
    o += srd_at(sDB, 12, "0", 256)
    A(f"s_and_b32 {sr(sT+1)}, {sr(sT+2)}, 3"); A(f"s_lshl_b32 {sr(sT+1)}, {sr(sT+1)}, 6")
    o += srd_at(sDBW, 12, sr(sT+1), 4)
    A(f"s_lshr_b32 {sr(sT)}, {sr(sT+2)}, 1"); A(f"s_and_b32 {sr(sT+2)}, {sr(sT+2)}, 1")
    A(f"s_lshl_b32 {sr(sT+1)}, {sr(sT)}, 15"); A(f"s_lshl_b32 {sr(sT+3)}, {sr(sT+2)}, 9"); A(f"s_add_u32 {sr(sT+1)}, {sr(sT+1)}, {sr(sT+3)}")
    o += srd_at(sWO2, 8, sr(sT+1), 31*1024 + 512)
    A(f"s_lshl_b32 {sr(sT+2)}, {sr(sT+2)}, 2"); A(f"s_add_u32 {sr(sT+2)}, {sr(sT+2)}, {sr(sWAVE)}"); A(f"s_lshl_b32 {sr(sT+2)}, {sr(sT+2)}, 19")
    A(f"s_lshl_b32 {sr(sT)}, {sr(sT)}, 12"); A(f"s_add_u32 {sr(sT)}, {sr(sT)}, {sr(sT+2)}"); A(f"s_add_u32 {sr(sT)}, {sr(sT)}, {WOF_OFF}")
    o += srd_at(sWS2, 14, sr(sT), 4096)
    A(f"s_lshl_b32 {sr(sT)}, {sr(sB)}, 2"); A(f"s_add_u32 {sr(sT)}, {sr(sT)}, {sr(sWAVE)}"); A(f"s_lshl_b32 {sr(sT)}, {sr(sT)}, 19")
    A(f"s_lshl_b32 {sr(sT+1)}, {sr(sH)}, 14"); A(f"s_add_u32 {sr(sT)}, {sr(sT)}, {sr(sT+1)}")
    o += srd_at(sO, 14, sr(sT), 16384)
    if CFG.get("fewst"):
        A(f"s_cmp_eq_u32 {sr(sMT)}, 0"); A(f"s_cselect_b32 {sr(sO+2)}, {sr(sO+2)}, 0")
    rot = CFG.get("rot", "j")
    if rot == "j": A(f"s_lshr_b32 {sr(sROT)}, s2, 3"); A(f"s_add_u32 {sr(sROT)}, {sr(sROT)}, s2"); A(f"s_and_b32 {sr(sROT)}, {sr(sROT)}, 15"); A(f"s_lshl_b32 {sr(sROT)}, {sr(sROT)}, 14")
    else: A(f"s_mov_b32 {sr(sROT)}, 0")
    if CFG.get("itst"): A("s_mov_b32 s96, 0"); A("s_mov_b32 s97, 0x100")
    A(f"s_mov_b32 {sr(sTHR)}, 0x41000000")
    c = math.log2(math.e) / math.sqrt(128.0)
    A(f"s_mov_b32 {sr(sSC)}, 0x{struct.unpack('<I', struct.pack('<f', c))[0]:08x}")
    A(f"v_lshl_add_u32 {vr(vDV)}, {vr(u4)}, 8, {vr(u5)}")
    A(f"v_xor_b32 {vr(vDV+1)}, 0x80, {vr(vDV)}")
    g_, c16 = u1, u2
    A(f"v_lshrrev_b32 {vr(g_)}, 4, {vr(ln)}")
    A(f"v_and_b32 {vr(c16)}, 15, {vr(ln)}")
    A(f"v_xor_b32 {vr(u3)}, {vr(g_)}, {vr(c16)}")
    A(f"v_lshlrev_b32 {vr(u3)}, 4, {vr(u3)}")
    A(f"v_lshl_add_u32 {vr(vDK)}, {vr(u4)}, 8, {vr(u3)}")
    for p in range(1, 4): A(f"v_xor_b32 {vr(vDK+p)}, {64*p}, {vr(vDK)}")
    if CONT:
        A(f"s_lshl_b32 {sr(sW1K)}, {sr(sWAVE)}, 10")
        A(f"v_lshrrev_b32 {vr(vDK+1)}, 4, v0")
        A(f"v_xor_b32 {vr(vDK+2)}, {vr(vDK+1)}, {vr(c16)}"); A(f"v_lshlrev_b32 {vr(vDK+2)}, 4, {vr(vDK+2)}")
        A(f"v_lshl_add_u32 {vr(vDK)}, {vr(vDK+1)}, 8, {vr(vDK+2)}")
        A(f"v_and_b32 {vr(vDK+2)}, 7, {vr(vDK+1)}"); A(f"v_lshlrev_b32 {vr(vDK+2)}, 1, {vr(vDK+2)}")
        A(f"v_xor_b32 {vr(vDK+2)}, {vr(vDK+2)}, {vr(c16)}"); A(f"v_lshlrev_b32 {vr(vDK+2)}, 4, {vr(vDK+2)}")
        A(f"v_lshl_add_u32 {vr(vDV)}, {vr(vDK+1)}, 8, {vr(vDK+2)}")
    A(f"v_lshl_add_u32 {vr(vKA)}, {vr(c16)}, 8, {vr(u3)}")
    for s in range(1, 4): A(f"v_xor_b32 {vr(vKA+s)}, {64*s}, {vr(vKA)}")
    A(f"v_lshrrev_b32 {vr(u3)}, 1, {vr(c16)}")
    A(f"v_xor_b32 {vr(u3)}, {vr(g_)}, {vr(u3)}")
    A(f"v_lshlrev_b32 {vr(u3)}, 4, {vr(u3)}")
    A(f"v_lshl_add_u32 {vr(u3)}, {vr(c16)}, 7, {vr(u3)}")
    A(f"v_add_u32 {vr(u3)}, {sr(sW8K)}, {vr(u3)}")
    for sl in range(2):
        A(f"v_add_u32 {vr(vXA+2*sl)}, {LX[sl]}, {vr(u3)}")
        A(f"v_xor_b32 {vr(vXA+2*sl+1)}, 64, {vr(vXA+2*sl)}")
    A(f"v_cmp_eq_u32 vcc, 0, {vr(c16)}")
    A(f"v_mov_b32 {vr(u3)}, 0x3f803f80")
    r_, f_, c8 = u0, u4, u5
    A(f"v_bfe_u32 {vr(r_)}, {vr(ln)}, 2, 2")
    for j in range(4): A(f"v_cndmask_b32 {vr(vONES+j)}, 0, {vr(u3)}, vcc")
    A(f"v_bfe_u32 {vr(f_)}, {vr(ln)}, 2, 3")
    A(f"v_and_b32 {vr(c8)}, 3, {vr(ln)}")
    A(f"v_lshlrev_b32 {vr(c8)}, 3, {vr(c8)}")
    A(f"v_lshrrev_b32 {vr(u3)}, 2, {vr(ln)}")
    A(f"v_lshl_add_u32 {vr(vWOA)}, {vr(u3)}, 9, {vr(c8)}")
    A(f"s_lshl_b32 {sr(sT)}, {sr(sWAVE)}, 7"); A(f"s_add_u32 {sr(sT)}, {sr(sT)}, {LWO}")
    A(f"v_add_u32 {vr(vWOA)}, {sr(sT)}, {vr(vWOA)}")
    A(f"v_lshl_add_u32 {vr(c8)}, {vr(f_)}, 5, {vr(c8)}")
    A(f"v_lshl_add_u32 {vr(u3)}, {vr(u3)}, 8, {vr(c8)}")
    A(f"v_add_u32 {vr(vVA)}, {LV}, {vr(u3)}")
    for dt in range(1, 8): A(f"v_xor_b32 {vr(vVA+dt)}, {32*dt}, {vr(vVA)}")
    A(f"v_lshl_add_u32 {vr(u3)}, {vr(g_)}, 3, {vr(r_)}")
    A(f"v_lshl_add_u32 {vr(u3)}, {vr(u3)}, 8, {vr(c8)}")
    A(f"v_add_u32 {vr(vWA)}, {LWQ[0]}, {vr(u3)}")
    for dt in range(1, 8): A(f"v_xor_b32 {vr(vWA+dt)}, {32*dt}, {vr(vWA)}")
    A(f"v_lshlrev_b32 {vr(vWOS)}, 4, {vr(ln)}")
    A(f"s_lshl_b32 {sr(sT)}, {sr(sWAVE)}, 17")
    A(f"v_add_u32 {vr(vLIN)}, {sr(sT)}, {vr(vWOS)}")
    A(f"v_mov_b32 {vr(vT)}, 0"); A(f"v_mov_b32 {vr(vT+1)}, {sr(sXCC)}")
    o += wo_piece_addr()
    return o

def wo_reads():
    return [f"ds_read_b64_tr_b16 {ar(192+4*i+2*tt,2)}, {vr(vWOA)} offset:{i*32 + tt*8192} ; #wo" for i in range(4) for tt in range(2)]
def wo_stores():
    return [[f"buffer_store_dwordx4 {ar(192+4*i,4)}, {vr(vWOS)}, {sr(sWS2,4)}, 0 offen offset:{i*1024} sc1 ; #wst"] for i in range(4)] + \
           []

def pairs(lst): return [lst[i:i+2] for i in range(0, len(lst), 2)]
def prologue():
    qs = stamp if CFG["qst"] else (lambda: [])
    o = setup_a()
    o += flat(qp_dma(0))
    nw = int(CFG.get("nwarm", 2))
    o += (warm_loads(nw) if nw else [])
    o += qs()
    o += setup_b()
    o += qs()
    o += ["@wait st0", "s_barrier"] + stamp()
    r0 = qp_reads(0); d1 = qp_dma(1)
    for i in range(12): o += d1[i] + r0[i * 40 // 12:(i + 1) * 40 // 12]
    kv = lambda *l: groups_of(sum([kv_batch(x[0], int(x[1:])) for x in l], []))
    bg = [int(x) for x in CFG.get("bg", "36,36,32,24,16,8,0").split(",")]
    step = float(CFG.get("qstep", 4.5))
    B = [64 * s + bg[s] for s in range(7)]
    mf = sum([qp_mfmas(st) for st in range(6)], [])
    for st, qb in ((6, 0), (6, 1), (7, 0), (7, 1), (6, 2), (6, 3), (7, 2), (7, 3)): mf += qp_q(st, qb)
    Q0 = len(mf)
    mf += [qk_one(0, kb, qb, (i if kb % 2 == 0 else 3 - i), i == 0, czero=True) for qb in range(4) for kb in range(4) for i in range(4)]
    nvm = {}; pre = {}; vm = {}
    def put_vm(g, grp):
        while g in vm or g in B: g += 1
        vm[g] = grp; return g
    pos = -step + 1
    ek = dict(x.split(":") for x in CFG.get("ek", "").split(",") if x)
    for k in range(2, 8):
        for i, grp in enumerate(qp_dma(k)):
            e = 0 if k == 2 else (B[k-3] + 1 if i < 4 else B[k-3] + 13)
            pos = max(pos + step, e)
            if i == 4: grp = [f"@wait - lds=x{k-2}"] + grp
            put_vm(int(pos), grp)
        if str(k) in ek:
            for grp in (groups_of(wo_piece_dma()) if ek[str(k)] == "wo" else kv(ek[str(k)])):
                pos += 2; put_vm(int(pos), grp)
    kstep = float(CFG.get("kstep", 9))
    BK, BQ = 384 + 94, Q0 + 56
    sched = [("K0", 0), ("wo", 0), ("K1", 0), ("V0", B[5] + 1), ("K2", B[6] + 1), ("V1", B[6] + 1)]
    sched = [(groups_of(wo_piece_dma()) if n == "wo" else kv(n), e) for n, e in sched if n not in ek.values()]
    for grps, e in sched:
        for grp in grps:
            pos = max(pos + kstep, e)
            put_vm(int(pos), grp)
    assert pos < Q0 + 64, pos
    if CFG["verbose"]: print("vm gaps:", sorted(vm))
    for s in range(7):
        pre.setdefault(B[s], []).append(f"@wait st{s+1}")
        nvm.setdefault(B[s], []).append("s_barrier")
        hi = 64 * (s + 1) - 7 if s < 6 else 384 + 26
        rg = [g for g in range(B[s] + 1, hi) if g not in vm]
        nvm = merge(nvm, spread(pairs(qp_reads(s + 1)), rg))
        pre.setdefault(64 * s, []).insert(0, f"@wait - lds=x{s},w{s}")
        if CFG["qst"]: pre[64 * s] = qs() + pre[64 * s]
    pre.setdefault(384 + 32, []).append("@wait - lds=x7,w7")
    nvm = merge(nvm, spread(pairs(wo_reads()), [g for g in range(Q0 + 1, Q0 + 12) if g not in vm]))
    pre.setdefault(BK, []).append("@wait K0,wo"); nvm.setdefault(BK, []).append("s_barrier")
    nvm = merge(nvm, spread(pairs([rd_k(0, n) for n in range(16)]), [g for g in range(384 + 96, 384 + 120) if g not in vm]))
    pre.setdefault(Q0, []).append("@wait - lgkm=0"); pre[Q0] = stamp() + pre[Q0]
    pre.setdefault(BQ, []).append("@wait K1,V0 lds=wo"); nvm.setdefault(BQ, []).append("s_barrier")
    nvm = merge(nvm, {Q0 + 57: [f"s_add_u32 {sr(sTILE)}, {sr(sROT)}, {(DIST-1)*16384}"], Q0 + 58: [f"s_and_b32 {sr(sTILE)}, {sr(sTILE)}, 0x3ffff"],
                      Q0 + 59: [f"s_add_u32 {sr(sTK)}, {sr(sROT)}, {DIST*16384}"], Q0 + 60: [f"s_and_b32 {sr(sTK)}, {sr(sTK)}, 0x3ffff"],
                      Q0 + 61: [f"s_mov_b32 {sr(sCNT)}, 0"]})
    for g in sorted(vm):
        grp = vm[g]; sca = grp[:-1]
        prevv = max([x for x in vm if x < g], default=-1)
        gg = g
        for x in reversed(sca):
            nvm.setdefault(gg, []).insert(0, x)
            if gg - 1 > prevv and gg > 0: gg -= 1
        nvm.setdefault(g, []).append(grp[-1])
    va = [(f"v_accvgpr_write_b32 {ar(r)}, 0", 0, "z") for r in range(128)]
    done = {0: 384 + 32, 1: 384 + 48, 2: 384 + 96, 3: 384 + 112}
    for qb in range(4):
        va += [(t, done[qb] + 4 * s + 3 + 3, f"q{qb}") for t, s in qconv_stream(qb)]
    va += [(f"v_mov_b32 {vr(vL+j)}, 0", Q0, "z") for j in range(16)]
    part, left = weave(mf, nvm, va, pre=pre, need={Q0 + 16 * q: f"q{q}" for q in range(4)})
    for k in range(1, 6):
        assert max(i for i, x in enumerate(part) if x.endswith(f"#x{k}")) < part.index(f"@wait - lds=x{k}"), k
    o += part
    o += qs()
    o += [rd_k(1, n) for n in EARLY_K]
    o.append(f"buffer_store_dwordx2 {vr(vT,2)}, {vr(vLIN)}, {sr(sFL,4)}, 0 offen sc1 ; #wst")
    if CFG["verbose"]: print("QK0 leftover VALU:", len(left))
    o += [t for t, _, _ in left]
    o.append("s_nop 7")
    ini = []
    for qb in range(4): ini += qmax(0, qb, vT + qb)
    for sw in ("v_permlane32_swap_b32", "v_permlane16_swap_b32"):
        ini += [f"v_mov_b32 {vr(vNEG+qb)}, {vr(vT+qb)}" for qb in range(4)]
        ini += [f"{sw} {vr(vT+qb)}, {vr(vNEG+qb)}" for qb in range(4)]
        ini += [f"v_max_f32 {vr(vT+qb)}, {vr(vT+qb)}, {vr(vNEG+qb)}" for qb in range(4)]
    for qb in range(4):
        ini += [f"v_sub_f32 {vr(vNEG+4*qb+j)}, 0, {vr(vT+qb)}" for j in range(4)]
    for ks, qb in UNITS:
        r = Ureg(0, ks, qb)
        ini += [f"v_pk_add_f32 {vr(r+j,2)}, {vr(r+j,2)}, {vr(vNEG+4*qb,2)}" for j in range(0, 8, 2)]
    ex_ = [exp_i(0, it[1]) for it in E_FIRST if it[0] == "exp"]; cv_ = [cvt_i(0, it[1]) for it in E_FIRST if it[0] == "cvt"]
    ini += ex_ + cv_
    G = wo_stores() + (kv("K3", "V2") if DIST == 4 else [])
    for i, g in enumerate(G):
        k = (i + 1) * len(ini) // (len(G) + 1)
        ini = ini[:k] + g + ini[k:]
    o += ini
    o.append("@wait - lds=k0,k1,k2,k3")
    o += stamp()
    o, fifo, lf = resolve(o, [])
    return o, fifo, lf

def phase_c_srds():
    o = []; A = o.append
    cmap = CFG.get("cmap", "b")
    if cmap == "p":
        A(f"s_and_b32 {sr(sT)}, {sr(sNT)}, 1"); A(f"s_lshr_b32 {sr(sNT)}, {sr(sNT)}, 1"); A(f"s_and_b32 {sr(sT+1)}, {sr(sCB)}, 1")
        A(f"s_and_b32 {sr(sCB)}, {sr(sCB)}, 6"); A(f"s_add_u32 {sr(sCB)}, {sr(sCB)}, {sr(sT)}")
        A(f"s_lshl_b32 {sr(sT+1)}, {sr(sT+1)}, 2"); A(f"s_add_u32 {sr(sNT)}, {sr(sNT)}, {sr(sT+1)}")
    if cmap == "q":
        A(f"s_and_b32 {sr(sT)}, {sr(sNT)}, 3"); A(f"s_lshr_b32 {sr(sNT)}, {sr(sNT)}, 2"); A(f"s_and_b32 {sr(sT+1)}, {sr(sCB)}, 3")
        A(f"s_and_b32 {sr(sCB)}, {sr(sCB)}, 4"); A(f"s_add_u32 {sr(sCB)}, {sr(sCB)}, {sr(sT)}")
        A(f"s_lshl_b32 {sr(sT+1)}, {sr(sT+1)}, 1"); A(f"s_add_u32 {sr(sNT)}, {sr(sNT)}, {sr(sT+1)}")
    if CFG.get("rc", "0x") == "n": A(f"s_lshl_b32 {sr(sRC)}, {sr(sNT)}, 14")
    else: A(f"s_mov_b32 {sr(sRC)}, 0")
    A(f"s_lshl_b32 {sr(sT)}, {sr(sNT)}, 19"); A(f"s_add_u32 {sr(sT)}, {sr(sT)}, {WOF_OFF}")
    o += srd_at(sWFL, 14, sr(sT), 0x80000)
    A(f"s_lshl_b32 {sr(sT)}, {sr(sCB)}, 2"); A(f"s_add_u32 {sr(sT)}, {sr(sT)}, {sr(sMT)}"); A(f"s_lshl_b32 {sr(sT+1)}, {sr(sT)}, 19")
    o += srd_at(sOL, 14, sr(sT+1), 0x80000)
    A(f"s_lshl_b32 {sr(sT)}, {sr(sT)}, 16"); A(f"s_lshl_b32 {sr(sT+1)}, {sr(sNT)}, 7"); A(f"s_add_u32 {sr(sT)}, {sr(sT)}, {sr(sT+1)}")
    o += srd_at(sOUT, 10, sr(sT), 63*1024 + 128)
    A(f"s_lshl_b32 {sr(sT)}, {sr(sCB)}, 12"); A(f"s_add_u32 {sr(sT)}, {sr(sT)}, {FLAG_OFF}")
    o += srd_at(sFLR, 14, sr(sT), 4096)
    return o

def tail_and_epilogue(u):
    p = u % 2
    o = []
    reads = [rd_v(u % 4, n, t) for n in range(16) for t in range(2)]
    er = [(exp_i(p, it[1]), UNITS[it[1] // 8][1]) if it[0] == "exp" else (cvt_i(p, it[1]), UNITS[it[1] // 4][1]) for it in E_REST]
    va = []
    for i, (t, q) in enumerate(er):
        if t.startswith("v_cvt") and i and er[i-1][0].startswith("v_exp"): va.append(("s_nop 0", 0, f"e{q}"))
        va.append((t, 0, f"e{q}"))
    mf = []
    for qb in range(4):
        mf += [sum_one(p, qb, 0), sum_one(p, qb, 1)]
        mf += [pv_one(p, dt, qb, (i if dt % 2 == 0 else 1 - i)) for dt in range(8) for i in range(2)]
    vOST = vCW
    if CFG.get("local"): va.append((f"v_cmp_ne_u32 {sr(sGLB,2)}, {sr(sXCC)}, {vr(vCW)}", 0, "x"))
    va.append((f"v_and_b32 {vr(vOST)}, 0x3ff, {vr(vLIN)}", 0, "x"))
    tmp = 2
    NMF = len(mf)
    fill = {0: [], 1: [], 2: [], 3: []}
    tail_names = CFG.get("tailw", "K3,V2,R3").split(",")
    post_names = [x for x in ("K3", "V2", "R3", "R4a", "R6a", "R6b", "R5", "R4b", "V3") if x not in tail_names]
    for qb in range(4):
        e0 = 18 * qb
        lsum = [f"v_mov_b32 {vr(vT+qb)}, {vr(vL+4*qb)}"] + allreduce("v_add_f32", vT + qb, vMX) + [f"v_rcp_f32 {vr(vT+qb)}, {vr(vT+qb)}"]
        va += [(t, max(12, e0 + 1 + 3), "o") for t in lsum]
        F = fill[qb]
        for s in range(4):
            e = e0 + 2 + 4 * s + 3 + 3
            b_ = tmp + 8 * (s % 2)
            va += [(f"v_accvgpr_read_b32 {vr(b_+j)}, {ar(Oreg(qb,2*s)+j)}", e, "o") for j in range(8)]
            va += [(f"@mul {b_+j} {vT+qb}", e, "o") for j in range(8)]
            d = Ureg(p, s // 2, qb) + 4 * (1 - s % 2)
            ee = e0 + 17 if s % 2 == 1 else e
            va += [(f"v_cvt_pk_bf16_f32 {vr(d+j)}, {vr(b_+2*j)}, {vr(b_+2*j+1)}", max(e, ee), "o") for j in range(4)]
            ld = flat(F[s * len(F) // 4:(s + 1) * len(F) // 4])
            va += [(t, NMF - 1 if qb == 3 else e, "o") for t in ld]
            va += [(f"s_mov_b32 {sr(sT)}, {s*4096}", e, "o"),
                   (f"buffer_store_dwordx4 {vr(d,4)}, {vr(vOST)}, {sr(sO,4)}, {sr(sT)} offen offset:{qb*1024} {CFG.get('ost', 'sc1').replace('+', ' ').replace('plain', '')} ; #ost", e, "o")]
    va = [((f"v_mul_f32 {vr(int(t.split()[1]))}, {vr(int(t.split()[1]))}, {vr(int(t.split()[2]))}" if t.startswith("@mul") else t), e, k) for t, e, k in va]
    o += reads[:12]
    nvm = spread(pairs(reads[12:]), list(range(0, 10)))
    pre = {2 + 2 * dt: [f"@wait - lds=v{2*dt},v{2*dt+1}"] for dt in range(8)}
    early = [[x.replace(sr(sSP), sr(sTK)) for x in g] for g in sum([wo_loads(x) for x in tail_names], [])]
    nvm = merge(nvm, spread(early, list(range(10, int(CFG.get("tailhi", 58)), 2))))
    part, left = weave(mf, nvm, va, pre=pre, need={18 * q: f"e{q}" for q in range(4)})
    o += part
    o += stamp()
    o.append("s_nop 7")
    lf_ = [t for t, _, _ in left]
    i = 0
    while i < len(lf_):
        m1 = re.match(r"v_mul_f32 v(\d+), v\d+, v(\d+)", lf_[i]); m2 = re.match(r"v_mul_f32 v(\d+), v\d+, v(\d+)", lf_[i+1]) if i + 1 < len(lf_) else None
        if m1 and m2 and int(m1.group(1)) % 2 == 0 and int(m2.group(1)) == int(m1.group(1)) + 1:
            r = int(m1.group(1)); f_ = int(m1.group(2))
            sel = "op_sel_hi:[1,0]" if f_ % 2 == 0 else "op_sel:[0,1] op_sel_hi:[1,1]"
            o.append(f"v_pk_mul_f32 {vr(r,2)}, {vr(r,2)}, {vr(f_ - f_ % 2,2)} {sel}"); i += 2
        else:
            o.append(lf_[i]); i += 1
    A = o.append
    A(f"v_mov_b32 {vr(vMX)}, 1")
    A(f"v_and_b32 {vr(vT)}, 7, v0"); A(f"v_lshlrev_b32 {vr(vT)}, 7, {vr(vT)}")
    A(f"s_lshl_b32 {sr(sT)}, {sr(sWAVE)}, 10"); A(f"v_add_u32 {vr(vT)}, {sr(sT)}, {vr(vT)}")
    A(f"v_add_u32 {vr(vKA)}, {sr(sW4K)}, {vr(vOST)}")
    A(f"v_add_u32 {vr(vKA+1)}, 0x10000, {vr(vKA)}")
    A(f"v_add_u32 {vr(vKA+2)}, 0x20000, {vr(vKA)}")
    A(f"s_mov_b32 {sr(sCNT)}, 0")
    if CFG.get("forceglobal"): A(f"s_mov_b64 {sr(sGLB,2)}, -1")
    if CFG.get("local"): A(f"s_cmp_lg_u64 {sr(sGLB,2)}, 0")
    A("@wait ost")
    A("s_barrier")
    if CFG.get("local"): A("s_cbranch_scc1 L_pubg")
    A(f"buffer_store_dword {vr(vMX)}, {vr(vLIN)}, {sr(sFL,4)}, 0 offen {CFG.get('flagst', 'sc1')} ; #flag")
    A("L_pubg_back:")
    o += stamp()
    post = sum([wo_loads(x) for x in post_names], [])
    k1 = int(CFG.get("pollat", 16))
    o += flat(post[:k1])
    A(f"buffer_load_dword {vr(vT+1)}, {vr(vT)}, {sr(sFLR,4)}, 0 offen sc1 ; #poll1")
    o += flat(post[k1:])
    A("@wait poll1")
    A(f"v_cmp_ne_u32 vcc, 1, {vr(vT+1)}")
    A("s_cbranch_vccz L_go")
    A("L_poll:")
    A(f"buffer_load_dword {vr(vT+1)}, {vr(vT)}, {sr(sFLR,4)}, 0 offen {CFG.get('pollld', 'sc1').replace('+', ' ')} ; #poll")
    A("s_waitcnt vmcnt(0)")
    A(f"v_cmp_ne_u32 vcc, 1, {vr(vT+1)}")
    A("s_cbranch_vccz L_go")
    A(f"s_add_u32 {sr(sCNT)}, {sr(sCNT)}, 1")
    A(f"s_cmp_lt_u32 {sr(sCNT)}, {CFG['spin']}")
    A("s_cbranch_scc1 L_poll")
    A("L_go:")
    if CFG.get("local"): A(f"s_cmp_lg_u64 {sr(sGLB,2)}, 0"); A("s_cbranch_scc1 L_acq")
    A("L_acq_back:")
    o += stamp()
    return o

def phase_c():
    o = []; A = o.append
    ns = int(CFG.get("nstream", 0))
    pool = [vS + 64 + 16 * i for i in range(4)] + [256 + aF + 16 * (4 - ns + i) for i in range(ns)]
    oreg = {}; wtmp = {}
    nxt = 0
    MAXFLY = int(CFG.get("maxfly", 8))
    INIT = int(CFG.get("initfly", 4))
    def issue_o(c, lim):
        nonlocal nxt
        G = []
        reserve = sum(1 for k in range(c + 3, min(32, c + 5)) if WCLASS[k][0] == "l")
        while nxt < 32 and len(pool) > reserve + (WCLASS[nxt][0] == "s") and nxt - c <= lim:
            r = pool.pop(0); oreg[nxt] = r
            for qb in range(4):
                g = step_off(nxt) if qb == 0 else []
                g.append(f"buffer_load_dwordx4 {rr(r + 4*qb, 4)}, {vr(vLIN)}, {sr(sOL,4)}, {sr(sSP)} offen offset:{qb*1024} {CFG.get('old', 'sc1').replace('+', ' ').replace('plain', '')} ; #o{nxt}")
                G.append(g)
            if WCLASS[nxt][0] == "s":
                r = pool.pop(0); wtmp[nxt] = r
                for n in range(4):
                    G.append([f"buffer_load_dwordx4 {rr(r + 4*n, 4)}, {vr(vLIN)}, {sr(sWFL,4)}, {sr(sSP)} offen offset:{n*1024} sc1 ; #o{nxt}"])
            nxt += 1
        return G
    def lds_reads(c):
        addr = WCLASS[c][1]
        r = pool.pop(0); wtmp[c] = r
        return [f"ds_read_b128 {rr(r + 4*n, 4)}, {vr(vKA + addr // 65536)} offset:{addr % 65536 + n*1024} ; #w{c}" for n in range(4)]
    o += flat(issue_o(-1, INIT))
    carry = issue_o(-1, MAXFLY)
    for c in range(0, 32, 2):
        rd = []
        for k in (c + 2, c + 3):
            if k < 32 and WCLASS[k][0] == "l": rd += lds_reads(k)
        A(f"@wait o{c},o{c+1} lds=w{c},w{c+1}")
        if c == 0: o += stamp()
        w = [WCLASS[k][1] if WCLASS[k][0] == "r" else wtmp[k] for k in (c, c + 1)]
        mf = []
        for n in range(4):
            for qb in range(4):
                d = ar(64 + 4 * (n * 4 + qb), 4)
                for i in range(2):
                    k = i if qb % 2 == 0 else 1 - i
                    mf.append(f"{MF} {d}, {rr(w[k] + 4*n, 4)}, {rr(oreg[c+k] + 4*qb, 4)}, {d if (c or i) else 0}")
        hi = int(CFG.get("chi", 32))
        nvm = merge(spread(pairs(rd), [3, 9, 15, 21]) if rd else {}, spread(carry, list(range(0, hi, 2))) if carry else {})
        part, _ = weave(mf, nvm)
        o += part
        pool.extend([oreg[c], oreg[c+1]] + w)
        carry = issue_o(c + 1, MAXFLY)
    assert not carry
    o += stamp()
    A("v_and_b32 v7, 63, v0")
    A("v_and_b32 v8, 15, v7"); A("v_lshrrev_b32 v9, 4, v7")
    A("v_xor_b32 v10, v8, v9"); A("v_lshlrev_b32 v10, 4, v10")
    A("v_lshl_add_u32 v8, v8, 8, v10")
    A(f"v_add_u32 v32, {sr(sW4K)}, v8")
    for n in range(1, 4): A(f"v_xor_b32 {vr(32+n)}, {n*64}, v32")
    A("v_lshrrev_b32 v8, 3, v0"); A("v_and_b32 v9, 7, v0"); A("v_lshlrev_b32 v10, 1, v9")
    A("v_and_b32 v11, 15, v8"); A("v_xor_b32 v10, v10, v11"); A("v_lshlrev_b32 v10, 4, v10")
    A("v_lshl_add_u32 v10, v11, 8, v10")
    A("v_lshrrev_b32 v11, 4, v8"); A("v_lshl_add_u32 v10, v11, 14, v10"); A("v_xor_b32 v11, 16, v10")
    A("v_lshlrev_b32 v9, 4, v9"); A("v_lshl_add_u32 v14, v8, 10, v9")
    for n in range(4):
        for qb in range(4):
            A(f"ds_write_b128 {vr(32 + n)}, {ar(64 + 4*(n*4+qb), 4)} offset:{qb*16384}")
    A("s_waitcnt lgkmcnt(0)")
    A("s_barrier")
    for z in range(2):
        for w in range(4):
            for i in range(2):
                A(f"ds_read_b128 {vr(64 + z*32 + w*8 + i*4, 4)}, {vr(10 + i)} offset:{w*4096 + z*32768}")
    A(f"s_mov_b32 {sr(sT)}, {32*1024}")
    for z in range(2):
        A(f"s_waitcnt lgkmcnt({8 if z == 0 else 0})")
        b = 64 + z * 32
        for j in range(8):
            A(f"v_add_f32 {vr(b+j)}, {vr(b+j)}, {vr(b+8+j)}")
            A(f"v_add_f32 {vr(b+16+j)}, {vr(b+16+j)}, {vr(b+24+j)}")
        for j in range(8): A(f"v_add_f32 {vr(b+j)}, {vr(b+j)}, {vr(b+16+j)}")
        for j in range(4): A(f"v_cvt_pk_bf16_f32 {vr(b+8+j)}, {vr(b+2*j)}, {vr(b+2*j+1)}")
        A(f"buffer_store_dwordx4 {vr(b+8,4)}, v14, {sr(sOUT,4)}, {sr(sT) if z else 0} offen {CFG.get('outst', '').replace('+', ' ')}")
    return o

def peeled(lf):
    o = [f"s_mov_b32 {sr(sT)}, 0xe00fe000", f"v_cmp_ne_u32 vcc, {sr(sT)}, {vr(vCW)}", "s_cbranch_vccnz L_cw", "L_cw_back:"]
    srds = phase_c_srds()
    sg = [g for g in range(0, 42) if g not in (15, 31)]
    ex12 = merge({g: [x] for g, x in zip(sg, srds)},
                 place(groups_of(kv_batch("V", 15) if DIST == 4 else kv_batch("K", 15) + kv_batch("V", 14)) + wo_loads("K0") + wo_loads("W0") + wo_loads("W1"), 42, NG))
    assert len(srds) <= len(sg)
    if CFG.get("local"): ex12 = merge(ex12, {38: [f"v_and_b32 {vr(vCW)}, 31, v0", f"v_lshlrev_b32 {vr(vCW)}, 7, {vr(vCW)}"],
                        39: [f"buffer_load_dword {vr(vCW)}, {vr(vCW)}, {sr(sFLR,4)}, 0 offen offset:4 sc1 ; #ids"]})
    o += iteration(0, "L_r4", ex12, "K14,V13")
    o += iteration(1, "L_r5", place((groups_of(kv_batch("V", 15)) if DIST == 3 else []) + wo_loads("K1") + wo_loads("V0") + wo_loads("R1"), 0, NG), "K15,V14")
    ex14 = merge(place(wo_loads("K2") + wo_loads("V1"), 0, 64), place(wo_loads("R2"), 64, NG))
    if CFG.get("touch"):
        tg = int(CFG["touch"][1:])
        tch = {tg: [f"v_and_b32 {vr(vDK)}, 63, v0", f"v_lshlrev_b32 {vr(vDK)}, 7, {vr(vDK)}"],
               tg + 1: [f"buffer_load_dword {vr(vDK+1)}, {vr(vDK)}, {sr(sO,4)}, 0 offen sc1 ; #tch"],
               tg + 9: [f"s_mov_b32 {sr(sTK)}, 8192", f"buffer_load_dword {vr(vDK+2)}, {vr(vDK)}, {sr(sO,4)}, {sr(sTK)} offen sc1 ; #tch"]}
        ex14 = merge(ex14, tch)
    o += iteration(2, "L_r6", ex14, "V15", nextk=False)
    o += stamp()
    o += tail_and_epilogue(3)
    o += phase_c()
    fifo = ["K14"] * 4 + ["V13"] * 4 + (["K15"] * 4 + ["V14"] * 4 if DIST == 4 else [])
    if CFG.get("skipst"): o = [x for x in o if "#ost" not in x]
    o, _, _ = resolve(o, fifo, lf)
    return o

def stamp_out():
    if not CFG["stamps"]: return []
    o = ["s_waitcnt vmcnt(0)"] + stamp()
    A = o.append
    A(f"s_lshl_b32 {sr(sT)}, s2, 10"); A(f"s_add_u32 {sr(sT)}, {sr(sT)}, {STAMP_OFF}")
    o += srd_at(4, 14, sr(sT), 1024)
    A("v_lshlrev_b32 v1, 2, v0")
    A(f"buffer_store_dword v{STV}, v1, s[4:7], 0 offen")
    if CFG.get("dbgout"):
        o += srd_at(4, 12, "0", 64)
        A("v_and_b32 v2, 63, v0")
        A("v_lshlrev_b32 v1, 1, v2"); A("v_add_u32 v1, 6, v1")
        A("v_and_b32 v3, 1, v2"); A("v_cmp_eq_u32 vcc, 0, v3"); A("v_mov_b32 v3, 0x1000"); A("s_nop 1")
        A("v_cndmask_b32 v1, v1, v3, vcc")
        A(f"v_cmp_lt_u32 vcc, {2*nstamp[0]}, v2"); A("s_nop 1"); A("v_cndmask_b32 v1, v1, v3, vcc")
        A(f"buffer_atomic_umax v{STV}, v1, s[4:7], 0 offen sc1")
        A(f"v_not_b32 v4, v{STV}")
        A("v_cmp_eq_u32 vcc, 1, v2"); A("s_nop 1"); A("v_cndmask_b32 v1, v3, 4, vcc")
        A(f"buffer_atomic_umax v4, v1, s[4:7], 0 offen sc1")
    return o

def kernel():
    pro, fifo, lf0 = prologue()
    _, _, lf = resolve(iteration(0, "x") + iteration(1, "x"), [])
    its = []
    for u in range(4):
        it, _, lf2 = resolve(iteration(u, f"L_r{u}"), [], lf)
        assert lf2 == lf
        its.append(it)
    assert len(lf0) >= len(lf) and lf0[len(lf0)-len(lf):] == lf or CFG["stamps"] or CFG.get("probe"), (lf0, lf)
    pe = peeled(lf)
    body = list(pro)
    body.append("L_loop:")
    for u in range(4):
        it = list(its[u])
        if u == 3:
            k = [i for i, x in enumerate(it) if x.startswith(MF)]
            it.insert(k[-3] + 1, f"s_cmp_lt_u32 {sr(sCNT)}, 3")
            it.insert(k[-4] + 1, f"s_add_u32 {sr(sCNT)}, {sr(sCNT)}, 1")
            it.append("s_cbranch_scc1 L_loop")
            its[3] = it
        body += it
    body += pe
    body += stamp_out()
    if CFG.get("fixdur"):
        body += ["L_fix:", "s_memrealtime s[98:99]", "s_waitcnt lgkmcnt(0)", "s_sub_u32 s98, s98, s96", f"s_cmp_lt_u32 s98, {int(CFG['fixdur'])*100}", "s_cbranch_scc1 L_fix"]
    body.append("L_end:")
    body.append("s_endpgm")
    for u in range(7):
        body += [f"L_r{u}a:", f"s_call_b64 {sr(sRET,2)}, L_ra{1 - u % 2}", f"s_branch L_r{u}a_back"]
        body += [f"L_r{u}b:", f"s_call_b64 {sr(sRET,2)}, L_rb", f"s_branch L_r{u}b_back"]
    body += ["L_cw:", f"s_mov_b32 {sr(sCNT)}, 0", "L_cw_loop:",
             f"v_and_b32 {vr(vCW)}, 3, v0", f"v_lshlrev_b32 {vr(vCW)}, 6, {vr(vCW)}",
             f"buffer_load_dword {vr(vCW)}, {vr(vCW)}, {sr(sDB,4)}, 0 offen sc1", "s_waitcnt vmcnt(0)",
             f"v_cmp_ne_u32 vcc, {sr(sT)}, {vr(vCW)}", "s_cbranch_vccz L_cw_back",
             f"s_add_u32 {sr(sCNT)}, {sr(sCNT)}, 1", f"s_cmp_lt_u32 {sr(sCNT)}, {CFG['spin']}", "s_cbranch_scc1 L_cw_loop",
             "s_branch L_cw_back"]
    if CFG.get("local"): body += ["L_pubg:", "buffer_wbl2 sc1", "s_waitcnt vmcnt(0)",
             f"buffer_store_dword {vr(vMX)}, {vr(vLIN)}, {sr(sFL,4)}, 0 offen sc1", "s_branch L_pubg_back"]
    if CFG.get("local"): body += ["L_acq:", "buffer_inv sc1", "s_waitcnt vmcnt(0)", "s_branch L_acq_back"]
    for p in range(2): body += rare_a(p, f"L_ra{p}")
    body += rare_b("L_rb")
    loop = its[0] + its[1] + its[2] + its[3]
    check(pro + loop + loop + pe, "main")
    def with_rare(seq):
        o = []
        for x in seq:
            m = re.match(r"L_r(\d)([ab])_back:", x)
            if m: o += (rare_a(1 - int(m.group(1)) % 2, "x") if m.group(2) == "a" else rare_b("x"))[1:]
            o.append(x)
        return o
    check(pro + with_rare(loop + pe), "rare")
    if CFG["verbose"]:
        for g in range(NG): print(g, PLAN[g])
    return "\n".join(body)

if __name__ == "__main__":
    k = kernel()
    txt = file_text([dict(label=NAME + "_kernel", body=k, grid=256, block=256, lds=163840, vgpr=512, accum=256)], single=True)
    open(sys.argv[1], "w").write(txt)
```

```python
import sys, math, struct, re
from asmlib import *
from check import check

CFG = dict(qst=False, stamps=False, codepf=True, warm=True, spin=200000, verbose=False)
for a in sys.argv[2:]:
    k, v = a.split("=")
    CFG[k] = {"0": False, "1": True}.get(v, v)

MF = "v_mfma_f32_16x16x32_bf16"
def vr(b, n=1): return f"v{b}" if n == 1 else f"v[{b}:{b+n-1}]"
def ar(b, n=1): return f"a{b}" if n == 1 else f"a[{b}:{b+n-1}]"
def sr(b, n=1): return f"s{b}" if n == 1 else f"s[{b}:{b+n-1}]"
def rr(r, n=1): return vr(r, n) if r < 256 else ar(r - 256, n)
def slots(t):
    if t.startswith(("v_exp", "v_rcp", "buffer_", "global_", "v_permlane")): return 2
    if t.startswith(("s_", "@", "L_")): return 0
    return 1

sX, sWQ, sK, sV, sO = 4, 8, 12, 16, 20
sWFL, sOL = 4, 8
sWAVE, sB, sH, sW4K, sW8K = 24, 25, 26, 27, 28
sCB, sMT, sNT = 29, 30, 31
sXO, sWO = 32, 40
sOUT, sFLR = 32, 36
sTILE, sCNT, sTHR, sSC, sSP = 44, 45, 46, 47, 48
sRET = 50
sTK, sROT, sRQ, sRX, sRW = 49, 92, 93, 94, 95
sW1K, sDT = 96, 97
sRC = 93
sXCC, sGLB = 3, 40
sT = 52
sARG = 56
sFL, sDB, sDBW = 72, 76, 88
sWS2, sWO2 = 80, 84
vKA, vVA, vDK, vDV = 1, 5, 13, 17
vMX, vLIN, vCW, STV = 19, 21, 22, 23
vT = 24
vONES = 28
vNEG, vL, vQ, vS = 32, 48, 64, 128
vWA, vXA, vDX, vDW, vWOF = 64, 72, 76, 78, 80
vWOA, vWOS = 19, 20
vDUM = [22, 26, 27]
u0, u1, u2, u3, u4, u5, ln = 128, 129, 130, 131, 132, 133, 134
aO, aF = 0, 128
LK, LV, LW = 0, 65536, 131072
LX = [81920, 131072]
LWQ = [32768, 49152, 65536]
LWO = 114688
WOF_OFF, FLAG_OFF, STAMP_OFF = 0x1000000, 0x1400000, 0x4000000

def Ureg(p, ks, qb): return vS + 64 * p + 8 * (ks * 4 + qb)
def Sreg(p, kb, qb): return Ureg(p, kb // 2, qb) + 4 * (kb % 2)
def Oreg(qb, dt): return aO + 4 * (qb * 8 + dt)
def Qreg(qb, s): return vQ + 16 * qb + 4 * s
def Freg(n): return aF + 4 * n

nstamp = [0]
def stamp():
    if CFG.get("probe"):
        i = nstamp[0]; nstamp[0] += 1
        return ["s_memrealtime s[42:43]", "s_waitcnt lgkmcnt(0)"] if i == int(CFG["probe"][1:]) else []
    if not CFG["stamps"]: return []
    i = nstamp[0]; nstamp[0] += 1
    assert i < 30
    return ["s_memtime s[100:101]", "s_waitcnt lgkmcnt(0)", f"v_writelane_b32 v{STV}, s100, {2*i}",
            "s_memrealtime s[100:101]", "s_waitcnt lgkmcnt(0)", f"v_writelane_b32 v{STV}, s100, {2*i+1}"]

def srd(s, size):
    return [f"s_and_b32 {sr(s+1)}, {sr(s+1)}, 0xffff", f"s_mov_b32 {sr(s+2)}, {size}", f"s_mov_b32 {sr(s+3)}, 0x20000"]
def srd_at(s, arg, offreg, size):
    return [f"s_add_u32 {sr(s)}, {sr(sARG+arg)}, {offreg}", f"s_addc_u32 {sr(s+1)}, {sr(sARG+arg+1)}, 0"] + srd(s, size)

def tag(lst, t): return [(x + f" ; #{t}") if x.startswith(("buffer_", "global_")) and "#" not in x else x for x in lst]
def resolve(seq, fifo, lfifo=()):
    fifo = list(fifo); lf = list(lfifo); out = []
    def cut(f, n): return f[len(f) - n:] if 0 < n < len(f) else (f if n else [])
    for x in seq:
        if x.startswith("@wait"):
            parts = x.split()
            w = []
            idx = [i for i, t in enumerate(fifo) if t in parts[1].split(",")]
            if idx:
                n = min(63, len(fifo) - 1 - max(idx)); fifo = cut(fifo, n); w.append(f"vmcnt({n})")
            for p in parts[2:]:
                if p.startswith("vm="): n = int(p[3:]); fifo = cut(fifo, n); w.append(f"vmcnt({n})")
                if p.startswith("lgkm="): n = int(p[5:]); lf = cut(lf, n); w.append(f"lgkmcnt({n})")
                if p.startswith("lds="):
                    idx = [i for i, t in enumerate(lf) if t in p[4:].split(",")]
                    if idx:
                        n = min(15, len(lf) - 1 - max(idx)); lf = cut(lf, n); w.append(f"lgkmcnt({n})")
            if w: out.append("s_waitcnt " + " ".join(w))
            continue
        m = re.search(r"#(\S+)", x)
        if x.startswith(("buffer_", "global_")): fifo.append(m.group(1) if m else "?")
        if x.startswith("ds_"): lf.append(m.group(1) if m else "?")
        m = re.match(r"s_waitcnt.*vmcnt\((\d+)\)", x)
        if m: fifo = cut(fifo, int(m.group(1)))
        m = re.match(r"s_waitcnt.*lgkmcnt\((\d+)\)", x)
        if m: lf = cut(lf, int(m.group(1)))
        out.append(x)
    return out, fifo, lf

CONT = CFG.get("cont", False)
DIST = int(CFG.get("dist", 3))
def dma_k(p, soff):
    if CONT: return f"buffer_load_dwordx4 {vr(vDK)}, {sr(sK,4)}, {sr(sDT)} offen nt lds"
    return f"buffer_load_dwordx4 {vr(vDK+p)}, {sr(sK,4)}, {soff} offen offset:{1024*p} nt lds"
def dma_v(p, soff):
    if CONT: return f"buffer_load_dwordx4 {vr(vDV)}, {sr(sV,4)}, {sr(sDT)} offen nt lds"
    return f"buffer_load_dwordx4 {vr(vDV + p%2)}, {sr(sV,4)}, {soff} offen offset:{1024*p} nt lds"
def cont_pre(base, p, soff): return [f"s_add_u32 m0, {sr(sW1K)}, {base + p*4096}", f"s_add_u32 {sr(sDT)}, {soff}, {p*4096}"]
def m0_at(addr): return f"s_add_u32 m0, {sr(sW4K)}, {addr}"
def kv_batch(which, tile):
    out = [m0_at((LK if which == "K" else LV) + (tile % 4) * 16384), f"s_add_u32 {sr(sT)}, {sr(sROT)}, {tile*16384}", f"s_and_b32 {sr(sT)}, {sr(sT)}, 0x3ffff"]
    for p in range(4):
        if CONT: out += cont_pre((LK if which == "K" else LV) + (tile % 4) * 16384, p, sr(sT))
        out.append(dma_k(p, sr(sT)) if which == "K" else dma_v(p, sr(sT)))
    return tag(out, f"{which}{tile}")

def rd_k(slot, n):
    kb, s = n // 4, n % 4
    return f"ds_read_b128 {ar(Freg(n),4)}, {vr(vKA+s)} offset:{slot*16384 + kb*4096} ; #k{n}"
def rd_v(slot, n, t):
    dt, ks = n // 2, n % 2
    return f"ds_read_b64_tr_b16 {ar(Freg(n)+2*t,2)}, {vr(vVA+dt)} offset:{slot*16384 + (32*ks+16*t)*256} ; #v{n}"

def qk_one(p, kb, qb, s, first, czero=False):
    d = Sreg(p, kb, qb)
    c = vr(d, 4) if not first else ("0" if czero else vr(vNEG + 4*qb, 4))
    return f"{MF} {vr(d,4)}, {ar(Freg(kb*4+s),4)}, {vr(Qreg(qb,s),4)}, {c}"
def qk_list(p):
    return [qk_one(p, kb, qb, (i if qb % 2 == 0 else 3 - i), i == 0) for kb in range(4) for qb in range(4) for i in range(4)]
def pv_one(p, dt, qb, ks):
    o = Oreg(qb, dt)
    return f"{MF} {ar(o,4)}, {ar(Freg(dt*2+ks),4)}, {vr(Ureg(p,ks,qb),4)}, {ar(o,4)}"
def sum_one(p, qb, ks):
    return f"{MF} {vr(vL+4*qb,4)}, {vr(vONES,4)}, {vr(Ureg(p,ks,qb),4)}, {vr(vL+4*qb,4)}"
def pv_list(p):
    return ([pv_one(p, dt, qb, (i if qb % 2 == 0 else 1 - i)) for dt in range(8) for qb in range(4) for i in range(2)]
            + [sum_one(p, qb, ks) for qb in range(4) for ks in range(2)])

UNITS = [(0, 0), (1, 0), (1, 1), (0, 1), (0, 2), (1, 2), (1, 3), (0, 3)]
def ereg(p, e): ks, qb = UNITS[e // 8]; return Ureg(p, ks, qb) + e % 8
def exp_i(p, e): r = ereg(p, e); return f"v_exp_f32 {vr(r)}, {vr(r)}"
def cvt_i(p, k):
    r = ereg(p, 2 * k); return f"v_cvt_pk_bf16_f32 {vr(r - (2*k) % 8 + k % 4)}, {vr(r)}, {vr(r+1)}"
def max_items(p):
    out = []
    for kb in range(4):
        for qb in range(4):
            r = Sreg(p, kb, qb); m = vr(vMX + qb % 2); done = 16 * kb + 4 * qb + 3
            if kb == 0 and qb < 2:
                out.append((f"v_max3_f32 {m}, {vr(r)}, {vr(r+1)}, {vr(r+2)}", done))
                out.append((f"v_max_f32 {m}, {vr(r+3)}, {m}", done))
            else:
                out.append((f"v_max3_f32 {m}, {vr(r)}, {vr(r+1)}, {m}", done))
                out.append((f"v_max3_f32 {m}, {vr(r+2)}, {vr(r+3)}, {m}", done))
    return out

NG = 136
HOOKA = 69
BARG = 118
LAT = 8
def make_plan():
    plan = {g: [] for g in range(NG)}
    T0 = HOOKA
    dsp = int(CFG.get("dsp", 14))
    dv0 = int(CFG.get("dv0", 72))
    dma_g = [4 + dsp * i for i in range(4)] + [dv0 + dsp * i for i in range(4)]
    dma_t = [g + NG if g < HOOKA else g for g in dma_g]
    NX2 = int(CFG.get('nx2', 40))
    r2 = [t for t in range(T0, NG) if t != BARG and t not in dma_t]
    r1 = [t for t in range(NG, NG + 64) if t not in dma_t]
    xt = [r2[i * len(r2) // NX2] for i in range(NX2)] + [r1[i * len(r1) // (64 - NX2)] for i in range(64 - NX2)]
    assert len(set(xt)) == 64
    for e, t in enumerate(xt): plan[t % NG].append(("exp", e, t >= NG))
    for i, t in enumerate(dma_t): plan[t % NG].append(("dma", i))
    Y = []
    for k in range(32):
        Y.append((xt[2*k+1] + 1, NG + 64 + k // 4 - 2, ("cvt", k)))
    for i, (_, done) in enumerate(max_items(0)):
        Y.append((NG + done + 3, NG + HOOKA - 3, ("max", i)))
    Y.append((NG + 66, NG + HOOKA - 2, ("max", 32))); Y.append((NG + 66, NG + HOOKA - 1, ("max", 33)))
    for n in range(16):
        Y.append((max(BARG + 1, 64 + 8 * (n // 2) + 7), NG + 16 * (n // 4) - LAT, ("k", n)))
    NV1 = int(CFG.get("nv1", 10))
    for n in range(16):
        e, d = 16 * (n // 4) + 15, min(64 + 8 * (n // 2) - LAT, BARG - 10)
        for t in range(2):
            if n < NV1: Y.append((NG + e, NG + min(d, HOOKA - 1), ("v", n, t)))
            else: Y.append((T0, d, ("v", n, t)))
    def kind(y): return y[2][0] + ("1" if y[2][0] == "v" and y[0] >= NG else "")
    ygaps = [t for t in range(T0, T0 + NG) if not plan[t % NG] and t % NG != BARG]
    pend = list(Y)
    for t in ygaps:
        g = t % NG
        picked = []
        for _ in range(2):
            heads = {}
            for y in pend: heads.setdefault(kind(y), y)
            c = [y for y in heads.values() if y[0] <= t]
            if not c: break
            def eff(y):
                same = [z for z in pend if kind(z) == kind(y)]
                return min(z[1] - i / 1.2 for i, z in enumerate(same))
            y = min(c, key=eff)
            assert t <= y[1], ("deadline miss", t, y)
            picked.append(y); pend.remove(y)
        picked.sort(key=lambda y: 0 if y[2][0] in ("k", "v") else 1)
        for y in picked: plan[g].append(y[2] + ((t >= NG,) if y[2][0] == "cvt" else ()))
    assert not pend, pend
    return plan
PLAN = make_plan()

def iteration(u, lab, extra=None, barwait=None, nextk=True):
    p = u % 2
    steady = extra is None
    if barwait is None: barwait = f"vm={8 * (DIST - 2)}"
    sc = {g: [] for g in range(NG)}
    for kb in range(4): sc[16 * kb - 1 if kb else NG - 2].append(f"@wait - lds=" + ",".join(f"k{kb*4+s}" for s in range(4)))
    for dt in range(8):
        if 64 + 8 * dt - 1 < BARG - 1: sc[64 + 8 * dt - 1].append(f"@wait - lds=v{2*dt},v{2*dt+1}")
    sc[BARG - 1].append(f"@wait {barwait} lgkm=0" if not barwait.startswith("vm=") else f"@wait - {barwait} lgkm=0")
    sc[BARG].append("s_barrier")
    if CFG.get("itst"):
        sc[BARG - 2].append("s_memrealtime s[98:99]")
        sc[BARG] += ["s_mov_b64 exec, s[42:43]", f"v_mov_b32 v{STV}, s98", "s_mov_b64 exec, -1", "s_lshl_b64 s[42:43], s[42:43], 1"]
    sc[HOOKA] += [f"s_cbranch_vccnz {lab}a", f"{lab}a_back:"]
    sc[NG - 1] = [f"s_cbranch_vccnz {lab}b", f"{lab}b_back:"] + sc[NG - 1]
    if steady:
        extra = {}
        def free_sc(g):
            while sc[g] or g in (40, 41, 70): g -= 1
            return g
        if CONT:
            for i, g in enumerate(DMA_GAPS):
                pr = cont_pre(LK + ((u + DIST) % 4) * 16384, i, sr(sTK)) if i < 4 else cont_pre(LV + ((u + DIST - 1) % 4) * 16384, i - 4, sr(sTILE))
                g1 = free_sc(g); sc[g1].append(pr[1]); g2 = free_sc(g - 1); sc[g2].append(pr[0])
                assert i == 0 or min(g1, g2) > DMA_GAPS[i-1]
        else:
            sc[2].append(m0_at(LK + ((u + DIST) % 4) * 16384))
            sc[free_sc(DMA_GAPS[4] - 1)].append(m0_at(LV + ((u + DIST - 1) % 4) * 16384))
        sc[120].append(f"s_mov_b32 {sr(sTILE)}, {sr(sTK)}")
        sc[121].append(f"s_add_u32 {sr(sTK)}, {sr(sTK)}, 0x4000")
        sc[122].append(f"s_and_b32 {sr(sTK)}, {sr(sTK)}, 0x3ffff")
        if u == 1:
            extra[64] = [f"v_and_b32 {vr(vCW)}, 3, v0", f"v_lshlrev_b32 {vr(vCW)}, 6, {vr(vCW)}"]
            sc[40].append(f"s_cmp_eq_u32 {sr(sCNT)}, 2")
            sc[41].append(f"s_cselect_b32 {sr(sDB+2)}, 256, 0")
            extra[65] = [f"buffer_load_dword {vr(vCW)}, {vr(vCW)}, {sr(sDB,4)}, 0 offen sc1"]
        if u == 2:
            extra[65] = [f"buffer_atomic_add {vr(vONES)}, {vr(vLIN)}, {sr(sDBW,4)}, 0 offen sc1"]
            sc[70].append(f"s_mov_b32 {sr(sDBW+2)}, 0")
    mf = qk_list(1 - p) + pv_list(p)
    MX = [t for t, _ in max_items(1 - p)] + [f"v_max_f32 {vr(vMX)}, {vr(vMX)}, {vr(vMX+1)}", f"v_cmp_lt_f32 vcc, {sr(sTHR)}, {vr(vMX)}"]
    out = []
    for g in range(NG):
        out.append(mf[g])
        out += sc[g]
        ex = extra.get(g, [])
        out += [x for x in ex if not x.startswith("v_")]
        for it in PLAN[g]:
            k = it[0]
            if k == "exp": out.append(exp_i(p if it[2] else 1 - p, it[1]))
            elif k == "cvt": out.append(cvt_i(p if it[2] else 1 - p, it[1]))
            elif k == "max": out.append(MX[it[1]])
            elif k == "k":
                if g > BARG and not nextk: continue
                out.append(rd_k((u + (2 if g > BARG else 1)) % 4, it[1]))
            elif k == "v": out.append(rd_v(u % 4, it[1], it[2]))
            elif k == "dma" and steady:
                out.append(dma_k(it[1], sr(sTK)) if it[1] < 4 else dma_v(it[1] - 4, sr(sTILE)))
        out += [x for x in ex if x.startswith("v_")]
    return out
EARLY_K = [it[1] for g in range(BARG + 1, NG) for it in PLAN[g] if it[0] == "k"]
E_FIRST = [it for g in range(HOOKA, NG) for it in PLAN[g] if it[0] in ("exp", "cvt")]
E_REST = [it for g in range(0, HOOKA) for it in PLAN[g] if it[0] in ("exp", "cvt")]
DMA_GAPS = [g for g in range(NG) if any(it[0] == "dma" for it in PLAN[g])]
LIGHT = sorted(range(NG), key=lambda g: (sum(2 if it[0] in ("exp",) else (0 if it[0] == "dma" else 1) for it in PLAN[g])))

def spread(items, gaps):
    d = {}
    for i, it in enumerate(items):
        d.setdefault(gaps[i * len(gaps) // len(items)], []).extend(it)
    return d
def place(groups, lo, hi):
    cand = [g for g in LIGHT if lo <= g < hi and g not in (BARG, BARG - 1, HOOKA, NG - 1)]
    gs = sorted(cand[:len(groups)])
    assert len(gs) == len(groups)
    return {g: list(x) for g, x in zip(gs, groups)}
def merge(*maps):
    d = {}
    for m in maps:
        for k, v in m.items(): d.setdefault(k, []).extend(v)
    return d
def flat(G): return [x for g in G for x in g]
def groups_of(lst):
    G = []; cur = []
    for x in lst:
        cur.append(x)
        if x.startswith("buffer_"): G.append(cur); cur = []
    if cur: G[-1] += cur
    return G

WCLASS = {}
def plan_wo():
    P = {}; c = 0
    def add(name, kind, base, n):
        nonlocal c
        P[name] = list(range(c, c + n))
        for i in range(n): WCLASS[c] = (kind, base + 16 * i); c += 1
    add("R1", "r", 256 + 192, 4); add("R2", "r", vQ, 4); add("R3", "r", vS, 4)
    for nm, addr in (("W0", LW), ("W1", LW + 16384), ("K0", LK), ("K1", LK + 16384), ("V0", LV), ("K2", LK + 32768),
                     ("V1", LV + 16384), ("K3", LK + 49152), ("V2", LV + 32768)):
        add(nm, "l", addr, 1)
    add("R4a", "r", vNEG, 1); add("R6a", "r", 256, 2); add("R6b", "r", 256 + 32, 2); add("R4b", "r", vL, 1); add("V3", "l", LV + 49152, 1)
    ns = int(CFG.get("nstream", 0))
    add("R5", "r", 256 + aF, 4 - ns); add("ST", "s", 0, ns)
    assert c == 32
    return P
WP = plan_wo()
def step_off(c):
    if CFG.get("rc", "0x") != "n": return [f"s_mov_b32 {sr(sSP)}, {c * 4096}"]
    return [f"s_add_u32 {sr(sSP)}, {sr(sRC)}, {c * 4096}", f"s_and_b32 {sr(sSP)}, {sr(sSP)}, 0x1ffff"]
def wo_loads(name):
    groups = []
    if name in CFG.get("skipw", "").split(","): return [["s_nop 0"]] * 4
    for c in WP[name]:
        kind, where = WCLASS[c]
        for n in range(4):
            g = []
            if n == 0:
                if kind == "l": g.append(m0_at(where))
                g += step_off(c)
            if kind == "r":
                g.append(f"buffer_load_dwordx4 {rr(where + 4*n, 4)}, {vr(vLIN)}, {sr(sWFL,4)}, {sr(sSP)} offen offset:{n*1024} sc1 ; #w{c}")
            else:
                g.append(f"buffer_load_dwordx4 {vr(vLIN)}, {sr(sWFL,4)}, {sr(sSP)} offen offset:{n*1024} sc1 lds ; #w{c}")
            groups.append(g)
    return groups

def weave(mf, nvmap, va=(), pre=None, need=None):
    out = []; va = list(va)
    for g, m in enumerate(mf):
        if need and g in need:
            last = max([i for i, x in enumerate(va) if x[2] == need[g]], default=-1)
            if last >= 0:
                if va[last][1] > g - 1: out.append("s_nop 7")
                out += [x[0] for x in va[:last + 1]] + ["s_nop 1"]; va = va[last + 1:]
        if pre and g in pre: out += pre[g]
        out.append(m)
        nv = nvmap.get(g, [])
        out += nv
        c = sum(slots(x) for x in nv)
        while va and va[0][1] <= g and c + slots(va[0][0]) <= 2:
            c += slots(va[0][0]); out.append(va.pop(0)[0])
    return out, va

def allreduce(op, a, b):
    return [f"v_mov_b32 {vr(b)}, {vr(a)}", "s_nop 1", f"v_permlane32_swap_b32 {vr(a)}, {vr(b)}", "s_nop 1", f"{op} {vr(a)}, {vr(a)}, {vr(b)}",
            f"v_mov_b32 {vr(b)}, {vr(a)}", "s_nop 1", f"v_permlane16_swap_b32 {vr(a)}, {vr(b)}", "s_nop 1", f"{op} {vr(a)}, {vr(a)}, {vr(b)}"]
def qmax(p, qb, d):
    regs = [Sreg(p, kb, qb) + j for kb in range(4) for j in range(4)]
    o = [f"v_max3_f32 {vr(d)}, {vr(regs[0])}, {vr(regs[1])}, {vr(regs[2])}"]
    for i in range(3, 15, 2): o.append(f"v_max3_f32 {vr(d)}, {vr(regs[i])}, {vr(regs[i+1])}, {vr(d)}")
    o.append(f"v_max_f32 {vr(d)}, {vr(regs[15])}, {vr(d)}")
    return o
def rare_a(p, label):
    out = [f"{label}:", "s_nop 7"]
    for qb in range(4):
        d = vT + qb
        out += qmax(p, qb, d) + allreduce("v_max_f32", d, vMX)
        out.append(f"v_max_f32 {vr(d)}, 0, {vr(d)}")
        for j in range(4): out.append(f"v_sub_f32 {vr(vNEG+4*qb+j)}, {vr(vNEG+4*qb+j)}, {vr(d)}")
        for kb in range(4):
            for j in range(4):
                r = Sreg(p, kb, qb) + j
                out.append(f"v_sub_f32 {vr(r)}, {vr(r)}, {vr(d)}")
        out.append(f"v_exp_f32 {vr(d)}, -{vr(d)}")
    out += ["s_nop 3", f"s_setpc_b64 {sr(sRET,2)}"]
    return out
def rare_b(label):
    out = [f"{label}:", "s_nop 15"]
    for qb in range(4):
        f_ = vT + qb
        for j in range(4): out.append(f"v_mul_f32 {vr(vL+4*qb+j)}, {vr(vL+4*qb+j)}, {vr(f_)}")
        for j in range(0, 32, 2):
            a0 = Oreg(qb, 0) + j
            out += [f"v_accvgpr_read_b32 {vr(vMX)}, {ar(a0)}", f"v_accvgpr_read_b32 {vr(vMX+1)}, {ar(a0+1)}",
                    f"v_mul_f32 {vr(vMX)}, {vr(vMX)}, {vr(f_)}", f"v_mul_f32 {vr(vMX+1)}, {vr(vMX+1)}, {vr(f_)}",
                    f"v_accvgpr_write_b32 {ar(a0)}, {vr(vMX)}", f"v_accvgpr_write_b32 {ar(a0+1)}, {vr(vMX+1)}"]
    out += ["s_nop 3", f"s_setpc_b64 {sr(sRET,2)}"]
    return out

def wfrag(st, s, dt): return (128 if st % 2 == 0 else 192) + 4 * (dt * 2 + s)
def xfrag(st, s, qb): return (96 if st % 2 == 0 else 32) + 4 * (qb * 2 + s)
def qacc(qb, dt): return Ureg(dt // 4, (dt // 2) % 2, qb) + 4 * (dt % 2)
def qp_reads(st):
    out = []
    for qb in range(4):
        for s in range(2):
            out.append(f"ds_read_b128 {vr(xfrag(st,s,qb),4)}, {vr(vXA + 2*(st%2) + s)} offset:{qb*2048} ; #x{st}")
    for dt in range(8):
        for s in range(2):
            for t in range(2):
                out.append(f"ds_read_b64_tr_b16 {ar(wfrag(st,s,dt)+2*t,2)}, {vr(vWA + dt)} offset:{(st%3)*16384 + (32*s+4*t)*256} ; #w{st}")
    return out
def qp_dma(st):
    G = []
    wf = (" " + CFG["wqld"]) if CFG.get("wqld") else ""
    xf = (" " + CFG["xld"]) if CFG.get("xld") else ""
    for p in range(4):
        g = []
        if p == 0:
            g = [f"s_add_u32 {sr(sRX)}, {sr(sRQ)}, {st}", f"s_and_b32 {sr(sRX)}, {sr(sRX)}, 7", f"s_lshl_b32 {sr(sRW)}, {sr(sRX)}, 19",
                 f"s_lshl_b32 {sr(sRX)}, {sr(sRX)}, 7", m0_at(LWQ[st % 3])]
        g.append(f"s_add_u32 {sr(sDT)}, {sr(sRW)}, {p*(32768-1024)}")
        g.append(f"buffer_load_dwordx4 {vr(vDW + p//2)}, {sr(sWQ,4)}, {sr(sDT)} offen offset:{1024*p}{wf} lds ; #st{st}")
        G.append(g)
    for p in range(8):
        g = [f"s_add_u32 m0, {sr(sW8K)}, {LX[st%2] + (p//4)*4096}"] if p % 4 == 0 else []
        g.append(f"s_add_u32 {sr(sDT)}, {sr(sRX)}, {p*8192 - 1024*(p%4)}")
        g.append(f"buffer_load_dwordx4 {vr(vDX + p%2)}, {sr(sX,4)}, {sr(sDT)} offen offset:{1024*(p%4)}{xf} lds ; #st{st}")
        G.append(g)
    return G
def qp_one(st, dt, qb, s, first):
    d = qacc(qb, dt)
    return f"{MF} {vr(d,4)}, {ar(wfrag(st,s,dt),4)}, {vr(xfrag(st,s,qb),4)}, {'0' if first else vr(d, 4)}"
def qp_mfmas(st):
    return [qp_one(st, dt, qb, (i if qb % 2 == 0 else 1 - i), st == 0 and i == 0) for dt in range(8) for qb in range(4) for i in range(2)]
def qp_q(st, qb):
    return [qp_one(st, dt, qb, (i if dt % 2 == 0 else 1 - i), False) for dt in range(8) for i in range(2)]
def qconv(qb, s):
    d = qacc(qb, 2 * s); q = Qreg(qb, s)
    out = [f"v_mul_f32 {vr(d+j)}, {sr(sSC)}, {vr(d+j)}" for j in range(8)]
    out += [f"v_cvt_pk_bf16_f32 {vr(q+j)}, {vr(d+2*j)}, {vr(d+2*j+1)}" for j in (0, 2, 1, 3)]
    return out, [f"v_permlane32_swap_b32 {vr(q)}, {vr(q+2)}", f"v_permlane32_swap_b32 {vr(q+1)}, {vr(q+3)}"], \
                [f"v_permlane16_swap_b32 {vr(q)}, {vr(q+2)}", f"v_permlane16_swap_b32 {vr(q+1)}, {vr(q+3)}"]
def qconv_stream(qb):
    parts = [qconv(qb, s) for s in range(4)]
    out = []
    for s in range(4):
        a = parts[s][0]
        if s == 0: out += [(x, s) for x in a]
        else: out += [(x, s) for x in a[:4]] + [(x, s) for x in parts[s-1][1]] + [(x, s) for x in a[4:8]] + [(x, s) for x in parts[s-1][2]] + [(x, s) for x in a[8:]]
    out += [("s_nop 1", 3)] + [(x, 3) for x in parts[3][1]] + [("s_nop 1", 3)] + [(x, 3) for x in parts[3][2]]
    return out

def setup_a():
    o = []; A = o.append
    A("s_cmp_ge_u32 s2, 256")
    A("s_cbranch_scc1 L_end")
    if CFG.get("fixdur"): A("s_memrealtime s[42:43]")
    A(f"s_load_dwordx16 {sr(sARG,16)}, s[0:1], 0")
    if CFG["codepf"]:
        A(f"s_getpc_b64 {sr(sT,2)}")
        A("L_pc:")
        A(f"s_bfe_u32 {sr(sT+2)}, s2, 0x30003")
        A(f"v_lshrrev_b32 {vr(u0)}, 6, v0"); A(f"v_and_b32 {vr(u1)}, 15, v0"); A(f"v_lshl_add_u32 {vr(u0)}, {vr(u0)}, 4, {vr(u1)}")
        A(f"v_lshlrev_b32 {vr(u0)}, 10, {vr(u0)}"); A(f"s_lshl_b32 {sr(sT+2)}, {sr(sT+2)}, 7"); A(f"v_add_u32 {vr(u0)}, {sr(sT+2)}, {vr(u0)}")
        A(f"v_min_u32 {vr(u0)}, L_end-L_pc, {vr(u0)}")
        A(f"global_load_dword {vr(vDUM[0])}, {vr(u0)}, {sr(sT,2)} ; #pf")
    A(f"s_and_b32 {sr(sCB)}, s2, 7")
    A(f"s_lshr_b32 {sr(sT+3)}, s2, 3")
    A(f"s_and_b32 {sr(sMT)}, {sr(sT+3)}, 3"); A(f"s_lshr_b32 {sr(sNT)}, {sr(sT+3)}, 2")
    if CFG.get("pmap", "4x8") == "4x8":
        A(f"s_and_b32 {sr(sB)}, {sr(sCB)}, 1"); A(f"s_lshl_b32 {sr(sB)}, {sr(sB)}, 2"); A(f"s_add_u32 {sr(sB)}, {sr(sB)}, {sr(sMT)}")
        A(f"s_lshr_b32 {sr(sH)}, {sr(sCB)}, 1"); A(f"s_lshl_b32 {sr(sH)}, {sr(sH)}, 3"); A(f"s_add_u32 {sr(sH)}, {sr(sH)}, {sr(sNT)}")
    else:
        A(f"s_mov_b32 {sr(sB)}, {sr(sCB)}"); A(f"s_mov_b32 {sr(sH)}, {sr(sT+3)}")
    rq = CFG.get("rq", "x")
    if rq == "n": A(f"s_mov_b32 {sr(sRQ)}, 0")
    elif rq == "x": A(f"s_mov_b32 {sr(sRQ)}, {sr(sCB)}")
    elif rq == "h": A(f"s_mov_b32 {sr(sRQ)}, {sr(sH)}")
    elif rq == "f": A(f"s_lshl_b32 {sr(sRQ)}, {sr(sB)}, 1"); A(f"s_add_u32 {sr(sRQ)}, {sr(sRQ)}, {sr(sH)}")
    elif rq == "g": A(f"s_add_u32 {sr(sRQ)}, {sr(sB)}, {sr(sH)}")
    A(f"v_lshrrev_b32 {vr(u0)}, 6, v0")
    A(f"v_and_b32 {vr(ln)}, 63, v0")
    A(f"v_readfirstlane_b32 {sr(sWAVE)}, {vr(u0)}")
    A(f"v_lshrrev_b32 {vr(u1)}, 4, {vr(ln)}")
    A(f"v_and_b32 {vr(u2)}, 15, {vr(ln)}")
    A(f"v_lshl_add_u32 {vr(u4)}, {vr(u0)}, 4, {vr(u1)}")
    A(f"v_lshlrev_b32 {vr(u3)}, 1, {vr(u1)}")
    A(f"v_xor_b32 {vr(u3)}, {vr(u3)}, {vr(u2)}")
    A(f"v_lshlrev_b32 {vr(u5)}, 4, {vr(u3)}")
    A(f"v_lshl_add_u32 {vr(vDW)}, {vr(u4)}, 13, {vr(u5)}")
    A(f"v_xor_b32 {vr(vDW+1)}, 0x80, {vr(vDW)}")
    A(f"v_lshrrev_b32 {vr(u3)}, 3, {vr(ln)}")
    A(f"v_lshl_add_u32 {vr(u0)}, {vr(u0)}, 6, {vr(u3)}")
    A(f"v_and_b32 {vr(u3)}, 7, {vr(ln)}")
    A(f"v_xor_b32 {vr(u3)}, {vr(u1)}, {vr(u3)}")
    A(f"v_lshlrev_b32 {vr(u3)}, 4, {vr(u3)}")
    A(f"v_lshl_add_u32 {vr(vDX)}, {vr(u0)}, 10, {vr(u3)}")
    A(f"v_xor_b32 {vr(vDX+1)}, 64, {vr(vDX)}")
    A(f"s_lshl_b32 {sr(sW4K)}, {sr(sWAVE)}, 12")
    A(f"s_lshl_b32 {sr(sW8K)}, {sr(sWAVE)}, 13")
    A(f"s_lshl_b32 {sr(sT)}, {sr(sB)}, 18")
    A(f"s_lshl_b32 {sr(sT+1)}, {sr(sH)}, 8")
    A("s_waitcnt lgkmcnt(0)")
    o += stamp()
    o += srd_at(sWQ, 6, sr(sT+1), 511*8192 + 256)
    o += srd_at(sX, 0, sr(sT), 0x40000)
    return o

def wo_piece_addr():
    return [f"v_lshrrev_b32 {vr(u0)}, 5, v0", f"v_and_b32 {vr(u1)}, 0x1e, {vr(u0)}", f"v_and_b32 {vr(u0)}, 1, {vr(u0)}",
            f"v_lshl_add_u32 {vr(u0)}, {vr(u1)}, 2, {vr(u0)}",
            f"v_and_b32 {vr(u1)}, 31, v0", f"v_lshlrev_b32 {vr(u1)}, 4, {vr(u1)}", f"v_lshl_add_u32 {vr(vWOF)}, {vr(u0)}, 10, {vr(u1)}"]
def wo_piece_dma():
    o = [m0_at(LWO)]
    for p in range(4):
        o.append(f"s_mov_b32 {sr(sDT)}, {1024*p}")
        o.append(f"buffer_load_dwordx4 {vr(vWOF)}, {sr(sWO2,4)}, {sr(sDT)} offen offset:{1024*p} nt lds ; #wo")
    return o

def warm_loads(nst):
    o = []; A = o.append
    A(f"v_lshrrev_b32 {vr(u3)}, 6, v0"); A(f"v_and_b32 {vr(u2)}, 15, v0"); A(f"v_lshl_add_u32 {vr(u3)}, {vr(u3)}, 4, {vr(u2)}")
    A(f"v_and_b32 {vr(u1)}, {nst - 1}, {vr(u3)}"); A(f"v_add_u32 {vr(u1)}, {sr(sRQ)}, {vr(u1)}"); A(f"v_add_u32 {vr(u1)}, 1, {vr(u1)}")
    A(f"v_and_b32 {vr(u1)}, 7, {vr(u1)}")
    A(f"v_lshrrev_b32 {vr(u2)}, 1, {vr(u3)}")
    A(f"v_lshlrev_b32 {vr(u0)}, 7, {vr(u1)}"); A(f"v_lshl_add_u32 {vr(u0)}, {vr(u2)}, 10, {vr(u0)}")
    A(f"s_and_b32 {sr(sT)}, {sr(sH)}, 7"); A(f"s_lshl_b32 {sr(sT)}, {sr(sT)}, 15")
    A(f"buffer_load_dword {vr(vDUM[1])}, {vr(u0)}, {sr(sX,4)}, {sr(sT)} offen ; #warm")
    A(f"v_lshlrev_b32 {vr(u0)}, 19, {vr(u1)}")
    A(f"v_lshrrev_b32 {vr(u3)}, 1, {vr(u2)}"); A(f"v_lshl_add_u32 {vr(u0)}, {vr(u3)}, 13, {vr(u0)}")
    A(f"v_and_b32 {vr(u3)}, 1, {vr(u2)}"); A(f"v_lshl_add_u32 {vr(u0)}, {vr(u3)}, 7, {vr(u0)}")
    A(f"s_and_b32 {sr(sT)}, {sr(sB)}, 3"); A(f"s_lshl_b32 {sr(sT)}, {sr(sT)}, 17")
    A(f"buffer_load_dword {vr(vDUM[2])}, {vr(u0)}, {sr(sWQ,4)}, {sr(sT)} offen ; #warm")
    return o

def setup_b():
    o = []; A = o.append
    A(f"s_lshl_b32 {sr(sT+2)}, {sr(sB)}, 5"); A(f"s_add_u32 {sr(sT+2)}, {sr(sT+2)}, {sr(sH)}")
    A(f"s_lshl_b32 {sr(sT)}, {sr(sT+2)}, 18")
    o += srd_at(sK, 2, sr(sT), 0x40000)
    o += srd_at(sV, 4, sr(sT), 0x40000)
    A(f"s_lshl_b32 {sr(sT+1)}, {sr(sT+2)}, 7"); A(f"s_add_u32 {sr(sT+1)}, {sr(sT+1)}, {FLAG_OFF}")
    o += srd_at(sFL, 14, sr(sT+1), 8)
    A(f"s_getreg_b32 {sr(sXCC)}, hwreg(HW_REG_XCC_ID, 0, 4)")
    o += srd_at(sDB, 12, "0", 256)
    A(f"s_and_b32 {sr(sT+1)}, {sr(sT+2)}, 3"); A(f"s_lshl_b32 {sr(sT+1)}, {sr(sT+1)}, 6")
    o += srd_at(sDBW, 12, sr(sT+1), 4)
    A(f"s_lshr_b32 {sr(sT)}, {sr(sT+2)}, 1"); A(f"s_and_b32 {sr(sT+2)}, {sr(sT+2)}, 1")
    A(f"s_lshl_b32 {sr(sT+1)}, {sr(sT)}, 15"); A(f"s_lshl_b32 {sr(sT+3)}, {sr(sT+2)}, 9"); A(f"s_add_u32 {sr(sT+1)}, {sr(sT+1)}, {sr(sT+3)}")
    o += srd_at(sWO2, 8, sr(sT+1), 31*1024 + 512)
    A(f"s_lshl_b32 {sr(sT+2)}, {sr(sT+2)}, 2"); A(f"s_add_u32 {sr(sT+2)}, {sr(sT+2)}, {sr(sWAVE)}"); A(f"s_lshl_b32 {sr(sT+2)}, {sr(sT+2)}, 19")
    A(f"s_lshl_b32 {sr(sT)}, {sr(sT)}, 12"); A(f"s_add_u32 {sr(sT)}, {sr(sT)}, {sr(sT+2)}"); A(f"s_add_u32 {sr(sT)}, {sr(sT)}, {WOF_OFF}")
    o += srd_at(sWS2, 14, sr(sT), 4096)
    A(f"s_lshl_b32 {sr(sT)}, {sr(sB)}, 2"); A(f"s_add_u32 {sr(sT)}, {sr(sT)}, {sr(sWAVE)}"); A(f"s_lshl_b32 {sr(sT)}, {sr(sT)}, 19")
    A(f"s_lshl_b32 {sr(sT+1)}, {sr(sH)}, 14"); A(f"s_add_u32 {sr(sT)}, {sr(sT)}, {sr(sT+1)}")
    o += srd_at(sO, 14, sr(sT), 16384)
    if CFG.get("fewst"):
        A(f"s_cmp_eq_u32 {sr(sMT)}, 0"); A(f"s_cselect_b32 {sr(sO+2)}, {sr(sO+2)}, 0")
    rot = CFG.get("rot", "j")
    if rot == "j": A(f"s_lshr_b32 {sr(sROT)}, s2, 3"); A(f"s_add_u32 {sr(sROT)}, {sr(sROT)}, s2"); A(f"s_and_b32 {sr(sROT)}, {sr(sROT)}, 15"); A(f"s_lshl_b32 {sr(sROT)}, {sr(sROT)}, 14")
    else: A(f"s_mov_b32 {sr(sROT)}, 0")
    if CFG.get("itst"): A("s_mov_b32 s42, 0"); A("s_mov_b32 s43, 0x100")
    A(f"s_mov_b32 {sr(sTHR)}, 0x41000000")
    c = math.log2(math.e) / math.sqrt(128.0)
    A(f"s_mov_b32 {sr(sSC)}, 0x{struct.unpack('<I', struct.pack('<f', c))[0]:08x}")
    A(f"v_lshl_add_u32 {vr(vDV)}, {vr(u4)}, 8, {vr(u5)}")
    A(f"v_xor_b32 {vr(vDV+1)}, 0x80, {vr(vDV)}")
    g_, c16 = u1, u2
    A(f"v_lshrrev_b32 {vr(g_)}, 4, {vr(ln)}")
    A(f"v_and_b32 {vr(c16)}, 15, {vr(ln)}")
    A(f"v_xor_b32 {vr(u3)}, {vr(g_)}, {vr(c16)}")
    A(f"v_lshlrev_b32 {vr(u3)}, 4, {vr(u3)}")
    A(f"v_lshl_add_u32 {vr(vDK)}, {vr(u4)}, 8, {vr(u3)}")
    for p in range(1, 4): A(f"v_xor_b32 {vr(vDK+p)}, {64*p}, {vr(vDK)}")
    if CONT:
        A(f"s_lshl_b32 {sr(sW1K)}, {sr(sWAVE)}, 10")
        A(f"v_lshrrev_b32 {vr(vDK+1)}, 4, v0")
        A(f"v_xor_b32 {vr(vDK+2)}, {vr(vDK+1)}, {vr(c16)}"); A(f"v_lshlrev_b32 {vr(vDK+2)}, 4, {vr(vDK+2)}")
        A(f"v_lshl_add_u32 {vr(vDK)}, {vr(vDK+1)}, 8, {vr(vDK+2)}")
        A(f"v_and_b32 {vr(vDK+2)}, 7, {vr(vDK+1)}"); A(f"v_lshlrev_b32 {vr(vDK+2)}, 1, {vr(vDK+2)}")
        A(f"v_xor_b32 {vr(vDK+2)}, {vr(vDK+2)}, {vr(c16)}"); A(f"v_lshlrev_b32 {vr(vDK+2)}, 4, {vr(vDK+2)}")
        A(f"v_lshl_add_u32 {vr(vDV)}, {vr(vDK+1)}, 8, {vr(vDK+2)}")
    A(f"v_lshl_add_u32 {vr(vKA)}, {vr(c16)}, 8, {vr(u3)}")
    for s in range(1, 4): A(f"v_xor_b32 {vr(vKA+s)}, {64*s}, {vr(vKA)}")
    A(f"v_lshrrev_b32 {vr(u3)}, 1, {vr(c16)}")
    A(f"v_xor_b32 {vr(u3)}, {vr(g_)}, {vr(u3)}")
    A(f"v_lshlrev_b32 {vr(u3)}, 4, {vr(u3)}")
    A(f"v_lshl_add_u32 {vr(u3)}, {vr(c16)}, 7, {vr(u3)}")
    A(f"v_add_u32 {vr(u3)}, {sr(sW8K)}, {vr(u3)}")
    for sl in range(2):
        A(f"v_add_u32 {vr(vXA+2*sl)}, {LX[sl]}, {vr(u3)}")
        A(f"v_xor_b32 {vr(vXA+2*sl+1)}, 64, {vr(vXA+2*sl)}")
    A(f"v_cmp_eq_u32 vcc, 0, {vr(c16)}")
    A(f"v_mov_b32 {vr(u3)}, 0x3f803f80")
    r_, f_, c8 = u0, u4, u5
    A(f"v_bfe_u32 {vr(r_)}, {vr(ln)}, 2, 2")
    for j in range(4): A(f"v_cndmask_b32 {vr(vONES+j)}, 0, {vr(u3)}, vcc")
    A(f"v_bfe_u32 {vr(f_)}, {vr(ln)}, 2, 3")
    A(f"v_and_b32 {vr(c8)}, 3, {vr(ln)}")
    A(f"v_lshlrev_b32 {vr(c8)}, 3, {vr(c8)}")
    A(f"v_lshrrev_b32 {vr(u3)}, 2, {vr(ln)}")
    A(f"v_lshl_add_u32 {vr(vWOA)}, {vr(u3)}, 9, {vr(c8)}")
    A(f"s_lshl_b32 {sr(sT)}, {sr(sWAVE)}, 7"); A(f"s_add_u32 {sr(sT)}, {sr(sT)}, {LWO}")
    A(f"v_add_u32 {vr(vWOA)}, {sr(sT)}, {vr(vWOA)}")
    A(f"v_lshl_add_u32 {vr(c8)}, {vr(f_)}, 5, {vr(c8)}")
    A(f"v_lshl_add_u32 {vr(u3)}, {vr(u3)}, 8, {vr(c8)}")
    A(f"v_add_u32 {vr(vVA)}, {LV}, {vr(u3)}")
    for dt in range(1, 8): A(f"v_xor_b32 {vr(vVA+dt)}, {32*dt}, {vr(vVA)}")
    A(f"v_lshl_add_u32 {vr(u3)}, {vr(g_)}, 3, {vr(r_)}")
    A(f"v_lshl_add_u32 {vr(u3)}, {vr(u3)}, 8, {vr(c8)}")
    A(f"v_add_u32 {vr(vWA)}, {LWQ[0]}, {vr(u3)}")
    for dt in range(1, 8): A(f"v_xor_b32 {vr(vWA+dt)}, {32*dt}, {vr(vWA)}")
    A(f"v_lshlrev_b32 {vr(vWOS)}, 4, {vr(ln)}")
    A(f"s_lshl_b32 {sr(sT)}, {sr(sWAVE)}, 17")
    A(f"v_add_u32 {vr(vLIN)}, {sr(sT)}, {vr(vWOS)}")
    A(f"v_mov_b32 {vr(vT)}, 0"); A(f"v_mov_b32 {vr(vT+1)}, {sr(sXCC)}")
    o += wo_piece_addr()
    return o

def wo_reads():
    return [f"ds_read_b64_tr_b16 {ar(192+4*i+2*tt,2)}, {vr(vWOA)} offset:{i*32 + tt*8192} ; #wo" for i in range(4) for tt in range(2)]
def wo_stores():
    return [[f"buffer_store_dwordx4 {ar(192+4*i,4)}, {vr(vWOS)}, {sr(sWS2,4)}, 0 offen offset:{i*1024} sc1 ; #wst"] for i in range(4)] + \
           []

def pairs(lst): return [lst[i:i+2] for i in range(0, len(lst), 2)]
def prologue():
    qs = stamp if CFG["qst"] else (lambda: [])
    o = setup_a()
    o += flat(qp_dma(0))
    nw = int(CFG.get("nwarm", 2))
    o += (warm_loads(nw) if nw else [])
    o += qs()
    o += setup_b()
    o += qs()
    o += ["@wait st0", "s_barrier"] + stamp()
    r0 = qp_reads(0); d1 = qp_dma(1)
    for i in range(12): o += d1[i] + r0[i * 40 // 12:(i + 1) * 40 // 12]
    kv = lambda *l: groups_of(sum([kv_batch(x[0], int(x[1:])) for x in l], []))
    bg = [int(x) for x in CFG.get("bg", "36,36,32,24,16,8,0").split(",")]
    step = float(CFG.get("qstep", 4.5))
    B = [64 * s + bg[s] for s in range(7)]
    mf = sum([qp_mfmas(st) for st in range(6)], [])
    for st, qb in ((6, 0), (6, 1), (7, 0), (7, 1), (6, 2), (6, 3), (7, 2), (7, 3)): mf += qp_q(st, qb)
    Q0 = len(mf)
    mf += [qk_one(0, kb, qb, (i if kb % 2 == 0 else 3 - i), i == 0, czero=True) for qb in range(4) for kb in range(4) for i in range(4)]
    nvm = {}; pre = {}; vm = {}
    def put_vm(g, grp):
        while g in vm or g in B: g += 1
        vm[g] = grp; return g
    pos = -step + 1
    ek = dict(x.split(":") for x in CFG.get("ek", "").split(",") if x)
    for k in range(2, 8):
        for i, grp in enumerate(qp_dma(k)):
            e = 0 if k == 2 else (B[k-3] + 1 if i < 4 else B[k-3] + 13)
            pos = max(pos + step, e)
            if i == 4: grp = [f"@wait - lds=x{k-2}"] + grp
            put_vm(int(pos), grp)
        if str(k) in ek:
            for grp in (groups_of(wo_piece_dma()) if ek[str(k)] == "wo" else kv(ek[str(k)])):
                pos += 2; put_vm(int(pos), grp)
    kstep = float(CFG.get("kstep", 9))
    BK, BQ = 384 + 94, Q0 + 56
    sched = [("K0", 0), ("wo", 0), ("K1", 0), ("V0", B[5] + 1), ("K2", B[6] + 1), ("V1", B[6] + 1)]
    sched = [(groups_of(wo_piece_dma()) if n == "wo" else kv(n), e) for n, e in sched if n not in ek.values()]
    for grps, e in sched:
        for grp in grps:
            pos = max(pos + kstep, e)
            put_vm(int(pos), grp)
    assert pos < Q0 + 64, pos
    if CFG["verbose"]: print("vm gaps:", sorted(vm))
    for s in range(7):
        pre.setdefault(B[s], []).append(f"@wait st{s+1}")
        nvm.setdefault(B[s], []).append("s_barrier")
        hi = 64 * (s + 1) - 7 if s < 6 else 384 + 26
        rg = [g for g in range(B[s] + 1, hi) if g not in vm]
        nvm = merge(nvm, spread(pairs(qp_reads(s + 1)), rg))
        pre.setdefault(64 * s, []).insert(0, f"@wait - lds=x{s},w{s}")
        if CFG["qst"]: pre[64 * s] = qs() + pre[64 * s]
    pre.setdefault(384 + 32, []).append("@wait - lds=x7,w7")
    nvm = merge(nvm, spread(pairs(wo_reads()), [g for g in range(Q0 + 1, Q0 + 12) if g not in vm]))
    pre.setdefault(BK, []).append("@wait K0,wo"); nvm.setdefault(BK, []).append("s_barrier")
    nvm = merge(nvm, spread(pairs([rd_k(0, n) for n in range(16)]), [g for g in range(384 + 96, 384 + 120) if g not in vm]))
    pre.setdefault(Q0, []).append("@wait - lgkm=0"); pre[Q0] = stamp() + pre[Q0]
    pre.setdefault(BQ, []).append("@wait K1,V0 lds=wo"); nvm.setdefault(BQ, []).append("s_barrier")
    nvm = merge(nvm, {Q0 + 57: [f"s_add_u32 {sr(sTILE)}, {sr(sROT)}, {(DIST-1)*16384}"], Q0 + 58: [f"s_and_b32 {sr(sTILE)}, {sr(sTILE)}, 0x3ffff"],
                      Q0 + 59: [f"s_add_u32 {sr(sTK)}, {sr(sROT)}, {DIST*16384}"], Q0 + 60: [f"s_and_b32 {sr(sTK)}, {sr(sTK)}, 0x3ffff"],
                      Q0 + 61: [f"s_mov_b32 {sr(sCNT)}, 0"]})
    for g in sorted(vm):
        grp = vm[g]; sca = grp[:-1]
        prevv = max([x for x in vm if x < g], default=-1)
        gg = g
        for x in reversed(sca):
            nvm.setdefault(gg, []).insert(0, x)
            if gg - 1 > prevv and gg > 0: gg -= 1
        nvm.setdefault(g, []).append(grp[-1])
    va = [(f"v_accvgpr_write_b32 {ar(r)}, 0", 0, "z") for r in range(128)]
    done = {0: 384 + 32, 1: 384 + 48, 2: 384 + 96, 3: 384 + 112}
    for qb in range(4):
        va += [(t, done[qb] + 4 * s + 3 + 3, f"q{qb}") for t, s in qconv_stream(qb)]
    va += [(f"v_mov_b32 {vr(vL+j)}, 0", Q0, "z") for j in range(16)]
    part, left = weave(mf, nvm, va, pre=pre, need={Q0 + 16 * q: f"q{q}" for q in range(4)})
    for k in range(1, 6):
        assert max(i for i, x in enumerate(part) if x.endswith(f"#x{k}")) < part.index(f"@wait - lds=x{k}"), k
    o += part
    o += qs()
    o += [rd_k(1, n) for n in EARLY_K]
    o.append(f"buffer_store_dwordx2 {vr(vT,2)}, {vr(vLIN)}, {sr(sFL,4)}, 0 offen sc1 ; #wst")
    if CFG["verbose"]: print("QK0 leftover VALU:", len(left))
    o += [t for t, _, _ in left]
    o.append("s_nop 7")
    ini = []
    for qb in range(4): ini += qmax(0, qb, vT + qb)
    for sw in ("v_permlane32_swap_b32", "v_permlane16_swap_b32"):
        ini += [f"v_mov_b32 {vr(vNEG+qb)}, {vr(vT+qb)}" for qb in range(4)]
        ini += [f"{sw} {vr(vT+qb)}, {vr(vNEG+qb)}" for qb in range(4)]
        ini += [f"v_max_f32 {vr(vT+qb)}, {vr(vT+qb)}, {vr(vNEG+qb)}" for qb in range(4)]
    for qb in range(4):
        ini += [f"v_sub_f32 {vr(vNEG+4*qb+j)}, 0, {vr(vT+qb)}" for j in range(4)]
    for ks, qb in UNITS:
        r = Ureg(0, ks, qb)
        ini += [f"v_pk_add_f32 {vr(r+j,2)}, {vr(r+j,2)}, {vr(vNEG+4*qb,2)}" for j in range(0, 8, 2)]
    ex_ = [exp_i(0, it[1]) for it in E_FIRST if it[0] == "exp"]; cv_ = [cvt_i(0, it[1]) for it in E_FIRST if it[0] == "cvt"]
    ini += ex_ + cv_
    G = wo_stores() + (kv("K3", "V2") if DIST == 4 else [])
    for i, g in enumerate(G):
        k = (i + 1) * len(ini) // (len(G) + 1)
        ini = ini[:k] + g + ini[k:]
    o += ini
    o.append("@wait - lds=k0,k1,k2,k3")
    o += stamp()
    o, fifo, lf = resolve(o, [])
    return o, fifo, lf

def phase_c_srds():
    o = []; A = o.append
    cmap = CFG.get("cmap", "b")
    if cmap == "p":
        A(f"s_and_b32 {sr(sT)}, {sr(sNT)}, 1"); A(f"s_lshr_b32 {sr(sNT)}, {sr(sNT)}, 1"); A(f"s_and_b32 {sr(sT+1)}, {sr(sCB)}, 1")
        A(f"s_and_b32 {sr(sCB)}, {sr(sCB)}, 6"); A(f"s_add_u32 {sr(sCB)}, {sr(sCB)}, {sr(sT)}")
        A(f"s_lshl_b32 {sr(sT+1)}, {sr(sT+1)}, 2"); A(f"s_add_u32 {sr(sNT)}, {sr(sNT)}, {sr(sT+1)}")
    if cmap == "q":
        A(f"s_and_b32 {sr(sT)}, {sr(sNT)}, 3"); A(f"s_lshr_b32 {sr(sNT)}, {sr(sNT)}, 2"); A(f"s_and_b32 {sr(sT+1)}, {sr(sCB)}, 3")
        A(f"s_and_b32 {sr(sCB)}, {sr(sCB)}, 4"); A(f"s_add_u32 {sr(sCB)}, {sr(sCB)}, {sr(sT)}")
        A(f"s_lshl_b32 {sr(sT+1)}, {sr(sT+1)}, 1"); A(f"s_add_u32 {sr(sNT)}, {sr(sNT)}, {sr(sT+1)}")
    if CFG.get("rc", "0x") == "n": A(f"s_lshl_b32 {sr(sRC)}, {sr(sNT)}, 14")
    else: A(f"s_mov_b32 {sr(sRC)}, 0")
    A(f"s_lshl_b32 {sr(sT)}, {sr(sNT)}, 19"); A(f"s_add_u32 {sr(sT)}, {sr(sT)}, {WOF_OFF}")
    o += srd_at(sWFL, 14, sr(sT), 0x80000)
    A(f"s_lshl_b32 {sr(sT)}, {sr(sCB)}, 2"); A(f"s_add_u32 {sr(sT)}, {sr(sT)}, {sr(sMT)}"); A(f"s_lshl_b32 {sr(sT+1)}, {sr(sT)}, 19")
    o += srd_at(sOL, 14, sr(sT+1), 0x80000)
    A(f"s_lshl_b32 {sr(sT)}, {sr(sT)}, 16"); A(f"s_lshl_b32 {sr(sT+1)}, {sr(sNT)}, 7"); A(f"s_add_u32 {sr(sT)}, {sr(sT)}, {sr(sT+1)}")
    o += srd_at(sOUT, 10, sr(sT), 63*1024 + 128)
    A(f"s_lshl_b32 {sr(sT)}, {sr(sCB)}, 12"); A(f"s_add_u32 {sr(sT)}, {sr(sT)}, {FLAG_OFF}")
    o += srd_at(sFLR, 14, sr(sT), 4096)
    return o

def tail_and_epilogue(u):
    p = u % 2
    o = []
    reads = [rd_v(u % 4, n, t) for n in range(16) for t in range(2)]
    er = [(exp_i(p, it[1]), UNITS[it[1] // 8][1]) if it[0] == "exp" else (cvt_i(p, it[1]), UNITS[it[1] // 4][1]) for it in E_REST]
    va = []
    for i, (t, q) in enumerate(er):
        if t.startswith("v_cvt") and i and er[i-1][0].startswith("v_exp"): va.append(("s_nop 0", 0, f"e{q}"))
        va.append((t, 0, f"e{q}"))
    mf = []
    for qb in range(4):
        mf += [sum_one(p, qb, 0), sum_one(p, qb, 1)]
        mf += [pv_one(p, dt, qb, (i if dt % 2 == 0 else 1 - i)) for dt in range(8) for i in range(2)]
    vOST = vCW
    if CFG.get("local"): va.append((f"v_cmp_ne_u32 {sr(sGLB,2)}, {sr(sXCC)}, {vr(vCW)}", 0, "x"))
    va.append((f"v_and_b32 {vr(vOST)}, 0x3ff, {vr(vLIN)}", 0, "x"))
    tmp = 2
    NMF = len(mf)
    fill = {0: [], 1: [], 2: [], 3: []}
    tail_names = CFG.get("tailw", "K3,V2,R3").split(",")
    post_names = [x for x in ("K3", "V2", "R3", "R4a", "R6a", "R6b", "R5", "R4b", "V3") if x not in tail_names]
    for qb in range(4):
        e0 = 18 * qb
        lsum = [f"v_mov_b32 {vr(vT+qb)}, {vr(vL+4*qb)}"] + allreduce("v_add_f32", vT + qb, vMX) + [f"v_rcp_f32 {vr(vT+qb)}, {vr(vT+qb)}"]
        va += [(t, max(12, e0 + 1 + 3), "o") for t in lsum]
        F = fill[qb]
        for s in range(4):
            e = e0 + 2 + 4 * s + 3 + 3
            b_ = tmp + 8 * (s % 2)
            va += [(f"v_accvgpr_read_b32 {vr(b_+j)}, {ar(Oreg(qb,2*s)+j)}", e, "o") for j in range(8)]
            va += [(f"@mul {b_+j} {vT+qb}", e, "o") for j in range(8)]
            d = Ureg(p, s // 2, qb) + 4 * (1 - s % 2)
            ee = e0 + 17 if s % 2 == 1 else e
            va += [(f"v_cvt_pk_bf16_f32 {vr(d+j)}, {vr(b_+2*j)}, {vr(b_+2*j+1)}", max(e, ee), "o") for j in range(4)]
            ld = flat(F[s * len(F) // 4:(s + 1) * len(F) // 4])
            va += [(t, NMF - 1 if qb == 3 else e, "o") for t in ld]
            va += [(f"s_mov_b32 {sr(sT)}, {s*4096}", e, "o"),
                   (f"buffer_store_dwordx4 {vr(d,4)}, {vr(vOST)}, {sr(sO,4)}, {sr(sT)} offen offset:{qb*1024} {CFG.get('ost', 'sc1').replace('+', ' ').replace('plain', '')} ; #ost", e, "o")]
    va = [((f"v_mul_f32 {vr(int(t.split()[1]))}, {vr(int(t.split()[1]))}, {vr(int(t.split()[2]))}" if t.startswith("@mul") else t), e, k) for t, e, k in va]
    o += reads[:12]
    nvm = spread(pairs(reads[12:]), list(range(0, 10)))
    pre = {2 + 2 * dt: [f"@wait - lds=v{2*dt},v{2*dt+1}"] for dt in range(8)}
    early = [[x.replace(sr(sSP), sr(sTK)) for x in g] for g in sum([wo_loads(x) for x in tail_names], [])]
    nvm = merge(nvm, spread(early, list(range(10, int(CFG.get("tailhi", 58)), 2))))
    part, left = weave(mf, nvm, va, pre=pre, need={18 * q: f"e{q}" for q in range(4)})
    o += part
    o += stamp()
    o.append("s_nop 7")
    lf_ = [t for t, _, _ in left]
    i = 0
    while i < len(lf_):
        m1 = re.match(r"v_mul_f32 v(\d+), v\d+, v(\d+)", lf_[i]); m2 = re.match(r"v_mul_f32 v(\d+), v\d+, v(\d+)", lf_[i+1]) if i + 1 < len(lf_) else None
        if m1 and m2 and int(m1.group(1)) % 2 == 0 and int(m2.group(1)) == int(m1.group(1)) + 1:
            r = int(m1.group(1)); f_ = int(m1.group(2))
            sel = "op_sel_hi:[1,0]" if f_ % 2 == 0 else "op_sel:[0,1] op_sel_hi:[1,1]"
            o.append(f"v_pk_mul_f32 {vr(r,2)}, {vr(r,2)}, {vr(f_ - f_ % 2,2)} {sel}"); i += 2
        else:
            o.append(lf_[i]); i += 1
    A = o.append
    A(f"v_mov_b32 {vr(vMX)}, 1")
    A(f"v_and_b32 {vr(vT)}, 7, v0"); A(f"v_lshlrev_b32 {vr(vT)}, 7, {vr(vT)}")
    A(f"s_lshl_b32 {sr(sT)}, {sr(sWAVE)}, 10"); A(f"v_add_u32 {vr(vT)}, {sr(sT)}, {vr(vT)}")
    A(f"v_add_u32 {vr(vKA)}, {sr(sW4K)}, {vr(vOST)}")
    A(f"v_add_u32 {vr(vKA+1)}, 0x10000, {vr(vKA)}")
    A(f"v_add_u32 {vr(vKA+2)}, 0x20000, {vr(vKA)}")
    A(f"s_mov_b32 {sr(sCNT)}, 0")
    if CFG.get("forceglobal"): A(f"s_mov_b64 {sr(sGLB,2)}, -1")
    if CFG.get("local"): A(f"s_cmp_lg_u64 {sr(sGLB,2)}, 0")
    A("@wait ost")
    A("s_barrier")
    if CFG.get("local"): A("s_cbranch_scc1 L_pubg")
    A(f"buffer_store_dword {vr(vMX)}, {vr(vLIN)}, {sr(sFL,4)}, 0 offen {CFG.get('flagst', 'sc1')} ; #flag")
    A("L_pubg_back:")
    o += stamp()
    post = sum([wo_loads(x) for x in post_names], [])
    k1 = int(CFG.get("pollat", 16))
    o += flat(post[:k1])
    A(f"buffer_load_dword {vr(vT+1)}, {vr(vT)}, {sr(sFLR,4)}, 0 offen sc1 ; #poll1")
    o += flat(post[k1:])
    A("@wait poll1")
    A(f"v_cmp_ne_u32 vcc, 1, {vr(vT+1)}")
    A("s_cbranch_vccz L_go")
    A("L_poll:")
    A(f"buffer_load_dword {vr(vT+1)}, {vr(vT)}, {sr(sFLR,4)}, 0 offen {CFG.get('pollld', 'sc1').replace('+', ' ')} ; #poll")
    A("s_waitcnt vmcnt(0)")
    A(f"v_cmp_ne_u32 vcc, 1, {vr(vT+1)}")
    A("s_cbranch_vccz L_go")
    A(f"s_add_u32 {sr(sCNT)}, {sr(sCNT)}, 1")
    A(f"s_cmp_lt_u32 {sr(sCNT)}, {CFG['spin']}")
    A("s_cbranch_scc1 L_poll")
    A("L_go:")
    if CFG.get("local"): A(f"s_cmp_lg_u64 {sr(sGLB,2)}, 0"); A("s_cbranch_scc1 L_acq")
    A("L_acq_back:")
    o += stamp()
    return o

def phase_c():
    o = []; A = o.append
    ns = int(CFG.get("nstream", 0))
    pool = [vS + 64 + 16 * i for i in range(4)] + [256 + aF + 16 * (4 - ns + i) for i in range(ns)]
    oreg = {}; wtmp = {}
    nxt = 0
    MAXFLY = int(CFG.get("maxfly", 8))
    INIT = int(CFG.get("initfly", 4))
    def issue_o(c, lim):
        nonlocal nxt
        G = []
        reserve = sum(1 for k in range(c + 3, min(32, c + 5)) if WCLASS[k][0] == "l")
        while nxt < 32 and len(pool) > reserve + (WCLASS[nxt][0] == "s") and nxt - c <= lim:
            r = pool.pop(0); oreg[nxt] = r
            for qb in range(4):
                g = step_off(nxt) if qb == 0 else []
                g.append(f"buffer_load_dwordx4 {rr(r + 4*qb, 4)}, {vr(vLIN)}, {sr(sOL,4)}, {sr(sSP)} offen offset:{qb*1024} {CFG.get('old', 'sc1').replace('+', ' ').replace('plain', '')} ; #o{nxt}")
                G.append(g)
            if WCLASS[nxt][0] == "s":
                r = pool.pop(0); wtmp[nxt] = r
                for n in range(4):
                    G.append([f"buffer_load_dwordx4 {rr(r + 4*n, 4)}, {vr(vLIN)}, {sr(sWFL,4)}, {sr(sSP)} offen offset:{n*1024} sc1 ; #o{nxt}"])
            nxt += 1
        return G
    def lds_reads(c):
        addr = WCLASS[c][1]
        r = pool.pop(0); wtmp[c] = r
        return [f"ds_read_b128 {rr(r + 4*n, 4)}, {vr(vKA + addr // 65536)} offset:{addr % 65536 + n*1024} ; #w{c}" for n in range(4)]
    o += flat(issue_o(-1, INIT))
    carry = issue_o(-1, MAXFLY)
    for c in range(0, 32, 2):
        rd = []
        for k in (c + 2, c + 3):
            if k < 32 and WCLASS[k][0] == "l": rd += lds_reads(k)
        A(f"@wait o{c},o{c+1} lds=w{c},w{c+1}")
        if c == 0: o += stamp()
        w = [WCLASS[k][1] if WCLASS[k][0] == "r" else wtmp[k] for k in (c, c + 1)]
        mf = []
        for n in range(4):
            for qb in range(4):
                d = ar(64 + 4 * (n * 4 + qb), 4)
                for i in range(2):
                    k = i if qb % 2 == 0 else 1 - i
                    mf.append(f"{MF} {d}, {rr(w[k] + 4*n, 4)}, {rr(oreg[c+k] + 4*qb, 4)}, {d if (c or i) else 0}")
        hi = int(CFG.get("chi", 32))
        nvm = merge(spread(pairs(rd), [3, 9, 15, 21]) if rd else {}, spread(carry, list(range(0, hi, 2))) if carry else {})
        part, _ = weave(mf, nvm)
        o += part
        pool.extend([oreg[c], oreg[c+1]] + w)
        carry = issue_o(c + 1, MAXFLY)
    assert not carry
    o += stamp()
    A("v_and_b32 v7, 63, v0")
    A("v_and_b32 v8, 15, v7"); A("v_lshrrev_b32 v9, 4, v7")
    A("v_xor_b32 v10, v8, v9"); A("v_lshlrev_b32 v10, 4, v10")
    A("v_lshl_add_u32 v8, v8, 8, v10")
    A(f"v_add_u32 v32, {sr(sW4K)}, v8")
    for n in range(1, 4): A(f"v_xor_b32 {vr(32+n)}, {n*64}, v32")
    A("v_lshrrev_b32 v8, 3, v0"); A("v_and_b32 v9, 7, v0"); A("v_lshlrev_b32 v10, 1, v9")
    A("v_and_b32 v11, 15, v8"); A("v_xor_b32 v10, v10, v11"); A("v_lshlrev_b32 v10, 4, v10")
    A("v_lshl_add_u32 v10, v11, 8, v10")
    A("v_lshrrev_b32 v11, 4, v8"); A("v_lshl_add_u32 v10, v11, 14, v10"); A("v_xor_b32 v11, 16, v10")
    A("v_lshlrev_b32 v9, 4, v9"); A("v_lshl_add_u32 v14, v8, 10, v9")
    for n in range(4):
        for qb in range(4):
            A(f"ds_write_b128 {vr(32 + n)}, {ar(64 + 4*(n*4+qb), 4)} offset:{qb*16384}")
    A("s_waitcnt lgkmcnt(0)")
    A("s_barrier")
    for z in range(2):
        for w in range(4):
            for i in range(2):
                A(f"ds_read_b128 {vr(64 + z*32 + w*8 + i*4, 4)}, {vr(10 + i)} offset:{w*4096 + z*32768}")
    A(f"s_mov_b32 {sr(sT)}, {32*1024}")
    for z in range(2):
        A(f"s_waitcnt lgkmcnt({8 if z == 0 else 0})")
        b = 64 + z * 32
        for j in range(8):
            A(f"v_add_f32 {vr(b+j)}, {vr(b+j)}, {vr(b+8+j)}")
            A(f"v_add_f32 {vr(b+16+j)}, {vr(b+16+j)}, {vr(b+24+j)}")
        for j in range(8): A(f"v_add_f32 {vr(b+j)}, {vr(b+j)}, {vr(b+16+j)}")
        for j in range(4): A(f"v_cvt_pk_bf16_f32 {vr(b+8+j)}, {vr(b+2*j)}, {vr(b+2*j+1)}")
        A(f"buffer_store_dwordx4 {vr(b+8,4)}, v14, {sr(sOUT,4)}, {sr(sT) if z else 0} offen {CFG.get('outst', '').replace('+', ' ')}")
    return o

def peeled(lf):
    o = [f"s_mov_b32 {sr(sT)}, 0xe00fe000", f"v_cmp_ne_u32 vcc, {sr(sT)}, {vr(vCW)}", "s_cbranch_vccnz L_cw", "L_cw_back:"]
    srds = phase_c_srds()
    sg = [g for g in range(0, 42) if g not in (15, 31)]
    ex12 = merge({g: [x] for g, x in zip(sg, srds)},
                 place(groups_of(kv_batch("V", 15) if DIST == 4 else kv_batch("K", 15) + kv_batch("V", 14)) + wo_loads("K0") + wo_loads("W0") + wo_loads("W1"), 42, NG))
    assert len(srds) <= len(sg)
    if CFG.get("local"): ex12 = merge(ex12, {38: [f"v_and_b32 {vr(vCW)}, 31, v0", f"v_lshlrev_b32 {vr(vCW)}, 7, {vr(vCW)}"],
                        39: [f"buffer_load_dword {vr(vCW)}, {vr(vCW)}, {sr(sFLR,4)}, 0 offen offset:4 sc1 ; #ids"]})
    o += iteration(0, "L_r4", ex12, "K14,V13")
    o += iteration(1, "L_r5", place((groups_of(kv_batch("V", 15)) if DIST == 3 else []) + wo_loads("K1") + wo_loads("V0") + wo_loads("R1"), 0, NG), "K15,V14")
    ex14 = merge(place(wo_loads("K2") + wo_loads("V1"), 0, 64), place(wo_loads("R2"), 64, NG))
    if CFG.get("touch"):
        tg = int(CFG["touch"][1:])
        tch = {tg: [f"v_and_b32 {vr(vDK)}, 63, v0", f"v_lshlrev_b32 {vr(vDK)}, 7, {vr(vDK)}"],
               tg + 1: [f"buffer_load_dword {vr(vDK+1)}, {vr(vDK)}, {sr(sO,4)}, 0 offen sc1 ; #tch"],
               tg + 9: [f"s_mov_b32 {sr(sTK)}, 8192", f"buffer_load_dword {vr(vDK+2)}, {vr(vDK)}, {sr(sO,4)}, {sr(sTK)} offen sc1 ; #tch"]}
        ex14 = merge(ex14, tch)
    o += iteration(2, "L_r6", ex14, "V15", nextk=False)
    o += stamp()
    o += tail_and_epilogue(3)
    o += phase_c()
    fifo = ["K14"] * 4 + ["V13"] * 4 + (["K15"] * 4 + ["V14"] * 4 if DIST == 4 else [])
    if CFG.get("skipst"): o = [x for x in o if "#ost" not in x]
    o, _, _ = resolve(o, fifo, lf)
    return o

def stamp_out():
    if not CFG["stamps"]: return []
    o = ["s_waitcnt vmcnt(0)"] + stamp()
    A = o.append
    A(f"s_lshl_b32 {sr(sT)}, s2, 10"); A(f"s_add_u32 {sr(sT)}, {sr(sT)}, {STAMP_OFF}")
    o += srd_at(4, 14, sr(sT), 1024)
    A("v_lshlrev_b32 v1, 2, v0")
    A(f"buffer_store_dword v{STV}, v1, s[4:7], 0 offen")
    if CFG.get("dbgout"):
        o += srd_at(4, 12, "0", 64)
        A("v_and_b32 v2, 63, v0")
        A("v_lshlrev_b32 v1, 1, v2"); A("v_add_u32 v1, 6, v1")
        A("v_and_b32 v3, 1, v2"); A("v_cmp_eq_u32 vcc, 0, v3"); A("v_mov_b32 v3, 0x1000"); A("s_nop 1")
        A("v_cndmask_b32 v1, v1, v3, vcc")
        A(f"v_cmp_lt_u32 vcc, {2*nstamp[0]}, v2"); A("s_nop 1"); A("v_cndmask_b32 v1, v1, v3, vcc")
        A(f"buffer_atomic_umax v{STV}, v1, s[4:7], 0 offen sc1")
        A(f"v_not_b32 v4, v{STV}")
        A("v_cmp_eq_u32 vcc, 1, v2"); A("s_nop 1"); A("v_cndmask_b32 v1, v3, 4, vcc")
        A(f"buffer_atomic_umax v4, v1, s[4:7], 0 offen sc1")
    return o

def kernel():
    pro, fifo, lf0 = prologue()
    _, _, lf = resolve(iteration(0, "x") + iteration(1, "x"), [])
    its = []
    for u in range(4):
        it, _, lf2 = resolve(iteration(u, f"L_r{u}"), [], lf)
        assert lf2 == lf
        its.append(it)
    assert len(lf0) >= len(lf) and lf0[len(lf0)-len(lf):] == lf or CFG["stamps"] or CFG.get("probe"), (lf0, lf)
    pe = peeled(lf)
    body = list(pro)
    body.append("L_loop:")
    for u in range(4):
        it = list(its[u])
        if u == 3:
            k = [i for i, x in enumerate(it) if x.startswith(MF)]
            it.insert(k[-3] + 1, f"s_cmp_lt_u32 {sr(sCNT)}, 3")
            it.insert(k[-4] + 1, f"s_add_u32 {sr(sCNT)}, {sr(sCNT)}, 1")
            it.append("s_cbranch_scc1 L_loop")
            its[3] = it
        body += it
    body += pe
    body += stamp_out()
    if CFG.get("fixdur"):
        body += ["L_fix:", "s_memrealtime s[98:99]", "s_waitcnt lgkmcnt(0)", "s_sub_u32 s98, s98, s42", f"s_cmp_lt_u32 s98, {int(CFG['fixdur'])*100}", "s_cbranch_scc1 L_fix"]
    body.append("L_end:")
    body.append("s_endpgm")
    for u in range(7):
        body += [f"L_r{u}a:", f"s_call_b64 {sr(sRET,2)}, L_ra{1 - u % 2}", f"s_branch L_r{u}a_back"]
        body += [f"L_r{u}b:", f"s_call_b64 {sr(sRET,2)}, L_rb", f"s_branch L_r{u}b_back"]
    body += ["L_cw:", f"s_mov_b32 {sr(sCNT)}, 0", "L_cw_loop:",
             f"v_and_b32 {vr(vCW)}, 3, v0", f"v_lshlrev_b32 {vr(vCW)}, 6, {vr(vCW)}",
             f"buffer_load_dword {vr(vCW)}, {vr(vCW)}, {sr(sDB,4)}, 0 offen sc1", "s_waitcnt vmcnt(0)",
             f"v_cmp_ne_u32 vcc, {sr(sT)}, {vr(vCW)}", "s_cbranch_vccz L_cw_back",
             f"s_add_u32 {sr(sCNT)}, {sr(sCNT)}, 1", f"s_cmp_lt_u32 {sr(sCNT)}, {CFG['spin']}", "s_cbranch_scc1 L_cw_loop",
             "s_branch L_cw_back"]
    if CFG.get("local"): body += ["L_pubg:", "buffer_wbl2 sc1", "s_waitcnt vmcnt(0)",
             f"buffer_store_dword {vr(vMX)}, {vr(vLIN)}, {sr(sFL,4)}, 0 offen sc1", "s_branch L_pubg_back"]
    if CFG.get("local"): body += ["L_acq:", "buffer_inv sc1", "s_waitcnt vmcnt(0)", "s_branch L_acq_back"]
    for p in range(2): body += rare_a(p, f"L_ra{p}")
    body += rare_b("L_rb")
    loop = its[0] + its[1] + its[2] + its[3]
    check(pro + loop + loop + pe, "main")
    def with_rare(seq):
        o = []
        for x in seq:
            m = re.match(r"L_r(\d)([ab])_back:", x)
            if m: o += (rare_a(1 - int(m.group(1)) % 2, "x") if m.group(2) == "a" else rare_b("x"))[1:]
            o.append(x)
        return o
    check(pro + with_rare(loop + pe), "rare")
    if CFG["verbose"]:
        for g in range(NG): print(g, PLAN[g])
    return "\n".join(body)

if __name__ == "__main__":
    k = kernel()
    txt = file_text([dict(label=NAME + "_kernel", body=k, grid=256, block=256, lds=163840, vgpr=512, accum=256)], single=True)
    open(sys.argv[1], "w").write(txt)
```

```python
import sys, math, struct, re
from asmlib import *
from check import check

CFG = dict(qst=False, stamps=False, codepf=True, warm=True, spin=200000, verbose=False)
for a in sys.argv[2:]:
    k, v = a.split("=")
    CFG[k] = {"0": False, "1": True}.get(v, v)

MF = "v_mfma_f32_16x16x32_bf16"
def vr(b, n=1): return f"v{b}" if n == 1 else f"v[{b}:{b+n-1}]"
def ar(b, n=1): return f"a{b}" if n == 1 else f"a[{b}:{b+n-1}]"
def sr(b, n=1): return f"s{b}" if n == 1 else f"s[{b}:{b+n-1}]"
def rr(r, n=1): return vr(r, n) if r < 256 else ar(r - 256, n)
def slots(t):
    if t.startswith(("v_exp", "v_rcp", "buffer_", "global_", "v_permlane")): return 2
    if t.startswith(("s_", "@", "L_")): return 0
    return 1

sX, sWQ, sK, sV, sO = 4, 8, 12, 16, 20
sWFL, sOL = 4, 8
sWAVE, sB, sH, sW4K, sW8K = 24, 25, 26, 27, 28
sCB, sMT, sNT = 29, 30, 31
sXO, sWO = 32, 40
sOUT, sFLR = 32, 36
sTILE, sCNT, sTHR, sSC, sSP = 44, 45, 46, 47, 48
sRET = 50
sTK, sROT, sRQ, sRX, sRW = 49, 92, 93, 94, 95
sW1K, sDT = 96, 97
sRC = 93
sXCC, sGLB = 3, 40
sT = 52
sARG = 56
sFL, sDB, sDBW = 72, 76, 88
sWS2, sWO2 = 80, 84
vKA, vVA, vDK, vDV = 1, 5, 13, 17
vMX, vLIN, vCW, STV = 19, 21, 22, 23
vT = 24
vONES = 28
vNEG, vL, vQ, vS = 32, 48, 64, 128
vWA, vXA, vDX, vDW, vWOF = 64, 72, 76, 78, 80
vWOA, vWOS = 19, 20
vDUM = [22, 26, 27]
u0, u1, u2, u3, u4, u5, ln = 128, 129, 130, 131, 132, 133, 134
aO, aF = 0, 128
LK, LV, LW = 0, 65536, 131072
LX = [81920, 131072]
LWQ = [32768, 49152, 65536]
LWO = 114688
WOF_OFF, FLAG_OFF, STAMP_OFF = 0x1000000, 0x1400000, 0x4000000

def Ureg(p, ks, qb): return vS + 64 * p + 8 * (ks * 4 + qb)
def Sreg(p, kb, qb): return Ureg(p, kb // 2, qb) + 4 * (kb % 2)
def Oreg(qb, dt): return aO + 4 * (qb * 8 + dt)
def Qreg(qb, s): return vQ + 16 * qb + 4 * s
def Freg(n): return aF + 4 * n

nstamp = [0]
def stamp():
    if CFG.get("probe"):
        i = nstamp[0]; nstamp[0] += 1
        return ["s_memrealtime s[42:43]", "s_waitcnt lgkmcnt(0)"] if i == int(CFG["probe"][1:]) else []
    if not CFG["stamps"]: return []
    i = nstamp[0]; nstamp[0] += 1
    assert i < 30
    return ["s_memtime s[100:101]", "s_waitcnt lgkmcnt(0)", f"v_writelane_b32 v{STV}, s100, {2*i}",
            "s_memrealtime s[100:101]", "s_waitcnt lgkmcnt(0)", f"v_writelane_b32 v{STV}, s100, {2*i+1}"]

def srd(s, size):
    return [f"s_and_b32 {sr(s+1)}, {sr(s+1)}, 0xffff", f"s_mov_b32 {sr(s+2)}, {size}", f"s_mov_b32 {sr(s+3)}, 0x20000"]
def srd_at(s, arg, offreg, size):
    return [f"s_add_u32 {sr(s)}, {sr(sARG+arg)}, {offreg}", f"s_addc_u32 {sr(s+1)}, {sr(sARG+arg+1)}, 0"] + srd(s, size)

def tag(lst, t): return [(x + f" ; #{t}") if x.startswith(("buffer_", "global_")) and "#" not in x else x for x in lst]
def resolve(seq, fifo, lfifo=()):
    fifo = list(fifo); lf = list(lfifo); out = []
    def cut(f, n): return f[len(f) - n:] if 0 < n < len(f) else (f if n else [])
    for x in seq:
        if x.startswith("@wait"):
            parts = x.split()
            w = []
            idx = [i for i, t in enumerate(fifo) if t in parts[1].split(",")]
            if idx:
                n = min(63, len(fifo) - 1 - max(idx)); fifo = cut(fifo, n); w.append(f"vmcnt({n})")
            for p in parts[2:]:
                if p.startswith("vm="): n = int(p[3:]); fifo = cut(fifo, n); w.append(f"vmcnt({n})")
                if p.startswith("lgkm="): n = int(p[5:]); lf = cut(lf, n); w.append(f"lgkmcnt({n})")
                if p.startswith("lds="):
                    idx = [i for i, t in enumerate(lf) if t in p[4:].split(",")]
                    if idx:
                        n = min(15, len(lf) - 1 - max(idx)); lf = cut(lf, n); w.append(f"lgkmcnt({n})")
            if w: out.append("s_waitcnt " + " ".join(w))
            continue
        m = re.search(r"#(\S+)", x)
        if x.startswith(("buffer_", "global_")): fifo.append(m.group(1) if m else "?")
        if x.startswith("ds_"): lf.append(m.group(1) if m else "?")
        m = re.match(r"s_waitcnt.*vmcnt\((\d+)\)", x)
        if m: fifo = cut(fifo, int(m.group(1)))
        m = re.match(r"s_waitcnt.*lgkmcnt\((\d+)\)", x)
        if m: lf = cut(lf, int(m.group(1)))
        out.append(x)
    return out, fifo, lf

CONT = CFG.get("cont", False)
DIST = int(CFG.get("dist", 3))
def dma_k(p, soff):
    if CONT: return f"buffer_load_dwordx4 {vr(vDK)}, {sr(sK,4)}, {sr(sDT)} offen nt lds"
    return f"buffer_load_dwordx4 {vr(vDK+p)}, {sr(sK,4)}, {soff} offen offset:{1024*p} nt lds"
def dma_v(p, soff):
    if CONT: return f"buffer_load_dwordx4 {vr(vDV)}, {sr(sV,4)}, {sr(sDT)} offen nt lds"
    return f"buffer_load_dwordx4 {vr(vDV + p%2)}, {sr(sV,4)}, {soff} offen offset:{1024*p} nt lds"
def cont_pre(base, p, soff): return [f"s_add_u32 m0, {sr(sW1K)}, {base + p*4096}", f"s_add_u32 {sr(sDT)}, {soff}, {p*4096}"]
def m0_at(addr): return f"s_add_u32 m0, {sr(sW4K)}, {addr}"
def kv_batch(which, tile):
    out = [m0_at((LK + slotK(tile) * 16384 if which == "K" else LV + slotV(tile) * 16384)), f"s_add_u32 {sr(sT)}, {sr(sROT)}, {tile*16384}", f"s_and_b32 {sr(sT)}, {sr(sT)}, 0x3ffff"]
    for p in range(4):
        if CONT: out += cont_pre((LK if which == "K" else LV) + (tile % 4) * 16384, p, sr(sT))
        out.append(dma_k(p, sr(sT)) if which == "K" else dma_v(p, sr(sT)))
    return tag(out, f"{which}{tile}")

NPASS = int(CFG.get("npass", 3))
PEEL0 = 4 * NPASS
def slotK(t): return t % 4 if t < PEEL0 + 3 else slotK(t - 3)
def slotV(t): return t % 4 if t < PEEL0 + 2 else slotV(t - 3)
def rd_k(slot, n):
    kb, s = n // 4, n % 4
    return f"ds_read_b128 {ar(Freg(n),4)}, {vr(vKA+s)} offset:{slot*16384 + kb*4096} ; #k{n}"
def rd_v(slot, n, t):
    dt, ks = n // 2, n % 2
    return f"ds_read_b64_tr_b16 {ar(Freg(n)+2*t,2)}, {vr(vVA+dt)} offset:{slot*16384 + (32*ks+16*t)*256} ; #v{n}"

def qk_one(p, kb, qb, s, first, czero=False):
    d = Sreg(p, kb, qb)
    c = vr(d, 4) if not first else ("0" if czero else vr(vNEG + 4*qb, 4))
    return f"{MF} {vr(d,4)}, {ar(Freg(kb*4+s),4)}, {vr(Qreg(qb,s),4)}, {c}"
def qk_list(p):
    return [qk_one(p, kb, qb, (i if qb % 2 == 0 else 3 - i), i == 0) for kb in range(4) for qb in range(4) for i in range(4)]
def pv_one(p, dt, qb, ks):
    o = Oreg(qb, dt)
    return f"{MF} {ar(o,4)}, {ar(Freg(dt*2+ks),4)}, {vr(Ureg(p,ks,qb),4)}, {ar(o,4)}"
def sum_one(p, qb, ks):
    return f"{MF} {vr(vL+4*qb,4)}, {vr(vONES,4)}, {vr(Ureg(p,ks,qb),4)}, {vr(vL+4*qb,4)}"
def pv_list(p):
    return ([pv_one(p, dt, qb, (i if qb % 2 == 0 else 1 - i)) for dt in range(8) for qb in range(4) for i in range(2)]
            + [sum_one(p, qb, ks) for qb in range(4) for ks in range(2)])

UNITS = [(0, 0), (1, 0), (1, 1), (0, 1), (0, 2), (1, 2), (1, 3), (0, 3)]
def ereg(p, e): ks, qb = UNITS[e // 8]; return Ureg(p, ks, qb) + e % 8
def exp_i(p, e): r = ereg(p, e); return f"v_exp_f32 {vr(r)}, {vr(r)}"
def cvt_i(p, k):
    r = ereg(p, 2 * k); return f"v_cvt_pk_bf16_f32 {vr(r - (2*k) % 8 + k % 4)}, {vr(r)}, {vr(r+1)}"
def max_items(p):
    out = []
    for kb in range(4):
        for qb in range(4):
            r = Sreg(p, kb, qb); m = vr(vMX + qb % 2); done = 16 * kb + 4 * qb + 3
            if kb == 0 and qb < 2:
                out.append((f"v_max3_f32 {m}, {vr(r)}, {vr(r+1)}, {vr(r+2)}", done))
                out.append((f"v_max_f32 {m}, {vr(r+3)}, {m}", done))
            else:
                out.append((f"v_max3_f32 {m}, {vr(r)}, {vr(r+1)}, {m}", done))
                out.append((f"v_max3_f32 {m}, {vr(r+2)}, {vr(r+3)}, {m}", done))
    return out

NG = 136
HOOKA = 69
BARG = 118
LAT = 8
def make_plan():
    plan = {g: [] for g in range(NG)}
    T0 = HOOKA
    dsp = int(CFG.get("dsp", 14))
    dv0 = int(CFG.get("dv0", 72))
    dma_g = [4 + dsp * i for i in range(4)] + [dv0 + dsp * i for i in range(4)]
    dma_t = [g + NG if g < HOOKA else g for g in dma_g]
    NX2 = int(CFG.get('nx2', 40))
    r2 = [t for t in range(T0, NG) if t != BARG and t not in dma_t]
    r1 = [t for t in range(NG, NG + 64) if t not in dma_t]
    xt = [r2[i * len(r2) // NX2] for i in range(NX2)] + [r1[i * len(r1) // (64 - NX2)] for i in range(64 - NX2)]
    assert len(set(xt)) == 64
    for e, t in enumerate(xt): plan[t % NG].append(("exp", e, t >= NG))
    for i, t in enumerate(dma_t): plan[t % NG].append(("dma", i))
    Y = []
    for k in range(32):
        Y.append((xt[2*k+1] + 1, NG + 64 + k // 4 - 2, ("cvt", k)))
    for i, (_, done) in enumerate(max_items(0)):
        Y.append((NG + done + 3, NG + HOOKA - 3, ("max", i)))
    Y.append((NG + 66, NG + HOOKA - 2, ("max", 32))); Y.append((NG + 66, NG + HOOKA - 1, ("max", 33)))
    for n in range(16):
        Y.append((max(BARG + 1, 64 + 8 * (n // 2) + 7), NG + 16 * (n // 4) - LAT, ("k", n)))
    NV1 = int(CFG.get("nv1", 10))
    for n in range(16):
        e, d = 16 * (n // 4) + 15, min(64 + 8 * (n // 2) - LAT, BARG - 10)
        for t in range(2):
            if n < NV1: Y.append((NG + e, NG + min(d, HOOKA - 1), ("v", n, t)))
            else: Y.append((T0, d, ("v", n, t)))
    def kind(y): return y[2][0] + ("1" if y[2][0] == "v" and y[0] >= NG else "")
    ygaps = [t for t in range(T0, T0 + NG) if not plan[t % NG] and t % NG != BARG]
    pend = list(Y)
    for t in ygaps:
        g = t % NG
        picked = []
        for _ in range(2):
            heads = {}
            for y in pend: heads.setdefault(kind(y), y)
            c = [y for y in heads.values() if y[0] <= t]
            if not c: break
            def eff(y):
                same = [z for z in pend if kind(z) == kind(y)]
                return min(z[1] - i / 1.2 for i, z in enumerate(same))
            y = min(c, key=eff)
            assert t <= y[1], ("deadline miss", t, y)
            picked.append(y); pend.remove(y)
        picked.sort(key=lambda y: 0 if y[2][0] in ("k", "v") else 1)
        for y in picked: plan[g].append(y[2] + ((t >= NG,) if y[2][0] == "cvt" else ()))
    assert not pend, pend
    return plan
PLAN = make_plan()

def iteration(i, lab, loads=None, salu=()):
    assert DIST == 3 and not CONT
    p = i % 2
    steady = i < PEEL0
    sc = {g: [] for g in range(NG)}
    for kb in range(4): sc[16 * kb - 1 if kb else NG - 2].append(f"@wait - lds=" + ",".join(f"k{kb*4+s}" for s in range(4)))
    for dt in range(8):
        if 64 + 8 * dt - 1 < BARG - 1: sc[64 + 8 * dt - 1].append(f"@wait - lds=v{2*dt},v{2*dt+1}")
    sc[BARG - 1].append("@wait - vm=8 lgkm=0" if steady else f"@wait K{i+2},V{i+1} lgkm=0")
    sc[BARG].append("s_barrier")
    if CFG.get("itst"):
        sc[BARG - 2].append("s_memrealtime s[98:99]")
        sc[BARG] += ["s_mov_b64 exec, s[42:43]", f"v_mov_b32 v{STV}, s98", "s_mov_b64 exec, -1", "s_lshl_b64 s[42:43], s[42:43], 1"]
    sc[HOOKA] += [f"s_cbranch_vccnz {lab}a", f"{lab}a_back:"]
    sc[NG - 1] = [f"s_cbranch_vccnz {lab}b", f"{lab}b_back:"] + sc[NG - 1]
    extra = {}
    vm = {}
    hask, hasv = i + 3 <= 15, i + 2 <= 15
    for j, g in enumerate(DMA_GAPS):
        if j < 4 and hask: vm[g] = [m0_at(LK + slotK(i + 3) * 16384), dma_k(j, sr(sTK)) + f" ; #K{i+3}"]
        if j >= 4 and hasv: vm[g] = [m0_at(LV + slotV(i + 2) * 16384), dma_v(j - 4, sr(sTILE)) + f" ; #V{i+2}"]
    sc[120].append(f"s_mov_b32 {sr(sTILE)}, {sr(sTK)}")
    sc[121].append(f"s_add_u32 {sr(sTK)}, {sr(sTK)}, 0x4000")
    sc[122].append(f"s_and_b32 {sr(sTK)}, {sr(sTK)}, 0x3ffff")
    if steady:
        if i == 1:
            extra[64] = [f"v_and_b32 {vr(vCW)}, 3, v0", f"v_lshlrev_b32 {vr(vCW)}, 6, {vr(vCW)}"]
            extra[65] = [f"buffer_load_dword {vr(vCW)}, {vr(vCW)}, {sr(sDB,4)}, 0 offen sc1"]
            sc[40].append(f"s_cmp_eq_u32 {sr(sCNT)}, {NPASS - 1}")
            sc[41].append(f"s_cselect_b32 {sr(sDB+2)}, 256, 0")
            extra[68] = [f"buffer_atomic_add {vr(vONES)}, {vr(vLIN)}, {sr(sDBW,4)}, 0 offen sc1"]
            sc[75].append(f"s_mov_b32 {sr(sDBW+2)}, 0")
    else:
        nextk = i + 2 <= 15
        def load(g):
            return sum(2 if it[0] == "exp" else (0 if it[0] == "dma" or (it[0] == "k" and g > BARG and not nextk) else 1) for it in PLAN[g])
        gs = 0
        for x in salu:
            while sc[gs] or gs in vm or gs + 1 in vm: gs += 1
            sc[gs].append(x); gs += 1
        for groups, lo, hi in loads:
            cand = [g for g in range(max(lo, gs + 3 if salu else 0), hi) if g not in vm and g not in (BARG, BARG - 1, HOOKA, NG - 1)]
            n = len(groups)
            for k, grp in enumerate(groups):
                win = cand[k * len(cand) // n:(k + 1) * len(cand) // n]
                vm[min(win, key=load)] = grp
    cur_m0 = None; prev = -1
    for g in sorted(vm):
        grp = vm[g]; sca = []
        for x in grp[:-1]:
            if x.startswith("s_add_u32 m0"):
                if x == cur_m0: continue
                cur_m0 = x
            sca.append(x)
        free = [q for q in range(prev + 1, g + 1) if not sc[q] and not (steady and q in (40, 41))]
        if sca and sca[-1].startswith("s_add_u32 m0"): free = [q for q in free if q < g]
        if len(free) >= len(sca):
            for x, q in zip(sca, free[len(free) - len(sca):]): sc[q].append(x)
        else:
            sc[g] += sca + ["s_nop 0"]
        prev = g
    mf = qk_list(1 - p) + pv_list(p)
    MX = [t for t, _ in max_items(1 - p)] + [f"v_max_f32 {vr(vMX)}, {vr(vMX)}, {vr(vMX+1)}", f"v_cmp_lt_f32 vcc, {sr(sTHR)}, {vr(vMX)}"]
    out = []
    for g in range(NG):
        out.append(mf[g])
        out += sc[g]
        ex = extra.get(g, [])
        out += [x for x in ex if not x.startswith("v_")]
        if g in vm: out.append(vm[g][-1])
        for it in PLAN[g]:
            k = it[0]
            if k == "exp": out.append(exp_i(p if it[2] else 1 - p, it[1]))
            elif k == "cvt": out.append(cvt_i(p if it[2] else 1 - p, it[1]))
            elif k == "max":
                if not CFG.get("nomax"): out.append(MX[it[1]])
            elif k == "k":
                t = i + (2 if g > BARG else 1)
                if t <= 15: out.append(rd_k(slotK(t), it[1]))
            elif k == "v": out.append(rd_v(slotV(i), it[1], it[2]))
        out += [x for x in ex if x.startswith("v_")]
        if CFG.get("slowdown") and g % int(CFG["slowdown"]) == 5: out.append("s_nop 7")
    return out
EARLY_K = [it[1] for g in range(BARG + 1, NG) for it in PLAN[g] if it[0] == "k"]
E_FIRST = [it for g in range(HOOKA, NG) for it in PLAN[g] if it[0] in ("exp", "cvt")]
E_REST = [it for g in range(0, HOOKA) for it in PLAN[g] if it[0] in ("exp", "cvt")]
DMA_GAPS = [g for g in range(NG) if any(it[0] == "dma" for it in PLAN[g])]
LIGHT = sorted(range(NG), key=lambda g: (sum(2 if it[0] in ("exp",) else (0 if it[0] == "dma" else 1) for it in PLAN[g])))

def spread(items, gaps):
    d = {}
    for i, it in enumerate(items):
        d.setdefault(gaps[i * len(gaps) // len(items)], []).extend(it)
    return d
def place(groups, lo, hi):
    cand = [g for g in LIGHT if lo <= g < hi and g not in (BARG, BARG - 1, HOOKA, NG - 1)]
    gs = sorted(cand[:len(groups)])
    assert len(gs) == len(groups)
    return {g: list(x) for g, x in zip(gs, groups)}
def merge(*maps):
    d = {}
    for m in maps:
        for k, v in m.items(): d.setdefault(k, []).extend(v)
    return d
def flat(G): return [x for g in G for x in g]
def groups_of(lst):
    G = []; cur = []
    for x in lst:
        cur.append(x)
        if x.startswith("buffer_"): G.append(cur); cur = []
    if cur: G[-1] += cur
    return G

WCLASS = {}
def plan_wo():
    P = {}; c = 0
    def add(name, kind, base, n):
        nonlocal c
        P[name] = list(range(c, c + n))
        for i in range(n): WCLASS[c] = (kind, base + 16 * i); c += 1
    add("R1", "r", 256 + 192, 4); add("R2", "r", vQ, 4); add("R3", "r", vS, 4)
    kx = [x for x in range(4) if x not in (slotK(13), slotK(14), slotK(15))][0]
    vx = [x for x in range(4) if x not in (slotV(13), slotV(14), slotV(15))][0]
    for nm, addr in (("W0", LW), ("W1", LW + 16384), ("Kx", LK + kx * 16384), ("Vx", LV + vx * 16384), ("K13", LK + slotK(13) * 16384),
                     ("K14", LK + slotK(14) * 16384), ("V13", LV + slotV(13) * 16384), ("K15", LK + slotK(15) * 16384), ("V14", LV + slotV(14) * 16384)):
        add(nm, "l", addr, 1)
    add("R4a", "r", vNEG, 1); add("R6a", "r", 256, 2); add("R6b", "r", 256 + 32, 2); add("R4b", "r", vL, 1); add("V15", "l", LV + slotV(15) * 16384, 1)
    ns = int(CFG.get("nstream", 0))
    add("R5", "r", 256 + aF, 4 - ns); add("ST", "s", 0, ns)
    assert c == 32
    return P
WP = plan_wo()
def step_off(c):
    if CFG.get("rc", "0x") != "n": return [f"s_mov_b32 {sr(sSP)}, {c * 4096}"]
    return [f"s_add_u32 {sr(sSP)}, {sr(sRC)}, {c * 4096}", f"s_and_b32 {sr(sSP)}, {sr(sSP)}, 0x1ffff"]
def wo_loads(name, allm0=False):
    groups = []
    if name in CFG.get("skipw", "").split(","): return [["s_nop 0"]] * 4
    for c in WP[name]:
        kind, where = WCLASS[c]
        for n in range(4):
            g = []
            if n == 0: g += step_off(c)
            if kind == "l" and (n == 0 or allm0): g.append(m0_at(where))
            if kind == "l" and n == 0 and not allm0: g.append("s_nop 0")
            if kind == "r":
                g.append(f"buffer_load_dwordx4 {rr(where + 4*n, 4)}, {vr(vLIN)}, {sr(sWFL,4)}, {sr(sSP)} offen offset:{n*1024} sc1 ; #w{c}")
            else:
                g.append(f"buffer_load_dwordx4 {vr(vLIN)}, {sr(sWFL,4)}, {sr(sSP)} offen offset:{n*1024} sc1 lds ; #w{c}")
            groups.append(g)
    return groups

def weave(mf, nvmap, va=(), pre=None, need=None):
    out = []; va = list(va)
    for g, m in enumerate(mf):
        if need and g in need:
            last = max([i for i, x in enumerate(va) if x[2] == need[g]], default=-1)
            if last >= 0:
                if va[last][1] > g - 1: out.append("s_nop 7")
                out += [x[0] for x in va[:last + 1]] + ["s_nop 1"]; va = va[last + 1:]
        if pre and g in pre: out += pre[g]
        out.append(m)
        nv = nvmap.get(g, [])
        out += nv
        c = sum(slots(x) for x in nv)
        while va and va[0][1] <= g and c + slots(va[0][0]) <= 2:
            c += slots(va[0][0]); out.append(va.pop(0)[0])
    return out, va

def allreduce(op, a, b):
    return [f"v_mov_b32 {vr(b)}, {vr(a)}", "s_nop 1", f"v_permlane32_swap_b32 {vr(a)}, {vr(b)}", "s_nop 1", f"{op} {vr(a)}, {vr(a)}, {vr(b)}",
            f"v_mov_b32 {vr(b)}, {vr(a)}", "s_nop 1", f"v_permlane16_swap_b32 {vr(a)}, {vr(b)}", "s_nop 1", f"{op} {vr(a)}, {vr(a)}, {vr(b)}"]
def qmax(p, qb, d):
    regs = [Sreg(p, kb, qb) + j for kb in range(4) for j in range(4)]
    o = [f"v_max3_f32 {vr(d)}, {vr(regs[0])}, {vr(regs[1])}, {vr(regs[2])}"]
    for i in range(3, 15, 2): o.append(f"v_max3_f32 {vr(d)}, {vr(regs[i])}, {vr(regs[i+1])}, {vr(d)}")
    o.append(f"v_max_f32 {vr(d)}, {vr(regs[15])}, {vr(d)}")
    return o
def rare_a(p, label):
    out = [f"{label}:", "s_nop 7"]
    for qb in range(4):
        d = vT + qb
        out += qmax(p, qb, d) + allreduce("v_max_f32", d, vMX)
        out.append(f"v_max_f32 {vr(d)}, 0, {vr(d)}")
        for j in range(4): out.append(f"v_sub_f32 {vr(vNEG+4*qb+j)}, {vr(vNEG+4*qb+j)}, {vr(d)}")
        for kb in range(4):
            for j in range(4):
                r = Sreg(p, kb, qb) + j
                out.append(f"v_sub_f32 {vr(r)}, {vr(r)}, {vr(d)}")
        out.append(f"v_exp_f32 {vr(d)}, -{vr(d)}")
    out += ["s_nop 3", f"s_setpc_b64 {sr(sRET,2)}"]
    return out
def rare_b(label):
    out = [f"{label}:", "s_nop 15"]
    for qb in range(4):
        f_ = vT + qb
        for j in range(4): out.append(f"v_mul_f32 {vr(vL+4*qb+j)}, {vr(vL+4*qb+j)}, {vr(f_)}")
        for j in range(0, 32, 2):
            a0 = Oreg(qb, 0) + j
            out += [f"v_accvgpr_read_b32 {vr(vMX)}, {ar(a0)}", f"v_accvgpr_read_b32 {vr(vMX+1)}, {ar(a0+1)}",
                    f"v_mul_f32 {vr(vMX)}, {vr(vMX)}, {vr(f_)}", f"v_mul_f32 {vr(vMX+1)}, {vr(vMX+1)}, {vr(f_)}",
                    f"v_accvgpr_write_b32 {ar(a0)}, {vr(vMX)}", f"v_accvgpr_write_b32 {ar(a0+1)}, {vr(vMX+1)}"]
    out += ["s_nop 3", f"s_setpc_b64 {sr(sRET,2)}"]
    return out

def wfrag(st, s, dt): return (128 if st % 2 == 0 else 192) + 4 * (dt * 2 + s)
def xfrag(st, s, qb): return (96 if st % 2 == 0 else 32) + 4 * (qb * 2 + s)
def qacc(qb, dt): return Ureg(dt // 4, (dt // 2) % 2, qb) + 4 * (dt % 2)
def qp_reads(st):
    out = []
    for qb in range(4):
        for s in range(2):
            out.append(f"ds_read_b128 {vr(xfrag(st,s,qb),4)}, {vr(vXA + 2*(st%2) + s)} offset:{qb*2048} ; #x{st}")
    for dt in range(8):
        for s in range(2):
            for t in range(2):
                out.append(f"ds_read_b64_tr_b16 {ar(wfrag(st,s,dt)+2*t,2)}, {vr(vWA + dt)} offset:{(st%3)*16384 + (32*s+4*t)*256} ; #w{st}")
    return out
def qp_dma(st):
    G = []
    wf = (" " + CFG["wqld"]) if CFG.get("wqld") else ""
    xf = (" " + CFG["xld"]) if CFG.get("xld") else ""
    for p in range(4):
        g = []
        if p == 0:
            g = [f"s_add_u32 {sr(sRX)}, {sr(sRQ)}, {st}", f"s_and_b32 {sr(sRX)}, {sr(sRX)}, 7", f"s_lshl_b32 {sr(sRW)}, {sr(sRX)}, 19",
                 f"s_lshl_b32 {sr(sRX)}, {sr(sRX)}, 7", m0_at(LWQ[st % 3])]
        g.append(f"s_add_u32 {sr(sDT)}, {sr(sRW)}, {p*(32768-1024)}")
        g.append(f"buffer_load_dwordx4 {vr(vDW + p//2)}, {sr(sWQ,4)}, {sr(sDT)} offen offset:{1024*p}{wf} lds ; #st{st}")
        G.append(g)
    for p in range(8):
        g = [f"s_add_u32 m0, {sr(sW8K)}, {LX[st%2] + (p//4)*4096}"] if p % 4 == 0 else []
        g.append(f"s_add_u32 {sr(sDT)}, {sr(sRX)}, {p*8192 - 1024*(p%4)}")
        g.append(f"buffer_load_dwordx4 {vr(vDX + p%2)}, {sr(sX,4)}, {sr(sDT)} offen offset:{1024*(p%4)}{xf} lds ; #st{st}")
        G.append(g)
    return G
def qp_one(st, dt, qb, s, first):
    d = qacc(qb, dt)
    return f"{MF} {vr(d,4)}, {ar(wfrag(st,s,dt),4)}, {vr(xfrag(st,s,qb),4)}, {'0' if first else vr(d, 4)}"
def qp_mfmas(st):
    return [qp_one(st, dt, qb, (i if qb % 2 == 0 else 1 - i), st == 0 and i == 0) for dt in range(8) for qb in range(4) for i in range(2)]
def qp_q(st, qb):
    return [qp_one(st, dt, qb, (i if dt % 2 == 0 else 1 - i), False) for dt in range(8) for i in range(2)]
def qconv(qb, s):
    d = qacc(qb, 2 * s); q = Qreg(qb, s)
    out = [f"v_mul_f32 {vr(d+j)}, {sr(sSC)}, {vr(d+j)}" for j in range(8)]
    out += [f"v_cvt_pk_bf16_f32 {vr(q+j)}, {vr(d+2*j)}, {vr(d+2*j+1)}" for j in (0, 2, 1, 3)]
    return out, [f"v_permlane32_swap_b32 {vr(q)}, {vr(q+2)}", f"v_permlane32_swap_b32 {vr(q+1)}, {vr(q+3)}"], \
                [f"v_permlane16_swap_b32 {vr(q)}, {vr(q+2)}", f"v_permlane16_swap_b32 {vr(q+1)}, {vr(q+3)}"]
def qconv_stream(qb):
    parts = [qconv(qb, s) for s in range(4)]
    out = []
    for s in range(4):
        a = parts[s][0]
        if s == 0: out += [(x, s) for x in a]
        else: out += [(x, s) for x in a[:4]] + [(x, s) for x in parts[s-1][1]] + [(x, s) for x in a[4:8]] + [(x, s) for x in parts[s-1][2]] + [(x, s) for x in a[8:]]
    out += [("s_nop 1", 3)] + [(x, 3) for x in parts[3][1]] + [("s_nop 1", 3)] + [(x, 3) for x in parts[3][2]]
    return out

def setup_a():
    o = []; A = o.append
    A("s_cmp_ge_u32 s2, 256")
    A("s_cbranch_scc1 L_end")
    if CFG.get("fixdur"): A("s_memrealtime s[42:43]")
    A(f"s_load_dwordx16 {sr(sARG,16)}, s[0:1], 0")
    if CFG["codepf"]:
        A(f"s_getpc_b64 {sr(sT,2)}")
        A("L_pc:")
        A(f"s_bfe_u32 {sr(sT+2)}, s2, 0x30003")
        A(f"v_lshrrev_b32 {vr(u0)}, 6, v0"); A(f"v_and_b32 {vr(u1)}, 15, v0"); A(f"v_lshl_add_u32 {vr(u0)}, {vr(u0)}, 4, {vr(u1)}")
        A(f"v_lshlrev_b32 {vr(u0)}, 10, {vr(u0)}"); A(f"s_lshl_b32 {sr(sT+2)}, {sr(sT+2)}, 7"); A(f"v_add_u32 {vr(u0)}, {sr(sT+2)}, {vr(u0)}")
        A(f"v_min_u32 {vr(u0)}, L_end-L_pc, {vr(u0)}")
        A(f"global_load_dword {vr(vDUM[0])}, {vr(u0)}, {sr(sT,2)} ; #pf")
    A(f"s_and_b32 {sr(sCB)}, s2, 7")
    A(f"s_lshr_b32 {sr(sT+3)}, s2, 3")
    A(f"s_and_b32 {sr(sMT)}, {sr(sT+3)}, 3"); A(f"s_lshr_b32 {sr(sNT)}, {sr(sT+3)}, 2")
    if CFG.get("pmap", "4x8") == "4x8":
        A(f"s_and_b32 {sr(sB)}, {sr(sCB)}, 1"); A(f"s_lshl_b32 {sr(sB)}, {sr(sB)}, 2"); A(f"s_add_u32 {sr(sB)}, {sr(sB)}, {sr(sMT)}")
        A(f"s_lshr_b32 {sr(sH)}, {sr(sCB)}, 1"); A(f"s_lshl_b32 {sr(sH)}, {sr(sH)}, 3"); A(f"s_add_u32 {sr(sH)}, {sr(sH)}, {sr(sNT)}")
    else:
        A(f"s_mov_b32 {sr(sB)}, {sr(sCB)}"); A(f"s_mov_b32 {sr(sH)}, {sr(sT+3)}")
    rq = CFG.get("rq", "x")
    if rq == "n": A(f"s_mov_b32 {sr(sRQ)}, 0")
    elif rq == "x": A(f"s_mov_b32 {sr(sRQ)}, {sr(sCB)}")
    elif rq == "h": A(f"s_mov_b32 {sr(sRQ)}, {sr(sH)}")
    elif rq == "f": A(f"s_lshl_b32 {sr(sRQ)}, {sr(sB)}, 1"); A(f"s_add_u32 {sr(sRQ)}, {sr(sRQ)}, {sr(sH)}")
    elif rq == "g": A(f"s_add_u32 {sr(sRQ)}, {sr(sB)}, {sr(sH)}")
    A(f"v_lshrrev_b32 {vr(u0)}, 6, v0")
    A(f"v_and_b32 {vr(ln)}, 63, v0")
    A(f"v_readfirstlane_b32 {sr(sWAVE)}, {vr(u0)}")
    A(f"v_lshrrev_b32 {vr(u1)}, 4, {vr(ln)}")
    A(f"v_and_b32 {vr(u2)}, 15, {vr(ln)}")
    A(f"v_lshl_add_u32 {vr(u4)}, {vr(u0)}, 4, {vr(u1)}")
    A(f"v_lshlrev_b32 {vr(u3)}, 1, {vr(u1)}")
    A(f"v_xor_b32 {vr(u3)}, {vr(u3)}, {vr(u2)}")
    A(f"v_lshlrev_b32 {vr(u5)}, 4, {vr(u3)}")
    A(f"v_lshl_add_u32 {vr(vDW)}, {vr(u4)}, 13, {vr(u5)}")
    A(f"v_xor_b32 {vr(vDW+1)}, 0x80, {vr(vDW)}")
    A(f"v_lshrrev_b32 {vr(u3)}, 3, {vr(ln)}")
    A(f"v_lshl_add_u32 {vr(u0)}, {vr(u0)}, 6, {vr(u3)}")
    A(f"v_and_b32 {vr(u3)}, 7, {vr(ln)}")
    A(f"v_xor_b32 {vr(u3)}, {vr(u1)}, {vr(u3)}")
    A(f"v_lshlrev_b32 {vr(u3)}, 4, {vr(u3)}")
    A(f"v_lshl_add_u32 {vr(vDX)}, {vr(u0)}, 10, {vr(u3)}")
    A(f"v_xor_b32 {vr(vDX+1)}, 64, {vr(vDX)}")
    A(f"s_lshl_b32 {sr(sW4K)}, {sr(sWAVE)}, 12")
    A(f"s_lshl_b32 {sr(sW8K)}, {sr(sWAVE)}, 13")
    A(f"s_lshl_b32 {sr(sT)}, {sr(sB)}, 18")
    A(f"s_lshl_b32 {sr(sT+1)}, {sr(sH)}, 8")
    A("s_waitcnt lgkmcnt(0)")
    o += stamp()
    o += srd_at(sWQ, 6, sr(sT+1), 511*8192 + 256)
    o += srd_at(sX, 0, sr(sT), 0x40000)
    return o

def wo_piece_addr():
    return [f"v_lshrrev_b32 {vr(u0)}, 5, v0", f"v_and_b32 {vr(u1)}, 0x1e, {vr(u0)}", f"v_and_b32 {vr(u0)}, 1, {vr(u0)}",
            f"v_lshl_add_u32 {vr(u0)}, {vr(u1)}, 2, {vr(u0)}",
            f"v_and_b32 {vr(u1)}, 31, v0", f"v_lshlrev_b32 {vr(u1)}, 4, {vr(u1)}", f"v_lshl_add_u32 {vr(vWOF)}, {vr(u0)}, 10, {vr(u1)}"]
def wo_piece_dma():
    o = [m0_at(LWO)]
    for p in range(4):
        o.append(f"s_mov_b32 {sr(sDT)}, {1024*p}")
        o.append(f"buffer_load_dwordx4 {vr(vWOF)}, {sr(sWO2,4)}, {sr(sDT)} offen offset:{1024*p} nt lds ; #wo")
    return o

def warm_loads(nst):
    o = []; A = o.append
    A(f"v_lshrrev_b32 {vr(u3)}, 6, v0"); A(f"v_and_b32 {vr(u2)}, 15, v0"); A(f"v_lshl_add_u32 {vr(u3)}, {vr(u3)}, 4, {vr(u2)}")
    A(f"v_and_b32 {vr(u1)}, {nst - 1}, {vr(u3)}"); A(f"v_add_u32 {vr(u1)}, {sr(sRQ)}, {vr(u1)}"); A(f"v_add_u32 {vr(u1)}, 1, {vr(u1)}")
    A(f"v_and_b32 {vr(u1)}, 7, {vr(u1)}")
    A(f"v_lshrrev_b32 {vr(u2)}, 1, {vr(u3)}")
    A(f"v_lshlrev_b32 {vr(u0)}, 7, {vr(u1)}"); A(f"v_lshl_add_u32 {vr(u0)}, {vr(u2)}, 10, {vr(u0)}")
    A(f"s_and_b32 {sr(sT)}, {sr(sH)}, 7"); A(f"s_lshl_b32 {sr(sT)}, {sr(sT)}, 15")
    A(f"buffer_load_dword {vr(vDUM[1])}, {vr(u0)}, {sr(sX,4)}, {sr(sT)} offen ; #warm")
    A(f"v_lshlrev_b32 {vr(u0)}, 19, {vr(u1)}")
    A(f"v_lshrrev_b32 {vr(u3)}, 1, {vr(u2)}"); A(f"v_lshl_add_u32 {vr(u0)}, {vr(u3)}, 13, {vr(u0)}")
    A(f"v_and_b32 {vr(u3)}, 1, {vr(u2)}"); A(f"v_lshl_add_u32 {vr(u0)}, {vr(u3)}, 7, {vr(u0)}")
    A(f"s_and_b32 {sr(sT)}, {sr(sB)}, 3"); A(f"s_lshl_b32 {sr(sT)}, {sr(sT)}, 17")
    A(f"buffer_load_dword {vr(vDUM[2])}, {vr(u0)}, {sr(sWQ,4)}, {sr(sT)} offen ; #warm")
    return o

def setup_b():
    o = []; A = o.append
    A(f"s_lshl_b32 {sr(sT+2)}, {sr(sB)}, 5"); A(f"s_add_u32 {sr(sT+2)}, {sr(sT+2)}, {sr(sH)}")
    A(f"s_lshl_b32 {sr(sT)}, {sr(sT+2)}, 18")
    o += srd_at(sK, 2, sr(sT), 0x40000)
    o += srd_at(sV, 4, sr(sT), 0x40000)
    A(f"s_lshl_b32 {sr(sT+1)}, {sr(sT+2)}, 7"); A(f"s_add_u32 {sr(sT+1)}, {sr(sT+1)}, {FLAG_OFF}")
    o += srd_at(sFL, 14, sr(sT+1), 8)
    A(f"s_getreg_b32 {sr(sXCC)}, hwreg(HW_REG_XCC_ID, 0, 4)")
    o += srd_at(sDB, 12, "0", 256)
    A(f"s_and_b32 {sr(sT+1)}, {sr(sT+2)}, 3"); A(f"s_lshl_b32 {sr(sT+1)}, {sr(sT+1)}, 6")
    o += srd_at(sDBW, 12, sr(sT+1), 4)
    A(f"s_lshr_b32 {sr(sT)}, {sr(sT+2)}, 1"); A(f"s_and_b32 {sr(sT+2)}, {sr(sT+2)}, 1")
    A(f"s_lshl_b32 {sr(sT+1)}, {sr(sT)}, 15"); A(f"s_lshl_b32 {sr(sT+3)}, {sr(sT+2)}, 9"); A(f"s_add_u32 {sr(sT+1)}, {sr(sT+1)}, {sr(sT+3)}")
    o += srd_at(sWO2, 8, sr(sT+1), 31*1024 + 512)
    A(f"s_lshl_b32 {sr(sT+2)}, {sr(sT+2)}, 2"); A(f"s_add_u32 {sr(sT+2)}, {sr(sT+2)}, {sr(sWAVE)}"); A(f"s_lshl_b32 {sr(sT+2)}, {sr(sT+2)}, 19")
    A(f"s_lshl_b32 {sr(sT)}, {sr(sT)}, 12"); A(f"s_add_u32 {sr(sT)}, {sr(sT)}, {sr(sT+2)}"); A(f"s_add_u32 {sr(sT)}, {sr(sT)}, {WOF_OFF}")
    o += srd_at(sWS2, 14, sr(sT), 4096)
    A(f"s_lshl_b32 {sr(sT)}, {sr(sB)}, 2"); A(f"s_add_u32 {sr(sT)}, {sr(sT)}, {sr(sWAVE)}"); A(f"s_lshl_b32 {sr(sT)}, {sr(sT)}, 19")
    A(f"s_lshl_b32 {sr(sT+1)}, {sr(sH)}, 14"); A(f"s_add_u32 {sr(sT)}, {sr(sT)}, {sr(sT+1)}")
    o += srd_at(sO, 14, sr(sT), 16384)
    if CFG.get("fewst"):
        A(f"s_cmp_eq_u32 {sr(sMT)}, 0"); A(f"s_cselect_b32 {sr(sO+2)}, {sr(sO+2)}, 0")
    rot = CFG.get("rot", "j")
    if rot == "j": A(f"s_lshr_b32 {sr(sROT)}, s2, 3"); A(f"s_add_u32 {sr(sROT)}, {sr(sROT)}, s2"); A(f"s_and_b32 {sr(sROT)}, {sr(sROT)}, 15"); A(f"s_lshl_b32 {sr(sROT)}, {sr(sROT)}, 14")
    else: A(f"s_mov_b32 {sr(sROT)}, 0")
    if CFG.get("itst"): A("s_mov_b32 s42, 0"); A("s_mov_b32 s43, 0x100")
    A(f"s_mov_b32 {sr(sTHR)}, 0x41000000")
    c = math.log2(math.e) / math.sqrt(128.0)
    A(f"s_mov_b32 {sr(sSC)}, 0x{struct.unpack('<I', struct.pack('<f', c))[0]:08x}")
    A(f"v_lshl_add_u32 {vr(vDV)}, {vr(u4)}, 8, {vr(u5)}")
    A(f"v_xor_b32 {vr(vDV+1)}, 0x80, {vr(vDV)}")
    g_, c16 = u1, u2
    A(f"v_lshrrev_b32 {vr(g_)}, 4, {vr(ln)}")
    A(f"v_and_b32 {vr(c16)}, 15, {vr(ln)}")
    A(f"v_xor_b32 {vr(u3)}, {vr(g_)}, {vr(c16)}")
    A(f"v_lshlrev_b32 {vr(u3)}, 4, {vr(u3)}")
    A(f"v_lshl_add_u32 {vr(vDK)}, {vr(u4)}, 8, {vr(u3)}")
    for p in range(1, 4): A(f"v_xor_b32 {vr(vDK+p)}, {64*p}, {vr(vDK)}")
    if CONT:
        A(f"s_lshl_b32 {sr(sW1K)}, {sr(sWAVE)}, 10")
        A(f"v_lshrrev_b32 {vr(vDK+1)}, 4, v0")
        A(f"v_xor_b32 {vr(vDK+2)}, {vr(vDK+1)}, {vr(c16)}"); A(f"v_lshlrev_b32 {vr(vDK+2)}, 4, {vr(vDK+2)}")
        A(f"v_lshl_add_u32 {vr(vDK)}, {vr(vDK+1)}, 8, {vr(vDK+2)}")
        A(f"v_and_b32 {vr(vDK+2)}, 7, {vr(vDK+1)}"); A(f"v_lshlrev_b32 {vr(vDK+2)}, 1, {vr(vDK+2)}")
        A(f"v_xor_b32 {vr(vDK+2)}, {vr(vDK+2)}, {vr(c16)}"); A(f"v_lshlrev_b32 {vr(vDK+2)}, 4, {vr(vDK+2)}")
        A(f"v_lshl_add_u32 {vr(vDV)}, {vr(vDK+1)}, 8, {vr(vDK+2)}")
    A(f"v_lshl_add_u32 {vr(vKA)}, {vr(c16)}, 8, {vr(u3)}")
    for s in range(1, 4): A(f"v_xor_b32 {vr(vKA+s)}, {64*s}, {vr(vKA)}")
    A(f"v_lshrrev_b32 {vr(u3)}, 1, {vr(c16)}")
    A(f"v_xor_b32 {vr(u3)}, {vr(g_)}, {vr(u3)}")
    A(f"v_lshlrev_b32 {vr(u3)}, 4, {vr(u3)}")
    A(f"v_lshl_add_u32 {vr(u3)}, {vr(c16)}, 7, {vr(u3)}")
    A(f"v_add_u32 {vr(u3)}, {sr(sW8K)}, {vr(u3)}")
    for sl in range(2):
        A(f"v_add_u32 {vr(vXA+2*sl)}, {LX[sl]}, {vr(u3)}")
        A(f"v_xor_b32 {vr(vXA+2*sl+1)}, 64, {vr(vXA+2*sl)}")
    A(f"v_cmp_eq_u32 vcc, 0, {vr(c16)}")
    A(f"v_mov_b32 {vr(u3)}, 0x3f803f80")
    r_, f_, c8 = u0, u4, u5
    A(f"v_bfe_u32 {vr(r_)}, {vr(ln)}, 2, 2")
    for j in range(4): A(f"v_cndmask_b32 {vr(vONES+j)}, 0, {vr(u3)}, vcc")
    A(f"v_bfe_u32 {vr(f_)}, {vr(ln)}, 2, 3")
    A(f"v_and_b32 {vr(c8)}, 3, {vr(ln)}")
    A(f"v_lshlrev_b32 {vr(c8)}, 3, {vr(c8)}")
    A(f"v_lshrrev_b32 {vr(u3)}, 2, {vr(ln)}")
    A(f"v_lshl_add_u32 {vr(vWOA)}, {vr(u3)}, 9, {vr(c8)}")
    A(f"s_lshl_b32 {sr(sT)}, {sr(sWAVE)}, 7"); A(f"s_add_u32 {sr(sT)}, {sr(sT)}, {LWO}")
    A(f"v_add_u32 {vr(vWOA)}, {sr(sT)}, {vr(vWOA)}")
    A(f"v_lshl_add_u32 {vr(c8)}, {vr(f_)}, 5, {vr(c8)}")
    A(f"v_lshl_add_u32 {vr(u3)}, {vr(u3)}, 8, {vr(c8)}")
    A(f"v_add_u32 {vr(vVA)}, {LV}, {vr(u3)}")
    for dt in range(1, 8): A(f"v_xor_b32 {vr(vVA+dt)}, {32*dt}, {vr(vVA)}")
    A(f"v_lshl_add_u32 {vr(u3)}, {vr(g_)}, 3, {vr(r_)}")
    A(f"v_lshl_add_u32 {vr(u3)}, {vr(u3)}, 8, {vr(c8)}")
    A(f"v_add_u32 {vr(vWA)}, {LWQ[0]}, {vr(u3)}")
    for dt in range(1, 8): A(f"v_xor_b32 {vr(vWA+dt)}, {32*dt}, {vr(vWA)}")
    A(f"v_lshlrev_b32 {vr(vWOS)}, 4, {vr(ln)}")
    A(f"s_lshl_b32 {sr(sT)}, {sr(sWAVE)}, 17")
    A(f"v_add_u32 {vr(vLIN)}, {sr(sT)}, {vr(vWOS)}")
    A(f"v_mov_b32 {vr(vT)}, 0"); A(f"v_mov_b32 {vr(vT+1)}, {sr(sXCC)}")
    o += wo_piece_addr()
    return o

def wo_reads():
    return [f"ds_read_b64_tr_b16 {ar(192+4*i+2*tt,2)}, {vr(vWOA)} offset:{i*32 + tt*8192} ; #wo" for i in range(4) for tt in range(2)]
def wo_stores():
    return [[f"buffer_store_dwordx4 {ar(192+4*i,4)}, {vr(vWOS)}, {sr(sWS2,4)}, 0 offen offset:{i*1024} sc1 ; #wst"] for i in range(4)] + \
           []

def pairs(lst): return [lst[i:i+2] for i in range(0, len(lst), 2)]
def prologue():
    qs = stamp if CFG["qst"] else (lambda: [])
    o = setup_a()
    o += flat(qp_dma(0))
    nw = int(CFG.get("nwarm", 2))
    o += (warm_loads(nw) if nw else [])
    o += qs()
    o += setup_b()
    o += qs()
    o += ["@wait st0", "s_barrier"] + stamp()
    r0 = qp_reads(0); d1 = qp_dma(1)
    for i in range(12): o += d1[i] + r0[i * 40 // 12:(i + 1) * 40 // 12]
    kv = lambda *l: groups_of(sum([kv_batch(x[0], int(x[1:])) for x in l], []))
    bg = [int(x) for x in CFG.get("bg", "36,36,32,24,16,8,0").split(",")]
    step = float(CFG.get("qstep", 4.5))
    B = [64 * s + bg[s] for s in range(7)]
    mf = sum([qp_mfmas(st) for st in range(6)], [])
    for st, qb in ((6, 0), (6, 1), (7, 0), (7, 1), (6, 2), (6, 3), (7, 2), (7, 3)): mf += qp_q(st, qb)
    Q0 = len(mf)
    mf += [qk_one(0, kb, qb, (i if kb % 2 == 0 else 3 - i), i == 0, czero=True) for qb in range(4) for kb in range(4) for i in range(4)]
    nvm = {}; pre = {}; vm = {}
    def put_vm(g, grp):
        while g in vm or g in B: g += 1
        vm[g] = grp; return g
    pos = -step + 1
    ek = dict(x.split(":") for x in CFG.get("ek", "").split(",") if x)
    for k in range(2, 8):
        for i, grp in enumerate(qp_dma(k)):
            e = 0 if k == 2 else (B[k-3] + 1 if i < 4 else B[k-3] + 13)
            pos = max(pos + step, e)
            if i == 4: grp = [f"@wait - lds=x{k-2}"] + grp
            put_vm(int(pos), grp)
        if str(k) in ek:
            for grp in (groups_of(wo_piece_dma()) if ek[str(k)] == "wo" else kv(ek[str(k)])):
                pos += 2; put_vm(int(pos), grp)
    kstep = float(CFG.get("kstep", 9))
    BK, BQ = 384 + 94, Q0 + 56
    sched = [("K0", 0), ("wo", 0), ("K1", 0), ("V0", B[5] + 1), ("K2", B[6] + 1), ("V1", B[6] + 1)]
    sched = [(groups_of(wo_piece_dma()) if n == "wo" else kv(n), e) for n, e in sched if n not in ek.values()]
    for grps, e in sched:
        for grp in grps:
            pos = max(pos + kstep, e)
            put_vm(int(pos), grp)
    assert pos < Q0 + 64, pos
    if CFG["verbose"]: print("vm gaps:", sorted(vm))
    for s in range(7):
        pre.setdefault(B[s], []).append(f"@wait st{s+1}")
        nvm.setdefault(B[s], []).append("s_barrier")
        hi = 64 * (s + 1) - 7 if s < 6 else 384 + 26
        rg = [g for g in range(B[s] + 1, hi) if g not in vm]
        nvm = merge(nvm, spread(pairs(qp_reads(s + 1)), rg))
        pre.setdefault(64 * s, []).insert(0, f"@wait - lds=x{s},w{s}")
        if CFG["qst"]: pre[64 * s] = qs() + pre[64 * s]
    pre.setdefault(384 + 32, []).append("@wait - lds=x7,w7")
    nvm = merge(nvm, spread(pairs(wo_reads()), [g for g in range(Q0 + 1, Q0 + 12) if g not in vm]))
    pre.setdefault(BK, []).append("@wait K0,wo"); nvm.setdefault(BK, []).append("s_barrier")
    nvm = merge(nvm, spread(pairs([rd_k(0, n) for n in range(16)]), [g for g in range(384 + 96, 384 + 120) if g not in vm]))
    pre.setdefault(Q0, []).append("@wait - lgkm=0"); pre[Q0] = stamp() + pre[Q0]
    pre.setdefault(BQ, []).append("@wait K1,V0 lds=wo"); nvm.setdefault(BQ, []).append("s_barrier")
    nvm = merge(nvm, {Q0 + 57: [f"s_add_u32 {sr(sTILE)}, {sr(sROT)}, {(DIST-1)*16384}"], Q0 + 58: [f"s_and_b32 {sr(sTILE)}, {sr(sTILE)}, 0x3ffff"],
                      Q0 + 59: [f"s_add_u32 {sr(sTK)}, {sr(sROT)}, {DIST*16384}"], Q0 + 60: [f"s_and_b32 {sr(sTK)}, {sr(sTK)}, 0x3ffff"],
                      Q0 + 61: [f"s_mov_b32 {sr(sCNT)}, 0"]})
    for g in sorted(vm):
        grp = vm[g]; sca = grp[:-1]
        prevv = max([x for x in vm if x < g], default=-1)
        gg = g
        for x in reversed(sca):
            nvm.setdefault(gg, []).insert(0, x)
            if gg - 1 > prevv and gg > 0: gg -= 1
        nvm.setdefault(g, []).append(grp[-1])
    va = [(f"v_accvgpr_write_b32 {ar(r)}, 0", 0, "z") for r in range(128)]
    done = {0: 384 + 32, 1: 384 + 48, 2: 384 + 96, 3: 384 + 112}
    for qb in range(4):
        va += [(t, done[qb] + 4 * s + 3 + 3, f"q{qb}") for t, s in qconv_stream(qb)]
    va += [(f"v_mov_b32 {vr(vL+j)}, 0", Q0, "z") for j in range(16)]
    part, left = weave(mf, nvm, va, pre=pre, need={Q0 + 16 * q: f"q{q}" for q in range(4)})
    for k in range(1, 6):
        assert max(i for i, x in enumerate(part) if x.endswith(f"#x{k}")) < part.index(f"@wait - lds=x{k}"), k
    o += part
    o += qs()
    o += [rd_k(1, n) for n in EARLY_K]
    o.append(f"buffer_store_dwordx2 {vr(vT,2)}, {vr(vLIN)}, {sr(sFL,4)}, 0 offen sc1 ; #wst")
    if CFG["verbose"]: print("QK0 leftover VALU:", len(left))
    o += [t for t, _, _ in left]
    o.append("s_nop 7")
    ini = []
    for qb in range(4): ini += qmax(0, qb, vT + qb)
    for sw in ("v_permlane32_swap_b32", "v_permlane16_swap_b32"):
        ini += [f"v_mov_b32 {vr(vNEG+qb)}, {vr(vT+qb)}" for qb in range(4)]
        ini += [f"{sw} {vr(vT+qb)}, {vr(vNEG+qb)}" for qb in range(4)]
        ini += [f"v_max_f32 {vr(vT+qb)}, {vr(vT+qb)}, {vr(vNEG+qb)}" for qb in range(4)]
    for qb in range(4):
        ini += [f"v_sub_f32 {vr(vNEG+4*qb+j)}, 0, {vr(vT+qb)}" for j in range(4)]
    for ks, qb in UNITS:
        r = Ureg(0, ks, qb)
        ini += [f"v_pk_add_f32 {vr(r+j,2)}, {vr(r+j,2)}, {vr(vNEG+4*qb,2)}" for j in range(0, 8, 2)]
    ex_ = [exp_i(0, it[1]) for it in E_FIRST if it[0] == "exp"]; cv_ = [cvt_i(0, it[1]) for it in E_FIRST if it[0] == "cvt"]
    ini += ex_ + cv_
    G = wo_stores() + (kv("K3", "V2") if DIST == 4 else [])
    for i, g in enumerate(G):
        k = (i + 1) * len(ini) // (len(G) + 1)
        ini = ini[:k] + g + ini[k:]
    o += ini
    if CFG.get("nomax"): o.append("s_mov_b64 vcc, 0")
    o.append("@wait - lds=k0,k1,k2,k3")
    o += stamp()
    o, fifo, lf = resolve(o, [])
    return o, fifo, lf

def phase_c_srds():
    o = []; A = o.append
    cmap = CFG.get("cmap", "p")
    if cmap == "p":
        A(f"s_and_b32 {sr(sT)}, {sr(sNT)}, 1"); A(f"s_lshr_b32 {sr(sNT)}, {sr(sNT)}, 1"); A(f"s_and_b32 {sr(sT+1)}, {sr(sCB)}, 1")
        A(f"s_and_b32 {sr(sCB)}, {sr(sCB)}, 6"); A(f"s_add_u32 {sr(sCB)}, {sr(sCB)}, {sr(sT)}")
        A(f"s_lshl_b32 {sr(sT+1)}, {sr(sT+1)}, 2"); A(f"s_add_u32 {sr(sNT)}, {sr(sNT)}, {sr(sT+1)}")
    if cmap == "q":
        A(f"s_and_b32 {sr(sT)}, {sr(sNT)}, 3"); A(f"s_lshr_b32 {sr(sNT)}, {sr(sNT)}, 2"); A(f"s_and_b32 {sr(sT+1)}, {sr(sCB)}, 3")
        A(f"s_and_b32 {sr(sCB)}, {sr(sCB)}, 4"); A(f"s_add_u32 {sr(sCB)}, {sr(sCB)}, {sr(sT)}")
        A(f"s_lshl_b32 {sr(sT+1)}, {sr(sT+1)}, 1"); A(f"s_add_u32 {sr(sNT)}, {sr(sNT)}, {sr(sT+1)}")
    if CFG.get("rc", "0x") == "n": A(f"s_lshl_b32 {sr(sRC)}, {sr(sNT)}, 14")
    else: A(f"s_mov_b32 {sr(sRC)}, 0")
    A(f"s_lshl_b32 {sr(sT)}, {sr(sNT)}, 19"); A(f"s_add_u32 {sr(sT)}, {sr(sT)}, {WOF_OFF}")
    o += srd_at(sWFL, 14, sr(sT), 0x80000)
    A(f"s_lshl_b32 {sr(sT)}, {sr(sCB)}, 2"); A(f"s_add_u32 {sr(sT)}, {sr(sT)}, {sr(sMT)}"); A(f"s_lshl_b32 {sr(sT+1)}, {sr(sT)}, 19")
    o += srd_at(sOL, 14, sr(sT+1), 0x80000)
    A(f"s_lshl_b32 {sr(sT)}, {sr(sT)}, 16"); A(f"s_lshl_b32 {sr(sT+1)}, {sr(sNT)}, 7"); A(f"s_add_u32 {sr(sT)}, {sr(sT)}, {sr(sT+1)}")
    o += srd_at(sOUT, 10, sr(sT), 63*1024 + 128)
    A(f"s_lshl_b32 {sr(sT)}, {sr(sCB)}, 12"); A(f"s_add_u32 {sr(sT)}, {sr(sT)}, {FLAG_OFF}")
    o += srd_at(sFLR, 14, sr(sT), 4096)
    return o

def tail_and_epilogue(u):
    p = u % 2
    o = []
    reads = [rd_v(slotV(15), n, t) for n in range(16) for t in range(2)]
    er = [(exp_i(p, it[1]), UNITS[it[1] // 8][1]) if it[0] == "exp" else (cvt_i(p, it[1]), UNITS[it[1] // 4][1]) for it in E_REST]
    va = []
    for i, (t, q) in enumerate(er):
        if t.startswith("v_cvt") and i and er[i-1][0].startswith("v_exp"): va.append(("s_nop 0", 0, f"e{q}"))
        va.append((t, 0, f"e{q}"))
    mf = []
    for qb in range(4):
        mf += [sum_one(p, qb, 0), sum_one(p, qb, 1)]
        mf += [pv_one(p, dt, qb, (i if dt % 2 == 0 else 1 - i)) for dt in range(8) for i in range(2)]
    vOST = vCW
    if CFG.get("local"): va.append((f"v_cmp_ne_u32 {sr(sGLB,2)}, {sr(sXCC)}, {vr(vCW)}", 0, "x"))
    va.append((f"v_and_b32 {vr(vOST)}, 0x3ff, {vr(vLIN)}", 0, "x"))
    tmp = 2
    NMF = len(mf)
    fill = {0: [], 1: [], 2: [], 3: []}
    tail_names = CFG.get("tailw", "K15,V14,R3").split(",")
    post_names = [x for x in ("K15", "V14", "R3", "R4a", "R6a", "R6b", "R5", "R4b", "V15") if x not in tail_names]
    for qb in range(4):
        e0 = 18 * qb
        lsum = [f"v_mov_b32 {vr(vT+qb)}, {vr(vL+4*qb)}"] + allreduce("v_add_f32", vT + qb, vMX) + [f"v_rcp_f32 {vr(vT+qb)}, {vr(vT+qb)}"]
        va += [(t, max(12, e0 + 1 + 3), "o") for t in lsum]
        F = fill[qb]
        for s in range(4):
            e = e0 + 2 + 4 * s + 3 + 3
            b_ = tmp + 8 * (s % 2)
            va += [(f"v_accvgpr_read_b32 {vr(b_+j)}, {ar(Oreg(qb,2*s)+j)}", e, "o") for j in range(8)]
            va += [(f"@mul {b_+j} {vT+qb}", e, "o") for j in range(8)]
            d = Ureg(p, s // 2, qb) + 4 * (1 - s % 2)
            ee = e0 + 17 if s % 2 == 1 else e
            va += [(f"v_cvt_pk_bf16_f32 {vr(d+j)}, {vr(b_+2*j)}, {vr(b_+2*j+1)}", max(e, ee), "o") for j in range(4)]
            ld = flat(F[s * len(F) // 4:(s + 1) * len(F) // 4])
            va += [(t, NMF - 1 if qb == 3 else e, "o") for t in ld]
            va += [(f"s_mov_b32 {sr(sT)}, {s*4096}", e, "o"),
                   (f"buffer_store_dwordx4 {vr(d,4)}, {vr(vOST)}, {sr(sO,4)}, {sr(sT)} offen offset:{qb*1024} {CFG.get('ost', 'sc1').replace('+', ' ').replace('plain', '')} ; #ost", e, "o")]
    va = [((f"v_mul_f32 {vr(int(t.split()[1]))}, {vr(int(t.split()[1]))}, {vr(int(t.split()[2]))}" if t.startswith("@mul") else t), e, k) for t, e, k in va]
    o += reads[:12]
    nvm = spread(pairs(reads[12:]), list(range(0, 10)))
    pre = {2 + 2 * dt: [f"@wait - lds=v{2*dt},v{2*dt+1}"] for dt in range(8)}
    early = [[x.replace(sr(sSP), sr(sTK)) for x in g] for g in sum([wo_loads(x) for x in tail_names], [])]
    nvm = merge(nvm, spread(early, list(range(10, int(CFG.get("tailhi", 58)), 2))))
    part, left = weave(mf, nvm, va, pre=pre, need={18 * q: f"e{q}" for q in range(4)})
    o += part
    o += stamp()
    o.append("s_nop 7")
    lf_ = [t for t, _, _ in left]
    i = 0
    while i < len(lf_):
        m1 = re.match(r"v_mul_f32 v(\d+), v\d+, v(\d+)", lf_[i]); m2 = re.match(r"v_mul_f32 v(\d+), v\d+, v(\d+)", lf_[i+1]) if i + 1 < len(lf_) else None
        if m1 and m2 and int(m1.group(1)) % 2 == 0 and int(m2.group(1)) == int(m1.group(1)) + 1:
            r = int(m1.group(1)); f_ = int(m1.group(2))
            sel = "op_sel_hi:[1,0]" if f_ % 2 == 0 else "op_sel:[0,1] op_sel_hi:[1,1]"
            o.append(f"v_pk_mul_f32 {vr(r,2)}, {vr(r,2)}, {vr(f_ - f_ % 2,2)} {sel}"); i += 2
        else:
            o.append(lf_[i]); i += 1
    A = o.append
    A(f"v_mov_b32 {vr(vMX)}, 1")
    A(f"v_and_b32 {vr(vT)}, 7, v0"); A(f"v_lshlrev_b32 {vr(vT)}, 7, {vr(vT)}")
    A(f"s_lshl_b32 {sr(sT)}, {sr(sWAVE)}, 10"); A(f"v_add_u32 {vr(vT)}, {sr(sT)}, {vr(vT)}")
    A(f"v_add_u32 {vr(vKA)}, {sr(sW4K)}, {vr(vOST)}")
    A(f"v_add_u32 {vr(vKA+1)}, 0x10000, {vr(vKA)}")
    A(f"v_add_u32 {vr(vKA+2)}, 0x20000, {vr(vKA)}")
    A(f"s_mov_b32 {sr(sCNT)}, 0")
    if CFG.get("forceglobal"): A(f"s_mov_b64 {sr(sGLB,2)}, -1")
    if CFG.get("local"): A(f"s_cmp_lg_u64 {sr(sGLB,2)}, 0")
    A("@wait ost")
    A("s_barrier")
    if CFG.get("local"): A("s_cbranch_scc1 L_pubg")
    A(f"buffer_store_dword {vr(vMX)}, {vr(vLIN)}, {sr(sFL,4)}, 0 offen {CFG.get('flagst', 'sc1')} ; #flag")
    A("L_pubg_back:")
    o += stamp()
    post = sum([wo_loads(x) for x in post_names], [])
    k1 = int(CFG.get("pollat", 16))
    o += flat(post[:k1])
    A(f"buffer_load_dword {vr(vT+1)}, {vr(vT)}, {sr(sFLR,4)}, 0 offen sc1 ; #poll1")
    o += flat(post[k1:])
    A("@wait poll1")
    A(f"v_cmp_ne_u32 vcc, 1, {vr(vT+1)}")
    A("s_cbranch_vccz L_go")
    A("L_poll:")
    A(f"buffer_load_dword {vr(vT+1)}, {vr(vT)}, {sr(sFLR,4)}, 0 offen {CFG.get('pollld', 'sc1').replace('+', ' ')} ; #poll")
    A("s_waitcnt vmcnt(0)")
    A(f"v_cmp_ne_u32 vcc, 1, {vr(vT+1)}")
    A("s_cbranch_vccz L_go")
    A(f"s_add_u32 {sr(sCNT)}, {sr(sCNT)}, 1")
    A(f"s_cmp_lt_u32 {sr(sCNT)}, {CFG['spin']}")
    A("s_cbranch_scc1 L_poll")
    A("L_go:")
    if CFG.get("local"): A(f"s_cmp_lg_u64 {sr(sGLB,2)}, 0"); A("s_cbranch_scc1 L_acq")
    A("L_acq_back:")
    o += stamp()
    return o

def phase_c():
    o = []; A = o.append
    ns = int(CFG.get("nstream", 0))
    pool = [vS + 64 + 16 * i for i in range(4)] + [256 + aF + 16 * (4 - ns + i) for i in range(ns)]
    oreg = {}; wtmp = {}
    nxt = 0
    MAXFLY = int(CFG.get("maxfly", 8))
    INIT = int(CFG.get("initfly", 4))
    def issue_o(c, lim):
        nonlocal nxt
        G = []
        reserve = sum(1 for k in range(c + 3, min(32, c + 5)) if WCLASS[k][0] == "l")
        while nxt < 32 and len(pool) > reserve + (WCLASS[nxt][0] == "s") and nxt - c <= lim:
            r = pool.pop(0); oreg[nxt] = r
            for qb in range(4):
                g = step_off(nxt) if qb == 0 else []
                g.append(f"buffer_load_dwordx4 {rr(r + 4*qb, 4)}, {vr(vLIN)}, {sr(sOL,4)}, {sr(sSP)} offen offset:{qb*1024} {CFG.get('old', 'sc1').replace('+', ' ').replace('plain', '')} ; #o{nxt}")
                G.append(g)
            if WCLASS[nxt][0] == "s":
                r = pool.pop(0); wtmp[nxt] = r
                for n in range(4):
                    G.append([f"buffer_load_dwordx4 {rr(r + 4*n, 4)}, {vr(vLIN)}, {sr(sWFL,4)}, {sr(sSP)} offen offset:{n*1024} sc1 ; #o{nxt}"])
            nxt += 1
        return G
    def lds_reads(c):
        addr = WCLASS[c][1]
        r = pool.pop(0); wtmp[c] = r
        return [f"ds_read_b128 {rr(r + 4*n, 4)}, {vr(vKA + addr // 65536)} offset:{addr % 65536 + n*1024} ; #w{c}" for n in range(4)]
    o += flat(issue_o(-1, INIT))
    carry = issue_o(-1, MAXFLY)
    for c in range(0, 32, 2):
        rd = []
        for k in (c + 2, c + 3):
            if k < 32 and WCLASS[k][0] == "l": rd += lds_reads(k)
        A(f"@wait o{c},o{c+1} lds=w{c},w{c+1}")
        if c == 0: o += stamp()
        w = [WCLASS[k][1] if WCLASS[k][0] == "r" else wtmp[k] for k in (c, c + 1)]
        mf = []
        for n in range(4):
            for qb in range(4):
                d = ar(64 + 4 * (n * 4 + qb), 4)
                for i in range(2):
                    k = i if qb % 2 == 0 else 1 - i
                    mf.append(f"{MF} {d}, {rr(w[k] + 4*n, 4)}, {rr(oreg[c+k] + 4*qb, 4)}, {d if (c or i) else 0}")
        hi = int(CFG.get("chi", 32))
        nvm = merge(spread(pairs(rd), [3, 9, 15, 21]) if rd else {}, spread(carry, list(range(0, hi, 2))) if carry else {})
        part, _ = weave(mf, nvm)
        o += part
        pool.extend([oreg[c], oreg[c+1]] + w)
        carry = issue_o(c + 1, MAXFLY)
    assert not carry
    o += stamp()
    A("v_and_b32 v7, 63, v0")
    A("v_and_b32 v8, 15, v7"); A("v_lshrrev_b32 v9, 4, v7")
    A("v_xor_b32 v10, v8, v9"); A("v_lshlrev_b32 v10, 4, v10")
    A("v_lshl_add_u32 v8, v8, 8, v10")
    A(f"v_add_u32 v32, {sr(sW4K)}, v8")
    for n in range(1, 4): A(f"v_xor_b32 {vr(32+n)}, {n*64}, v32")
    A("v_lshrrev_b32 v8, 3, v0"); A("v_and_b32 v9, 7, v0"); A("v_lshlrev_b32 v10, 1, v9")
    A("v_and_b32 v11, 15, v8"); A("v_xor_b32 v10, v10, v11"); A("v_lshlrev_b32 v10, 4, v10")
    A("v_lshl_add_u32 v10, v11, 8, v10")
    A("v_lshrrev_b32 v11, 4, v8"); A("v_lshl_add_u32 v10, v11, 14, v10"); A("v_xor_b32 v11, 16, v10")
    A("v_lshlrev_b32 v9, 4, v9"); A("v_lshl_add_u32 v14, v8, 10, v9")
    for n in range(4):
        for qb in range(4):
            A(f"ds_write_b128 {vr(32 + n)}, {ar(64 + 4*(n*4+qb), 4)} offset:{qb*16384}")
    A("s_waitcnt lgkmcnt(0)")
    A("s_barrier")
    for z in range(2):
        for w in range(4):
            for i in range(2):
                A(f"ds_read_b128 {vr(64 + z*32 + w*8 + i*4, 4)}, {vr(10 + i)} offset:{w*4096 + z*32768}")
    A(f"s_mov_b32 {sr(sT)}, {32*1024}")
    for z in range(2):
        A(f"s_waitcnt lgkmcnt({8 if z == 0 else 0})")
        b = 64 + z * 32
        for j in range(8):
            A(f"v_add_f32 {vr(b+j)}, {vr(b+j)}, {vr(b+8+j)}")
            A(f"v_add_f32 {vr(b+16+j)}, {vr(b+16+j)}, {vr(b+24+j)}")
        for j in range(8): A(f"v_add_f32 {vr(b+j)}, {vr(b+j)}, {vr(b+16+j)}")
        for j in range(4): A(f"v_cvt_pk_bf16_f32 {vr(b+8+j)}, {vr(b+2*j)}, {vr(b+2*j+1)}")
        A(f"buffer_store_dwordx4 {vr(b+8,4)}, v14, {sr(sOUT,4)}, {sr(sT) if z else 0} offen {CFG.get('outst', 'sc0+sc1').replace('+', ' ')}")
    return o

def peeled(lf):
    o = [f"s_mov_b32 {sr(sT)}, 0xe00fe000", f"v_cmp_ne_u32 vcc, {sr(sT)}, {vr(vCW)}", "s_cbranch_vccnz L_cw", "L_cw_back:"]
    early = sum([wo_loads(x, True) for x in ("W0", "W1", "Kx", "Vx", "R1")], [])
    cnt = [int(x) for x in CFG.get("wsched", "0,24").split(",")]
    assert len(cnt) == 14 - PEEL0 and sum(cnt) <= 32 and all(x % 4 == 0 for x in cnt)
    for i in range(PEEL0, 15):
        loads = []
        if i < 14:
            g = early[:cnt[i - PEEL0]] + (wo_loads("K13", True) if i == 13 else []); early = early[cnt[i - PEEL0]:]
            if g: loads.append((g, 0, NG))
        else:
            loads = [(early + wo_loads("K14", True) + wo_loads("V13", True), 0, 64), (wo_loads("R2"), 64, NG)]
        o += iteration(i, f"L_r{i}", loads, phase_c_srds() if i == PEEL0 else ())
    o += stamp()
    o += tail_and_epilogue(3)
    o += phase_c()
    fifo = [f"K{PEEL0+2}"] * 4 + [f"V{PEEL0+1}"] * 4
    if CFG.get("skipst"): o = [x for x in o if "#ost" not in x]
    o, _, _ = resolve(o, fifo, lf)
    return o

def stamp_out():
    if not CFG["stamps"]: return []
    o = ["s_waitcnt vmcnt(0)"] + stamp()
    A = o.append
    A(f"s_lshl_b32 {sr(sT)}, s2, 10"); A(f"s_add_u32 {sr(sT)}, {sr(sT)}, {STAMP_OFF}")
    o += srd_at(4, 14, sr(sT), 1024)
    A("v_lshlrev_b32 v1, 2, v0")
    A(f"buffer_store_dword v{STV}, v1, s[4:7], 0 offen")
    if CFG.get("dbgout"):
        o += srd_at(4, 12, "0", 64)
        A("v_and_b32 v2, 63, v0")
        A("v_lshlrev_b32 v1, 1, v2"); A("v_add_u32 v1, 6, v1")
        A("v_and_b32 v3, 1, v2"); A("v_cmp_eq_u32 vcc, 0, v3"); A("v_mov_b32 v3, 0x1000"); A("s_nop 1")
        A("v_cndmask_b32 v1, v1, v3, vcc")
        A(f"v_cmp_lt_u32 vcc, {2*nstamp[0]}, v2"); A("s_nop 1"); A("v_cndmask_b32 v1, v1, v3, vcc")
        A(f"buffer_atomic_umax v{STV}, v1, s[4:7], 0 offen sc1")
        A(f"v_not_b32 v4, v{STV}")
        A("v_cmp_eq_u32 vcc, 1, v2"); A("s_nop 1"); A("v_cndmask_b32 v1, v3, 4, vcc")
        A(f"buffer_atomic_umax v4, v1, s[4:7], 0 offen sc1")
    return o

def kernel():
    pro, fifo, lf0 = prologue()
    _, _, lf = resolve(iteration(0, "x") + iteration(1, "x"), [])
    its = []
    for u in range(4):
        it, _, lf2 = resolve(iteration(u, f"L_r{u}"), [], lf)
        assert lf2 == lf
        its.append(it)
    assert len(lf0) >= len(lf) and lf0[len(lf0)-len(lf):] == lf or CFG["stamps"] or CFG.get("probe"), (lf0, lf)
    pe = peeled(lf)
    body = list(pro)
    body.append("L_loop:")
    for u in range(4):
        it = list(its[u])
        if u == 3:
            k = [i for i, x in enumerate(it) if x.startswith(MF)]
            it.insert(k[-3] + 1, f"s_cmp_lt_u32 {sr(sCNT)}, {NPASS}")
            it.insert(k[-4] + 1, f"s_add_u32 {sr(sCNT)}, {sr(sCNT)}, 1")
            it.append("s_cbranch_scc1 L_loop")
            its[3] = it
        body += it
    body += pe
    body += stamp_out()
    if CFG.get("fixdur"):
        body += ["L_fix:", "s_memrealtime s[98:99]", "s_waitcnt lgkmcnt(0)", "s_sub_u32 s98, s98, s42", f"s_cmp_lt_u32 s98, {int(CFG['fixdur'])*100}", "s_cbranch_scc1 L_fix"]
    body.append("L_end:")
    body.append("s_endpgm")
    for u in list(range(4)) + list(range(PEEL0, 15)):
        body += [f"L_r{u}a:", f"s_call_b64 {sr(sRET,2)}, L_ra{1 - u % 2}", f"s_branch L_r{u}a_back"]
        body += [f"L_r{u}b:", f"s_call_b64 {sr(sRET,2)}, L_rb", f"s_branch L_r{u}b_back"]
    body += ["L_cw:", f"s_mov_b32 {sr(sCNT)}, 0", "L_cw_loop:",
             f"v_and_b32 {vr(vCW)}, 3, v0", f"v_lshlrev_b32 {vr(vCW)}, 6, {vr(vCW)}",
             f"buffer_load_dword {vr(vCW)}, {vr(vCW)}, {sr(sDB,4)}, 0 offen sc1", "s_waitcnt vmcnt(0)",
             f"v_cmp_ne_u32 vcc, {sr(sT)}, {vr(vCW)}", "s_cbranch_vccz L_cw_back",
             f"s_add_u32 {sr(sCNT)}, {sr(sCNT)}, 1", f"s_cmp_lt_u32 {sr(sCNT)}, {CFG['spin']}", "s_cbranch_scc1 L_cw_loop",
             "s_branch L_cw_back"]
    if CFG.get("local"): body += ["L_pubg:", "buffer_wbl2 sc1", "s_waitcnt vmcnt(0)",
             f"buffer_store_dword {vr(vMX)}, {vr(vLIN)}, {sr(sFL,4)}, 0 offen sc1", "s_branch L_pubg_back"]
    if CFG.get("local"): body += ["L_acq:", "buffer_inv sc1", "s_waitcnt vmcnt(0)", "s_branch L_acq_back"]
    for p in range(2): body += rare_a(p, f"L_ra{p}")
    body += rare_b("L_rb")
    loop = its[0] + its[1] + its[2] + its[3]
    check(pro + loop + loop + pe, "main")
    def with_rare(seq):
        o = []
        for x in seq:
            m = re.match(r"L_r(\d+)([ab])_back:", x)
            if m: o += (rare_a(1 - int(m.group(1)) % 2, "x") if m.group(2) == "a" else rare_b("x"))[1:]
            o.append(x)
        return o
    check(pro + with_rare(loop + pe), "rare")
    if CFG["verbose"]:
        for g in range(NG): print(g, PLAN[g])
    return "\n".join(body)

if __name__ == "__main__":
    k = kernel()
    txt = file_text([dict(label=NAME + "_kernel", body=k, grid=256, block=256, lds=163840, vgpr=512, accum=256)], single=True)
    open(sys.argv[1], "w").write(txt)
```

```python
import sys, math, struct, re
from asmlib import *
from check import check

CFG = dict(qst=False, stamps=False, codepf=True, warm=True, spin=200000, verbose=False)
for a in sys.argv[2:]:
    k, v = a.split("=")
    CFG[k] = {"0": False, "1": True}.get(v, v)

MF = "v_mfma_f32_16x16x32_bf16"
def vr(b, n=1): return f"v{b}" if n == 1 else f"v[{b}:{b+n-1}]"
def ar(b, n=1): return f"a{b}" if n == 1 else f"a[{b}:{b+n-1}]"
def sr(b, n=1): return f"s{b}" if n == 1 else f"s[{b}:{b+n-1}]"
def rr(r, n=1): return vr(r, n) if r < 256 else ar(r - 256, n)
def slots(t):
    if t.startswith(("v_exp", "v_rcp", "buffer_", "global_", "v_permlane")): return 2
    if t.startswith(("s_", "@", "L_")): return 0
    return 1

sX, sWQ, sK, sV, sO = 4, 8, 12, 16, 20
sWFL, sOL = 4, 8
sWAVE, sB, sH, sW4K, sW8K = 24, 25, 26, 27, 28
sCB, sMT, sNT = 29, 30, 31
sXO, sWO = 32, 40
sOUT, sFLR = 32, 36
sTILE, sCNT, sTHR, sSC, sSP = 44, 45, 46, 47, 48
sRET = 50
sTK, sROT, sRQ, sRX, sRW = 49, 92, 93, 94, 95
sW1K, sDT = 96, 97
sRC = 93
sXCC, sGLB = 3, 40
sT = 52
sARG = 56
sFL, sDB, sDBW = 72, 76, 88
sWS2, sWO2 = 80, 84
vKA, vVA, vDK, vDV = 1, 5, 13, 17
vMX, vLIN, vCW, STV = 19, 21, 22, 23
vT = 24
vONES = 28
vNEG, vL, vQ, vS = 32, 48, 64, 128
vWA, vXA, vDX, vDW, vWOF = 64, 72, 76, 78, 80
vWOA, vWOS = 19, 20
vDUM = [22, 26, 27]
u0, u1, u2, u3, u4, u5, ln = 128, 129, 130, 131, 132, 133, 134
aO, aF = 0, 128
LK, LV, LW = 0, 65536, 131072
LX = [81920, 131072]
LWQ = [32768, 49152, 65536]
LWO = 114688
WOF_OFF, FLAG_OFF, STAMP_OFF = 0x1000000, 0x1400000, 0x4000000

def Ureg(p, ks, qb): return vS + 64 * p + 8 * (ks * 4 + qb)
def Sreg(p, kb, qb): return Ureg(p, kb // 2, qb) + 4 * (kb % 2)
def Oreg(qb, dt): return aO + 4 * (qb * 8 + dt)
def Qreg(qb, s): return vQ + 16 * qb + 4 * s
def Freg(n): return aF + 4 * n

nstamp = [0]
def stamp():
    if CFG.get("probe"):
        i = nstamp[0]; nstamp[0] += 1
        return ["s_memrealtime s[42:43]", "s_waitcnt lgkmcnt(0)"] if i == int(CFG["probe"][1:]) else []
    if not CFG["stamps"]: return []
    i = nstamp[0]; nstamp[0] += 1
    assert i < 30
    return ["s_memtime s[100:101]", "s_waitcnt lgkmcnt(0)", f"v_writelane_b32 v{STV}, s100, {2*i}",
            "s_memrealtime s[100:101]", "s_waitcnt lgkmcnt(0)", f"v_writelane_b32 v{STV}, s100, {2*i+1}"]

def srd(s, size):
    return [f"s_and_b32 {sr(s+1)}, {sr(s+1)}, 0xffff", f"s_mov_b32 {sr(s+2)}, {size}", f"s_mov_b32 {sr(s+3)}, 0x20000"]
def srd_at(s, arg, offreg, size):
    return [f"s_add_u32 {sr(s)}, {sr(sARG+arg)}, {offreg}", f"s_addc_u32 {sr(s+1)}, {sr(sARG+arg+1)}, 0"] + srd(s, size)

def tag(lst, t): return [(x + f" ; #{t}") if x.startswith(("buffer_", "global_")) and "#" not in x else x for x in lst]
def resolve(seq, fifo, lfifo=()):
    fifo = list(fifo); lf = list(lfifo); out = []
    def cut(f, n): return f[len(f) - n:] if 0 < n < len(f) else (f if n else [])
    for x in seq:
        if x.startswith("@wait"):
            parts = x.split()
            w = []
            idx = [i for i, t in enumerate(fifo) if t in parts[1].split(",")]
            if idx:
                n = min(63, len(fifo) - 1 - max(idx)); fifo = cut(fifo, n); w.append(f"vmcnt({n})")
            for p in parts[2:]:
                if p.startswith("vm="): n = int(p[3:]); fifo = cut(fifo, n); w.append(f"vmcnt({n})")
                if p.startswith("lgkm="): n = int(p[5:]); lf = cut(lf, n); w.append(f"lgkmcnt({n})")
                if p.startswith("lds="):
                    idx = [i for i, t in enumerate(lf) if t in p[4:].split(",")]
                    if idx:
                        n = min(15, len(lf) - 1 - max(idx)); lf = cut(lf, n); w.append(f"lgkmcnt({n})")
            if w: out.append("s_waitcnt " + " ".join(w))
            continue
        m = re.search(r"#(\S+)", x)
        if x.startswith(("buffer_", "global_")): fifo.append(m.group(1) if m else "?")
        if x.startswith("ds_"): lf.append(m.group(1) if m else "?")
        m = re.match(r"s_waitcnt.*vmcnt\((\d+)\)", x)
        if m: fifo = cut(fifo, int(m.group(1)))
        m = re.match(r"s_waitcnt.*lgkmcnt\((\d+)\)", x)
        if m: lf = cut(lf, int(m.group(1)))
        out.append(x)
    return out, fifo, lf

CONT = CFG.get("cont", False)
NOSWAP = CFG.get("noswap", True)
DIST = int(CFG.get("dist", 3))
def dma_k(p, soff):
    if CONT: return f"buffer_load_dwordx4 {vr(vDK)}, {sr(sK,4)}, {sr(sDT)} offen nt lds"
    return f"buffer_load_dwordx4 {vr(vDK+p)}, {sr(sK,4)}, {soff} offen offset:{1024*p} nt lds"
def dma_v(p, soff):
    if CONT: return f"buffer_load_dwordx4 {vr(vDV)}, {sr(sV,4)}, {sr(sDT)} offen nt lds"
    return f"buffer_load_dwordx4 {vr(vDV + p%2)}, {sr(sV,4)}, {soff} offen offset:{1024*p} nt lds"
def cont_pre(base, p, soff): return [f"s_add_u32 m0, {sr(sW1K)}, {base + p*4096}", f"s_add_u32 {sr(sDT)}, {soff}, {p*4096}"]
def m0_at(addr): return f"s_add_u32 m0, {sr(sW4K)}, {addr}"
def kv_batch(which, tile):
    out = [m0_at((LK + slotK(tile) * 16384 if which == "K" else LV + slotV(tile) * 16384)), f"s_add_u32 {sr(sT)}, {sr(sROT)}, {tile*16384}", f"s_and_b32 {sr(sT)}, {sr(sT)}, 0x3ffff"]
    for p in range(4):
        if CONT: out += cont_pre((LK if which == "K" else LV) + (tile % 4) * 16384, p, sr(sT))
        out.append(dma_k(p, sr(sT)) if which == "K" else dma_v(p, sr(sT)))
    return tag(out, f"{which}{tile}")

NPASS = int(CFG.get("npass", 3))
PEEL0 = 4 * NPASS
def slotK(t): return t % 4 if t < PEEL0 + 3 else slotK(t - 3)
def slotV(t): return t % 4 if t < PEEL0 + 2 else slotV(t - 3)
def rd_k(slot, n):
    kb, s = n // 4, n % 4
    return f"ds_read_b128 {ar(Freg(n),4)}, {vr(vKA+s)} offset:{slot*16384 + kb*4096} ; #k{n}"
def rd_v(slot, n, t):
    dt, ks = n // 2, n % 2
    return f"ds_read_b64_tr_b16 {ar(Freg(n)+2*t,2)}, {vr(vVA+dt)} offset:{slot*16384 + (32*ks+16*t)*256} ; #v{n}"

def qk_one(p, kb, qb, s, first, czero=False):
    d = Sreg(p, kb, qb)
    c = vr(d, 4) if not first else ("0" if czero else vr(vNEG + 4*qb, 4))
    return f"{MF} {vr(d,4)}, {ar(Freg(kb*4+s),4)}, {vr(Qreg(qb,s),4)}, {c}"
def qk_list(p):
    return [qk_one(p, kb, qb, (i if qb % 2 == 0 else 3 - i), i == 0) for kb in range(4) for qb in range(4) for i in range(4)]
def pv_one(p, dt, qb, ks):
    o = Oreg(qb, dt)
    return f"{MF} {ar(o,4)}, {ar(Freg(dt*2+ks),4)}, {vr(Ureg(p,ks,qb),4)}, {ar(o,4)}"
def sum_one(p, qb, ks):
    return f"{MF} {vr(vL+4*qb,4)}, {vr(vONES,4)}, {vr(Ureg(p,ks,qb),4)}, {vr(vL+4*qb,4)}"
def pv_list(p):
    return ([pv_one(p, dt, qb, (i if qb % 2 == 0 else 1 - i)) for dt in range(8) for qb in range(4) for i in range(2)]
            + [sum_one(p, qb, ks) for qb in range(4) for ks in range(2)])

UNITS = [(0, 0), (1, 0), (1, 1), (0, 1), (0, 2), (1, 2), (1, 3), (0, 3)]
def ereg(p, e): ks, qb = UNITS[e // 8]; return Ureg(p, ks, qb) + e % 8
def exp_i(p, e): r = ereg(p, e); return f"v_exp_f32 {vr(r)}, {vr(r)}"
def cvt_i(p, k):
    r = ereg(p, 2 * k); return f"v_cvt_pk_bf16_f32 {vr(r - (2*k) % 8 + k % 4)}, {vr(r)}, {vr(r+1)}"
def max_items(p):
    out = []
    for kb in range(4):
        for qb in range(4):
            r = Sreg(p, kb, qb); m = vr(vMX + qb % 2); done = 16 * kb + 4 * qb + 3
            if kb == 0 and qb < 2:
                out.append((f"v_max3_f32 {m}, {vr(r)}, {vr(r+1)}, {vr(r+2)}", done))
                out.append((f"v_max_f32 {m}, {vr(r+3)}, {m}", done))
            else:
                out.append((f"v_max3_f32 {m}, {vr(r)}, {vr(r+1)}, {m}", done))
                out.append((f"v_max3_f32 {m}, {vr(r+2)}, {vr(r+3)}, {m}", done))
    return out

NG = 136
HOOKA = 69
BARG = 118
LAT = 8
def make_plan():
    plan = {g: [] for g in range(NG)}
    T0 = HOOKA
    dsp = int(CFG.get("dsp", 14))
    dv0 = int(CFG.get("dv0", 72))
    dma_g = [4 + dsp * i for i in range(4)] + [dv0 + dsp * i for i in range(4)]
    dma_t = [g + NG if g < HOOKA else g for g in dma_g]
    NX2 = int(CFG.get('nx2', 40))
    r2 = [t for t in range(T0, NG) if t != BARG and t not in dma_t]
    r1 = [t for t in range(NG, NG + 64) if t not in dma_t]
    xt = [r2[i * len(r2) // NX2] for i in range(NX2)] + [r1[i * len(r1) // (64 - NX2)] for i in range(64 - NX2)]
    assert len(set(xt)) == 64
    for e, t in enumerate(xt): plan[t % NG].append(("exp", e, t >= NG))
    for i, t in enumerate(dma_t): plan[t % NG].append(("dma", i))
    Y = []
    for k in range(32):
        Y.append((xt[2*k+1] + 1, NG + 64 + k // 4 - 2, ("cvt", k)))
    for i, (_, done) in enumerate(max_items(0)):
        Y.append((NG + done + 3, NG + HOOKA - 3, ("max", i)))
    Y.append((NG + 66, NG + HOOKA - 2, ("max", 32))); Y.append((NG + 66, NG + HOOKA - 1, ("max", 33)))
    for n in range(16):
        Y.append((max(BARG + 1, 64 + 8 * (n // 2) + 7), NG + 16 * (n // 4) - LAT, ("k", n)))
    NV1 = int(CFG.get("nv1", 10))
    for n in range(16):
        e, d = 16 * (n // 4) + 15, min(64 + 8 * (n // 2) - LAT, BARG - 10)
        for t in range(2):
            if n < NV1: Y.append((NG + e, NG + min(d, HOOKA - 1), ("v", n, t)))
            else: Y.append((T0, d, ("v", n, t)))
    def kind(y): return y[2][0] + ("1" if y[2][0] == "v" and y[0] >= NG else "")
    ygaps = [t for t in range(T0, T0 + NG) if not plan[t % NG] and t % NG != BARG]
    pend = list(Y)
    for t in ygaps:
        g = t % NG
        picked = []
        for _ in range(2):
            heads = {}
            for y in pend: heads.setdefault(kind(y), y)
            c = [y for y in heads.values() if y[0] <= t]
            if not c: break
            def eff(y):
                same = [z for z in pend if kind(z) == kind(y)]
                return min(z[1] - i / 1.2 for i, z in enumerate(same))
            y = min(c, key=eff)
            assert t <= y[1], ("deadline miss", t, y)
            picked.append(y); pend.remove(y)
        picked.sort(key=lambda y: 0 if y[2][0] in ("k", "v") else 1)
        for y in picked: plan[g].append(y[2] + ((t >= NG,) if y[2][0] == "cvt" else ()))
    assert not pend, pend
    return plan
PLAN = make_plan()

def iteration(i, lab, loads=None, salu=()):
    assert DIST == 3 and not CONT
    p = i % 2
    steady = i < PEEL0
    sc = {g: [] for g in range(NG)}
    for kb in range(4): sc[16 * kb - 1 if kb else NG - 2].append(f"@wait - lds=" + ",".join(f"k{kb*4+s}" for s in range(4)))
    for dt in range(8):
        if 64 + 8 * dt - 1 < BARG - 1: sc[64 + 8 * dt - 1].append(f"@wait - lds=v{2*dt},v{2*dt+1}")
    sc[BARG - 1].append(f"@wait - vm={10 if i == 1 else 8} lgkm=0" if steady else f"@wait K{i+2},V{i+1} lgkm=0")
    sc[BARG].append("s_barrier")
    if CFG.get("itst"):
        sc[BARG - 2].append("s_memrealtime s[98:99]")
        sc[BARG] += ["s_mov_b64 exec, s[42:43]", f"v_mov_b32 v{STV}, s98", "s_mov_b64 exec, -1", "s_lshl_b64 s[42:43], s[42:43], 1"]
    sc[HOOKA] += [f"s_cbranch_vccnz {lab}a", f"{lab}a_back:"]
    sc[NG - 1] = [f"s_cbranch_vccnz {lab}b", f"{lab}b_back:"] + sc[NG - 1]
    extra = {}
    vm = {}
    hask, hasv = i + 3 <= 15, i + 2 <= 15
    for j, g in enumerate(DMA_GAPS):
        if j < 4 and hask: vm[g] = [m0_at(LK + slotK(i + 3) * 16384), dma_k(j, sr(sTK)) + f" ; #K{i+3}"]
        if j >= 4 and hasv: vm[g] = [m0_at(LV + slotV(i + 2) * 16384), dma_v(j - 4, sr(sTILE)) + f" ; #V{i+2}"]
    sc[120].append(f"s_mov_b32 {sr(sTILE)}, {sr(sTK)}")
    sc[121].append(f"s_add_u32 {sr(sTK)}, {sr(sTK)}, 0x4000")
    sc[122].append(f"s_and_b32 {sr(sTK)}, {sr(sTK)}, 0x3ffff")
    if steady:
        if i == 1:
            extra[64] = [f"v_and_b32 {vr(vCW)}, 3, v0", f"v_lshlrev_b32 {vr(vCW)}, 6, {vr(vCW)}"]
            extra[65] = [f"buffer_load_dword {vr(vCW)}, {vr(vCW)}, {sr(sDB,4)}, 0 offen sc1"]
            sc[40].append(f"s_cmp_eq_u32 {sr(sCNT)}, {NPASS - 1}")
            sc[41].append(f"s_cselect_b32 {sr(sDB+2)}, 256, 0")
            extra[68] = [f"buffer_atomic_add {vr(vONES)}, {vr(vLIN)}, {sr(sDBW,4)}, 0 offen sc1"]
            sc[75].append(f"s_mov_b32 {sr(sDBW+2)}, 0")
    else:
        nextk = i + 2 <= 15
        def load(g):
            return sum(2 if it[0] == "exp" else (0 if it[0] == "dma" or (it[0] == "k" and g > BARG and not nextk) else 1) for it in PLAN[g])
        gs = 0
        for x in salu:
            if x.startswith("s_addc"):
                sc[gs - 1].append(x); continue
            while sc[gs] or gs in vm or gs + 1 in vm: gs += 1
            sc[gs].append(x); gs += 1
        for groups, lo, hi in loads:
            cand = [g for g in range(max(lo, gs + 3 if salu else 0), hi) if g not in vm and g not in (BARG, BARG - 1, HOOKA, NG - 1)]
            n = len(groups)
            for k, grp in enumerate(groups):
                win = cand[k * len(cand) // n:(k + 1) * len(cand) // n]
                vm[min(win, key=load)] = grp
    cur_m0 = None; prev = -1
    for g in sorted(vm):
        grp = vm[g]; sca = []
        for x in grp[:-1]:
            if x.startswith("s_add_u32 m0"):
                if x == cur_m0: continue
                cur_m0 = x
            sca.append(x)
        free = [q for q in range(prev + 1, g + 1) if not sc[q] and not (steady and q in (40, 41))]
        if sca and sca[-1].startswith("s_add_u32 m0"): free = [q for q in free if q < g]
        if len(free) >= len(sca):
            for x, q in zip(sca, free[len(free) - len(sca):]): sc[q].append(x)
        else:
            sc[g] += sca + ["s_nop 0"]
        prev = g
    mf = qk_list(1 - p) + pv_list(p)
    MX = [t for t, _ in max_items(1 - p)] + [f"v_max_f32 {vr(vMX)}, {vr(vMX)}, {vr(vMX+1)}", f"v_cmp_lt_f32 vcc, {sr(sTHR)}, {vr(vMX)}"]
    out = []
    for g in range(NG):
        out.append(mf[g])
        out += sc[g]
        ex = extra.get(g, [])
        out += [x for x in ex if not x.startswith("v_")]
        if g in vm: out.append(vm[g][-1])
        for it in PLAN[g]:
            k = it[0]
            if k == "exp": out.append(exp_i(p if it[2] else 1 - p, it[1]))
            elif k == "cvt": out.append(cvt_i(p if it[2] else 1 - p, it[1]))
            elif k == "max":
                if not CFG.get("nomax"): out.append(MX[it[1]])
            elif k == "k":
                t = i + (2 if g > BARG else 1)
                if t <= 15: out.append(rd_k(slotK(t), it[1]))
            elif k == "v": out.append(rd_v(slotV(i), it[1], it[2]))
        out += [x for x in ex if x.startswith("v_")]
        if CFG.get("slowdown") and g % int(CFG["slowdown"]) == 5: out.append("s_nop 7")
    return out
EARLY_K = [it[1] for g in range(BARG + 1, NG) for it in PLAN[g] if it[0] == "k"]
E_FIRST = [it for g in range(HOOKA, NG) for it in PLAN[g] if it[0] in ("exp", "cvt")]
E_REST = [it for g in range(0, HOOKA) for it in PLAN[g] if it[0] in ("exp", "cvt")]
DMA_GAPS = [g for g in range(NG) if any(it[0] == "dma" for it in PLAN[g])]
LIGHT = sorted(range(NG), key=lambda g: (sum(2 if it[0] in ("exp",) else (0 if it[0] == "dma" else 1) for it in PLAN[g])))

def spread(items, gaps):
    d = {}
    for i, it in enumerate(items):
        d.setdefault(gaps[i * len(gaps) // len(items)], []).extend(it)
    return d
def place(groups, lo, hi):
    cand = [g for g in LIGHT if lo <= g < hi and g not in (BARG, BARG - 1, HOOKA, NG - 1)]
    gs = sorted(cand[:len(groups)])
    assert len(gs) == len(groups)
    return {g: list(x) for g, x in zip(gs, groups)}
def merge(*maps):
    d = {}
    for m in maps:
        for k, v in m.items(): d.setdefault(k, []).extend(v)
    return d
def flat(G): return [x for g in G for x in g]
def groups_of(lst):
    G = []; cur = []
    for x in lst:
        cur.append(x)
        if x.startswith("buffer_"): G.append(cur); cur = []
    if cur: G[-1] += cur
    return G

WCLASS = {}
def plan_wo():
    P = {}; c = 0
    def add(name, kind, base, n):
        nonlocal c
        P[name] = list(range(c, c + n))
        for i in range(n): WCLASS[c] = (kind, base + 16 * i); c += 1
    add("R1", "r", 256 + 192, 4); add("R2", "r", vQ, 4); add("R3", "r", vS, 4)
    kx = [x for x in range(4) if x not in (slotK(13), slotK(14), slotK(15))][0]
    vx = [x for x in range(4) if x not in (slotV(13), slotV(14), slotV(15))][0]
    for nm, addr in (("W0", LW), ("W1", LW + 16384), ("Kx", LK + kx * 16384), ("Vx", LV + vx * 16384), ("K13", LK + slotK(13) * 16384),
                     ("K14", LK + slotK(14) * 16384), ("V13", LV + slotV(13) * 16384), ("K15", LK + slotK(15) * 16384), ("V14", LV + slotV(14) * 16384)):
        add(nm, "l", addr, 1)
    add("R4a", "r", vNEG, 1); add("R6a", "r", 256, 2); add("R6b", "r", 256 + 32, 2); add("R4b", "r", vL, 1); add("V15", "l", LV + slotV(15) * 16384, 1)
    ns = int(CFG.get("nstream", 0))
    add("R5", "r", 256 + aF, 4 - ns); add("ST", "s", 0, ns)
    assert c == 32
    return P
WP = plan_wo()
def step_off(c):
    if CFG.get("rc", "0x") != "n": return [f"s_mov_b32 {sr(sSP)}, {c * 4096}"]
    return [f"s_add_u32 {sr(sSP)}, {sr(sRC)}, {c * 4096}", f"s_and_b32 {sr(sSP)}, {sr(sSP)}, 0x1ffff"]
def wo_loads(name, allm0=False):
    groups = []
    if name in CFG.get("skipw", "").split(","): return [["s_nop 0"]] * 4
    for c in WP[name]:
        kind, where = WCLASS[c]
        for n in range(4):
            g = []
            if n == 0: g += step_off(c)
            if kind == "l" and (n == 0 or allm0): g.append(m0_at(where))
            if kind == "l" and n == 0 and not allm0: g.append("s_nop 0")
            if kind == "r":
                g.append(f"buffer_load_dwordx4 {rr(where + 4*n, 4)}, {vr(vLIN)}, {sr(sWFL,4)}, {sr(sSP)} offen offset:{n*1024} sc1 ; #w{c}")
            else:
                g.append(f"buffer_load_dwordx4 {vr(vLIN)}, {sr(sWFL,4)}, {sr(sSP)} offen offset:{n*1024} sc1 lds ; #w{c}")
            groups.append(g)
    return groups

def weave(mf, nvmap, va=(), pre=None, need=None):
    out = []; va = list(va)
    for g, m in enumerate(mf):
        if need and g in need:
            last = max([i for i, x in enumerate(va) if x[2] == need[g]], default=-1)
            if last >= 0:
                if va[last][1] > g - 1: out.append("s_nop 7")
                out += [x[0] for x in va[:last + 1]] + ["s_nop 1"]; va = va[last + 1:]
            elif any(x.startswith("v_") and not x.startswith("v_mfma") for x in out[-2:]): out.append("s_nop 1")
        if pre and g in pre: out += pre[g]
        out.append(m)
        nv = nvmap.get(g, [])
        out += nv
        c = sum(slots(x) for x in nv)
        while va and va[0][1] <= g and c + slots(va[0][0]) <= 2:
            c += slots(va[0][0]); out.append(va.pop(0)[0])
    return out, va

def allreduce(op, a, b):
    return [f"v_mov_b32 {vr(b)}, {vr(a)}", "s_nop 1", f"v_permlane32_swap_b32 {vr(a)}, {vr(b)}", "s_nop 1", f"{op} {vr(a)}, {vr(a)}, {vr(b)}",
            f"v_mov_b32 {vr(b)}, {vr(a)}", "s_nop 1", f"v_permlane16_swap_b32 {vr(a)}, {vr(b)}", "s_nop 1", f"{op} {vr(a)}, {vr(a)}, {vr(b)}"]
def qmax(p, qb, d):
    regs = [Sreg(p, kb, qb) + j for kb in range(4) for j in range(4)]
    o = [f"v_max3_f32 {vr(d)}, {vr(regs[0])}, {vr(regs[1])}, {vr(regs[2])}"]
    for i in range(3, 15, 2): o.append(f"v_max3_f32 {vr(d)}, {vr(regs[i])}, {vr(regs[i+1])}, {vr(d)}")
    o.append(f"v_max_f32 {vr(d)}, {vr(regs[15])}, {vr(d)}")
    return o
def rare_a(p, label):
    out = [f"{label}:", "s_nop 7"]
    for qb in range(4):
        d = vT + qb
        out += qmax(p, qb, d) + allreduce("v_max_f32", d, vMX)
        out.append(f"v_max_f32 {vr(d)}, 0, {vr(d)}")
        for j in range(4): out.append(f"v_sub_f32 {vr(vNEG+4*qb+j)}, {vr(vNEG+4*qb+j)}, {vr(d)}")
        for kb in range(4):
            for j in range(4):
                r = Sreg(p, kb, qb) + j
                out.append(f"v_sub_f32 {vr(r)}, {vr(r)}, {vr(d)}")
        out.append(f"v_exp_f32 {vr(d)}, -{vr(d)}")
    out += ["s_nop 3", f"s_setpc_b64 {sr(sRET,2)}"]
    return out
def rare_b(label):
    out = [f"{label}:", "s_nop 15"]
    for qb in range(4):
        f_ = vT + qb
        for j in range(4): out.append(f"v_mul_f32 {vr(vL+4*qb+j)}, {vr(vL+4*qb+j)}, {vr(f_)}")
        for j in range(0, 32, 2):
            a0 = Oreg(qb, 0) + j
            out += [f"v_accvgpr_read_b32 {vr(vMX)}, {ar(a0)}", f"v_accvgpr_read_b32 {vr(vMX+1)}, {ar(a0+1)}",
                    f"v_mul_f32 {vr(vMX)}, {vr(vMX)}, {vr(f_)}", f"v_mul_f32 {vr(vMX+1)}, {vr(vMX+1)}, {vr(f_)}",
                    f"v_accvgpr_write_b32 {ar(a0)}, {vr(vMX)}", f"v_accvgpr_write_b32 {ar(a0+1)}, {vr(vMX+1)}"]
    out += ["s_nop 3", f"s_setpc_b64 {sr(sRET,2)}"]
    return out

def wfrag(st, s, dt): return (128 if st % 2 == 0 else 192) + 4 * (dt * 2 + s)
def xfrag(st, s, qb): return (96 if st % 2 == 0 else 32) + 4 * (qb * 2 + s)
def qacc(qb, dt): return Ureg(dt // 4, (dt // 2) % 2, qb) + 4 * (dt % 2)
def qp_reads(st):
    out = []
    for qb in range(4):
        for s in range(2):
            out.append(f"ds_read_b128 {vr(xfrag(st,s,qb),4)}, {vr(vXA + 2*(st%2) + s)} offset:{qb*2048} ; #x{st}_{qb}")
    for dt in range(8):
        for s in range(2):
            for t in range(2):
                if NOSWAP: out.append(f"ds_read_b64_tr_b16 {ar(wfrag(st,s,dt)+2*t,2)}, {vr(vWA + dt//2)} offset:{(st%3)*16384 + (32*s+4*t)*256 + 8*(dt%2)} ; #w{st}_{dt}")
                else: out.append(f"ds_read_b64_tr_b16 {ar(wfrag(st,s,dt)+2*t,2)}, {vr(vWA + dt)} offset:{(st%3)*16384 + (32*s+4*t)*256} ; #w{st}_{dt}")
    return out
def qp_dma(st):
    G = []
    wf = (" " + CFG["wqld"]) if CFG.get("wqld") else ""
    xf = (" " + CFG["xld"]) if CFG.get("xld") else ""
    for p in range(4):
        g = []
        if p == 0:
            g = [f"s_add_u32 {sr(sRX)}, {sr(sRQ)}, {st}", f"s_and_b32 {sr(sRX)}, {sr(sRX)}, 7", f"s_lshl_b32 {sr(sRW)}, {sr(sRX)}, 19",
                 f"s_lshl_b32 {sr(sRX)}, {sr(sRX)}, 7", m0_at(LWQ[st % 3])]
        g.append(f"s_add_u32 {sr(sDT)}, {sr(sRW)}, {p*(32768-1024)}")
        g.append(f"buffer_load_dwordx4 {vr(vDW + p//2)}, {sr(sWQ,4)}, {sr(sDT)} offen offset:{1024*p}{wf} lds ; #st{st}")
        G.append(g)
    for p in range(8):
        g = [f"s_add_u32 m0, {sr(sW8K)}, {LX[st%2] + (p//4)*4096}"] if p % 4 == 0 else []
        g.append(f"s_add_u32 {sr(sDT)}, {sr(sRX)}, {p*8192 - 1024*(p%4)}")
        g.append(f"buffer_load_dwordx4 {vr(vDX + p%2)}, {sr(sX,4)}, {sr(sDT)} offen offset:{1024*(p%4)}{xf} lds ; #st{st}")
        G.append(g)
    return G
def qp_one(st, dt, qb, s, first):
    d = qacc(qb, dt)
    return f"{MF} {vr(d,4)}, {ar(wfrag(st,s,dt),4)}, {vr(xfrag(st,s,qb),4)}, {'0' if first else vr(d, 4)}"
def qp_mfmas(st):
    return [qp_one(st, dt, qb, (i if qb % 2 == 0 else 1 - i), st == 0 and i == 0) for dt in range(8) for qb in range(4) for i in range(2)]
def qp_q(st, qb):
    return [qp_one(st, dt, qb, (i if dt % 2 == 0 else 1 - i), False) for dt in range(8) for i in range(2)]
def qconv(qb, s):
    d = qacc(qb, 2 * s); q = Qreg(qb, s)
    out = [f"v_mul_f32 {vr(d+j)}, {sr(sSC)}, {vr(d+j)}" for j in range(8)]
    out += [f"v_cvt_pk_bf16_f32 {vr(q+j)}, {vr(d+2*j)}, {vr(d+2*j+1)}" for j in (0, 2, 1, 3)]
    return out, [f"v_permlane32_swap_b32 {vr(q)}, {vr(q+2)}", f"v_permlane32_swap_b32 {vr(q+1)}, {vr(q+3)}"], \
                [f"v_permlane16_swap_b32 {vr(q)}, {vr(q+2)}", f"v_permlane16_swap_b32 {vr(q+1)}, {vr(q+3)}"]
def qconv_stream(qb):
    parts = [qconv(qb, s) for s in range(4)]
    if NOSWAP: return [(x, s) for s in range(4) for x in parts[s][0]]
    out = []
    for s in range(4):
        a = parts[s][0]
        if s == 0: out += [(x, s) for x in a]
        else: out += [(x, s) for x in a[:4]] + [(x, s) for x in parts[s-1][1]] + [(x, s) for x in a[4:8]] + [(x, s) for x in parts[s-1][2]] + [(x, s) for x in a[8:]]
    out += [("s_nop 1", 3)] + [(x, 3) for x in parts[3][1]] + [("s_nop 1", 3)] + [(x, 3) for x in parts[3][2]]
    return out

def setup_a():
    o = []; A = o.append
    A("s_cmp_ge_u32 s2, 256")
    A("s_cbranch_scc1 L_end")
    if CFG.get("fixdur"): A("s_memrealtime s[42:43]")
    A(f"s_load_dwordx16 {sr(sARG,16)}, s[0:1], 0")
    if CFG["codepf"]:
        A(f"s_getpc_b64 {sr(sT,2)}")
        A("L_pc:")
        A(f"s_bfe_u32 {sr(sT+2)}, s2, 0x30003")
        A(f"v_lshrrev_b32 {vr(u0)}, 6, v0"); A(f"v_and_b32 {vr(u1)}, 15, v0"); A(f"v_lshl_add_u32 {vr(u0)}, {vr(u0)}, 4, {vr(u1)}")
        A(f"v_lshlrev_b32 {vr(u0)}, 10, {vr(u0)}"); A(f"s_lshl_b32 {sr(sT+2)}, {sr(sT+2)}, 7"); A(f"v_add_u32 {vr(u0)}, {sr(sT+2)}, {vr(u0)}")
        A(f"v_min_u32 {vr(u0)}, L_end-L_pc, {vr(u0)}")
        A(f"global_load_dword {vr(vDUM[0])}, {vr(u0)}, {sr(sT,2)} ; #pf")
    A(f"s_and_b32 {sr(sCB)}, s2, 7")
    A(f"s_lshr_b32 {sr(sT+3)}, s2, 3")
    A(f"s_and_b32 {sr(sMT)}, {sr(sT+3)}, 3"); A(f"s_lshr_b32 {sr(sNT)}, {sr(sT+3)}, 2")
    if CFG.get("pmap", "4x8") == "4x8":
        A(f"s_and_b32 {sr(sB)}, {sr(sCB)}, 1"); A(f"s_lshl_b32 {sr(sB)}, {sr(sB)}, 2"); A(f"s_add_u32 {sr(sB)}, {sr(sB)}, {sr(sMT)}")
        A(f"s_lshr_b32 {sr(sH)}, {sr(sCB)}, 1"); A(f"s_lshl_b32 {sr(sH)}, {sr(sH)}, 3"); A(f"s_add_u32 {sr(sH)}, {sr(sH)}, {sr(sNT)}")
    else:
        A(f"s_mov_b32 {sr(sB)}, {sr(sCB)}"); A(f"s_mov_b32 {sr(sH)}, {sr(sT+3)}")
    rq = CFG.get("rq", "x")
    if rq == "n": A(f"s_mov_b32 {sr(sRQ)}, 0")
    elif rq == "x": A(f"s_mov_b32 {sr(sRQ)}, {sr(sCB)}")
    elif rq == "h": A(f"s_mov_b32 {sr(sRQ)}, {sr(sH)}")
    elif rq == "f": A(f"s_lshl_b32 {sr(sRQ)}, {sr(sB)}, 1"); A(f"s_add_u32 {sr(sRQ)}, {sr(sRQ)}, {sr(sH)}")
    elif rq == "g": A(f"s_add_u32 {sr(sRQ)}, {sr(sB)}, {sr(sH)}")
    A(f"v_lshrrev_b32 {vr(u0)}, 6, v0")
    A(f"v_and_b32 {vr(ln)}, 63, v0")
    A(f"v_readfirstlane_b32 {sr(sWAVE)}, {vr(u0)}")
    A(f"v_lshrrev_b32 {vr(u1)}, 4, {vr(ln)}")
    A(f"v_and_b32 {vr(u2)}, 15, {vr(ln)}")
    A(f"v_lshl_add_u32 {vr(u4)}, {vr(u0)}, 4, {vr(u1)}")
    A(f"v_lshlrev_b32 {vr(u3)}, 1, {vr(u1)}")
    A(f"v_xor_b32 {vr(u3)}, {vr(u3)}, {vr(u2)}")
    A(f"v_lshlrev_b32 {vr(u5)}, 4, {vr(u3)}")
    A(f"v_lshl_add_u32 {vr(vDW)}, {vr(u4)}, 13, {vr(u5)}")
    A(f"v_xor_b32 {vr(vDW+1)}, 0x80, {vr(vDW)}")
    if NOSWAP:
        A(f"v_lshlrev_b32 {vr(u3)}, 2, {vr(u1)}"); A(f"v_xor_b32 {vr(u3)}, {vr(u3)}, {vr(u2)}"); A(f"v_lshlrev_b32 {vr(u3)}, 4, {vr(u3)}")
        A(f"v_lshl_add_u32 {vr(vDW)}, {vr(u4)}, 13, {vr(u3)}"); A(f"v_mov_b32 {vr(vDW+1)}, {vr(vDW)}")
    A(f"v_lshrrev_b32 {vr(u3)}, 3, {vr(ln)}")
    A(f"v_lshl_add_u32 {vr(u0)}, {vr(u0)}, 6, {vr(u3)}")
    A(f"v_and_b32 {vr(u3)}, 7, {vr(ln)}")
    A(f"v_xor_b32 {vr(u3)}, {vr(u1)}, {vr(u3)}")
    A(f"v_lshlrev_b32 {vr(u3)}, 4, {vr(u3)}")
    A(f"v_lshl_add_u32 {vr(vDX)}, {vr(u0)}, 10, {vr(u3)}")
    A(f"v_xor_b32 {vr(vDX+1)}, 64, {vr(vDX)}")
    A(f"s_lshl_b32 {sr(sW4K)}, {sr(sWAVE)}, 12")
    A(f"s_lshl_b32 {sr(sW8K)}, {sr(sWAVE)}, 13")
    A(f"s_lshl_b32 {sr(sT)}, {sr(sB)}, 18")
    A(f"s_lshl_b32 {sr(sT+1)}, {sr(sH)}, 8")
    A("s_waitcnt lgkmcnt(0)")
    o += stamp()
    o += srd_at(sWQ, 6, sr(sT+1), 511*8192 + 256)
    o += srd_at(sX, 0, sr(sT), 0x40000)
    return o

def wo_piece_addr():
    return [f"v_lshrrev_b32 {vr(u0)}, 5, v0", f"v_and_b32 {vr(u1)}, 0x1e, {vr(u0)}", f"v_and_b32 {vr(u0)}, 1, {vr(u0)}",
            f"v_lshl_add_u32 {vr(u0)}, {vr(u1)}, 2, {vr(u0)}",
            f"v_and_b32 {vr(u1)}, 31, v0", f"v_lshlrev_b32 {vr(u1)}, 4, {vr(u1)}", f"v_lshl_add_u32 {vr(vWOF)}, {vr(u0)}, 10, {vr(u1)}"]
def wo_piece_dma():
    o = [m0_at(LWO)]
    for p in range(4):
        o.append(f"s_mov_b32 {sr(sDT)}, {1024*p}")
        o.append(f"buffer_load_dwordx4 {vr(vWOF)}, {sr(sWO2,4)}, {sr(sDT)} offen offset:{1024*p} nt lds ; #wo")
    return o

def warm_loads(nst):
    o = []; A = o.append
    A(f"v_lshrrev_b32 {vr(u3)}, 6, v0"); A(f"v_and_b32 {vr(u2)}, 15, v0"); A(f"v_lshl_add_u32 {vr(u3)}, {vr(u3)}, 4, {vr(u2)}")
    A(f"v_and_b32 {vr(u1)}, {nst - 1}, {vr(u3)}"); A(f"v_add_u32 {vr(u1)}, {sr(sRQ)}, {vr(u1)}"); A(f"v_add_u32 {vr(u1)}, 1, {vr(u1)}")
    A(f"v_and_b32 {vr(u1)}, 7, {vr(u1)}")
    A(f"v_lshrrev_b32 {vr(u2)}, 1, {vr(u3)}")
    A(f"v_lshlrev_b32 {vr(u0)}, 7, {vr(u1)}"); A(f"v_lshl_add_u32 {vr(u0)}, {vr(u2)}, 10, {vr(u0)}")
    A(f"s_and_b32 {sr(sT)}, {sr(sH)}, 7"); A(f"s_lshl_b32 {sr(sT)}, {sr(sT)}, 15")
    A(f"buffer_load_dword {vr(vDUM[1])}, {vr(u0)}, {sr(sX,4)}, {sr(sT)} offen ; #warm")
    A(f"v_lshlrev_b32 {vr(u0)}, 19, {vr(u1)}")
    A(f"v_lshrrev_b32 {vr(u3)}, 1, {vr(u2)}"); A(f"v_lshl_add_u32 {vr(u0)}, {vr(u3)}, 13, {vr(u0)}")
    A(f"v_and_b32 {vr(u3)}, 1, {vr(u2)}"); A(f"v_lshl_add_u32 {vr(u0)}, {vr(u3)}, 7, {vr(u0)}")
    A(f"s_and_b32 {sr(sT)}, {sr(sB)}, 3"); A(f"s_lshl_b32 {sr(sT)}, {sr(sT)}, 17")
    A(f"buffer_load_dword {vr(vDUM[2])}, {vr(u0)}, {sr(sWQ,4)}, {sr(sT)} offen ; #warm")
    return o

def setup_b():
    o = []; A = o.append
    A(f"s_lshl_b32 {sr(sT+2)}, {sr(sB)}, 5"); A(f"s_add_u32 {sr(sT+2)}, {sr(sT+2)}, {sr(sH)}")
    A(f"s_lshl_b32 {sr(sT)}, {sr(sT+2)}, 18")
    o += srd_at(sK, 2, sr(sT), 0x40000)
    o += srd_at(sV, 4, sr(sT), 0x40000)
    A(f"s_lshl_b32 {sr(sT+1)}, {sr(sT+2)}, 7"); A(f"s_add_u32 {sr(sT+1)}, {sr(sT+1)}, {FLAG_OFF}")
    o += srd_at(sFL, 14, sr(sT+1), 8)
    A(f"s_getreg_b32 {sr(sXCC)}, hwreg(HW_REG_XCC_ID, 0, 4)")
    o += srd_at(sDB, 12, "0", 256)
    A(f"s_and_b32 {sr(sT+1)}, {sr(sT+2)}, 3"); A(f"s_lshl_b32 {sr(sT+1)}, {sr(sT+1)}, 6")
    o += srd_at(sDBW, 12, sr(sT+1), 4)
    A(f"s_lshr_b32 {sr(sT)}, {sr(sT+2)}, 1"); A(f"s_and_b32 {sr(sT+2)}, {sr(sT+2)}, 1")
    A(f"s_lshl_b32 {sr(sT+1)}, {sr(sT)}, 15"); A(f"s_lshl_b32 {sr(sT+3)}, {sr(sT+2)}, 9"); A(f"s_add_u32 {sr(sT+1)}, {sr(sT+1)}, {sr(sT+3)}")
    o += srd_at(sWO2, 8, sr(sT+1), 31*1024 + 512)
    A(f"s_lshl_b32 {sr(sT+2)}, {sr(sT+2)}, 2"); A(f"s_add_u32 {sr(sT+2)}, {sr(sT+2)}, {sr(sWAVE)}"); A(f"s_lshl_b32 {sr(sT+2)}, {sr(sT+2)}, 19")
    A(f"s_lshl_b32 {sr(sT)}, {sr(sT)}, 12"); A(f"s_add_u32 {sr(sT)}, {sr(sT)}, {sr(sT+2)}"); A(f"s_add_u32 {sr(sT)}, {sr(sT)}, {WOF_OFF}")
    o += srd_at(sWS2, 14, sr(sT), 4096)
    A(f"s_lshl_b32 {sr(sT)}, {sr(sB)}, 2"); A(f"s_add_u32 {sr(sT)}, {sr(sT)}, {sr(sWAVE)}"); A(f"s_lshl_b32 {sr(sT)}, {sr(sT)}, 19")
    A(f"s_lshl_b32 {sr(sT+1)}, {sr(sH)}, 14"); A(f"s_add_u32 {sr(sT)}, {sr(sT)}, {sr(sT+1)}")
    o += srd_at(sO, 14, sr(sT), 16384)
    if CFG.get("fewst"):
        A(f"s_cmp_eq_u32 {sr(sMT)}, 0"); A(f"s_cselect_b32 {sr(sO+2)}, {sr(sO+2)}, 0")
    rot = CFG.get("rot", "j")
    if rot == "j": A(f"s_lshr_b32 {sr(sROT)}, s2, 3"); A(f"s_add_u32 {sr(sROT)}, {sr(sROT)}, s2"); A(f"s_and_b32 {sr(sROT)}, {sr(sROT)}, 15"); A(f"s_lshl_b32 {sr(sROT)}, {sr(sROT)}, 14")
    else: A(f"s_mov_b32 {sr(sROT)}, 0")
    if CFG.get("itst"): A("s_mov_b32 s42, 0"); A("s_mov_b32 s43, 0x100")
    A(f"s_mov_b32 {sr(sTHR)}, 0x41000000")
    c = math.log2(math.e) / math.sqrt(128.0)
    A(f"s_mov_b32 {sr(sSC)}, 0x{struct.unpack('<I', struct.pack('<f', c))[0]:08x}")
    A(f"v_lshl_add_u32 {vr(vDV)}, {vr(u4)}, 8, {vr(u5)}")
    A(f"v_xor_b32 {vr(vDV+1)}, 0x80, {vr(vDV)}")
    g_, c16 = u1, u2
    A(f"v_lshrrev_b32 {vr(g_)}, 4, {vr(ln)}")
    A(f"v_and_b32 {vr(c16)}, 15, {vr(ln)}")
    A(f"v_xor_b32 {vr(u3)}, {vr(g_)}, {vr(c16)}")
    A(f"v_lshlrev_b32 {vr(u3)}, 4, {vr(u3)}")
    A(f"v_lshl_add_u32 {vr(vDK)}, {vr(u4)}, 8, {vr(u3)}")
    for p in range(1, 4): A(f"v_xor_b32 {vr(vDK+p)}, {64*p}, {vr(vDK)}")
    if CONT:
        A(f"s_lshl_b32 {sr(sW1K)}, {sr(sWAVE)}, 10")
        A(f"v_lshrrev_b32 {vr(vDK+1)}, 4, v0")
        A(f"v_xor_b32 {vr(vDK+2)}, {vr(vDK+1)}, {vr(c16)}"); A(f"v_lshlrev_b32 {vr(vDK+2)}, 4, {vr(vDK+2)}")
        A(f"v_lshl_add_u32 {vr(vDK)}, {vr(vDK+1)}, 8, {vr(vDK+2)}")
        A(f"v_and_b32 {vr(vDK+2)}, 7, {vr(vDK+1)}"); A(f"v_lshlrev_b32 {vr(vDK+2)}, 1, {vr(vDK+2)}")
        A(f"v_xor_b32 {vr(vDK+2)}, {vr(vDK+2)}, {vr(c16)}"); A(f"v_lshlrev_b32 {vr(vDK+2)}, 4, {vr(vDK+2)}")
        A(f"v_lshl_add_u32 {vr(vDV)}, {vr(vDK+1)}, 8, {vr(vDK+2)}")
    A(f"v_lshl_add_u32 {vr(vKA)}, {vr(c16)}, 8, {vr(u3)}")
    for s in range(1, 4): A(f"v_xor_b32 {vr(vKA+s)}, {64*s}, {vr(vKA)}")
    A(f"v_lshrrev_b32 {vr(u3)}, 1, {vr(c16)}")
    A(f"v_xor_b32 {vr(u3)}, {vr(g_)}, {vr(u3)}")
    A(f"v_lshlrev_b32 {vr(u3)}, 4, {vr(u3)}")
    A(f"v_lshl_add_u32 {vr(u3)}, {vr(c16)}, 7, {vr(u3)}")
    A(f"v_add_u32 {vr(u3)}, {sr(sW8K)}, {vr(u3)}")
    for sl in range(2):
        A(f"v_add_u32 {vr(vXA+2*sl)}, {LX[sl]}, {vr(u3)}")
        A(f"v_xor_b32 {vr(vXA+2*sl+1)}, 64, {vr(vXA+2*sl)}")
    A(f"v_cmp_eq_u32 vcc, 0, {vr(c16)}")
    A(f"v_mov_b32 {vr(u3)}, 0x3f803f80")
    r_, f_, c8 = u0, u4, u5
    A(f"v_bfe_u32 {vr(r_)}, {vr(ln)}, 2, 2")
    for j in range(4): A(f"v_cndmask_b32 {vr(vONES+j)}, 0, {vr(u3)}, vcc")
    A(f"v_bfe_u32 {vr(f_)}, {vr(ln)}, 2, 3")
    A(f"v_and_b32 {vr(c8)}, 3, {vr(ln)}")
    A(f"v_lshlrev_b32 {vr(c8)}, 3, {vr(c8)}")
    A(f"v_lshrrev_b32 {vr(u3)}, 2, {vr(ln)}")
    A(f"v_lshl_add_u32 {vr(vWOA)}, {vr(u3)}, 9, {vr(c8)}")
    A(f"s_lshl_b32 {sr(sT)}, {sr(sWAVE)}, 7"); A(f"s_add_u32 {sr(sT)}, {sr(sT)}, {LWO}")
    A(f"v_add_u32 {vr(vWOA)}, {sr(sT)}, {vr(vWOA)}")
    A(f"v_lshl_add_u32 {vr(c8)}, {vr(f_)}, 5, {vr(c8)}")
    A(f"v_lshl_add_u32 {vr(u3)}, {vr(u3)}, 8, {vr(c8)}")
    A(f"v_add_u32 {vr(vVA)}, {LV}, {vr(u3)}")
    for dt in range(1, 8): A(f"v_xor_b32 {vr(vVA+dt)}, {32*dt}, {vr(vVA)}")
    A(f"v_lshl_add_u32 {vr(u3)}, {vr(g_)}, 3, {vr(r_)}")
    A(f"v_lshl_add_u32 {vr(u3)}, {vr(u3)}, 8, {vr(c8)}")
    if NOSWAP:
        A(f"v_and_b32 {vr(u3)}, 0xff00, {vr(u3)}"); A(f"v_lshl_add_u32 {vr(u3)}, {vr(r_)}, 6, {vr(u3)}")
        A(f"v_and_b32 {vr(c8)}, 3, {vr(ln)}"); A(f"v_lshl_add_u32 {vr(u3)}, {vr(c8)}, 4, {vr(u3)}")
        A(f"v_add_u32 {vr(vWA)}, {LWQ[0]}, {vr(u3)}")
        for k in range(1, 4): A(f"v_xor_b32 {vr(vWA+k)}, {64*k}, {vr(vWA)}")
    else:
        A(f"v_add_u32 {vr(vWA)}, {LWQ[0]}, {vr(u3)}")
        for dt in range(1, 8): A(f"v_xor_b32 {vr(vWA+dt)}, {32*dt}, {vr(vWA)}")
    A(f"v_lshlrev_b32 {vr(vWOS)}, 4, {vr(ln)}")
    A(f"s_lshl_b32 {sr(sT)}, {sr(sWAVE)}, 17")
    A(f"v_add_u32 {vr(vLIN)}, {sr(sT)}, {vr(vWOS)}")
    A(f"v_mov_b32 {vr(vT)}, 0"); A(f"v_mov_b32 {vr(vT+1)}, {sr(sXCC)}")
    o += wo_piece_addr()
    return o

def wo_reads():
    return [f"ds_read_b64_tr_b16 {ar(192+4*i+2*tt,2)}, {vr(vWOA)} offset:{i*32 + tt*8192} ; #wo" for i in range(4) for tt in range(2)]
def wo_stores():
    return [[f"buffer_store_dwordx4 {ar(192+4*i,4)}, {vr(vWOS)}, {sr(sWS2,4)}, 0 offen offset:{i*1024} sc1 ; #wst"] for i in range(4)] + \
           []

def pairs(lst): return [lst[i:i+2] for i in range(0, len(lst), 2)]
def prologue():
    qs = stamp if CFG["qst"] else (lambda: [])
    o = setup_a()
    o += flat(qp_dma(0))
    nw = int(CFG.get("nwarm", 2))
    o += (warm_loads(nw) if nw else [])
    o += qs()
    o += setup_b()
    prek = [x for x in CFG.get("prek", "").split(",") if x]
    for n in prek: o += (wo_piece_dma() if n == "wo" else kv_batch(n[0], int(n[1:])))
    if CFG.get("kvtlb"):
        o += [f"buffer_load_dword {ar(0)}, off, {sr(sK,4)}, 0 nt ; #tl", f"buffer_load_dword {ar(1)}, off, {sr(sV,4)}, 0 nt ; #tl"]
    o += qs()
    o += ["@wait st0", "s_barrier"] + stamp()
    kv = lambda *l: groups_of(sum([kv_batch(x[0], int(x[1:])) for x in l], []))
    bg = [int(x) for x in CFG.get("bg", "38,38,38,38,30,10,-14").split(",")]
    step = float(CFG.get("qstep", 4))
    B = [64 * s + bg[s] for s in range(7)]
    seq = [(st, dt, qb) for st in range(6) for dt in range(8) for qb in range(4) for i in range(2)]
    mf = sum([qp_mfmas(st) for st in range(6)], [])
    for st, qb in ((6, 0), (6, 1), (7, 0), (7, 1), (6, 2), (6, 3), (7, 2), (7, 3)):
        mf += qp_q(st, qb); seq += [(st, dt, qb) for dt in range(8) for i in range(2)]
    Q0 = len(mf)
    mf += [qk_one(0, kb, qb, (i if kb % 2 == 0 else 3 - i), i == 0, czero=True) for qb in range(4) for kb in range(4) for i in range(4)]
    first = {}; last = {}
    for g, (st, dt, qb) in enumerate(seq):
        for t in (f"x{st}_{qb}", f"w{st}_{dt}"):
            first.setdefault(t, g); last[t] = g
    xt = lambda k: ",".join(f"x{k}_{q}" for q in range(4))
    wt = lambda k: ",".join(f"w{k}_{d}" for d in range(8))
    nvm = {}; pre = {}; vm = {}
    def put_vm(g, grp):
        while g in vm or g in B: g += 1
        vm[g] = grp; return g
    npre = int(CFG.get("npre", 16)); nd1 = int(CFG.get("nd1", 6))
    r0 = qp_reads(0); d1 = qp_dma(1)
    o += r0[:npre] + flat(d1[:nd1])
    pos = -2
    for grp in d1[nd1:]: pos += 3; put_vm(int(pos), grp)
    XW = int(CFG.get("xw", 18))
    ekp = [x for x in CFG.get("ekp", "").split(",") if x]
    ek = dict(x.split(":") for x in CFG.get("ek", "5:K0").split(",") if x)
    for k in range(2, 8):
        for i, grp in enumerate(qp_dma(k)):
            e = 0 if k == 2 else (B[k-3] + 1 if i < 4 else B[k-3] + XW)
            if k == 7 and i >= 4: e = max(e, 0)
            pos = max(pos + step, e)
            if i == 4: grp = [f"@wait - lds={xt(k-2)}"] + grp
            put_vm(int(pos), grp)
        for n in ekp:
            j = k - int(CFG.get("ekp0", 3))
            if 0 <= j < 4:
                G_ = groups_of(wo_piece_dma()) if n == "wo" else kv(n)
                head = G_[0][:-1] if n != "wo" else G_[0][:1]
                grp = head + (G_[j] if (j or n == "wo") else G_[0][-1:]) if not (n == "wo" and j == 0) else G_[0]
                pos += 4; put_vm(int(pos), grp)
        if str(k) in ek:
            for grp in (groups_of(wo_piece_dma()) if ek[str(k)] == "wo" else kv(ek[str(k)])):
                pos += 3; put_vm(int(pos), grp)
    kstep = float(CFG.get("kstep", 9))
    BK, BQ = 384 + 94, Q0 + 56
    sched = [("K0", 0), ("wo", 0), ("K1", 0), ("V0", B[5] + 1), ("K2", BK + 1), ("V1", BK + 1)]
    for n, e in sched:
        if n in ek.values() or n in prek or n in ekp: continue
        for grp in (groups_of(wo_piece_dma()) if n == "wo" else kv(n)):
            pos = max(pos + kstep, e)
            put_vm(int(pos), grp)
    assert pos < Q0 + 64, pos
    if CFG["verbose"]: print("vm gaps:", sorted(vm))
    items = [(0, x) for x in r0[npre:]]
    for st in range(1, 8): items += [(st, x) for x in qp_reads(st)]
    R = []
    for st, x in items:
        t = x.split("#")[1]
        e = 0 if st == 0 else B[st-1] + 1
        if st >= 2: e = max(e, last[t[0] + str(st - 2) + t[2:]])
        d = first[t] - LAT
        if st < 7: d = min(d, B[st] - 8)
        if t[0] == "x" and 1 <= st <= 5: d = min(d, B[st-1] + XW - 7)
        R.append([e, max(d, e), x])
    R.sort(key=lambda r: (r[1], r[0]))
    rstep = float(CFG.get("rstep", 1.3)); nxt = 0
    for g in range(Q0):
        if g in vm or g in B: continue
        k = 0
        while k < 2:
            c = [r for r in R if r[0] <= g]
            if not c: break
            urgent = any(r[1] - g < i * 1.3 + 1 for i, r in enumerate(c))
            if not urgent and (k == 1 or g < nxt): break
            nvm.setdefault(g, []).append(c[0][2]); R.remove(c[0]); k += 1; nxt = g + rstep
    assert not R, R[:3]
    for t, g in first.items():
        (nvm.setdefault(g - 1, []) if g else o).insert(0 if g else len(o), f"@wait - lds={t}")
    for s in range(7):
        pre.setdefault(B[s], []).append(f"@wait st{s+1} lds={xt(s)},{wt(s)}")
        nvm.setdefault(B[s], []).append("s_barrier")
        if CFG["qst"]: pre[64 * s] = qs() + pre.get(64 * s, [])
    nvm = merge(nvm, spread(pairs(wo_reads()), [g for g in range(Q0 + 1, Q0 + 12) if g not in vm]))
    pre.setdefault(BK, []).append("@wait K0,wo"); nvm.setdefault(BK, []).append("s_barrier")
    nvm = merge(nvm, spread(pairs([rd_k(0, n) for n in range(16)]), [g for g in range(384 + 96, 384 + 120) if g not in vm]))
    pre.setdefault(Q0, []).append("@wait - lgkm=0"); pre[Q0] = stamp() + pre[Q0]
    pre.setdefault(BQ, []).append("@wait K1,V0 lds=wo"); nvm.setdefault(BQ, []).append("s_barrier")
    nvm = merge(nvm, {Q0 + 57: [f"s_add_u32 {sr(sTILE)}, {sr(sROT)}, {(DIST-1)*16384}"], Q0 + 58: [f"s_and_b32 {sr(sTILE)}, {sr(sTILE)}, 0x3ffff"],
                      Q0 + 59: [f"s_add_u32 {sr(sTK)}, {sr(sROT)}, {DIST*16384}"], Q0 + 60: [f"s_and_b32 {sr(sTK)}, {sr(sTK)}, 0x3ffff"],
                      Q0 + 61: [f"s_mov_b32 {sr(sCNT)}, 0"]})
    for g in sorted(vm):
        grp = vm[g]; sca = grp[:-1]
        prevv = max([x for x in vm if x < g], default=-1)
        gg = g
        for x in reversed(sca):
            nvm.setdefault(gg, []).insert(0, x)
            if gg - 1 > prevv and gg > 0: gg -= 1
        nvm.setdefault(g, []).append(grp[-1])
    va = [(f"v_accvgpr_write_b32 {ar(r)}, 0", 0, "z") for r in list(range(2, 128)) + [0, 1]]
    done = {0: 384 + 32, 1: 384 + 48, 2: 384 + 96, 3: 384 + 112}
    for qb in range(4):
        va += [(t, done[qb] + 4 * s + 3 + 3, f"q{qb}") for t, s in qconv_stream(qb)]
    va += [(f"v_mov_b32 {vr(vL+j)}, 0", Q0, "z") for j in range(16)]
    def initq(qb):
        n = vNEG + 4 * qb
        l = qmax(0, qb, n)
        for sw in ("v_permlane32_swap_b32", "v_permlane16_swap_b32"):
            l += [f"v_mov_b32 {vr(n+1)}, {vr(n)}", "s_nop 1", f"{sw} {vr(n)}, {vr(n+1)}", f"v_max_f32 {vr(n)}, {vr(n)}, {vr(n+1)}"]
        l += [f"v_sub_f32 {vr(n+j)}, 0, {vr(n)}" for j in (3, 2, 1, 0)]
        for ks in range(2):
            r = Ureg(0, ks, qb)
            l += [f"v_add_f32 {vr(r+j)}, {vr(r+j)}, {vr(n + j % 2)}" for j in range(8)]
        return l
    for qb in range(4): va += [(t, Q0 + 16 * qb + 15 + 3, "i") for t in initq(qb)]
    part, left = weave(mf, nvm, va, pre=pre, need={Q0 + 16 * q: f"q{q}" for q in range(4)})
    for k in range(1, 6):
        assert max(i for i, x in enumerate(part) if f"#x{k}_" in x) < part.index(f"@wait - lds={xt(k)}"), k
    for k in range(0, 6):
        assert max(i for i, x in enumerate(part) if f"#w{k}_" in x) < part.index(f"@wait st{k+1} lds={xt(k)},{wt(k)}"), k
    o += part
    o += qs()
    o += [rd_k(1, n) for n in EARLY_K]
    o.append(f"buffer_store_dwordx2 {vr(vT,2)}, {vr(vLIN)}, {sr(sFL,4)}, 0 offen sc1 ; #wst")
    if CFG["verbose"]: print("QK0 leftover VALU:", len(left))
    ini = []
    lf_ = [t for t, _, _ in left]
    i = 0
    while i < len(lf_):
        m1 = re.match(r"v_add_f32 v(\d+), v\d+, v(\d+)", lf_[i])
        if m1 and int(m1.group(1)) % 2 == 0 and i + 1 < len(lf_) and lf_[i+1].startswith(f"v_add_f32 v{int(m1.group(1))+1},"):
            r = int(m1.group(1)); ini.append(f"v_pk_add_f32 {vr(r,2)}, {vr(r,2)}, {vr(int(m1.group(2)),2)}"); i += 2
        else: ini.append(lf_[i]); i += 1
    ex_ = [exp_i(0, it[1]) for it in E_FIRST if it[0] == "exp"]; cv_ = [cvt_i(0, it[1]) for it in E_FIRST if it[0] == "cvt"]
    ini += ex_ + cv_
    G = wo_stores() + (kv("K3", "V2") if DIST == 4 else [])
    for i, g in enumerate(G):
        k = (i + 1) * len(ini) // (len(G) + 1)
        ini = ini[:k] + g + ini[k:]
    o += ini
    if CFG.get("nomax"): o.append("s_mov_b64 vcc, 0")
    o.append("@wait - lds=k0,k1,k2,k3")
    o += stamp()
    o, fifo, lf = resolve(o, [])
    return o, fifo, lf

def phase_c_srds():
    o = []; A = o.append
    cmap = CFG.get("cmap", "p")
    if cmap == "p":
        A(f"s_and_b32 {sr(sT)}, {sr(sNT)}, 1"); A(f"s_lshr_b32 {sr(sNT)}, {sr(sNT)}, 1"); A(f"s_and_b32 {sr(sT+1)}, {sr(sCB)}, 1")
        A(f"s_and_b32 {sr(sCB)}, {sr(sCB)}, 6"); A(f"s_add_u32 {sr(sCB)}, {sr(sCB)}, {sr(sT)}")
        A(f"s_lshl_b32 {sr(sT+1)}, {sr(sT+1)}, 2"); A(f"s_add_u32 {sr(sNT)}, {sr(sNT)}, {sr(sT+1)}")
    if cmap == "q":
        A(f"s_and_b32 {sr(sT)}, {sr(sNT)}, 3"); A(f"s_lshr_b32 {sr(sNT)}, {sr(sNT)}, 2"); A(f"s_and_b32 {sr(sT+1)}, {sr(sCB)}, 3")
        A(f"s_and_b32 {sr(sCB)}, {sr(sCB)}, 4"); A(f"s_add_u32 {sr(sCB)}, {sr(sCB)}, {sr(sT)}")
        A(f"s_lshl_b32 {sr(sT+1)}, {sr(sT+1)}, 1"); A(f"s_add_u32 {sr(sNT)}, {sr(sNT)}, {sr(sT+1)}")
    if CFG.get("rc", "0x") == "n": A(f"s_lshl_b32 {sr(sRC)}, {sr(sNT)}, 14")
    else: A(f"s_mov_b32 {sr(sRC)}, 0")
    A(f"s_lshl_b32 {sr(sT)}, {sr(sNT)}, 19"); A(f"s_add_u32 {sr(sT)}, {sr(sT)}, {WOF_OFF}")
    o += srd_at(sWFL, 14, sr(sT), 0x80000)
    A(f"s_lshl_b32 {sr(sT)}, {sr(sCB)}, 2"); A(f"s_add_u32 {sr(sT)}, {sr(sT)}, {sr(sMT)}"); A(f"s_lshl_b32 {sr(sT+1)}, {sr(sT)}, 19")
    o += srd_at(sOL, 14, sr(sT+1), 0x80000)
    A(f"s_lshl_b32 {sr(sT)}, {sr(sT)}, 16"); A(f"s_lshl_b32 {sr(sT+1)}, {sr(sNT)}, 7"); A(f"s_add_u32 {sr(sT)}, {sr(sT)}, {sr(sT+1)}")
    o += srd_at(sOUT, 10, sr(sT), 63*1024 + 128)
    A(f"s_lshl_b32 {sr(sT)}, {sr(sCB)}, 12"); A(f"s_add_u32 {sr(sT)}, {sr(sT)}, {FLAG_OFF}")
    o += srd_at(sFLR, 14, sr(sT), 4096)
    return o

def tail_and_epilogue(u):
    p = u % 2
    o = []
    reads = [rd_v(slotV(15), n, t) for n in range(16) for t in range(2)]
    er = [(exp_i(p, it[1]), UNITS[it[1] // 8][1]) if it[0] == "exp" else (cvt_i(p, it[1]), UNITS[it[1] // 4][1]) for it in E_REST]
    va = []
    for i, (t, q) in enumerate(er):
        if t.startswith("v_cvt") and i and er[i-1][0].startswith("v_exp"): va.append(("s_nop 0", 0, f"e{q}"))
        va.append((t, 0, f"e{q}"))
    mf = []
    for qb in range(4):
        mf += [sum_one(p, qb, 0), sum_one(p, qb, 1)]
        mf += [pv_one(p, dt, qb, (i if dt % 2 == 0 else 1 - i)) for dt in range(8) for i in range(2)]
    vOST = vCW
    if CFG.get("local"): va.append((f"v_cmp_ne_u32 {sr(sGLB,2)}, {sr(sXCC)}, {vr(vCW)}", 0, "x"))
    va.append((f"v_and_b32 {vr(vOST)}, 0x3ff, {vr(vLIN)}", 0, "x"))
    tmp = 2
    NMF = len(mf)
    fill = {0: [], 1: [], 2: [], 3: []}
    tail_names = CFG.get("tailw", "K15,V14,R3").split(",")
    post_names = [x for x in ("K15", "V14", "R3", "R4a", "R6a", "R6b", "R5", "R4b", "V15") if x not in tail_names]
    for qb in range(4):
        e0 = 18 * qb
        lsum = [f"v_mov_b32 {vr(vT+qb)}, {vr(vL+4*qb)}"] + allreduce("v_add_f32", vT + qb, vMX) + [f"v_rcp_f32 {vr(vT+qb)}, {vr(vT+qb)}"]
        va += [(t, max(12, e0 + 1 + 3), "o") for t in lsum]
        F = fill[qb]
        for s in range(4):
            e = e0 + 2 + 4 * s + 3 + 3
            b_ = tmp + 8 * (s % 2)
            va += [(f"v_accvgpr_read_b32 {vr(b_+j)}, {ar(Oreg(qb,2*s)+j)}", e, "o") for j in range(8)]
            va += [(f"@mul {b_+j} {vT+qb}", e, "o") for j in range(8)]
            d = Ureg(p, s // 2, qb) + 4 * (1 - s % 2)
            ee = e0 + 17 if s % 2 == 1 else e
            va += [(f"v_cvt_pk_bf16_f32 {vr(d+j)}, {vr(b_+2*j)}, {vr(b_+2*j+1)}", max(e, ee), "o") for j in range(4)]
            ld = flat(F[s * len(F) // 4:(s + 1) * len(F) // 4])
            va += [(t, NMF - 1 if qb == 3 else e, "o") for t in ld]
            va += [(f"s_mov_b32 {sr(sT)}, {s*4096}", e, "o"),
                   (f"buffer_store_dwordx4 {vr(d,4)}, {vr(vOST)}, {sr(sO,4)}, {sr(sT)} offen offset:{qb*1024} {CFG.get('ost', 'sc1').replace('+', ' ').replace('plain', '')} ; #ost", e, "o")]
    va = [((f"v_mul_f32 {vr(int(t.split()[1]))}, {vr(int(t.split()[1]))}, {vr(int(t.split()[2]))}" if t.startswith("@mul") else t), e, k) for t, e, k in va]
    o += reads[:12]
    nvm = spread(pairs(reads[12:]), list(range(0, 10)))
    pre = {2 + 2 * dt: [f"@wait - lds=v{2*dt},v{2*dt+1}"] for dt in range(8)}
    early = [[x.replace(sr(sSP), sr(sTK)) for x in g] for g in sum([wo_loads(x) for x in tail_names], [])]
    nvm = merge(nvm, spread(early, list(range(10, int(CFG.get("tailhi", 58)), 2))))
    part, left = weave(mf, nvm, va, pre=pre, need={18 * q: f"e{q}" for q in range(4)})
    o += part
    o += stamp()
    o.append("s_nop 7")
    lf_ = [t for t, _, _ in left]
    i = 0
    while i < len(lf_):
        m1 = re.match(r"v_mul_f32 v(\d+), v\d+, v(\d+)", lf_[i]); m2 = re.match(r"v_mul_f32 v(\d+), v\d+, v(\d+)", lf_[i+1]) if i + 1 < len(lf_) else None
        if m1 and m2 and int(m1.group(1)) % 2 == 0 and int(m2.group(1)) == int(m1.group(1)) + 1:
            r = int(m1.group(1)); f_ = int(m1.group(2))
            sel = "op_sel_hi:[1,0]" if f_ % 2 == 0 else "op_sel:[0,1] op_sel_hi:[1,1]"
            o.append(f"v_pk_mul_f32 {vr(r,2)}, {vr(r,2)}, {vr(f_ - f_ % 2,2)} {sel}"); i += 2
        else:
            o.append(lf_[i]); i += 1
    A = o.append
    A(f"v_mov_b32 {vr(vMX)}, 1")
    A(f"v_and_b32 {vr(vT)}, 7, v0"); A(f"v_lshlrev_b32 {vr(vT)}, 7, {vr(vT)}")
    A(f"s_lshl_b32 {sr(sT)}, {sr(sWAVE)}, 10"); A(f"v_add_u32 {vr(vT)}, {sr(sT)}, {vr(vT)}")
    A(f"v_add_u32 {vr(vKA)}, {sr(sW4K)}, {vr(vOST)}")
    A(f"v_add_u32 {vr(vKA+1)}, 0x10000, {vr(vKA)}")
    A(f"v_add_u32 {vr(vKA+2)}, 0x20000, {vr(vKA)}")
    A(f"s_mov_b32 {sr(sCNT)}, 0")
    if CFG.get("forceglobal"): A(f"s_mov_b64 {sr(sGLB,2)}, -1")
    if CFG.get("local"): A(f"s_cmp_lg_u64 {sr(sGLB,2)}, 0")
    A("@wait ost")
    A("s_barrier")
    if CFG.get("local"): A("s_cbranch_scc1 L_pubg")
    A(f"buffer_store_dword {vr(vMX)}, {vr(vLIN)}, {sr(sFL,4)}, 0 offen {CFG.get('flagst', 'sc1')} ; #flag")
    A("L_pubg_back:")
    o += stamp()
    post = sum([wo_loads(x) for x in post_names], [])
    k1 = int(CFG.get("pollat", 16))
    o += flat(post[:k1])
    A(f"buffer_load_dword {vr(vT+1)}, {vr(vT)}, {sr(sFLR,4)}, 0 offen sc1 ; #poll1")
    o += flat(post[k1:])
    A("@wait poll1")
    A(f"v_cmp_ne_u32 vcc, 1, {vr(vT+1)}")
    A("s_cbranch_vccz L_go")
    A("L_poll:")
    A(f"buffer_load_dword {vr(vT+1)}, {vr(vT)}, {sr(sFLR,4)}, 0 offen {CFG.get('pollld', 'sc1').replace('+', ' ')} ; #poll")
    A("s_waitcnt vmcnt(0)")
    A(f"v_cmp_ne_u32 vcc, 1, {vr(vT+1)}")
    A("s_cbranch_vccz L_go")
    A(f"s_add_u32 {sr(sCNT)}, {sr(sCNT)}, 1")
    A(f"s_cmp_lt_u32 {sr(sCNT)}, {CFG['spin']}")
    A("s_cbranch_scc1 L_poll")
    A("L_go:")
    if CFG.get("local"): A(f"s_cmp_lg_u64 {sr(sGLB,2)}, 0"); A("s_cbranch_scc1 L_acq")
    A("L_acq_back:")
    o += stamp()
    return o

def phase_c():
    o = []; A = o.append
    ns = int(CFG.get("nstream", 0))
    pool = [vS + 64 + 16 * i for i in range(4)] + [256 + aF + 16 * (4 - ns + i) for i in range(ns)]
    oreg = {}; wtmp = {}
    nxt = 0
    MAXFLY = int(CFG.get("maxfly", 8))
    INIT = int(CFG.get("initfly", 4))
    def issue_o(c, lim):
        nonlocal nxt
        G = []
        reserve = sum(1 for k in range(c + 3, min(32, c + 5)) if WCLASS[k][0] == "l")
        while nxt < 32 and len(pool) > reserve + (WCLASS[nxt][0] == "s") and nxt - c <= lim:
            r = pool.pop(0); oreg[nxt] = r
            for qb in range(4):
                g = step_off(nxt) if qb == 0 else []
                g.append(f"buffer_load_dwordx4 {rr(r + 4*qb, 4)}, {vr(vLIN)}, {sr(sOL,4)}, {sr(sSP)} offen offset:{qb*1024} {CFG.get('old', 'sc1').replace('+', ' ').replace('plain', '')} ; #o{nxt}")
                G.append(g)
            if WCLASS[nxt][0] == "s":
                r = pool.pop(0); wtmp[nxt] = r
                for n in range(4):
                    G.append([f"buffer_load_dwordx4 {rr(r + 4*n, 4)}, {vr(vLIN)}, {sr(sWFL,4)}, {sr(sSP)} offen offset:{n*1024} sc1 ; #o{nxt}"])
            nxt += 1
        return G
    def lds_reads(c):
        addr = WCLASS[c][1]
        r = pool.pop(0); wtmp[c] = r
        return [f"ds_read_b128 {rr(r + 4*n, 4)}, {vr(vKA + addr // 65536)} offset:{addr % 65536 + n*1024} ; #w{c}" for n in range(4)]
    o += flat(issue_o(-1, INIT))
    carry = issue_o(-1, MAXFLY)
    for c in range(0, 32, 2):
        rd = []
        for k in (c + 2, c + 3):
            if k < 32 and WCLASS[k][0] == "l": rd += lds_reads(k)
        A(f"@wait o{c},o{c+1} lds=w{c},w{c+1}")
        if c == 0: o += stamp()
        w = [WCLASS[k][1] if WCLASS[k][0] == "r" else wtmp[k] for k in (c, c + 1)]
        mf = []
        for n in range(4):
            for qb in range(4):
                d = ar(64 + 4 * (n * 4 + qb), 4)
                for i in range(2):
                    k = i if qb % 2 == 0 else 1 - i
                    mf.append(f"{MF} {d}, {rr(w[k] + 4*n, 4)}, {rr(oreg[c+k] + 4*qb, 4)}, {d if (c or i) else 0}")
        hi = int(CFG.get("chi", 32))
        nvm = merge(spread(pairs(rd), [3, 9, 15, 21]) if rd else {}, spread(carry, list(range(0, hi, 2))) if carry else {})
        va = []
        if c == 28:
            ad = ["v_and_b32 v7, 63, v0", "v_and_b32 v8, 15, v7", "v_lshrrev_b32 v9, 4, v7", "v_xor_b32 v10, v8, v9", "v_lshlrev_b32 v10, 4, v10",
                  "v_lshl_add_u32 v8, v8, 8, v10", f"v_add_u32 v15, {sr(sW4K)}, v8"] + [f"v_xor_b32 {vr(15+n)}, {n*64}, v15" for n in range(1, 4)]
            ad += ["v_lshrrev_b32 v8, 3, v0", "v_and_b32 v9, 7, v0", "v_lshlrev_b32 v10, 1, v9", "v_and_b32 v11, 15, v8", "v_xor_b32 v10, v10, v11",
                   "v_lshlrev_b32 v10, 4, v10", "v_lshl_add_u32 v10, v11, 8, v10", "v_lshrrev_b32 v11, 4, v8", "v_lshl_add_u32 v10, v11, 14, v10",
                   "v_xor_b32 v11, 16, v10", "v_lshlrev_b32 v9, 4, v9", "v_lshl_add_u32 v14, v8, 10, v9"]
            va = [(x, 0, "a") for x in ad]
        wr = [f"ds_write_b128 {vr(15 + n)}, {ar(64 + 4*(n*4+qb), 4)} offset:{qb*16384}" for n in range(4) for qb in range(4)]
        if c == 30:
            for j in range(14): nvm.setdefault(2 * j + 4, []).append(wr[j])
        part, lft = weave(mf, nvm, va)
        assert not lft
        o += part
        pool.extend([oreg[c], oreg[c+1]] + w)
        carry = issue_o(c + 1, MAXFLY)
    assert not carry
    o += stamp()
    o += ["s_nop 3", wr[14], "s_nop 3", wr[15]]
    A("s_waitcnt lgkmcnt(0)")
    A("s_barrier")
    for z in range(2):
        for w in range(4):
            for i in range(2):
                A(f"ds_read_b128 {vr(64 + z*32 + w*8 + i*4, 4)}, {vr(10 + i)} offset:{w*4096 + z*32768}")
    A(f"s_mov_b32 {sr(sT)}, {32*1024}")
    for z in range(2):
        A(f"s_waitcnt lgkmcnt({8 if z == 0 else 0})")
        b = 64 + z * 32
        for j in range(8):
            A(f"v_add_f32 {vr(b+j)}, {vr(b+j)}, {vr(b+8+j)}")
            A(f"v_add_f32 {vr(b+16+j)}, {vr(b+16+j)}, {vr(b+24+j)}")
        for j in range(8): A(f"v_add_f32 {vr(b+j)}, {vr(b+j)}, {vr(b+16+j)}")
        for j in range(4): A(f"v_cvt_pk_bf16_f32 {vr(b+8+j)}, {vr(b+2*j)}, {vr(b+2*j+1)}")
        A(f"buffer_store_dwordx4 {vr(b+8,4)}, v14, {sr(sOUT,4)}, {sr(sT) if z else 0} offen {CFG.get('outst', 'sc0+sc1').replace('+', ' ')}")
    return o

def peeled(lf):
    o = [f"s_mov_b32 {sr(sT)}, 0xe00fe000", f"v_cmp_ne_u32 vcc, {sr(sT)}, {vr(vCW)}", "s_cbranch_vccnz L_cw", "L_cw_back:"]
    early = sum([wo_loads(x, True) for x in ("W0", "W1", "Kx", "Vx", "R1")], [])
    cnt = [int(x) for x in CFG.get("wsched", "0,24").split(",")]
    assert len(cnt) == 14 - PEEL0 and sum(cnt) <= 32 and all(x % 4 == 0 for x in cnt)
    for i in range(PEEL0, 15):
        loads = []
        if i < 14:
            g = early[:cnt[i - PEEL0]] + (wo_loads("K13", True) if i == 13 else []); early = early[cnt[i - PEEL0]:]
            if i == 13 and CFG.get("tlb"):
                g = [[f"buffer_load_dword {vr(vDK+j)}, off, {sr(x,4)}, 0 sc1 ; #tl"] for j, x in enumerate((sO, sOUT))] + g
            if g: loads.append((g, 0, NG))
        else:
            loads = [(early + wo_loads("K14", True) + wo_loads("V13", True), 0, 64), (wo_loads("R2"), 64, NG)]
        o += iteration(i, f"L_r{i}", loads, phase_c_srds() if i == PEEL0 else ())
    o += stamp()
    o += tail_and_epilogue(3)
    o += phase_c()
    fifo = [f"K{PEEL0+2}"] * 4 + [f"V{PEEL0+1}"] * 4
    if CFG.get("skipst"): o = [x for x in o if "#ost" not in x]
    o, _, _ = resolve(o, fifo, lf)
    return o

def stamp_out():
    if not CFG["stamps"]: return []
    o = ["s_waitcnt vmcnt(0)"] + stamp()
    A = o.append
    A(f"s_lshl_b32 {sr(sT)}, s2, 10"); A(f"s_add_u32 {sr(sT)}, {sr(sT)}, {STAMP_OFF}")
    o += srd_at(4, 14, sr(sT), 1024)
    A("v_lshlrev_b32 v1, 2, v0")
    A(f"buffer_store_dword v{STV}, v1, s[4:7], 0 offen")
    if CFG.get("dbgout"):
        o += srd_at(4, 12, "0", 64)
        A("v_and_b32 v2, 63, v0")
        A("v_lshlrev_b32 v1, 1, v2"); A("v_add_u32 v1, 6, v1")
        A("v_and_b32 v3, 1, v2"); A("v_cmp_eq_u32 vcc, 0, v3"); A("v_mov_b32 v3, 0x1000"); A("s_nop 1")
        A("v_cndmask_b32 v1, v1, v3, vcc")
        A(f"v_cmp_lt_u32 vcc, {2*nstamp[0]}, v2"); A("s_nop 1"); A("v_cndmask_b32 v1, v1, v3, vcc")
        A(f"buffer_atomic_umax v{STV}, v1, s[4:7], 0 offen sc1")
        A(f"v_not_b32 v4, v{STV}")
        A("v_cmp_eq_u32 vcc, 1, v2"); A("s_nop 1"); A("v_cndmask_b32 v1, v3, 4, vcc")
        A(f"buffer_atomic_umax v4, v1, s[4:7], 0 offen sc1")
    return o

def kernel():
    pro, fifo, lf0 = prologue()
    _, _, lf = resolve(iteration(0, "x") + iteration(1, "x"), [])
    its = []
    for u in range(4):
        it, _, lf2 = resolve(iteration(u, f"L_r{u}"), [], lf)
        assert lf2 == lf
        its.append(it)
    assert len(lf0) >= len(lf) and lf0[len(lf0)-len(lf):] == lf or CFG["stamps"] or CFG.get("probe"), (lf0, lf)
    pe = peeled(lf)
    body = list(pro)
    body.append("L_loop:")
    for u in range(4):
        it = list(its[u])
        if u == 3:
            k = [i for i, x in enumerate(it) if x.startswith(MF)]
            it.insert(k[-3] + 1, f"s_cmp_lt_u32 {sr(sCNT)}, {NPASS}")
            it.insert(k[-4] + 1, f"s_add_u32 {sr(sCNT)}, {sr(sCNT)}, 1")
            it.append("s_cbranch_scc1 L_loop")
            its[3] = it
        body += it
    body += pe
    body += stamp_out()
    if CFG.get("fixdur"):
        body += ["L_fix:", "s_memrealtime s[98:99]", "s_waitcnt lgkmcnt(0)", "s_sub_u32 s98, s98, s42", f"s_cmp_lt_u32 s98, {int(CFG['fixdur'])*100}", "s_cbranch_scc1 L_fix"]
    body.append("L_end:")
    body.append("s_endpgm")
    for u in list(range(4)) + list(range(PEEL0, 15)):
        body += [f"L_r{u}a:", f"s_call_b64 {sr(sRET,2)}, L_ra{1 - u % 2}", f"s_branch L_r{u}a_back"]
        body += [f"L_r{u}b:", f"s_call_b64 {sr(sRET,2)}, L_rb", f"s_branch L_r{u}b_back"]
    body += ["L_cw:", f"s_mov_b32 {sr(sCNT)}, 0", "L_cw_loop:",
             f"v_and_b32 {vr(vCW)}, 3, v0", f"v_lshlrev_b32 {vr(vCW)}, 6, {vr(vCW)}",
             f"buffer_load_dword {vr(vCW)}, {vr(vCW)}, {sr(sDB,4)}, 0 offen sc1", "s_waitcnt vmcnt(0)",
             f"v_cmp_ne_u32 vcc, {sr(sT)}, {vr(vCW)}", "s_cbranch_vccz L_cw_back",
             f"s_add_u32 {sr(sCNT)}, {sr(sCNT)}, 1", f"s_cmp_lt_u32 {sr(sCNT)}, {CFG['spin']}", "s_cbranch_scc1 L_cw_loop",
             "s_branch L_cw_back"]
    if CFG.get("local"): body += ["L_pubg:", "buffer_wbl2 sc1", "s_waitcnt vmcnt(0)",
             f"buffer_store_dword {vr(vMX)}, {vr(vLIN)}, {sr(sFL,4)}, 0 offen sc1", "s_branch L_pubg_back"]
    if CFG.get("local"): body += ["L_acq:", "buffer_inv sc1", "s_waitcnt vmcnt(0)", "s_branch L_acq_back"]
    for p in range(2): body += rare_a(p, f"L_ra{p}")
    body += rare_b("L_rb")
    loop = its[0] + its[1] + its[2] + its[3]
    check(pro + loop + loop + pe, "main")
    def with_rare(seq):
        o = []
        for x in seq:
            m = re.match(r"L_r(\d+)([ab])_back:", x)
            if m: o += (rare_a(1 - int(m.group(1)) % 2, "x") if m.group(2) == "a" else rare_b("x"))[1:]
            o.append(x)
        return o
    check(pro + with_rare(loop + pe), "rare")
    lastscc = None
    for x in body:
        op = x.split()[0] if x.split() else ""
        if op == "s_addc_u32": assert lastscc == "s_add_u32" and prev.startswith("s_add_u32"), (prev, x)
        if op in ("s_cselect_b32", "s_cbranch_scc0", "s_cbranch_scc1"): assert lastscc.startswith("s_cmp"), (lastscc, x)
        if op.startswith(("s_add", "s_sub", "s_and", "s_or", "s_xor", "s_lshl", "s_lshr", "s_cmp", "s_bfe", "s_min", "s_max", "s_not")): lastscc = op
        prev = x
    if CFG["verbose"]:
        for g in range(NG): print(g, PLAN[g])
    return "\n".join(body)

if __name__ == "__main__":
    k = kernel()
    txt = file_text([dict(label=NAME + "_kernel", body=k, grid=256, block=256, lds=163840, vgpr=512, accum=256)], single=True)
    open(sys.argv[1], "w").write(txt)
```

```python
import sys, math, struct, re
from asmlib import *
from check import check

CFG = dict(qst=False, stamps=False, codepf=True, warm=True, spin=200000, verbose=False)
for a in sys.argv[2:]:
    k, v = a.split("=")
    CFG[k] = {"0": False, "1": True}.get(v, v)

MF = "v_mfma_f32_16x16x32_bf16"
def vr(b, n=1): return f"v{b}" if n == 1 else f"v[{b}:{b+n-1}]"
def ar(b, n=1): return f"a{b}" if n == 1 else f"a[{b}:{b+n-1}]"
def sr(b, n=1): return f"s{b}" if n == 1 else f"s[{b}:{b+n-1}]"
def rr(r, n=1): return vr(r, n) if r < 256 else ar(r - 256, n)
def slots(t):
    if t.startswith(("v_exp", "v_rcp", "buffer_", "global_", "v_permlane")): return 2
    if t.startswith(("s_", "@", "L_")): return 0
    return 1

sX, sWQ, sK, sV, sO = 4, 8, 12, 16, 20
sWFL, sOL = 4, 8
sWAVE, sB, sH, sW4K, sW8K = 24, 25, 26, 27, 28
sCB, sMT, sNT = 29, 30, 31
sXO, sWO = 32, 40
sOUT, sFLR = 32, 36
sTILE, sCNT, sTHR, sSC, sSP = 44, 45, 46, 47, 48
sRET = 50
sTK, sROT, sRQ, sRX, sRW = 49, 92, 93, 94, 95
sW1K, sDT = 96, 97
sPF = 98
sPS, sPL, sPF2 = 80, 84, 76
sHO, sG = 29, 30
sRC = 93
sXCC, sGLB = 3, 94
sT = 52
sARG = 56
sFL, sDB, sDBW = 72, 76, 88
sWS2, sWO2 = 80, 84
vKA, vVA, vDK, vDV = 1, 5, 13, 17
vMX, vLIN, vCW, STV = 19, 21, 22, 23
vT = 24
vONES = 28
vNEG, vL, vQ, vS = 32, 48, 64, 128
vWA, vXA, vDX, vDW, vWOF = 64, 72, 76, 78, 80
vWOA, vWOS = 19, 20
vDUM = [22, 26, 27]
u0, u1, u2, u3, u4, u5, ln = 128, 129, 130, 131, 132, 133, 134
aO, aF = 0, 128
LK, LV, LW = 0, 65536, 131072
LX = [81920, 131072]
LWQ = [32768, 49152, 65536]
LWO = 114688
WOF_OFF, FLAG_OFF, PART_OFF, STAMP_OFF = 0x1000000, 0x1400000, 0x1800000, 0x4000000

def Ureg(p, ks, qb): return vS + 64 * p + 8 * (ks * 4 + qb)
def Sreg(p, kb, qb): return Ureg(p, kb // 2, qb) + 4 * (kb % 2)
def Oreg(qb, dt): return aO + 4 * (qb * 8 + dt)
def Qreg(qb, s): return vQ + 16 * qb + 4 * s
def Freg(n): return aF + 4 * n

nstamp = [0]
def stamp():
    if CFG.get("probe"):
        i = nstamp[0]; nstamp[0] += 1
        return ["s_memrealtime s[42:43]", "s_waitcnt lgkmcnt(0)"] if i == int(CFG["probe"][1:]) else []
    if not CFG["stamps"]: return []
    i = nstamp[0]; nstamp[0] += 1
    assert i < 30
    return ["s_memtime s[40:41]", "s_waitcnt lgkmcnt(0)", f"v_writelane_b32 v{STV}, s40, {2*i}",
            "s_memrealtime s[40:41]", "s_waitcnt lgkmcnt(0)", f"v_writelane_b32 v{STV}, s40, {2*i+1}"]

def srd(s, size):
    return [f"s_and_b32 {sr(s+1)}, {sr(s+1)}, 0xffff", f"s_mov_b32 {sr(s+2)}, {size}", f"s_mov_b32 {sr(s+3)}, 0x20000"]
def srd_at(s, arg, offreg, size):
    return [f"s_add_u32 {sr(s)}, {sr(sARG+arg)}, {offreg}", f"s_addc_u32 {sr(s+1)}, {sr(sARG+arg+1)}, 0"] + srd(s, size)

def tag(lst, t): return [(x + f" ; #{t}") if x.startswith(("buffer_", "global_")) and "#" not in x else x for x in lst]
def resolve(seq, fifo, lfifo=()):
    fifo = list(fifo); lf = list(lfifo); out = []
    def cut(f, n): return f[len(f) - n:] if 0 < n < len(f) else (f if n else [])
    for x in seq:
        if x.startswith("@wait"):
            parts = x.split()
            w = []
            idx = [i for i, t in enumerate(fifo) if t in parts[1].split(",")]
            if idx:
                n = min(63, len(fifo) - 1 - max(idx)); fifo = cut(fifo, n); w.append(f"vmcnt({n})")
            for p in parts[2:]:
                if p.startswith("vm="): n = int(p[3:]); fifo = cut(fifo, n); w.append(f"vmcnt({n})")
                if p.startswith("lgkm="): n = int(p[5:]); lf = cut(lf, n); w.append(f"lgkmcnt({n})")
                if p.startswith("lds="):
                    idx = [i for i, t in enumerate(lf) if t in p[4:].split(",")]
                    if idx:
                        n = min(15, len(lf) - 1 - max(idx)); lf = cut(lf, n); w.append(f"lgkmcnt({n})")
            if w: out.append("s_waitcnt " + " ".join(w))
            continue
        m = re.search(r"#(\S+)", x)
        if x.startswith(("buffer_", "global_")): fifo.append(m.group(1) if m else "?")
        if x.startswith("ds_"): lf.append(m.group(1) if m else "?")
        m = re.match(r"s_waitcnt.*vmcnt\((\d+)\)", x)
        if m: fifo = cut(fifo, int(m.group(1)))
        m = re.match(r"s_waitcnt.*lgkmcnt\((\d+)\)", x)
        if m: lf = cut(lf, int(m.group(1)))
        out.append(x)
    return out, fifo, lf

CONT = CFG.get("cont", False)
NOSWAP = CFG.get("noswap", True)
DIST = int(CFG.get("dist", 3))
def dma_k(p, soff):
    if CONT: return f"buffer_load_dwordx4 {vr(vDK)}, {sr(sK,4)}, {sr(sDT)} offen nt lds"
    return f"buffer_load_dwordx4 {vr(vDK+p)}, {sr(sK,4)}, {soff} offen offset:{1024*p} nt lds"
def dma_v(p, soff):
    if CONT: return f"buffer_load_dwordx4 {vr(vDV)}, {sr(sV,4)}, {sr(sDT)} offen nt lds"
    return f"buffer_load_dwordx4 {vr(vDV + p%2)}, {sr(sV,4)}, {soff} offen offset:{1024*p} nt lds"
def cont_pre(base, p, soff): return [f"s_add_u32 m0, {sr(sW1K)}, {base + p*4096}", f"s_add_u32 {sr(sDT)}, {soff}, {p*4096}"]
def m0_at(addr): return f"s_add_u32 m0, {sr(sW4K)}, {addr}"
def kv_batch(which, tile):
    out = [m0_at((LK + slotK(tile) * 16384 if which == "K" else LV + slotV(tile) * 16384)), f"s_add_u32 {sr(sT)}, {sr(sROT)}, {tile*16384}", f"s_and_b32 {sr(sT)}, {sr(sT)}, 0x3ffff"]
    for p in range(4):
        if CONT: out += cont_pre((LK if which == "K" else LV) + (tile % 4) * 16384, p, sr(sT))
        out.append(dma_k(p, sr(sT)) if which == "K" else dma_v(p, sr(sT)))
    return tag(out, f"{which}{tile}")

NPASS = int(CFG.get("npass", 3))
PEEL0 = 4 * NPASS
def slotK(t): return t % 4
def slotV(t): return t % 4
def rd_k(slot, n):
    kb, s = n // 4, n % 4
    return f"ds_read_b128 {ar(Freg(n),4)}, {vr(vKA+s)} offset:{slot*16384 + kb*4096} ; #k{n}"
def rd_v(slot, n, t):
    dt, ks = n // 2, n % 2
    return f"ds_read_b64_tr_b16 {ar(Freg(n)+2*t,2)}, {vr(vVA+dt)} offset:{slot*16384 + (32*ks+16*t)*256} ; #v{n}"

def qk_one(p, kb, qb, s, first, czero=False):
    d = Sreg(p, kb, qb)
    c = vr(d, 4) if not first else ("0" if czero else vr(vNEG + 4*qb, 4))
    return f"{MF} {vr(d,4)}, {ar(Freg(kb*4+s),4)}, {vr(Qreg(qb,s),4)}, {c}"
def qk_list(p):
    return [qk_one(p, kb, qb, (i if qb % 2 == 0 else 3 - i), i == 0) for kb in range(4) for qb in range(4) for i in range(4)]
def pv_one(p, dt, qb, ks):
    o = Oreg(qb, dt)
    return f"{MF} {ar(o,4)}, {ar(Freg(dt*2+ks),4)}, {vr(Ureg(p,ks,qb),4)}, {ar(o,4)}"
def sum_one(p, qb, ks):
    return f"{MF} {vr(vL+4*qb,4)}, {vr(vONES,4)}, {vr(Ureg(p,ks,qb),4)}, {vr(vL+4*qb,4)}"
def pv_list(p):
    return ([pv_one(p, dt, qb, (i if qb % 2 == 0 else 1 - i)) for dt in range(8) for qb in range(4) for i in range(2)]
            + [sum_one(p, qb, ks) for qb in range(4) for ks in range(2)])

UNITS = [(0, 0), (1, 0), (1, 1), (0, 1), (0, 2), (1, 2), (1, 3), (0, 3)]
def ereg(p, e): ks, qb = UNITS[e // 8]; return Ureg(p, ks, qb) + e % 8
def exp_i(p, e): r = ereg(p, e); return f"v_exp_f32 {vr(r)}, {vr(r)}"
def cvt_i(p, k):
    r = ereg(p, 2 * k); return f"v_cvt_pk_bf16_f32 {vr(r - (2*k) % 8 + k % 4)}, {vr(r)}, {vr(r+1)}"
def max_items(p):
    out = []
    for kb in range(4):
        for qb in range(4):
            r = Sreg(p, kb, qb); m = vr(vMX + qb % 2); done = 16 * kb + 4 * qb + 3
            if kb == 0 and qb < 2:
                out.append((f"v_max3_f32 {m}, {vr(r)}, {vr(r+1)}, {vr(r+2)}", done))
                out.append((f"v_max_f32 {m}, {vr(r+3)}, {m}", done))
            else:
                out.append((f"v_max3_f32 {m}, {vr(r)}, {vr(r+1)}, {m}", done))
                out.append((f"v_max3_f32 {m}, {vr(r+2)}, {vr(r+3)}, {m}", done))
    return out

NG = 136
HOOKA = 69
BARG = 118
LAT = 8
def make_plan():
    plan = {g: [] for g in range(NG)}
    T0 = HOOKA
    dsp = int(CFG.get("dsp", 14))
    dv0 = int(CFG.get("dv0", 72))
    dma_g = [4 + dsp * i for i in range(4)] + [dv0 + dsp * i for i in range(4)]
    dma_t = [g + NG if g < HOOKA else g for g in dma_g]
    NX2 = int(CFG.get('nx2', 40))
    r2 = [t for t in range(T0, NG) if t != BARG and t not in dma_t]
    r1 = [t for t in range(NG, NG + 64) if t not in dma_t]
    xt = [r2[i * len(r2) // NX2] for i in range(NX2)] + [r1[i * len(r1) // (64 - NX2)] for i in range(64 - NX2)]
    assert len(set(xt)) == 64
    for e, t in enumerate(xt): plan[t % NG].append(("exp", e, t >= NG))
    for i, t in enumerate(dma_t): plan[t % NG].append(("dma", i))
    Y = []
    for k in range(32):
        Y.append((xt[2*k+1] + 1, NG + 64 + k // 4 - 2, ("cvt", k)))
    for i, (_, done) in enumerate(max_items(0)):
        Y.append((NG + done + 3, NG + HOOKA - 3, ("max", i)))
    Y.append((NG + 66, NG + HOOKA - 2, ("max", 32))); Y.append((NG + 66, NG + HOOKA - 1, ("max", 33)))
    for n in range(16):
        Y.append((max(BARG + 1, 64 + 8 * (n // 2) + 7), NG + 16 * (n // 4) - LAT, ("k", n)))
    NV1 = int(CFG.get("nv1", 10))
    for n in range(16):
        e, d = 16 * (n // 4) + 15, min(64 + 8 * (n // 2) - LAT, BARG - 10)
        for t in range(2):
            if n < NV1: Y.append((NG + e, NG + min(d, HOOKA - 1), ("v", n, t)))
            else: Y.append((T0, d, ("v", n, t)))
    def kind(y): return y[2][0] + ("1" if y[2][0] == "v" and y[0] >= NG else "")
    ygaps = [t for t in range(T0, T0 + NG) if not plan[t % NG] and t % NG != BARG]
    pend = list(Y)
    for t in ygaps:
        g = t % NG
        picked = []
        for _ in range(2):
            heads = {}
            for y in pend: heads.setdefault(kind(y), y)
            c = [y for y in heads.values() if y[0] <= t]
            if not c: break
            def eff(y):
                same = [z for z in pend if kind(z) == kind(y)]
                return min(z[1] - i / 1.2 for i, z in enumerate(same))
            y = min(c, key=eff)
            assert t <= y[1], ("deadline miss", t, y)
            picked.append(y); pend.remove(y)
        picked.sort(key=lambda y: 0 if y[2][0] in ("k", "v") else 1)
        for y in picked: plan[g].append(y[2] + ((t >= NG,) if y[2][0] == "cvt" else ()))
    assert not pend, pend
    return plan
PLAN = make_plan()

def iteration(i, lab, loads=None, salu=()):
    assert DIST == 3 and not CONT
    p = i % 2
    steady = i < PEEL0
    sc = {g: [] for g in range(NG)}
    for kb in range(4): sc[16 * kb - 1 if kb else NG - 2].append(f"@wait - lds=" + ",".join(f"k{kb*4+s}" for s in range(4)))
    for dt in range(8):
        if 64 + 8 * dt - 1 < BARG - 1: sc[64 + 8 * dt - 1].append(f"@wait - lds=v{2*dt},v{2*dt+1}")
    sc[BARG - 1].append(f"@wait - vm={10 if i == 1 else (9 if i == 2 and CFG.get('repf') else 8)} lgkm=0" if steady else f"@wait K{i+2},V{i+1} lgkm=0")
    sc[BARG].append("s_barrier")
    if CFG.get("itst"):
        sc[BARG - 2].append("s_memrealtime s[40:41]")
        sc[BARG] += ["s_mov_b64 exec, s[42:43]", f"v_mov_b32 v{STV}, s40", "s_mov_b64 exec, -1", "s_lshl_b64 s[42:43], s[42:43], 1"]
    sc[HOOKA] += [f"s_cbranch_vccnz {lab}a", f"{lab}a_back:"]
    sc[NG - 1] = [f"s_cbranch_vccnz {lab}b", f"{lab}b_back:"] + sc[NG - 1]
    extra = {}
    vm = {}
    hask, hasv = i + 3 <= 15, i + 2 <= 15
    for j, g in enumerate(DMA_GAPS):
        if j < 4 and hask: vm[g] = [m0_at(LK + slotK(i + 3) * 16384), dma_k(j, sr(sTK)) + f" ; #K{i+3}"]
        if j >= 4 and hasv: vm[g] = [m0_at(LV + slotV(i + 2) * 16384), dma_v(j - 4, sr(sTILE)) + f" ; #V{i+2}"]
    sc[120].append(f"s_mov_b32 {sr(sTILE)}, {sr(sTK)}")
    sc[121].append(f"s_add_u32 {sr(sTK)}, {sr(sTK)}, 0x4000")
    sc[122].append(f"s_and_b32 {sr(sTK)}, {sr(sTK)}, 0x3ffff")
    if steady:
        if i == 1:
            extra[64] = [f"v_and_b32 {vr(vCW)}, 3, v0", f"v_lshlrev_b32 {vr(vCW)}, 6, {vr(vCW)}"]
            extra[65] = [f"buffer_load_dword {vr(vCW)}, {vr(vCW)}, {sr(sDB,4)}, 0 offen sc1"]
            sc[40].append(f"s_cmp_eq_u32 {sr(sCNT)}, {NPASS - 1}")
            sc[41].append(f"s_cselect_b32 {sr(sDB+2)}, 256, 0")
            extra[68] = [f"buffer_atomic_add {vr(vONES)}, {vr(vLIN)}, {sr(sDBW,4)}, 0 offen sc1"]
            sc[75].append(f"s_mov_b32 {sr(sDBW+2)}, 0")
        if i == 2 and CFG.get("repf"):
            extra[64] = [f"v_and_b32 {vr(vT)}, 31, v0", f"v_lshlrev_b32 {vr(vT)}, 10, {vr(vT)}"]
            extra[65] = [f"v_add_u32 {vr(vT)}, {sr(sPF+2)}, {vr(vT)}", f"v_min_u32 {vr(vT)}, L_end-L_pc, {vr(vT)}"]
            extra[68] = [f"global_load_dword {ar(255)}, {vr(vT)}, {sr(sPF,2)}"]
    else:
        nextk = i + 2 <= 15
        def load(g):
            return sum(2 if it[0] == "exp" else (0 if it[0] == "dma" or (it[0] == "k" and g > BARG and not nextk) else 1) for it in PLAN[g])
        gs = 0
        for x in salu:
            if x.startswith("s_addc"):
                sc[gs - 1].append(x); continue
            while sc[gs] or gs in vm or gs + 1 in vm: gs += 1
            sc[gs].append(x); gs += 1
        for groups, lo, hi in loads:
            cand = [g for g in range(max(lo, gs + 3 if salu else 0), hi) if g not in vm and g not in (BARG, BARG - 1, HOOKA, NG - 1)]
            n = len(groups)
            for k, grp in enumerate(groups):
                win = cand[k * len(cand) // n:(k + 1) * len(cand) // n]
                vm[min(win, key=load)] = grp
    cur_m0 = None; prev = -1
    for g in sorted(vm):
        grp = vm[g]; sca = []
        for x in grp[:-1]:
            if x.startswith("s_add_u32 m0"):
                if x == cur_m0: continue
                cur_m0 = x
            sca.append(x)
        free = [q for q in range(prev + 1, g + 1) if not sc[q] and not (steady and q in (40, 41))]
        if sca and sca[-1].startswith("s_add_u32 m0"): free = [q for q in free if q < g]
        if len(free) >= len(sca):
            for x, q in zip(sca, free[len(free) - len(sca):]): sc[q].append(x)
        else:
            sc[g] += sca + ["s_nop 0"]
        prev = g
    mf = qk_list(1 - p) + pv_list(p)
    MX = [t for t, _ in max_items(1 - p)] + [f"v_max_f32 {vr(vMX)}, {vr(vMX)}, {vr(vMX+1)}", f"v_cmp_lt_f32 vcc, {sr(sTHR)}, {vr(vMX)}"]
    out = []
    for g in range(NG):
        out.append(mf[g])
        out += sc[g]
        ex = extra.get(g, [])
        out += [x for x in ex if not x.startswith("v_")]
        if g in vm: out.append(vm[g][-1])
        for it in PLAN[g]:
            k = it[0]
            if k == "exp": out.append(exp_i(p if it[2] else 1 - p, it[1]))
            elif k == "cvt": out.append(cvt_i(p if it[2] else 1 - p, it[1]))
            elif k == "max":
                if not CFG.get("nomax"): out.append(MX[it[1]])
            elif k == "k":
                t = i + (2 if g > BARG else 1)
                if t <= 15: out.append(rd_k(slotK(t), it[1]))
            elif k == "v": out.append(rd_v(slotV(i), it[1], it[2]))
        out += [x for x in ex if x.startswith("v_")]
        if CFG.get("slowdown") and g % int(CFG["slowdown"]) == 5: out.append("s_nop 7")
    return out
EARLY_K = [it[1] for g in range(BARG + 1, NG) for it in PLAN[g] if it[0] == "k"]
E_FIRST = [it for g in range(HOOKA, NG) for it in PLAN[g] if it[0] in ("exp", "cvt")]
E_REST = [it for g in range(0, HOOKA) for it in PLAN[g] if it[0] in ("exp", "cvt")]
DMA_GAPS = [g for g in range(NG) if any(it[0] == "dma" for it in PLAN[g])]
LIGHT = sorted(range(NG), key=lambda g: (sum(2 if it[0] in ("exp",) else (0 if it[0] == "dma" else 1) for it in PLAN[g])))

def spread(items, gaps):
    d = {}
    for i, it in enumerate(items):
        d.setdefault(gaps[i * len(gaps) // len(items)], []).extend(it)
    return d
def place(groups, lo, hi):
    cand = [g for g in LIGHT if lo <= g < hi and g not in (BARG, BARG - 1, HOOKA, NG - 1)]
    gs = sorted(cand[:len(groups)])
    assert len(gs) == len(groups)
    return {g: list(x) for g, x in zip(gs, groups)}
def merge(*maps):
    d = {}
    for m in maps:
        for k, v in m.items(): d.setdefault(k, []).extend(v)
    return d
def flat(G): return [x for g in G for x in g]
def groups_of(lst):
    G = []; cur = []
    for x in lst:
        cur.append(x)
        if x.startswith("buffer_"): G.append(cur); cur = []
    if cur: G[-1] += cur
    return G

WREG = []
WP = {}
for nm, base, n in (("R1", 256 + 192, 16), ("R2", vQ, 16), ("R4", vNEG, 4), ("R3", vS, 16), ("R5", 256 + aF, 12)):
    WP[nm] = list(range(len(WREG), len(WREG) + n)); WREG += [base + 4 * i for i in range(n)]
assert len(WREG) == 64
def wo_loads(name, sp=None):
    sp = sSP if sp is None else sp
    groups = []
    for f in WP[name]:
        g = [f"s_mov_b32 {sr(sp)}, {f * 1024}"] if f % 4 == 0 else []
        g.append(f"buffer_load_dwordx4 {rr(WREG[f], 4)}, {vr(vLIN)}, {sr(sWFL,4)}, {sr(sp)} offen offset:{(f%4)*1024} sc1 ; #w{f}")
        groups.append(g)
    return groups

def weave(mf, nvmap, va=(), pre=None, need=None):
    out = []; va = list(va)
    for g, m in enumerate(mf):
        if need and g in need:
            last = max([i for i, x in enumerate(va) if x[2] == need[g]], default=-1)
            if last >= 0:
                if va[last][1] > g - 1: out.append("s_nop 7")
                out += [x[0] for x in va[:last + 1]] + ["s_nop 1"]; va = va[last + 1:]
            elif any(x.startswith("v_") and not x.startswith("v_mfma") for x in out[-2:]): out.append("s_nop 1")
        if pre and g in pre: out += pre[g]
        out.append(m)
        nv = nvmap.get(g, [])
        out += nv
        c = sum(slots(x) for x in nv)
        while va and va[0][1] <= g and c + slots(va[0][0]) <= 2:
            c += slots(va[0][0]); out.append(va.pop(0)[0])
    return out, va

def allreduce(op, a, b):
    return [f"v_mov_b32 {vr(b)}, {vr(a)}", "s_nop 1", f"v_permlane32_swap_b32 {vr(a)}, {vr(b)}", "s_nop 1", f"{op} {vr(a)}, {vr(a)}, {vr(b)}",
            f"v_mov_b32 {vr(b)}, {vr(a)}", "s_nop 1", f"v_permlane16_swap_b32 {vr(a)}, {vr(b)}", "s_nop 1", f"{op} {vr(a)}, {vr(a)}, {vr(b)}"]
def qmax(p, qb, d):
    regs = [Sreg(p, kb, qb) + j for kb in range(4) for j in range(4)]
    o = [f"v_max3_f32 {vr(d)}, {vr(regs[0])}, {vr(regs[1])}, {vr(regs[2])}"]
    for i in range(3, 15, 2): o.append(f"v_max3_f32 {vr(d)}, {vr(regs[i])}, {vr(regs[i+1])}, {vr(d)}")
    o.append(f"v_max_f32 {vr(d)}, {vr(regs[15])}, {vr(d)}")
    return o
def rare_a(p, label):
    out = [f"{label}:", "s_nop 7"]
    for qb in range(4):
        d = vT + qb
        out += qmax(p, qb, d) + allreduce("v_max_f32", d, vMX)
        out.append(f"v_max_f32 {vr(d)}, 0, {vr(d)}")
        for j in range(4): out.append(f"v_sub_f32 {vr(vNEG+4*qb+j)}, {vr(vNEG+4*qb+j)}, {vr(d)}")
        for kb in range(4):
            for j in range(4):
                r = Sreg(p, kb, qb) + j
                out.append(f"v_sub_f32 {vr(r)}, {vr(r)}, {vr(d)}")
        out.append(f"v_exp_f32 {vr(d)}, -{vr(d)}")
    out += ["s_nop 3", f"s_setpc_b64 {sr(sRET,2)}"]
    return out
def rare_b(label):
    out = [f"{label}:", "s_nop 15"]
    for qb in range(4):
        f_ = vT + qb
        for j in range(4): out.append(f"v_mul_f32 {vr(vL+4*qb+j)}, {vr(vL+4*qb+j)}, {vr(f_)}")
        for j in range(0, 32, 2):
            a0 = Oreg(qb, 0) + j
            out += [f"v_accvgpr_read_b32 {vr(vMX)}, {ar(a0)}", f"v_accvgpr_read_b32 {vr(vMX+1)}, {ar(a0+1)}",
                    f"v_mul_f32 {vr(vMX)}, {vr(vMX)}, {vr(f_)}", f"v_mul_f32 {vr(vMX+1)}, {vr(vMX+1)}, {vr(f_)}",
                    f"v_accvgpr_write_b32 {ar(a0)}, {vr(vMX)}", f"v_accvgpr_write_b32 {ar(a0+1)}, {vr(vMX+1)}"]
    out += ["s_nop 3", f"s_setpc_b64 {sr(sRET,2)}"]
    return out

def wfrag(st, s, dt): return (128 if st % 2 == 0 else 192) + 4 * (dt * 2 + s)
def xfrag(st, s, qb): return (96 if st % 2 == 0 else 32) + 4 * (qb * 2 + s)
def qacc(qb, dt): return Ureg(dt // 4, (dt // 2) % 2, qb) + 4 * (dt % 2)
def qp_reads(st):
    out = []
    for qb in range(4):
        for s in range(2):
            out.append(f"ds_read_b128 {vr(xfrag(st,s,qb),4)}, {vr(vXA + 2*(st%2) + s)} offset:{qb*2048} ; #x{st}_{qb}")
    for dt in range(8):
        for s in range(2):
            for t in range(2):
                if NOSWAP: out.append(f"ds_read_b64_tr_b16 {ar(wfrag(st,s,dt)+2*t,2)}, {vr(vWA + dt//2)} offset:{(st%3)*16384 + (32*s+4*t)*256 + 8*(dt%2)} ; #w{st}_{dt}")
                else: out.append(f"ds_read_b64_tr_b16 {ar(wfrag(st,s,dt)+2*t,2)}, {vr(vWA + dt)} offset:{(st%3)*16384 + (32*s+4*t)*256} ; #w{st}_{dt}")
    return out
def qp_dma(st):
    G = []
    wf = (" " + CFG["wqld"]) if CFG.get("wqld") else ""
    xf = (" " + CFG["xld"]) if CFG.get("xld") else ""
    for p in range(4):
        g = []
        if p == 0:
            g = [f"s_add_u32 {sr(sRX)}, {sr(sRQ)}, {st}", f"s_and_b32 {sr(sRX)}, {sr(sRX)}, 7", f"s_lshl_b32 {sr(sRW)}, {sr(sRX)}, 19",
                 f"s_lshl_b32 {sr(sRX)}, {sr(sRX)}, 7", m0_at(LWQ[st % 3])]
        g.append(f"s_add_u32 {sr(sDT)}, {sr(sRW)}, {p*(32768-1024)}")
        g.append(f"buffer_load_dwordx4 {vr(vDW + p//2)}, {sr(sWQ,4)}, {sr(sDT)} offen offset:{1024*p}{wf} lds ; #st{st}")
        G.append(g)
    for p in range(8):
        g = [f"s_add_u32 m0, {sr(sW8K)}, {LX[st%2] + (p//4)*4096}"] if p % 4 == 0 else []
        g.append(f"s_add_u32 {sr(sDT)}, {sr(sRX)}, {p*8192 - 1024*(p%4)}")
        g.append(f"buffer_load_dwordx4 {vr(vDX + p%2)}, {sr(sX,4)}, {sr(sDT)} offen offset:{1024*(p%4)}{xf} lds ; #st{st}")
        G.append(g)
    return G
def qp_one(st, dt, qb, s, first):
    d = qacc(qb, dt)
    return f"{MF} {vr(d,4)}, {ar(wfrag(st,s,dt),4)}, {vr(xfrag(st,s,qb),4)}, {'0' if first else vr(d, 4)}"
def qp_mfmas(st):
    return [qp_one(st, dt, qb, (i if qb % 2 == 0 else 1 - i), st == 0 and i == 0) for dt in range(8) for qb in range(4) for i in range(2)]
def qp_q(st, qb):
    return [qp_one(st, dt, qb, (i if dt % 2 == 0 else 1 - i), False) for dt in range(8) for i in range(2)]
def qconv(qb, s):
    d = qacc(qb, 2 * s); q = Qreg(qb, s)
    out = [f"v_mul_f32 {vr(d+j)}, {sr(sSC)}, {vr(d+j)}" for j in range(8)]
    out += [f"v_cvt_pk_bf16_f32 {vr(q+j)}, {vr(d+2*j)}, {vr(d+2*j+1)}" for j in (0, 2, 1, 3)]
    return out, [f"v_permlane32_swap_b32 {vr(q)}, {vr(q+2)}", f"v_permlane32_swap_b32 {vr(q+1)}, {vr(q+3)}"], \
                [f"v_permlane16_swap_b32 {vr(q)}, {vr(q+2)}", f"v_permlane16_swap_b32 {vr(q+1)}, {vr(q+3)}"]
def qconv_stream(qb):
    parts = [qconv(qb, s) for s in range(4)]
    if NOSWAP: return [(x, s) for s in range(4) for x in parts[s][0]]
    out = []
    for s in range(4):
        a = parts[s][0]
        if s == 0: out += [(x, s) for x in a]
        else: out += [(x, s) for x in a[:4]] + [(x, s) for x in parts[s-1][1]] + [(x, s) for x in a[4:8]] + [(x, s) for x in parts[s-1][2]] + [(x, s) for x in a[8:]]
    out += [("s_nop 1", 3)] + [(x, 3) for x in parts[3][1]] + [("s_nop 1", 3)] + [(x, 3) for x in parts[3][2]]
    return out

def setup_a():
    o = []; A = o.append
    A("s_cmp_ge_u32 s2, 256")
    A("s_cbranch_scc1 L_end")
    if CFG.get("fixdur"): A("s_memrealtime s[42:43]")
    A(f"s_load_dwordx16 {sr(sARG,16)}, s[0:1], 0")
    if CFG["codepf"]:
        A(f"s_getpc_b64 {sr(sT,2)}")
        A("L_pc:")
        A(f"s_bfe_u32 {sr(sT+2)}, s2, 0x30003")
        A(f"v_lshrrev_b32 {vr(u0)}, 6, v0"); A(f"v_and_b32 {vr(u1)}, 15, v0"); A(f"v_lshl_add_u32 {vr(u0)}, {vr(u0)}, 4, {vr(u1)}")
        A(f"v_lshlrev_b32 {vr(u0)}, 10, {vr(u0)}"); A(f"s_lshl_b32 {sr(sT+2)}, {sr(sT+2)}, 7"); A(f"v_add_u32 {vr(u0)}, {sr(sT+2)}, {vr(u0)}")
        A(f"v_min_u32 {vr(u0)}, L_end-L_pc, {vr(u0)}")
        A(f"global_load_dword {vr(vDUM[0])}, {vr(u0)}, {sr(sT,2)} ; #pf")
        if CFG.get("repf"):
            A(f"s_mov_b64 {sr(sPF,2)}, {sr(sT,2)}"); A(f"s_add_u32 {sr(sPF+2)}, {sr(sT+2)}, L_cw_back-L_pc")
    A(f"s_and_b32 {sr(sCB)}, s2, 7")
    A(f"s_lshr_b32 {sr(sT+3)}, s2, 3")
    A(f"s_and_b32 {sr(sMT)}, {sr(sT+3)}, 3"); A(f"s_lshr_b32 {sr(sNT)}, {sr(sT+3)}, 2")
    if CFG.get("pmap", "4x8") == "4x8":
        A(f"s_and_b32 {sr(sB)}, {sr(sCB)}, 1"); A(f"s_lshl_b32 {sr(sB)}, {sr(sB)}, 2"); A(f"s_add_u32 {sr(sB)}, {sr(sB)}, {sr(sMT)}")
        A(f"s_lshr_b32 {sr(sH)}, {sr(sCB)}, 1"); A(f"s_lshl_b32 {sr(sH)}, {sr(sH)}, 3"); A(f"s_add_u32 {sr(sH)}, {sr(sH)}, {sr(sNT)}")
    else:
        A(f"s_mov_b32 {sr(sB)}, {sr(sCB)}"); A(f"s_mov_b32 {sr(sH)}, {sr(sT+3)}")
    rq = CFG.get("rq", "x")
    if rq == "n": A(f"s_mov_b32 {sr(sRQ)}, 0")
    elif rq == "x": A(f"s_mov_b32 {sr(sRQ)}, {sr(sCB)}")
    elif rq == "h": A(f"s_mov_b32 {sr(sRQ)}, {sr(sH)}")
    elif rq == "f": A(f"s_lshl_b32 {sr(sRQ)}, {sr(sB)}, 1"); A(f"s_add_u32 {sr(sRQ)}, {sr(sRQ)}, {sr(sH)}")
    elif rq == "g": A(f"s_add_u32 {sr(sRQ)}, {sr(sB)}, {sr(sH)}")
    A(f"v_lshrrev_b32 {vr(u0)}, 6, v0")
    A(f"v_and_b32 {vr(ln)}, 63, v0")
    A(f"v_readfirstlane_b32 {sr(sWAVE)}, {vr(u0)}")
    A(f"v_lshrrev_b32 {vr(u1)}, 4, {vr(ln)}")
    A(f"v_and_b32 {vr(u2)}, 15, {vr(ln)}")
    A(f"v_lshl_add_u32 {vr(u4)}, {vr(u0)}, 4, {vr(u1)}")
    A(f"v_lshlrev_b32 {vr(u3)}, 1, {vr(u1)}")
    A(f"v_xor_b32 {vr(u3)}, {vr(u3)}, {vr(u2)}")
    A(f"v_lshlrev_b32 {vr(u5)}, 4, {vr(u3)}")
    A(f"v_lshl_add_u32 {vr(vDW)}, {vr(u4)}, 13, {vr(u5)}")
    A(f"v_xor_b32 {vr(vDW+1)}, 0x80, {vr(vDW)}")
    if NOSWAP:
        A(f"v_lshlrev_b32 {vr(u3)}, 2, {vr(u1)}"); A(f"v_xor_b32 {vr(u3)}, {vr(u3)}, {vr(u2)}"); A(f"v_lshlrev_b32 {vr(u3)}, 4, {vr(u3)}")
        A(f"v_lshl_add_u32 {vr(vDW)}, {vr(u4)}, 13, {vr(u3)}"); A(f"v_mov_b32 {vr(vDW+1)}, {vr(vDW)}")
    A(f"v_lshrrev_b32 {vr(u3)}, 3, {vr(ln)}")
    A(f"v_lshl_add_u32 {vr(u0)}, {vr(u0)}, 6, {vr(u3)}")
    A(f"v_and_b32 {vr(u3)}, 7, {vr(ln)}")
    A(f"v_xor_b32 {vr(u3)}, {vr(u1)}, {vr(u3)}")
    A(f"v_lshlrev_b32 {vr(u3)}, 4, {vr(u3)}")
    A(f"v_lshl_add_u32 {vr(vDX)}, {vr(u0)}, 10, {vr(u3)}")
    A(f"v_xor_b32 {vr(vDX+1)}, 64, {vr(vDX)}")
    A(f"s_lshl_b32 {sr(sW4K)}, {sr(sWAVE)}, 12")
    A(f"s_lshl_b32 {sr(sW8K)}, {sr(sWAVE)}, 13")
    A(f"s_lshl_b32 {sr(sT)}, {sr(sB)}, 18")
    A(f"s_lshl_b32 {sr(sT+1)}, {sr(sH)}, 8")
    A("s_waitcnt lgkmcnt(0)")
    o += stamp()
    o += srd_at(sWQ, 6, sr(sT+1), 511*8192 + 256)
    o += srd_at(sX, 0, sr(sT), 0x40000)
    return o

def wo_piece_addr():
    return [f"v_lshrrev_b32 {vr(u0)}, 5, v0", f"v_and_b32 {vr(u1)}, 0x1e, {vr(u0)}", f"v_and_b32 {vr(u0)}, 1, {vr(u0)}",
            f"v_lshl_add_u32 {vr(u0)}, {vr(u1)}, 2, {vr(u0)}",
            f"v_and_b32 {vr(u1)}, 31, v0", f"v_lshlrev_b32 {vr(u1)}, 4, {vr(u1)}", f"v_lshl_add_u32 {vr(vWOF)}, {vr(u0)}, 10, {vr(u1)}"]
def wo_piece_dma():
    o = [m0_at(LWO)]
    for p in range(4):
        o.append(f"s_mov_b32 {sr(sDT)}, {1024*p}")
        o.append(f"buffer_load_dwordx4 {vr(vWOF)}, {sr(sWO2,4)}, {sr(sDT)} offen offset:{1024*p} nt lds ; #wo")
    return o

def warm_loads(nst):
    o = []; A = o.append
    A(f"v_lshrrev_b32 {vr(u3)}, 6, v0"); A(f"v_and_b32 {vr(u2)}, 15, v0"); A(f"v_lshl_add_u32 {vr(u3)}, {vr(u3)}, 4, {vr(u2)}")
    A(f"v_and_b32 {vr(u1)}, {nst - 1}, {vr(u3)}"); A(f"v_add_u32 {vr(u1)}, {sr(sRQ)}, {vr(u1)}"); A(f"v_add_u32 {vr(u1)}, 1, {vr(u1)}")
    A(f"v_and_b32 {vr(u1)}, 7, {vr(u1)}")
    A(f"v_lshrrev_b32 {vr(u2)}, 1, {vr(u3)}")
    A(f"v_lshlrev_b32 {vr(u0)}, 7, {vr(u1)}"); A(f"v_lshl_add_u32 {vr(u0)}, {vr(u2)}, 10, {vr(u0)}")
    A(f"s_and_b32 {sr(sT)}, {sr(sH)}, 7"); A(f"s_lshl_b32 {sr(sT)}, {sr(sT)}, 15")
    A(f"buffer_load_dword {vr(vDUM[1])}, {vr(u0)}, {sr(sX,4)}, {sr(sT)} offen ; #warm")
    A(f"v_lshlrev_b32 {vr(u0)}, 19, {vr(u1)}")
    A(f"v_lshrrev_b32 {vr(u3)}, 1, {vr(u2)}"); A(f"v_lshl_add_u32 {vr(u0)}, {vr(u3)}, 13, {vr(u0)}")
    A(f"v_and_b32 {vr(u3)}, 1, {vr(u2)}"); A(f"v_lshl_add_u32 {vr(u0)}, {vr(u3)}, 7, {vr(u0)}")
    A(f"s_and_b32 {sr(sT)}, {sr(sB)}, 3"); A(f"s_lshl_b32 {sr(sT)}, {sr(sT)}, 17")
    A(f"buffer_load_dword {vr(vDUM[2])}, {vr(u0)}, {sr(sWQ,4)}, {sr(sT)} offen ; #warm")
    return o

def setup_b():
    o = []; A = o.append
    A(f"s_lshl_b32 {sr(sT+2)}, {sr(sB)}, 5"); A(f"s_add_u32 {sr(sT+2)}, {sr(sT+2)}, {sr(sH)}")
    A(f"s_lshl_b32 {sr(sT)}, {sr(sT+2)}, 18")
    o += srd_at(sK, 2, sr(sT), 0x40000)
    o += srd_at(sV, 4, sr(sT), 0x40000)
    A(f"s_lshl_b32 {sr(sT+1)}, {sr(sT+2)}, 7"); A(f"s_add_u32 {sr(sT+1)}, {sr(sT+1)}, {FLAG_OFF}")
    o += srd_at(sFL, 14, sr(sT+1), 32)
    A(f"s_getreg_b32 {sr(sXCC)}, hwreg(HW_REG_XCC_ID, 0, 4)")
    A(f"s_add_u32 {sr(sXCC)}, {sr(sXCC)}, 16")
    o += srd_at(sDB, 12, "0", 256)
    A(f"s_and_b32 {sr(sT+1)}, {sr(sT+2)}, 3"); A(f"s_lshl_b32 {sr(sT+1)}, {sr(sT+1)}, 6")
    o += srd_at(sDBW, 12, sr(sT+1), 4)
    A(f"s_lshr_b32 {sr(sT)}, {sr(sT+2)}, 1"); A(f"s_and_b32 {sr(sT+2)}, {sr(sT+2)}, 1")
    A(f"s_lshl_b32 {sr(sT+1)}, {sr(sT)}, 15"); A(f"s_lshl_b32 {sr(sT+3)}, {sr(sT+2)}, 9"); A(f"s_add_u32 {sr(sT+1)}, {sr(sT+1)}, {sr(sT+3)}")
    o += srd_at(sWO2, 8, sr(sT+1), 31*1024 + 512)
    A(f"s_lshl_b32 {sr(sT+2)}, {sr(sT+2)}, 2"); A(f"s_add_u32 {sr(sT+2)}, {sr(sT+2)}, {sr(sWAVE)}"); A(f"s_lshl_b32 {sr(sT+2)}, {sr(sT+2)}, 19")
    A(f"s_lshl_b32 {sr(sT)}, {sr(sT)}, 11"); A(f"s_add_u32 {sr(sT)}, {sr(sT)}, {sr(sT+2)}"); A(f"s_add_u32 {sr(sT)}, {sr(sT)}, {WOF_OFF}")
    o += srd_at(sWS2, 14, sr(sT), 262144 + 2048)
    A(f"s_lshl_b32 {sr(sT)}, {sr(sB)}, 2"); A(f"s_add_u32 {sr(sT)}, {sr(sT)}, {sr(sWAVE)}"); A(f"s_lshl_b32 {sr(sT)}, {sr(sT)}, 19")
    A(f"s_lshl_b32 {sr(sT+1)}, {sr(sH)}, 13"); A(f"s_add_u32 {sr(sT)}, {sr(sT)}, {sr(sT+1)}")
    o += srd_at(sO, 14, sr(sT), 262144 + 8192)
    if CFG.get("fewst"):
        A(f"s_cmp_eq_u32 {sr(sMT)}, 0"); A(f"s_cselect_b32 {sr(sO+2)}, {sr(sO+2)}, 0")
    rot = CFG.get("rot", "j")
    if rot == "j": A(f"s_lshr_b32 {sr(sROT)}, s2, 3"); A(f"s_add_u32 {sr(sROT)}, {sr(sROT)}, s2"); A(f"s_and_b32 {sr(sROT)}, {sr(sROT)}, 15"); A(f"s_lshl_b32 {sr(sROT)}, {sr(sROT)}, 14")
    else: A(f"s_mov_b32 {sr(sROT)}, 0")
    if CFG.get("itst"): A("s_mov_b32 s42, 0"); A("s_mov_b32 s43, 0x100")
    A(f"s_mov_b32 {sr(sTHR)}, 0x41000000")
    c = math.log2(math.e) / math.sqrt(128.0)
    A(f"s_mov_b32 {sr(sSC)}, 0x{struct.unpack('<I', struct.pack('<f', c))[0]:08x}")
    A(f"v_lshl_add_u32 {vr(vDV)}, {vr(u4)}, 8, {vr(u5)}")
    A(f"v_xor_b32 {vr(vDV+1)}, 0x80, {vr(vDV)}")
    g_, c16 = u1, u2
    A(f"v_lshrrev_b32 {vr(g_)}, 4, {vr(ln)}")
    A(f"v_and_b32 {vr(c16)}, 15, {vr(ln)}")
    A(f"v_xor_b32 {vr(u3)}, {vr(g_)}, {vr(c16)}")
    A(f"v_lshlrev_b32 {vr(u3)}, 4, {vr(u3)}")
    A(f"v_lshl_add_u32 {vr(vDK)}, {vr(u4)}, 8, {vr(u3)}")
    for p in range(1, 4): A(f"v_xor_b32 {vr(vDK+p)}, {64*p}, {vr(vDK)}")
    if CONT:
        A(f"s_lshl_b32 {sr(sW1K)}, {sr(sWAVE)}, 10")
        A(f"v_lshrrev_b32 {vr(vDK+1)}, 4, v0")
        A(f"v_xor_b32 {vr(vDK+2)}, {vr(vDK+1)}, {vr(c16)}"); A(f"v_lshlrev_b32 {vr(vDK+2)}, 4, {vr(vDK+2)}")
        A(f"v_lshl_add_u32 {vr(vDK)}, {vr(vDK+1)}, 8, {vr(vDK+2)}")
        A(f"v_and_b32 {vr(vDK+2)}, 7, {vr(vDK+1)}"); A(f"v_lshlrev_b32 {vr(vDK+2)}, 1, {vr(vDK+2)}")
        A(f"v_xor_b32 {vr(vDK+2)}, {vr(vDK+2)}, {vr(c16)}"); A(f"v_lshlrev_b32 {vr(vDK+2)}, 4, {vr(vDK+2)}")
        A(f"v_lshl_add_u32 {vr(vDV)}, {vr(vDK+1)}, 8, {vr(vDK+2)}")
    A(f"v_lshl_add_u32 {vr(vKA)}, {vr(c16)}, 8, {vr(u3)}")
    for s in range(1, 4): A(f"v_xor_b32 {vr(vKA+s)}, {64*s}, {vr(vKA)}")
    A(f"v_lshrrev_b32 {vr(u3)}, 1, {vr(c16)}")
    A(f"v_xor_b32 {vr(u3)}, {vr(g_)}, {vr(u3)}")
    A(f"v_lshlrev_b32 {vr(u3)}, 4, {vr(u3)}")
    A(f"v_lshl_add_u32 {vr(u3)}, {vr(c16)}, 7, {vr(u3)}")
    A(f"v_add_u32 {vr(u3)}, {sr(sW8K)}, {vr(u3)}")
    for sl in range(2):
        A(f"v_add_u32 {vr(vXA+2*sl)}, {LX[sl]}, {vr(u3)}")
        A(f"v_xor_b32 {vr(vXA+2*sl+1)}, 64, {vr(vXA+2*sl)}")
    A(f"v_cmp_eq_u32 vcc, 0, {vr(c16)}")
    A(f"v_mov_b32 {vr(u3)}, 0x3f803f80")
    r_, f_, c8 = u0, u4, u5
    A(f"v_bfe_u32 {vr(r_)}, {vr(ln)}, 2, 2")
    for j in range(4): A(f"v_cndmask_b32 {vr(vONES+j)}, 0, {vr(u3)}, vcc")
    A(f"v_bfe_u32 {vr(f_)}, {vr(ln)}, 2, 3")
    A(f"v_and_b32 {vr(c8)}, 3, {vr(ln)}")
    A(f"v_lshlrev_b32 {vr(c8)}, 3, {vr(c8)}")
    A(f"v_lshrrev_b32 {vr(u3)}, 2, {vr(ln)}")
    A(f"v_lshlrev_b32 {vr(vWOA)}, 9, {vr(u3)}")
    A(f"v_lshl_add_u32 {vr(vWOA)}, {vr(c8)}, 1, {vr(vWOA)}")
    A(f"s_lshl_b32 {sr(sT)}, {sr(sWAVE)}, 7"); A(f"s_add_u32 {sr(sT)}, {sr(sT)}, {LWO}")
    A(f"v_add_u32 {vr(vWOA)}, {sr(sT)}, {vr(vWOA)}")
    A(f"v_lshl_add_u32 {vr(c8)}, {vr(f_)}, 5, {vr(c8)}")
    A(f"v_lshl_add_u32 {vr(u3)}, {vr(u3)}, 8, {vr(c8)}")
    A(f"v_add_u32 {vr(vVA)}, {LV}, {vr(u3)}")
    for dt in range(1, 8): A(f"v_xor_b32 {vr(vVA+dt)}, {32*dt}, {vr(vVA)}")
    A(f"v_lshl_add_u32 {vr(u3)}, {vr(g_)}, 3, {vr(r_)}")
    A(f"v_lshl_add_u32 {vr(u3)}, {vr(u3)}, 8, {vr(c8)}")
    if NOSWAP:
        A(f"v_and_b32 {vr(u3)}, 0xff00, {vr(u3)}"); A(f"v_lshl_add_u32 {vr(u3)}, {vr(r_)}, 6, {vr(u3)}")
        A(f"v_and_b32 {vr(c8)}, 3, {vr(ln)}"); A(f"v_lshl_add_u32 {vr(u3)}, {vr(c8)}, 4, {vr(u3)}")
        A(f"v_add_u32 {vr(vWA)}, {LWQ[0]}, {vr(u3)}")
        for k in range(1, 4): A(f"v_xor_b32 {vr(vWA+k)}, {64*k}, {vr(vWA)}")
    else:
        A(f"v_add_u32 {vr(vWA)}, {LWQ[0]}, {vr(u3)}")
        for dt in range(1, 8): A(f"v_xor_b32 {vr(vWA+dt)}, {32*dt}, {vr(vWA)}")
    A(f"v_lshlrev_b32 {vr(vWOS)}, 4, {vr(ln)}")
    A(f"v_add_u32 {vr(vLIN)}, {sr(sW4K)}, {vr(vWOS)}")
    o += wo_piece_addr()
    return o

def wo_reads():
    return [f"ds_read_b64_tr_b16 {ar(192+4*i+2*tt,2)}, {vr(vWOA)} offset:{(i//2)*64 + (i%2)*8 + tt*8192} ; #wo" for i in range(4) for tt in range(2)]
def wo_stores():
    return [[f"s_mov_b32 {sr(sT)}, {(i//2)*262144}", f"buffer_store_dwordx4 {ar(192+4*i,4)}, {vr(vWOS)}, {sr(sWS2,4)}, {sr(sT)} offen offset:{(i%2)*1024} sc1 ; #wst"] for i in range(4)]

def pairs(lst): return [lst[i:i+2] for i in range(0, len(lst), 2)]
def prologue():
    qs = stamp if CFG["qst"] else (lambda: [])
    o = setup_a()
    o += flat(qp_dma(0))
    nw = int(CFG.get("nwarm", 2))
    o += (warm_loads(nw) if nw else [])
    o += qs()
    o += setup_b()
    pt = CFG.get("pt", "")
    def pretouch(j, kind):
        if kind == "st": return [f"s_mov_b32 {sr(sDT)}, {j * 262144}", f"buffer_store_dword {vr(vWOF+1)}, {vr(vWOF+1)}, {sr(sO,4)}, {sr(sDT)} offen sc1 ; #pt"]
        if kind == "at": return [f"s_mov_b32 {sr(sDT)}, {j * 262144}", f"buffer_atomic_or {vr(vWOF+1)}, {vr(vWOF+1)}, {sr(sO,4)}, {sr(sDT)} offen sc1 ; #pt"]
        return [f"s_mov_b32 {sr(sDT)}, {j * 262144}", f"buffer_load_dword {vr(vWOF+2+j)}, {vr(vWOF+1)}, {sr(sO,4)}, {sr(sDT)} offen sc1 ; #pt"]
    if pt: o += [f"v_lshlrev_b32 {vr(vWOF+1)}, 3, {vr(vWOS)}"]
    if pt and pt[2:] == "0": o += pretouch(0, pt[:2]) + pretouch(1, pt[:2])
    prek = [x for x in CFG.get("prek", "").split(",") if x]
    for n in prek: o += (wo_piece_dma() if n == "wo" else kv_batch(n[0], int(n[1:])))
    if CFG.get("kvtlb"):
        o += [f"buffer_load_dword {ar(0)}, off, {sr(sK,4)}, 0 nt ; #tl", f"buffer_load_dword {ar(1)}, off, {sr(sV,4)}, 0 nt ; #tl"]
    o += qs()
    o += ["@wait st0", "s_barrier"] + stamp()
    kv = lambda *l: groups_of(sum([kv_batch(x[0], int(x[1:])) for x in l], []))
    bg = [int(x) for x in CFG.get("bg", "38,38,38,38,30,10,-14").split(",")]
    step = float(CFG.get("qstep", 4))
    B = [64 * s + bg[s] for s in range(7)]
    seq = [(st, dt, qb) for st in range(6) for dt in range(8) for qb in range(4) for i in range(2)]
    mf = sum([qp_mfmas(st) for st in range(6)], [])
    for st, qb in ((6, 0), (6, 1), (7, 0), (7, 1), (6, 2), (6, 3), (7, 2), (7, 3)):
        mf += qp_q(st, qb); seq += [(st, dt, qb) for dt in range(8) for i in range(2)]
    Q0 = len(mf)
    mf += [qk_one(0, kb, qb, (i if kb % 2 == 0 else 3 - i), i == 0, czero=True) for qb in range(4) for kb in range(4) for i in range(4)]
    first = {}; last = {}
    for g, (st, dt, qb) in enumerate(seq):
        for t in (f"x{st}_{qb}", f"w{st}_{dt}"):
            first.setdefault(t, g); last[t] = g
    xt = lambda k: ",".join(f"x{k}_{q}" for q in range(4))
    wt = lambda k: ",".join(f"w{k}_{d}" for d in range(8))
    nvm = {}; pre = {}; vm = {}
    def put_vm(g, grp):
        while g in vm or g in B: g += 1
        vm[g] = grp; return g
    npre = int(CFG.get("npre", 16)); nd1 = int(CFG.get("nd1", 6))
    r0 = qp_reads(0); d1 = qp_dma(1)
    o += r0[:npre] + flat(d1[:nd1])
    pos = -2
    for grp in d1[nd1:]: pos += 3; put_vm(int(pos), grp)
    XW = int(CFG.get("xw", 18))
    ekp = [x for x in CFG.get("ekp", "").split(",") if x]
    ek = dict(x.split(":") for x in CFG.get("ek", "5:K0").split(",") if x)
    for k in range(2, 8):
        for i, grp in enumerate(qp_dma(k)):
            e = 0 if k == 2 else (B[k-3] + 1 if i < 4 else B[k-3] + XW)
            if k == 7 and i >= 4: e = max(e, 0)
            pos = max(pos + step, e)
            if i == 4: grp = [f"@wait - lds={xt(k-2)}"] + grp
            put_vm(int(pos), grp)
        for n in ekp:
            j = k - int(CFG.get("ekp0", 3))
            if 0 <= j < 4:
                G_ = groups_of(wo_piece_dma()) if n == "wo" else kv(n)
                head = G_[0][:-1] if n != "wo" else G_[0][:1]
                grp = head + (G_[j] if (j or n == "wo") else G_[0][-1:]) if not (n == "wo" and j == 0) else G_[0]
                pos += 4; put_vm(int(pos), grp)
        if pt and pt[2:] != "0" and k - int(pt[2:]) in (0, 2):
            pos += 3; put_vm(int(pos), pretouch((k - int(pt[2:])) // 2, pt[:2]))
        if str(k) in ek:
            for grp in (groups_of(wo_piece_dma()) if ek[str(k)] == "wo" else kv(ek[str(k)])):
                pos += 3; put_vm(int(pos), grp)
    kstep = float(CFG.get("kstep", 9))
    BK, BQ = 384 + 94, Q0 + 56
    sched = [("K0", 0), ("wo", 0), ("K1", 0), ("V0", B[5] + 1), ("K2", BK + 1), ("V1", BK + 1)]
    for n, e in sched:
        if n in ek.values() or n in prek or n in ekp: continue
        for grp in (groups_of(wo_piece_dma()) if n == "wo" else kv(n)):
            pos = max(pos + kstep, e)
            put_vm(int(pos), grp)
    assert pos < Q0 + 64, pos
    if CFG["verbose"]: print("vm gaps:", sorted(vm))
    items = [(0, x) for x in r0[npre:]]
    for st in range(1, 8): items += [(st, x) for x in qp_reads(st)]
    R = []
    for st, x in items:
        t = x.split("#")[1]
        e = 0 if st == 0 else B[st-1] + 1
        if st >= 2: e = max(e, last[t[0] + str(st - 2) + t[2:]])
        d = first[t] - LAT
        if st < 7: d = min(d, B[st] - 8)
        if t[0] == "x" and 1 <= st <= 5: d = min(d, B[st-1] + XW - 7)
        R.append([e, max(d, e), x])
    R.sort(key=lambda r: (r[1], r[0]))
    rstep = float(CFG.get("rstep", 1.3)); nxt = 0
    for g in range(Q0):
        if g in vm or g in B: continue
        k = 0
        while k < 2:
            c = [r for r in R if r[0] <= g]
            if not c: break
            urgent = any(r[1] - g < i * 1.3 + 1 for i, r in enumerate(c))
            if not urgent and (k == 1 or g < nxt): break
            nvm.setdefault(g, []).append(c[0][2]); R.remove(c[0]); k += 1; nxt = g + rstep
    assert not R, R[:3]
    for t, g in first.items():
        (nvm.setdefault(g - 1, []) if g else o).insert(0 if g else len(o), f"@wait - lds={t}")
    for s in range(7):
        pre.setdefault(B[s], []).append(f"@wait st{s+1} lds={xt(s)},{wt(s)}")
        nvm.setdefault(B[s], []).append("s_barrier")
        if CFG["qst"]: pre[64 * s] = qs() + pre.get(64 * s, [])
    nvm = merge(nvm, spread(pairs(wo_reads()), [g for g in range(Q0 + 1, Q0 + 12) if g not in vm]))
    pre.setdefault(BK, []).append("@wait K0,wo"); nvm.setdefault(BK, []).append("s_barrier")
    nvm = merge(nvm, spread(pairs([rd_k(0, n) for n in range(16)]), [g for g in range(384 + 96, 384 + 120) if g not in vm]))
    pre.setdefault(Q0, []).append("@wait - lgkm=0"); pre[Q0] = stamp() + pre[Q0]
    pre.setdefault(BQ, []).append("@wait K1,V0 lds=wo"); nvm.setdefault(BQ, []).append("s_barrier")
    nvm = merge(nvm, {Q0 + 57: [f"s_add_u32 {sr(sTILE)}, {sr(sROT)}, {(DIST-1)*16384}"], Q0 + 58: [f"s_and_b32 {sr(sTILE)}, {sr(sTILE)}, 0x3ffff"],
                      Q0 + 59: [f"s_add_u32 {sr(sTK)}, {sr(sROT)}, {DIST*16384}"], Q0 + 60: [f"s_and_b32 {sr(sTK)}, {sr(sTK)}, 0x3ffff"],
                      Q0 + 61: [f"s_mov_b32 {sr(sCNT)}, 0"]})
    for g in sorted(vm):
        grp = vm[g]; sca = grp[:-1]
        prevv = max([x for x in vm if x < g], default=-1)
        gg = g
        for x in reversed(sca):
            nvm.setdefault(gg, []).insert(0, x)
            if gg - 1 > prevv and gg > 0: gg -= 1
        nvm.setdefault(g, []).append(grp[-1])
    va = [(f"v_accvgpr_write_b32 {ar(r)}, 0", 0, "z") for r in list(range(2, 128)) + [0, 1]]
    done = {0: 384 + 32, 1: 384 + 48, 2: 384 + 96, 3: 384 + 112}
    for qb in range(4):
        va += [(t, done[qb] + 4 * s + 3 + 3, f"q{qb}") for t, s in qconv_stream(qb)]
    va += [(f"v_mov_b32 {vr(vL+j)}, 0", Q0, "z") for j in range(16)]
    def initq(qb):
        n = vNEG + 4 * qb
        l = qmax(0, qb, n)
        for sw in ("v_permlane32_swap_b32", "v_permlane16_swap_b32"):
            l += [f"v_mov_b32 {vr(n+1)}, {vr(n)}", "s_nop 1", f"{sw} {vr(n)}, {vr(n+1)}", f"v_max_f32 {vr(n)}, {vr(n)}, {vr(n+1)}"]
        l += [f"v_sub_f32 {vr(n+j)}, 0, {vr(n)}" for j in (3, 2, 1, 0)]
        for ks in range(2):
            r = Ureg(0, ks, qb)
            l += [f"v_add_f32 {vr(r+j)}, {vr(r+j)}, {vr(n + j % 2)}" for j in range(8)]
        return l
    for qb in range(4): va += [(t, Q0 + 16 * qb + 15 + 3, "i") for t in initq(qb)]
    part, left = weave(mf, nvm, va, pre=pre, need={Q0 + 16 * q: f"q{q}" for q in range(4)})
    for k in range(1, 6):
        assert max(i for i, x in enumerate(part) if f"#x{k}_" in x) < part.index(f"@wait - lds={xt(k)}"), k
    for k in range(0, 6):
        assert max(i for i, x in enumerate(part) if f"#w{k}_" in x) < part.index(f"@wait st{k+1} lds={xt(k)},{wt(k)}"), k
    o += part
    o += qs()
    o += [rd_k(1, n) for n in EARLY_K]
    o += [f"v_mov_b32 {vr(vT+j)}, {sr(sXCC) if j == 1 else 0}" for j in range(4)]
    o.append(f"buffer_store_dwordx4 {vr(vT,4)}, {vr(vLIN)}, {sr(sFL,4)}, 0 offen sc1 ; #wst")
    if CFG["verbose"]: print("QK0 leftover VALU:", len(left))
    ini = []
    lf_ = [t for t, _, _ in left]
    i = 0
    while i < len(lf_):
        m1 = re.match(r"v_add_f32 v(\d+), v\d+, v(\d+)", lf_[i])
        if m1 and int(m1.group(1)) % 2 == 0 and i + 1 < len(lf_) and lf_[i+1].startswith(f"v_add_f32 v{int(m1.group(1))+1},"):
            r = int(m1.group(1)); ini.append(f"v_pk_add_f32 {vr(r,2)}, {vr(r,2)}, {vr(int(m1.group(2)),2)}"); i += 2
        else: ini.append(lf_[i]); i += 1
    ex_ = [exp_i(0, it[1]) for it in E_FIRST if it[0] == "exp"]; cv_ = [cvt_i(0, it[1]) for it in E_FIRST if it[0] == "cvt"]
    ini += ex_ + cv_
    G = wo_stores() + (kv("K3", "V2") if DIST == 4 else [])
    for i, g in enumerate(G):
        k = (i + 1) * len(ini) // (len(G) + 1)
        ini = ini[:k] + g + ini[k:]
    o += ini
    if CFG.get("nomax"): o.append("s_mov_b64 vcc, 0")
    o.append("@wait - lds=k0,k1,k2,k3")
    o += stamp()
    o, fifo, lf = resolve(o, [])
    return o, fifo, lf

def phase_c_srds():
    o = []; A = o.append
    t0, t1, t2 = sT, sT + 1, sT + 2
    A(f"s_lshr_b32 {sr(sHO)}, {sr(sH)}, 3")
    A(f"s_mov_b32 {sr(sFL+2)}, 4")
    A(f"s_and_b32 {sr(t0)}, {sr(sH)}, 6"); A(f"s_lshl_b32 {sr(t0)}, {sr(t0)}, 1"); A(f"s_add_u32 {sr(t0)}, {sr(t0)}, {sr(sWAVE)}")
    A(f"s_lshl_b32 {sr(t0)}, {sr(t0)}, 18"); A(f"s_lshl_b32 {sr(t2)}, {sr(sHO)}, 16"); A(f"s_add_u32 {sr(t0)}, {sr(t0)}, {sr(t2)}")
    A(f"s_add_u32 {sr(t0)}, {sr(t0)}, {WOF_OFF}"); A(f"s_sub_u32 {sr(t0)}, {sr(t0)}, {sr(sW4K)}")
    o += srd_at(sWFL, 14, sr(t0), 65536 + 3 * 4096)
    A(f"s_and_b32 {sr(t0)}, {sr(sH)}, 1"); A(f"s_lshl_b32 {sr(t1)}, {sr(sB)}, 1"); A(f"s_add_u32 {sr(t0)}, {sr(t0)}, {sr(t1)}")
    A(f"s_lshl_b32 {sr(t1)}, {sr(t0)}, 20"); A(f"s_add_u32 {sr(t1)}, {sr(t1)}, {sr(t2)}")
    o += srd_at(sOL, 14, sr(t1), 3 * 262144 + 65536)
    A(f"s_lshl_b32 {sr(t0)}, {sr(t0)}, 17"); A(f"s_lshl_b32 {sr(t1)}, {sr(sHO)}, 15"); A(f"s_add_u32 {sr(t0)}, {sr(t0)}, {sr(t1)}")
    A(f"s_and_b32 {sr(t1)}, {sr(sH)}, 6"); A(f"s_lshl_b32 {sr(t1)}, {sr(t1)}, 7"); A(f"s_add_u32 {sr(t0)}, {sr(t0)}, {sr(t1)}")
    o += srd_at(sOUT, 10, sr(t0), 31 * 1024 + 256)
    A(f"s_lshl_b32 {sr(t0)}, {sr(sB)}, 12"); A(f"s_lshl_b32 {sr(t1)}, {sr(sHO)}, 10"); A(f"s_add_u32 {sr(t0)}, {sr(t0)}, {sr(t1)}")
    A(f"s_add_u32 {sr(t0)}, {sr(t0)}, {FLAG_OFF}")
    o += srd_at(sFLR, 14, sr(t0), 1024)
    A(f"s_and_b32 {sr(t0)}, {sr(sH)}, 7"); A(f"s_lshl_b32 {sr(t1)}, {sr(sB)}, 5"); A(f"s_add_u32 {sr(t0)}, {sr(t0)}, {sr(t1)}")
    A(f"s_lshl_b32 {sr(t1)}, {sr(t0)}, 16"); A(f"s_lshl_b32 {sr(t2)}, {sr(sHO)}, 14"); A(f"s_add_u32 {sr(t1)}, {sr(t1)}, {sr(t2)}")
    A(f"s_add_u32 {sr(t1)}, {sr(t1)}, {PART_OFF}")
    o += srd_at(sPS, 14, sr(t1), 3 * 524288 + 16384)
    A(f"s_lshl_b32 {sr(t1)}, {sr(t0)}, 7"); A(f"s_lshl_b32 {sr(t2)}, {sr(sHO)}, 2"); A(f"s_add_u32 {sr(t1)}, {sr(t1)}, {sr(t2)}")
    A(f"s_add_u32 {sr(t1)}, {sr(t1)}, {FLAG_OFF + 16}")
    o += srd_at(sPF2, 14, sr(t1), 4)
    A(f"s_lshl_b32 {sr(t1)}, {sr(sB)}, 5"); A(f"s_add_u32 {sr(t1)}, {sr(t1)}, {sr(sH)}"); A(f"s_lshl_b32 {sr(t1)}, {sr(t1)}, 16")
    A(f"s_add_u32 {sr(t1)}, {sr(t1)}, {PART_OFF}")
    o += srd_at(sPL, 14, sr(t1), 65536)
    return o

def tail_and_epilogue(u):
    p = u % 2
    o = []
    reads = [rd_v(slotV(15), n, t) for n in range(16) for t in range(2)]
    er = [(exp_i(p, it[1]), UNITS[it[1] // 8][1]) if it[0] == "exp" else (cvt_i(p, it[1]), UNITS[it[1] // 4][1]) for it in E_REST]
    va = []
    for i, (t, q) in enumerate(er):
        if t.startswith("v_cvt") and i and er[i-1][0].startswith("v_exp"): va.append(("s_nop 0", 0, f"e{q}"))
        va.append((t, 0, f"e{q}"))
    mf = []
    for qb in range(4):
        mf += [sum_one(p, qb, 0), sum_one(p, qb, 1)]
        mf += [pv_one(p, dt, qb, (i if dt % 2 == 0 else 1 - i)) for dt in range(8) for i in range(2)]
    vOST = vCW
    if CFG.get("local"): va.append((f"v_cmp_ne_u32 {sr(sGLB,2)}, {sr(sXCC)}, {vr(vCW)}", 0, "x"))
    va.append((f"v_and_b32 {vr(vOST)}, 0x3ff, {vr(vLIN)}", 0, "x"))
    tmp = 2
    NMF = len(mf)
    fill = {0: [], 1: [], 2: [], 3: []}
    tail_names = CFG.get("tailw", "R3").split(",")
    post_names = [x for x in ("R3", "R5") if x not in tail_names]
    for qb in range(4):
        e0 = 18 * qb
        lsum = [f"v_mov_b32 {vr(vT+qb)}, {vr(vL+4*qb)}"] + allreduce("v_add_f32", vT + qb, vMX) + [f"v_rcp_f32 {vr(vT+qb)}, {vr(vT+qb)}"]
        va += [(t, max(12, e0 + 1 + 3), "o") for t in lsum]
        F = fill[qb]
        for s in range(4):
            e = e0 + 2 + 4 * s + 3 + 3
            b_ = tmp + 8 * (s % 2)
            va += [(f"v_accvgpr_read_b32 {vr(b_+j)}, {ar(Oreg(qb,2*s)+j)}", e, "o") for j in range(8)]
            va += [(f"@mul {b_+j} {vT+qb}", e, "o") for j in range(8)]
            d = Ureg(p, s // 2, qb) + 4 * (1 - s % 2)
            ee = e0 + 17 if s % 2 == 1 else e
            va += [(f"v_cvt_pk_bf16_f32 {vr(d+j)}, {vr(b_+2*j)}, {vr(b_+2*j+1)}", max(e, ee), "o") for j in range(4)]
            ld = flat(F[s * len(F) // 4:(s + 1) * len(F) // 4])
            va += [(t, NMF - 1 if qb == 3 else e, "o") for t in ld]
            va += [(f"s_mov_b32 {sr(sT)}, {(qb//2)*262144 + (s//2)*4096}", e, "o"),
                   (f"buffer_store_dwordx4 {vr(d,4)}, {vr(vOST)}, {sr(sO,4)}, {sr(sT)} offen offset:{(s%2)*2048 + (qb%2)*1024} {CFG.get('ost', 'plain' if CFG.get('local') else 'sc1').replace('+', ' ').replace('plain', '')} ; #ost", e, "o")]
    va = [((f"v_mul_f32 {vr(int(t.split()[1]))}, {vr(int(t.split()[1]))}, {vr(int(t.split()[2]))}" if t.startswith("@mul") else t), e, k) for t, e, k in va]
    o += reads[:12]
    nvm = spread(pairs(reads[12:]), list(range(0, 10)))
    pre = {2 + 2 * dt: [f"@wait - lds=v{2*dt},v{2*dt+1}"] for dt in range(8)}
    early = sum([wo_loads(x) for x in tail_names if x], [])
    if early: nvm = merge(nvm, spread(early, list(range(10, int(CFG.get("tailhi", 44)), 2))))
    part, left = weave(mf, nvm, va, pre=pre, need={18 * q: f"e{q}" for q in range(4)})
    o += part
    o += stamp()
    o.append("s_nop 7")
    lf_ = [t for t, _, _ in left]
    i = 0
    while i < len(lf_):
        m1 = re.match(r"v_mul_f32 v(\d+), v\d+, v(\d+)", lf_[i]); m2 = re.match(r"v_mul_f32 v(\d+), v\d+, v(\d+)", lf_[i+1]) if i + 1 < len(lf_) else None
        if m1 and m2 and int(m1.group(1)) % 2 == 0 and int(m2.group(1)) == int(m1.group(1)) + 1:
            r = int(m1.group(1)); f_ = int(m1.group(2))
            sel = "op_sel_hi:[1,0]" if f_ % 2 == 0 else "op_sel:[0,1] op_sel_hi:[1,1]"
            o.append(f"v_pk_mul_f32 {vr(r,2)}, {vr(r,2)}, {vr(f_ - f_ % 2,2)} {sel}"); i += 2
        else:
            o.append(lf_[i]); i += 1
    A = o.append
    A(f"v_mov_b32 {vr(vMX)}, 1")
    A(f"v_and_b32 {vr(vT)}, 7, v0"); A(f"v_lshlrev_b32 {vr(vT)}, 7, {vr(vT)}")
    A(f"v_add_u32 {vr(vKA)}, 0x10000, {vr(vOST)}")
    A(f"s_mov_b32 {sr(sCNT)}, 0")
    if CFG.get("forceglobal"): A(f"s_mov_b64 {sr(sGLB,2)}, -1")
    if CFG.get("local"): A(f"s_and_b32 {sr(sGLB)}, {sr(sGLB)}, 0xff"); A(f"s_cmp_lg_u32 {sr(sGLB)}, 0")
    A("@wait ost")
    A("s_barrier")
    if CFG.get("local"): A("s_cbranch_scc1 L_pubg")
    A(f"buffer_store_dword {vr(vMX)}, {vr(vLIN)}, {sr(sFL,4)}, 0 offen {CFG.get('flagst', '' if CFG.get('local') else 'sc1')} ; #flag")
    A("L_pubg_back:")
    o += stamp()
    post = sum([wo_loads(x) for x in post_names], [])
    k1 = int(CFG.get("pollat", 8))
    o += flat(post[:k1])
    A(f"buffer_load_dword {vr(vT+1)}, {vr(vT)}, {sr(sFLR,4)}, 0 offen sc1 ; #poll1")
    o += flat(post[k1:])
    A("@wait poll1")
    A(f"v_cmp_ne_u32 vcc, 1, {vr(vT+1)}")
    A("s_cbranch_vccz L_go")
    A("L_poll:")
    A(f"buffer_load_dword {vr(vT+1)}, {vr(vT)}, {sr(sFLR,4)}, 0 offen {CFG.get('pollld', 'sc1').replace('+', ' ')} ; #poll")
    A("s_waitcnt vmcnt(0)")
    A(f"v_cmp_ne_u32 vcc, 1, {vr(vT+1)}")
    A("s_cbranch_vccz L_go")
    A(f"s_add_u32 {sr(sCNT)}, {sr(sCNT)}, 1")
    A(f"s_cmp_lt_u32 {sr(sCNT)}, {CFG['spin']}")
    A("s_cbranch_scc1 L_poll")
    A("L_go:")
    if CFG.get("local"): A(f"s_cmp_lg_u32 {sr(sGLB)}, 0"); A("s_cbranch_scc1 L_acq")
    A("L_acq_back:")
    o += stamp()
    return o

STAGED = []
def phase_c():
    o = []; A = o.append
    vOST = vCW
    D = int(CFG.get("cdist", 4))
    LAND, OWN = vS + 64, vS + 64 + 48
    def acc(k, q2, t): return (256 + 64 + 16 * k if k < 3 else OWN) + 4 * (q2 * 2 + t)
    def gsel(k, dst, sh): return [f"s_add_u32 {sr(dst)}, {sr(sHO)}, {k + 1}", f"s_and_b32 {sr(dst)}, {sr(dst)}, 3", f"s_lshl_b32 {sr(dst)}, {sr(dst)}, {sh}"]
    def dma(ch):
        G = []
        for p in range(4):
            g = []
            if p == 0:
                if ch % 4 == 0: g += gsel(ch // 4, sG, 18)
                g += [f"s_add_u32 {sr(sSP)}, {sr(sG)}, {(ch % 4) * 16384}", m0_at((ch % 8) * 16384), "s_nop 0"]
            g.append(f"buffer_load_dwordx4 {vr(vLIN)}, {sr(sOL,4)}, {sr(sSP)} offen offset:{p*1024} sc1 lds ; #c{ch}")
            G.append(g)
        return G
    def ofr(u, kl, q2): return 256 + 32 * (u % 2) + 4 * (kl * 2 + q2)
    def reads(u):
        ch = u // 2; base = (ch % 8) * 16384 + (u % 2) * 8192
        return [f"ds_read_b128 {rr(ofr(u,kl,q2),4)}, {vr(vKA if base >= 65536 else vOST)} offset:{base % 65536 + (kl*2+q2)*1024} ; #u{u}_{q2}" for q2 in range(2) for kl in range(4)]
    for ch in range(D): o += flat(dma(ch))
    o += ["@wait c0", "s_barrier"] + stamp() + reads(0)
    mf = []; nvm = {}; pre = {}; vm = {}
    for u in range(32):
        k = u // 8
        for j, (q2, t) in enumerate(((0, 0), (0, 1), (1, 1), (1, 0))):
            for i in range(4):
                kl = i if j % 2 == 0 else 3 - i
                f = ((u % 8) * 4 + kl) * 2 + t
                d = rr(acc(k, q2, t), 4)
                mf.append(f"{MF} {d}, {rr(WREG[f],4)}, {rr(ofr(u,kl,q2),4)}, {d if (u % 8 or i) else 0}")
        g0 = 16 * u
        (nvm.setdefault(g0 - 1, []) if u else o).append(f"@wait - lds=u{u}_0")
        nvm.setdefault(g0 + 7, []).append(f"@wait - lds=u{u}_1")
        if u + 1 < 32:
            if u % 2 == 1:
                tags = f"c{u // 2 + 1}"
                fl = int(CFG.get("pfl", 3))
                kk = [x for x in range(3) if 4 * (x + 1) + fl - 1 == u // 2]
                if kk: tags += f",p{kk[0]}"
                pre.setdefault(g0, []).append(f"@wait {tags}")
                nvm.setdefault(g0, []).append("s_barrier")
                if kk:
                    vm[g0 + 13] = gsel(kk[0], sT, 10) + [f"s_add_u32 {sr(sPF2+2)}, {sr(sT)}, 4",
                                   f"buffer_store_dword {vr(vMX)}, {vr(vLIN)}, {sr(sPF2,4)}, {sr(sT)} offen sc1 ; #pf"]
            r = reads(u + 1)
            for j, g in enumerate((1, 2, 4, 5) if False else (1, 3, 6, 8)): nvm.setdefault(g0 + g, []).extend(r[2*j:2*j+2])
        if u % 2 == 0 and u // 2 + D < 16:
            for grp, g in zip(dma(u // 2 + D), (5, 12, 21, 28)): vm[g0 + g] = [x for x in grp if x != "s_nop 0"]
        if u % 8 == 0 and u:
            kk = k - 1
            for j, g in enumerate((10, 14, 18, 26)):
                vm[g0 + g] = (gsel(kk, sTK, 19) if j == 0 else []) + [f"buffer_store_dwordx4 {rr(acc(kk, j // 2, j % 2), 4)}, {vr(vLIN)}, {sr(sPS,4)}, {sr(sTK)} offen offset:{j*1024} sc1 ; #p{kk}"]
    STAGED.clear()
    ep = [int(x) for x in CFG.get("ep", "8,12").split(",") if x]
    for n, ch in enumerate(ep):
        k = 2 - n
        g0 = 32 * ch
        vm[g0 + 9] = gsel(k, sTILE, 2) + [f"buffer_load_dword {vr(vT+1)}, off, {sr(sFL,4)}, {sr(sTILE)} offset:16 sc1 ; #e{k}"]
        g1 = g0 + 32 + 16 + 9
        nvm.setdefault(g1, []).extend([f"@wait e{k}", f"v_cmp_ne_u32 vcc, 1, {vr(vT+1)}"])
        nvm.setdefault(g1 + 1, []).extend([f"s_cbranch_vccnz L_e{k}", f"L_e{k}_back:"])
        for j, g in enumerate((g1 + 5, g1 + 9, g1 + 11, g1 + 17)):
            while g in vm: g += 1
            vm[g] = ([f"s_lshl_b32 {sr(sTILE)}, {sr(sTILE)}, 12"] if j == 0 else []) + [f"buffer_load_dwordx4 {vr(LAND + 16*k + 4*j, 4)}, {vr(vLIN)}, {sr(sPL,4)}, {sr(sTILE)} offen offset:{j*1024} sc1 ; #l{k}"]
        STAGED.append(k)
    nvm.setdefault(2, []).insert(0, f"s_mov_b32 {sr(sFL+2)}, 32")
    prev = -1
    for g in sorted(vm):
        grp = vm[g]; sca = grp[:-1]
        lo = max([prev] + [q for q in range(g) if any(x.startswith("L_e") for x in nvm.get(q, []))])
        free = [q for q in range(lo + 1, g) if not any(x.startswith(("s_", "@")) for x in nvm.get(q, []))]
        if len(free) >= len(sca):
            for x, q in zip(sca, free[len(free) - len(sca):]): nvm.setdefault(q, []).insert(0, x)
        else: nvm[g - 1] = sca + nvm.get(g - 1, [])
        nvm.setdefault(g, []).append(grp[-1]); prev = g
    nl = 3 - len(STAGED)
    ad = [f"v_and_b32 {vr(vT)}, 3, v0", f"v_min_u32 {vr(vT)}, {nl - 1}, {vr(vT)}", f"v_add_u32 {vr(vT)}, {sr(sHO)}, {vr(vT)}", f"v_add_u32 {vr(vT)}, 1, {vr(vT)}",
          f"v_and_b32 {vr(vT)}, 3, {vr(vT)}", f"v_lshlrev_b32 {vr(vT)}, 2, {vr(vT)}",
          "v_and_b32 v7, 15, v0", "v_lshrrev_b32 v8, 4, v0", "v_lshlrev_b32 v8, 4, v8", "v_lshl_add_u32 v14, v7, 10, v8"]
    lastpoll = int(CFG.get("lp", 500))
    nvm.setdefault(lastpoll, []).append(f"buffer_load_dword {vr(vT+1)}, {vr(vT)}, {sr(sFL,4)}, 0 offen offset:16 sc1 ; #lp")
    part, lft = weave(mf, nvm, [(x, 20, "a") for x in ad], pre=pre)
    assert not lft
    o += part
    o += stamp()
    A(f"s_mov_b32 {sr(sCNT)}, 0")
    A("@wait lp")
    A(f"v_cmp_ne_u32 vcc, 1, {vr(vT+1)}")
    A("s_cbranch_vccz L_go2")
    A("L_poll2:")
    A(f"buffer_load_dword {vr(vT+1)}, {vr(vT)}, {sr(sFL,4)}, 0 offen offset:16 sc1")
    A("s_waitcnt vmcnt(0)")
    A(f"v_cmp_ne_u32 vcc, 1, {vr(vT+1)}")
    A("s_cbranch_vccz L_go2")
    A(f"s_add_u32 {sr(sCNT)}, {sr(sCNT)}, 1")
    A(f"s_cmp_lt_u32 {sr(sCNT)}, {CFG['spin']}")
    A("s_cbranch_scc1 L_poll2")
    A("L_go2:")
    o += stamp()
    for k in range(nl):
        o += gsel(k, sT, 14)
        for j in range(4): A(f"buffer_load_dwordx4 {vr(LAND + 16*k + 4*j, 4)}, {vr(vLIN)}, {sr(sPL,4)}, {sr(sT)} offen offset:{j*1024} sc1 ; #l{k}")
    for k in (2, 1, 0):
        A(f"@wait l{k}")
        for j in range(0, 16, 2): A(f"v_pk_add_f32 {vr(OWN+j,2)}, {vr(OWN+j,2)}, {vr(LAND+16*k+j,2)}")
    A(f"s_mov_b32 {sr(sT)}, 16384")
    for q2 in range(2):
        for j in range(4): A(f"v_cvt_pk_bf16_f32 {vr(LAND + 4*q2 + j)}, {vr(OWN + 8*q2 + 2*j)}, {vr(OWN + 8*q2 + 2*j + 1)}")
        A(f"buffer_store_dwordx4 {vr(LAND + 4*q2, 4)}, v14, {sr(sOUT,4)}, {sr(sT) if q2 else 0} offen {CFG.get('outst', 'sc0+sc1').replace('+', ' ').replace('plain', '')}")
    return o

def peeled(lf):
    o = [f"s_mov_b32 {sr(sT)}, 0xe00fe000", f"v_cmp_ne_u32 vcc, {sr(sT)}, {vr(vCW)}", "s_cbranch_vccnz L_cw", "L_cw_back:"]
    for i in range(PEEL0, 15):
        loads = []
        tp = CFG.get("tpol", "nt").replace("+", " ")
        def touch(j, half):
            return [f"s_mov_b32 {sr(sDT)}, {j * 262144 + half * 4096}", f"s_mov_b32 {sr(sO+2)}, {j * 262144 + half * 4096 + 4096}",
                    f"buffer_load_dword {ar(240 + 2*j + half)}, {vr(vCW)}, {sr(sO,4)}, {sr(sDT)} offen {tp} ; #tch"]
        T = [touch(j, h_) for j in range(2) for h_ in range(2)] if CFG.get("local") and tp != "none" else []
        tsch = [int(x) for x in CFG.get("tsch", "13,13,13,13").split(",")]
        mine = [t for t, k in zip(T, tsch) if k == i]
        if i == 12 and CFG.get("local"):
            ids = [[f"v_and_b32 {vr(vCW)}, 63, v0", f"v_lshlrev_b32 {vr(vCW)}, 7, {vr(vCW)}", f"s_nop 0",
                    f"buffer_load_dword {ar(239)}, {vr(vCW)}, {sr(sFLR,4)}, 0 offen offset:4 sc1 ; #ids"]]
            loads = [(ids + mine, 0, NG)]
        r1at = int(CFG.get("r1at", 14))
        if i == 13:
            g = mine + (wo_loads("R1")[:8] if r1at == 13 else [])
            if not CFG.get("local"): g = wo_loads("R1")
            loads = [(g, 0, NG)] if g else []
        if i == 14:
            loads = [(wo_loads("R2") + wo_loads("R4"), 64, NG)]
            if CFG.get("local"):
                chk = [f"@wait ids,tch", f"v_accvgpr_read_b32 {vr(vCW)}, {ar(239)}"]
                r1 = wo_loads("R1")[(8 if r1at == 13 else 0):]
                k8 = len(r1) - 8
                r1[k8] = chk + r1[k8]
                loads.insert(0, (r1, 0, 64))
        o += iteration(i, f"L_r{i}", loads, phase_c_srds() if i == PEEL0 else ())
    o += stamp()
    o += tail_and_epilogue(3)
    o += phase_c()
    fifo = [f"K{PEEL0+2}"] * 4 + [f"V{PEEL0+1}"] * 4
    if CFG.get("skipst"): o = [x for x in o if "#ost" not in x]
    o, _, _ = resolve(o, fifo, lf)
    return o

def stamp_out():
    if not CFG["stamps"]: return []
    o = ["s_waitcnt vmcnt(0)"] + stamp()
    A = o.append
    A(f"s_lshl_b32 {sr(sT)}, s2, 10"); A(f"s_add_u32 {sr(sT)}, {sr(sT)}, {STAMP_OFF}")
    o += srd_at(4, 14, sr(sT), 1024)
    A("v_lshlrev_b32 v1, 2, v0")
    A(f"buffer_store_dword v{STV}, v1, s[4:7], 0 offen")
    if CFG.get("dbgout"):
        o += srd_at(4, 12, "0", 64)
        A("v_and_b32 v2, 63, v0")
        A("v_lshlrev_b32 v1, 1, v2"); A("v_add_u32 v1, 6, v1")
        A("v_and_b32 v3, 1, v2"); A("v_cmp_eq_u32 vcc, 0, v3"); A("v_mov_b32 v3, 0x1000"); A("s_nop 1")
        A("v_cndmask_b32 v1, v1, v3, vcc")
        A(f"v_cmp_lt_u32 vcc, {2*nstamp[0]}, v2"); A("s_nop 1"); A("v_cndmask_b32 v1, v1, v3, vcc")
        A(f"buffer_atomic_umax v{STV}, v1, s[4:7], 0 offen sc1")
        A(f"v_not_b32 v4, v{STV}")
        A("v_cmp_eq_u32 vcc, 1, v2"); A("s_nop 1"); A("v_cndmask_b32 v1, v3, 4, vcc")
        A(f"buffer_atomic_umax v4, v1, s[4:7], 0 offen sc1")
    return o

def kernel():
    pro, fifo, lf0 = prologue()
    _, _, lf = resolve(iteration(0, "x") + iteration(1, "x"), [])
    its = []
    for u in range(4):
        it, _, lf2 = resolve(iteration(u, f"L_r{u}"), [], lf)
        assert lf2 == lf
        its.append(it)
    assert len(lf0) >= len(lf) and lf0[len(lf0)-len(lf):] == lf or CFG["stamps"] or CFG.get("probe"), (lf0, lf)
    pe = peeled(lf)
    body = list(pro)
    body.append("L_loop:")
    for u in range(4):
        it = list(its[u])
        if u == 3:
            k = [i for i, x in enumerate(it) if x.startswith(MF)]
            it.insert(k[-3] + 1, f"s_cmp_lt_u32 {sr(sCNT)}, {NPASS}")
            it.insert(k[-4] + 1, f"s_add_u32 {sr(sCNT)}, {sr(sCNT)}, 1")
            it.append("s_cbranch_scc1 L_loop")
            its[3] = it
        body += it
    body += pe
    body += stamp_out()
    if CFG.get("fixdur"):
        body += ["L_fix:", "s_memrealtime s[40:41]", "s_waitcnt lgkmcnt(0)", "s_sub_u32 s40, s40, s42", f"s_cmp_lt_u32 s40, {int(CFG['fixdur'])*100}", "s_cbranch_scc1 L_fix"]
    body.append("L_end:")
    body.append("s_endpgm")
    for u in list(range(4)) + list(range(PEEL0, 15)):
        body += [f"L_r{u}a:", f"s_call_b64 {sr(sRET,2)}, L_ra{1 - u % 2}", f"s_branch L_r{u}a_back"]
        body += [f"L_r{u}b:", f"s_call_b64 {sr(sRET,2)}, L_rb", f"s_branch L_r{u}b_back"]
    body += ["L_cw:", f"s_mov_b32 {sr(sCNT)}, 0", "L_cw_loop:",
             f"v_and_b32 {vr(vCW)}, 3, v0", f"v_lshlrev_b32 {vr(vCW)}, 6, {vr(vCW)}",
             f"buffer_load_dword {vr(vCW)}, {vr(vCW)}, {sr(sDB,4)}, 0 offen sc1", "s_waitcnt vmcnt(0)",
             f"v_cmp_ne_u32 vcc, {sr(sT)}, {vr(vCW)}", "s_cbranch_vccz L_cw_back",
             f"s_add_u32 {sr(sCNT)}, {sr(sCNT)}, 1", f"s_cmp_lt_u32 {sr(sCNT)}, {CFG['spin']}", "s_cbranch_scc1 L_cw_loop",
             "s_branch L_cw_back"]
    if CFG.get("local"): body += ["L_pubg:", "buffer_wbl2 sc1", "s_waitcnt vmcnt(0)",
             f"buffer_store_dword {vr(vMX)}, {vr(vLIN)}, {sr(sFL,4)}, 0 offen sc1", "s_branch L_pubg_back"]
    if CFG.get("local"): body += ["L_acq:", "buffer_inv sc1", "s_waitcnt vmcnt(0)", "s_branch L_acq_back"]
    for k in STAGED:
        body += [f"L_e{k}:", f"s_mov_b32 {sr(sCNT)}, 0", f"L_e{k}_loop:",
                 f"buffer_load_dword {vr(vT+1)}, off, {sr(sFL,4)}, {sr(sTILE)} offset:16 sc1", "s_waitcnt vmcnt(0)",
                 f"v_cmp_ne_u32 vcc, 1, {vr(vT+1)}", f"s_cbranch_vccz L_e{k}_back",
                 f"s_add_u32 {sr(sCNT)}, {sr(sCNT)}, 1", f"s_cmp_lt_u32 {sr(sCNT)}, {CFG['spin']}", f"s_cbranch_scc1 L_e{k}_loop", f"s_branch L_e{k}_back"]
    for p in range(2): body += rare_a(p, f"L_ra{p}")
    body += rare_b("L_rb")
    loop = its[0] + its[1] + its[2] + its[3]
    check(pro + loop + loop + pe, "main")
    def with_rare(seq):
        o = []
        for x in seq:
            m = re.match(r"L_r(\d+)([ab])_back:", x)
            if m: o += (rare_a(1 - int(m.group(1)) % 2, "x") if m.group(2) == "a" else rare_b("x"))[1:]
            o.append(x)
        return o
    check(pro + with_rare(loop + pe), "rare")
    lastscc = None
    for x in body:
        op = x.split()[0] if x.split() else ""
        if op == "s_addc_u32": assert lastscc == "s_add_u32" and prev.startswith("s_add_u32"), (prev, x)
        if op in ("s_cselect_b32", "s_cbranch_scc0", "s_cbranch_scc1"): assert lastscc.startswith("s_cmp"), (lastscc, x)
        if op.startswith(("s_add", "s_sub", "s_and", "s_or", "s_xor", "s_lshl", "s_lshr", "s_cmp", "s_bfe", "s_min", "s_max", "s_not")): lastscc = op
        prev = x
    if CFG["verbose"]:
        for g in range(NG): print(g, PLAN[g])
    return "\n".join(body)

if __name__ == "__main__":
    k = kernel()
    txt = file_text([dict(label=NAME + "_kernel", body=k, grid=256, block=256, lds=163840, vgpr=512, accum=256)], single=True)
    open(sys.argv[1], "w").write(txt)
```

```python
import sys, math, struct, re
from asmlib import *
from check import check

CFG = dict(qst=False, stamps=False, codepf=True, warm=True, spin=200000, verbose=False)
for a in sys.argv[2:]:
    k, v = a.split("=")
    CFG[k] = {"0": False, "1": True}.get(v, v)

MF = "v_mfma_f32_16x16x32_bf16"
def vr(b, n=1): return f"v{b}" if n == 1 else f"v[{b}:{b+n-1}]"
def ar(b, n=1): return f"a{b}" if n == 1 else f"a[{b}:{b+n-1}]"
def sr(b, n=1): return f"s{b}" if n == 1 else f"s[{b}:{b+n-1}]"
def rr(r, n=1): return vr(r, n) if r < 256 else ar(r - 256, n)
def slots(t):
    if t.startswith(("v_exp", "v_rcp", "buffer_", "global_", "v_permlane")): return 2
    if t.startswith(("s_", "@", "L_")): return 0
    return 1

sX, sWQ, sK, sV, sO = 4, 8, 12, 16, 20
sWFL, sOL = 4, 8
sWAVE, sB, sH, sW4K, sW8K = 24, 25, 26, 27, 28
sCB, sMT, sNT = 29, 30, 31
sXO, sWO = 32, 40
sOUT, sFLR = 32, 36
sTILE, sCNT, sTHR, sSC, sSP = 44, 45, 46, 47, 48
sRET = 50
sTK, sROT, sRQ, sRX, sRW = 49, 92, 93, 94, 95
sW1K, sDT = 96, 97
sPF = 98
sPS, sPL, sPF2 = 80, 84, 76
sHO, sG = 29, 30
sRC = 93
sXCC, sGLB = 3, 94
sT = 52
sARG = 56
sFL, sDB, sDBW = 72, 76, 88
sWS2, sWO2 = 80, 84
vKA, vVA, vDK, vDV = 1, 5, 13, 17
vMX, vLIN, vCW, STV = 19, 21, 22, 23
vT = 24
vONES = 28
vNEG, vL, vQ, vS = 32, 48, 64, 128
vWA, vXA, vDX, vDW, vWOF = 64, 72, 76, 78, 80
vWOA, vWOS = 19, 20
vDUM = [22, 26, 27]
u0, u1, u2, u3, u4, u5, ln = 128, 129, 130, 131, 132, 133, 134
aO, aF = 0, 128
LK, LV, LW = 0, 65536, 131072
LX = [81920, 131072]
LWQ = [32768, 49152, 65536]
LWO = 114688
WOF_OFF, FLAG_OFF, PART_OFF, STAMP_OFF = 0x1000000, 0x1400000, 0x1800000, 0x4000000

def Ureg(p, ks, qb): return vS + 64 * p + 8 * (ks * 4 + qb)
def Sreg(p, kb, qb): return Ureg(p, kb // 2, qb) + 4 * (kb % 2)
def Oreg(qb, dt): return aO + 4 * (qb * 8 + dt)
def Qreg(qb, s): return vQ + 16 * qb + 4 * s
def Freg(n): return aF + 4 * n

nstamp = [0]
def stamp():
    if CFG.get("probe"):
        i = nstamp[0]; nstamp[0] += 1
        return ["s_memrealtime s[42:43]", "s_waitcnt lgkmcnt(0)"] if i == int(CFG["probe"][1:]) else []
    if not CFG["stamps"]: return []
    i = nstamp[0]; nstamp[0] += 1
    assert i < 30
    return ["s_memtime s[40:41]", "s_waitcnt lgkmcnt(0)", f"v_writelane_b32 v{STV}, s40, {2*i}",
            "s_memrealtime s[40:41]", "s_waitcnt lgkmcnt(0)", f"v_writelane_b32 v{STV}, s40, {2*i+1}"]

def srd(s, size):
    return [f"s_and_b32 {sr(s+1)}, {sr(s+1)}, 0xffff", f"s_mov_b32 {sr(s+2)}, {size}", f"s_mov_b32 {sr(s+3)}, 0x20000"]
def srd_at(s, arg, offreg, size):
    return [f"s_add_u32 {sr(s)}, {sr(sARG+arg)}, {offreg}", f"s_addc_u32 {sr(s+1)}, {sr(sARG+arg+1)}, 0"] + srd(s, size)

def tag(lst, t): return [(x + f" ; #{t}") if x.startswith(("buffer_", "global_")) and "#" not in x else x for x in lst]
def resolve(seq, fifo, lfifo=()):
    fifo = list(fifo); lf = list(lfifo); out = []
    def cut(f, n): return f[len(f) - n:] if 0 < n < len(f) else (f if n else [])
    for x in seq:
        if x.startswith("@wait"):
            parts = x.split()
            w = []
            idx = [i for i, t in enumerate(fifo) if t in parts[1].split(",")]
            if idx:
                n = min(63, len(fifo) - 1 - max(idx)); fifo = cut(fifo, n); w.append(f"vmcnt({n})")
            for p in parts[2:]:
                if p.startswith("vm="): n = int(p[3:]); fifo = cut(fifo, n); w.append(f"vmcnt({n})")
                if p.startswith("lgkm="): n = int(p[5:]); lf = cut(lf, n); w.append(f"lgkmcnt({n})")
                if p.startswith("lds="):
                    idx = [i for i, t in enumerate(lf) if t in p[4:].split(",")]
                    if idx:
                        n = min(15, len(lf) - 1 - max(idx)); lf = cut(lf, n); w.append(f"lgkmcnt({n})")
            if w: out.append("s_waitcnt " + " ".join(w))
            continue
        m = re.search(r"#(\S+)", x)
        if x.startswith(("buffer_", "global_")): fifo.append(m.group(1) if m else "?")
        if x.startswith("ds_"): lf.append(m.group(1) if m else "?")
        m = re.match(r"s_waitcnt.*vmcnt\((\d+)\)", x)
        if m: fifo = cut(fifo, int(m.group(1)))
        m = re.match(r"s_waitcnt.*lgkmcnt\((\d+)\)", x)
        if m: lf = cut(lf, int(m.group(1)))
        out.append(x)
    return out, fifo, lf

CONT = CFG.get("cont", False)
NOSWAP = CFG.get("noswap", True)
DIST = int(CFG.get("dist", 3))
def dma_k(p, soff):
    if CONT: return f"buffer_load_dwordx4 {vr(vDK)}, {sr(sK,4)}, {sr(sDT)} offen nt lds"
    return f"buffer_load_dwordx4 {vr(vDK+p)}, {sr(sK,4)}, {soff} offen offset:{1024*p} nt lds"
def dma_v(p, soff):
    if CONT: return f"buffer_load_dwordx4 {vr(vDV)}, {sr(sV,4)}, {sr(sDT)} offen nt lds"
    return f"buffer_load_dwordx4 {vr(vDV + p%2)}, {sr(sV,4)}, {soff} offen offset:{1024*p} nt lds"
def cont_pre(base, p, soff): return [f"s_add_u32 m0, {sr(sW1K)}, {base + p*4096}", f"s_add_u32 {sr(sDT)}, {soff}, {p*4096}"]
def m0_at(addr): return f"s_add_u32 m0, {sr(sW4K)}, {addr}"
def kv_batch(which, tile):
    out = [m0_at((LK + slotK(tile) * 16384 if which == "K" else LV + slotV(tile) * 16384)), f"s_add_u32 {sr(sT)}, {sr(sROT)}, {tile*16384}", f"s_and_b32 {sr(sT)}, {sr(sT)}, 0x3ffff"]
    for p in range(4):
        if CONT: out += cont_pre((LK if which == "K" else LV) + (tile % 4) * 16384, p, sr(sT))
        out.append(dma_k(p, sr(sT)) if which == "K" else dma_v(p, sr(sT)))
    return tag(out, f"{which}{tile}")

NPASS = int(CFG.get("npass", 3))
PEEL0 = 4 * NPASS
def slotK(t): return t % 4
def slotV(t): return t % 4
def rd_k(slot, n):
    kb, s = n // 4, n % 4
    return f"ds_read_b128 {ar(Freg(n),4)}, {vr(vKA+s)} offset:{slot*16384 + kb*4096} ; #k{n}"
def rd_v(slot, n, t):
    dt, ks = n // 2, n % 2
    return f"ds_read_b64_tr_b16 {ar(Freg(n)+2*t,2)}, {vr(vVA+dt)} offset:{slot*16384 + (32*ks+16*t)*256} ; #v{n}"

def qk_one(p, kb, qb, s, first, czero=False):
    d = Sreg(p, kb, qb)
    c = vr(d, 4) if not first else ("0" if czero else vr(vNEG + 4*qb, 4))
    return f"{MF} {vr(d,4)}, {ar(Freg(kb*4+s),4)}, {vr(Qreg(qb,s),4)}, {c}"
def qk_list(p):
    return [qk_one(p, kb, qb, (i if qb % 2 == 0 else 3 - i), i == 0) for kb in range(4) for qb in range(4) for i in range(4)]
def pv_one(p, dt, qb, ks):
    o = Oreg(qb, dt)
    return f"{MF} {ar(o,4)}, {ar(Freg(dt*2+ks),4)}, {vr(Ureg(p,ks,qb),4)}, {ar(o,4)}"
def sum_one(p, qb, ks):
    return f"{MF} {vr(vL+4*qb,4)}, {vr(vONES,4)}, {vr(Ureg(p,ks,qb),4)}, {vr(vL+4*qb,4)}"
def pv_list(p):
    return ([pv_one(p, dt, qb, (i if qb % 2 == 0 else 1 - i)) for dt in range(8) for qb in range(4) for i in range(2)]
            + [sum_one(p, qb, ks) for qb in range(4) for ks in range(2)])

UNITS = [(0, 0), (1, 0), (1, 1), (0, 1), (0, 2), (1, 2), (1, 3), (0, 3)]
def ereg(p, e): ks, qb = UNITS[e // 8]; return Ureg(p, ks, qb) + e % 8
def exp_i(p, e): r = ereg(p, e); return f"v_exp_f32 {vr(r)}, {vr(r)}"
def cvt_i(p, k):
    r = ereg(p, 2 * k); return f"v_cvt_pk_bf16_f32 {vr(r - (2*k) % 8 + k % 4)}, {vr(r)}, {vr(r+1)}"
def max_items(p):
    out = []
    for kb in range(4):
        for qb in range(4):
            r = Sreg(p, kb, qb); m = vr(vMX + qb % 2); done = 16 * kb + 4 * qb + 3
            if kb == 0 and qb < 2:
                out.append((f"v_max3_f32 {m}, {vr(r)}, {vr(r+1)}, {vr(r+2)}", done))
                out.append((f"v_max_f32 {m}, {vr(r+3)}, {m}", done))
            else:
                out.append((f"v_max3_f32 {m}, {vr(r)}, {vr(r+1)}, {m}", done))
                out.append((f"v_max3_f32 {m}, {vr(r+2)}, {vr(r+3)}, {m}", done))
    return out

NG = 136
HOOKA = 69
BARG = 118
LAT = 8
def make_plan():
    plan = {g: [] for g in range(NG)}
    T0 = HOOKA
    dsp = int(CFG.get("dsp", 14))
    dv0 = int(CFG.get("dv0", 72))
    dma_g = [4 + dsp * i for i in range(4)] + [dv0 + dsp * i for i in range(4)]
    dma_t = [g + NG if g < HOOKA else g for g in dma_g]
    NX2 = int(CFG.get('nx2', 40))
    r2 = [t for t in range(T0, NG) if t != BARG and t not in dma_t]
    r1 = [t for t in range(NG, NG + 64) if t not in dma_t]
    xt = [r2[i * len(r2) // NX2] for i in range(NX2)] + [r1[i * len(r1) // (64 - NX2)] for i in range(64 - NX2)]
    assert len(set(xt)) == 64
    for e, t in enumerate(xt): plan[t % NG].append(("exp", e, t >= NG))
    for i, t in enumerate(dma_t): plan[t % NG].append(("dma", i))
    Y = []
    for k in range(32):
        Y.append((xt[2*k+1] + 1, NG + 64 + k // 4 - 2, ("cvt", k)))
    for i, (_, done) in enumerate(max_items(0)):
        Y.append((NG + done + 3, NG + HOOKA - 3, ("max", i)))
    Y.append((NG + 66, NG + HOOKA - 2, ("max", 32))); Y.append((NG + 66, NG + HOOKA - 1, ("max", 33)))
    for n in range(16):
        Y.append((max(BARG + 1, 64 + 8 * (n // 2) + 7), NG + 16 * (n // 4) - LAT, ("k", n)))
    NV1 = int(CFG.get("nv1", 10))
    for n in range(16):
        e, d = 16 * (n // 4) + 15, min(64 + 8 * (n // 2) - LAT, BARG - 10)
        for t in range(2):
            if n < NV1: Y.append((NG + e, NG + min(d, HOOKA - 1), ("v", n, t)))
            else: Y.append((T0, d, ("v", n, t)))
    def kind(y): return y[2][0] + ("1" if y[2][0] == "v" and y[0] >= NG else "")
    ygaps = [t for t in range(T0, T0 + NG) if not plan[t % NG] and t % NG != BARG]
    pend = list(Y)
    for t in ygaps:
        g = t % NG
        picked = []
        for _ in range(2):
            heads = {}
            for y in pend: heads.setdefault(kind(y), y)
            c = [y for y in heads.values() if y[0] <= t]
            if not c: break
            def eff(y):
                same = [z for z in pend if kind(z) == kind(y)]
                return min(z[1] - i / 1.2 for i, z in enumerate(same))
            y = min(c, key=eff)
            assert t <= y[1], ("deadline miss", t, y)
            picked.append(y); pend.remove(y)
        picked.sort(key=lambda y: 0 if y[2][0] in ("k", "v") else 1)
        for y in picked: plan[g].append(y[2] + ((t >= NG,) if y[2][0] == "cvt" else ()))
    assert not pend, pend
    return plan
PLAN = make_plan()

def iteration(i, lab, loads=None, salu=()):
    assert DIST == 3 and not CONT
    p = i % 2
    steady = i < PEEL0
    sc = {g: [] for g in range(NG)}
    for kb in range(4): sc[16 * kb - 1 if kb else NG - 2].append(f"@wait - lds=" + ",".join(f"k{kb*4+s}" for s in range(4)))
    for dt in range(8):
        if 64 + 8 * dt - 1 < BARG - 1: sc[64 + 8 * dt - 1].append(f"@wait - lds=v{2*dt},v{2*dt+1}")
    sc[BARG - 1].append(f"@wait - vm={10 if i == 1 else (9 if i == 2 and CFG.get('repf', True) else 8)} lgkm=0" if steady else f"@wait K{i+2},V{i+1} lgkm=0")
    sc[BARG].append("s_barrier")
    if CFG.get("itst"):
        sc[BARG - 2].append("s_memrealtime s[40:41]")
        sc[BARG] += ["s_mov_b64 exec, s[42:43]", f"v_mov_b32 v{STV}, s40", "s_mov_b64 exec, -1", "s_lshl_b64 s[42:43], s[42:43], 1"]
    sc[HOOKA] += [f"s_cbranch_vccnz {lab}a", f"{lab}a_back:"]
    sc[NG - 1] = [f"s_cbranch_vccnz {lab}b", f"{lab}b_back:"] + sc[NG - 1]
    extra = {}
    vm = {}
    hask, hasv = i + 3 <= 15, i + 2 <= 15
    for j, g in enumerate(DMA_GAPS):
        if j < 4 and hask: vm[g] = [m0_at(LK + slotK(i + 3) * 16384), dma_k(j, sr(sTK)) + f" ; #K{i+3}"]
        if j >= 4 and hasv: vm[g] = [m0_at(LV + slotV(i + 2) * 16384), dma_v(j - 4, sr(sTILE)) + f" ; #V{i+2}"]
    sc[120].append(f"s_mov_b32 {sr(sTILE)}, {sr(sTK)}")
    sc[121].append(f"s_add_u32 {sr(sTK)}, {sr(sTK)}, 0x4000")
    sc[122].append(f"s_and_b32 {sr(sTK)}, {sr(sTK)}, 0x3ffff")
    if steady:
        if i == 1:
            extra[64] = [f"v_and_b32 {vr(vCW)}, 3, v0", f"v_lshlrev_b32 {vr(vCW)}, 6, {vr(vCW)}"]
            extra[65] = [f"buffer_load_dword {vr(vCW)}, {vr(vCW)}, {sr(sDB,4)}, 0 offen sc1"]
            sc[40].append(f"s_cmp_eq_u32 {sr(sCNT)}, {NPASS - 1}")
            sc[41].append(f"s_cselect_b32 {sr(sDB+2)}, 256, 0")
            extra[68] = [f"buffer_atomic_add {vr(vONES)}, {vr(vLIN)}, {sr(sDBW,4)}, 0 offen sc1"]
            sc[75].append(f"s_mov_b32 {sr(sDBW+2)}, 0")
        if i == 2 and CFG.get("repf", True):
            extra[64] = [f"v_and_b32 {vr(vT)}, 31, v0", f"v_lshlrev_b32 {vr(vT)}, 10, {vr(vT)}"]
            extra[65] = [f"v_add_u32 {vr(vT)}, {sr(sPF+2)}, {vr(vT)}", f"v_min_u32 {vr(vT)}, L_end-L_pc, {vr(vT)}"]
            extra[68] = [f"global_load_dword {ar(255)}, {vr(vT)}, {sr(sPF,2)}"]
    else:
        nextk = i + 2 <= 15
        def load(g):
            return sum(2 if it[0] == "exp" else (0 if it[0] == "dma" or (it[0] == "k" and g > BARG and not nextk) else 1) for it in PLAN[g])
        gs = 0
        for x in salu:
            if x.startswith("s_addc"):
                sc[gs - 1].append(x); continue
            while sc[gs] or gs in vm or gs + 1 in vm: gs += 1
            sc[gs].append(x); gs += 1
        for groups, lo, hi in loads:
            cand = [g for g in range(max(lo, gs + 3 if salu else 0), hi) if g not in vm and g not in (BARG, BARG - 1, HOOKA, NG - 1)]
            n = len(groups)
            for k, grp in enumerate(groups):
                win = cand[k * len(cand) // n:(k + 1) * len(cand) // n]
                vm[min(win, key=load)] = grp
    cur_m0 = None; prev = -1
    for g in sorted(vm):
        grp = vm[g]; sca = []
        for x in grp[:-1]:
            if x.startswith("s_add_u32 m0"):
                if x == cur_m0: continue
                cur_m0 = x
            sca.append(x)
        free = [q for q in range(prev + 1, g + 1) if not sc[q] and not (steady and q in (40, 41))]
        if sca and sca[-1].startswith("s_add_u32 m0"): free = [q for q in free if q < g]
        if len(free) >= len(sca):
            for x, q in zip(sca, free[len(free) - len(sca):]): sc[q].append(x)
        else:
            sc[g] += sca + ["s_nop 0"]
        prev = g
    mf = qk_list(1 - p) + pv_list(p)
    MX = [t for t, _ in max_items(1 - p)] + [f"v_max_f32 {vr(vMX)}, {vr(vMX)}, {vr(vMX+1)}", f"v_cmp_lt_f32 vcc, {sr(sTHR)}, {vr(vMX)}"]
    out = []
    for g in range(NG):
        out.append(mf[g])
        out += sc[g]
        ex = extra.get(g, [])
        out += [x for x in ex if not x.startswith("v_")]
        if g in vm: out.append(vm[g][-1])
        for it in PLAN[g]:
            k = it[0]
            if k == "exp": out.append(exp_i(p if it[2] else 1 - p, it[1]))
            elif k == "cvt": out.append(cvt_i(p if it[2] else 1 - p, it[1]))
            elif k == "max":
                if not CFG.get("nomax"): out.append(MX[it[1]])
            elif k == "k":
                t = i + (2 if g > BARG else 1)
                if t <= 15: out.append(rd_k(slotK(t), it[1]))
            elif k == "v": out.append(rd_v(slotV(i), it[1], it[2]))
        out += [x for x in ex if x.startswith("v_")]
        if CFG.get("slowdown") and g % int(CFG["slowdown"]) == 5: out.append("s_nop 7")
    return out
EARLY_K = [it[1] for g in range(BARG + 1, NG) for it in PLAN[g] if it[0] == "k"]
E_FIRST = [it for g in range(HOOKA, NG) for it in PLAN[g] if it[0] in ("exp", "cvt")]
E_REST = [it for g in range(0, HOOKA) for it in PLAN[g] if it[0] in ("exp", "cvt")]
DMA_GAPS = [g for g in range(NG) if any(it[0] == "dma" for it in PLAN[g])]
LIGHT = sorted(range(NG), key=lambda g: (sum(2 if it[0] in ("exp",) else (0 if it[0] == "dma" else 1) for it in PLAN[g])))

def spread(items, gaps):
    d = {}
    for i, it in enumerate(items):
        d.setdefault(gaps[i * len(gaps) // len(items)], []).extend(it)
    return d
def place(groups, lo, hi):
    cand = [g for g in LIGHT if lo <= g < hi and g not in (BARG, BARG - 1, HOOKA, NG - 1)]
    gs = sorted(cand[:len(groups)])
    assert len(gs) == len(groups)
    return {g: list(x) for g, x in zip(gs, groups)}
def merge(*maps):
    d = {}
    for m in maps:
        for k, v in m.items(): d.setdefault(k, []).extend(v)
    return d
def flat(G): return [x for g in G for x in g]
def groups_of(lst):
    G = []; cur = []
    for x in lst:
        cur.append(x)
        if x.startswith("buffer_"): G.append(cur); cur = []
    if cur: G[-1] += cur
    return G

WREG = []
WP = {}
for nm, base, n in (("R1", 256 + 192, 16), ("R2", vQ, 16), ("R4", vNEG, 4), ("R3", vS, 16), ("R5", 256 + aF, 12)):
    WP[nm] = list(range(len(WREG), len(WREG) + n)); WREG += [base + 4 * i for i in range(n)]
assert len(WREG) == 64
def wo_loads(name, sp=None):
    sp = sSP if sp is None else sp
    groups = []
    for f in WP[name]:
        g = [f"s_mov_b32 {sr(sp)}, {f * 1024}"] if f % 4 == 0 else []
        g.append(f"buffer_load_dwordx4 {rr(WREG[f], 4)}, {vr(vLIN)}, {sr(sWFL,4)}, {sr(sp)} offen offset:{(f%4)*1024} sc1 ; #w{f}")
        groups.append(g)
    return groups

def weave(mf, nvmap, va=(), pre=None, need=None):
    out = []; va = list(va)
    for g, m in enumerate(mf):
        if need and g in need:
            last = max([i for i, x in enumerate(va) if x[2] == need[g]], default=-1)
            if last >= 0:
                if va[last][1] > g - 1: out.append("s_nop 7")
                out += [x[0] for x in va[:last + 1]] + ["s_nop 1"]; va = va[last + 1:]
            elif any(x.startswith("v_") and not x.startswith("v_mfma") for x in out[-2:]): out.append("s_nop 1")
        if pre and g in pre: out += pre[g]
        out.append(m)
        nv = nvmap.get(g, [])
        out += nv
        c = sum(slots(x) for x in nv)
        while va and va[0][1] <= g and c + slots(va[0][0]) <= 2:
            c += slots(va[0][0]); out.append(va.pop(0)[0])
    return out, va

def allreduce(op, a, b):
    return [f"v_mov_b32 {vr(b)}, {vr(a)}", "s_nop 1", f"v_permlane32_swap_b32 {vr(a)}, {vr(b)}", "s_nop 1", f"{op} {vr(a)}, {vr(a)}, {vr(b)}",
            f"v_mov_b32 {vr(b)}, {vr(a)}", "s_nop 1", f"v_permlane16_swap_b32 {vr(a)}, {vr(b)}", "s_nop 1", f"{op} {vr(a)}, {vr(a)}, {vr(b)}"]
def qmax(p, qb, d):
    regs = [Sreg(p, kb, qb) + j for kb in range(4) for j in range(4)]
    o = [f"v_max3_f32 {vr(d)}, {vr(regs[0])}, {vr(regs[1])}, {vr(regs[2])}"]
    for i in range(3, 15, 2): o.append(f"v_max3_f32 {vr(d)}, {vr(regs[i])}, {vr(regs[i+1])}, {vr(d)}")
    o.append(f"v_max_f32 {vr(d)}, {vr(regs[15])}, {vr(d)}")
    return o
def rare_a(p, label):
    out = [f"{label}:", "s_nop 7"]
    for qb in range(4):
        d = vT + qb
        out += qmax(p, qb, d) + allreduce("v_max_f32", d, vMX)
        out.append(f"v_max_f32 {vr(d)}, 0, {vr(d)}")
        for j in range(4): out.append(f"v_sub_f32 {vr(vNEG+4*qb+j)}, {vr(vNEG+4*qb+j)}, {vr(d)}")
        for kb in range(4):
            for j in range(4):
                r = Sreg(p, kb, qb) + j
                out.append(f"v_sub_f32 {vr(r)}, {vr(r)}, {vr(d)}")
        out.append(f"v_exp_f32 {vr(d)}, -{vr(d)}")
    out += ["s_nop 3", f"s_setpc_b64 {sr(sRET,2)}"]
    return out
def rare_b(label):
    out = [f"{label}:", "s_nop 15"]
    for qb in range(4):
        f_ = vT + qb
        for j in range(4): out.append(f"v_mul_f32 {vr(vL+4*qb+j)}, {vr(vL+4*qb+j)}, {vr(f_)}")
        for j in range(0, 32, 2):
            a0 = Oreg(qb, 0) + j
            out += [f"v_accvgpr_read_b32 {vr(vMX)}, {ar(a0)}", f"v_accvgpr_read_b32 {vr(vMX+1)}, {ar(a0+1)}",
                    f"v_mul_f32 {vr(vMX)}, {vr(vMX)}, {vr(f_)}", f"v_mul_f32 {vr(vMX+1)}, {vr(vMX+1)}, {vr(f_)}",
                    f"v_accvgpr_write_b32 {ar(a0)}, {vr(vMX)}", f"v_accvgpr_write_b32 {ar(a0+1)}, {vr(vMX+1)}"]
    out += ["s_nop 3", f"s_setpc_b64 {sr(sRET,2)}"]
    return out

def wfrag(st, s, dt): return (128 if st % 2 == 0 else 192) + 4 * (dt * 2 + s)
def xfrag(st, s, qb): return (96 if st % 2 == 0 else 32) + 4 * (qb * 2 + s)
def qacc(qb, dt): return Ureg(dt // 4, (dt // 2) % 2, qb) + 4 * (dt % 2)
def qp_reads(st):
    out = []
    for qb in range(4):
        for s in range(2):
            out.append(f"ds_read_b128 {vr(xfrag(st,s,qb),4)}, {vr(vXA + 2*(st%2) + s)} offset:{qb*2048} ; #x{st}_{qb}")
    for dt in range(8):
        for s in range(2):
            for t in range(2):
                if NOSWAP: out.append(f"ds_read_b64_tr_b16 {ar(wfrag(st,s,dt)+2*t,2)}, {vr(vWA + dt//2)} offset:{(st%3)*16384 + (32*s+4*t)*256 + 8*(dt%2)} ; #w{st}_{dt}")
                else: out.append(f"ds_read_b64_tr_b16 {ar(wfrag(st,s,dt)+2*t,2)}, {vr(vWA + dt)} offset:{(st%3)*16384 + (32*s+4*t)*256} ; #w{st}_{dt}")
    return out
def qp_dma(st):
    G = []
    wf = (" " + CFG["wqld"]) if CFG.get("wqld") else ""
    xf = (" " + CFG["xld"]) if CFG.get("xld") else ""
    for p in range(4):
        g = []
        if p == 0:
            g = [f"s_add_u32 {sr(sRX)}, {sr(sRQ)}, {st}", f"s_and_b32 {sr(sRX)}, {sr(sRX)}, 7", f"s_lshl_b32 {sr(sRW)}, {sr(sRX)}, 19",
                 f"s_lshl_b32 {sr(sRX)}, {sr(sRX)}, 7", m0_at(LWQ[st % 3])]
        g.append(f"s_add_u32 {sr(sDT)}, {sr(sRW)}, {p*(32768-1024)}")
        g.append(f"buffer_load_dwordx4 {vr(vDW + p//2)}, {sr(sWQ,4)}, {sr(sDT)} offen offset:{1024*p}{wf} lds ; #st{st}")
        G.append(g)
    for p in range(8):
        g = [f"s_add_u32 m0, {sr(sW8K)}, {LX[st%2] + (p//4)*4096}"] if p % 4 == 0 else []
        g.append(f"s_add_u32 {sr(sDT)}, {sr(sRX)}, {p*8192 - 1024*(p%4)}")
        g.append(f"buffer_load_dwordx4 {vr(vDX + p%2)}, {sr(sX,4)}, {sr(sDT)} offen offset:{1024*(p%4)}{xf} lds ; #st{st}")
        G.append(g)
    return G
def qp_one(st, dt, qb, s, first):
    d = qacc(qb, dt)
    return f"{MF} {vr(d,4)}, {ar(wfrag(st,s,dt),4)}, {vr(xfrag(st,s,qb),4)}, {'0' if first else vr(d, 4)}"
def qp_mfmas(st):
    return [qp_one(st, dt, qb, (i if qb % 2 == 0 else 1 - i), st == 0 and i == 0) for dt in range(8) for qb in range(4) for i in range(2)]
def qp_q(st, qb):
    return [qp_one(st, dt, qb, (i if dt % 2 == 0 else 1 - i), False) for dt in range(8) for i in range(2)]
def qconv(qb, s):
    d = qacc(qb, 2 * s); q = Qreg(qb, s)
    out = [f"v_mul_f32 {vr(d+j)}, {sr(sSC)}, {vr(d+j)}" for j in range(8)]
    out += [f"v_cvt_pk_bf16_f32 {vr(q+j)}, {vr(d+2*j)}, {vr(d+2*j+1)}" for j in (0, 2, 1, 3)]
    return out, [f"v_permlane32_swap_b32 {vr(q)}, {vr(q+2)}", f"v_permlane32_swap_b32 {vr(q+1)}, {vr(q+3)}"], \
                [f"v_permlane16_swap_b32 {vr(q)}, {vr(q+2)}", f"v_permlane16_swap_b32 {vr(q+1)}, {vr(q+3)}"]
def qconv_stream(qb):
    parts = [qconv(qb, s) for s in range(4)]
    if NOSWAP: return [(x, s) for s in range(4) for x in parts[s][0]]
    out = []
    for s in range(4):
        a = parts[s][0]
        if s == 0: out += [(x, s) for x in a]
        else: out += [(x, s) for x in a[:4]] + [(x, s) for x in parts[s-1][1]] + [(x, s) for x in a[4:8]] + [(x, s) for x in parts[s-1][2]] + [(x, s) for x in a[8:]]
    out += [("s_nop 1", 3)] + [(x, 3) for x in parts[3][1]] + [("s_nop 1", 3)] + [(x, 3) for x in parts[3][2]]
    return out

def setup_a():
    o = []; A = o.append
    A("s_cmp_ge_u32 s2, 256")
    A("s_cbranch_scc1 L_end")
    if CFG.get("fixdur"): A("s_memrealtime s[42:43]")
    A(f"s_load_dwordx16 {sr(sARG,16)}, s[0:1], 0")
    if CFG["codepf"]:
        A(f"s_getpc_b64 {sr(sT,2)}")
        A("L_pc:")
        A(f"s_bfe_u32 {sr(sT+2)}, s2, 0x30003")
        A(f"v_lshrrev_b32 {vr(u0)}, 6, v0"); A(f"v_and_b32 {vr(u1)}, 15, v0"); A(f"v_lshl_add_u32 {vr(u0)}, {vr(u0)}, 4, {vr(u1)}")
        A(f"v_lshlrev_b32 {vr(u0)}, 10, {vr(u0)}"); A(f"s_lshl_b32 {sr(sT+2)}, {sr(sT+2)}, 7"); A(f"v_add_u32 {vr(u0)}, {sr(sT+2)}, {vr(u0)}")
        A(f"v_min_u32 {vr(u0)}, L_end-L_pc, {vr(u0)}")
        A(f"global_load_dword {vr(vDUM[0])}, {vr(u0)}, {sr(sT,2)} ; #pf")
        if CFG.get("repf", True):
            A(f"s_mov_b64 {sr(sPF,2)}, {sr(sT,2)}"); A(f"s_add_u32 {sr(sPF+2)}, {sr(sT+2)}, L_cw_back-L_pc")
    A(f"s_and_b32 {sr(sCB)}, s2, 7")
    A(f"s_lshr_b32 {sr(sT+3)}, s2, 3")
    A(f"s_and_b32 {sr(sMT)}, {sr(sT+3)}, 3"); A(f"s_lshr_b32 {sr(sNT)}, {sr(sT+3)}, 2")
    if CFG.get("pmap", "4x8") == "4x8":
        A(f"s_and_b32 {sr(sB)}, {sr(sCB)}, 1"); A(f"s_lshl_b32 {sr(sB)}, {sr(sB)}, 2"); A(f"s_add_u32 {sr(sB)}, {sr(sB)}, {sr(sMT)}")
        A(f"s_lshr_b32 {sr(sH)}, {sr(sCB)}, 1"); A(f"s_lshl_b32 {sr(sH)}, {sr(sH)}, 3"); A(f"s_add_u32 {sr(sH)}, {sr(sH)}, {sr(sNT)}")
    else:
        A(f"s_mov_b32 {sr(sB)}, {sr(sCB)}"); A(f"s_mov_b32 {sr(sH)}, {sr(sT+3)}")
    rq = CFG.get("rq", "x")
    if rq == "n": A(f"s_mov_b32 {sr(sRQ)}, 0")
    elif rq == "x": A(f"s_mov_b32 {sr(sRQ)}, {sr(sCB)}")
    elif rq == "h": A(f"s_mov_b32 {sr(sRQ)}, {sr(sH)}")
    elif rq == "f": A(f"s_lshl_b32 {sr(sRQ)}, {sr(sB)}, 1"); A(f"s_add_u32 {sr(sRQ)}, {sr(sRQ)}, {sr(sH)}")
    elif rq == "g": A(f"s_add_u32 {sr(sRQ)}, {sr(sB)}, {sr(sH)}")
    A(f"v_lshrrev_b32 {vr(u0)}, 6, v0")
    A(f"v_and_b32 {vr(ln)}, 63, v0")
    A(f"v_readfirstlane_b32 {sr(sWAVE)}, {vr(u0)}")
    A(f"v_lshrrev_b32 {vr(u1)}, 4, {vr(ln)}")
    A(f"v_and_b32 {vr(u2)}, 15, {vr(ln)}")
    A(f"v_lshl_add_u32 {vr(u4)}, {vr(u0)}, 4, {vr(u1)}")
    A(f"v_lshlrev_b32 {vr(u3)}, 1, {vr(u1)}")
    A(f"v_xor_b32 {vr(u3)}, {vr(u3)}, {vr(u2)}")
    A(f"v_lshlrev_b32 {vr(u5)}, 4, {vr(u3)}")
    A(f"v_lshl_add_u32 {vr(vDW)}, {vr(u4)}, 13, {vr(u5)}")
    A(f"v_xor_b32 {vr(vDW+1)}, 0x80, {vr(vDW)}")
    if NOSWAP:
        A(f"v_lshlrev_b32 {vr(u3)}, 2, {vr(u1)}"); A(f"v_xor_b32 {vr(u3)}, {vr(u3)}, {vr(u2)}"); A(f"v_lshlrev_b32 {vr(u3)}, 4, {vr(u3)}")
        A(f"v_lshl_add_u32 {vr(vDW)}, {vr(u4)}, 13, {vr(u3)}"); A(f"v_mov_b32 {vr(vDW+1)}, {vr(vDW)}")
    A(f"v_lshrrev_b32 {vr(u3)}, 3, {vr(ln)}")
    A(f"v_lshl_add_u32 {vr(u0)}, {vr(u0)}, 6, {vr(u3)}")
    A(f"v_and_b32 {vr(u3)}, 7, {vr(ln)}")
    A(f"v_xor_b32 {vr(u3)}, {vr(u1)}, {vr(u3)}")
    A(f"v_lshlrev_b32 {vr(u3)}, 4, {vr(u3)}")
    A(f"v_lshl_add_u32 {vr(vDX)}, {vr(u0)}, 10, {vr(u3)}")
    A(f"v_xor_b32 {vr(vDX+1)}, 64, {vr(vDX)}")
    A(f"s_lshl_b32 {sr(sW4K)}, {sr(sWAVE)}, 12")
    A(f"s_lshl_b32 {sr(sW8K)}, {sr(sWAVE)}, 13")
    A(f"s_lshl_b32 {sr(sT)}, {sr(sB)}, 18")
    A(f"s_lshl_b32 {sr(sT+1)}, {sr(sH)}, 8")
    A("s_waitcnt lgkmcnt(0)")
    o += stamp()
    o += srd_at(sWQ, 6, sr(sT+1), 511*8192 + 256)
    o += srd_at(sX, 0, sr(sT), 0x40000)
    return o

def wo_piece_addr():
    return [f"v_lshrrev_b32 {vr(u0)}, 5, v0", f"v_and_b32 {vr(u1)}, 0x1e, {vr(u0)}", f"v_and_b32 {vr(u0)}, 1, {vr(u0)}",
            f"v_lshl_add_u32 {vr(u0)}, {vr(u1)}, 2, {vr(u0)}",
            f"v_and_b32 {vr(u1)}, 31, v0", f"v_lshlrev_b32 {vr(u1)}, 4, {vr(u1)}", f"v_lshl_add_u32 {vr(vWOF)}, {vr(u0)}, 10, {vr(u1)}"]
def wo_piece_dma():
    o = [m0_at(LWO)]
    for p in range(4):
        o.append(f"s_mov_b32 {sr(sDT)}, {1024*p}")
        o.append(f"buffer_load_dwordx4 {vr(vWOF)}, {sr(sWO2,4)}, {sr(sDT)} offen offset:{1024*p} nt lds ; #wo")
    return o

def warm_loads(nst):
    o = []; A = o.append
    A(f"v_lshrrev_b32 {vr(u3)}, 6, v0"); A(f"v_and_b32 {vr(u2)}, 15, v0"); A(f"v_lshl_add_u32 {vr(u3)}, {vr(u3)}, 4, {vr(u2)}")
    A(f"v_and_b32 {vr(u1)}, {nst - 1}, {vr(u3)}"); A(f"v_add_u32 {vr(u1)}, {sr(sRQ)}, {vr(u1)}"); A(f"v_add_u32 {vr(u1)}, 1, {vr(u1)}")
    A(f"v_and_b32 {vr(u1)}, 7, {vr(u1)}")
    A(f"v_lshrrev_b32 {vr(u2)}, 1, {vr(u3)}")
    A(f"v_lshlrev_b32 {vr(u0)}, 7, {vr(u1)}"); A(f"v_lshl_add_u32 {vr(u0)}, {vr(u2)}, 10, {vr(u0)}")
    A(f"s_and_b32 {sr(sT)}, {sr(sH)}, 7"); A(f"s_lshl_b32 {sr(sT)}, {sr(sT)}, 15")
    A(f"buffer_load_dword {vr(vDUM[1])}, {vr(u0)}, {sr(sX,4)}, {sr(sT)} offen ; #warm")
    A(f"v_lshlrev_b32 {vr(u0)}, 19, {vr(u1)}")
    A(f"v_lshrrev_b32 {vr(u3)}, 1, {vr(u2)}"); A(f"v_lshl_add_u32 {vr(u0)}, {vr(u3)}, 13, {vr(u0)}")
    A(f"v_and_b32 {vr(u3)}, 1, {vr(u2)}"); A(f"v_lshl_add_u32 {vr(u0)}, {vr(u3)}, 7, {vr(u0)}")
    A(f"s_and_b32 {sr(sT)}, {sr(sB)}, 3"); A(f"s_lshl_b32 {sr(sT)}, {sr(sT)}, 17")
    A(f"buffer_load_dword {vr(vDUM[2])}, {vr(u0)}, {sr(sWQ,4)}, {sr(sT)} offen ; #warm")
    return o

def setup_b():
    o = []; A = o.append
    A(f"s_lshl_b32 {sr(sT+2)}, {sr(sB)}, 5"); A(f"s_add_u32 {sr(sT+2)}, {sr(sT+2)}, {sr(sH)}")
    A(f"s_lshl_b32 {sr(sT)}, {sr(sT+2)}, 18")
    o += srd_at(sK, 2, sr(sT), 0x40000)
    o += srd_at(sV, 4, sr(sT), 0x40000)
    A(f"s_lshl_b32 {sr(sT+1)}, {sr(sT+2)}, 7"); A(f"s_add_u32 {sr(sT+1)}, {sr(sT+1)}, {FLAG_OFF}")
    o += srd_at(sFL, 14, sr(sT+1), 32)
    A(f"s_getreg_b32 {sr(sXCC)}, hwreg(HW_REG_XCC_ID, 0, 4)")
    A(f"s_add_u32 {sr(sXCC)}, {sr(sXCC)}, 16")
    o += srd_at(sDB, 12, "0", 256)
    A(f"s_and_b32 {sr(sT+1)}, {sr(sT+2)}, 3"); A(f"s_lshl_b32 {sr(sT+1)}, {sr(sT+1)}, 6")
    o += srd_at(sDBW, 12, sr(sT+1), 4)
    A(f"s_lshr_b32 {sr(sT)}, {sr(sT+2)}, 1"); A(f"s_and_b32 {sr(sT+2)}, {sr(sT+2)}, 1")
    A(f"s_lshl_b32 {sr(sT+1)}, {sr(sT)}, 15"); A(f"s_lshl_b32 {sr(sT+3)}, {sr(sT+2)}, 9"); A(f"s_add_u32 {sr(sT+1)}, {sr(sT+1)}, {sr(sT+3)}")
    o += srd_at(sWO2, 8, sr(sT+1), 31*1024 + 512)
    A(f"s_lshl_b32 {sr(sT+2)}, {sr(sT+2)}, 2"); A(f"s_add_u32 {sr(sT+2)}, {sr(sT+2)}, {sr(sWAVE)}"); A(f"s_lshl_b32 {sr(sT+2)}, {sr(sT+2)}, 19")
    A(f"s_lshl_b32 {sr(sT)}, {sr(sT)}, 11"); A(f"s_add_u32 {sr(sT)}, {sr(sT)}, {sr(sT+2)}"); A(f"s_add_u32 {sr(sT)}, {sr(sT)}, {WOF_OFF}")
    o += srd_at(sWS2, 14, sr(sT), 262144 + 2048)
    A(f"s_lshl_b32 {sr(sT)}, {sr(sB)}, 2"); A(f"s_add_u32 {sr(sT)}, {sr(sT)}, {sr(sWAVE)}"); A(f"s_lshl_b32 {sr(sT)}, {sr(sT)}, 19")
    A(f"s_lshl_b32 {sr(sT+1)}, {sr(sH)}, 13"); A(f"s_add_u32 {sr(sT)}, {sr(sT)}, {sr(sT+1)}")
    o += srd_at(sO, 14, sr(sT), 262144 + 8192)
    if CFG.get("fewst"):
        A(f"s_cmp_eq_u32 {sr(sMT)}, 0"); A(f"s_cselect_b32 {sr(sO+2)}, {sr(sO+2)}, 0")
    rot = CFG.get("rot", "j")
    if rot == "j": A(f"s_lshr_b32 {sr(sROT)}, s2, 3"); A(f"s_add_u32 {sr(sROT)}, {sr(sROT)}, s2"); A(f"s_and_b32 {sr(sROT)}, {sr(sROT)}, 15"); A(f"s_lshl_b32 {sr(sROT)}, {sr(sROT)}, 14")
    else: A(f"s_mov_b32 {sr(sROT)}, 0")
    if CFG.get("itst"): A("s_mov_b32 s42, 0"); A("s_mov_b32 s43, 0x100")
    A(f"s_mov_b32 {sr(sTHR)}, 0x41000000")
    c = math.log2(math.e) / math.sqrt(128.0)
    A(f"s_mov_b32 {sr(sSC)}, 0x{struct.unpack('<I', struct.pack('<f', c))[0]:08x}")
    A(f"v_lshl_add_u32 {vr(vDV)}, {vr(u4)}, 8, {vr(u5)}")
    A(f"v_xor_b32 {vr(vDV+1)}, 0x80, {vr(vDV)}")
    g_, c16 = u1, u2
    A(f"v_lshrrev_b32 {vr(g_)}, 4, {vr(ln)}")
    A(f"v_and_b32 {vr(c16)}, 15, {vr(ln)}")
    A(f"v_xor_b32 {vr(u3)}, {vr(g_)}, {vr(c16)}")
    A(f"v_lshlrev_b32 {vr(u3)}, 4, {vr(u3)}")
    A(f"v_lshl_add_u32 {vr(vDK)}, {vr(u4)}, 8, {vr(u3)}")
    for p in range(1, 4): A(f"v_xor_b32 {vr(vDK+p)}, {64*p}, {vr(vDK)}")
    if CONT:
        A(f"s_lshl_b32 {sr(sW1K)}, {sr(sWAVE)}, 10")
        A(f"v_lshrrev_b32 {vr(vDK+1)}, 4, v0")
        A(f"v_xor_b32 {vr(vDK+2)}, {vr(vDK+1)}, {vr(c16)}"); A(f"v_lshlrev_b32 {vr(vDK+2)}, 4, {vr(vDK+2)}")
        A(f"v_lshl_add_u32 {vr(vDK)}, {vr(vDK+1)}, 8, {vr(vDK+2)}")
        A(f"v_and_b32 {vr(vDK+2)}, 7, {vr(vDK+1)}"); A(f"v_lshlrev_b32 {vr(vDK+2)}, 1, {vr(vDK+2)}")
        A(f"v_xor_b32 {vr(vDK+2)}, {vr(vDK+2)}, {vr(c16)}"); A(f"v_lshlrev_b32 {vr(vDK+2)}, 4, {vr(vDK+2)}")
        A(f"v_lshl_add_u32 {vr(vDV)}, {vr(vDK+1)}, 8, {vr(vDK+2)}")
    A(f"v_lshl_add_u32 {vr(vKA)}, {vr(c16)}, 8, {vr(u3)}")
    for s in range(1, 4): A(f"v_xor_b32 {vr(vKA+s)}, {64*s}, {vr(vKA)}")
    A(f"v_lshrrev_b32 {vr(u3)}, 1, {vr(c16)}")
    A(f"v_xor_b32 {vr(u3)}, {vr(g_)}, {vr(u3)}")
    A(f"v_lshlrev_b32 {vr(u3)}, 4, {vr(u3)}")
    A(f"v_lshl_add_u32 {vr(u3)}, {vr(c16)}, 7, {vr(u3)}")
    A(f"v_add_u32 {vr(u3)}, {sr(sW8K)}, {vr(u3)}")
    for sl in range(2):
        A(f"v_add_u32 {vr(vXA+2*sl)}, {LX[sl]}, {vr(u3)}")
        A(f"v_xor_b32 {vr(vXA+2*sl+1)}, 64, {vr(vXA+2*sl)}")
    A(f"v_cmp_eq_u32 vcc, 0, {vr(c16)}")
    A(f"v_mov_b32 {vr(u3)}, 0x3f803f80")
    r_, f_, c8 = u0, u4, u5
    A(f"v_bfe_u32 {vr(r_)}, {vr(ln)}, 2, 2")
    for j in range(4): A(f"v_cndmask_b32 {vr(vONES+j)}, 0, {vr(u3)}, vcc")
    A(f"v_bfe_u32 {vr(f_)}, {vr(ln)}, 2, 3")
    A(f"v_and_b32 {vr(c8)}, 3, {vr(ln)}")
    A(f"v_lshlrev_b32 {vr(c8)}, 3, {vr(c8)}")
    A(f"v_lshrrev_b32 {vr(u3)}, 2, {vr(ln)}")
    A(f"v_lshlrev_b32 {vr(vWOA)}, 9, {vr(u3)}")
    A(f"v_lshl_add_u32 {vr(vWOA)}, {vr(c8)}, 1, {vr(vWOA)}")
    A(f"s_lshl_b32 {sr(sT)}, {sr(sWAVE)}, 7"); A(f"s_add_u32 {sr(sT)}, {sr(sT)}, {LWO}")
    A(f"v_add_u32 {vr(vWOA)}, {sr(sT)}, {vr(vWOA)}")
    A(f"v_lshl_add_u32 {vr(c8)}, {vr(f_)}, 5, {vr(c8)}")
    A(f"v_lshl_add_u32 {vr(u3)}, {vr(u3)}, 8, {vr(c8)}")
    A(f"v_add_u32 {vr(vVA)}, {LV}, {vr(u3)}")
    for dt in range(1, 8): A(f"v_xor_b32 {vr(vVA+dt)}, {32*dt}, {vr(vVA)}")
    A(f"v_lshl_add_u32 {vr(u3)}, {vr(g_)}, 3, {vr(r_)}")
    A(f"v_lshl_add_u32 {vr(u3)}, {vr(u3)}, 8, {vr(c8)}")
    if NOSWAP:
        A(f"v_and_b32 {vr(u3)}, 0xff00, {vr(u3)}"); A(f"v_lshl_add_u32 {vr(u3)}, {vr(r_)}, 6, {vr(u3)}")
        A(f"v_and_b32 {vr(c8)}, 3, {vr(ln)}"); A(f"v_lshl_add_u32 {vr(u3)}, {vr(c8)}, 4, {vr(u3)}")
        A(f"v_add_u32 {vr(vWA)}, {LWQ[0]}, {vr(u3)}")
        for k in range(1, 4): A(f"v_xor_b32 {vr(vWA+k)}, {64*k}, {vr(vWA)}")
    else:
        A(f"v_add_u32 {vr(vWA)}, {LWQ[0]}, {vr(u3)}")
        for dt in range(1, 8): A(f"v_xor_b32 {vr(vWA+dt)}, {32*dt}, {vr(vWA)}")
    A(f"v_lshlrev_b32 {vr(vWOS)}, 4, {vr(ln)}")
    A(f"v_add_u32 {vr(vLIN)}, {sr(sW4K)}, {vr(vWOS)}")
    o += wo_piece_addr()
    return o

def wo_reads():
    return [f"ds_read_b64_tr_b16 {ar(192+4*i+2*tt,2)}, {vr(vWOA)} offset:{(i//2)*64 + (i%2)*8 + tt*8192} ; #wo" for i in range(4) for tt in range(2)]
def wo_stores():
    return [[f"s_mov_b32 {sr(sT)}, {(i//2)*262144}", f"buffer_store_dwordx4 {ar(192+4*i,4)}, {vr(vWOS)}, {sr(sWS2,4)}, {sr(sT)} offen offset:{(i%2)*1024} sc1 ; #wst"] for i in range(4)]

def pairs(lst): return [lst[i:i+2] for i in range(0, len(lst), 2)]
def prologue():
    qs = stamp if CFG["qst"] else (lambda: [])
    o = setup_a()
    o += flat(qp_dma(0))
    nw = int(CFG.get("nwarm", 2))
    o += (warm_loads(nw) if nw else [])
    o += qs()
    o += setup_b()
    pt = CFG.get("pt", "")
    def pretouch(j, kind):
        if kind == "st": return [f"s_mov_b32 {sr(sDT)}, {j * 262144}", f"buffer_store_dword {vr(vWOF+1)}, {vr(vWOF+1)}, {sr(sO,4)}, {sr(sDT)} offen sc1 ; #pt"]
        if kind == "at": return [f"s_mov_b32 {sr(sDT)}, {j * 262144}", f"buffer_atomic_or {vr(vWOF+1)}, {vr(vWOF+1)}, {sr(sO,4)}, {sr(sDT)} offen sc1 ; #pt"]
        return [f"s_mov_b32 {sr(sDT)}, {j * 262144}", f"buffer_load_dword {vr(vWOF+2+j)}, {vr(vWOF+1)}, {sr(sO,4)}, {sr(sDT)} offen sc1 ; #pt"]
    if pt: o += [f"v_lshlrev_b32 {vr(vWOF+1)}, 3, {vr(vWOS)}"]
    if pt and pt[2:] == "0": o += pretouch(0, pt[:2]) + pretouch(1, pt[:2])
    prek = [x for x in CFG.get("prek", "").split(",") if x]
    for n in prek: o += (wo_piece_dma() if n == "wo" else kv_batch(n[0], int(n[1:])))
    if CFG.get("kvtlb"):
        o += [f"buffer_load_dword {ar(0)}, off, {sr(sK,4)}, 0 nt ; #tl", f"buffer_load_dword {ar(1)}, off, {sr(sV,4)}, 0 nt ; #tl"]
    o += qs()
    o += ["@wait st0", "s_barrier"] + stamp()
    kv = lambda *l: groups_of(sum([kv_batch(x[0], int(x[1:])) for x in l], []))
    bg = [int(x) for x in CFG.get("bg", "38,38,38,38,30,10,-14").split(",")]
    step = float(CFG.get("qstep", 4))
    B = [64 * s + bg[s] for s in range(7)]
    seq = [(st, dt, qb) for st in range(6) for dt in range(8) for qb in range(4) for i in range(2)]
    mf = sum([qp_mfmas(st) for st in range(6)], [])
    for st, qb in ((6, 0), (6, 1), (7, 0), (7, 1), (6, 2), (6, 3), (7, 2), (7, 3)):
        mf += qp_q(st, qb); seq += [(st, dt, qb) for dt in range(8) for i in range(2)]
    Q0 = len(mf)
    mf += [qk_one(0, kb, qb, (i if kb % 2 == 0 else 3 - i), i == 0, czero=True) for qb in range(4) for kb in range(4) for i in range(4)]
    first = {}; last = {}
    for g, (st, dt, qb) in enumerate(seq):
        for t in (f"x{st}_{qb}", f"w{st}_{dt}"):
            first.setdefault(t, g); last[t] = g
    xt = lambda k: ",".join(f"x{k}_{q}" for q in range(4))
    wt = lambda k: ",".join(f"w{k}_{d}" for d in range(8))
    nvm = {}; pre = {}; vm = {}
    def put_vm(g, grp):
        while g in vm or g in B: g += 1
        vm[g] = grp; return g
    npre = int(CFG.get("npre", 16)); nd1 = int(CFG.get("nd1", 6))
    r0 = qp_reads(0); d1 = qp_dma(1)
    o += r0[:npre] + flat(d1[:nd1])
    pos = -2
    for grp in d1[nd1:]: pos += 3; put_vm(int(pos), grp)
    XW = int(CFG.get("xw", 18))
    ekp = [x for x in CFG.get("ekp", "").split(",") if x]
    ek = dict(x.split(":") for x in CFG.get("ek", "5:K0").split(",") if x)
    for k in range(2, 8):
        for i, grp in enumerate(qp_dma(k)):
            e = 0 if k == 2 else (B[k-3] + 1 if i < 4 else B[k-3] + XW)
            if k == 7 and i >= 4: e = max(e, 0)
            pos = max(pos + step, e)
            if i == 4: grp = [f"@wait - lds={xt(k-2)}"] + grp
            put_vm(int(pos), grp)
        for n in ekp:
            j = k - int(CFG.get("ekp0", 3))
            if 0 <= j < 4:
                G_ = groups_of(wo_piece_dma()) if n == "wo" else kv(n)
                head = G_[0][:-1] if n != "wo" else G_[0][:1]
                grp = head + (G_[j] if (j or n == "wo") else G_[0][-1:]) if not (n == "wo" and j == 0) else G_[0]
                pos += 4; put_vm(int(pos), grp)
        if pt and pt[2:] != "0" and k - int(pt[2:]) in (0, 2):
            pos += 3; put_vm(int(pos), pretouch((k - int(pt[2:])) // 2, pt[:2]))
        if str(k) in ek:
            for grp in (groups_of(wo_piece_dma()) if ek[str(k)] == "wo" else kv(ek[str(k)])):
                pos += 3; put_vm(int(pos), grp)
    kstep = float(CFG.get("kstep", 9))
    BK, BQ = 384 + 94, Q0 + 56
    sched = [("K0", 0), ("wo", 0), ("K1", 0), ("V0", B[5] + 1), ("K2", BK + 1), ("V1", BK + 1)]
    for n, e in sched:
        if n in ek.values() or n in prek or n in ekp: continue
        for grp in (groups_of(wo_piece_dma()) if n == "wo" else kv(n)):
            pos = max(pos + kstep, e)
            put_vm(int(pos), grp)
    assert pos < Q0 + 64, pos
    if CFG["verbose"]: print("vm gaps:", sorted(vm))
    items = [(0, x) for x in r0[npre:]]
    for st in range(1, 8): items += [(st, x) for x in qp_reads(st)]
    R = []
    for st, x in items:
        t = x.split("#")[1]
        e = 0 if st == 0 else B[st-1] + 1
        if st >= 2: e = max(e, last[t[0] + str(st - 2) + t[2:]])
        d = first[t] - LAT
        if st < 7: d = min(d, B[st] - 8)
        if t[0] == "x" and 1 <= st <= 5: d = min(d, B[st-1] + XW - 7)
        R.append([e, max(d, e), x])
    R.sort(key=lambda r: (r[1], r[0]))
    rstep = float(CFG.get("rstep", 1.3)); nxt = 0
    for g in range(Q0):
        if g in vm or g in B: continue
        k = 0
        while k < 2:
            c = [r for r in R if r[0] <= g]
            if not c: break
            urgent = any(r[1] - g < i * 1.3 + 1 for i, r in enumerate(c))
            if not urgent and (k == 1 or g < nxt): break
            nvm.setdefault(g, []).append(c[0][2]); R.remove(c[0]); k += 1; nxt = g + rstep
    assert not R, R[:3]
    for t, g in first.items():
        (nvm.setdefault(g - 1, []) if g else o).insert(0 if g else len(o), f"@wait - lds={t}")
    for s in range(7):
        pre.setdefault(B[s], []).append(f"@wait st{s+1} lds={xt(s)},{wt(s)}")
        nvm.setdefault(B[s], []).append("s_barrier")
        if CFG["qst"]: pre[64 * s] = qs() + pre.get(64 * s, [])
    nvm = merge(nvm, spread(pairs(wo_reads()), [g for g in range(Q0 + 1, Q0 + 12) if g not in vm]))
    pre.setdefault(BK, []).append("@wait K0,wo"); nvm.setdefault(BK, []).append("s_barrier")
    nvm = merge(nvm, spread(pairs([rd_k(0, n) for n in range(16)]), [g for g in range(384 + 96, 384 + 120) if g not in vm]))
    pre.setdefault(Q0, []).append("@wait - lgkm=0"); pre[Q0] = stamp() + pre[Q0]
    pre.setdefault(BQ, []).append("@wait K1,V0 lds=wo"); nvm.setdefault(BQ, []).append("s_barrier")
    nvm = merge(nvm, {Q0 + 57: [f"s_add_u32 {sr(sTILE)}, {sr(sROT)}, {(DIST-1)*16384}"], Q0 + 58: [f"s_and_b32 {sr(sTILE)}, {sr(sTILE)}, 0x3ffff"],
                      Q0 + 59: [f"s_add_u32 {sr(sTK)}, {sr(sROT)}, {DIST*16384}"], Q0 + 60: [f"s_and_b32 {sr(sTK)}, {sr(sTK)}, 0x3ffff"],
                      Q0 + 61: [f"s_mov_b32 {sr(sCNT)}, 0"]})
    for g in sorted(vm):
        grp = vm[g]; sca = grp[:-1]
        prevv = max([x for x in vm if x < g], default=-1)
        gg = g
        for x in reversed(sca):
            nvm.setdefault(gg, []).insert(0, x)
            if gg - 1 > prevv and gg > 0: gg -= 1
        nvm.setdefault(g, []).append(grp[-1])
    va = [(f"v_accvgpr_write_b32 {ar(r)}, 0", 0, "z") for r in list(range(2, 128)) + [0, 1]]
    done = {0: 384 + 32, 1: 384 + 48, 2: 384 + 96, 3: 384 + 112}
    for qb in range(4):
        va += [(t, done[qb] + 4 * s + 3 + 3, f"q{qb}") for t, s in qconv_stream(qb)]
    va += [(f"v_mov_b32 {vr(vL+j)}, 0", Q0, "z") for j in range(16)]
    def initq(qb):
        n = vNEG + 4 * qb
        l = qmax(0, qb, n)
        for sw in ("v_permlane32_swap_b32", "v_permlane16_swap_b32"):
            l += [f"v_mov_b32 {vr(n+1)}, {vr(n)}", "s_nop 1", f"{sw} {vr(n)}, {vr(n+1)}", f"v_max_f32 {vr(n)}, {vr(n)}, {vr(n+1)}"]
        l += [f"v_sub_f32 {vr(n+j)}, 0, {vr(n)}" for j in (3, 2, 1, 0)]
        for ks in range(2):
            r = Ureg(0, ks, qb)
            l += [f"v_add_f32 {vr(r+j)}, {vr(r+j)}, {vr(n + j % 2)}" for j in range(8)]
        return l
    for qb in range(4): va += [(t, Q0 + 16 * qb + 15 + 3, "i") for t in initq(qb)]
    part, left = weave(mf, nvm, va, pre=pre, need={Q0 + 16 * q: f"q{q}" for q in range(4)})
    for k in range(1, 6):
        assert max(i for i, x in enumerate(part) if f"#x{k}_" in x) < part.index(f"@wait - lds={xt(k)}"), k
    for k in range(0, 6):
        assert max(i for i, x in enumerate(part) if f"#w{k}_" in x) < part.index(f"@wait st{k+1} lds={xt(k)},{wt(k)}"), k
    o += part
    o += qs()
    o += [rd_k(1, n) for n in EARLY_K]
    o += [f"v_mov_b32 {vr(vT+j)}, {sr(sXCC) if j == 1 else 0}" for j in range(4)]
    o.append(f"buffer_store_dwordx4 {vr(vT,4)}, {vr(vLIN)}, {sr(sFL,4)}, 0 offen sc1 ; #wst")
    if CFG["verbose"]: print("QK0 leftover VALU:", len(left))
    ini = []
    lf_ = [t for t, _, _ in left]
    i = 0
    while i < len(lf_):
        m1 = re.match(r"v_add_f32 v(\d+), v\d+, v(\d+)", lf_[i])
        if m1 and int(m1.group(1)) % 2 == 0 and i + 1 < len(lf_) and lf_[i+1].startswith(f"v_add_f32 v{int(m1.group(1))+1},"):
            r = int(m1.group(1)); ini.append(f"v_pk_add_f32 {vr(r,2)}, {vr(r,2)}, {vr(int(m1.group(2)),2)}"); i += 2
        else: ini.append(lf_[i]); i += 1
    ex_ = [exp_i(0, it[1]) for it in E_FIRST if it[0] == "exp"]; cv_ = [cvt_i(0, it[1]) for it in E_FIRST if it[0] == "cvt"]
    ini += ex_ + cv_
    G = wo_stores() + (kv("K3", "V2") if DIST == 4 else [])
    for i, g in enumerate(G):
        k = (i + 1) * len(ini) // (len(G) + 1)
        ini = ini[:k] + g + ini[k:]
    o += ini
    if CFG.get("nomax"): o.append("s_mov_b64 vcc, 0")
    o.append("@wait - lds=k0,k1,k2,k3")
    o += stamp()
    o, fifo, lf = resolve(o, [])
    return o, fifo, lf

def phase_c_srds():
    o = []; A = o.append
    t0, t1, t2 = sT, sT + 1, sT + 2
    A(f"s_lshr_b32 {sr(sHO)}, {sr(sH)}, 3")
    A(f"s_mov_b32 {sr(sFL+2)}, 4")
    A(f"s_and_b32 {sr(t0)}, {sr(sH)}, 6"); A(f"s_lshl_b32 {sr(t0)}, {sr(t0)}, 1"); A(f"s_add_u32 {sr(t0)}, {sr(t0)}, {sr(sWAVE)}")
    A(f"s_lshl_b32 {sr(t0)}, {sr(t0)}, 18"); A(f"s_lshl_b32 {sr(t2)}, {sr(sHO)}, 16"); A(f"s_add_u32 {sr(t0)}, {sr(t0)}, {sr(t2)}")
    A(f"s_add_u32 {sr(t0)}, {sr(t0)}, {WOF_OFF}"); A(f"s_sub_u32 {sr(t0)}, {sr(t0)}, {sr(sW4K)}")
    o += srd_at(sWFL, 14, sr(t0), 65536 + 3 * 4096)
    A(f"s_and_b32 {sr(t0)}, {sr(sH)}, 1"); A(f"s_lshl_b32 {sr(t1)}, {sr(sB)}, 1"); A(f"s_add_u32 {sr(t0)}, {sr(t0)}, {sr(t1)}")
    A(f"s_lshl_b32 {sr(t1)}, {sr(t0)}, 20"); A(f"s_add_u32 {sr(t1)}, {sr(t1)}, {sr(t2)}")
    o += srd_at(sOL, 14, sr(t1), 3 * 262144 + 65536)
    A(f"s_lshl_b32 {sr(t0)}, {sr(t0)}, 17"); A(f"s_lshl_b32 {sr(t1)}, {sr(sHO)}, 15"); A(f"s_add_u32 {sr(t0)}, {sr(t0)}, {sr(t1)}")
    A(f"s_and_b32 {sr(t1)}, {sr(sH)}, 6"); A(f"s_lshl_b32 {sr(t1)}, {sr(t1)}, 7"); A(f"s_add_u32 {sr(t0)}, {sr(t0)}, {sr(t1)}")
    o += srd_at(sOUT, 10, sr(t0), 31 * 1024 + 256)
    A(f"s_lshl_b32 {sr(t0)}, {sr(sB)}, 12"); A(f"s_lshl_b32 {sr(t1)}, {sr(sHO)}, 10"); A(f"s_add_u32 {sr(t0)}, {sr(t0)}, {sr(t1)}")
    A(f"s_add_u32 {sr(t0)}, {sr(t0)}, {FLAG_OFF}")
    o += srd_at(sFLR, 14, sr(t0), 1024)
    A(f"s_and_b32 {sr(t0)}, {sr(sH)}, 7"); A(f"s_lshl_b32 {sr(t1)}, {sr(sB)}, 5"); A(f"s_add_u32 {sr(t0)}, {sr(t0)}, {sr(t1)}")
    A(f"s_lshl_b32 {sr(t1)}, {sr(t0)}, 16"); A(f"s_lshl_b32 {sr(t2)}, {sr(sHO)}, 14"); A(f"s_add_u32 {sr(t1)}, {sr(t1)}, {sr(t2)}")
    A(f"s_add_u32 {sr(t1)}, {sr(t1)}, {PART_OFF}")
    o += srd_at(sPS, 14, sr(t1), 3 * 524288 + 16384)
    A(f"s_lshl_b32 {sr(t1)}, {sr(t0)}, 7"); A(f"s_lshl_b32 {sr(t2)}, {sr(sHO)}, 2"); A(f"s_add_u32 {sr(t1)}, {sr(t1)}, {sr(t2)}")
    A(f"s_add_u32 {sr(t1)}, {sr(t1)}, {FLAG_OFF + 16}")
    o += srd_at(sPF2, 14, sr(t1), 4)
    A(f"s_lshl_b32 {sr(t1)}, {sr(sB)}, 5"); A(f"s_add_u32 {sr(t1)}, {sr(t1)}, {sr(sH)}"); A(f"s_lshl_b32 {sr(t1)}, {sr(t1)}, 16")
    A(f"s_add_u32 {sr(t1)}, {sr(t1)}, {PART_OFF}")
    o += srd_at(sPL, 14, sr(t1), 65536)
    return o

def tail_and_epilogue(u):
    p = u % 2
    o = []
    reads = [rd_v(slotV(15), n, t) for n in range(16) for t in range(2)]
    er = [(exp_i(p, it[1]), UNITS[it[1] // 8][1]) if it[0] == "exp" else (cvt_i(p, it[1]), UNITS[it[1] // 4][1]) for it in E_REST]
    va = []
    for i, (t, q) in enumerate(er):
        if t.startswith("v_cvt") and i and er[i-1][0].startswith("v_exp"): va.append(("s_nop 0", 0, f"e{q}"))
        va.append((t, 0, f"e{q}"))
    mf = []
    for qb in range(4):
        mf += [sum_one(p, qb, 0), sum_one(p, qb, 1)]
        mf += [pv_one(p, dt, qb, (i if dt % 2 == 0 else 1 - i)) for dt in range(8) for i in range(2)]
    vOST = vCW
    if CFG.get("local"): va.append((f"v_cmp_ne_u32 {sr(sGLB,2)}, {sr(sXCC)}, {vr(vCW)}", 0, "x"))
    va.append((f"v_and_b32 {vr(vOST)}, 0x3ff, {vr(vLIN)}", 0, "x"))
    tmp = 2
    NMF = len(mf)
    fill = {0: [], 1: [], 2: [], 3: []}
    tail_names = CFG.get("tailw", "R3").split(",")
    post_names = [x for x in ("R3", "R5") if x not in tail_names]
    for qb in range(4):
        e0 = 18 * qb
        lsum = [f"v_mov_b32 {vr(vT+qb)}, {vr(vL+4*qb)}"] + allreduce("v_add_f32", vT + qb, vMX) + [f"v_rcp_f32 {vr(vT+qb)}, {vr(vT+qb)}"]
        va += [(t, max(12, e0 + 1 + 3), f"o{qb}") for t in lsum]
        F = fill[qb]
        for s in range(4):
            e = e0 + 2 + 4 * s + 3 + 3
            b_ = tmp + 8 * (s % 2)
            va += [(f"v_accvgpr_read_b32 {vr(b_+j)}, {ar(Oreg(qb,2*s)+j)}", e, f"o{qb}") for j in range(8)]
            va += [(f"@mul {b_+j} {vT+qb}", e, f"o{qb}") for j in range(8)]
            d = Ureg(p, s // 2, qb) + 4 * (1 - s % 2)
            ee = e0 + 17 if s % 2 == 1 else e
            va += [(f"v_cvt_pk_bf16_f32 {vr(d+j)}, {vr(b_+2*j)}, {vr(b_+2*j+1)}", max(e, ee), f"o{qb}") for j in range(4)]
            ld = flat(F[s * len(F) // 4:(s + 1) * len(F) // 4])
            va += [(t, NMF - 1 if qb == 3 else e, f"o{qb}") for t in ld]
            va += [(f"s_mov_b32 {sr(sT)}, {(qb//2)*262144 + (s//2)*4096}", e, f"o{qb}"),
                   (f"buffer_store_dwordx4 {vr(d,4)}, {vr(vOST)}, {sr(sO,4)}, {sr(sT)} offen offset:{(s%2)*2048 + (qb%2)*1024} {CFG.get('ost', 'plain' if CFG.get('local') else 'sc1').replace('+', ' ').replace('plain', '')} ; #ost", e, f"o{qb}")]
    if CFG.get("tord", False):
        E = {q: [x for x in va if x[2] == f"e{q}"] for q in range(4)}
        X = [x for x in va if x[2] == "x"]
        O_ = {q: [x for x in va if x[2] == f"o{q}"] for q in range(4)}
        rest = E[0] + E[1] + E[2] + E[3]
        n0 = int(CFG.get("tn0", 10))
        head, rest = rest[:n0], rest[n0:]
        r2 = [x for x in rest if x[2] != "e3"]; r3 = [x for x in rest if x[2] == "e3"]
        va = X + head + O_[0] + r2 + O_[1] + r3 + O_[2] + O_[3]
    va = [((f"v_mul_f32 {vr(int(t.split()[1]))}, {vr(int(t.split()[1]))}, {vr(int(t.split()[2]))}" if t.startswith("@mul") else t), e, k) for t, e, k in va]
    o += reads[:12]
    nvm = spread(pairs(reads[12:]), list(range(0, 10)))
    pre = {2 + 2 * dt: [f"@wait - lds=v{2*dt},v{2*dt+1}"] for dt in range(8)}
    early = sum([wo_loads(x) for x in tail_names if x], [])
    if early: nvm = merge(nvm, spread(early, list(range(10, int(CFG.get("tailhi", 44)), 2))))
    part, left = weave(mf, nvm, va, pre=pre, need={18 * q: f"e{q}" for q in range(4)})
    o += part
    o += stamp()
    o.append("s_nop 7")
    lf_ = [t for t, _, _ in left]
    i = 0
    while i < len(lf_):
        m1 = re.match(r"v_mul_f32 v(\d+), v\d+, v(\d+)", lf_[i]); m2 = re.match(r"v_mul_f32 v(\d+), v\d+, v(\d+)", lf_[i+1]) if i + 1 < len(lf_) else None
        if m1 and m2 and int(m1.group(1)) % 2 == 0 and int(m2.group(1)) == int(m1.group(1)) + 1:
            r = int(m1.group(1)); f_ = int(m1.group(2))
            sel = "op_sel_hi:[1,0]" if f_ % 2 == 0 else "op_sel:[0,1] op_sel_hi:[1,1]"
            o.append(f"v_pk_mul_f32 {vr(r,2)}, {vr(r,2)}, {vr(f_ - f_ % 2,2)} {sel}"); i += 2
        else:
            o.append(lf_[i]); i += 1
    A = o.append
    A(f"v_mov_b32 {vr(vMX)}, 1")
    A(f"v_and_b32 {vr(vT)}, 7, v0"); A(f"v_lshlrev_b32 {vr(vT)}, 7, {vr(vT)}")
    A(f"v_add_u32 {vr(vKA)}, 0x10000, {vr(vOST)}")
    A(f"s_mov_b32 {sr(sCNT)}, 0")
    if CFG.get("forceglobal"): A(f"s_mov_b64 {sr(sGLB,2)}, -1")
    if CFG.get("local"): A(f"s_and_b32 {sr(sGLB)}, {sr(sGLB)}, 0xff"); A(f"s_cmp_lg_u32 {sr(sGLB)}, 0")
    A("@wait ost")
    A("s_barrier")
    if CFG.get("local"): A("s_cbranch_scc1 L_pubg")
    A(f"buffer_store_dword {vr(vMX)}, {vr(vLIN)}, {sr(sFL,4)}, 0 offen {CFG.get('flagst', '' if CFG.get('local') else 'sc1')} ; #flag")
    A("L_pubg_back:")
    o += stamp()
    post = sum([wo_loads(x) for x in post_names], [])
    k1 = int(CFG.get("pollat", 8))
    o += flat(post[:k1])
    A(f"buffer_load_dword {vr(vT+1)}, {vr(vT)}, {sr(sFLR,4)}, 0 offen sc1 ; #poll1")
    o += flat(post[k1:])
    A("@wait poll1")
    A(f"v_cmp_ne_u32 vcc, 1, {vr(vT+1)}")
    A("s_cbranch_vccz L_go")
    A("L_poll:")
    A(f"buffer_load_dword {vr(vT+1)}, {vr(vT)}, {sr(sFLR,4)}, 0 offen {CFG.get('pollld', 'sc1').replace('+', ' ')} ; #poll")
    A("s_waitcnt vmcnt(0)")
    A(f"v_cmp_ne_u32 vcc, 1, {vr(vT+1)}")
    A("s_cbranch_vccz L_go")
    A(f"s_add_u32 {sr(sCNT)}, {sr(sCNT)}, 1")
    A(f"s_cmp_lt_u32 {sr(sCNT)}, {CFG['spin']}")
    A("s_cbranch_scc1 L_poll")
    A("L_go:")
    if CFG.get("local"): A(f"s_cmp_lg_u32 {sr(sGLB)}, 0"); A("s_cbranch_scc1 L_acq")
    A("L_acq_back:")
    o += stamp()
    return o

STAGED = []
def phase_c():
    o = []; A = o.append
    vOST = vCW
    D = int(CFG.get("cdist", 4))
    LAND, OWN = vS + 64, vS + 64 + 48
    def acc(k, q2, t): return (256 + 64 + 16 * k if k < 3 else OWN) + 4 * (q2 * 2 + t)
    def gsel(k, dst, sh): return [f"s_add_u32 {sr(dst)}, {sr(sHO)}, {k + 1}", f"s_and_b32 {sr(dst)}, {sr(dst)}, 3", f"s_lshl_b32 {sr(dst)}, {sr(dst)}, {sh}"]
    def dma(ch):
        G = []
        for p in range(4):
            g = []
            if p == 0:
                if ch % 4 == 0: g += gsel(ch // 4, sG, 18)
                g += [f"s_add_u32 {sr(sSP)}, {sr(sG)}, {(ch % 4) * 16384}", m0_at((ch % 8) * 16384), "s_nop 0"]
            g.append(f"buffer_load_dwordx4 {vr(vLIN)}, {sr(sOL,4)}, {sr(sSP)} offen offset:{p*1024} sc1 lds ; #c{ch}")
            G.append(g)
        return G
    def ofr(u, kl, q2): return 256 + 32 * (u % 2) + 4 * (kl * 2 + q2)
    def reads(u):
        ch = u // 2; base = (ch % 8) * 16384 + (u % 2) * 8192
        return [f"ds_read_b128 {rr(ofr(u,kl,q2),4)}, {vr(vKA if base >= 65536 else vOST)} offset:{base % 65536 + (kl*2+q2)*1024} ; #u{u}_{q2}" for q2 in range(2) for kl in range(4)]
    for ch in range(D): o += flat(dma(ch))
    o += ["@wait c0", "s_barrier"] + stamp() + reads(0)
    mf = []; nvm = {}; pre = {}; vm = {}
    nxc = [D]
    PB = CFG.get("pb16", True)
    vac = []
    for u in range(32):
        k = u // 8
        for j, (q2, t) in enumerate(((0, 0), (0, 1), (1, 1), (1, 0))):
            for i in range(4):
                kl = i if j % 2 == 0 else 3 - i
                f = ((u % 8) * 4 + kl) * 2 + t
                d = rr(acc(k, q2, t), 4)
                mf.append(f"{MF} {d}, {rr(WREG[f],4)}, {rr(ofr(u,kl,q2),4)}, {d if (u % 8 or i) else 0}")
        g0 = 16 * u
        (nvm.setdefault(g0 - 1, []) if u else o).append(f"@wait - lds=u{u}_0")
        nvm.setdefault(g0 + 7, []).append(f"@wait - lds=u{u}_1")
        if u + 1 < 32:
            if u % 2 == 1:
                tags = f"c{u // 2 + 1}"
                fl = int(CFG.get("pfl", 2))
                kk = [x for x in range(3) if 4 * (x + 1) + fl - 1 == u // 2]
                if kk: tags += f",p{kk[0]}"
                pre.setdefault(g0, []).append(f"@wait {tags}")
                nvm.setdefault(g0, []).append("s_barrier")
                if kk:
                    vm[g0 + 13] = gsel(kk[0], sT, 10) + [f"s_add_u32 {sr(sPF2+2)}, {sr(sT)}, 4",
                                   f"buffer_store_dword {vr(vMX)}, {vr(vLIN)}, {sr(sPF2,4)}, {sr(sT)} offen sc1 ; #pf"]
            r = reads(u + 1)
            for j, g in enumerate((1, 2, 4, 5) if False else (1, 3, 6, 8)): nvm.setdefault(g0 + g, []).extend(r[2*j:2*j+2])
        if u % 2 == 0:
            D2 = int(CFG.get("cdist2", D))
            n2 = 2 if nxc[0] + 1 <= u // 2 + D2 and nxc[0] + 1 < 16 else (1 if nxc[0] < 16 else 0)
            G_ = sum([dma(nxc[0] + j) for j in range(n2)], []); nxc[0] += n2
            for grp, g in zip(G_, (5, 12, 21, 28) if n2 == 1 else (2, 5, 9, 12, 20, 23, 27, 30)): vm[g0 + g] = [x for x in grp if x != "s_nop 0"]
        if u % 8 == 0 and u:
            kk = k - 1
            if PB:
                for q2 in range(2):
                    a0 = acc(kk, q2, 0) - 256
                    vac += [(f"v_accvgpr_read_b32 {vr(vL + j)}, {ar(a0 + j)}", g0 + 2, "p") for j in range(8)]
                    vac += [(f"v_cvt_pk_bf16_f32 {vr(vL + 8 + 4*q2 + j)}, {vr(vL + 2*j)}, {vr(vL + 2*j + 1)}", g0 + 2, "p") for j in range(4)]
                    vac += [(x, g0 + 2, "p") for x in (gsel(kk, sTK, 19) if q2 == 0 else [])]
                    vac += [(f"buffer_store_dwordx4 {vr(vL + 8 + 4*q2, 4)}, {vr(vLIN)}, {sr(sPS,4)}, {sr(sTK)} offen offset:{q2*1024} sc1 ; #p{kk}", g0 + 2, "p")]
            else:
                for j, g in enumerate((10, 14, 18, 26)):
                    while g0 + g in vm: g += 1
                    vm[g0 + g] = (gsel(kk, sTK, 19) if j == 0 else []) + [f"buffer_store_dwordx4 {rr(acc(kk, j // 2, j % 2), 4)}, {vr(vLIN)}, {sr(sPS,4)}, {sr(sTK)} offen offset:{j*1024} sc1 ; #p{kk}"]
    STAGED.clear()
    ep = [int(x) for x in CFG.get("ep", "7,11").split(",") if x]
    for n, ch in enumerate(ep):
        k = 2 - n
        g0 = 32 * ch
        vm[g0 + 9] = gsel(k, sTILE, 2) + [f"buffer_load_dword {vr(vT+1)}, off, {sr(sFL,4)}, {sr(sTILE)} offset:16 sc1 ; #e{k}"]
        g1 = g0 + 32 + 16 + 9
        nvm.setdefault(g1, []).extend([f"@wait e{k}", f"v_cmp_ne_u32 vcc, 1, {vr(vT+1)}"])
        nvm.setdefault(g1 + 1, []).extend([f"s_cbranch_vccnz L_e{k}", f"L_e{k}_back:"])
        for j, g in enumerate((g1 + 5, g1 + 9, g1 + 11, g1 + 17)[:2 if PB else 4]):
            while g in vm: g += 1
            vm[g] = ([f"s_lshl_b32 {sr(sTILE)}, {sr(sTILE)}, 12"] if j == 0 else []) + [f"buffer_load_dwordx4 {vr(LAND + 16*k + 4*j, 4)}, {vr(vLIN)}, {sr(sPL,4)}, {sr(sTILE)} offen offset:{j*1024} sc1 ; #l{k}"]
        STAGED.append(k)
    nvm.setdefault(2, []).insert(0, f"s_mov_b32 {sr(sFL+2)}, 32")
    prev = -1
    for g in sorted(vm):
        grp = vm[g]; sca = grp[:-1]
        lo = max([prev] + [q for q in range(g) if any(x.startswith("L_e") for x in nvm.get(q, []))])
        free = [q for q in range(lo + 1, g) if not any(x.startswith(("s_", "@")) for x in nvm.get(q, []))]
        if len(free) >= len(sca):
            for x, q in zip(sca, free[len(free) - len(sca):]): nvm.setdefault(q, []).insert(0, x)
        else: nvm[g - 1] = sca + nvm.get(g - 1, [])
        nvm.setdefault(g, []).append(grp[-1]); prev = g
    nl = 3 - len(STAGED)
    ad = [f"v_and_b32 {vr(vT)}, 3, v0", f"v_min_u32 {vr(vT)}, {nl - 1}, {vr(vT)}", f"v_add_u32 {vr(vT)}, {sr(sHO)}, {vr(vT)}", f"v_add_u32 {vr(vT)}, 1, {vr(vT)}",
          f"v_and_b32 {vr(vT)}, 3, {vr(vT)}", f"v_lshlrev_b32 {vr(vT)}, 2, {vr(vT)}",
          "v_and_b32 v7, 15, v0", "v_lshrrev_b32 v8, 4, v0", "v_lshlrev_b32 v8, 4, v8", "v_lshl_add_u32 v14, v7, 10, v8"]
    lastpoll = int(CFG.get("lp", 500))
    nvm.setdefault(lastpoll, []).append(f"buffer_load_dword {vr(vT+1)}, {vr(vT)}, {sr(sFL,4)}, 0 offen offset:16 sc1 ; #lp")
    part, lft = weave(mf, nvm, [(x, 20, "a") for x in ad] + vac, pre=pre)
    assert not lft
    o += part
    o += stamp()
    A(f"s_mov_b32 {sr(sCNT)}, 0")
    A("@wait lp")
    A(f"v_cmp_ne_u32 vcc, 1, {vr(vT+1)}")
    A("s_cbranch_vccz L_go2")
    A("L_poll2:")
    A(f"buffer_load_dword {vr(vT+1)}, {vr(vT)}, {sr(sFL,4)}, 0 offen offset:16 sc1")
    A("s_waitcnt vmcnt(0)")
    A(f"v_cmp_ne_u32 vcc, 1, {vr(vT+1)}")
    A("s_cbranch_vccz L_go2")
    A(f"s_add_u32 {sr(sCNT)}, {sr(sCNT)}, 1")
    A(f"s_cmp_lt_u32 {sr(sCNT)}, {CFG['spin']}")
    A("s_cbranch_scc1 L_poll2")
    A("L_go2:")
    o += stamp()
    for k in range(nl):
        o += gsel(k, sT, 14)
        for j in range(2 if PB else 4): A(f"buffer_load_dwordx4 {vr(LAND + 16*k + 4*j, 4)}, {vr(vLIN)}, {sr(sPL,4)}, {sr(sT)} offen offset:{j*1024} sc1 ; #l{k}")
    for k in (2, 1, 0):
        A(f"@wait l{k}")
        if PB:
            for j in reversed(range(8)):
                A(f"v_and_b32 {vr(LAND+16*k+2*j+1)}, 0xffff0000, {vr(LAND+16*k+j)}")
                A(f"v_lshlrev_b32 {vr(LAND+16*k+2*j)}, 16, {vr(LAND+16*k+j)}")
        for j in range(0, 16, 2): A(f"v_pk_add_f32 {vr(OWN+j,2)}, {vr(OWN+j,2)}, {vr(LAND+16*k+j,2)}")
    A(f"s_mov_b32 {sr(sT)}, 16384")
    for q2 in range(2):
        for j in range(4): A(f"v_cvt_pk_bf16_f32 {vr(LAND + 4*q2 + j)}, {vr(OWN + 8*q2 + 2*j)}, {vr(OWN + 8*q2 + 2*j + 1)}")
        A(f"buffer_store_dwordx4 {vr(LAND + 4*q2, 4)}, v14, {sr(sOUT,4)}, {sr(sT) if q2 else 0} offen {CFG.get('outst', 'plain').replace('+', ' ').replace('plain', '')}")
    return o

def peeled(lf):
    o = [f"s_mov_b32 {sr(sT)}, 0xe00fe000", f"v_cmp_ne_u32 vcc, {sr(sT)}, {vr(vCW)}", "s_cbranch_vccnz L_cw", "L_cw_back:"]
    for i in range(PEEL0, 15):
        loads = []
        tp = CFG.get("tpol", "nt").replace("+", " ")
        def touch(j, half):
            return [f"s_mov_b32 {sr(sDT)}, {j * 262144 + half * 4096}", f"s_mov_b32 {sr(sO+2)}, {j * 262144 + half * 4096 + 4096}",
                    f"buffer_load_dword {ar(240 + 2*j + half)}, {vr(vCW)}, {sr(sO,4)}, {sr(sDT)} offen {tp} ; #tch"]
        T = [touch(j, h_) for j in range(2) for h_ in range(2)] if CFG.get("local") and tp != "none" else []
        tsch = [int(x) for x in CFG.get("tsch", "13,13,13,13").split(",")]
        mine = [t for t, k in zip(T, tsch) if k == i]
        if i == 12 and CFG.get("local"):
            ids = [[f"v_and_b32 {vr(vCW)}, 63, v0", f"v_lshlrev_b32 {vr(vCW)}, 7, {vr(vCW)}", f"s_nop 0",
                    f"buffer_load_dword {ar(239)}, {vr(vCW)}, {sr(sFLR,4)}, 0 offen offset:4 sc1 ; #ids"]]
            loads = [(ids + mine, 0, NG)]
        if i == 12 and CFG.get("wtouch", False) and not CFG.get("local"):
            loads = [([[f"v_and_b32 {vr(vCW)}, 63, v0", f"v_lshlrev_b32 {vr(vCW)}, 7, {vr(vCW)}",
                        f"s_and_b32 {sr(sDT)}, {sr(sB)}, 3", f"s_lshl_b32 {sr(sDT)}, {sr(sDT)}, 1", f"s_and_b32 {sr(sT)}, {sr(sH)}, 1", f"s_add_u32 {sr(sDT)}, {sr(sDT)}, {sr(sT)}",
                        f"s_lshl_b32 {sr(sDT)}, {sr(sDT)}, 13", f"s_add_u32 {sr(sDT)}, {sr(sDT)}, {sr(sW4K)}",
                        f"buffer_load_dword {vr(vCW)}, {vr(vCW)}, {sr(sWFL,4)}, {sr(sDT)} offen sc1 ; #wt"]], int(CFG.get("wtat", 119)), NG)]
        r1at = int(CFG.get("r1at", 14))
        if i == 13:
            g = mine + (wo_loads("R1")[:8] if r1at == 13 else [])
            if not CFG.get("local"): g = wo_loads("R1")
            loads = [(g, int(CFG.get("r1lo", 0)), NG)] if g else []
        if i == 14:
            loads = [(wo_loads("R2") + wo_loads("R4"), 64, NG)]
            if CFG.get("local"):
                chk = [f"@wait ids,tch", f"v_accvgpr_read_b32 {vr(vCW)}, {ar(239)}"]
                r1 = wo_loads("R1")[(8 if r1at == 13 else 0):]
                k8 = len(r1) - 8
                r1[k8] = chk + r1[k8]
                loads.insert(0, (r1, 0, 64))
        o += iteration(i, f"L_r{i}", loads, phase_c_srds() if i == PEEL0 else ())
    o += stamp()
    o += tail_and_epilogue(3)
    o += phase_c()
    fifo = [f"K{PEEL0+2}"] * 4 + [f"V{PEEL0+1}"] * 4
    if CFG.get("skipst"): o = [x for x in o if "#ost" not in x]
    if CFG.get("skipp"): o = [x for x in o if not re.search(r"#p\d", x)]
    o, _, _ = resolve(o, fifo, lf)
    return o

def stamp_out():
    if not CFG["stamps"]: return []
    o = ["s_waitcnt vmcnt(0)"] + stamp()
    A = o.append
    A(f"s_lshl_b32 {sr(sT)}, s2, 10"); A(f"s_add_u32 {sr(sT)}, {sr(sT)}, {STAMP_OFF}")
    o += srd_at(4, 14, sr(sT), 1024)
    A("v_lshlrev_b32 v1, 2, v0")
    A(f"buffer_store_dword v{STV}, v1, s[4:7], 0 offen")
    if CFG.get("dbgout"):
        o += srd_at(4, 12, "0", 64)
        A("v_and_b32 v2, 63, v0")
        A("v_lshlrev_b32 v1, 1, v2"); A("v_add_u32 v1, 6, v1")
        A("v_and_b32 v3, 1, v2"); A("v_cmp_eq_u32 vcc, 0, v3"); A("v_mov_b32 v3, 0x1000"); A("s_nop 1")
        A("v_cndmask_b32 v1, v1, v3, vcc")
        A(f"v_cmp_lt_u32 vcc, {2*nstamp[0]}, v2"); A("s_nop 1"); A("v_cndmask_b32 v1, v1, v3, vcc")
        A(f"buffer_atomic_umax v{STV}, v1, s[4:7], 0 offen sc1")
        A(f"v_not_b32 v4, v{STV}")
        A("v_cmp_eq_u32 vcc, 1, v2"); A("s_nop 1"); A("v_cndmask_b32 v1, v3, 4, vcc")
        A(f"buffer_atomic_umax v4, v1, s[4:7], 0 offen sc1")
    return o

def kernel():
    pro, fifo, lf0 = prologue()
    _, _, lf = resolve(iteration(0, "x") + iteration(1, "x"), [])
    its = []
    for u in range(4):
        it, _, lf2 = resolve(iteration(u, f"L_r{u}"), [], lf)
        assert lf2 == lf
        its.append(it)
    assert len(lf0) >= len(lf) and lf0[len(lf0)-len(lf):] == lf or CFG["stamps"] or CFG.get("probe"), (lf0, lf)
    pe = peeled(lf)
    body = list(pro)
    body.append("L_loop:")
    for u in range(4):
        it = list(its[u])
        if u == 3:
            k = [i for i, x in enumerate(it) if x.startswith(MF)]
            it.insert(k[-3] + 1, f"s_cmp_lt_u32 {sr(sCNT)}, {NPASS}")
            it.insert(k[-4] + 1, f"s_add_u32 {sr(sCNT)}, {sr(sCNT)}, 1")
            it.append("s_cbranch_scc1 L_loop")
            its[3] = it
        body += it
    body += pe
    body += stamp_out()
    if CFG.get("fixdur"):
        body += ["L_fix:", "s_memrealtime s[40:41]", "s_waitcnt lgkmcnt(0)", "s_sub_u32 s40, s40, s42", f"s_cmp_lt_u32 s40, {int(CFG['fixdur'])*100}", "s_cbranch_scc1 L_fix"]
    body.append("L_end:")
    body.append("s_endpgm")
    for u in list(range(4)) + list(range(PEEL0, 15)):
        body += [f"L_r{u}a:", f"s_call_b64 {sr(sRET,2)}, L_ra{1 - u % 2}", f"s_branch L_r{u}a_back"]
        body += [f"L_r{u}b:", f"s_call_b64 {sr(sRET,2)}, L_rb", f"s_branch L_r{u}b_back"]
    body += ["L_cw:", f"s_mov_b32 {sr(sCNT)}, 0", "L_cw_loop:",
             f"v_and_b32 {vr(vCW)}, 3, v0", f"v_lshlrev_b32 {vr(vCW)}, 6, {vr(vCW)}",
             f"buffer_load_dword {vr(vCW)}, {vr(vCW)}, {sr(sDB,4)}, 0 offen sc1", "s_waitcnt vmcnt(0)",
             f"v_cmp_ne_u32 vcc, {sr(sT)}, {vr(vCW)}", "s_cbranch_vccz L_cw_back",
             f"s_add_u32 {sr(sCNT)}, {sr(sCNT)}, 1", f"s_cmp_lt_u32 {sr(sCNT)}, {CFG['spin']}", "s_cbranch_scc1 L_cw_loop",
             "s_branch L_cw_back"]
    if CFG.get("local"): body += ["L_pubg:", "buffer_wbl2 sc1", "s_waitcnt vmcnt(0)",
             f"buffer_store_dword {vr(vMX)}, {vr(vLIN)}, {sr(sFL,4)}, 0 offen sc1", "s_branch L_pubg_back"]
    if CFG.get("local"): body += ["L_acq:", "buffer_inv sc1", "s_waitcnt vmcnt(0)", "s_branch L_acq_back"]
    for k in STAGED:
        body += [f"L_e{k}:", f"s_mov_b32 {sr(sCNT)}, 0", f"L_e{k}_loop:",
                 f"buffer_load_dword {vr(vT+1)}, off, {sr(sFL,4)}, {sr(sTILE)} offset:16 sc1", "s_waitcnt vmcnt(0)",
                 f"v_cmp_ne_u32 vcc, 1, {vr(vT+1)}", f"s_cbranch_vccz L_e{k}_back",
                 f"s_add_u32 {sr(sCNT)}, {sr(sCNT)}, 1", f"s_cmp_lt_u32 {sr(sCNT)}, {CFG['spin']}", f"s_cbranch_scc1 L_e{k}_loop", f"s_branch L_e{k}_back"]
    for p in range(2): body += rare_a(p, f"L_ra{p}")
    body += rare_b("L_rb")
    loop = its[0] + its[1] + its[2] + its[3]
    check(pro + loop + loop + pe, "main")
    def with_rare(seq):
        o = []
        for x in seq:
            m = re.match(r"L_r(\d+)([ab])_back:", x)
            if m: o += (rare_a(1 - int(m.group(1)) % 2, "x") if m.group(2) == "a" else rare_b("x"))[1:]
            o.append(x)
        return o
    check(pro + with_rare(loop + pe), "rare")
    lastscc = None
    for x in body:
        op = x.split()[0] if x.split() else ""
        if op == "s_addc_u32": assert lastscc == "s_add_u32" and prev.startswith("s_add_u32"), (prev, x)
        if op in ("s_cselect_b32", "s_cbranch_scc0", "s_cbranch_scc1"): assert lastscc.startswith("s_cmp"), (lastscc, x)
        if op.startswith(("s_add", "s_sub", "s_and", "s_or", "s_xor", "s_lshl", "s_lshr", "s_cmp", "s_bfe", "s_min", "s_max", "s_not")): lastscc = op
        prev = x
    if CFG["verbose"]:
        for g in range(NG): print(g, PLAN[g])
    return "\n".join(body)

if __name__ == "__main__":
    k = kernel()
    txt = file_text([dict(label=NAME + "_kernel", body=k, grid=256, block=256, lds=163840, vgpr=512, accum=256)], single=True)
    open(sys.argv[1], "w").write(txt)
```

```python
import sys, math, struct, re
from asmlib import *
from check import check

CFG = dict(qst=False, stamps=False, codepf=True, warm=True, spin=200000, verbose=False)
for a in sys.argv[2:]:
    k, v = a.split("=")
    CFG[k] = {"0": False, "1": True}.get(v, v)

MF = "v_mfma_f32_16x16x32_bf16"
def vr(b, n=1): return f"v{b}" if n == 1 else f"v[{b}:{b+n-1}]"
def ar(b, n=1): return f"a{b}" if n == 1 else f"a[{b}:{b+n-1}]"
def sr(b, n=1): return f"s{b}" if n == 1 else f"s[{b}:{b+n-1}]"
def rr(r, n=1): return vr(r, n) if r < 256 else ar(r - 256, n)
def slots(t):
    if t.startswith(("v_exp", "v_rcp", "buffer_", "global_", "v_permlane")): return 2
    if t.startswith(("s_", "@", "L_")): return 0
    return 1

sX, sWQ, sK, sV, sO = 4, 8, 12, 16, 20
sWFL, sOL = 4, 8
sWAVE, sB, sH, sW4K, sW8K = 24, 25, 26, 27, 28
sCB, sMT, sNT = 29, 30, 31
sXO, sWO = 32, 40
sOUT, sFLR = 32, 36
sTILE, sCNT, sTHR, sSC, sSP = 44, 45, 46, 47, 48
sRET = 50
sTK, sROT, sRQ, sRX, sRW = 49, 92, 93, 94, 95
sW1K, sDT = 96, 97
sPF = 98
sPS, sPL, sPF2 = 80, 84, 76
sHO, sG = 29, 30
sRC = 93
sXCC, sGLB = 3, 94
sT = 52
sARG = 56
sFL, sDB, sDBW = 72, 76, 88
sWS2, sWO2 = 80, 84
vKA, vVA, vDK, vDV = 1, 5, 13, 17
vMX, vLIN, vCW, STV = 19, 21, 22, 23
vT = 24
vONES = 28
vNEG, vL, vQ, vS = 32, 48, 64, 128
vWA, vXA, vDX, vDW, vWOF = 64, 72, 76, 78, 80
vWOA, vWOS = 19, 20
vDUM = [22, 26, 27]
u0, u1, u2, u3, u4, u5, ln = 128, 129, 130, 131, 132, 133, 134
aO, aF = 0, 128
LK, LV, LW = 0, 65536, 131072
LX = [81920, 131072]
LWQ = [32768, 49152, 65536]
LWO = 114688
WOF_OFF, FLAG_OFF, PART_OFF, STAMP_OFF = 0x1000000, 0x1400000, 0x1800000, 0x4000000

def Ureg(p, ks, qb): return vS + 64 * p + 8 * (ks * 4 + qb)
def Sreg(p, kb, qb): return Ureg(p, kb // 2, qb) + 4 * (kb % 2)
def Oreg(qb, dt): return aO + 4 * (qb * 8 + dt)
def Qreg(qb, s): return vQ + 16 * qb + 4 * s
def Freg(n): return aF + 4 * n

nstamp = [0]
def stamp():
    if CFG.get("probe"):
        i = nstamp[0]; nstamp[0] += 1
        return ["s_memrealtime s[42:43]", "s_waitcnt lgkmcnt(0)"] if i == int(CFG["probe"][1:]) else []
    if not CFG["stamps"]: return []
    i = nstamp[0]; nstamp[0] += 1
    assert i < 30
    return ["s_memtime s[40:41]", "s_waitcnt lgkmcnt(0)", f"v_writelane_b32 v{STV}, s40, {2*i}",
            "s_memrealtime s[40:41]", "s_waitcnt lgkmcnt(0)", f"v_writelane_b32 v{STV}, s40, {2*i+1}"]

def srd(s, size):
    return [f"s_and_b32 {sr(s+1)}, {sr(s+1)}, 0xffff", f"s_mov_b32 {sr(s+2)}, {size}", f"s_mov_b32 {sr(s+3)}, 0x20000"]
def srd_at(s, arg, offreg, size):
    return [f"s_add_u32 {sr(s)}, {sr(sARG+arg)}, {offreg}", f"s_addc_u32 {sr(s+1)}, {sr(sARG+arg+1)}, 0"] + srd(s, size)

def tag(lst, t): return [(x + f" ; #{t}") if x.startswith(("buffer_", "global_")) and "#" not in x else x for x in lst]
def resolve(seq, fifo, lfifo=()):
    fifo = list(fifo); lf = list(lfifo); out = []
    def cut(f, n): return f[len(f) - n:] if 0 < n < len(f) else (f if n else [])
    for x in seq:
        if x.startswith("@wait"):
            parts = x.split()
            w = []
            idx = [i for i, t in enumerate(fifo) if t in parts[1].split(",")]
            if idx:
                n = min(63, len(fifo) - 1 - max(idx)); fifo = cut(fifo, n); w.append(f"vmcnt({n})")
            for p in parts[2:]:
                if p.startswith("vm="): n = int(p[3:]); fifo = cut(fifo, n); w.append(f"vmcnt({n})")
                if p.startswith("lgkm="): n = int(p[5:]); lf = cut(lf, n); w.append(f"lgkmcnt({n})")
                if p.startswith("lds="):
                    idx = [i for i, t in enumerate(lf) if t in p[4:].split(",")]
                    if idx:
                        n = min(15, len(lf) - 1 - max(idx)); lf = cut(lf, n); w.append(f"lgkmcnt({n})")
            if w: out.append("s_waitcnt " + " ".join(w))
            continue
        m = re.search(r"#(\S+)", x)
        if x.startswith(("buffer_", "global_")): fifo.append(m.group(1) if m else "?")
        if x.startswith("ds_"): lf.append(m.group(1) if m else "?")
        m = re.match(r"s_waitcnt.*vmcnt\((\d+)\)", x)
        if m: fifo = cut(fifo, int(m.group(1)))
        m = re.match(r"s_waitcnt.*lgkmcnt\((\d+)\)", x)
        if m: lf = cut(lf, int(m.group(1)))
        out.append(x)
    return out, fifo, lf

CONT = CFG.get("cont", False)
NOSWAP = CFG.get("noswap", True)
DIST = int(CFG.get("dist", 3))
def dma_k(p, soff):
    if CONT: return f"buffer_load_dwordx4 {vr(vDK)}, {sr(sK,4)}, {sr(sDT)} offen nt lds"
    return f"buffer_load_dwordx4 {vr(vDK+p)}, {sr(sK,4)}, {soff} offen offset:{1024*p} nt lds"
def dma_v(p, soff):
    if CONT: return f"buffer_load_dwordx4 {vr(vDV)}, {sr(sV,4)}, {sr(sDT)} offen nt lds"
    return f"buffer_load_dwordx4 {vr(vDV + p%2)}, {sr(sV,4)}, {soff} offen offset:{1024*p} nt lds"
def cont_pre(base, p, soff): return [f"s_add_u32 m0, {sr(sW1K)}, {base + p*4096}", f"s_add_u32 {sr(sDT)}, {soff}, {p*4096}"]
def m0_at(addr): return f"s_add_u32 m0, {sr(sW4K)}, {addr}"
def kv_batch(which, tile):
    out = [m0_at((LK + slotK(tile) * 16384 if which == "K" else LV + slotV(tile) * 16384)), f"s_add_u32 {sr(sT)}, {sr(sROT)}, {tile*16384}", f"s_and_b32 {sr(sT)}, {sr(sT)}, 0x3ffff"]
    for p in range(4):
        if CONT: out += cont_pre((LK if which == "K" else LV) + (tile % 4) * 16384, p, sr(sT))
        out.append(dma_k(p, sr(sT)) if which == "K" else dma_v(p, sr(sT)))
    return tag(out, f"{which}{tile}")

NPASS = int(CFG.get("npass", 3))
PEEL0 = 4 * NPASS
def slotK(t): return t % 4
def slotV(t): return t % 4
def rd_k(slot, n):
    kb, s = n // 4, n % 4
    return f"ds_read_b128 {ar(Freg(n),4)}, {vr(vKA+s)} offset:{slot*16384 + kb*4096} ; #k{n}"
def rd_v(slot, n, t):
    dt, ks = n // 2, n % 2
    return f"ds_read_b64_tr_b16 {ar(Freg(n)+2*t,2)}, {vr(vVA+dt)} offset:{slot*16384 + (32*ks+16*t)*256} ; #v{n}"

def qk_one(p, kb, qb, s, first, czero=False):
    d = Sreg(p, kb, qb)
    c = vr(d, 4) if not first else ("0" if czero else vr(vNEG + 4*qb, 4))
    return f"{MF} {vr(d,4)}, {ar(Freg(kb*4+s),4)}, {vr(Qreg(qb,s),4)}, {c}"
def qk_list(p):
    return [qk_one(p, kb, qb, (i if qb % 2 == 0 else 3 - i), i == 0) for kb in range(4) for qb in range(4) for i in range(4)]
def pv_one(p, dt, qb, ks):
    o = Oreg(qb, dt)
    return f"{MF} {ar(o,4)}, {ar(Freg(dt*2+ks),4)}, {vr(Ureg(p,ks,qb),4)}, {ar(o,4)}"
def sum_one(p, qb, ks):
    return f"{MF} {vr(vL+4*qb,4)}, {vr(vONES,4)}, {vr(Ureg(p,ks,qb),4)}, {vr(vL+4*qb,4)}"
def pv_list(p):
    return ([pv_one(p, dt, qb, (i if qb % 2 == 0 else 1 - i)) for dt in range(8) for qb in range(4) for i in range(2)]
            + [sum_one(p, qb, ks) for qb in range(4) for ks in range(2)])

UNITS = [(0, 0), (1, 0), (1, 1), (0, 1), (0, 2), (1, 2), (1, 3), (0, 3)]
def ereg(p, e): ks, qb = UNITS[e // 8]; return Ureg(p, ks, qb) + e % 8
def exp_i(p, e): r = ereg(p, e); return f"v_exp_f32 {vr(r)}, {vr(r)}"
def cvt_i(p, k):
    r = ereg(p, 2 * k); return f"v_cvt_pk_bf16_f32 {vr(r - (2*k) % 8 + k % 4)}, {vr(r)}, {vr(r+1)}"
def max_items(p):
    out = []
    for kb in range(4):
        for qb in range(4):
            r = Sreg(p, kb, qb); m = vr(vMX + qb % 2); done = 16 * kb + 4 * qb + 3
            if kb == 0 and qb < 2:
                out.append((f"v_max3_f32 {m}, {vr(r)}, {vr(r+1)}, {vr(r+2)}", done))
                out.append((f"v_max_f32 {m}, {vr(r+3)}, {m}", done))
            else:
                out.append((f"v_max3_f32 {m}, {vr(r)}, {vr(r+1)}, {m}", done))
                out.append((f"v_max3_f32 {m}, {vr(r+2)}, {vr(r+3)}, {m}", done))
    return out

NG = 136
HOOKA = 69
BARG = 118
LAT = 8
def make_plan():
    plan = {g: [] for g in range(NG)}
    T0 = HOOKA
    dsp = int(CFG.get("dsp", 14))
    dv0 = int(CFG.get("dv0", 72))
    dma_g = [4 + dsp * i for i in range(4)] + [dv0 + dsp * i for i in range(4)]
    dma_t = [g + NG if g < HOOKA else g for g in dma_g]
    NX2 = int(CFG.get('nx2', 40))
    r2 = [t for t in range(T0, NG) if t != BARG and t not in dma_t]
    r1 = [t for t in range(NG, NG + 64) if t not in dma_t]
    xt = [r2[i * len(r2) // NX2] for i in range(NX2)] + [r1[i * len(r1) // (64 - NX2)] for i in range(64 - NX2)]
    assert len(set(xt)) == 64
    for e, t in enumerate(xt): plan[t % NG].append(("exp", e, t >= NG))
    for i, t in enumerate(dma_t): plan[t % NG].append(("dma", i))
    Y = []
    for k in range(32):
        Y.append((xt[2*k+1] + 1, NG + 64 + k // 4 - 2, ("cvt", k)))
    for i, (_, done) in enumerate(max_items(0)):
        Y.append((NG + done + 3, NG + HOOKA - 3, ("max", i)))
    Y.append((NG + 66, NG + HOOKA - 2, ("max", 32))); Y.append((NG + 66, NG + HOOKA - 1, ("max", 33)))
    for n in range(16):
        Y.append((max(BARG + 1, 64 + 8 * (n // 2) + 7), NG + 16 * (n // 4) - LAT, ("k", n)))
    NV1 = int(CFG.get("nv1", 10))
    for n in range(16):
        e, d = 16 * (n // 4) + 15, min(64 + 8 * (n // 2) - LAT, BARG - 10)
        for t in range(2):
            if n < NV1: Y.append((NG + e, NG + min(d, HOOKA - 1), ("v", n, t)))
            else: Y.append((T0, d, ("v", n, t)))
    def kind(y): return y[2][0] + ("1" if y[2][0] == "v" and y[0] >= NG else "")
    ygaps = [t for t in range(T0, T0 + NG) if not plan[t % NG] and t % NG != BARG]
    pend = list(Y)
    for t in ygaps:
        g = t % NG
        picked = []
        for _ in range(2):
            heads = {}
            for y in pend: heads.setdefault(kind(y), y)
            c = [y for y in heads.values() if y[0] <= t]
            if not c: break
            def eff(y):
                same = [z for z in pend if kind(z) == kind(y)]
                return min(z[1] - i / 1.2 for i, z in enumerate(same))
            y = min(c, key=eff)
            assert t <= y[1], ("deadline miss", t, y)
            picked.append(y); pend.remove(y)
        picked.sort(key=lambda y: 0 if y[2][0] in ("k", "v") else 1)
        for y in picked: plan[g].append(y[2] + ((t >= NG,) if y[2][0] == "cvt" else ()))
    assert not pend, pend
    return plan
PLAN = make_plan()

def iteration(i, lab, loads=None, salu=(), fixed=None):
    assert DIST == 3 and not CONT
    p = i % 2
    steady = i < PEEL0
    sc = {g: [] for g in range(NG)}
    for kb in range(4): sc[16 * kb - 1 if kb else NG - 2].append(f"@wait - lds=" + ",".join(f"k{kb*4+s}" for s in range(4)))
    for dt in range(8):
        if 64 + 8 * dt - 1 < BARG - 1: sc[64 + 8 * dt - 1].append(f"@wait - lds=v{2*dt},v{2*dt+1}")
    sc[BARG - 1].append(f"@wait - vm={10 if i == 1 else (9 if i == 2 and CFG.get('repf', True) else 8)} lgkm=0" if steady else f"@wait K{i+2},V{i+1} lgkm=0")
    sc[BARG].append("s_barrier")
    if CFG.get("itst"):
        sc[BARG - 2].append("s_memrealtime s[40:41]")
        sc[BARG] += ["s_mov_b64 exec, s[42:43]", f"v_mov_b32 v{STV}, s40", "s_mov_b64 exec, -1", "s_lshl_b64 s[42:43], s[42:43], 1"]
    sc[HOOKA] += [f"s_cbranch_vccnz {lab}a", f"{lab}a_back:"]
    sc[NG - 1] = [f"s_cbranch_vccnz {lab}b", f"{lab}b_back:"] + sc[NG - 1]
    extra = dict(fixed or {})
    vm = {}
    hask, hasv = i + 3 <= 15, i + 2 <= 15
    for j, g in enumerate(DMA_GAPS):
        if j < 4 and hask: vm[g] = [m0_at(LK + slotK(i + 3) * 16384), dma_k(j, sr(sTK)) + f" ; #K{i+3}"]
        if j >= 4 and hasv: vm[g] = [m0_at(LV + slotV(i + 2) * 16384), dma_v(j - 4, sr(sTILE)) + f" ; #V{i+2}"]
    sc[120].append(f"s_mov_b32 {sr(sTILE)}, {sr(sTK)}")
    sc[121].append(f"s_add_u32 {sr(sTK)}, {sr(sTK)}, 0x4000")
    sc[122].append(f"s_and_b32 {sr(sTK)}, {sr(sTK)}, 0x3ffff")
    if steady:
        if i == 1:
            extra[64] = [f"v_and_b32 {vr(vCW)}, 3, v0", f"v_lshlrev_b32 {vr(vCW)}, 6, {vr(vCW)}"]
            extra[65] = [f"buffer_load_dword {vr(vCW)}, {vr(vCW)}, {sr(sDB,4)}, 0 offen sc1"]
            sc[40].append(f"s_cmp_eq_u32 {sr(sCNT)}, {NPASS - 1}")
            sc[41].append(f"s_cselect_b32 {sr(sDB+2)}, 256, 0")
            extra[68] = [f"buffer_atomic_add {vr(vONES)}, {vr(vLIN)}, {sr(sDBW,4)}, 0 offen sc1"]
            sc[75].append(f"s_mov_b32 {sr(sDBW+2)}, 0")
        if i == 2 and CFG.get("repf", True):
            extra[64] = [f"v_and_b32 {vr(vT)}, 31, v0", f"v_lshlrev_b32 {vr(vT)}, 10, {vr(vT)}"]
            extra[65] = [f"v_add_u32 {vr(vT)}, {sr(sPF+2)}, {vr(vT)}", f"v_min_u32 {vr(vT)}, L_end-L_pc, {vr(vT)}"]
            extra[68] = [f"global_load_dword {ar(255)}, {vr(vT)}, {sr(sPF,2)}"]
    else:
        nextk = i + 2 <= 15
        def load(g):
            return sum(2 if it[0] == "exp" else (0 if it[0] == "dma" or (it[0] == "k" and g > BARG and not nextk) else 1) for it in PLAN[g])
        gs = 0
        for x in salu:
            if x.startswith("s_addc"):
                sc[gs - 1].append(x); continue
            while sc[gs] or gs in vm or gs + 1 in vm: gs += 1
            sc[gs].append(x); gs += 1
        for groups, lo, hi in loads:
            cand = [g for g in range(max(lo, gs + 3 if salu else 0), hi) if g not in vm and g not in (BARG, BARG - 1, HOOKA, NG - 1)]
            n = len(groups)
            for k, grp in enumerate(groups):
                win = cand[k * len(cand) // n:(k + 1) * len(cand) // n]
                vm[min(win, key=load)] = grp
    cur_m0 = None; prev = -1
    for g in sorted(vm):
        grp = vm[g]; sca = []
        for x in grp[:-1]:
            if x.startswith("s_add_u32 m0"):
                if x == cur_m0: continue
                cur_m0 = x
            sca.append(x)
        free = [q for q in range(prev + 1, g + 1) if not sc[q] and not (steady and q in (40, 41))]
        if sca and sca[-1].startswith("s_add_u32 m0"): free = [q for q in free if q < g]
        if len(free) >= len(sca):
            for x, q in zip(sca, free[len(free) - len(sca):]): sc[q].append(x)
        else:
            sc[g] += sca + ["s_nop 0"]
        prev = g
    mf = qk_list(1 - p) + pv_list(p)
    MX = [t for t, _ in max_items(1 - p)] + [f"v_max_f32 {vr(vMX)}, {vr(vMX)}, {vr(vMX+1)}", f"v_cmp_lt_f32 vcc, {sr(sTHR)}, {vr(vMX)}"]
    out = []
    for g in range(NG):
        out.append(mf[g])
        out += sc[g]
        ex = extra.get(g, [])
        out += [x for x in ex if not x.startswith("v_")]
        if g in vm: out.append(vm[g][-1])
        for it in PLAN[g]:
            k = it[0]
            if k == "exp": out.append(exp_i(p if it[2] else 1 - p, it[1]))
            elif k == "cvt": out.append(cvt_i(p if it[2] else 1 - p, it[1]))
            elif k == "max":
                if not CFG.get("nomax"): out.append(MX[it[1]])
            elif k == "k":
                t = i + (2 if g > BARG else 1)
                if t <= 15: out.append(rd_k(slotK(t), it[1]))
            elif k == "v": out.append(rd_v(slotV(i), it[1], it[2]))
        out += [x for x in ex if x.startswith("v_")]
        if CFG.get("slowdown") and g % int(CFG["slowdown"]) == 5: out.append("s_nop 7")
    return out
EARLY_K = [it[1] for g in range(BARG + 1, NG) for it in PLAN[g] if it[0] == "k"]
E_FIRST = [it for g in range(HOOKA, NG) for it in PLAN[g] if it[0] in ("exp", "cvt")]
E_REST = [it for g in range(0, HOOKA) for it in PLAN[g] if it[0] in ("exp", "cvt")]
DMA_GAPS = [g for g in range(NG) if any(it[0] == "dma" for it in PLAN[g])]
LIGHT = sorted(range(NG), key=lambda g: (sum(2 if it[0] in ("exp",) else (0 if it[0] == "dma" else 1) for it in PLAN[g])))

def spread(items, gaps):
    d = {}
    for i, it in enumerate(items):
        d.setdefault(gaps[i * len(gaps) // len(items)], []).extend(it)
    return d
def place(groups, lo, hi):
    cand = [g for g in LIGHT if lo <= g < hi and g not in (BARG, BARG - 1, HOOKA, NG - 1)]
    gs = sorted(cand[:len(groups)])
    assert len(gs) == len(groups)
    return {g: list(x) for g, x in zip(gs, groups)}
def merge(*maps):
    d = {}
    for m in maps:
        for k, v in m.items(): d.setdefault(k, []).extend(v)
    return d
def flat(G): return [x for g in G for x in g]
def groups_of(lst):
    G = []; cur = []
    for x in lst:
        cur.append(x)
        if x.startswith("buffer_"): G.append(cur); cur = []
    if cur: G[-1] += cur
    return G

WREG = []
WP = {}
for nm, base, n in (("R1", 256 + 192, 16), ("R2", vQ, 16), ("R4", vNEG, 4), ("R3", vS, 16), ("R5", 256 + aF, 12)):
    WP[nm] = list(range(len(WREG), len(WREG) + n)); WREG += [base + 4 * i for i in range(n)]
assert len(WREG) == 64
def wo_loads(name, sp=None):
    sp = sSP if sp is None else sp
    groups = []
    for f in WP[name]:
        g = [f"s_mov_b32 {sr(sp)}, {f * 1024}"] if f % 4 == 0 else []
        g.append(f"buffer_load_dwordx4 {rr(WREG[f], 4)}, {vr(vLIN)}, {sr(sWFL,4)}, {sr(sp)} offen offset:{(f%4)*1024} sc1 ; #w{f}")
        groups.append(g)
    return groups

def weave(mf, nvmap, va=(), pre=None, need=None):
    out = []; va = list(va)
    for g, m in enumerate(mf):
        if need and g in need:
            last = max([i for i, x in enumerate(va) if x[2] == need[g]], default=-1)
            if last >= 0:
                if va[last][1] > g - 1: out.append("s_nop 7")
                out += [x[0] for x in va[:last + 1]] + ["s_nop 1"]; va = va[last + 1:]
            elif any(x.startswith("v_") and not x.startswith("v_mfma") for x in out[-2:]): out.append("s_nop 1")
        if pre and g in pre: out += pre[g]
        out.append(m)
        nv = nvmap.get(g, [])
        out += nv
        c = sum(slots(x) for x in nv)
        while va and va[0][1] <= g and c + slots(va[0][0]) <= 2:
            c += slots(va[0][0]); out.append(va.pop(0)[0])
    return out, va

def allreduce(op, a, b):
    return [f"v_mov_b32 {vr(b)}, {vr(a)}", "s_nop 1", f"v_permlane32_swap_b32 {vr(a)}, {vr(b)}", "s_nop 1", f"{op} {vr(a)}, {vr(a)}, {vr(b)}",
            f"v_mov_b32 {vr(b)}, {vr(a)}", "s_nop 1", f"v_permlane16_swap_b32 {vr(a)}, {vr(b)}", "s_nop 1", f"{op} {vr(a)}, {vr(a)}, {vr(b)}"]
def qmax(p, qb, d):
    regs = [Sreg(p, kb, qb) + j for kb in range(4) for j in range(4)]
    o = [f"v_max3_f32 {vr(d)}, {vr(regs[0])}, {vr(regs[1])}, {vr(regs[2])}"]
    for i in range(3, 15, 2): o.append(f"v_max3_f32 {vr(d)}, {vr(regs[i])}, {vr(regs[i+1])}, {vr(d)}")
    o.append(f"v_max_f32 {vr(d)}, {vr(regs[15])}, {vr(d)}")
    return o
def rare_a(p, label):
    out = [f"{label}:", "s_nop 7"]
    for qb in range(4):
        d = vT + qb
        out += qmax(p, qb, d) + allreduce("v_max_f32", d, vMX)
        out.append(f"v_max_f32 {vr(d)}, 0, {vr(d)}")
        for j in range(4): out.append(f"v_sub_f32 {vr(vNEG+4*qb+j)}, {vr(vNEG+4*qb+j)}, {vr(d)}")
        for kb in range(4):
            for j in range(4):
                r = Sreg(p, kb, qb) + j
                out.append(f"v_sub_f32 {vr(r)}, {vr(r)}, {vr(d)}")
        out.append(f"v_exp_f32 {vr(d)}, -{vr(d)}")
    out += ["s_nop 3", f"s_setpc_b64 {sr(sRET,2)}"]
    return out
def rare_b(label):
    out = [f"{label}:", "s_nop 15"]
    for qb in range(4):
        f_ = vT + qb
        for j in range(4): out.append(f"v_mul_f32 {vr(vL+4*qb+j)}, {vr(vL+4*qb+j)}, {vr(f_)}")
        for j in range(0, 32, 2):
            a0 = Oreg(qb, 0) + j
            out += [f"v_accvgpr_read_b32 {vr(vMX)}, {ar(a0)}", f"v_accvgpr_read_b32 {vr(vMX+1)}, {ar(a0+1)}",
                    f"v_mul_f32 {vr(vMX)}, {vr(vMX)}, {vr(f_)}", f"v_mul_f32 {vr(vMX+1)}, {vr(vMX+1)}, {vr(f_)}",
                    f"v_accvgpr_write_b32 {ar(a0)}, {vr(vMX)}", f"v_accvgpr_write_b32 {ar(a0+1)}, {vr(vMX+1)}"]
    out += ["s_nop 3", f"s_setpc_b64 {sr(sRET,2)}"]
    return out

def wfrag(st, s, dt): return (128 if st % 2 == 0 else 192) + 4 * (dt * 2 + s)
def xfrag(st, s, qb): return (96 if st % 2 == 0 else 32) + 4 * (qb * 2 + s)
def qacc(qb, dt): return Ureg(dt // 4, (dt // 2) % 2, qb) + 4 * (dt % 2)
def qp_reads(st):
    out = []
    for qb in range(4):
        for s in range(2):
            out.append(f"ds_read_b128 {vr(xfrag(st,s,qb),4)}, {vr(vXA + 2*(st%2) + s)} offset:{qb*2048} ; #x{st}_{qb}")
    for dt in range(8):
        for s in range(2):
            for t in range(2):
                if NOSWAP: out.append(f"ds_read_b64_tr_b16 {ar(wfrag(st,s,dt)+2*t,2)}, {vr(vWA + dt//2)} offset:{(st%3)*16384 + (32*s+4*t)*256 + 8*(dt%2)} ; #w{st}_{dt}")
                else: out.append(f"ds_read_b64_tr_b16 {ar(wfrag(st,s,dt)+2*t,2)}, {vr(vWA + dt)} offset:{(st%3)*16384 + (32*s+4*t)*256} ; #w{st}_{dt}")
    return out
def qp_dma(st):
    G = []
    wf = (" " + CFG["wqld"]) if CFG.get("wqld") else ""
    xf = (" " + CFG["xld"]) if CFG.get("xld") else ""
    for p in range(4):
        g = []
        if p == 0:
            g = [f"s_add_u32 {sr(sRX)}, {sr(sRQ)}, {st}", f"s_and_b32 {sr(sRX)}, {sr(sRX)}, 7", f"s_lshl_b32 {sr(sRW)}, {sr(sRX)}, 19",
                 f"s_lshl_b32 {sr(sRX)}, {sr(sRX)}, 7", m0_at(LWQ[st % 3])]
        g.append(f"s_add_u32 {sr(sDT)}, {sr(sRW)}, {p*(32768-1024)}")
        g.append(f"buffer_load_dwordx4 {vr(vDW + p//2)}, {sr(sWQ,4)}, {sr(sDT)} offen offset:{1024*p}{wf} lds ; #st{st}")
        G.append(g)
    for p in range(8):
        g = [f"s_add_u32 m0, {sr(sW8K)}, {LX[st%2] + (p//4)*4096}"] if p % 4 == 0 else []
        g.append(f"s_add_u32 {sr(sDT)}, {sr(sRX)}, {p*8192 - 1024*(p%4)}")
        g.append(f"buffer_load_dwordx4 {vr(vDX + p%2)}, {sr(sX,4)}, {sr(sDT)} offen offset:{1024*(p%4)}{xf} lds ; #st{st}")
        G.append(g)
    return G
def qp_one(st, dt, qb, s, first):
    d = qacc(qb, dt)
    return f"{MF} {vr(d,4)}, {ar(wfrag(st,s,dt),4)}, {vr(xfrag(st,s,qb),4)}, {'0' if first else vr(d, 4)}"
def qp_mfmas(st):
    return [qp_one(st, dt, qb, (i if qb % 2 == 0 else 1 - i), st == 0 and i == 0) for dt in range(8) for qb in range(4) for i in range(2)]
def qp_q(st, qb):
    return [qp_one(st, dt, qb, (i if dt % 2 == 0 else 1 - i), False) for dt in range(8) for i in range(2)]
def qconv(qb, s):
    d = qacc(qb, 2 * s); q = Qreg(qb, s)
    out = [f"v_mul_f32 {vr(d+j)}, {sr(sSC)}, {vr(d+j)}" for j in range(8)]
    out += [f"v_cvt_pk_bf16_f32 {vr(q+j)}, {vr(d+2*j)}, {vr(d+2*j+1)}" for j in (0, 2, 1, 3)]
    return out, [f"v_permlane32_swap_b32 {vr(q)}, {vr(q+2)}", f"v_permlane32_swap_b32 {vr(q+1)}, {vr(q+3)}"], \
                [f"v_permlane16_swap_b32 {vr(q)}, {vr(q+2)}", f"v_permlane16_swap_b32 {vr(q+1)}, {vr(q+3)}"]
def qconv_stream(qb):
    parts = [qconv(qb, s) for s in range(4)]
    if NOSWAP: return [(x, s) for s in range(4) for x in parts[s][0]]
    out = []
    for s in range(4):
        a = parts[s][0]
        if s == 0: out += [(x, s) for x in a]
        else: out += [(x, s) for x in a[:4]] + [(x, s) for x in parts[s-1][1]] + [(x, s) for x in a[4:8]] + [(x, s) for x in parts[s-1][2]] + [(x, s) for x in a[8:]]
    out += [("s_nop 1", 3)] + [(x, 3) for x in parts[3][1]] + [("s_nop 1", 3)] + [(x, 3) for x in parts[3][2]]
    return out

def setup_a():
    o = []; A = o.append
    A("s_cmp_ge_u32 s2, 256")
    A("s_cbranch_scc1 L_end")
    if CFG.get("fixdur"): A("s_memrealtime s[42:43]")
    A(f"s_load_dwordx16 {sr(sARG,16)}, s[0:1], 0")
    if CFG["codepf"]:
        A(f"s_getpc_b64 {sr(sT,2)}")
        A("L_pc:")
        A(f"s_bfe_u32 {sr(sT+2)}, s2, 0x30003")
        A(f"v_lshrrev_b32 {vr(u0)}, 6, v0"); A(f"v_and_b32 {vr(u1)}, 15, v0"); A(f"v_lshl_add_u32 {vr(u0)}, {vr(u0)}, 4, {vr(u1)}")
        A(f"v_lshlrev_b32 {vr(u0)}, 10, {vr(u0)}"); A(f"s_lshl_b32 {sr(sT+2)}, {sr(sT+2)}, 7"); A(f"v_add_u32 {vr(u0)}, {sr(sT+2)}, {vr(u0)}")
        A(f"v_min_u32 {vr(u0)}, L_end-L_pc, {vr(u0)}")
        A(f"global_load_dword {vr(vDUM[0])}, {vr(u0)}, {sr(sT,2)} ; #pf")
        if CFG.get("repf", True):
            A(f"s_mov_b64 {sr(sPF,2)}, {sr(sT,2)}"); A(f"s_add_u32 {sr(sPF+2)}, {sr(sT+2)}, L_cw_back-L_pc")
    A(f"s_and_b32 {sr(sCB)}, s2, 7")
    A(f"s_lshr_b32 {sr(sT+3)}, s2, 3")
    A(f"s_and_b32 {sr(sMT)}, {sr(sT+3)}, 3"); A(f"s_lshr_b32 {sr(sNT)}, {sr(sT+3)}, 2")
    if CFG.get("pmap", "4x8") == "4x8":
        A(f"s_and_b32 {sr(sB)}, {sr(sCB)}, 1"); A(f"s_lshl_b32 {sr(sB)}, {sr(sB)}, 2"); A(f"s_add_u32 {sr(sB)}, {sr(sB)}, {sr(sMT)}")
        A(f"s_lshr_b32 {sr(sH)}, {sr(sCB)}, 1"); A(f"s_lshl_b32 {sr(sH)}, {sr(sH)}, 3"); A(f"s_add_u32 {sr(sH)}, {sr(sH)}, {sr(sNT)}")
    else:
        A(f"s_mov_b32 {sr(sB)}, {sr(sCB)}"); A(f"s_mov_b32 {sr(sH)}, {sr(sT+3)}")
    rq = CFG.get("rq", "x")
    if rq == "n": A(f"s_mov_b32 {sr(sRQ)}, 0")
    elif rq == "x": A(f"s_mov_b32 {sr(sRQ)}, {sr(sCB)}")
    elif rq == "h": A(f"s_mov_b32 {sr(sRQ)}, {sr(sH)}")
    elif rq == "f": A(f"s_lshl_b32 {sr(sRQ)}, {sr(sB)}, 1"); A(f"s_add_u32 {sr(sRQ)}, {sr(sRQ)}, {sr(sH)}")
    elif rq == "g": A(f"s_add_u32 {sr(sRQ)}, {sr(sB)}, {sr(sH)}")
    A(f"v_lshrrev_b32 {vr(u0)}, 6, v0")
    A(f"v_and_b32 {vr(ln)}, 63, v0")
    A(f"v_readfirstlane_b32 {sr(sWAVE)}, {vr(u0)}")
    A(f"v_lshrrev_b32 {vr(u1)}, 4, {vr(ln)}")
    A(f"v_and_b32 {vr(u2)}, 15, {vr(ln)}")
    A(f"v_lshl_add_u32 {vr(u4)}, {vr(u0)}, 4, {vr(u1)}")
    A(f"v_lshlrev_b32 {vr(u3)}, 1, {vr(u1)}")
    A(f"v_xor_b32 {vr(u3)}, {vr(u3)}, {vr(u2)}")
    A(f"v_lshlrev_b32 {vr(u5)}, 4, {vr(u3)}")
    A(f"v_lshl_add_u32 {vr(vDW)}, {vr(u4)}, 13, {vr(u5)}")
    A(f"v_xor_b32 {vr(vDW+1)}, 0x80, {vr(vDW)}")
    if NOSWAP:
        A(f"v_lshlrev_b32 {vr(u3)}, 2, {vr(u1)}"); A(f"v_xor_b32 {vr(u3)}, {vr(u3)}, {vr(u2)}"); A(f"v_lshlrev_b32 {vr(u3)}, 4, {vr(u3)}")
        A(f"v_lshl_add_u32 {vr(vDW)}, {vr(u4)}, 13, {vr(u3)}"); A(f"v_mov_b32 {vr(vDW+1)}, {vr(vDW)}")
    A(f"v_lshrrev_b32 {vr(u3)}, 3, {vr(ln)}")
    A(f"v_lshl_add_u32 {vr(u0)}, {vr(u0)}, 6, {vr(u3)}")
    A(f"v_and_b32 {vr(u3)}, 7, {vr(ln)}")
    A(f"v_xor_b32 {vr(u3)}, {vr(u1)}, {vr(u3)}")
    A(f"v_lshlrev_b32 {vr(u3)}, 4, {vr(u3)}")
    A(f"v_lshl_add_u32 {vr(vDX)}, {vr(u0)}, 10, {vr(u3)}")
    A(f"v_xor_b32 {vr(vDX+1)}, 64, {vr(vDX)}")
    A(f"s_lshl_b32 {sr(sW4K)}, {sr(sWAVE)}, 12")
    A(f"s_lshl_b32 {sr(sW8K)}, {sr(sWAVE)}, 13")
    A(f"s_lshl_b32 {sr(sT)}, {sr(sB)}, 18")
    A(f"s_lshl_b32 {sr(sT+1)}, {sr(sH)}, 8")
    A("s_waitcnt lgkmcnt(0)")
    o += stamp()
    o += srd_at(sWQ, 6, sr(sT+1), 511*8192 + 256)
    o += srd_at(sX, 0, sr(sT), 0x40000)
    return o

def wo_piece_addr():
    return [f"v_lshrrev_b32 {vr(u0)}, 5, v0", f"v_and_b32 {vr(u1)}, 0x1e, {vr(u0)}", f"v_and_b32 {vr(u0)}, 1, {vr(u0)}",
            f"v_lshl_add_u32 {vr(u0)}, {vr(u1)}, 2, {vr(u0)}",
            f"v_and_b32 {vr(u1)}, 31, v0", f"v_lshlrev_b32 {vr(u1)}, 4, {vr(u1)}", f"v_lshl_add_u32 {vr(vWOF)}, {vr(u0)}, 10, {vr(u1)}"]
def wo_piece_dma():
    o = [m0_at(LWO)]
    for p in range(4):
        o.append(f"s_mov_b32 {sr(sDT)}, {1024*p}")
        o.append(f"buffer_load_dwordx4 {vr(vWOF)}, {sr(sWO2,4)}, {sr(sDT)} offen offset:{1024*p} nt lds ; #wo")
    return o

def warm_loads(nst):
    o = []; A = o.append
    A(f"v_lshrrev_b32 {vr(u3)}, 6, v0"); A(f"v_and_b32 {vr(u2)}, 15, v0"); A(f"v_lshl_add_u32 {vr(u3)}, {vr(u3)}, 4, {vr(u2)}")
    A(f"v_and_b32 {vr(u1)}, {nst - 1}, {vr(u3)}"); A(f"v_add_u32 {vr(u1)}, {sr(sRQ)}, {vr(u1)}"); A(f"v_add_u32 {vr(u1)}, 1, {vr(u1)}")
    A(f"v_and_b32 {vr(u1)}, 7, {vr(u1)}")
    A(f"v_lshrrev_b32 {vr(u2)}, 1, {vr(u3)}")
    A(f"v_lshlrev_b32 {vr(u0)}, 7, {vr(u1)}"); A(f"v_lshl_add_u32 {vr(u0)}, {vr(u2)}, 10, {vr(u0)}")
    A(f"s_and_b32 {sr(sT)}, {sr(sH)}, 7"); A(f"s_lshl_b32 {sr(sT)}, {sr(sT)}, 15")
    A(f"buffer_load_dword {vr(vDUM[1])}, {vr(u0)}, {sr(sX,4)}, {sr(sT)} offen ; #warm")
    A(f"v_lshlrev_b32 {vr(u0)}, 19, {vr(u1)}")
    A(f"v_lshrrev_b32 {vr(u3)}, 1, {vr(u2)}"); A(f"v_lshl_add_u32 {vr(u0)}, {vr(u3)}, 13, {vr(u0)}")
    A(f"v_and_b32 {vr(u3)}, 1, {vr(u2)}"); A(f"v_lshl_add_u32 {vr(u0)}, {vr(u3)}, 7, {vr(u0)}")
    A(f"s_and_b32 {sr(sT)}, {sr(sB)}, 3"); A(f"s_lshl_b32 {sr(sT)}, {sr(sT)}, 17")
    A(f"buffer_load_dword {vr(vDUM[2])}, {vr(u0)}, {sr(sWQ,4)}, {sr(sT)} offen ; #warm")
    return o

def setup_b():
    o = []; A = o.append
    A(f"s_lshl_b32 {sr(sT+2)}, {sr(sB)}, 5"); A(f"s_add_u32 {sr(sT+2)}, {sr(sT+2)}, {sr(sH)}")
    A(f"s_lshl_b32 {sr(sT)}, {sr(sT+2)}, 18")
    o += srd_at(sK, 2, sr(sT), 0x40000)
    o += srd_at(sV, 4, sr(sT), 0x40000)
    A(f"s_lshl_b32 {sr(sT+1)}, {sr(sT+2)}, 7"); A(f"s_add_u32 {sr(sT+1)}, {sr(sT+1)}, {FLAG_OFF}")
    o += srd_at(sFL, 14, sr(sT+1), 32)
    A(f"s_getreg_b32 {sr(sXCC)}, hwreg(HW_REG_XCC_ID, 0, 4)")
    A(f"s_add_u32 {sr(sXCC)}, {sr(sXCC)}, 16")
    o += srd_at(sDB, 12, "0", 256)
    A(f"s_and_b32 {sr(sT+1)}, {sr(sT+2)}, 3"); A(f"s_lshl_b32 {sr(sT+1)}, {sr(sT+1)}, 6")
    o += srd_at(sDBW, 12, sr(sT+1), 4)
    A(f"s_lshr_b32 {sr(sT)}, {sr(sT+2)}, 1"); A(f"s_and_b32 {sr(sT+2)}, {sr(sT+2)}, 1")
    A(f"s_lshl_b32 {sr(sT+1)}, {sr(sT)}, 15"); A(f"s_lshl_b32 {sr(sT+3)}, {sr(sT+2)}, 9"); A(f"s_add_u32 {sr(sT+1)}, {sr(sT+1)}, {sr(sT+3)}")
    o += srd_at(sWO2, 8, sr(sT+1), 31*1024 + 512)
    A(f"s_lshl_b32 {sr(sT+2)}, {sr(sT+2)}, 2"); A(f"s_add_u32 {sr(sT+2)}, {sr(sT+2)}, {sr(sWAVE)}"); A(f"s_lshl_b32 {sr(sT+2)}, {sr(sT+2)}, 19")
    A(f"s_lshl_b32 {sr(sT)}, {sr(sT)}, 11"); A(f"s_add_u32 {sr(sT)}, {sr(sT)}, {sr(sT+2)}"); A(f"s_add_u32 {sr(sT)}, {sr(sT)}, {WOF_OFF}")
    o += srd_at(sWS2, 14, sr(sT), 262144 + 2048)
    A(f"s_lshl_b32 {sr(sT)}, {sr(sB)}, 2"); A(f"s_add_u32 {sr(sT)}, {sr(sT)}, {sr(sWAVE)}"); A(f"s_lshl_b32 {sr(sT)}, {sr(sT)}, 19")
    A(f"s_lshl_b32 {sr(sT+1)}, {sr(sH)}, 13"); A(f"s_add_u32 {sr(sT)}, {sr(sT)}, {sr(sT+1)}")
    o += srd_at(sO, 14, sr(sT), 262144 + 8192)
    if CFG.get("fewst"):
        A(f"s_cmp_eq_u32 {sr(sMT)}, 0"); A(f"s_cselect_b32 {sr(sO+2)}, {sr(sO+2)}, 0")
    rot = CFG.get("rot", "j")
    if rot == "j": A(f"s_lshr_b32 {sr(sROT)}, s2, 3"); A(f"s_add_u32 {sr(sROT)}, {sr(sROT)}, s2"); A(f"s_and_b32 {sr(sROT)}, {sr(sROT)}, 15"); A(f"s_lshl_b32 {sr(sROT)}, {sr(sROT)}, 14")
    else: A(f"s_mov_b32 {sr(sROT)}, 0")
    if CFG.get("itst"): A("s_mov_b32 s42, 0"); A("s_mov_b32 s43, 0x100")
    A(f"s_mov_b32 {sr(sTHR)}, 0x41000000")
    c = math.log2(math.e) / math.sqrt(128.0)
    A(f"s_mov_b32 {sr(sSC)}, 0x{struct.unpack('<I', struct.pack('<f', c))[0]:08x}")
    A(f"v_lshl_add_u32 {vr(vDV)}, {vr(u4)}, 8, {vr(u5)}")
    A(f"v_xor_b32 {vr(vDV+1)}, 0x80, {vr(vDV)}")
    g_, c16 = u1, u2
    A(f"v_lshrrev_b32 {vr(g_)}, 4, {vr(ln)}")
    A(f"v_and_b32 {vr(c16)}, 15, {vr(ln)}")
    A(f"v_xor_b32 {vr(u3)}, {vr(g_)}, {vr(c16)}")
    A(f"v_lshlrev_b32 {vr(u3)}, 4, {vr(u3)}")
    A(f"v_lshl_add_u32 {vr(vDK)}, {vr(u4)}, 8, {vr(u3)}")
    for p in range(1, 4): A(f"v_xor_b32 {vr(vDK+p)}, {64*p}, {vr(vDK)}")
    if CONT:
        A(f"s_lshl_b32 {sr(sW1K)}, {sr(sWAVE)}, 10")
        A(f"v_lshrrev_b32 {vr(vDK+1)}, 4, v0")
        A(f"v_xor_b32 {vr(vDK+2)}, {vr(vDK+1)}, {vr(c16)}"); A(f"v_lshlrev_b32 {vr(vDK+2)}, 4, {vr(vDK+2)}")
        A(f"v_lshl_add_u32 {vr(vDK)}, {vr(vDK+1)}, 8, {vr(vDK+2)}")
        A(f"v_and_b32 {vr(vDK+2)}, 7, {vr(vDK+1)}"); A(f"v_lshlrev_b32 {vr(vDK+2)}, 1, {vr(vDK+2)}")
        A(f"v_xor_b32 {vr(vDK+2)}, {vr(vDK+2)}, {vr(c16)}"); A(f"v_lshlrev_b32 {vr(vDK+2)}, 4, {vr(vDK+2)}")
        A(f"v_lshl_add_u32 {vr(vDV)}, {vr(vDK+1)}, 8, {vr(vDK+2)}")
    A(f"v_lshl_add_u32 {vr(vKA)}, {vr(c16)}, 8, {vr(u3)}")
    for s in range(1, 4): A(f"v_xor_b32 {vr(vKA+s)}, {64*s}, {vr(vKA)}")
    A(f"v_lshrrev_b32 {vr(u3)}, 1, {vr(c16)}")
    A(f"v_xor_b32 {vr(u3)}, {vr(g_)}, {vr(u3)}")
    A(f"v_lshlrev_b32 {vr(u3)}, 4, {vr(u3)}")
    A(f"v_lshl_add_u32 {vr(u3)}, {vr(c16)}, 7, {vr(u3)}")
    A(f"v_add_u32 {vr(u3)}, {sr(sW8K)}, {vr(u3)}")
    for sl in range(2):
        A(f"v_add_u32 {vr(vXA+2*sl)}, {LX[sl]}, {vr(u3)}")
        A(f"v_xor_b32 {vr(vXA+2*sl+1)}, 64, {vr(vXA+2*sl)}")
    A(f"v_cmp_eq_u32 vcc, 0, {vr(c16)}")
    A(f"v_mov_b32 {vr(u3)}, 0x3f803f80")
    r_, f_, c8 = u0, u4, u5
    A(f"v_bfe_u32 {vr(r_)}, {vr(ln)}, 2, 2")
    for j in range(4): A(f"v_cndmask_b32 {vr(vONES+j)}, 0, {vr(u3)}, vcc")
    A(f"v_bfe_u32 {vr(f_)}, {vr(ln)}, 2, 3")
    A(f"v_and_b32 {vr(c8)}, 3, {vr(ln)}")
    A(f"v_lshlrev_b32 {vr(c8)}, 3, {vr(c8)}")
    A(f"v_lshrrev_b32 {vr(u3)}, 2, {vr(ln)}")
    A(f"v_lshlrev_b32 {vr(vWOA)}, 9, {vr(u3)}")
    A(f"v_lshl_add_u32 {vr(vWOA)}, {vr(c8)}, 1, {vr(vWOA)}")
    A(f"s_lshl_b32 {sr(sT)}, {sr(sWAVE)}, 7"); A(f"s_add_u32 {sr(sT)}, {sr(sT)}, {LWO}")
    A(f"v_add_u32 {vr(vWOA)}, {sr(sT)}, {vr(vWOA)}")
    A(f"v_lshl_add_u32 {vr(c8)}, {vr(f_)}, 5, {vr(c8)}")
    A(f"v_lshl_add_u32 {vr(u3)}, {vr(u3)}, 8, {vr(c8)}")
    A(f"v_add_u32 {vr(vVA)}, {LV}, {vr(u3)}")
    for dt in range(1, 8): A(f"v_xor_b32 {vr(vVA+dt)}, {32*dt}, {vr(vVA)}")
    A(f"v_lshl_add_u32 {vr(u3)}, {vr(g_)}, 3, {vr(r_)}")
    A(f"v_lshl_add_u32 {vr(u3)}, {vr(u3)}, 8, {vr(c8)}")
    if NOSWAP:
        A(f"v_and_b32 {vr(u3)}, 0xff00, {vr(u3)}"); A(f"v_lshl_add_u32 {vr(u3)}, {vr(r_)}, 6, {vr(u3)}")
        A(f"v_and_b32 {vr(c8)}, 3, {vr(ln)}"); A(f"v_lshl_add_u32 {vr(u3)}, {vr(c8)}, 4, {vr(u3)}")
        A(f"v_add_u32 {vr(vWA)}, {LWQ[0]}, {vr(u3)}")
        for k in range(1, 4): A(f"v_xor_b32 {vr(vWA+k)}, {64*k}, {vr(vWA)}")
    else:
        A(f"v_add_u32 {vr(vWA)}, {LWQ[0]}, {vr(u3)}")
        for dt in range(1, 8): A(f"v_xor_b32 {vr(vWA+dt)}, {32*dt}, {vr(vWA)}")
    A(f"v_lshlrev_b32 {vr(vWOS)}, 4, {vr(ln)}")
    A(f"v_add_u32 {vr(vLIN)}, {sr(sW4K)}, {vr(vWOS)}")
    o += wo_piece_addr()
    return o

def wo_reads():
    return [f"ds_read_b64_tr_b16 {ar(192+4*i+2*tt,2)}, {vr(vWOA)} offset:{(i//2)*64 + (i%2)*8 + tt*8192} ; #wo" for i in range(4) for tt in range(2)]
def wo_stores():
    return [[f"s_mov_b32 {sr(sT)}, {(i//2)*262144}", f"buffer_store_dwordx4 {ar(192+4*i,4)}, {vr(vWOS)}, {sr(sWS2,4)}, {sr(sT)} offen offset:{(i%2)*1024} sc1 ; #wst"] for i in range(4)]

def pairs(lst): return [lst[i:i+2] for i in range(0, len(lst), 2)]
def prologue():
    qs = stamp if CFG["qst"] else (lambda: [])
    o = setup_a()
    o += flat(qp_dma(0))
    nw = int(CFG.get("nwarm", 2))
    o += (warm_loads(nw) if nw else [])
    o += qs()
    o += setup_b()
    pt = CFG.get("pt", "")
    def pretouch(j, kind):
        if kind == "st": return [f"s_mov_b32 {sr(sDT)}, {j * 262144}", f"buffer_store_dword {vr(vWOF+1)}, {vr(vWOF+1)}, {sr(sO,4)}, {sr(sDT)} offen sc1 ; #pt"]
        if kind == "at": return [f"s_mov_b32 {sr(sDT)}, {j * 262144}", f"buffer_atomic_or {vr(vWOF+1)}, {vr(vWOF+1)}, {sr(sO,4)}, {sr(sDT)} offen sc1 ; #pt"]
        return [f"s_mov_b32 {sr(sDT)}, {j * 262144}", f"buffer_load_dword {vr(vWOF+2+j)}, {vr(vWOF+1)}, {sr(sO,4)}, {sr(sDT)} offen sc1 ; #pt"]
    if pt: o += [f"v_lshlrev_b32 {vr(vWOF+1)}, 3, {vr(vWOS)}"]
    if pt and pt[2:] == "0": o += pretouch(0, pt[:2]) + pretouch(1, pt[:2])
    prek = [x for x in CFG.get("prek", "").split(",") if x]
    for n in prek: o += (wo_piece_dma() if n == "wo" else kv_batch(n[0], int(n[1:])))
    if CFG.get("kvtlb"):
        o += [f"buffer_load_dword {ar(0)}, off, {sr(sK,4)}, 0 nt ; #tl", f"buffer_load_dword {ar(1)}, off, {sr(sV,4)}, 0 nt ; #tl"]
    o += qs()
    o += ["@wait st0", "s_barrier"] + stamp()
    kv = lambda *l: groups_of(sum([kv_batch(x[0], int(x[1:])) for x in l], []))
    bg = [int(x) for x in CFG.get("bg", "38,38,38,38,30,10,-14").split(",")]
    step = float(CFG.get("qstep", 4))
    B = [64 * s + bg[s] for s in range(7)]
    seq = [(st, dt, qb) for st in range(6) for dt in range(8) for qb in range(4) for i in range(2)]
    mf = sum([qp_mfmas(st) for st in range(6)], [])
    for st, qb in ((6, 0), (6, 1), (7, 0), (7, 1), (6, 2), (6, 3), (7, 2), (7, 3)):
        mf += qp_q(st, qb); seq += [(st, dt, qb) for dt in range(8) for i in range(2)]
    Q0 = len(mf)
    mf += [qk_one(0, kb, qb, (i if kb % 2 == 0 else 3 - i), i == 0, czero=True) for qb in range(4) for kb in range(4) for i in range(4)]
    first = {}; last = {}
    for g, (st, dt, qb) in enumerate(seq):
        for t in (f"x{st}_{qb}", f"w{st}_{dt}"):
            first.setdefault(t, g); last[t] = g
    xt = lambda k: ",".join(f"x{k}_{q}" for q in range(4))
    wt = lambda k: ",".join(f"w{k}_{d}" for d in range(8))
    nvm = {}; pre = {}; vm = {}
    def put_vm(g, grp):
        while g in vm or g in B: g += 1
        vm[g] = grp; return g
    npre = int(CFG.get("npre", 16)); nd1 = int(CFG.get("nd1", 6))
    r0 = qp_reads(0); d1 = qp_dma(1)
    o += r0[:npre] + flat(d1[:nd1])
    pos = -2
    for grp in d1[nd1:]: pos += 3; put_vm(int(pos), grp)
    XW = int(CFG.get("xw", 18))
    ekp = [x for x in CFG.get("ekp", "").split(",") if x]
    ek = dict(x.split(":") for x in CFG.get("ek", "5:K0").split(",") if x)
    for k in range(2, 8):
        for i, grp in enumerate(qp_dma(k)):
            e = 0 if k == 2 else (B[k-3] + 1 if i < 4 else B[k-3] + XW)
            if k == 7 and i >= 4: e = max(e, 0)
            pos = max(pos + step, e)
            if i == 4: grp = [f"@wait - lds={xt(k-2)}"] + grp
            put_vm(int(pos), grp)
        for n in ekp:
            j = k - int(CFG.get("ekp0", 3))
            if 0 <= j < 4:
                G_ = groups_of(wo_piece_dma()) if n == "wo" else kv(n)
                head = G_[0][:-1] if n != "wo" else G_[0][:1]
                grp = head + (G_[j] if (j or n == "wo") else G_[0][-1:]) if not (n == "wo" and j == 0) else G_[0]
                pos += 4; put_vm(int(pos), grp)
        if pt and pt[2:] != "0" and k - int(pt[2:]) in (0, 2):
            pos += 3; put_vm(int(pos), pretouch((k - int(pt[2:])) // 2, pt[:2]))
        if str(k) in ek:
            for grp in (groups_of(wo_piece_dma()) if ek[str(k)] == "wo" else kv(ek[str(k)])):
                pos += 3; put_vm(int(pos), grp)
    kstep = float(CFG.get("kstep", 9))
    BK, BQ = 384 + 94, Q0 + 56
    sched = [("K0", 0), ("wo", 0), ("K1", 0), ("V0", B[5] + 1), ("K2", BK + 1), ("V1", BK + 1)]
    for n, e in sched:
        if n in ek.values() or n in prek or n in ekp: continue
        for grp in (groups_of(wo_piece_dma()) if n == "wo" else kv(n)):
            pos = max(pos + kstep, e)
            put_vm(int(pos), grp)
    assert pos < Q0 + 64, pos
    if CFG["verbose"]: print("vm gaps:", sorted(vm))
    items = [(0, x) for x in r0[npre:]]
    for st in range(1, 8): items += [(st, x) for x in qp_reads(st)]
    R = []
    for st, x in items:
        t = x.split("#")[1]
        e = 0 if st == 0 else B[st-1] + 1
        if st >= 2: e = max(e, last[t[0] + str(st - 2) + t[2:]])
        d = first[t] - LAT
        if st < 7: d = min(d, B[st] - 8)
        if t[0] == "x" and 1 <= st <= 5: d = min(d, B[st-1] + XW - 7)
        R.append([e, max(d, e), x])
    R.sort(key=lambda r: (r[1], r[0]))
    rstep = float(CFG.get("rstep", 1.3)); nxt = 0
    for g in range(Q0):
        if g in vm or g in B: continue
        k = 0
        while k < 2:
            c = [r for r in R if r[0] <= g]
            if not c: break
            urgent = any(r[1] - g < i * 1.3 + 1 for i, r in enumerate(c))
            if not urgent and (k == 1 or g < nxt): break
            nvm.setdefault(g, []).append(c[0][2]); R.remove(c[0]); k += 1; nxt = g + rstep
    assert not R, R[:3]
    for t, g in first.items():
        (nvm.setdefault(g - 1, []) if g else o).insert(0 if g else len(o), f"@wait - lds={t}")
    for s in range(7):
        pre.setdefault(B[s], []).append(f"@wait st{s+1} lds={xt(s)},{wt(s)}")
        nvm.setdefault(B[s], []).append("s_barrier")
        if CFG["qst"]: pre[64 * s] = qs() + pre.get(64 * s, [])
    nvm = merge(nvm, spread(pairs(wo_reads()), [g for g in range(Q0 + 1, Q0 + 12) if g not in vm]))
    pre.setdefault(BK, []).append("@wait K0,wo"); nvm.setdefault(BK, []).append("s_barrier")
    nvm = merge(nvm, spread(pairs([rd_k(0, n) for n in range(16)]), [g for g in range(384 + 96, 384 + 120) if g not in vm]))
    pre.setdefault(Q0, []).append("@wait - lgkm=0"); pre[Q0] = stamp() + pre[Q0]
    pre.setdefault(BQ, []).append("@wait K1,V0 lds=wo"); nvm.setdefault(BQ, []).append("s_barrier")
    nvm = merge(nvm, {Q0 + 57: [f"s_add_u32 {sr(sTILE)}, {sr(sROT)}, {(DIST-1)*16384}"], Q0 + 58: [f"s_and_b32 {sr(sTILE)}, {sr(sTILE)}, 0x3ffff"],
                      Q0 + 59: [f"s_add_u32 {sr(sTK)}, {sr(sROT)}, {DIST*16384}"], Q0 + 60: [f"s_and_b32 {sr(sTK)}, {sr(sTK)}, 0x3ffff"],
                      Q0 + 61: [f"s_mov_b32 {sr(sCNT)}, 0"]})
    for g in sorted(vm):
        grp = vm[g]; sca = grp[:-1]
        prevv = max([x for x in vm if x < g], default=-1)
        gg = g
        for x in reversed(sca):
            nvm.setdefault(gg, []).insert(0, x)
            if gg - 1 > prevv and gg > 0: gg -= 1
        nvm.setdefault(g, []).append(grp[-1])
    va = [(f"v_accvgpr_write_b32 {ar(r)}, 0", 0, "z") for r in list(range(2, 128)) + [0, 1]]
    done = {0: 384 + 32, 1: 384 + 48, 2: 384 + 96, 3: 384 + 112}
    for qb in range(4):
        va += [(t, done[qb] + 4 * s + 3 + 3, f"q{qb}") for t, s in qconv_stream(qb)]
    va += [(f"v_mov_b32 {vr(vL+j)}, 0", Q0, "z") for j in range(16)]
    def initq(qb):
        n = vNEG + 4 * qb
        l = qmax(0, qb, n)
        for sw in ("v_permlane32_swap_b32", "v_permlane16_swap_b32"):
            l += [f"v_mov_b32 {vr(n+1)}, {vr(n)}", "s_nop 1", f"{sw} {vr(n)}, {vr(n+1)}", f"v_max_f32 {vr(n)}, {vr(n)}, {vr(n+1)}"]
        l += [f"v_sub_f32 {vr(n+j)}, 0, {vr(n)}" for j in (3, 2, 1, 0)]
        for ks in range(2):
            r = Ureg(0, ks, qb)
            l += [f"v_add_f32 {vr(r+j)}, {vr(r+j)}, {vr(n + j % 2)}" for j in range(8)]
        return l
    for qb in range(4): va += [(t, Q0 + 16 * qb + 15 + 3, "i") for t in initq(qb)]
    part, left = weave(mf, nvm, va, pre=pre, need={Q0 + 16 * q: f"q{q}" for q in range(4)})
    for k in range(1, 6):
        assert max(i for i, x in enumerate(part) if f"#x{k}_" in x) < part.index(f"@wait - lds={xt(k)}"), k
    for k in range(0, 6):
        assert max(i for i, x in enumerate(part) if f"#w{k}_" in x) < part.index(f"@wait st{k+1} lds={xt(k)},{wt(k)}"), k
    o += part
    o += qs()
    o += [rd_k(1, n) for n in EARLY_K]
    o += [f"v_mov_b32 {vr(vT+j)}, {sr(sXCC) if j == 1 else 0}" for j in range(4)]
    o.append(f"buffer_store_dwordx4 {vr(vT,4)}, {vr(vLIN)}, {sr(sFL,4)}, 0 offen sc1 ; #wst")
    if CFG["verbose"]: print("QK0 leftover VALU:", len(left))
    ini = []
    lf_ = [t for t, _, _ in left]
    i = 0
    while i < len(lf_):
        m1 = re.match(r"v_add_f32 v(\d+), v\d+, v(\d+)", lf_[i])
        if m1 and int(m1.group(1)) % 2 == 0 and i + 1 < len(lf_) and lf_[i+1].startswith(f"v_add_f32 v{int(m1.group(1))+1},"):
            r = int(m1.group(1)); ini.append(f"v_pk_add_f32 {vr(r,2)}, {vr(r,2)}, {vr(int(m1.group(2)),2)}"); i += 2
        else: ini.append(lf_[i]); i += 1
    ex_ = [exp_i(0, it[1]) for it in E_FIRST if it[0] == "exp"]; cv_ = [cvt_i(0, it[1]) for it in E_FIRST if it[0] == "cvt"]
    ini += ex_ + cv_
    G = wo_stores() + (kv("K3", "V2") if DIST == 4 else [])
    for i, g in enumerate(G):
        k = (i + 1) * len(ini) // (len(G) + 1)
        ini = ini[:k] + g + ini[k:]
    o += ini
    if CFG.get("nomax"): o.append("s_mov_b64 vcc, 0")
    o.append("@wait - lds=k0,k1,k2,k3")
    o += stamp()
    o, fifo, lf = resolve(o, [])
    return o, fifo, lf

def phase_c_srds():
    o = []; A = o.append
    t0, t1, t2 = sT, sT + 1, sT + 2
    A(f"s_lshr_b32 {sr(sHO)}, {sr(sH)}, 3")
    A(f"s_mov_b32 {sr(sFL+2)}, 4")
    A(f"s_and_b32 {sr(t0)}, {sr(sH)}, 6"); A(f"s_lshl_b32 {sr(t0)}, {sr(t0)}, 1"); A(f"s_add_u32 {sr(t0)}, {sr(t0)}, {sr(sWAVE)}")
    A(f"s_lshl_b32 {sr(t0)}, {sr(t0)}, 18"); A(f"s_lshl_b32 {sr(t2)}, {sr(sHO)}, 16"); A(f"s_add_u32 {sr(t0)}, {sr(t0)}, {sr(t2)}")
    A(f"s_add_u32 {sr(t0)}, {sr(t0)}, {WOF_OFF}"); A(f"s_sub_u32 {sr(t0)}, {sr(t0)}, {sr(sW4K)}")
    o += srd_at(sWFL, 14, sr(t0), 65536 + 3 * 4096)
    if CFG.get("wtouch", False):
        A(f"s_and_b32 {sr(sRW)}, {sr(sB)}, 3"); A(f"s_lshl_b32 {sr(sRW)}, {sr(sRW)}, 1"); A(f"s_and_b32 {sr(t0)}, {sr(sH)}, 1"); A(f"s_add_u32 {sr(sRW)}, {sr(sRW)}, {sr(t0)}")
        A(f"s_lshl_b32 {sr(sRW)}, {sr(sRW)}, 13"); A(f"s_add_u32 {sr(sRW)}, {sr(sRW)}, {sr(sW4K)}"); A(f"s_add_u32 {sr(sRX)}, {sr(sRW)}, 4096")
    A(f"s_and_b32 {sr(t0)}, {sr(sH)}, 1"); A(f"s_lshl_b32 {sr(t1)}, {sr(sB)}, 1"); A(f"s_add_u32 {sr(t0)}, {sr(t0)}, {sr(t1)}")
    A(f"s_lshl_b32 {sr(t1)}, {sr(t0)}, 20"); A(f"s_add_u32 {sr(t1)}, {sr(t1)}, {sr(t2)}")
    o += srd_at(sOL, 14, sr(t1), 3 * 262144 + 65536)
    A(f"s_lshl_b32 {sr(t0)}, {sr(t0)}, 17"); A(f"s_lshl_b32 {sr(t1)}, {sr(sHO)}, 15"); A(f"s_add_u32 {sr(t0)}, {sr(t0)}, {sr(t1)}")
    A(f"s_and_b32 {sr(t1)}, {sr(sH)}, 6"); A(f"s_lshl_b32 {sr(t1)}, {sr(t1)}, 7"); A(f"s_add_u32 {sr(t0)}, {sr(t0)}, {sr(t1)}")
    o += srd_at(sOUT, 10, sr(t0), 31 * 1024 + 256)
    A(f"s_lshl_b32 {sr(t0)}, {sr(sB)}, 12"); A(f"s_lshl_b32 {sr(t1)}, {sr(sHO)}, 10"); A(f"s_add_u32 {sr(t0)}, {sr(t0)}, {sr(t1)}")
    A(f"s_add_u32 {sr(t0)}, {sr(t0)}, {FLAG_OFF}")
    o += srd_at(sFLR, 14, sr(t0), 1024)
    A(f"s_and_b32 {sr(t0)}, {sr(sH)}, 7"); A(f"s_lshl_b32 {sr(t1)}, {sr(sB)}, 5"); A(f"s_add_u32 {sr(t0)}, {sr(t0)}, {sr(t1)}")
    A(f"s_lshl_b32 {sr(t1)}, {sr(t0)}, 16"); A(f"s_lshl_b32 {sr(t2)}, {sr(sHO)}, 14"); A(f"s_add_u32 {sr(t1)}, {sr(t1)}, {sr(t2)}")
    A(f"s_add_u32 {sr(t1)}, {sr(t1)}, {PART_OFF}")
    o += srd_at(sPS, 14, sr(t1), 3 * 524288 + 16384)
    A(f"s_lshl_b32 {sr(t1)}, {sr(t0)}, 7"); A(f"s_lshl_b32 {sr(t2)}, {sr(sHO)}, 2"); A(f"s_add_u32 {sr(t1)}, {sr(t1)}, {sr(t2)}")
    A(f"s_add_u32 {sr(t1)}, {sr(t1)}, {FLAG_OFF + 16}")
    o += srd_at(sPF2, 14, sr(t1), 4)
    A(f"s_lshl_b32 {sr(t1)}, {sr(sB)}, 5"); A(f"s_add_u32 {sr(t1)}, {sr(t1)}, {sr(sH)}"); A(f"s_lshl_b32 {sr(t1)}, {sr(t1)}, 16")
    A(f"s_add_u32 {sr(t1)}, {sr(t1)}, {PART_OFF}")
    o += srd_at(sPL, 14, sr(t1), 65536)
    return o

def tail_and_epilogue(u):
    p = u % 2
    o = []
    reads = [rd_v(slotV(15), n, t) for n in range(16) for t in range(2)]
    er = [(exp_i(p, it[1]), UNITS[it[1] // 8][1]) if it[0] == "exp" else (cvt_i(p, it[1]), UNITS[it[1] // 4][1]) for it in E_REST]
    va = []
    for i, (t, q) in enumerate(er):
        if t.startswith("v_cvt") and i and er[i-1][0].startswith("v_exp"): va.append(("s_nop 0", 0, f"e{q}"))
        va.append((t, 0, f"e{q}"))
    mf = []
    for qb in range(4):
        mf += [sum_one(p, qb, 0), sum_one(p, qb, 1)]
        mf += [pv_one(p, dt, qb, (i if dt % 2 == 0 else 1 - i)) for dt in range(8) for i in range(2)]
    vOST = vCW
    if CFG.get("local"): va.append((f"v_cmp_ne_u32 {sr(sGLB,2)}, {sr(sXCC)}, {vr(vCW)}", 0, "x"))
    va.append((f"v_and_b32 {vr(vOST)}, 0x3ff, {vr(vLIN)}", 0, "x"))
    tmp = 2
    NMF = len(mf)
    fill = {0: [], 1: [], 2: [], 3: []}
    tail_names = CFG.get("tailw", "R3").split(",")
    post_names = [x for x in ("R3", "R5") if x not in tail_names]
    for qb in range(4):
        e0 = 18 * qb
        lsum = [f"v_mov_b32 {vr(vT+qb)}, {vr(vL+4*qb)}"] + allreduce("v_add_f32", vT + qb, vMX) + [f"v_rcp_f32 {vr(vT+qb)}, {vr(vT+qb)}"]
        va += [(t, max(12, e0 + 1 + 3), f"o{qb}") for t in lsum]
        F = fill[qb]
        for s in range(4):
            e = e0 + 2 + 4 * s + 3 + 3
            b_ = tmp + 8 * (s % 2)
            va += [(f"v_accvgpr_read_b32 {vr(b_+j)}, {ar(Oreg(qb,2*s)+j)}", e, f"o{qb}") for j in range(8)]
            va += [(f"@mul {b_+j} {vT+qb}", e, f"o{qb}") for j in range(8)]
            d = Ureg(p, s // 2, qb) + 4 * (1 - s % 2)
            ee = e0 + 17 if s % 2 == 1 else e
            va += [(f"v_cvt_pk_bf16_f32 {vr(d+j)}, {vr(b_+2*j)}, {vr(b_+2*j+1)}", max(e, ee), f"o{qb}") for j in range(4)]
            ld = flat(F[s * len(F) // 4:(s + 1) * len(F) // 4])
            va += [(t, NMF - 1 if qb == 3 else e, f"o{qb}") for t in ld]
            va += [(f"s_mov_b32 {sr(sT)}, {(qb//2)*262144 + (s//2)*4096}", e, f"o{qb}"),
                   (f"buffer_store_dwordx4 {vr(d,4)}, {vr(vOST)}, {sr(sO,4)}, {sr(sT)} offen offset:{(s%2)*2048 + (qb%2)*1024} {CFG.get('ost', 'plain' if CFG.get('local') else 'sc1').replace('+', ' ').replace('plain', '')} ; #ost", e, f"o{qb}")]
    if CFG.get("tord", False):
        E = {q: [x for x in va if x[2] == f"e{q}"] for q in range(4)}
        X = [x for x in va if x[2] == "x"]
        O_ = {q: [x for x in va if x[2] == f"o{q}"] for q in range(4)}
        rest = E[0] + E[1] + E[2] + E[3]
        n0 = int(CFG.get("tn0", 10))
        head, rest = rest[:n0], rest[n0:]
        r2 = [x for x in rest if x[2] != "e3"]; r3 = [x for x in rest if x[2] == "e3"]
        va = X + head + O_[0] + r2 + O_[1] + r3 + O_[2] + O_[3]
    va = [((f"v_mul_f32 {vr(int(t.split()[1]))}, {vr(int(t.split()[1]))}, {vr(int(t.split()[2]))}" if t.startswith("@mul") else t), e, k) for t, e, k in va]
    o += reads[:12]
    nvm = spread(pairs(reads[12:]), list(range(0, 10)))
    pre = {2 + 2 * dt: [f"@wait - lds=v{2*dt},v{2*dt+1}"] for dt in range(8)}
    early = sum([wo_loads(x) for x in tail_names if x], [])
    if early: nvm = merge(nvm, spread(early, list(range(10, int(CFG.get("tailhi", 44)), 2))))
    part, left = weave(mf, nvm, va, pre=pre, need={18 * q: f"e{q}" for q in range(4)})
    o += part
    o += stamp()
    o.append("s_nop 7")
    lf_ = [t for t, _, _ in left]
    i = 0
    while i < len(lf_):
        m1 = re.match(r"v_mul_f32 v(\d+), v\d+, v(\d+)", lf_[i]); m2 = re.match(r"v_mul_f32 v(\d+), v\d+, v(\d+)", lf_[i+1]) if i + 1 < len(lf_) else None
        if m1 and m2 and int(m1.group(1)) % 2 == 0 and int(m2.group(1)) == int(m1.group(1)) + 1:
            r = int(m1.group(1)); f_ = int(m1.group(2))
            sel = "op_sel_hi:[1,0]" if f_ % 2 == 0 else "op_sel:[0,1] op_sel_hi:[1,1]"
            o.append(f"v_pk_mul_f32 {vr(r,2)}, {vr(r,2)}, {vr(f_ - f_ % 2,2)} {sel}"); i += 2
        else:
            o.append(lf_[i]); i += 1
    A = o.append
    A(f"v_mov_b32 {vr(vMX)}, 1")
    A(f"v_and_b32 {vr(vT)}, 7, v0"); A(f"v_lshlrev_b32 {vr(vT)}, 7, {vr(vT)}")
    A(f"v_add_u32 {vr(vKA)}, 0x10000, {vr(vOST)}")
    A(f"s_mov_b32 {sr(sCNT)}, 0")
    if CFG.get("forceglobal"): A(f"s_mov_b64 {sr(sGLB,2)}, -1")
    if CFG.get("local"): A(f"s_and_b32 {sr(sGLB)}, {sr(sGLB)}, 0xff"); A(f"s_cmp_lg_u32 {sr(sGLB)}, 0")
    mode = CFG.get("sync", "cnt1")
    cnt = mode.startswith("cnt"); one = mode.endswith("1")
    if cnt: A(f"s_mov_b32 {sr(sFLR+2)}, 4")
    A("@wait ost")
    A("s_barrier")
    if cnt: A(f"buffer_atomic_add {vr(vMX)}, {vr(vLIN)}, {sr(sFLR,4)}, 0 offen sc1 ; #flag")
    else: A(f"buffer_store_dword {vr(vMX)}, {vr(vLIN)}, {sr(sFL,4)}, 0 offen sc1 ; #flag")
    o += stamp()
    post = sum([wo_loads(x) for x in post_names], [])
    pl = f"buffer_load_dword {vr(vT+1)}, off, {sr(sFLR,4)}, 0 sc1" if cnt else f"buffer_load_dword {vr(vT+1)}, {vr(vT)}, {sr(sFLR,4)}, 0 offen sc1"
    want = 8 if cnt else 1
    o += flat(post)
    pw = int(CFG.get("pollwave", 1))
    if one: A(f"s_cmp_lg_u32 {sr(sWAVE)}, {pw}"); A("s_cbranch_scc1 L_go")
    A("L_poll:")
    A(pl + " ; #~poll")
    A("s_waitcnt vmcnt(0) ; keep")
    A(f"v_cmp_ne_u32 vcc, {want}, {vr(vT+1)}")
    A("s_cbranch_vccz L_go")
    if int(CFG.get("psleep", 0)): A("s_sleep " + str(int(CFG["psleep"])))
    A(f"s_add_u32 {sr(sCNT)}, {sr(sCNT)}, 1")
    A(f"s_cmp_lt_u32 {sr(sCNT)}, {CFG['spin']}")
    A("s_cbranch_scc1 L_poll")
    A("L_go:")
    if one: A("s_barrier")
    if CFG.get("local"): A(f"s_cmp_lg_u32 {sr(sGLB)}, 0"); A("s_cbranch_scc1 L_acq")
    A("L_acq_back:")
    o += stamp()
    return o

STAGED = []
def phase_c():
    o = []; A = o.append
    vOST = vCW
    D = int(CFG.get("cdist", 4))
    LAND, OWN = vS + 64, vS + 64 + 48
    def acc(k, q2, t): return (256 + 64 + 16 * k if k < 3 else OWN) + 4 * (q2 * 2 + t)
    def gsel(k, dst, sh): return [f"s_add_u32 {sr(dst)}, {sr(sHO)}, {k + 1}", f"s_and_b32 {sr(dst)}, {sr(dst)}, 3", f"s_lshl_b32 {sr(dst)}, {sr(dst)}, {sh}"]
    def dma(ch):
        G = []
        for p in range(4):
            g = []
            if p == 0:
                if ch % 4 == 0: g += gsel(ch // 4, sG, 18)
                g += [f"s_add_u32 {sr(sSP)}, {sr(sG)}, {(ch % 4) * 16384}", m0_at((ch % 8) * 16384), "s_nop 0"]
            g.append(f"buffer_load_dwordx4 {vr(vLIN)}, {sr(sOL,4)}, {sr(sSP)} offen offset:{p*1024} sc1 lds ; #c{ch}")
            G.append(g)
        return G
    def ofr(u, kl, q2): return 256 + 32 * (u % 2) + 4 * (kl * 2 + q2)
    def reads(u):
        ch = u // 2; base = (ch % 8) * 16384 + (u % 2) * 8192
        return [f"ds_read_b128 {rr(ofr(u,kl,q2),4)}, {vr(vKA if base >= 65536 else vOST)} offset:{base % 65536 + (kl*2+q2)*1024} ; #u{u}_{q2}" for q2 in range(2) for kl in range(4)]
    for ch in range(D): o += flat(dma(ch))
    o += ["@wait c0", "s_barrier"] + stamp() + reads(0)
    mf = []; nvm = {}; pre = {}; vm = {}
    nxc = [D]
    PB = CFG.get("pb16", True)
    vac = []
    for u in range(32):
        k = u // 8
        for j, (q2, t) in enumerate(((0, 0), (0, 1), (1, 1), (1, 0))):
            for i in range(4):
                kl = i if j % 2 == 0 else 3 - i
                f = ((u % 8) * 4 + kl) * 2 + t
                d = rr(acc(k, q2, t), 4)
                mf.append(f"{MF} {d}, {rr(WREG[f],4)}, {rr(ofr(u,kl,q2),4)}, {d if (u % 8 or i) else 0}")
        g0 = 16 * u
        (nvm.setdefault(g0 - 1, []) if u else o).append(f"@wait - lds=u{u}_0")
        nvm.setdefault(g0 + 7, []).append(f"@wait - lds=u{u}_1")
        if u + 1 < 32:
            if u % 2 == 1:
                tags = f"c{u // 2 + 1}"
                fl = int(CFG.get("pfl", 2))
                kk = [x for x in range(3) if 4 * (x + 1) + fl - 1 == u // 2]
                if kk: tags += f",p{kk[0]}"
                pre.setdefault(g0, []).append(f"@wait {tags}")
                nvm.setdefault(g0, []).append("s_barrier")
                if kk:
                    vm[g0 + 13] = gsel(kk[0], sT, 10) + [f"s_add_u32 {sr(sPF2+2)}, {sr(sT)}, 4",
                                   f"buffer_store_dword {vr(vMX)}, {vr(vLIN)}, {sr(sPF2,4)}, {sr(sT)} offen sc1 ; #pf"]
            r = reads(u + 1)
            for j, g in enumerate((1, 2, 4, 5) if False else (1, 3, 6, 8)): nvm.setdefault(g0 + g, []).extend(r[2*j:2*j+2])
        if u % 2 == 0:
            D2 = int(CFG.get("cdist2", D))
            n2 = 2 if nxc[0] + 1 <= u // 2 + D2 and nxc[0] + 1 < 16 else (1 if nxc[0] < 16 else 0)
            G_ = sum([dma(nxc[0] + j) for j in range(n2)], []); nxc[0] += n2
            for grp, g in zip(G_, (5, 12, 21, 28) if n2 == 1 else (2, 5, 9, 12, 20, 23, 27, 30)): vm[g0 + g] = [x for x in grp if x != "s_nop 0"]
        if u % 8 == 0 and u:
            kk = k - 1
            if PB:
                for q2 in range(2):
                    a0 = acc(kk, q2, 0) - 256
                    vac += [(f"v_accvgpr_read_b32 {vr(vL + j)}, {ar(a0 + j)}", g0 + 2, "p") for j in range(8)]
                    vac += [(f"v_cvt_pk_bf16_f32 {vr(vL + 8 + 4*q2 + j)}, {vr(vL + 2*j)}, {vr(vL + 2*j + 1)}", g0 + 2, "p") for j in range(4)]
                    vac += [(x, g0 + 2, "p") for x in (gsel(kk, sTK, 19) if q2 == 0 else [])]
                    vac += [(f"buffer_store_dwordx4 {vr(vL + 8 + 4*q2, 4)}, {vr(vLIN)}, {sr(sPS,4)}, {sr(sTK)} offen offset:{q2*1024} sc1 ; #p{kk}", g0 + 2, "p")]
            else:
                for j, g in enumerate((10, 14, 18, 26)):
                    while g0 + g in vm: g += 1
                    vm[g0 + g] = (gsel(kk, sTK, 19) if j == 0 else []) + [f"buffer_store_dwordx4 {rr(acc(kk, j // 2, j % 2), 4)}, {vr(vLIN)}, {sr(sPS,4)}, {sr(sTK)} offen offset:{j*1024} sc1 ; #p{kk}"]
    STAGED.clear()
    ep = [int(x) for x in CFG.get("ep", "7,11").split(",") if x]
    for n, ch in enumerate(ep):
        k = 2 - n
        g0 = 32 * ch
        vm[g0 + 9] = gsel(k, sTILE, 2) + [f"buffer_load_dword {vr(vT+1)}, off, {sr(sFL,4)}, {sr(sTILE)} offset:16 sc1 ; #e{k}"]
        g1 = g0 + 32 + 16 + 9
        nvm.setdefault(g1, []).extend([f"@wait e{k}", f"v_cmp_ne_u32 vcc, 1, {vr(vT+1)}"])
        nvm.setdefault(g1 + 1, []).extend([f"s_cbranch_vccnz L_e{k}", f"L_e{k}_back:"])
        for j, g in enumerate((g1 + 5, g1 + 9, g1 + 11, g1 + 17)[:2 if PB else 4]):
            while g in vm: g += 1
            vm[g] = ([f"s_lshl_b32 {sr(sTILE)}, {sr(sTILE)}, 12"] if j == 0 else []) + [f"buffer_load_dwordx4 {vr(LAND + 16*k + 4*j, 4)}, {vr(vLIN)}, {sr(sPL,4)}, {sr(sTILE)} offen offset:{j*1024} sc1 ; #l{k}"]
        STAGED.append(k)
    nvm.setdefault(2, []).insert(0, f"s_mov_b32 {sr(sFL+2)}, 32")
    prev = -1
    for g in sorted(vm):
        grp = vm[g]; sca = grp[:-1]
        lo = max([prev] + [q for q in range(g) if any(x.startswith("L_e") for x in nvm.get(q, []))])
        free = [q for q in range(lo + 1, g) if not any(x.startswith(("s_", "@")) for x in nvm.get(q, []))]
        if len(free) >= len(sca):
            for x, q in zip(sca, free[len(free) - len(sca):]): nvm.setdefault(q, []).insert(0, x)
        else: nvm[g - 1] = sca + nvm.get(g - 1, [])
        nvm.setdefault(g, []).append(grp[-1]); prev = g
    nl = 3 - len(STAGED)
    ad = [f"v_and_b32 {vr(vT)}, 3, v0", f"v_min_u32 {vr(vT)}, {nl - 1}, {vr(vT)}", f"v_add_u32 {vr(vT)}, {sr(sHO)}, {vr(vT)}", f"v_add_u32 {vr(vT)}, 1, {vr(vT)}",
          f"v_and_b32 {vr(vT)}, 3, {vr(vT)}", f"v_lshlrev_b32 {vr(vT)}, 2, {vr(vT)}",
          "v_and_b32 v7, 15, v0", "v_lshrrev_b32 v8, 4, v0", "v_lshlrev_b32 v8, 4, v8", "v_lshl_add_u32 v14, v7, 10, v8"]
    lastpoll = int(CFG.get("lp", 500))
    nvm.setdefault(lastpoll, []).append(f"buffer_load_dword {vr(vT+1)}, {vr(vT)}, {sr(sFL,4)}, 0 offen offset:16 sc1 ; #lp")
    part, lft = weave(mf, nvm, [(x, 20, "a") for x in ad] + vac, pre=pre)
    assert not lft
    o += part
    o += stamp()
    A(f"s_mov_b32 {sr(sCNT)}, 0")
    A("@wait lp")
    A(f"v_cmp_ne_u32 vcc, 1, {vr(vT+1)}")
    A("s_cbranch_vccz L_go2")
    A("L_poll2:")
    A(f"buffer_load_dword {vr(vT+1)}, {vr(vT)}, {sr(sFL,4)}, 0 offen offset:16 sc1")
    A("s_waitcnt vmcnt(0)")
    A(f"v_cmp_ne_u32 vcc, 1, {vr(vT+1)}")
    A("s_cbranch_vccz L_go2")
    A(f"s_add_u32 {sr(sCNT)}, {sr(sCNT)}, 1")
    A(f"s_cmp_lt_u32 {sr(sCNT)}, {CFG['spin']}")
    A("s_cbranch_scc1 L_poll2")
    A("L_go2:")
    o += stamp()
    for k in range(nl):
        o += gsel(k, sT, 14)
        for j in range(2 if PB else 4): A(f"buffer_load_dwordx4 {vr(LAND + 16*k + 4*j, 4)}, {vr(vLIN)}, {sr(sPL,4)}, {sr(sT)} offen offset:{j*1024} sc1 ; #l{k}")
    for k in (2, 1, 0):
        A(f"@wait l{k}")
        if PB:
            for j in reversed(range(8)):
                A(f"v_and_b32 {vr(LAND+16*k+2*j+1)}, 0xffff0000, {vr(LAND+16*k+j)}")
                A(f"v_lshlrev_b32 {vr(LAND+16*k+2*j)}, 16, {vr(LAND+16*k+j)}")
        for j in range(0, 16, 2): A(f"v_pk_add_f32 {vr(OWN+j,2)}, {vr(OWN+j,2)}, {vr(LAND+16*k+j,2)}")
    A(f"s_mov_b32 {sr(sT)}, 16384")
    for q2 in range(2):
        for j in range(4): A(f"v_cvt_pk_bf16_f32 {vr(LAND + 4*q2 + j)}, {vr(OWN + 8*q2 + 2*j)}, {vr(OWN + 8*q2 + 2*j + 1)}")
        A(f"buffer_store_dwordx4 {vr(LAND + 4*q2, 4)}, v14, {sr(sOUT,4)}, {sr(sT) if q2 else 0} offen {CFG.get('outst', 'plain').replace('+', ' ').replace('plain', '')}")
    return o

def peeled(lf):
    o = [f"s_mov_b32 {sr(sT)}, 0xe00fe000", f"v_cmp_ne_u32 vcc, {sr(sT)}, {vr(vCW)}", "s_cbranch_vccnz L_cw", "L_cw_back:"]
    for i in range(PEEL0, 15):
        loads = []
        tp = CFG.get("tpol", "nt").replace("+", " ")
        def touch(j, half):
            return [f"s_mov_b32 {sr(sDT)}, {j * 262144 + half * 4096}", f"s_mov_b32 {sr(sO+2)}, {j * 262144 + half * 4096 + 4096}",
                    f"buffer_load_dword {ar(240 + 2*j + half)}, {vr(vCW)}, {sr(sO,4)}, {sr(sDT)} offen {tp} ; #tch"]
        T = [touch(j, h_) for j in range(2) for h_ in range(2)] if CFG.get("local") and tp != "none" else []
        tsch = [int(x) for x in CFG.get("tsch", "13,13,13,13").split(",")]
        mine = [t for t, k in zip(T, tsch) if k == i]
        if i == 12 and CFG.get("local"):
            ids = [[f"v_and_b32 {vr(vCW)}, 63, v0", f"v_lshlrev_b32 {vr(vCW)}, 7, {vr(vCW)}", f"s_nop 0",
                    f"buffer_load_dword {ar(239)}, {vr(vCW)}, {sr(sFLR,4)}, 0 offen offset:4 sc1 ; #ids"]]
            loads = [(ids + mine, 0, NG)]
        fixed = {}
        if i == 12 and CFG.get("wtouch", False):
            tg = [int(x) for x in CFG.get("wtg", "65,68,93,107").split(",")]
            NP = len(tg)
            fixed[64] = [f"v_and_b32 {vr(vCW)}, {64 // NP - 1}, v0", f"v_lshlrev_b32 {vr(vCW)}, 7, {vr(vCW)}"]
            for j, g in enumerate(tg):
                off = j * 8192 // NP
                fixed.setdefault(g, []).append(f"buffer_load_dword {ar(252 + j)}, {vr(vCW)}, {sr(sWFL,4)}, {sr(sRX if off >= 4096 else sRW)} offen offset:{off % 4096} sc1 ; #wt")
        r1at = int(CFG.get("r1at", 14))
        if i == 13:
            g = mine + (wo_loads("R1")[:8] if r1at == 13 else [])
            if not CFG.get("local"): g = wo_loads("R1")
            loads = [(g, int(CFG.get("r1lo", 0)), NG)] if g else []
        if i == 14:
            loads = [(wo_loads("R2") + wo_loads("R4"), 64, NG)]
            if CFG.get("local"):
                chk = [f"@wait ids,tch", f"v_accvgpr_read_b32 {vr(vCW)}, {ar(239)}"]
                r1 = wo_loads("R1")[(8 if r1at == 13 else 0):]
                k8 = len(r1) - 8
                r1[k8] = chk + r1[k8]
                loads.insert(0, (r1, 0, 64))
        o += iteration(i, f"L_r{i}", loads, phase_c_srds() if i == PEEL0 else (), fixed)
    o += stamp()
    o += tail_and_epilogue(3)
    o += phase_c()
    fifo = [f"K{PEEL0+2}"] * 4 + [f"V{PEEL0+1}"] * 4
    if CFG.get("skipst"): o = [x for x in o if "#ost" not in x]
    if CFG.get("skipp"): o = [x for x in o if not re.search(r"#p\d", x)]
    o, _, _ = resolve(o, fifo, lf)
    return o

def stamp_out():
    if not CFG["stamps"]: return []
    o = ["s_waitcnt vmcnt(0)"] + stamp()
    A = o.append
    A(f"s_lshl_b32 {sr(sT)}, s2, 10"); A(f"s_add_u32 {sr(sT)}, {sr(sT)}, {STAMP_OFF}")
    o += srd_at(4, 14, sr(sT), 1024)
    A("v_lshlrev_b32 v1, 2, v0")
    A(f"buffer_store_dword v{STV}, v1, s[4:7], 0 offen")
    if CFG.get("dbgout"):
        o += srd_at(4, 12, "0", 64)
        A("v_and_b32 v2, 63, v0")
        A("v_lshlrev_b32 v1, 1, v2"); A("v_add_u32 v1, 6, v1")
        A("v_and_b32 v3, 1, v2"); A("v_cmp_eq_u32 vcc, 0, v3"); A("v_mov_b32 v3, 0x1000"); A("s_nop 1")
        A("v_cndmask_b32 v1, v1, v3, vcc")
        A(f"v_cmp_lt_u32 vcc, {2*nstamp[0]}, v2"); A("s_nop 1"); A("v_cndmask_b32 v1, v1, v3, vcc")
        A(f"buffer_atomic_umax v{STV}, v1, s[4:7], 0 offen sc1")
        A(f"v_not_b32 v4, v{STV}")
        A("v_cmp_eq_u32 vcc, 1, v2"); A("s_nop 1"); A("v_cndmask_b32 v1, v3, 4, vcc")
        A(f"buffer_atomic_umax v4, v1, s[4:7], 0 offen sc1")
    return o

def kernel():
    pro, fifo, lf0 = prologue()
    _, _, lf = resolve(iteration(0, "x") + iteration(1, "x"), [])
    its = []
    for u in range(4):
        it, _, lf2 = resolve(iteration(u, f"L_r{u}"), [], lf)
        assert lf2 == lf
        its.append(it)
    assert len(lf0) >= len(lf) and lf0[len(lf0)-len(lf):] == lf or CFG["stamps"] or CFG.get("probe"), (lf0, lf)
    pe = peeled(lf)
    body = list(pro)
    body.append("L_loop:")
    for u in range(4):
        it = list(its[u])
        if u == 3:
            k = [i for i, x in enumerate(it) if x.startswith(MF)]
            it.insert(k[-3] + 1, f"s_cmp_lt_u32 {sr(sCNT)}, {NPASS}")
            it.insert(k[-4] + 1, f"s_add_u32 {sr(sCNT)}, {sr(sCNT)}, 1")
            it.append("s_cbranch_scc1 L_loop")
            its[3] = it
        body += it
    body += pe
    body += stamp_out()
    if CFG.get("fixdur"):
        body += ["L_fix:", "s_memrealtime s[40:41]", "s_waitcnt lgkmcnt(0)", "s_sub_u32 s40, s40, s42", f"s_cmp_lt_u32 s40, {int(CFG['fixdur'])*100}", "s_cbranch_scc1 L_fix"]
    body.append("L_end:")
    body.append("s_endpgm")
    for u in list(range(4)) + list(range(PEEL0, 15)):
        body += [f"L_r{u}a:", f"s_call_b64 {sr(sRET,2)}, L_ra{1 - u % 2}", f"s_branch L_r{u}a_back"]
        body += [f"L_r{u}b:", f"s_call_b64 {sr(sRET,2)}, L_rb", f"s_branch L_r{u}b_back"]
    body += ["L_cw:", f"s_mov_b32 {sr(sCNT)}, 0", "L_cw_loop:",
             f"v_and_b32 {vr(vCW)}, 3, v0", f"v_lshlrev_b32 {vr(vCW)}, 6, {vr(vCW)}",
             f"buffer_load_dword {vr(vCW)}, {vr(vCW)}, {sr(sDB,4)}, 0 offen sc1", "s_waitcnt vmcnt(0)",
             f"v_cmp_ne_u32 vcc, {sr(sT)}, {vr(vCW)}", "s_cbranch_vccz L_cw_back",
             f"s_add_u32 {sr(sCNT)}, {sr(sCNT)}, 1", f"s_cmp_lt_u32 {sr(sCNT)}, {CFG['spin']}", "s_cbranch_scc1 L_cw_loop",
             "s_branch L_cw_back"]
    if CFG.get("local"): body += ["L_pubg:", "buffer_wbl2 sc1", "s_waitcnt vmcnt(0)",
             f"buffer_store_dword {vr(vMX)}, {vr(vLIN)}, {sr(sFL,4)}, 0 offen sc1", "s_branch L_pubg_back"]
    if CFG.get("local"): body += ["L_acq:", "buffer_inv sc1", "s_waitcnt vmcnt(0)", "s_branch L_acq_back"]
    for k in STAGED:
        body += [f"L_e{k}:", f"s_mov_b32 {sr(sCNT)}, 0", f"L_e{k}_loop:",
                 f"buffer_load_dword {vr(vT+1)}, off, {sr(sFL,4)}, {sr(sTILE)} offset:16 sc1", "s_waitcnt vmcnt(0)",
                 f"v_cmp_ne_u32 vcc, 1, {vr(vT+1)}", f"s_cbranch_vccz L_e{k}_back",
                 f"s_add_u32 {sr(sCNT)}, {sr(sCNT)}, 1", f"s_cmp_lt_u32 {sr(sCNT)}, {CFG['spin']}", f"s_cbranch_scc1 L_e{k}_loop", f"s_branch L_e{k}_back"]
    for p in range(2): body += rare_a(p, f"L_ra{p}")
    body += rare_b("L_rb")
    loop = its[0] + its[1] + its[2] + its[3]
    check(pro + loop + loop + pe, "main")
    def with_rare(seq):
        o = []
        for x in seq:
            m = re.match(r"L_r(\d+)([ab])_back:", x)
            if m: o += (rare_a(1 - int(m.group(1)) % 2, "x") if m.group(2) == "a" else rare_b("x"))[1:]
            o.append(x)
        return o
    check(pro + with_rare(loop + pe), "rare")
    lastscc = None
    for x in body:
        op = x.split()[0] if x.split() else ""
        if op == "s_addc_u32": assert lastscc == "s_add_u32" and prev.startswith("s_add_u32"), (prev, x)
        if op in ("s_cselect_b32", "s_cbranch_scc0", "s_cbranch_scc1"): assert lastscc.startswith("s_cmp"), (lastscc, x)
        if op.startswith(("s_add", "s_sub", "s_and", "s_or", "s_xor", "s_lshl", "s_lshr", "s_cmp", "s_bfe", "s_min", "s_max", "s_not")): lastscc = op
        prev = x
    if CFG["verbose"]:
        for g in range(NG): print(g, PLAN[g])
    return "\n".join(body)

if __name__ == "__main__":
    k = kernel()
    txt = file_text([dict(label=NAME + "_kernel", body=k, grid=256, block=256, lds=163840, vgpr=512, accum=256)], single=True)
    open(sys.argv[1], "w").write(txt)
```

```python
import sys, math, struct, re
from asmlib import *
from check import check

CFG = dict(qst=False, stamps=False, codepf=True, warm=True, spin=200000, verbose=False)
for a in sys.argv[2:]:
    k, v = a.split("=")
    CFG[k] = {"0": False, "1": True}.get(v, v)

MF = "v_mfma_f32_16x16x32_bf16"
def vr(b, n=1): return f"v{b}" if n == 1 else f"v[{b}:{b+n-1}]"
def ar(b, n=1): return f"a{b}" if n == 1 else f"a[{b}:{b+n-1}]"
def sr(b, n=1): return f"s{b}" if n == 1 else f"s[{b}:{b+n-1}]"
def rr(r, n=1): return vr(r, n) if r < 256 else ar(r - 256, n)
def slots(t):
    if t.startswith(("v_exp", "v_rcp", "buffer_", "global_", "v_permlane")): return 2
    if t.startswith(("s_", "@", "L_")): return 0
    return 1

sX, sWQ, sK, sV, sO = 4, 8, 12, 16, 20
sWFL, sOL = 4, 8
sWAVE, sB, sH, sW4K, sW8K = 24, 25, 26, 27, 28
sCB, sMT, sNT = 29, 30, 31
sXO, sWO = 32, 40
sOUT, sFLR = 32, 36
sTILE, sCNT, sTHR, sSC, sSP = 44, 45, 46, 47, 48
sRET = 50
sTK, sROT, sRQ, sRX, sRW = 49, 92, 93, 94, 95
sW1K, sDT = 96, 97
sPF = 98
sPS, sPL, sPF2 = 80, 84, 76
sHO, sG = 29, 30
sRC = 93
sXCC, sGLB = 3, 94
sT = 52
sARG = 56
sFL, sDB, sDBW = 72, 76, 88
sWS2, sWO2 = 80, 84
vKA, vVA, vDK, vDV = 1, 5, 13, 17
vMX, vLIN, vCW, STV = 19, 21, 22, 23
vT = 24
vONES = 28
vNEG, vL, vQ, vS = 32, 48, 64, 128
vWA, vXA, vDX, vDW, vWOF = 64, 72, 76, 78, 80
vWOA, vWOS = 19, 20
vDUM = [22, 26, 27]
u0, u1, u2, u3, u4, u5, ln = 128, 129, 130, 131, 132, 133, 134
aO, aF = 0, 128
LK, LV, LW = 0, 65536, 131072
LX = [81920, 131072]
LWQ = [32768, 49152, 65536]
LWO = 114688
WOF_OFF, FLAG_OFF, PART_OFF, STAMP_OFF = 0x1000000, 0x1400000, 0x1800000, 0x4000000

def Ureg(p, ks, qb): return vS + 64 * p + 8 * (ks * 4 + qb)
def Sreg(p, kb, qb): return Ureg(p, kb // 2, qb) + 4 * (kb % 2)
def Oreg(qb, dt): return aO + 4 * (qb * 8 + dt)
def Qreg(qb, s): return vQ + 16 * qb + 4 * s
def Freg(n): return aF + 4 * n

nstamp = [0]
def stamp():
    if CFG.get("probe"):
        i = nstamp[0]; nstamp[0] += 1
        return ["s_memrealtime s[42:43]", "s_waitcnt lgkmcnt(0)"] if i == int(CFG["probe"][1:]) else []
    if not CFG["stamps"]: return []
    i = nstamp[0]; nstamp[0] += 1
    assert i < 30
    return ["s_memtime s[40:41]", "s_waitcnt lgkmcnt(0)", f"v_writelane_b32 v{STV}, s40, {2*i}",
            "s_memrealtime s[40:41]", "s_waitcnt lgkmcnt(0)", f"v_writelane_b32 v{STV}, s40, {2*i+1}"]

def srd(s, size):
    return [f"s_and_b32 {sr(s+1)}, {sr(s+1)}, 0xffff", f"s_mov_b32 {sr(s+2)}, {size}", f"s_mov_b32 {sr(s+3)}, 0x20000"]
def srd_at(s, arg, offreg, size):
    return [f"s_add_u32 {sr(s)}, {sr(sARG+arg)}, {offreg}", f"s_addc_u32 {sr(s+1)}, {sr(sARG+arg+1)}, 0"] + srd(s, size)

def tag(lst, t): return [(x + f" ; #{t}") if x.startswith(("buffer_", "global_")) and "#" not in x else x for x in lst]
def resolve(seq, fifo, lfifo=()):
    fifo = list(fifo); lf = list(lfifo); out = []
    def cut(f, n): return f[len(f) - n:] if 0 < n < len(f) else (f if n else [])
    for x in seq:
        if x.startswith("@wait"):
            parts = x.split()
            w = []
            idx = [i for i, t in enumerate(fifo) if t in parts[1].split(",")]
            if idx:
                n = min(63, len(fifo) - 1 - max(idx)); fifo = cut(fifo, n); w.append(f"vmcnt({n})")
            for p in parts[2:]:
                if p.startswith("vm="): n = int(p[3:]); fifo = cut(fifo, n); w.append(f"vmcnt({n})")
                if p.startswith("lgkm="): n = int(p[5:]); lf = cut(lf, n); w.append(f"lgkmcnt({n})")
                if p.startswith("lds="):
                    idx = [i for i, t in enumerate(lf) if t in p[4:].split(",")]
                    if idx:
                        n = min(15, len(lf) - 1 - max(idx)); lf = cut(lf, n); w.append(f"lgkmcnt({n})")
            if w: out.append("s_waitcnt " + " ".join(w))
            continue
        m = re.search(r"#(\S+)", x)
        if x.startswith(("buffer_", "global_")): fifo.append(m.group(1) if m else "?")
        if x.startswith("ds_"): lf.append(m.group(1) if m else "?")
        m = re.match(r"s_waitcnt.*vmcnt\((\d+)\)", x)
        if m: fifo = cut(fifo, int(m.group(1)))
        m = re.match(r"s_waitcnt.*lgkmcnt\((\d+)\)", x)
        if m: lf = cut(lf, int(m.group(1)))
        out.append(x)
    return out, fifo, lf

CONT = CFG.get("cont", False)
NOSWAP = CFG.get("noswap", True)
DIST = int(CFG.get("dist", 3))
def dma_k(p, soff):
    if CONT: return f"buffer_load_dwordx4 {vr(vDK)}, {sr(sK,4)}, {sr(sDT)} offen nt lds"
    return f"buffer_load_dwordx4 {vr(vDK+p)}, {sr(sK,4)}, {soff} offen offset:{1024*p} nt lds"
def dma_v(p, soff):
    if CONT: return f"buffer_load_dwordx4 {vr(vDV)}, {sr(sV,4)}, {sr(sDT)} offen nt lds"
    return f"buffer_load_dwordx4 {vr(vDV + p%2)}, {sr(sV,4)}, {soff} offen offset:{1024*p} nt lds"
def cont_pre(base, p, soff): return [f"s_add_u32 m0, {sr(sW1K)}, {base + p*4096}", f"s_add_u32 {sr(sDT)}, {soff}, {p*4096}"]
def m0_at(addr): return f"s_add_u32 m0, {sr(sW4K)}, {addr}"
def kv_batch(which, tile):
    out = [m0_at((LK + slotK(tile) * 16384 if which == "K" else LV + slotV(tile) * 16384)), f"s_add_u32 {sr(sT)}, {sr(sROT)}, {tile*16384}", f"s_and_b32 {sr(sT)}, {sr(sT)}, 0x3ffff"]
    for p in range(4):
        if CONT: out += cont_pre((LK if which == "K" else LV) + (tile % 4) * 16384, p, sr(sT))
        out.append(dma_k(p, sr(sT)) if which == "K" else dma_v(p, sr(sT)))
    return tag(out, f"{which}{tile}")

NPASS = int(CFG.get("npass", 3))
PEEL0 = 4 * NPASS
def slotK(t): return t % 4
def slotV(t): return t % 4
def rd_k(slot, n):
    kb, s = n // 4, n % 4
    return f"ds_read_b128 {ar(Freg(n),4)}, {vr(vKA+s)} offset:{slot*16384 + kb*4096} ; #k{n}"
def rd_v(slot, n, t):
    dt, ks = n // 2, n % 2
    return f"ds_read_b64_tr_b16 {ar(Freg(n)+2*t,2)}, {vr(vVA+dt)} offset:{slot*16384 + (32*ks+16*t)*256} ; #v{n}"

def qk_one(p, kb, qb, s, first, czero=False):
    d = Sreg(p, kb, qb)
    c = vr(d, 4) if not first else ("0" if czero else vr(vNEG + 4*qb, 4))
    return f"{MF} {vr(d,4)}, {ar(Freg(kb*4+s),4)}, {vr(Qreg(qb,s),4)}, {c}"
def qk_list(p):
    return [qk_one(p, kb, qb, (i if qb % 2 == 0 else 3 - i), i == 0) for kb in range(4) for qb in range(4) for i in range(4)]
def pv_one(p, dt, qb, ks):
    o = Oreg(qb, dt)
    return f"{MF} {ar(o,4)}, {ar(Freg(dt*2+ks),4)}, {vr(Ureg(p,ks,qb),4)}, {ar(o,4)}"
def sum_one(p, qb, ks):
    return f"{MF} {vr(vL+4*qb,4)}, {vr(vONES,4)}, {vr(Ureg(p,ks,qb),4)}, {vr(vL+4*qb,4)}"
def pv_list(p):
    return ([pv_one(p, dt, qb, (i if qb % 2 == 0 else 1 - i)) for dt in range(8) for qb in range(4) for i in range(2)]
            + [sum_one(p, qb, ks) for qb in range(4) for ks in range(2)])

UNITS = [(0, 0), (1, 0), (1, 1), (0, 1), (0, 2), (1, 2), (1, 3), (0, 3)]
def ereg(p, e): ks, qb = UNITS[e // 8]; return Ureg(p, ks, qb) + e % 8
def exp_i(p, e): r = ereg(p, e); return f"v_exp_f32 {vr(r)}, {vr(r)}"
def cvt_i(p, k):
    r = ereg(p, 2 * k); return f"v_cvt_pk_bf16_f32 {vr(r - (2*k) % 8 + k % 4)}, {vr(r)}, {vr(r+1)}"
def max_items(p):
    out = []
    for kb in range(4):
        for qb in range(4):
            r = Sreg(p, kb, qb); m = vr(vMX + qb % 2); done = 16 * kb + 4 * qb + 3
            if kb == 0 and qb < 2:
                out.append((f"v_max3_f32 {m}, {vr(r)}, {vr(r+1)}, {vr(r+2)}", done))
                out.append((f"v_max_f32 {m}, {vr(r+3)}, {m}", done))
            else:
                out.append((f"v_max3_f32 {m}, {vr(r)}, {vr(r+1)}, {m}", done))
                out.append((f"v_max3_f32 {m}, {vr(r+2)}, {vr(r+3)}, {m}", done))
    return out

NG = 136
HOOKA = 69
BARG = 118
LAT = 8
def make_plan():
    plan = {g: [] for g in range(NG)}
    T0 = HOOKA
    dsp = int(CFG.get("dsp", 14))
    dv0 = int(CFG.get("dv0", 72))
    dma_g = [4 + dsp * i for i in range(4)] + [dv0 + dsp * i for i in range(4)]
    dma_t = [g + NG if g < HOOKA else g for g in dma_g]
    NX2 = int(CFG.get('nx2', 40))
    r2 = [t for t in range(T0, NG) if t != BARG and t not in dma_t]
    r1 = [t for t in range(NG, NG + 64) if t not in dma_t]
    xt = [r2[i * len(r2) // NX2] for i in range(NX2)] + [r1[i * len(r1) // (64 - NX2)] for i in range(64 - NX2)]
    assert len(set(xt)) == 64
    for e, t in enumerate(xt): plan[t % NG].append(("exp", e, t >= NG))
    for i, t in enumerate(dma_t): plan[t % NG].append(("dma", i))
    Y = []
    for k in range(32):
        Y.append((xt[2*k+1] + 1, NG + 64 + k // 4 - 2, ("cvt", k)))
    for i, (_, done) in enumerate(max_items(0)):
        Y.append((NG + done + 3, NG + HOOKA - 3, ("max", i)))
    Y.append((NG + 66, NG + HOOKA - 2, ("max", 32))); Y.append((NG + 66, NG + HOOKA - 1, ("max", 33)))
    for n in range(16):
        Y.append((max(BARG + 1, 64 + 8 * (n // 2) + 7), NG + 16 * (n // 4) - LAT, ("k", n)))
    NV1 = int(CFG.get("nv1", 10))
    for n in range(16):
        e, d = 16 * (n // 4) + 15, min(64 + 8 * (n // 2) - LAT, BARG - 10)
        for t in range(2):
            if n < NV1: Y.append((NG + e, NG + min(d, HOOKA - 1), ("v", n, t)))
            else: Y.append((T0, d, ("v", n, t)))
    def kind(y): return y[2][0] + ("1" if y[2][0] == "v" and y[0] >= NG else "")
    ygaps = [t for t in range(T0, T0 + NG) if not plan[t % NG] and t % NG != BARG]
    pend = list(Y)
    for t in ygaps:
        g = t % NG
        picked = []
        for _ in range(2):
            heads = {}
            for y in pend: heads.setdefault(kind(y), y)
            c = [y for y in heads.values() if y[0] <= t]
            if not c: break
            def eff(y):
                same = [z for z in pend if kind(z) == kind(y)]
                return min(z[1] - i / 1.2 for i, z in enumerate(same))
            y = min(c, key=eff)
            assert t <= y[1], ("deadline miss", t, y)
            picked.append(y); pend.remove(y)
        picked.sort(key=lambda y: 0 if y[2][0] in ("k", "v") else 1)
        for y in picked: plan[g].append(y[2] + ((t >= NG,) if y[2][0] == "cvt" else ()))
    assert not pend, pend
    return plan
PLAN = make_plan()

def iteration(i, lab, loads=None, salu=(), fixed=None):
    assert DIST == 3 and not CONT
    p = i % 2
    steady = i < PEEL0
    sc = {g: [] for g in range(NG)}
    for kb in range(4): sc[16 * kb - 1 if kb else NG - 2].append(f"@wait - lds=" + ",".join(f"k{kb*4+s}" for s in range(4)))
    for dt in range(8):
        if 64 + 8 * dt - 1 < BARG - 1: sc[64 + 8 * dt - 1].append(f"@wait - lds=v{2*dt},v{2*dt+1}")
    sc[BARG - 1].append(f"@wait - vm={10 if i == 1 else (9 if i == 2 and CFG.get('repf', False) else 8)} lgkm=0" if steady else f"@wait K{i+2},V{i+1} lgkm=0")
    sc[BARG].append("s_barrier")
    if CFG.get("itst"):
        sc[BARG - 2].append("s_memrealtime s[40:41]")
        sc[BARG] += ["s_mov_b64 exec, s[42:43]", f"v_mov_b32 v{STV}, s40", "s_mov_b64 exec, -1", "s_lshl_b64 s[42:43], s[42:43], 1"]
    sc[HOOKA] += [f"s_cbranch_vccnz {lab}a", f"{lab}a_back:"]
    sc[NG - 1] = [f"s_cbranch_vccnz {lab}b", f"{lab}b_back:"] + sc[NG - 1]
    if CFG.get("evslow"):
        sc[90] += ["s_and_b32 s101, s2, 1"]; sc[91] += ["s_cmp_eq_u32 s101, 0"]; sc[92] += [f"s_cbranch_scc1 {lab}z", f"{lab}z_back:"]
    extra = dict(fixed or {})
    vm = {}
    hask, hasv = i + 3 <= 15, i + 2 <= 15
    for j, g in enumerate(DMA_GAPS):
        if j < 4 and hask: vm[g] = [m0_at(LK + slotK(i + 3) * 16384), dma_k(j, sr(sTK)) + f" ; #K{i+3}"]
        v15 = CFG.get("v15", "a")
        if i == 13 and v15 != "n":
            if j < 4 and v15 == "a": vm[(2, 8, 14, 20)[j] if CFG.get("v15d", True) else g] = [m0_at(LV + slotV(15) * 16384), dma_v(j, sr(sTILE)) + " ; #V15"]
            continue
        if j >= 4 and hasv: vm[g] = [m0_at(LV + slotV(i + 2) * 16384), dma_v(j - 4, sr(sTILE)) + f" ; #V{i+2}"]
    if i == 12 and CFG.get("v15", "a") == "b":
        vm = {}
        for j in range(4):
            vm[(4, 13, 22, 32)[j]] = [m0_at(LK + slotK(15) * 16384), dma_k(j, sr(sTK)) + " ; #K15"]
            vm[(40, 46, 58, 64)[j]] = [m0_at(LV + slotV(14) * 16384), dma_v(j, sr(sTILE)) + " ; #V14"]
            vm[(72, 86, 100, 114)[j]] = [m0_at(LV + slotV(15) * 16384), dma_v(j, sr(sTK)) + " ; #V15"]
    sc[120].append(f"s_mov_b32 {sr(sTILE)}, {sr(sTK)}")
    sc[121].append(f"s_add_u32 {sr(sTK)}, {sr(sTK)}, 0x4000")
    sc[122].append(f"s_and_b32 {sr(sTK)}, {sr(sTK)}, 0x3ffff")
    if steady:
        if i == 1:
            extra[64] = [f"v_and_b32 {vr(vCW)}, 3, v0", f"v_lshlrev_b32 {vr(vCW)}, 6, {vr(vCW)}"]
            extra[65] = [f"buffer_load_dword {vr(vCW)}, {vr(vCW)}, {sr(sDB,4)}, 0 offen sc1"]
            sc[40].append(f"s_cmp_eq_u32 {sr(sCNT)}, {NPASS - 1}")
            sc[41].append(f"s_cselect_b32 {sr(sDB+2)}, 256, 0")
            extra[68] = [f"buffer_atomic_add {vr(vONES)}, {vr(vLIN)}, {sr(sDBW,4)}, 0 offen sc1"]
            sc[75].append(f"s_mov_b32 {sr(sDBW+2)}, 0")
        if i == 2 and CFG.get("repf", False):
            extra[64] = [f"v_and_b32 {vr(vT)}, 31, v0", f"v_lshlrev_b32 {vr(vT)}, 10, {vr(vT)}"]
            extra[65] = [f"v_add_u32 {vr(vT)}, {sr(sPF+2)}, {vr(vT)}", f"v_min_u32 {vr(vT)}, L_end-L_pc, {vr(vT)}"]
            extra[68] = [f"global_load_dword {ar(255)}, {vr(vT)}, {sr(sPF,2)}"]
    else:
        nextk = i + 2 <= 15
        def load(g):
            return sum(2 if it[0] == "exp" else (0 if it[0] == "dma" or (it[0] == "k" and g > BARG and not nextk) else 1) for it in PLAN[g])
        gs = 0
        for x in salu:
            if x.startswith("s_addc"):
                sc[gs - 1].append(x); continue
            while sc[gs] or gs in vm or gs + 1 in vm: gs += 1
            sc[gs].append(x); gs += 1
        for groups, lo, hi in loads:
            cand = [g for g in range(max(lo, gs + 3 if salu else 0), hi) if g not in vm and g not in (BARG, BARG - 1, HOOKA, NG - 1)]
            n = len(groups)
            for k, grp in enumerate(groups):
                win = cand[k * len(cand) // n:(k + 1) * len(cand) // n]
                vm[min(win, key=load)] = grp
    cur_m0 = None; prev = -1
    for g in sorted(vm):
        grp = vm[g]; sca = []
        for x in grp[:-1]:
            if x.startswith("s_add_u32 m0"):
                if x == cur_m0: continue
                cur_m0 = x
            sca.append(x)
        free = [q for q in range(prev + 1, g + 1) if not sc[q] and not (steady and q in (40, 41))]
        if sca and sca[-1].startswith("s_add_u32 m0"): free = [q for q in free if q < g]
        if len(free) >= len(sca):
            for x, q in zip(sca, free[len(free) - len(sca):]): sc[q].append(x)
        else:
            sc[g] += sca + ["s_nop 0"]
        prev = g
    mf = qk_list(1 - p) + pv_list(p)
    MX = [t for t, _ in max_items(1 - p)] + [f"v_max_f32 {vr(vMX)}, {vr(vMX)}, {vr(vMX+1)}", f"v_cmp_lt_f32 vcc, {sr(sTHR)}, {vr(vMX)}"]
    out = []
    for g in range(NG):
        out.append(mf[g])
        out += sc[g]
        ex = extra.get(g, [])
        out += [x for x in ex if not x.startswith("v_")]
        if g in vm: out.append(vm[g][-1])
        for it in PLAN[g]:
            k = it[0]
            if k == "exp": out.append(exp_i(p if it[2] else 1 - p, it[1]))
            elif k == "cvt": out.append(cvt_i(p if it[2] else 1 - p, it[1]))
            elif k == "max":
                if not CFG.get("nomax"): out.append(MX[it[1]])
            elif k == "k":
                t = i + (2 if g > BARG else 1)
                if t <= 15: out.append(rd_k(slotK(t), it[1]))
            elif k == "v": out.append(rd_v(slotV(i), it[1], it[2]))
        out += [x for x in ex if x.startswith("v_")]
        if CFG.get("slowdown") and g % int(CFG["slowdown"]) == 5: out.append("s_nop 7")
    return out
EARLY_K = [it[1] for g in range(BARG + 1, NG) for it in PLAN[g] if it[0] == "k"]
E_FIRST = [it for g in range(HOOKA, NG) for it in PLAN[g] if it[0] in ("exp", "cvt")]
E_REST = [it for g in range(0, HOOKA) for it in PLAN[g] if it[0] in ("exp", "cvt")]
DMA_GAPS = [g for g in range(NG) if any(it[0] == "dma" for it in PLAN[g])]
LIGHT = sorted(range(NG), key=lambda g: (sum(2 if it[0] in ("exp",) else (0 if it[0] == "dma" else 1) for it in PLAN[g])))

def spread(items, gaps):
    d = {}
    for i, it in enumerate(items):
        d.setdefault(gaps[i * len(gaps) // len(items)], []).extend(it)
    return d
def place(groups, lo, hi):
    cand = [g for g in LIGHT if lo <= g < hi and g not in (BARG, BARG - 1, HOOKA, NG - 1)]
    gs = sorted(cand[:len(groups)])
    assert len(gs) == len(groups)
    return {g: list(x) for g, x in zip(gs, groups)}
def merge(*maps):
    d = {}
    for m in maps:
        for k, v in m.items(): d.setdefault(k, []).extend(v)
    return d
def flat(G): return [x for g in G for x in g]
def groups_of(lst):
    G = []; cur = []
    for x in lst:
        cur.append(x)
        if x.startswith("buffer_"): G.append(cur); cur = []
    if cur: G[-1] += cur
    return G

WREG = []
WP = {}
for nm, base, n in (("R1", 256 + 192, 16), ("R2", vQ, 16), ("R4", vNEG, 4), ("R3", vS, 16), ("R5", 256 + aF, 12)):
    WP[nm] = list(range(len(WREG), len(WREG) + n)); WREG += [base + 4 * i for i in range(n)]
assert len(WREG) == 64
def wo_loads(name, sp=None):
    sp = sSP if sp is None else sp
    groups = []
    for f in WP[name]:
        g = []
        if f % 4 == 0:
            g = [f"s_add_u32 {sr(sp)}, {sr(sRC)}, {f * 1024}", f"s_and_b32 {sr(sp)}, {sr(sp)}, 0xffff"] if CFG.get("krot", True) else [f"s_mov_b32 {sr(sp)}, {f * 1024}"]
        g.append(f"buffer_load_dwordx4 {rr(WREG[f], 4)}, {vr(vLIN)}, {sr(sWFL,4)}, {sr(sp)} offen offset:{(f%4)*1024} sc1 ; #w{f}")
        groups.append(g)
    return groups

def weave(mf, nvmap, va=(), pre=None, need=None):
    out = []; va = list(va)
    for g, m in enumerate(mf):
        if need and g in need:
            last = max([i for i, x in enumerate(va) if x[2] == need[g]], default=-1)
            if last >= 0:
                if va[last][1] > g - 1: out.append("s_nop 7")
                out += [x[0] for x in va[:last + 1]] + ["s_nop 1"]; va = va[last + 1:]
            elif any(x.startswith("v_") and not x.startswith("v_mfma") for x in out[-2:]): out.append("s_nop 1")
        if pre and g in pre: out += pre[g]
        out.append(m)
        nv = nvmap.get(g, [])
        out += nv
        c = sum(slots(x) for x in nv)
        while va and va[0][1] <= g and c + slots(va[0][0]) <= 2:
            c += slots(va[0][0]); out.append(va.pop(0)[0])
    return out, va

def allreduce(op, a, b):
    return [f"v_mov_b32 {vr(b)}, {vr(a)}", "s_nop 1", f"v_permlane32_swap_b32 {vr(a)}, {vr(b)}", "s_nop 1", f"{op} {vr(a)}, {vr(a)}, {vr(b)}",
            f"v_mov_b32 {vr(b)}, {vr(a)}", "s_nop 1", f"v_permlane16_swap_b32 {vr(a)}, {vr(b)}", "s_nop 1", f"{op} {vr(a)}, {vr(a)}, {vr(b)}"]
def qmax(p, qb, d):
    regs = [Sreg(p, kb, qb) + j for kb in range(4) for j in range(4)]
    o = [f"v_max3_f32 {vr(d)}, {vr(regs[0])}, {vr(regs[1])}, {vr(regs[2])}"]
    for i in range(3, 15, 2): o.append(f"v_max3_f32 {vr(d)}, {vr(regs[i])}, {vr(regs[i+1])}, {vr(d)}")
    o.append(f"v_max_f32 {vr(d)}, {vr(regs[15])}, {vr(d)}")
    return o
def rare_a(p, label):
    out = [f"{label}:", "s_nop 7"]
    for qb in range(4):
        d = vT + qb
        out += qmax(p, qb, d) + allreduce("v_max_f32", d, vMX)
        out.append(f"v_max_f32 {vr(d)}, 0, {vr(d)}")
        for j in range(4): out.append(f"v_sub_f32 {vr(vNEG+4*qb+j)}, {vr(vNEG+4*qb+j)}, {vr(d)}")
        for kb in range(4):
            for j in range(4):
                r = Sreg(p, kb, qb) + j
                out.append(f"v_sub_f32 {vr(r)}, {vr(r)}, {vr(d)}")
        out.append(f"v_exp_f32 {vr(d)}, -{vr(d)}")
    out += ["s_nop 3", f"s_setpc_b64 {sr(sRET,2)}"]
    return out
def rare_b(label):
    out = [f"{label}:", "s_nop 15"]
    for qb in range(4):
        f_ = vT + qb
        for j in range(4): out.append(f"v_mul_f32 {vr(vL+4*qb+j)}, {vr(vL+4*qb+j)}, {vr(f_)}")
        for j in range(0, 32, 2):
            a0 = Oreg(qb, 0) + j
            out += [f"v_accvgpr_read_b32 {vr(vMX)}, {ar(a0)}", f"v_accvgpr_read_b32 {vr(vMX+1)}, {ar(a0+1)}",
                    f"v_mul_f32 {vr(vMX)}, {vr(vMX)}, {vr(f_)}", f"v_mul_f32 {vr(vMX+1)}, {vr(vMX+1)}, {vr(f_)}",
                    f"v_accvgpr_write_b32 {ar(a0)}, {vr(vMX)}", f"v_accvgpr_write_b32 {ar(a0+1)}, {vr(vMX+1)}"]
    out += ["s_nop 3", f"s_setpc_b64 {sr(sRET,2)}"]
    return out

def wfrag(st, s, dt): return (128 if st % 2 == 0 else 192) + 4 * (dt * 2 + s)
def xfrag(st, s, qb): return (96 if st % 2 == 0 else 32) + 4 * (qb * 2 + s)
def qacc(qb, dt): return Ureg(dt // 4, (dt // 2) % 2, qb) + 4 * (dt % 2)
def qp_reads(st):
    out = []
    for qb in range(4):
        for s in range(2):
            out.append(f"ds_read_b128 {vr(xfrag(st,s,qb),4)}, {vr(vXA + 2*(st%2) + s)} offset:{qb*2048} ; #x{st}_{qb}")
    for dt in range(8):
        for s in range(2):
            for t in range(2):
                if NOSWAP: out.append(f"ds_read_b64_tr_b16 {ar(wfrag(st,s,dt)+2*t,2)}, {vr(vWA + dt//2)} offset:{(st%3)*16384 + (32*s+4*t)*256 + 8*(dt%2)} ; #w{st}_{dt}")
                else: out.append(f"ds_read_b64_tr_b16 {ar(wfrag(st,s,dt)+2*t,2)}, {vr(vWA + dt)} offset:{(st%3)*16384 + (32*s+4*t)*256} ; #w{st}_{dt}")
    return out
def qp_dma(st):
    G = []
    wf = (" " + CFG["wqld"]) if CFG.get("wqld") else ""
    xf = (" " + CFG["xld"]) if CFG.get("xld") else ""
    for p in range(4):
        g = []
        if p == 0:
            g = [f"s_add_u32 {sr(sRX)}, {sr(sRQ)}, {st}", f"s_and_b32 {sr(sRX)}, {sr(sRX)}, 7", f"s_lshl_b32 {sr(sRW)}, {sr(sRX)}, 19",
                 f"s_lshl_b32 {sr(sRX)}, {sr(sRX)}, 7", m0_at(LWQ[st % 3])]
        g.append(f"s_add_u32 {sr(sDT)}, {sr(sRW)}, {p*(32768-1024)}")
        g.append(f"buffer_load_dwordx4 {vr(vDW + p//2)}, {sr(sWQ,4)}, {sr(sDT)} offen offset:{1024*p}{wf} lds ; #st{st}")
        G.append(g)
    for p in range(8):
        g = [f"s_add_u32 m0, {sr(sW8K)}, {LX[st%2] + (p//4)*4096}"] if p % 4 == 0 else []
        g.append(f"s_add_u32 {sr(sDT)}, {sr(sRX)}, {p*8192 - 1024*(p%4)}")
        g.append(f"buffer_load_dwordx4 {vr(vDX + p%2)}, {sr(sX,4)}, {sr(sDT)} offen offset:{1024*(p%4)}{xf} lds ; #st{st}")
        G.append(g)
    return G
def qp_one(st, dt, qb, s, first):
    d = qacc(qb, dt)
    return f"{MF} {vr(d,4)}, {ar(wfrag(st,s,dt),4)}, {vr(xfrag(st,s,qb),4)}, {'0' if first else vr(d, 4)}"
def qp_mfmas(st):
    return [qp_one(st, dt, qb, (i if qb % 2 == 0 else 1 - i), st == 0 and i == 0) for dt in range(8) for qb in range(4) for i in range(2)]
def qp_q(st, qb):
    return [qp_one(st, dt, qb, (i if dt % 2 == 0 else 1 - i), False) for dt in range(8) for i in range(2)]
def qconv(qb, s):
    d = qacc(qb, 2 * s); q = Qreg(qb, s)
    out = [f"v_mul_f32 {vr(d+j)}, {sr(sSC)}, {vr(d+j)}" for j in range(8)]
    out += [f"v_cvt_pk_bf16_f32 {vr(q+j)}, {vr(d+2*j)}, {vr(d+2*j+1)}" for j in (0, 2, 1, 3)]
    return out, [f"v_permlane32_swap_b32 {vr(q)}, {vr(q+2)}", f"v_permlane32_swap_b32 {vr(q+1)}, {vr(q+3)}"], \
                [f"v_permlane16_swap_b32 {vr(q)}, {vr(q+2)}", f"v_permlane16_swap_b32 {vr(q+1)}, {vr(q+3)}"]
def qconv_stream(qb):
    parts = [qconv(qb, s) for s in range(4)]
    if NOSWAP: return [(x, s) for s in range(4) for x in parts[s][0]]
    out = []
    for s in range(4):
        a = parts[s][0]
        if s == 0: out += [(x, s) for x in a]
        else: out += [(x, s) for x in a[:4]] + [(x, s) for x in parts[s-1][1]] + [(x, s) for x in a[4:8]] + [(x, s) for x in parts[s-1][2]] + [(x, s) for x in a[8:]]
    out += [("s_nop 1", 3)] + [(x, 3) for x in parts[3][1]] + [("s_nop 1", 3)] + [(x, 3) for x in parts[3][2]]
    return out

def setup_a():
    o = []; A = o.append
    A("s_cmp_ge_u32 s2, 256")
    A("s_cbranch_scc1 L_end")
    if CFG.get("fixdur"): A("s_memrealtime s[42:43]")
    A(f"s_load_dwordx16 {sr(sARG,16)}, s[0:1], 0")
    if CFG["codepf"]:
        A(f"s_getpc_b64 {sr(sT,2)}")
        A("L_pc:")
        A(f"s_bfe_u32 {sr(sT+2)}, s2, 0x30003")
        A(f"v_lshrrev_b32 {vr(u0)}, 6, v0"); A(f"v_and_b32 {vr(u1)}, 15, v0"); A(f"v_lshl_add_u32 {vr(u0)}, {vr(u0)}, 4, {vr(u1)}")
        A(f"v_lshlrev_b32 {vr(u0)}, 10, {vr(u0)}"); A(f"s_lshl_b32 {sr(sT+2)}, {sr(sT+2)}, 7"); A(f"v_add_u32 {vr(u0)}, {sr(sT+2)}, {vr(u0)}")
        A(f"v_min_u32 {vr(u0)}, L_end-L_pc, {vr(u0)}")
        A(f"global_load_dword {vr(vDUM[0])}, {vr(u0)}, {sr(sT,2)} ; #pf")
        if CFG.get("repf", False):
            A(f"s_mov_b64 {sr(sPF,2)}, {sr(sT,2)}"); A(f"s_add_u32 {sr(sPF+2)}, {sr(sT+2)}, L_cw_back-L_pc")
    A(f"s_and_b32 {sr(sCB)}, s2, 7")
    A(f"s_lshr_b32 {sr(sT+3)}, s2, 3")
    A(f"s_and_b32 {sr(sMT)}, {sr(sT+3)}, 3"); A(f"s_lshr_b32 {sr(sNT)}, {sr(sT+3)}, 2")
    if CFG.get("pmap", "4x8") == "4x8":
        A(f"s_and_b32 {sr(sB)}, {sr(sCB)}, 1"); A(f"s_lshl_b32 {sr(sB)}, {sr(sB)}, 2"); A(f"s_add_u32 {sr(sB)}, {sr(sB)}, {sr(sMT)}")
        A(f"s_lshr_b32 {sr(sH)}, {sr(sCB)}, 1"); A(f"s_lshl_b32 {sr(sH)}, {sr(sH)}, 3"); A(f"s_add_u32 {sr(sH)}, {sr(sH)}, {sr(sNT)}")
    else:
        A(f"s_mov_b32 {sr(sB)}, {sr(sCB)}"); A(f"s_mov_b32 {sr(sH)}, {sr(sT+3)}")
    rq = CFG.get("rq", "x")
    if rq == "n": A(f"s_mov_b32 {sr(sRQ)}, 0")
    elif rq == "x": A(f"s_mov_b32 {sr(sRQ)}, {sr(sCB)}")
    elif rq == "h": A(f"s_mov_b32 {sr(sRQ)}, {sr(sH)}")
    elif rq == "f": A(f"s_lshl_b32 {sr(sRQ)}, {sr(sB)}, 1"); A(f"s_add_u32 {sr(sRQ)}, {sr(sRQ)}, {sr(sH)}")
    elif rq == "g": A(f"s_add_u32 {sr(sRQ)}, {sr(sB)}, {sr(sH)}")
    A(f"v_lshrrev_b32 {vr(u0)}, 6, v0")
    A(f"v_and_b32 {vr(ln)}, 63, v0")
    A(f"v_readfirstlane_b32 {sr(sWAVE)}, {vr(u0)}")
    A(f"v_lshrrev_b32 {vr(u1)}, 4, {vr(ln)}")
    A(f"v_and_b32 {vr(u2)}, 15, {vr(ln)}")
    A(f"v_lshl_add_u32 {vr(u4)}, {vr(u0)}, 4, {vr(u1)}")
    A(f"v_lshlrev_b32 {vr(u3)}, 1, {vr(u1)}")
    A(f"v_xor_b32 {vr(u3)}, {vr(u3)}, {vr(u2)}")
    A(f"v_lshlrev_b32 {vr(u5)}, 4, {vr(u3)}")
    A(f"v_lshl_add_u32 {vr(vDW)}, {vr(u4)}, 13, {vr(u5)}")
    A(f"v_xor_b32 {vr(vDW+1)}, 0x80, {vr(vDW)}")
    if NOSWAP:
        A(f"v_lshlrev_b32 {vr(u3)}, 2, {vr(u1)}"); A(f"v_xor_b32 {vr(u3)}, {vr(u3)}, {vr(u2)}"); A(f"v_lshlrev_b32 {vr(u3)}, 4, {vr(u3)}")
        A(f"v_lshl_add_u32 {vr(vDW)}, {vr(u4)}, 13, {vr(u3)}"); A(f"v_mov_b32 {vr(vDW+1)}, {vr(vDW)}")
    A(f"v_lshrrev_b32 {vr(u3)}, 3, {vr(ln)}")
    A(f"v_lshl_add_u32 {vr(u0)}, {vr(u0)}, 6, {vr(u3)}")
    A(f"v_and_b32 {vr(u3)}, 7, {vr(ln)}")
    A(f"v_xor_b32 {vr(u3)}, {vr(u1)}, {vr(u3)}")
    A(f"v_lshlrev_b32 {vr(u3)}, 4, {vr(u3)}")
    A(f"v_lshl_add_u32 {vr(vDX)}, {vr(u0)}, 10, {vr(u3)}")
    A(f"v_xor_b32 {vr(vDX+1)}, 64, {vr(vDX)}")
    A(f"s_lshl_b32 {sr(sW4K)}, {sr(sWAVE)}, 12")
    A(f"s_lshl_b32 {sr(sW8K)}, {sr(sWAVE)}, 13")
    A(f"s_lshl_b32 {sr(sT)}, {sr(sB)}, 18")
    A(f"s_lshl_b32 {sr(sT+1)}, {sr(sH)}, 8")
    A("s_waitcnt lgkmcnt(0)")
    o += stamp()
    o += srd_at(sWQ, 6, sr(sT+1), 511*8192 + 256)
    o += srd_at(sX, 0, sr(sT), 0x40000)
    return o

def wo_piece_addr():
    return [f"v_lshrrev_b32 {vr(u0)}, 5, v0", f"v_and_b32 {vr(u1)}, 0x1e, {vr(u0)}", f"v_and_b32 {vr(u0)}, 1, {vr(u0)}",
            f"v_lshl_add_u32 {vr(u0)}, {vr(u1)}, 2, {vr(u0)}",
            f"v_and_b32 {vr(u1)}, 31, v0", f"v_lshlrev_b32 {vr(u1)}, 4, {vr(u1)}", f"v_lshl_add_u32 {vr(vWOF)}, {vr(u0)}, 10, {vr(u1)}"]
def wo_piece_dma():
    o = [m0_at(LWO)]
    for p in range(4):
        o.append(f"s_mov_b32 {sr(sDT)}, {1024*p}")
        o.append(f"buffer_load_dwordx4 {vr(vWOF)}, {sr(sWO2,4)}, {sr(sDT)} offen offset:{1024*p} nt lds ; #wo")
    return o

def warm_loads(nst):
    o = []; A = o.append
    A(f"v_lshrrev_b32 {vr(u3)}, 6, v0"); A(f"v_and_b32 {vr(u2)}, 15, v0"); A(f"v_lshl_add_u32 {vr(u3)}, {vr(u3)}, 4, {vr(u2)}")
    A(f"v_and_b32 {vr(u1)}, {nst - 1}, {vr(u3)}"); A(f"v_add_u32 {vr(u1)}, {sr(sRQ)}, {vr(u1)}"); A(f"v_add_u32 {vr(u1)}, 1, {vr(u1)}")
    A(f"v_and_b32 {vr(u1)}, 7, {vr(u1)}")
    A(f"v_lshrrev_b32 {vr(u2)}, 1, {vr(u3)}")
    A(f"v_lshlrev_b32 {vr(u0)}, 7, {vr(u1)}"); A(f"v_lshl_add_u32 {vr(u0)}, {vr(u2)}, 10, {vr(u0)}")
    A(f"s_and_b32 {sr(sT)}, {sr(sH)}, 7"); A(f"s_lshl_b32 {sr(sT)}, {sr(sT)}, 15")
    A(f"buffer_load_dword {vr(vDUM[1])}, {vr(u0)}, {sr(sX,4)}, {sr(sT)} offen ; #warm")
    A(f"v_lshlrev_b32 {vr(u0)}, 19, {vr(u1)}")
    A(f"v_lshrrev_b32 {vr(u3)}, 1, {vr(u2)}"); A(f"v_lshl_add_u32 {vr(u0)}, {vr(u3)}, 13, {vr(u0)}")
    A(f"v_and_b32 {vr(u3)}, 1, {vr(u2)}"); A(f"v_lshl_add_u32 {vr(u0)}, {vr(u3)}, 7, {vr(u0)}")
    A(f"s_and_b32 {sr(sT)}, {sr(sB)}, 3"); A(f"s_lshl_b32 {sr(sT)}, {sr(sT)}, 17")
    A(f"buffer_load_dword {vr(vDUM[2])}, {vr(u0)}, {sr(sWQ,4)}, {sr(sT)} offen ; #warm")
    return o

def setup_b():
    o = []; A = o.append
    A(f"s_lshl_b32 {sr(sT+2)}, {sr(sB)}, 5"); A(f"s_add_u32 {sr(sT+2)}, {sr(sT+2)}, {sr(sH)}")
    A(f"s_lshl_b32 {sr(sT)}, {sr(sT+2)}, 18")
    o += srd_at(sK, 2, sr(sT), 0x40000)
    o += srd_at(sV, 4, sr(sT), 0x40000)
    A(f"s_lshl_b32 {sr(sT+1)}, {sr(sT+2)}, 7"); A(f"s_add_u32 {sr(sT+1)}, {sr(sT+1)}, {FLAG_OFF}")
    o += srd_at(sFL, 14, sr(sT+1), 32)
    A(f"s_getreg_b32 {sr(sXCC)}, hwreg(HW_REG_XCC_ID, 0, 4)")
    A(f"s_add_u32 {sr(sXCC)}, {sr(sXCC)}, 16")
    o += srd_at(sDB, 12, "0", 256)
    A(f"s_and_b32 {sr(sT+1)}, {sr(sT+2)}, 3"); A(f"s_lshl_b32 {sr(sT+1)}, {sr(sT+1)}, 6")
    o += srd_at(sDBW, 12, sr(sT+1), 4)
    A(f"s_lshr_b32 {sr(sT)}, {sr(sT+2)}, 1"); A(f"s_and_b32 {sr(sT+2)}, {sr(sT+2)}, 1")
    A(f"s_lshl_b32 {sr(sT+1)}, {sr(sT)}, 15"); A(f"s_lshl_b32 {sr(sT+3)}, {sr(sT+2)}, 9"); A(f"s_add_u32 {sr(sT+1)}, {sr(sT+1)}, {sr(sT+3)}")
    o += srd_at(sWO2, 8, sr(sT+1), 31*1024 + 512)
    A(f"s_lshl_b32 {sr(sT+2)}, {sr(sT+2)}, 2"); A(f"s_add_u32 {sr(sT+2)}, {sr(sT+2)}, {sr(sWAVE)}"); A(f"s_lshl_b32 {sr(sT+2)}, {sr(sT+2)}, 19")
    A(f"s_lshl_b32 {sr(sT)}, {sr(sT)}, 11"); A(f"s_add_u32 {sr(sT)}, {sr(sT)}, {sr(sT+2)}"); A(f"s_add_u32 {sr(sT)}, {sr(sT)}, {WOF_OFF}")
    o += srd_at(sWS2, 14, sr(sT), 262144 + 2048)
    A(f"s_lshl_b32 {sr(sT)}, {sr(sB)}, 2"); A(f"s_add_u32 {sr(sT)}, {sr(sT)}, {sr(sWAVE)}"); A(f"s_lshl_b32 {sr(sT)}, {sr(sT)}, 19")
    A(f"s_lshl_b32 {sr(sT+1)}, {sr(sH)}, 13"); A(f"s_add_u32 {sr(sT)}, {sr(sT)}, {sr(sT+1)}")
    o += srd_at(sO, 14, sr(sT), 262144 + 8192)
    if CFG.get("fewst"):
        A(f"s_cmp_eq_u32 {sr(sMT)}, 0"); A(f"s_cselect_b32 {sr(sO+2)}, {sr(sO+2)}, 0")
    rot = CFG.get("rot", "j")
    if rot == "j": A(f"s_lshr_b32 {sr(sROT)}, s2, 3"); A(f"s_add_u32 {sr(sROT)}, {sr(sROT)}, s2"); A(f"s_and_b32 {sr(sROT)}, {sr(sROT)}, 15"); A(f"s_lshl_b32 {sr(sROT)}, {sr(sROT)}, 14")
    else: A(f"s_mov_b32 {sr(sROT)}, 0")
    if CFG.get("itst"): A("s_mov_b32 s42, 0"); A("s_mov_b32 s43, 0x100")
    A(f"s_mov_b32 {sr(sTHR)}, 0x41000000")
    c = math.log2(math.e) / math.sqrt(128.0)
    A(f"s_mov_b32 {sr(sSC)}, 0x{struct.unpack('<I', struct.pack('<f', c))[0]:08x}")
    A(f"v_lshl_add_u32 {vr(vDV)}, {vr(u4)}, 8, {vr(u5)}")
    A(f"v_xor_b32 {vr(vDV+1)}, 0x80, {vr(vDV)}")
    g_, c16 = u1, u2
    A(f"v_lshrrev_b32 {vr(g_)}, 4, {vr(ln)}")
    A(f"v_and_b32 {vr(c16)}, 15, {vr(ln)}")
    A(f"v_xor_b32 {vr(u3)}, {vr(g_)}, {vr(c16)}")
    A(f"v_lshlrev_b32 {vr(u3)}, 4, {vr(u3)}")
    A(f"v_lshl_add_u32 {vr(vDK)}, {vr(u4)}, 8, {vr(u3)}")
    for p in range(1, 4): A(f"v_xor_b32 {vr(vDK+p)}, {64*p}, {vr(vDK)}")
    if CONT:
        A(f"s_lshl_b32 {sr(sW1K)}, {sr(sWAVE)}, 10")
        A(f"v_lshrrev_b32 {vr(vDK+1)}, 4, v0")
        A(f"v_xor_b32 {vr(vDK+2)}, {vr(vDK+1)}, {vr(c16)}"); A(f"v_lshlrev_b32 {vr(vDK+2)}, 4, {vr(vDK+2)}")
        A(f"v_lshl_add_u32 {vr(vDK)}, {vr(vDK+1)}, 8, {vr(vDK+2)}")
        A(f"v_and_b32 {vr(vDK+2)}, 7, {vr(vDK+1)}"); A(f"v_lshlrev_b32 {vr(vDK+2)}, 1, {vr(vDK+2)}")
        A(f"v_xor_b32 {vr(vDK+2)}, {vr(vDK+2)}, {vr(c16)}"); A(f"v_lshlrev_b32 {vr(vDK+2)}, 4, {vr(vDK+2)}")
        A(f"v_lshl_add_u32 {vr(vDV)}, {vr(vDK+1)}, 8, {vr(vDK+2)}")
    A(f"v_lshl_add_u32 {vr(vKA)}, {vr(c16)}, 8, {vr(u3)}")
    for s in range(1, 4): A(f"v_xor_b32 {vr(vKA+s)}, {64*s}, {vr(vKA)}")
    A(f"v_lshrrev_b32 {vr(u3)}, 1, {vr(c16)}")
    A(f"v_xor_b32 {vr(u3)}, {vr(g_)}, {vr(u3)}")
    A(f"v_lshlrev_b32 {vr(u3)}, 4, {vr(u3)}")
    A(f"v_lshl_add_u32 {vr(u3)}, {vr(c16)}, 7, {vr(u3)}")
    A(f"v_add_u32 {vr(u3)}, {sr(sW8K)}, {vr(u3)}")
    for sl in range(2):
        A(f"v_add_u32 {vr(vXA+2*sl)}, {LX[sl]}, {vr(u3)}")
        A(f"v_xor_b32 {vr(vXA+2*sl+1)}, 64, {vr(vXA+2*sl)}")
    A(f"v_cmp_eq_u32 vcc, 0, {vr(c16)}")
    A(f"v_mov_b32 {vr(u3)}, 0x3f803f80")
    r_, f_, c8 = u0, u4, u5
    A(f"v_bfe_u32 {vr(r_)}, {vr(ln)}, 2, 2")
    for j in range(4): A(f"v_cndmask_b32 {vr(vONES+j)}, 0, {vr(u3)}, vcc")
    A(f"v_bfe_u32 {vr(f_)}, {vr(ln)}, 2, 3")
    A(f"v_and_b32 {vr(c8)}, 3, {vr(ln)}")
    A(f"v_lshlrev_b32 {vr(c8)}, 3, {vr(c8)}")
    A(f"v_lshrrev_b32 {vr(u3)}, 2, {vr(ln)}")
    A(f"v_lshlrev_b32 {vr(vWOA)}, 9, {vr(u3)}")
    A(f"v_lshl_add_u32 {vr(vWOA)}, {vr(c8)}, 1, {vr(vWOA)}")
    A(f"s_lshl_b32 {sr(sT)}, {sr(sWAVE)}, 7"); A(f"s_add_u32 {sr(sT)}, {sr(sT)}, {LWO}")
    A(f"v_add_u32 {vr(vWOA)}, {sr(sT)}, {vr(vWOA)}")
    A(f"v_lshl_add_u32 {vr(c8)}, {vr(f_)}, 5, {vr(c8)}")
    A(f"v_lshl_add_u32 {vr(u3)}, {vr(u3)}, 8, {vr(c8)}")
    A(f"v_add_u32 {vr(vVA)}, {LV}, {vr(u3)}")
    for dt in range(1, 8): A(f"v_xor_b32 {vr(vVA+dt)}, {32*dt}, {vr(vVA)}")
    A(f"v_lshl_add_u32 {vr(u3)}, {vr(g_)}, 3, {vr(r_)}")
    A(f"v_lshl_add_u32 {vr(u3)}, {vr(u3)}, 8, {vr(c8)}")
    if NOSWAP:
        A(f"v_and_b32 {vr(u3)}, 0xff00, {vr(u3)}"); A(f"v_lshl_add_u32 {vr(u3)}, {vr(r_)}, 6, {vr(u3)}")
        A(f"v_and_b32 {vr(c8)}, 3, {vr(ln)}"); A(f"v_lshl_add_u32 {vr(u3)}, {vr(c8)}, 4, {vr(u3)}")
        A(f"v_add_u32 {vr(vWA)}, {LWQ[0]}, {vr(u3)}")
        for k in range(1, 4): A(f"v_xor_b32 {vr(vWA+k)}, {64*k}, {vr(vWA)}")
    else:
        A(f"v_add_u32 {vr(vWA)}, {LWQ[0]}, {vr(u3)}")
        for dt in range(1, 8): A(f"v_xor_b32 {vr(vWA+dt)}, {32*dt}, {vr(vWA)}")
    A(f"v_lshlrev_b32 {vr(vWOS)}, 4, {vr(ln)}")
    A(f"v_add_u32 {vr(vLIN)}, {sr(sW4K)}, {vr(vWOS)}")
    o += wo_piece_addr()
    return o

def wo_reads():
    return [f"ds_read_b64_tr_b16 {ar(192+4*i+2*tt,2)}, {vr(vWOA)} offset:{(i//2)*64 + (i%2)*8 + tt*8192} ; #wo" for i in range(4) for tt in range(2)]
def wo_stores():
    return [[f"s_mov_b32 {sr(sT)}, {(i//2)*262144}", f"buffer_store_dwordx4 {ar(192+4*i,4)}, {vr(vWOS)}, {sr(sWS2,4)}, {sr(sT)} offen offset:{(i%2)*1024} sc1 ; #wst"] for i in range(4)]

def pairs(lst): return [lst[i:i+2] for i in range(0, len(lst), 2)]
def prologue():
    qs = stamp if CFG["qst"] else (lambda: [])
    o = setup_a()
    o += flat(qp_dma(0))
    nw = int(CFG.get("nwarm", 2))
    o += (warm_loads(nw) if nw else [])
    o += qs()
    o += setup_b()
    pt = CFG.get("pt", "")
    def pretouch(j, kind):
        if kind == "st": return [f"s_mov_b32 {sr(sDT)}, {j * 262144}", f"buffer_store_dword {vr(vWOF+1)}, {vr(vWOF+1)}, {sr(sO,4)}, {sr(sDT)} offen sc1 ; #pt"]
        if kind == "at": return [f"s_mov_b32 {sr(sDT)}, {j * 262144}", f"buffer_atomic_or {vr(vWOF+1)}, {vr(vWOF+1)}, {sr(sO,4)}, {sr(sDT)} offen sc1 ; #pt"]
        return [f"s_mov_b32 {sr(sDT)}, {j * 262144}", f"buffer_load_dword {vr(vWOF+2+j)}, {vr(vWOF+1)}, {sr(sO,4)}, {sr(sDT)} offen sc1 ; #pt"]
    if pt: o += [f"v_lshlrev_b32 {vr(vWOF+1)}, 3, {vr(vWOS)}"]
    if pt and pt[2:] == "0": o += pretouch(0, pt[:2]) + pretouch(1, pt[:2])
    prek = [x for x in CFG.get("prek", "").split(",") if x]
    for n in prek: o += (wo_piece_dma() if n == "wo" else kv_batch(n[0], int(n[1:])))
    if CFG.get("kvtlb"):
        o += [f"buffer_load_dword {ar(0)}, off, {sr(sK,4)}, 0 nt ; #tl", f"buffer_load_dword {ar(1)}, off, {sr(sV,4)}, 0 nt ; #tl"]
    o += qs()
    o += ["@wait st0", "s_barrier"] + stamp()
    kv = lambda *l: groups_of(sum([kv_batch(x[0], int(x[1:])) for x in l], []))
    bg = [int(x) for x in CFG.get("bg", "38,38,38,38,30,10,-14").split(",")]
    step = float(CFG.get("qstep", 4))
    B = [64 * s + bg[s] for s in range(7)]
    seq = [(st, dt, qb) for st in range(6) for dt in range(8) for qb in range(4) for i in range(2)]
    mf = sum([qp_mfmas(st) for st in range(6)], [])
    for st, qb in ((6, 0), (6, 1), (7, 0), (7, 1), (6, 2), (6, 3), (7, 2), (7, 3)):
        mf += qp_q(st, qb); seq += [(st, dt, qb) for dt in range(8) for i in range(2)]
    Q0 = len(mf)
    mf += [qk_one(0, kb, qb, (i if kb % 2 == 0 else 3 - i), i == 0, czero=True) for qb in range(4) for kb in range(4) for i in range(4)]
    first = {}; last = {}
    for g, (st, dt, qb) in enumerate(seq):
        for t in (f"x{st}_{qb}", f"w{st}_{dt}"):
            first.setdefault(t, g); last[t] = g
    xt = lambda k: ",".join(f"x{k}_{q}" for q in range(4))
    wt = lambda k: ",".join(f"w{k}_{d}" for d in range(8))
    nvm = {}; pre = {}; vm = {}
    def put_vm(g, grp):
        while g in vm or g in B: g += 1
        vm[g] = grp; return g
    npre = int(CFG.get("npre", 16)); nd1 = int(CFG.get("nd1", 6))
    r0 = qp_reads(0); d1 = qp_dma(1)
    o += r0[:npre] + flat(d1[:nd1])
    pos = -2
    for grp in d1[nd1:]: pos += 3; put_vm(int(pos), grp)
    XW = int(CFG.get("xw", 18))
    ekp = [x for x in CFG.get("ekp", "").split(",") if x]
    ek = dict(x.split(":") for x in CFG.get("ek", "5:K0").split(",") if x)
    for k in range(2, 8):
        for i, grp in enumerate(qp_dma(k)):
            e = 0 if k == 2 else (B[k-3] + 1 if i < 4 else B[k-3] + XW)
            if k == 7 and i >= 4: e = max(e, 0)
            pos = max(pos + step, e)
            if i == 4: grp = [f"@wait - lds={xt(k-2)}"] + grp
            put_vm(int(pos), grp)
        for n in ekp:
            j = k - int(CFG.get("ekp0", 3))
            if 0 <= j < 4:
                G_ = groups_of(wo_piece_dma()) if n == "wo" else kv(n)
                head = G_[0][:-1] if n != "wo" else G_[0][:1]
                grp = head + (G_[j] if (j or n == "wo") else G_[0][-1:]) if not (n == "wo" and j == 0) else G_[0]
                pos += 4; put_vm(int(pos), grp)
        if pt and pt[2:] != "0" and k - int(pt[2:]) in (0, 2):
            pos += 3; put_vm(int(pos), pretouch((k - int(pt[2:])) // 2, pt[:2]))
        if str(k) in ek:
            for grp in (groups_of(wo_piece_dma()) if ek[str(k)] == "wo" else kv(ek[str(k)])):
                pos += 3; put_vm(int(pos), grp)
    kstep = float(CFG.get("kstep", 9))
    BK, BQ = 384 + 94, Q0 + 56
    sched = [("K0", 0), ("wo", 0), ("K1", 0), ("V0", B[5] + 1), ("K2", BK + 1), ("V1", BK + 1)]
    for n, e in sched:
        if n in ek.values() or n in prek or n in ekp: continue
        for grp in (groups_of(wo_piece_dma()) if n == "wo" else kv(n)):
            pos = max(pos + kstep, e)
            put_vm(int(pos), grp)
    assert pos < Q0 + 64, pos
    if CFG["verbose"]: print("vm gaps:", sorted(vm))
    items = [(0, x) for x in r0[npre:]]
    for st in range(1, 8): items += [(st, x) for x in qp_reads(st)]
    R = []
    for st, x in items:
        t = x.split("#")[1]
        e = 0 if st == 0 else B[st-1] + 1
        if st >= 2: e = max(e, last[t[0] + str(st - 2) + t[2:]])
        d = first[t] - LAT
        if st < 7: d = min(d, B[st] - 8)
        if t[0] == "x" and 1 <= st <= 5: d = min(d, B[st-1] + XW - 7)
        R.append([e, max(d, e), x])
    R.sort(key=lambda r: (r[1], r[0]))
    rstep = float(CFG.get("rstep", 1.3)); nxt = 0
    for g in range(Q0):
        if g in vm or g in B: continue
        k = 0
        while k < 2:
            c = [r for r in R if r[0] <= g]
            if not c: break
            urgent = any(r[1] - g < i * 1.3 + 1 for i, r in enumerate(c))
            if not urgent and (k == 1 or g < nxt): break
            nvm.setdefault(g, []).append(c[0][2]); R.remove(c[0]); k += 1; nxt = g + rstep
    assert not R, R[:3]
    for t, g in first.items():
        (nvm.setdefault(g - 1, []) if g else o).insert(0 if g else len(o), f"@wait - lds={t}")
    for s in range(7):
        pre.setdefault(B[s], []).append(f"@wait st{s+1} lds={xt(s)},{wt(s)}")
        nvm.setdefault(B[s], []).append("s_barrier")
        if CFG["qst"]: pre[64 * s] = qs() + pre.get(64 * s, [])
    nvm = merge(nvm, spread(pairs(wo_reads()), [g for g in range(Q0 + 1, Q0 + 12) if g not in vm]))
    pre.setdefault(BK, []).append("@wait K0,wo"); nvm.setdefault(BK, []).append("s_barrier")
    nvm = merge(nvm, spread(pairs([rd_k(0, n) for n in range(16)]), [g for g in range(384 + 96, 384 + 120) if g not in vm]))
    pre.setdefault(Q0, []).append("@wait - lgkm=0"); pre[Q0] = stamp() + pre[Q0]
    pre.setdefault(BQ, []).append("@wait K1,V0 lds=wo"); nvm.setdefault(BQ, []).append("s_barrier")
    nvm = merge(nvm, {Q0 + 57: [f"s_add_u32 {sr(sTILE)}, {sr(sROT)}, {(DIST-1)*16384}"], Q0 + 58: [f"s_and_b32 {sr(sTILE)}, {sr(sTILE)}, 0x3ffff"],
                      Q0 + 59: [f"s_add_u32 {sr(sTK)}, {sr(sROT)}, {DIST*16384}"], Q0 + 60: [f"s_and_b32 {sr(sTK)}, {sr(sTK)}, 0x3ffff"],
                      Q0 + 61: [f"s_mov_b32 {sr(sCNT)}, 0"]})
    for g in sorted(vm):
        grp = vm[g]; sca = grp[:-1]
        prevv = max([x for x in vm if x < g], default=-1)
        gg = g
        for x in reversed(sca):
            nvm.setdefault(gg, []).insert(0, x)
            if gg - 1 > prevv and gg > 0: gg -= 1
        nvm.setdefault(g, []).append(grp[-1])
    va = [(f"v_accvgpr_write_b32 {ar(r)}, 0", 0, "z") for r in list(range(2, 128)) + [0, 1]]
    done = {0: 384 + 32, 1: 384 + 48, 2: 384 + 96, 3: 384 + 112}
    for qb in range(4):
        va += [(t, done[qb] + 4 * s + 3 + 3, f"q{qb}") for t, s in qconv_stream(qb)]
    va += [(f"v_mov_b32 {vr(vL+j)}, 0", Q0, "z") for j in range(16)]
    def initq(qb):
        n = vNEG + 4 * qb
        l = qmax(0, qb, n)
        for sw in ("v_permlane32_swap_b32", "v_permlane16_swap_b32"):
            l += [f"v_mov_b32 {vr(n+1)}, {vr(n)}", "s_nop 1", f"{sw} {vr(n)}, {vr(n+1)}", f"v_max_f32 {vr(n)}, {vr(n)}, {vr(n+1)}"]
        l += [f"v_sub_f32 {vr(n+j)}, 0, {vr(n)}" for j in (3, 2, 1, 0)]
        for ks in range(2):
            r = Ureg(0, ks, qb)
            l += [f"v_add_f32 {vr(r+j)}, {vr(r+j)}, {vr(n + j % 2)}" for j in range(8)]
        return l
    for qb in range(4): va += [(t, Q0 + 16 * qb + 15 + 3, "i") for t in initq(qb)]
    part, left = weave(mf, nvm, va, pre=pre, need={Q0 + 16 * q: f"q{q}" for q in range(4)})
    for k in range(1, 6):
        assert max(i for i, x in enumerate(part) if f"#x{k}_" in x) < part.index(f"@wait - lds={xt(k)}"), k
    for k in range(0, 6):
        assert max(i for i, x in enumerate(part) if f"#w{k}_" in x) < part.index(f"@wait st{k+1} lds={xt(k)},{wt(k)}"), k
    o += part
    o += qs()
    o += [rd_k(1, n) for n in EARLY_K]
    o += [f"v_mov_b32 {vr(vT+j)}, {sr(sXCC) if j == 1 else 0}" for j in range(4)]
    o.append(f"buffer_store_dwordx4 {vr(vT,4)}, {vr(vLIN)}, {sr(sFL,4)}, 0 offen sc1 ; #wst")
    if CFG["verbose"]: print("QK0 leftover VALU:", len(left))
    ini = []
    lf_ = [t for t, _, _ in left]
    i = 0
    while i < len(lf_):
        m1 = re.match(r"v_add_f32 v(\d+), v\d+, v(\d+)", lf_[i])
        if m1 and int(m1.group(1)) % 2 == 0 and i + 1 < len(lf_) and lf_[i+1].startswith(f"v_add_f32 v{int(m1.group(1))+1},"):
            r = int(m1.group(1)); ini.append(f"v_pk_add_f32 {vr(r,2)}, {vr(r,2)}, {vr(int(m1.group(2)),2)}"); i += 2
        else: ini.append(lf_[i]); i += 1
    ex_ = [exp_i(0, it[1]) for it in E_FIRST if it[0] == "exp"]; cv_ = [cvt_i(0, it[1]) for it in E_FIRST if it[0] == "cvt"]
    ini += ex_ + cv_
    G = wo_stores() + (kv("K3", "V2") if DIST == 4 else [])
    for i, g in enumerate(G):
        k = (i + 1) * len(ini) // (len(G) + 1)
        ini = ini[:k] + g + ini[k:]
    o += ini
    if CFG.get("nomax"): o.append("s_mov_b64 vcc, 0")
    o.append("@wait - lds=k0,k1,k2,k3")
    o += stamp()
    o, fifo, lf = resolve(o, [])
    return o, fifo, lf

def phase_c_srds():
    o = []; A = o.append
    t0, t1, t2 = sT, sT + 1, sT + 2
    A(f"s_lshr_b32 {sr(sHO)}, {sr(sH)}, 3")
    A(f"s_and_b32 {sr(sRC)}, {sr(sB)}, 3"); A(f"s_lshl_b32 {sr(sRC)}, {sr(sRC)}, 14")
    if CFG.get("krot8", True):
        A(f"s_and_b32 {sr(t0)}, {sr(sH)}, 1"); A(f"s_lshl_b32 {sr(t0)}, {sr(t0)}, 13"); A(f"s_add_u32 {sr(sRC)}, {sr(sRC)}, {sr(t0)}")
    A(f"s_add_u32 {sr(sRX)}, {sr(sRC)}, {sr(sW4K)}")
    A(f"s_mov_b32 {sr(sFL+2)}, 4")
    A(f"s_and_b32 {sr(t0)}, {sr(sH)}, 6"); A(f"s_lshl_b32 {sr(t0)}, {sr(t0)}, 1"); A(f"s_add_u32 {sr(t0)}, {sr(t0)}, {sr(sWAVE)}")
    A(f"s_lshl_b32 {sr(t0)}, {sr(t0)}, 18"); A(f"s_lshl_b32 {sr(t2)}, {sr(sHO)}, 16"); A(f"s_add_u32 {sr(t0)}, {sr(t0)}, {sr(t2)}")
    A(f"s_add_u32 {sr(t0)}, {sr(t0)}, {WOF_OFF}"); A(f"s_sub_u32 {sr(t0)}, {sr(t0)}, {sr(sW4K)}")
    o += srd_at(sWFL, 14, sr(t0), 65536 + 3 * 4096)
    if CFG.get("wtouch", False):
        A(f"s_and_b32 {sr(sRW)}, {sr(sB)}, 3"); A(f"s_lshl_b32 {sr(sRW)}, {sr(sRW)}, 1"); A(f"s_and_b32 {sr(t0)}, {sr(sH)}, 1"); A(f"s_add_u32 {sr(sRW)}, {sr(sRW)}, {sr(t0)}")
        A(f"s_lshl_b32 {sr(sRW)}, {sr(sRW)}, 13"); A(f"s_add_u32 {sr(sRW)}, {sr(sRW)}, {sr(sW4K)}"); A(f"s_add_u32 {sr(sRX)}, {sr(sRW)}, 4096")
    A(f"s_and_b32 {sr(t0)}, {sr(sH)}, 1"); A(f"s_lshl_b32 {sr(t1)}, {sr(sB)}, 1"); A(f"s_add_u32 {sr(t0)}, {sr(t0)}, {sr(t1)}")
    A(f"s_lshl_b32 {sr(t1)}, {sr(t0)}, 20"); A(f"s_add_u32 {sr(t1)}, {sr(t1)}, {sr(t2)}")
    o += srd_at(sOL, 14, sr(t1), 3 * 262144 + 65536)
    A(f"s_lshl_b32 {sr(t0)}, {sr(t0)}, 17"); A(f"s_lshl_b32 {sr(t1)}, {sr(sHO)}, 15"); A(f"s_add_u32 {sr(t0)}, {sr(t0)}, {sr(t1)}")
    A(f"s_and_b32 {sr(t1)}, {sr(sH)}, 6"); A(f"s_lshl_b32 {sr(t1)}, {sr(t1)}, 7"); A(f"s_add_u32 {sr(t0)}, {sr(t0)}, {sr(t1)}")
    o += srd_at(sOUT, 10, sr(t0), 31 * 1024 + 256)
    A(f"s_lshl_b32 {sr(t0)}, {sr(sB)}, 12"); A(f"s_lshl_b32 {sr(t1)}, {sr(sHO)}, 10"); A(f"s_add_u32 {sr(t0)}, {sr(t0)}, {sr(t1)}")
    A(f"s_add_u32 {sr(t0)}, {sr(t0)}, {FLAG_OFF}")
    o += srd_at(sFLR, 14, sr(t0), 1024)
    A(f"s_and_b32 {sr(t0)}, {sr(sH)}, 7"); A(f"s_lshl_b32 {sr(t1)}, {sr(sB)}, 5"); A(f"s_add_u32 {sr(t0)}, {sr(t0)}, {sr(t1)}")
    A(f"s_lshl_b32 {sr(t1)}, {sr(t0)}, 16"); A(f"s_lshl_b32 {sr(t2)}, {sr(sHO)}, 14"); A(f"s_add_u32 {sr(t1)}, {sr(t1)}, {sr(t2)}")
    A(f"s_add_u32 {sr(t1)}, {sr(t1)}, {PART_OFF}")
    o += srd_at(sPS, 14, sr(t1), 3 * 524288 + 16384)
    A(f"s_lshl_b32 {sr(t1)}, {sr(t0)}, 7"); A(f"s_lshl_b32 {sr(t2)}, {sr(sHO)}, 2"); A(f"s_add_u32 {sr(t1)}, {sr(t1)}, {sr(t2)}")
    A(f"s_add_u32 {sr(t1)}, {sr(t1)}, {FLAG_OFF + 16}")
    o += srd_at(sPF2, 14, sr(t1), 4)
    A(f"s_lshl_b32 {sr(t1)}, {sr(sB)}, 5"); A(f"s_add_u32 {sr(t1)}, {sr(t1)}, {sr(sH)}"); A(f"s_lshl_b32 {sr(t1)}, {sr(t1)}, 16")
    A(f"s_add_u32 {sr(t1)}, {sr(t1)}, {PART_OFF}")
    o += srd_at(sPL, 14, sr(t1), 65536)
    return o

def tail_and_epilogue(u):
    p = u % 2
    o = []
    reads = [rd_v(slotV(15), n, t) for n in range(16) for t in range(2)]
    er = [(exp_i(p, it[1]), UNITS[it[1] // 8][1]) if it[0] == "exp" else (cvt_i(p, it[1]), UNITS[it[1] // 4][1]) for it in E_REST]
    va = []
    for i, (t, q) in enumerate(er):
        if t.startswith("v_cvt") and i and er[i-1][0].startswith("v_exp"): va.append(("s_nop 0", 0, f"e{q}"))
        va.append((t, 0, f"e{q}"))
    mf = []
    for qb in range(4):
        mf += [sum_one(p, qb, 0), sum_one(p, qb, 1)]
        mf += [pv_one(p, dt, qb, (i if dt % 2 == 0 else 1 - i)) for dt in range(8) for i in range(2)]
    vOST = vCW
    if CFG.get("local"): va.append((f"v_cmp_ne_u32 {sr(sGLB,2)}, {sr(sXCC)}, {vr(vCW)}", 0, "x"))
    va.append((f"v_and_b32 {vr(vOST)}, 0x3ff, {vr(vLIN)}", 0, "x"))
    tmp = 2
    NMF = len(mf)
    fill = {0: [], 1: [], 2: [], 3: []}
    tail_names = CFG.get("tailw", "").split(",")
    post_names = [x for x in ("R3", "R5") if x not in tail_names]
    for qb in range(4):
        e0 = 18 * qb
        lsum = [f"v_mov_b32 {vr(vT+qb)}, {vr(vL+4*qb)}"] + allreduce("v_add_f32", vT + qb, vMX) + [f"v_rcp_f32 {vr(vT+qb)}, {vr(vT+qb)}"]
        va += [(t, max(12, e0 + 1 + 3), f"o{qb}") for t in lsum]
        F = fill[qb]
        for s in range(4):
            e = e0 + 2 + 4 * s + 3 + 3
            b_ = tmp + 8 * (s % 2)
            va += [(f"v_accvgpr_read_b32 {vr(b_+j)}, {ar(Oreg(qb,2*s)+j)}", e, f"o{qb}") for j in range(8)]
            va += [(f"@mul {b_+j} {vT+qb}", e, f"o{qb}") for j in range(8)]
            d = Ureg(p, s // 2, qb) + 4 * (1 - s % 2)
            ee = e0 + 17 if s % 2 == 1 else e
            va += [(f"v_cvt_pk_bf16_f32 {vr(d+j)}, {vr(b_+2*j)}, {vr(b_+2*j+1)}", max(e, ee), f"o{qb}") for j in range(4)]
            ld = flat(F[s * len(F) // 4:(s + 1) * len(F) // 4])
            va += [(t, NMF - 1 if qb == 3 else e, f"o{qb}") for t in ld]
            va += [(f"s_mov_b32 {sr(sT)}, {(qb//2)*262144 + (s//2)*4096}", e, f"o{qb}"),
                   (f"buffer_store_dwordx4 {vr(d,4)}, {vr(vOST)}, {sr(sO,4)}, {sr(sT)} offen offset:{(s%2)*2048 + (qb%2)*1024} {CFG.get('ost', 'plain' if CFG.get('local') else 'sc1').replace('+', ' ').replace('plain', '')} ; #ost", e, f"o{qb}")]
    if CFG.get("tord", True):
        E = {q: [x for x in va if x[2] == f"e{q}"] for q in range(4)}
        X = [x for x in va if x[2] == "x"]
        O_ = {q: [x for x in va if x[2] == f"o{q}"] for q in range(4)}
        rest = E[0] + E[1] + E[2] + E[3]
        n0 = int(CFG.get("tn0", 10))
        head, rest = rest[:n0], rest[n0:]
        r2 = [x for x in rest if x[2] != "e3"]; r3 = [x for x in rest if x[2] == "e3"]
        va = X + head + O_[0] + r2 + O_[1] + r3 + O_[2] + O_[3]
    va = [((f"v_mul_f32 {vr(int(t.split()[1]))}, {vr(int(t.split()[1]))}, {vr(int(t.split()[2]))}" if t.startswith("@mul") else t), e, k) for t, e, k in va]
    o += reads[:12]
    nvm = spread(pairs(reads[12:]), list(range(0, 10)))
    pre = {2 + 2 * dt: [f"@wait - lds=v{2*dt},v{2*dt+1}"] for dt in range(8)}
    early = sum([wo_loads(x) for x in tail_names if x], [])
    if early: nvm = merge(nvm, spread(early, list(range(10, int(CFG.get("tailhi", 44)), 2))))
    part, left = weave(mf, nvm, va, pre=pre, need={18 * q: f"e{q}" for q in range(4)})
    o += part
    o += stamp()
    o.append("s_nop 7")
    lf_ = [t for t, _, _ in left]
    i = 0
    while i < len(lf_):
        m1 = re.match(r"v_mul_f32 v(\d+), v\d+, v(\d+)", lf_[i]); m2 = re.match(r"v_mul_f32 v(\d+), v\d+, v(\d+)", lf_[i+1]) if i + 1 < len(lf_) else None
        if m1 and m2 and int(m1.group(1)) % 2 == 0 and int(m2.group(1)) == int(m1.group(1)) + 1:
            r = int(m1.group(1)); f_ = int(m1.group(2))
            sel = "op_sel_hi:[1,0]" if f_ % 2 == 0 else "op_sel:[0,1] op_sel_hi:[1,1]"
            o.append(f"v_pk_mul_f32 {vr(r,2)}, {vr(r,2)}, {vr(f_ - f_ % 2,2)} {sel}"); i += 2
        else:
            o.append(lf_[i]); i += 1
    A = o.append
    A(f"v_mov_b32 {vr(vMX)}, 1")
    A(f"v_and_b32 {vr(vT)}, 7, v0"); A(f"v_lshlrev_b32 {vr(vT)}, 7, {vr(vT)}")
    A(f"v_add_u32 {vr(vKA)}, 0x10000, {vr(vOST)}")
    A(f"s_mov_b32 {sr(sCNT)}, 0")
    if CFG.get("forceglobal"): A(f"s_mov_b64 {sr(sGLB,2)}, -1")
    if CFG.get("local"): A(f"s_and_b32 {sr(sGLB)}, {sr(sGLB)}, 0xff"); A(f"s_cmp_lg_u32 {sr(sGLB)}, 0")
    mode = CFG.get("sync", "cnt1")
    cnt = mode.startswith("cnt"); one = mode.endswith("1")
    if cnt: A(f"s_mov_b32 {sr(sFLR+2)}, 4")
    A("@wait ost")
    A("s_barrier")
    if cnt: A(f"buffer_atomic_add {vr(vMX)}, {vr(vLIN)}, {sr(sFLR,4)}, 0 offen sc1 ; #flag")
    else: A(f"buffer_store_dword {vr(vMX)}, {vr(vLIN)}, {sr(sFL,4)}, 0 offen sc1 ; #flag")
    o += stamp()
    post = sum([wo_loads(x) for x in post_names], [])
    pl = f"buffer_load_dword {vr(vT+1)}, off, {sr(sFLR,4)}, 0 sc1" if cnt else f"buffer_load_dword {vr(vT+1)}, {vr(vT)}, {sr(sFLR,4)}, 0 offen sc1"
    want = 8 if cnt else 1
    o += flat(post)
    pw = int(CFG.get("pollwave", 1))
    if one: A(f"s_cmp_lg_u32 {sr(sWAVE)}, {pw}"); A("s_cbranch_scc1 L_go")
    A("L_poll:")
    A(pl + " ; #~poll")
    A("s_waitcnt vmcnt(0) ; keep")
    A(f"v_cmp_ne_u32 vcc, {want}, {vr(vT+1)}")
    A("s_cbranch_vccz L_go")
    if int(CFG.get("psleep", 0)): A("s_sleep " + str(int(CFG["psleep"])))
    A(f"s_add_u32 {sr(sCNT)}, {sr(sCNT)}, 1")
    A(f"s_cmp_lt_u32 {sr(sCNT)}, {CFG['spin']}")
    A("s_cbranch_scc1 L_poll")
    A("L_go:")
    if one: A("s_barrier")
    if CFG.get("local"): A(f"s_cmp_lg_u32 {sr(sGLB)}, 0"); A("s_cbranch_scc1 L_acq")
    A("L_acq_back:")
    o += stamp()
    return o

STAGED = []
def phase_c():
    o = []; A = o.append
    vOST = vCW
    D = int(CFG.get("cdist", 4))
    LAND, OWN = vS + 64, vS + 64 + 48
    def acc(k, q2, t): return (256 + 64 + 16 * k if k < 3 else OWN) + 4 * (q2 * 2 + t)
    def gsel(k, dst, sh): return [f"s_add_u32 {sr(dst)}, {sr(sHO)}, {k + 1}", f"s_and_b32 {sr(dst)}, {sr(dst)}, 3", f"s_lshl_b32 {sr(dst)}, {sr(dst)}, {sh}"]
    def dma(ch):
        G = []
        for p in range(4):
            g = []
            if p == 0:
                if ch % 4 == 0: g += gsel(ch // 4, sG, 18)
                if CFG.get("krot", True):
                    g += [f"s_add_u32 {sr(sSP)}, {sr(sRX)}, {(ch % 4) * 16384}", f"s_and_b32 {sr(sSP)}, {sr(sSP)}, 0xffff", f"s_add_u32 {sr(sSP)}, {sr(sSP)}, {sr(sG)}"]
                else: g += [f"s_add_u32 {sr(sSP)}, {sr(sG)}, {(ch % 4) * 16384}"]
                g += [m0_at((ch % 8) * 16384), "s_nop 0"]
            g.append(f"buffer_load_dwordx4 {vr(vOST if CFG.get('krot', True) else vLIN)}, {sr(sOL,4)}, {sr(sSP)} offen offset:{p*1024} sc1 lds ; #c{ch}")
            G.append(g)
        return G
    def ofr(u, kl, q2): return 256 + 32 * (u % 2) + 4 * (kl * 2 + q2)
    def reads(u):
        ch = u // 2; base = (ch % 8) * 16384 + (u % 2) * 8192
        return [f"ds_read_b128 {rr(ofr(u,kl,q2),4)}, {vr(vKA if base >= 65536 else vOST)} offset:{base % 65536 + (kl*2+q2)*1024} ; #u{u}_{q2}" for q2 in range(2) for kl in range(4)]
    for ch in range(D): o += flat(dma(ch))
    o += ["@wait c0", "s_barrier"] + stamp() + reads(0)
    mf = []; nvm = {}; pre = {}; vm = {}
    nxc = [D]
    PB = CFG.get("pb16", True)
    vac = []
    for u in range(32):
        k = u // 8
        for j, (q2, t) in enumerate(((0, 0), (0, 1), (1, 1), (1, 0))):
            for i in range(4):
                kl = i if j % 2 == 0 else 3 - i
                f = ((u % 8) * 4 + kl) * 2 + t
                d = rr(acc(k, q2, t), 4)
                mf.append(f"{MF} {d}, {rr(WREG[f],4)}, {rr(ofr(u,kl,q2),4)}, {d if (u % 8 or i) else 0}")
        g0 = 16 * u
        (nvm.setdefault(g0 - 1, []) if u else o).append(f"@wait - lds=u{u}_0")
        nvm.setdefault(g0 + 7, []).append(f"@wait - lds=u{u}_1")
        if u + 1 < 32:
            if u % 2 == 1:
                tags = f"c{u // 2 + 1}"
                fl = int(CFG.get("pfl", 2))
                kk = [x for x in range(3) if 4 * (x + 1) + fl - 1 == u // 2]
                if kk: tags += f",p{kk[0]}"
                pre.setdefault(g0, []).append(f"@wait {tags}")
                nvm.setdefault(g0, []).append("s_barrier")
                if kk:
                    vm[g0 + 13] = gsel(kk[0], sT, 10) + [f"s_add_u32 {sr(sPF2+2)}, {sr(sT)}, 4",
                                   f"buffer_store_dword {vr(vMX)}, {vr(vLIN)}, {sr(sPF2,4)}, {sr(sT)} offen sc1 ; #pf"]
            r = reads(u + 1)
            for j, g in enumerate((1, 2, 4, 5) if False else (1, 3, 6, 8)): nvm.setdefault(g0 + g, []).extend(r[2*j:2*j+2])
        if u % 2 == 0:
            D2 = int(CFG.get("cdist2", D))
            n2 = 2 if nxc[0] + 1 <= u // 2 + D2 and nxc[0] + 1 < 16 else (1 if nxc[0] < 16 else 0)
            G_ = sum([dma(nxc[0] + j) for j in range(n2)], []); nxc[0] += n2
            for grp, g in zip(G_, (5, 12, 21, 28) if n2 == 1 else (2, 5, 9, 12, 20, 23, 27, 30)): vm[g0 + g] = [x for x in grp if x != "s_nop 0"]
        if u % 8 == 0 and u:
            kk = k - 1
            if PB:
                for q2 in range(2):
                    a0 = acc(kk, q2, 0) - 256
                    vac += [(f"v_accvgpr_read_b32 {vr(vL + j)}, {ar(a0 + j)}", g0 + 2, "p") for j in range(8)]
                    vac += [(f"v_cvt_pk_bf16_f32 {vr(vL + 8 + 4*q2 + j)}, {vr(vL + 2*j)}, {vr(vL + 2*j + 1)}", g0 + 2, "p") for j in range(4)]
                    vac += [(x, g0 + 2, "p") for x in (gsel(kk, sTK, 19) if q2 == 0 else [])]
                    vac += [(f"buffer_store_dwordx4 {vr(vL + 8 + 4*q2, 4)}, {vr(vLIN)}, {sr(sPS,4)}, {sr(sTK)} offen offset:{q2*1024} sc1 ; #p{kk}", g0 + 2, "p")]
            else:
                for j, g in enumerate((10, 14, 18, 26)):
                    while g0 + g in vm: g += 1
                    vm[g0 + g] = (gsel(kk, sTK, 19) if j == 0 else []) + [f"buffer_store_dwordx4 {rr(acc(kk, j // 2, j % 2), 4)}, {vr(vLIN)}, {sr(sPS,4)}, {sr(sTK)} offen offset:{j*1024} sc1 ; #p{kk}"]
    STAGED.clear()
    ep = [int(x) for x in CFG.get("ep", "7,11").split(",") if x]
    e3 = [int(x) for x in CFG.get("e3", "").split(",") if x]
    if e3: ep.append(0)
    for n, ch in enumerate(ep):
        k = 2 - n
        g0 = 32 * ch if n < 2 else e3[0] - 9
        vm[g0 + 9] = gsel(k, sTILE, 2) + [f"buffer_load_dword {vr(vT+1)}, off, {sr(sFL,4)}, {sr(sTILE)} offset:16 sc1 ; #e{k}"]
        g1 = g0 + 32 + 16 + 9 if n < 2 else e3[1]
        nvm.setdefault(g1, []).extend([f"@wait e{k}", f"v_cmp_ne_u32 vcc, 1, {vr(vT+1)}"])
        nvm.setdefault(g1 + 1, []).extend([f"s_cbranch_vccnz L_e{k}", f"L_e{k}_back:"])
        for j, g in enumerate(((g1 + 5, g1 + 9, g1 + 11, g1 + 17) if n < 2 else (g1 + 3, g1 + 4, g1 + 5, g1 + 6))[:2 if PB else 4]):
            while g in vm: g += 1
            vm[g] = ([f"s_lshl_b32 {sr(sTILE)}, {sr(sTILE)}, 12"] if j == 0 else []) + [f"buffer_load_dwordx4 {vr(LAND + 16*k + 4*j, 4)}, {vr(vLIN)}, {sr(sPL,4)}, {sr(sTILE)} offen offset:{j*1024} sc1 ; #l{k}"]
        STAGED.append(k)
    nvm.setdefault(2, []).insert(0, f"s_mov_b32 {sr(sFL+2)}, 32")
    prev = -1
    for g in sorted(vm):
        grp = vm[g]; sca = grp[:-1]
        lo = max([prev] + [q for q in range(g) if any(x.startswith("L_e") for x in nvm.get(q, []))])
        free = [q for q in range(lo + 1, g) if not any(x.startswith(("s_", "@")) for x in nvm.get(q, []))]
        if len(free) >= len(sca):
            for x, q in zip(sca, free[len(free) - len(sca):]): nvm.setdefault(q, []).insert(0, x)
        else: nvm[g - 1] = sca + nvm.get(g - 1, [])
        nvm.setdefault(g, []).append(grp[-1]); prev = g
    nl = 3 - len(STAGED)
    ad = [f"v_and_b32 {vr(vT)}, 3, v0", f"v_min_u32 {vr(vT)}, {max(nl - 1, 0)}, {vr(vT)}", f"v_add_u32 {vr(vT)}, {sr(sHO)}, {vr(vT)}", f"v_add_u32 {vr(vT)}, 1, {vr(vT)}",
          f"v_and_b32 {vr(vT)}, 3, {vr(vT)}", f"v_lshlrev_b32 {vr(vT)}, 2, {vr(vT)}",
          "v_and_b32 v7, 15, v0", "v_lshrrev_b32 v8, 4, v0", "v_lshlrev_b32 v8, 4, v8", "v_lshl_add_u32 v14, v7, 10, v8"]
    lastpoll = int(CFG.get("lp", 500))
    if nl: nvm.setdefault(lastpoll, []).append(f"buffer_load_dword {vr(vT+1)}, {vr(vT)}, {sr(sFL,4)}, 0 offen offset:16 sc1 ; #lp")
    part, lft = weave(mf, nvm, [(x, 20, "a") for x in ad] + vac, pre=pre)
    assert not lft
    o += part
    o += stamp()
    if nl:
        A(f"s_mov_b32 {sr(sCNT)}, 0")
        A("@wait lp")
        A(f"v_cmp_ne_u32 vcc, 1, {vr(vT+1)}")
        A("s_cbranch_vccz L_go2")
        A("L_poll2:")
        A(f"buffer_load_dword {vr(vT+1)}, {vr(vT)}, {sr(sFL,4)}, 0 offen offset:16 sc1")
        A("s_waitcnt vmcnt(0)")
        A(f"v_cmp_ne_u32 vcc, 1, {vr(vT+1)}")
        A("s_cbranch_vccz L_go2")
        A(f"s_add_u32 {sr(sCNT)}, {sr(sCNT)}, 1")
        A(f"s_cmp_lt_u32 {sr(sCNT)}, {CFG['spin']}")
        A("s_cbranch_scc1 L_poll2")
    else: A("s_nop 7")
    A("L_go2:")
    o += stamp()
    for k in range(nl):
        o += gsel(k, sT, 14)
        for j in range(2 if PB else 4): A(f"buffer_load_dwordx4 {vr(LAND + 16*k + 4*j, 4)}, {vr(vLIN)}, {sr(sPL,4)}, {sr(sT)} offen offset:{j*1024} sc1 ; #l{k}")
    for k in (2, 1, 0):
        A(f"@wait l{k}")
        if PB:
            for j in reversed(range(8)):
                A(f"v_and_b32 {vr(LAND+16*k+2*j+1)}, 0xffff0000, {vr(LAND+16*k+j)}")
                A(f"v_lshlrev_b32 {vr(LAND+16*k+2*j)}, 16, {vr(LAND+16*k+j)}")
        for j in range(0, 16, 2): A(f"v_pk_add_f32 {vr(OWN+j,2)}, {vr(OWN+j,2)}, {vr(LAND+16*k+j,2)}")
    A(f"s_mov_b32 {sr(sT)}, 16384")
    for q2 in range(2):
        for j in range(4): A(f"v_cvt_pk_bf16_f32 {vr(LAND + 4*q2 + j)}, {vr(OWN + 8*q2 + 2*j)}, {vr(OWN + 8*q2 + 2*j + 1)}")
        A(f"buffer_store_dwordx4 {vr(LAND + 4*q2, 4)}, v14, {sr(sOUT,4)}, {sr(sT) if q2 else 0} offen {CFG.get('outst', 'plain').replace('+', ' ').replace('plain', '')}")
    return o

def peeled(lf):
    o = [f"s_mov_b32 {sr(sT)}, 0xe00fe000", f"v_cmp_ne_u32 vcc, {sr(sT)}, {vr(vCW)}", "s_cbranch_vccnz L_cw", "L_cw_back:"]
    for i in range(PEEL0, 15):
        loads = []
        tp = CFG.get("tpol", "nt").replace("+", " ")
        def touch(j, half):
            return [f"s_mov_b32 {sr(sDT)}, {j * 262144 + half * 4096}", f"s_mov_b32 {sr(sO+2)}, {j * 262144 + half * 4096 + 4096}",
                    f"buffer_load_dword {ar(240 + 2*j + half)}, {vr(vCW)}, {sr(sO,4)}, {sr(sDT)} offen {tp} ; #tch"]
        T = [touch(j, h_) for j in range(2) for h_ in range(2)] if CFG.get("local") and tp != "none" else []
        tsch = [int(x) for x in CFG.get("tsch", "13,13,13,13").split(",")]
        mine = [t for t, k in zip(T, tsch) if k == i]
        if i == 12 and CFG.get("local"):
            ids = [[f"v_and_b32 {vr(vCW)}, 63, v0", f"v_lshlrev_b32 {vr(vCW)}, 7, {vr(vCW)}", f"s_nop 0",
                    f"buffer_load_dword {ar(239)}, {vr(vCW)}, {sr(sFLR,4)}, 0 offen offset:4 sc1 ; #ids"]]
            loads = [(ids + mine, 0, NG)]
        fixed = {}
        if i == 12 and CFG.get("wtouch", False):
            tg = [int(x) for x in CFG.get("wtg", "65,68,93,107").split(",")]
            NP = len(tg)
            fixed[64] = [f"v_and_b32 {vr(vCW)}, {64 // NP - 1}, v0", f"v_lshlrev_b32 {vr(vCW)}, 7, {vr(vCW)}"]
            for j, g in enumerate(tg):
                off = j * 8192 // NP
                fixed.setdefault(g, []).append(f"buffer_load_dword {ar(252 + j)}, {vr(vCW)}, {sr(sWFL,4)}, {sr(sRX if off >= 4096 else sRW)} offen offset:{off % 4096} sc1 ; #wt")
        if i == 12 and int(CFG.get("r1n12", 0)): loads = [(wo_loads("R1")[:int(CFG["r1n12"])], 0, NG)]
        r1at = int(CFG.get("r1at", 14))
        if i == 13:
            g = mine + (wo_loads("R1")[:8] if r1at == 13 else [])
            if not CFG.get("local"): g = wo_loads("R1")[int(CFG.get("r1n12", 0)):int(CFG.get("r1n13", 8))]
            loads = [(g, int(CFG.get("r1lo", 24)), int(CFG.get("r1hi", 75)))] if g else []
        if i == 14:
            loads = [(wo_loads("R2") + wo_loads("R4"), 64, NG)]
            if int(CFG.get("r1n13", 8)) < 16: loads.insert(0, (wo_loads("R1")[int(CFG.get("r1n13", 8)):], 0, 64))
            if CFG.get("local"):
                chk = [f"@wait ids,tch", f"v_accvgpr_read_b32 {vr(vCW)}, {ar(239)}"]
                r1 = wo_loads("R1")[(8 if r1at == 13 else 0):]
                k8 = len(r1) - 8
                r1[k8] = chk + r1[k8]
                loads.insert(0, (r1, 0, 64))
        o += iteration(i, f"L_r{i}", loads, phase_c_srds() if i == PEEL0 else (), fixed)
    o += stamp()
    o += tail_and_epilogue(3)
    o += phase_c()
    fifo = [f"K{PEEL0+2}"] * 4 + [f"V{PEEL0+1}"] * 4
    if CFG.get("skipst"): o = [x for x in o if "#ost" not in x]
    if CFG.get("skipp"): o = [x for x in o if not re.search(r"#p\d", x)]
    o, _, _ = resolve(o, fifo, lf)
    return o

def stamp_out():
    if not CFG["stamps"]: return []
    o = ["s_waitcnt vmcnt(0)"] + stamp()
    A = o.append
    A(f"s_lshl_b32 {sr(sT)}, s2, 10"); A(f"s_add_u32 {sr(sT)}, {sr(sT)}, {STAMP_OFF}")
    o += srd_at(4, 14, sr(sT), 1024)
    A("v_lshlrev_b32 v1, 2, v0")
    A(f"buffer_store_dword v{STV}, v1, s[4:7], 0 offen")
    if CFG.get("dbgout"):
        o += srd_at(4, 12, "0", 64)
        A("v_and_b32 v2, 63, v0")
        A("v_lshlrev_b32 v1, 1, v2"); A("v_add_u32 v1, 6, v1")
        A("v_and_b32 v3, 1, v2"); A("v_cmp_eq_u32 vcc, 0, v3"); A("v_mov_b32 v3, 0x1000"); A("s_nop 1")
        A("v_cndmask_b32 v1, v1, v3, vcc")
        A(f"v_cmp_lt_u32 vcc, {2*nstamp[0]}, v2"); A("s_nop 1"); A("v_cndmask_b32 v1, v1, v3, vcc")
        A(f"buffer_atomic_umax v{STV}, v1, s[4:7], 0 offen sc1")
        A(f"v_not_b32 v4, v{STV}")
        A("v_cmp_eq_u32 vcc, 1, v2"); A("s_nop 1"); A("v_cndmask_b32 v1, v3, 4, vcc")
        A(f"buffer_atomic_umax v4, v1, s[4:7], 0 offen sc1")
    return o

def kernel():
    pro, fifo, lf0 = prologue()
    _, _, lf = resolve(iteration(0, "x") + iteration(1, "x"), [])
    its = []
    for u in range(4):
        it, _, lf2 = resolve(iteration(u, f"L_r{u}"), [], lf)
        assert lf2 == lf
        its.append(it)
    assert len(lf0) >= len(lf) and lf0[len(lf0)-len(lf):] == lf or CFG["stamps"] or CFG.get("probe"), (lf0, lf)
    pe = peeled(lf)
    body = list(pro)
    body.append("L_loop:")
    for u in range(4):
        it = list(its[u])
        if u == 3:
            k = [i for i, x in enumerate(it) if x.startswith(MF)]
            it.insert(k[-3] + 1, f"s_cmp_lt_u32 {sr(sCNT)}, {NPASS}")
            it.insert(k[-4] + 1, f"s_add_u32 {sr(sCNT)}, {sr(sCNT)}, 1")
            it.append("s_cbranch_scc1 L_loop")
            its[3] = it
        body += it
    body += pe
    body += stamp_out()
    if CFG.get("fixdur"):
        body += ["L_fix:", "s_memrealtime s[40:41]", "s_waitcnt lgkmcnt(0)", "s_sub_u32 s40, s40, s42", f"s_cmp_lt_u32 s40, {int(CFG['fixdur'])*100}", "s_cbranch_scc1 L_fix"]
    body.append("L_end:")
    body.append("s_endpgm")
    for u in list(range(4)) + list(range(PEEL0, 15)):
        body += [f"L_r{u}a:", f"s_call_b64 {sr(sRET,2)}, L_ra{1 - u % 2}", f"s_branch L_r{u}a_back"]
        if CFG.get("evslow"): body += [f"L_r{u}z:", f"s_nop {int(CFG['evslow'][1:])}", f"s_branch L_r{u}z_back"]
        body += [f"L_r{u}b:", f"s_call_b64 {sr(sRET,2)}, L_rb", f"s_branch L_r{u}b_back"]
    body += ["L_cw:", f"s_mov_b32 {sr(sCNT)}, 0", "L_cw_loop:",
             f"v_and_b32 {vr(vCW)}, 3, v0", f"v_lshlrev_b32 {vr(vCW)}, 6, {vr(vCW)}",
             f"buffer_load_dword {vr(vCW)}, {vr(vCW)}, {sr(sDB,4)}, 0 offen sc1", "s_waitcnt vmcnt(0)",
             f"v_cmp_ne_u32 vcc, {sr(sT)}, {vr(vCW)}", "s_cbranch_vccz L_cw_back",
             f"s_add_u32 {sr(sCNT)}, {sr(sCNT)}, 1", f"s_cmp_lt_u32 {sr(sCNT)}, {CFG['spin']}", "s_cbranch_scc1 L_cw_loop",
             "s_branch L_cw_back"]
    if CFG.get("local"): body += ["L_pubg:", "buffer_wbl2 sc1", "s_waitcnt vmcnt(0)",
             f"buffer_store_dword {vr(vMX)}, {vr(vLIN)}, {sr(sFL,4)}, 0 offen sc1", "s_branch L_pubg_back"]
    if CFG.get("local"): body += ["L_acq:", "buffer_inv sc1", "s_waitcnt vmcnt(0)", "s_branch L_acq_back"]
    for k in STAGED:
        body += [f"L_e{k}:", f"s_mov_b32 {sr(sCNT)}, 0", f"L_e{k}_loop:",
                 f"buffer_load_dword {vr(vT+1)}, off, {sr(sFL,4)}, {sr(sTILE)} offset:16 sc1", "s_waitcnt vmcnt(0)",
                 f"v_cmp_ne_u32 vcc, 1, {vr(vT+1)}", f"s_cbranch_vccz L_e{k}_back",
                 f"s_add_u32 {sr(sCNT)}, {sr(sCNT)}, 1", f"s_cmp_lt_u32 {sr(sCNT)}, {CFG['spin']}", f"s_cbranch_scc1 L_e{k}_loop", f"s_branch L_e{k}_back"]
    for p in range(2): body += rare_a(p, f"L_ra{p}")
    body += rare_b("L_rb")
    loop = its[0] + its[1] + its[2] + its[3]
    check(pro + loop + loop + pe, "main")
    def with_rare(seq):
        o = []
        for x in seq:
            m = re.match(r"L_r(\d+)([ab])_back:", x)
            if m: o += (rare_a(1 - int(m.group(1)) % 2, "x") if m.group(2) == "a" else rare_b("x"))[1:]
            o.append(x)
        return o
    check(pro + with_rare(loop + pe), "rare")
    lastscc = None
    for x in body:
        op = x.split()[0] if x.split() else ""
        if op == "s_addc_u32": assert lastscc == "s_add_u32" and prev.startswith("s_add_u32"), (prev, x)
        if op in ("s_cselect_b32", "s_cbranch_scc0", "s_cbranch_scc1"): assert lastscc.startswith("s_cmp"), (lastscc, x)
        if op.startswith(("s_add", "s_sub", "s_and", "s_or", "s_xor", "s_lshl", "s_lshr", "s_cmp", "s_bfe", "s_min", "s_max", "s_not")): lastscc = op
        prev = x
    if CFG["verbose"]:
        for g in range(NG): print(g, PLAN[g])
    return "\n".join(body)

if __name__ == "__main__":
    k = kernel()
    txt = file_text([dict(label=NAME + "_kernel", body=k, grid=256, block=256, lds=163840, vgpr=512, accum=256)], single=True)
    open(sys.argv[1], "w").write(txt)
```

```python
import sys, math, struct, re
from asmlib import *
from check import check

CFG = dict(qst=False, stamps=False, codepf=True, warm=True, spin=200000, verbose=False)
for a in sys.argv[2:]:
    k, v = a.split("=")
    CFG[k] = {"0": False, "1": True}.get(v, v)

MF = "v_mfma_f32_16x16x32_bf16"
def vr(b, n=1): return f"v{b}" if n == 1 else f"v[{b}:{b+n-1}]"
def ar(b, n=1): return f"a{b}" if n == 1 else f"a[{b}:{b+n-1}]"
def sr(b, n=1): return f"s{b}" if n == 1 else f"s[{b}:{b+n-1}]"
def rr(r, n=1): return vr(r, n) if r < 256 else ar(r - 256, n)
def slots(t):
    if t.startswith(("v_exp", "v_rcp", "buffer_", "global_", "v_permlane")): return 2
    if t.startswith(("s_", "@", "L_")): return 0
    return 1

sX, sWQ, sK, sV, sO = 4, 8, 12, 16, 20
sWFL, sOL = 4, 8
sWAVE, sB, sH, sW4K, sW8K = 24, 25, 26, 27, 28
sCB, sMT, sNT = 29, 30, 31
sXO, sWO = 32, 40
sOUT, sFLR = 32, 36
sTILE, sCNT, sTHR, sSC, sSP = 44, 45, 46, 47, 48
sRET = 50
sTK, sROT, sRQ, sRX, sRW = 49, 92, 93, 94, 95
sW1K, sDT = 96, 97
sPF = 98
sPS, sPL, sPF2 = 80, 84, 76
sHO, sG = 29, 30
sRC = 93
sXCC, sGLB = 3, 94
sT = 52
sARG = 56
sFL, sDB, sDBW = 72, 76, 88
sWS2, sWO2 = 80, 84
vKA, vVA, vDK, vDV = 1, 5, 13, 17
vMX, vLIN, vCW, STV = 19, 21, 22, 23
vT = 24
vONES = 28
vNEG, vL, vQ, vS = 32, 48, 64, 128
vWA, vXA, vDX, vDW, vWOF = 64, 72, 76, 78, 80
vWOA, vWOS = 19, 20
vDUM = [22, 26, 27]
u0, u1, u2, u3, u4, u5, ln = 128, 129, 130, 131, 132, 133, 134
aO, aF = 0, 128
LK, LV, LW = 0, 65536, 131072
LX = [81920, 131072]
LWQ = [32768, 49152, 65536]
LWO = 114688
WOF_OFF, FLAG_OFF, PART_OFF, STAMP_OFF = 0x1000000, 0x1400000, 0x1800000, 0x4000000

def Ureg(p, ks, qb): return vS + 64 * p + 8 * (ks * 4 + qb)
def Sreg(p, kb, qb): return Ureg(p, kb // 2, qb) + 4 * (kb % 2)
def Oreg(qb, dt): return aO + 4 * (qb * 8 + dt)
def Qreg(qb, s): return vQ + 16 * qb + 4 * s
def Freg(n): return aF + 4 * n

nstamp = [0]
def stamp():
    if CFG.get("probe"):
        i = nstamp[0]; nstamp[0] += 1
        return ["s_memrealtime s[42:43]", "s_waitcnt lgkmcnt(0)"] if i == int(CFG["probe"][1:]) else []
    if not CFG["stamps"]: return []
    i = nstamp[0]; nstamp[0] += 1
    assert i < 30
    return ["s_memtime s[40:41]", "s_waitcnt lgkmcnt(0)", f"v_writelane_b32 v{STV}, s40, {2*i}",
            "s_memrealtime s[40:41]", "s_waitcnt lgkmcnt(0)", f"v_writelane_b32 v{STV}, s40, {2*i+1}"]

def srd(s, size):
    return [f"s_and_b32 {sr(s+1)}, {sr(s+1)}, 0xffff", f"s_mov_b32 {sr(s+2)}, {size}", f"s_mov_b32 {sr(s+3)}, 0x20000"]
def srd_at(s, arg, offreg, size):
    return [f"s_add_u32 {sr(s)}, {sr(sARG+arg)}, {offreg}", f"s_addc_u32 {sr(s+1)}, {sr(sARG+arg+1)}, 0"] + srd(s, size)

def tag(lst, t): return [(x + f" ; #{t}") if x.startswith(("buffer_", "global_")) and "#" not in x else x for x in lst]
def resolve(seq, fifo, lfifo=()):
    fifo = list(fifo); lf = list(lfifo); out = []
    def cut(f, n): return f[len(f) - n:] if 0 < n < len(f) else (f if n else [])
    for x in seq:
        if x.startswith("@wait"):
            parts = x.split()
            w = []
            idx = [i for i, t in enumerate(fifo) if t in parts[1].split(",")]
            if idx:
                n = min(63, len(fifo) - 1 - max(idx)); fifo = cut(fifo, n); w.append(f"vmcnt({n})")
            for p in parts[2:]:
                if p.startswith("vm="): n = int(p[3:]); fifo = cut(fifo, n); w.append(f"vmcnt({n})")
                if p.startswith("lgkm="): n = int(p[5:]); lf = cut(lf, n); w.append(f"lgkmcnt({n})")
                if p.startswith("lds="):
                    idx = [i for i, t in enumerate(lf) if t in p[4:].split(",")]
                    if idx:
                        n = min(15, len(lf) - 1 - max(idx)); lf = cut(lf, n); w.append(f"lgkmcnt({n})")
            if w: out.append("s_waitcnt " + " ".join(w))
            continue
        m = re.search(r"#(\S+)", x)
        if x.startswith(("buffer_", "global_")): fifo.append(m.group(1) if m else "?")
        if x.startswith("ds_"): lf.append(m.group(1) if m else "?")
        m = re.match(r"s_waitcnt.*vmcnt\((\d+)\)", x)
        if m: fifo = cut(fifo, int(m.group(1)))
        m = re.match(r"s_waitcnt.*lgkmcnt\((\d+)\)", x)
        if m: lf = cut(lf, int(m.group(1)))
        out.append(x)
    return out, fifo, lf

CONT = CFG.get("cont", False)
NOSWAP = CFG.get("noswap", True)
DIST = int(CFG.get("dist", 3))
def dma_k(p, soff):
    if CONT: return f"buffer_load_dwordx4 {vr(vDK)}, {sr(sK,4)}, {sr(sDT)} offen nt lds"
    return f"buffer_load_dwordx4 {vr(vDK+p)}, {sr(sK,4)}, {soff} offen offset:{1024*p} nt lds"
def dma_v(p, soff):
    if CONT: return f"buffer_load_dwordx4 {vr(vDV)}, {sr(sV,4)}, {sr(sDT)} offen nt lds"
    return f"buffer_load_dwordx4 {vr(vDV + p%2)}, {sr(sV,4)}, {soff} offen offset:{1024*p} nt lds"
def cont_pre(base, p, soff): return [f"s_add_u32 m0, {sr(sW1K)}, {base + p*4096}", f"s_add_u32 {sr(sDT)}, {soff}, {p*4096}"]
def m0_at(addr): return f"s_add_u32 m0, {sr(sW4K)}, {addr}"
def kv_batch(which, tile):
    out = [m0_at((LK + slotK(tile) * 16384 if which == "K" else LV + slotV(tile) * 16384)), f"s_add_u32 {sr(sT)}, {sr(sROT)}, {tile*16384}", f"s_and_b32 {sr(sT)}, {sr(sT)}, 0x3ffff"]
    for p in range(4):
        if CONT: out += cont_pre((LK if which == "K" else LV) + (tile % 4) * 16384, p, sr(sT))
        out.append(dma_k(p, sr(sT)) if which == "K" else dma_v(p, sr(sT)))
    return tag(out, f"{which}{tile}")

NPASS = int(CFG.get("npass", 3))
PEEL0 = 4 * NPASS
def slotK(t): return t % 4
def slotV(t): return t % 4
def rd_k(slot, n):
    kb, s = n // 4, n % 4
    return f"ds_read_b128 {ar(Freg(n),4)}, {vr(vKA+s)} offset:{slot*16384 + kb*4096} ; #k{n}"
def rd_v(slot, n, t):
    dt, ks = n // 2, n % 2
    return f"ds_read_b64_tr_b16 {ar(Freg(n)+2*t,2)}, {vr(vVA+dt)} offset:{slot*16384 + (32*ks+16*t)*256} ; #v{n}"

def qk_one(p, kb, qb, s, first, czero=False):
    d = Sreg(p, kb, qb)
    c = vr(d, 4) if not first else ("0" if czero else vr(vNEG + 4*qb, 4))
    return f"{MF} {vr(d,4)}, {ar(Freg(kb*4+s),4)}, {vr(Qreg(qb,s),4)}, {c}"
def qk_list(p):
    return [qk_one(p, kb, qb, (i if qb % 2 == 0 else 3 - i), i == 0) for kb in range(4) for qb in range(4) for i in range(4)]
def pv_one(p, dt, qb, ks):
    o = Oreg(qb, dt)
    return f"{MF} {ar(o,4)}, {ar(Freg(dt*2+ks),4)}, {vr(Ureg(p,ks,qb),4)}, {ar(o,4)}"
def sum_one(p, qb, ks):
    return f"{MF} {vr(vL+4*qb,4)}, {vr(vONES,4)}, {vr(Ureg(p,ks,qb),4)}, {vr(vL+4*qb,4)}"
def pv_list(p):
    return ([pv_one(p, dt, qb, (i if qb % 2 == 0 else 1 - i)) for dt in range(8) for qb in range(4) for i in range(2)]
            + [sum_one(p, qb, ks) for qb in range(4) for ks in range(2)])

UNITS = [(0, 0), (1, 0), (1, 1), (0, 1), (0, 2), (1, 2), (1, 3), (0, 3)]
def ereg(p, e): ks, qb = UNITS[e // 8]; return Ureg(p, ks, qb) + e % 8
def exp_i(p, e): r = ereg(p, e); return f"v_exp_f32 {vr(r)}, {vr(r)}"
def cvt_i(p, k):
    r = ereg(p, 2 * k); return f"v_cvt_pk_bf16_f32 {vr(r - (2*k) % 8 + k % 4)}, {vr(r)}, {vr(r+1)}"
def max_items(p):
    out = []
    for kb in range(4):
        for qb in range(4):
            r = Sreg(p, kb, qb); m = vr(vMX + qb % 2); done = 16 * kb + 4 * qb + 3
            if kb == 0 and qb < 2:
                out.append((f"v_max3_f32 {m}, {vr(r)}, {vr(r+1)}, {vr(r+2)}", done))
                out.append((f"v_max_f32 {m}, {vr(r+3)}, {m}", done))
            else:
                out.append((f"v_max3_f32 {m}, {vr(r)}, {vr(r+1)}, {m}", done))
                out.append((f"v_max3_f32 {m}, {vr(r+2)}, {vr(r+3)}, {m}", done))
    return out

NG = 136
HOOKA = 69
BARG = 118
LAT = 8
def make_plan():
    plan = {g: [] for g in range(NG)}
    T0 = HOOKA
    dsp = int(CFG.get("dsp", 14))
    dv0 = int(CFG.get("dv0", 72))
    dma_g = [4 + dsp * i for i in range(4)] + [dv0 + dsp * i for i in range(4)]
    dma_t = [g + NG if g < HOOKA else g for g in dma_g]
    NX2 = int(CFG.get('nx2', 40))
    r2 = [t for t in range(T0, NG) if t != BARG and t not in dma_t]
    r1 = [t for t in range(NG, NG + 64) if t not in dma_t]
    xt = [r2[i * len(r2) // NX2] for i in range(NX2)] + [r1[i * len(r1) // (64 - NX2)] for i in range(64 - NX2)]
    assert len(set(xt)) == 64
    for e, t in enumerate(xt): plan[t % NG].append(("exp", e, t >= NG))
    for i, t in enumerate(dma_t): plan[t % NG].append(("dma", i))
    Y = []
    for k in range(32):
        Y.append((xt[2*k+1] + 1, NG + 64 + k // 4 - 2, ("cvt", k)))
    for i, (_, done) in enumerate(max_items(0)):
        Y.append((NG + done + 3, NG + HOOKA - 3, ("max", i)))
    Y.append((NG + 66, NG + HOOKA - 2, ("max", 32))); Y.append((NG + 66, NG + HOOKA - 1, ("max", 33)))
    for n in range(16):
        Y.append((max(BARG + 1, 64 + 8 * (n // 2) + 7), NG + 16 * (n // 4) - LAT, ("k", n)))
    NV1 = int(CFG.get("nv1", 10))
    for n in range(16):
        e, d = 16 * (n // 4) + 15, min(64 + 8 * (n // 2) - LAT, BARG - 10)
        for t in range(2):
            if n < NV1: Y.append((NG + e, NG + min(d, HOOKA - 1), ("v", n, t)))
            else: Y.append((T0, d, ("v", n, t)))
    def kind(y): return y[2][0] + ("1" if y[2][0] == "v" and y[0] >= NG else "")
    ygaps = [t for t in range(T0, T0 + NG) if not plan[t % NG] and t % NG != BARG]
    pend = list(Y)
    for t in ygaps:
        g = t % NG
        picked = []
        for _ in range(2):
            heads = {}
            for y in pend: heads.setdefault(kind(y), y)
            c = [y for y in heads.values() if y[0] <= t]
            if not c: break
            def eff(y):
                same = [z for z in pend if kind(z) == kind(y)]
                return min(z[1] - i / 1.2 for i, z in enumerate(same))
            y = min(c, key=eff)
            assert t <= y[1], ("deadline miss", t, y)
            picked.append(y); pend.remove(y)
        picked.sort(key=lambda y: 0 if y[2][0] in ("k", "v") else 1)
        for y in picked: plan[g].append(y[2] + ((t >= NG,) if y[2][0] == "cvt" else ()))
    assert not pend, pend
    return plan
PLAN = make_plan()

def iteration(i, lab, loads=None, salu=(), fixed=None):
    assert DIST == 3 and not CONT
    p = i % 2
    steady = i < PEEL0
    sc = {g: [] for g in range(NG)}
    for kb in range(4): sc[16 * kb - 1 if kb else NG - 2].append(f"@wait - lds=" + ",".join(f"k{kb*4+s}" for s in range(4)))
    for dt in range(8):
        if 64 + 8 * dt - 1 < BARG - 1: sc[64 + 8 * dt - 1].append(f"@wait - lds=v{2*dt},v{2*dt+1}")
    sc[BARG - 1].append(f"@wait - vm={10 if i == 1 else (9 if i == 2 and CFG.get('repf', False) else 8)} lgkm=0" if steady else f"@wait K{i+2},V{i+1} lgkm=0")
    sc[BARG].append("s_barrier")
    if CFG.get("itst"):
        sc[BARG - 2].append("s_memrealtime s[40:41]")
        sc[BARG] += ["s_mov_b64 exec, s[42:43]", f"v_mov_b32 v{STV}, s40", "s_mov_b64 exec, -1", "s_lshl_b64 s[42:43], s[42:43], 1"]
    sc[HOOKA] += [f"s_cbranch_vccnz {lab}a", f"{lab}a_back:"]
    sc[NG - 1] = [f"s_cbranch_vccnz {lab}b", f"{lab}b_back:"] + sc[NG - 1]
    if CFG.get("evslow"):
        sc[90] += ["s_and_b32 s101, s2, 1"]; sc[91] += ["s_cmp_eq_u32 s101, 0"]; sc[92] += [f"s_cbranch_scc1 {lab}z", f"{lab}z_back:"]
    extra = dict(fixed or {})
    vm = {}
    hask, hasv = i + 3 <= 15, i + 2 <= 15
    for j, g in enumerate(DMA_GAPS):
        if j < 4 and hask: vm[g] = [m0_at(LK + slotK(i + 3) * 16384), dma_k(j, sr(sTK)) + f" ; #K{i+3}"]
        v15 = CFG.get("v15", "a")
        if i == 13 and v15 != "n":
            if j < 4 and v15 == "a": vm[(2, 8, 14, 20)[j] if CFG.get("v15d", True) else g] = [m0_at(LV + slotV(15) * 16384), dma_v(j, sr(sTILE)) + " ; #V15"]
            continue
        if j >= 4 and hasv: vm[g] = [m0_at(LV + slotV(i + 2) * 16384), dma_v(j - 4, sr(sTILE)) + f" ; #V{i+2}"]
    if i == 12 and CFG.get("v15", "a") == "b":
        vm = {}
        for j in range(4):
            vm[(4, 13, 22, 32)[j]] = [m0_at(LK + slotK(15) * 16384), dma_k(j, sr(sTK)) + " ; #K15"]
            vm[(40, 46, 58, 64)[j]] = [m0_at(LV + slotV(14) * 16384), dma_v(j, sr(sTILE)) + " ; #V14"]
            vm[(72, 86, 100, 114)[j]] = [m0_at(LV + slotV(15) * 16384), dma_v(j, sr(sTK)) + " ; #V15"]
    sc[120].append(f"s_mov_b32 {sr(sTILE)}, {sr(sTK)}")
    sc[121].append(f"s_add_u32 {sr(sTK)}, {sr(sTK)}, 0x4000")
    sc[122].append(f"s_and_b32 {sr(sTK)}, {sr(sTK)}, 0x3ffff")
    if steady:
        if i == 1:
            extra[64] = [f"v_and_b32 {vr(vCW)}, 3, v0", f"v_lshlrev_b32 {vr(vCW)}, 6, {vr(vCW)}"]
            extra[65] = [f"buffer_load_dword {vr(vCW)}, {vr(vCW)}, {sr(sDB,4)}, 0 offen sc1"]
            sc[40].append(f"s_cmp_eq_u32 {sr(sCNT)}, {NPASS - 1}")
            sc[41].append(f"s_cselect_b32 {sr(sDB+2)}, 256, 0")
            extra[68] = [f"buffer_atomic_add {vr(vONES)}, {vr(vLIN)}, {sr(sDBW,4)}, 0 offen sc1"]
            sc[75].append(f"s_mov_b32 {sr(sDBW+2)}, 0")
        if i == 2 and CFG.get("repf", False):
            extra[64] = [f"v_and_b32 {vr(vT)}, 31, v0", f"v_lshlrev_b32 {vr(vT)}, 10, {vr(vT)}"]
            extra[65] = [f"v_add_u32 {vr(vT)}, {sr(sPF+2)}, {vr(vT)}", f"v_min_u32 {vr(vT)}, L_end-L_pc, {vr(vT)}"]
            extra[68] = [f"global_load_dword {ar(255)}, {vr(vT)}, {sr(sPF,2)}"]
    else:
        nextk = i + 2 <= 15
        def load(g):
            return sum(2 if it[0] == "exp" else (0 if it[0] == "dma" or (it[0] == "k" and g > BARG and not nextk) else 1) for it in PLAN[g])
        gs = 0
        for x in salu:
            if x.startswith("s_addc"):
                sc[gs - 1].append(x); continue
            while sc[gs] or gs in vm or gs + 1 in vm: gs += 1
            sc[gs].append(x); gs += 1
        for groups, lo, hi in loads:
            cand = [g for g in range(max(lo, gs + 3 if salu else 0), hi) if g not in vm and g not in (BARG, BARG - 1, HOOKA, NG - 1)]
            n = len(groups)
            for k, grp in enumerate(groups):
                win = cand[k * len(cand) // n:(k + 1) * len(cand) // n]
                vm[min(win, key=load)] = grp
    cur_m0 = None; prev = -1
    for g in sorted(vm):
        grp = vm[g]; sca = []
        for x in grp[:-1]:
            if x.startswith("s_add_u32 m0"):
                if x == cur_m0: continue
                cur_m0 = x
            sca.append(x)
        free = [q for q in range(prev + 1, g + 1) if not sc[q] and not (steady and q in (40, 41))]
        if sca and sca[-1].startswith("s_add_u32 m0"): free = [q for q in free if q < g]
        if len(free) >= len(sca):
            for x, q in zip(sca, free[len(free) - len(sca):]): sc[q].append(x)
        else:
            sc[g] += sca + ["s_nop 0"]
        prev = g
    mf = qk_list(1 - p) + pv_list(p)
    MX = [t for t, _ in max_items(1 - p)] + [f"v_max_f32 {vr(vMX)}, {vr(vMX)}, {vr(vMX+1)}", f"v_cmp_lt_f32 vcc, {sr(sTHR)}, {vr(vMX)}"]
    out = []
    for g in range(NG):
        out.append(mf[g])
        out += sc[g]
        ex = extra.get(g, [])
        out += [x for x in ex if not x.startswith("v_")]
        if g in vm: out.append(vm[g][-1])
        for it in PLAN[g]:
            k = it[0]
            if k == "exp": out.append(exp_i(p if it[2] else 1 - p, it[1]))
            elif k == "cvt": out.append(cvt_i(p if it[2] else 1 - p, it[1]))
            elif k == "max":
                if not CFG.get("nomax"): out.append(MX[it[1]])
            elif k == "k":
                t = i + (2 if g > BARG else 1)
                if t <= 15: out.append(rd_k(slotK(t), it[1]))
            elif k == "v": out.append(rd_v(slotV(i), it[1], it[2]))
        out += [x for x in ex if x.startswith("v_")]
        if CFG.get("slowdown") and g % int(CFG["slowdown"]) == 5: out.append("s_nop 7")
    return out
EARLY_K = [it[1] for g in range(BARG + 1, NG) for it in PLAN[g] if it[0] == "k"]
E_FIRST = [it for g in range(HOOKA, NG) for it in PLAN[g] if it[0] in ("exp", "cvt")]
E_REST = [it for g in range(0, HOOKA) for it in PLAN[g] if it[0] in ("exp", "cvt")]
DMA_GAPS = [g for g in range(NG) if any(it[0] == "dma" for it in PLAN[g])]
LIGHT = sorted(range(NG), key=lambda g: (sum(2 if it[0] in ("exp",) else (0 if it[0] == "dma" else 1) for it in PLAN[g])))

def spread(items, gaps):
    d = {}
    for i, it in enumerate(items):
        d.setdefault(gaps[i * len(gaps) // len(items)], []).extend(it)
    return d
def place(groups, lo, hi):
    cand = [g for g in LIGHT if lo <= g < hi and g not in (BARG, BARG - 1, HOOKA, NG - 1)]
    gs = sorted(cand[:len(groups)])
    assert len(gs) == len(groups)
    return {g: list(x) for g, x in zip(gs, groups)}
def merge(*maps):
    d = {}
    for m in maps:
        for k, v in m.items(): d.setdefault(k, []).extend(v)
    return d
def flat(G): return [x for g in G for x in g]
def groups_of(lst):
    G = []; cur = []
    for x in lst:
        cur.append(x)
        if x.startswith("buffer_"): G.append(cur); cur = []
    if cur: G[-1] += cur
    return G

WREG = []
WP = {}
for nm, base, n in (("R1", 256 + 192, 16), ("R2", vQ, 16), ("R4", vNEG, 4), ("R3", vS, 16), ("R5", 256 + aF, 12)):
    WP[nm] = list(range(len(WREG), len(WREG) + n)); WREG += [base + 4 * i for i in range(n)]
assert len(WREG) == 64
def wo_loads(name, sp=None):
    sp = sSP if sp is None else sp
    groups = []
    for f in WP[name]:
        g = []
        if f % 4 == 0:
            g = [f"s_add_u32 {sr(sp)}, {sr(sRC)}, {f * 1024}", f"s_and_b32 {sr(sp)}, {sr(sp)}, 0xffff"] if CFG.get("krot", True) else [f"s_mov_b32 {sr(sp)}, {f * 1024}"]
        g.append(f"buffer_load_dwordx4 {rr(WREG[f], 4)}, {vr(vLIN)}, {sr(sWFL,4)}, {sr(sp)} offen offset:{(f%4)*1024} sc1 ; #w{f}")
        groups.append(g)
    return groups

def weave(mf, nvmap, va=(), pre=None, need=None):
    out = []; va = list(va)
    for g, m in enumerate(mf):
        if need and g in need:
            last = max([i for i, x in enumerate(va) if x[2] == need[g]], default=-1)
            if last >= 0:
                if va[last][1] > g - 1: out.append("s_nop 7")
                out += [x[0] for x in va[:last + 1]] + ["s_nop 1"]; va = va[last + 1:]
            elif any(x.startswith("v_") and not x.startswith("v_mfma") for x in out[-2:]): out.append("s_nop 1")
        if pre and g in pre: out += pre[g]
        out.append(m)
        nv = nvmap.get(g, [])
        out += nv
        c = sum(slots(x) for x in nv)
        while va and va[0][1] <= g and c + slots(va[0][0]) <= 2:
            c += slots(va[0][0]); out.append(va.pop(0)[0])
    return out, va

def allreduce(op, a, b):
    return [f"v_mov_b32 {vr(b)}, {vr(a)}", "s_nop 1", f"v_permlane32_swap_b32 {vr(a)}, {vr(b)}", "s_nop 1", f"{op} {vr(a)}, {vr(a)}, {vr(b)}",
            f"v_mov_b32 {vr(b)}, {vr(a)}", "s_nop 1", f"v_permlane16_swap_b32 {vr(a)}, {vr(b)}", "s_nop 1", f"{op} {vr(a)}, {vr(a)}, {vr(b)}"]
def qmax(p, qb, d):
    regs = [Sreg(p, kb, qb) + j for kb in range(4) for j in range(4)]
    o = [f"v_max3_f32 {vr(d)}, {vr(regs[0])}, {vr(regs[1])}, {vr(regs[2])}"]
    for i in range(3, 15, 2): o.append(f"v_max3_f32 {vr(d)}, {vr(regs[i])}, {vr(regs[i+1])}, {vr(d)}")
    o.append(f"v_max_f32 {vr(d)}, {vr(regs[15])}, {vr(d)}")
    return o
def rare_a(p, label):
    out = [f"{label}:", "s_nop 7"]
    for qb in range(4):
        d = vT + qb
        out += qmax(p, qb, d) + allreduce("v_max_f32", d, vMX)
        out.append(f"v_max_f32 {vr(d)}, 0, {vr(d)}")
        for j in range(4): out.append(f"v_sub_f32 {vr(vNEG+4*qb+j)}, {vr(vNEG+4*qb+j)}, {vr(d)}")
        for kb in range(4):
            for j in range(4):
                r = Sreg(p, kb, qb) + j
                out.append(f"v_sub_f32 {vr(r)}, {vr(r)}, {vr(d)}")
        out.append(f"v_exp_f32 {vr(d)}, -{vr(d)}")
    out += ["s_nop 3", f"s_setpc_b64 {sr(sRET,2)}"]
    return out
def rare_b(label):
    out = [f"{label}:", "s_nop 15"]
    for qb in range(4):
        f_ = vT + qb
        for j in range(4): out.append(f"v_mul_f32 {vr(vL+4*qb+j)}, {vr(vL+4*qb+j)}, {vr(f_)}")
        for j in range(0, 32, 2):
            a0 = Oreg(qb, 0) + j
            out += [f"v_accvgpr_read_b32 {vr(vMX)}, {ar(a0)}", f"v_accvgpr_read_b32 {vr(vMX+1)}, {ar(a0+1)}",
                    f"v_mul_f32 {vr(vMX)}, {vr(vMX)}, {vr(f_)}", f"v_mul_f32 {vr(vMX+1)}, {vr(vMX+1)}, {vr(f_)}",
                    f"v_accvgpr_write_b32 {ar(a0)}, {vr(vMX)}", f"v_accvgpr_write_b32 {ar(a0+1)}, {vr(vMX+1)}"]
    out += ["s_nop 3", f"s_setpc_b64 {sr(sRET,2)}"]
    return out

def wfrag(st, s, dt): return (128 if st % 2 == 0 else 192) + 4 * (dt * 2 + s)
def xfrag(st, s, qb): return (96 if st % 2 == 0 else 32) + 4 * (qb * 2 + s)
def qacc(qb, dt): return Ureg(dt // 4, (dt // 2) % 2, qb) + 4 * (dt % 2)
def qp_reads(st):
    out = []
    for qb in range(4):
        for s in range(2):
            out.append(f"ds_read_b128 {vr(xfrag(st,s,qb),4)}, {vr(vXA + 2*(st%2) + s)} offset:{qb*2048} ; #x{st}_{qb}")
    for dt in range(8):
        for s in range(2):
            for t in range(2):
                if NOSWAP: out.append(f"ds_read_b64_tr_b16 {ar(wfrag(st,s,dt)+2*t,2)}, {vr(vWA + dt//2)} offset:{(st%3)*16384 + (32*s+4*t)*256 + 8*(dt%2)} ; #w{st}_{dt}")
                else: out.append(f"ds_read_b64_tr_b16 {ar(wfrag(st,s,dt)+2*t,2)}, {vr(vWA + dt)} offset:{(st%3)*16384 + (32*s+4*t)*256} ; #w{st}_{dt}")
    return out
def qp_dma(st):
    G = []
    wf = (" " + CFG["wqld"]) if CFG.get("wqld") else ""
    xf = (" " + CFG["xld"]) if CFG.get("xld") else ""
    for p in range(4):
        g = []
        if p == 0:
            g = [f"s_add_u32 {sr(sRX)}, {sr(sRQ)}, {st}", f"s_and_b32 {sr(sRX)}, {sr(sRX)}, 7", f"s_lshl_b32 {sr(sRW)}, {sr(sRX)}, 19",
                 f"s_lshl_b32 {sr(sRX)}, {sr(sRX)}, 7", m0_at(LWQ[st % 3])]
        g.append(f"s_add_u32 {sr(sDT)}, {sr(sRW)}, {p*(32768-1024)}")
        g.append(f"buffer_load_dwordx4 {vr(vDW + p//2)}, {sr(sWQ,4)}, {sr(sDT)} offen offset:{1024*p}{wf} lds ; #st{st}")
        G.append(g)
    for p in range(8):
        g = [f"s_add_u32 m0, {sr(sW8K)}, {LX[st%2] + (p//4)*4096}"] if p % 4 == 0 else []
        g.append(f"s_add_u32 {sr(sDT)}, {sr(sRX)}, {p*8192 - 1024*(p%4)}")
        g.append(f"buffer_load_dwordx4 {vr(vDX + p%2)}, {sr(sX,4)}, {sr(sDT)} offen offset:{1024*(p%4)}{xf} lds ; #st{st}")
        G.append(g)
    return G
def qp_one(st, dt, qb, s, first):
    d = qacc(qb, dt)
    return f"{MF} {vr(d,4)}, {ar(wfrag(st,s,dt),4)}, {vr(xfrag(st,s,qb),4)}, {'0' if first else vr(d, 4)}"
def qp_mfmas(st):
    return [qp_one(st, dt, qb, (i if qb % 2 == 0 else 1 - i), st == 0 and i == 0) for dt in range(8) for qb in range(4) for i in range(2)]
def qp_q(st, qb):
    return [qp_one(st, dt, qb, (i if dt % 2 == 0 else 1 - i), False) for dt in range(8) for i in range(2)]
def qconv(qb, s):
    d = qacc(qb, 2 * s); q = Qreg(qb, s)
    out = [f"v_mul_f32 {vr(d+j)}, {sr(sSC)}, {vr(d+j)}" for j in range(8)]
    out += [f"v_cvt_pk_bf16_f32 {vr(q+j)}, {vr(d+2*j)}, {vr(d+2*j+1)}" for j in (0, 2, 1, 3)]
    return out, [f"v_permlane32_swap_b32 {vr(q)}, {vr(q+2)}", f"v_permlane32_swap_b32 {vr(q+1)}, {vr(q+3)}"], \
                [f"v_permlane16_swap_b32 {vr(q)}, {vr(q+2)}", f"v_permlane16_swap_b32 {vr(q+1)}, {vr(q+3)}"]
def qconv_stream(qb):
    parts = [qconv(qb, s) for s in range(4)]
    if NOSWAP: return [(x, s) for s in range(4) for x in parts[s][0]]
    out = []
    for s in range(4):
        a = parts[s][0]
        if s == 0: out += [(x, s) for x in a]
        else: out += [(x, s) for x in a[:4]] + [(x, s) for x in parts[s-1][1]] + [(x, s) for x in a[4:8]] + [(x, s) for x in parts[s-1][2]] + [(x, s) for x in a[8:]]
    out += [("s_nop 1", 3)] + [(x, 3) for x in parts[3][1]] + [("s_nop 1", 3)] + [(x, 3) for x in parts[3][2]]
    return out

def setup_a():
    o = []; A = o.append
    A("s_cmp_ge_u32 s2, 256")
    A("s_cbranch_scc1 L_end")
    if CFG.get("fixdur"): A("s_memrealtime s[42:43]")
    A(f"s_load_dwordx16 {sr(sARG,16)}, s[0:1], 0")
    if CFG["codepf"]:
        A(f"s_getpc_b64 {sr(sT,2)}")
        A("L_pc:")
        A(f"s_bfe_u32 {sr(sT+2)}, s2, 0x30003")
        A(f"v_lshrrev_b32 {vr(u0)}, 6, v0"); A(f"v_and_b32 {vr(u1)}, 15, v0"); A(f"v_lshl_add_u32 {vr(u0)}, {vr(u0)}, 4, {vr(u1)}")
        A(f"v_lshlrev_b32 {vr(u0)}, 10, {vr(u0)}"); A(f"s_lshl_b32 {sr(sT+2)}, {sr(sT+2)}, 7"); A(f"v_add_u32 {vr(u0)}, {sr(sT+2)}, {vr(u0)}")
        A(f"v_min_u32 {vr(u0)}, L_end-L_pc, {vr(u0)}")
        A(f"global_load_dword {vr(vDUM[0])}, {vr(u0)}, {sr(sT,2)} ; #pf")
        if CFG.get("repf", False):
            A(f"s_mov_b64 {sr(sPF,2)}, {sr(sT,2)}"); A(f"s_add_u32 {sr(sPF+2)}, {sr(sT+2)}, L_cw_back-L_pc")
    A(f"s_and_b32 {sr(sCB)}, s2, 7")
    A(f"s_lshr_b32 {sr(sT+3)}, s2, 3")
    A(f"s_and_b32 {sr(sMT)}, {sr(sT+3)}, 3"); A(f"s_lshr_b32 {sr(sNT)}, {sr(sT+3)}, 2")
    if CFG.get("pmap", "4x8") == "4x8":
        A(f"s_and_b32 {sr(sB)}, {sr(sCB)}, 1"); A(f"s_lshl_b32 {sr(sB)}, {sr(sB)}, 2"); A(f"s_add_u32 {sr(sB)}, {sr(sB)}, {sr(sMT)}")
        A(f"s_lshr_b32 {sr(sH)}, {sr(sCB)}, 1"); A(f"s_lshl_b32 {sr(sH)}, {sr(sH)}, 3"); A(f"s_add_u32 {sr(sH)}, {sr(sH)}, {sr(sNT)}")
    else:
        A(f"s_mov_b32 {sr(sB)}, {sr(sCB)}"); A(f"s_mov_b32 {sr(sH)}, {sr(sT+3)}")
    rq = CFG.get("rq", "x")
    if rq == "n": A(f"s_mov_b32 {sr(sRQ)}, 0")
    elif rq == "x": A(f"s_mov_b32 {sr(sRQ)}, {sr(sCB)}")
    elif rq == "h": A(f"s_mov_b32 {sr(sRQ)}, {sr(sH)}")
    elif rq == "f": A(f"s_lshl_b32 {sr(sRQ)}, {sr(sB)}, 1"); A(f"s_add_u32 {sr(sRQ)}, {sr(sRQ)}, {sr(sH)}")
    elif rq == "g": A(f"s_add_u32 {sr(sRQ)}, {sr(sB)}, {sr(sH)}")
    A(f"v_lshrrev_b32 {vr(u0)}, 6, v0")
    A(f"v_and_b32 {vr(ln)}, 63, v0")
    A(f"v_readfirstlane_b32 {sr(sWAVE)}, {vr(u0)}")
    A(f"v_lshrrev_b32 {vr(u1)}, 4, {vr(ln)}")
    A(f"v_and_b32 {vr(u2)}, 15, {vr(ln)}")
    A(f"v_lshl_add_u32 {vr(u4)}, {vr(u0)}, 4, {vr(u1)}")
    A(f"v_lshlrev_b32 {vr(u3)}, 1, {vr(u1)}")
    A(f"v_xor_b32 {vr(u3)}, {vr(u3)}, {vr(u2)}")
    A(f"v_lshlrev_b32 {vr(u5)}, 4, {vr(u3)}")
    A(f"v_lshl_add_u32 {vr(vDW)}, {vr(u4)}, 13, {vr(u5)}")
    A(f"v_xor_b32 {vr(vDW+1)}, 0x80, {vr(vDW)}")
    if NOSWAP:
        A(f"v_lshlrev_b32 {vr(u3)}, 2, {vr(u1)}"); A(f"v_xor_b32 {vr(u3)}, {vr(u3)}, {vr(u2)}"); A(f"v_lshlrev_b32 {vr(u3)}, 4, {vr(u3)}")
        A(f"v_lshl_add_u32 {vr(vDW)}, {vr(u4)}, 13, {vr(u3)}"); A(f"v_mov_b32 {vr(vDW+1)}, {vr(vDW)}")
    A(f"v_lshrrev_b32 {vr(u3)}, 3, {vr(ln)}")
    A(f"v_lshl_add_u32 {vr(u0)}, {vr(u0)}, 6, {vr(u3)}")
    A(f"v_and_b32 {vr(u3)}, 7, {vr(ln)}")
    A(f"v_xor_b32 {vr(u3)}, {vr(u1)}, {vr(u3)}")
    A(f"v_lshlrev_b32 {vr(u3)}, 4, {vr(u3)}")
    A(f"v_lshl_add_u32 {vr(vDX)}, {vr(u0)}, 10, {vr(u3)}")
    A(f"v_xor_b32 {vr(vDX+1)}, 64, {vr(vDX)}")
    A(f"s_lshl_b32 {sr(sW4K)}, {sr(sWAVE)}, 12")
    A(f"s_lshl_b32 {sr(sW8K)}, {sr(sWAVE)}, 13")
    A(f"s_lshl_b32 {sr(sT)}, {sr(sB)}, 18")
    A(f"s_lshl_b32 {sr(sT+1)}, {sr(sH)}, 8")
    A("s_waitcnt lgkmcnt(0)")
    o += stamp()
    o += srd_at(sWQ, 6, sr(sT+1), 511*8192 + 256)
    o += srd_at(sX, 0, sr(sT), 0x40000)
    return o

def wo_piece_addr():
    return [f"v_lshrrev_b32 {vr(u0)}, 5, v0", f"v_and_b32 {vr(u1)}, 0x1e, {vr(u0)}", f"v_and_b32 {vr(u0)}, 1, {vr(u0)}",
            f"v_lshl_add_u32 {vr(u0)}, {vr(u1)}, 2, {vr(u0)}",
            f"v_and_b32 {vr(u1)}, 31, v0", f"v_lshlrev_b32 {vr(u1)}, 4, {vr(u1)}", f"v_lshl_add_u32 {vr(vWOF)}, {vr(u0)}, 10, {vr(u1)}"]
def wo_piece_dma():
    o = [m0_at(LWO)]
    for p in range(4):
        o.append(f"s_mov_b32 {sr(sDT)}, {1024*p}")
        o.append(f"buffer_load_dwordx4 {vr(vWOF)}, {sr(sWO2,4)}, {sr(sDT)} offen offset:{1024*p} nt lds ; #wo")
    return o

def warm_loads(nst):
    o = []; A = o.append
    A(f"v_lshrrev_b32 {vr(u3)}, 6, v0"); A(f"v_and_b32 {vr(u2)}, 15, v0"); A(f"v_lshl_add_u32 {vr(u3)}, {vr(u3)}, 4, {vr(u2)}")
    A(f"v_and_b32 {vr(u1)}, {nst - 1}, {vr(u3)}"); A(f"v_add_u32 {vr(u1)}, {sr(sRQ)}, {vr(u1)}"); A(f"v_add_u32 {vr(u1)}, 1, {vr(u1)}")
    A(f"v_and_b32 {vr(u1)}, 7, {vr(u1)}")
    A(f"v_lshrrev_b32 {vr(u2)}, 1, {vr(u3)}")
    A(f"v_lshlrev_b32 {vr(u0)}, 7, {vr(u1)}"); A(f"v_lshl_add_u32 {vr(u0)}, {vr(u2)}, 10, {vr(u0)}")
    A(f"s_and_b32 {sr(sT)}, {sr(sH)}, 7"); A(f"s_lshl_b32 {sr(sT)}, {sr(sT)}, 15")
    A(f"buffer_load_dword {vr(vDUM[1])}, {vr(u0)}, {sr(sX,4)}, {sr(sT)} offen ; #warm")
    A(f"v_lshlrev_b32 {vr(u0)}, 19, {vr(u1)}")
    A(f"v_lshrrev_b32 {vr(u3)}, 1, {vr(u2)}"); A(f"v_lshl_add_u32 {vr(u0)}, {vr(u3)}, 13, {vr(u0)}")
    A(f"v_and_b32 {vr(u3)}, 1, {vr(u2)}"); A(f"v_lshl_add_u32 {vr(u0)}, {vr(u3)}, 7, {vr(u0)}")
    A(f"s_and_b32 {sr(sT)}, {sr(sB)}, 3"); A(f"s_lshl_b32 {sr(sT)}, {sr(sT)}, 17")
    A(f"buffer_load_dword {vr(vDUM[2])}, {vr(u0)}, {sr(sWQ,4)}, {sr(sT)} offen ; #warm")
    return o

def setup_b():
    o = []; A = o.append
    A(f"s_lshl_b32 {sr(sT+2)}, {sr(sB)}, 5"); A(f"s_add_u32 {sr(sT+2)}, {sr(sT+2)}, {sr(sH)}")
    A(f"s_lshl_b32 {sr(sT)}, {sr(sT+2)}, 18")
    o += srd_at(sK, 2, sr(sT), 0x40000)
    o += srd_at(sV, 4, sr(sT), 0x40000)
    A(f"s_lshl_b32 {sr(sT+1)}, {sr(sT+2)}, 7"); A(f"s_add_u32 {sr(sT+1)}, {sr(sT+1)}, {FLAG_OFF}")
    o += srd_at(sFL, 14, sr(sT+1), 32)
    A(f"s_getreg_b32 {sr(sXCC)}, hwreg(HW_REG_XCC_ID, 0, 4)")
    A(f"s_add_u32 {sr(sXCC)}, {sr(sXCC)}, 16")
    o += srd_at(sDB, 12, "0", 256)
    A(f"s_and_b32 {sr(sT+1)}, {sr(sT+2)}, 3"); A(f"s_lshl_b32 {sr(sT+1)}, {sr(sT+1)}, 6")
    o += srd_at(sDBW, 12, sr(sT+1), 4)
    A(f"s_lshr_b32 {sr(sT)}, {sr(sT+2)}, 1"); A(f"s_and_b32 {sr(sT+2)}, {sr(sT+2)}, 1")
    A(f"s_lshl_b32 {sr(sT+1)}, {sr(sT)}, 15"); A(f"s_lshl_b32 {sr(sT+3)}, {sr(sT+2)}, 9"); A(f"s_add_u32 {sr(sT+1)}, {sr(sT+1)}, {sr(sT+3)}")
    o += srd_at(sWO2, 8, sr(sT+1), 31*1024 + 512)
    A(f"s_lshl_b32 {sr(sT+2)}, {sr(sT+2)}, 2"); A(f"s_add_u32 {sr(sT+2)}, {sr(sT+2)}, {sr(sWAVE)}"); A(f"s_lshl_b32 {sr(sT+2)}, {sr(sT+2)}, 19")
    A(f"s_lshl_b32 {sr(sT)}, {sr(sT)}, 11"); A(f"s_add_u32 {sr(sT)}, {sr(sT)}, {sr(sT+2)}"); A(f"s_add_u32 {sr(sT)}, {sr(sT)}, {WOF_OFF}")
    o += srd_at(sWS2, 14, sr(sT), 262144 + 2048)
    A(f"s_lshl_b32 {sr(sT)}, {sr(sB)}, 2"); A(f"s_add_u32 {sr(sT)}, {sr(sT)}, {sr(sWAVE)}"); A(f"s_lshl_b32 {sr(sT)}, {sr(sT)}, 19")
    A(f"s_lshl_b32 {sr(sT+1)}, {sr(sH)}, 13"); A(f"s_add_u32 {sr(sT)}, {sr(sT)}, {sr(sT+1)}")
    o += srd_at(sO, 14, sr(sT), 262144 + 8192)
    if CFG.get("fewst"):
        A(f"s_cmp_eq_u32 {sr(sMT)}, 0"); A(f"s_cselect_b32 {sr(sO+2)}, {sr(sO+2)}, 0")
    rot = CFG.get("rot", "j")
    if rot == "j": A(f"s_lshr_b32 {sr(sROT)}, s2, 3"); A(f"s_add_u32 {sr(sROT)}, {sr(sROT)}, s2"); A(f"s_and_b32 {sr(sROT)}, {sr(sROT)}, 15"); A(f"s_lshl_b32 {sr(sROT)}, {sr(sROT)}, 14")
    else: A(f"s_mov_b32 {sr(sROT)}, 0")
    if CFG.get("itst"): A("s_mov_b32 s42, 0"); A("s_mov_b32 s43, 0x100")
    A(f"s_mov_b32 {sr(sTHR)}, 0x41000000")
    c = math.log2(math.e) / math.sqrt(128.0)
    A(f"s_mov_b32 {sr(sSC)}, 0x{struct.unpack('<I', struct.pack('<f', c))[0]:08x}")
    A(f"v_lshl_add_u32 {vr(vDV)}, {vr(u4)}, 8, {vr(u5)}")
    A(f"v_xor_b32 {vr(vDV+1)}, 0x80, {vr(vDV)}")
    g_, c16 = u1, u2
    A(f"v_lshrrev_b32 {vr(g_)}, 4, {vr(ln)}")
    A(f"v_and_b32 {vr(c16)}, 15, {vr(ln)}")
    A(f"v_xor_b32 {vr(u3)}, {vr(g_)}, {vr(c16)}")
    A(f"v_lshlrev_b32 {vr(u3)}, 4, {vr(u3)}")
    A(f"v_lshl_add_u32 {vr(vDK)}, {vr(u4)}, 8, {vr(u3)}")
    for p in range(1, 4): A(f"v_xor_b32 {vr(vDK+p)}, {64*p}, {vr(vDK)}")
    if CONT:
        A(f"s_lshl_b32 {sr(sW1K)}, {sr(sWAVE)}, 10")
        A(f"v_lshrrev_b32 {vr(vDK+1)}, 4, v0")
        A(f"v_xor_b32 {vr(vDK+2)}, {vr(vDK+1)}, {vr(c16)}"); A(f"v_lshlrev_b32 {vr(vDK+2)}, 4, {vr(vDK+2)}")
        A(f"v_lshl_add_u32 {vr(vDK)}, {vr(vDK+1)}, 8, {vr(vDK+2)}")
        A(f"v_and_b32 {vr(vDK+2)}, 7, {vr(vDK+1)}"); A(f"v_lshlrev_b32 {vr(vDK+2)}, 1, {vr(vDK+2)}")
        A(f"v_xor_b32 {vr(vDK+2)}, {vr(vDK+2)}, {vr(c16)}"); A(f"v_lshlrev_b32 {vr(vDK+2)}, 4, {vr(vDK+2)}")
        A(f"v_lshl_add_u32 {vr(vDV)}, {vr(vDK+1)}, 8, {vr(vDK+2)}")
    A(f"v_lshl_add_u32 {vr(vKA)}, {vr(c16)}, 8, {vr(u3)}")
    for s in range(1, 4): A(f"v_xor_b32 {vr(vKA+s)}, {64*s}, {vr(vKA)}")
    A(f"v_lshrrev_b32 {vr(u3)}, 1, {vr(c16)}")
    A(f"v_xor_b32 {vr(u3)}, {vr(g_)}, {vr(u3)}")
    A(f"v_lshlrev_b32 {vr(u3)}, 4, {vr(u3)}")
    A(f"v_lshl_add_u32 {vr(u3)}, {vr(c16)}, 7, {vr(u3)}")
    A(f"v_add_u32 {vr(u3)}, {sr(sW8K)}, {vr(u3)}")
    for sl in range(2):
        A(f"v_add_u32 {vr(vXA+2*sl)}, {LX[sl]}, {vr(u3)}")
        A(f"v_xor_b32 {vr(vXA+2*sl+1)}, 64, {vr(vXA+2*sl)}")
    A(f"v_cmp_eq_u32 vcc, 0, {vr(c16)}")
    A(f"v_mov_b32 {vr(u3)}, 0x3f803f80")
    r_, f_, c8 = u0, u4, u5
    A(f"v_bfe_u32 {vr(r_)}, {vr(ln)}, 2, 2")
    for j in range(4): A(f"v_cndmask_b32 {vr(vONES+j)}, 0, {vr(u3)}, vcc")
    A(f"v_bfe_u32 {vr(f_)}, {vr(ln)}, 2, 3")
    A(f"v_and_b32 {vr(c8)}, 3, {vr(ln)}")
    A(f"v_lshlrev_b32 {vr(c8)}, 3, {vr(c8)}")
    A(f"v_lshrrev_b32 {vr(u3)}, 2, {vr(ln)}")
    A(f"v_lshlrev_b32 {vr(vWOA)}, 9, {vr(u3)}")
    A(f"v_lshl_add_u32 {vr(vWOA)}, {vr(c8)}, 1, {vr(vWOA)}")
    A(f"s_lshl_b32 {sr(sT)}, {sr(sWAVE)}, 7"); A(f"s_add_u32 {sr(sT)}, {sr(sT)}, {LWO}")
    A(f"v_add_u32 {vr(vWOA)}, {sr(sT)}, {vr(vWOA)}")
    A(f"v_lshl_add_u32 {vr(c8)}, {vr(f_)}, 5, {vr(c8)}")
    A(f"v_lshl_add_u32 {vr(u3)}, {vr(u3)}, 8, {vr(c8)}")
    A(f"v_add_u32 {vr(vVA)}, {LV}, {vr(u3)}")
    for dt in range(1, 8): A(f"v_xor_b32 {vr(vVA+dt)}, {32*dt}, {vr(vVA)}")
    A(f"v_lshl_add_u32 {vr(u3)}, {vr(g_)}, 3, {vr(r_)}")
    A(f"v_lshl_add_u32 {vr(u3)}, {vr(u3)}, 8, {vr(c8)}")
    if NOSWAP:
        A(f"v_and_b32 {vr(u3)}, 0xff00, {vr(u3)}"); A(f"v_lshl_add_u32 {vr(u3)}, {vr(r_)}, 6, {vr(u3)}")
        A(f"v_and_b32 {vr(c8)}, 3, {vr(ln)}"); A(f"v_lshl_add_u32 {vr(u3)}, {vr(c8)}, 4, {vr(u3)}")
        A(f"v_add_u32 {vr(vWA)}, {LWQ[0]}, {vr(u3)}")
        for k in range(1, 4): A(f"v_xor_b32 {vr(vWA+k)}, {64*k}, {vr(vWA)}")
    else:
        A(f"v_add_u32 {vr(vWA)}, {LWQ[0]}, {vr(u3)}")
        for dt in range(1, 8): A(f"v_xor_b32 {vr(vWA+dt)}, {32*dt}, {vr(vWA)}")
    A(f"v_lshlrev_b32 {vr(vWOS)}, 4, {vr(ln)}")
    A(f"v_add_u32 {vr(vLIN)}, {sr(sW4K)}, {vr(vWOS)}")
    o += wo_piece_addr()
    return o

def wo_reads():
    return [f"ds_read_b64_tr_b16 {ar(192+4*i+2*tt,2)}, {vr(vWOA)} offset:{(i//2)*64 + (i%2)*8 + tt*8192} ; #wo" for i in range(4) for tt in range(2)]
def wo_stores():
    return [[f"s_mov_b32 {sr(sT)}, {(i//2)*262144}", f"buffer_store_dwordx4 {ar(192+4*i,4)}, {vr(vWOS)}, {sr(sWS2,4)}, {sr(sT)} offen offset:{(i%2)*1024} sc1 ; #wst"] for i in range(4)]

def pairs(lst): return [lst[i:i+2] for i in range(0, len(lst), 2)]
def prologue():
    qs = stamp if CFG["qst"] else (lambda: [])
    o = setup_a()
    o += flat(qp_dma(0))
    nw = int(CFG.get("nwarm", 2))
    o += (warm_loads(nw) if nw else [])
    o += qs()
    o += setup_b()
    pt = CFG.get("pt", "")
    def pretouch(j, kind):
        if kind == "st": return [f"s_mov_b32 {sr(sDT)}, {j * 262144}", f"buffer_store_dword {vr(vWOF+1)}, {vr(vWOF+1)}, {sr(sO,4)}, {sr(sDT)} offen sc1 ; #pt"]
        if kind == "at": return [f"s_mov_b32 {sr(sDT)}, {j * 262144}", f"buffer_atomic_or {vr(vWOF+1)}, {vr(vWOF+1)}, {sr(sO,4)}, {sr(sDT)} offen sc1 ; #pt"]
        return [f"s_mov_b32 {sr(sDT)}, {j * 262144}", f"buffer_load_dword {vr(vWOF+2+j)}, {vr(vWOF+1)}, {sr(sO,4)}, {sr(sDT)} offen sc1 ; #pt"]
    if pt: o += [f"v_lshlrev_b32 {vr(vWOF+1)}, 3, {vr(vWOS)}"]
    if pt and pt[2:] == "0": o += pretouch(0, pt[:2]) + pretouch(1, pt[:2])
    prek = [x for x in CFG.get("prek", "").split(",") if x]
    for n in prek: o += (wo_piece_dma() if n == "wo" else kv_batch(n[0], int(n[1:])))
    if CFG.get("kvtlb"):
        o += [f"buffer_load_dword {ar(0)}, off, {sr(sK,4)}, 0 nt ; #tl", f"buffer_load_dword {ar(1)}, off, {sr(sV,4)}, 0 nt ; #tl"]
    o += qs()
    o += ["@wait st0", "s_barrier"] + stamp()
    kv = lambda *l: groups_of(sum([kv_batch(x[0], int(x[1:])) for x in l], []))
    bg = [int(x) for x in CFG.get("bg", "38,38,38,38,30,10,-14").split(",")]
    step = float(CFG.get("qstep", 4))
    B = [64 * s + bg[s] for s in range(7)]
    seq = [(st, dt, qb) for st in range(6) for dt in range(8) for qb in range(4) for i in range(2)]
    mf = sum([qp_mfmas(st) for st in range(6)], [])
    for st, qb in ((6, 0), (6, 1), (7, 0), (7, 1), (6, 2), (6, 3), (7, 2), (7, 3)):
        mf += qp_q(st, qb); seq += [(st, dt, qb) for dt in range(8) for i in range(2)]
    Q0 = len(mf)
    mf += [qk_one(0, kb, qb, (i if kb % 2 == 0 else 3 - i), i == 0, czero=True) for qb in range(4) for kb in range(4) for i in range(4)]
    first = {}; last = {}
    for g, (st, dt, qb) in enumerate(seq):
        for t in (f"x{st}_{qb}", f"w{st}_{dt}"):
            first.setdefault(t, g); last[t] = g
    xt = lambda k: ",".join(f"x{k}_{q}" for q in range(4))
    wt = lambda k: ",".join(f"w{k}_{d}" for d in range(8))
    nvm = {}; pre = {}; vm = {}
    def put_vm(g, grp):
        while g in vm or g in B: g += 1
        vm[g] = grp; return g
    npre = int(CFG.get("npre", 16)); nd1 = int(CFG.get("nd1", 6))
    r0 = qp_reads(0); d1 = qp_dma(1)
    o += r0[:npre] + flat(d1[:nd1])
    pos = -2
    for grp in d1[nd1:]: pos += 3; put_vm(int(pos), grp)
    XW = int(CFG.get("xw", 18))
    ekp = [x for x in CFG.get("ekp", "").split(",") if x]
    ek = dict(x.split(":") for x in CFG.get("ek", "5:K0").split(",") if x)
    for k in range(2, 8):
        for i, grp in enumerate(qp_dma(k)):
            e = 0 if k == 2 else (B[k-3] + 1 if i < 4 else B[k-3] + XW)
            if k == 7 and i >= 4: e = max(e, 0)
            pos = max(pos + step, e)
            if i == 4: grp = [f"@wait - lds={xt(k-2)}"] + grp
            put_vm(int(pos), grp)
        for n in ekp:
            j = k - int(CFG.get("ekp0", 3))
            if 0 <= j < 4:
                G_ = groups_of(wo_piece_dma()) if n == "wo" else kv(n)
                head = G_[0][:-1] if n != "wo" else G_[0][:1]
                grp = head + (G_[j] if (j or n == "wo") else G_[0][-1:]) if not (n == "wo" and j == 0) else G_[0]
                pos += 4; put_vm(int(pos), grp)
        if pt and pt[2:] != "0" and k - int(pt[2:]) in (0, 2):
            pos += 3; put_vm(int(pos), pretouch((k - int(pt[2:])) // 2, pt[:2]))
        if str(k) in ek:
            for grp in (groups_of(wo_piece_dma()) if ek[str(k)] == "wo" else kv(ek[str(k)])):
                pos += 3; put_vm(int(pos), grp)
    kstep = float(CFG.get("kstep", 9))
    BK, BQ = 384 + 94, Q0 + 56
    sched = [("K0", 0), ("wo", 0), ("K1", 0), ("V0", B[5] + 1), ("K2", BK + 1), ("V1", BK + 1)]
    for n, e in sched:
        if n in ek.values() or n in prek or n in ekp: continue
        for grp in (groups_of(wo_piece_dma()) if n == "wo" else kv(n)):
            pos = max(pos + kstep, e)
            put_vm(int(pos), grp)
    assert pos < Q0 + 64, pos
    if CFG["verbose"]: print("vm gaps:", sorted(vm))
    items = [(0, x) for x in r0[npre:]]
    for st in range(1, 8): items += [(st, x) for x in qp_reads(st)]
    R = []
    for st, x in items:
        t = x.split("#")[1]
        e = 0 if st == 0 else B[st-1] + 1
        if st >= 2: e = max(e, last[t[0] + str(st - 2) + t[2:]])
        d = first[t] - LAT
        if st < 7: d = min(d, B[st] - 8)
        if t[0] == "x" and 1 <= st <= 5: d = min(d, B[st-1] + XW - 7)
        R.append([e, max(d, e), x])
    R.sort(key=lambda r: (r[1], r[0]))
    rstep = float(CFG.get("rstep", 1.3)); nxt = 0
    for g in range(Q0):
        if g in vm or g in B: continue
        k = 0
        while k < 2:
            c = [r for r in R if r[0] <= g]
            if not c: break
            urgent = any(r[1] - g < i * 1.3 + 1 for i, r in enumerate(c))
            if not urgent and (k == 1 or g < nxt): break
            nvm.setdefault(g, []).append(c[0][2]); R.remove(c[0]); k += 1; nxt = g + rstep
    assert not R, R[:3]
    for t, g in first.items():
        (nvm.setdefault(g - 1, []) if g else o).insert(0 if g else len(o), f"@wait - lds={t}")
    for s in range(7):
        pre.setdefault(B[s], []).append(f"@wait st{s+1} lds={xt(s)},{wt(s)}")
        nvm.setdefault(B[s], []).append("s_barrier")
        if CFG["qst"]: pre[64 * s] = qs() + pre.get(64 * s, [])
    nvm = merge(nvm, spread(pairs(wo_reads()), [g for g in range(Q0 + 1, Q0 + 12) if g not in vm]))
    pre.setdefault(BK, []).append("@wait K0,wo"); nvm.setdefault(BK, []).append("s_barrier")
    nvm = merge(nvm, spread(pairs([rd_k(0, n) for n in range(16)]), [g for g in range(384 + 96, 384 + 120) if g not in vm]))
    pre.setdefault(Q0, []).append("@wait - lgkm=0"); pre[Q0] = stamp() + pre[Q0]
    pre.setdefault(BQ, []).append("@wait K1,V0 lds=wo"); nvm.setdefault(BQ, []).append("s_barrier")
    nvm = merge(nvm, {Q0 + 57: [f"s_add_u32 {sr(sTILE)}, {sr(sROT)}, {(DIST-1)*16384}"], Q0 + 58: [f"s_and_b32 {sr(sTILE)}, {sr(sTILE)}, 0x3ffff"],
                      Q0 + 59: [f"s_add_u32 {sr(sTK)}, {sr(sROT)}, {DIST*16384}"], Q0 + 60: [f"s_and_b32 {sr(sTK)}, {sr(sTK)}, 0x3ffff"],
                      Q0 + 61: [f"s_mov_b32 {sr(sCNT)}, 0"]})
    for g in sorted(vm):
        grp = vm[g]; sca = grp[:-1]
        prevv = max([x for x in vm if x < g], default=-1)
        gg = g
        for x in reversed(sca):
            nvm.setdefault(gg, []).insert(0, x)
            if gg - 1 > prevv and gg > 0: gg -= 1
        nvm.setdefault(g, []).append(grp[-1])
    va = [(f"v_accvgpr_write_b32 {ar(r)}, 0", 0, "z") for r in list(range(2, 128)) + [0, 1]]
    done = {0: 384 + 32, 1: 384 + 48, 2: 384 + 96, 3: 384 + 112}
    for qb in range(4):
        va += [(t, done[qb] + 4 * s + 3 + 3, f"q{qb}") for t, s in qconv_stream(qb)]
    va += [(f"v_mov_b32 {vr(vL+j)}, 0", Q0, "z") for j in range(16)]
    def initq(qb):
        n = vNEG + 4 * qb
        l = qmax(0, qb, n)
        for sw in ("v_permlane32_swap_b32", "v_permlane16_swap_b32"):
            l += [f"v_mov_b32 {vr(n+1)}, {vr(n)}", "s_nop 1", f"{sw} {vr(n)}, {vr(n+1)}", f"v_max_f32 {vr(n)}, {vr(n)}, {vr(n+1)}"]
        l += [f"v_sub_f32 {vr(n+j)}, 0, {vr(n)}" for j in (3, 2, 1, 0)]
        for ks in range(2):
            r = Ureg(0, ks, qb)
            l += [f"v_add_f32 {vr(r+j)}, {vr(r+j)}, {vr(n + j % 2)}" for j in range(8)]
        return l
    for qb in range(4): va += [(t, Q0 + 16 * qb + 15 + 3, "i") for t in initq(qb)]
    part, left = weave(mf, nvm, va, pre=pre, need={Q0 + 16 * q: f"q{q}" for q in range(4)})
    for k in range(1, 6):
        assert max(i for i, x in enumerate(part) if f"#x{k}_" in x) < part.index(f"@wait - lds={xt(k)}"), k
    for k in range(0, 6):
        assert max(i for i, x in enumerate(part) if f"#w{k}_" in x) < part.index(f"@wait st{k+1} lds={xt(k)},{wt(k)}"), k
    o += part
    o += qs()
    o += [rd_k(1, n) for n in EARLY_K]
    o += [f"v_mov_b32 {vr(vT+j)}, {sr(sXCC) if j == 1 else 0}" for j in range(4)]
    o.append(f"buffer_store_dwordx4 {vr(vT,4)}, {vr(vLIN)}, {sr(sFL,4)}, 0 offen sc1 ; #wst")
    if CFG["verbose"]: print("QK0 leftover VALU:", len(left))
    ini = []
    lf_ = [t for t, _, _ in left]
    i = 0
    while i < len(lf_):
        m1 = re.match(r"v_add_f32 v(\d+), v\d+, v(\d+)", lf_[i])
        if m1 and int(m1.group(1)) % 2 == 0 and i + 1 < len(lf_) and lf_[i+1].startswith(f"v_add_f32 v{int(m1.group(1))+1},"):
            r = int(m1.group(1)); ini.append(f"v_pk_add_f32 {vr(r,2)}, {vr(r,2)}, {vr(int(m1.group(2)),2)}"); i += 2
        else: ini.append(lf_[i]); i += 1
    ex_ = [exp_i(0, it[1]) for it in E_FIRST if it[0] == "exp"]; cv_ = [cvt_i(0, it[1]) for it in E_FIRST if it[0] == "cvt"]
    ini += ex_ + cv_
    G = wo_stores() + (kv("K3", "V2") if DIST == 4 else [])
    for i, g in enumerate(G):
        k = (i + 1) * len(ini) // (len(G) + 1)
        ini = ini[:k] + g + ini[k:]
    o += ini
    if CFG.get("nomax"): o.append("s_mov_b64 vcc, 0")
    o.append("@wait - lds=k0,k1,k2,k3")
    o += stamp()
    qd = CFG.get("qdiag", "")
    if "x" in qd: o = [x for x in o if not (re.search(r"#st[2-7]", x) and f"{sr(sX,4)}" in x)]
    if "r" in qd: o = [x for x in o if not re.search(r"#x[2-7]_", x)]
    if "w" in qd: o = [x for x in o if not (re.search(r"#st[2-7]", x) and f"{sr(sWQ,4)}" in x)]
    if "v" in qd: o = [x for x in o if not re.search(r"#w[2-7]_", x)]
    o, fifo, lf = resolve(o, [])
    return o, fifo, lf

def phase_c_srds():
    o = []; A = o.append
    t0, t1, t2 = sT, sT + 1, sT + 2
    A(f"s_lshr_b32 {sr(sHO)}, {sr(sH)}, 3")
    A(f"s_and_b32 {sr(sRC)}, {sr(sB)}, 3"); A(f"s_lshl_b32 {sr(sRC)}, {sr(sRC)}, 14")
    if CFG.get("krot8", True):
        A(f"s_and_b32 {sr(t0)}, {sr(sH)}, 1"); A(f"s_lshl_b32 {sr(t0)}, {sr(t0)}, 13"); A(f"s_add_u32 {sr(sRC)}, {sr(sRC)}, {sr(t0)}")
    A(f"s_add_u32 {sr(sRX)}, {sr(sRC)}, {sr(sW4K)}")
    A(f"s_mov_b32 {sr(sFL+2)}, 4")
    A(f"s_and_b32 {sr(t0)}, {sr(sH)}, 6"); A(f"s_lshl_b32 {sr(t0)}, {sr(t0)}, 1"); A(f"s_add_u32 {sr(t0)}, {sr(t0)}, {sr(sWAVE)}")
    A(f"s_lshl_b32 {sr(t0)}, {sr(t0)}, 18"); A(f"s_lshl_b32 {sr(t2)}, {sr(sHO)}, 16"); A(f"s_add_u32 {sr(t0)}, {sr(t0)}, {sr(t2)}")
    A(f"s_add_u32 {sr(t0)}, {sr(t0)}, {WOF_OFF}"); A(f"s_sub_u32 {sr(t0)}, {sr(t0)}, {sr(sW4K)}")
    o += srd_at(sWFL, 14, sr(t0), 65536 + 3 * 4096)
    if CFG.get("wtouch", False):
        A(f"s_and_b32 {sr(sRW)}, {sr(sB)}, 3"); A(f"s_lshl_b32 {sr(sRW)}, {sr(sRW)}, 1"); A(f"s_and_b32 {sr(t0)}, {sr(sH)}, 1"); A(f"s_add_u32 {sr(sRW)}, {sr(sRW)}, {sr(t0)}")
        A(f"s_lshl_b32 {sr(sRW)}, {sr(sRW)}, 13"); A(f"s_add_u32 {sr(sRW)}, {sr(sRW)}, {sr(sW4K)}"); A(f"s_add_u32 {sr(sRX)}, {sr(sRW)}, 4096")
    A(f"s_and_b32 {sr(t0)}, {sr(sH)}, 1"); A(f"s_lshl_b32 {sr(t1)}, {sr(sB)}, 1"); A(f"s_add_u32 {sr(t0)}, {sr(t0)}, {sr(t1)}")
    A(f"s_lshl_b32 {sr(t1)}, {sr(t0)}, 20"); A(f"s_add_u32 {sr(t1)}, {sr(t1)}, {sr(t2)}")
    o += srd_at(sOL, 14, sr(t1), 3 * 262144 + 65536)
    A(f"s_lshl_b32 {sr(t0)}, {sr(t0)}, 17"); A(f"s_lshl_b32 {sr(t1)}, {sr(sHO)}, 15"); A(f"s_add_u32 {sr(t0)}, {sr(t0)}, {sr(t1)}")
    A(f"s_and_b32 {sr(t1)}, {sr(sH)}, 6"); A(f"s_lshl_b32 {sr(t1)}, {sr(t1)}, 7"); A(f"s_add_u32 {sr(t0)}, {sr(t0)}, {sr(t1)}")
    o += srd_at(sOUT, 10, sr(t0), 31 * 1024 + 256)
    A(f"s_lshl_b32 {sr(t0)}, {sr(sB)}, 12"); A(f"s_lshl_b32 {sr(t1)}, {sr(sHO)}, 10"); A(f"s_add_u32 {sr(t0)}, {sr(t0)}, {sr(t1)}")
    A(f"s_add_u32 {sr(t0)}, {sr(t0)}, {FLAG_OFF}")
    o += srd_at(sFLR, 14, sr(t0), 1024)
    A(f"s_and_b32 {sr(t0)}, {sr(sH)}, 7"); A(f"s_lshl_b32 {sr(t1)}, {sr(sB)}, 5"); A(f"s_add_u32 {sr(t0)}, {sr(t0)}, {sr(t1)}")
    A(f"s_lshl_b32 {sr(t1)}, {sr(t0)}, 16"); A(f"s_lshl_b32 {sr(t2)}, {sr(sHO)}, 14"); A(f"s_add_u32 {sr(t1)}, {sr(t1)}, {sr(t2)}")
    A(f"s_add_u32 {sr(t1)}, {sr(t1)}, {PART_OFF}")
    o += srd_at(sPS, 14, sr(t1), 3 * 524288 + 16384)
    A(f"s_lshl_b32 {sr(t1)}, {sr(t0)}, 7"); A(f"s_lshl_b32 {sr(t2)}, {sr(sHO)}, 2"); A(f"s_add_u32 {sr(t1)}, {sr(t1)}, {sr(t2)}")
    A(f"s_add_u32 {sr(t1)}, {sr(t1)}, {FLAG_OFF + 16}")
    o += srd_at(sPF2, 14, sr(t1), 4)
    A(f"s_lshl_b32 {sr(t1)}, {sr(sB)}, 5"); A(f"s_add_u32 {sr(t1)}, {sr(t1)}, {sr(sH)}"); A(f"s_lshl_b32 {sr(t1)}, {sr(t1)}, 16")
    A(f"s_add_u32 {sr(t1)}, {sr(t1)}, {PART_OFF}")
    o += srd_at(sPL, 14, sr(t1), 65536)
    return o

def tail_and_epilogue(u):
    p = u % 2
    o = []
    reads = [rd_v(slotV(15), n, t) for n in range(16) for t in range(2)]
    er = [(exp_i(p, it[1]), UNITS[it[1] // 8][1]) if it[0] == "exp" else (cvt_i(p, it[1]), UNITS[it[1] // 4][1]) for it in E_REST]
    va = []
    for i, (t, q) in enumerate(er):
        if t.startswith("v_cvt") and i and er[i-1][0].startswith("v_exp"): va.append(("s_nop 0", 0, f"e{q}"))
        va.append((t, 0, f"e{q}"))
    mf = []
    for qb in range(4):
        mf += [sum_one(p, qb, 0), sum_one(p, qb, 1)]
        mf += [pv_one(p, dt, qb, (i if dt % 2 == 0 else 1 - i)) for dt in range(8) for i in range(2)]
    vOST = vCW
    if CFG.get("local"): va.append((f"v_cmp_ne_u32 {sr(sGLB,2)}, {sr(sXCC)}, {vr(vCW)}", 0, "x"))
    va.append((f"v_and_b32 {vr(vOST)}, 0x3ff, {vr(vLIN)}", 0, "x"))
    tmp = 2
    NMF = len(mf)
    fill = {0: [], 1: [], 2: [], 3: []}
    tail_names = CFG.get("tailw", "").split(",")
    post_names = [x for x in ("R3", "R5") if x not in tail_names]
    for qb in range(4):
        e0 = 18 * qb
        lsum = [f"v_mov_b32 {vr(vT+qb)}, {vr(vL+4*qb)}"] + allreduce("v_add_f32", vT + qb, vMX) + [f"v_rcp_f32 {vr(vT+qb)}, {vr(vT+qb)}"]
        va += [(t, max(12, e0 + 1 + 3), f"o{qb}") for t in lsum]
        F = fill[qb]
        for s in range(4):
            e = e0 + 2 + 4 * s + 3 + 3
            b_ = tmp + 8 * (s % 2)
            va += [(f"v_accvgpr_read_b32 {vr(b_+j)}, {ar(Oreg(qb,2*s)+j)}", e, f"o{qb}") for j in range(8)]
            va += [(f"@mul {b_+j} {vT+qb}", e, f"o{qb}") for j in range(8)]
            d = Ureg(p, s // 2, qb) + 4 * (1 - s % 2)
            ee = e0 + 17 if s % 2 == 1 else e
            va += [(f"v_cvt_pk_bf16_f32 {vr(d+j)}, {vr(b_+2*j)}, {vr(b_+2*j+1)}", max(e, ee), f"o{qb}") for j in range(4)]
            ld = flat(F[s * len(F) // 4:(s + 1) * len(F) // 4])
            va += [(t, NMF - 1 if qb == 3 else e, f"o{qb}") for t in ld]
            va += [(f"s_mov_b32 {sr(sT)}, {(qb//2)*262144 + (s//2)*4096}", e, f"o{qb}"),
                   (f"buffer_store_dwordx4 {vr(d,4)}, {vr(vOST)}, {sr(sO,4)}, {sr(sT)} offen offset:{(s%2)*2048 + (qb%2)*1024} {CFG.get('ost', 'plain' if CFG.get('local') else 'sc1').replace('+', ' ').replace('plain', '')} ; #ost", e, f"o{qb}")]
    if CFG.get("tord", True):
        E = {q: [x for x in va if x[2] == f"e{q}"] for q in range(4)}
        X = [x for x in va if x[2] == "x"]
        O_ = {q: [x for x in va if x[2] == f"o{q}"] for q in range(4)}
        rest = E[0] + E[1] + E[2] + E[3]
        n0 = int(CFG.get("tn0", 10))
        head, rest = rest[:n0], rest[n0:]
        r2 = [x for x in rest if x[2] != "e3"]; r3 = [x for x in rest if x[2] == "e3"]
        va = X + head + O_[0] + r2 + O_[1] + r3 + O_[2] + O_[3]
    va = [((f"v_mul_f32 {vr(int(t.split()[1]))}, {vr(int(t.split()[1]))}, {vr(int(t.split()[2]))}" if t.startswith("@mul") else t), e, k) for t, e, k in va]
    o += reads[:12]
    nvm = spread(pairs(reads[12:]), list(range(0, 10)))
    pre = {2 + 2 * dt: [f"@wait - lds=v{2*dt},v{2*dt+1}"] for dt in range(8)}
    early = sum([wo_loads(x) for x in tail_names if x], [])
    if early: nvm = merge(nvm, spread(early, list(range(10, int(CFG.get("tailhi", 44)), 2))))
    part, left = weave(mf, nvm, va, pre=pre, need={18 * q: f"e{q}" for q in range(4)})
    o += part
    o += stamp()
    o.append("s_nop 7")
    lf_ = [t for t, _, _ in left]
    i = 0
    while i < len(lf_):
        m1 = re.match(r"v_mul_f32 v(\d+), v\d+, v(\d+)", lf_[i]); m2 = re.match(r"v_mul_f32 v(\d+), v\d+, v(\d+)", lf_[i+1]) if i + 1 < len(lf_) else None
        if m1 and m2 and int(m1.group(1)) % 2 == 0 and int(m2.group(1)) == int(m1.group(1)) + 1:
            r = int(m1.group(1)); f_ = int(m1.group(2))
            sel = "op_sel_hi:[1,0]" if f_ % 2 == 0 else "op_sel:[0,1] op_sel_hi:[1,1]"
            o.append(f"v_pk_mul_f32 {vr(r,2)}, {vr(r,2)}, {vr(f_ - f_ % 2,2)} {sel}"); i += 2
        else:
            o.append(lf_[i]); i += 1
    A = o.append
    A(f"v_mov_b32 {vr(vMX)}, 1")
    A(f"v_and_b32 {vr(vT)}, 7, v0"); A(f"v_lshlrev_b32 {vr(vT)}, 7, {vr(vT)}")
    A(f"v_add_u32 {vr(vKA)}, 0x10000, {vr(vOST)}")
    A(f"s_mov_b32 {sr(sCNT)}, 0")
    if CFG.get("forceglobal"): A(f"s_mov_b64 {sr(sGLB,2)}, -1")
    if CFG.get("local"): A(f"s_and_b32 {sr(sGLB)}, {sr(sGLB)}, 0xff"); A(f"s_cmp_lg_u32 {sr(sGLB)}, 0")
    mode = CFG.get("sync", "cnt1")
    cnt = mode.startswith("cnt"); one = mode.endswith("1")
    if cnt: A(f"s_mov_b32 {sr(sFLR+2)}, 4")
    post = sum([wo_loads(x) for x in post_names], [])
    npre = int(CFG.get("npost", 0))
    o += flat(post[:npre]); post = post[npre:]
    A("@wait ost")
    A("s_barrier")
    if cnt: A(f"buffer_atomic_add {vr(vMX)}, {vr(vLIN)}, {sr(sFLR,4)}, 0 offen sc1 ; #flag")
    else: A(f"buffer_store_dword {vr(vMX)}, {vr(vLIN)}, {sr(sFL,4)}, 0 offen sc1 ; #flag")
    o += stamp()
    pl = f"buffer_load_dword {vr(vT+1)}, off, {sr(sFLR,4)}, 0 sc1" if cnt else f"buffer_load_dword {vr(vT+1)}, {vr(vT)}, {sr(sFLR,4)}, 0 offen sc1"
    want = 8 if cnt else 1
    o += flat(post)
    pw = int(CFG.get("pollwave", 1))
    if one: A(f"s_cmp_lg_u32 {sr(sWAVE)}, {pw}"); A("s_cbranch_scc1 L_go")
    A("L_poll:")
    A(pl + " ; #~poll")
    A("s_waitcnt vmcnt(0) ; keep")
    A(f"v_cmp_ne_u32 vcc, {want}, {vr(vT+1)}")
    A("s_cbranch_vccz L_go")
    if int(CFG.get("psleep", 0)): A("s_sleep " + str(int(CFG["psleep"])))
    A(f"s_add_u32 {sr(sCNT)}, {sr(sCNT)}, 1")
    A(f"s_cmp_lt_u32 {sr(sCNT)}, {CFG['spin']}")
    A("s_cbranch_scc1 L_poll")
    A("L_go:")
    if one: A("s_barrier")
    if CFG.get("local"): A(f"s_cmp_lg_u32 {sr(sGLB)}, 0"); A("s_cbranch_scc1 L_acq")
    A("L_acq_back:")
    o += stamp()
    return o

STAGED = []
def phase_c():
    o = []; A = o.append
    vOST = vCW
    D = int(CFG.get("cdist", 4))
    LAND, OWN = vS + 64, vS + 64 + 48
    ACCV = CFG.get("accv", True) and CFG.get("pb16", True)
    def acc(k, q2, t):
        if ACCV: return (OWN if k % 2 else vL) + 4 * (q2 * 2 + t)
        return (256 + 64 + 16 * k if k < 3 else OWN) + 4 * (q2 * 2 + t)
    def gsel(k, dst, sh): return [f"s_add_u32 {sr(dst)}, {sr(sHO)}, {k + 1}", f"s_and_b32 {sr(dst)}, {sr(dst)}, 3", f"s_lshl_b32 {sr(dst)}, {sr(dst)}, {sh}"]
    def dma(ch):
        G = []
        for p in range(4):
            g = []
            if p == 0:
                if ch % 4 == 0: g += gsel(ch // 4, sG, 18)
                if CFG.get("krot", True):
                    g += [f"s_add_u32 {sr(sSP)}, {sr(sRX)}, {(ch % 4) * 16384}", f"s_and_b32 {sr(sSP)}, {sr(sSP)}, 0xffff", f"s_add_u32 {sr(sSP)}, {sr(sSP)}, {sr(sG)}"]
                else: g += [f"s_add_u32 {sr(sSP)}, {sr(sG)}, {(ch % 4) * 16384}"]
                g += [m0_at((ch % 8) * 16384), "s_nop 0"]
            g.append(f"buffer_load_dwordx4 {vr(vOST if CFG.get('krot', True) else vLIN)}, {sr(sOL,4)}, {sr(sSP)} offen offset:{p*1024} sc1 lds ; #c{ch}")
            G.append(g)
        return G
    def ofr(u, kl, q2): return 256 + 32 * (u % 2) + 4 * (kl * 2 + q2)
    def reads(u):
        ch = u // 2; base = (ch % 8) * 16384 + (u % 2) * 8192
        return [f"ds_read_b128 {rr(ofr(u,kl,q2),4)}, {vr(vKA if base >= 65536 else vOST)} offset:{base % 65536 + (kl*2+q2)*1024} ; #u{u}_{q2}" for q2 in range(2) for kl in range(4)]
    for ch in range(D): o += flat(dma(ch))
    o += ["@wait c0", "s_barrier"] + stamp() + reads(0)
    mf = []; nvm = {}; pre = {}; vm = {}
    nxc = [D]
    PB = CFG.get("pb16", True)
    vac = []
    for u in range(32):
        k = u // 8
        for j, (q2, t) in enumerate(((0, 0), (0, 1), (1, 1), (1, 0))):
            for i in range(4):
                kl = i if j % 2 == 0 else 3 - i
                f = ((u % 8) * 4 + kl) * 2 + t
                d = rr(acc(k, q2, t), 4)
                mf.append(f"{MF} {d}, {rr(WREG[f],4)}, {rr(ofr(u,kl,q2),4)}, {d if (u % 8 or i) else 0}")
        g0 = 16 * u
        (nvm.setdefault(g0 - 1, []) if u else o).append(f"@wait - lds=u{u}_0")
        nvm.setdefault(g0 + 7, []).append(f"@wait - lds=u{u}_1")
        if u + 1 < 32:
            if u % 2 == 1:
                tags = f"c{u // 2 + 1}"
                fl = [int(x) for x in str(CFG.get("pfl", "2,2,2")).split(",")]
                kk = [x for x in range(3) if 4 * (x + 1) + fl[x] - 1 == u // 2]
                if kk: tags += f",p{kk[0]}"
                pre.setdefault(g0, []).append(f"@wait {tags}")
                nvm.setdefault(g0, []).append("s_barrier")
                if CFG.get("cst"):
                    nvm[g0] += ["s_memtime s[40:41]", "s_memrealtime s[42:43]", "s_waitcnt lgkmcnt(0)", f"v_writelane_b32 v{STV}, s40, {40 + u // 2}", f"v_writelane_b32 v{STV}, s42, {25 + u // 2}"]
                if kk:
                    vm[g0 + 2] = gsel(kk[0], sT, 10) + [f"s_add_u32 {sr(sPF2+2)}, {sr(sT)}, 4",
                                   f"buffer_store_dword {vr(vMX)}, {vr(vLIN)}, {sr(sPF2,4)}, {sr(sT)} offen sc1 ; #pf"]
            r = reads(u + 1)
            for j, g in enumerate((1, 2, 4, 5) if False else (1, 3, 6, 8)): nvm.setdefault(g0 + g, []).extend(r[2*j:2*j+2])
        if u % 2 == 0:
            D2 = int(CFG.get("cdist2", D))
            n2 = 2 if nxc[0] + 1 <= u // 2 + D2 and nxc[0] + 1 < 16 else (1 if nxc[0] < 16 else 0)
            G_ = sum([dma(nxc[0] + j) for j in range(n2)], []); nxc[0] += n2
            for grp, g in zip(G_, (5, 12, 21, 28) if n2 == 1 else (2, 5, 9, 12, 20, 23, 27, 30)): vm[g0 + g] = [x for x in grp if x != "s_nop 0"]
        if u % 8 == 0 and u:
            kk = k - 1
            if ACCV:
                for q2 in range(2):
                    a0 = acc(kk, q2, 0); pk = 2 + 4 * q2; e = g0 - 6 if q2 == 0 else g0 + 2
                    for j in range(4): nvm.setdefault(e + (j // 2) * (1 if q2 == 0 else 2), []).append(f"v_cvt_pk_bf16_f32 {vr(pk + j)}, {vr(a0 + 2*j)}, {vr(a0 + 2*j + 1)}")
                    g = g0 - 3 if q2 == 0 else g0 + 7
                    while g in vm: g += 1
                    vm[g] = (gsel(kk, sTK, 19) if q2 == 0 else []) + [f"buffer_store_dwordx4 {vr(pk, 4)}, {vr(vLIN)}, {sr(sPS,4)}, {sr(sTK)} offen offset:{q2*1024} sc1 ; #p{kk}"]
            elif PB:
                for q2 in range(2):
                    a0 = acc(kk, q2, 0) - 256
                    vac += [(f"v_accvgpr_read_b32 {vr(vL + j)}, {ar(a0 + j)}", g0 + 2, "p") for j in range(8)]
                    vac += [(f"v_cvt_pk_bf16_f32 {vr(vL + 8 + 4*q2 + j)}, {vr(vL + 2*j)}, {vr(vL + 2*j + 1)}", g0 + 2, "p") for j in range(4)]
                    vac += [(x, g0 + 2, "p") for x in (gsel(kk, sTK, 19) if q2 == 0 else [])]
                    vac += [(f"buffer_store_dwordx4 {vr(vL + 8 + 4*q2, 4)}, {vr(vLIN)}, {sr(sPS,4)}, {sr(sTK)} offen offset:{q2*1024} sc1 ; #p{kk}", g0 + 2, "p")]
            else:
                for j, g in enumerate((10, 14, 18, 26)):
                    while g0 + g in vm: g += 1
                    vm[g0 + g] = (gsel(kk, sTK, 19) if j == 0 else []) + [f"buffer_store_dwordx4 {rr(acc(kk, j // 2, j % 2), 4)}, {vr(vLIN)}, {sr(sPS,4)}, {sr(sTK)} offen offset:{j*1024} sc1 ; #p{kk}"]
    STAGED.clear()
    ep = [int(x) for x in CFG.get("ep", "7,11").split(",") if x]
    e3 = [int(x) for x in CFG.get("e3", "").split(",") if x]
    if e3: ep.append(0)
    for n, ch in enumerate(ep):
        k = 2 - n
        g0 = 32 * ch if n < 2 else e3[0] - 9
        vm[g0 + 9] = gsel(k, sTILE, 2) + [f"buffer_load_dword {vr(vT+1)}, off, {sr(sFL,4)}, {sr(sTILE)} offset:16 sc1 ; #e{k}"]
        g1 = g0 + 32 + 16 + 9 if n < 2 else e3[1]
        nvm.setdefault(g1, []).extend([f"@wait e{k}", f"v_cmp_ne_u32 vcc, 1, {vr(vT+1)}"])
        nvm.setdefault(g1 + 1, []).extend([f"s_cbranch_vccnz L_e{k}", f"L_e{k}_back:"])
        for j, g in enumerate(((g1 + 5, g1 + 9, g1 + 11, g1 + 17) if n < 2 else (g1 + 3, g1 + 4, g1 + 5, g1 + 6))[:2 if PB else 4]):
            while g in vm: g += 1
            vm[g] = ([f"s_lshl_b32 {sr(sTILE)}, {sr(sTILE)}, 12"] if j == 0 else []) + [f"buffer_load_dwordx4 {vr(LAND + 16*k + 4*j, 4)}, {vr(vLIN)}, {sr(sPL,4)}, {sr(sTILE)} offen offset:{j*1024} sc1 ; #l{k}"]
        STAGED.append(k)
    nvm.setdefault(2, []).insert(0, f"s_mov_b32 {sr(sFL+2)}, 32")
    prev = -1
    for g in sorted(vm):
        grp = vm[g]; sca = grp[:-1]
        lo = max([prev] + [q for q in range(g) if any(x.startswith("L_e") for x in nvm.get(q, []))])
        free = [q for q in range(lo + 1, g) if not any(x.startswith(("s_", "@")) for x in nvm.get(q, []))]
        if len(free) >= len(sca):
            for x, q in zip(sca, free[len(free) - len(sca):]): nvm.setdefault(q, []).insert(0, x)
        else: nvm[g - 1] = sca + nvm.get(g - 1, [])
        nvm.setdefault(g, []).append(grp[-1]); prev = g
    nl = 3 - len(STAGED)
    ad = [f"v_and_b32 {vr(vT)}, 3, v0", f"v_min_u32 {vr(vT)}, {max(nl - 1, 0)}, {vr(vT)}", f"v_add_u32 {vr(vT)}, {sr(sHO)}, {vr(vT)}", f"v_add_u32 {vr(vT)}, 1, {vr(vT)}",
          f"v_and_b32 {vr(vT)}, 3, {vr(vT)}", f"v_lshlrev_b32 {vr(vT)}, 2, {vr(vT)}",
          "v_and_b32 v12, 15, v0", "v_lshrrev_b32 v13, 4, v0", "v_lshlrev_b32 v13, 4, v13", "v_lshl_add_u32 v14, v12, 10, v13"]
    lastpoll = int(CFG.get("lp", 500))
    if nl: nvm.setdefault(lastpoll, []).append(f"buffer_load_dword {vr(vT+1)}, {vr(vT)}, {sr(sFL,4)}, 0 offen offset:16 sc1 ; #lp")
    part, lft = weave(mf, nvm, [(x, 20, "a") for x in ad] + vac, pre=pre)
    assert not lft
    o += part
    o += stamp()
    if nl:
        A(f"s_mov_b32 {sr(sCNT)}, 0")
        A("@wait lp")
        A(f"v_cmp_ne_u32 vcc, 1, {vr(vT+1)}")
        A("s_cbranch_vccz L_go2")
        A("L_poll2:")
        A(f"buffer_load_dword {vr(vT+1)}, {vr(vT)}, {sr(sFL,4)}, 0 offen offset:16 sc1")
        A("s_waitcnt vmcnt(0)")
        A(f"v_cmp_ne_u32 vcc, 1, {vr(vT+1)}")
        A("s_cbranch_vccz L_go2")
        A(f"s_add_u32 {sr(sCNT)}, {sr(sCNT)}, 1")
        A(f"s_cmp_lt_u32 {sr(sCNT)}, {CFG['spin']}")
        A("s_cbranch_scc1 L_poll2")
    else: A("s_nop 7")
    A("L_go2:")
    o += stamp()
    for k in range(nl):
        o += gsel(k, sT, 14)
        for j in range(2 if PB else 4): A(f"buffer_load_dwordx4 {vr(LAND + 16*k + 4*j, 4)}, {vr(vLIN)}, {sr(sPL,4)}, {sr(sT)} offen offset:{j*1024} sc1 ; #l{k}")
    for k in (2, 1, 0):
        A(f"@wait l{k}")
        if PB:
            for j in reversed(range(8)):
                A(f"v_and_b32 {vr(LAND+16*k+2*j+1)}, 0xffff0000, {vr(LAND+16*k+j)}")
                A(f"v_lshlrev_b32 {vr(LAND+16*k+2*j)}, 16, {vr(LAND+16*k+j)}")
        for j in range(0, 16, 2): A(f"v_pk_add_f32 {vr(OWN+j,2)}, {vr(OWN+j,2)}, {vr(LAND+16*k+j,2)}")
    A(f"s_mov_b32 {sr(sT)}, 16384")
    for q2 in range(2):
        for j in range(4): A(f"v_cvt_pk_bf16_f32 {vr(LAND + 4*q2 + j)}, {vr(OWN + 8*q2 + 2*j)}, {vr(OWN + 8*q2 + 2*j + 1)}")
        A(f"buffer_store_dwordx4 {vr(LAND + 4*q2, 4)}, v14, {sr(sOUT,4)}, {sr(sT) if q2 else 0} offen {CFG.get('outst', 'plain').replace('+', ' ').replace('plain', '')}")
    return o

def peeled(lf):
    o = [f"s_mov_b32 {sr(sT)}, 0xe00fe000", f"v_cmp_ne_u32 vcc, {sr(sT)}, {vr(vCW)}", "s_cbranch_vccnz L_cw", "L_cw_back:"]
    for i in range(PEEL0, 15):
        loads = []
        tp = CFG.get("tpol", "nt").replace("+", " ")
        def touch(j, half):
            return [f"s_mov_b32 {sr(sDT)}, {j * 262144 + half * 4096}", f"s_mov_b32 {sr(sO+2)}, {j * 262144 + half * 4096 + 4096}",
                    f"buffer_load_dword {ar(240 + 2*j + half)}, {vr(vCW)}, {sr(sO,4)}, {sr(sDT)} offen {tp} ; #tch"]
        T = [touch(j, h_) for j in range(2) for h_ in range(2)] if CFG.get("local") and tp != "none" else []
        tsch = [int(x) for x in CFG.get("tsch", "13,13,13,13").split(",")]
        mine = [t for t, k in zip(T, tsch) if k == i]
        if i == 12 and CFG.get("local"):
            ids = [[f"v_and_b32 {vr(vCW)}, 63, v0", f"v_lshlrev_b32 {vr(vCW)}, 7, {vr(vCW)}", f"s_nop 0",
                    f"buffer_load_dword {ar(239)}, {vr(vCW)}, {sr(sFLR,4)}, 0 offen offset:4 sc1 ; #ids"]]
            loads = [(ids + mine, 0, NG)]
        fixed = {}
        if i == 12 and CFG.get("wtouch", False):
            tg = [int(x) for x in CFG.get("wtg", "65,68,93,107").split(",")]
            NP = len(tg)
            fixed[64] = [f"v_and_b32 {vr(vCW)}, {64 // NP - 1}, v0", f"v_lshlrev_b32 {vr(vCW)}, 7, {vr(vCW)}"]
            for j, g in enumerate(tg):
                off = j * 8192 // NP
                fixed.setdefault(g, []).append(f"buffer_load_dword {ar(252 + j)}, {vr(vCW)}, {sr(sWFL,4)}, {sr(sRX if off >= 4096 else sRW)} offen offset:{off % 4096} sc1 ; #wt")
        if i == 12 and int(CFG.get("r1n12", 0)): loads = [(wo_loads("R1")[:int(CFG["r1n12"])], 0, NG)]
        r1at = int(CFG.get("r1at", 14))
        if i == 13:
            g = mine + (wo_loads("R1")[:8] if r1at == 13 else [])
            if not CFG.get("local"): g = wo_loads("R1")[int(CFG.get("r1n12", 0)):int(CFG.get("r1n13", 8))]
            loads = [(g, int(CFG.get("r1lo", 24)), int(CFG.get("r1hi", 75)))] if g else []
        if i == 14:
            loads = [(wo_loads("R2") + wo_loads("R4"), 64, NG)]
            if int(CFG.get("r1n13", 8)) < 16: loads.insert(0, (wo_loads("R1")[int(CFG.get("r1n13", 8)):], 0, 64))
            if CFG.get("local"):
                chk = [f"@wait ids,tch", f"v_accvgpr_read_b32 {vr(vCW)}, {ar(239)}"]
                r1 = wo_loads("R1")[(8 if r1at == 13 else 0):]
                k8 = len(r1) - 8
                r1[k8] = chk + r1[k8]
                loads.insert(0, (r1, 0, 64))
        o += iteration(i, f"L_r{i}", loads, phase_c_srds() if i == PEEL0 else (), fixed)
    o += stamp()
    o += tail_and_epilogue(3)
    o += phase_c()
    fifo = [f"K{PEEL0+2}"] * 4 + [f"V{PEEL0+1}"] * 4
    if CFG.get("skipst"): o = [x for x in o if "#ost" not in x]
    if CFG.get("skipp"): o = [x for x in o if not re.search(r"#p\d", x)]
    o, _, _ = resolve(o, fifo, lf)
    return o

def stamp_out():
    if not CFG["stamps"]: return []
    o = ["s_waitcnt vmcnt(0)"] + stamp()
    A = o.append
    A(f"s_lshl_b32 {sr(sT)}, s2, 10"); A(f"s_add_u32 {sr(sT)}, {sr(sT)}, {STAMP_OFF}")
    o += srd_at(4, 14, sr(sT), 1024)
    A("v_lshlrev_b32 v1, 2, v0")
    A(f"buffer_store_dword v{STV}, v1, s[4:7], 0 offen")
    if CFG.get("dbgout"):
        o += srd_at(4, 12, "0", 64)
        A("v_and_b32 v2, 63, v0")
        A("v_lshlrev_b32 v1, 1, v2"); A("v_add_u32 v1, 6, v1")
        A("v_and_b32 v3, 1, v2"); A("v_cmp_eq_u32 vcc, 0, v3"); A("v_mov_b32 v3, 0x1000"); A("s_nop 1")
        A("v_cndmask_b32 v1, v1, v3, vcc")
        A(f"v_cmp_lt_u32 vcc, {2*nstamp[0]}, v2"); A("s_nop 1"); A("v_cndmask_b32 v1, v1, v3, vcc")
        A(f"buffer_atomic_umax v{STV}, v1, s[4:7], 0 offen sc1")
        A(f"v_not_b32 v4, v{STV}")
        A("v_cmp_eq_u32 vcc, 1, v2"); A("s_nop 1"); A("v_cndmask_b32 v1, v3, 4, vcc")
        A(f"buffer_atomic_umax v4, v1, s[4:7], 0 offen sc1")
    return o

def kernel():
    pro, fifo, lf0 = prologue()
    _, _, lf = resolve(iteration(0, "x") + iteration(1, "x"), [])
    its = []
    for u in range(4):
        it, _, lf2 = resolve(iteration(u, f"L_r{u}"), [], lf)
        assert lf2 == lf
        its.append(it)
    assert len(lf0) >= len(lf) and lf0[len(lf0)-len(lf):] == lf or CFG["stamps"] or CFG.get("probe"), (lf0, lf)
    pe = peeled(lf)
    body = list(pro)
    body.append("L_loop:")
    for u in range(4):
        it = list(its[u])
        if u == 3:
            k = [i for i, x in enumerate(it) if x.startswith(MF)]
            it.insert(k[-3] + 1, f"s_cmp_lt_u32 {sr(sCNT)}, {NPASS}")
            it.insert(k[-4] + 1, f"s_add_u32 {sr(sCNT)}, {sr(sCNT)}, 1")
            it.append("s_cbranch_scc1 L_loop")
            its[3] = it
        body += it
    body += pe
    body += stamp_out()
    if CFG.get("fixdur"):
        body += ["L_fix:", "s_memrealtime s[40:41]", "s_waitcnt lgkmcnt(0)", "s_sub_u32 s40, s40, s42", f"s_cmp_lt_u32 s40, {int(CFG['fixdur'])*100}", "s_cbranch_scc1 L_fix"]
    body.append("L_end:")
    body.append("s_endpgm")
    for u in list(range(4)) + list(range(PEEL0, 15)):
        body += [f"L_r{u}a:", f"s_call_b64 {sr(sRET,2)}, L_ra{1 - u % 2}", f"s_branch L_r{u}a_back"]
        if CFG.get("evslow"): body += [f"L_r{u}z:", f"s_nop {int(CFG['evslow'][1:])}", f"s_branch L_r{u}z_back"]
        body += [f"L_r{u}b:", f"s_call_b64 {sr(sRET,2)}, L_rb", f"s_branch L_r{u}b_back"]
    body += ["L_cw:", f"s_mov_b32 {sr(sCNT)}, 0", "L_cw_loop:",
             f"v_and_b32 {vr(vCW)}, 3, v0", f"v_lshlrev_b32 {vr(vCW)}, 6, {vr(vCW)}",
             f"buffer_load_dword {vr(vCW)}, {vr(vCW)}, {sr(sDB,4)}, 0 offen sc1", "s_waitcnt vmcnt(0)",
             f"v_cmp_ne_u32 vcc, {sr(sT)}, {vr(vCW)}", "s_cbranch_vccz L_cw_back",
             f"s_add_u32 {sr(sCNT)}, {sr(sCNT)}, 1", f"s_cmp_lt_u32 {sr(sCNT)}, {CFG['spin']}", "s_cbranch_scc1 L_cw_loop",
             "s_branch L_cw_back"]
    if CFG.get("local"): body += ["L_pubg:", "buffer_wbl2 sc1", "s_waitcnt vmcnt(0)",
             f"buffer_store_dword {vr(vMX)}, {vr(vLIN)}, {sr(sFL,4)}, 0 offen sc1", "s_branch L_pubg_back"]
    if CFG.get("local"): body += ["L_acq:", "buffer_inv sc1", "s_waitcnt vmcnt(0)", "s_branch L_acq_back"]
    for k in STAGED:
        body += [f"L_e{k}:", f"s_mov_b32 {sr(sCNT)}, 0", f"L_e{k}_loop:",
                 f"buffer_load_dword {vr(vT+1)}, off, {sr(sFL,4)}, {sr(sTILE)} offset:16 sc1", "s_waitcnt vmcnt(0)",
                 f"v_cmp_ne_u32 vcc, 1, {vr(vT+1)}", f"s_cbranch_vccz L_e{k}_back",
                 f"s_add_u32 {sr(sCNT)}, {sr(sCNT)}, 1", f"s_cmp_lt_u32 {sr(sCNT)}, {CFG['spin']}", f"s_cbranch_scc1 L_e{k}_loop", f"s_branch L_e{k}_back"]
    for p in range(2): body += rare_a(p, f"L_ra{p}")
    body += rare_b("L_rb")
    loop = its[0] + its[1] + its[2] + its[3]
    check(pro + loop + loop + pe, "main")
    def with_rare(seq):
        o = []
        for x in seq:
            m = re.match(r"L_r(\d+)([ab])_back:", x)
            if m: o += (rare_a(1 - int(m.group(1)) % 2, "x") if m.group(2) == "a" else rare_b("x"))[1:]
            o.append(x)
        return o
    check(pro + with_rare(loop + pe), "rare")
    lastscc = None
    for x in body:
        op = x.split()[0] if x.split() else ""
        if op == "s_addc_u32": assert lastscc == "s_add_u32" and prev.startswith("s_add_u32"), (prev, x)
        if op in ("s_cselect_b32", "s_cbranch_scc0", "s_cbranch_scc1"): assert lastscc.startswith("s_cmp"), (lastscc, x)
        if op.startswith(("s_add", "s_sub", "s_and", "s_or", "s_xor", "s_lshl", "s_lshr", "s_cmp", "s_bfe", "s_min", "s_max", "s_not")): lastscc = op
        prev = x
    if CFG["verbose"]:
        for g in range(NG): print(g, PLAN[g])
    return "\n".join(body)

if __name__ == "__main__":
    k = kernel()
    txt = file_text([dict(label=NAME + "_kernel", body=k, grid=256, block=256, lds=163840, vgpr=512, accum=256)], single=True)
    open(sys.argv[1], "w").write(txt)
```

```python
import sys, math, struct, re
from asmlib import *
from check import check

CFG = dict(qst=False, stamps=False, codepf=True, warm=True, spin=200000, verbose=False)
for a in sys.argv[2:]:
    k, v = a.split("=")
    CFG[k] = {"0": False, "1": True}.get(v, v)

MF = "v_mfma_f32_16x16x32_bf16"
def vr(b, n=1): return f"v{b}" if n == 1 else f"v[{b}:{b+n-1}]"
def ar(b, n=1): return f"a{b}" if n == 1 else f"a[{b}:{b+n-1}]"
def sr(b, n=1): return f"s{b}" if n == 1 else f"s[{b}:{b+n-1}]"
def rr(r, n=1): return vr(r, n) if r < 256 else ar(r - 256, n)
def slots(t):
    if t.startswith(("v_exp", "v_rcp", "buffer_", "global_", "v_permlane")): return 2
    if t.startswith(("s_", "@", "L_")): return 0
    return 1

sX, sWQ, sK, sV, sO = 4, 8, 12, 16, 20
sWFL, sOL = 4, 8
sWAVE, sB, sH, sW4K, sW8K = 24, 25, 26, 27, 28
sCB, sMT, sNT = 29, 30, 31
sXO, sWO = 32, 40
sOUT, sFLR = 32, 36
sTILE, sCNT, sTHR, sSC, sSP = 44, 45, 46, 47, 48
sRET = 50
sTK, sROT, sRQ, sRX, sRW = 49, 92, 93, 94, 95
sW1K, sDT = 96, 97
sPF = 98
sPS, sPL, sPF2 = 80, 84, 76
sHO, sG = 29, 30
sHP, sW2K = 56, 96
sRC = 93
sXCC, sGLB = 3, 94
sT = 52
sARG = 56
sFL, sDB, sDBW = 72, 76, 88
sWS2, sWO2 = 80, 84
vKA, vVA, vDK, vDV = 1, 5, 13, 17
vMX, vLIN, vCW, STV = 19, 21, 22, 23
vT = 24
vONES = 28
vNEG, vL, vQ, vS = 32, 48, 64, 128
vWA, vXA, vDX, vDW, vWOF = 64, 72, 76, 78, 25
vWOA, vWOS = 19, 20
vDUM = [22, 26, 27]
u0, u1, u2, u3, u4, u5, ln = 128, 129, 130, 131, 132, 133, 134
aO, aF = 0, 128
LK, LV, LW = 0, 65536, 131072
LX = [81920, 131072]
LWQ = [32768, 49152, 65536]
LWO = 114688
WOF_OFF, FLAG_OFF, PART_OFF, STAMP_OFF = 0x1000000, 0x1400000, 0x1800000, 0x4000000

def Ureg(p, ks, qb): return vS + 64 * p + 8 * (ks * 4 + qb)
def Sreg(p, kb, qb): return Ureg(p, kb // 2, qb) + 4 * (kb % 2)
def Oreg(qb, dt): return aO + 4 * (qb * 8 + dt)
def Qreg(qb, s): return vQ + 16 * qb + 4 * s
def Freg(n): return aF + 4 * n

nstamp = [0]
def stamp():
    if CFG.get("probe"):
        i = nstamp[0]; nstamp[0] += 1
        return ["s_memrealtime s[42:43]", "s_waitcnt lgkmcnt(0)"] if i == int(CFG["probe"][1:]) else []
    if not CFG["stamps"]: return []
    i = nstamp[0]; nstamp[0] += 1
    assert i < 30
    return ["s_memtime s[40:41]", "s_waitcnt lgkmcnt(0)", f"v_writelane_b32 v{STV}, s40, {2*i}",
            "s_memrealtime s[40:41]", "s_waitcnt lgkmcnt(0)", f"v_writelane_b32 v{STV}, s40, {2*i+1}"]

def srd(s, size):
    return [f"s_and_b32 {sr(s+1)}, {sr(s+1)}, 0xffff", f"s_mov_b32 {sr(s+2)}, {size}", f"s_mov_b32 {sr(s+3)}, 0x20000"]
def srd_at(s, arg, offreg, size):
    return [f"s_add_u32 {sr(s)}, {sr(sARG+arg)}, {offreg}", f"s_addc_u32 {sr(s+1)}, {sr(sARG+arg+1)}, 0"] + srd(s, size)

def tag(lst, t): return [(x + f" ; #{t}") if x.startswith(("buffer_", "global_")) and "#" not in x else x for x in lst]
def resolve(seq, fifo, lfifo=()):
    fifo = list(fifo); lf = list(lfifo); out = []
    def cut(f, n): return f[len(f) - n:] if 0 < n < len(f) else (f if n else [])
    for x in seq:
        if x.startswith("@wait"):
            parts = x.split()
            w = []
            idx = [i for i, t in enumerate(fifo) if t in parts[1].split(",")]
            if idx:
                n = min(63, len(fifo) - 1 - max(idx)); fifo = cut(fifo, n); w.append(f"vmcnt({n})")
            for p in parts[2:]:
                if p.startswith("vm="): n = int(p[3:]); fifo = cut(fifo, n); w.append(f"vmcnt({n})")
                if p.startswith("lgkm="): n = int(p[5:]); lf = cut(lf, n); w.append(f"lgkmcnt({n})")
                if p.startswith("lds="):
                    idx = [i for i, t in enumerate(lf) if t in p[4:].split(",")]
                    if idx:
                        n = min(15, len(lf) - 1 - max(idx)); lf = cut(lf, n); w.append(f"lgkmcnt({n})")
            if w: out.append("s_waitcnt " + " ".join(w))
            continue
        m = re.search(r"#(\S+)", x)
        if x.startswith(("buffer_", "global_")): fifo.append(m.group(1) if m else "?")
        if x.startswith("ds_"): lf.append(m.group(1) if m else "?")
        m = re.match(r"s_waitcnt.*vmcnt\((\d+)\)", x)
        if m: fifo = cut(fifo, int(m.group(1)))
        m = re.match(r"s_waitcnt.*lgkmcnt\((\d+)\)", x)
        if m: lf = cut(lf, int(m.group(1)))
        out.append(x)
    return out, fifo, lf

CONT = CFG.get("cont", False)
NOSWAP = CFG.get("noswap", True)
DIST = int(CFG.get("dist", 3))
def dma_k(p, soff):
    if CONT: return f"buffer_load_dwordx4 {vr(vDK)}, {sr(sK,4)}, {sr(sDT)} offen nt lds"
    return f"buffer_load_dwordx4 {vr(vDK+p)}, {sr(sK,4)}, {soff} offen offset:{1024*p} nt lds"
def dma_v(p, soff):
    if CONT: return f"buffer_load_dwordx4 {vr(vDV)}, {sr(sV,4)}, {sr(sDT)} offen nt lds"
    return f"buffer_load_dwordx4 {vr(vDV + p%2)}, {sr(sV,4)}, {soff} offen offset:{1024*p} nt lds"
def cont_pre(base, p, soff): return [f"s_add_u32 m0, {sr(sW1K)}, {base + p*4096}", f"s_add_u32 {sr(sDT)}, {soff}, {p*4096}"]
def m0_at(addr): return f"s_add_u32 m0, {sr(sW4K)}, {addr}"
def kv_batch(which, tile):
    out = [m0_at((LK + slotK(tile) * 16384 if which == "K" else LV + slotV(tile) * 16384)), f"s_add_u32 {sr(sT)}, {sr(sROT)}, {tile*16384}", f"s_and_b32 {sr(sT)}, {sr(sT)}, 0x3ffff"]
    for p in range(4):
        if CONT: out += cont_pre((LK if which == "K" else LV) + (tile % 4) * 16384, p, sr(sT))
        out.append(dma_k(p, sr(sT)) if which == "K" else dma_v(p, sr(sT)))
    return tag(out, f"{which}{tile}")

NPASS = int(CFG.get("npass", 3))
PEEL0 = 4 * NPASS
def slotK(t): return t % 4
def slotV(t): return t % 4
def rd_k(slot, n):
    kb, s = n // 4, n % 4
    return f"ds_read_b128 {ar(Freg(n),4)}, {vr(vKA+s)} offset:{slot*16384 + kb*4096} ; #k{n}"
def rd_v(slot, n, t):
    dt, ks = n // 2, n % 2
    return f"ds_read_b64_tr_b16 {ar(Freg(n)+2*t,2)}, {vr(vVA+dt)} offset:{slot*16384 + (32*ks+16*t)*256} ; #v{n}"

def qk_one(p, kb, qb, s, first, czero=False):
    d = Sreg(p, kb, qb)
    c = vr(d, 4) if not first else ("0" if czero else vr(vNEG + 4*qb, 4))
    return f"{MF} {vr(d,4)}, {ar(Freg(kb*4+s),4)}, {vr(Qreg(qb,s),4)}, {c}"
def qk_list(p):
    return [qk_one(p, kb, qb, (i if qb % 2 == 0 else 3 - i), i == 0) for kb in range(4) for qb in range(4) for i in range(4)]
def pv_one(p, dt, qb, ks):
    o = Oreg(qb, dt)
    return f"{MF} {ar(o,4)}, {ar(Freg(dt*2+ks),4)}, {vr(Ureg(p,ks,qb),4)}, {ar(o,4)}"
def sum_one(p, qb, ks):
    return f"{MF} {vr(vL+4*qb,4)}, {vr(vONES,4)}, {vr(Ureg(p,ks,qb),4)}, {vr(vL+4*qb,4)}"
def pv_list(p):
    return ([pv_one(p, dt, qb, (i if qb % 2 == 0 else 1 - i)) for dt in range(8) for qb in range(4) for i in range(2)]
            + [sum_one(p, qb, ks) for qb in range(4) for ks in range(2)])

UNITS = [(0, 0), (1, 0), (1, 1), (0, 1), (0, 2), (1, 2), (1, 3), (0, 3)]
def ereg(p, e): ks, qb = UNITS[e // 8]; return Ureg(p, ks, qb) + e % 8
def exp_i(p, e): r = ereg(p, e); return f"v_exp_f32 {vr(r)}, {vr(r)}"
def cvt_i(p, k):
    r = ereg(p, 2 * k); return f"v_cvt_pk_bf16_f32 {vr(r - (2*k) % 8 + k % 4)}, {vr(r)}, {vr(r+1)}"
def max_items(p):
    out = []
    for kb in range(4):
        for qb in range(4):
            r = Sreg(p, kb, qb); m = vr(vMX + qb % 2); done = 16 * kb + 4 * qb + 3
            if kb == 0 and qb < 2:
                out.append((f"v_max3_f32 {m}, {vr(r)}, {vr(r+1)}, {vr(r+2)}", done))
                out.append((f"v_max_f32 {m}, {vr(r+3)}, {m}", done))
            else:
                out.append((f"v_max3_f32 {m}, {vr(r)}, {vr(r+1)}, {m}", done))
                out.append((f"v_max3_f32 {m}, {vr(r+2)}, {vr(r+3)}, {m}", done))
    return out

NG = 136
HOOKA = 69
BARG = 118
LAT = 8
def make_plan():
    plan = {g: [] for g in range(NG)}
    T0 = HOOKA
    dsp = int(CFG.get("dsp", 14))
    dv0 = int(CFG.get("dv0", 72))
    dma_g = [4 + dsp * i for i in range(4)] + [dv0 + dsp * i for i in range(4)]
    dma_t = [g + NG if g < HOOKA else g for g in dma_g]
    NX2 = int(CFG.get('nx2', 40))
    r2 = [t for t in range(T0, NG) if t != BARG and t not in dma_t]
    r1 = [t for t in range(NG, NG + 64) if t not in dma_t]
    xt = [r2[i * len(r2) // NX2] for i in range(NX2)] + [r1[i * len(r1) // (64 - NX2)] for i in range(64 - NX2)]
    assert len(set(xt)) == 64
    for e, t in enumerate(xt): plan[t % NG].append(("exp", e, t >= NG))
    for i, t in enumerate(dma_t): plan[t % NG].append(("dma", i))
    Y = []
    for k in range(32):
        Y.append((xt[2*k+1] + 1, NG + 64 + k // 4 - 2, ("cvt", k)))
    for i, (_, done) in enumerate(max_items(0)):
        Y.append((NG + done + 3, NG + HOOKA - 3, ("max", i)))
    Y.append((NG + 66, NG + HOOKA - 2, ("max", 32))); Y.append((NG + 66, NG + HOOKA - 1, ("max", 33)))
    for n in range(16):
        Y.append((max(BARG + 1, 64 + 8 * (n // 2) + 7), NG + 16 * (n // 4) - LAT, ("k", n)))
    NV1 = int(CFG.get("nv1", 10))
    for n in range(16):
        e, d = 16 * (n // 4) + 15, min(64 + 8 * (n // 2) - LAT, BARG - 10)
        for t in range(2):
            if n < NV1: Y.append((NG + e, NG + min(d, HOOKA - 1), ("v", n, t)))
            else: Y.append((T0, d, ("v", n, t)))
    def kind(y): return y[2][0] + ("1" if y[2][0] == "v" and y[0] >= NG else "")
    ygaps = [t for t in range(T0, T0 + NG) if not plan[t % NG] and t % NG != BARG]
    pend = list(Y)
    for t in ygaps:
        g = t % NG
        picked = []
        for _ in range(2):
            heads = {}
            for y in pend: heads.setdefault(kind(y), y)
            c = [y for y in heads.values() if y[0] <= t]
            if not c: break
            def eff(y):
                same = [z for z in pend if kind(z) == kind(y)]
                return min(z[1] - i / 1.2 for i, z in enumerate(same))
            y = min(c, key=eff)
            assert t <= y[1], ("deadline miss", t, y)
            picked.append(y); pend.remove(y)
        picked.sort(key=lambda y: 0 if y[2][0] in ("k", "v") else 1)
        for y in picked: plan[g].append(y[2] + ((t >= NG,) if y[2][0] == "cvt" else ()))
    assert not pend, pend
    return plan
PLAN = make_plan()

def iteration(i, lab, loads=None, salu=(), fixed=None):
    assert DIST == 3 and not CONT
    p = i % 2
    steady = i < PEEL0
    sc = {g: [] for g in range(NG)}
    for kb in range(4): sc[16 * kb - 1 if kb else NG - 2].append(f"@wait - lds=" + ",".join(f"k{kb*4+s}" for s in range(4)))
    for dt in range(8):
        if 64 + 8 * dt - 1 < BARG - 1: sc[64 + 8 * dt - 1].append(f"@wait - lds=v{2*dt},v{2*dt+1}")
    sc[BARG - 1].append(f"@wait - vm={10 if i == 1 else (9 if i == 2 and CFG.get('repf', False) else 8)} lgkm=0" if steady else f"@wait K{i+2},V{i+1} lgkm=0")
    sc[BARG].append("s_barrier")
    if CFG.get("itst"):
        sc[BARG - 2].append("s_memrealtime s[40:41]")
        sc[BARG] += ["s_mov_b64 exec, s[42:43]", f"v_mov_b32 v{STV}, s40", "s_mov_b64 exec, -1", "s_lshl_b64 s[42:43], s[42:43], 1"]
    sc[HOOKA] += [f"s_cbranch_vccnz {lab}a", f"{lab}a_back:"]
    sc[NG - 1] = [f"s_cbranch_vccnz {lab}b", f"{lab}b_back:"] + sc[NG - 1]
    if CFG.get("evslow"):
        sc[90] += ["s_and_b32 s101, s2, 1"]; sc[91] += ["s_cmp_eq_u32 s101, 0"]; sc[92] += [f"s_cbranch_scc1 {lab}z", f"{lab}z_back:"]
    extra = dict(fixed or {})
    vm = {}
    hask, hasv = i + 3 <= 15, i + 2 <= 15
    for j, g in enumerate(DMA_GAPS):
        if j < 4 and hask: vm[g] = [m0_at(LK + slotK(i + 3) * 16384), dma_k(j, sr(sTK)) + f" ; #K{i+3}"]
        v15 = CFG.get("v15", "a")
        if i == 13 and v15 != "n":
            if j < 4 and v15 == "a": vm[(2, 8, 14, 20)[j] if CFG.get("v15d", True) else g] = [m0_at(LV + slotV(15) * 16384), dma_v(j, sr(sTILE)) + " ; #V15"]
            continue
        if j >= 4 and hasv: vm[g] = [m0_at(LV + slotV(i + 2) * 16384), dma_v(j - 4, sr(sTILE)) + f" ; #V{i+2}"]
    if i == 12 and CFG.get("v15", "a") == "b":
        vm = {}
        for j in range(4):
            vm[(4, 13, 22, 32)[j]] = [m0_at(LK + slotK(15) * 16384), dma_k(j, sr(sTK)) + " ; #K15"]
            vm[(40, 46, 58, 64)[j]] = [m0_at(LV + slotV(14) * 16384), dma_v(j, sr(sTILE)) + " ; #V14"]
            vm[(72, 86, 100, 114)[j]] = [m0_at(LV + slotV(15) * 16384), dma_v(j, sr(sTK)) + " ; #V15"]
    sc[120].append(f"s_mov_b32 {sr(sTILE)}, {sr(sTK)}")
    sc[121].append(f"s_add_u32 {sr(sTK)}, {sr(sTK)}, 0x4000")
    sc[122].append(f"s_and_b32 {sr(sTK)}, {sr(sTK)}, 0x3ffff")
    if steady:
        if i == 1:
            extra[64] = [f"v_and_b32 {vr(vCW)}, 3, v0", f"v_lshlrev_b32 {vr(vCW)}, 6, {vr(vCW)}"]
            extra[65] = [f"buffer_load_dword {vr(vCW)}, {vr(vCW)}, {sr(sDB,4)}, 0 offen sc1"]
            sc[40].append(f"s_cmp_eq_u32 {sr(sCNT)}, {NPASS - 1}")
            sc[41].append(f"s_cselect_b32 {sr(sDB+2)}, 256, 0")
            extra[68] = [f"buffer_atomic_add {vr(vONES)}, {vr(vLIN)}, {sr(sDBW,4)}, 0 offen sc1"]
            sc[75].append(f"s_mov_b32 {sr(sDBW+2)}, 0")
        if i == 2 and CFG.get("repf", False):
            extra[64] = [f"v_and_b32 {vr(vT)}, 31, v0", f"v_lshlrev_b32 {vr(vT)}, 10, {vr(vT)}"]
            extra[65] = [f"v_add_u32 {vr(vT)}, {sr(sPF+2)}, {vr(vT)}", f"v_min_u32 {vr(vT)}, L_end-L_pc, {vr(vT)}"]
            extra[68] = [f"global_load_dword {ar(255)}, {vr(vT)}, {sr(sPF,2)}"]
    else:
        nextk = i + 2 <= 15
        def load(g):
            return sum(2 if it[0] == "exp" else (0 if it[0] == "dma" or (it[0] == "k" and g > BARG and not nextk) else 1) for it in PLAN[g])
        gs = 0
        for x in salu:
            if x.startswith(("s_addc", "s_cselect")):
                sc[gs - 1].append(x); continue
            while sc[gs] or gs in vm or gs + 1 in vm: gs += 1
            sc[gs].append(x); gs += 1
        for groups, lo, hi in loads:
            cand = [g for g in range(max(lo, gs + 3 if salu else 0), hi) if g not in vm and g not in (BARG, BARG - 1, HOOKA, NG - 1)]
            n = len(groups)
            for k, grp in enumerate(groups):
                win = cand[k * len(cand) // n:(k + 1) * len(cand) // n]
                vm[min(win, key=load)] = grp
    cur_m0 = None; prev = -1
    for g in sorted(vm):
        grp = vm[g]; sca = []
        for x in grp[:-1]:
            if x.startswith("s_add_u32 m0"):
                if x == cur_m0: continue
                cur_m0 = x
            sca.append(x)
        free = [q for q in range(prev + 1, g + 1) if not sc[q] and not (steady and q in (40, 41))]
        if sca and sca[-1].startswith("s_add_u32 m0"): free = [q for q in free if q < g]
        if len(free) >= len(sca):
            for x, q in zip(sca, free[len(free) - len(sca):]): sc[q].append(x)
        else:
            sc[g] += sca + ["s_nop 0"]
        prev = g
    mf = qk_list(1 - p) + pv_list(p)
    MX = [t for t, _ in max_items(1 - p)] + [f"v_max_f32 {vr(vMX)}, {vr(vMX)}, {vr(vMX+1)}", f"v_cmp_lt_f32 vcc, {sr(sTHR)}, {vr(vMX)}"]
    out = []
    for g in range(NG):
        out.append(mf[g])
        out += sc[g]
        ex = extra.get(g, [])
        out += [x for x in ex if not x.startswith("v_")]
        if g in vm: out.append(vm[g][-1])
        for it in PLAN[g]:
            k = it[0]
            if k == "exp": out.append(exp_i(p if it[2] else 1 - p, it[1]))
            elif k == "cvt": out.append(cvt_i(p if it[2] else 1 - p, it[1]))
            elif k == "max":
                if not CFG.get("nomax"): out.append(MX[it[1]])
            elif k == "k":
                t = i + (2 if g > BARG else 1)
                if t <= 15: out.append(rd_k(slotK(t), it[1]))
            elif k == "v": out.append(rd_v(slotV(i), it[1], it[2]))
        out += [x for x in ex if x.startswith("v_")]
        if CFG.get("slowdown") and g % int(CFG["slowdown"]) == 5: out.append("s_nop 7")
    return out
EARLY_K = [it[1] for g in range(BARG + 1, NG) for it in PLAN[g] if it[0] == "k"]
E_FIRST = [it for g in range(HOOKA, NG) for it in PLAN[g] if it[0] in ("exp", "cvt")]
E_REST = [it for g in range(0, HOOKA) for it in PLAN[g] if it[0] in ("exp", "cvt")]
DMA_GAPS = [g for g in range(NG) if any(it[0] == "dma" for it in PLAN[g])]
LIGHT = sorted(range(NG), key=lambda g: (sum(2 if it[0] in ("exp",) else (0 if it[0] == "dma" else 1) for it in PLAN[g])))

def spread(items, gaps):
    d = {}
    for i, it in enumerate(items):
        d.setdefault(gaps[i * len(gaps) // len(items)], []).extend(it)
    return d
def place(groups, lo, hi):
    cand = [g for g in LIGHT if lo <= g < hi and g not in (BARG, BARG - 1, HOOKA, NG - 1)]
    gs = sorted(cand[:len(groups)])
    assert len(gs) == len(groups)
    return {g: list(x) for g, x in zip(gs, groups)}
def merge(*maps):
    d = {}
    for m in maps:
        for k, v in m.items(): d.setdefault(k, []).extend(v)
    return d
def flat(G): return [x for g in G for x in g]
def groups_of(lst):
    G = []; cur = []
    for x in lst:
        cur.append(x)
        if x.startswith("buffer_"): G.append(cur); cur = []
    if cur: G[-1] += cur
    return G

WREG = []
WP = {}
for nm, base, n in (("R1", 256 + 192, 16), ("R2", vQ, 16), ("R4", vNEG, 4), ("R3", vS, 16), ("R5", 256 + aF, 12)):
    WP[nm] = list(range(len(WREG), len(WREG) + n)); WREG += [base + 4 * i for i in range(n)]
assert len(WREG) == 64
def wo_loads(name, sp=None):
    sp = sSP if sp is None else sp
    groups = []
    for f in WP[name]:
        g = [f"s_add_u32 {sr(sp)}, {sr(sHP + f // 8)}, {(f % 8) * 1024}"] if f % 4 == 0 else []
        g.append(f"buffer_load_dwordx4 {rr(WREG[f], 4)}, {vr(vLIN)}, {sr(sWFL,4)}, {sr(sp)} offen offset:{(f%4)*1024} sc1 ; #w{f}")
        groups.append(g)
    return groups

def weave(mf, nvmap, va=(), pre=None, need=None):
    out = []; va = list(va)
    for g, m in enumerate(mf):
        if need and g in need:
            last = max([i for i, x in enumerate(va) if x[2] == need[g]], default=-1)
            if last >= 0:
                if va[last][1] > g - 1: out.append("s_nop 7")
                out += [x[0] for x in va[:last + 1]] + ["s_nop 1"]; va = va[last + 1:]
            elif any(x.startswith("v_") and not x.startswith("v_mfma") for x in out[-2:]): out.append("s_nop 1")
        if pre and g in pre: out += pre[g]
        out.append(m)
        nv = nvmap.get(g, [])
        out += nv
        c = sum(slots(x) for x in nv)
        while va and va[0][1] <= g and c + slots(va[0][0]) <= 2:
            c += slots(va[0][0]); out.append(va.pop(0)[0])
    return out, va

def allreduce(op, a, b):
    return [f"v_mov_b32 {vr(b)}, {vr(a)}", "s_nop 1", f"v_permlane32_swap_b32 {vr(a)}, {vr(b)}", "s_nop 1", f"{op} {vr(a)}, {vr(a)}, {vr(b)}",
            f"v_mov_b32 {vr(b)}, {vr(a)}", "s_nop 1", f"v_permlane16_swap_b32 {vr(a)}, {vr(b)}", "s_nop 1", f"{op} {vr(a)}, {vr(a)}, {vr(b)}"]
def qmax(p, qb, d):
    regs = [Sreg(p, kb, qb) + j for kb in range(4) for j in range(4)]
    o = [f"v_max3_f32 {vr(d)}, {vr(regs[0])}, {vr(regs[1])}, {vr(regs[2])}"]
    for i in range(3, 15, 2): o.append(f"v_max3_f32 {vr(d)}, {vr(regs[i])}, {vr(regs[i+1])}, {vr(d)}")
    o.append(f"v_max_f32 {vr(d)}, {vr(regs[15])}, {vr(d)}")
    return o
def rare_a(p, label):
    out = [f"{label}:", "s_nop 7"]
    for qb in range(4):
        d = vT + qb
        out += qmax(p, qb, d) + allreduce("v_max_f32", d, vMX)
        out.append(f"v_max_f32 {vr(d)}, 0, {vr(d)}")
        for j in range(4): out.append(f"v_sub_f32 {vr(vNEG+4*qb+j)}, {vr(vNEG+4*qb+j)}, {vr(d)}")
        for kb in range(4):
            for j in range(4):
                r = Sreg(p, kb, qb) + j
                out.append(f"v_sub_f32 {vr(r)}, {vr(r)}, {vr(d)}")
        out.append(f"v_exp_f32 {vr(d)}, -{vr(d)}")
    out += ["s_nop 3", f"s_setpc_b64 {sr(sRET,2)}"]
    return out
def rare_b(label):
    out = [f"{label}:", "s_nop 15"]
    for qb in range(4):
        f_ = vT + qb
        for j in range(4): out.append(f"v_mul_f32 {vr(vL+4*qb+j)}, {vr(vL+4*qb+j)}, {vr(f_)}")
        for j in range(0, 32, 2):
            a0 = Oreg(qb, 0) + j
            out += [f"v_accvgpr_read_b32 {vr(vMX)}, {ar(a0)}", f"v_accvgpr_read_b32 {vr(vMX+1)}, {ar(a0+1)}",
                    f"v_mul_f32 {vr(vMX)}, {vr(vMX)}, {vr(f_)}", f"v_mul_f32 {vr(vMX+1)}, {vr(vMX+1)}, {vr(f_)}",
                    f"v_accvgpr_write_b32 {ar(a0)}, {vr(vMX)}", f"v_accvgpr_write_b32 {ar(a0+1)}, {vr(vMX+1)}"]
    out += ["s_nop 3", f"s_setpc_b64 {sr(sRET,2)}"]
    return out

def wfrag(st, s, dt): return (128 if st % 2 == 0 else 192) + 4 * (dt * 2 + s)
def xfrag(st, s, qb): return (96 if st % 2 == 0 else 32) + 4 * (qb * 2 + s)
def qacc(qb, dt): return Ureg(dt // 4, (dt // 2) % 2, qb) + 4 * (dt % 2)
def qp_reads(st):
    out = []
    for qb in range(4):
        for s in range(2):
            out.append(f"ds_read_b128 {vr(xfrag(st,s,qb),4)}, {vr(vXA + 2*(st%2) + s)} offset:{qb*2048} ; #x{st}_{qb}")
    for dt in range(8):
        for s in range(2):
            for t in range(2):
                if NOSWAP: out.append(f"ds_read_b64_tr_b16 {ar(wfrag(st,s,dt)+2*t,2)}, {vr(vWA + dt//2)} offset:{(st%3)*16384 + (32*s+4*t)*256 + 8*(dt%2)} ; #w{st}_{dt}")
                else: out.append(f"ds_read_b64_tr_b16 {ar(wfrag(st,s,dt)+2*t,2)}, {vr(vWA + dt)} offset:{(st%3)*16384 + (32*s+4*t)*256} ; #w{st}_{dt}")
    return out
def qp_dma(st):
    G = []
    wf = (" " + CFG["wqld"]) if CFG.get("wqld") else ""
    xf = (" " + CFG["xld"]) if CFG.get("xld") else ""
    if st == 0 and CFG.get("nt0"): wf = xf = " nt"
    for p in range(4):
        g = []
        if p == 0:
            g = [f"s_add_u32 {sr(sRX)}, {sr(sRQ)}, {st}", f"s_and_b32 {sr(sRX)}, {sr(sRX)}, 7", f"s_lshl_b32 {sr(sRW)}, {sr(sRX)}, 19",
                 f"s_lshl_b32 {sr(sRX)}, {sr(sRX)}, 7", m0_at(LWQ[st % 3])]
        g.append(f"s_add_u32 {sr(sDT)}, {sr(sRW)}, {p*(32768-1024)}")
        g.append(f"buffer_load_dwordx4 {vr(vDW + p//2)}, {sr(sWQ,4)}, {sr(sDT)} offen offset:{1024*p}{wf} lds ; #st{st}")
        G.append(g)
    for p in range(8):
        g = [f"s_add_u32 m0, {sr(sW8K)}, {LX[st%2] + (p//4)*4096}"] if p % 4 == 0 else []
        g.append(f"s_add_u32 {sr(sDT)}, {sr(sRX)}, {p*8192 - 1024*(p%4)}")
        g.append(f"buffer_load_dwordx4 {vr(vDX + p%2)}, {sr(sX,4)}, {sr(sDT)} offen offset:{1024*(p%4)}{xf} lds ; #st{st}")
        G.append(g)
    return G
def qp_one(st, dt, qb, s, first):
    d = qacc(qb, dt)
    return f"{MF} {vr(d,4)}, {ar(wfrag(st,s,dt),4)}, {vr(xfrag(st,s,qb),4)}, {'0' if first else vr(d, 4)}"
def qp_mfmas(st):
    return [qp_one(st, dt, qb, (i if qb % 2 == 0 else 1 - i), st == 0 and i == 0) for dt in range(8) for qb in range(4) for i in range(2)]
def qp_q(st, qb):
    return [qp_one(st, dt, qb, (i if dt % 2 == 0 else 1 - i), False) for dt in range(8) for i in range(2)]
def qconv(qb, s):
    d = qacc(qb, 2 * s); q = Qreg(qb, s)
    out = [f"v_mul_f32 {vr(d+j)}, {sr(sSC)}, {vr(d+j)}" for j in range(8)]
    out += [f"v_cvt_pk_bf16_f32 {vr(q+j)}, {vr(d+2*j)}, {vr(d+2*j+1)}" for j in (0, 2, 1, 3)]
    return out, [f"v_permlane32_swap_b32 {vr(q)}, {vr(q+2)}", f"v_permlane32_swap_b32 {vr(q+1)}, {vr(q+3)}"], \
                [f"v_permlane16_swap_b32 {vr(q)}, {vr(q+2)}", f"v_permlane16_swap_b32 {vr(q+1)}, {vr(q+3)}"]
def qconv_stream(qb):
    parts = [qconv(qb, s) for s in range(4)]
    if NOSWAP: return [(x, s) for s in range(4) for x in parts[s][0]]
    out = []
    for s in range(4):
        a = parts[s][0]
        if s == 0: out += [(x, s) for x in a]
        else: out += [(x, s) for x in a[:4]] + [(x, s) for x in parts[s-1][1]] + [(x, s) for x in a[4:8]] + [(x, s) for x in parts[s-1][2]] + [(x, s) for x in a[8:]]
    out += [("s_nop 1", 3)] + [(x, 3) for x in parts[3][1]] + [("s_nop 1", 3)] + [(x, 3) for x in parts[3][2]]
    return out

def setup_a():
    o = []; A = o.append
    A("s_cmp_ge_u32 s2, 256")
    A("s_cbranch_scc1 L_end")
    if CFG.get("fixdur"): A("s_memrealtime s[42:43]")
    A(f"s_load_dwordx16 {sr(sARG,16)}, s[0:1], 0")
    if CFG["codepf"]:
        A(f"s_getpc_b64 {sr(sT,2)}")
        A("L_pc:")
        A(f"s_bfe_u32 {sr(sT+2)}, s2, 0x30003")
        A(f"v_lshrrev_b32 {vr(u0)}, 6, v0"); A(f"v_and_b32 {vr(u1)}, 15, v0"); A(f"v_lshl_add_u32 {vr(u0)}, {vr(u0)}, 4, {vr(u1)}")
        A(f"v_lshlrev_b32 {vr(u0)}, 10, {vr(u0)}"); A(f"s_lshl_b32 {sr(sT+2)}, {sr(sT+2)}, 7"); A(f"v_add_u32 {vr(u0)}, {sr(sT+2)}, {vr(u0)}")
        A(f"v_min_u32 {vr(u0)}, L_end-L_pc, {vr(u0)}")
        A(f"global_load_dword {vr(vDUM[0])}, {vr(u0)}, {sr(sT,2)} ; #pf")
        if CFG.get("repf", False):
            A(f"s_mov_b64 {sr(sPF,2)}, {sr(sT,2)}"); A(f"s_add_u32 {sr(sPF+2)}, {sr(sT+2)}, L_cw_back-L_pc")
    A(f"s_and_b32 {sr(sCB)}, s2, 7")
    A(f"s_lshr_b32 {sr(sT+3)}, s2, 3")
    A(f"s_and_b32 {sr(sMT)}, {sr(sT+3)}, 3"); A(f"s_lshr_b32 {sr(sNT)}, {sr(sT+3)}, 2")
    if CFG.get("pmap", "4x8") == "4x8":
        A(f"s_and_b32 {sr(sB)}, {sr(sCB)}, 1"); A(f"s_lshl_b32 {sr(sB)}, {sr(sB)}, 2"); A(f"s_add_u32 {sr(sB)}, {sr(sB)}, {sr(sMT)}")
        A(f"s_lshr_b32 {sr(sH)}, {sr(sCB)}, 1"); A(f"s_lshl_b32 {sr(sH)}, {sr(sH)}, 3"); A(f"s_add_u32 {sr(sH)}, {sr(sH)}, {sr(sNT)}")
    else:
        A(f"s_mov_b32 {sr(sB)}, {sr(sCB)}"); A(f"s_mov_b32 {sr(sH)}, {sr(sT+3)}")
    rq = CFG.get("rq", "x")
    if rq == "n": A(f"s_mov_b32 {sr(sRQ)}, 0")
    elif rq == "x": A(f"s_mov_b32 {sr(sRQ)}, {sr(sCB)}")
    elif rq == "h": A(f"s_mov_b32 {sr(sRQ)}, {sr(sH)}")
    elif rq == "f": A(f"s_lshl_b32 {sr(sRQ)}, {sr(sB)}, 1"); A(f"s_add_u32 {sr(sRQ)}, {sr(sRQ)}, {sr(sH)}")
    elif rq == "g": A(f"s_add_u32 {sr(sRQ)}, {sr(sB)}, {sr(sH)}")
    A(f"v_lshrrev_b32 {vr(u0)}, 6, v0")
    A(f"v_and_b32 {vr(ln)}, 63, v0")
    A(f"v_readfirstlane_b32 {sr(sWAVE)}, {vr(u0)}")
    A(f"v_lshrrev_b32 {vr(u1)}, 4, {vr(ln)}")
    A(f"v_and_b32 {vr(u2)}, 15, {vr(ln)}")
    A(f"v_lshl_add_u32 {vr(u4)}, {vr(u0)}, 4, {vr(u1)}")
    A(f"v_lshlrev_b32 {vr(u3)}, 1, {vr(u1)}")
    A(f"v_xor_b32 {vr(u3)}, {vr(u3)}, {vr(u2)}")
    A(f"v_lshlrev_b32 {vr(u5)}, 4, {vr(u3)}")
    A(f"v_lshl_add_u32 {vr(vDW)}, {vr(u4)}, 13, {vr(u5)}")
    A(f"v_xor_b32 {vr(vDW+1)}, 0x80, {vr(vDW)}")
    if NOSWAP:
        A(f"v_lshlrev_b32 {vr(u3)}, 2, {vr(u1)}"); A(f"v_xor_b32 {vr(u3)}, {vr(u3)}, {vr(u2)}"); A(f"v_lshlrev_b32 {vr(u3)}, 4, {vr(u3)}")
        A(f"v_lshl_add_u32 {vr(vDW)}, {vr(u4)}, 13, {vr(u3)}"); A(f"v_mov_b32 {vr(vDW+1)}, {vr(vDW)}")
    A(f"v_lshrrev_b32 {vr(u3)}, 3, {vr(ln)}")
    A(f"v_lshl_add_u32 {vr(u0)}, {vr(u0)}, 6, {vr(u3)}")
    A(f"v_and_b32 {vr(u3)}, 7, {vr(ln)}")
    A(f"v_xor_b32 {vr(u3)}, {vr(u1)}, {vr(u3)}")
    A(f"v_lshlrev_b32 {vr(u3)}, 4, {vr(u3)}")
    A(f"v_lshl_add_u32 {vr(vDX)}, {vr(u0)}, 10, {vr(u3)}")
    A(f"v_xor_b32 {vr(vDX+1)}, 64, {vr(vDX)}")
    A(f"s_lshl_b32 {sr(sW4K)}, {sr(sWAVE)}, 12")
    A(f"s_lshl_b32 {sr(sW8K)}, {sr(sWAVE)}, 13")
    A(f"s_lshl_b32 {sr(sT)}, {sr(sB)}, 18")
    A(f"s_lshl_b32 {sr(sT+1)}, {sr(sH)}, 8")
    A("s_waitcnt lgkmcnt(0)")
    o += stamp()
    o += srd_at(sWQ, 6, sr(sT+1), 511*8192 + 256)
    o += srd_at(sX, 0, sr(sT), 0x40000)
    return o

def wo_piece_addr():
    return [f"v_lshrrev_b32 {vr(u0)}, 5, v0", f"v_and_b32 {vr(u1)}, 0x1e, {vr(u0)}", f"v_and_b32 {vr(u0)}, 1, {vr(u0)}",
            f"v_lshl_add_u32 {vr(u0)}, {vr(u1)}, 2, {vr(u0)}",
            f"v_and_b32 {vr(u1)}, 31, v0", f"v_lshlrev_b32 {vr(u1)}, 4, {vr(u1)}", f"v_lshl_add_u32 {vr(vWOF)}, {vr(u0)}, 10, {vr(u1)}"]
def wo_piece_dma():
    o = [m0_at(LWO)]
    for p in range(4):
        o.append(f"s_mov_b32 {sr(sDT)}, {1024*p}")
        o.append(f"buffer_load_dwordx4 {vr(vWOF)}, {sr(sWO2,4)}, {sr(sDT)} offen offset:{1024*p} nt lds ; #wo")
    return o

def warm_loads(nst):
    o = []; A = o.append
    A(f"v_lshrrev_b32 {vr(u3)}, 6, v0"); A(f"v_and_b32 {vr(u2)}, 15, v0"); A(f"v_lshl_add_u32 {vr(u3)}, {vr(u3)}, 4, {vr(u2)}")
    A(f"v_and_b32 {vr(u1)}, {nst - 1}, {vr(u3)}"); A(f"v_add_u32 {vr(u1)}, {sr(sRQ)}, {vr(u1)}"); A(f"v_add_u32 {vr(u1)}, 1, {vr(u1)}")
    A(f"v_and_b32 {vr(u1)}, 7, {vr(u1)}")
    A(f"v_lshrrev_b32 {vr(u2)}, 1, {vr(u3)}")
    A(f"v_lshlrev_b32 {vr(u0)}, 7, {vr(u1)}"); A(f"v_lshl_add_u32 {vr(u0)}, {vr(u2)}, 10, {vr(u0)}")
    A(f"s_and_b32 {sr(sT)}, {sr(sH)}, 7"); A(f"s_lshl_b32 {sr(sT)}, {sr(sT)}, 15")
    A(f"buffer_load_dword {vr(vDUM[1])}, {vr(u0)}, {sr(sX,4)}, {sr(sT)} offen ; #warm")
    A(f"v_lshlrev_b32 {vr(u0)}, 19, {vr(u1)}")
    A(f"v_lshrrev_b32 {vr(u3)}, 1, {vr(u2)}"); A(f"v_lshl_add_u32 {vr(u0)}, {vr(u3)}, 13, {vr(u0)}")
    A(f"v_and_b32 {vr(u3)}, 1, {vr(u2)}"); A(f"v_lshl_add_u32 {vr(u0)}, {vr(u3)}, 7, {vr(u0)}")
    A(f"s_and_b32 {sr(sT)}, {sr(sB)}, 3"); A(f"s_lshl_b32 {sr(sT)}, {sr(sT)}, 17")
    A(f"buffer_load_dword {vr(vDUM[2])}, {vr(u0)}, {sr(sWQ,4)}, {sr(sT)} offen ; #warm")
    return o

def setup_b():
    o = []; A = o.append
    A(f"s_lshl_b32 {sr(sT+2)}, {sr(sB)}, 5"); A(f"s_add_u32 {sr(sT+2)}, {sr(sT+2)}, {sr(sH)}")
    A(f"s_lshl_b32 {sr(sT)}, {sr(sT+2)}, 18")
    o += srd_at(sK, 2, sr(sT), 0x40000)
    o += srd_at(sV, 4, sr(sT), 0x40000)
    A(f"s_lshl_b32 {sr(sT+1)}, {sr(sT+2)}, 7"); A(f"s_add_u32 {sr(sT+1)}, {sr(sT+1)}, {FLAG_OFF}")
    o += srd_at(sFL, 14, sr(sT+1), 32)

    o += srd_at(sDB, 12, "0", 256)
    A(f"s_and_b32 {sr(sT+1)}, {sr(sT+2)}, 3"); A(f"s_lshl_b32 {sr(sT+1)}, {sr(sT+1)}, 6")
    o += srd_at(sDBW, 12, sr(sT+1), 4)
    A(f"s_lshr_b32 {sr(sT)}, {sr(sT+2)}, 1"); A(f"s_and_b32 {sr(sT+2)}, {sr(sT+2)}, 1")
    A(f"s_lshl_b32 {sr(sT+1)}, {sr(sT)}, 15"); A(f"s_lshl_b32 {sr(sT+3)}, {sr(sT+2)}, 9"); A(f"s_add_u32 {sr(sT+1)}, {sr(sT+1)}, {sr(sT+3)}")
    o += srd_at(sWO2, 8, sr(sT+1), 31*1024 + 512)
    A(f"s_lshl_b32 {sr(sT+2)}, {sr(sT+2)}, 2"); A(f"s_add_u32 {sr(sT+2)}, {sr(sT+2)}, {sr(sWAVE)}"); A(f"s_lshl_b32 {sr(sT+2)}, {sr(sT+2)}, 19")
    A(f"s_lshl_b32 {sr(sT)}, {sr(sT)}, 11"); A(f"s_add_u32 {sr(sT)}, {sr(sT)}, {sr(sT+2)}"); A(f"s_add_u32 {sr(sT)}, {sr(sT)}, {WOF_OFF}")
    o += srd_at(sWS2, 14, sr(sT), 262144 + 2048)
    A(f"s_lshl_b32 {sr(sT)}, {sr(sB)}, 2"); A(f"s_add_u32 {sr(sT)}, {sr(sT)}, {sr(sWAVE)}"); A(f"s_lshl_b32 {sr(sT)}, {sr(sT)}, 19")
    A(f"s_lshl_b32 {sr(sT+1)}, {sr(sH)}, 13"); A(f"s_add_u32 {sr(sT)}, {sr(sT)}, {sr(sT+1)}")
    o += srd_at(sO, 14, sr(sT), 262144 + 8192)
    if CFG.get("fewst"):
        A(f"s_cmp_eq_u32 {sr(sMT)}, 0"); A(f"s_cselect_b32 {sr(sO+2)}, {sr(sO+2)}, 0")
    rot = CFG.get("rot", "j")
    if rot == "j": A(f"s_lshr_b32 {sr(sROT)}, s2, 3"); A(f"s_add_u32 {sr(sROT)}, {sr(sROT)}, s2"); A(f"s_and_b32 {sr(sROT)}, {sr(sROT)}, 15"); A(f"s_lshl_b32 {sr(sROT)}, {sr(sROT)}, 14")
    else: A(f"s_mov_b32 {sr(sROT)}, 0")
    if CFG.get("itst"): A("s_mov_b32 s42, 0"); A("s_mov_b32 s43, 0x100")
    A(f"s_mov_b32 {sr(sTHR)}, 0x41000000")
    c = math.log2(math.e) / math.sqrt(128.0)
    A(f"s_mov_b32 {sr(sSC)}, 0x{struct.unpack('<I', struct.pack('<f', c))[0]:08x}")
    A(f"v_lshl_add_u32 {vr(vDV)}, {vr(u4)}, 8, {vr(u5)}")
    A(f"v_xor_b32 {vr(vDV+1)}, 0x80, {vr(vDV)}")
    g_, c16 = u1, u2
    A(f"v_lshrrev_b32 {vr(g_)}, 4, {vr(ln)}")
    A(f"v_and_b32 {vr(c16)}, 15, {vr(ln)}")
    A(f"v_xor_b32 {vr(u3)}, {vr(g_)}, {vr(c16)}")
    A(f"v_lshlrev_b32 {vr(u3)}, 4, {vr(u3)}")
    A(f"v_lshl_add_u32 {vr(vDK)}, {vr(u4)}, 8, {vr(u3)}")
    for p in range(1, 4): A(f"v_xor_b32 {vr(vDK+p)}, {64*p}, {vr(vDK)}")
    if CONT:
        A(f"s_lshl_b32 {sr(sW1K)}, {sr(sWAVE)}, 10")
        A(f"v_lshrrev_b32 {vr(vDK+1)}, 4, v0")
        A(f"v_xor_b32 {vr(vDK+2)}, {vr(vDK+1)}, {vr(c16)}"); A(f"v_lshlrev_b32 {vr(vDK+2)}, 4, {vr(vDK+2)}")
        A(f"v_lshl_add_u32 {vr(vDK)}, {vr(vDK+1)}, 8, {vr(vDK+2)}")
        A(f"v_and_b32 {vr(vDK+2)}, 7, {vr(vDK+1)}"); A(f"v_lshlrev_b32 {vr(vDK+2)}, 1, {vr(vDK+2)}")
        A(f"v_xor_b32 {vr(vDK+2)}, {vr(vDK+2)}, {vr(c16)}"); A(f"v_lshlrev_b32 {vr(vDK+2)}, 4, {vr(vDK+2)}")
        A(f"v_lshl_add_u32 {vr(vDV)}, {vr(vDK+1)}, 8, {vr(vDK+2)}")
    A(f"v_lshl_add_u32 {vr(vKA)}, {vr(c16)}, 8, {vr(u3)}")
    for s in range(1, 4): A(f"v_xor_b32 {vr(vKA+s)}, {64*s}, {vr(vKA)}")
    A(f"v_lshrrev_b32 {vr(u3)}, 1, {vr(c16)}")
    A(f"v_xor_b32 {vr(u3)}, {vr(g_)}, {vr(u3)}")
    A(f"v_lshlrev_b32 {vr(u3)}, 4, {vr(u3)}")
    A(f"v_lshl_add_u32 {vr(u3)}, {vr(c16)}, 7, {vr(u3)}")
    A(f"v_add_u32 {vr(u3)}, {sr(sW8K)}, {vr(u3)}")
    for sl in range(2):
        A(f"v_add_u32 {vr(vXA+2*sl)}, {LX[sl]}, {vr(u3)}")
        A(f"v_xor_b32 {vr(vXA+2*sl+1)}, 64, {vr(vXA+2*sl)}")
    A(f"v_cmp_eq_u32 vcc, 0, {vr(c16)}")
    A(f"v_mov_b32 {vr(u3)}, 0x3f803f80")
    r_, f_, c8 = u0, u4, u5
    A(f"v_bfe_u32 {vr(r_)}, {vr(ln)}, 2, 2")
    for j in range(4): A(f"v_cndmask_b32 {vr(vONES+j)}, 0, {vr(u3)}, vcc")
    A(f"v_bfe_u32 {vr(f_)}, {vr(ln)}, 2, 3")
    A(f"v_and_b32 {vr(c8)}, 3, {vr(ln)}")
    A(f"v_lshlrev_b32 {vr(c8)}, 3, {vr(c8)}")
    A(f"v_lshrrev_b32 {vr(u3)}, 2, {vr(ln)}")
    A(f"v_lshlrev_b32 {vr(vWOA)}, 9, {vr(u3)}")
    A(f"v_lshl_add_u32 {vr(vWOA)}, {vr(c8)}, 1, {vr(vWOA)}")
    A(f"s_lshl_b32 {sr(sT)}, {sr(sWAVE)}, 7"); A(f"s_add_u32 {sr(sT)}, {sr(sT)}, {LWO}")
    A(f"v_add_u32 {vr(vWOA)}, {sr(sT)}, {vr(vWOA)}")
    A(f"v_lshl_add_u32 {vr(c8)}, {vr(f_)}, 5, {vr(c8)}")
    A(f"v_lshl_add_u32 {vr(u3)}, {vr(u3)}, 8, {vr(c8)}")
    A(f"v_add_u32 {vr(vVA)}, {LV}, {vr(u3)}")
    for dt in range(1, 8): A(f"v_xor_b32 {vr(vVA+dt)}, {32*dt}, {vr(vVA)}")
    A(f"v_lshl_add_u32 {vr(u3)}, {vr(g_)}, 3, {vr(r_)}")
    A(f"v_lshl_add_u32 {vr(u3)}, {vr(u3)}, 8, {vr(c8)}")
    if NOSWAP:
        A(f"v_and_b32 {vr(u3)}, 0xff00, {vr(u3)}"); A(f"v_lshl_add_u32 {vr(u3)}, {vr(r_)}, 6, {vr(u3)}")
        A(f"v_and_b32 {vr(c8)}, 3, {vr(ln)}"); A(f"v_lshl_add_u32 {vr(u3)}, {vr(c8)}, 4, {vr(u3)}")
        A(f"v_add_u32 {vr(vWA)}, {LWQ[0]}, {vr(u3)}")
        for k in range(1, 4): A(f"v_xor_b32 {vr(vWA+k)}, {64*k}, {vr(vWA)}")
    else:
        A(f"v_add_u32 {vr(vWA)}, {LWQ[0]}, {vr(u3)}")
        for dt in range(1, 8): A(f"v_xor_b32 {vr(vWA+dt)}, {32*dt}, {vr(vWA)}")
    A(f"v_lshlrev_b32 {vr(vWOS)}, 4, {vr(ln)}")
    A(f"v_add_u32 {vr(vLIN)}, {sr(sW4K)}, {vr(vWOS)}")
    o += wo_piece_addr()
    o += phase_c_early()
    return o

def wo_reads():
    return [f"ds_read_b64_tr_b16 {ar(192+4*i+2*tt,2)}, {vr(vWOA)} offset:{(i//2)*64 + (i%2)*8 + tt*8192} ; #wo" for i in range(4) for tt in range(2)]
def wo_stores():
    return [[f"s_mov_b32 {sr(sT)}, {(i//2)*262144}", f"buffer_store_dwordx4 {ar(192+4*i,4)}, {vr(vWOS)}, {sr(sWS2,4)}, {sr(sT)} offen offset:{(i%2)*1024} sc1 ; #wst"] for i in range(4)]

def pairs(lst): return [lst[i:i+2] for i in range(0, len(lst), 2)]
def prologue():
    qs = stamp if CFG["qst"] else (lambda: [])
    o = setup_a()
    nw = int(CFG.get("nwarm", 2))
    if CFG.get("warmfirst"): o += warm_loads(nw)
    o += flat(qp_dma(0))
    if not CFG.get("warmfirst"): o += (warm_loads(nw) if nw else [])
    o += qs()
    o += setup_b()
    pt = CFG.get("pt", "")
    def pretouch(j, kind):
        if kind == "st": return [f"s_mov_b32 {sr(sDT)}, {j * 262144}", f"buffer_store_dword {vr(vWOF+1)}, {vr(vWOF+1)}, {sr(sO,4)}, {sr(sDT)} offen sc1 ; #pt"]
        if kind == "at": return [f"s_mov_b32 {sr(sDT)}, {j * 262144}", f"buffer_atomic_or {vr(vWOF+1)}, {vr(vWOF+1)}, {sr(sO,4)}, {sr(sDT)} offen sc1 ; #pt"]
        return [f"s_mov_b32 {sr(sDT)}, {j * 262144}", f"buffer_load_dword {vr(vWOF+2+j)}, {vr(vWOF+1)}, {sr(sO,4)}, {sr(sDT)} offen sc1 ; #pt"]
    if pt: o += [f"v_lshlrev_b32 {vr(vWOF+1)}, 3, {vr(vWOS)}"]
    if pt and pt[2:] == "0": o += pretouch(0, pt[:2]) + pretouch(1, pt[:2])
    prek = [x for x in CFG.get("prek", "").split(",") if x]
    for n in prek: o += (wo_piece_dma() if n == "wo" else kv_batch(n[0], int(n[1:])))
    if CFG.get("kvtlb"):
        o += [f"buffer_load_dword {ar(0)}, off, {sr(sK,4)}, 0 nt ; #tl", f"buffer_load_dword {ar(1)}, off, {sr(sV,4)}, 0 nt ; #tl"]
    o += qs()
    o += ["@wait st0", "s_barrier"] + stamp()
    kv = lambda *l: groups_of(sum([kv_batch(x[0], int(x[1:])) for x in l], []))
    bg = [int(x) for x in CFG.get("bg", "38,38,38,38,30,10,-14").split(",")]
    step = float(CFG.get("qstep", 4))
    B = [64 * s + bg[s] for s in range(7)]
    seq = [(st, dt, qb) for st in range(6) for dt in range(8) for qb in range(4) for i in range(2)]
    mf = sum([qp_mfmas(st) for st in range(6)], [])
    for st, qb in ((6, 0), (6, 1), (7, 0), (7, 1), (6, 2), (6, 3), (7, 2), (7, 3)):
        mf += qp_q(st, qb); seq += [(st, dt, qb) for dt in range(8) for i in range(2)]
    Q0 = len(mf)
    mf += [qk_one(0, kb, qb, (i if kb % 2 == 0 else 3 - i), i == 0, czero=True) for qb in range(4) for kb in range(4) for i in range(4)]
    first = {}; last = {}
    for g, (st, dt, qb) in enumerate(seq):
        for t in (f"x{st}_{qb}", f"w{st}_{dt}"):
            first.setdefault(t, g); last[t] = g
    xt = lambda k: ",".join(f"x{k}_{q}" for q in range(4))
    wt = lambda k: ",".join(f"w{k}_{d}" for d in range(8))
    nvm = {}; pre = {}; vm = {}
    def put_vm(g, grp):
        while g in vm or g in B: g += 1
        vm[g] = grp; return g
    npre = int(CFG.get("npre", 16)); nd1 = int(CFG.get("nd1", 6))
    r0 = qp_reads(0); d1 = qp_dma(1)
    o += r0[:npre] + flat(d1[:nd1])
    pos = -2
    for grp in d1[nd1:]: pos += 3; put_vm(int(pos), grp)
    XW = int(CFG.get("xw", 18))
    ekp = [x for x in CFG.get("ekp", "").split(",") if x]
    ek = dict(x.split(":") for x in CFG.get("ek", "5:K0").split(",") if x)
    for k in range(2, 8):
        for i, grp in enumerate(qp_dma(k)):
            e = 0 if k == 2 else (B[k-3] + 1 if i < 4 else B[k-3] + XW)
            if k == 7 and i >= 4: e = max(e, 0)
            pos = max(pos + step, e)
            if i == 4: grp = [f"@wait - lds={xt(k-2)}"] + grp
            put_vm(int(pos), grp)
        for n in ekp:
            j = k - int(CFG.get("ekp0", 3))
            if 0 <= j < 4:
                G_ = groups_of(wo_piece_dma()) if n == "wo" else kv(n)
                head = G_[0][:-1] if n != "wo" else G_[0][:1]
                grp = head + (G_[j] if (j or n == "wo") else G_[0][-1:]) if not (n == "wo" and j == 0) else G_[0]
                pos += 4; put_vm(int(pos), grp)
        if pt and pt[2:] != "0" and k - int(pt[2:]) in (0, 2):
            pos += 3; put_vm(int(pos), pretouch((k - int(pt[2:])) // 2, pt[:2]))
        if str(k) in ek:
            for grp in (groups_of(wo_piece_dma()) if ek[str(k)] == "wo" else kv(ek[str(k)])):
                pos += 3; put_vm(int(pos), grp)
    kstep = float(CFG.get("kstep", 9))
    LATEWO = CFG.get("latewo", False)
    BK, BQ = 384 + int(CFG.get("bk", 94)), Q0 + int(CFG.get("bq", 56))
    sched = [("K0", 0), ("wo", 0), ("K1", 0), ("V0", B[5] + 1), ("K2", BK + 1), ("V1", BK + 1)]
    if LATEWO: sched = [("K0", 0), ("K1", 0), ("V0", B[5] + 1), ("wo", 0), ("K2", BK + 1), ("V1", BK + 1)]
    for n, e in sched:
        if n in ek.values() or n in prek or n in ekp: continue
        for grp in (groups_of(wo_piece_dma()) if n == "wo" else kv(n)):
            pos = max(pos + (3 if n == "K0" and LATEWO else (float(CFG.get("kstep2", kstep)) if n in ("K2", "V1") else kstep)), e)
            put_vm(int(pos), grp)
    assert pos < Q0 + 64, pos
    if CFG["verbose"]: print("vm gaps:", sorted(vm))
    items = [(0, x) for x in r0[npre:]]
    for st in range(1, 8): items += [(st, x) for x in qp_reads(st)]
    R = []
    for st, x in items:
        t = x.split("#")[1]
        e = 0 if st == 0 else B[st-1] + 1
        if st >= 2: e = max(e, last[t[0] + str(st - 2) + t[2:]])
        d = first[t] - LAT
        if st < 7: d = min(d, B[st] - 8)
        if t[0] == "x" and 1 <= st <= 5: d = min(d, B[st-1] + XW - 7)
        R.append([e, max(d, e), x])
    R.sort(key=lambda r: (r[1], r[0]))
    rstep = float(CFG.get("rstep", 1.3)); nxt = 0
    for g in range(Q0):
        if g in vm or g in B: continue
        k = 0
        while k < 2:
            c = [r for r in R if r[0] <= g]
            if not c: break
            urgent = any(r[1] - g < i * 1.3 + 1 for i, r in enumerate(c))
            if not urgent and (k == 1 or g < nxt): break
            nvm.setdefault(g, []).append(c[0][2]); R.remove(c[0]); k += 1; nxt = g + rstep
    assert not R, R[:3]
    for t, g in first.items():
        (nvm.setdefault(g - 1, []) if g else o).insert(0 if g else len(o), f"@wait - lds={t}")
    for s in range(7):
        pre.setdefault(B[s], []).append(f"@wait st{s+1} lds={xt(s)},{wt(s)}")
        nvm.setdefault(B[s], []).append("s_barrier")
        if CFG["qst"]: pre[64 * s] = qs() + pre.get(64 * s, [])
    w0 = BQ if LATEWO else Q0
    nvm = merge(nvm, spread(pairs(wo_reads()), [g for g in range(w0 + 1, min(w0 + 12, Q0 + 64)) if g not in vm]))
    pre.setdefault(BK, []).append("@wait K0" if LATEWO else "@wait K0,wo"); nvm.setdefault(BK, []).append("s_barrier")
    nvm = merge(nvm, spread(pairs([rd_k(0, n) for n in range(16)]), [g for g in range(max(384 + 96, BK + 1), 384 + 122) if g not in vm]))
    pre.setdefault(Q0, []).append("@wait - lgkm=0"); pre[Q0] = stamp() + pre[Q0]
    pre.setdefault(BQ, []).append("@wait K1,V0,wo" if LATEWO else "@wait K1,V0 lds=wo"); nvm.setdefault(BQ, []).append("s_barrier")
    nvm = merge(nvm, {Q0 + 57: [f"s_add_u32 {sr(sTILE)}, {sr(sROT)}, {(DIST-1)*16384}"], Q0 + 58: [f"s_and_b32 {sr(sTILE)}, {sr(sTILE)}, 0x3ffff"],
                      Q0 + 59: [f"s_add_u32 {sr(sTK)}, {sr(sROT)}, {DIST*16384}"], Q0 + 60: [f"s_and_b32 {sr(sTK)}, {sr(sTK)}, 0x3ffff"],
                      Q0 + 61: [f"s_mov_b32 {sr(sCNT)}, 0"]})
    for g in sorted(vm):
        grp = vm[g]; sca = grp[:-1]
        prevv = max([x for x in vm if x < g], default=-1)
        gg = g
        for x in reversed(sca):
            nvm.setdefault(gg, []).insert(0, x)
            if gg - 1 > prevv and gg > 0: gg -= 1
        nvm.setdefault(g, []).append(grp[-1])
    va = [(f"v_accvgpr_write_b32 {ar(r)}, 0", 0, "z") for r in list(range(2, 128)) + [0, 1]]
    done = {0: 384 + 32, 1: 384 + 48, 2: 384 + 96, 3: 384 + 112}
    for qb in range(4):
        va += [(t, done[qb] + 4 * s + 3 + 3, f"q{qb}") for t, s in qconv_stream(qb)]
    va += [(f"v_mov_b32 {vr(vL+j)}, 0", Q0, "z") for j in range(16)]
    def initq(qb):
        n = vNEG + 4 * qb
        l = qmax(0, qb, n)
        for sw in ("v_permlane32_swap_b32", "v_permlane16_swap_b32"):
            l += [f"v_mov_b32 {vr(n+1)}, {vr(n)}", "s_nop 1", f"{sw} {vr(n)}, {vr(n+1)}", f"v_max_f32 {vr(n)}, {vr(n)}, {vr(n+1)}"]
        l += [f"v_sub_f32 {vr(n+j)}, 0, {vr(n)}" for j in (3, 2, 1, 0)]
        for ks in range(2):
            r = Ureg(0, ks, qb)
            l += [f"v_add_f32 {vr(r+j)}, {vr(r+j)}, {vr(n + j % 2)}" for j in range(8)]
        return l
    for qb in range(4): va += [(t, Q0 + 16 * qb + 15 + 3, "i") for t in initq(qb)]
    part, left = weave(mf, nvm, va, pre=pre, need={Q0 + 16 * q: f"q{q}" for q in range(4)})
    for k in range(1, 6):
        assert max(i for i, x in enumerate(part) if f"#x{k}_" in x) < part.index(f"@wait - lds={xt(k)}"), k
    for k in range(0, 6):
        assert max(i for i, x in enumerate(part) if f"#w{k}_" in x) < part.index(f"@wait st{k+1} lds={xt(k)},{wt(k)}"), k
    o += part
    o += qs()
    o += [rd_k(1, n) for n in EARLY_K]
    o += [f"v_mov_b32 {vr(vT+j)}, 0" for j in range(4)]
    o.append(f"buffer_store_dwordx4 {vr(vT,4)}, {vr(vLIN)}, {sr(sFL,4)}, 0 offen sc1 ; #wst")
    if CFG["verbose"]: print("QK0 leftover VALU:", len(left))
    ini = []
    lf_ = [t for t, _, _ in left]
    i = 0
    while i < len(lf_):
        m1 = re.match(r"v_add_f32 v(\d+), v\d+, v(\d+)", lf_[i])
        if m1 and int(m1.group(1)) % 2 == 0 and i + 1 < len(lf_) and lf_[i+1].startswith(f"v_add_f32 v{int(m1.group(1))+1},"):
            r = int(m1.group(1)); ini.append(f"v_pk_add_f32 {vr(r,2)}, {vr(r,2)}, {vr(int(m1.group(2)),2)}"); i += 2
        else: ini.append(lf_[i]); i += 1
    ex_ = [exp_i(0, it[1]) for it in E_FIRST if it[0] == "exp"]; cv_ = [cvt_i(0, it[1]) for it in E_FIRST if it[0] == "cvt"]
    ini += ex_ + cv_
    G = wo_stores() + (kv("K3", "V2") if DIST == 4 else [])
    G[0] = ["@wait - lds=wo"] + G[0]
    for i, g in enumerate(G):
        k = (i + 1) * len(ini) // (len(G) + 1)
        ini = ini[:k] + g + ini[k:]
    o += ini
    if CFG.get("nomax"): o.append("s_mov_b64 vcc, 0")
    o.append("@wait - lds=k0,k1,k2,k3")
    o += stamp()
    qd = CFG.get("qdiag", "")
    if "x" in qd: o = [x for x in o if not (re.search(r"#st[2-7]", x) and f"{sr(sX,4)}" in x)]
    if "r" in qd: o = [x for x in o if not re.search(r"#x[2-7]_", x)]
    if "w" in qd: o = [x for x in o if not (re.search(r"#st[2-7]", x) and f"{sr(sWQ,4)}" in x)]
    if "v" in qd: o = [x for x in o if not re.search(r"#w[2-7]_", x)]
    o, fifo, lf = resolve(o, [])
    return o, fifo, lf

sOFS = [64, 65, 3, 31, 98]
def phase_c_early():
    o = []; A = o.append
    t0, t1, t2 = sT, sT + 1, sT + 2
    A(f"s_lshr_b32 {sr(sHO)}, {sr(sH)}, 3")
    if CFG.get("hord", "m") == "c":
        A(f"s_and_b32 {sr(t0)}, {sr(sB)}, 3"); A(f"s_lshl_b32 {sr(t0)}, {sr(t0)}, 1"); A(f"s_and_b32 {sr(t1)}, {sr(sH)}, 1"); A(f"s_add_u32 {sr(t0)}, {sr(t0)}, {sr(t1)}")
        A(f"s_sub_u32 {sr(t1)}, {sr(sH)}, {sr(t0)}"); A(f"s_and_b32 {sr(t1)}, {sr(t1)}, 7"); A(f"s_lshl_b32 {sr(t0)}, {sr(t0)}, 13")
        A(f"s_and_b32 {sr(sHP)}, {sr(sH)}, 7"); A(f"s_lshl_b32 {sr(sHP)}, {sr(sHP)}, 13")
        for p in range(1, 8):
            A(f"s_cmp_gt_u32 {sr(t1)}, {p-1}"); A(f"s_cselect_b32 {sr(sHP+p)}, {p-1}, {p}")
            A(f"s_lshl_b32 {sr(sHP+p)}, {sr(sHP+p)}, 13"); A(f"s_add_u32 {sr(sHP+p)}, {sr(sHP+p)}, {sr(t0)}"); A(f"s_and_b32 {sr(sHP+p)}, {sr(sHP+p)}, 0xffff")
    else:
        A(f"s_and_b32 {sr(t0)}, {sr(sB)}, 3"); A(f"s_lshl_b32 {sr(t0)}, {sr(t0)}, 14"); A(f"s_add_u32 {sr(t0)}, {sr(t0)}, 8192")
        A(f"s_and_b32 {sr(sHP)}, {sr(sH)}, 7"); A(f"s_lshl_b32 {sr(sHP)}, {sr(sHP)}, 13")
        for p in range(1, 8):
            A(f"s_add_u32 {sr(sHP+p)}, {sr(sHP+p-1)}, {sr(t0)}"); A(f"s_and_b32 {sr(sHP+p)}, {sr(sHP+p)}, 0xffff")
    A(f"s_lshl_b32 {sr(sW2K)}, {sr(sWAVE)}, 11")
    A(f"s_and_b32 {sr(t0)}, {sr(sH)}, 6"); A(f"s_lshl_b32 {sr(t0)}, {sr(t0)}, 1"); A(f"s_add_u32 {sr(t0)}, {sr(t0)}, {sr(sWAVE)}")
    A(f"s_lshl_b32 {sr(t0)}, {sr(t0)}, 18"); A(f"s_lshl_b32 {sr(t2)}, {sr(sHO)}, 16"); A(f"s_add_u32 {sr(t0)}, {sr(t0)}, {sr(t2)}")
    A(f"s_add_u32 {sr(t0)}, {sr(t0)}, {WOF_OFF}"); A(f"s_sub_u32 {sr(t0)}, {sr(t0)}, {sr(sW4K)}")
    A(f"s_mov_b32 {sr(sOFS[0])}, {sr(t0)}")
    A(f"s_and_b32 {sr(t0)}, {sr(sH)}, 1"); A(f"s_lshl_b32 {sr(t1)}, {sr(sB)}, 1"); A(f"s_add_u32 {sr(t0)}, {sr(t0)}, {sr(t1)}")
    A(f"s_lshl_b32 {sr(t1)}, {sr(t0)}, 20"); A(f"s_add_u32 {sr(t1)}, {sr(t1)}, {sr(t2)}")
    A(f"s_mov_b32 {sr(sOFS[1])}, {sr(t1)}")
    A(f"s_lshl_b32 {sr(t0)}, {sr(t0)}, 17"); A(f"s_lshl_b32 {sr(t1)}, {sr(sHO)}, 15"); A(f"s_add_u32 {sr(t0)}, {sr(t0)}, {sr(t1)}")
    A(f"s_and_b32 {sr(t1)}, {sr(sH)}, 6"); A(f"s_lshl_b32 {sr(t1)}, {sr(t1)}, 7"); A(f"s_add_u32 {sr(t0)}, {sr(t0)}, {sr(t1)}")
    o += srd_at(sOUT, 10, sr(t0), 31 * 1024 + 256)
    A(f"s_lshl_b32 {sr(t0)}, {sr(sB)}, 12"); A(f"s_lshl_b32 {sr(t1)}, {sr(sHO)}, 10"); A(f"s_add_u32 {sr(t0)}, {sr(t0)}, {sr(t1)}")
    A(f"s_add_u32 {sr(t0)}, {sr(t0)}, {FLAG_OFF}")
    o += srd_at(sFLR, 14, sr(t0), 4)
    A(f"s_and_b32 {sr(t0)}, {sr(sH)}, 7"); A(f"s_lshl_b32 {sr(t1)}, {sr(sB)}, 5"); A(f"s_add_u32 {sr(t0)}, {sr(t0)}, {sr(t1)}")
    A(f"s_lshl_b32 {sr(t1)}, {sr(t0)}, 16"); A(f"s_lshl_b32 {sr(t2)}, {sr(sHO)}, 14"); A(f"s_add_u32 {sr(t1)}, {sr(t1)}, {sr(t2)}")
    A(f"s_add_u32 {sr(t1)}, {sr(t1)}, {PART_OFF}")
    A(f"s_mov_b32 {sr(sOFS[2])}, {sr(t1)}")
    A(f"s_lshl_b32 {sr(t1)}, {sr(t0)}, 7"); A(f"s_lshl_b32 {sr(t2)}, {sr(sHO)}, 2"); A(f"s_add_u32 {sr(t1)}, {sr(t1)}, {sr(t2)}")
    A(f"s_add_u32 {sr(t1)}, {sr(t1)}, {FLAG_OFF + 16}")
    A(f"s_mov_b32 {sr(sOFS[3])}, {sr(t1)}")
    A(f"s_lshl_b32 {sr(t1)}, {sr(sB)}, 5"); A(f"s_add_u32 {sr(t1)}, {sr(t1)}, {sr(sH)}"); A(f"s_lshl_b32 {sr(t1)}, {sr(t1)}, 16")
    A(f"s_add_u32 {sr(t1)}, {sr(t1)}, {PART_OFF}")
    A(f"s_mov_b32 {sr(sOFS[4])}, {sr(t1)}")
    return o

def phase_c_srds():
    return sum([srd_at(s_, 14, sr(f_), n_) for s_, f_, n_ in zip((sWFL, sOL, sPS, sPF2, sPL), sOFS,
                (65536 + 3 * 4096, 3 * 262144 + 65536, 3 * 524288 + 16384, 4, 65536))], [])

def acc(k, q2, t): return vS + 64 + 16 * k + 4 * (q2 * 2 + t)
def gsel(k, dst, sh): return [f"s_add_u32 {sr(dst)}, {sr(sHO)}, {k + 1}", f"s_and_b32 {sr(dst)}, {sr(dst)}, 3", f"s_lshl_b32 {sr(dst)}, {sr(dst)}, {sh}"]
def ofr(u, kl, q2): return 256 + 32 * (u % 2) + 4 * (kl * 2 + q2)
def sub_mfmas(k, v, pos):
    mf = []
    for j, (q2, t) in enumerate(((0, 0), (0, 1), (1, 1), (1, 0))):
        for i in range(4):
            kl = i if j % 2 == 0 else 3 - i
            d = vr(acc(k, q2, t), 4)
            mf.append(f"{MF} {d}, {rr(WREG[(pos * 4 + kl) * 2 + t],4)}, {rr(ofr(v,kl,q2),4)}, {d if (pos or i) else 0}")
    return mf
def tail_and_epilogue(u):
    p = u % 2
    o = []
    reads = [rd_v(slotV(15), n, t) for n in range(16) for t in range(2)]
    er = [(exp_i(p, it[1]), UNITS[it[1] // 8][1]) if it[0] == "exp" else (cvt_i(p, it[1]), UNITS[it[1] // 4][1]) for it in E_REST]
    va = []
    for i, (t, q) in enumerate(er):
        if t.startswith("v_cvt") and i and er[i-1][0].startswith("v_exp"): va.append(("s_nop 0", 0, f"e{q}"))
        va.append((t, 0, f"e{q}"))
    mf = []
    for qb in range(4):
        mf += [sum_one(p, qb, 0), sum_one(p, qb, 1)]
        mf += [pv_one(p, dt, qb, (i if dt % 2 == 0 else 1 - i)) for dt in range(8) for i in range(2)]
    vOST = vCW
    if CFG.get("local"): va.append((f"v_cmp_ne_u32 {sr(sGLB,2)}, {sr(sXCC)}, {vr(vCW)}", 0, "x"))
    va.append((f"v_and_b32 {vr(vOST)}, 0x3ff, {vr(vLIN)}", 0, "x"))
    tmp = 2
    NMF = len(mf)
    fill = {0: [], 1: [], 2: [], 3: []}
    tail_names = CFG.get("tailw", "").split(",")
    post_names = [x for x in ("R3", "R5") if x not in tail_names]
    for qb in range(4):
        e0 = 18 * qb
        lsum = [f"v_mov_b32 {vr(vT+qb)}, {vr(vL+4*qb)}"] + allreduce("v_add_f32", vT + qb, vMX) + [f"v_rcp_f32 {vr(vT+qb)}, {vr(vT+qb)}"]
        va += [(t, max(12, e0 + 1 + 3), f"o{qb}") for t in lsum]
        F = fill[qb]
        for s in range(4):
            e = e0 + 2 + 4 * s + 3 + 3
            b_ = tmp + 8 * (s % 2)
            va += [(f"v_accvgpr_read_b32 {vr(b_+j)}, {ar(Oreg(qb,2*s)+j)}", e, f"o{qb}") for j in range(8)]
            va += [(f"@mul {b_+j} {vT+qb}", e, f"o{qb}") for j in range(8)]
            d = Ureg(p, s // 2, qb) + 4 * (1 - s % 2)
            ee = e0 + 17 if s % 2 == 1 else e
            va += [(f"v_cvt_pk_bf16_f32 {vr(d+j)}, {vr(b_+2*j)}, {vr(b_+2*j+1)}", max(e, ee), f"o{qb}") for j in range(4)]
            ld = flat(F[s * len(F) // 4:(s + 1) * len(F) // 4])
            va += [(t, NMF - 1 if qb == 3 else e, f"o{qb}") for t in ld]
            va += [(f"s_mov_b32 {sr(sT)}, {(qb//2)*262144 + (s//2)*4096}", e, f"o{qb}"),
                   (f"buffer_store_dwordx4 {vr(d,4)}, {vr(vOST)}, {sr(sO,4)}, {sr(sT)} offen offset:{(s%2)*2048 + (qb%2)*1024} {CFG.get('ost', 'plain' if CFG.get('local') else 'sc1').replace('+', ' ').replace('plain', '')} ; #ost", e, f"o{qb}")]
    if CFG.get("tord", True):
        E = {q: [x for x in va if x[2] == f"e{q}"] for q in range(4)}
        X = [x for x in va if x[2] == "x"]
        O_ = {q: [x for x in va if x[2] == f"o{q}"] for q in range(4)}
        rest = E[0] + E[1] + E[2] + E[3]
        n0 = int(CFG.get("tn0", 10))
        head, rest = rest[:n0], rest[n0:]
        r2 = [x for x in rest if x[2] != "e3"]; r3 = [x for x in rest if x[2] == "e3"]
        va = X + head + O_[0] + r2 + O_[1] + r3 + O_[2] + O_[3]
    va = [((f"v_mul_f32 {vr(int(t.split()[1]))}, {vr(int(t.split()[1]))}, {vr(int(t.split()[2]))}" if t.startswith("@mul") else t), e, k) for t, e, k in va]
    o += reads[:12]
    nvm = spread(pairs(reads[12:]), list(range(0, 10)))
    pre = {2 + 2 * dt: [f"@wait - lds=v{2*dt},v{2*dt+1}"] for dt in range(8)}
    early = sum([wo_loads(x) for x in tail_names if x], [])
    if early: nvm = merge(nvm, spread(early, list(range(10, int(CFG.get("tailhi", 44)), 2))))
    part, left = weave(mf, nvm, va, pre=pre, need={18 * q: f"e{q}" for q in range(4)})
    o += part
    o += stamp()
    o.append("s_nop 7")
    lf_ = [t for t, _, _ in left]
    i = 0
    while i < len(lf_):
        m1 = re.match(r"v_mul_f32 v(\d+), v\d+, v(\d+)", lf_[i]); m2 = re.match(r"v_mul_f32 v(\d+), v\d+, v(\d+)", lf_[i+1]) if i + 1 < len(lf_) else None
        if m1 and m2 and int(m1.group(1)) % 2 == 0 and int(m2.group(1)) == int(m1.group(1)) + 1:
            r = int(m1.group(1)); f_ = int(m1.group(2))
            sel = "op_sel_hi:[1,0]" if f_ % 2 == 0 else "op_sel:[0,1] op_sel_hi:[1,1]"
            o.append(f"v_pk_mul_f32 {vr(r,2)}, {vr(r,2)}, {vr(f_ - f_ % 2,2)} {sel}"); i += 2
        else:
            o.append(lf_[i]); i += 1
    A = o.append
    A(f"v_mov_b32 {vr(vMX)}, 1")
    A(f"v_and_b32 {vr(vT)}, 7, v0"); A(f"v_lshlrev_b32 {vr(vT)}, 7, {vr(vT)}")
    A(f"v_add_u32 {vr(vKA)}, 0x10000, {vr(vOST)}")
    A(f"s_mov_b32 {sr(sCNT)}, 0")
    if CFG.get("forceglobal"): A(f"s_mov_b64 {sr(sGLB,2)}, -1")
    if CFG.get("local"): A(f"s_and_b32 {sr(sGLB)}, {sr(sGLB)}, 0xff"); A(f"s_cmp_lg_u32 {sr(sGLB)}, 0")
    mode = CFG.get("sync", "cnt1")
    cnt = mode.startswith("cnt"); one = mode.endswith("1")
    assert cnt
    post = sum([wo_loads(x) for x in post_names], [])
    A(f"s_lshl_b32 {sr(sT)}, {sr(sWAVE)}, 14"); A(f"v_add_u32 v10, {sr(sT)}, {vr(vOST)}")
    for qb in range(4):
        for s_ in range(4):
            d = Ureg(p, s_ // 2, qb) + 4 * (1 - s_ % 2)
            A(f"ds_write_b128 v10, {vr(d,4)} offset:{(qb//2)*8192 + s_*2048 + (qb%2)*1024}")
    A(f"s_and_b32 {sr(sT+1)}, {sr(sH)}, 1"); A(f"s_lshl_b32 {sr(sT+1)}, {sr(sT+1)}, 15")
    for k in range(4):
        o += gsel(k, sT, 13) + [f"s_add_u32 {sr(sT)}, {sr(sT)}, {sr(sT+1)}", f"v_add_u32 {vr(11+k)}, {sr(sT)}, {vr(vOST)}"]
    A("@wait w7 lgkm=0"); A("s_barrier")
    ord_ = lambda k: [f"ds_read_b128 {rr(ofr(k,kl,q2),4)}, {vr(11+k)} offset:{(kl*2+q2)*1024} ; #h{k}_{q2}" for q2 in range(2) for kl in range(4)]
    NB = int(CFG.get("nbef", 2))
    def own(k, extra):
        nv = {7: [f"@wait - lds=h{k}_1"]}
        if k < 3:
            r = ord_(k + 1)
            for j, g in enumerate((0, 2, 4, 6)): nv.setdefault(g, []).extend(r[2*j:2*j+2])
        if extra: nv = merge(nv, spread(extra, [1, 3, 5, 8, 9, 10, 11, 12, 13, 14, 15]))
        return [f"@wait - lds=h{k}_0"] + weave(sub_mfmas(k, k, 0), nv)[0]
    o += ord_(0)
    for k in range(NB): o += own(k, [])
    A("@wait ost")
    A("s_barrier")
    if cnt: A(f"buffer_atomic_add {vr(vMX)}, {vr(vLIN)}, {sr(sFLR,4)}, 0 offen sc1 ; #flag")
    else: A(f"buffer_store_dword {vr(vMX)}, {vr(vLIN)}, {sr(sFL,4)}, 0 offen sc1 ; #flag")
    o += stamp()
    pl = f"buffer_load_dword {vr(vT+1)}, off, {sr(sFLR,4)}, 0 sc1" if cnt else f"buffer_load_dword {vr(vT+1)}, {vr(vT)}, {sr(sFLR,4)}, 0 offen sc1"
    want = 8 if cnt else 1
    for k in range(NB, 4):
        n_ = min(8, len(post)); o += own(k, post[:n_]); post = post[n_:]
    o += flat(post)
    pw = int(CFG.get("pollwave", 1))
    if one: A(f"s_cmp_lg_u32 {sr(sWAVE)}, {pw}"); A("s_cbranch_scc1 L_go")
    A("L_poll:")
    A(pl + " ; #~poll")
    A("s_waitcnt vmcnt(0) ; keep")
    A(f"v_cmp_ne_u32 vcc, {want}, {vr(vT+1)}")
    A("s_cbranch_vccz L_go")
    if int(CFG.get("psleep", 0)): A("s_sleep " + str(int(CFG["psleep"])))
    A(f"s_add_u32 {sr(sCNT)}, {sr(sCNT)}, 1")
    A(f"s_cmp_lt_u32 {sr(sCNT)}, {CFG['spin']}")
    A("s_cbranch_scc1 L_poll")
    A("L_go:")
    if one: A("s_barrier")
    if CFG.get("local"): A(f"s_cmp_lg_u32 {sr(sGLB)}, 0"); A("s_cbranch_scc1 L_acq")
    A("L_acq_back:")
    o += stamp()
    return o

STAGED = []
def phase_c():
    o = []; A = o.append
    vOST = vCW
    D = int(CFG.get("cdist", 4))
    NS = 28
    LANDK = {2: vL, 1: vL + 8, 0: 10}
    OWN = acc(3, 0, 0)
    def dma(v):
        k, p = v // 7, 1 + v % 7
        g = []
        if v % 7 == 0: g += gsel(k, sG, 18) + [f"s_add_u32 {sr(sG)}, {sr(sG)}, {sr(sW2K)}"]
        g += [f"s_add_u32 {sr(sSP)}, {sr(sG)}, {sr(sHP+p)}", f"s_add_u32 m0, {sr(sW2K)}, {(v % 16) * 8192}", "s_nop 0"]
        ld = lambda j: f"buffer_load_dwordx4 {vr(vOST)}, {sr(sOL,4)}, {sr(sSP)} offen offset:{j*1024} sc1 lds ; #c{v // 2}"
        return [g + [ld(0)], [ld(1)]]
    def reads(v):
        base = (v % 16) * 8192
        return [f"ds_read_b128 {rr(ofr(v,kl,q2),4)}, {vr(vKA if base >= 65536 else vOST)} offset:{base % 65536 + (kl*2+q2)*1024} ; #u{v}_{q2}" for q2 in range(2) for kl in range(4)]
    for v in range(2 * D): o += flat(dma(v))
    o += ["@wait c0", "s_barrier"] + stamp() + reads(0)
    mf = []; nvm = {}; pre = {}; vm = {}
    pfg = int(CFG.get("pfg", 44))
    FB = {}
    for k in range(3): FB[k] = min(v for v in range(1, NS, 2) if 16 * v >= 112 * (k + 1) + pfg)
    for v in range(NS):
        k = v // 7
        mf += sub_mfmas(k, v, 1 + v % 7)
        g0 = 16 * v
        (nvm.setdefault(g0 - 1, []) if v else o).append(f"@wait - lds=u{v}_0")
        nvm.setdefault(g0 + 7, []).append(f"@wait - lds=u{v}_1")
        if v + 1 < NS:
            if v % 2 == 1:
                kk = [x for x in range(3) if FB[x] == v]
                pre.setdefault(g0, []).append(f"@wait c{v // 2 + 1}" + (f",p{kk[0]}" if kk else ""))
                nvm.setdefault(g0, []).append("s_barrier")
                if kk:
                    vm[g0 + 2] = gsel(kk[0], sT, 10) + [f"s_add_u32 {sr(sPF2+2)}, {sr(sT)}, 4",
                                   f"buffer_store_dword {vr(vMX)}, {vr(vLIN)}, {sr(sPF2,4)}, {sr(sT)} offen sc1 ; #pf"]
            r = reads(v + 1)
            for j, g in enumerate((1, 3, 6, 8)): nvm.setdefault(g0 + g, []).extend(r[2*j:2*j+2])
        if v + 2 * D < NS:
            for grp, g in zip(dma(v + 2 * D), (5, 12)): vm[g0 + g] = [x for x in grp if x != "s_nop 0"]
        if v % 7 == 0 and v:
            kk = k - 1
            for q2 in range(2):
                a0 = acc(kk, q2, 0); pk = 2 + 4 * q2; e = g0 - 6 if q2 == 0 else g0 + 2
                for j in range(4): nvm.setdefault(e + (j // 2) * (1 if q2 == 0 else 2), []).append(f"v_cvt_pk_bf16_f32 {vr(pk + j)}, {vr(a0 + 2*j)}, {vr(a0 + 2*j + 1)}")
                g = g0 - 3 if q2 == 0 else g0 + 7
                while g in vm: g += 1
                vm[g] = (gsel(kk, sTK, 19) if q2 == 0 else []) + [f"buffer_store_dwordx4 {vr(pk, 4)}, {vr(vLIN)}, {sr(sPS,4)}, {sr(sTK)} offen offset:{q2*1024} sc1 ; #p{kk}"]
    assert FB[2] < NS - 1
    STAGED.clear()
    em = int(CFG.get("em", 40))
    for n in range(2):
        k = 2 - n
        gp = 16 * FB[n] + 2 + em
        gp = gp - gp % 16 + 9 + (16 if gp % 16 > 9 else 0)
        while gp in vm: gp += 1
        vm[gp] = gsel(k, sTILE, 2) + [f"buffer_load_dword {vr(vT+1)}, off, {sr(sFL,4)}, {sr(sTILE)} offset:16 sc1 ; #e{k}"]
        g1 = gp - gp % 16 + 48 + 9
        nvm.setdefault(g1, []).extend([f"@wait e{k}", f"v_cmp_ne_u32 vcc, 1, {vr(vT+1)}"])
        nvm.setdefault(g1 + 1, []).extend([f"s_cbranch_vccnz L_e{k}", f"L_e{k}_back:"])
        for j, g in enumerate((g1 + 5, g1 + 9)):
            while g in vm: g += 1
            vm[g] = ([f"s_lshl_b32 {sr(sTILE)}, {sr(sTILE)}, 12"] if j == 0 else []) + [f"buffer_load_dwordx4 {vr(LANDK[k] + 4*j, 4)}, {vr(vLIN)}, {sr(sPL,4)}, {sr(sTILE)} offen offset:{j*1024} sc1 ; #l{k}"]
        STAGED.append(k)
    lastpoll = NS * 16 - int(CFG.get("lp", 12))
    vm[lastpoll] = gsel(0, sTILE, 2) + [f"buffer_load_dword {vr(vT+1)}, off, {sr(sFL,4)}, {sr(sTILE)} offset:16 sc1 ; #lp"]
    prev = -1
    for g in sorted(vm):
        grp = vm[g]; sca = grp[:-1]
        lo = max([prev] + [q for q in range(g) if any(x.startswith("L_e") for x in nvm.get(q, []))])
        free = [q for q in range(lo + 1, g) if not any(x.startswith(("s_", "@")) for x in nvm.get(q, []))]
        if len(free) >= len(sca):
            for x, q in zip(sca, free[len(free) - len(sca):]): nvm.setdefault(q, []).insert(0, x)
        elif g - 1 > lo: nvm[g - 1] = sca + nvm.get(g - 1, [])
        else: nvm[g] = sca + ["s_nop 0"] + nvm.get(g, [])
        nvm.setdefault(g, []).append(grp[-1]); prev = g
    ad = ["v_and_b32 v10, 15, v0", "v_lshrrev_b32 v11, 4, v0", "v_lshlrev_b32 v11, 4, v11", "v_lshl_add_u32 v18, v10, 10, v11"]
    def unpack(k):
        u_ = acc(k, 0, 0)
        return [x for j in range(8) for x in (f"v_lshlrev_b32 {vr(u_+2*j)}, 16, {vr(LANDK[k]+j)}", f"v_and_b32 {vr(u_+2*j+1)}, 0xffff0000, {vr(LANDK[k]+j)}")]
    gs = NS * 16 - 44
    va = [(x, 20, "a") for x in ad] + [("@wait l2,l1", gs, "b")] + [(x, gs, "b") for x in unpack(2) + unpack(1)]
    va += [(f"v_add_f32 {vr(acc(1,0,0)+j)}, {vr(acc(1,0,0)+j)}, {vr(acc(2,0,0)+j)}", gs, "b") for j in range(16)]
    part, lft = weave(mf, nvm, va, pre=pre)
    o += part
    o += stamp()
    o += [x for x, _, _ in lft]
    A(f"s_mov_b32 {sr(sCNT)}, 0")
    A("@wait lp")
    A(f"v_cmp_ne_u32 vcc, 1, {vr(vT+1)}")
    A("s_cbranch_vccz L_go2")
    A("L_poll2:")
    A(f"buffer_load_dword {vr(vT+1)}, off, {sr(sFL,4)}, {sr(sTILE)} offset:16 sc1")
    A("s_waitcnt vmcnt(0)")
    A(f"v_cmp_ne_u32 vcc, 1, {vr(vT+1)}")
    A("s_cbranch_vccz L_go2")
    A(f"s_add_u32 {sr(sCNT)}, {sr(sCNT)}, 1")
    A(f"s_cmp_lt_u32 {sr(sCNT)}, {CFG['spin']}")
    A("s_cbranch_scc1 L_poll2")
    A("L_go2:")
    o += stamp()
    A(f"s_lshl_b32 {sr(sTILE)}, {sr(sTILE)}, 12")
    for j in range(2): A(f"buffer_load_dwordx4 {vr(LANDK[0] + 4*j, 4)}, {vr(vLIN)}, {sr(sPL,4)}, {sr(sTILE)} offen offset:{j*1024} sc1 ; #l0")
    A("s_nop 4")
    for j in range(0, 16, 2): A(f"v_pk_add_f32 {vr(OWN+j,2)}, {vr(OWN+j,2)}, {vr(acc(1,0,0)+j,2)}")
    A(f"s_mov_b32 {sr(sT)}, 16384")
    A("@wait l0")
    o += unpack(0)
    for j in range(0, 16, 2): A(f"v_pk_add_f32 {vr(OWN+j,2)}, {vr(OWN+j,2)}, {vr(acc(0,0,0)+j,2)}")
    for q2 in range(2):
        for j in range(4): A(f"v_cvt_pk_bf16_f32 {vr(2 + 4*q2 + j)}, {vr(OWN + 8*q2 + 2*j)}, {vr(OWN + 8*q2 + 2*j + 1)}")
        A(f"buffer_store_dwordx4 {vr(2 + 4*q2, 4)}, v18, {sr(sOUT,4)}, {sr(sT) if q2 else 0} offen")
    return o

def peeled(lf):
    o = [f"s_mov_b32 {sr(sT)}, 0xe00fe000", f"v_cmp_ne_u32 vcc, {sr(sT)}, {vr(vCW)}", "s_cbranch_vccnz L_cw", "L_cw_back:"]
    for i in range(PEEL0, 15):
        loads = []
        tp = CFG.get("tpol", "nt").replace("+", " ")
        def touch(j, half):
            return [f"s_mov_b32 {sr(sDT)}, {j * 262144 + half * 4096}", f"s_mov_b32 {sr(sO+2)}, {j * 262144 + half * 4096 + 4096}",
                    f"buffer_load_dword {ar(240 + 2*j + half)}, {vr(vCW)}, {sr(sO,4)}, {sr(sDT)} offen {tp} ; #tch"]
        T = [touch(j, h_) for j in range(2) for h_ in range(2)] if CFG.get("local") and tp != "none" else []
        tsch = [int(x) for x in CFG.get("tsch", "13,13,13,13").split(",")]
        mine = [t for t, k in zip(T, tsch) if k == i]
        if i == 12 and CFG.get("local"):
            ids = [[f"v_and_b32 {vr(vCW)}, 63, v0", f"v_lshlrev_b32 {vr(vCW)}, 7, {vr(vCW)}", f"s_nop 0",
                    f"buffer_load_dword {ar(239)}, {vr(vCW)}, {sr(sFLR,4)}, 0 offen offset:4 sc1 ; #ids"]]
            loads = [(ids + mine, 0, NG)]
        fixed = {}
        if i == 12 and CFG.get("wtouch", False):
            tg = [int(x) for x in CFG.get("wtg", "65,68,93,107").split(",")]
            NP = len(tg)
            fixed[64] = [f"v_and_b32 {vr(vCW)}, {64 // NP - 1}, v0", f"v_lshlrev_b32 {vr(vCW)}, 7, {vr(vCW)}"]
            for j, g in enumerate(tg):
                off = j * 8192 // NP
                fixed.setdefault(g, []).append(f"buffer_load_dword {ar(252 + j)}, {vr(vCW)}, {sr(sWFL,4)}, {sr(sRX if off >= 4096 else sRW)} offen offset:{off % 4096} sc1 ; #wt")
        if i == 12 and int(CFG.get("r1n12", 0)): loads = [(wo_loads("R1")[:int(CFG["r1n12"])], 0, NG)]
        r1at = int(CFG.get("r1at", 14))
        if i == 13:
            g = mine + (wo_loads("R1")[:8] if r1at == 13 else [])
            if not CFG.get("local"): g = wo_loads("R1")[8:]
            loads = [(g, int(CFG.get("r1lo", 24)), int(CFG.get("r1hi", 75)))] if g else []
        if i == 14:
            loads = [(wo_loads("R2") + wo_loads("R4"), 64, NG)]
            if int(CFG.get("r1n13", 8)) < 16: loads.insert(0, (wo_loads("R1")[:8], 0, 64))
            if CFG.get("local"):
                chk = [f"@wait ids,tch", f"v_accvgpr_read_b32 {vr(vCW)}, {ar(239)}"]
                r1 = wo_loads("R1")[(8 if r1at == 13 else 0):]
                k8 = len(r1) - 8
                r1[k8] = chk + r1[k8]
                loads.insert(0, (r1, 0, 64))
        o += iteration(i, f"L_r{i}", loads, phase_c_srds() if i == PEEL0 else (), fixed)
    o += stamp()
    o += tail_and_epilogue(3)
    o += phase_c()
    fifo = [f"K{PEEL0+2}"] * 4 + [f"V{PEEL0+1}"] * 4
    if CFG.get("skipst"): o = [x for x in o if "#ost" not in x]
    if CFG.get("skipp"): o = [x for x in o if not re.search(r"#p\d", x)]
    o, _, _ = resolve(o, fifo, lf)
    return o

def stamp_out():
    if not CFG["stamps"]: return []
    o = ["s_waitcnt vmcnt(0)"] + stamp()
    A = o.append
    A(f"s_lshl_b32 {sr(sT)}, s2, 10"); A(f"s_add_u32 {sr(sT)}, {sr(sT)}, {STAMP_OFF}")
    o += srd_at(4, 14, sr(sT), 1024)
    A("v_lshlrev_b32 v1, 2, v0")
    A(f"buffer_store_dword v{STV}, v1, s[4:7], 0 offen")
    if CFG.get("dbgout"):
        o += srd_at(4, 12, "0", 64)
        A("v_and_b32 v2, 63, v0")
        A("v_lshlrev_b32 v1, 1, v2"); A("v_add_u32 v1, 6, v1")
        A("v_and_b32 v3, 1, v2"); A("v_cmp_eq_u32 vcc, 0, v3"); A("v_mov_b32 v3, 0x1000"); A("s_nop 1")
        A("v_cndmask_b32 v1, v1, v3, vcc")
        A(f"v_cmp_lt_u32 vcc, {2*nstamp[0]}, v2"); A("s_nop 1"); A("v_cndmask_b32 v1, v1, v3, vcc")
        A(f"buffer_atomic_umax v{STV}, v1, s[4:7], 0 offen sc1")
        A(f"v_not_b32 v4, v{STV}")
        A("v_cmp_eq_u32 vcc, 1, v2"); A("s_nop 1"); A("v_cndmask_b32 v1, v3, 4, vcc")
        A(f"buffer_atomic_umax v4, v1, s[4:7], 0 offen sc1")
    return o

def kernel():
    pro, fifo, lf0 = prologue()
    _, _, lf = resolve(iteration(0, "x") + iteration(1, "x"), [])
    its = []
    for u in range(4):
        it, _, lf2 = resolve(iteration(u, f"L_r{u}"), [], lf)
        assert lf2 == lf
        its.append(it)
    assert len(lf0) >= len(lf) and lf0[len(lf0)-len(lf):] == lf or CFG["stamps"] or CFG.get("probe"), (lf0, lf)
    pe = peeled(lf)
    body = list(pro)
    body.append("L_loop:")
    for u in range(4):
        it = list(its[u])
        if u == 3:
            k = [i for i, x in enumerate(it) if x.startswith(MF)]
            it.insert(k[-3] + 1, f"s_cmp_lt_u32 {sr(sCNT)}, {NPASS}")
            it.insert(k[-4] + 1, f"s_add_u32 {sr(sCNT)}, {sr(sCNT)}, 1")
            it.append("s_cbranch_scc1 L_loop")
            its[3] = it
        body += it
    body += pe
    body += stamp_out()
    if CFG.get("fixdur"):
        body += ["L_fix:", "s_memrealtime s[40:41]", "s_waitcnt lgkmcnt(0)", "s_sub_u32 s40, s40, s42", f"s_cmp_lt_u32 s40, {int(CFG['fixdur'])*100}", "s_cbranch_scc1 L_fix"]
    body.append("L_end:")
    body.append("s_endpgm")
    for u in list(range(4)) + list(range(PEEL0, 15)):
        body += [f"L_r{u}a:", f"s_call_b64 {sr(sRET,2)}, L_ra{1 - u % 2}", f"s_branch L_r{u}a_back"]
        if CFG.get("evslow"): body += [f"L_r{u}z:", f"s_nop {int(CFG['evslow'][1:])}", f"s_branch L_r{u}z_back"]
        body += [f"L_r{u}b:", f"s_call_b64 {sr(sRET,2)}, L_rb", f"s_branch L_r{u}b_back"]
    body += ["L_cw:", f"s_mov_b32 {sr(sCNT)}, 0", "L_cw_loop:",
             f"v_and_b32 {vr(vCW)}, 3, v0", f"v_lshlrev_b32 {vr(vCW)}, 6, {vr(vCW)}",
             f"buffer_load_dword {vr(vCW)}, {vr(vCW)}, {sr(sDB,4)}, 0 offen sc1", "s_waitcnt vmcnt(0)",
             f"v_cmp_ne_u32 vcc, {sr(sT)}, {vr(vCW)}", "s_cbranch_vccz L_cw_back",
             f"s_add_u32 {sr(sCNT)}, {sr(sCNT)}, 1", f"s_cmp_lt_u32 {sr(sCNT)}, {CFG['spin']}", "s_cbranch_scc1 L_cw_loop",
             "s_branch L_cw_back"]
    if CFG.get("local"): body += ["L_pubg:", "buffer_wbl2 sc1", "s_waitcnt vmcnt(0)",
             f"buffer_store_dword {vr(vMX)}, {vr(vLIN)}, {sr(sFL,4)}, 0 offen sc1", "s_branch L_pubg_back"]
    if CFG.get("local"): body += ["L_acq:", "buffer_inv sc1", "s_waitcnt vmcnt(0)", "s_branch L_acq_back"]
    for k in STAGED:
        body += [f"L_e{k}:", f"s_mov_b32 {sr(sCNT)}, 0", f"L_e{k}_loop:",
                 f"buffer_load_dword {vr(vT+1)}, off, {sr(sFL,4)}, {sr(sTILE)} offset:16 sc1", "s_waitcnt vmcnt(0)",
                 f"v_cmp_ne_u32 vcc, 1, {vr(vT+1)}", f"s_cbranch_vccz L_e{k}_back",
                 f"s_add_u32 {sr(sCNT)}, {sr(sCNT)}, 1", f"s_cmp_lt_u32 {sr(sCNT)}, {CFG['spin']}", f"s_cbranch_scc1 L_e{k}_loop", f"s_branch L_e{k}_back"]
    for p in range(2): body += rare_a(p, f"L_ra{p}")
    body += rare_b("L_rb")
    loop = its[0] + its[1] + its[2] + its[3]
    check(pro + loop + loop + pe, "main")
    def with_rare(seq):
        o = []
        for x in seq:
            m = re.match(r"L_r(\d+)([ab])_back:", x)
            if m: o += (rare_a(1 - int(m.group(1)) % 2, "x") if m.group(2) == "a" else rare_b("x"))[1:]
            o.append(x)
        return o
    check(pro + with_rare(loop + pe), "rare")
    if CFG.get("jitter"):
        import random
        rnd = random.Random(int(CFG["jitter"][1:]))
        nb = []; cnt = 0; started = False
        for x in body:
            if x == "s_endpgm": started = False
            j = False
            if x.startswith("s_barrier"): started = True; j = True
            if x.startswith(MF): cnt += 1; j = cnt % 97 == 0
            pre_ = rnd.random() < 0.5
            blk = []
            if j and started:
                lab = f"L_j{len(nb)}"
                blk = ["s_cselect_b32 s101, 1, 0", "s_memrealtime s[40:41]", "s_waitcnt lgkmcnt(0)", f"s_lshl_b32 s41, {sr(sWAVE)}, 2", "s_xor_b32 s40, s40, s41", "s_xor_b32 s40, s40, s2",
                       f"s_and_b32 s40, s40, {rnd.choice([12, 28, 60])}", "s_cmp_lg_u32 s40, 0", f"s_cbranch_scc1 {lab}", f"s_sleep {rnd.choice([4, 16, 64])}", f"{lab}:", "s_cmp_lg_u32 s101, 0"]
            nb += (blk + [x]) if pre_ else ([x] + blk)
        return "\n".join(nb)
    lastscc = None
    for x in body:
        op = x.split()[0] if x.split() else ""
        if op == "s_addc_u32": assert lastscc == "s_add_u32" and prev.startswith("s_add_u32"), (prev, x)
        if op in ("s_cselect_b32", "s_cbranch_scc0", "s_cbranch_scc1"): assert lastscc.startswith("s_cmp"), (lastscc, x)
        if op.startswith(("s_add", "s_sub", "s_and", "s_or", "s_xor", "s_lshl", "s_lshr", "s_cmp", "s_bfe", "s_min", "s_max", "s_not")): lastscc = op
        prev = x
    if CFG["verbose"]:
        for g in range(NG): print(g, PLAN[g])
    return "\n".join(body)

if __name__ == "__main__":
    k = kernel()
    txt = file_text([dict(label=NAME + "_kernel", body=k, grid=256, block=256, lds=163840, vgpr=512, accum=256)], single=True)
    open(sys.argv[1], "w").write(txt)
```

```python
import sys, math, struct, re
from asmlib import *
from check import check

CFG = dict(qst=False, stamps=False, codepf=True, warm=True, spin=200000, verbose=False)
for a in sys.argv[2:]:
    k, v = a.split("=")
    CFG[k] = {"0": False, "1": True}.get(v, v)

MF = "v_mfma_f32_16x16x32_bf16"
def vr(b, n=1): return f"v{b}" if n == 1 else f"v[{b}:{b+n-1}]"
def ar(b, n=1): return f"a{b}" if n == 1 else f"a[{b}:{b+n-1}]"
def sr(b, n=1): return f"s{b}" if n == 1 else f"s[{b}:{b+n-1}]"
def rr(r, n=1): return vr(r, n) if r < 256 else ar(r - 256, n)
def slots(t):
    if t.startswith(("v_exp", "v_rcp", "buffer_", "global_", "v_permlane")): return 2
    if t.startswith(("s_", "@", "L_")): return 0
    return 1

sX, sWQ, sK, sV, sO = 4, 8, 12, 16, 20
sWFL, sOL = 4, 8
sWAVE, sB, sH, sW4K, sW8K = 24, 25, 26, 27, 28
sCB, sMT, sNT = 29, 30, 31
sXO, sWO = 32, 40
sOUT, sFLR = 32, 36
sTILE, sCNT, sTHR, sSC, sSP = 44, 45, 46, 47, 48
sRET = 50
sTK, sROT, sRQ, sRX, sRW = 49, 92, 93, 94, 95
sW1K, sDT = 96, 97
sPF = 98
sPS, sPL, sPF2 = 80, 84, 76
sHO, sG = 29, 30
sHP, sW2K = 56, 96
sRC = 93
sXCC, sGLB = 3, 94
sT = 52
sARG = 56
sFL, sDB, sDBW = 72, 76, 88
sWS2, sWO2 = 80, 84
vKA, vVA, vDK, vDV = 1, 5, 13, 17
vMX, vLIN, vCW, STV = 19, 21, 22, 23
vT = 24
vONES = 28
vNEG, vL, vQ, vS = 32, 48, 64, 128
vWA, vXA, vDX, vDW, vWOF = 64, 72, 76, 78, 25
vWOA, vWOS = 19, 20
vDUM = [22, 26, 27]
u0, u1, u2, u3, u4, u5, ln = 128, 129, 130, 131, 132, 133, 134
aO, aF = 0, 128
LK, LV, LW = 0, 65536, 131072
LX = [81920, 131072]
LWQ = [32768, 49152, 65536]
LWO = 114688
WOF_OFF, FLAG_OFF, PART_OFF, STAMP_OFF = 0x1000000, 0x1400000, 0x1800000, 0x4000000

def Ureg(p, ks, qb): return vS + 64 * p + 8 * (ks * 4 + qb)
def Sreg(p, kb, qb): return Ureg(p, kb // 2, qb) + 4 * (kb % 2)
def Oreg(qb, dt): return aO + 4 * (qb * 8 + dt)
def Qreg(qb, s): return vQ + 16 * qb + 4 * s
def Freg(n): return aF + 4 * n

nstamp = [0]
def stamp():
    if CFG.get("probe"):
        i = nstamp[0]; nstamp[0] += 1
        return ["s_memrealtime s[42:43]", "s_waitcnt lgkmcnt(0)"] if i == int(CFG["probe"][1:]) else []
    if not CFG["stamps"]: return []
    i = nstamp[0]; nstamp[0] += 1
    assert i < 30
    return ["s_memtime s[40:41]", "s_waitcnt lgkmcnt(0)", f"v_writelane_b32 v{STV}, s40, {2*i}",
            "s_memrealtime s[40:41]", "s_waitcnt lgkmcnt(0)", f"v_writelane_b32 v{STV}, s40, {2*i+1}"]

def srd(s, size):
    return [f"s_and_b32 {sr(s+1)}, {sr(s+1)}, 0xffff", f"s_mov_b32 {sr(s+2)}, {size}", f"s_mov_b32 {sr(s+3)}, 0x20000"]
def srd_at(s, arg, offreg, size):
    return [f"s_add_u32 {sr(s)}, {sr(sARG+arg)}, {offreg}", f"s_addc_u32 {sr(s+1)}, {sr(sARG+arg+1)}, 0"] + srd(s, size)

def tag(lst, t): return [(x + f" ; #{t}") if x.startswith(("buffer_", "global_")) and "#" not in x else x for x in lst]
def resolve(seq, fifo, lfifo=()):
    fifo = list(fifo); lf = list(lfifo); out = []
    def cut(f, n): return f[len(f) - n:] if 0 < n < len(f) else (f if n else [])
    for x in seq:
        if x.startswith("@wait"):
            parts = x.split()
            w = []
            idx = [i for i, t in enumerate(fifo) if t in parts[1].split(",")]
            if idx:
                n = min(63, len(fifo) - 1 - max(idx)); fifo = cut(fifo, n); w.append(f"vmcnt({n})")
            for p in parts[2:]:
                if p.startswith("vm="): n = int(p[3:]); fifo = cut(fifo, n); w.append(f"vmcnt({n})")
                if p.startswith("lgkm="): n = int(p[5:]); lf = cut(lf, n); w.append(f"lgkmcnt({n})")
                if p.startswith("lds="):
                    idx = [i for i, t in enumerate(lf) if t in p[4:].split(",")]
                    if idx:
                        n = min(15, len(lf) - 1 - max(idx)); lf = cut(lf, n); w.append(f"lgkmcnt({n})")
            if w: out.append("s_waitcnt " + " ".join(w))
            continue
        m = re.search(r"#(\S+)", x)
        if x.startswith(("buffer_", "global_")): fifo.append(m.group(1) if m else "?")
        if x.startswith("ds_"): lf.append(m.group(1) if m else "?")
        m = re.match(r"s_waitcnt.*vmcnt\((\d+)\)", x)
        if m: fifo = cut(fifo, int(m.group(1)))
        m = re.match(r"s_waitcnt.*lgkmcnt\((\d+)\)", x)
        if m: lf = cut(lf, int(m.group(1)))
        out.append(x)
    return out, fifo, lf

CONT = CFG.get("cont", False)
NOSWAP = CFG.get("noswap", True)
DIST = int(CFG.get("dist", 3))
def dma_k(p, soff):
    if CONT: return f"buffer_load_dwordx4 {vr(vDK)}, {sr(sK,4)}, {sr(sDT)} offen nt lds"
    return f"buffer_load_dwordx4 {vr(vDK+p)}, {sr(sK,4)}, {soff} offen offset:{1024*p} nt lds"
def dma_v(p, soff):
    if CONT: return f"buffer_load_dwordx4 {vr(vDV)}, {sr(sV,4)}, {sr(sDT)} offen nt lds"
    return f"buffer_load_dwordx4 {vr(vDV + p%2)}, {sr(sV,4)}, {soff} offen offset:{1024*p} nt lds"
def cont_pre(base, p, soff): return [f"s_add_u32 m0, {sr(sW1K)}, {base + p*4096}", f"s_add_u32 {sr(sDT)}, {soff}, {p*4096}"]
def m0_at(addr): return f"s_add_u32 m0, {sr(sW4K)}, {addr}"
def kv_batch(which, tile):
    out = [m0_at((LK + slotK(tile) * 16384 if which == "K" else LV + slotV(tile) * 16384)), f"s_add_u32 {sr(sT)}, {sr(sROT)}, {tile*16384}", f"s_and_b32 {sr(sT)}, {sr(sT)}, 0x3ffff"]
    for p in range(4):
        if CONT: out += cont_pre((LK if which == "K" else LV) + (tile % 4) * 16384, p, sr(sT))
        out.append(dma_k(p, sr(sT)) if which == "K" else dma_v(p, sr(sT)))
    return tag(out, f"{which}{tile}")

NPASS = int(CFG.get("npass", 3))
PEEL0 = 4 * NPASS
def slotK(t): return t % 4
def slotV(t): return t % 4
def rd_k(slot, n):
    kb, s = n // 4, n % 4
    return f"ds_read_b128 {ar(Freg(n),4)}, {vr(vKA+s)} offset:{slot*16384 + kb*4096} ; #k{n}"
def rd_v(slot, n, t):
    dt, ks = n // 2, n % 2
    return f"ds_read_b64_tr_b16 {ar(Freg(n)+2*t,2)}, {vr(vVA+dt)} offset:{slot*16384 + (32*ks+16*t)*256} ; #v{n}"

def qk_one(p, kb, qb, s, first, czero=False):
    d = Sreg(p, kb, qb)
    c = vr(d, 4) if not first else ("0" if czero else vr(vNEG + 4*qb, 4))
    return f"{MF} {vr(d,4)}, {ar(Freg(kb*4+s),4)}, {vr(Qreg(qb,s),4)}, {c}"
def qk_list(p):
    return [qk_one(p, kb, qb, (i if qb % 2 == 0 else 3 - i), i == 0) for kb in range(4) for qb in range(4) for i in range(4)]
def pv_one(p, dt, qb, ks):
    o = Oreg(qb, dt)
    return f"{MF} {ar(o,4)}, {ar(Freg(dt*2+ks),4)}, {vr(Ureg(p,ks,qb),4)}, {ar(o,4)}"
def sum_one(p, qb, ks):
    return f"{MF} {vr(vL+4*qb,4)}, {vr(vONES,4)}, {vr(Ureg(p,ks,qb),4)}, {vr(vL+4*qb,4)}"
def pv_list(p):
    return ([pv_one(p, dt, qb, (i if qb % 2 == 0 else 1 - i)) for dt in range(8) for qb in range(4) for i in range(2)]
            + [sum_one(p, qb, ks) for qb in range(4) for ks in range(2)])

UNITS = [(0, 0), (1, 0), (1, 1), (0, 1), (0, 2), (1, 2), (1, 3), (0, 3)]
def ereg(p, e): ks, qb = UNITS[e // 8]; return Ureg(p, ks, qb) + e % 8
def exp_i(p, e): r = ereg(p, e); return f"v_exp_f32 {vr(r)}, {vr(r)}"
def cvt_i(p, k):
    r = ereg(p, 2 * k); return f"v_cvt_pk_bf16_f32 {vr(r - (2*k) % 8 + k % 4)}, {vr(r)}, {vr(r+1)}"
def max_items(p):
    out = []
    for kb in range(4):
        for qb in range(4):
            r = Sreg(p, kb, qb); m = vr(vMX + qb % 2); done = 16 * kb + 4 * qb + 3
            if kb == 0 and qb < 2:
                out.append((f"v_max3_f32 {m}, {vr(r)}, {vr(r+1)}, {vr(r+2)}", done))
                out.append((f"v_max_f32 {m}, {vr(r+3)}, {m}", done))
            else:
                out.append((f"v_max3_f32 {m}, {vr(r)}, {vr(r+1)}, {m}", done))
                out.append((f"v_max3_f32 {m}, {vr(r+2)}, {vr(r+3)}, {m}", done))
    return out

NG = 136
HOOKA = 69
BARG = 118
LAT = 8
def make_plan():
    plan = {g: [] for g in range(NG)}
    T0 = HOOKA
    dsp = int(CFG.get("dsp", 14))
    dv0 = int(CFG.get("dv0", 72))
    dma_g = [4 + dsp * i for i in range(4)] + [dv0 + dsp * i for i in range(4)]
    dma_t = [g + NG if g < HOOKA else g for g in dma_g]
    NX2 = int(CFG.get('nx2', 40))
    r2 = [t for t in range(T0, NG) if t != BARG and t not in dma_t]
    r1 = [t for t in range(NG, NG + 64) if t not in dma_t]
    xt = [r2[i * len(r2) // NX2] for i in range(NX2)] + [r1[i * len(r1) // (64 - NX2)] for i in range(64 - NX2)]
    assert len(set(xt)) == 64
    for e, t in enumerate(xt): plan[t % NG].append(("exp", e, t >= NG))
    for i, t in enumerate(dma_t): plan[t % NG].append(("dma", i))
    Y = []
    for k in range(32):
        Y.append((xt[2*k+1] + 1, NG + 64 + k // 4 - 2, ("cvt", k)))
    for i, (_, done) in enumerate(max_items(0)):
        Y.append((NG + done + 3, NG + HOOKA - 3, ("max", i)))
    Y.append((NG + 66, NG + HOOKA - 2, ("max", 32))); Y.append((NG + 66, NG + HOOKA - 1, ("max", 33)))
    for n in range(16):
        Y.append((max(BARG + 1, 64 + 8 * (n // 2) + 7), NG + 16 * (n // 4) - LAT, ("k", n)))
    NV1 = int(CFG.get("nv1", 10))
    for n in range(16):
        e, d = 16 * (n // 4) + 15, min(64 + 8 * (n // 2) - LAT, BARG - 10)
        for t in range(2):
            if n < NV1: Y.append((NG + e, NG + min(d, HOOKA - 1), ("v", n, t)))
            else: Y.append((T0, d, ("v", n, t)))
    def kind(y): return y[2][0] + ("1" if y[2][0] == "v" and y[0] >= NG else "")
    ygaps = [t for t in range(T0, T0 + NG) if not plan[t % NG] and t % NG != BARG]
    pend = list(Y)
    for t in ygaps:
        g = t % NG
        picked = []
        for _ in range(2):
            heads = {}
            for y in pend: heads.setdefault(kind(y), y)
            c = [y for y in heads.values() if y[0] <= t]
            if not c: break
            def eff(y):
                same = [z for z in pend if kind(z) == kind(y)]
                return min(z[1] - i / 1.2 for i, z in enumerate(same))
            y = min(c, key=eff)
            assert t <= y[1], ("deadline miss", t, y)
            picked.append(y); pend.remove(y)
        picked.sort(key=lambda y: 0 if y[2][0] in ("k", "v") else 1)
        for y in picked: plan[g].append(y[2] + ((t >= NG,) if y[2][0] == "cvt" else ()))
    assert not pend, pend
    return plan
PLAN = make_plan()

def iteration(i, lab, loads=None, salu=(), fixed=None):
    assert DIST == 3 and not CONT
    p = i % 2
    steady = i < PEEL0
    sc = {g: [] for g in range(NG)}
    for kb in range(4): sc[16 * kb - 1 if kb else NG - 2].append(f"@wait - lds=" + ",".join(f"k{kb*4+s}" for s in range(4)))
    for dt in range(8):
        if 64 + 8 * dt - 1 < BARG - 1: sc[64 + 8 * dt - 1].append(f"@wait - lds=v{2*dt},v{2*dt+1}")
    sc[BARG - 1].append(f"@wait - vm={10 if i == 1 else (9 if i == 2 and CFG.get('repf', False) else 8)} lgkm=0" if steady else f"@wait K{i+2},V{i+1} lgkm=0")
    sc[BARG].append("s_barrier")
    if CFG.get("itst"):
        sc[BARG - 2].append("s_memrealtime s[40:41]")
        sc[BARG] += ["s_mov_b64 exec, s[42:43]", f"v_mov_b32 v{STV}, s40", "s_mov_b64 exec, -1", "s_lshl_b64 s[42:43], s[42:43], 1"]
    sc[HOOKA] += [f"s_cbranch_vccnz {lab}a", f"{lab}a_back:"]
    sc[NG - 1] = [f"s_cbranch_vccnz {lab}b", f"{lab}b_back:"] + sc[NG - 1]
    if CFG.get("evslow"):
        sc[90] += ["s_and_b32 s101, s2, 1"]; sc[91] += ["s_cmp_eq_u32 s101, 0"]; sc[92] += [f"s_cbranch_scc1 {lab}z", f"{lab}z_back:"]
    extra = dict(fixed or {})
    vm = {}
    hask, hasv = i + 3 <= 15, i + 2 <= 15
    for j, g in enumerate(DMA_GAPS):
        if j < 4 and hask: vm[g] = [m0_at(LK + slotK(i + 3) * 16384), dma_k(j, sr(sTK)) + f" ; #K{i+3}"]
        v15 = CFG.get("v15", "a")
        if i == 13 and v15 != "n":
            if j < 4 and v15 == "a": vm[(2, 8, 14, 20)[j] if CFG.get("v15d", True) else g] = [m0_at(LV + slotV(15) * 16384), dma_v(j, sr(sTILE)) + " ; #V15"]
            continue
        if j >= 4 and hasv: vm[g] = [m0_at(LV + slotV(i + 2) * 16384), dma_v(j - 4, sr(sTILE)) + f" ; #V{i+2}"]
    if i == 12 and CFG.get("v15", "a") == "b":
        vm = {}
        for j in range(4):
            vm[(4, 13, 22, 32)[j]] = [m0_at(LK + slotK(15) * 16384), dma_k(j, sr(sTK)) + " ; #K15"]
            vm[(40, 46, 58, 64)[j]] = [m0_at(LV + slotV(14) * 16384), dma_v(j, sr(sTILE)) + " ; #V14"]
            vm[(72, 86, 100, 114)[j]] = [m0_at(LV + slotV(15) * 16384), dma_v(j, sr(sTK)) + " ; #V15"]
    sc[120].append(f"s_mov_b32 {sr(sTILE)}, {sr(sTK)}")
    sc[121].append(f"s_add_u32 {sr(sTK)}, {sr(sTK)}, 0x4000")
    sc[122].append(f"s_and_b32 {sr(sTK)}, {sr(sTK)}, 0x3ffff")
    if steady:
        if i == 1:
            extra[64] = [f"v_and_b32 {vr(vCW)}, 3, v0", f"v_lshlrev_b32 {vr(vCW)}, 6, {vr(vCW)}"]
            extra[65] = [f"buffer_load_dword {vr(vCW)}, {vr(vCW)}, {sr(sDB,4)}, 0 offen sc1"]
            sc[40].append(f"s_cmp_eq_u32 {sr(sCNT)}, {NPASS - 1}")
            sc[41].append(f"s_cselect_b32 {sr(sDB+2)}, 256, 0")
            extra[68] = [f"buffer_atomic_add {vr(vONES)}, {vr(vLIN)}, {sr(sDBW,4)}, 0 offen sc1"]
            sc[75].append(f"s_mov_b32 {sr(sDBW+2)}, 0")
        if i == 2 and CFG.get("repf", False):
            extra[64] = [f"v_and_b32 {vr(vT)}, 31, v0", f"v_lshlrev_b32 {vr(vT)}, 10, {vr(vT)}"]
            extra[65] = [f"v_add_u32 {vr(vT)}, {sr(sPF+2)}, {vr(vT)}", f"v_min_u32 {vr(vT)}, L_end-L_pc, {vr(vT)}"]
            extra[68] = [f"global_load_dword {ar(255)}, {vr(vT)}, {sr(sPF,2)}"]
    else:
        nextk = i + 2 <= 15
        def load(g):
            return sum(2 if it[0] == "exp" else (0 if it[0] == "dma" or (it[0] == "k" and g > BARG and not nextk) else 1) for it in PLAN[g])
        gs = 0
        for x in salu:
            if x.startswith(("s_addc", "s_cselect")):
                sc[gs - 1].append(x); continue
            while sc[gs] or gs in vm or gs + 1 in vm: gs += 1
            sc[gs].append(x); gs += 1
        for groups, lo, hi in loads:
            cand = [g for g in range(max(lo, gs + 3 if salu else 0), hi) if g not in vm and g not in (BARG, BARG - 1, HOOKA, NG - 1)]
            n = len(groups)
            for k, grp in enumerate(groups):
                win = cand[k * len(cand) // n:(k + 1) * len(cand) // n]
                vm[min(win, key=load)] = grp
    cur_m0 = None; prev = -1
    for g in sorted(vm):
        grp = vm[g]; sca = []
        for x in grp[:-1]:
            if x.startswith("s_add_u32 m0"):
                if x == cur_m0: continue
                cur_m0 = x
            sca.append(x)
        free = [q for q in range(prev + 1, g + 1) if not sc[q] and not (steady and q in (40, 41))]
        if sca and sca[-1].startswith("s_add_u32 m0"): free = [q for q in free if q < g]
        if len(free) >= len(sca):
            for x, q in zip(sca, free[len(free) - len(sca):]): sc[q].append(x)
        else:
            sc[g] += sca + ["s_nop 0"]
        prev = g
    mf = qk_list(1 - p) + pv_list(p)
    MX = [t for t, _ in max_items(1 - p)] + [f"v_max_f32 {vr(vMX)}, {vr(vMX)}, {vr(vMX+1)}", f"v_cmp_lt_f32 vcc, {sr(sTHR)}, {vr(vMX)}"]
    out = []
    for g in range(NG):
        out.append(mf[g])
        out += sc[g]
        ex = extra.get(g, [])
        out += [x for x in ex if not x.startswith("v_")]
        if g in vm: out.append(vm[g][-1])
        for it in PLAN[g]:
            k = it[0]
            if k == "exp": out.append(exp_i(p if it[2] else 1 - p, it[1]))
            elif k == "cvt": out.append(cvt_i(p if it[2] else 1 - p, it[1]))
            elif k == "max":
                if not CFG.get("nomax"): out.append(MX[it[1]])
            elif k == "k":
                t = i + (2 if g > BARG else 1)
                if t <= 15: out.append(rd_k(slotK(t), it[1]))
            elif k == "v": out.append(rd_v(slotV(i), it[1], it[2]))
        out += [x for x in ex if x.startswith("v_")]
        if CFG.get("slowdown") and g % int(CFG["slowdown"]) == 5: out.append("s_nop 7")
    return out
EARLY_K = [it[1] for g in range(BARG + 1, NG) for it in PLAN[g] if it[0] == "k"]
E_FIRST = [it for g in range(HOOKA, NG) for it in PLAN[g] if it[0] in ("exp", "cvt")]
E_REST = [it for g in range(0, HOOKA) for it in PLAN[g] if it[0] in ("exp", "cvt")]
DMA_GAPS = [g for g in range(NG) if any(it[0] == "dma" for it in PLAN[g])]
LIGHT = sorted(range(NG), key=lambda g: (sum(2 if it[0] in ("exp",) else (0 if it[0] == "dma" else 1) for it in PLAN[g])))

def spread(items, gaps):
    d = {}
    for i, it in enumerate(items):
        d.setdefault(gaps[i * len(gaps) // len(items)], []).extend(it)
    return d
def place(groups, lo, hi):
    cand = [g for g in LIGHT if lo <= g < hi and g not in (BARG, BARG - 1, HOOKA, NG - 1)]
    gs = sorted(cand[:len(groups)])
    assert len(gs) == len(groups)
    return {g: list(x) for g, x in zip(gs, groups)}
def merge(*maps):
    d = {}
    for m in maps:
        for k, v in m.items(): d.setdefault(k, []).extend(v)
    return d
def flat(G): return [x for g in G for x in g]
def groups_of(lst):
    G = []; cur = []
    for x in lst:
        cur.append(x)
        if x.startswith("buffer_"): G.append(cur); cur = []
    if cur: G[-1] += cur
    return G

WREG = []
WP = {}
for nm, base, n in (("R1", 256 + 192, 16), ("R2", vQ, 16), ("R4", vNEG, 4), ("R3", vS, 16), ("R5", 256 + aF, 12)):
    WP[nm] = list(range(len(WREG), len(WREG) + n)); WREG += [base + 4 * i for i in range(n)]
assert len(WREG) == 64
def wo_loads(name, sp=None):
    sp = sSP if sp is None else sp
    groups = []
    for f in WP[name]:
        g = [f"s_add_u32 {sr(sp)}, {sr(sHP + f // 8)}, {(f % 8) * 1024}"] if f % 4 == 0 else []
        g.append(f"buffer_load_dwordx4 {rr(WREG[f], 4)}, {vr(vLIN)}, {sr(sWFL,4)}, {sr(sp)} offen offset:{(f%4)*1024} sc1 ; #w{f}")
        groups.append(g)
    return groups

def pack_muls(l):
    o = []; i = 0
    while i < len(l):
        m1 = re.match(r"v_mul_f32 v(\d+), v\d+, v(\d+)$", l[i]); m2 = re.match(r"v_mul_f32 v(\d+), v\d+, v(\d+)$", l[i+1]) if i + 1 < len(l) else None
        if m1 and m2 and int(m1.group(1)) % 2 == 0 and int(m2.group(1)) == int(m1.group(1)) + 1:
            r = int(m1.group(1)); f_ = int(m1.group(2))
            sel = "op_sel_hi:[1,0]" if f_ % 2 == 0 else "op_sel:[0,1] op_sel_hi:[1,1]"
            o.append(f"v_pk_mul_f32 {vr(r,2)}, {vr(r,2)}, {vr(f_ - f_ % 2,2)} {sel}"); i += 2
        else: o.append(l[i]); i += 1
    return o
def weave(mf, nvmap, va=(), pre=None, need=None):
    out = []; va = list(va)
    for g, m in enumerate(mf):
        if need and g in need:
            last = max([i for i, x in enumerate(va) if x[2] == need[g]], default=-1)
            if last >= 0:
                if va[last][1] > g - 1: out.append("s_nop 7")
                out += pack_muls([x[0] for x in va[:last + 1]]) + ["s_nop 1"]; va = va[last + 1:]
            elif any(x.startswith("v_") and not x.startswith("v_mfma") for x in out[-2:]): out.append("s_nop 1")
        if pre and g in pre: out += pre[g]
        out.append(m)
        nv = nvmap.get(g, [])
        out += nv
        c = sum(slots(x) for x in nv)
        while va and va[0][1] <= g and c + slots(va[0][0]) <= 2:
            c += slots(va[0][0]); out.append(va.pop(0)[0])
    return out, va

def allreduce(op, a, b):
    return [f"v_mov_b32 {vr(b)}, {vr(a)}", "s_nop 1", f"v_permlane32_swap_b32 {vr(a)}, {vr(b)}", "s_nop 1", f"{op} {vr(a)}, {vr(a)}, {vr(b)}",
            f"v_mov_b32 {vr(b)}, {vr(a)}", "s_nop 1", f"v_permlane16_swap_b32 {vr(a)}, {vr(b)}", "s_nop 1", f"{op} {vr(a)}, {vr(a)}, {vr(b)}"]
def qmax(p, qb, d):
    regs = [Sreg(p, kb, qb) + j for kb in range(4) for j in range(4)]
    o = [f"v_max3_f32 {vr(d)}, {vr(regs[0])}, {vr(regs[1])}, {vr(regs[2])}"]
    for i in range(3, 15, 2): o.append(f"v_max3_f32 {vr(d)}, {vr(regs[i])}, {vr(regs[i+1])}, {vr(d)}")
    o.append(f"v_max_f32 {vr(d)}, {vr(regs[15])}, {vr(d)}")
    return o
def rare_a(p, label):
    out = [f"{label}:", "s_nop 7"]
    for qb in range(4):
        d = vT + qb
        out += qmax(p, qb, d) + allreduce("v_max_f32", d, vMX)
        out.append(f"v_max_f32 {vr(d)}, 0, {vr(d)}")
        for j in range(4): out.append(f"v_sub_f32 {vr(vNEG+4*qb+j)}, {vr(vNEG+4*qb+j)}, {vr(d)}")
        for kb in range(4):
            for j in range(4):
                r = Sreg(p, kb, qb) + j
                out.append(f"v_sub_f32 {vr(r)}, {vr(r)}, {vr(d)}")
        out.append(f"v_exp_f32 {vr(d)}, -{vr(d)}")
    out += ["s_nop 3", f"s_setpc_b64 {sr(sRET,2)}"]
    return out
def rare_b(label):
    out = [f"{label}:", "s_nop 15"]
    for qb in range(4):
        f_ = vT + qb
        for j in range(4): out.append(f"v_mul_f32 {vr(vL+4*qb+j)}, {vr(vL+4*qb+j)}, {vr(f_)}")
        for j in range(0, 32, 2):
            a0 = Oreg(qb, 0) + j
            out += [f"v_accvgpr_read_b32 {vr(vMX)}, {ar(a0)}", f"v_accvgpr_read_b32 {vr(vMX+1)}, {ar(a0+1)}",
                    f"v_mul_f32 {vr(vMX)}, {vr(vMX)}, {vr(f_)}", f"v_mul_f32 {vr(vMX+1)}, {vr(vMX+1)}, {vr(f_)}",
                    f"v_accvgpr_write_b32 {ar(a0)}, {vr(vMX)}", f"v_accvgpr_write_b32 {ar(a0+1)}, {vr(vMX+1)}"]
    out += ["s_nop 3", f"s_setpc_b64 {sr(sRET,2)}"]
    return out

def wfrag(st, s, dt): return (128 if st % 2 == 0 else 192) + 4 * (dt * 2 + s)
def xfrag(st, s, qb): return (96 if st % 2 == 0 else 32) + 4 * (qb * 2 + s)
def qacc(qb, dt): return Ureg(dt // 4, (dt // 2) % 2, qb) + 4 * (dt % 2)
def qp_reads(st):
    out = []
    for qb in range(4):
        for s in range(2):
            out.append(f"ds_read_b128 {vr(xfrag(st,s,qb),4)}, {vr(vXA + 2*(st%2) + s)} offset:{qb*2048} ; #x{st}_{qb}")
    for dt in range(8):
        for s in range(2):
            for t in range(2):
                if NOSWAP: out.append(f"ds_read_b64_tr_b16 {ar(wfrag(st,s,dt)+2*t,2)}, {vr(vWA + dt//2)} offset:{(st%3)*16384 + (32*s+4*t)*256 + 8*(dt%2)} ; #w{st}_{dt}")
                else: out.append(f"ds_read_b64_tr_b16 {ar(wfrag(st,s,dt)+2*t,2)}, {vr(vWA + dt)} offset:{(st%3)*16384 + (32*s+4*t)*256} ; #w{st}_{dt}")
    return out
def qp_dma(st):
    G = []
    wf = (" " + CFG["wqld"]) if CFG.get("wqld") else ""
    xf = (" " + CFG["xld"]) if CFG.get("xld") else ""
    if st == 0 and CFG.get("nt0"): wf = xf = " nt"
    for p in range(4):
        g = []
        if p == 0:
            g = [f"s_add_u32 {sr(sRX)}, {sr(sRQ)}, {st}", f"s_and_b32 {sr(sRX)}, {sr(sRX)}, 7", f"s_lshl_b32 {sr(sRW)}, {sr(sRX)}, 19",
                 f"s_lshl_b32 {sr(sRX)}, {sr(sRX)}, 7", m0_at(LWQ[st % 3])]
        g.append(f"s_add_u32 {sr(sDT)}, {sr(sRW)}, {p*(32768-1024)}")
        g.append(f"buffer_load_dwordx4 {vr(vDW + p//2)}, {sr(sWQ,4)}, {sr(sDT)} offen offset:{1024*p}{wf} lds ; #st{st}")
        G.append(g)
    for p in range(8):
        g = [f"s_add_u32 m0, {sr(sW8K)}, {LX[st%2] + (p//4)*4096}"] if p % 4 == 0 else []
        g.append(f"s_add_u32 {sr(sDT)}, {sr(sRX)}, {p*8192 - 1024*(p%4)}")
        g.append(f"buffer_load_dwordx4 {vr(vDX + p%2)}, {sr(sX,4)}, {sr(sDT)} offen offset:{1024*(p%4)}{xf} lds ; #st{st}")
        G.append(g)
    return G
def qp_one(st, dt, qb, s, first):
    d = qacc(qb, dt)
    return f"{MF} {vr(d,4)}, {ar(wfrag(st,s,dt),4)}, {vr(xfrag(st,s,qb),4)}, {'0' if first else vr(d, 4)}"
def qp_mfmas(st):
    return [qp_one(st, dt, qb, (i if qb % 2 == 0 else 1 - i), st == 0 and i == 0) for dt in range(8) for qb in range(4) for i in range(2)]
def qp_q(st, qb):
    return [qp_one(st, dt, qb, (i if dt % 2 == 0 else 1 - i), False) for dt in range(8) for i in range(2)]
def qconv(qb, s):
    d = qacc(qb, 2 * s); q = Qreg(qb, s)
    out = [f"v_mul_f32 {vr(d+j)}, {sr(sSC)}, {vr(d+j)}" for j in range(8)]
    out += [f"v_cvt_pk_bf16_f32 {vr(q+j)}, {vr(d+2*j)}, {vr(d+2*j+1)}" for j in (0, 2, 1, 3)]
    return out, [f"v_permlane32_swap_b32 {vr(q)}, {vr(q+2)}", f"v_permlane32_swap_b32 {vr(q+1)}, {vr(q+3)}"], \
                [f"v_permlane16_swap_b32 {vr(q)}, {vr(q+2)}", f"v_permlane16_swap_b32 {vr(q+1)}, {vr(q+3)}"]
def qconv_stream(qb):
    parts = [qconv(qb, s) for s in range(4)]
    if NOSWAP: return [(x, s) for s in range(4) for x in parts[s][0]]
    out = []
    for s in range(4):
        a = parts[s][0]
        if s == 0: out += [(x, s) for x in a]
        else: out += [(x, s) for x in a[:4]] + [(x, s) for x in parts[s-1][1]] + [(x, s) for x in a[4:8]] + [(x, s) for x in parts[s-1][2]] + [(x, s) for x in a[8:]]
    out += [("s_nop 1", 3)] + [(x, 3) for x in parts[3][1]] + [("s_nop 1", 3)] + [(x, 3) for x in parts[3][2]]
    return out

def setup_a():
    o = []; A = o.append
    A("s_cmp_ge_u32 s2, 256")
    A("s_cbranch_scc1 L_end")
    if CFG.get("fixdur"): A("s_memrealtime s[42:43]")
    A(f"s_load_dwordx16 {sr(sARG,16)}, s[0:1], 0")
    if CFG["codepf"]:
        A(f"s_getpc_b64 {sr(sT,2)}")
        A("L_pc:")
        A(f"s_bfe_u32 {sr(sT+2)}, s2, 0x30003")
        A(f"v_lshrrev_b32 {vr(u0)}, 6, v0"); A(f"v_and_b32 {vr(u1)}, 15, v0"); A(f"v_lshl_add_u32 {vr(u0)}, {vr(u0)}, 4, {vr(u1)}")
        A(f"v_lshlrev_b32 {vr(u0)}, 10, {vr(u0)}"); A(f"s_lshl_b32 {sr(sT+2)}, {sr(sT+2)}, 7"); A(f"v_add_u32 {vr(u0)}, {sr(sT+2)}, {vr(u0)}")
        A(f"v_min_u32 {vr(u0)}, L_end-L_pc, {vr(u0)}")
        A(f"global_load_dword {vr(vDUM[0])}, {vr(u0)}, {sr(sT,2)} ; #pf")
        if CFG.get("repf", False):
            A(f"s_mov_b64 {sr(sPF,2)}, {sr(sT,2)}"); A(f"s_add_u32 {sr(sPF+2)}, {sr(sT+2)}, L_cw_back-L_pc")
    A(f"s_and_b32 {sr(sCB)}, s2, 7")
    A(f"s_lshr_b32 {sr(sT+3)}, s2, 3")
    A(f"s_and_b32 {sr(sMT)}, {sr(sT+3)}, 3"); A(f"s_lshr_b32 {sr(sNT)}, {sr(sT+3)}, 2")
    if CFG.get("pmap", "4x8") == "4x8":
        A(f"s_and_b32 {sr(sB)}, {sr(sCB)}, 1"); A(f"s_lshl_b32 {sr(sB)}, {sr(sB)}, 2"); A(f"s_add_u32 {sr(sB)}, {sr(sB)}, {sr(sMT)}")
        A(f"s_lshr_b32 {sr(sH)}, {sr(sCB)}, 1"); A(f"s_lshl_b32 {sr(sH)}, {sr(sH)}, 3"); A(f"s_add_u32 {sr(sH)}, {sr(sH)}, {sr(sNT)}")
    else:
        A(f"s_mov_b32 {sr(sB)}, {sr(sCB)}"); A(f"s_mov_b32 {sr(sH)}, {sr(sT+3)}")
    rq = CFG.get("rq", "x")
    if rq == "n": A(f"s_mov_b32 {sr(sRQ)}, 0")
    elif rq == "x": A(f"s_mov_b32 {sr(sRQ)}, {sr(sCB)}")
    elif rq == "h": A(f"s_mov_b32 {sr(sRQ)}, {sr(sH)}")
    elif rq == "f": A(f"s_lshl_b32 {sr(sRQ)}, {sr(sB)}, 1"); A(f"s_add_u32 {sr(sRQ)}, {sr(sRQ)}, {sr(sH)}")
    elif rq == "g": A(f"s_add_u32 {sr(sRQ)}, {sr(sB)}, {sr(sH)}")
    A(f"v_lshrrev_b32 {vr(u0)}, 6, v0")
    A(f"v_and_b32 {vr(ln)}, 63, v0")
    A(f"v_readfirstlane_b32 {sr(sWAVE)}, {vr(u0)}")
    A(f"v_lshrrev_b32 {vr(u1)}, 4, {vr(ln)}")
    A(f"v_and_b32 {vr(u2)}, 15, {vr(ln)}")
    A(f"v_lshl_add_u32 {vr(u4)}, {vr(u0)}, 4, {vr(u1)}")
    A(f"v_lshlrev_b32 {vr(u3)}, 1, {vr(u1)}")
    A(f"v_xor_b32 {vr(u3)}, {vr(u3)}, {vr(u2)}")
    A(f"v_lshlrev_b32 {vr(u5)}, 4, {vr(u3)}")
    A(f"v_lshl_add_u32 {vr(vDW)}, {vr(u4)}, 13, {vr(u5)}")
    A(f"v_xor_b32 {vr(vDW+1)}, 0x80, {vr(vDW)}")
    if NOSWAP:
        A(f"v_lshlrev_b32 {vr(u3)}, 2, {vr(u1)}"); A(f"v_xor_b32 {vr(u3)}, {vr(u3)}, {vr(u2)}"); A(f"v_lshlrev_b32 {vr(u3)}, 4, {vr(u3)}")
        A(f"v_lshl_add_u32 {vr(vDW)}, {vr(u4)}, 13, {vr(u3)}"); A(f"v_mov_b32 {vr(vDW+1)}, {vr(vDW)}")
    A(f"v_lshrrev_b32 {vr(u3)}, 3, {vr(ln)}")
    A(f"v_lshl_add_u32 {vr(u0)}, {vr(u0)}, 6, {vr(u3)}")
    A(f"v_and_b32 {vr(u3)}, 7, {vr(ln)}")
    A(f"v_xor_b32 {vr(u3)}, {vr(u1)}, {vr(u3)}")
    A(f"v_lshlrev_b32 {vr(u3)}, 4, {vr(u3)}")
    A(f"v_lshl_add_u32 {vr(vDX)}, {vr(u0)}, 10, {vr(u3)}")
    A(f"v_xor_b32 {vr(vDX+1)}, 64, {vr(vDX)}")
    A(f"s_lshl_b32 {sr(sW4K)}, {sr(sWAVE)}, 12")
    A(f"s_lshl_b32 {sr(sW8K)}, {sr(sWAVE)}, 13")
    A(f"s_lshl_b32 {sr(sT)}, {sr(sB)}, 18")
    A(f"s_lshl_b32 {sr(sT+1)}, {sr(sH)}, 8")
    A("s_waitcnt lgkmcnt(0)")
    o += stamp()
    o += srd_at(sWQ, 6, sr(sT+1), 511*8192 + 256)
    o += srd_at(sX, 0, sr(sT), 0x40000)
    return o

def wo_piece_addr():
    return [f"v_lshrrev_b32 {vr(u0)}, 5, v0", f"v_and_b32 {vr(u1)}, 0x1e, {vr(u0)}", f"v_and_b32 {vr(u0)}, 1, {vr(u0)}",
            f"v_lshl_add_u32 {vr(u0)}, {vr(u1)}, 2, {vr(u0)}",
            f"v_and_b32 {vr(u1)}, 31, v0", f"v_lshlrev_b32 {vr(u1)}, 4, {vr(u1)}", f"v_lshl_add_u32 {vr(vWOF)}, {vr(u0)}, 10, {vr(u1)}"]
def wo_piece_dma():
    o = [m0_at(LWO)]
    for p in range(4):
        o.append(f"s_mov_b32 {sr(sDT)}, {1024*p}")
        o.append(f"buffer_load_dwordx4 {vr(vWOF)}, {sr(sWO2,4)}, {sr(sDT)} offen offset:{1024*p} nt lds ; #wo")
    return o

def warm_loads(nst):
    o = []; A = o.append
    A(f"v_lshrrev_b32 {vr(u3)}, 6, v0"); A(f"v_and_b32 {vr(u2)}, 15, v0"); A(f"v_lshl_add_u32 {vr(u3)}, {vr(u3)}, 4, {vr(u2)}")
    A(f"v_and_b32 {vr(u1)}, {nst - 1}, {vr(u3)}"); A(f"v_add_u32 {vr(u1)}, {sr(sRQ)}, {vr(u1)}"); A(f"v_add_u32 {vr(u1)}, 1, {vr(u1)}")
    A(f"v_and_b32 {vr(u1)}, 7, {vr(u1)}")
    A(f"v_lshrrev_b32 {vr(u2)}, 1, {vr(u3)}")
    A(f"v_lshlrev_b32 {vr(u0)}, 7, {vr(u1)}"); A(f"v_lshl_add_u32 {vr(u0)}, {vr(u2)}, 10, {vr(u0)}")
    A(f"s_and_b32 {sr(sT)}, {sr(sH)}, 7"); A(f"s_lshl_b32 {sr(sT)}, {sr(sT)}, 15")
    A(f"buffer_load_dword {vr(vDUM[1])}, {vr(u0)}, {sr(sX,4)}, {sr(sT)} offen ; #warm")
    A(f"v_lshlrev_b32 {vr(u0)}, 19, {vr(u1)}")
    A(f"v_lshrrev_b32 {vr(u3)}, 1, {vr(u2)}"); A(f"v_lshl_add_u32 {vr(u0)}, {vr(u3)}, 13, {vr(u0)}")
    A(f"v_and_b32 {vr(u3)}, 1, {vr(u2)}"); A(f"v_lshl_add_u32 {vr(u0)}, {vr(u3)}, 7, {vr(u0)}")
    A(f"s_and_b32 {sr(sT)}, {sr(sB)}, 3"); A(f"s_lshl_b32 {sr(sT)}, {sr(sT)}, 17")
    A(f"buffer_load_dword {vr(vDUM[2])}, {vr(u0)}, {sr(sWQ,4)}, {sr(sT)} offen ; #warm")
    return o

def setup_b():
    o = []; A = o.append
    A(f"s_lshl_b32 {sr(sT+2)}, {sr(sB)}, 5"); A(f"s_add_u32 {sr(sT+2)}, {sr(sT+2)}, {sr(sH)}")
    A(f"s_lshl_b32 {sr(sT)}, {sr(sT+2)}, 18")
    o += srd_at(sK, 2, sr(sT), 0x40000)
    o += srd_at(sV, 4, sr(sT), 0x40000)
    A(f"s_lshl_b32 {sr(sT+1)}, {sr(sT+2)}, 7"); A(f"s_add_u32 {sr(sT+1)}, {sr(sT+1)}, {FLAG_OFF}")
    o += srd_at(sFL, 14, sr(sT+1), 32)

    o += srd_at(sDB, 12, "0", 256)
    A(f"s_and_b32 {sr(sT+1)}, {sr(sT+2)}, 3"); A(f"s_lshl_b32 {sr(sT+1)}, {sr(sT+1)}, 6")
    o += srd_at(sDBW, 12, sr(sT+1), 4)
    A(f"s_lshr_b32 {sr(sT)}, {sr(sT+2)}, 1"); A(f"s_and_b32 {sr(sT+2)}, {sr(sT+2)}, 1")
    A(f"s_lshl_b32 {sr(sT+1)}, {sr(sT)}, 15"); A(f"s_lshl_b32 {sr(sT+3)}, {sr(sT+2)}, 9"); A(f"s_add_u32 {sr(sT+1)}, {sr(sT+1)}, {sr(sT+3)}")
    o += srd_at(sWO2, 8, sr(sT+1), 31*1024 + 512)
    A(f"s_lshl_b32 {sr(sT+2)}, {sr(sT+2)}, 2"); A(f"s_add_u32 {sr(sT+2)}, {sr(sT+2)}, {sr(sWAVE)}"); A(f"s_lshl_b32 {sr(sT+2)}, {sr(sT+2)}, 19")
    A(f"s_lshl_b32 {sr(sT)}, {sr(sT)}, 11"); A(f"s_add_u32 {sr(sT)}, {sr(sT)}, {sr(sT+2)}"); A(f"s_add_u32 {sr(sT)}, {sr(sT)}, {WOF_OFF}")
    o += srd_at(sWS2, 14, sr(sT), 262144 + 2048)
    A(f"s_lshl_b32 {sr(sT)}, {sr(sB)}, 2"); A(f"s_add_u32 {sr(sT)}, {sr(sT)}, {sr(sWAVE)}"); A(f"s_lshl_b32 {sr(sT)}, {sr(sT)}, 19")
    A(f"s_lshl_b32 {sr(sT+1)}, {sr(sH)}, 13"); A(f"s_add_u32 {sr(sT)}, {sr(sT)}, {sr(sT+1)}")
    o += srd_at(sO, 14, sr(sT), 262144 + 8192)
    if CFG.get("fewst"):
        A(f"s_cmp_eq_u32 {sr(sMT)}, 0"); A(f"s_cselect_b32 {sr(sO+2)}, {sr(sO+2)}, 0")
    rot = CFG.get("rot", "j")
    if rot == "j": A(f"s_lshr_b32 {sr(sROT)}, s2, 3"); A(f"s_add_u32 {sr(sROT)}, {sr(sROT)}, s2"); A(f"s_and_b32 {sr(sROT)}, {sr(sROT)}, 15"); A(f"s_lshl_b32 {sr(sROT)}, {sr(sROT)}, 14")
    else: A(f"s_mov_b32 {sr(sROT)}, 0")
    if CFG.get("itst"): A("s_mov_b32 s42, 0"); A("s_mov_b32 s43, 0x100")
    A(f"s_mov_b32 {sr(sTHR)}, 0x41000000")
    c = math.log2(math.e) / math.sqrt(128.0)
    A(f"s_mov_b32 {sr(sSC)}, 0x{struct.unpack('<I', struct.pack('<f', c))[0]:08x}")
    A(f"v_lshl_add_u32 {vr(vDV)}, {vr(u4)}, 8, {vr(u5)}")
    A(f"v_xor_b32 {vr(vDV+1)}, 0x80, {vr(vDV)}")
    g_, c16 = u1, u2
    A(f"v_lshrrev_b32 {vr(g_)}, 4, {vr(ln)}")
    A(f"v_and_b32 {vr(c16)}, 15, {vr(ln)}")
    A(f"v_xor_b32 {vr(u3)}, {vr(g_)}, {vr(c16)}")
    A(f"v_lshlrev_b32 {vr(u3)}, 4, {vr(u3)}")
    A(f"v_lshl_add_u32 {vr(vDK)}, {vr(u4)}, 8, {vr(u3)}")
    for p in range(1, 4): A(f"v_xor_b32 {vr(vDK+p)}, {64*p}, {vr(vDK)}")
    if CONT:
        A(f"s_lshl_b32 {sr(sW1K)}, {sr(sWAVE)}, 10")
        A(f"v_lshrrev_b32 {vr(vDK+1)}, 4, v0")
        A(f"v_xor_b32 {vr(vDK+2)}, {vr(vDK+1)}, {vr(c16)}"); A(f"v_lshlrev_b32 {vr(vDK+2)}, 4, {vr(vDK+2)}")
        A(f"v_lshl_add_u32 {vr(vDK)}, {vr(vDK+1)}, 8, {vr(vDK+2)}")
        A(f"v_and_b32 {vr(vDK+2)}, 7, {vr(vDK+1)}"); A(f"v_lshlrev_b32 {vr(vDK+2)}, 1, {vr(vDK+2)}")
        A(f"v_xor_b32 {vr(vDK+2)}, {vr(vDK+2)}, {vr(c16)}"); A(f"v_lshlrev_b32 {vr(vDK+2)}, 4, {vr(vDK+2)}")
        A(f"v_lshl_add_u32 {vr(vDV)}, {vr(vDK+1)}, 8, {vr(vDK+2)}")
    A(f"v_lshl_add_u32 {vr(vKA)}, {vr(c16)}, 8, {vr(u3)}")
    for s in range(1, 4): A(f"v_xor_b32 {vr(vKA+s)}, {64*s}, {vr(vKA)}")
    A(f"v_lshrrev_b32 {vr(u3)}, 1, {vr(c16)}")
    A(f"v_xor_b32 {vr(u3)}, {vr(g_)}, {vr(u3)}")
    A(f"v_lshlrev_b32 {vr(u3)}, 4, {vr(u3)}")
    A(f"v_lshl_add_u32 {vr(u3)}, {vr(c16)}, 7, {vr(u3)}")
    A(f"v_add_u32 {vr(u3)}, {sr(sW8K)}, {vr(u3)}")
    for sl in range(2):
        A(f"v_add_u32 {vr(vXA+2*sl)}, {LX[sl]}, {vr(u3)}")
        A(f"v_xor_b32 {vr(vXA+2*sl+1)}, 64, {vr(vXA+2*sl)}")
    A(f"v_cmp_eq_u32 vcc, 0, {vr(c16)}")
    A(f"v_mov_b32 {vr(u3)}, 0x3f803f80")
    r_, f_, c8 = u0, u4, u5
    A(f"v_bfe_u32 {vr(r_)}, {vr(ln)}, 2, 2")
    for j in range(4): A(f"v_cndmask_b32 {vr(vONES+j)}, 0, {vr(u3)}, vcc")
    A(f"v_bfe_u32 {vr(f_)}, {vr(ln)}, 2, 3")
    A(f"v_and_b32 {vr(c8)}, 3, {vr(ln)}")
    A(f"v_lshlrev_b32 {vr(c8)}, 3, {vr(c8)}")
    A(f"v_lshrrev_b32 {vr(u3)}, 2, {vr(ln)}")
    A(f"v_lshlrev_b32 {vr(vWOA)}, 9, {vr(u3)}")
    A(f"v_lshl_add_u32 {vr(vWOA)}, {vr(c8)}, 1, {vr(vWOA)}")
    A(f"s_lshl_b32 {sr(sT)}, {sr(sWAVE)}, 7"); A(f"s_add_u32 {sr(sT)}, {sr(sT)}, {LWO}")
    A(f"v_add_u32 {vr(vWOA)}, {sr(sT)}, {vr(vWOA)}")
    A(f"v_lshl_add_u32 {vr(c8)}, {vr(f_)}, 5, {vr(c8)}")
    A(f"v_lshl_add_u32 {vr(u3)}, {vr(u3)}, 8, {vr(c8)}")
    A(f"v_add_u32 {vr(vVA)}, {LV}, {vr(u3)}")
    for dt in range(1, 8): A(f"v_xor_b32 {vr(vVA+dt)}, {32*dt}, {vr(vVA)}")
    A(f"v_lshl_add_u32 {vr(u3)}, {vr(g_)}, 3, {vr(r_)}")
    A(f"v_lshl_add_u32 {vr(u3)}, {vr(u3)}, 8, {vr(c8)}")
    if NOSWAP:
        A(f"v_and_b32 {vr(u3)}, 0xff00, {vr(u3)}"); A(f"v_lshl_add_u32 {vr(u3)}, {vr(r_)}, 6, {vr(u3)}")
        A(f"v_and_b32 {vr(c8)}, 3, {vr(ln)}"); A(f"v_lshl_add_u32 {vr(u3)}, {vr(c8)}, 4, {vr(u3)}")
        A(f"v_add_u32 {vr(vWA)}, {LWQ[0]}, {vr(u3)}")
        for k in range(1, 4): A(f"v_xor_b32 {vr(vWA+k)}, {64*k}, {vr(vWA)}")
    else:
        A(f"v_add_u32 {vr(vWA)}, {LWQ[0]}, {vr(u3)}")
        for dt in range(1, 8): A(f"v_xor_b32 {vr(vWA+dt)}, {32*dt}, {vr(vWA)}")
    A(f"v_lshlrev_b32 {vr(vWOS)}, 4, {vr(ln)}")
    A(f"v_add_u32 {vr(vLIN)}, {sr(sW4K)}, {vr(vWOS)}")
    o += wo_piece_addr()
    o += phase_c_early()
    return o

def wo_reads():
    return [f"ds_read_b64_tr_b16 {ar(192+4*i+2*tt,2)}, {vr(vWOA)} offset:{(i//2)*64 + (i%2)*8 + tt*8192} ; #wo" for i in range(4) for tt in range(2)]
def wo_stores():
    return [[f"s_mov_b32 {sr(sT)}, {(i//2)*262144}", f"buffer_store_dwordx4 {ar(192+4*i,4)}, {vr(vWOS)}, {sr(sWS2,4)}, {sr(sT)} offen offset:{(i%2)*1024} sc1 ; #wst"] for i in range(4)]

def pairs(lst): return [lst[i:i+2] for i in range(0, len(lst), 2)]
def prologue():
    qs = stamp if CFG["qst"] else (lambda: [])
    o = setup_a()
    nw = int(CFG.get("nwarm", 2))
    if CFG.get("warmfirst"): o += warm_loads(nw)
    o += flat(qp_dma(0))
    if not CFG.get("warmfirst"): o += (warm_loads(nw) if nw else [])
    o += qs()
    o += setup_b()
    pt = CFG.get("pt", "")
    def pretouch(j, kind):
        if kind == "st": return [f"s_mov_b32 {sr(sDT)}, {j * 262144}", f"buffer_store_dword {vr(vWOF+1)}, {vr(vWOF+1)}, {sr(sO,4)}, {sr(sDT)} offen sc1 ; #pt"]
        if kind == "at": return [f"s_mov_b32 {sr(sDT)}, {j * 262144}", f"buffer_atomic_or {vr(vWOF+1)}, {vr(vWOF+1)}, {sr(sO,4)}, {sr(sDT)} offen sc1 ; #pt"]
        return [f"s_mov_b32 {sr(sDT)}, {j * 262144}", f"buffer_load_dword {vr(vWOF+2+j)}, {vr(vWOF+1)}, {sr(sO,4)}, {sr(sDT)} offen sc1 ; #pt"]
    if pt: o += [f"v_lshlrev_b32 {vr(vWOF+1)}, 3, {vr(vWOS)}"]
    if pt and pt[2:] == "0": o += pretouch(0, pt[:2]) + pretouch(1, pt[:2])
    prek = [x for x in CFG.get("prek", "").split(",") if x]
    for n in prek: o += (wo_piece_dma() if n == "wo" else kv_batch(n[0], int(n[1:])))
    if CFG.get("kvtlb"):
        o += [f"buffer_load_dword {ar(0)}, off, {sr(sK,4)}, 0 nt ; #tl", f"buffer_load_dword {ar(1)}, off, {sr(sV,4)}, 0 nt ; #tl"]
    o += qs()
    o += ["@wait st0", "s_barrier"] + stamp()
    kv = lambda *l: groups_of(sum([kv_batch(x[0], int(x[1:])) for x in l], []))
    bg = [int(x) for x in CFG.get("bg", "38,38,38,38,30,10,-14").split(",")]
    step = float(CFG.get("qstep", 4))
    B = [64 * s + bg[s] for s in range(7)]
    seq = [(st, dt, qb) for st in range(6) for dt in range(8) for qb in range(4) for i in range(2)]
    mf = sum([qp_mfmas(st) for st in range(6)], [])
    for st, qb in ((6, 0), (6, 1), (7, 0), (7, 1), (6, 2), (6, 3), (7, 2), (7, 3)):
        mf += qp_q(st, qb); seq += [(st, dt, qb) for dt in range(8) for i in range(2)]
    Q0 = len(mf)
    mf += [qk_one(0, kb, qb, (i if kb % 2 == 0 else 3 - i), i == 0, czero=True) for qb in range(4) for kb in range(4) for i in range(4)]
    first = {}; last = {}
    for g, (st, dt, qb) in enumerate(seq):
        for t in (f"x{st}_{qb}", f"w{st}_{dt}"):
            first.setdefault(t, g); last[t] = g
    xt = lambda k: ",".join(f"x{k}_{q}" for q in range(4))
    wt = lambda k: ",".join(f"w{k}_{d}" for d in range(8))
    nvm = {}; pre = {}; vm = {}
    def put_vm(g, grp):
        while g in vm or g in B: g += 1
        vm[g] = grp; return g
    npre = int(CFG.get("npre", 16)); nd1 = int(CFG.get("nd1", 6))
    r0 = qp_reads(0); d1 = qp_dma(1)
    o += r0[:npre] + flat(d1[:nd1])
    pos = -2
    for grp in d1[nd1:]: pos += 3; put_vm(int(pos), grp)
    XW = int(CFG.get("xw", 18))
    ekp = [x for x in CFG.get("ekp", "").split(",") if x]
    ek = dict(x.split(":") for x in CFG.get("ek", "5:K0").split(",") if x)
    for k in range(2, 8):
        for i, grp in enumerate(qp_dma(k)):
            e = 0 if k == 2 else (B[k-3] + 1 if i < 4 else B[k-3] + XW)
            if k == 7 and i >= 4: e = max(e, 0)
            pos = max(pos + step, e)
            if i == 4: grp = [f"@wait - lds={xt(k-2)}"] + grp
            put_vm(int(pos), grp)
        for n in ekp:
            j = k - int(CFG.get("ekp0", 3))
            if 0 <= j < 4:
                G_ = groups_of(wo_piece_dma()) if n == "wo" else kv(n)
                head = G_[0][:-1] if n != "wo" else G_[0][:1]
                grp = head + (G_[j] if (j or n == "wo") else G_[0][-1:]) if not (n == "wo" and j == 0) else G_[0]
                pos += 4; put_vm(int(pos), grp)
        if pt and pt[2:] != "0" and k - int(pt[2:]) in (0, 2):
            pos += 3; put_vm(int(pos), pretouch((k - int(pt[2:])) // 2, pt[:2]))
        if str(k) in ek:
            for grp in (groups_of(wo_piece_dma()) if ek[str(k)] == "wo" else kv(ek[str(k)])):
                pos += 3; put_vm(int(pos), grp)
    kstep = float(CFG.get("kstep", 9))
    LATEWO = CFG.get("latewo", False)
    BK, BQ = 384 + int(CFG.get("bk", 94)), Q0 + int(CFG.get("bq", 56))
    sched = [("K0", 0), ("wo", 0), ("K1", 0), ("V0", B[5] + 1), ("K2", BK + 1), ("V1", BK + 1)]
    if LATEWO: sched = [("K0", 0), ("K1", 0), ("V0", B[5] + 1), ("wo", 0), ("K2", BK + 1), ("V1", BK + 1)]
    for n, e in sched:
        if n in ek.values() or n in prek or n in ekp: continue
        for grp in (groups_of(wo_piece_dma()) if n == "wo" else kv(n)):
            pos = max(pos + (3 if n == "K0" and LATEWO else (float(CFG.get("kstep2", kstep)) if n in ("K2", "V1") else kstep)), e)
            put_vm(int(pos), grp)
    assert pos < Q0 + 64, pos
    if CFG["verbose"]: print("vm gaps:", sorted(vm))
    items = [(0, x) for x in r0[npre:]]
    for st in range(1, 8): items += [(st, x) for x in qp_reads(st)]
    R = []
    for st, x in items:
        t = x.split("#")[1]
        e = 0 if st == 0 else B[st-1] + 1
        if st >= 2: e = max(e, last[t[0] + str(st - 2) + t[2:]])
        d = first[t] - LAT
        if st < 7: d = min(d, B[st] - 8)
        if t[0] == "x" and 1 <= st <= 5: d = min(d, B[st-1] + XW - 7)
        R.append([e, max(d, e), x])
    R.sort(key=lambda r: (r[1], r[0]))
    rstep = float(CFG.get("rstep", 1.3)); nxt = 0
    for g in range(Q0):
        if g in vm or g in B: continue
        k = 0
        while k < 2:
            c = [r for r in R if r[0] <= g]
            if not c: break
            urgent = any(r[1] - g < i * 1.3 + 1 for i, r in enumerate(c))
            if not urgent and (k == 1 or g < nxt): break
            nvm.setdefault(g, []).append(c[0][2]); R.remove(c[0]); k += 1; nxt = g + rstep
    assert not R, R[:3]
    for t, g in first.items():
        (nvm.setdefault(g - 1, []) if g else o).insert(0 if g else len(o), f"@wait - lds={t}")
    for s in range(7):
        pre.setdefault(B[s], []).append(f"@wait st{s+1} lds={xt(s)},{wt(s)}")
        nvm.setdefault(B[s], []).append("s_barrier")
        if CFG["qst"]: pre[64 * s] = qs() + pre.get(64 * s, [])
    w0 = BQ if LATEWO else Q0
    nvm = merge(nvm, spread(pairs(wo_reads()), [g for g in range(w0 + 1, min(w0 + 12, Q0 + 64)) if g not in vm]))
    pre.setdefault(BK, []).append("@wait K0" if LATEWO else "@wait K0,wo"); nvm.setdefault(BK, []).append("s_barrier")
    nvm = merge(nvm, spread(pairs([rd_k(0, n) for n in range(16)]), [g for g in range(max(384 + 96, BK + 1), 384 + 122) if g not in vm]))
    pre.setdefault(Q0, []).append("@wait - lgkm=0"); pre[Q0] = stamp() + pre[Q0]
    pre.setdefault(BQ, []).append("@wait K1,V0,wo" if LATEWO else "@wait K1,V0 lds=wo"); nvm.setdefault(BQ, []).append("s_barrier")
    nvm = merge(nvm, {Q0 + 57: [f"s_add_u32 {sr(sTILE)}, {sr(sROT)}, {(DIST-1)*16384}"], Q0 + 58: [f"s_and_b32 {sr(sTILE)}, {sr(sTILE)}, 0x3ffff"],
                      Q0 + 59: [f"s_add_u32 {sr(sTK)}, {sr(sROT)}, {DIST*16384}"], Q0 + 60: [f"s_and_b32 {sr(sTK)}, {sr(sTK)}, 0x3ffff"],
                      Q0 + 61: [f"s_mov_b32 {sr(sCNT)}, 0"]})
    for g in sorted(vm):
        grp = vm[g]; sca = grp[:-1]
        prevv = max([x for x in vm if x < g], default=-1)
        gg = g
        for x in reversed(sca):
            nvm.setdefault(gg, []).insert(0, x)
            if gg - 1 > prevv and gg > 0: gg -= 1
        nvm.setdefault(g, []).append(grp[-1])
    va = [(f"v_accvgpr_write_b32 {ar(r)}, 0", 0, "z") for r in list(range(2, 128)) + [0, 1]]
    done = {0: 384 + 32, 1: 384 + 48, 2: 384 + 96, 3: 384 + 112}
    for qb in range(4):
        va += [(t, done[qb] + 4 * s + 3 + 3, f"q{qb}") for t, s in qconv_stream(qb)]
    va += [(f"v_mov_b32 {vr(vL+j)}, 0", Q0, "z") for j in range(16)]
    def initq(qb):
        n = vNEG + 4 * qb
        l = qmax(0, qb, n)
        for sw in ("v_permlane32_swap_b32", "v_permlane16_swap_b32"):
            l += [f"v_mov_b32 {vr(n+1)}, {vr(n)}", "s_nop 1", f"{sw} {vr(n)}, {vr(n+1)}", f"v_max_f32 {vr(n)}, {vr(n)}, {vr(n+1)}"]
        l += [f"v_sub_f32 {vr(n+j)}, 0, {vr(n)}" for j in (3, 2, 1, 0)]
        for ks in range(2):
            r = Ureg(0, ks, qb)
            l += [f"v_add_f32 {vr(r+j)}, {vr(r+j)}, {vr(n + j % 2)}" for j in range(8)]
        return l
    for qb in range(4): va += [(t, Q0 + 16 * qb + 15 + 3, "i") for t in initq(qb)]
    part, left = weave(mf, nvm, va, pre=pre, need={Q0 + 16 * q: f"q{q}" for q in range(4)})
    for k in range(1, 6):
        assert max(i for i, x in enumerate(part) if f"#x{k}_" in x) < part.index(f"@wait - lds={xt(k)}"), k
    for k in range(0, 6):
        assert max(i for i, x in enumerate(part) if f"#w{k}_" in x) < part.index(f"@wait st{k+1} lds={xt(k)},{wt(k)}"), k
    o += part
    o += qs()
    o += [rd_k(1, n) for n in EARLY_K]
    o += [f"v_mov_b32 {vr(vT+j)}, 0" for j in range(4)]
    o.append(f"buffer_store_dwordx4 {vr(vT,4)}, {vr(vLIN)}, {sr(sFL,4)}, 0 offen sc1 ; #wst")
    if CFG["verbose"]: print("QK0 leftover VALU:", len(left))
    ini = []
    lf_ = [t for t, _, _ in left]
    i = 0
    while i < len(lf_):
        m1 = re.match(r"v_add_f32 v(\d+), v\d+, v(\d+)", lf_[i])
        if m1 and int(m1.group(1)) % 2 == 0 and i + 1 < len(lf_) and lf_[i+1].startswith(f"v_add_f32 v{int(m1.group(1))+1},"):
            r = int(m1.group(1)); ini.append(f"v_pk_add_f32 {vr(r,2)}, {vr(r,2)}, {vr(int(m1.group(2)),2)}"); i += 2
        else: ini.append(lf_[i]); i += 1
    ex_ = [exp_i(0, it[1]) for it in E_FIRST if it[0] == "exp"]; cv_ = [cvt_i(0, it[1]) for it in E_FIRST if it[0] == "cvt"]
    ini += ex_ + cv_
    G = wo_stores() + (kv("K3", "V2") if DIST == 4 else [])
    G[0] = ["@wait - lds=wo"] + G[0]
    for i, g in enumerate(G):
        k = (i + 1) * len(ini) // (len(G) + 1)
        ini = ini[:k] + g + ini[k:]
    o += ini
    if CFG.get("nomax"): o.append("s_mov_b64 vcc, 0")
    o.append("@wait - lds=k0,k1,k2,k3")
    o += stamp()
    qd = CFG.get("qdiag", "")
    if "x" in qd: o = [x for x in o if not (re.search(r"#st[2-7]", x) and f"{sr(sX,4)}" in x)]
    if "r" in qd: o = [x for x in o if not re.search(r"#x[2-7]_", x)]
    if "w" in qd: o = [x for x in o if not (re.search(r"#st[2-7]", x) and f"{sr(sWQ,4)}" in x)]
    if "v" in qd: o = [x for x in o if not re.search(r"#w[2-7]_", x)]
    o, fifo, lf = resolve(o, [])
    return o, fifo, lf

sOFS = [64, 65, 3, 31, 98]
def phase_c_early():
    o = []; A = o.append
    t0, t1, t2 = sT, sT + 1, sT + 2
    A(f"s_lshr_b32 {sr(sHO)}, {sr(sH)}, 3")
    if CFG.get("hord", "m") == "c":
        A(f"s_and_b32 {sr(t0)}, {sr(sB)}, 3"); A(f"s_lshl_b32 {sr(t0)}, {sr(t0)}, 1"); A(f"s_and_b32 {sr(t1)}, {sr(sH)}, 1"); A(f"s_add_u32 {sr(t0)}, {sr(t0)}, {sr(t1)}")
        A(f"s_sub_u32 {sr(t1)}, {sr(sH)}, {sr(t0)}"); A(f"s_and_b32 {sr(t1)}, {sr(t1)}, 7"); A(f"s_lshl_b32 {sr(t0)}, {sr(t0)}, 13")
        A(f"s_and_b32 {sr(sHP)}, {sr(sH)}, 7"); A(f"s_lshl_b32 {sr(sHP)}, {sr(sHP)}, 13")
        for p in range(1, 8):
            A(f"s_cmp_gt_u32 {sr(t1)}, {p-1}"); A(f"s_cselect_b32 {sr(sHP+p)}, {p-1}, {p}")
            A(f"s_lshl_b32 {sr(sHP+p)}, {sr(sHP+p)}, 13"); A(f"s_add_u32 {sr(sHP+p)}, {sr(sHP+p)}, {sr(t0)}"); A(f"s_and_b32 {sr(sHP+p)}, {sr(sHP+p)}, 0xffff")
    else:
        A(f"s_and_b32 {sr(t0)}, {sr(sB)}, 3"); A(f"s_lshl_b32 {sr(t0)}, {sr(t0)}, 14"); A(f"s_add_u32 {sr(t0)}, {sr(t0)}, 8192")
        A(f"s_and_b32 {sr(sHP)}, {sr(sH)}, 7"); A(f"s_lshl_b32 {sr(sHP)}, {sr(sHP)}, 13")
        for p in range(1, 8):
            A(f"s_add_u32 {sr(sHP+p)}, {sr(sHP+p-1)}, {sr(t0)}"); A(f"s_and_b32 {sr(sHP+p)}, {sr(sHP+p)}, 0xffff")
    A(f"s_lshl_b32 {sr(sW2K)}, {sr(sWAVE)}, 11")
    A(f"s_and_b32 {sr(t0)}, {sr(sH)}, 6"); A(f"s_lshl_b32 {sr(t0)}, {sr(t0)}, 1"); A(f"s_add_u32 {sr(t0)}, {sr(t0)}, {sr(sWAVE)}")
    A(f"s_lshl_b32 {sr(t0)}, {sr(t0)}, 18"); A(f"s_lshl_b32 {sr(t2)}, {sr(sHO)}, 16"); A(f"s_add_u32 {sr(t0)}, {sr(t0)}, {sr(t2)}")
    A(f"s_add_u32 {sr(t0)}, {sr(t0)}, {WOF_OFF}"); A(f"s_sub_u32 {sr(t0)}, {sr(t0)}, {sr(sW4K)}")
    A(f"s_mov_b32 {sr(sOFS[0])}, {sr(t0)}")
    A(f"s_and_b32 {sr(t0)}, {sr(sH)}, 1"); A(f"s_lshl_b32 {sr(t1)}, {sr(sB)}, 1"); A(f"s_add_u32 {sr(t0)}, {sr(t0)}, {sr(t1)}")
    A(f"s_lshl_b32 {sr(t1)}, {sr(t0)}, 20"); A(f"s_add_u32 {sr(t1)}, {sr(t1)}, {sr(t2)}")
    A(f"s_mov_b32 {sr(sOFS[1])}, {sr(t1)}")
    A(f"s_lshl_b32 {sr(t0)}, {sr(t0)}, 17"); A(f"s_lshl_b32 {sr(t1)}, {sr(sHO)}, 15"); A(f"s_add_u32 {sr(t0)}, {sr(t0)}, {sr(t1)}")
    A(f"s_and_b32 {sr(t1)}, {sr(sH)}, 6"); A(f"s_lshl_b32 {sr(t1)}, {sr(t1)}, 7"); A(f"s_add_u32 {sr(t0)}, {sr(t0)}, {sr(t1)}")
    o += srd_at(sOUT, 10, sr(t0), 31 * 1024 + 256)
    A(f"s_lshl_b32 {sr(t0)}, {sr(sB)}, 12"); A(f"s_lshl_b32 {sr(t1)}, {sr(sHO)}, 10"); A(f"s_add_u32 {sr(t0)}, {sr(t0)}, {sr(t1)}")
    A(f"s_add_u32 {sr(t0)}, {sr(t0)}, {FLAG_OFF}")
    o += srd_at(sFLR, 14, sr(t0), 4)
    A(f"s_and_b32 {sr(t0)}, {sr(sH)}, 7"); A(f"s_lshl_b32 {sr(t1)}, {sr(sB)}, 5"); A(f"s_add_u32 {sr(t0)}, {sr(t0)}, {sr(t1)}")
    A(f"s_lshl_b32 {sr(t1)}, {sr(t0)}, 16"); A(f"s_lshl_b32 {sr(t2)}, {sr(sHO)}, 14"); A(f"s_add_u32 {sr(t1)}, {sr(t1)}, {sr(t2)}")
    A(f"s_add_u32 {sr(t1)}, {sr(t1)}, {PART_OFF}")
    A(f"s_mov_b32 {sr(sOFS[2])}, {sr(t1)}")
    A(f"s_lshl_b32 {sr(t1)}, {sr(t0)}, 7"); A(f"s_lshl_b32 {sr(t2)}, {sr(sHO)}, 2"); A(f"s_add_u32 {sr(t1)}, {sr(t1)}, {sr(t2)}")
    A(f"s_add_u32 {sr(t1)}, {sr(t1)}, {FLAG_OFF + 16}")
    A(f"s_mov_b32 {sr(sOFS[3])}, {sr(t1)}")
    A(f"s_lshl_b32 {sr(t1)}, {sr(sB)}, 5"); A(f"s_add_u32 {sr(t1)}, {sr(t1)}, {sr(sH)}"); A(f"s_lshl_b32 {sr(t1)}, {sr(t1)}, 16")
    A(f"s_add_u32 {sr(t1)}, {sr(t1)}, {PART_OFF}")
    A(f"s_mov_b32 {sr(sOFS[4])}, {sr(t1)}")
    return o

def phase_c_srds():
    return sum([srd_at(s_, 14, sr(f_), n_) for s_, f_, n_ in zip((sWFL, sOL, sPS, sPF2, sPL), sOFS,
                (65536 + 3 * 4096, 3 * 262144 + 65536, 3 * 524288 + 16384, 4, 65536))], [])

def acc(k, q2, t): return vS + 64 + 16 * k + 4 * (q2 * 2 + t)
def gsel(k, dst, sh): return [f"s_add_u32 {sr(dst)}, {sr(sHO)}, {k + 1}", f"s_and_b32 {sr(dst)}, {sr(dst)}, 3", f"s_lshl_b32 {sr(dst)}, {sr(dst)}, {sh}"]
def ofr(u, kl, q2): return 256 + 32 * (u % 2) + 4 * (kl * 2 + q2)
def sub_mfmas(k, v, pos):
    mf = []
    for j, (q2, t) in enumerate(((0, 0), (0, 1), (1, 1), (1, 0))):
        for i in range(4):
            kl = i if j % 2 == 0 else 3 - i
            d = vr(acc(k, q2, t), 4)
            mf.append(f"{MF} {d}, {rr(WREG[(pos * 4 + kl) * 2 + t],4)}, {rr(ofr(v,kl,q2),4)}, {d if (pos or i) else 0}")
    return mf
def tail_and_epilogue(u):
    p = u % 2
    o = []
    reads = [rd_v(slotV(15), n, t) for n in range(16) for t in range(2)]
    er = [(exp_i(p, it[1]), UNITS[it[1] // 8][1]) if it[0] == "exp" else (cvt_i(p, it[1]), UNITS[it[1] // 4][1]) for it in E_REST]
    va = []
    for i, (t, q) in enumerate(er):
        if t.startswith("v_cvt") and i and er[i-1][0].startswith("v_exp"): va.append(("s_nop 0", 0, f"e{q}"))
        va.append((t, 0, f"e{q}"))
    mf = []
    for qb in range(4):
        mf += [sum_one(p, qb, 0), sum_one(p, qb, 1)]
        mf += [pv_one(p, dt, qb, (i if dt % 2 == 0 else 1 - i)) for dt in range(8) for i in range(2)]
    vOST = vCW
    if CFG.get("local"): va.append((f"v_cmp_ne_u32 {sr(sGLB,2)}, {sr(sXCC)}, {vr(vCW)}", 0, "x"))
    va.append((f"v_and_b32 {vr(vOST)}, 0x3ff, {vr(vLIN)}", 0, "x"))
    tmp = 2
    NMF = len(mf)
    fill = {0: [], 1: [], 2: [], 3: []}
    tail_names = CFG.get("tailw", "").split(",")
    post_names = [x for x in ("R3", "R5") if x not in tail_names]
    for qb in range(4):
        e0 = 18 * qb
        lsum = [f"v_mov_b32 {vr(vT+qb)}, {vr(vL+4*qb)}"] + allreduce("v_add_f32", vT + qb, vMX) + [f"v_rcp_f32 {vr(vT+qb)}, {vr(vT+qb)}"]
        va += [(t, max(12, e0 + 1 + 3), f"o{qb}") for t in lsum]
        F = fill[qb]
        for s in range(4):
            e = e0 + 2 + 4 * s + 3 + 3
            b_ = tmp + 8 * (s % 2)
            va += [(f"v_accvgpr_read_b32 {vr(b_+j)}, {ar(Oreg(qb,2*s)+j)}", e, f"o{qb}") for j in range(8)]
            va += [(f"@mul {b_+j} {vT+qb}", e, f"o{qb}") for j in range(8)]
            d = Ureg(p, s // 2, qb) + 4 * (1 - s % 2)
            ee = e0 + 17 if s % 2 == 1 else e
            va += [(f"v_cvt_pk_bf16_f32 {vr(d+j)}, {vr(b_+2*j)}, {vr(b_+2*j+1)}", max(e, ee), f"o{qb}") for j in range(4)]
            ld = flat(F[s * len(F) // 4:(s + 1) * len(F) // 4])
            va += [(t, NMF - 1 if qb == 3 else e, f"o{qb}") for t in ld]
            va += [(f"s_mov_b32 {sr(sT)}, {(qb//2)*262144 + (s//2)*4096}", e, f"o{qb}"),
                   (f"buffer_store_dwordx4 {vr(d,4)}, {vr(vOST)}, {sr(sO,4)}, {sr(sT)} offen offset:{(s%2)*2048 + (qb%2)*1024} {CFG.get('ost', 'plain' if CFG.get('local') else 'sc1').replace('+', ' ').replace('plain', '')} ; #ost", e, f"o{qb}")]
    if CFG.get("tord", True):
        E = {q: [x for x in va if x[2] == f"e{q}"] for q in range(4)}
        X = [x for x in va if x[2] == "x"]
        O_ = {q: [x for x in va if x[2] == f"o{q}"] for q in range(4)}
        rest = E[0] + E[1] + E[2] + E[3]
        n0 = int(CFG.get("tn0", 10))
        head, rest = rest[:n0], rest[n0:]
        r2 = [x for x in rest if x[2] != "e3"]; r3 = [x for x in rest if x[2] == "e3"]
        va = X + head + O_[0] + r2 + O_[1] + r3 + O_[2] + O_[3]
    va = [((f"v_mul_f32 {vr(int(t.split()[1]))}, {vr(int(t.split()[1]))}, {vr(int(t.split()[2]))}" if t.startswith("@mul") else t), e, k) for t, e, k in va]
    o += reads[:12]
    nvm = spread(pairs(reads[12:]), list(range(0, 10)))
    pre = {2 + 2 * dt: [f"@wait - lds=v{2*dt},v{2*dt+1}"] for dt in range(8)}
    early = sum([wo_loads(x) for x in tail_names if x], [])
    if early: nvm = merge(nvm, spread(early, list(range(10, int(CFG.get("tailhi", 44)), 2))))
    part, left = weave(mf, nvm, va, pre=pre, need={18 * q: f"e{q}" for q in range(4)})
    o += part
    o += stamp()
    o.append("s_nop 7")
    lf_ = [t for t, _, _ in left]
    i = 0
    while i < len(lf_):
        m1 = re.match(r"v_mul_f32 v(\d+), v\d+, v(\d+)", lf_[i]); m2 = re.match(r"v_mul_f32 v(\d+), v\d+, v(\d+)", lf_[i+1]) if i + 1 < len(lf_) else None
        if m1 and m2 and int(m1.group(1)) % 2 == 0 and int(m2.group(1)) == int(m1.group(1)) + 1:
            r = int(m1.group(1)); f_ = int(m1.group(2))
            sel = "op_sel_hi:[1,0]" if f_ % 2 == 0 else "op_sel:[0,1] op_sel_hi:[1,1]"
            o.append(f"v_pk_mul_f32 {vr(r,2)}, {vr(r,2)}, {vr(f_ - f_ % 2,2)} {sel}"); i += 2
        else:
            o.append(lf_[i]); i += 1
    A = o.append
    A(f"v_mov_b32 {vr(vMX)}, 1")
    A(f"v_and_b32 {vr(vT)}, 7, v0"); A(f"v_lshlrev_b32 {vr(vT)}, 7, {vr(vT)}")
    A(f"v_add_u32 {vr(vKA)}, 0x10000, {vr(vOST)}")
    A(f"s_mov_b32 {sr(sCNT)}, 0")
    if CFG.get("forceglobal"): A(f"s_mov_b64 {sr(sGLB,2)}, -1")
    if CFG.get("local"): A(f"s_and_b32 {sr(sGLB)}, {sr(sGLB)}, 0xff"); A(f"s_cmp_lg_u32 {sr(sGLB)}, 0")
    mode = CFG.get("sync", "cnt1")
    cnt = mode.startswith("cnt"); one = mode.endswith("1")
    assert cnt
    post = sum([wo_loads(x) for x in post_names], [])
    A(f"s_lshl_b32 {sr(sT)}, {sr(sWAVE)}, 14"); A(f"v_add_u32 v10, {sr(sT)}, {vr(vOST)}")
    for qb in range(4):
        for s_ in range(4):
            d = Ureg(p, s_ // 2, qb) + 4 * (1 - s_ % 2)
            A(f"ds_write_b128 v10, {vr(d,4)} offset:{(qb//2)*8192 + s_*2048 + (qb%2)*1024}")
    A(f"s_and_b32 {sr(sT+1)}, {sr(sH)}, 1"); A(f"s_lshl_b32 {sr(sT+1)}, {sr(sT+1)}, 15")
    for k in range(4):
        o += gsel(k, sT, 13) + [f"s_add_u32 {sr(sT)}, {sr(sT)}, {sr(sT+1)}", f"v_add_u32 {vr(11+k)}, {sr(sT)}, {vr(vOST)}"]
    A("@wait w7 lgkm=0"); A("s_barrier")
    ord_ = lambda k: [f"ds_read_b128 {rr(ofr(k,kl,q2),4)}, {vr(11+k)} offset:{(kl*2+q2)*1024} ; #h{k}_{q2}" for q2 in range(2) for kl in range(4)]
    NB = int(CFG.get("nbef", 2))
    def own(k, extra):
        nv = {7: [f"@wait - lds=h{k}_1"]}
        if k < 3:
            r = ord_(k + 1)
            for j, g in enumerate((0, 2, 4, 6)): nv.setdefault(g, []).extend(r[2*j:2*j+2])
        if extra: nv = merge(nv, spread(extra, [1, 3, 5, 8, 9, 10, 11, 12, 13, 14, 15]))
        return [f"@wait - lds=h{k}_0"] + weave(sub_mfmas(k, k, 0), nv)[0]
    o += ord_(0)
    for k in range(NB): o += own(k, [])
    A("@wait ost")
    A("s_barrier")
    if cnt: A(f"buffer_atomic_add {vr(vMX)}, {vr(vLIN)}, {sr(sFLR,4)}, 0 offen sc1 ; #flag")
    else: A(f"buffer_store_dword {vr(vMX)}, {vr(vLIN)}, {sr(sFL,4)}, 0 offen sc1 ; #flag")
    o += stamp()
    pl = f"buffer_load_dword {vr(vT+1)}, off, {sr(sFLR,4)}, 0 sc1" if cnt else f"buffer_load_dword {vr(vT+1)}, {vr(vT)}, {sr(sFLR,4)}, 0 offen sc1"
    want = 8 if cnt else 1
    NL = int(CFG.get("nlate", 0)); PL = int(CFG.get("plate", 0))
    latep = post[len(post) - PL:] if PL else []
    latep = [[x.replace(sr(sSP), sr(sTK)) for x in g] for g in latep]
    post = post[:len(post) - PL]
    for k in range(NB, 4 - NL):
        n_ = min(8, len(post)); o += own(k, post[:n_]); post = post[n_:]
    LATE.clear()
    for k in range(4 - NL, 4):
        n_ = min(8, len(latep)); LATE.extend(own(k, latep[:n_])); latep = latep[n_:]
    LATE.extend(flat(latep))
    o += flat(post)
    pw = int(CFG.get("pollwave", 1))
    if one: A(f"s_cmp_lg_u32 {sr(sWAVE)}, {pw}"); A("s_cbranch_scc1 L_go")
    NP_ = int(CFG.get("npoll", 1))
    pr = lambda j: pl.replace(vr(vT+1), vr(vT+j), 1) + " ; #~poll"
    for j in range(NP_ - 1):
        A(pr(j))
        if int(CFG.get("pgap", 0)): A("s_sleep " + str(int(CFG["pgap"])))
    A("L_poll:")
    for j in range(NP_):
        A(pr((j - 1) % NP_))
        A(f"s_waitcnt vmcnt({NP_ - 1}) ; keep")
        A(f"v_cmp_ne_u32 vcc, {want}, {vr(vT+j)}")
        A("s_cbranch_vccz L_go")
    A(f"s_add_u32 {sr(sCNT)}, {sr(sCNT)}, 1")
    A(f"s_cmp_lt_u32 {sr(sCNT)}, {CFG['spin']}")
    A("s_cbranch_scc1 L_poll")
    A("L_go:")
    if one: A("s_barrier")
    if CFG.get("local"): A(f"s_cmp_lg_u32 {sr(sGLB)}, 0"); A("s_cbranch_scc1 L_acq")
    A("L_acq_back:")
    o += stamp()
    return o

STAGED = []
LATE = []
def phase_c():
    o = []; A = o.append
    vOST = vCW
    D = int(CFG.get("cdist", 4))
    NS = 28
    LANDK = {2: vL, 1: vL + 8, 0: 10}
    OWN = acc(3, 0, 0)
    def dma(v):
        k, p = v // 7, 1 + v % 7
        g = []
        if v % 7 == 0: g += gsel(k, sG, 18) + [f"s_add_u32 {sr(sG)}, {sr(sG)}, {sr(sW2K)}"]
        g += [f"s_add_u32 {sr(sSP)}, {sr(sG)}, {sr(sHP+p)}", f"s_add_u32 m0, {sr(sW2K)}, {((v + 8) % 16) * 8192}", "s_nop 0"]
        ld = lambda j: f"buffer_load_dwordx4 {vr(vOST)}, {sr(sOL,4)}, {sr(sSP)} offen offset:{j*1024} sc1 lds ; #c{v // 2}"
        return [g + [ld(0)], [ld(1)]]
    def reads(v):
        base = ((v + 8) % 16) * 8192
        return [f"ds_read_b128 {rr(ofr(v,kl,q2),4)}, {vr(vKA if base >= 65536 else vOST)} offset:{base % 65536 + (kl*2+q2)*1024} ; #u{v}_{q2}" for q2 in range(2) for kl in range(4)]
    N0 = int(CFG.get("n0", 2 * D))
    for v in range(N0): o += flat(dma(v))
    nxv = [N0]
    o += LATE
    o += ["@wait c0", "s_barrier"] + stamp() + reads(0)
    N1 = int(CFG.get("n1", N0))
    for v in range(N0, N1): o += flat(dma(v))
    nxv = [max(N0, N1)]
    mf = []; nvm = {}; pre = {}; vm = {}
    pfg = int(CFG.get("pfg", 44))
    FB = {}
    for k in range(3): FB[k] = min(v for v in range(1, NS, 2) if 16 * v >= 112 * (k + 1) + pfg)
    for v in range(NS):
        k = v // 7
        mf += sub_mfmas(k, v, 1 + v % 7)
        g0 = 16 * v
        wt_ = ",".join(f"w{f}" for f in range(8 * (1 + v % 7), 8 * (2 + v % 7)))
        (nvm.setdefault(g0 - 1, []) if v else o).append(f"@wait {wt_} lds=u{v}_0")
        nvm.setdefault(g0 + 7, []).append(f"@wait - lds=u{v}_1")
        if v + 1 < NS:
            if v % 2 == 1:
                kk = [x for x in range(3) if FB[x] == v]
                pre.setdefault(g0, []).append(f"@wait c{v // 2 + 1}" + (f",p{kk[0]}" if kk else ""))
                nvm.setdefault(g0, []).append("s_barrier")
                if kk:
                    vm[g0 + 2] = gsel(kk[0], sT, 10) + [f"s_add_u32 {sr(sPF2+2)}, {sr(sT)}, 4",
                                   f"buffer_store_dword {vr(vMX)}, {vr(vLIN)}, {sr(sPF2,4)}, {sr(sT)} offen sc1 ; #pf"]
            r = reads(v + 1)
            for j, g in enumerate((1, 3, 6, 8)): nvm.setdefault(g0 + g, []).extend(r[2*j:2*j+2])
        n2 = min(2, NS - nxv[0], v + 2 * D + 1 - nxv[0])
        G_ = sum([dma(nxv[0] + j) for j in range(max(n2, 0))], []); nxv[0] += max(n2, 0)
        for grp, g in zip(G_, (5, 12) if n2 == 1 else (4, 5, 11, 12)): vm[g0 + g] = [x for x in grp if x != "s_nop 0"]
        if v % 7 == 0 and v:
            kk = k - 1
            for q2 in range(2):
                a0 = acc(kk, q2, 0); pk = 2 + 4 * q2; e = g0 - 6 if q2 == 0 else g0 + 2
                for j in range(4): nvm.setdefault(e + (j // 2) * (1 if q2 == 0 else 2), []).append(f"v_cvt_pk_bf16_f32 {vr(pk + j)}, {vr(a0 + 2*j)}, {vr(a0 + 2*j + 1)}")
                g = g0 - 3 if q2 == 0 else g0 + 7
                while g in vm: g += 1
                vm[g] = (gsel(kk, sTK, 19) if q2 == 0 else []) + [f"buffer_store_dwordx4 {vr(pk, 4)}, {vr(vLIN)}, {sr(sPS,4)}, {sr(sTK)} offen offset:{q2*1024} sc1 ; #p{kk}"]
    assert FB[2] < NS - 1
    STAGED.clear()
    em = int(CFG.get("em", 40))
    for n in range(2):
        k = 2 - n
        gp = 16 * FB[n] + 2 + em
        gp = gp - gp % 16 + 9 + (16 if gp % 16 > 9 else 0)
        while gp in vm: gp += 1
        vm[gp] = gsel(k, sTILE, 2) + [f"buffer_load_dword {vr(vT+1)}, off, {sr(sFL,4)}, {sr(sTILE)} offset:16 sc1 ; #e{k}"]
        g1 = gp - gp % 16 + 48 + 9
        nvm.setdefault(g1, []).extend([f"@wait e{k}", f"v_cmp_ne_u32 vcc, 1, {vr(vT+1)}"])
        nvm.setdefault(g1 + 1, []).extend([f"s_cbranch_vccnz L_e{k}", f"L_e{k}_back:"])
        for j, g in enumerate((g1 + 5, g1 + 9)):
            while g in vm: g += 1
            vm[g] = ([f"s_lshl_b32 {sr(sTILE)}, {sr(sTILE)}, 12"] if j == 0 else []) + [f"buffer_load_dwordx4 {vr(LANDK[k] + 4*j, 4)}, {vr(vLIN)}, {sr(sPL,4)}, {sr(sTILE)} offen offset:{j*1024} sc1 ; #l{k}"]
        STAGED.append(k)
    lastpoll = NS * 16 - int(CFG.get("lp", 12))
    vm[lastpoll] = gsel(0, sTILE, 2) + [f"buffer_load_dword {vr(vT+1)}, off, {sr(sFL,4)}, {sr(sTILE)} offset:16 sc1 ; #lp"]
    prev = -1
    for g in sorted(vm):
        grp = vm[g]; sca = grp[:-1]
        lo = max([prev] + [q for q in range(g) if any(x.startswith("L_e") for x in nvm.get(q, []))])
        free = [q for q in range(lo + 1, g) if not any(x.startswith(("s_", "@")) for x in nvm.get(q, []))]
        if len(free) >= len(sca):
            for x, q in zip(sca, free[len(free) - len(sca):]): nvm.setdefault(q, []).insert(0, x)
        elif g - 1 > lo: nvm[g - 1] = sca + nvm.get(g - 1, [])
        else: nvm[g] = sca + ["s_nop 0"] + nvm.get(g, [])
        nvm.setdefault(g, []).append(grp[-1]); prev = g
    ad = ["v_and_b32 v10, 15, v0", "v_lshrrev_b32 v11, 4, v0", "v_lshlrev_b32 v11, 4, v11", "v_lshl_add_u32 v18, v10, 10, v11"]
    def unpack(k):
        u_ = acc(k, 0, 0)
        return [x for j in range(8) for x in (f"v_lshlrev_b32 {vr(u_+2*j)}, 16, {vr(LANDK[k]+j)}", f"v_and_b32 {vr(u_+2*j+1)}, 0xffff0000, {vr(LANDK[k]+j)}")]
    gs = NS * 16 - 44
    va = [(x, 20, "a") for x in ad] + [("@wait l2,l1", gs, "b")] + [(x, gs, "b") for x in unpack(2) + unpack(1)]
    va += [(f"v_add_f32 {vr(acc(1,0,0)+j)}, {vr(acc(1,0,0)+j)}, {vr(acc(2,0,0)+j)}", gs, "b") for j in range(16)]
    part, lft = weave(mf, nvm, va, pre=pre)
    o += part
    o += stamp()
    o += [x for x, _, _ in lft]
    A(f"s_mov_b32 {sr(sCNT)}, 0")
    A("@wait lp")
    A(f"v_cmp_ne_u32 vcc, 1, {vr(vT+1)}")
    A("s_cbranch_vccz L_go2")
    A("L_poll2:")
    A(f"buffer_load_dword {vr(vT+1)}, off, {sr(sFL,4)}, {sr(sTILE)} offset:16 sc1")
    A("s_waitcnt vmcnt(0)")
    A(f"v_cmp_ne_u32 vcc, 1, {vr(vT+1)}")
    A("s_cbranch_vccz L_go2")
    A(f"s_add_u32 {sr(sCNT)}, {sr(sCNT)}, 1")
    A(f"s_cmp_lt_u32 {sr(sCNT)}, {CFG['spin']}")
    A("s_cbranch_scc1 L_poll2")
    A("L_go2:")
    o += stamp()
    A(f"s_lshl_b32 {sr(sTILE)}, {sr(sTILE)}, 12")
    for j in range(2): A(f"buffer_load_dwordx4 {vr(LANDK[0] + 4*j, 4)}, {vr(vLIN)}, {sr(sPL,4)}, {sr(sTILE)} offen offset:{j*1024} sc1 ; #l0")
    A("s_nop 4")
    for j in range(0, 16, 2): A(f"v_pk_add_f32 {vr(OWN+j,2)}, {vr(OWN+j,2)}, {vr(acc(1,0,0)+j,2)}")
    A(f"s_mov_b32 {sr(sT)}, 16384")
    A("@wait l0")
    o += unpack(0)
    for j in range(0, 16, 2): A(f"v_pk_add_f32 {vr(OWN+j,2)}, {vr(OWN+j,2)}, {vr(acc(0,0,0)+j,2)}")
    for q2 in range(2):
        for j in range(4): A(f"v_cvt_pk_bf16_f32 {vr(2 + 4*q2 + j)}, {vr(OWN + 8*q2 + 2*j)}, {vr(OWN + 8*q2 + 2*j + 1)}")
        A(f"buffer_store_dwordx4 {vr(2 + 4*q2, 4)}, v18, {sr(sOUT,4)}, {sr(sT) if q2 else 0} offen")
    return o

def peeled(lf):
    o = [f"s_mov_b32 {sr(sT)}, 0xe00fe000", f"v_cmp_ne_u32 vcc, {sr(sT)}, {vr(vCW)}", "s_cbranch_vccnz L_cw", "L_cw_back:"]
    for i in range(PEEL0, 15):
        loads = []
        tp = CFG.get("tpol", "nt").replace("+", " ")
        def touch(j, half):
            return [f"s_mov_b32 {sr(sDT)}, {j * 262144 + half * 4096}", f"s_mov_b32 {sr(sO+2)}, {j * 262144 + half * 4096 + 4096}",
                    f"buffer_load_dword {ar(240 + 2*j + half)}, {vr(vCW)}, {sr(sO,4)}, {sr(sDT)} offen {tp} ; #tch"]
        T = [touch(j, h_) for j in range(2) for h_ in range(2)] if CFG.get("local") and tp != "none" else []
        tsch = [int(x) for x in CFG.get("tsch", "13,13,13,13").split(",")]
        mine = [t for t, k in zip(T, tsch) if k == i]
        if i == 12 and CFG.get("local"):
            ids = [[f"v_and_b32 {vr(vCW)}, 63, v0", f"v_lshlrev_b32 {vr(vCW)}, 7, {vr(vCW)}", f"s_nop 0",
                    f"buffer_load_dword {ar(239)}, {vr(vCW)}, {sr(sFLR,4)}, 0 offen offset:4 sc1 ; #ids"]]
            loads = [(ids + mine, 0, NG)]
        fixed = {}
        if i == 12 and CFG.get("wtouch", False):
            tg = [int(x) for x in CFG.get("wtg", "65,68,93,107").split(",")]
            NP = len(tg)
            fixed[64] = [f"v_and_b32 {vr(vCW)}, {64 // NP - 1}, v0", f"v_lshlrev_b32 {vr(vCW)}, 7, {vr(vCW)}"]
            for j, g in enumerate(tg):
                off = j * 8192 // NP
                fixed.setdefault(g, []).append(f"buffer_load_dword {ar(252 + j)}, {vr(vCW)}, {sr(sWFL,4)}, {sr(sRX if off >= 4096 else sRW)} offen offset:{off % 4096} sc1 ; #wt")
        if i == 12 and int(CFG.get("r1n12", 0)): loads = [(wo_loads("R1")[:int(CFG["r1n12"])], 0, NG)]
        r1at = int(CFG.get("r1at", 14))
        if i == 13:
            g = mine + (wo_loads("R1")[:8] if r1at == 13 else [])
            if not CFG.get("local"): g = wo_loads("R1")[8:]
            loads = [(g, int(CFG.get("r1lo", 24)), int(CFG.get("r1hi", 75)))] if g else []
        if i == 14:
            loads = [(wo_loads("R2") + wo_loads("R4"), 64, NG)]
            if int(CFG.get("r1n13", 8)) < 16: loads.insert(0, (wo_loads("R1")[:8], 0, 64))
            if CFG.get("local"):
                chk = [f"@wait ids,tch", f"v_accvgpr_read_b32 {vr(vCW)}, {ar(239)}"]
                r1 = wo_loads("R1")[(8 if r1at == 13 else 0):]
                k8 = len(r1) - 8
                r1[k8] = chk + r1[k8]
                loads.insert(0, (r1, 0, 64))
        o += iteration(i, f"L_r{i}", loads, phase_c_srds() if i == PEEL0 else (), fixed)
    o += stamp()
    o += tail_and_epilogue(3)
    o += phase_c()
    fifo = [f"K{PEEL0+2}"] * 4 + [f"V{PEEL0+1}"] * 4
    if CFG.get("skipst"): o = [x for x in o if "#ost" not in x]
    if CFG.get("skipp"): o = [x for x in o if not re.search(r"#p\d", x)]
    o, _, _ = resolve(o, fifo, lf)
    return o

def stamp_out():
    if not CFG["stamps"]: return []
    o = ["s_waitcnt vmcnt(0)"] + stamp()
    A = o.append
    A(f"s_lshl_b32 {sr(sT)}, s2, 10"); A(f"s_add_u32 {sr(sT)}, {sr(sT)}, {STAMP_OFF}")
    o += srd_at(4, 14, sr(sT), 1024)
    A("v_lshlrev_b32 v1, 2, v0")
    A(f"buffer_store_dword v{STV}, v1, s[4:7], 0 offen")
    if CFG.get("dbgout"):
        o += srd_at(4, 12, "0", 64)
        A("v_and_b32 v2, 63, v0")
        A("v_lshlrev_b32 v1, 1, v2"); A("v_add_u32 v1, 6, v1")
        A("v_and_b32 v3, 1, v2"); A("v_cmp_eq_u32 vcc, 0, v3"); A("v_mov_b32 v3, 0x1000"); A("s_nop 1")
        A("v_cndmask_b32 v1, v1, v3, vcc")
        A(f"v_cmp_lt_u32 vcc, {2*nstamp[0]}, v2"); A("s_nop 1"); A("v_cndmask_b32 v1, v1, v3, vcc")
        A(f"buffer_atomic_umax v{STV}, v1, s[4:7], 0 offen sc1")
        A(f"v_not_b32 v4, v{STV}")
        A("v_cmp_eq_u32 vcc, 1, v2"); A("s_nop 1"); A("v_cndmask_b32 v1, v3, 4, vcc")
        A(f"buffer_atomic_umax v4, v1, s[4:7], 0 offen sc1")
    return o

def kernel():
    pro, fifo, lf0 = prologue()
    _, _, lf = resolve(iteration(0, "x") + iteration(1, "x"), [])
    its = []
    for u in range(4):
        it, _, lf2 = resolve(iteration(u, f"L_r{u}"), [], lf)
        assert lf2 == lf
        its.append(it)
    assert len(lf0) >= len(lf) and lf0[len(lf0)-len(lf):] == lf or CFG["stamps"] or CFG.get("probe"), (lf0, lf)
    pe = peeled(lf)
    body = list(pro)
    body.append("L_loop:")
    for u in range(4):
        it = list(its[u])
        if u == 3:
            k = [i for i, x in enumerate(it) if x.startswith(MF)]
            it.insert(k[-3] + 1, f"s_cmp_lt_u32 {sr(sCNT)}, {NPASS}")
            it.insert(k[-4] + 1, f"s_add_u32 {sr(sCNT)}, {sr(sCNT)}, 1")
            it.append("s_cbranch_scc1 L_loop")
            its[3] = it
        body += it
    body += pe
    body += stamp_out()
    if CFG.get("fixdur"):
        body += ["L_fix:", "s_memrealtime s[40:41]", "s_waitcnt lgkmcnt(0)", "s_sub_u32 s40, s40, s42", f"s_cmp_lt_u32 s40, {int(CFG['fixdur'])*100}", "s_cbranch_scc1 L_fix"]
    body.append("L_end:")
    body.append("s_endpgm")
    for u in list(range(4)) + list(range(PEEL0, 15)):
        body += [f"L_r{u}a:", f"s_call_b64 {sr(sRET,2)}, L_ra{1 - u % 2}", f"s_branch L_r{u}a_back"]
        if CFG.get("evslow"): body += [f"L_r{u}z:", f"s_nop {int(CFG['evslow'][1:])}", f"s_branch L_r{u}z_back"]
        body += [f"L_r{u}b:", f"s_call_b64 {sr(sRET,2)}, L_rb", f"s_branch L_r{u}b_back"]
    body += ["L_cw:", f"s_mov_b32 {sr(sCNT)}, 0", "L_cw_loop:",
             f"v_and_b32 {vr(vCW)}, 3, v0", f"v_lshlrev_b32 {vr(vCW)}, 6, {vr(vCW)}",
             f"buffer_load_dword {vr(vCW)}, {vr(vCW)}, {sr(sDB,4)}, 0 offen sc1", "s_waitcnt vmcnt(0)",
             f"v_cmp_ne_u32 vcc, {sr(sT)}, {vr(vCW)}", "s_cbranch_vccz L_cw_back",
             f"s_add_u32 {sr(sCNT)}, {sr(sCNT)}, 1", f"s_cmp_lt_u32 {sr(sCNT)}, {CFG['spin']}", "s_cbranch_scc1 L_cw_loop",
             "s_branch L_cw_back"]
    if CFG.get("local"): body += ["L_pubg:", "buffer_wbl2 sc1", "s_waitcnt vmcnt(0)",
             f"buffer_store_dword {vr(vMX)}, {vr(vLIN)}, {sr(sFL,4)}, 0 offen sc1", "s_branch L_pubg_back"]
    if CFG.get("local"): body += ["L_acq:", "buffer_inv sc1", "s_waitcnt vmcnt(0)", "s_branch L_acq_back"]
    for k in STAGED:
        body += [f"L_e{k}:", f"s_mov_b32 {sr(sCNT)}, 0", f"L_e{k}_loop:",
                 f"buffer_load_dword {vr(vT+1)}, off, {sr(sFL,4)}, {sr(sTILE)} offset:16 sc1", "s_waitcnt vmcnt(0)",
                 f"v_cmp_ne_u32 vcc, 1, {vr(vT+1)}", f"s_cbranch_vccz L_e{k}_back",
                 f"s_add_u32 {sr(sCNT)}, {sr(sCNT)}, 1", f"s_cmp_lt_u32 {sr(sCNT)}, {CFG['spin']}", f"s_cbranch_scc1 L_e{k}_loop", f"s_branch L_e{k}_back"]
    for p in range(2): body += rare_a(p, f"L_ra{p}")
    body += rare_b("L_rb")
    loop = its[0] + its[1] + its[2] + its[3]
    check(pro + loop + loop + pe, "main")
    def with_rare(seq):
        o = []
        for x in seq:
            m = re.match(r"L_r(\d+)([ab])_back:", x)
            if m: o += (rare_a(1 - int(m.group(1)) % 2, "x") if m.group(2) == "a" else rare_b("x"))[1:]
            o.append(x)
        return o
    check(pro + with_rare(loop + pe), "rare")
    if CFG.get("jitter"):
        import random
        rnd = random.Random(int(CFG["jitter"][1:]))
        nb = []; cnt = 0; started = False
        for x in body:
            if x == "s_endpgm": started = False
            j = False
            if x.startswith("s_barrier"): started = True; j = True
            if x.startswith(MF): cnt += 1; j = cnt % 97 == 0
            pre_ = rnd.random() < 0.5
            blk = []
            if j and started:
                lab = f"L_j{len(nb)}"
                blk = ["s_cselect_b32 s101, 1, 0", "s_memrealtime s[40:41]", "s_waitcnt lgkmcnt(0)", f"s_lshl_b32 s41, {sr(sWAVE)}, 2", "s_xor_b32 s40, s40, s41", "s_xor_b32 s40, s40, s2",
                       f"s_and_b32 s40, s40, {rnd.choice([12, 28, 60])}", "s_cmp_lg_u32 s40, 0", f"s_cbranch_scc1 {lab}", f"s_sleep {rnd.choice([4, 16, 64])}", f"{lab}:", "s_cmp_lg_u32 s101, 0"]
            nb += (blk + [x]) if pre_ else ([x] + blk)
        return "\n".join(nb)
    lastscc = None
    for x in body:
        op = x.split()[0] if x.split() else ""
        if op == "s_addc_u32": assert lastscc == "s_add_u32" and prev.startswith("s_add_u32"), (prev, x)
        if op in ("s_cselect_b32", "s_cbranch_scc0", "s_cbranch_scc1"): assert lastscc.startswith("s_cmp"), (lastscc, x)
        if op.startswith(("s_add", "s_sub", "s_and", "s_or", "s_xor", "s_lshl", "s_lshr", "s_cmp", "s_bfe", "s_min", "s_max", "s_not")): lastscc = op
        prev = x
    if CFG["verbose"]:
        for g in range(NG): print(g, PLAN[g])
    return "\n".join(body)

if __name__ == "__main__":
    k = kernel()
    txt = file_text([dict(label=NAME + "_kernel", body=k, grid=256, block=256, lds=163840, vgpr=512, accum=256)], single=True)
    DOC = """; ---------------------------------------------------------------------------------------------
; Fused MHA block, one workgroup (4 waves, one per SIMD) per (batch, head); generated by a script.
;  A. Q^T = wq_h^T x_b^T   (x / wq streamed through LDS by LDS-DMA; scale*log2e folded into Q)
;  B. flash attention over 16 key tiles of 64: S^T = K Q^T - m (running max as MFMA C operand),
;     P = exp2(S), O^T += V^T P^T, l += 1^T P^T.  The max of every tile is checked; when it
;     exceeds the running max by more than 8 (log2) the rare path moves the max and rescales O, l.
;     every workgroup computes a 128x128 tile over K = 1024, the 4 octets' partial tiles are
;     reduced through d_ws.  wo is re-laid out into MFMA fragment order in d_ws during phase A.
;  Hand-offs: write-through (sc1) stores, vmcnt wait, barrier, one flag / counter per workgroup,
;  sc1 polls (bounded).  Flags are cleared by their owner at the start; d_debug counts that.
; ---------------------------------------------------------------------------------------------
"""
    txt = txt.replace('.amdgcn_target', DOC + '.amdgcn_target', 1)
    open(sys.argv[1], "w").write(txt)
```

```python
import sys, math, struct, re
from asmlib import *
from check import check

CFG = dict(qst=False, stamps=False, codepf=True, warm=True, spin=200000, verbose=False)
for a in sys.argv[2:]:
    k, v = a.split("=")
    CFG[k] = {"0": False, "1": True}.get(v, v)

MF = "v_mfma_f32_16x16x32_bf16"
def vr(b, n=1): return f"v{b}" if n == 1 else f"v[{b}:{b+n-1}]"
def ar(b, n=1): return f"a{b}" if n == 1 else f"a[{b}:{b+n-1}]"
def sr(b, n=1): return f"s{b}" if n == 1 else f"s[{b}:{b+n-1}]"
def rr(r, n=1): return vr(r, n) if r < 256 else ar(r - 256, n)
def slots(t):
    if t.startswith(("v_exp", "v_rcp", "buffer_", "global_", "v_permlane")): return 2
    if t.startswith(("s_", "@", "L_")): return 0
    return 1

sX, sWQ, sK, sV, sO = 4, 8, 12, 16, 20
sWFL, sOL = 4, 8
sWAVE, sB, sH, sW4K, sW8K = 24, 25, 26, 27, 28
sCB, sMT, sNT = 29, 30, 31
sXO, sWO = 32, 40
sOUT, sFLR = 32, 36
sTILE, sCNT, sTHR, sSC, sSP = 44, 45, 46, 47, 48
sRET = 50
sTK, sROT, sRQ, sRX, sRW = 49, 92, 93, 94, 95
sW1K, sDT = 96, 97
sPF = 98
sPS, sPL, sPF2 = 80, 84, 76
sHO, sG = 29, 30
sHP, sW2K = 56, 96
sRC = 93
sXCC, sGLB = 3, 94
sT = 52
sARG = 56
sFL, sDB, sDBW = 72, 76, 88
sWS2, sWO2 = 80, 84
vKA, vVA, vDK, vDV = 1, 5, 13, 17
vMX, vLIN, vCW, STV = 19, 21, 22, 23
vT = 24
vONES = 28
vNEG, vL, vQ, vS = 32, 48, 64, 128
vWA, vXA, vDX, vDW, vWOF = 64, 72, 76, 78, 25
vWOA, vWOS = 19, 20
vDUM = [22, 26, 27]
u0, u1, u2, u3, u4, u5, ln = 128, 129, 130, 131, 132, 133, 134
aO, aF = 0, 128
LK, LV, LW = 0, 65536, 131072
LX = [81920, 131072]
LWQ = [32768, 49152, 65536]
LWO = 114688
WOF_OFF, FLAG_OFF, PART_OFF, STAMP_OFF = 0x1000000, 0x1400000, 0x1800000, 0x4000000

def Ureg(p, ks, qb): return vS + 64 * p + 8 * (ks * 4 + qb)
def Sreg(p, kb, qb): return Ureg(p, kb // 2, qb) + 4 * (kb % 2)
def Oreg(qb, dt): return aO + 4 * (qb * 8 + dt)
def Qreg(qb, s): return vQ + 16 * qb + 4 * s
def Freg(n): return aF + 4 * n

nstamp = [0]
def stamp():
    if CFG.get("probe"):
        i = nstamp[0]; nstamp[0] += 1
        return ["s_memrealtime s[42:43]", "s_waitcnt lgkmcnt(0)"] if i == int(CFG["probe"][1:]) else []
    if not CFG["stamps"]: return []
    i = nstamp[0]; nstamp[0] += 1
    assert i < 30
    return ["s_memtime s[40:41]", "s_waitcnt lgkmcnt(0)", f"v_writelane_b32 v{STV}, s40, {2*i}",
            "s_memrealtime s[40:41]", "s_waitcnt lgkmcnt(0)", f"v_writelane_b32 v{STV}, s40, {2*i+1}"]

def srd(s, size):
    return [f"s_and_b32 {sr(s+1)}, {sr(s+1)}, 0xffff", f"s_mov_b32 {sr(s+2)}, {size}", f"s_mov_b32 {sr(s+3)}, 0x20000"]
def srd_at(s, arg, offreg, size):
    return [f"s_add_u32 {sr(s)}, {sr(sARG+arg)}, {offreg}", f"s_addc_u32 {sr(s+1)}, {sr(sARG+arg+1)}, 0"] + srd(s, size)

def tag(lst, t): return [(x + f" ; #{t}") if x.startswith(("buffer_", "global_")) and "#" not in x else x for x in lst]
def resolve(seq, fifo, lfifo=()):
    fifo = list(fifo); lf = list(lfifo); out = []
    def cut(f, n): return f[len(f) - n:] if 0 < n < len(f) else (f if n else [])
    for x in seq:
        if x.startswith("@wait"):
            parts = x.split()
            w = []
            idx = [i for i, t in enumerate(fifo) if t in parts[1].split(",")]
            if idx:
                n = min(63, len(fifo) - 1 - max(idx)); fifo = cut(fifo, n); w.append(f"vmcnt({n})")
            for p in parts[2:]:
                if p.startswith("vm="): n = int(p[3:]); fifo = cut(fifo, n); w.append(f"vmcnt({n})")
                if p.startswith("lgkm="): n = int(p[5:]); lf = cut(lf, n); w.append(f"lgkmcnt({n})")
                if p.startswith("lds="):
                    idx = [i for i, t in enumerate(lf) if t in p[4:].split(",")]
                    if idx:
                        n = min(15, len(lf) - 1 - max(idx)); lf = cut(lf, n); w.append(f"lgkmcnt({n})")
            if w: out.append("s_waitcnt " + " ".join(w))
            continue
        m = re.search(r"#(\S+)", x)
        if x.startswith(("buffer_", "global_")): fifo.append(m.group(1) if m else "?")
        if x.startswith("ds_"): lf.append(m.group(1) if m else "?")
        m = re.match(r"s_waitcnt.*vmcnt\((\d+)\)", x)
        if m: fifo = cut(fifo, int(m.group(1)))
        m = re.match(r"s_waitcnt.*lgkmcnt\((\d+)\)", x)
        if m: lf = cut(lf, int(m.group(1)))
        out.append(x)
    return out, fifo, lf

CONT = CFG.get("cont", False)
NOSWAP = CFG.get("noswap", True)
DIST = int(CFG.get("dist", 3))
def dma_k(p, soff):
    if CONT: return f"buffer_load_dwordx4 {vr(vDK)}, {sr(sK,4)}, {sr(sDT)} offen nt lds"
    return f"buffer_load_dwordx4 {vr(vDK+p)}, {sr(sK,4)}, {soff} offen offset:{1024*p} nt lds"
def dma_v(p, soff):
    if CONT: return f"buffer_load_dwordx4 {vr(vDV)}, {sr(sV,4)}, {sr(sDT)} offen nt lds"
    return f"buffer_load_dwordx4 {vr(vDV + p%2)}, {sr(sV,4)}, {soff} offen offset:{1024*p} nt lds"
def cont_pre(base, p, soff): return [f"s_add_u32 m0, {sr(sW1K)}, {base + p*4096}", f"s_add_u32 {sr(sDT)}, {soff}, {p*4096}"]
def m0_at(addr): return f"s_add_u32 m0, {sr(sW4K)}, {addr}"
def kv_batch(which, tile):
    out = [m0_at((LK + slotK(tile) * 16384 if which == "K" else LV + slotV(tile) * 16384)), f"s_add_u32 {sr(sT)}, {sr(sROT)}, {tile*16384}", f"s_and_b32 {sr(sT)}, {sr(sT)}, 0x3ffff"]
    for p in range(4):
        if CONT: out += cont_pre((LK if which == "K" else LV) + (tile % 4) * 16384, p, sr(sT))
        out.append(dma_k(p, sr(sT)) if which == "K" else dma_v(p, sr(sT)))
    return tag(out, f"{which}{tile}")

NPASS = int(CFG.get("npass", 3))
PEEL0 = 4 * NPASS
def slotK(t): return t % 4
def slotV(t): return t % 4
def rd_k(slot, n):
    kb, s = n // 4, n % 4
    return f"ds_read_b128 {ar(Freg(n),4)}, {vr(vKA+s)} offset:{slot*16384 + kb*4096} ; #k{n}"
def rd_v(slot, n, t):
    dt, ks = n // 2, n % 2
    return f"ds_read_b64_tr_b16 {ar(Freg(n)+2*t,2)}, {vr(vVA+dt)} offset:{slot*16384 + (32*ks+16*t)*256} ; #v{n}"

def qk_one(p, kb, qb, s, first, czero=False):
    d = Sreg(p, kb, qb)
    c = vr(d, 4) if not first else ("0" if czero else vr(vNEG + 4*qb, 4))
    return f"{MF} {vr(d,4)}, {ar(Freg(kb*4+s),4)}, {vr(Qreg(qb,s),4)}, {c}"
def qk_list(p):
    return [qk_one(p, kb, qb, (i if qb % 2 == 0 else 3 - i), i == 0) for kb in range(4) for qb in range(4) for i in range(4)]
def pv_one(p, dt, qb, ks):
    o = Oreg(qb, dt)
    return f"{MF} {ar(o,4)}, {ar(Freg(dt*2+ks),4)}, {vr(Ureg(p,ks,qb),4)}, {ar(o,4)}"
def sum_one(p, qb, ks):
    return f"{MF} {vr(vL+4*qb,4)}, {vr(vONES,4)}, {vr(Ureg(p,ks,qb),4)}, {vr(vL+4*qb,4)}"
def pv_list(p):
    return ([pv_one(p, dt, qb, (i if qb % 2 == 0 else 1 - i)) for dt in range(8) for qb in range(4) for i in range(2)]
            + [sum_one(p, qb, ks) for qb in range(4) for ks in range(2)])

UNITS = [(0, 0), (1, 0), (1, 1), (0, 1), (0, 2), (1, 2), (1, 3), (0, 3)]
def ereg(p, e): ks, qb = UNITS[e // 8]; return Ureg(p, ks, qb) + e % 8
def exp_i(p, e): r = ereg(p, e); return f"v_exp_f32 {vr(r)}, {vr(r)}"
def cvt_i(p, k):
    r = ereg(p, 2 * k); return f"v_cvt_pk_bf16_f32 {vr(r - (2*k) % 8 + k % 4)}, {vr(r)}, {vr(r+1)}"
def max_items(p):
    out = []
    for kb in range(4):
        for qb in range(4):
            r = Sreg(p, kb, qb); m = vr(vMX + qb % 2); done = 16 * kb + 4 * qb + 3
            if kb == 0 and qb < 2:
                out.append((f"v_max3_f32 {m}, {vr(r)}, {vr(r+1)}, {vr(r+2)}", done))
                out.append((f"v_max_f32 {m}, {vr(r+3)}, {m}", done))
            else:
                out.append((f"v_max3_f32 {m}, {vr(r)}, {vr(r+1)}, {m}", done))
                out.append((f"v_max3_f32 {m}, {vr(r+2)}, {vr(r+3)}, {m}", done))
    return out

NG = 136
HOOKA = 69
BARG = 118
LAT = 8
def make_plan():
    plan = {g: [] for g in range(NG)}
    T0 = HOOKA
    dsp = int(CFG.get("dsp", 14))
    dv0 = int(CFG.get("dv0", 72))
    dma_g = [4 + dsp * i for i in range(4)] + [dv0 + dsp * i for i in range(4)]
    dma_t = [g + NG if g < HOOKA else g for g in dma_g]
    NX2 = int(CFG.get('nx2', 40))
    r2 = [t for t in range(T0, NG) if t != BARG and t not in dma_t]
    r1 = [t for t in range(NG, NG + 64) if t not in dma_t]
    xt = [r2[i * len(r2) // NX2] for i in range(NX2)] + [r1[i * len(r1) // (64 - NX2)] for i in range(64 - NX2)]
    assert len(set(xt)) == 64
    for e, t in enumerate(xt): plan[t % NG].append(("exp", e, t >= NG))
    for i, t in enumerate(dma_t): plan[t % NG].append(("dma", i))
    Y = []
    for k in range(32):
        Y.append((xt[2*k+1] + 1, NG + 64 + k // 4 - 2, ("cvt", k)))
    for i, (_, done) in enumerate(max_items(0)):
        Y.append((NG + done + 3, NG + HOOKA - 3, ("max", i)))
    Y.append((NG + 66, NG + HOOKA - 2, ("max", 32))); Y.append((NG + 66, NG + HOOKA - 1, ("max", 33)))
    for n in range(16):
        Y.append((max(BARG + 1, 64 + 8 * (n // 2) + 7), NG + 16 * (n // 4) - LAT, ("k", n)))
    NV1 = int(CFG.get("nv1", 10))
    for n in range(16):
        e, d = 16 * (n // 4) + 15, min(64 + 8 * (n // 2) - LAT, BARG - 10)
        for t in range(2):
            if n < NV1: Y.append((NG + e, NG + min(d, HOOKA - 1), ("v", n, t)))
            else: Y.append((T0, d, ("v", n, t)))
    def kind(y): return y[2][0] + ("1" if y[2][0] == "v" and y[0] >= NG else "")
    ygaps = [t for t in range(T0, T0 + NG) if not plan[t % NG] and t % NG != BARG]
    pend = list(Y)
    for t in ygaps:
        g = t % NG
        picked = []
        for _ in range(2):
            heads = {}
            for y in pend: heads.setdefault(kind(y), y)
            c = [y for y in heads.values() if y[0] <= t]
            if not c: break
            def eff(y):
                same = [z for z in pend if kind(z) == kind(y)]
                return min(z[1] - i / 1.2 for i, z in enumerate(same))
            y = min(c, key=eff)
            assert t <= y[1], ("deadline miss", t, y)
            picked.append(y); pend.remove(y)
        picked.sort(key=lambda y: 0 if y[2][0] in ("k", "v") else 1)
        for y in picked: plan[g].append(y[2] + ((t >= NG,) if y[2][0] == "cvt" else ()))
    assert not pend, pend
    return plan
PLAN = make_plan()

def iteration(i, lab, loads=None, salu=(), fixed=None):
    assert DIST == 3 and not CONT
    p = i % 2
    steady = i < PEEL0
    sc = {g: [] for g in range(NG)}
    for kb in range(4): sc[16 * kb - 1 if kb else NG - 2].append(f"@wait - lds=" + ",".join(f"k{kb*4+s}" for s in range(4)))
    for dt in range(8):
        if 64 + 8 * dt - 1 < BARG - 1: sc[64 + 8 * dt - 1].append(f"@wait - lds=v{2*dt},v{2*dt+1}")
    sc[BARG - 1].append(f"@wait - vm={10 if i == 1 else (9 if i == 2 and CFG.get('repf', False) else 8)} lgkm=0" if steady else f"@wait K{i+2},V{i+1} lgkm=0")
    sc[BARG].append("s_barrier")
    if CFG.get("itst"):
        sc[BARG - 2].append("s_memrealtime s[40:41]")
        sc[BARG] += ["s_mov_b64 exec, s[42:43]", f"v_mov_b32 v{STV}, s40", "s_mov_b64 exec, -1", "s_lshl_b64 s[42:43], s[42:43], 1"]
    sc[HOOKA] += [f"s_cbranch_vccnz {lab}a", f"{lab}a_back:"]
    sc[NG - 1] = [f"s_cbranch_vccnz {lab}b", f"{lab}b_back:"] + sc[NG - 1]
    if CFG.get("evslow"):
        sc[90] += ["s_and_b32 s101, s2, 1"]; sc[91] += ["s_cmp_eq_u32 s101, 0"]; sc[92] += [f"s_cbranch_scc1 {lab}z", f"{lab}z_back:"]
    extra = dict(fixed or {})
    vm = {}
    hask, hasv = i + 3 <= 15, i + 2 <= 15
    for j, g in enumerate(DMA_GAPS):
        if j < 4 and hask: vm[g] = [m0_at(LK + slotK(i + 3) * 16384), dma_k(j, sr(sTK)) + f" ; #K{i+3}"]
        v15 = CFG.get("v15", "a")
        if i == 13 and v15 != "n":
            if j < 4 and v15 == "a": vm[(2, 8, 14, 20)[j] if CFG.get("v15d", True) else g] = [m0_at(LV + slotV(15) * 16384), dma_v(j, sr(sTILE)) + " ; #V15"]
            continue
        if j >= 4 and hasv: vm[g] = [m0_at(LV + slotV(i + 2) * 16384), dma_v(j - 4, sr(sTILE)) + f" ; #V{i+2}"]
    if i == 12 and CFG.get("v15", "a") == "b":
        vm = {}
        for j in range(4):
            vm[(4, 13, 22, 32)[j]] = [m0_at(LK + slotK(15) * 16384), dma_k(j, sr(sTK)) + " ; #K15"]
            vm[(40, 46, 58, 64)[j]] = [m0_at(LV + slotV(14) * 16384), dma_v(j, sr(sTILE)) + " ; #V14"]
            vm[(72, 86, 100, 114)[j]] = [m0_at(LV + slotV(15) * 16384), dma_v(j, sr(sTK)) + " ; #V15"]
    sc[120].append(f"s_mov_b32 {sr(sTILE)}, {sr(sTK)}")
    sc[121].append(f"s_add_u32 {sr(sTK)}, {sr(sTK)}, 0x4000")
    sc[122].append(f"s_and_b32 {sr(sTK)}, {sr(sTK)}, 0x3ffff")
    if steady:
        if i == 1:
            extra[64] = [f"v_and_b32 {vr(vCW)}, 3, v0", f"v_lshlrev_b32 {vr(vCW)}, 6, {vr(vCW)}"]
            extra[65] = [f"buffer_load_dword {vr(vCW)}, {vr(vCW)}, {sr(sDB,4)}, 0 offen sc1"]
            sc[40].append(f"s_cmp_eq_u32 {sr(sCNT)}, {NPASS - 1}")
            sc[41].append(f"s_cselect_b32 {sr(sDB+2)}, 256, 0")
            extra[68] = [f"buffer_atomic_add {vr(vONES)}, {vr(vLIN)}, {sr(sDBW,4)}, 0 offen sc1"]
            sc[75].append(f"s_mov_b32 {sr(sDBW+2)}, 0")
        if i == 2 and CFG.get("repf", False):
            extra[64] = [f"v_and_b32 {vr(vT)}, 31, v0", f"v_lshlrev_b32 {vr(vT)}, 10, {vr(vT)}"]
            extra[65] = [f"v_add_u32 {vr(vT)}, {sr(sPF+2)}, {vr(vT)}", f"v_min_u32 {vr(vT)}, L_end-L_pc, {vr(vT)}"]
            extra[68] = [f"global_load_dword {ar(255)}, {vr(vT)}, {sr(sPF,2)}"]
    else:
        nextk = i + 2 <= 15
        def load(g):
            return sum(2 if it[0] == "exp" else (0 if it[0] == "dma" or (it[0] == "k" and g > BARG and not nextk) else 1) for it in PLAN[g])
        gs = 0
        for x in salu:
            if x.startswith(("s_addc", "s_cselect")):
                sc[gs - 1].append(x); continue
            while sc[gs] or gs in vm or gs + 1 in vm: gs += 1
            sc[gs].append(x); gs += 1
        for groups, lo, hi in loads:
            cand = [g for g in range(max(lo, gs + 3 if salu else 0), hi) if g not in vm and g not in (BARG, BARG - 1, HOOKA, NG - 1)]
            n = len(groups)
            for k, grp in enumerate(groups):
                win = cand[k * len(cand) // n:(k + 1) * len(cand) // n]
                vm[min(win, key=load)] = grp
    cur_m0 = None; prev = -1
    for g in sorted(vm):
        grp = vm[g]; sca = []
        for x in grp[:-1]:
            if x.startswith("s_add_u32 m0"):
                if x == cur_m0: continue
                cur_m0 = x
            sca.append(x)
        free = [q for q in range(prev + 1, g + 1) if not sc[q] and not (steady and q in (40, 41))]
        if sca and sca[-1].startswith("s_add_u32 m0"): free = [q for q in free if q < g]
        if len(free) >= len(sca):
            for x, q in zip(sca, free[len(free) - len(sca):]): sc[q].append(x)
        else:
            sc[g] += sca + ["s_nop 0"]
        prev = g
    mf = qk_list(1 - p) + pv_list(p)
    MX = [t for t, _ in max_items(1 - p)] + [f"v_max_f32 {vr(vMX)}, {vr(vMX)}, {vr(vMX+1)}", f"v_cmp_lt_f32 vcc, {sr(sTHR)}, {vr(vMX)}"]
    out = []
    for g in range(NG):
        out.append(mf[g])
        out += sc[g]
        ex = extra.get(g, [])
        out += [x for x in ex if not x.startswith("v_")]
        if g in vm: out.append(vm[g][-1])
        for it in PLAN[g]:
            k = it[0]
            if k == "exp": out.append(exp_i(p if it[2] else 1 - p, it[1]))
            elif k == "cvt": out.append(cvt_i(p if it[2] else 1 - p, it[1]))
            elif k == "max":
                if not CFG.get("nomax"): out.append(MX[it[1]])
            elif k == "k":
                t = i + (2 if g > BARG else 1)
                if t <= 15: out.append(rd_k(slotK(t), it[1]))
            elif k == "v": out.append(rd_v(slotV(i), it[1], it[2]))
        out += [x for x in ex if x.startswith("v_")]
        if CFG.get("slowdown") and g % int(CFG["slowdown"]) == 5: out.append("s_nop 7")
    return out
EARLY_K = [it[1] for g in range(BARG + 1, NG) for it in PLAN[g] if it[0] == "k"]
E_FIRST = [it for g in range(HOOKA, NG) for it in PLAN[g] if it[0] in ("exp", "cvt")]
E_REST = [it for g in range(0, HOOKA) for it in PLAN[g] if it[0] in ("exp", "cvt")]
DMA_GAPS = [g for g in range(NG) if any(it[0] == "dma" for it in PLAN[g])]
LIGHT = sorted(range(NG), key=lambda g: (sum(2 if it[0] in ("exp",) else (0 if it[0] == "dma" else 1) for it in PLAN[g])))

def spread(items, gaps):
    d = {}
    for i, it in enumerate(items):
        d.setdefault(gaps[i * len(gaps) // len(items)], []).extend(it)
    return d
def place(groups, lo, hi):
    cand = [g for g in LIGHT if lo <= g < hi and g not in (BARG, BARG - 1, HOOKA, NG - 1)]
    gs = sorted(cand[:len(groups)])
    assert len(gs) == len(groups)
    return {g: list(x) for g, x in zip(gs, groups)}
def merge(*maps):
    d = {}
    for m in maps:
        for k, v in m.items(): d.setdefault(k, []).extend(v)
    return d
def flat(G): return [x for g in G for x in g]
def groups_of(lst):
    G = []; cur = []
    for x in lst:
        cur.append(x)
        if x.startswith("buffer_"): G.append(cur); cur = []
    if cur: G[-1] += cur
    return G

WREG = []
WP = {}
for nm, base, n, st_ in (("R1", 256 + 192, 16, 4), ("R2", vQ, 16, 4), ("R4", vNEG, 4, 4), ("R3u", vS + 4, 8, 8), ("R3", vS, 8, 8), ("R5", 256 + aF, 12, 4)):
    WP[nm] = list(range(len(WREG), len(WREG) + n)); WREG += [base + st_ * i for i in range(n)]
assert len(WREG) == 64
def wo_loads(name, sp=None):
    sp = sSP if sp is None else sp
    groups = []
    for f in WP[name]:
        g = [f"s_add_u32 {sr(sp)}, {sr(sHP + f // 8)}, {(f % 8) * 1024}"] if f % 4 == 0 else []
        g.append(f"buffer_load_dwordx4 {rr(WREG[f], 4)}, {vr(vLIN)}, {sr(sWFL,4)}, {sr(sp)} offen offset:{(f%4)*1024} sc1 ; #w{f}")
        groups.append(g)
    return groups

def pack_muls(l):
    o = []; i = 0
    while i < len(l):
        m1 = re.match(r"v_mul_f32 v(\d+), v\d+, v(\d+)$", l[i]); m2 = re.match(r"v_mul_f32 v(\d+), v\d+, v(\d+)$", l[i+1]) if i + 1 < len(l) else None
        if m1 and m2 and int(m1.group(1)) % 2 == 0 and int(m2.group(1)) == int(m1.group(1)) + 1:
            r = int(m1.group(1)); f_ = int(m1.group(2))
            sel = "op_sel_hi:[1,0]" if f_ % 2 == 0 else "op_sel:[0,1] op_sel_hi:[1,1]"
            o.append(f"v_pk_mul_f32 {vr(r,2)}, {vr(r,2)}, {vr(f_ - f_ % 2,2)} {sel}"); i += 2
        else: o.append(l[i]); i += 1
    return o
def weave(mf, nvmap, va=(), pre=None, need=None):
    out = []; va = list(va)
    for g, m in enumerate(mf):
        if need and g in need:
            last = max([i for i, x in enumerate(va) if x[2] == need[g]], default=-1)
            if last >= 0:
                if va[last][1] > g - 1: out.append("s_nop 7")
                out += pack_muls([x[0] for x in va[:last + 1]]) + ["s_nop 1"]; va = va[last + 1:]
            elif any(x.startswith("v_") and not x.startswith("v_mfma") for x in out[-2:]): out.append("s_nop 1")
        if pre and g in pre: out += pre[g]
        out.append(m)
        nv = nvmap.get(g, [])
        out += nv
        c = sum(slots(x) for x in nv)
        while va and va[0][1] <= g and c + slots(va[0][0]) <= 2:
            c += slots(va[0][0]); out.append(va.pop(0)[0])
    return out, va

def allreduce(op, a, b):
    return [f"v_mov_b32 {vr(b)}, {vr(a)}", "s_nop 1", f"v_permlane32_swap_b32 {vr(a)}, {vr(b)}", "s_nop 1", f"{op} {vr(a)}, {vr(a)}, {vr(b)}",
            f"v_mov_b32 {vr(b)}, {vr(a)}", "s_nop 1", f"v_permlane16_swap_b32 {vr(a)}, {vr(b)}", "s_nop 1", f"{op} {vr(a)}, {vr(a)}, {vr(b)}"]
def qmax(p, qb, d):
    regs = [Sreg(p, kb, qb) + j for kb in range(4) for j in range(4)]
    o = [f"v_max3_f32 {vr(d)}, {vr(regs[0])}, {vr(regs[1])}, {vr(regs[2])}"]
    for i in range(3, 15, 2): o.append(f"v_max3_f32 {vr(d)}, {vr(regs[i])}, {vr(regs[i+1])}, {vr(d)}")
    o.append(f"v_max_f32 {vr(d)}, {vr(regs[15])}, {vr(d)}")
    return o
def rare_a(p, label):
    out = [f"{label}:", "s_nop 7"]
    for qb in range(4):
        d = vT + qb
        out += qmax(p, qb, d) + allreduce("v_max_f32", d, vMX)
        out.append(f"v_max_f32 {vr(d)}, 0, {vr(d)}")
        for j in range(4): out.append(f"v_sub_f32 {vr(vNEG+4*qb+j)}, {vr(vNEG+4*qb+j)}, {vr(d)}")
        for kb in range(4):
            for j in range(4):
                r = Sreg(p, kb, qb) + j
                out.append(f"v_sub_f32 {vr(r)}, {vr(r)}, {vr(d)}")
        out.append(f"v_exp_f32 {vr(d)}, -{vr(d)}")
    out += ["s_nop 3", f"s_setpc_b64 {sr(sRET,2)}"]
    return out
def rare_b(label):
    out = [f"{label}:", "s_nop 15"]
    for qb in range(4):
        f_ = vT + qb
        for j in range(4): out.append(f"v_mul_f32 {vr(vL+4*qb+j)}, {vr(vL+4*qb+j)}, {vr(f_)}")
        for j in range(0, 32, 2):
            a0 = Oreg(qb, 0) + j
            out += [f"v_accvgpr_read_b32 {vr(vMX)}, {ar(a0)}", f"v_accvgpr_read_b32 {vr(vMX+1)}, {ar(a0+1)}",
                    f"v_mul_f32 {vr(vMX)}, {vr(vMX)}, {vr(f_)}", f"v_mul_f32 {vr(vMX+1)}, {vr(vMX+1)}, {vr(f_)}",
                    f"v_accvgpr_write_b32 {ar(a0)}, {vr(vMX)}", f"v_accvgpr_write_b32 {ar(a0+1)}, {vr(vMX+1)}"]
    out += ["s_nop 3", f"s_setpc_b64 {sr(sRET,2)}"]
    return out

def wfrag(st, s, dt): return (128 if st % 2 == 0 else 192) + 4 * (dt * 2 + s)
def xfrag(st, s, qb): return (96 if st % 2 == 0 else 32) + 4 * (qb * 2 + s)
def qacc(qb, dt): return Ureg(dt // 4, (dt // 2) % 2, qb) + 4 * (dt % 2)
def qp_reads(st):
    out = []
    for qb in range(4):
        for s in range(2):
            out.append(f"ds_read_b128 {vr(xfrag(st,s,qb),4)}, {vr(vXA + 2*(st%2) + s)} offset:{qb*2048} ; #x{st}_{qb}")
    for dt in range(8):
        for s in range(2):
            for t in range(2):
                if NOSWAP: out.append(f"ds_read_b64_tr_b16 {ar(wfrag(st,s,dt)+2*t,2)}, {vr(vWA + dt//2)} offset:{(st%3)*16384 + (32*s+4*t)*256 + 8*(dt%2)} ; #w{st}_{dt}")
                else: out.append(f"ds_read_b64_tr_b16 {ar(wfrag(st,s,dt)+2*t,2)}, {vr(vWA + dt)} offset:{(st%3)*16384 + (32*s+4*t)*256} ; #w{st}_{dt}")
    return out
def qp_dma(st):
    G = []
    wf = (" " + CFG["wqld"]) if CFG.get("wqld") else ""
    xf = (" " + CFG["xld"]) if CFG.get("xld") else ""
    if st == 0 and CFG.get("nt0"): wf = xf = " nt"
    for p in range(4):
        g = []
        if p == 0:
            g = [f"s_add_u32 {sr(sRX)}, {sr(sRQ)}, {st}", f"s_and_b32 {sr(sRX)}, {sr(sRX)}, 7", f"s_lshl_b32 {sr(sRW)}, {sr(sRX)}, 19",
                 f"s_lshl_b32 {sr(sRX)}, {sr(sRX)}, 7", m0_at(LWQ[st % 3])]
        g.append(f"s_add_u32 {sr(sDT)}, {sr(sRW)}, {p*(32768-1024)}")
        g.append(f"buffer_load_dwordx4 {vr(vDW + p//2)}, {sr(sWQ,4)}, {sr(sDT)} offen offset:{1024*p}{wf} lds ; #st{st}")
        G.append(g)
    for p in range(8):
        g = [f"s_add_u32 m0, {sr(sW8K)}, {LX[st%2] + (p//4)*4096}"] if p % 4 == 0 else []
        g.append(f"s_add_u32 {sr(sDT)}, {sr(sRX)}, {p*8192 - 1024*(p%4)}")
        g.append(f"buffer_load_dwordx4 {vr(vDX + p%2)}, {sr(sX,4)}, {sr(sDT)} offen offset:{1024*(p%4)}{xf} lds ; #st{st}")
        G.append(g)
    return G
def qp_one(st, dt, qb, s, first):
    d = qacc(qb, dt)
    return f"{MF} {vr(d,4)}, {ar(wfrag(st,s,dt),4)}, {vr(xfrag(st,s,qb),4)}, {'0' if first else vr(d, 4)}"
def qp_mfmas(st):
    return [qp_one(st, dt, qb, (i if qb % 2 == 0 else 1 - i), st == 0 and i == 0) for dt in range(8) for qb in range(4) for i in range(2)]
def qp_q(st, qb):
    return [qp_one(st, dt, qb, (i if dt % 2 == 0 else 1 - i), False) for dt in range(8) for i in range(2)]
def qconv(qb, s):
    d = qacc(qb, 2 * s); q = Qreg(qb, s)
    out = [f"v_mul_f32 {vr(d+j)}, {sr(sSC)}, {vr(d+j)}" for j in range(8)]
    out += [f"v_cvt_pk_bf16_f32 {vr(q+j)}, {vr(d+2*j)}, {vr(d+2*j+1)}" for j in (0, 2, 1, 3)]
    return out, [f"v_permlane32_swap_b32 {vr(q)}, {vr(q+2)}", f"v_permlane32_swap_b32 {vr(q+1)}, {vr(q+3)}"], \
                [f"v_permlane16_swap_b32 {vr(q)}, {vr(q+2)}", f"v_permlane16_swap_b32 {vr(q+1)}, {vr(q+3)}"]
def qconv_stream(qb):
    parts = [qconv(qb, s) for s in range(4)]
    if NOSWAP: return [(x, s) for s in range(4) for x in parts[s][0]]
    out = []
    for s in range(4):
        a = parts[s][0]
        if s == 0: out += [(x, s) for x in a]
        else: out += [(x, s) for x in a[:4]] + [(x, s) for x in parts[s-1][1]] + [(x, s) for x in a[4:8]] + [(x, s) for x in parts[s-1][2]] + [(x, s) for x in a[8:]]
    out += [("s_nop 1", 3)] + [(x, 3) for x in parts[3][1]] + [("s_nop 1", 3)] + [(x, 3) for x in parts[3][2]]
    return out

def setup_a():
    o = []; A = o.append
    A("s_cmp_ge_u32 s2, 256")
    A("s_cbranch_scc1 L_end")
    if CFG.get("fixdur"): A("s_memrealtime s[42:43]")
    A(f"s_load_dwordx16 {sr(sARG,16)}, s[0:1], 0")
    if CFG["codepf"]:
        A(f"s_getpc_b64 {sr(sT,2)}")
        A("L_pc:")
        A(f"s_bfe_u32 {sr(sT+2)}, s2, 0x30003")
        A(f"v_lshrrev_b32 {vr(u0)}, 6, v0"); A(f"v_and_b32 {vr(u1)}, 15, v0"); A(f"v_lshl_add_u32 {vr(u0)}, {vr(u0)}, 4, {vr(u1)}")
        A(f"v_lshlrev_b32 {vr(u0)}, 10, {vr(u0)}"); A(f"s_lshl_b32 {sr(sT+2)}, {sr(sT+2)}, 7"); A(f"v_add_u32 {vr(u0)}, {sr(sT+2)}, {vr(u0)}")
        A(f"v_min_u32 {vr(u0)}, L_end-L_pc, {vr(u0)}")
        A(f"global_load_dword {vr(vDUM[0])}, {vr(u0)}, {sr(sT,2)} ; #pf")
        if CFG.get("repf", False):
            A(f"s_mov_b64 {sr(sPF,2)}, {sr(sT,2)}"); A(f"s_add_u32 {sr(sPF+2)}, {sr(sT+2)}, L_cw_back-L_pc")
    A(f"s_and_b32 {sr(sCB)}, s2, 7")
    A(f"s_lshr_b32 {sr(sT+3)}, s2, 3")
    A(f"s_and_b32 {sr(sMT)}, {sr(sT+3)}, 3"); A(f"s_lshr_b32 {sr(sNT)}, {sr(sT+3)}, 2")
    if CFG.get("pmap", "4x8") == "4x8":
        A(f"s_and_b32 {sr(sB)}, {sr(sCB)}, 1"); A(f"s_lshl_b32 {sr(sB)}, {sr(sB)}, 2"); A(f"s_add_u32 {sr(sB)}, {sr(sB)}, {sr(sMT)}")
        A(f"s_lshr_b32 {sr(sH)}, {sr(sCB)}, 1"); A(f"s_lshl_b32 {sr(sH)}, {sr(sH)}, 3"); A(f"s_add_u32 {sr(sH)}, {sr(sH)}, {sr(sNT)}")
    else:
        A(f"s_mov_b32 {sr(sB)}, {sr(sCB)}"); A(f"s_mov_b32 {sr(sH)}, {sr(sT+3)}")
    rq = CFG.get("rq", "x")
    if rq == "n": A(f"s_mov_b32 {sr(sRQ)}, 0")
    elif rq == "x": A(f"s_mov_b32 {sr(sRQ)}, {sr(sCB)}")
    elif rq == "h": A(f"s_mov_b32 {sr(sRQ)}, {sr(sH)}")
    elif rq == "f": A(f"s_lshl_b32 {sr(sRQ)}, {sr(sB)}, 1"); A(f"s_add_u32 {sr(sRQ)}, {sr(sRQ)}, {sr(sH)}")
    elif rq == "g": A(f"s_add_u32 {sr(sRQ)}, {sr(sB)}, {sr(sH)}")
    A(f"v_lshrrev_b32 {vr(u0)}, 6, v0")
    A(f"v_and_b32 {vr(ln)}, 63, v0")
    A(f"v_readfirstlane_b32 {sr(sWAVE)}, {vr(u0)}")
    A(f"v_lshrrev_b32 {vr(u1)}, 4, {vr(ln)}")
    A(f"v_and_b32 {vr(u2)}, 15, {vr(ln)}")
    A(f"v_lshl_add_u32 {vr(u4)}, {vr(u0)}, 4, {vr(u1)}")
    A(f"v_lshlrev_b32 {vr(u3)}, 1, {vr(u1)}")
    A(f"v_xor_b32 {vr(u3)}, {vr(u3)}, {vr(u2)}")
    A(f"v_lshlrev_b32 {vr(u5)}, 4, {vr(u3)}")
    A(f"v_lshl_add_u32 {vr(vDW)}, {vr(u4)}, 13, {vr(u5)}")
    A(f"v_xor_b32 {vr(vDW+1)}, 0x80, {vr(vDW)}")
    if NOSWAP:
        A(f"v_lshlrev_b32 {vr(u3)}, 2, {vr(u1)}"); A(f"v_xor_b32 {vr(u3)}, {vr(u3)}, {vr(u2)}"); A(f"v_lshlrev_b32 {vr(u3)}, 4, {vr(u3)}")
        A(f"v_lshl_add_u32 {vr(vDW)}, {vr(u4)}, 13, {vr(u3)}"); A(f"v_mov_b32 {vr(vDW+1)}, {vr(vDW)}")
    A(f"v_lshrrev_b32 {vr(u3)}, 3, {vr(ln)}")
    A(f"v_lshl_add_u32 {vr(u0)}, {vr(u0)}, 6, {vr(u3)}")
    A(f"v_and_b32 {vr(u3)}, 7, {vr(ln)}")
    A(f"v_xor_b32 {vr(u3)}, {vr(u1)}, {vr(u3)}")
    A(f"v_lshlrev_b32 {vr(u3)}, 4, {vr(u3)}")
    A(f"v_lshl_add_u32 {vr(vDX)}, {vr(u0)}, 10, {vr(u3)}")
    A(f"v_xor_b32 {vr(vDX+1)}, 64, {vr(vDX)}")
    A(f"s_lshl_b32 {sr(sW4K)}, {sr(sWAVE)}, 12")
    A(f"s_lshl_b32 {sr(sW8K)}, {sr(sWAVE)}, 13")
    A(f"s_lshl_b32 {sr(sT)}, {sr(sB)}, 18")
    A(f"s_lshl_b32 {sr(sT+1)}, {sr(sH)}, 8")
    A("s_waitcnt lgkmcnt(0)")
    o += stamp()
    o += srd_at(sWQ, 6, sr(sT+1), 511*8192 + 256)
    o += srd_at(sX, 0, sr(sT), 0x40000)
    return o

def wo_piece_addr():
    return [f"v_lshrrev_b32 {vr(u0)}, 5, v0", f"v_and_b32 {vr(u1)}, 0x1e, {vr(u0)}", f"v_and_b32 {vr(u0)}, 1, {vr(u0)}",
            f"v_lshl_add_u32 {vr(u0)}, {vr(u1)}, 2, {vr(u0)}",
            f"v_and_b32 {vr(u1)}, 31, v0", f"v_lshlrev_b32 {vr(u1)}, 4, {vr(u1)}", f"v_lshl_add_u32 {vr(vWOF)}, {vr(u0)}, 10, {vr(u1)}"]
def wo_piece_dma():
    o = [m0_at(LWO)]
    for p in range(4):
        o.append(f"s_mov_b32 {sr(sDT)}, {1024*p}")
        o.append(f"buffer_load_dwordx4 {vr(vWOF)}, {sr(sWO2,4)}, {sr(sDT)} offen offset:{1024*p} nt lds ; #wo")
    return o

def warm_loads(nst):
    o = []; A = o.append
    A(f"v_lshrrev_b32 {vr(u3)}, 6, v0"); A(f"v_and_b32 {vr(u2)}, 15, v0"); A(f"v_lshl_add_u32 {vr(u3)}, {vr(u3)}, 4, {vr(u2)}")
    A(f"v_and_b32 {vr(u1)}, {nst - 1}, {vr(u3)}"); A(f"v_add_u32 {vr(u1)}, {sr(sRQ)}, {vr(u1)}"); A(f"v_add_u32 {vr(u1)}, 1, {vr(u1)}")
    A(f"v_and_b32 {vr(u1)}, 7, {vr(u1)}")
    A(f"v_lshrrev_b32 {vr(u2)}, 1, {vr(u3)}")
    A(f"v_lshlrev_b32 {vr(u0)}, 7, {vr(u1)}"); A(f"v_lshl_add_u32 {vr(u0)}, {vr(u2)}, 10, {vr(u0)}")
    A(f"s_and_b32 {sr(sT)}, {sr(sH)}, 7"); A(f"s_lshl_b32 {sr(sT)}, {sr(sT)}, 15")
    A(f"buffer_load_dword {vr(vDUM[1])}, {vr(u0)}, {sr(sX,4)}, {sr(sT)} offen ; #warm")
    A(f"v_lshlrev_b32 {vr(u0)}, 19, {vr(u1)}")
    A(f"v_lshrrev_b32 {vr(u3)}, 1, {vr(u2)}"); A(f"v_lshl_add_u32 {vr(u0)}, {vr(u3)}, 13, {vr(u0)}")
    A(f"v_and_b32 {vr(u3)}, 1, {vr(u2)}"); A(f"v_lshl_add_u32 {vr(u0)}, {vr(u3)}, 7, {vr(u0)}")
    A(f"s_and_b32 {sr(sT)}, {sr(sB)}, 3"); A(f"s_lshl_b32 {sr(sT)}, {sr(sT)}, 17")
    A(f"buffer_load_dword {vr(vDUM[2])}, {vr(u0)}, {sr(sWQ,4)}, {sr(sT)} offen ; #warm")
    return o

def setup_b():
    o = []; A = o.append
    A(f"s_lshl_b32 {sr(sT+2)}, {sr(sB)}, 5"); A(f"s_add_u32 {sr(sT+2)}, {sr(sT+2)}, {sr(sH)}")
    A(f"s_lshl_b32 {sr(sT)}, {sr(sT+2)}, 18")
    o += srd_at(sK, 2, sr(sT), 0x40000)
    o += srd_at(sV, 4, sr(sT), 0x40000)
    A(f"s_lshl_b32 {sr(sT+1)}, {sr(sT+2)}, 7"); A(f"s_add_u32 {sr(sT+1)}, {sr(sT+1)}, {FLAG_OFF}")
    o += srd_at(sFL, 14, sr(sT+1), 32)

    o += srd_at(sDB, 12, "0", 256)
    A(f"s_and_b32 {sr(sT+1)}, {sr(sT+2)}, 3"); A(f"s_lshl_b32 {sr(sT+1)}, {sr(sT+1)}, 6")
    o += srd_at(sDBW, 12, sr(sT+1), 4)
    A(f"s_lshr_b32 {sr(sT)}, {sr(sT+2)}, 1"); A(f"s_and_b32 {sr(sT+2)}, {sr(sT+2)}, 1")
    A(f"s_lshl_b32 {sr(sT+1)}, {sr(sT)}, 15"); A(f"s_lshl_b32 {sr(sT+3)}, {sr(sT+2)}, 9"); A(f"s_add_u32 {sr(sT+1)}, {sr(sT+1)}, {sr(sT+3)}")
    o += srd_at(sWO2, 8, sr(sT+1), 31*1024 + 512)
    A(f"s_lshl_b32 {sr(sT+2)}, {sr(sT+2)}, 2"); A(f"s_add_u32 {sr(sT+2)}, {sr(sT+2)}, {sr(sWAVE)}"); A(f"s_lshl_b32 {sr(sT+2)}, {sr(sT+2)}, 19")
    A(f"s_lshl_b32 {sr(sT)}, {sr(sT)}, 11"); A(f"s_add_u32 {sr(sT)}, {sr(sT)}, {sr(sT+2)}"); A(f"s_add_u32 {sr(sT)}, {sr(sT)}, {WOF_OFF}")
    o += srd_at(sWS2, 14, sr(sT), 262144 + 2048)
    A(f"s_lshl_b32 {sr(sT)}, {sr(sB)}, 2"); A(f"s_add_u32 {sr(sT)}, {sr(sT)}, {sr(sWAVE)}"); A(f"s_lshl_b32 {sr(sT)}, {sr(sT)}, 19")
    A(f"s_lshl_b32 {sr(sT+1)}, {sr(sH)}, 13"); A(f"s_add_u32 {sr(sT)}, {sr(sT)}, {sr(sT+1)}")
    o += srd_at(sO, 14, sr(sT), 262144 + 8192)
    if CFG.get("fewst"):
        A(f"s_cmp_eq_u32 {sr(sMT)}, 0"); A(f"s_cselect_b32 {sr(sO+2)}, {sr(sO+2)}, 0")
    rot = CFG.get("rot", "j")
    if rot == "j": A(f"s_lshr_b32 {sr(sROT)}, s2, 3"); A(f"s_add_u32 {sr(sROT)}, {sr(sROT)}, s2"); A(f"s_and_b32 {sr(sROT)}, {sr(sROT)}, 15"); A(f"s_lshl_b32 {sr(sROT)}, {sr(sROT)}, 14")
    else: A(f"s_mov_b32 {sr(sROT)}, 0")
    if CFG.get("itst"): A("s_mov_b32 s42, 0"); A("s_mov_b32 s43, 0x100")
    A(f"s_mov_b32 {sr(sTHR)}, 0x41000000")
    c = math.log2(math.e) / math.sqrt(128.0)
    A(f"s_mov_b32 {sr(sSC)}, 0x{struct.unpack('<I', struct.pack('<f', c))[0]:08x}")
    A(f"v_lshl_add_u32 {vr(vDV)}, {vr(u4)}, 8, {vr(u5)}")
    A(f"v_xor_b32 {vr(vDV+1)}, 0x80, {vr(vDV)}")
    g_, c16 = u1, u2
    A(f"v_lshrrev_b32 {vr(g_)}, 4, {vr(ln)}")
    A(f"v_and_b32 {vr(c16)}, 15, {vr(ln)}")
    A(f"v_xor_b32 {vr(u3)}, {vr(g_)}, {vr(c16)}")
    A(f"v_lshlrev_b32 {vr(u3)}, 4, {vr(u3)}")
    A(f"v_lshl_add_u32 {vr(vDK)}, {vr(u4)}, 8, {vr(u3)}")
    for p in range(1, 4): A(f"v_xor_b32 {vr(vDK+p)}, {64*p}, {vr(vDK)}")
    if CONT:
        A(f"s_lshl_b32 {sr(sW1K)}, {sr(sWAVE)}, 10")
        A(f"v_lshrrev_b32 {vr(vDK+1)}, 4, v0")
        A(f"v_xor_b32 {vr(vDK+2)}, {vr(vDK+1)}, {vr(c16)}"); A(f"v_lshlrev_b32 {vr(vDK+2)}, 4, {vr(vDK+2)}")
        A(f"v_lshl_add_u32 {vr(vDK)}, {vr(vDK+1)}, 8, {vr(vDK+2)}")
        A(f"v_and_b32 {vr(vDK+2)}, 7, {vr(vDK+1)}"); A(f"v_lshlrev_b32 {vr(vDK+2)}, 1, {vr(vDK+2)}")
        A(f"v_xor_b32 {vr(vDK+2)}, {vr(vDK+2)}, {vr(c16)}"); A(f"v_lshlrev_b32 {vr(vDK+2)}, 4, {vr(vDK+2)}")
        A(f"v_lshl_add_u32 {vr(vDV)}, {vr(vDK+1)}, 8, {vr(vDK+2)}")
    A(f"v_lshl_add_u32 {vr(vKA)}, {vr(c16)}, 8, {vr(u3)}")
    for s in range(1, 4): A(f"v_xor_b32 {vr(vKA+s)}, {64*s}, {vr(vKA)}")
    A(f"v_lshrrev_b32 {vr(u3)}, 1, {vr(c16)}")
    A(f"v_xor_b32 {vr(u3)}, {vr(g_)}, {vr(u3)}")
    A(f"v_lshlrev_b32 {vr(u3)}, 4, {vr(u3)}")
    A(f"v_lshl_add_u32 {vr(u3)}, {vr(c16)}, 7, {vr(u3)}")
    A(f"v_add_u32 {vr(u3)}, {sr(sW8K)}, {vr(u3)}")
    for sl in range(2):
        A(f"v_add_u32 {vr(vXA+2*sl)}, {LX[sl]}, {vr(u3)}")
        A(f"v_xor_b32 {vr(vXA+2*sl+1)}, 64, {vr(vXA+2*sl)}")
    A(f"v_cmp_eq_u32 vcc, 0, {vr(c16)}")
    A(f"v_mov_b32 {vr(u3)}, 0x3f803f80")
    r_, f_, c8 = u0, u4, u5
    A(f"v_bfe_u32 {vr(r_)}, {vr(ln)}, 2, 2")
    for j in range(4): A(f"v_cndmask_b32 {vr(vONES+j)}, 0, {vr(u3)}, vcc")
    A(f"v_bfe_u32 {vr(f_)}, {vr(ln)}, 2, 3")
    A(f"v_and_b32 {vr(c8)}, 3, {vr(ln)}")
    A(f"v_lshlrev_b32 {vr(c8)}, 3, {vr(c8)}")
    A(f"v_lshrrev_b32 {vr(u3)}, 2, {vr(ln)}")
    A(f"v_lshlrev_b32 {vr(vWOA)}, 9, {vr(u3)}")
    A(f"v_lshl_add_u32 {vr(vWOA)}, {vr(c8)}, 1, {vr(vWOA)}")
    A(f"s_lshl_b32 {sr(sT)}, {sr(sWAVE)}, 7"); A(f"s_add_u32 {sr(sT)}, {sr(sT)}, {LWO}")
    A(f"v_add_u32 {vr(vWOA)}, {sr(sT)}, {vr(vWOA)}")
    A(f"v_lshl_add_u32 {vr(c8)}, {vr(f_)}, 5, {vr(c8)}")
    A(f"v_lshl_add_u32 {vr(u3)}, {vr(u3)}, 8, {vr(c8)}")
    A(f"v_add_u32 {vr(vVA)}, {LV}, {vr(u3)}")
    for dt in range(1, 8): A(f"v_xor_b32 {vr(vVA+dt)}, {32*dt}, {vr(vVA)}")
    A(f"v_lshl_add_u32 {vr(u3)}, {vr(g_)}, 3, {vr(r_)}")
    A(f"v_lshl_add_u32 {vr(u3)}, {vr(u3)}, 8, {vr(c8)}")
    if NOSWAP:
        A(f"v_and_b32 {vr(u3)}, 0xff00, {vr(u3)}"); A(f"v_lshl_add_u32 {vr(u3)}, {vr(r_)}, 6, {vr(u3)}")
        A(f"v_and_b32 {vr(c8)}, 3, {vr(ln)}"); A(f"v_lshl_add_u32 {vr(u3)}, {vr(c8)}, 4, {vr(u3)}")
        A(f"v_add_u32 {vr(vWA)}, {LWQ[0]}, {vr(u3)}")
        for k in range(1, 4): A(f"v_xor_b32 {vr(vWA+k)}, {64*k}, {vr(vWA)}")
    else:
        A(f"v_add_u32 {vr(vWA)}, {LWQ[0]}, {vr(u3)}")
        for dt in range(1, 8): A(f"v_xor_b32 {vr(vWA+dt)}, {32*dt}, {vr(vWA)}")
    A(f"v_lshlrev_b32 {vr(vWOS)}, 4, {vr(ln)}")
    A(f"v_add_u32 {vr(vLIN)}, {sr(sW4K)}, {vr(vWOS)}")
    o += wo_piece_addr()
    o += phase_c_early()
    return o

def wo_reads():
    return [f"ds_read_b64_tr_b16 {ar(192+4*i+2*tt,2)}, {vr(vWOA)} offset:{(i//2)*64 + (i%2)*8 + tt*8192} ; #wo" for i in range(4) for tt in range(2)]
def wo_stores():
    return [[f"s_mov_b32 {sr(sT)}, {(i//2)*262144}", f"buffer_store_dwordx4 {ar(192+4*i,4)}, {vr(vWOS)}, {sr(sWS2,4)}, {sr(sT)} offen offset:{(i%2)*1024} sc1 ; #wst"] for i in range(4)]

def pairs(lst): return [lst[i:i+2] for i in range(0, len(lst), 2)]
def prologue():
    qs = stamp if CFG["qst"] else (lambda: [])
    o = setup_a()
    nw = int(CFG.get("nwarm", 2))
    if CFG.get("warmfirst"): o += warm_loads(nw)
    o += flat(qp_dma(0))
    if not CFG.get("warmfirst"): o += (warm_loads(nw) if nw else [])
    o += qs()
    o += setup_b()
    pt = CFG.get("pt", "")
    def pretouch(j, kind):
        if kind == "st": return [f"s_mov_b32 {sr(sDT)}, {j * 262144}", f"buffer_store_dword {vr(vWOF+1)}, {vr(vWOF+1)}, {sr(sO,4)}, {sr(sDT)} offen sc1 ; #pt"]
        if kind == "at": return [f"s_mov_b32 {sr(sDT)}, {j * 262144}", f"buffer_atomic_or {vr(vWOF+1)}, {vr(vWOF+1)}, {sr(sO,4)}, {sr(sDT)} offen sc1 ; #pt"]
        return [f"s_mov_b32 {sr(sDT)}, {j * 262144}", f"buffer_load_dword {vr(vWOF+2+j)}, {vr(vWOF+1)}, {sr(sO,4)}, {sr(sDT)} offen sc1 ; #pt"]
    if pt: o += [f"v_lshlrev_b32 {vr(vWOF+1)}, 3, {vr(vWOS)}"]
    if pt and pt[2:] == "0": o += pretouch(0, pt[:2]) + pretouch(1, pt[:2])
    prek = [x for x in CFG.get("prek", "").split(",") if x]
    for n in prek: o += (wo_piece_dma() if n == "wo" else kv_batch(n[0], int(n[1:])))
    if CFG.get("kvtlb"):
        o += [f"buffer_load_dword {ar(0)}, off, {sr(sK,4)}, 0 nt ; #tl", f"buffer_load_dword {ar(1)}, off, {sr(sV,4)}, 0 nt ; #tl"]
    o += qs()
    o += ["@wait st0", "s_barrier"] + stamp()
    kv = lambda *l: groups_of(sum([kv_batch(x[0], int(x[1:])) for x in l], []))
    bg = [int(x) for x in CFG.get("bg", "38,38,38,38,30,10,-14").split(",")]
    step = float(CFG.get("qstep", 4))
    B = [64 * s + bg[s] for s in range(7)]
    seq = [(st, dt, qb) for st in range(6) for dt in range(8) for qb in range(4) for i in range(2)]
    mf = sum([qp_mfmas(st) for st in range(6)], [])
    for st, qb in ((6, 0), (6, 1), (7, 0), (7, 1), (6, 2), (6, 3), (7, 2), (7, 3)):
        mf += qp_q(st, qb); seq += [(st, dt, qb) for dt in range(8) for i in range(2)]
    Q0 = len(mf)
    mf += [qk_one(0, kb, qb, (i if kb % 2 == 0 else 3 - i), i == 0, czero=True) for qb in range(4) for kb in range(4) for i in range(4)]
    first = {}; last = {}
    for g, (st, dt, qb) in enumerate(seq):
        for t in (f"x{st}_{qb}", f"w{st}_{dt}"):
            first.setdefault(t, g); last[t] = g
    xt = lambda k: ",".join(f"x{k}_{q}" for q in range(4))
    wt = lambda k: ",".join(f"w{k}_{d}" for d in range(8))
    nvm = {}; pre = {}; vm = {}
    def put_vm(g, grp):
        while g in vm or g in B: g += 1
        vm[g] = grp; return g
    npre = int(CFG.get("npre", 16)); nd1 = int(CFG.get("nd1", 6))
    r0 = qp_reads(0); d1 = qp_dma(1)
    o += r0[:npre] + flat(d1[:nd1])
    pos = -2
    for grp in d1[nd1:]: pos += 3; put_vm(int(pos), grp)
    XW = int(CFG.get("xw", 18))
    ekp = [x for x in CFG.get("ekp", "").split(",") if x]
    ek = dict(x.split(":") for x in CFG.get("ek", "5:K0").split(",") if x)
    for k in range(2, 8):
        for i, grp in enumerate(qp_dma(k)):
            e = 0 if k == 2 else (B[k-3] + 1 if i < 4 else B[k-3] + XW)
            if k == 7 and i >= 4: e = max(e, 0)
            pos = max(pos + step, e)
            if i == 4: grp = [f"@wait - lds={xt(k-2)}"] + grp
            put_vm(int(pos), grp)
        for n in ekp:
            j = k - int(CFG.get("ekp0", 3))
            if 0 <= j < 4:
                G_ = groups_of(wo_piece_dma()) if n == "wo" else kv(n)
                head = G_[0][:-1] if n != "wo" else G_[0][:1]
                grp = head + (G_[j] if (j or n == "wo") else G_[0][-1:]) if not (n == "wo" and j == 0) else G_[0]
                pos += 4; put_vm(int(pos), grp)
        if pt and pt[2:] != "0" and k - int(pt[2:]) in (0, 2):
            pos += 3; put_vm(int(pos), pretouch((k - int(pt[2:])) // 2, pt[:2]))
        if str(k) in ek:
            for grp in (groups_of(wo_piece_dma()) if ek[str(k)] == "wo" else kv(ek[str(k)])):
                pos += 3; put_vm(int(pos), grp)
    kstep = float(CFG.get("kstep", 9))
    LATEWO = CFG.get("latewo", False)
    BK, BQ = 384 + int(CFG.get("bk", 94)), Q0 + int(CFG.get("bq", 56))
    sched = [("K0", 0), ("wo", 0), ("K1", 0), ("V0", B[5] + 1), ("K2", BK + 1), ("V1", BK + 1)]
    if LATEWO: sched = [("K0", 0), ("K1", 0), ("V0", B[5] + 1), ("wo", 0), ("K2", BK + 1), ("V1", BK + 1)]
    for n, e in sched:
        if n in ek.values() or n in prek or n in ekp: continue
        for grp in (groups_of(wo_piece_dma()) if n == "wo" else kv(n)):
            pos = max(pos + (3 if n == "K0" and LATEWO else (float(CFG.get("kstep2", kstep)) if n in ("K2", "V1") else kstep)), e)
            put_vm(int(pos), grp)
    assert pos < Q0 + 64, pos
    if CFG["verbose"]: print("vm gaps:", sorted(vm))
    items = [(0, x) for x in r0[npre:]]
    for st in range(1, 8): items += [(st, x) for x in qp_reads(st)]
    R = []
    for st, x in items:
        t = x.split("#")[1]
        e = 0 if st == 0 else B[st-1] + 1
        if st >= 2: e = max(e, last[t[0] + str(st - 2) + t[2:]])
        d = first[t] - LAT
        if st < 7: d = min(d, B[st] - 8)
        if t[0] == "x" and 1 <= st <= 5: d = min(d, B[st-1] + XW - 7)
        R.append([e, max(d, e), x])
    R.sort(key=lambda r: (r[1], r[0]))
    rstep = float(CFG.get("rstep", 1.3)); nxt = 0
    for g in range(Q0):
        if g in vm or g in B: continue
        k = 0
        while k < 2:
            c = [r for r in R if r[0] <= g]
            if not c: break
            urgent = any(r[1] - g < i * 1.3 + 1 for i, r in enumerate(c))
            if not urgent and (k == 1 or g < nxt): break
            nvm.setdefault(g, []).append(c[0][2]); R.remove(c[0]); k += 1; nxt = g + rstep
    assert not R, R[:3]
    for t, g in first.items():
        (nvm.setdefault(g - 1, []) if g else o).insert(0 if g else len(o), f"@wait - lds={t}")
    for s in range(7):
        pre.setdefault(B[s], []).append(f"@wait st{s+1} lds={xt(s)},{wt(s)}")
        nvm.setdefault(B[s], []).append("s_barrier")
        if CFG["qst"]: pre[64 * s] = qs() + pre.get(64 * s, [])
    w0 = BQ if LATEWO else Q0
    nvm = merge(nvm, spread(pairs(wo_reads()), [g for g in range(w0 + 1, min(w0 + 12, Q0 + 64)) if g not in vm]))
    pre.setdefault(BK, []).append("@wait K0" if LATEWO else "@wait K0,wo"); nvm.setdefault(BK, []).append("s_barrier")
    nvm = merge(nvm, spread(pairs([rd_k(0, n) for n in range(16)]), [g for g in range(max(384 + 96, BK + 1), 384 + 122) if g not in vm]))
    pre.setdefault(Q0, []).append("@wait - lgkm=0"); pre[Q0] = stamp() + pre[Q0]
    pre.setdefault(BQ, []).append("@wait K1,V0,wo" if LATEWO else "@wait K1,V0 lds=wo"); nvm.setdefault(BQ, []).append("s_barrier")
    nvm = merge(nvm, {Q0 + 57: [f"s_add_u32 {sr(sTILE)}, {sr(sROT)}, {(DIST-1)*16384}"], Q0 + 58: [f"s_and_b32 {sr(sTILE)}, {sr(sTILE)}, 0x3ffff"],
                      Q0 + 59: [f"s_add_u32 {sr(sTK)}, {sr(sROT)}, {DIST*16384}"], Q0 + 60: [f"s_and_b32 {sr(sTK)}, {sr(sTK)}, 0x3ffff"],
                      Q0 + 61: [f"s_mov_b32 {sr(sCNT)}, 0"]})
    for g in sorted(vm):
        grp = vm[g]; sca = grp[:-1]
        prevv = max([x for x in vm if x < g], default=-1)
        gg = g
        for x in reversed(sca):
            nvm.setdefault(gg, []).insert(0, x)
            if gg - 1 > prevv and gg > 0: gg -= 1
        nvm.setdefault(g, []).append(grp[-1])
    va = [(f"v_accvgpr_write_b32 {ar(r)}, 0", 0, "z") for r in list(range(2, 128)) + [0, 1]]
    done = {0: 384 + 32, 1: 384 + 48, 2: 384 + 96, 3: 384 + 112}
    for qb in range(4):
        va += [(t, done[qb] + 4 * s + 3 + 3, f"q{qb}") for t, s in qconv_stream(qb)]
    va += [(f"v_mov_b32 {vr(vL+j)}, 0", Q0, "z") for j in range(16)]
    def initq(qb):
        n = vNEG + 4 * qb
        l = qmax(0, qb, n)
        for sw in ("v_permlane32_swap_b32", "v_permlane16_swap_b32"):
            l += [f"v_mov_b32 {vr(n+1)}, {vr(n)}", "s_nop 1", f"{sw} {vr(n)}, {vr(n+1)}", f"v_max_f32 {vr(n)}, {vr(n)}, {vr(n+1)}"]
        l += [f"v_sub_f32 {vr(n+j)}, 0, {vr(n)}" for j in (3, 2, 1, 0)]
        for ks in range(2):
            r = Ureg(0, ks, qb)
            l += [f"v_add_f32 {vr(r+j)}, {vr(r+j)}, {vr(n + j % 2)}" for j in range(8)]
        return l
    for qb in range(4): va += [(t, Q0 + 16 * qb + 15 + 3, "i") for t in initq(qb)]
    part, left = weave(mf, nvm, va, pre=pre, need={Q0 + 16 * q: f"q{q}" for q in range(4)})
    for k in range(1, 6):
        assert max(i for i, x in enumerate(part) if f"#x{k}_" in x) < part.index(f"@wait - lds={xt(k)}"), k
    for k in range(0, 6):
        assert max(i for i, x in enumerate(part) if f"#w{k}_" in x) < part.index(f"@wait st{k+1} lds={xt(k)},{wt(k)}"), k
    o += part
    o += qs()
    o += [rd_k(1, n) for n in EARLY_K]
    o += [f"v_mov_b32 {vr(vT+j)}, 0" for j in range(4)]
    o.append(f"buffer_store_dwordx4 {vr(vT,4)}, {vr(vLIN)}, {sr(sFL,4)}, 0 offen sc1 ; #wst")
    if CFG["verbose"]: print("QK0 leftover VALU:", len(left))
    ini = []
    lf_ = [t for t, _, _ in left]
    i = 0
    while i < len(lf_):
        m1 = re.match(r"v_add_f32 v(\d+), v\d+, v(\d+)", lf_[i])
        if m1 and int(m1.group(1)) % 2 == 0 and i + 1 < len(lf_) and lf_[i+1].startswith(f"v_add_f32 v{int(m1.group(1))+1},"):
            r = int(m1.group(1)); ini.append(f"v_pk_add_f32 {vr(r,2)}, {vr(r,2)}, {vr(int(m1.group(2)),2)}"); i += 2
        else: ini.append(lf_[i]); i += 1
    ex_ = [exp_i(0, it[1]) for it in E_FIRST if it[0] == "exp"]; cv_ = [cvt_i(0, it[1]) for it in E_FIRST if it[0] == "cvt"]
    ini += ex_ + cv_
    G = wo_stores() + (kv("K3", "V2") if DIST == 4 else [])
    G[0] = ["@wait - lds=wo"] + G[0]
    for i, g in enumerate(G):
        k = (i + 1) * len(ini) // (len(G) + 1)
        ini = ini[:k] + g + ini[k:]
    o += ini
    if CFG.get("nomax"): o.append("s_mov_b64 vcc, 0")
    o.append("@wait - lds=k0,k1,k2,k3")
    o += stamp()
    qd = CFG.get("qdiag", "")
    if "x" in qd: o = [x for x in o if not (re.search(r"#st[2-7]", x) and f"{sr(sX,4)}" in x)]
    if "r" in qd: o = [x for x in o if not re.search(r"#x[2-7]_", x)]
    if "w" in qd: o = [x for x in o if not (re.search(r"#st[2-7]", x) and f"{sr(sWQ,4)}" in x)]
    if "v" in qd: o = [x for x in o if not re.search(r"#w[2-7]_", x)]
    o, fifo, lf = resolve(o, [])
    return o, fifo, lf

sOFS = [64, 65, 3, 31, 98]
def phase_c_early():
    o = []; A = o.append
    t0, t1, t2 = sT, sT + 1, sT + 2
    A(f"s_lshr_b32 {sr(sHO)}, {sr(sH)}, 3")
    if CFG.get("hord", "m") == "c":
        A(f"s_and_b32 {sr(t0)}, {sr(sB)}, 3"); A(f"s_lshl_b32 {sr(t0)}, {sr(t0)}, 1"); A(f"s_and_b32 {sr(t1)}, {sr(sH)}, 1"); A(f"s_add_u32 {sr(t0)}, {sr(t0)}, {sr(t1)}")
        A(f"s_sub_u32 {sr(t1)}, {sr(sH)}, {sr(t0)}"); A(f"s_and_b32 {sr(t1)}, {sr(t1)}, 7"); A(f"s_lshl_b32 {sr(t0)}, {sr(t0)}, 13")
        A(f"s_and_b32 {sr(sHP)}, {sr(sH)}, 7"); A(f"s_lshl_b32 {sr(sHP)}, {sr(sHP)}, 13")
        for p in range(1, 8):
            A(f"s_cmp_gt_u32 {sr(t1)}, {p-1}"); A(f"s_cselect_b32 {sr(sHP+p)}, {p-1}, {p}")
            A(f"s_lshl_b32 {sr(sHP+p)}, {sr(sHP+p)}, 13"); A(f"s_add_u32 {sr(sHP+p)}, {sr(sHP+p)}, {sr(t0)}"); A(f"s_and_b32 {sr(sHP+p)}, {sr(sHP+p)}, 0xffff")
    else:
        A(f"s_and_b32 {sr(t0)}, {sr(sB)}, 3"); A(f"s_lshl_b32 {sr(t0)}, {sr(t0)}, 14"); A(f"s_add_u32 {sr(t0)}, {sr(t0)}, 8192")
        A(f"s_and_b32 {sr(sHP)}, {sr(sH)}, 7"); A(f"s_lshl_b32 {sr(sHP)}, {sr(sHP)}, 13")
        for p in range(1, 8):
            A(f"s_add_u32 {sr(sHP+p)}, {sr(sHP+p-1)}, {sr(t0)}"); A(f"s_and_b32 {sr(sHP+p)}, {sr(sHP+p)}, 0xffff")
    A(f"s_lshl_b32 {sr(sW2K)}, {sr(sWAVE)}, 11")
    A(f"s_and_b32 {sr(t0)}, {sr(sH)}, 6"); A(f"s_lshl_b32 {sr(t0)}, {sr(t0)}, 1"); A(f"s_add_u32 {sr(t0)}, {sr(t0)}, {sr(sWAVE)}")
    A(f"s_lshl_b32 {sr(t0)}, {sr(t0)}, 18"); A(f"s_lshl_b32 {sr(t2)}, {sr(sHO)}, 16"); A(f"s_add_u32 {sr(t0)}, {sr(t0)}, {sr(t2)}")
    A(f"s_add_u32 {sr(t0)}, {sr(t0)}, {WOF_OFF}"); A(f"s_sub_u32 {sr(t0)}, {sr(t0)}, {sr(sW4K)}")
    A(f"s_mov_b32 {sr(sOFS[0])}, {sr(t0)}")
    A(f"s_and_b32 {sr(t0)}, {sr(sH)}, 1"); A(f"s_lshl_b32 {sr(t1)}, {sr(sB)}, 1"); A(f"s_add_u32 {sr(t0)}, {sr(t0)}, {sr(t1)}")
    A(f"s_lshl_b32 {sr(t1)}, {sr(t0)}, 20"); A(f"s_add_u32 {sr(t1)}, {sr(t1)}, {sr(t2)}")
    A(f"s_mov_b32 {sr(sOFS[1])}, {sr(t1)}")
    A(f"s_lshl_b32 {sr(t0)}, {sr(t0)}, 17"); A(f"s_lshl_b32 {sr(t1)}, {sr(sHO)}, 15"); A(f"s_add_u32 {sr(t0)}, {sr(t0)}, {sr(t1)}")
    A(f"s_and_b32 {sr(t1)}, {sr(sH)}, 6"); A(f"s_lshl_b32 {sr(t1)}, {sr(t1)}, 7"); A(f"s_add_u32 {sr(t0)}, {sr(t0)}, {sr(t1)}")
    o += srd_at(sOUT, 10, sr(t0), 31 * 1024 + 256)
    A(f"s_lshl_b32 {sr(t0)}, {sr(sB)}, 12"); A(f"s_lshl_b32 {sr(t1)}, {sr(sHO)}, 10"); A(f"s_add_u32 {sr(t0)}, {sr(t0)}, {sr(t1)}")
    A(f"s_add_u32 {sr(t0)}, {sr(t0)}, {FLAG_OFF}")
    o += srd_at(sFLR, 14, sr(t0), 4)
    A(f"s_and_b32 {sr(t0)}, {sr(sH)}, 7"); A(f"s_lshl_b32 {sr(t1)}, {sr(sB)}, 5"); A(f"s_add_u32 {sr(t0)}, {sr(t0)}, {sr(t1)}")
    A(f"s_lshl_b32 {sr(t1)}, {sr(t0)}, 16"); A(f"s_lshl_b32 {sr(t2)}, {sr(sHO)}, 14"); A(f"s_add_u32 {sr(t1)}, {sr(t1)}, {sr(t2)}")
    A(f"s_add_u32 {sr(t1)}, {sr(t1)}, {PART_OFF}")
    A(f"s_mov_b32 {sr(sOFS[2])}, {sr(t1)}")
    A(f"s_lshl_b32 {sr(t1)}, {sr(t0)}, 7"); A(f"s_lshl_b32 {sr(t2)}, {sr(sHO)}, 2"); A(f"s_add_u32 {sr(t1)}, {sr(t1)}, {sr(t2)}")
    A(f"s_add_u32 {sr(t1)}, {sr(t1)}, {FLAG_OFF + 16}")
    A(f"s_mov_b32 {sr(sOFS[3])}, {sr(t1)}")
    A(f"s_lshl_b32 {sr(t1)}, {sr(sB)}, 5"); A(f"s_add_u32 {sr(t1)}, {sr(t1)}, {sr(sH)}"); A(f"s_lshl_b32 {sr(t1)}, {sr(t1)}, 16")
    A(f"s_add_u32 {sr(t1)}, {sr(t1)}, {PART_OFF}")
    A(f"s_mov_b32 {sr(sOFS[4])}, {sr(t1)}")
    return o

def phase_c_srds():
    return sum([srd_at(s_, 14, sr(f_), n_) for s_, f_, n_ in zip((sWFL, sOL, sPS, sPF2, sPL), sOFS,
                (65536 + 3 * 4096, 3 * 262144 + 65536, 3 * 524288 + 16384, 4, 65536))], [])

def acc(k, q2, t): return vS + 64 + 16 * k + 4 * (q2 * 2 + t)
def gsel(k, dst, sh): return [f"s_add_u32 {sr(dst)}, {sr(sHO)}, {k + 1}", f"s_and_b32 {sr(dst)}, {sr(dst)}, 3", f"s_lshl_b32 {sr(dst)}, {sr(dst)}, {sh}"]
def ofr(u, kl, q2): return 256 + 32 * (u % 2) + 4 * (kl * 2 + q2)
def sub_mfmas(k, v, pos):
    mf = []
    for j, (q2, t) in enumerate(((0, 0), (0, 1), (1, 1), (1, 0))):
        for i in range(4):
            kl = i if j % 2 == 0 else 3 - i
            d = vr(acc(k, q2, t), 4)
            mf.append(f"{MF} {d}, {rr(WREG[(pos * 4 + kl) * 2 + t],4)}, {rr(ofr(v,kl,q2),4)}, {d if (pos or i) else 0}")
    return mf
def tail_and_epilogue(u):
    p = u % 2
    o = []
    reads = [rd_v(slotV(15), n, t) for n in range(16) for t in range(2)]
    er = [(exp_i(p, it[1]), UNITS[it[1] // 8][1]) if it[0] == "exp" else (cvt_i(p, it[1]), UNITS[it[1] // 4][1]) for it in E_REST]
    va = []
    for i, (t, q) in enumerate(er):
        if t.startswith("v_cvt") and i and er[i-1][0].startswith("v_exp"): va.append(("s_nop 0", 0, f"e{q}"))
        va.append((t, 0, f"e{q}"))
    mf = []
    for qb in range(4):
        mf += [sum_one(p, qb, 0), sum_one(p, qb, 1)]
        mf += [pv_one(p, dt, qb, (i if dt % 2 == 0 else 1 - i)) for dt in range(8) for i in range(2)]
    vOST = vCW
    if CFG.get("local"): va.append((f"v_cmp_ne_u32 {sr(sGLB,2)}, {sr(sXCC)}, {vr(vCW)}", 0, "x"))
    va.append((f"v_and_b32 {vr(vOST)}, 0x3ff, {vr(vLIN)}", 0, "x"))
    tmp = 2
    NMF = len(mf)
    fill = {0: [], 1: [], 2: [], 3: []}
    tail_names = CFG.get("tailw", "").split(",")
    post_names = [x for x in ("R3u", "R3", "R5") if x not in tail_names and not (x == "R3u" and CFG.get("r3u"))]
    for qb in range(4):
        e0 = 18 * qb
        lsum = [f"v_mov_b32 {vr(vT+qb)}, {vr(vL+4*qb)}"] + allreduce("v_add_f32", vT + qb, vMX) + [f"v_rcp_f32 {vr(vT+qb)}, {vr(vT+qb)}"]
        va += [(t, max(12, e0 + 1 + 3), f"o{qb}") for t in lsum]
        F = fill[qb]
        for s in range(4):
            e = e0 + 2 + 4 * s + 3 + 3
            b_ = tmp + 8 * (s % 2)
            va += [(f"v_accvgpr_read_b32 {vr(b_+j)}, {ar(Oreg(qb,2*s)+j)}", e, f"o{qb}") for j in range(8)]
            va += [(f"@mul {b_+j} {vT+qb}", e, f"o{qb}") for j in range(8)]
            d = Ureg(p, s // 2, qb) + 4 * (1 - s % 2)
            ee = e0 + 17 if s % 2 == 1 else e
            va += [(f"v_cvt_pk_bf16_f32 {vr(d+j)}, {vr(b_+2*j)}, {vr(b_+2*j+1)}", max(e, ee), f"o{qb}") for j in range(4)]
            ld = flat(F[s * len(F) // 4:(s + 1) * len(F) // 4])
            va += [(t, NMF - 1 if qb == 3 else e, f"o{qb}") for t in ld]
            va += [(f"s_mov_b32 {sr(sT)}, {(qb//2)*262144 + (s//2)*4096}", e, f"o{qb}"),
                   (f"buffer_store_dwordx4 {vr(d,4)}, {vr(vOST)}, {sr(sO,4)}, {sr(sT)} offen offset:{(s%2)*2048 + (qb%2)*1024} {CFG.get('ost', 'plain' if CFG.get('local') else 'sc1').replace('+', ' ').replace('plain', '')} ; #ost", e, f"o{qb}")]
    if CFG.get("tord", True):
        E = {q: [x for x in va if x[2] == f"e{q}"] for q in range(4)}
        X = [x for x in va if x[2] == "x"]
        O_ = {q: [x for x in va if x[2] == f"o{q}"] for q in range(4)}
        rest = E[0] + E[1] + E[2] + E[3]
        n0 = int(CFG.get("tn0", 10))
        head, rest = rest[:n0], rest[n0:]
        r2 = [x for x in rest if x[2] != "e3"]; r3 = [x for x in rest if x[2] == "e3"]
        va = X + head + O_[0] + r2 + O_[1] + r3 + O_[2] + O_[3]
    va = [((f"v_mul_f32 {vr(int(t.split()[1]))}, {vr(int(t.split()[1]))}, {vr(int(t.split()[2]))}" if t.startswith("@mul") else t), e, k) for t, e, k in va]
    o += reads[:12]
    nvm = spread(pairs(reads[12:]), list(range(0, 10)))
    pre = {2 + 2 * dt: [f"@wait - lds=v{2*dt},v{2*dt+1}"] for dt in range(8)}
    early = sum([wo_loads(x) for x in tail_names if x], [])
    if early: nvm = merge(nvm, spread(early, list(range(10, int(CFG.get("tailhi", 44)), 2))))
    part, left = weave(mf, nvm, va, pre=pre, need={18 * q: f"e{q}" for q in range(4)})
    o += part
    o += stamp()
    o.append("s_nop 7")
    lf_ = [t for t, _, _ in left]
    i = 0
    while i < len(lf_):
        m1 = re.match(r"v_mul_f32 v(\d+), v\d+, v(\d+)", lf_[i]); m2 = re.match(r"v_mul_f32 v(\d+), v\d+, v(\d+)", lf_[i+1]) if i + 1 < len(lf_) else None
        if m1 and m2 and int(m1.group(1)) % 2 == 0 and int(m2.group(1)) == int(m1.group(1)) + 1:
            r = int(m1.group(1)); f_ = int(m1.group(2))
            sel = "op_sel_hi:[1,0]" if f_ % 2 == 0 else "op_sel:[0,1] op_sel_hi:[1,1]"
            o.append(f"v_pk_mul_f32 {vr(r,2)}, {vr(r,2)}, {vr(f_ - f_ % 2,2)} {sel}"); i += 2
        else:
            o.append(lf_[i]); i += 1
    A = o.append
    A(f"v_mov_b32 {vr(vMX)}, 1")
    A(f"v_and_b32 {vr(vT)}, 7, v0"); A(f"v_lshlrev_b32 {vr(vT)}, 7, {vr(vT)}")
    A(f"v_add_u32 {vr(vKA)}, 0x10000, {vr(vOST)}")
    A(f"s_mov_b32 {sr(sCNT)}, 0")
    if CFG.get("forceglobal"): A(f"s_mov_b64 {sr(sGLB,2)}, -1")
    if CFG.get("local"): A(f"s_and_b32 {sr(sGLB)}, {sr(sGLB)}, 0xff"); A(f"s_cmp_lg_u32 {sr(sGLB)}, 0")
    mode = CFG.get("sync", "cnt1")
    cnt = mode.startswith("cnt"); one = mode.endswith("1")
    assert cnt
    post = sum([wo_loads(x) for x in post_names], [])
    A(f"s_lshl_b32 {sr(sT)}, {sr(sWAVE)}, 14"); A(f"v_add_u32 v10, {sr(sT)}, {vr(vOST)}")
    for qb in range(4):
        for s_ in range(4):
            d = Ureg(p, s_ // 2, qb) + 4 * (1 - s_ % 2)
            A(f"ds_write_b128 v10, {vr(d,4)} offset:{(qb//2)*8192 + s_*2048 + (qb%2)*1024}")
    A(f"s_and_b32 {sr(sT+1)}, {sr(sH)}, 1"); A(f"s_lshl_b32 {sr(sT+1)}, {sr(sT+1)}, 15")
    for k in range(4):
        o += gsel(k, sT, 13) + [f"s_add_u32 {sr(sT)}, {sr(sT)}, {sr(sT+1)}", f"v_add_u32 {vr(11+k)}, {sr(sT)}, {vr(vOST)}"]
    A("@wait w7 lgkm=0"); A("s_barrier")
    ord_ = lambda k: [f"ds_read_b128 {rr(ofr(k,kl,q2),4)}, {vr(11+k)} offset:{(kl*2+q2)*1024} ; #h{k}_{q2}" for q2 in range(2) for kl in range(4)]
    NB = int(CFG.get("nbef", 2))
    def own(k, extra):
        nv = {7: [f"@wait - lds=h{k}_1"]}
        if k < 3:
            r = ord_(k + 1)
            for j, g in enumerate((0, 2, 4, 6)): nv.setdefault(g, []).extend(r[2*j:2*j+2])
        if extra: nv = merge(nv, spread(extra, [1, 3, 5, 8, 9, 10, 11, 12, 13, 14, 15]))
        return [f"@wait - lds=h{k}_0"] + weave(sub_mfmas(k, k, 0), nv)[0]
    o += ord_(0)
    npre = int(CFG.get("npost", 0))
    for k in range(NB):
        n_ = min(8, npre); o += own(k, post[:n_]); post = post[n_:]; npre -= n_
    A("@wait ost")
    A("s_barrier")
    if cnt: A(f"buffer_atomic_add {vr(vMX)}, {vr(vLIN)}, {sr(sFLR,4)}, 0 offen sc1 ; #flag")
    else: A(f"buffer_store_dword {vr(vMX)}, {vr(vLIN)}, {sr(sFL,4)}, 0 offen sc1 ; #flag")
    o += stamp()
    pl = f"buffer_load_dword {vr(vT+1)}, off, {sr(sFLR,4)}, 0 sc1" if cnt else f"buffer_load_dword {vr(vT+1)}, {vr(vT)}, {sr(sFLR,4)}, 0 offen sc1"
    want = 8 if cnt else 1
    NL = int(CFG.get("nlate", 0)); PL = int(CFG.get("plate", 0))
    latep = post[len(post) - PL:] if PL else []
    latep = [[x.replace(sr(sSP), sr(sTK)) for x in g] for g in latep]
    post = post[:len(post) - PL]
    for k in range(NB, 4 - NL):
        n_ = min(8, len(post)); o += own(k, post[:n_]); post = post[n_:]
    LATE.clear()
    for k in range(4 - NL, 4):
        n_ = min(8, len(latep)); LATE.extend(own(k, latep[:n_])); latep = latep[n_:]
    LATE.extend(flat(latep))
    o += flat(post)
    pw = int(CFG.get("pollwave", 1))
    if one: A(f"s_cmp_lg_u32 {sr(sWAVE)}, {pw}"); A("s_cbranch_scc1 L_go")
    NP_ = int(CFG.get("npoll", 1))
    pr = lambda j: pl.replace(vr(vT+1), vr(vT+j), 1) + " ; #~poll"
    for j in range(NP_ - 1):
        A(pr(j))
        if int(CFG.get("pgap", 0)): A("s_sleep " + str(int(CFG["pgap"])))
    A("L_poll:")
    for j in range(NP_):
        A(pr((j - 1) % NP_))
        A(f"s_waitcnt vmcnt({NP_ - 1}) ; keep")
        A(f"v_cmp_ne_u32 vcc, {want}, {vr(vT+j)}")
        A("s_cbranch_vccz L_go")
    A(f"s_add_u32 {sr(sCNT)}, {sr(sCNT)}, 1")
    A(f"s_cmp_lt_u32 {sr(sCNT)}, {CFG['spin']}")
    A("s_cbranch_scc1 L_poll")
    A("L_go:")
    if one: A("s_barrier")
    if CFG.get("local"): A(f"s_cmp_lg_u32 {sr(sGLB)}, 0"); A("s_cbranch_scc1 L_acq")
    A("L_acq_back:")
    o += stamp()
    return o

STAGED = []
LATE = []
def phase_c():
    o = []; A = o.append
    vOST = vCW
    D = int(CFG.get("cdist", 4))
    NS = 28
    LANDK = {2: vL, 1: vL + 8, 0: 10}
    OWN = acc(3, 0, 0)
    def dma(v):
        k, p = v // 7, 1 + v % 7
        g = []
        if v % 7 == 0: g += gsel(k, sG, 18) + [f"s_add_u32 {sr(sG)}, {sr(sG)}, {sr(sW2K)}"]
        g += [f"s_add_u32 {sr(sSP)}, {sr(sG)}, {sr(sHP+p)}", f"s_add_u32 m0, {sr(sW2K)}, {((v + 8) % 16) * 8192}", "s_nop 0"]
        ld = lambda j: f"buffer_load_dwordx4 {vr(vOST)}, {sr(sOL,4)}, {sr(sSP)} offen offset:{j*1024} sc1 lds ; #c{v // 2}"
        return [g + [ld(0)], [ld(1)]]
    def reads(v):
        base = ((v + 8) % 16) * 8192
        return [f"ds_read_b128 {rr(ofr(v,kl,q2),4)}, {vr(vKA if base >= 65536 else vOST)} offset:{base % 65536 + (kl*2+q2)*1024} ; #u{v}_{q2}" for q2 in range(2) for kl in range(4)]
    N0 = int(CFG.get("n0", 2 * D))
    for v in range(N0): o += flat(dma(v))
    nxv = [N0]
    o += LATE
    o += ["@wait c0", "s_barrier"] + stamp() + reads(0)
    N1 = int(CFG.get("n1", N0))
    for v in range(N0, N1): o += flat(dma(v))
    nxv = [max(N0, N1)]
    mf = []; nvm = {}; pre = {}; vm = {}
    pfg = int(CFG.get("pfg", 44))
    FB = {}
    for k in range(3): FB[k] = min(v for v in range(1, NS, 2) if 16 * v >= 112 * (k + 1) + pfg)
    for v in range(NS):
        k = v // 7
        mf += sub_mfmas(k, v, 1 + v % 7)
        g0 = 16 * v
        wt_ = ",".join(f"w{f}" for f in range(8 * (1 + v % 7), 8 * (2 + v % 7)))
        (nvm.setdefault(g0 - 1, []) if v else o).append(f"@wait {wt_} lds=u{v}_0")
        nvm.setdefault(g0 + 7, []).append(f"@wait - lds=u{v}_1")
        if v + 1 < NS:
            if v % 2 == 1:
                kk = [x for x in range(3) if FB[x] == v]
                pre.setdefault(g0, []).append(f"@wait c{v // 2 + 1}" + (f",p{kk[0]}" if kk else ""))
                nvm.setdefault(g0, []).append("s_barrier")
                if kk:
                    vm[g0 + 2] = gsel(kk[0], sT, 10) + [f"s_add_u32 {sr(sPF2+2)}, {sr(sT)}, 4",
                                   f"buffer_store_dword {vr(vMX)}, {vr(vLIN)}, {sr(sPF2,4)}, {sr(sT)} offen sc1 ; #pf"]
            r = reads(v + 1)
            for j, g in enumerate((1, 3, 6, 8)): nvm.setdefault(g0 + g, []).extend(r[2*j:2*j+2])
        n2 = min(2, NS - nxv[0], v + 2 * D + 1 - nxv[0])
        G_ = sum([dma(nxv[0] + j) for j in range(max(n2, 0))], []); nxv[0] += max(n2, 0)
        for grp, g in zip(G_, (5, 12) if n2 == 1 else (4, 5, 11, 12)): vm[g0 + g] = [x for x in grp if x != "s_nop 0"]
        if v % 7 == 0 and v:
            kk = k - 1
            for q2 in range(2):
                a0 = acc(kk, q2, 0); pk = 2 + 4 * q2; e = g0 - 6 if q2 == 0 else g0 + 2
                for j in range(4): nvm.setdefault(e + (j // 2) * (1 if q2 == 0 else 2), []).append(f"v_cvt_pk_bf16_f32 {vr(pk + j)}, {vr(a0 + 2*j)}, {vr(a0 + 2*j + 1)}")
                g = g0 - 3 if q2 == 0 else g0 + 7
                while g in vm: g += 1
                vm[g] = (gsel(kk, sTK, 19) if q2 == 0 else []) + [f"buffer_store_dwordx4 {vr(pk, 4)}, {vr(vLIN)}, {sr(sPS,4)}, {sr(sTK)} offen offset:{q2*1024} sc1 ; #p{kk}"]
    assert FB[2] < NS - 1
    STAGED.clear()
    em = int(CFG.get("em", 40))
    for n in range(2):
        k = 2 - n
        gp = 16 * FB[n] + 2 + em
        gp = gp - gp % 16 + 9 + (16 if gp % 16 > 9 else 0)
        while gp in vm: gp += 1
        vm[gp] = gsel(k, sTILE, 2) + [f"buffer_load_dword {vr(vT+1)}, off, {sr(sFL,4)}, {sr(sTILE)} offset:16 sc1 ; #e{k}"]
        g1 = gp - gp % 16 + 48 + 9
        nvm.setdefault(g1, []).extend([f"@wait e{k}", f"v_cmp_ne_u32 vcc, 1, {vr(vT+1)}"])
        nvm.setdefault(g1 + 1, []).extend([f"s_cbranch_vccnz L_e{k}", f"L_e{k}_back:"])
        for j, g in enumerate((g1 + 5, g1 + 9)):
            while g in vm: g += 1
            vm[g] = ([f"s_lshl_b32 {sr(sTILE)}, {sr(sTILE)}, 12"] if j == 0 else []) + [f"buffer_load_dwordx4 {vr(LANDK[k] + 4*j, 4)}, {vr(vLIN)}, {sr(sPL,4)}, {sr(sTILE)} offen offset:{j*1024} sc1 ; #l{k}"]
        STAGED.append(k)
    lastpoll = NS * 16 - int(CFG.get("lp", 12))
    vm[lastpoll] = gsel(0, sTILE, 2) + [f"buffer_load_dword {vr(vT+1)}, off, {sr(sFL,4)}, {sr(sTILE)} offset:16 sc1 ; #lp"]
    prev = -1
    for g in sorted(vm):
        grp = vm[g]; sca = grp[:-1]
        lo = max([prev] + [q for q in range(g) if any(x.startswith("L_e") for x in nvm.get(q, []))])
        free = [q for q in range(lo + 1, g) if not any(x.startswith(("s_", "@")) for x in nvm.get(q, []))]
        if len(free) >= len(sca):
            for x, q in zip(sca, free[len(free) - len(sca):]): nvm.setdefault(q, []).insert(0, x)
        elif g - 1 > lo: nvm[g - 1] = sca + nvm.get(g - 1, [])
        else: nvm[g] = sca + ["s_nop 0"] + nvm.get(g, [])
        nvm.setdefault(g, []).append(grp[-1]); prev = g
    ad = ["v_and_b32 v10, 15, v0", "v_lshrrev_b32 v11, 4, v0", "v_lshlrev_b32 v11, 4, v11", "v_lshl_add_u32 v18, v10, 10, v11"]
    def unpack(k):
        u_ = acc(k, 0, 0)
        return [x for j in range(8) for x in (f"v_lshlrev_b32 {vr(u_+2*j)}, 16, {vr(LANDK[k]+j)}", f"v_and_b32 {vr(u_+2*j+1)}, 0xffff0000, {vr(LANDK[k]+j)}")]
    gs = NS * 16 - 44
    va = [(x, 20, "a") for x in ad] + [("@wait l2,l1", gs, "b")] + [(x, gs, "b") for x in unpack(2) + unpack(1)]
    va += [(f"v_add_f32 {vr(acc(1,0,0)+j)}, {vr(acc(1,0,0)+j)}, {vr(acc(2,0,0)+j)}", gs, "b") for j in range(16)]
    part, lft = weave(mf, nvm, va, pre=pre)
    o += part
    o += stamp()
    o += [x for x, _, _ in lft]
    A(f"s_mov_b32 {sr(sCNT)}, 0")
    A("@wait lp")
    A(f"v_cmp_ne_u32 vcc, 1, {vr(vT+1)}")
    A("s_cbranch_vccz L_go2")
    A("L_poll2:")
    A(f"buffer_load_dword {vr(vT+1)}, off, {sr(sFL,4)}, {sr(sTILE)} offset:16 sc1")
    A("s_waitcnt vmcnt(0)")
    A(f"v_cmp_ne_u32 vcc, 1, {vr(vT+1)}")
    A("s_cbranch_vccz L_go2")
    A(f"s_add_u32 {sr(sCNT)}, {sr(sCNT)}, 1")
    A(f"s_cmp_lt_u32 {sr(sCNT)}, {CFG['spin']}")
    A("s_cbranch_scc1 L_poll2")
    A("L_go2:")
    o += stamp()
    A(f"s_lshl_b32 {sr(sTILE)}, {sr(sTILE)}, 12")
    for j in range(2): A(f"buffer_load_dwordx4 {vr(LANDK[0] + 4*j, 4)}, {vr(vLIN)}, {sr(sPL,4)}, {sr(sTILE)} offen offset:{j*1024} sc1 ; #l0")
    A("s_nop 4")
    for j in range(0, 16, 2): A(f"v_pk_add_f32 {vr(OWN+j,2)}, {vr(OWN+j,2)}, {vr(acc(1,0,0)+j,2)}")
    A(f"s_mov_b32 {sr(sT)}, 16384")
    A("@wait l0")
    o += unpack(0)
    for j in range(0, 16, 2): A(f"v_pk_add_f32 {vr(OWN+j,2)}, {vr(OWN+j,2)}, {vr(acc(0,0,0)+j,2)}")
    for q2 in range(2):
        for j in range(4): A(f"v_cvt_pk_bf16_f32 {vr(2 + 4*q2 + j)}, {vr(OWN + 8*q2 + 2*j)}, {vr(OWN + 8*q2 + 2*j + 1)}")
        A(f"buffer_store_dwordx4 {vr(2 + 4*q2, 4)}, v18, {sr(sOUT,4)}, {sr(sT) if q2 else 0} offen {CFG.get('outst', '').replace('+', ' ')}")
    return o

def peeled(lf):
    o = [f"s_mov_b32 {sr(sT)}, 0xe00fe000", f"v_cmp_ne_u32 vcc, {sr(sT)}, {vr(vCW)}", "s_cbranch_vccnz L_cw", "L_cw_back:"]
    for i in range(PEEL0, 15):
        loads = []
        tp = CFG.get("tpol", "nt").replace("+", " ")
        def touch(j, half):
            return [f"s_mov_b32 {sr(sDT)}, {j * 262144 + half * 4096}", f"s_mov_b32 {sr(sO+2)}, {j * 262144 + half * 4096 + 4096}",
                    f"buffer_load_dword {ar(240 + 2*j + half)}, {vr(vCW)}, {sr(sO,4)}, {sr(sDT)} offen {tp} ; #tch"]
        T = [touch(j, h_) for j in range(2) for h_ in range(2)] if CFG.get("local") and tp != "none" else []
        tsch = [int(x) for x in CFG.get("tsch", "13,13,13,13").split(",")]
        mine = [t for t, k in zip(T, tsch) if k == i]
        if i == 12 and CFG.get("local"):
            ids = [[f"v_and_b32 {vr(vCW)}, 63, v0", f"v_lshlrev_b32 {vr(vCW)}, 7, {vr(vCW)}", f"s_nop 0",
                    f"buffer_load_dword {ar(239)}, {vr(vCW)}, {sr(sFLR,4)}, 0 offen offset:4 sc1 ; #ids"]]
            loads = [(ids + mine, 0, NG)]
        fixed = {}
        if i == 12 and CFG.get("wtouch", False):
            tg = [int(x) for x in CFG.get("wtg", "65,68,93,107").split(",")]
            NP = len(tg)
            fixed[64] = [f"v_and_b32 {vr(vCW)}, {64 // NP - 1}, v0", f"v_lshlrev_b32 {vr(vCW)}, 7, {vr(vCW)}"]
            for j, g in enumerate(tg):
                off = j * 8192 // NP
                fixed.setdefault(g, []).append(f"buffer_load_dword {ar(252 + j)}, {vr(vCW)}, {sr(sWFL,4)}, {sr(sRX if off >= 4096 else sRW)} offen offset:{off % 4096} sc1 ; #wt")
        if i == 12 and int(CFG.get("r1n12", 0)): loads = [(wo_loads("R1")[:int(CFG["r1n12"])], 0, NG)]
        r1at = int(CFG.get("r1at", 14))
        if i == 13:
            g = mine + (wo_loads("R1")[:8] if r1at == 13 else [])
            if not CFG.get("local"): g = wo_loads("R1")[8:]
            loads = [(g, int(CFG.get("r1lo", 24)), int(CFG.get("r1hi", 75)))] if g else []
        if i == 14:
            loads = [(wo_loads("R2") + wo_loads("R4") + (wo_loads("R3u") if CFG.get("r3u") else []), 64, NG)]
            if int(CFG.get("r1n13", 8)) < 16: loads.insert(0, (wo_loads("R1")[:8], 0, 64))
            if CFG.get("local"):
                chk = [f"@wait ids,tch", f"v_accvgpr_read_b32 {vr(vCW)}, {ar(239)}"]
                r1 = wo_loads("R1")[(8 if r1at == 13 else 0):]
                k8 = len(r1) - 8
                r1[k8] = chk + r1[k8]
                loads.insert(0, (r1, 0, 64))
        o += iteration(i, f"L_r{i}", loads, phase_c_srds() if i == PEEL0 else (), fixed)
    o += stamp()
    o += tail_and_epilogue(3)
    o += phase_c()
    fifo = [f"K{PEEL0+2}"] * 4 + [f"V{PEEL0+1}"] * 4
    if CFG.get("skipst"): o = [x for x in o if "#ost" not in x]
    if CFG.get("skipp"): o = [x for x in o if not re.search(r"#p\d", x)]
    o, _, _ = resolve(o, fifo, lf)
    return o

def stamp_out():
    if not CFG["stamps"]: return []
    o = ["s_waitcnt vmcnt(0)"] + stamp()
    A = o.append
    A(f"s_lshl_b32 {sr(sT)}, s2, 10"); A(f"s_add_u32 {sr(sT)}, {sr(sT)}, {STAMP_OFF}")
    o += srd_at(4, 14, sr(sT), 1024)
    A("v_lshlrev_b32 v1, 2, v0")
    A(f"buffer_store_dword v{STV}, v1, s[4:7], 0 offen")
    if CFG.get("dbgout"):
        o += srd_at(4, 12, "0", 64)
        A("v_and_b32 v2, 63, v0")
        A("v_lshlrev_b32 v1, 1, v2"); A("v_add_u32 v1, 6, v1")
        A("v_and_b32 v3, 1, v2"); A("v_cmp_eq_u32 vcc, 0, v3"); A("v_mov_b32 v3, 0x1000"); A("s_nop 1")
        A("v_cndmask_b32 v1, v1, v3, vcc")
        A(f"v_cmp_lt_u32 vcc, {2*nstamp[0]}, v2"); A("s_nop 1"); A("v_cndmask_b32 v1, v1, v3, vcc")
        A(f"buffer_atomic_umax v{STV}, v1, s[4:7], 0 offen sc1")
        A(f"v_not_b32 v4, v{STV}")
        A("v_cmp_eq_u32 vcc, 1, v2"); A("s_nop 1"); A("v_cndmask_b32 v1, v3, 4, vcc")
        A(f"buffer_atomic_umax v4, v1, s[4:7], 0 offen sc1")
    return o

def kernel():
    pro, fifo, lf0 = prologue()
    _, _, lf = resolve(iteration(0, "x") + iteration(1, "x"), [])
    its = []
    for u in range(4):
        it, _, lf2 = resolve(iteration(u, f"L_r{u}"), [], lf)
        assert lf2 == lf
        its.append(it)
    assert len(lf0) >= len(lf) and lf0[len(lf0)-len(lf):] == lf or CFG["stamps"] or CFG.get("probe"), (lf0, lf)
    pe = peeled(lf)
    body = list(pro)
    body.append("L_loop:")
    for u in range(4):
        it = list(its[u])
        if u == 3:
            k = [i for i, x in enumerate(it) if x.startswith(MF)]
            it.insert(k[-3] + 1, f"s_cmp_lt_u32 {sr(sCNT)}, {NPASS}")
            it.insert(k[-4] + 1, f"s_add_u32 {sr(sCNT)}, {sr(sCNT)}, 1")
            it.append("s_cbranch_scc1 L_loop")
            its[3] = it
        body += it
    body += pe
    body += stamp_out()
    if CFG.get("fixdur"):
        body += ["L_fix:", "s_memrealtime s[40:41]", "s_waitcnt lgkmcnt(0)", "s_sub_u32 s40, s40, s42", f"s_cmp_lt_u32 s40, {int(CFG['fixdur'])*100}", "s_cbranch_scc1 L_fix"]
    body.append("L_end:")
    body.append("s_endpgm")
    for u in list(range(4)) + list(range(PEEL0, 15)):
        body += [f"L_r{u}a:", f"s_call_b64 {sr(sRET,2)}, L_ra{1 - u % 2}", f"s_branch L_r{u}a_back"]
        if CFG.get("evslow"): body += [f"L_r{u}z:", f"s_nop {int(CFG['evslow'][1:])}", f"s_branch L_r{u}z_back"]
        body += [f"L_r{u}b:", f"s_call_b64 {sr(sRET,2)}, L_rb", f"s_branch L_r{u}b_back"]
    body += ["L_cw:", f"s_mov_b32 {sr(sCNT)}, 0", "L_cw_loop:",
             f"v_and_b32 {vr(vCW)}, 3, v0", f"v_lshlrev_b32 {vr(vCW)}, 6, {vr(vCW)}",
             f"buffer_load_dword {vr(vCW)}, {vr(vCW)}, {sr(sDB,4)}, 0 offen sc1", "s_waitcnt vmcnt(0)",
             f"v_cmp_ne_u32 vcc, {sr(sT)}, {vr(vCW)}", "s_cbranch_vccz L_cw_back",
             f"s_add_u32 {sr(sCNT)}, {sr(sCNT)}, 1", f"s_cmp_lt_u32 {sr(sCNT)}, {CFG['spin']}", "s_cbranch_scc1 L_cw_loop",
             "s_branch L_cw_back"]
    if CFG.get("local"): body += ["L_pubg:", "buffer_wbl2 sc1", "s_waitcnt vmcnt(0)",
             f"buffer_store_dword {vr(vMX)}, {vr(vLIN)}, {sr(sFL,4)}, 0 offen sc1", "s_branch L_pubg_back"]
    if CFG.get("local"): body += ["L_acq:", "buffer_inv sc1", "s_waitcnt vmcnt(0)", "s_branch L_acq_back"]
    for k in STAGED:
        body += [f"L_e{k}:", f"s_mov_b32 {sr(sCNT)}, 0", f"L_e{k}_loop:",
                 f"buffer_load_dword {vr(vT+1)}, off, {sr(sFL,4)}, {sr(sTILE)} offset:16 sc1", "s_waitcnt vmcnt(0)",
                 f"v_cmp_ne_u32 vcc, 1, {vr(vT+1)}", f"s_cbranch_vccz L_e{k}_back",
                 f"s_add_u32 {sr(sCNT)}, {sr(sCNT)}, 1", f"s_cmp_lt_u32 {sr(sCNT)}, {CFG['spin']}", f"s_cbranch_scc1 L_e{k}_loop", f"s_branch L_e{k}_back"]
    for p in range(2): body += rare_a(p, f"L_ra{p}")
    body += rare_b("L_rb")
    loop = its[0] + its[1] + its[2] + its[3]
    check(pro + loop + loop + pe, "main")
    def with_rare(seq):
        o = []
        for x in seq:
            m = re.match(r"L_r(\d+)([ab])_back:", x)
            if m: o += (rare_a(1 - int(m.group(1)) % 2, "x") if m.group(2) == "a" else rare_b("x"))[1:]
            o.append(x)
        return o
    check(pro + with_rare(loop + pe), "rare")
    if CFG.get("jitter"):
        import random
        rnd = random.Random(int(CFG["jitter"][1:]))
        nb = []; cnt = 0; started = False
        for x in body:
            if x == "s_endpgm": started = False
            j = False
            if x.startswith("s_barrier"): started = True; j = True
            if x.startswith(MF): cnt += 1; j = cnt % 97 == 0
            pre_ = rnd.random() < 0.5
            blk = []
            if j and started:
                lab = f"L_j{len(nb)}"
                blk = ["s_cselect_b32 s101, 1, 0", "s_memrealtime s[40:41]", "s_waitcnt lgkmcnt(0)", f"s_lshl_b32 s41, {sr(sWAVE)}, 2", "s_xor_b32 s40, s40, s41", "s_xor_b32 s40, s40, s2",
                       f"s_and_b32 s40, s40, {rnd.choice([12, 28, 60])}", "s_cmp_lg_u32 s40, 0", f"s_cbranch_scc1 {lab}", f"s_sleep {rnd.choice([4, 16, 64])}", f"{lab}:", "s_cmp_lg_u32 s101, 0"]
            nb += (blk + [x]) if pre_ else ([x] + blk)
        return "\n".join(nb)
    lastscc = None
    for x in body:
        op = x.split()[0] if x.split() else ""
        if op == "s_addc_u32": assert lastscc == "s_add_u32" and prev.startswith("s_add_u32"), (prev, x)
        if op in ("s_cselect_b32", "s_cbranch_scc0", "s_cbranch_scc1"): assert lastscc.startswith("s_cmp"), (lastscc, x)
        if op.startswith(("s_add", "s_sub", "s_and", "s_or", "s_xor", "s_lshl", "s_lshr", "s_cmp", "s_bfe", "s_min", "s_max", "s_not")): lastscc = op
        prev = x
    if CFG["verbose"]:
        for g in range(NG): print(g, PLAN[g])
    return "\n".join(body)

if __name__ == "__main__":
    k = kernel()
    txt = file_text([dict(label=NAME + "_kernel", body=k, grid=256, block=256, lds=163840, vgpr=512, accum=256)], single=True)
    DOC = """; ---------------------------------------------------------------------------------------------
; Fused MHA block, one workgroup (4 waves, one per SIMD) per (batch, head); generated by a script.
;  A. Q^T = wq_h^T x_b^T   (x / wq streamed through LDS by LDS-DMA; scale*log2e folded into Q)
;  B. flash attention over 16 key tiles of 64: S^T = K Q^T - m (running max as MFMA C operand),
;     P = exp2(S), O^T += V^T P^T, l += 1^T P^T.  The max of every tile is checked; when it
;     exceeds the running max by more than 8 (log2) the rare path moves the max and rescales O, l.
;     every workgroup computes a 128x128 tile over K = 1024, the 4 octets' partial tiles are
;     reduced through d_ws.  wo is re-laid out into MFMA fragment order in d_ws during phase A.
;  Hand-offs: write-through (sc1) stores, vmcnt wait, barrier, one flag / counter per workgroup,
;  sc1 polls (bounded).  Flags are cleared by their owner at the start; d_debug counts that.
; ---------------------------------------------------------------------------------------------
"""
    txt = txt.replace('.amdgcn_target', DOC + '.amdgcn_target', 1)
    open(sys.argv[1], "w").write(txt)
```

```python
import sys, math, struct, re
from asmlib import *
from check import check

CFG = dict(qst=False, stamps=False, codepf=True, warm=True, spin=200000, verbose=False)
for a in sys.argv[2:]:
    k, v = a.split("=")
    CFG[k] = {"0": False, "1": True}.get(v, v)

MF = "v_mfma_f32_16x16x32_bf16"
def vr(b, n=1): return f"v{b}" if n == 1 else f"v[{b}:{b+n-1}]"
def ar(b, n=1): return f"a{b}" if n == 1 else f"a[{b}:{b+n-1}]"
def sr(b, n=1): return f"s{b}" if n == 1 else f"s[{b}:{b+n-1}]"
def rr(r, n=1): return vr(r, n) if r < 256 else ar(r - 256, n)
def slots(t):
    if t.startswith(("v_exp", "v_rcp", "buffer_", "global_", "v_permlane")): return 2
    if t.startswith(("s_", "@", "L_")): return 0
    return 1

sX, sWQ, sK, sV, sO = 4, 8, 12, 16, 20
sWFL, sOL = 4, 8
sWAVE, sB, sH, sW4K, sW8K = 24, 25, 26, 27, 28
sCB, sMT, sNT = 29, 30, 31
sXO, sWO = 32, 40
sOUT, sFLR = 32, 36
sTILE, sCNT, sTHR, sSC, sSP = 44, 45, 46, 47, 48
sRET = 50
sTK, sROT, sRQ, sRX, sRW = 49, 92, 93, 94, 95
sW1K, sDT = 96, 97
sPF = 98
sPS, sPL, sPF2 = 80, 84, 76
sHO, sG = 29, 30
sHP, sW2K = 56, 96
sRC = 93
sXCC, sGLB = 3, 94
sT = 52
sARG = 56
sFL, sDB, sDBW = 72, 76, 88
sWS2, sWO2 = 80, 84
vKA, vVA, vDK, vDV = 1, 5, 13, 17
vMX, vLIN, vCW, STV = 19, 21, 22, 23
vT = 24
vONES = 28
vNEG, vL, vQ, vS = 32, 48, 64, 128
vWA, vXA, vDX, vDW, vWOF = 64, 72, 76, 78, 25
vWOA, vWOS = 19, 20
vDUM = [22, 26, 27]
u0, u1, u2, u3, u4, u5, ln = 128, 129, 130, 131, 132, 133, 134
aO, aF = 0, 128
LK, LV, LW = 0, 65536, 131072
LX = [81920, 131072]
LWQ = [32768, 49152, 65536]
LWO = 114688
WOF_OFF, FLAG_OFF, PART_OFF, STAMP_OFF = 0x1000000, 0x1400000, 0x1800000, 0x4000000

def Ureg(p, ks, qb): return vS + 64 * p + 8 * (ks * 4 + qb)
def Sreg(p, kb, qb): return Ureg(p, kb // 2, qb) + 4 * (kb % 2)
def Oreg(qb, dt): return aO + 4 * (qb * 8 + dt)
def Qreg(qb, s): return vQ + 16 * qb + 4 * s
def Freg(n): return aF + 4 * n

nstamp = [0]
def stamp():
    if CFG.get("probe"):
        i = nstamp[0]; nstamp[0] += 1
        return ["s_memrealtime s[42:43]", "s_waitcnt lgkmcnt(0)"] if i == int(CFG["probe"][1:]) else []
    if not CFG["stamps"]: return []
    i = nstamp[0]; nstamp[0] += 1
    assert i < 30
    return ["s_memtime s[40:41]", "s_waitcnt lgkmcnt(0)", f"v_writelane_b32 v{STV}, s40, {2*i}",
            "s_memrealtime s[40:41]", "s_waitcnt lgkmcnt(0)", f"v_writelane_b32 v{STV}, s40, {2*i+1}"]

def srd(s, size):
    return [f"s_and_b32 {sr(s+1)}, {sr(s+1)}, 0xffff", f"s_mov_b32 {sr(s+2)}, {size}", f"s_mov_b32 {sr(s+3)}, 0x20000"]
def srd_at(s, arg, offreg, size):
    return [f"s_add_u32 {sr(s)}, {sr(sARG+arg)}, {offreg}", f"s_addc_u32 {sr(s+1)}, {sr(sARG+arg+1)}, 0"] + srd(s, size)

def tag(lst, t): return [(x + f" ; #{t}") if x.startswith(("buffer_", "global_")) and "#" not in x else x for x in lst]
def resolve(seq, fifo, lfifo=()):
    fifo = list(fifo); lf = list(lfifo); out = []
    def cut(f, n): return f[len(f) - n:] if 0 < n < len(f) else (f if n else [])
    for x in seq:
        if x.startswith("@wait"):
            parts = x.split()
            w = []
            idx = [i for i, t in enumerate(fifo) if t in parts[1].split(",")]
            if idx:
                n = min(63, len(fifo) - 1 - max(idx)); fifo = cut(fifo, n); w.append(f"vmcnt({n})")
            for p in parts[2:]:
                if p.startswith("vm="): n = int(p[3:]); fifo = cut(fifo, n); w.append(f"vmcnt({n})")
                if p.startswith("lgkm="): n = int(p[5:]); lf = cut(lf, n); w.append(f"lgkmcnt({n})")
                if p.startswith("lds="):
                    idx = [i for i, t in enumerate(lf) if t in p[4:].split(",")]
                    if idx:
                        n = min(15, len(lf) - 1 - max(idx)); lf = cut(lf, n); w.append(f"lgkmcnt({n})")
            if w: out.append("s_waitcnt " + " ".join(w))
            continue
        m = re.search(r"#(\S+)", x)
        if x.startswith(("buffer_", "global_")): fifo.append(m.group(1) if m else "?")
        if x.startswith("ds_"): lf.append(m.group(1) if m else "?")
        m = re.match(r"s_waitcnt.*vmcnt\((\d+)\)", x)
        if m: fifo = cut(fifo, int(m.group(1)))
        m = re.match(r"s_waitcnt.*lgkmcnt\((\d+)\)", x)
        if m: lf = cut(lf, int(m.group(1)))
        out.append(x)
    return out, fifo, lf

CONT = CFG.get("cont", False)
NOSWAP = CFG.get("noswap", True)
DIST = int(CFG.get("dist", 3))
def dma_k(p, soff):
    if CONT: return f"buffer_load_dwordx4 {vr(vDK)}, {sr(sK,4)}, {sr(sDT)} offen nt lds"
    return f"buffer_load_dwordx4 {vr(vDK+p)}, {sr(sK,4)}, {soff} offen offset:{1024*p} nt lds"
def dma_v(p, soff):
    if CONT: return f"buffer_load_dwordx4 {vr(vDV)}, {sr(sV,4)}, {sr(sDT)} offen nt lds"
    return f"buffer_load_dwordx4 {vr(vDV + p%2)}, {sr(sV,4)}, {soff} offen offset:{1024*p} nt lds"
def cont_pre(base, p, soff): return [f"s_add_u32 m0, {sr(sW1K)}, {base + p*4096}", f"s_add_u32 {sr(sDT)}, {soff}, {p*4096}"]
def m0_at(addr): return f"s_add_u32 m0, {sr(sW4K)}, {addr}"
def kv_batch(which, tile):
    out = [m0_at((LK + slotK(tile) * 16384 if which == "K" else LV + slotV(tile) * 16384)), f"s_add_u32 {sr(sT)}, {sr(sROT)}, {tile*16384}", f"s_and_b32 {sr(sT)}, {sr(sT)}, 0x3ffff"]
    for p in range(4):
        if CONT: out += cont_pre((LK if which == "K" else LV) + (tile % 4) * 16384, p, sr(sT))
        out.append(dma_k(p, sr(sT)) if which == "K" else dma_v(p, sr(sT)))
    return tag(out, f"{which}{tile}")

NPASS = int(CFG.get("npass", 3))
PEEL0 = 4 * NPASS
def slotK(t): return t % 4
def slotV(t): return t % 4
def rd_k(slot, n):
    kb, s = n // 4, n % 4
    return f"ds_read_b128 {ar(Freg(n),4)}, {vr(vKA+s)} offset:{slot*16384 + kb*4096} ; #k{n}"
def rd_v(slot, n, t):
    dt, ks = n // 2, n % 2
    return f"ds_read_b64_tr_b16 {ar(Freg(n)+2*t,2)}, {vr(vVA+dt)} offset:{slot*16384 + (32*ks+16*t)*256} ; #v{n}"

def qk_one(p, kb, qb, s, first, czero=False):
    d = Sreg(p, kb, qb)
    c = vr(d, 4) if not first else ("0" if czero else vr(vNEG + 4*qb, 4))
    return f"{MF} {vr(d,4)}, {ar(Freg(kb*4+s),4)}, {vr(Qreg(qb,s),4)}, {c}"
def qk_list(p):
    return [qk_one(p, kb, qb, (i if qb % 2 == 0 else 3 - i), i == 0) for kb in range(4) for qb in range(4) for i in range(4)]
def pv_one(p, dt, qb, ks):
    o = Oreg(qb, dt)
    return f"{MF} {ar(o,4)}, {ar(Freg(dt*2+ks),4)}, {vr(Ureg(p,ks,qb),4)}, {ar(o,4)}"
def sum_one(p, qb, ks):
    return f"{MF} {vr(vL+4*qb,4)}, {vr(vONES,4)}, {vr(Ureg(p,ks,qb),4)}, {vr(vL+4*qb,4)}"
def pv_list(p):
    return ([pv_one(p, dt, qb, (i if qb % 2 == 0 else 1 - i)) for dt in range(8) for qb in range(4) for i in range(2)]
            + [sum_one(p, qb, ks) for qb in range(4) for ks in range(2)])

UNITS = [(0, 0), (1, 0), (1, 1), (0, 1), (0, 2), (1, 2), (1, 3), (0, 3)]
def ereg(p, e): ks, qb = UNITS[e // 8]; return Ureg(p, ks, qb) + e % 8
def exp_i(p, e): r = ereg(p, e); return f"v_exp_f32 {vr(r)}, {vr(r)}"
def cvt_i(p, k):
    r = ereg(p, 2 * k); return f"v_cvt_pk_bf16_f32 {vr(r - (2*k) % 8 + k % 4)}, {vr(r)}, {vr(r+1)}"
def max_items(p):
    out = []
    for kb in range(4):
        for qb in range(4):
            r = Sreg(p, kb, qb); m = vr(vMX + qb % 2); done = 16 * kb + 4 * qb + 3
            if kb == 0 and qb < 2:
                out.append((f"v_max3_f32 {m}, {vr(r)}, {vr(r+1)}, {vr(r+2)}", done))
                out.append((f"v_max_f32 {m}, {vr(r+3)}, {m}", done))
            else:
                out.append((f"v_max3_f32 {m}, {vr(r)}, {vr(r+1)}, {m}", done))
                out.append((f"v_max3_f32 {m}, {vr(r+2)}, {vr(r+3)}, {m}", done))
    return out

NG = 136
HOOKA = 69
BARG = 118
LAT = 8
def make_plan():
    plan = {g: [] for g in range(NG)}
    T0 = HOOKA
    dsp = int(CFG.get("dsp", 14))
    dv0 = int(CFG.get("dv0", 72))
    dma_g = [4 + dsp * i for i in range(4)] + [dv0 + dsp * i for i in range(4)]
    dma_t = [g + NG if g < HOOKA else g for g in dma_g]
    NX2 = int(CFG.get('nx2', 40))
    r2 = [t for t in range(T0, NG) if t != BARG and t not in dma_t]
    r1 = [t for t in range(NG, NG + 64) if t not in dma_t]
    xt = [r2[i * len(r2) // NX2] for i in range(NX2)] + [r1[i * len(r1) // (64 - NX2)] for i in range(64 - NX2)]
    assert len(set(xt)) == 64
    for e, t in enumerate(xt): plan[t % NG].append(("exp", e, t >= NG))
    for i, t in enumerate(dma_t): plan[t % NG].append(("dma", i))
    Y = []
    for k in range(32):
        Y.append((xt[2*k+1] + 1, NG + 64 + k // 4 - 2, ("cvt", k)))
    for i, (_, done) in enumerate(max_items(0)):
        Y.append((NG + done + 3, NG + HOOKA - 3, ("max", i)))
    Y.append((NG + 66, NG + HOOKA - 2, ("max", 32))); Y.append((NG + 66, NG + HOOKA - 1, ("max", 33)))
    for n in range(16):
        Y.append((max(BARG + 1, 64 + 8 * (n // 2) + 7), NG + 16 * (n // 4) - LAT, ("k", n)))
    NV1 = int(CFG.get("nv1", 10))
    for n in range(16):
        e, d = 16 * (n // 4) + 15, min(64 + 8 * (n // 2) - LAT, BARG - 10)
        for t in range(2):
            if n < NV1: Y.append((NG + e, NG + min(d, HOOKA - 1), ("v", n, t)))
            else: Y.append((T0, d, ("v", n, t)))
    def kind(y): return y[2][0] + ("1" if y[2][0] == "v" and y[0] >= NG else "")
    ygaps = [t for t in range(T0, T0 + NG) if not plan[t % NG] and t % NG != BARG]
    pend = list(Y)
    for t in ygaps:
        g = t % NG
        picked = []
        for _ in range(2):
            heads = {}
            for y in pend: heads.setdefault(kind(y), y)
            c = [y for y in heads.values() if y[0] <= t]
            if not c: break
            def eff(y):
                same = [z for z in pend if kind(z) == kind(y)]
                return min(z[1] - i / 1.2 for i, z in enumerate(same))
            y = min(c, key=eff)
            assert t <= y[1], ("deadline miss", t, y)
            picked.append(y); pend.remove(y)
        picked.sort(key=lambda y: 0 if y[2][0] in ("k", "v") else 1)
        for y in picked: plan[g].append(y[2] + ((t >= NG,) if y[2][0] == "cvt" else ()))
    assert not pend, pend
    return plan
PLAN = make_plan()

def iteration(i, lab, loads=None, salu=(), fixed=None):
    assert DIST == 3 and not CONT
    p = i % 2
    steady = i < PEEL0
    sc = {g: [] for g in range(NG)}
    for kb in range(4): sc[16 * kb - 1 if kb else NG - 2].append(f"@wait - lds=" + ",".join(f"k{kb*4+s}" for s in range(4)))
    for dt in range(8):
        if 64 + 8 * dt - 1 < BARG - 1: sc[64 + 8 * dt - 1].append(f"@wait - lds=v{2*dt},v{2*dt+1}")
    sc[BARG - 1].append(f"@wait - vm={10 if i == 1 else (9 if i == 2 and CFG.get('repf', False) else 8)} lgkm=0" if steady else f"@wait K{i+2},V{i+1} lgkm=0")
    sc[BARG].append("s_barrier")
    if CFG.get("itst"):
        sc[BARG - 2].append("s_memrealtime s[40:41]")
        sc[BARG] += ["s_mov_b64 exec, s[42:43]", f"v_mov_b32 v{STV}, s40", "s_mov_b64 exec, -1", "s_lshl_b64 s[42:43], s[42:43], 1"]
    sc[HOOKA] += [f"s_cbranch_vccnz {lab}a", f"{lab}a_back:"]
    sc[NG - 1] = [f"s_cbranch_vccnz {lab}b", f"{lab}b_back:"] + sc[NG - 1]
    if CFG.get("evslow"):
        sc[90] += ["s_and_b32 s101, s2, 1"]; sc[91] += ["s_cmp_eq_u32 s101, 0"]; sc[92] += [f"s_cbranch_scc1 {lab}z", f"{lab}z_back:"]
    extra = dict(fixed or {})
    vm = {}
    hask, hasv = i + 3 <= 15, i + 2 <= 15
    for j, g in enumerate(DMA_GAPS):
        if j < 4 and hask: vm[g] = [m0_at(LK + slotK(i + 3) * 16384), dma_k(j, sr(sTK)) + f" ; #K{i+3}"]
        v15 = CFG.get("v15", "a")
        if i == 13 and v15 != "n":
            if j < 4 and v15 == "a": vm[(2, 8, 14, 20)[j] if CFG.get("v15d", True) else g] = [m0_at(LV + slotV(15) * 16384), dma_v(j, sr(sTILE)) + " ; #V15"]
            continue
        if j >= 4 and hasv: vm[g] = [m0_at(LV + slotV(i + 2) * 16384), dma_v(j - 4, sr(sTILE)) + f" ; #V{i+2}"]
    if i == 12 and CFG.get("v15", "a") == "b":
        vm = {}
        for j in range(4):
            vm[(4, 13, 22, 32)[j]] = [m0_at(LK + slotK(15) * 16384), dma_k(j, sr(sTK)) + " ; #K15"]
            vm[(40, 46, 58, 64)[j]] = [m0_at(LV + slotV(14) * 16384), dma_v(j, sr(sTILE)) + " ; #V14"]
            vm[(72, 86, 100, 114)[j]] = [m0_at(LV + slotV(15) * 16384), dma_v(j, sr(sTK)) + " ; #V15"]
    sc[120].append(f"s_mov_b32 {sr(sTILE)}, {sr(sTK)}")
    sc[121].append(f"s_add_u32 {sr(sTK)}, {sr(sTK)}, 0x4000")
    sc[122].append(f"s_and_b32 {sr(sTK)}, {sr(sTK)}, 0x3ffff")
    if steady:
        if i == 1:
            extra[64] = [f"v_and_b32 {vr(vCW)}, 3, v0", f"v_lshlrev_b32 {vr(vCW)}, 6, {vr(vCW)}"]
            extra[65] = [f"buffer_load_dword {vr(vCW)}, {vr(vCW)}, {sr(sDB,4)}, 0 offen sc1"]
            sc[40].append(f"s_cmp_eq_u32 {sr(sCNT)}, {NPASS - 1}")
            sc[41].append(f"s_cselect_b32 {sr(sDB+2)}, 256, 0")
            extra[68] = [f"buffer_atomic_add {vr(vONES)}, {vr(vLIN)}, {sr(sDBW,4)}, 0 offen sc1"]
            sc[75].append(f"s_mov_b32 {sr(sDBW+2)}, 0")
        if i == 2 and CFG.get("repf", False):
            extra[64] = [f"v_and_b32 {vr(vT)}, 31, v0", f"v_lshlrev_b32 {vr(vT)}, 10, {vr(vT)}"]
            extra[65] = [f"v_add_u32 {vr(vT)}, {sr(sPF+2)}, {vr(vT)}", f"v_min_u32 {vr(vT)}, L_end-L_pc, {vr(vT)}"]
            extra[68] = [f"global_load_dword {ar(255)}, {vr(vT)}, {sr(sPF,2)}"]
    else:
        nextk = i + 2 <= 15
        def load(g):
            return sum(2 if it[0] == "exp" else (0 if it[0] == "dma" or (it[0] == "k" and g > BARG and not nextk) else 1) for it in PLAN[g])
        gs = 0
        for x in salu:
            if x.startswith(("s_addc", "s_cselect")):
                sc[gs - 1].append(x); continue
            while sc[gs] or gs in vm or gs + 1 in vm: gs += 1
            sc[gs].append(x); gs += 1
        for groups, lo, hi in loads:
            cand = [g for g in range(max(lo, gs + 3 if salu else 0), hi) if g not in vm and g not in (BARG, BARG - 1, HOOKA, NG - 1)]
            n = len(groups)
            for k, grp in enumerate(groups):
                win = cand[k * len(cand) // n:(k + 1) * len(cand) // n]
                vm[min(win, key=load)] = grp
    cur_m0 = None; prev = -1
    for g in sorted(vm):
        grp = vm[g]; sca = []
        for x in grp[:-1]:
            if x.startswith("s_add_u32 m0"):
                if x == cur_m0: continue
                cur_m0 = x
            sca.append(x)
        free = [q for q in range(prev + 1, g + 1) if not sc[q] and not (steady and q in (40, 41))]
        if sca and sca[-1].startswith("s_add_u32 m0"): free = [q for q in free if q < g]
        if len(free) >= len(sca):
            for x, q in zip(sca, free[len(free) - len(sca):]): sc[q].append(x)
        else:
            sc[g] += sca + ["s_nop 0"]
        prev = g
    mf = qk_list(1 - p) + pv_list(p)
    MX = [t for t, _ in max_items(1 - p)] + [f"v_max_f32 {vr(vMX)}, {vr(vMX)}, {vr(vMX+1)}", f"v_cmp_lt_f32 vcc, {sr(sTHR)}, {vr(vMX)}"]
    out = []
    for g in range(NG):
        out.append(mf[g])
        out += sc[g]
        ex = extra.get(g, [])
        out += [x for x in ex if not x.startswith("v_")]
        if g in vm: out.append(vm[g][-1])
        for it in PLAN[g]:
            k = it[0]
            if k == "exp": out.append(exp_i(p if it[2] else 1 - p, it[1]))
            elif k == "cvt": out.append(cvt_i(p if it[2] else 1 - p, it[1]))
            elif k == "max":
                if not CFG.get("nomax"): out.append(MX[it[1]])
            elif k == "k":
                t = i + (2 if g > BARG else 1)
                if t <= 15: out.append(rd_k(slotK(t), it[1]))
            elif k == "v": out.append(rd_v(slotV(i), it[1], it[2]))
        out += [x for x in ex if x.startswith("v_")]
        if CFG.get("slowdown") and g % int(CFG["slowdown"]) == 5: out.append("s_nop 7")
    return out
EARLY_K = [it[1] for g in range(BARG + 1, NG) for it in PLAN[g] if it[0] == "k"]
E_FIRST = [it for g in range(HOOKA, NG) for it in PLAN[g] if it[0] in ("exp", "cvt")]
E_REST = [it for g in range(0, HOOKA) for it in PLAN[g] if it[0] in ("exp", "cvt")]
DMA_GAPS = [g for g in range(NG) if any(it[0] == "dma" for it in PLAN[g])]
LIGHT = sorted(range(NG), key=lambda g: (sum(2 if it[0] in ("exp",) else (0 if it[0] == "dma" else 1) for it in PLAN[g])))

def spread(items, gaps):
    d = {}
    for i, it in enumerate(items):
        d.setdefault(gaps[i * len(gaps) // len(items)], []).extend(it)
    return d
def place(groups, lo, hi):
    cand = [g for g in LIGHT if lo <= g < hi and g not in (BARG, BARG - 1, HOOKA, NG - 1)]
    gs = sorted(cand[:len(groups)])
    assert len(gs) == len(groups)
    return {g: list(x) for g, x in zip(gs, groups)}
def merge(*maps):
    d = {}
    for m in maps:
        for k, v in m.items(): d.setdefault(k, []).extend(v)
    return d
def flat(G): return [x for g in G for x in g]
def groups_of(lst):
    G = []; cur = []
    for x in lst:
        cur.append(x)
        if x.startswith("buffer_"): G.append(cur); cur = []
    if cur: G[-1] += cur
    return G

WREG = []
WP = {}
for nm, base, n, st_ in (("R1", 256 + 192, 16, 4), ("R2", vQ, 16, 4), ("R4", vNEG, 4, 4), ("R3u", vS + 4, 8, 8), ("R3", vS, 8, 8), ("R5", 256 + aF, 12, 4)):
    WP[nm] = list(range(len(WREG), len(WREG) + n)); WREG += [base + st_ * i for i in range(n)]
assert len(WREG) == 64
def wo_loads(name, sp=None):
    sp = sSP if sp is None else sp
    groups = []
    for f in WP[name]:
        g = [f"s_add_u32 {sr(sp)}, {sr(sHP + f // 8)}, {(f % 8) * 1024}"] if f % 4 == 0 else []
        g.append(f"buffer_load_dwordx4 {rr(WREG[f], 4)}, {vr(vLIN)}, {sr(sWFL,4)}, {sr(sp)} offen offset:{(f%4)*1024} sc1 ; #w{f}")
        groups.append(g)
    return groups

def pack_muls(l):
    o = []; i = 0
    while i < len(l):
        m1 = re.match(r"v_mul_f32 v(\d+), v\d+, v(\d+)$", l[i]); m2 = re.match(r"v_mul_f32 v(\d+), v\d+, v(\d+)$", l[i+1]) if i + 1 < len(l) else None
        if m1 and m2 and int(m1.group(1)) % 2 == 0 and int(m2.group(1)) == int(m1.group(1)) + 1:
            r = int(m1.group(1)); f_ = int(m1.group(2))
            sel = "op_sel_hi:[1,0]" if f_ % 2 == 0 else "op_sel:[0,1] op_sel_hi:[1,1]"
            o.append(f"v_pk_mul_f32 {vr(r,2)}, {vr(r,2)}, {vr(f_ - f_ % 2,2)} {sel}"); i += 2
        else: o.append(l[i]); i += 1
    return o
def weave(mf, nvmap, va=(), pre=None, need=None):
    out = []; va = list(va)
    for g, m in enumerate(mf):
        if need and g in need:
            last = max([i for i, x in enumerate(va) if x[2] == need[g]], default=-1)
            if last >= 0:
                if va[last][1] > g - 1: out.append("s_nop 7")
                out += pack_muls([x[0] for x in va[:last + 1]]) + ["s_nop 1"]; va = va[last + 1:]
            elif any(x.startswith("v_") and not x.startswith("v_mfma") for x in out[-2:]): out.append("s_nop 1")
        if pre and g in pre: out += pre[g]
        out.append(m)
        nv = nvmap.get(g, [])
        out += nv
        c = sum(slots(x) for x in nv)
        while va and va[0][1] <= g and c + slots(va[0][0]) <= 2:
            c += slots(va[0][0]); out.append(va.pop(0)[0])
    return out, va

def allreduce(op, a, b):
    return [f"v_mov_b32 {vr(b)}, {vr(a)}", "s_nop 1", f"v_permlane32_swap_b32 {vr(a)}, {vr(b)}", "s_nop 1", f"{op} {vr(a)}, {vr(a)}, {vr(b)}",
            f"v_mov_b32 {vr(b)}, {vr(a)}", "s_nop 1", f"v_permlane16_swap_b32 {vr(a)}, {vr(b)}", "s_nop 1", f"{op} {vr(a)}, {vr(a)}, {vr(b)}"]
def qmax(p, qb, d):
    regs = [Sreg(p, kb, qb) + j for kb in range(4) for j in range(4)]
    o = [f"v_max3_f32 {vr(d)}, {vr(regs[0])}, {vr(regs[1])}, {vr(regs[2])}"]
    for i in range(3, 15, 2): o.append(f"v_max3_f32 {vr(d)}, {vr(regs[i])}, {vr(regs[i+1])}, {vr(d)}")
    o.append(f"v_max_f32 {vr(d)}, {vr(regs[15])}, {vr(d)}")
    return o
def rare_a(p, label):
    out = [f"{label}:", "s_nop 7"]
    for qb in range(4):
        d = vT + qb
        out += qmax(p, qb, d) + allreduce("v_max_f32", d, vMX)
        out.append(f"v_max_f32 {vr(d)}, 0, {vr(d)}")
        for j in range(4): out.append(f"v_sub_f32 {vr(vNEG+4*qb+j)}, {vr(vNEG+4*qb+j)}, {vr(d)}")
        for kb in range(4):
            for j in range(4):
                r = Sreg(p, kb, qb) + j
                out.append(f"v_sub_f32 {vr(r)}, {vr(r)}, {vr(d)}")
        out.append(f"v_exp_f32 {vr(d)}, -{vr(d)}")
    out += ["s_nop 3", f"s_setpc_b64 {sr(sRET,2)}"]
    return out
def rare_b(label):
    out = [f"{label}:", "s_nop 15"]
    for qb in range(4):
        f_ = vT + qb
        for j in range(4): out.append(f"v_mul_f32 {vr(vL+4*qb+j)}, {vr(vL+4*qb+j)}, {vr(f_)}")
        for j in range(0, 32, 2):
            a0 = Oreg(qb, 0) + j
            out += [f"v_accvgpr_read_b32 {vr(vMX)}, {ar(a0)}", f"v_accvgpr_read_b32 {vr(vMX+1)}, {ar(a0+1)}",
                    f"v_mul_f32 {vr(vMX)}, {vr(vMX)}, {vr(f_)}", f"v_mul_f32 {vr(vMX+1)}, {vr(vMX+1)}, {vr(f_)}",
                    f"v_accvgpr_write_b32 {ar(a0)}, {vr(vMX)}", f"v_accvgpr_write_b32 {ar(a0+1)}, {vr(vMX+1)}"]
    out += ["s_nop 3", f"s_setpc_b64 {sr(sRET,2)}"]
    return out

def wfrag(st, s, dt): return (128 if st % 2 == 0 else 192) + 4 * (dt * 2 + s)
def xfrag(st, s, qb): return (96 if st % 2 == 0 else 32) + 4 * (qb * 2 + s)
def qacc(qb, dt): return Ureg(dt // 4, (dt // 2) % 2, qb) + 4 * (dt % 2)
def qp_reads(st):
    out = []
    for qb in range(4):
        for s in range(2):
            out.append(f"ds_read_b128 {vr(xfrag(st,s,qb),4)}, {vr(vXA + 2*(st%2) + s)} offset:{qb*2048} ; #x{st}_{qb}")
    for dt in range(8):
        for s in range(2):
            for t in range(2):
                if NOSWAP: out.append(f"ds_read_b64_tr_b16 {ar(wfrag(st,s,dt)+2*t,2)}, {vr(vWA + dt//2)} offset:{(st%3)*16384 + (32*s+4*t)*256 + 8*(dt%2)} ; #w{st}_{dt}")
                else: out.append(f"ds_read_b64_tr_b16 {ar(wfrag(st,s,dt)+2*t,2)}, {vr(vWA + dt)} offset:{(st%3)*16384 + (32*s+4*t)*256} ; #w{st}_{dt}")
    return out
def qp_dma(st):
    G = []
    wf = (" " + CFG["wqld"]) if CFG.get("wqld") else ""
    xf = (" " + CFG["xld"]) if CFG.get("xld") else ""
    if st == 0 and CFG.get("nt0"): wf = xf = " nt"
    for p in range(4):
        g = []
        if p == 0:
            g = [f"s_add_u32 {sr(sRX)}, {sr(sRQ)}, {st}", f"s_and_b32 {sr(sRX)}, {sr(sRX)}, 7", f"s_lshl_b32 {sr(sRW)}, {sr(sRX)}, 19",
                 f"s_lshl_b32 {sr(sRX)}, {sr(sRX)}, 7", m0_at(LWQ[st % 3])]
        g.append(f"s_add_u32 {sr(sDT)}, {sr(sRW)}, {p*(32768-1024)}")
        g.append(f"buffer_load_dwordx4 {vr(vDW + p//2)}, {sr(sWQ,4)}, {sr(sDT)} offen offset:{1024*p}{wf} lds ; #st{st}")
        G.append(g)
    for p in range(8):
        g = [f"s_add_u32 m0, {sr(sW8K)}, {LX[st%2] + (p//4)*4096}"] if p % 4 == 0 else []
        g.append(f"s_add_u32 {sr(sDT)}, {sr(sRX)}, {p*8192 - 1024*(p%4)}")
        g.append(f"buffer_load_dwordx4 {vr(vDX + p%2)}, {sr(sX,4)}, {sr(sDT)} offen offset:{1024*(p%4)}{xf} lds ; #st{st}")
        G.append(g)
    return G
def qp_one(st, dt, qb, s, first):
    d = qacc(qb, dt)
    return f"{MF} {vr(d,4)}, {ar(wfrag(st,s,dt),4)}, {vr(xfrag(st,s,qb),4)}, {'0' if first else vr(d, 4)}"
def qp_mfmas(st):
    return [qp_one(st, dt, qb, (i if qb % 2 == 0 else 1 - i), st == 0 and i == 0) for dt in range(8) for qb in range(4) for i in range(2)]
def qp_q(st, qb):
    return [qp_one(st, dt, qb, (i if dt % 2 == 0 else 1 - i), False) for dt in range(8) for i in range(2)]
def qconv(qb, s):
    d = qacc(qb, 2 * s); q = Qreg(qb, s)
    out = [f"v_mul_f32 {vr(d+j)}, {sr(sSC)}, {vr(d+j)}" for j in range(8)]
    out += [f"v_cvt_pk_bf16_f32 {vr(q+j)}, {vr(d+2*j)}, {vr(d+2*j+1)}" for j in (0, 2, 1, 3)]
    return out, [f"v_permlane32_swap_b32 {vr(q)}, {vr(q+2)}", f"v_permlane32_swap_b32 {vr(q+1)}, {vr(q+3)}"], \
                [f"v_permlane16_swap_b32 {vr(q)}, {vr(q+2)}", f"v_permlane16_swap_b32 {vr(q+1)}, {vr(q+3)}"]
def qconv_stream(qb):
    parts = [qconv(qb, s) for s in range(4)]
    if NOSWAP: return [(x, s) for s in range(4) for x in parts[s][0]]
    out = []
    for s in range(4):
        a = parts[s][0]
        if s == 0: out += [(x, s) for x in a]
        else: out += [(x, s) for x in a[:4]] + [(x, s) for x in parts[s-1][1]] + [(x, s) for x in a[4:8]] + [(x, s) for x in parts[s-1][2]] + [(x, s) for x in a[8:]]
    out += [("s_nop 1", 3)] + [(x, 3) for x in parts[3][1]] + [("s_nop 1", 3)] + [(x, 3) for x in parts[3][2]]
    return out

def setup_a():
    o = []; A = o.append
    A("s_cmp_ge_u32 s2, 256")
    A("s_cbranch_scc1 L_end")
    if CFG.get("fixdur"): A("s_memrealtime s[42:43]")
    A(f"s_load_dwordx16 {sr(sARG,16)}, s[0:1], 0")
    if CFG["codepf"]:
        A(f"s_getpc_b64 {sr(sT,2)}")
        A("L_pc:")
        A(f"s_bfe_u32 {sr(sT+2)}, s2, 0x30003")
        A(f"v_lshrrev_b32 {vr(u0)}, 6, v0"); A(f"v_and_b32 {vr(u1)}, 15, v0"); A(f"v_lshl_add_u32 {vr(u0)}, {vr(u0)}, 4, {vr(u1)}")
        A(f"v_lshlrev_b32 {vr(u0)}, 10, {vr(u0)}"); A(f"s_lshl_b32 {sr(sT+2)}, {sr(sT+2)}, 7"); A(f"v_add_u32 {vr(u0)}, {sr(sT+2)}, {vr(u0)}")
        A(f"v_min_u32 {vr(u0)}, L_end-L_pc, {vr(u0)}")
        A(f"global_load_dword {vr(vDUM[0])}, {vr(u0)}, {sr(sT,2)} ; #pf")
        if CFG.get("repf", False):
            A(f"s_mov_b64 {sr(sPF,2)}, {sr(sT,2)}"); A(f"s_add_u32 {sr(sPF+2)}, {sr(sT+2)}, L_cw_back-L_pc")
    A(f"s_and_b32 {sr(sCB)}, s2, 7")
    A(f"s_lshr_b32 {sr(sT+3)}, s2, 3")
    A(f"s_and_b32 {sr(sMT)}, {sr(sT+3)}, 3"); A(f"s_lshr_b32 {sr(sNT)}, {sr(sT+3)}, 2")
    if CFG.get("pmap", "4x8") == "4x8":
        A(f"s_and_b32 {sr(sB)}, {sr(sCB)}, 1"); A(f"s_lshl_b32 {sr(sB)}, {sr(sB)}, 2"); A(f"s_add_u32 {sr(sB)}, {sr(sB)}, {sr(sMT)}")
        A(f"s_lshr_b32 {sr(sH)}, {sr(sCB)}, 1"); A(f"s_lshl_b32 {sr(sH)}, {sr(sH)}, 3"); A(f"s_add_u32 {sr(sH)}, {sr(sH)}, {sr(sNT)}")
    else:
        A(f"s_mov_b32 {sr(sB)}, {sr(sCB)}"); A(f"s_mov_b32 {sr(sH)}, {sr(sT+3)}")
    rq = CFG.get("rq", "x")
    if rq == "n": A(f"s_mov_b32 {sr(sRQ)}, 0")
    elif rq == "x": A(f"s_mov_b32 {sr(sRQ)}, {sr(sCB)}")
    elif rq == "h": A(f"s_mov_b32 {sr(sRQ)}, {sr(sH)}")
    elif rq == "f": A(f"s_lshl_b32 {sr(sRQ)}, {sr(sB)}, 1"); A(f"s_add_u32 {sr(sRQ)}, {sr(sRQ)}, {sr(sH)}")
    elif rq == "g": A(f"s_add_u32 {sr(sRQ)}, {sr(sB)}, {sr(sH)}")
    A(f"v_lshrrev_b32 {vr(u0)}, 6, v0")
    A(f"v_and_b32 {vr(ln)}, 63, v0")
    A(f"v_readfirstlane_b32 {sr(sWAVE)}, {vr(u0)}")
    A(f"v_lshrrev_b32 {vr(u1)}, 4, {vr(ln)}")
    A(f"v_and_b32 {vr(u2)}, 15, {vr(ln)}")
    A(f"v_lshl_add_u32 {vr(u4)}, {vr(u0)}, 4, {vr(u1)}")
    A(f"v_lshlrev_b32 {vr(u3)}, 1, {vr(u1)}")
    A(f"v_xor_b32 {vr(u3)}, {vr(u3)}, {vr(u2)}")
    A(f"v_lshlrev_b32 {vr(u5)}, 4, {vr(u3)}")
    A(f"v_lshl_add_u32 {vr(vDW)}, {vr(u4)}, 13, {vr(u5)}")
    A(f"v_xor_b32 {vr(vDW+1)}, 0x80, {vr(vDW)}")
    if NOSWAP:
        A(f"v_lshlrev_b32 {vr(u3)}, 2, {vr(u1)}"); A(f"v_xor_b32 {vr(u3)}, {vr(u3)}, {vr(u2)}"); A(f"v_lshlrev_b32 {vr(u3)}, 4, {vr(u3)}")
        A(f"v_lshl_add_u32 {vr(vDW)}, {vr(u4)}, 13, {vr(u3)}"); A(f"v_mov_b32 {vr(vDW+1)}, {vr(vDW)}")
    A(f"v_lshrrev_b32 {vr(u3)}, 3, {vr(ln)}")
    A(f"v_lshl_add_u32 {vr(u0)}, {vr(u0)}, 6, {vr(u3)}")
    A(f"v_and_b32 {vr(u3)}, 7, {vr(ln)}")
    A(f"v_xor_b32 {vr(u3)}, {vr(u1)}, {vr(u3)}")
    A(f"v_lshlrev_b32 {vr(u3)}, 4, {vr(u3)}")
    A(f"v_lshl_add_u32 {vr(vDX)}, {vr(u0)}, 10, {vr(u3)}")
    A(f"v_xor_b32 {vr(vDX+1)}, 64, {vr(vDX)}")
    A(f"s_lshl_b32 {sr(sW4K)}, {sr(sWAVE)}, 12")
    A(f"s_lshl_b32 {sr(sW8K)}, {sr(sWAVE)}, 13")
    A(f"s_lshl_b32 {sr(sT)}, {sr(sB)}, 18")
    A(f"s_lshl_b32 {sr(sT+1)}, {sr(sH)}, 8")
    A("s_waitcnt lgkmcnt(0)")
    o += stamp()
    o += srd_at(sWQ, 6, sr(sT+1), 511*8192 + 256)
    o += srd_at(sX, 0, sr(sT), 0x40000)
    return o

def wo_piece_addr():
    return [f"v_lshrrev_b32 {vr(u0)}, 5, v0", f"v_and_b32 {vr(u1)}, 0x1e, {vr(u0)}", f"v_and_b32 {vr(u0)}, 1, {vr(u0)}",
            f"v_lshl_add_u32 {vr(u0)}, {vr(u1)}, 2, {vr(u0)}",
            f"v_and_b32 {vr(u1)}, 31, v0", f"v_lshlrev_b32 {vr(u1)}, 4, {vr(u1)}", f"v_lshl_add_u32 {vr(vWOF)}, {vr(u0)}, 10, {vr(u1)}"]
def wo_piece_dma():
    o = [m0_at(LWO)]
    for p in range(4):
        o.append(f"s_mov_b32 {sr(sDT)}, {1024*p}")
        o.append(f"buffer_load_dwordx4 {vr(vWOF)}, {sr(sWO2,4)}, {sr(sDT)} offen offset:{1024*p} nt lds ; #wo")
    return o

def warm_loads(nst):
    o = []; A = o.append
    A(f"v_lshrrev_b32 {vr(u3)}, 6, v0"); A(f"v_and_b32 {vr(u2)}, 15, v0"); A(f"v_lshl_add_u32 {vr(u3)}, {vr(u3)}, 4, {vr(u2)}")
    A(f"v_and_b32 {vr(u1)}, {nst - 1}, {vr(u3)}"); A(f"v_add_u32 {vr(u1)}, {sr(sRQ)}, {vr(u1)}"); A(f"v_add_u32 {vr(u1)}, 1, {vr(u1)}")
    A(f"v_and_b32 {vr(u1)}, 7, {vr(u1)}")
    A(f"v_lshrrev_b32 {vr(u2)}, 1, {vr(u3)}")
    A(f"v_lshlrev_b32 {vr(u0)}, 7, {vr(u1)}"); A(f"v_lshl_add_u32 {vr(u0)}, {vr(u2)}, 10, {vr(u0)}")
    A(f"s_and_b32 {sr(sT)}, {sr(sH)}, 7"); A(f"s_lshl_b32 {sr(sT)}, {sr(sT)}, 15")
    A(f"buffer_load_dword {vr(vDUM[1])}, {vr(u0)}, {sr(sX,4)}, {sr(sT)} offen ; #warm")
    A(f"v_lshlrev_b32 {vr(u0)}, 19, {vr(u1)}")
    A(f"v_lshrrev_b32 {vr(u3)}, 1, {vr(u2)}"); A(f"v_lshl_add_u32 {vr(u0)}, {vr(u3)}, 13, {vr(u0)}")
    A(f"v_and_b32 {vr(u3)}, 1, {vr(u2)}"); A(f"v_lshl_add_u32 {vr(u0)}, {vr(u3)}, 7, {vr(u0)}")
    A(f"s_and_b32 {sr(sT)}, {sr(sB)}, 3"); A(f"s_lshl_b32 {sr(sT)}, {sr(sT)}, 17")
    A(f"buffer_load_dword {vr(vDUM[2])}, {vr(u0)}, {sr(sWQ,4)}, {sr(sT)} offen ; #warm")
    return o

def setup_b():
    o = []; A = o.append
    A(f"s_lshl_b32 {sr(sT+2)}, {sr(sB)}, 5"); A(f"s_add_u32 {sr(sT+2)}, {sr(sT+2)}, {sr(sH)}")
    A(f"s_lshl_b32 {sr(sT)}, {sr(sT+2)}, 18")
    o += srd_at(sK, 2, sr(sT), 0x40000)
    o += srd_at(sV, 4, sr(sT), 0x40000)
    A(f"s_lshl_b32 {sr(sT+1)}, {sr(sT+2)}, 7"); A(f"s_add_u32 {sr(sT+1)}, {sr(sT+1)}, {FLAG_OFF}")
    o += srd_at(sFL, 14, sr(sT+1), 32)

    o += srd_at(sDB, 12, "0", 256)
    A(f"s_and_b32 {sr(sT+1)}, {sr(sT+2)}, 3"); A(f"s_lshl_b32 {sr(sT+1)}, {sr(sT+1)}, 6")
    o += srd_at(sDBW, 12, sr(sT+1), 4)
    A(f"s_lshr_b32 {sr(sT)}, {sr(sT+2)}, 1"); A(f"s_and_b32 {sr(sT+2)}, {sr(sT+2)}, 1")
    A(f"s_lshl_b32 {sr(sT+1)}, {sr(sT)}, 15"); A(f"s_lshl_b32 {sr(sT+3)}, {sr(sT+2)}, 9"); A(f"s_add_u32 {sr(sT+1)}, {sr(sT+1)}, {sr(sT+3)}")
    o += srd_at(sWO2, 8, sr(sT+1), 31*1024 + 512)
    A(f"s_lshl_b32 {sr(sT+2)}, {sr(sT+2)}, 2"); A(f"s_add_u32 {sr(sT+2)}, {sr(sT+2)}, {sr(sWAVE)}"); A(f"s_lshl_b32 {sr(sT+2)}, {sr(sT+2)}, 19")
    A(f"s_lshl_b32 {sr(sT)}, {sr(sT)}, 11"); A(f"s_add_u32 {sr(sT)}, {sr(sT)}, {sr(sT+2)}"); A(f"s_add_u32 {sr(sT)}, {sr(sT)}, {WOF_OFF}")
    o += srd_at(sWS2, 14, sr(sT), 262144 + 2048)
    A(f"s_lshl_b32 {sr(sT)}, {sr(sB)}, 2"); A(f"s_add_u32 {sr(sT)}, {sr(sT)}, {sr(sWAVE)}"); A(f"s_lshl_b32 {sr(sT)}, {sr(sT)}, 19")
    A(f"s_lshl_b32 {sr(sT+1)}, {sr(sH)}, 13"); A(f"s_add_u32 {sr(sT)}, {sr(sT)}, {sr(sT+1)}")
    o += srd_at(sO, 14, sr(sT), 262144 + 8192)
    if CFG.get("fewst"):
        A(f"s_cmp_eq_u32 {sr(sMT)}, 0"); A(f"s_cselect_b32 {sr(sO+2)}, {sr(sO+2)}, 0")
    rot = CFG.get("rot", "j")
    if rot == "j": A(f"s_lshr_b32 {sr(sROT)}, s2, 3"); A(f"s_add_u32 {sr(sROT)}, {sr(sROT)}, s2"); A(f"s_and_b32 {sr(sROT)}, {sr(sROT)}, 15"); A(f"s_lshl_b32 {sr(sROT)}, {sr(sROT)}, 14")
    else: A(f"s_mov_b32 {sr(sROT)}, 0")
    if CFG.get("itst"): A("s_mov_b32 s42, 0"); A("s_mov_b32 s43, 0x100")
    A(f"s_mov_b32 {sr(sTHR)}, 0x41000000")
    c = math.log2(math.e) / math.sqrt(128.0)
    A(f"s_mov_b32 {sr(sSC)}, 0x{struct.unpack('<I', struct.pack('<f', c))[0]:08x}")
    A(f"v_lshl_add_u32 {vr(vDV)}, {vr(u4)}, 8, {vr(u5)}")
    A(f"v_xor_b32 {vr(vDV+1)}, 0x80, {vr(vDV)}")
    g_, c16 = u1, u2
    A(f"v_lshrrev_b32 {vr(g_)}, 4, {vr(ln)}")
    A(f"v_and_b32 {vr(c16)}, 15, {vr(ln)}")
    A(f"v_xor_b32 {vr(u3)}, {vr(g_)}, {vr(c16)}")
    A(f"v_lshlrev_b32 {vr(u3)}, 4, {vr(u3)}")
    A(f"v_lshl_add_u32 {vr(vDK)}, {vr(u4)}, 8, {vr(u3)}")
    for p in range(1, 4): A(f"v_xor_b32 {vr(vDK+p)}, {64*p}, {vr(vDK)}")
    if CONT:
        A(f"s_lshl_b32 {sr(sW1K)}, {sr(sWAVE)}, 10")
        A(f"v_lshrrev_b32 {vr(vDK+1)}, 4, v0")
        A(f"v_xor_b32 {vr(vDK+2)}, {vr(vDK+1)}, {vr(c16)}"); A(f"v_lshlrev_b32 {vr(vDK+2)}, 4, {vr(vDK+2)}")
        A(f"v_lshl_add_u32 {vr(vDK)}, {vr(vDK+1)}, 8, {vr(vDK+2)}")
        A(f"v_and_b32 {vr(vDK+2)}, 7, {vr(vDK+1)}"); A(f"v_lshlrev_b32 {vr(vDK+2)}, 1, {vr(vDK+2)}")
        A(f"v_xor_b32 {vr(vDK+2)}, {vr(vDK+2)}, {vr(c16)}"); A(f"v_lshlrev_b32 {vr(vDK+2)}, 4, {vr(vDK+2)}")
        A(f"v_lshl_add_u32 {vr(vDV)}, {vr(vDK+1)}, 8, {vr(vDK+2)}")
    A(f"v_lshl_add_u32 {vr(vKA)}, {vr(c16)}, 8, {vr(u3)}")
    for s in range(1, 4): A(f"v_xor_b32 {vr(vKA+s)}, {64*s}, {vr(vKA)}")
    A(f"v_lshrrev_b32 {vr(u3)}, 1, {vr(c16)}")
    A(f"v_xor_b32 {vr(u3)}, {vr(g_)}, {vr(u3)}")
    A(f"v_lshlrev_b32 {vr(u3)}, 4, {vr(u3)}")
    A(f"v_lshl_add_u32 {vr(u3)}, {vr(c16)}, 7, {vr(u3)}")
    A(f"v_add_u32 {vr(u3)}, {sr(sW8K)}, {vr(u3)}")
    for sl in range(2):
        A(f"v_add_u32 {vr(vXA+2*sl)}, {LX[sl]}, {vr(u3)}")
        A(f"v_xor_b32 {vr(vXA+2*sl+1)}, 64, {vr(vXA+2*sl)}")
    A(f"v_cmp_eq_u32 vcc, 0, {vr(c16)}")
    A(f"v_mov_b32 {vr(u3)}, 0x3f803f80")
    r_, f_, c8 = u0, u4, u5
    A(f"v_bfe_u32 {vr(r_)}, {vr(ln)}, 2, 2")
    for j in range(4): A(f"v_cndmask_b32 {vr(vONES+j)}, 0, {vr(u3)}, vcc")
    A(f"v_bfe_u32 {vr(f_)}, {vr(ln)}, 2, 3")
    A(f"v_and_b32 {vr(c8)}, 3, {vr(ln)}")
    A(f"v_lshlrev_b32 {vr(c8)}, 3, {vr(c8)}")
    A(f"v_lshrrev_b32 {vr(u3)}, 2, {vr(ln)}")
    A(f"v_lshlrev_b32 {vr(vWOA)}, 9, {vr(u3)}")
    A(f"v_lshl_add_u32 {vr(vWOA)}, {vr(c8)}, 1, {vr(vWOA)}")
    A(f"s_lshl_b32 {sr(sT)}, {sr(sWAVE)}, 7"); A(f"s_add_u32 {sr(sT)}, {sr(sT)}, {LWO}")
    A(f"v_add_u32 {vr(vWOA)}, {sr(sT)}, {vr(vWOA)}")
    A(f"v_lshl_add_u32 {vr(c8)}, {vr(f_)}, 5, {vr(c8)}")
    A(f"v_lshl_add_u32 {vr(u3)}, {vr(u3)}, 8, {vr(c8)}")
    A(f"v_add_u32 {vr(vVA)}, {LV}, {vr(u3)}")
    for dt in range(1, 8): A(f"v_xor_b32 {vr(vVA+dt)}, {32*dt}, {vr(vVA)}")
    A(f"v_lshl_add_u32 {vr(u3)}, {vr(g_)}, 3, {vr(r_)}")
    A(f"v_lshl_add_u32 {vr(u3)}, {vr(u3)}, 8, {vr(c8)}")
    if NOSWAP:
        A(f"v_and_b32 {vr(u3)}, 0xff00, {vr(u3)}"); A(f"v_lshl_add_u32 {vr(u3)}, {vr(r_)}, 6, {vr(u3)}")
        A(f"v_and_b32 {vr(c8)}, 3, {vr(ln)}"); A(f"v_lshl_add_u32 {vr(u3)}, {vr(c8)}, 4, {vr(u3)}")
        A(f"v_add_u32 {vr(vWA)}, {LWQ[0]}, {vr(u3)}")
        for k in range(1, 4): A(f"v_xor_b32 {vr(vWA+k)}, {64*k}, {vr(vWA)}")
    else:
        A(f"v_add_u32 {vr(vWA)}, {LWQ[0]}, {vr(u3)}")
        for dt in range(1, 8): A(f"v_xor_b32 {vr(vWA+dt)}, {32*dt}, {vr(vWA)}")
    A(f"v_lshlrev_b32 {vr(vWOS)}, 4, {vr(ln)}")
    A(f"v_add_u32 {vr(vLIN)}, {sr(sW4K)}, {vr(vWOS)}")
    o += wo_piece_addr()
    o += phase_c_early()
    return o

def wo_reads():
    return [f"ds_read_b64_tr_b16 {ar(192+4*i+2*tt,2)}, {vr(vWOA)} offset:{(i//2)*64 + (i%2)*8 + tt*8192} ; #wo" for i in range(4) for tt in range(2)]
def wo_stores():
    return [[f"s_mov_b32 {sr(sT)}, {(i//2)*262144}", f"buffer_store_dwordx4 {ar(192+4*i,4)}, {vr(vWOS)}, {sr(sWS2,4)}, {sr(sT)} offen offset:{(i%2)*1024} sc1 ; #wst"] for i in range(4)]

def pairs(lst): return [lst[i:i+2] for i in range(0, len(lst), 2)]
def prologue():
    qs = stamp if CFG["qst"] else (lambda: [])
    o = setup_a()
    nw = int(CFG.get("nwarm", 2))
    if CFG.get("warmfirst"): o += warm_loads(nw)
    o += flat(qp_dma(0))
    if not CFG.get("warmfirst"): o += (warm_loads(nw) if nw else [])
    o += qs()
    o += setup_b()
    pt = CFG.get("pt", "")
    def pretouch(j, kind):
        if kind == "st": return [f"s_mov_b32 {sr(sDT)}, {j * 262144}", f"buffer_store_dword {vr(vWOF+1)}, {vr(vWOF+1)}, {sr(sO,4)}, {sr(sDT)} offen sc1 ; #pt"]
        if kind == "at": return [f"s_mov_b32 {sr(sDT)}, {j * 262144}", f"buffer_atomic_or {vr(vWOF+1)}, {vr(vWOF+1)}, {sr(sO,4)}, {sr(sDT)} offen sc1 ; #pt"]
        return [f"s_mov_b32 {sr(sDT)}, {j * 262144}", f"buffer_load_dword {vr(vWOF+2+j)}, {vr(vWOF+1)}, {sr(sO,4)}, {sr(sDT)} offen sc1 ; #pt"]
    if pt: o += [f"v_lshlrev_b32 {vr(vWOF+1)}, 3, {vr(vWOS)}"]
    if pt and pt[2:] == "0": o += pretouch(0, pt[:2]) + pretouch(1, pt[:2])
    prek = [x for x in CFG.get("prek", "").split(",") if x]
    for n in prek: o += (wo_piece_dma() if n == "wo" else kv_batch(n[0], int(n[1:])))
    if CFG.get("kvtlb"):
        o += [f"buffer_load_dword {ar(0)}, off, {sr(sK,4)}, 0 nt ; #tl", f"buffer_load_dword {ar(1)}, off, {sr(sV,4)}, 0 nt ; #tl"]
    o += qs()
    o += ["@wait st0", "s_barrier"] + stamp()
    kv = lambda *l: groups_of(sum([kv_batch(x[0], int(x[1:])) for x in l], []))
    bg = [int(x) for x in CFG.get("bg", "38,38,38,38,30,10,-14").split(",")]
    step = float(CFG.get("qstep", 4))
    B = [64 * s + bg[s] for s in range(7)]
    seq = [(st, dt, qb) for st in range(6) for dt in range(8) for qb in range(4) for i in range(2)]
    mf = sum([qp_mfmas(st) for st in range(6)], [])
    for st, qb in ((6, 0), (6, 1), (7, 0), (7, 1), (6, 2), (6, 3), (7, 2), (7, 3)):
        mf += qp_q(st, qb); seq += [(st, dt, qb) for dt in range(8) for i in range(2)]
    Q0 = len(mf)
    mf += [qk_one(0, kb, qb, (i if kb % 2 == 0 else 3 - i), i == 0, czero=True) for qb in range(4) for kb in range(4) for i in range(4)]
    first = {}; last = {}
    for g, (st, dt, qb) in enumerate(seq):
        for t in (f"x{st}_{qb}", f"w{st}_{dt}"):
            first.setdefault(t, g); last[t] = g
    xt = lambda k: ",".join(f"x{k}_{q}" for q in range(4))
    wt = lambda k: ",".join(f"w{k}_{d}" for d in range(8))
    nvm = {}; pre = {}; vm = {}
    def put_vm(g, grp):
        while g in vm or g in B: g += 1
        vm[g] = grp; return g
    npre = int(CFG.get("npre", 16)); nd1 = int(CFG.get("nd1", 6))
    r0 = qp_reads(0); d1 = qp_dma(1)
    o += r0[:npre] + flat(d1[:nd1])
    pos = -2
    for grp in d1[nd1:]: pos += 3; put_vm(int(pos), grp)
    XW = int(CFG.get("xw", 18))
    ekp = [x for x in CFG.get("ekp", "").split(",") if x]
    ek = dict(x.split(":") for x in CFG.get("ek", "5:K0").split(",") if x)
    for k in range(2, 8):
        for i, grp in enumerate(qp_dma(k)):
            e = 0 if k == 2 else (B[k-3] + 1 if i < 4 else B[k-3] + XW)
            if k == 7 and i >= 4: e = max(e, 0)
            pos = max(pos + step, e)
            if i == 4: grp = [f"@wait - lds={xt(k-2)}"] + grp
            put_vm(int(pos), grp)
        for n in ekp:
            j = k - int(CFG.get("ekp0", 3))
            if 0 <= j < 4:
                G_ = groups_of(wo_piece_dma()) if n == "wo" else kv(n)
                head = G_[0][:-1] if n != "wo" else G_[0][:1]
                grp = head + (G_[j] if (j or n == "wo") else G_[0][-1:]) if not (n == "wo" and j == 0) else G_[0]
                pos += 4; put_vm(int(pos), grp)
        if pt and pt[2:] != "0" and k - int(pt[2:]) in (0, 2):
            pos += 3; put_vm(int(pos), pretouch((k - int(pt[2:])) // 2, pt[:2]))
        if str(k) in ek:
            for grp in (groups_of(wo_piece_dma()) if ek[str(k)] == "wo" else kv(ek[str(k)])):
                pos += 3; put_vm(int(pos), grp)
    kstep = float(CFG.get("kstep", 9))
    LATEWO = CFG.get("latewo", False)
    BK, BQ = 384 + int(CFG.get("bk", 94)), Q0 + int(CFG.get("bq", 56))
    sched = [("K0", 0), ("wo", 0), ("K1", 0), ("V0", B[5] + 1), ("K2", BK + 1), ("V1", BK + 1)]
    if LATEWO: sched = [("K0", 0), ("K1", 0), ("V0", B[5] + 1), ("wo", 0), ("K2", BK + 1), ("V1", BK + 1)]
    for n, e in sched:
        if n in ek.values() or n in prek or n in ekp: continue
        for grp in (groups_of(wo_piece_dma()) if n == "wo" else kv(n)):
            pos = max(pos + (3 if n == "K0" and LATEWO else (float(CFG.get("kstep2", kstep)) if n in ("K2", "V1") else kstep)), e)
            put_vm(int(pos), grp)
    assert pos < Q0 + 64, pos
    if CFG["verbose"]: print("vm gaps:", sorted(vm))
    items = [(0, x) for x in r0[npre:]]
    for st in range(1, 8): items += [(st, x) for x in qp_reads(st)]
    R = []
    for st, x in items:
        t = x.split("#")[1]
        e = 0 if st == 0 else B[st-1] + 1
        if st >= 2: e = max(e, last[t[0] + str(st - 2) + t[2:]])
        d = first[t] - LAT
        if st < 7: d = min(d, B[st] - 8)
        if t[0] == "x" and 1 <= st <= 5: d = min(d, B[st-1] + XW - 7)
        R.append([e, max(d, e), x])
    R.sort(key=lambda r: (r[1], r[0]))
    rstep = float(CFG.get("rstep", 1.3)); nxt = 0
    for g in range(Q0):
        if g in vm or g in B: continue
        k = 0
        while k < 2:
            c = [r for r in R if r[0] <= g]
            if not c: break
            urgent = any(r[1] - g < i * 1.3 + 1 for i, r in enumerate(c))
            if not urgent and (k == 1 or g < nxt): break
            nvm.setdefault(g, []).append(c[0][2]); R.remove(c[0]); k += 1; nxt = g + rstep
    assert not R, R[:3]
    for t, g in first.items():
        (nvm.setdefault(g - 1, []) if g else o).insert(0 if g else len(o), f"@wait - lds={t}")
    for s in range(7):
        pre.setdefault(B[s], []).append(f"@wait st{s+1} lds={xt(s)},{wt(s)}")
        nvm.setdefault(B[s], []).append("s_barrier")
        if CFG["qst"]: pre[64 * s] = qs() + pre.get(64 * s, [])
    w0 = BQ if LATEWO else Q0
    nvm = merge(nvm, spread(pairs(wo_reads()), [g for g in range(w0 + 1, min(w0 + 12, Q0 + 64)) if g not in vm]))
    pre.setdefault(BK, []).append("@wait K0" if LATEWO else "@wait K0,wo"); nvm.setdefault(BK, []).append("s_barrier")
    nvm = merge(nvm, spread(pairs([rd_k(0, n) for n in range(16)]), [g for g in range(max(384 + 96, BK + 1), 384 + 122) if g not in vm]))
    pre.setdefault(Q0, []).append("@wait - lgkm=0"); pre[Q0] = stamp() + pre[Q0]
    pre.setdefault(BQ, []).append("@wait K1,V0,wo" if LATEWO else "@wait K1,V0 lds=wo"); nvm.setdefault(BQ, []).append("s_barrier")
    nvm = merge(nvm, {Q0 + 57: [f"s_add_u32 {sr(sTILE)}, {sr(sROT)}, {(DIST-1)*16384}"], Q0 + 58: [f"s_and_b32 {sr(sTILE)}, {sr(sTILE)}, 0x3ffff"],
                      Q0 + 59: [f"s_add_u32 {sr(sTK)}, {sr(sROT)}, {DIST*16384}"], Q0 + 60: [f"s_and_b32 {sr(sTK)}, {sr(sTK)}, 0x3ffff"],
                      Q0 + 61: [f"s_mov_b32 {sr(sCNT)}, 0"]})
    for g in sorted(vm):
        grp = vm[g]; sca = grp[:-1]
        prevv = max([x for x in vm if x < g], default=-1)
        gg = g
        for x in reversed(sca):
            nvm.setdefault(gg, []).insert(0, x)
            if gg - 1 > prevv and gg > 0: gg -= 1
        nvm.setdefault(g, []).append(grp[-1])
    va = [(f"v_accvgpr_write_b32 {ar(r)}, 0", 0, "z") for r in list(range(2, 128)) + [0, 1]]
    done = {0: 384 + 32, 1: 384 + 48, 2: 384 + 96, 3: 384 + 112}
    for qb in range(4):
        va += [(t, done[qb] + 4 * s + 3 + 3, f"q{qb}") for t, s in qconv_stream(qb)]
    va += [(f"v_mov_b32 {vr(vL+j)}, 0", Q0, "z") for j in range(16)]
    def initq(qb):
        n = vNEG + 4 * qb
        l = qmax(0, qb, n)
        for sw in ("v_permlane32_swap_b32", "v_permlane16_swap_b32"):
            l += [f"v_mov_b32 {vr(n+1)}, {vr(n)}", "s_nop 1", f"{sw} {vr(n)}, {vr(n+1)}", f"v_max_f32 {vr(n)}, {vr(n)}, {vr(n+1)}"]
        l += [f"v_sub_f32 {vr(n+j)}, 0, {vr(n)}" for j in (3, 2, 1, 0)]
        for ks in range(2):
            r = Ureg(0, ks, qb)
            l += [f"v_add_f32 {vr(r+j)}, {vr(r+j)}, {vr(n + j % 2)}" for j in range(8)]
        return l
    for qb in range(4): va += [(t, Q0 + 16 * qb + 15 + 3, "i") for t in initq(qb)]
    part, left = weave(mf, nvm, va, pre=pre, need={Q0 + 16 * q: f"q{q}" for q in range(4)})
    for k in range(1, 6):
        assert max(i for i, x in enumerate(part) if f"#x{k}_" in x) < part.index(f"@wait - lds={xt(k)}"), k
    for k in range(0, 6):
        assert max(i for i, x in enumerate(part) if f"#w{k}_" in x) < part.index(f"@wait st{k+1} lds={xt(k)},{wt(k)}"), k
    o += part
    o += qs()
    o += [rd_k(1, n) for n in EARLY_K]
    o += [f"v_mov_b32 {vr(vT+j)}, 0" for j in range(4)]
    o.append(f"buffer_store_dwordx4 {vr(vT,4)}, {vr(vLIN)}, {sr(sFL,4)}, 0 offen sc1 ; #wst")
    if CFG["verbose"]: print("QK0 leftover VALU:", len(left))
    ini = []
    lf_ = [t for t, _, _ in left]
    i = 0
    while i < len(lf_):
        m1 = re.match(r"v_add_f32 v(\d+), v\d+, v(\d+)", lf_[i])
        if m1 and int(m1.group(1)) % 2 == 0 and i + 1 < len(lf_) and lf_[i+1].startswith(f"v_add_f32 v{int(m1.group(1))+1},"):
            r = int(m1.group(1)); ini.append(f"v_pk_add_f32 {vr(r,2)}, {vr(r,2)}, {vr(int(m1.group(2)),2)}"); i += 2
        else: ini.append(lf_[i]); i += 1
    ex_ = [exp_i(0, it[1]) for it in E_FIRST if it[0] == "exp"]; cv_ = [cvt_i(0, it[1]) for it in E_FIRST if it[0] == "cvt"]
    ini += ex_ + cv_
    G = wo_stores() + (kv("K3", "V2") if DIST == 4 else [])
    G[0] = ["@wait - lds=wo"] + G[0]
    for i, g in enumerate(G):
        k = (i + 1) * len(ini) // (len(G) + 1)
        ini = ini[:k] + g + ini[k:]
    o += ini
    if CFG.get("nomax"): o.append("s_mov_b64 vcc, 0")
    o.append("@wait - lds=k0,k1,k2,k3")
    o += stamp()
    qd = CFG.get("qdiag", "")
    if "x" in qd: o = [x for x in o if not (re.search(r"#st[2-7]", x) and f"{sr(sX,4)}" in x)]
    if "r" in qd: o = [x for x in o if not re.search(r"#x[2-7]_", x)]
    if "w" in qd: o = [x for x in o if not (re.search(r"#st[2-7]", x) and f"{sr(sWQ,4)}" in x)]
    if "v" in qd: o = [x for x in o if not re.search(r"#w[2-7]_", x)]
    o, fifo, lf = resolve(o, [])
    return o, fifo, lf

sOFS = [64, 65, 3, 31, 98]
def phase_c_early():
    o = []; A = o.append
    t0, t1, t2 = sT, sT + 1, sT + 2
    A(f"s_lshr_b32 {sr(sHO)}, {sr(sH)}, 3")
    if CFG.get("hord", "m") == "c":
        A(f"s_and_b32 {sr(t0)}, {sr(sB)}, 3"); A(f"s_lshl_b32 {sr(t0)}, {sr(t0)}, 1"); A(f"s_and_b32 {sr(t1)}, {sr(sH)}, 1"); A(f"s_add_u32 {sr(t0)}, {sr(t0)}, {sr(t1)}")
        A(f"s_sub_u32 {sr(t1)}, {sr(sH)}, {sr(t0)}"); A(f"s_and_b32 {sr(t1)}, {sr(t1)}, 7"); A(f"s_lshl_b32 {sr(t0)}, {sr(t0)}, 13")
        A(f"s_and_b32 {sr(sHP)}, {sr(sH)}, 7"); A(f"s_lshl_b32 {sr(sHP)}, {sr(sHP)}, 13")
        for p in range(1, 8):
            A(f"s_cmp_gt_u32 {sr(t1)}, {p-1}"); A(f"s_cselect_b32 {sr(sHP+p)}, {p-1}, {p}")
            A(f"s_lshl_b32 {sr(sHP+p)}, {sr(sHP+p)}, 13"); A(f"s_add_u32 {sr(sHP+p)}, {sr(sHP+p)}, {sr(t0)}"); A(f"s_and_b32 {sr(sHP+p)}, {sr(sHP+p)}, 0xffff")
    else:
        A(f"s_and_b32 {sr(t0)}, {sr(sB)}, 3"); A(f"s_lshl_b32 {sr(t0)}, {sr(t0)}, 14"); A(f"s_add_u32 {sr(t0)}, {sr(t0)}, 8192")
        A(f"s_and_b32 {sr(sHP)}, {sr(sH)}, 7"); A(f"s_lshl_b32 {sr(sHP)}, {sr(sHP)}, 13")
        for p in range(1, 8):
            A(f"s_add_u32 {sr(sHP+p)}, {sr(sHP+p-1)}, {sr(t0)}"); A(f"s_and_b32 {sr(sHP+p)}, {sr(sHP+p)}, 0xffff")
    A(f"s_lshl_b32 {sr(sW2K)}, {sr(sWAVE)}, 11")
    A(f"s_and_b32 {sr(t0)}, {sr(sH)}, 6"); A(f"s_lshl_b32 {sr(t0)}, {sr(t0)}, 1"); A(f"s_add_u32 {sr(t0)}, {sr(t0)}, {sr(sWAVE)}")
    A(f"s_lshl_b32 {sr(t0)}, {sr(t0)}, 18"); A(f"s_lshl_b32 {sr(t2)}, {sr(sHO)}, 16"); A(f"s_add_u32 {sr(t0)}, {sr(t0)}, {sr(t2)}")
    A(f"s_add_u32 {sr(t0)}, {sr(t0)}, {WOF_OFF}"); A(f"s_sub_u32 {sr(t0)}, {sr(t0)}, {sr(sW4K)}")
    A(f"s_mov_b32 {sr(sOFS[0])}, {sr(t0)}")
    A(f"s_and_b32 {sr(t0)}, {sr(sH)}, 1"); A(f"s_lshl_b32 {sr(t1)}, {sr(sB)}, 1"); A(f"s_add_u32 {sr(t0)}, {sr(t0)}, {sr(t1)}")
    A(f"s_lshl_b32 {sr(t1)}, {sr(t0)}, 20"); A(f"s_add_u32 {sr(t1)}, {sr(t1)}, {sr(t2)}")
    A(f"s_mov_b32 {sr(sOFS[1])}, {sr(t1)}")
    A(f"s_lshl_b32 {sr(t0)}, {sr(t0)}, 17"); A(f"s_lshl_b32 {sr(t1)}, {sr(sHO)}, 15"); A(f"s_add_u32 {sr(t0)}, {sr(t0)}, {sr(t1)}")
    A(f"s_and_b32 {sr(t1)}, {sr(sH)}, 6"); A(f"s_lshl_b32 {sr(t1)}, {sr(t1)}, 7"); A(f"s_add_u32 {sr(t0)}, {sr(t0)}, {sr(t1)}")
    o += srd_at(sOUT, 10, sr(t0), 31 * 1024 + 256)
    A(f"s_lshl_b32 {sr(t0)}, {sr(sB)}, 12"); A(f"s_lshl_b32 {sr(t1)}, {sr(sHO)}, 10"); A(f"s_add_u32 {sr(t0)}, {sr(t0)}, {sr(t1)}")
    A(f"s_add_u32 {sr(t0)}, {sr(t0)}, {FLAG_OFF}")
    o += srd_at(sFLR, 14, sr(t0), 4)
    A(f"s_and_b32 {sr(t0)}, {sr(sH)}, 7"); A(f"s_lshl_b32 {sr(t1)}, {sr(sB)}, 5"); A(f"s_add_u32 {sr(t0)}, {sr(t0)}, {sr(t1)}")
    A(f"s_lshl_b32 {sr(t1)}, {sr(t0)}, 16"); A(f"s_lshl_b32 {sr(t2)}, {sr(sHO)}, 14"); A(f"s_add_u32 {sr(t1)}, {sr(t1)}, {sr(t2)}")
    A(f"s_add_u32 {sr(t1)}, {sr(t1)}, {PART_OFF}")
    A(f"s_mov_b32 {sr(sOFS[2])}, {sr(t1)}")
    A(f"s_lshl_b32 {sr(t1)}, {sr(t0)}, 7"); A(f"s_lshl_b32 {sr(t2)}, {sr(sHO)}, 2"); A(f"s_add_u32 {sr(t1)}, {sr(t1)}, {sr(t2)}")
    A(f"s_add_u32 {sr(t1)}, {sr(t1)}, {FLAG_OFF + 16}")
    A(f"s_mov_b32 {sr(sOFS[3])}, {sr(t1)}")
    A(f"s_lshl_b32 {sr(t1)}, {sr(sB)}, 5"); A(f"s_add_u32 {sr(t1)}, {sr(t1)}, {sr(sH)}"); A(f"s_lshl_b32 {sr(t1)}, {sr(t1)}, 16")
    A(f"s_add_u32 {sr(t1)}, {sr(t1)}, {PART_OFF}")
    A(f"s_mov_b32 {sr(sOFS[4])}, {sr(t1)}")
    return o

def phase_c_srds():
    return sum([srd_at(s_, 14, sr(f_), n_) for s_, f_, n_ in zip((sWFL, sOL, sPS, sPF2, sPL), sOFS,
                (65536 + 3 * 4096, 3 * 262144 + 65536, 3 * 524288 + 16384, 4, 65536))], [])

def acc(k, q2, t): return vS + 64 + 16 * k + 4 * (q2 * 2 + t)
def gsel(k, dst, sh): return [f"s_add_u32 {sr(dst)}, {sr(sHO)}, {k + 1}", f"s_and_b32 {sr(dst)}, {sr(dst)}, 3", f"s_lshl_b32 {sr(dst)}, {sr(dst)}, {sh}"]
def ofr(u, kl, q2): return 256 + 32 * (u % 2) + 4 * (kl * 2 + q2)
def sub_mfmas(k, v, pos):
    mf = []
    for j, (q2, t) in enumerate(((0, 0), (0, 1), (1, 1), (1, 0))):
        for i in range(4):
            kl = i if j % 2 == 0 else 3 - i
            d = vr(acc(k, q2, t), 4)
            mf.append(f"{MF} {d}, {rr(WREG[(pos * 4 + kl) * 2 + t],4)}, {rr(ofr(v,kl,q2),4)}, {d if (pos or i) else 0}")
    return mf
def tail_and_epilogue(u):
    p = u % 2
    o = []
    reads = [rd_v(slotV(15), n, t) for n in range(16) for t in range(2)]
    er = [(exp_i(p, it[1]), UNITS[it[1] // 8][1]) if it[0] == "exp" else (cvt_i(p, it[1]), UNITS[it[1] // 4][1]) for it in E_REST]
    va = []
    for i, (t, q) in enumerate(er):
        if t.startswith("v_cvt") and i and er[i-1][0].startswith("v_exp"): va.append(("s_nop 0", 0, f"e{q}"))
        va.append((t, 0, f"e{q}"))
    mf = []
    for qb in range(4):
        mf += [sum_one(p, qb, 0), sum_one(p, qb, 1)]
        mf += [pv_one(p, dt, qb, (i if dt % 2 == 0 else 1 - i)) for dt in range(8) for i in range(2)]
    vOST = vCW
    if CFG.get("local"): va.append((f"v_cmp_ne_u32 {sr(sGLB,2)}, {sr(sXCC)}, {vr(vCW)}", 0, "x"))
    va.append((f"v_and_b32 {vr(vOST)}, 0x3ff, {vr(vLIN)}", 0, "x"))
    tmp = 2
    NMF = len(mf)
    fill = {0: [], 1: [], 2: [], 3: []}
    tail_names = CFG.get("tailw", "").split(",")
    post_names = [x for x in ("R3u", "R3", "R5") if x not in tail_names and not (x == "R3u" and CFG.get("r3u"))]
    for qb in range(4):
        e0 = 18 * qb
        lsum = [f"v_mov_b32 {vr(vT+qb)}, {vr(vL+4*qb)}"] + allreduce("v_add_f32", vT + qb, vMX) + [f"v_rcp_f32 {vr(vT+qb)}, {vr(vT+qb)}"]
        va += [(t, max(12, e0 + 1 + 3), f"o{qb}") for t in lsum]
        F = fill[qb]
        for s in range(4):
            e = e0 + 2 + 4 * s + 3 + 3
            b_ = tmp + 8 * (s % 2)
            va += [(f"v_accvgpr_read_b32 {vr(b_+j)}, {ar(Oreg(qb,2*s)+j)}", e, f"o{qb}") for j in range(8)]
            va += [(f"@mul {b_+j} {vT+qb}", e, f"o{qb}") for j in range(8)]
            d = Ureg(p, s // 2, qb) + 4 * (1 - s % 2)
            ee = e0 + 17 if s % 2 == 1 else e
            va += [(f"v_cvt_pk_bf16_f32 {vr(d+j)}, {vr(b_+2*j)}, {vr(b_+2*j+1)}", max(e, ee), f"o{qb}") for j in range(4)]
            ld = flat(F[s * len(F) // 4:(s + 1) * len(F) // 4])
            va += [(t, NMF - 1 if qb == 3 else e, f"o{qb}") for t in ld]
            va += [(f"s_mov_b32 {sr(sT)}, {(qb//2)*262144 + (s//2)*4096}", e, f"o{qb}"),
                   (f"buffer_store_dwordx4 {vr(d,4)}, {vr(vOST)}, {sr(sO,4)}, {sr(sT)} offen offset:{(s%2)*2048 + (qb%2)*1024} {CFG.get('ost', 'plain' if CFG.get('local') else 'sc1').replace('+', ' ').replace('plain', '')} ; #ost", e, f"o{qb}")]
    if CFG.get("tord", True):
        E = {q: [x for x in va if x[2] == f"e{q}"] for q in range(4)}
        X = [x for x in va if x[2] == "x"]
        O_ = {q: [x for x in va if x[2] == f"o{q}"] for q in range(4)}
        rest = E[0] + E[1] + E[2] + E[3]
        n0 = int(CFG.get("tn0", 10))
        head, rest = rest[:n0], rest[n0:]
        r2 = [x for x in rest if x[2] != "e3"]; r3 = [x for x in rest if x[2] == "e3"]
        va = X + head + O_[0] + r2 + O_[1] + r3 + O_[2] + O_[3]
    va = [((f"v_mul_f32 {vr(int(t.split()[1]))}, {vr(int(t.split()[1]))}, {vr(int(t.split()[2]))}" if t.startswith("@mul") else t), e, k) for t, e, k in va]
    o += reads[:12]
    nvm = spread(pairs(reads[12:]), list(range(0, 10)))
    pre = {2 + 2 * dt: [f"@wait - lds=v{2*dt},v{2*dt+1}"] for dt in range(8)}
    early = sum([wo_loads(x) for x in tail_names if x], [])
    if early: nvm = merge(nvm, spread(early, list(range(10, int(CFG.get("tailhi", 44)), 2))))
    part, left = weave(mf, nvm, va, pre=pre, need={18 * q: f"e{q}" for q in range(4)})
    o += part
    o += stamp()
    o.append("s_nop 7")
    lf_ = [t for t, _, _ in left]
    i = 0
    while i < len(lf_):
        m1 = re.match(r"v_mul_f32 v(\d+), v\d+, v(\d+)", lf_[i]); m2 = re.match(r"v_mul_f32 v(\d+), v\d+, v(\d+)", lf_[i+1]) if i + 1 < len(lf_) else None
        if m1 and m2 and int(m1.group(1)) % 2 == 0 and int(m2.group(1)) == int(m1.group(1)) + 1:
            r = int(m1.group(1)); f_ = int(m1.group(2))
            sel = "op_sel_hi:[1,0]" if f_ % 2 == 0 else "op_sel:[0,1] op_sel_hi:[1,1]"
            o.append(f"v_pk_mul_f32 {vr(r,2)}, {vr(r,2)}, {vr(f_ - f_ % 2,2)} {sel}"); i += 2
        else:
            o.append(lf_[i]); i += 1
    A = o.append
    A(f"v_mov_b32 {vr(vMX)}, 1")
    A(f"v_and_b32 {vr(vT)}, 7, v0"); A(f"v_lshlrev_b32 {vr(vT)}, 7, {vr(vT)}")
    A(f"v_add_u32 {vr(vKA)}, 0x10000, {vr(vOST)}")
    A(f"s_mov_b32 {sr(sCNT)}, 0")
    if CFG.get("forceglobal"): A(f"s_mov_b64 {sr(sGLB,2)}, -1")
    if CFG.get("local"): A(f"s_and_b32 {sr(sGLB)}, {sr(sGLB)}, 0xff"); A(f"s_cmp_lg_u32 {sr(sGLB)}, 0")
    mode = CFG.get("sync", "cnt1")
    cnt = mode.startswith("cnt"); one = mode.endswith("1")
    assert cnt
    post = sum([wo_loads(x) for x in post_names], [])
    A(f"s_lshl_b32 {sr(sT)}, {sr(sWAVE)}, 14"); A(f"v_add_u32 v10, {sr(sT)}, {vr(vOST)}")
    for qb in range(4):
        for s_ in range(4):
            d = Ureg(p, s_ // 2, qb) + 4 * (1 - s_ % 2)
            A(f"ds_write_b128 v10, {vr(d,4)} offset:{(qb//2)*8192 + s_*2048 + (qb%2)*1024}")
    A(f"s_and_b32 {sr(sT+1)}, {sr(sH)}, 1"); A(f"s_lshl_b32 {sr(sT+1)}, {sr(sT+1)}, 15")
    for k in range(4):
        o += gsel(k, sT, 13) + [f"s_add_u32 {sr(sT)}, {sr(sT)}, {sr(sT+1)}", f"v_add_u32 {vr(11+k)}, {sr(sT)}, {vr(vOST)}"]
    A("@wait w7 lgkm=0"); A("s_barrier")
    ord_ = lambda k: [f"ds_read_b128 {rr(ofr(k,kl,q2),4)}, {vr(11+k)} offset:{(kl*2+q2)*1024} ; #h{k}_{q2}" for q2 in range(2) for kl in range(4)]
    NB = int(CFG.get("nbef", 2))
    def own(k, extra):
        nv = {7: [f"@wait - lds=h{k}_1"]}
        if k < 3:
            r = ord_(k + 1)
            for j, g in enumerate((0, 2, 4, 6)): nv.setdefault(g, []).extend(r[2*j:2*j+2])
        if extra: nv = merge(nv, spread(extra, [1, 3, 5, 8, 9, 10, 11, 12, 13, 14, 15]))
        return [f"@wait - lds=h{k}_0"] + weave(sub_mfmas(k, k, 0), nv)[0]
    o += ord_(0)
    npre = int(CFG.get("npost", 0))
    for k in range(NB):
        n_ = min(8, npre); o += own(k, post[:n_]); post = post[n_:]; npre -= n_
    A("@wait ost")
    A("s_barrier")
    if cnt: A(f"buffer_atomic_add {vr(vMX)}, {vr(vLIN)}, {sr(sFLR,4)}, 0 offen sc1 ; #flag")
    else: A(f"buffer_store_dword {vr(vMX)}, {vr(vLIN)}, {sr(sFL,4)}, 0 offen sc1 ; #flag")
    o += stamp()
    pl = f"buffer_load_dword {vr(vT+1)}, off, {sr(sFLR,4)}, 0 sc1" if cnt else f"buffer_load_dword {vr(vT+1)}, {vr(vT)}, {sr(sFLR,4)}, 0 offen sc1"
    want = 8 if cnt else 1
    NL = int(CFG.get("nlate", 0)); PL = int(CFG.get("plate", 0))
    latep = post[len(post) - PL:] if PL else []
    latep = [[x.replace(sr(sSP), sr(sTK)) for x in g] for g in latep]
    post = post[:len(post) - PL]
    for k in range(NB, 4 - NL):
        n_ = min(8, len(post)); o += own(k, post[:n_]); post = post[n_:]
    LATE.clear()
    for k in range(4 - NL, 4):
        n_ = min(8, len(latep)); LATE.extend(own(k, latep[:n_])); latep = latep[n_:]
    LATE.extend(flat(latep))
    o += flat(post)
    pw = int(CFG.get("pollwave", 1))
    if one: A(f"s_cmp_lg_u32 {sr(sWAVE)}, {pw}"); A("s_cbranch_scc1 L_go")
    NP_ = int(CFG.get("npoll", 1))
    pr = lambda j: pl.replace(vr(vT+1), vr(vT+j), 1) + " ; #~poll"
    for j in range(NP_ - 1):
        A(pr(j))
        if int(CFG.get("pgap", 0)): A("s_sleep " + str(int(CFG["pgap"])))
    A("L_poll:")
    for j in range(NP_):
        A(pr((j - 1) % NP_))
        A(f"s_waitcnt vmcnt({NP_ - 1}) ; keep")
        A(f"v_cmp_ne_u32 vcc, {want}, {vr(vT+j)}")
        A("s_cbranch_vccz L_go")
    A(f"s_add_u32 {sr(sCNT)}, {sr(sCNT)}, 1")
    A(f"s_cmp_lt_u32 {sr(sCNT)}, {CFG['spin']}")
    A("s_cbranch_scc1 L_poll")
    A("L_go:")
    if one: A("s_barrier")
    if CFG.get("local"): A(f"s_cmp_lg_u32 {sr(sGLB)}, 0"); A("s_cbranch_scc1 L_acq")
    A("L_acq_back:")
    o += stamp()
    return o

STAGED = []
LATE = []
def phase_c():
    o = []; A = o.append
    vOST = vCW
    D = int(CFG.get("cdist", 4))
    NS = 28
    LANDK = {2: vL, 1: vL + 8, 0: 10}
    OWN = acc(3, 0, 0)
    def dma(v):
        k, p = v // 7, 1 + v % 7
        g = []
        if v % 7 == 0: g += gsel(k, sG, 18) + [f"s_add_u32 {sr(sG)}, {sr(sG)}, {sr(sW2K)}"]
        g += [f"s_add_u32 {sr(sSP)}, {sr(sG)}, {sr(sHP+p)}", f"s_add_u32 m0, {sr(sW2K)}, {((v + 8) % 16) * 8192}", "s_nop 0"]
        ld = lambda j: f"buffer_load_dwordx4 {vr(vOST)}, {sr(sOL,4)}, {sr(sSP)} offen offset:{j*1024} sc1 lds ; #c{v}"
        return [g + [ld(0)], [ld(1)]]
    def reads(v):
        base = ((v + 8) % 16) * 8192
        return [f"ds_read_b128 {rr(ofr(v,kl,q2),4)}, {vr(vKA if base >= 65536 else vOST)} offset:{base % 65536 + (kl*2+q2)*1024} ; #u{v}_{q2}" for q2 in range(2) for kl in range(4)]
    N0 = int(CFG.get("n0", 2 * D))
    for v in range(N0): o += flat(dma(v))
    nxv = [N0]
    o += LATE
    BV = [int(x) for x in CFG.get("bv", "1,3,5,7,9,11,13,15,17,19,21,23,25").split(",")]
    o += [f"@wait c{BV[0]}", "s_barrier"] + stamp() + reads(0)
    N1 = int(CFG.get("n1", N0))
    for v in range(N0, N1): o += flat(dma(v))
    nxv = [max(N0, N1)]
    mf = []; nvm = {}; pre = {}; vm = {}
    pfg = int(CFG.get("pfg", 44))
    FB = {}
    for k in range(3): FB[k] = min(v for v in BV if 16 * v >= 112 * (k + 1) + pfg)
    for v in range(NS):
        k = v // 7
        mf += sub_mfmas(k, v, 1 + v % 7)
        g0 = 16 * v
        wt_ = ",".join(f"w{f}" for f in range(8 * (1 + v % 7), 8 * (2 + v % 7)))
        (nvm.setdefault(g0 - 1, []) if v else o).append(f"@wait {wt_} lds=u{v}_0")
        nvm.setdefault(g0 + 7, []).append(f"@wait - lds=u{v}_1")
        if v + 1 < NS:
            if v in BV:
                kk = [x for x in range(3) if FB[x] == v]
                upto = min([x for x in BV if x > v] + [NS - 1])
                assert upto < nxv[0] and upto - v <= 6, (v, upto, nxv)
                pre.setdefault(g0, []).append(f"@wait c{upto}" + (f",p{kk[0]}" if kk else ""))
                nvm.setdefault(g0, []).append("s_barrier")
                if kk:
                    vm[g0 + 2] = gsel(kk[0], sT, 10) + [f"s_add_u32 {sr(sPF2+2)}, {sr(sT)}, 4",
                                   f"buffer_store_dword {vr(vMX)}, {vr(vLIN)}, {sr(sPF2,4)}, {sr(sT)} offen sc1 ; #pf"]
            r = reads(v + 1)
            for j, g in enumerate((1, 3, 6, 8)): nvm.setdefault(g0 + g, []).extend(r[2*j:2*j+2])
        n2 = min(2, NS - nxv[0], v + 2 * D + 1 - nxv[0])
        G_ = sum([dma(nxv[0] + j) for j in range(max(n2, 0))], []); nxv[0] += max(n2, 0)
        for grp, g in zip(G_, (5, 12) if n2 == 1 else (4, 5, 11, 12)): vm[g0 + g] = [x for x in grp if x != "s_nop 0"]
        if v % 7 == 0 and v:
            kk = k - 1
            for q2 in range(2):
                a0 = acc(kk, q2, 0); pk = 2 + 4 * q2; e = g0 - 6 if q2 == 0 else g0 + 2
                for j in range(4): nvm.setdefault(e + (j // 2) * (1 if q2 == 0 else 2), []).append(f"v_cvt_pk_bf16_f32 {vr(pk + j)}, {vr(a0 + 2*j)}, {vr(a0 + 2*j + 1)}")
                g = g0 - 3 if q2 == 0 else g0 + 7
                while g in vm: g += 1
                vm[g] = (gsel(kk, sTK, 19) if q2 == 0 else []) + [f"buffer_store_dwordx4 {vr(pk, 4)}, {vr(vLIN)}, {sr(sPS,4)}, {sr(sTK)} offen offset:{q2*1024} sc1 ; #p{kk}"]
    assert FB[2] < NS - 1
    STAGED.clear()
    em = int(CFG.get("em", 40))
    for n in range(2):
        k = 2 - n
        gp = 16 * FB[n] + 2 + em
        gp = gp - gp % 16 + 9 + (16 if gp % 16 > 9 else 0)
        while gp in vm: gp += 1
        vm[gp] = gsel(k, sTILE, 2) + [f"buffer_load_dword {vr(vT+1)}, off, {sr(sFL,4)}, {sr(sTILE)} offset:16 sc1 ; #e{k}"]
        g1 = gp - gp % 16 + 48 + 9
        nvm.setdefault(g1, []).extend([f"@wait e{k}", f"v_cmp_ne_u32 vcc, 1, {vr(vT+1)}"])
        nvm.setdefault(g1 + 1, []).extend([f"s_cbranch_vccnz L_e{k}", f"L_e{k}_back:"])
        for j, g in enumerate((g1 + 5, g1 + 9)):
            while g in vm: g += 1
            vm[g] = ([f"s_lshl_b32 {sr(sTILE)}, {sr(sTILE)}, 12"] if j == 0 else []) + [f"buffer_load_dwordx4 {vr(LANDK[k] + 4*j, 4)}, {vr(vLIN)}, {sr(sPL,4)}, {sr(sTILE)} offen offset:{j*1024} sc1 ; #l{k}"]
        STAGED.append(k)
    lastpoll = NS * 16 - int(CFG.get("lp", 12))
    vm[lastpoll] = gsel(0, sTILE, 2) + [f"buffer_load_dword {vr(vT+1)}, off, {sr(sFL,4)}, {sr(sTILE)} offset:16 sc1 ; #lp"]
    prev = -1
    for g in sorted(vm):
        grp = vm[g]; sca = grp[:-1]
        lo = max([prev] + [q for q in range(g) if any(x.startswith("L_e") for x in nvm.get(q, []))])
        free = [q for q in range(lo + 1, g) if not any(x.startswith(("s_", "@")) for x in nvm.get(q, []))]
        if len(free) >= len(sca):
            for x, q in zip(sca, free[len(free) - len(sca):]): nvm.setdefault(q, []).insert(0, x)
        elif g - 1 > lo: nvm[g - 1] = sca + nvm.get(g - 1, [])
        else: nvm[g] = sca + ["s_nop 0"] + nvm.get(g, [])
        nvm.setdefault(g, []).append(grp[-1]); prev = g
    ad = ["v_and_b32 v10, 15, v0", "v_lshrrev_b32 v11, 4, v0", "v_lshlrev_b32 v11, 4, v11", "v_lshl_add_u32 v18, v10, 10, v11"]
    def unpack(k):
        u_ = acc(k, 0, 0)
        return [x for j in range(8) for x in (f"v_lshlrev_b32 {vr(u_+2*j)}, 16, {vr(LANDK[k]+j)}", f"v_and_b32 {vr(u_+2*j+1)}, 0xffff0000, {vr(LANDK[k]+j)}")]
    gs = NS * 16 - 44
    va = [(x, 20, "a") for x in ad] + [("@wait l2,l1", gs, "b")] + [(x, gs, "b") for x in unpack(2) + unpack(1)]
    va += [(f"v_add_f32 {vr(acc(1,0,0)+j)}, {vr(acc(1,0,0)+j)}, {vr(acc(2,0,0)+j)}", gs, "b") for j in range(16)]
    part, lft = weave(mf, nvm, va, pre=pre)
    o += part
    o += stamp()
    o += [x for x, _, _ in lft]
    A(f"s_mov_b32 {sr(sCNT)}, 0")
    A("@wait lp")
    A(f"v_cmp_ne_u32 vcc, 1, {vr(vT+1)}")
    A("s_cbranch_vccz L_go2")
    A("L_poll2:")
    A(f"buffer_load_dword {vr(vT+1)}, off, {sr(sFL,4)}, {sr(sTILE)} offset:16 sc1")
    A("s_waitcnt vmcnt(0)")
    A(f"v_cmp_ne_u32 vcc, 1, {vr(vT+1)}")
    A("s_cbranch_vccz L_go2")
    A(f"s_add_u32 {sr(sCNT)}, {sr(sCNT)}, 1")
    A(f"s_cmp_lt_u32 {sr(sCNT)}, {CFG['spin']}")
    A("s_cbranch_scc1 L_poll2")
    A("L_go2:")
    o += stamp()
    A(f"s_lshl_b32 {sr(sTILE)}, {sr(sTILE)}, 12")
    for j in range(2): A(f"buffer_load_dwordx4 {vr(LANDK[0] + 4*j, 4)}, {vr(vLIN)}, {sr(sPL,4)}, {sr(sTILE)} offen offset:{j*1024} sc1 ; #l0")
    A("s_nop 4")
    for j in range(0, 16, 2): A(f"v_pk_add_f32 {vr(OWN+j,2)}, {vr(OWN+j,2)}, {vr(acc(1,0,0)+j,2)}")
    A(f"s_mov_b32 {sr(sT)}, 16384")
    A("@wait l0")
    o += unpack(0)
    for j in range(0, 16, 2): A(f"v_pk_add_f32 {vr(OWN+j,2)}, {vr(OWN+j,2)}, {vr(acc(0,0,0)+j,2)}")
    for q2 in range(2):
        for j in range(4): A(f"v_cvt_pk_bf16_f32 {vr(2 + 4*q2 + j)}, {vr(OWN + 8*q2 + 2*j)}, {vr(OWN + 8*q2 + 2*j + 1)}")
        A(f"buffer_store_dwordx4 {vr(2 + 4*q2, 4)}, v18, {sr(sOUT,4)}, {sr(sT) if q2 else 0} offen {CFG.get('outst', 'nt').replace('+', ' ')}")
    return o

def peeled(lf):
    o = [f"s_mov_b32 {sr(sT)}, 0xe00fe000", f"v_cmp_ne_u32 vcc, {sr(sT)}, {vr(vCW)}", "s_cbranch_vccnz L_cw", "L_cw_back:"]
    for i in range(PEEL0, 15):
        loads = []
        tp = CFG.get("tpol", "nt").replace("+", " ")
        def touch(j, half):
            return [f"s_mov_b32 {sr(sDT)}, {j * 262144 + half * 4096}", f"s_mov_b32 {sr(sO+2)}, {j * 262144 + half * 4096 + 4096}",
                    f"buffer_load_dword {ar(240 + 2*j + half)}, {vr(vCW)}, {sr(sO,4)}, {sr(sDT)} offen {tp} ; #tch"]
        T = [touch(j, h_) for j in range(2) for h_ in range(2)] if CFG.get("local") and tp != "none" else []
        tsch = [int(x) for x in CFG.get("tsch", "13,13,13,13").split(",")]
        mine = [t for t, k in zip(T, tsch) if k == i]
        if i == 12 and CFG.get("local"):
            ids = [[f"v_and_b32 {vr(vCW)}, 63, v0", f"v_lshlrev_b32 {vr(vCW)}, 7, {vr(vCW)}", f"s_nop 0",
                    f"buffer_load_dword {ar(239)}, {vr(vCW)}, {sr(sFLR,4)}, 0 offen offset:4 sc1 ; #ids"]]
            loads = [(ids + mine, 0, NG)]
        fixed = {}
        if i == 12 and CFG.get("wtouch", False):
            tg = [int(x) for x in CFG.get("wtg", "65,68,93,107").split(",")]
            NP = len(tg)
            fixed[64] = [f"v_and_b32 {vr(vCW)}, {64 // NP - 1}, v0", f"v_lshlrev_b32 {vr(vCW)}, 7, {vr(vCW)}"]
            for j, g in enumerate(tg):
                off = j * 8192 // NP
                fixed.setdefault(g, []).append(f"buffer_load_dword {ar(252 + j)}, {vr(vCW)}, {sr(sWFL,4)}, {sr(sRX if off >= 4096 else sRW)} offen offset:{off % 4096} sc1 ; #wt")
        if i == 12 and int(CFG.get("r1n12", 0)): loads = [(wo_loads("R1")[:int(CFG["r1n12"])], 0, NG)]
        r1at = int(CFG.get("r1at", 14))
        if i == 13:
            g = mine + (wo_loads("R1")[:8] if r1at == 13 else [])
            if not CFG.get("local"): g = wo_loads("R1")[8:]
            loads = [(g, int(CFG.get("r1lo", 24)), int(CFG.get("r1hi", 75)))] if g else []
        if i == 14:
            loads = [(wo_loads("R2") + wo_loads("R4") + (wo_loads("R3u") if CFG.get("r3u") else []), 64, NG)]
            if int(CFG.get("r1n13", 8)) < 16: loads.insert(0, (wo_loads("R1")[:8], 0, 64))
            if CFG.get("local"):
                chk = [f"@wait ids,tch", f"v_accvgpr_read_b32 {vr(vCW)}, {ar(239)}"]
                r1 = wo_loads("R1")[(8 if r1at == 13 else 0):]
                k8 = len(r1) - 8
                r1[k8] = chk + r1[k8]
                loads.insert(0, (r1, 0, 64))
        o += iteration(i, f"L_r{i}", loads, phase_c_srds() if i == PEEL0 else (), fixed)
    o += stamp()
    o += tail_and_epilogue(3)
    o += phase_c()
    fifo = [f"K{PEEL0+2}"] * 4 + [f"V{PEEL0+1}"] * 4
    if CFG.get("skipst"): o = [x for x in o if "#ost" not in x]
    if CFG.get("skipp"): o = [x for x in o if not re.search(r"#p\d", x)]
    o, _, _ = resolve(o, fifo, lf)
    return o

def stamp_out():
    if not CFG["stamps"]: return []
    o = ["s_waitcnt vmcnt(0)"] + stamp()
    A = o.append
    A(f"s_lshl_b32 {sr(sT)}, s2, 10"); A(f"s_add_u32 {sr(sT)}, {sr(sT)}, {STAMP_OFF}")
    o += srd_at(4, 14, sr(sT), 1024)
    A("v_lshlrev_b32 v1, 2, v0")
    A(f"buffer_store_dword v{STV}, v1, s[4:7], 0 offen")
    if CFG.get("dbgout"):
        o += srd_at(4, 12, "0", 64)
        A("v_and_b32 v2, 63, v0")
        A("v_lshlrev_b32 v1, 1, v2"); A("v_add_u32 v1, 6, v1")
        A("v_and_b32 v3, 1, v2"); A("v_cmp_eq_u32 vcc, 0, v3"); A("v_mov_b32 v3, 0x1000"); A("s_nop 1")
        A("v_cndmask_b32 v1, v1, v3, vcc")
        A(f"v_cmp_lt_u32 vcc, {2*nstamp[0]}, v2"); A("s_nop 1"); A("v_cndmask_b32 v1, v1, v3, vcc")
        A(f"buffer_atomic_umax v{STV}, v1, s[4:7], 0 offen sc1")
        A(f"v_not_b32 v4, v{STV}")
        A("v_cmp_eq_u32 vcc, 1, v2"); A("s_nop 1"); A("v_cndmask_b32 v1, v3, 4, vcc")
        A(f"buffer_atomic_umax v4, v1, s[4:7], 0 offen sc1")
    return o

def kernel():
    pro, fifo, lf0 = prologue()
    _, _, lf = resolve(iteration(0, "x") + iteration(1, "x"), [])
    its = []
    for u in range(4):
        it, _, lf2 = resolve(iteration(u, f"L_r{u}"), [], lf)
        assert lf2 == lf
        its.append(it)
    assert len(lf0) >= len(lf) and lf0[len(lf0)-len(lf):] == lf or CFG["stamps"] or CFG.get("probe"), (lf0, lf)
    pe = peeled(lf)
    body = list(pro)
    body.append("L_loop:")
    for u in range(4):
        it = list(its[u])
        if u == 3:
            k = [i for i, x in enumerate(it) if x.startswith(MF)]
            it.insert(k[-3] + 1, f"s_cmp_lt_u32 {sr(sCNT)}, {NPASS}")
            it.insert(k[-4] + 1, f"s_add_u32 {sr(sCNT)}, {sr(sCNT)}, 1")
            it.append("s_cbranch_scc1 L_loop")
            its[3] = it
        body += it
    body += pe
    body += stamp_out()
    if CFG.get("fixdur"):
        body += ["L_fix:", "s_memrealtime s[40:41]", "s_waitcnt lgkmcnt(0)", "s_sub_u32 s40, s40, s42", f"s_cmp_lt_u32 s40, {int(CFG['fixdur'])*100}", "s_cbranch_scc1 L_fix"]
    body.append("L_end:")
    body.append("s_endpgm")
    for u in list(range(4)) + list(range(PEEL0, 15)):
        body += [f"L_r{u}a:", f"s_call_b64 {sr(sRET,2)}, L_ra{1 - u % 2}", f"s_branch L_r{u}a_back"]
        if CFG.get("evslow"): body += [f"L_r{u}z:", f"s_nop {int(CFG['evslow'][1:])}", f"s_branch L_r{u}z_back"]
        body += [f"L_r{u}b:", f"s_call_b64 {sr(sRET,2)}, L_rb", f"s_branch L_r{u}b_back"]
    body += ["L_cw:", f"s_mov_b32 {sr(sCNT)}, 0", "L_cw_loop:",
             f"v_and_b32 {vr(vCW)}, 3, v0", f"v_lshlrev_b32 {vr(vCW)}, 6, {vr(vCW)}",
             f"buffer_load_dword {vr(vCW)}, {vr(vCW)}, {sr(sDB,4)}, 0 offen sc1", "s_waitcnt vmcnt(0)",
             f"v_cmp_ne_u32 vcc, {sr(sT)}, {vr(vCW)}", "s_cbranch_vccz L_cw_back",
             f"s_add_u32 {sr(sCNT)}, {sr(sCNT)}, 1", f"s_cmp_lt_u32 {sr(sCNT)}, {CFG['spin']}", "s_cbranch_scc1 L_cw_loop",
             "s_branch L_cw_back"]
    if CFG.get("local"): body += ["L_pubg:", "buffer_wbl2 sc1", "s_waitcnt vmcnt(0)",
             f"buffer_store_dword {vr(vMX)}, {vr(vLIN)}, {sr(sFL,4)}, 0 offen sc1", "s_branch L_pubg_back"]
    if CFG.get("local"): body += ["L_acq:", "buffer_inv sc1", "s_waitcnt vmcnt(0)", "s_branch L_acq_back"]
    for k in STAGED:
        body += [f"L_e{k}:", f"s_mov_b32 {sr(sCNT)}, 0", f"L_e{k}_loop:",
                 f"buffer_load_dword {vr(vT+1)}, off, {sr(sFL,4)}, {sr(sTILE)} offset:16 sc1", "s_waitcnt vmcnt(0)",
                 f"v_cmp_ne_u32 vcc, 1, {vr(vT+1)}", f"s_cbranch_vccz L_e{k}_back",
                 f"s_add_u32 {sr(sCNT)}, {sr(sCNT)}, 1", f"s_cmp_lt_u32 {sr(sCNT)}, {CFG['spin']}", f"s_cbranch_scc1 L_e{k}_loop", f"s_branch L_e{k}_back"]
    for p in range(2): body += rare_a(p, f"L_ra{p}")
    body += rare_b("L_rb")
    loop = its[0] + its[1] + its[2] + its[3]
    check(pro + loop + loop + pe, "main")
    def with_rare(seq):
        o = []
        for x in seq:
            m = re.match(r"L_r(\d+)([ab])_back:", x)
            if m: o += (rare_a(1 - int(m.group(1)) % 2, "x") if m.group(2) == "a" else rare_b("x"))[1:]
            o.append(x)
        return o
    check(pro + with_rare(loop + pe), "rare")
    if CFG.get("jitter"):
        import random
        rnd = random.Random(int(CFG["jitter"][1:]))
        nb = []; cnt = 0; started = False
        for x in body:
            if x == "s_endpgm": started = False
            j = False
            if x.startswith("s_barrier"): started = True; j = True
            if x.startswith(MF): cnt += 1; j = cnt % 97 == 0
            pre_ = rnd.random() < 0.5
            blk = []
            if j and started:
                lab = f"L_j{len(nb)}"
                blk = ["s_cselect_b32 s101, 1, 0", "s_memrealtime s[40:41]", "s_waitcnt lgkmcnt(0)", f"s_lshl_b32 s41, {sr(sWAVE)}, 2", "s_xor_b32 s40, s40, s41", "s_xor_b32 s40, s40, s2",
                       f"s_and_b32 s40, s40, {rnd.choice([12, 28, 60])}", "s_cmp_lg_u32 s40, 0", f"s_cbranch_scc1 {lab}", f"s_sleep {rnd.choice([4, 16, 64])}", f"{lab}:", "s_cmp_lg_u32 s101, 0"]
            nb += (blk + [x]) if pre_ else ([x] + blk)
        return "\n".join(nb)
    lastscc = None
    for x in body:
        op = x.split()[0] if x.split() else ""
        if op == "s_addc_u32": assert lastscc == "s_add_u32" and prev.startswith("s_add_u32"), (prev, x)
        if op in ("s_cselect_b32", "s_cbranch_scc0", "s_cbranch_scc1"): assert lastscc.startswith("s_cmp"), (lastscc, x)
        if op.startswith(("s_add", "s_sub", "s_and", "s_or", "s_xor", "s_lshl", "s_lshr", "s_cmp", "s_bfe", "s_min", "s_max", "s_not")): lastscc = op
        prev = x
    if CFG["verbose"]:
        for g in range(NG): print(g, PLAN[g])
    return "\n".join(body)

if __name__ == "__main__":
    k = kernel()
    txt = file_text([dict(label=NAME + "_kernel", body=k, grid=256, block=256, lds=163840, vgpr=512, accum=256)], single=True)
    DOC = """; ---------------------------------------------------------------------------------------------
; Fused MHA block, one workgroup (4 waves, one per SIMD) per (batch, head); generated by a script.
;  A. Q^T = wq_h^T x_b^T   (x / wq streamed through LDS by LDS-DMA; scale*log2e folded into Q)
;  B. flash attention over 16 key tiles of 64: S^T = K Q^T - m (running max as MFMA C operand),
;     P = exp2(S), O^T += V^T P^T, l += 1^T P^T.  The max of every tile is checked; when it
;     exceeds the running max by more than 8 (log2) the rare path moves the max and rescales O, l.
;     every workgroup computes a 128x128 tile over K = 1024, the 4 octets' partial tiles are
;     reduced through d_ws.  wo is re-laid out into MFMA fragment order in d_ws during phase A.
;  Hand-offs: write-through (sc1) stores, vmcnt wait, barrier, one flag / counter per workgroup,
;  sc1 polls (bounded).  Flags are cleared by their owner at the start; d_debug counts that.
; ---------------------------------------------------------------------------------------------
"""
    txt = txt.replace('.amdgcn_target', DOC + '.amdgcn_target', 1)
    open(sys.argv[1], "w").write(txt)
```

```python
import sys, math, struct, re
from asmlib import *
from check import check

CFG = dict(qst=False, stamps=False, codepf=True, warm=True, spin=200000, verbose=False)
for a in sys.argv[2:]:
    k, v = a.split("=")
    CFG[k] = {"0": False, "1": True}.get(v, v)

MF = "v_mfma_f32_16x16x32_bf16"
def vr(b, n=1): return f"v{b}" if n == 1 else f"v[{b}:{b+n-1}]"
def ar(b, n=1): return f"a{b}" if n == 1 else f"a[{b}:{b+n-1}]"
def sr(b, n=1): return f"s{b}" if n == 1 else f"s[{b}:{b+n-1}]"
def rr(r, n=1): return vr(r, n) if r < 256 else ar(r - 256, n)
def slots(t):
    if t.startswith(("v_exp", "v_rcp", "buffer_", "global_", "v_permlane")): return 2
    if t.startswith(("s_", "@", "L_")): return 0
    return 1

sX, sWQ, sK, sV, sO = 4, 8, 12, 16, 20
sWFL, sOL = 4, 8
sWAVE, sB, sH, sW4K, sW8K = 24, 25, 26, 27, 28
sCB, sMT, sNT = 29, 30, 31
sXO, sWO = 32, 40
sOUT, sFLR = 32, 36
sTILE, sCNT, sTHR, sSC, sSP = 44, 45, 46, 47, 48
sRET = 50
sTK, sROT, sRQ, sRX, sRW = 49, 92, 93, 94, 95
sW1K, sDT = 96, 97
sPF = 98
sPS, sPL, sPF2 = 80, 84, 76
sHO, sG = 29, 30
sHP, sW2K = 56, 96
sRC = 93
sXCC, sGLB = 3, 94
sT = 52
sARG = 56
sFL, sDB, sDBW = 72, 76, 88
sWS2, sWO2 = 80, 84
vKA, vVA, vDK, vDV = 1, 5, 13, 17
vMX, vLIN, vCW, STV = 19, 21, 22, 23
vT = 24
vONES = 28
vNEG, vL, vQ, vS = 32, 48, 64, 128
vWA, vXA, vDX, vDW, vWOF = 64, 72, 76, 78, 25
vWOA, vWOS = 19, 20
vDUM = [22, 26, 27]
u0, u1, u2, u3, u4, u5, ln = 128, 129, 130, 131, 132, 133, 134
aO, aF = 0, 128
LK, LV, LW = 0, 65536, 131072
LX = [81920, 131072]
LWQ = [32768, 49152, 65536]
LWO = 114688
WOF_OFF, FLAG_OFF, PART_OFF, STAMP_OFF = 0x1000000, 0x1400000, 0x1800000, 0x4000000

def Ureg(p, ks, qb): return vS + 64 * p + 8 * (ks * 4 + qb)
def Sreg(p, kb, qb): return Ureg(p, kb // 2, qb) + 4 * (kb % 2)
def Oreg(qb, dt): return aO + 4 * (qb * 8 + dt)
def Qreg(qb, s): return vQ + 16 * qb + 4 * s
def Freg(n): return aF + 4 * n

nstamp = [0]
def stamp():
    if CFG.get("probe"):
        i = nstamp[0]; nstamp[0] += 1
        return ["s_memrealtime s[42:43]", "s_waitcnt lgkmcnt(0)"] if i == int(CFG["probe"][1:]) else []
    if not CFG["stamps"]: return []
    i = nstamp[0]; nstamp[0] += 1
    assert i < 30
    return ["s_memtime s[40:41]", "s_waitcnt lgkmcnt(0)", f"v_writelane_b32 v{STV}, s40, {2*i}",
            "s_memrealtime s[40:41]", "s_waitcnt lgkmcnt(0)", f"v_writelane_b32 v{STV}, s40, {2*i+1}"]

def srd(s, size):
    return [f"s_and_b32 {sr(s+1)}, {sr(s+1)}, 0xffff", f"s_mov_b32 {sr(s+2)}, {size}", f"s_mov_b32 {sr(s+3)}, 0x20000"]
def srd_at(s, arg, offreg, size):
    return [f"s_add_u32 {sr(s)}, {sr(sARG+arg)}, {offreg}", f"s_addc_u32 {sr(s+1)}, {sr(sARG+arg+1)}, 0"] + srd(s, size)

def tag(lst, t): return [(x + f" ; #{t}") if x.startswith(("buffer_", "global_")) and "#" not in x else x for x in lst]
def resolve(seq, fifo, lfifo=()):
    fifo = list(fifo); lf = list(lfifo); out = []
    def cut(f, n): return f[len(f) - n:] if 0 < n < len(f) else (f if n else [])
    for x in seq:
        if x.startswith("@wait"):
            parts = x.split()
            w = []
            idx = [i for i, t in enumerate(fifo) if t in parts[1].split(",")]
            if idx:
                n = min(63, len(fifo) - 1 - max(idx)); fifo = cut(fifo, n); w.append(f"vmcnt({n})")
            for p in parts[2:]:
                if p.startswith("vm="): n = int(p[3:]); fifo = cut(fifo, n); w.append(f"vmcnt({n})")
                if p.startswith("lgkm="): n = int(p[5:]); lf = cut(lf, n); w.append(f"lgkmcnt({n})")
                if p.startswith("lds="):
                    idx = [i for i, t in enumerate(lf) if t in p[4:].split(",")]
                    if idx:
                        n = min(15, len(lf) - 1 - max(idx)); lf = cut(lf, n); w.append(f"lgkmcnt({n})")
            if w: out.append("s_waitcnt " + " ".join(w))
            continue
        m = re.search(r"#(\S+)", x)
        if x.startswith(("buffer_", "global_")): fifo.append(m.group(1) if m else "?")
        if x.startswith("ds_"): lf.append(m.group(1) if m else "?")
        m = re.match(r"s_waitcnt.*vmcnt\((\d+)\)", x)
        if m: fifo = cut(fifo, int(m.group(1)))
        m = re.match(r"s_waitcnt.*lgkmcnt\((\d+)\)", x)
        if m: lf = cut(lf, int(m.group(1)))
        out.append(x)
    return out, fifo, lf

PAT = CFG.get("pat", "A")
PATS = {"lin": ((8, 9, 12, 13), (14, 15, 16, 17)), "w64": ((8, 9, 16, 17), (12, 13, 14, 15)), "w32": ((8, 9, 15, 16), (12, 13, 14, 17)),
        "r8": ((8, 15, 16, 17), (9, 12, 13, 14)), "r16": ((14, 15, 16, 17), (8, 9, 12, 13)), "r8b": ((15, 16, 17, 8), (9, 12, 13, 14)),
        "r8c": ((9, 15, 16, 17), (8, 12, 13, 14)), "r8d": ((12, 15, 16, 17), (8, 9, 13, 14)), "A": ((8, 9, 15, 16), (11, 12, 13, 14))}
P17 = PAT == "A"
RB, TB = PATS[PAT]
TMASK = sum(1 << x for x in TB)
def tinc(r): return [f"s_or_b32 {sr(r)}, {sr(r)}, {0xffffffff ^ TMASK:#x}", f"s_add_u32 {sr(r)}, {sr(r)}, 1", f"s_and_b32 {sr(r)}, {sr(r)}, {TMASK:#x}"]
CONT = CFG.get("cont", False)
NOSWAP = CFG.get("noswap", True)
DIST = int(CFG.get("dist", 3))
def dma_k(p, soff):
    if CONT: return f"buffer_load_dwordx4 {vr(vDK)}, {sr(sK,4)}, {sr(sDT)} offen nt lds"
    return f"buffer_load_dwordx4 {vr(vDK+p)}, {sr(sK,4)}, {soff} offen offset:{1024*p} nt lds"
def dma_v(p, soff):
    if CONT: return f"buffer_load_dwordx4 {vr(vDV)}, {sr(sV,4)}, {sr(sDT)} offen nt lds"
    return f"buffer_load_dwordx4 {vr(vDV + p%2)}, {sr(sV,4)}, {sr(sROT) if P17 and p >= 2 else soff} offen offset:{1024*p} nt lds"
def v_pre(p): return [f"s_add_u32 {sr(sROT)}, {sr(sTILE)}, {131072 - 2048}"] if P17 and p == 2 else []
def cont_pre(base, p, soff): return [f"s_add_u32 m0, {sr(sW1K)}, {base + p*4096}", f"s_add_u32 {sr(sDT)}, {soff}, {p*4096}"]
def m0_at(addr): return f"s_add_u32 m0, {sr(sW4K)}, {addr}"
def kv_batch(which, tile):
    r = sTK if which == "K" else sTILE
    out = (tinc(r) if tile else []) + [m0_at((LK + slotK(tile) * 16384 if which == "K" else LV + slotV(tile) * 16384)), "s_nop 0"]
    for p in range(4): out += [dma_k(p, sr(r))] if which == "K" else v_pre(p) + [dma_v(p, sr(r))]
    return tag(out, f"{which}{tile}")

NPASS = int(CFG.get("npass", 3))
PEEL0 = 4 * NPASS
def slotK(t): return t % 4
def slotV(t): return t % 4
def rd_k(slot, n):
    kb, s = n // 4, n % 4
    return f"ds_read_b128 {ar(Freg(n),4)}, {vr(vKA+s)} offset:{slot*16384 + kb*4096} ; #k{n}"
def rd_v(slot, n, t):
    dt, ks = n // 2, n % 2
    return f"ds_read_b64_tr_b16 {ar(Freg(n)+2*t,2)}, {vr(vVA+dt)} offset:{slot*16384 + (32*ks+16*t)*256} ; #v{n}"

def qk_one(p, kb, qb, s, first, czero=False):
    d = Sreg(p, kb, qb)
    c = vr(d, 4) if not first else ("0" if czero else vr(vNEG + 4*qb, 4))
    return f"{MF} {vr(d,4)}, {ar(Freg(kb*4+s),4)}, {vr(Qreg(qb,s),4)}, {c}"
def qk_list(p):
    return [qk_one(p, kb, qb, (i if qb % 2 == 0 else 3 - i), i == 0) for kb in range(4) for qb in range(4) for i in range(4)]
def pv_one(p, dt, qb, ks):
    o = Oreg(qb, dt)
    return f"{MF} {ar(o,4)}, {ar(Freg(dt*2+ks),4)}, {vr(Ureg(p,ks,qb),4)}, {ar(o,4)}"
def sum_one(p, qb, ks):
    return f"{MF} {vr(vL+4*qb,4)}, {vr(vONES,4)}, {vr(Ureg(p,ks,qb),4)}, {vr(vL+4*qb,4)}"
def pv_list(p):
    return ([pv_one(p, dt, qb, (i if qb % 2 == 0 else 1 - i)) for dt in range(8) for qb in range(4) for i in range(2)]
            + [sum_one(p, qb, ks) for qb in range(4) for ks in range(2)])

UNITS = [(0, 0), (1, 0), (1, 1), (0, 1), (0, 2), (1, 2), (1, 3), (0, 3)]
def ereg(p, e): ks, qb = UNITS[e // 8]; return Ureg(p, ks, qb) + e % 8
def exp_i(p, e): r = ereg(p, e); return f"v_exp_f32 {vr(r)}, {vr(r)}"
def cvt_i(p, k):
    r = ereg(p, 2 * k); return f"v_cvt_pk_bf16_f32 {vr(r - (2*k) % 8 + k % 4)}, {vr(r)}, {vr(r+1)}"
def max_items(p):
    out = []
    for kb in range(4):
        for qb in range(4):
            r = Sreg(p, kb, qb); m = vr(vMX + qb % 2); done = 16 * kb + 4 * qb + 3
            if kb == 0 and qb < 2:
                out.append((f"v_max3_f32 {m}, {vr(r)}, {vr(r+1)}, {vr(r+2)}", done))
                out.append((f"v_max_f32 {m}, {vr(r+3)}, {m}", done))
            else:
                out.append((f"v_max3_f32 {m}, {vr(r)}, {vr(r+1)}, {m}", done))
                out.append((f"v_max3_f32 {m}, {vr(r+2)}, {vr(r+3)}, {m}", done))
    return out

NG = 136
HOOKA = 69
BARG = 118
LAT = 8
def make_plan():
    plan = {g: [] for g in range(NG)}
    T0 = HOOKA
    dsp = int(CFG.get("dsp", 9))
    dv0 = int(CFG.get("dv0", 72))
    dma_g = [4 + dsp * i for i in range(4)] + [dv0 + dsp * i for i in range(4)]
    dma_t = [g + NG if g < HOOKA else g for g in dma_g]
    NX2 = int(CFG.get('nx2', 40))
    r2 = [t for t in range(T0, NG) if t != BARG and t not in dma_t]
    r1 = [t for t in range(NG, NG + 64) if t not in dma_t]
    xt = [r2[i * len(r2) // NX2] for i in range(NX2)] + [r1[i * len(r1) // (64 - NX2)] for i in range(64 - NX2)]
    assert len(set(xt)) == 64
    for e, t in enumerate(xt): plan[t % NG].append(("exp", e, t >= NG))
    for i, t in enumerate(dma_t): plan[t % NG].append(("dma", i))
    Y = []
    for k in range(32):
        Y.append((xt[2*k+1] + 1, NG + 64 + k // 4 - 2, ("cvt", k)))
    for i, (_, done) in enumerate(max_items(0)):
        Y.append((NG + done + 3, NG + HOOKA - 3, ("max", i)))
    Y.append((NG + 66, NG + HOOKA - 2, ("max", 32))); Y.append((NG + 66, NG + HOOKA - 1, ("max", 33)))
    for n in range(16):
        Y.append((max(BARG + 1, 64 + 8 * (n // 2) + 7), NG + 16 * (n // 4) - LAT, ("k", n)))
    NV1 = int(CFG.get("nv1", 10))
    for n in range(16):
        e, d = 16 * (n // 4) + 15, min(64 + 8 * (n // 2) - LAT, BARG - 10)
        for t in range(2):
            if n < NV1: Y.append((NG + e, NG + min(d, HOOKA - 1), ("v", n, t)))
            else: Y.append((T0, d, ("v", n, t)))
    def kind(y): return y[2][0] + ("1" if y[2][0] == "v" and y[0] >= NG else "")
    ygaps = [t for t in range(T0, T0 + NG) if not plan[t % NG] and t % NG != BARG]
    pend = list(Y)
    for t in ygaps:
        g = t % NG
        picked = []
        for _ in range(2):
            heads = {}
            for y in pend: heads.setdefault(kind(y), y)
            c = [y for y in heads.values() if y[0] <= t]
            if not c: break
            def eff(y):
                same = [z for z in pend if kind(z) == kind(y)]
                return min(z[1] - i / 1.2 for i, z in enumerate(same))
            y = min(c, key=eff)
            assert t <= y[1], ("deadline miss", t, y)
            picked.append(y); pend.remove(y)
        picked.sort(key=lambda y: 0 if y[2][0] in ("k", "v") else 1)
        for y in picked: plan[g].append(y[2] + ((t >= NG,) if y[2][0] == "cvt" else ()))
    assert not pend, pend
    return plan
PLAN = make_plan()

def iteration(i, lab, loads=None, salu=(), fixed=None):
    assert DIST == 3 and not CONT
    p = i % 2
    steady = i < PEEL0
    sc = {g: [] for g in range(NG)}
    for kb in range(4): sc[16 * kb - 1 if kb else NG - 2].append(f"@wait - lds=" + ",".join(f"k{kb*4+s}" for s in range(4)))
    for dt in range(8):
        if 64 + 8 * dt - 1 < BARG - 1: sc[64 + 8 * dt - 1].append(f"@wait - lds=v{2*dt},v{2*dt+1}")
    sc[BARG - 1].append(f"@wait - vm={10 if i == 1 else (9 if i == 2 and CFG.get('repf', False) else 8)} lgkm=0" if steady else f"@wait K{i+2},V{i+1} lgkm=0")
    sc[BARG].append("s_barrier")
    if CFG.get("itst"):
        sc[BARG - 2].append("s_memrealtime s[40:41]")
        sc[BARG] += ["s_mov_b64 exec, s[42:43]", f"v_mov_b32 v{STV}, s40", "s_mov_b64 exec, -1", "s_lshl_b64 s[42:43], s[42:43], 1"]
    sc[HOOKA] += [f"s_cbranch_vccnz {lab}a", f"{lab}a_back:"]
    sc[NG - 1] = [f"s_cbranch_vccnz {lab}b", f"{lab}b_back:"] + sc[NG - 1]
    if CFG.get("evslow"):
        sc[90] += ["s_and_b32 s101, s2, 1"]; sc[91] += ["s_cmp_eq_u32 s101, 0"]; sc[92] += [f"s_cbranch_scc1 {lab}z", f"{lab}z_back:"]
    extra = dict(fixed or {})
    vm = {}
    hask, hasv = i + 3 <= 15, i + 2 <= 15
    for j, g in enumerate(DMA_GAPS):
        if j < 4 and hask: vm[g] = [m0_at(LK + slotK(i + 3) * 16384), dma_k(j, sr(sTK)) + f" ; #K{i+3}"]
        v15 = CFG.get("v15", "a")
        if i == 13 and v15 != "n":
            if j < 4 and v15 == "a": vm[(2, 8, 14, 20)[j] if CFG.get("v15d", True) else g] = v_pre(j) + [m0_at(LV + slotV(15) * 16384), dma_v(j, sr(sTILE)) + " ; #V15"]
            continue
        if j >= 4 and hasv: vm[g] = v_pre(j - 4) + [m0_at(LV + slotV(i + 2) * 16384), dma_v(j - 4, sr(sTILE)) + f" ; #V{i+2}"]
    if i == 12 and CFG.get("v15", "a") == "b":
        vm = {}
        for j in range(4):
            vm[(4, 13, 22, 32)[j]] = [m0_at(LK + slotK(15) * 16384), dma_k(j, sr(sTK)) + " ; #K15"]
            vm[(40, 46, 58, 64)[j]] = [m0_at(LV + slotV(14) * 16384), dma_v(j, sr(sTILE)) + " ; #V14"]
            vm[(72, 86, 100, 114)[j]] = [m0_at(LV + slotV(15) * 16384), dma_v(j, sr(sTK)) + " ; #V15"]
    sc[120].append(f"s_mov_b32 {sr(sTILE)}, {sr(sTK)}")
    for j_, x in enumerate(tinc(sTK)): sc[121 + j_].append(x)
    if steady:
        if i == 1:
            extra[64] = [f"v_and_b32 {vr(vCW)}, 3, v0", f"v_lshlrev_b32 {vr(vCW)}, 6, {vr(vCW)}"]
            extra[65] = [f"buffer_load_dword {vr(vCW)}, {vr(vCW)}, {sr(sDB,4)}, 0 offen sc1"]
            sc[40].append(f"s_cmp_eq_u32 {sr(sCNT)}, {NPASS - 1}")
            sc[41].append(f"s_cselect_b32 {sr(sDB+2)}, 256, 0")
            extra[68] = [f"buffer_atomic_add {vr(vONES)}, {vr(vLIN)}, {sr(sDBW,4)}, 0 offen sc1"]
            sc[75].append(f"s_mov_b32 {sr(sDBW+2)}, 0")
        if i == 2 and CFG.get("repf", False):
            extra[64] = [f"v_and_b32 {vr(vT)}, 31, v0", f"v_lshlrev_b32 {vr(vT)}, 10, {vr(vT)}"]
            extra[65] = [f"v_add_u32 {vr(vT)}, {sr(sPF+2)}, {vr(vT)}", f"v_min_u32 {vr(vT)}, L_end-L_pc, {vr(vT)}"]
            extra[68] = [f"global_load_dword {ar(255)}, {vr(vT)}, {sr(sPF,2)}"]
    else:
        nextk = i + 2 <= 15
        def load(g):
            return sum(2 if it[0] == "exp" else (0 if it[0] == "dma" or (it[0] == "k" and g > BARG and not nextk) else 1) for it in PLAN[g])
        gs = 0
        for x in salu:
            if x.startswith(("s_addc", "s_cselect")):
                sc[gs - 1].append(x); continue
            while sc[gs] or gs in vm or gs + 1 in vm: gs += 1
            sc[gs].append(x); gs += 1
        for groups, lo, hi in loads:
            cand = [g for g in range(max(lo, gs + 3 if salu else 0), hi) if g not in vm and g not in (BARG, BARG - 1, HOOKA, NG - 1)]
            n = len(groups)
            for k, grp in enumerate(groups):
                win = cand[k * len(cand) // n:(k + 1) * len(cand) // n]
                vm[min(win, key=load)] = grp
    cur_m0 = None; prev = -1
    for g in sorted(vm):
        grp = vm[g]; sca = []
        for x in grp[:-1]:
            if x.startswith("s_add_u32 m0"):
                if x == cur_m0: continue
                cur_m0 = x
            sca.append(x)
        free = [q for q in range(prev + 1, g + 1) if not sc[q] and not (steady and q in (40, 41))]
        if sca and sca[-1].startswith("s_add_u32 m0"): free = [q for q in free if q < g]
        if len(free) >= len(sca):
            for x, q in zip(sca, free[len(free) - len(sca):]): sc[q].append(x)
        else:
            sc[g] += sca + ["s_nop 0"]
        prev = g
    mf = qk_list(1 - p) + pv_list(p)
    MX = [t for t, _ in max_items(1 - p)] + [f"v_max_f32 {vr(vMX)}, {vr(vMX)}, {vr(vMX+1)}", f"v_cmp_lt_f32 vcc, {sr(sTHR)}, {vr(vMX)}"]
    out = []
    for g in range(NG):
        out.append(mf[g])
        out += sc[g]
        ex = extra.get(g, [])
        out += [x for x in ex if not x.startswith("v_")]
        if g in vm: out.append(vm[g][-1])
        for it in PLAN[g]:
            k = it[0]
            if k == "exp": out.append(exp_i(p if it[2] else 1 - p, it[1]))
            elif k == "cvt": out.append(cvt_i(p if it[2] else 1 - p, it[1]))
            elif k == "max":
                if not CFG.get("nomax"): out.append(MX[it[1]])
            elif k == "k":
                t = i + (2 if g > BARG else 1)
                if t <= 15: out.append(rd_k(slotK(t), it[1]))
            elif k == "v": out.append(rd_v(slotV(i), it[1], it[2]))
        out += [x for x in ex if x.startswith("v_")]
        if CFG.get("slowdown") and g % int(CFG["slowdown"]) == 5: out.append("s_nop 7")
    return out
EARLY_K = [it[1] for g in range(BARG + 1, NG) for it in PLAN[g] if it[0] == "k"]
E_FIRST = [it for g in range(HOOKA, NG) for it in PLAN[g] if it[0] in ("exp", "cvt")]
E_REST = [it for g in range(0, HOOKA) for it in PLAN[g] if it[0] in ("exp", "cvt")]
DMA_GAPS = [g for g in range(NG) if any(it[0] == "dma" for it in PLAN[g])]
LIGHT = sorted(range(NG), key=lambda g: (sum(2 if it[0] in ("exp",) else (0 if it[0] == "dma" else 1) for it in PLAN[g])))

def spread(items, gaps):
    d = {}
    for i, it in enumerate(items):
        d.setdefault(gaps[i * len(gaps) // len(items)], []).extend(it)
    return d
def place(groups, lo, hi):
    cand = [g for g in LIGHT if lo <= g < hi and g not in (BARG, BARG - 1, HOOKA, NG - 1)]
    gs = sorted(cand[:len(groups)])
    assert len(gs) == len(groups)
    return {g: list(x) for g, x in zip(gs, groups)}
def merge(*maps):
    d = {}
    for m in maps:
        for k, v in m.items(): d.setdefault(k, []).extend(v)
    return d
def flat(G): return [x for g in G for x in g]
def groups_of(lst):
    G = []; cur = []
    for x in lst:
        cur.append(x)
        if x.startswith("buffer_"): G.append(cur); cur = []
    if cur: G[-1] += cur
    return G

WREG = []
WP = {}
for nm, base, n, st_ in (("R1", 256 + 192, 16, 4), ("R2", vQ, 16, 4), ("R4", vNEG, 4, 4), ("R3u", vS + 4, 8, 8), ("R3", vS, 8, 8), ("R5", 256 + aF, 12, 4)):
    WP[nm] = list(range(len(WREG), len(WREG) + n)); WREG += [base + st_ * i for i in range(n)]
assert len(WREG) == 64
def wo_loads(name, sp=None):
    sp = sSP if sp is None else sp
    groups = []
    for f in WP[name]:
        g = [f"s_add_u32 {sr(sp)}, {sr(sHP + f // 8)}, {(f % 8) * 1024}"] if f % 4 == 0 else []
        g.append(f"buffer_load_dwordx4 {rr(WREG[f], 4)}, {vr(vLIN)}, {sr(sWFL,4)}, {sr(sp)} offen offset:{(f%4)*1024} sc1 ; #w{f}")
        groups.append(g)
    return groups

def pack_muls(l):
    o = []; i = 0
    while i < len(l):
        m1 = re.match(r"v_mul_f32 v(\d+), v\d+, v(\d+)$", l[i]); m2 = re.match(r"v_mul_f32 v(\d+), v\d+, v(\d+)$", l[i+1]) if i + 1 < len(l) else None
        if m1 and m2 and int(m1.group(1)) % 2 == 0 and int(m2.group(1)) == int(m1.group(1)) + 1:
            r = int(m1.group(1)); f_ = int(m1.group(2))
            sel = "op_sel_hi:[1,0]" if f_ % 2 == 0 else "op_sel:[0,1] op_sel_hi:[1,1]"
            o.append(f"v_pk_mul_f32 {vr(r,2)}, {vr(r,2)}, {vr(f_ - f_ % 2,2)} {sel}"); i += 2
        else: o.append(l[i]); i += 1
    return o
def weave(mf, nvmap, va=(), pre=None, need=None):
    out = []; va = list(va)
    for g, m in enumerate(mf):
        if need and g in need:
            last = max([i for i, x in enumerate(va) if x[2] == need[g]], default=-1)
            if last >= 0:
                if va[last][1] > g - 1: out.append("s_nop 7")
                out += pack_muls([x[0] for x in va[:last + 1]]) + ["s_nop 1"]; va = va[last + 1:]
            elif any(x.startswith("v_") and not x.startswith("v_mfma") for x in out[-2:]): out.append("s_nop 1")
        if pre and g in pre: out += pre[g]
        out.append(m)
        nv = nvmap.get(g, [])
        out += nv
        c = sum(slots(x) for x in nv)
        while va and va[0][1] <= g and c + slots(va[0][0]) <= 2:
            c += slots(va[0][0]); out.append(va.pop(0)[0])
    return out, va

def allreduce(op, a, b):
    return [f"v_mov_b32 {vr(b)}, {vr(a)}", "s_nop 1", f"v_permlane32_swap_b32 {vr(a)}, {vr(b)}", "s_nop 1", f"{op} {vr(a)}, {vr(a)}, {vr(b)}",
            f"v_mov_b32 {vr(b)}, {vr(a)}", "s_nop 1", f"v_permlane16_swap_b32 {vr(a)}, {vr(b)}", "s_nop 1", f"{op} {vr(a)}, {vr(a)}, {vr(b)}"]
def qmax(p, qb, d):
    regs = [Sreg(p, kb, qb) + j for kb in range(4) for j in range(4)]
    o = [f"v_max3_f32 {vr(d)}, {vr(regs[0])}, {vr(regs[1])}, {vr(regs[2])}"]
    for i in range(3, 15, 2): o.append(f"v_max3_f32 {vr(d)}, {vr(regs[i])}, {vr(regs[i+1])}, {vr(d)}")
    o.append(f"v_max_f32 {vr(d)}, {vr(regs[15])}, {vr(d)}")
    return o
def rare_a(p, label):
    out = [f"{label}:", "s_nop 7"]
    for qb in range(4):
        d = vT + qb
        out += qmax(p, qb, d) + allreduce("v_max_f32", d, vMX)
        out.append(f"v_max_f32 {vr(d)}, 0, {vr(d)}")
        for j in range(4): out.append(f"v_sub_f32 {vr(vNEG+4*qb+j)}, {vr(vNEG+4*qb+j)}, {vr(d)}")
        for kb in range(4):
            for j in range(4):
                r = Sreg(p, kb, qb) + j
                out.append(f"v_sub_f32 {vr(r)}, {vr(r)}, {vr(d)}")
        out.append(f"v_exp_f32 {vr(d)}, -{vr(d)}")
    out += ["s_nop 3", f"s_setpc_b64 {sr(sRET,2)}"]
    return out
def rare_b(label):
    out = [f"{label}:", "s_nop 15"]
    for qb in range(4):
        f_ = vT + qb
        for j in range(4): out.append(f"v_mul_f32 {vr(vL+4*qb+j)}, {vr(vL+4*qb+j)}, {vr(f_)}")
        for j in range(0, 32, 2):
            a0 = Oreg(qb, 0) + j
            out += [f"v_accvgpr_read_b32 {vr(vMX)}, {ar(a0)}", f"v_accvgpr_read_b32 {vr(vMX+1)}, {ar(a0+1)}",
                    f"v_mul_f32 {vr(vMX)}, {vr(vMX)}, {vr(f_)}", f"v_mul_f32 {vr(vMX+1)}, {vr(vMX+1)}, {vr(f_)}",
                    f"v_accvgpr_write_b32 {ar(a0)}, {vr(vMX)}", f"v_accvgpr_write_b32 {ar(a0+1)}, {vr(vMX+1)}"]
    out += ["s_nop 3", f"s_setpc_b64 {sr(sRET,2)}"]
    return out

def wfrag(st, s, dt): return (128 if st % 2 == 0 else 192) + 4 * (dt * 2 + s)
def xfrag(st, s, qb): return (96 if st % 2 == 0 else 32) + 4 * (qb * 2 + s)
def qacc(qb, dt): return Ureg(dt // 4, (dt // 2) % 2, qb) + 4 * (dt % 2)
def qp_reads(st):
    out = []
    for qb in range(4):
        for s in range(2):
            out.append(f"ds_read_b128 {vr(xfrag(st,s,qb),4)}, {vr(vXA + 2*(st%2) + s)} offset:{qb*2048} ; #x{st}_{qb}")
    for dt in range(8):
        for s in range(2):
            for t in range(2):
                if NOSWAP: out.append(f"ds_read_b64_tr_b16 {ar(wfrag(st,s,dt)+2*t,2)}, {vr(vWA + dt//2)} offset:{(st%3)*16384 + (32*s+4*t)*256 + 8*(dt%2)} ; #w{st}_{dt}")
                else: out.append(f"ds_read_b64_tr_b16 {ar(wfrag(st,s,dt)+2*t,2)}, {vr(vWA + dt)} offset:{(st%3)*16384 + (32*s+4*t)*256} ; #w{st}_{dt}")
    return out
def qp_dma(st):
    G = []
    wf = (" " + CFG["wqld"]) if CFG.get("wqld") else ""
    xf = (" " + CFG["xld"]) if CFG.get("xld") else ""
    if st == 0 and CFG.get("nt0"): wf = xf = " nt"
    for p in range(4):
        g = []
        if p == 0:
            g = [f"s_add_u32 {sr(sRX)}, {sr(sRQ)}, {st}", f"s_and_b32 {sr(sRX)}, {sr(sRX)}, 7", f"s_lshl_b32 {sr(sRW)}, {sr(sRX)}, 19",
                 f"s_lshl_b32 {sr(sRX)}, {sr(sRX)}, 7", m0_at(LWQ[st % 3])]
        g.append(f"s_add_u32 {sr(sDT)}, {sr(sRW)}, {p*(32768-1024)}")
        g.append(f"buffer_load_dwordx4 {vr(vDW + p//2)}, {sr(sWQ,4)}, {sr(sDT)} offen offset:{1024*p}{wf} lds ; #st{st}")
        G.append(g)
    for p in range(8):
        g = [f"s_add_u32 m0, {sr(sW8K)}, {LX[st%2] + (p//4)*4096}"] if p % 4 == 0 else []
        g.append(f"s_add_u32 {sr(sDT)}, {sr(sRX)}, {p*8192 - 1024*(p%4)}")
        g.append(f"buffer_load_dwordx4 {vr(vDX + p%2)}, {sr(sX,4)}, {sr(sDT)} offen offset:{1024*(p%4)}{xf} lds ; #st{st}")
        G.append(g)
    return G
def qp_one(st, dt, qb, s, first):
    d = qacc(qb, dt)
    return f"{MF} {vr(d,4)}, {ar(wfrag(st,s,dt),4)}, {vr(xfrag(st,s,qb),4)}, {'0' if first else vr(d, 4)}"
def qp_mfmas(st):
    return [qp_one(st, dt, qb, (i if qb % 2 == 0 else 1 - i), st == 0 and i == 0) for dt in range(8) for qb in range(4) for i in range(2)]
def qp_q(st, qb):
    return [qp_one(st, dt, qb, (i if dt % 2 == 0 else 1 - i), False) for dt in range(8) for i in range(2)]
def qconv(qb, s):
    d = qacc(qb, 2 * s); q = Qreg(qb, s)
    out = [f"v_mul_f32 {vr(d+j)}, {sr(sSC)}, {vr(d+j)}" for j in range(8)]
    out += [f"v_cvt_pk_bf16_f32 {vr(q+j)}, {vr(d+2*j)}, {vr(d+2*j+1)}" for j in (0, 2, 1, 3)]
    return out, [f"v_permlane32_swap_b32 {vr(q)}, {vr(q+2)}", f"v_permlane32_swap_b32 {vr(q+1)}, {vr(q+3)}"], \
                [f"v_permlane16_swap_b32 {vr(q)}, {vr(q+2)}", f"v_permlane16_swap_b32 {vr(q+1)}, {vr(q+3)}"]
def qconv_stream(qb):
    parts = [qconv(qb, s) for s in range(4)]
    if NOSWAP: return [(x, s) for s in range(4) for x in parts[s][0]]
    out = []
    for s in range(4):
        a = parts[s][0]
        if s == 0: out += [(x, s) for x in a]
        else: out += [(x, s) for x in a[:4]] + [(x, s) for x in parts[s-1][1]] + [(x, s) for x in a[4:8]] + [(x, s) for x in parts[s-1][2]] + [(x, s) for x in a[8:]]
    out += [("s_nop 1", 3)] + [(x, 3) for x in parts[3][1]] + [("s_nop 1", 3)] + [(x, 3) for x in parts[3][2]]
    return out

def setup_a():
    o = []; A = o.append
    A("s_cmp_ge_u32 s2, 256")
    A("s_cbranch_scc1 L_end")
    if CFG.get("fixdur"): A("s_memrealtime s[42:43]")
    A(f"s_load_dwordx16 {sr(sARG,16)}, s[0:1], 0")
    if CFG["codepf"]:
        A(f"s_getpc_b64 {sr(sT,2)}")
        A("L_pc:")
        A(f"s_bfe_u32 {sr(sT+2)}, s2, 0x30003")
        A(f"v_lshrrev_b32 {vr(u0)}, 6, v0"); A(f"v_and_b32 {vr(u1)}, 15, v0"); A(f"v_lshl_add_u32 {vr(u0)}, {vr(u0)}, 4, {vr(u1)}")
        A(f"v_lshlrev_b32 {vr(u0)}, 10, {vr(u0)}"); A(f"s_lshl_b32 {sr(sT+2)}, {sr(sT+2)}, 7"); A(f"v_add_u32 {vr(u0)}, {sr(sT+2)}, {vr(u0)}")
        A(f"v_min_u32 {vr(u0)}, L_end-L_pc, {vr(u0)}")
        A(f"global_load_dword {vr(vDUM[0])}, {vr(u0)}, {sr(sT,2)} ; #pf")
        if CFG.get("repf", False):
            A(f"s_mov_b64 {sr(sPF,2)}, {sr(sT,2)}"); A(f"s_add_u32 {sr(sPF+2)}, {sr(sT+2)}, L_cw_back-L_pc")
    A(f"s_and_b32 {sr(sCB)}, s2, 7")
    A(f"s_lshr_b32 {sr(sT+3)}, s2, 3")
    A(f"s_and_b32 {sr(sMT)}, {sr(sT+3)}, 3"); A(f"s_lshr_b32 {sr(sNT)}, {sr(sT+3)}, 2")
    if CFG.get("pmap", "4x8") == "4x8":
        A(f"s_and_b32 {sr(sB)}, {sr(sCB)}, 1"); A(f"s_lshl_b32 {sr(sB)}, {sr(sB)}, 2"); A(f"s_add_u32 {sr(sB)}, {sr(sB)}, {sr(sMT)}")
        A(f"s_lshr_b32 {sr(sH)}, {sr(sCB)}, 1"); A(f"s_lshl_b32 {sr(sH)}, {sr(sH)}, 3"); A(f"s_add_u32 {sr(sH)}, {sr(sH)}, {sr(sNT)}")
    else:
        A(f"s_mov_b32 {sr(sB)}, {sr(sCB)}"); A(f"s_mov_b32 {sr(sH)}, {sr(sT+3)}")
    rq = CFG.get("rq", "x")
    if rq == "n": A(f"s_mov_b32 {sr(sRQ)}, 0")
    elif rq == "x": A(f"s_mov_b32 {sr(sRQ)}, {sr(sCB)}")
    elif rq == "h": A(f"s_mov_b32 {sr(sRQ)}, {sr(sH)}")
    elif rq == "f": A(f"s_lshl_b32 {sr(sRQ)}, {sr(sB)}, 1"); A(f"s_add_u32 {sr(sRQ)}, {sr(sRQ)}, {sr(sH)}")
    elif rq == "g": A(f"s_add_u32 {sr(sRQ)}, {sr(sB)}, {sr(sH)}")
    A(f"v_lshrrev_b32 {vr(u0)}, 6, v0")
    A(f"v_and_b32 {vr(ln)}, 63, v0")
    A(f"v_readfirstlane_b32 {sr(sWAVE)}, {vr(u0)}")
    A(f"v_lshrrev_b32 {vr(u1)}, 4, {vr(ln)}")
    A(f"v_and_b32 {vr(u2)}, 15, {vr(ln)}")
    A(f"v_lshl_add_u32 {vr(u4)}, {vr(u0)}, 4, {vr(u1)}")
    A(f"v_lshlrev_b32 {vr(u3)}, 1, {vr(u1)}")
    A(f"v_xor_b32 {vr(u3)}, {vr(u3)}, {vr(u2)}")
    A(f"v_lshlrev_b32 {vr(u5)}, 4, {vr(u3)}")
    A(f"v_lshl_add_u32 {vr(vDW)}, {vr(u4)}, 13, {vr(u5)}")
    A(f"v_xor_b32 {vr(vDW+1)}, 0x80, {vr(vDW)}")
    if NOSWAP:
        A(f"v_lshlrev_b32 {vr(u3)}, 2, {vr(u1)}"); A(f"v_xor_b32 {vr(u3)}, {vr(u3)}, {vr(u2)}"); A(f"v_lshlrev_b32 {vr(u3)}, 4, {vr(u3)}")
        A(f"v_lshl_add_u32 {vr(vDW)}, {vr(u4)}, 13, {vr(u3)}"); A(f"v_mov_b32 {vr(vDW+1)}, {vr(vDW)}")
    A(f"v_lshrrev_b32 {vr(u3)}, 3, {vr(ln)}")
    A(f"v_lshl_add_u32 {vr(u0)}, {vr(u0)}, 6, {vr(u3)}")
    A(f"v_and_b32 {vr(u3)}, 7, {vr(ln)}")
    A(f"v_xor_b32 {vr(u3)}, {vr(u1)}, {vr(u3)}")
    A(f"v_lshlrev_b32 {vr(u3)}, 4, {vr(u3)}")
    A(f"v_lshl_add_u32 {vr(vDX)}, {vr(u0)}, 10, {vr(u3)}")
    A(f"v_xor_b32 {vr(vDX+1)}, 64, {vr(vDX)}")
    A(f"s_lshl_b32 {sr(sW4K)}, {sr(sWAVE)}, 12")
    A(f"s_lshl_b32 {sr(sW8K)}, {sr(sWAVE)}, 13")
    A(f"s_lshl_b32 {sr(sT)}, {sr(sB)}, 18")
    A(f"s_lshl_b32 {sr(sT+1)}, {sr(sH)}, 8")
    A("s_waitcnt lgkmcnt(0)")
    o += stamp()
    o += srd_at(sWQ, 6, sr(sT+1), 511*8192 + 256)
    o += srd_at(sX, 0, sr(sT), 0x40000)
    return o

def wo_piece_addr():
    return [f"v_lshrrev_b32 {vr(u0)}, 5, v0", f"v_and_b32 {vr(u1)}, 0x1e, {vr(u0)}", f"v_and_b32 {vr(u0)}, 1, {vr(u0)}",
            f"v_lshl_add_u32 {vr(u0)}, {vr(u1)}, 2, {vr(u0)}",
            f"v_and_b32 {vr(u1)}, 31, v0", f"v_lshlrev_b32 {vr(u1)}, 4, {vr(u1)}", f"v_lshl_add_u32 {vr(vWOF)}, {vr(u0)}, 10, {vr(u1)}"]
def wo_piece_dma():
    o = [m0_at(LWO)]
    for p in range(4):
        o.append(f"s_mov_b32 {sr(sDT)}, {1024*p}")
        o.append(f"buffer_load_dwordx4 {vr(vWOF)}, {sr(sWO2,4)}, {sr(sDT)} offen offset:{1024*p} nt lds ; #wo")
    return o

def warm_loads(nst):
    o = []; A = o.append
    A(f"v_lshrrev_b32 {vr(u3)}, 6, v0"); A(f"v_and_b32 {vr(u2)}, 15, v0"); A(f"v_lshl_add_u32 {vr(u3)}, {vr(u3)}, 4, {vr(u2)}")
    A(f"v_and_b32 {vr(u1)}, {nst - 1}, {vr(u3)}"); A(f"v_add_u32 {vr(u1)}, {sr(sRQ)}, {vr(u1)}"); A(f"v_add_u32 {vr(u1)}, 1, {vr(u1)}")
    A(f"v_and_b32 {vr(u1)}, 7, {vr(u1)}")
    A(f"v_lshrrev_b32 {vr(u2)}, 1, {vr(u3)}")
    A(f"v_lshlrev_b32 {vr(u0)}, 7, {vr(u1)}"); A(f"v_lshl_add_u32 {vr(u0)}, {vr(u2)}, 10, {vr(u0)}")
    A(f"s_and_b32 {sr(sT)}, {sr(sH)}, 7"); A(f"s_lshl_b32 {sr(sT)}, {sr(sT)}, 15")
    A(f"buffer_load_dword {vr(vDUM[1])}, {vr(u0)}, {sr(sX,4)}, {sr(sT)} offen ; #warm")
    A(f"v_lshlrev_b32 {vr(u0)}, 19, {vr(u1)}")
    A(f"v_lshrrev_b32 {vr(u3)}, 1, {vr(u2)}"); A(f"v_lshl_add_u32 {vr(u0)}, {vr(u3)}, 13, {vr(u0)}")
    A(f"v_and_b32 {vr(u3)}, 1, {vr(u2)}"); A(f"v_lshl_add_u32 {vr(u0)}, {vr(u3)}, 7, {vr(u0)}")
    A(f"s_and_b32 {sr(sT)}, {sr(sB)}, 3"); A(f"s_lshl_b32 {sr(sT)}, {sr(sT)}, 17")
    A(f"buffer_load_dword {vr(vDUM[2])}, {vr(u0)}, {sr(sWQ,4)}, {sr(sT)} offen ; #warm")
    return o

def setup_b():
    o = []; A = o.append
    A(f"s_lshl_b32 {sr(sT+2)}, {sr(sB)}, 5"); A(f"s_add_u32 {sr(sT+2)}, {sr(sT+2)}, {sr(sH)}")
    A(f"s_lshl_b32 {sr(sT)}, {sr(sT+2)}, 18")
    o += srd_at(sK, 2, sr(sT), 0x40000)
    o += srd_at(sV, 4, sr(sT), 0x40000)
    A(f"s_lshl_b32 {sr(sT+1)}, {sr(sT+2)}, 7"); A(f"s_add_u32 {sr(sT+1)}, {sr(sT+1)}, {FLAG_OFF}")
    o += srd_at(sFL, 14, sr(sT+1), 32)

    o += srd_at(sDB, 12, "0", 256)
    A(f"s_and_b32 {sr(sT+1)}, {sr(sT+2)}, 3"); A(f"s_lshl_b32 {sr(sT+1)}, {sr(sT+1)}, 6")
    o += srd_at(sDBW, 12, sr(sT+1), 4)
    A(f"s_lshr_b32 {sr(sT)}, {sr(sT+2)}, 1"); A(f"s_and_b32 {sr(sT+2)}, {sr(sT+2)}, 1")
    A(f"s_lshl_b32 {sr(sT+1)}, {sr(sT)}, 15"); A(f"s_lshl_b32 {sr(sT+3)}, {sr(sT+2)}, 9"); A(f"s_add_u32 {sr(sT+1)}, {sr(sT+1)}, {sr(sT+3)}")
    o += srd_at(sWO2, 8, sr(sT+1), 31*1024 + 512)
    A(f"s_lshl_b32 {sr(sT+2)}, {sr(sT+2)}, 2"); A(f"s_add_u32 {sr(sT+2)}, {sr(sT+2)}, {sr(sWAVE)}"); A(f"s_lshl_b32 {sr(sT+2)}, {sr(sT+2)}, 19")
    A(f"s_lshl_b32 {sr(sT)}, {sr(sT)}, 11"); A(f"s_add_u32 {sr(sT)}, {sr(sT)}, {sr(sT+2)}"); A(f"s_add_u32 {sr(sT)}, {sr(sT)}, {WOF_OFF}")
    o += srd_at(sWS2, 14, sr(sT), 262144 + 2048)
    A(f"s_lshl_b32 {sr(sT)}, {sr(sB)}, 2"); A(f"s_add_u32 {sr(sT)}, {sr(sT)}, {sr(sWAVE)}"); A(f"s_lshl_b32 {sr(sT)}, {sr(sT)}, 19")
    A(f"s_lshl_b32 {sr(sT+1)}, {sr(sH)}, 13"); A(f"s_add_u32 {sr(sT)}, {sr(sT)}, {sr(sT+1)}")
    o += srd_at(sO, 14, sr(sT), 262144 + 8192)
    if CFG.get("fewst"):
        A(f"s_cmp_eq_u32 {sr(sMT)}, 0"); A(f"s_cselect_b32 {sr(sO+2)}, {sr(sO+2)}, 0")
    rot = CFG.get("rot", "o")
    if rot == "j": A(f"s_lshr_b32 {sr(sROT)}, s2, 3"); A(f"s_add_u32 {sr(sROT)}, {sr(sROT)}, s2")
    elif rot == "b": A(f"s_lshl_b32 {sr(sROT)}, {sr(sB)}, 1"); A(f"s_lshr_b32 {sr(sT)}, {sr(sH)}, 4"); A(f"s_add_u32 {sr(sROT)}, {sr(sROT)}, {sr(sT)}")
    elif rot == "o": A(f"s_lshl_b32 {sr(sROT)}, {sr(sB)}, 2"); A(f"s_lshr_b32 {sr(sT)}, {sr(sH)}, 3"); A(f"s_add_u32 {sr(sROT)}, {sr(sROT)}, {sr(sT)}")
    elif rot == "q": A(f"s_lshl_b32 {sr(sROT)}, {sr(sB)}, 3"); A(f"s_lshr_b32 {sr(sT)}, {sr(sH)}, 2"); A(f"s_add_u32 {sr(sROT)}, {sr(sROT)}, {sr(sT)}")
    else: A(f"s_mov_b32 {sr(sROT)}, 0")
    A(f"s_mov_b32 {sr(sTK)}, 0")
    for i_, bit in enumerate(TB):
        A(f"s_bfe_u32 {sr(sT)}, {sr(sROT)}, {0x10000 + i_:#x}"); A(f"s_lshl_b32 {sr(sT)}, {sr(sT)}, {bit}"); A(f"s_or_b32 {sr(sTK)}, {sr(sTK)}, {sr(sT)}")
    A(f"s_mov_b32 {sr(sTILE)}, {sr(sTK)}")
    if CFG.get("itst"): A("s_mov_b32 s42, 0"); A("s_mov_b32 s43, 0x100")
    A(f"s_mov_b32 {sr(sTHR)}, 0x41000000")
    c = math.log2(math.e) / math.sqrt(128.0)
    A(f"s_mov_b32 {sr(sSC)}, 0x{struct.unpack('<I', struct.pack('<f', c))[0]:08x}")
    A(f"v_mov_b32 {vr(u4)}, 0")
    for i_, bit in enumerate(RB):
        A(f"v_bfe_u32 {vr(u3)}, v0, {4 + i_}, 1"); A(f"v_lshl_add_u32 {vr(u4)}, {vr(u3)}, {bit - 8}, {vr(u4)}")
    A(f"v_lshl_add_u32 {vr(vDV)}, {vr(u4)}, 8, {vr(u5)}")
    A(f"v_xor_b32 {vr(vDV+1)}, 0x80, {vr(vDV)}")
    g_, c16 = u1, u2
    A(f"v_lshrrev_b32 {vr(g_)}, 4, {vr(ln)}")
    A(f"v_and_b32 {vr(c16)}, 15, {vr(ln)}")
    A(f"v_xor_b32 {vr(u3)}, {vr(g_)}, {vr(c16)}")
    A(f"v_lshlrev_b32 {vr(u3)}, 4, {vr(u3)}")
    A(f"v_lshl_add_u32 {vr(vDK)}, {vr(u4)}, 8, {vr(u3)}")
    for p in range(1, 4): A(f"v_xor_b32 {vr(vDK+p)}, {64*p}, {vr(vDK)}")
    if P17:
        for p in (2, 3): A(f"v_add_u32 {vr(vDK+p)}, {131072 - 2048}, {vr(vDK+p)}")
    if CONT:
        A(f"s_lshl_b32 {sr(sW1K)}, {sr(sWAVE)}, 10")
        A(f"v_lshrrev_b32 {vr(vDK+1)}, 4, v0")
        A(f"v_xor_b32 {vr(vDK+2)}, {vr(vDK+1)}, {vr(c16)}"); A(f"v_lshlrev_b32 {vr(vDK+2)}, 4, {vr(vDK+2)}")
        A(f"v_lshl_add_u32 {vr(vDK)}, {vr(vDK+1)}, 8, {vr(vDK+2)}")
        A(f"v_and_b32 {vr(vDK+2)}, 7, {vr(vDK+1)}"); A(f"v_lshlrev_b32 {vr(vDK+2)}, 1, {vr(vDK+2)}")
        A(f"v_xor_b32 {vr(vDK+2)}, {vr(vDK+2)}, {vr(c16)}"); A(f"v_lshlrev_b32 {vr(vDK+2)}, 4, {vr(vDK+2)}")
        A(f"v_lshl_add_u32 {vr(vDV)}, {vr(vDK+1)}, 8, {vr(vDK+2)}")
    A(f"v_lshl_add_u32 {vr(vKA)}, {vr(c16)}, 8, {vr(u3)}")
    for s in range(1, 4): A(f"v_xor_b32 {vr(vKA+s)}, {64*s}, {vr(vKA)}")
    A(f"v_lshrrev_b32 {vr(u3)}, 1, {vr(c16)}")
    A(f"v_xor_b32 {vr(u3)}, {vr(g_)}, {vr(u3)}")
    A(f"v_lshlrev_b32 {vr(u3)}, 4, {vr(u3)}")
    A(f"v_lshl_add_u32 {vr(u3)}, {vr(c16)}, 7, {vr(u3)}")
    A(f"v_add_u32 {vr(u3)}, {sr(sW8K)}, {vr(u3)}")
    for sl in range(2):
        A(f"v_add_u32 {vr(vXA+2*sl)}, {LX[sl]}, {vr(u3)}")
        A(f"v_xor_b32 {vr(vXA+2*sl+1)}, 64, {vr(vXA+2*sl)}")
    A(f"v_cmp_eq_u32 vcc, 0, {vr(c16)}")
    A(f"v_mov_b32 {vr(u3)}, 0x3f803f80")
    r_, f_, c8 = u0, u4, u5
    A(f"v_bfe_u32 {vr(r_)}, {vr(ln)}, 2, 2")
    for j in range(4): A(f"v_cndmask_b32 {vr(vONES+j)}, 0, {vr(u3)}, vcc")
    A(f"v_bfe_u32 {vr(f_)}, {vr(ln)}, 2, 3")
    A(f"v_and_b32 {vr(c8)}, 3, {vr(ln)}")
    A(f"v_lshlrev_b32 {vr(c8)}, 3, {vr(c8)}")
    A(f"v_lshrrev_b32 {vr(u3)}, 2, {vr(ln)}")
    A(f"v_lshlrev_b32 {vr(vWOA)}, 9, {vr(u3)}")
    A(f"v_lshl_add_u32 {vr(vWOA)}, {vr(c8)}, 1, {vr(vWOA)}")
    A(f"s_lshl_b32 {sr(sT)}, {sr(sWAVE)}, 7"); A(f"s_add_u32 {sr(sT)}, {sr(sT)}, {LWO}")
    A(f"v_add_u32 {vr(vWOA)}, {sr(sT)}, {vr(vWOA)}")
    A(f"v_lshl_add_u32 {vr(c8)}, {vr(f_)}, 5, {vr(c8)}")
    A(f"v_lshl_add_u32 {vr(u3)}, {vr(u3)}, 8, {vr(c8)}")
    A(f"v_add_u32 {vr(vVA)}, {LV}, {vr(u3)}")
    for dt in range(1, 8): A(f"v_xor_b32 {vr(vVA+dt)}, {32*dt}, {vr(vVA)}")
    A(f"v_lshl_add_u32 {vr(u3)}, {vr(g_)}, 3, {vr(r_)}")
    A(f"v_lshl_add_u32 {vr(u3)}, {vr(u3)}, 8, {vr(c8)}")
    if NOSWAP:
        A(f"v_and_b32 {vr(u3)}, 0xff00, {vr(u3)}"); A(f"v_lshl_add_u32 {vr(u3)}, {vr(r_)}, 6, {vr(u3)}")
        A(f"v_and_b32 {vr(c8)}, 3, {vr(ln)}"); A(f"v_lshl_add_u32 {vr(u3)}, {vr(c8)}, 4, {vr(u3)}")
        A(f"v_add_u32 {vr(vWA)}, {LWQ[0]}, {vr(u3)}")
        for k in range(1, 4): A(f"v_xor_b32 {vr(vWA+k)}, {64*k}, {vr(vWA)}")
    else:
        A(f"v_add_u32 {vr(vWA)}, {LWQ[0]}, {vr(u3)}")
        for dt in range(1, 8): A(f"v_xor_b32 {vr(vWA+dt)}, {32*dt}, {vr(vWA)}")
    A(f"v_lshlrev_b32 {vr(vWOS)}, 4, {vr(ln)}")
    A(f"v_add_u32 {vr(vLIN)}, {sr(sW4K)}, {vr(vWOS)}")
    o += wo_piece_addr()
    o += phase_c_early()
    return o

def wo_reads():
    return [f"ds_read_b64_tr_b16 {ar(192+4*i+2*tt,2)}, {vr(vWOA)} offset:{(i//2)*64 + (i%2)*8 + tt*8192} ; #wo" for i in range(4) for tt in range(2)]
def wo_stores():
    return [[f"s_mov_b32 {sr(sT)}, {(i//2)*262144}", f"buffer_store_dwordx4 {ar(192+4*i,4)}, {vr(vWOS)}, {sr(sWS2,4)}, {sr(sT)} offen offset:{(i%2)*1024} sc1 ; #wst"] for i in range(4)]

def pairs(lst): return [lst[i:i+2] for i in range(0, len(lst), 2)]
def prologue():
    qs = stamp if CFG["qst"] else (lambda: [])
    o = setup_a()
    nw = int(CFG.get("nwarm", 2))
    if CFG.get("warmfirst"): o += warm_loads(nw)
    o += flat(qp_dma(0))
    if not CFG.get("warmfirst"): o += (warm_loads(nw) if nw else [])
    o += qs()
    o += setup_b()
    pt = CFG.get("pt", "")
    def pretouch(j, kind):
        if kind == "st": return [f"s_mov_b32 {sr(sDT)}, {j * 262144}", f"buffer_store_dword {vr(vWOF+1)}, {vr(vWOF+1)}, {sr(sO,4)}, {sr(sDT)} offen sc1 ; #pt"]
        if kind == "at": return [f"s_mov_b32 {sr(sDT)}, {j * 262144}", f"buffer_atomic_or {vr(vWOF+1)}, {vr(vWOF+1)}, {sr(sO,4)}, {sr(sDT)} offen sc1 ; #pt"]
        return [f"s_mov_b32 {sr(sDT)}, {j * 262144}", f"buffer_load_dword {vr(vWOF+2+j)}, {vr(vWOF+1)}, {sr(sO,4)}, {sr(sDT)} offen sc1 ; #pt"]
    if pt: o += [f"v_lshlrev_b32 {vr(vWOF+1)}, 3, {vr(vWOS)}"]
    if pt and pt[2:] == "0": o += pretouch(0, pt[:2]) + pretouch(1, pt[:2])
    prek = [x for x in CFG.get("prek", "").split(",") if x]
    for n in prek: o += (wo_piece_dma() if n == "wo" else kv_batch(n[0], int(n[1:])))
    if CFG.get("kvtlb"):
        o += [f"buffer_load_dword {ar(0)}, off, {sr(sK,4)}, 0 nt ; #tl", f"buffer_load_dword {ar(1)}, off, {sr(sV,4)}, 0 nt ; #tl"]
    o += qs()
    o += ["@wait st0", "s_barrier"] + stamp()
    kv = lambda *l: groups_of(sum([kv_batch(x[0], int(x[1:])) for x in l], []))
    bg = [int(x) for x in CFG.get("bg", "38,38,38,38,30,10,-14").split(",")]
    step = float(CFG.get("qstep", 4))
    B = [64 * s + bg[s] for s in range(7)]
    seq = [(st, dt, qb) for st in range(6) for dt in range(8) for qb in range(4) for i in range(2)]
    mf = sum([qp_mfmas(st) for st in range(6)], [])
    for st, qb in ((6, 0), (6, 1), (7, 0), (7, 1), (6, 2), (6, 3), (7, 2), (7, 3)):
        mf += qp_q(st, qb); seq += [(st, dt, qb) for dt in range(8) for i in range(2)]
    Q0 = len(mf)
    mf += [qk_one(0, kb, qb, (i if kb % 2 == 0 else 3 - i), i == 0, czero=True) for qb in range(4) for kb in range(4) for i in range(4)]
    first = {}; last = {}
    for g, (st, dt, qb) in enumerate(seq):
        for t in (f"x{st}_{qb}", f"w{st}_{dt}"):
            first.setdefault(t, g); last[t] = g
    xt = lambda k: ",".join(f"x{k}_{q}" for q in range(4))
    wt = lambda k: ",".join(f"w{k}_{d}" for d in range(8))
    nvm = {}; pre = {}; vm = {}
    def put_vm(g, grp):
        while g in vm or g in B: g += 1
        vm[g] = grp; return g
    npre = int(CFG.get("npre", 16)); nd1 = int(CFG.get("nd1", 6))
    r0 = qp_reads(0); d1 = qp_dma(1)
    o += r0[:npre] + flat(d1[:nd1])
    pos = -2
    for grp in d1[nd1:]: pos += 3; put_vm(int(pos), grp)
    XW = int(CFG.get("xw", 18))
    ekp = [x for x in CFG.get("ekp", "").split(",") if x]
    ek = dict(x.split(":") for x in CFG.get("ek", "5:K0").split(",") if x)
    for k in range(2, 8):
        for i, grp in enumerate(qp_dma(k)):
            e = 0 if k == 2 else (B[k-3] + 1 if i < 4 else B[k-3] + XW)
            if k == 7 and i >= 4: e = max(e, 0)
            pos = max(pos + step, e)
            if i == 4: grp = [f"@wait - lds={xt(k-2)}"] + grp
            put_vm(int(pos), grp)
        for n in ekp:
            j = k - int(CFG.get("ekp0", 3))
            if 0 <= j < 4:
                G_ = groups_of(wo_piece_dma()) if n == "wo" else kv(n)
                head = G_[0][:-1] if n != "wo" else G_[0][:1]
                grp = head + (G_[j] if (j or n == "wo") else G_[0][-1:]) if not (n == "wo" and j == 0) else G_[0]
                pos += 4; put_vm(int(pos), grp)
        if pt and pt[2:] != "0" and k - int(pt[2:]) in (0, 2):
            pos += 3; put_vm(int(pos), pretouch((k - int(pt[2:])) // 2, pt[:2]))
        if str(k) in ek:
            for grp in (groups_of(wo_piece_dma()) if ek[str(k)] == "wo" else kv(ek[str(k)])):
                pos += 3; put_vm(int(pos), grp)
    kstep = float(CFG.get("kstep", 9))
    LATEWO = CFG.get("latewo", False)
    BK, BQ = 384 + int(CFG.get("bk", 94)), Q0 + int(CFG.get("bq", 56))
    sched = [("K0", 0), ("wo", 0), ("K1", 0), ("V0", B[5] + 1), ("K2", BK + 1), ("V1", BK + 1)]
    if LATEWO: sched = [("K0", 0), ("K1", 0), ("V0", B[5] + 1), ("wo", 0), ("K2", BK + 1), ("V1", BK + 1)]
    for n, e in sched:
        if n in ek.values() or n in prek or n in ekp: continue
        for grp in (groups_of(wo_piece_dma()) if n == "wo" else kv(n)):
            pos = max(pos + (3 if n == "K0" and LATEWO else (float(CFG.get("kstep2", kstep)) if n in ("K2", "V1") else kstep)), e)
            put_vm(int(pos), grp)
    assert pos < Q0 + 64, pos
    if CFG["verbose"]: print("vm gaps:", sorted(vm))
    items = [(0, x) for x in r0[npre:]]
    for st in range(1, 8): items += [(st, x) for x in qp_reads(st)]
    R = []
    for st, x in items:
        t = x.split("#")[1]
        e = 0 if st == 0 else B[st-1] + 1
        if st >= 2: e = max(e, last[t[0] + str(st - 2) + t[2:]])
        d = first[t] - LAT
        if st < 7: d = min(d, B[st] - 8)
        if t[0] == "x" and 1 <= st <= 5: d = min(d, B[st-1] + XW - 7)
        R.append([e, max(d, e), x])
    R.sort(key=lambda r: (r[1], r[0]))
    rstep = float(CFG.get("rstep", 1.3)); nxt = 0
    for g in range(Q0):
        if g in vm or g in B: continue
        k = 0
        while k < 2:
            c = [r for r in R if r[0] <= g]
            if not c: break
            urgent = any(r[1] - g < i * 1.3 + 1 for i, r in enumerate(c))
            if not urgent and (k == 1 or g < nxt): break
            nvm.setdefault(g, []).append(c[0][2]); R.remove(c[0]); k += 1; nxt = g + rstep
    assert not R, R[:3]
    for t, g in first.items():
        (nvm.setdefault(g - 1, []) if g else o).insert(0 if g else len(o), f"@wait - lds={t}")
    for s in range(7):
        pre.setdefault(B[s], []).append(f"@wait st{s+1} lds={xt(s)},{wt(s)}")
        nvm.setdefault(B[s], []).append("s_barrier")
        if CFG["qst"]: pre[64 * s] = qs() + pre.get(64 * s, [])
    w0 = BQ if LATEWO else Q0
    nvm = merge(nvm, spread(pairs(wo_reads()), [g for g in range(w0 + 1, min(w0 + 12, Q0 + 64)) if g not in vm]))
    pre.setdefault(BK, []).append("@wait K0" if LATEWO else "@wait K0,wo"); nvm.setdefault(BK, []).append("s_barrier")
    nvm = merge(nvm, spread(pairs([rd_k(0, n) for n in range(16)]), [g for g in range(max(384 + 96, BK + 1), 384 + 122) if g not in vm]))
    pre.setdefault(Q0, []).append("@wait - lgkm=0"); pre[Q0] = stamp() + pre[Q0]
    pre.setdefault(BQ, []).append("@wait K1,V0,wo" if LATEWO else "@wait K1,V0 lds=wo"); nvm.setdefault(BQ, []).append("s_barrier")
    assert max(vm) < Q0 + 57
    nvm = merge(nvm, {Q0 + 57: [f"s_mov_b32 {sr(sTILE)}, {sr(sTK)}"], Q0 + 61: [f"s_mov_b32 {sr(sCNT)}, 0"]}, {Q0 + 58 + j_: [x] for j_, x in enumerate(tinc(sTK))})
    for g in sorted(vm):
        grp = vm[g]; sca = grp[:-1]
        prevv = max([x for x in vm if x < g], default=-1)
        gg = g
        for x in reversed(sca):
            nvm.setdefault(gg, []).insert(0, x)
            if gg - 1 > prevv and gg > 0: gg -= 1
        nvm.setdefault(g, []).append(grp[-1])
    va = [(f"v_accvgpr_write_b32 {ar(r)}, 0", 0, "z") for r in list(range(2, 128)) + [0, 1]]
    done = {0: 384 + 32, 1: 384 + 48, 2: 384 + 96, 3: 384 + 112}
    for qb in range(4):
        va += [(t, done[qb] + 4 * s + 3 + 3, f"q{qb}") for t, s in qconv_stream(qb)]
    va += [(f"v_mov_b32 {vr(vL+j)}, 0", Q0, "z") for j in range(16)]
    def initq(qb):
        n = vNEG + 4 * qb
        l = qmax(0, qb, n)
        for sw in ("v_permlane32_swap_b32", "v_permlane16_swap_b32"):
            l += [f"v_mov_b32 {vr(n+1)}, {vr(n)}", "s_nop 1", f"{sw} {vr(n)}, {vr(n+1)}", f"v_max_f32 {vr(n)}, {vr(n)}, {vr(n+1)}"]
        l += [f"v_sub_f32 {vr(n+j)}, 0, {vr(n)}" for j in (3, 2, 1, 0)]
        for ks in range(2):
            r = Ureg(0, ks, qb)
            l += [f"v_add_f32 {vr(r+j)}, {vr(r+j)}, {vr(n + j % 2)}" for j in range(8)]
        return l
    for qb in range(4): va += [(t, Q0 + 16 * qb + 15 + 3, "i") for t in initq(qb)]
    part, left = weave(mf, nvm, va, pre=pre, need={Q0 + 16 * q: f"q{q}" for q in range(4)})
    for k in range(1, 6):
        assert max(i for i, x in enumerate(part) if f"#x{k}_" in x) < part.index(f"@wait - lds={xt(k)}"), k
    for k in range(0, 6):
        assert max(i for i, x in enumerate(part) if f"#w{k}_" in x) < part.index(f"@wait st{k+1} lds={xt(k)},{wt(k)}"), k
    o += part
    o += qs()
    o += [rd_k(1, n) for n in EARLY_K]
    o += [f"v_mov_b32 {vr(vT+j)}, 0" for j in range(4)]
    o.append(f"buffer_store_dwordx4 {vr(vT,4)}, {vr(vLIN)}, {sr(sFL,4)}, 0 offen sc1 ; #wst")
    if CFG["verbose"]: print("QK0 leftover VALU:", len(left))
    ini = []
    lf_ = [t for t, _, _ in left]
    i = 0
    while i < len(lf_):
        m1 = re.match(r"v_add_f32 v(\d+), v\d+, v(\d+)", lf_[i])
        if m1 and int(m1.group(1)) % 2 == 0 and i + 1 < len(lf_) and lf_[i+1].startswith(f"v_add_f32 v{int(m1.group(1))+1},"):
            r = int(m1.group(1)); ini.append(f"v_pk_add_f32 {vr(r,2)}, {vr(r,2)}, {vr(int(m1.group(2)),2)}"); i += 2
        else: ini.append(lf_[i]); i += 1
    ex_ = [exp_i(0, it[1]) for it in E_FIRST if it[0] == "exp"]; cv_ = [cvt_i(0, it[1]) for it in E_FIRST if it[0] == "cvt"]
    ini += ex_ + cv_
    G = wo_stores() + (kv("K3", "V2") if DIST == 4 else [])
    G[0] = ["@wait - lds=wo"] + G[0]
    for i, g in enumerate(G):
        k = (i + 1) * len(ini) // (len(G) + 1)
        ini = ini[:k] + g + ini[k:]
    o += ini
    if CFG.get("nomax"): o.append("s_mov_b64 vcc, 0")
    o.append("@wait - lds=k0,k1,k2,k3")
    o += stamp()
    qd = CFG.get("qdiag", "")
    if "x" in qd: o = [x for x in o if not (re.search(r"#st[2-7]", x) and f"{sr(sX,4)}" in x)]
    if "r" in qd: o = [x for x in o if not re.search(r"#x[2-7]_", x)]
    if "w" in qd: o = [x for x in o if not (re.search(r"#st[2-7]", x) and f"{sr(sWQ,4)}" in x)]
    if "v" in qd: o = [x for x in o if not re.search(r"#w[2-7]_", x)]
    o, fifo, lf = resolve(o, [])
    return o, fifo, lf

sOFS = [64, 65, 3, 31, 98]
def phase_c_early():
    o = []; A = o.append
    t0, t1, t2 = sT, sT + 1, sT + 2
    A(f"s_lshr_b32 {sr(sHO)}, {sr(sH)}, 3")
    if CFG.get("hord", "m") == "c":
        A(f"s_and_b32 {sr(t0)}, {sr(sB)}, 3"); A(f"s_lshl_b32 {sr(t0)}, {sr(t0)}, 1"); A(f"s_and_b32 {sr(t1)}, {sr(sH)}, 1"); A(f"s_add_u32 {sr(t0)}, {sr(t0)}, {sr(t1)}")
        A(f"s_sub_u32 {sr(t1)}, {sr(sH)}, {sr(t0)}"); A(f"s_and_b32 {sr(t1)}, {sr(t1)}, 7"); A(f"s_lshl_b32 {sr(t0)}, {sr(t0)}, 13")
        A(f"s_and_b32 {sr(sHP)}, {sr(sH)}, 7"); A(f"s_lshl_b32 {sr(sHP)}, {sr(sHP)}, 13")
        for p in range(1, 8):
            A(f"s_cmp_gt_u32 {sr(t1)}, {p-1}"); A(f"s_cselect_b32 {sr(sHP+p)}, {p-1}, {p}")
            A(f"s_lshl_b32 {sr(sHP+p)}, {sr(sHP+p)}, 13"); A(f"s_add_u32 {sr(sHP+p)}, {sr(sHP+p)}, {sr(t0)}"); A(f"s_and_b32 {sr(sHP+p)}, {sr(sHP+p)}, 0xffff")
    else:
        A(f"s_and_b32 {sr(t0)}, {sr(sB)}, 3"); A(f"s_lshl_b32 {sr(t0)}, {sr(t0)}, 14"); A(f"s_add_u32 {sr(t0)}, {sr(t0)}, 8192")
        A(f"s_and_b32 {sr(sHP)}, {sr(sH)}, 7"); A(f"s_lshl_b32 {sr(sHP)}, {sr(sHP)}, 13")
        for p in range(1, 8):
            A(f"s_add_u32 {sr(sHP+p)}, {sr(sHP+p-1)}, {sr(t0)}"); A(f"s_and_b32 {sr(sHP+p)}, {sr(sHP+p)}, 0xffff")
    A(f"s_lshl_b32 {sr(sW2K)}, {sr(sWAVE)}, 11")
    A(f"s_and_b32 {sr(t0)}, {sr(sH)}, 6"); A(f"s_lshl_b32 {sr(t0)}, {sr(t0)}, 1"); A(f"s_add_u32 {sr(t0)}, {sr(t0)}, {sr(sWAVE)}")
    A(f"s_lshl_b32 {sr(t0)}, {sr(t0)}, 18"); A(f"s_lshl_b32 {sr(t2)}, {sr(sHO)}, 16"); A(f"s_add_u32 {sr(t0)}, {sr(t0)}, {sr(t2)}")
    A(f"s_add_u32 {sr(t0)}, {sr(t0)}, {WOF_OFF}"); A(f"s_sub_u32 {sr(t0)}, {sr(t0)}, {sr(sW4K)}")
    A(f"s_mov_b32 {sr(sOFS[0])}, {sr(t0)}")
    A(f"s_and_b32 {sr(t0)}, {sr(sH)}, 1"); A(f"s_lshl_b32 {sr(t1)}, {sr(sB)}, 1"); A(f"s_add_u32 {sr(t0)}, {sr(t0)}, {sr(t1)}")
    A(f"s_lshl_b32 {sr(t1)}, {sr(t0)}, 20"); A(f"s_add_u32 {sr(t1)}, {sr(t1)}, {sr(t2)}")
    A(f"s_mov_b32 {sr(sOFS[1])}, {sr(t1)}")
    A(f"s_lshl_b32 {sr(t0)}, {sr(t0)}, 17"); A(f"s_lshl_b32 {sr(t1)}, {sr(sHO)}, 15"); A(f"s_add_u32 {sr(t0)}, {sr(t0)}, {sr(t1)}")
    A(f"s_and_b32 {sr(t1)}, {sr(sH)}, 6"); A(f"s_lshl_b32 {sr(t1)}, {sr(t1)}, 7"); A(f"s_add_u32 {sr(t0)}, {sr(t0)}, {sr(t1)}")
    o += srd_at(sOUT, 10, sr(t0), 31 * 1024 + 256)
    A(f"s_lshl_b32 {sr(t0)}, {sr(sB)}, 12"); A(f"s_lshl_b32 {sr(t1)}, {sr(sHO)}, 10"); A(f"s_add_u32 {sr(t0)}, {sr(t0)}, {sr(t1)}")
    A(f"s_add_u32 {sr(t0)}, {sr(t0)}, {FLAG_OFF}")
    o += srd_at(sFLR, 14, sr(t0), 4)
    A(f"s_and_b32 {sr(t0)}, {sr(sH)}, 7"); A(f"s_lshl_b32 {sr(t1)}, {sr(sB)}, 5"); A(f"s_add_u32 {sr(t0)}, {sr(t0)}, {sr(t1)}")
    A(f"s_lshl_b32 {sr(t1)}, {sr(t0)}, 16"); A(f"s_lshl_b32 {sr(t2)}, {sr(sHO)}, 14"); A(f"s_add_u32 {sr(t1)}, {sr(t1)}, {sr(t2)}")
    A(f"s_add_u32 {sr(t1)}, {sr(t1)}, {PART_OFF}")
    A(f"s_mov_b32 {sr(sOFS[2])}, {sr(t1)}")
    A(f"s_lshl_b32 {sr(t1)}, {sr(t0)}, 7"); A(f"s_lshl_b32 {sr(t2)}, {sr(sHO)}, 2"); A(f"s_add_u32 {sr(t1)}, {sr(t1)}, {sr(t2)}")
    A(f"s_add_u32 {sr(t1)}, {sr(t1)}, {FLAG_OFF + 16}")
    A(f"s_mov_b32 {sr(sOFS[3])}, {sr(t1)}")
    A(f"s_lshl_b32 {sr(t1)}, {sr(sB)}, 5"); A(f"s_add_u32 {sr(t1)}, {sr(t1)}, {sr(sH)}"); A(f"s_lshl_b32 {sr(t1)}, {sr(t1)}, 16")
    A(f"s_add_u32 {sr(t1)}, {sr(t1)}, {PART_OFF}")
    A(f"s_mov_b32 {sr(sOFS[4])}, {sr(t1)}")
    return o

def phase_c_srds():
    return sum([srd_at(s_, 14, sr(f_), n_) for s_, f_, n_ in zip((sWFL, sOL, sPS, sPF2, sPL), sOFS,
                (65536 + 3 * 4096, 3 * 262144 + 65536, 3 * 524288 + 16384, 4, 65536))], [])

def acc(k, q2, t): return vS + 64 + 16 * k + 4 * (q2 * 2 + t)
def gsel(k, dst, sh): return [f"s_add_u32 {sr(dst)}, {sr(sHO)}, {k + 1}", f"s_and_b32 {sr(dst)}, {sr(dst)}, 3", f"s_lshl_b32 {sr(dst)}, {sr(dst)}, {sh}"]
def ofr(u, kl, q2): return 256 + 32 * (u % 2) + 4 * (kl * 2 + q2)
def sub_mfmas(k, v, pos):
    mf = []
    for j, (q2, t) in enumerate(((0, 0), (0, 1), (1, 1), (1, 0))):
        for i in range(4):
            kl = i if j % 2 == 0 else 3 - i
            d = vr(acc(k, q2, t), 4)
            mf.append(f"{MF} {d}, {rr(WREG[(pos * 4 + kl) * 2 + t],4)}, {rr(ofr(v,kl,q2),4)}, {d if (pos or i) else 0}")
    return mf
def tail_and_epilogue(u):
    p = u % 2
    o = []
    reads = [rd_v(slotV(15), n, t) for n in range(16) for t in range(2)]
    er = [(exp_i(p, it[1]), UNITS[it[1] // 8][1]) if it[0] == "exp" else (cvt_i(p, it[1]), UNITS[it[1] // 4][1]) for it in E_REST]
    va = []
    for i, (t, q) in enumerate(er):
        if t.startswith("v_cvt") and i and er[i-1][0].startswith("v_exp"): va.append(("s_nop 0", 0, f"e{q}"))
        va.append((t, 0, f"e{q}"))
    mf = []
    for qb in range(4):
        mf += [sum_one(p, qb, 0), sum_one(p, qb, 1)]
        mf += [pv_one(p, dt, qb, (i if dt % 2 == 0 else 1 - i)) for dt in range(8) for i in range(2)]
    vOST = vCW
    if CFG.get("local"): va.append((f"v_cmp_ne_u32 {sr(sGLB,2)}, {sr(sXCC)}, {vr(vCW)}", 0, "x"))
    va.append((f"v_and_b32 {vr(vOST)}, 0x3ff, {vr(vLIN)}", 0, "x"))
    tmp = 2
    NMF = len(mf)
    fill = {0: [], 1: [], 2: [], 3: []}
    tail_names = CFG.get("tailw", "").split(",")
    post_names = [x for x in ("R3u", "R3", "R5") if x not in tail_names and not (x == "R3u" and CFG.get("r3u"))]
    for qb in range(4):
        e0 = 18 * qb
        lsum = [f"v_mov_b32 {vr(vT+qb)}, {vr(vL+4*qb)}"] + allreduce("v_add_f32", vT + qb, vMX) + [f"v_rcp_f32 {vr(vT+qb)}, {vr(vT+qb)}"]
        va += [(t, max(12, e0 + 1 + 3), f"o{qb}") for t in lsum]
        F = fill[qb]
        for s in range(4):
            e = e0 + 2 + 4 * s + 3 + 3
            b_ = tmp + 8 * (s % 2)
            va += [(f"v_accvgpr_read_b32 {vr(b_+j)}, {ar(Oreg(qb,2*s)+j)}", e, f"o{qb}") for j in range(8)]
            va += [(f"@mul {b_+j} {vT+qb}", e, f"o{qb}") for j in range(8)]
            d = Ureg(p, s // 2, qb) + 4 * (1 - s % 2)
            ee = e0 + 17 if s % 2 == 1 else e
            va += [(f"v_cvt_pk_bf16_f32 {vr(d+j)}, {vr(b_+2*j)}, {vr(b_+2*j+1)}", max(e, ee), f"o{qb}") for j in range(4)]
            ld = flat(F[s * len(F) // 4:(s + 1) * len(F) // 4])
            va += [(t, NMF - 1 if qb == 3 else e, f"o{qb}") for t in ld]
            va += [(f"s_mov_b32 {sr(sT)}, {(qb//2)*262144 + (s//2)*4096}", e, f"o{qb}"),
                   (f"buffer_store_dwordx4 {vr(d,4)}, {vr(vOST)}, {sr(sO,4)}, {sr(sT)} offen offset:{(s%2)*2048 + (qb%2)*1024} {CFG.get('ost', 'plain' if CFG.get('local') else 'sc1').replace('+', ' ').replace('plain', '')} ; #ost", e, f"o{qb}")]
    if CFG.get("tord", True):
        E = {q: [x for x in va if x[2] == f"e{q}"] for q in range(4)}
        X = [x for x in va if x[2] == "x"]
        O_ = {q: [x for x in va if x[2] == f"o{q}"] for q in range(4)}
        rest = E[0] + E[1] + E[2] + E[3]
        n0 = int(CFG.get("tn0", 10))
        head, rest = rest[:n0], rest[n0:]
        r2 = [x for x in rest if x[2] != "e3"]; r3 = [x for x in rest if x[2] == "e3"]
        va = X + head + O_[0] + r2 + O_[1] + r3 + O_[2] + O_[3]
    va = [((f"v_mul_f32 {vr(int(t.split()[1]))}, {vr(int(t.split()[1]))}, {vr(int(t.split()[2]))}" if t.startswith("@mul") else t), e, k) for t, e, k in va]
    o += reads[:12]
    nvm = spread(pairs(reads[12:]), list(range(0, 10)))
    pre = {2 + 2 * dt: [f"@wait - lds=v{2*dt},v{2*dt+1}"] for dt in range(8)}
    early = sum([wo_loads(x) for x in tail_names if x], [])
    if early: nvm = merge(nvm, spread(early, list(range(10, int(CFG.get("tailhi", 44)), 2))))
    part, left = weave(mf, nvm, va, pre=pre, need={18 * q: f"e{q}" for q in range(4)})
    o += part
    o += stamp()
    o.append("s_nop 7")
    lf_ = [t for t, _, _ in left]
    i = 0
    while i < len(lf_):
        m1 = re.match(r"v_mul_f32 v(\d+), v\d+, v(\d+)", lf_[i]); m2 = re.match(r"v_mul_f32 v(\d+), v\d+, v(\d+)", lf_[i+1]) if i + 1 < len(lf_) else None
        if m1 and m2 and int(m1.group(1)) % 2 == 0 and int(m2.group(1)) == int(m1.group(1)) + 1:
            r = int(m1.group(1)); f_ = int(m1.group(2))
            sel = "op_sel_hi:[1,0]" if f_ % 2 == 0 else "op_sel:[0,1] op_sel_hi:[1,1]"
            o.append(f"v_pk_mul_f32 {vr(r,2)}, {vr(r,2)}, {vr(f_ - f_ % 2,2)} {sel}"); i += 2
        else:
            o.append(lf_[i]); i += 1
    A = o.append
    A(f"v_mov_b32 {vr(vMX)}, 1")
    A(f"v_and_b32 {vr(vT)}, 7, v0"); A(f"v_lshlrev_b32 {vr(vT)}, 7, {vr(vT)}")
    A(f"v_add_u32 {vr(vKA)}, 0x10000, {vr(vOST)}")
    A(f"s_mov_b32 {sr(sCNT)}, 0")
    if CFG.get("forceglobal"): A(f"s_mov_b64 {sr(sGLB,2)}, -1")
    if CFG.get("local"): A(f"s_and_b32 {sr(sGLB)}, {sr(sGLB)}, 0xff"); A(f"s_cmp_lg_u32 {sr(sGLB)}, 0")
    mode = CFG.get("sync", "cnt1")
    cnt = mode.startswith("cnt"); one = mode.endswith("1")
    assert cnt
    post = sum([wo_loads(x) for x in post_names], [])
    A(f"s_lshl_b32 {sr(sT)}, {sr(sWAVE)}, 14"); A(f"v_add_u32 v10, {sr(sT)}, {vr(vOST)}")
    for qb in range(4):
        for s_ in range(4):
            d = Ureg(p, s_ // 2, qb) + 4 * (1 - s_ % 2)
            A(f"ds_write_b128 v10, {vr(d,4)} offset:{(qb//2)*8192 + s_*2048 + (qb%2)*1024}")
    A(f"s_and_b32 {sr(sT+1)}, {sr(sH)}, 1"); A(f"s_lshl_b32 {sr(sT+1)}, {sr(sT+1)}, 15")
    for k in range(4):
        o += gsel(k, sT, 13) + [f"s_add_u32 {sr(sT)}, {sr(sT)}, {sr(sT+1)}", f"v_add_u32 {vr(11+k)}, {sr(sT)}, {vr(vOST)}"]
    A("@wait w7 lgkm=0"); A("s_barrier")
    ord_ = lambda k: [f"ds_read_b128 {rr(ofr(k,kl,q2),4)}, {vr(11+k)} offset:{(kl*2+q2)*1024} ; #h{k}_{q2}" for q2 in range(2) for kl in range(4)]
    NB = int(CFG.get("nbef", 2))
    def own(k, extra):
        nv = {7: [f"@wait - lds=h{k}_1"]}
        if k < 3:
            r = ord_(k + 1)
            for j, g in enumerate((0, 2, 4, 6)): nv.setdefault(g, []).extend(r[2*j:2*j+2])
        if extra: nv = merge(nv, spread(extra, [1, 3, 5, 8, 9, 10, 11, 12, 13, 14, 15]))
        return [f"@wait - lds=h{k}_0"] + weave(sub_mfmas(k, k, 0), nv)[0]
    o += ord_(0)
    npre = int(CFG.get("npost", 0))
    for k in range(NB):
        n_ = min(8, npre); o += own(k, post[:n_]); post = post[n_:]; npre -= n_
    A("@wait ost")
    A("s_barrier")
    if cnt: A(f"buffer_atomic_add {vr(vMX)}, {vr(vLIN)}, {sr(sFLR,4)}, 0 offen sc1 ; #flag")
    else: A(f"buffer_store_dword {vr(vMX)}, {vr(vLIN)}, {sr(sFL,4)}, 0 offen sc1 ; #flag")
    o += stamp()
    pl = f"buffer_load_dword {vr(vT+1)}, off, {sr(sFLR,4)}, 0 sc1" if cnt else f"buffer_load_dword {vr(vT+1)}, {vr(vT)}, {sr(sFLR,4)}, 0 offen sc1"
    want = 8 if cnt else 1
    NL = int(CFG.get("nlate", 0)); PL = int(CFG.get("plate", 0))
    latep = post[len(post) - PL:] if PL else []
    latep = [[x.replace(sr(sSP), sr(sTK)) for x in g] for g in latep]
    post = post[:len(post) - PL]
    for k in range(NB, 4 - NL):
        n_ = min(8, len(post)); o += own(k, post[:n_]); post = post[n_:]
    LATE.clear()
    for k in range(4 - NL, 4):
        n_ = min(8, len(latep)); LATE.extend(own(k, latep[:n_])); latep = latep[n_:]
    LATE.extend(flat(latep))
    o += flat(post)
    pw = int(CFG.get("pollwave", 1))
    if one: A(f"s_cmp_lg_u32 {sr(sWAVE)}, {pw}"); A("s_cbranch_scc1 L_go")
    NP_ = int(CFG.get("npoll", 1))
    pr = lambda j: pl.replace(vr(vT+1), vr(vT+j), 1) + " ; #~poll"
    for j in range(NP_ - 1):
        A(pr(j))
        if int(CFG.get("pgap", 0)): A("s_sleep " + str(int(CFG["pgap"])))
    A("L_poll:")
    for j in range(NP_):
        A(pr((j - 1) % NP_))
        A(f"s_waitcnt vmcnt({NP_ - 1}) ; keep")
        A(f"v_cmp_ne_u32 vcc, {want}, {vr(vT+j)}")
        A("s_cbranch_vccz L_go")
    A(f"s_add_u32 {sr(sCNT)}, {sr(sCNT)}, 1")
    A(f"s_cmp_lt_u32 {sr(sCNT)}, {CFG['spin']}")
    A("s_cbranch_scc1 L_poll")
    A("L_go:")
    if one: A("s_barrier")
    if CFG.get("local"): A(f"s_cmp_lg_u32 {sr(sGLB)}, 0"); A("s_cbranch_scc1 L_acq")
    A("L_acq_back:")
    o += stamp()
    return o

STAGED = []
LATE = []
def phase_c():
    o = []; A = o.append
    vOST = vCW
    D = int(CFG.get("cdist", 4))
    NS = 28
    LANDK = {2: vL, 1: vL + 8, 0: 10}
    OWN = acc(3, 0, 0)
    def dma(v):
        k, p = v // 7, 1 + v % 7
        g = []
        if v % 7 == 0: g += gsel(k, sG, 18) + [f"s_add_u32 {sr(sG)}, {sr(sG)}, {sr(sW2K)}"]
        g += [f"s_add_u32 {sr(sSP)}, {sr(sG)}, {sr(sHP+p)}", f"s_add_u32 m0, {sr(sW2K)}, {((v + 8) % 16) * 8192}", "s_nop 0"]
        ld = lambda j: f"buffer_load_dwordx4 {vr(vOST)}, {sr(sOL,4)}, {sr(sSP)} offen offset:{j*1024} sc1 lds ; #c{v}"
        return [g + [ld(0)], [ld(1)]]
    def reads(v):
        base = ((v + 8) % 16) * 8192
        return [f"ds_read_b128 {rr(ofr(v,kl,q2),4)}, {vr(vKA if base >= 65536 else vOST)} offset:{base % 65536 + (kl*2+q2)*1024} ; #u{v}_{q2}" for q2 in range(2) for kl in range(4)]
    N0 = int(CFG.get("n0", 2 * D))
    for v in range(N0): o += flat(dma(v))
    nxv = [N0]
    o += LATE
    BV = [int(x) for x in CFG.get("bv", "1,3,5,7,9,11,13,15,17,19,21,23,25").split(",")]
    o += [f"@wait c{BV[0]}", "s_barrier"] + stamp() + reads(0)
    N1 = int(CFG.get("n1", N0))
    for v in range(N0, N1): o += flat(dma(v))
    nxv = [max(N0, N1)]
    mf = []; nvm = {}; pre = {}; vm = {}
    pfg = int(CFG.get("pfg", 44))
    FB = {}
    for k in range(3): FB[k] = min(v for v in BV if 16 * v >= 112 * (k + 1) + pfg)
    for v in range(NS):
        k = v // 7
        mf += sub_mfmas(k, v, 1 + v % 7)
        g0 = 16 * v
        wt_ = ",".join(f"w{f}" for f in range(8 * (1 + v % 7), 8 * (2 + v % 7)))
        (nvm.setdefault(g0 - 1, []) if v else o).append(f"@wait {wt_} lds=u{v}_0")
        nvm.setdefault(g0 + 7, []).append(f"@wait - lds=u{v}_1")
        if v + 1 < NS:
            if v in BV:
                kk = [x for x in range(3) if FB[x] == v]
                upto = min([x for x in BV if x > v] + [NS - 1])
                assert upto < nxv[0] and upto - v <= 6, (v, upto, nxv)
                pre.setdefault(g0, []).append(f"@wait c{upto}" + (f",p{kk[0]}" if kk else ""))
                nvm.setdefault(g0, []).append("s_barrier")
                if kk:
                    vm[g0 + 2] = gsel(kk[0], sT, 10) + [f"s_add_u32 {sr(sPF2+2)}, {sr(sT)}, 4",
                                   f"buffer_store_dword {vr(vMX)}, {vr(vLIN)}, {sr(sPF2,4)}, {sr(sT)} offen sc1 ; #pf"]
            r = reads(v + 1)
            for j, g in enumerate((1, 3, 6, 8)): nvm.setdefault(g0 + g, []).extend(r[2*j:2*j+2])
        n2 = min(2, NS - nxv[0], v + 2 * D + 1 - nxv[0])
        G_ = sum([dma(nxv[0] + j) for j in range(max(n2, 0))], []); nxv[0] += max(n2, 0)
        for grp, g in zip(G_, (5, 12) if n2 == 1 else (4, 5, 11, 12)): vm[g0 + g] = [x for x in grp if x != "s_nop 0"]
        if v % 7 == 0 and v:
            kk = k - 1
            for q2 in range(2):
                a0 = acc(kk, q2, 0); pk = 2 + 4 * q2; e = g0 - 6 if q2 == 0 else g0 + 2
                for j in range(4): nvm.setdefault(e + (j // 2) * (1 if q2 == 0 else 2), []).append(f"v_cvt_pk_bf16_f32 {vr(pk + j)}, {vr(a0 + 2*j)}, {vr(a0 + 2*j + 1)}")
                g = g0 - 3 if q2 == 0 else g0 + 7
                while g in vm: g += 1
                vm[g] = (gsel(kk, sTK, 19) if q2 == 0 else []) + [f"buffer_store_dwordx4 {vr(pk, 4)}, {vr(vLIN)}, {sr(sPS,4)}, {sr(sTK)} offen offset:{q2*1024} sc1 ; #p{kk}"]
    assert FB[2] < NS - 1
    STAGED.clear()
    em = int(CFG.get("em", 40))
    for n in range(2):
        k = 2 - n
        gp = 16 * FB[n] + 2 + em
        gp = gp - gp % 16 + 9 + (16 if gp % 16 > 9 else 0)
        while gp in vm: gp += 1
        vm[gp] = gsel(k, sTILE, 2) + [f"buffer_load_dword {vr(vT+1)}, off, {sr(sFL,4)}, {sr(sTILE)} offset:16 sc1 ; #e{k}"]
        g1 = gp - gp % 16 + 48 + 9
        nvm.setdefault(g1, []).extend([f"@wait e{k}", f"v_cmp_ne_u32 vcc, 1, {vr(vT+1)}"])
        nvm.setdefault(g1 + 1, []).extend([f"s_cbranch_vccnz L_e{k}", f"L_e{k}_back:"])
        for j, g in enumerate((g1 + 5, g1 + 9)):
            while g in vm: g += 1
            vm[g] = ([f"s_lshl_b32 {sr(sTILE)}, {sr(sTILE)}, 12"] if j == 0 else []) + [f"buffer_load_dwordx4 {vr(LANDK[k] + 4*j, 4)}, {vr(vLIN)}, {sr(sPL,4)}, {sr(sTILE)} offen offset:{j*1024} sc1 ; #l{k}"]
        STAGED.append(k)
    lastpoll = NS * 16 - int(CFG.get("lp", 12))
    vm[lastpoll] = gsel(0, sTILE, 2) + [f"buffer_load_dword {vr(vT+1)}, off, {sr(sFL,4)}, {sr(sTILE)} offset:16 sc1 ; #lp"]
    prev = -1
    for g in sorted(vm):
        grp = vm[g]; sca = grp[:-1]
        lo = max([prev] + [q for q in range(g) if any(x.startswith("L_e") for x in nvm.get(q, []))])
        free = [q for q in range(lo + 1, g) if not any(x.startswith(("s_", "@")) for x in nvm.get(q, []))]
        if len(free) >= len(sca):
            for x, q in zip(sca, free[len(free) - len(sca):]): nvm.setdefault(q, []).insert(0, x)
        elif g - 1 > lo: nvm[g - 1] = sca + nvm.get(g - 1, [])
        else: nvm[g] = sca + ["s_nop 0"] + nvm.get(g, [])
        nvm.setdefault(g, []).append(grp[-1]); prev = g
    ad = ["v_and_b32 v10, 15, v0", "v_lshrrev_b32 v11, 4, v0", "v_lshlrev_b32 v11, 4, v11", "v_lshl_add_u32 v18, v10, 10, v11"]
    def unpack(k):
        u_ = acc(k, 0, 0)
        return [x for j in range(8) for x in (f"v_lshlrev_b32 {vr(u_+2*j)}, 16, {vr(LANDK[k]+j)}", f"v_and_b32 {vr(u_+2*j+1)}, 0xffff0000, {vr(LANDK[k]+j)}")]
    gs = NS * 16 - 44
    va = [(x, 20, "a") for x in ad] + [("@wait l2,l1", gs, "b")] + [(x, gs, "b") for x in unpack(2) + unpack(1)]
    va += [(f"v_add_f32 {vr(acc(1,0,0)+j)}, {vr(acc(1,0,0)+j)}, {vr(acc(2,0,0)+j)}", gs, "b") for j in range(16)]
    part, lft = weave(mf, nvm, va, pre=pre)
    o += part
    o += stamp()
    o += [x for x, _, _ in lft]
    A(f"s_mov_b32 {sr(sCNT)}, 0")
    A("@wait lp")
    A(f"v_cmp_ne_u32 vcc, 1, {vr(vT+1)}")
    A("s_cbranch_vccz L_go2")
    A("L_poll2:")
    A(f"buffer_load_dword {vr(vT+1)}, off, {sr(sFL,4)}, {sr(sTILE)} offset:16 sc1")
    A("s_waitcnt vmcnt(0)")
    A(f"v_cmp_ne_u32 vcc, 1, {vr(vT+1)}")
    A("s_cbranch_vccz L_go2")
    A(f"s_add_u32 {sr(sCNT)}, {sr(sCNT)}, 1")
    A(f"s_cmp_lt_u32 {sr(sCNT)}, {CFG['spin']}")
    A("s_cbranch_scc1 L_poll2")
    A("L_go2:")
    o += stamp()
    A(f"s_lshl_b32 {sr(sTILE)}, {sr(sTILE)}, 12")
    for j in range(2): A(f"buffer_load_dwordx4 {vr(LANDK[0] + 4*j, 4)}, {vr(vLIN)}, {sr(sPL,4)}, {sr(sTILE)} offen offset:{j*1024} sc1 ; #l0")
    A("s_nop 4")
    for j in range(0, 16, 2): A(f"v_pk_add_f32 {vr(OWN+j,2)}, {vr(OWN+j,2)}, {vr(acc(1,0,0)+j,2)}")
    A(f"s_mov_b32 {sr(sT)}, 16384")
    A("@wait l0")
    o += unpack(0)
    for j in range(0, 16, 2): A(f"v_pk_add_f32 {vr(OWN+j,2)}, {vr(OWN+j,2)}, {vr(acc(0,0,0)+j,2)}")
    for q2 in range(2):
        for j in range(4): A(f"v_cvt_pk_bf16_f32 {vr(2 + 4*q2 + j)}, {vr(OWN + 8*q2 + 2*j)}, {vr(OWN + 8*q2 + 2*j + 1)}")
        A(f"buffer_store_dwordx4 {vr(2 + 4*q2, 4)}, v18, {sr(sOUT,4)}, {sr(sT) if q2 else 0} offen {CFG.get('outst', 'nt').replace('+', ' ')}")
    return o

def peeled(lf):
    o = [f"s_mov_b32 {sr(sT)}, 0xe00fe000", f"v_cmp_ne_u32 vcc, {sr(sT)}, {vr(vCW)}", "s_cbranch_vccnz L_cw", "L_cw_back:"]
    for i in range(PEEL0, 15):
        loads = []
        tp = CFG.get("tpol", "nt").replace("+", " ")
        def touch(j, half):
            return [f"s_mov_b32 {sr(sDT)}, {j * 262144 + half * 4096}", f"s_mov_b32 {sr(sO+2)}, {j * 262144 + half * 4096 + 4096}",
                    f"buffer_load_dword {ar(240 + 2*j + half)}, {vr(vCW)}, {sr(sO,4)}, {sr(sDT)} offen {tp} ; #tch"]
        T = [touch(j, h_) for j in range(2) for h_ in range(2)] if CFG.get("local") and tp != "none" else []
        tsch = [int(x) for x in CFG.get("tsch", "13,13,13,13").split(",")]
        mine = [t for t, k in zip(T, tsch) if k == i]
        if i == 12 and CFG.get("local"):
            ids = [[f"v_and_b32 {vr(vCW)}, 63, v0", f"v_lshlrev_b32 {vr(vCW)}, 7, {vr(vCW)}", f"s_nop 0",
                    f"buffer_load_dword {ar(239)}, {vr(vCW)}, {sr(sFLR,4)}, 0 offen offset:4 sc1 ; #ids"]]
            loads = [(ids + mine, 0, NG)]
        fixed = {}
        if i == 12 and CFG.get("wtouch", False):
            tg = [int(x) for x in CFG.get("wtg", "65,68,93,107").split(",")]
            NP = len(tg)
            fixed[64] = [f"v_and_b32 {vr(vCW)}, {64 // NP - 1}, v0", f"v_lshlrev_b32 {vr(vCW)}, 7, {vr(vCW)}"]
            for j, g in enumerate(tg):
                off = j * 8192 // NP
                fixed.setdefault(g, []).append(f"buffer_load_dword {ar(252 + j)}, {vr(vCW)}, {sr(sWFL,4)}, {sr(sRX if off >= 4096 else sRW)} offen offset:{off % 4096} sc1 ; #wt")
        if i == 12 and int(CFG.get("r1n12", 0)): loads = [(wo_loads("R1")[:int(CFG["r1n12"])], 0, NG)]
        r1at = int(CFG.get("r1at", 14))
        if i == 13:
            g = mine + (wo_loads("R1")[:8] if r1at == 13 else [])
            if not CFG.get("local"): g = wo_loads("R1")[8:]
            loads = [(g, int(CFG.get("r1lo", 24)), int(CFG.get("r1hi", 75)))] if g else []
        if i == 14:
            loads = [(wo_loads("R2") + wo_loads("R4") + (wo_loads("R3u") if CFG.get("r3u") else []), 64, NG)]
            if int(CFG.get("r1n13", 8)) < 16: loads.insert(0, (wo_loads("R1")[:8], 0, 64))
            if CFG.get("local"):
                chk = [f"@wait ids,tch", f"v_accvgpr_read_b32 {vr(vCW)}, {ar(239)}"]
                r1 = wo_loads("R1")[(8 if r1at == 13 else 0):]
                k8 = len(r1) - 8
                r1[k8] = chk + r1[k8]
                loads.insert(0, (r1, 0, 64))
        o += iteration(i, f"L_r{i}", loads, phase_c_srds() if i == PEEL0 else (), fixed)
    o += stamp()
    o += tail_and_epilogue(3)
    o += phase_c()
    fifo = [f"K{PEEL0+2}"] * 4 + [f"V{PEEL0+1}"] * 4
    if CFG.get("skipst"): o = [x for x in o if "#ost" not in x]
    if CFG.get("skipp"): o = [x for x in o if not re.search(r"#p\d", x)]
    o, _, _ = resolve(o, fifo, lf)
    return o

def stamp_out():
    if not CFG["stamps"]: return []
    o = ["s_waitcnt vmcnt(0)"] + stamp()
    A = o.append
    A(f"s_lshl_b32 {sr(sT)}, s2, 10"); A(f"s_add_u32 {sr(sT)}, {sr(sT)}, {STAMP_OFF}")
    o += srd_at(4, 14, sr(sT), 1024)
    A("v_lshlrev_b32 v1, 2, v0")
    A(f"buffer_store_dword v{STV}, v1, s[4:7], 0 offen")
    if CFG.get("dbgout"):
        o += srd_at(4, 12, "0", 64)
        A("v_and_b32 v2, 63, v0")
        A("v_lshlrev_b32 v1, 1, v2"); A("v_add_u32 v1, 6, v1")
        A("v_and_b32 v3, 1, v2"); A("v_cmp_eq_u32 vcc, 0, v3"); A("v_mov_b32 v3, 0x1000"); A("s_nop 1")
        A("v_cndmask_b32 v1, v1, v3, vcc")
        A(f"v_cmp_lt_u32 vcc, {2*nstamp[0]}, v2"); A("s_nop 1"); A("v_cndmask_b32 v1, v1, v3, vcc")
        A(f"buffer_atomic_umax v{STV}, v1, s[4:7], 0 offen sc1")
        A(f"v_not_b32 v4, v{STV}")
        A("v_cmp_eq_u32 vcc, 1, v2"); A("s_nop 1"); A("v_cndmask_b32 v1, v3, 4, vcc")
        A(f"buffer_atomic_umax v4, v1, s[4:7], 0 offen sc1")
    return o

def kernel():
    pro, fifo, lf0 = prologue()
    _, _, lf = resolve(iteration(0, "x") + iteration(1, "x"), [])
    its = []
    for u in range(4):
        it, _, lf2 = resolve(iteration(u, f"L_r{u}"), [], lf)
        assert lf2 == lf
        its.append(it)
    assert len(lf0) >= len(lf) and lf0[len(lf0)-len(lf):] == lf or CFG["stamps"] or CFG.get("probe"), (lf0, lf)
    pe = peeled(lf)
    body = list(pro)
    body.append("L_loop:")
    for u in range(4):
        it = list(its[u])
        if u == 3:
            k = [i for i, x in enumerate(it) if x.startswith(MF)]
            it.insert(k[-3] + 1, f"s_cmp_lt_u32 {sr(sCNT)}, {NPASS}")
            it.insert(k[-4] + 1, f"s_add_u32 {sr(sCNT)}, {sr(sCNT)}, 1")
            it.append("s_cbranch_scc1 L_loop")
            its[3] = it
        body += it
    body += pe
    body += stamp_out()
    if CFG.get("fixdur"):
        body += ["L_fix:", "s_memrealtime s[40:41]", "s_waitcnt lgkmcnt(0)", "s_sub_u32 s40, s40, s42", f"s_cmp_lt_u32 s40, {int(CFG['fixdur'])*100}", "s_cbranch_scc1 L_fix"]
    body.append("L_end:")
    body.append("s_endpgm")
    for u in list(range(4)) + list(range(PEEL0, 15)):
        body += [f"L_r{u}a:", f"s_call_b64 {sr(sRET,2)}, L_ra{1 - u % 2}", f"s_branch L_r{u}a_back"]
        if CFG.get("evslow"): body += [f"L_r{u}z:", f"s_nop {int(CFG['evslow'][1:])}", f"s_branch L_r{u}z_back"]
        body += [f"L_r{u}b:", f"s_call_b64 {sr(sRET,2)}, L_rb", f"s_branch L_r{u}b_back"]
    body += ["L_cw:", f"s_mov_b32 {sr(sCNT)}, 0", "L_cw_loop:",
             f"v_and_b32 {vr(vCW)}, 3, v0", f"v_lshlrev_b32 {vr(vCW)}, 6, {vr(vCW)}",
             f"buffer_load_dword {vr(vCW)}, {vr(vCW)}, {sr(sDB,4)}, 0 offen sc1", "s_waitcnt vmcnt(0)",
             f"v_cmp_ne_u32 vcc, {sr(sT)}, {vr(vCW)}", "s_cbranch_vccz L_cw_back",
             f"s_add_u32 {sr(sCNT)}, {sr(sCNT)}, 1", f"s_cmp_lt_u32 {sr(sCNT)}, {CFG['spin']}", "s_cbranch_scc1 L_cw_loop",
             "s_branch L_cw_back"]
    if CFG.get("local"): body += ["L_pubg:", "buffer_wbl2 sc1", "s_waitcnt vmcnt(0)",
             f"buffer_store_dword {vr(vMX)}, {vr(vLIN)}, {sr(sFL,4)}, 0 offen sc1", "s_branch L_pubg_back"]
    if CFG.get("local"): body += ["L_acq:", "buffer_inv sc1", "s_waitcnt vmcnt(0)", "s_branch L_acq_back"]
    for k in STAGED:
        body += [f"L_e{k}:", f"s_mov_b32 {sr(sCNT)}, 0", f"L_e{k}_loop:",
                 f"buffer_load_dword {vr(vT+1)}, off, {sr(sFL,4)}, {sr(sTILE)} offset:16 sc1", "s_waitcnt vmcnt(0)",
                 f"v_cmp_ne_u32 vcc, 1, {vr(vT+1)}", f"s_cbranch_vccz L_e{k}_back",
                 f"s_add_u32 {sr(sCNT)}, {sr(sCNT)}, 1", f"s_cmp_lt_u32 {sr(sCNT)}, {CFG['spin']}", f"s_cbranch_scc1 L_e{k}_loop", f"s_branch L_e{k}_back"]
    for p in range(2): body += rare_a(p, f"L_ra{p}")
    body += rare_b("L_rb")
    loop = its[0] + its[1] + its[2] + its[3]
    check(pro + loop + loop + pe, "main")
    def with_rare(seq):
        o = []
        for x in seq:
            m = re.match(r"L_r(\d+)([ab])_back:", x)
            if m: o += (rare_a(1 - int(m.group(1)) % 2, "x") if m.group(2) == "a" else rare_b("x"))[1:]
            o.append(x)
        return o
    check(pro + with_rare(loop + pe), "rare")
    if CFG.get("jitter"):
        import random
        rnd = random.Random(int(CFG["jitter"][1:]))
        nb = []; cnt = 0; started = False
        for x in body:
            if x == "s_endpgm": started = False
            j = False
            if x.startswith("s_barrier"): started = True; j = True
            if x.startswith(MF): cnt += 1; j = cnt % 97 == 0
            pre_ = rnd.random() < 0.5
            blk = []
            if j and started:
                lab = f"L_j{len(nb)}"
                blk = ["s_cselect_b32 s101, 1, 0", "s_memrealtime s[40:41]", "s_waitcnt lgkmcnt(0)", f"s_lshl_b32 s41, {sr(sWAVE)}, 2", "s_xor_b32 s40, s40, s41", "s_xor_b32 s40, s40, s2",
                       f"s_and_b32 s40, s40, {rnd.choice([12, 28, 60])}", "s_cmp_lg_u32 s40, 0", f"s_cbranch_scc1 {lab}", f"s_sleep {rnd.choice([4, 16, 64])}", f"{lab}:", "s_cmp_lg_u32 s101, 0"]
            nb += (blk + [x]) if pre_ else ([x] + blk)
        return "\n".join(nb)
    lastscc = None
    for x in body:
        op = x.split()[0] if x.split() else ""
        if op == "s_addc_u32": assert lastscc == "s_add_u32" and prev.startswith("s_add_u32"), (prev, x)
        if op in ("s_cselect_b32", "s_cbranch_scc0", "s_cbranch_scc1"): assert lastscc.startswith("s_cmp"), (lastscc, x)
        if op.startswith(("s_add", "s_sub", "s_and", "s_or", "s_xor", "s_lshl", "s_lshr", "s_cmp", "s_bfe", "s_min", "s_max", "s_not")): lastscc = op
        prev = x
    if CFG["verbose"]:
        for g in range(NG): print(g, PLAN[g])
    return "\n".join(body)

if __name__ == "__main__":
    k = kernel()
    txt = file_text([dict(label=NAME + "_kernel", body=k, grid=256, block=256, lds=163840, vgpr=512, accum=256)], single=True)
    DOC = """; ---------------------------------------------------------------------------------------------
; Fused MHA block, one workgroup (4 waves, one per SIMD) per (batch, head); generated by a script.
;  A. Q^T = wq_h^T x_b^T   (x / wq streamed through LDS by LDS-DMA; scale*log2e folded into Q)
;  B. flash attention over 16 key tiles of 64: S^T = K Q^T - m (running max as MFMA C operand),
;     P = exp2(S), O^T += V^T P^T, l += 1^T P^T.  The max of every tile is checked; when it
;     exceeds the running max by more than 8 (log2) the rare path moves the max and rescales O, l.
;     every workgroup computes a 128x128 tile over K = 1024, the 4 octets' partial tiles are
;     reduced through d_ws.  wo is re-laid out into MFMA fragment order in d_ws during phase A.
;  Hand-offs: write-through (sc1) stores, vmcnt wait, barrier, one flag / counter per workgroup,
;  sc1 polls (bounded).  Flags are cleared by their owner at the start; d_debug counts that.
; ---------------------------------------------------------------------------------------------
"""
    txt = txt.replace('.amdgcn_target', DOC + '.amdgcn_target', 1)
    open(sys.argv[1], "w").write(txt)
```

```python
import sys, math, struct, re
from asmlib import *
from check import check

CFG = dict(qst=False, stamps=False, codepf=True, warm=True, spin=200000, verbose=False)
for a in sys.argv[2:]:
    k, v = a.split("=")
    CFG[k] = {"0": False, "1": True}.get(v, v)

MF = "v_mfma_f32_16x16x32_bf16"
def vr(b, n=1): return f"v{b}" if n == 1 else f"v[{b}:{b+n-1}]"
def ar(b, n=1): return f"a{b}" if n == 1 else f"a[{b}:{b+n-1}]"
def sr(b, n=1): return f"s{b}" if n == 1 else f"s[{b}:{b+n-1}]"
def rr(r, n=1): return vr(r, n) if r < 256 else ar(r - 256, n)
def slots(t):
    if t.startswith(("v_exp", "v_rcp", "buffer_", "global_", "v_permlane")): return 2
    if t.startswith(("s_", "@", "L_")): return 0
    return 1

sX, sWQ, sK, sV, sO = 4, 8, 12, 16, 20
sWFL, sOL = 4, 8
sWAVE, sB, sH, sW4K, sW8K = 24, 25, 26, 27, 28
sCB, sMT, sNT = 29, 30, 31
sXO, sWO = 32, 40
sOUT, sFLR = 32, 36
sTILE, sCNT, sTHR, sSC, sSP = 44, 45, 46, 47, 48
sRET = 50
sTK, sROT, sRQ, sRX, sRW = 49, 92, 93, 94, 95
sW1K, sDT = 96, 97
sPF = 98
sPS, sPL, sPF2 = 80, 84, 76
sHO, sG = 29, 30
sHP, sW2K = 56, 96
sRC = 93
sXCC, sGLB = 3, 94
sT = 52
sARG = 56
sFL, sDB, sDBW = 72, 76, 88
sWS2, sWO2 = 80, 84
vKA, vVA, vDK, vDV = 1, 5, 13, 17
vMX, vLIN, vCW, STV = 19, 21, 22, 23
vT = 24
vONES = 28
vNEG, vL, vQ, vS = 32, 48, 64, 128
vWA, vXA, vDX, vDW, vWOF = 64, 72, 76, 78, 25
vWOA, vWOS = 19, 20
vDUM = [22, 26, 27]
u0, u1, u2, u3, u4, u5, ln = 128, 129, 130, 131, 132, 133, 134
aO, aF = 0, 128
LK, LV, LW = 0, 65536, 131072
LX = [81920, 131072]
LWQ = [32768, 49152, 65536]
LWO = 114688
WOF_OFF, FLAG_OFF, PART_OFF, STAMP_OFF = 0x1000000, 0x1400000, 0x1800000, 0x4000000

def Ureg(p, ks, qb): return vS + 64 * p + 8 * (ks * 4 + qb)
def Sreg(p, kb, qb): return Ureg(p, kb // 2, qb) + 4 * (kb % 2)
def Oreg(qb, dt): return aO + 4 * (qb * 8 + dt)
def Qreg(qb, s): return vQ + 16 * qb + 4 * s
def Freg(n): return aF + 4 * n

nstamp = [0]
def stamp():
    if CFG.get("probe"):
        i = nstamp[0]; nstamp[0] += 1
        return ["s_memrealtime s[42:43]", "s_waitcnt lgkmcnt(0)"] if i == int(CFG["probe"][1:]) else []
    if not CFG["stamps"]: return []
    i = nstamp[0]; nstamp[0] += 1
    assert i < 30
    return ["s_memtime s[40:41]", "s_waitcnt lgkmcnt(0)", f"v_writelane_b32 v{STV}, s40, {2*i}",
            "s_memrealtime s[40:41]", "s_waitcnt lgkmcnt(0)", f"v_writelane_b32 v{STV}, s40, {2*i+1}"]

def srd(s, size):
    return [f"s_and_b32 {sr(s+1)}, {sr(s+1)}, 0xffff", f"s_mov_b32 {sr(s+2)}, {size}", f"s_mov_b32 {sr(s+3)}, 0x20000"]
def srd_at(s, arg, offreg, size):
    return [f"s_add_u32 {sr(s)}, {sr(sARG+arg)}, {offreg}", f"s_addc_u32 {sr(s+1)}, {sr(sARG+arg+1)}, 0"] + srd(s, size)

def tag(lst, t): return [(x + f" ; #{t}") if x.startswith(("buffer_", "global_")) and "#" not in x else x for x in lst]
def resolve(seq, fifo, lfifo=()):
    fifo = list(fifo); lf = list(lfifo); out = []
    def cut(f, n): return f[len(f) - n:] if 0 < n < len(f) else (f if n else [])
    for x in seq:
        if x.startswith("@wait"):
            parts = x.split()
            w = []
            idx = [i for i, t in enumerate(fifo) if t in parts[1].split(",")]
            if idx:
                n = min(63, len(fifo) - 1 - max(idx)); fifo = cut(fifo, n); w.append(f"vmcnt({n})")
            for p in parts[2:]:
                if p.startswith("vm="): n = int(p[3:]); fifo = cut(fifo, n); w.append(f"vmcnt({n})")
                if p.startswith("lgkm="): n = int(p[5:]); lf = cut(lf, n); w.append(f"lgkmcnt({n})")
                if p.startswith("lds="):
                    idx = [i for i, t in enumerate(lf) if t in p[4:].split(",")]
                    if idx:
                        n = min(15, len(lf) - 1 - max(idx)); lf = cut(lf, n); w.append(f"lgkmcnt({n})")
            if w: out.append("s_waitcnt " + " ".join(w))
            continue
        m = re.search(r"#(\S+)", x)
        if x.startswith(("buffer_", "global_")): fifo.append(m.group(1) if m else "?")
        if x.startswith("ds_"): lf.append(m.group(1) if m else "?")
        m = re.match(r"s_waitcnt.*vmcnt\((\d+)\)", x)
        if m: fifo = cut(fifo, int(m.group(1)))
        m = re.match(r"s_waitcnt.*lgkmcnt\((\d+)\)", x)
        if m: lf = cut(lf, int(m.group(1)))
        out.append(x)
    return out, fifo, lf

PAT = CFG.get("pat", "A")
PATS = {"lin": ((8, 9, 12, 13), (14, 15, 16, 17)), "w64": ((8, 9, 16, 17), (12, 13, 14, 15)), "w32": ((8, 9, 15, 16), (12, 13, 14, 17)),
        "r8": ((8, 15, 16, 17), (9, 12, 13, 14)), "r16": ((14, 15, 16, 17), (8, 9, 12, 13)), "r8b": ((15, 16, 17, 8), (9, 12, 13, 14)),
        "r8c": ((9, 15, 16, 17), (8, 12, 13, 14)), "r8d": ((12, 15, 16, 17), (8, 9, 13, 14)), "A": ((8, 9, 15, 16), (11, 12, 13, 14))}
P17 = PAT == "A"
RB, TB = PATS[PAT]
TMASK = sum(1 << x for x in TB)
def tinc(r): return [f"s_or_b32 {sr(r)}, {sr(r)}, {0xffffffff ^ TMASK:#x}", f"s_add_u32 {sr(r)}, {sr(r)}, 1", f"s_and_b32 {sr(r)}, {sr(r)}, {TMASK:#x}"]
CONT = CFG.get("cont", False)
NOSWAP = CFG.get("noswap", True)
DIST = int(CFG.get("dist", 3))
PORD = [int(x) for x in CFG.get("pord", "0,3,1,2").split(",")]
def dma_k(p, soff):
    p = PORD[p]
    if CONT: return f"buffer_load_dwordx4 {vr(vDK)}, {sr(sK,4)}, {sr(sDT)} offen nt lds"
    return f"buffer_load_dwordx4 {vr(vDK+p)}, {sr(sK,4)}, {soff} offen offset:{1024*p} nt lds"
def dma_v(p, soff):
    p = PORD[p]
    if CONT: return f"buffer_load_dwordx4 {vr(vDV)}, {sr(sV,4)}, {sr(sDT)} offen nt lds"
    return f"buffer_load_dwordx4 {vr(vDV + p%2)}, {sr(sV,4)}, {sr(sROT) if P17 and p >= 2 else soff} offen offset:{1024*p} nt lds"
def v_pre(p): return [f"s_add_u32 {sr(sROT)}, {sr(sTILE)}, {131072 - 2048}"] if P17 and p == min(PORD.index(2), PORD.index(3)) else []
def cont_pre(base, p, soff): return [f"s_add_u32 m0, {sr(sW1K)}, {base + p*4096}", f"s_add_u32 {sr(sDT)}, {soff}, {p*4096}"]
def m0_at(addr): return f"s_add_u32 m0, {sr(sW4K)}, {addr}"
def kv_batch(which, tile):
    r = sTK if which == "K" else sTILE
    out = (tinc(r) if tile else []) + [m0_at((LK + slotK(tile) * 16384 if which == "K" else LV + slotV(tile) * 16384)), "s_nop 0"]
    for p in range(4): out += [dma_k(p, sr(r))] if which == "K" else v_pre(p) + [dma_v(p, sr(r))]
    return tag(out, f"{which}{tile}")

NPASS = int(CFG.get("npass", 3))
PEEL0 = 4 * NPASS
def slotK(t): return t % 4
def slotV(t): return t % 4
def rd_k(slot, n):
    kb, s = n // 4, n % 4
    return f"ds_read_b128 {ar(Freg(n),4)}, {vr(vKA+s)} offset:{slot*16384 + kb*4096} ; #k{n}"
def rd_v(slot, n, t):
    dt, ks = n // 2, n % 2
    return f"ds_read_b64_tr_b16 {ar(Freg(n)+2*t,2)}, {vr(vVA+dt)} offset:{slot*16384 + (32*ks+16*t)*256} ; #v{n}"

def qk_one(p, kb, qb, s, first, czero=False):
    d = Sreg(p, kb, qb)
    c = vr(d, 4) if not first else ("0" if czero else vr(vNEG + 4*qb, 4))
    return f"{MF} {vr(d,4)}, {ar(Freg(kb*4+s),4)}, {vr(Qreg(qb,s),4)}, {c}"
def qk_list(p):
    return [qk_one(p, kb, qb, (i if qb % 2 == 0 else 3 - i), i == 0) for kb in range(4) for qb in range(4) for i in range(4)]
def pv_one(p, dt, qb, ks):
    o = Oreg(qb, dt)
    return f"{MF} {ar(o,4)}, {ar(Freg(dt*2+ks),4)}, {vr(Ureg(p,ks,qb),4)}, {ar(o,4)}"
def sum_one(p, qb, ks):
    return f"{MF} {vr(vL+4*qb,4)}, {vr(vONES,4)}, {vr(Ureg(p,ks,qb),4)}, {vr(vL+4*qb,4)}"
def pv_list(p):
    return ([pv_one(p, dt, qb, (i if qb % 2 == 0 else 1 - i)) for dt in range(8) for qb in range(4) for i in range(2)]
            + [sum_one(p, qb, ks) for qb in range(4) for ks in range(2)])

UNITS = [(0, 0), (1, 0), (1, 1), (0, 1), (0, 2), (1, 2), (1, 3), (0, 3)]
def ereg(p, e): ks, qb = UNITS[e // 8]; return Ureg(p, ks, qb) + e % 8
def exp_i(p, e): r = ereg(p, e); return f"v_exp_f32 {vr(r)}, {vr(r)}"
def cvt_i(p, k):
    r = ereg(p, 2 * k); return f"v_cvt_pk_bf16_f32 {vr(r - (2*k) % 8 + k % 4)}, {vr(r)}, {vr(r+1)}"
def max_items(p):
    out = []
    for kb in range(4):
        for qb in range(4):
            r = Sreg(p, kb, qb); m = vr(vMX + qb % 2); done = 16 * kb + 4 * qb + 3
            if kb == 0 and qb < 2:
                out.append((f"v_max3_f32 {m}, {vr(r)}, {vr(r+1)}, {vr(r+2)}", done))
                out.append((f"v_max_f32 {m}, {vr(r+3)}, {m}", done))
            else:
                out.append((f"v_max3_f32 {m}, {vr(r)}, {vr(r+1)}, {m}", done))
                out.append((f"v_max3_f32 {m}, {vr(r+2)}, {vr(r+3)}, {m}", done))
    return out

NG = 136
HOOKA = 69
BARG = 118
LAT = 8
def make_plan():
    plan = {g: [] for g in range(NG)}
    T0 = HOOKA
    dsp = int(CFG.get("dsp", 14))
    dv0 = int(CFG.get("dv0", 72))
    dof = [int(x) for x in CFG["dof"].split(",")] if CFG.get("dof") else [dsp * i for i in range(4)]
    dma_g = [4 + x for x in dof] + [dv0 + x for x in dof]
    dma_t = [g + NG if g < HOOKA else g for g in dma_g]
    NX2 = int(CFG.get('nx2', 40))
    r2 = [t for t in range(T0, NG) if t != BARG and t not in dma_t]
    r1 = [t for t in range(NG, NG + 64) if t not in dma_t]
    xt = [r2[i * len(r2) // NX2] for i in range(NX2)] + [r1[i * len(r1) // (64 - NX2)] for i in range(64 - NX2)]
    assert len(set(xt)) == 64
    for e, t in enumerate(xt): plan[t % NG].append(("exp", e, t >= NG))
    for i, t in enumerate(dma_t): plan[t % NG].append(("dma", i))
    Y = []
    for k in range(32):
        Y.append((xt[2*k+1] + 1, NG + 64 + k // 4 - 2, ("cvt", k)))
    for i, (_, done) in enumerate(max_items(0)):
        Y.append((NG + done + 3, NG + HOOKA - 3, ("max", i)))
    Y.append((NG + 66, NG + HOOKA - 2, ("max", 32))); Y.append((NG + 66, NG + HOOKA - 1, ("max", 33)))
    for n in range(16):
        Y.append((max(BARG + 1, 64 + 8 * (n // 2) + 7), NG + 16 * (n // 4) - LAT, ("k", n)))
    NV1 = int(CFG.get("nv1", 10))
    for n in range(16):
        e, d = 16 * (n // 4) + 15, min(64 + 8 * (n // 2) - LAT, BARG - 10)
        for t in range(2):
            if n < NV1: Y.append((NG + e, NG + min(d, HOOKA - 1), ("v", n, t)))
            else: Y.append((T0, d, ("v", n, t)))
    def kind(y): return y[2][0] + ("1" if y[2][0] == "v" and y[0] >= NG else "")
    ygaps = [t for t in range(T0, T0 + NG) if not plan[t % NG] and t % NG != BARG]
    pend = list(Y)
    for t in ygaps:
        g = t % NG
        picked = []
        for _ in range(2):
            heads = {}
            for y in pend: heads.setdefault(kind(y), y)
            c = [y for y in heads.values() if y[0] <= t]
            if not c: break
            def eff(y):
                same = [z for z in pend if kind(z) == kind(y)]
                return min(z[1] - i / 1.2 for i, z in enumerate(same))
            y = min(c, key=eff)
            assert t <= y[1], ("deadline miss", t, y)
            picked.append(y); pend.remove(y)
        picked.sort(key=lambda y: 0 if y[2][0] in ("k", "v") else 1)
        for y in picked: plan[g].append(y[2] + ((t >= NG,) if y[2][0] == "cvt" else ()))
    assert not pend, pend
    return plan
PLAN = make_plan()

def iteration(i, lab, loads=None, salu=(), fixed=None):
    assert DIST == 3 and not CONT
    p = i % 2
    steady = i < PEEL0
    sc = {g: [] for g in range(NG)}
    for kb in range(4): sc[16 * kb - 1 if kb else NG - 2].append(f"@wait - lds=" + ",".join(f"k{kb*4+s}" for s in range(4)))
    for dt in range(8):
        if 64 + 8 * dt - 1 < BARG - 1: sc[64 + 8 * dt - 1].append(f"@wait - lds=v{2*dt},v{2*dt+1}")
    sc[BARG - 1].append(f"@wait - vm={10 if i == 1 else (9 if i == 2 and CFG.get('repf', False) else 8)} lgkm=0" if steady else f"@wait K{i+2},V{i+1} lgkm=0")
    sc[BARG].append("s_barrier")
    if CFG.get("itst"):
        sc[BARG - 2].append("s_memrealtime s[40:41]")
        sc[BARG] += ["s_mov_b64 exec, s[42:43]", f"v_mov_b32 v{STV}, s40", "s_mov_b64 exec, -1", "s_lshl_b64 s[42:43], s[42:43], 1"]
    sc[HOOKA] += [f"s_cbranch_vccnz {lab}a", f"{lab}a_back:"]
    sc[NG - 1] = [f"s_cbranch_vccnz {lab}b", f"{lab}b_back:"] + sc[NG - 1]
    if CFG.get("evslow"):
        sc[90] += ["s_and_b32 s101, s2, 1"]; sc[91] += ["s_cmp_eq_u32 s101, 0"]; sc[92] += [f"s_cbranch_scc1 {lab}z", f"{lab}z_back:"]
    extra = dict(fixed or {})
    vm = {}
    hask, hasv = i + 3 <= 15, i + 2 <= 15
    for j, g in enumerate(DMA_GAPS):
        if j < 4 and hask: vm[g] = [m0_at(LK + slotK(i + 3) * 16384), dma_k(j, sr(sTK)) + f" ; #K{i+3}"]
        v15 = CFG.get("v15", "a")
        if i == 13 and v15 != "n":
            if j < 4 and v15 == "a": vm[(2, 8, 14, 20)[j] if CFG.get("v15d", True) else g] = v_pre(j) + [m0_at(LV + slotV(15) * 16384), dma_v(j, sr(sTILE)) + " ; #V15"]
            continue
        if j >= 4 and hasv: vm[g] = v_pre(j - 4) + [m0_at(LV + slotV(i + 2) * 16384), dma_v(j - 4, sr(sTILE)) + f" ; #V{i+2}"]
    if i == 12 and CFG.get("v15", "a") == "b":
        vm = {}
        for j in range(4):
            vm[(4, 13, 22, 32)[j]] = [m0_at(LK + slotK(15) * 16384), dma_k(j, sr(sTK)) + " ; #K15"]
            vm[(40, 46, 58, 64)[j]] = [m0_at(LV + slotV(14) * 16384), dma_v(j, sr(sTILE)) + " ; #V14"]
            vm[(72, 86, 100, 114)[j]] = [m0_at(LV + slotV(15) * 16384), dma_v(j, sr(sTK)) + " ; #V15"]
    sc[120].append(f"s_mov_b32 {sr(sTILE)}, {sr(sTK)}")
    for j_, x in enumerate(tinc(sTK)): sc[121 + j_].append(x)
    if steady:
        if i == 1:
            extra[64] = [f"v_and_b32 {vr(vCW)}, 3, v0", f"v_lshlrev_b32 {vr(vCW)}, 6, {vr(vCW)}"]
            extra[65] = [f"buffer_load_dword {vr(vCW)}, {vr(vCW)}, {sr(sDB,4)}, 0 offen sc1"]
            sc[40].append(f"s_cmp_eq_u32 {sr(sCNT)}, {NPASS - 1}")
            sc[41].append(f"s_cselect_b32 {sr(sDB+2)}, 256, 0")
            extra[68] = [f"buffer_atomic_add {vr(vONES)}, {vr(vLIN)}, {sr(sDBW,4)}, 0 offen sc1"]
            sc[75].append(f"s_mov_b32 {sr(sDBW+2)}, 0")
        if i == 2 and CFG.get("repf", False):
            extra[64] = [f"v_and_b32 {vr(vT)}, 31, v0", f"v_lshlrev_b32 {vr(vT)}, 10, {vr(vT)}"]
            extra[65] = [f"v_add_u32 {vr(vT)}, {sr(sPF+2)}, {vr(vT)}", f"v_min_u32 {vr(vT)}, L_end-L_pc, {vr(vT)}"]
            extra[68] = [f"global_load_dword {ar(255)}, {vr(vT)}, {sr(sPF,2)}"]
    else:
        nextk = i + 2 <= 15
        def load(g):
            return sum(2 if it[0] == "exp" else (0 if it[0] == "dma" or (it[0] == "k" and g > BARG and not nextk) else 1) for it in PLAN[g])
        gs = 0
        for x in salu:
            if x.startswith(("s_addc", "s_cselect")):
                sc[gs - 1].append(x); continue
            while sc[gs] or gs in vm or gs + 1 in vm: gs += 1
            sc[gs].append(x); gs += 1
        for groups, lo, hi in loads:
            cand = [g for g in range(max(lo, gs + 3 if salu else 0), hi) if g not in vm and g not in (BARG, BARG - 1, HOOKA, NG - 1)]
            n = len(groups)
            for k, grp in enumerate(groups):
                win = cand[k * len(cand) // n:(k + 1) * len(cand) // n]
                vm[min(win, key=load)] = grp
    cur_m0 = None; prev = -1
    for g in sorted(vm):
        grp = vm[g]; sca = []
        for x in grp[:-1]:
            if x.startswith("s_add_u32 m0"):
                if x == cur_m0: continue
                cur_m0 = x
            sca.append(x)
        free = [q for q in range(prev + 1, g + 1) if not sc[q] and not (steady and q in (40, 41))]
        if sca and sca[-1].startswith("s_add_u32 m0"): free = [q for q in free if q < g]
        if len(free) >= len(sca):
            for x, q in zip(sca, free[len(free) - len(sca):]): sc[q].append(x)
        else:
            sc[g] += sca + ["s_nop 0"]
        prev = g
    mf = qk_list(1 - p) + pv_list(p)
    MX = [t for t, _ in max_items(1 - p)] + [f"v_max_f32 {vr(vMX)}, {vr(vMX)}, {vr(vMX+1)}", f"v_cmp_lt_f32 vcc, {sr(sTHR)}, {vr(vMX)}"]
    out = []
    for g in range(NG):
        out.append(mf[g])
        out += sc[g]
        ex = extra.get(g, [])
        out += [x for x in ex if not x.startswith("v_")]
        if g in vm: out.append(vm[g][-1])
        for it in PLAN[g]:
            k = it[0]
            if k == "exp": out.append(exp_i(p if it[2] else 1 - p, it[1]))
            elif k == "cvt": out.append(cvt_i(p if it[2] else 1 - p, it[1]))
            elif k == "max":
                if not CFG.get("nomax"): out.append(MX[it[1]])
            elif k == "k":
                t = i + (2 if g > BARG else 1)
                if t <= 15: out.append(rd_k(slotK(t), it[1]))
            elif k == "v": out.append(rd_v(slotV(i), it[1], it[2]))
        out += [x for x in ex if x.startswith("v_")]
        if CFG.get("slowdown") and g % int(CFG["slowdown"]) == 5: out.append("s_nop 7")
    return out
EARLY_K = [it[1] for g in range(BARG + 1, NG) for it in PLAN[g] if it[0] == "k"]
E_FIRST = [it for g in range(HOOKA, NG) for it in PLAN[g] if it[0] in ("exp", "cvt")]
E_REST = [it for g in range(0, HOOKA) for it in PLAN[g] if it[0] in ("exp", "cvt")]
DMA_GAPS = [g for g in range(NG) if any(it[0] == "dma" for it in PLAN[g])]
LIGHT = sorted(range(NG), key=lambda g: (sum(2 if it[0] in ("exp",) else (0 if it[0] == "dma" else 1) for it in PLAN[g])))

def spread(items, gaps):
    d = {}
    for i, it in enumerate(items):
        d.setdefault(gaps[i * len(gaps) // len(items)], []).extend(it)
    return d
def place(groups, lo, hi):
    cand = [g for g in LIGHT if lo <= g < hi and g not in (BARG, BARG - 1, HOOKA, NG - 1)]
    gs = sorted(cand[:len(groups)])
    assert len(gs) == len(groups)
    return {g: list(x) for g, x in zip(gs, groups)}
def merge(*maps):
    d = {}
    for m in maps:
        for k, v in m.items(): d.setdefault(k, []).extend(v)
    return d
def flat(G): return [x for g in G for x in g]
def groups_of(lst):
    G = []; cur = []
    for x in lst:
        cur.append(x)
        if x.startswith("buffer_"): G.append(cur); cur = []
    if cur: G[-1] += cur
    return G

WREG = []
WP = {}
for nm, base, n, st_ in (("R1", 256 + 192, 16, 4), ("R2", vQ, 16, 4), ("R4", vNEG, 4, 4), ("R3u", vS + 4, 8, 8), ("R3", vS, 8, 8), ("R5", 256 + aF, 12, 4)):
    WP[nm] = list(range(len(WREG), len(WREG) + n)); WREG += [base + st_ * i for i in range(n)]
assert len(WREG) == 64
def wo_loads(name, sp=None):
    sp = sSP if sp is None else sp
    groups = []
    for f in WP[name]:
        g = [f"s_add_u32 {sr(sp)}, {sr(sHP + f // 8)}, {(f % 8) * 1024}"] if f % 4 == 0 else []
        g.append(f"buffer_load_dwordx4 {rr(WREG[f], 4)}, {vr(vLIN)}, {sr(sWFL,4)}, {sr(sp)} offen offset:{(f%4)*1024} sc1 ; #w{f}")
        groups.append(g)
    return groups

def pack_muls(l):
    o = []; i = 0
    while i < len(l):
        m1 = re.match(r"v_mul_f32 v(\d+), v\d+, v(\d+)$", l[i]); m2 = re.match(r"v_mul_f32 v(\d+), v\d+, v(\d+)$", l[i+1]) if i + 1 < len(l) else None
        if m1 and m2 and int(m1.group(1)) % 2 == 0 and int(m2.group(1)) == int(m1.group(1)) + 1:
            r = int(m1.group(1)); f_ = int(m1.group(2))
            sel = "op_sel_hi:[1,0]" if f_ % 2 == 0 else "op_sel:[0,1] op_sel_hi:[1,1]"
            o.append(f"v_pk_mul_f32 {vr(r,2)}, {vr(r,2)}, {vr(f_ - f_ % 2,2)} {sel}"); i += 2
        else: o.append(l[i]); i += 1
    return o
def weave(mf, nvmap, va=(), pre=None, need=None):
    out = []; va = list(va)
    for g, m in enumerate(mf):
        if need and g in need:
            last = max([i for i, x in enumerate(va) if x[2] == need[g]], default=-1)
            if last >= 0:
                if va[last][1] > g - 1: out.append("s_nop 7")
                out += pack_muls([x[0] for x in va[:last + 1]]) + ["s_nop 1"]; va = va[last + 1:]
            elif any(x.startswith("v_") and not x.startswith("v_mfma") for x in out[-2:]): out.append("s_nop 1")
        if pre and g in pre: out += pre[g]
        out.append(m)
        nv = nvmap.get(g, [])
        out += nv
        c = sum(slots(x) for x in nv)
        while va and va[0][1] <= g and c + slots(va[0][0]) <= 2:
            c += slots(va[0][0]); out.append(va.pop(0)[0])
    return out, va

def allreduce(op, a, b):
    return [f"v_mov_b32 {vr(b)}, {vr(a)}", "s_nop 1", f"v_permlane32_swap_b32 {vr(a)}, {vr(b)}", "s_nop 1", f"{op} {vr(a)}, {vr(a)}, {vr(b)}",
            f"v_mov_b32 {vr(b)}, {vr(a)}", "s_nop 1", f"v_permlane16_swap_b32 {vr(a)}, {vr(b)}", "s_nop 1", f"{op} {vr(a)}, {vr(a)}, {vr(b)}"]
def qmax(p, qb, d):
    regs = [Sreg(p, kb, qb) + j for kb in range(4) for j in range(4)]
    o = [f"v_max3_f32 {vr(d)}, {vr(regs[0])}, {vr(regs[1])}, {vr(regs[2])}"]
    for i in range(3, 15, 2): o.append(f"v_max3_f32 {vr(d)}, {vr(regs[i])}, {vr(regs[i+1])}, {vr(d)}")
    o.append(f"v_max_f32 {vr(d)}, {vr(regs[15])}, {vr(d)}")
    return o
def rare_a(p, label):
    out = [f"{label}:", "s_nop 7"]
    for qb in range(4):
        d = vT + qb
        out += qmax(p, qb, d) + allreduce("v_max_f32", d, vMX)
        out.append(f"v_max_f32 {vr(d)}, 0, {vr(d)}")
        for j in range(4): out.append(f"v_sub_f32 {vr(vNEG+4*qb+j)}, {vr(vNEG+4*qb+j)}, {vr(d)}")
        for kb in range(4):
            for j in range(4):
                r = Sreg(p, kb, qb) + j
                out.append(f"v_sub_f32 {vr(r)}, {vr(r)}, {vr(d)}")
        out.append(f"v_exp_f32 {vr(d)}, -{vr(d)}")
    out += ["s_nop 3", f"s_setpc_b64 {sr(sRET,2)}"]
    return out
def rare_b(label):
    out = [f"{label}:", "s_nop 15"]
    for qb in range(4):
        f_ = vT + qb
        for j in range(4): out.append(f"v_mul_f32 {vr(vL+4*qb+j)}, {vr(vL+4*qb+j)}, {vr(f_)}")
        for j in range(0, 32, 2):
            a0 = Oreg(qb, 0) + j
            out += [f"v_accvgpr_read_b32 {vr(vMX)}, {ar(a0)}", f"v_accvgpr_read_b32 {vr(vMX+1)}, {ar(a0+1)}",
                    f"v_mul_f32 {vr(vMX)}, {vr(vMX)}, {vr(f_)}", f"v_mul_f32 {vr(vMX+1)}, {vr(vMX+1)}, {vr(f_)}",
                    f"v_accvgpr_write_b32 {ar(a0)}, {vr(vMX)}", f"v_accvgpr_write_b32 {ar(a0+1)}, {vr(vMX+1)}"]
    out += ["s_nop 3", f"s_setpc_b64 {sr(sRET,2)}"]
    return out

def wfrag(st, s, dt): return (128 if st % 2 == 0 else 192) + 4 * (dt * 2 + s)
def xfrag(st, s, qb): return (96 if st % 2 == 0 else 32) + 4 * (qb * 2 + s)
def qacc(qb, dt): return Ureg(dt // 4, (dt // 2) % 2, qb) + 4 * (dt % 2)
def qp_reads(st):
    out = []
    for qb in range(4):
        for s in range(2):
            out.append(f"ds_read_b128 {vr(xfrag(st,s,qb),4)}, {vr(vXA + 2*(st%2) + s)} offset:{qb*2048} ; #x{st}_{qb}")
    for dt in range(8):
        for s in range(2):
            for t in range(2):
                if NOSWAP: out.append(f"ds_read_b64_tr_b16 {ar(wfrag(st,s,dt)+2*t,2)}, {vr(vWA + dt//2)} offset:{(st%3)*16384 + (32*s+4*t)*256 + 8*(dt%2)} ; #w{st}_{dt}")
                else: out.append(f"ds_read_b64_tr_b16 {ar(wfrag(st,s,dt)+2*t,2)}, {vr(vWA + dt)} offset:{(st%3)*16384 + (32*s+4*t)*256} ; #w{st}_{dt}")
    return out
def qp_dma(st):
    G = []
    wf = (" " + CFG["wqld"]) if CFG.get("wqld") else ""
    xf = (" " + CFG["xld"]) if CFG.get("xld") else ""
    if st == 0 and CFG.get("nt0"): wf = xf = " nt"
    for p in range(4):
        g = []
        if p == 0:
            g = [f"s_add_u32 {sr(sRX)}, {sr(sRQ)}, {st}", f"s_and_b32 {sr(sRX)}, {sr(sRX)}, 7", f"s_lshl_b32 {sr(sRW)}, {sr(sRX)}, 19",
                 f"s_lshl_b32 {sr(sRX)}, {sr(sRX)}, 7", m0_at(LWQ[st % 3])]
        g.append(f"s_add_u32 {sr(sDT)}, {sr(sRW)}, {p*(32768-1024)}")
        g.append(f"buffer_load_dwordx4 {vr(vDW + p//2)}, {sr(sWQ,4)}, {sr(sDT)} offen offset:{1024*p}{wf} lds ; #st{st}")
        G.append(g)
    for p in range(8):
        g = [f"s_add_u32 m0, {sr(sW8K)}, {LX[st%2] + (p//4)*4096}"] if p % 4 == 0 else []
        g.append(f"s_add_u32 {sr(sDT)}, {sr(sRX)}, {p*8192 - 1024*(p%4)}")
        g.append(f"buffer_load_dwordx4 {vr(vDX + p%2)}, {sr(sX,4)}, {sr(sDT)} offen offset:{1024*(p%4)}{xf} lds ; #st{st}")
        G.append(g)
    return G
def qp_one(st, dt, qb, s, first):
    d = qacc(qb, dt)
    return f"{MF} {vr(d,4)}, {ar(wfrag(st,s,dt),4)}, {vr(xfrag(st,s,qb),4)}, {'0' if first else vr(d, 4)}"
def qp_mfmas(st):
    return [qp_one(st, dt, qb, (i if qb % 2 == 0 else 1 - i), st == 0 and i == 0) for dt in range(8) for qb in range(4) for i in range(2)]
def qp_q(st, qb):
    return [qp_one(st, dt, qb, (i if dt % 2 == 0 else 1 - i), False) for dt in range(8) for i in range(2)]
def qconv(qb, s):
    d = qacc(qb, 2 * s); q = Qreg(qb, s)
    out = [f"v_mul_f32 {vr(d+j)}, {sr(sSC)}, {vr(d+j)}" for j in range(8)]
    out += [f"v_cvt_pk_bf16_f32 {vr(q+j)}, {vr(d+2*j)}, {vr(d+2*j+1)}" for j in (0, 2, 1, 3)]
    return out, [f"v_permlane32_swap_b32 {vr(q)}, {vr(q+2)}", f"v_permlane32_swap_b32 {vr(q+1)}, {vr(q+3)}"], \
                [f"v_permlane16_swap_b32 {vr(q)}, {vr(q+2)}", f"v_permlane16_swap_b32 {vr(q+1)}, {vr(q+3)}"]
def qconv_stream(qb):
    parts = [qconv(qb, s) for s in range(4)]
    if NOSWAP: return [(x, s) for s in range(4) for x in parts[s][0]]
    out = []
    for s in range(4):
        a = parts[s][0]
        if s == 0: out += [(x, s) for x in a]
        else: out += [(x, s) for x in a[:4]] + [(x, s) for x in parts[s-1][1]] + [(x, s) for x in a[4:8]] + [(x, s) for x in parts[s-1][2]] + [(x, s) for x in a[8:]]
    out += [("s_nop 1", 3)] + [(x, 3) for x in parts[3][1]] + [("s_nop 1", 3)] + [(x, 3) for x in parts[3][2]]
    return out

def setup_a():
    o = []; A = o.append
    A("s_cmp_ge_u32 s2, 256")
    A("s_cbranch_scc1 L_end")
    if CFG.get("fixdur"): A("s_memrealtime s[42:43]")
    A(f"s_load_dwordx16 {sr(sARG,16)}, s[0:1], 0")
    if CFG["codepf"]:
        A(f"s_getpc_b64 {sr(sT,2)}")
        A("L_pc:")
        A(f"s_bfe_u32 {sr(sT+2)}, s2, 0x30003")
        A(f"v_lshrrev_b32 {vr(u0)}, 6, v0"); A(f"v_and_b32 {vr(u1)}, 15, v0"); A(f"v_lshl_add_u32 {vr(u0)}, {vr(u0)}, 4, {vr(u1)}")
        A(f"v_lshlrev_b32 {vr(u0)}, 10, {vr(u0)}"); A(f"s_lshl_b32 {sr(sT+2)}, {sr(sT+2)}, 7"); A(f"v_add_u32 {vr(u0)}, {sr(sT+2)}, {vr(u0)}")
        A(f"v_min_u32 {vr(u0)}, L_end-L_pc, {vr(u0)}")
        A(f"global_load_dword {vr(vDUM[0])}, {vr(u0)}, {sr(sT,2)} ; #pf")
        if CFG.get("repf", False):
            A(f"s_mov_b64 {sr(sPF,2)}, {sr(sT,2)}"); A(f"s_add_u32 {sr(sPF+2)}, {sr(sT+2)}, L_cw_back-L_pc")
    A(f"s_and_b32 {sr(sCB)}, s2, 7")
    A(f"s_lshr_b32 {sr(sT+3)}, s2, 3")
    A(f"s_and_b32 {sr(sMT)}, {sr(sT+3)}, 3"); A(f"s_lshr_b32 {sr(sNT)}, {sr(sT+3)}, 2")
    if CFG.get("pmap", "4x8") == "4x8":
        A(f"s_and_b32 {sr(sB)}, {sr(sCB)}, 1"); A(f"s_lshl_b32 {sr(sB)}, {sr(sB)}, 2"); A(f"s_add_u32 {sr(sB)}, {sr(sB)}, {sr(sMT)}")
        A(f"s_lshr_b32 {sr(sH)}, {sr(sCB)}, 1"); A(f"s_lshl_b32 {sr(sH)}, {sr(sH)}, 3"); A(f"s_add_u32 {sr(sH)}, {sr(sH)}, {sr(sNT)}")
    else:
        A(f"s_mov_b32 {sr(sB)}, {sr(sCB)}"); A(f"s_mov_b32 {sr(sH)}, {sr(sT+3)}")
    rq = CFG.get("rq", "x")
    if rq == "n": A(f"s_mov_b32 {sr(sRQ)}, 0")
    elif rq == "x": A(f"s_mov_b32 {sr(sRQ)}, {sr(sCB)}")
    elif rq == "h": A(f"s_mov_b32 {sr(sRQ)}, {sr(sH)}")
    elif rq == "f": A(f"s_lshl_b32 {sr(sRQ)}, {sr(sB)}, 1"); A(f"s_add_u32 {sr(sRQ)}, {sr(sRQ)}, {sr(sH)}")
    elif rq == "g": A(f"s_add_u32 {sr(sRQ)}, {sr(sB)}, {sr(sH)}")
    A(f"v_lshrrev_b32 {vr(u0)}, 6, v0")
    A(f"v_and_b32 {vr(ln)}, 63, v0")
    A(f"v_readfirstlane_b32 {sr(sWAVE)}, {vr(u0)}")
    A(f"v_lshrrev_b32 {vr(u1)}, 4, {vr(ln)}")
    A(f"v_and_b32 {vr(u2)}, 15, {vr(ln)}")
    A(f"v_lshl_add_u32 {vr(u4)}, {vr(u0)}, 4, {vr(u1)}")
    A(f"v_lshlrev_b32 {vr(u3)}, 1, {vr(u1)}")
    A(f"v_xor_b32 {vr(u3)}, {vr(u3)}, {vr(u2)}")
    A(f"v_lshlrev_b32 {vr(u5)}, 4, {vr(u3)}")
    A(f"v_lshl_add_u32 {vr(vDW)}, {vr(u4)}, 13, {vr(u5)}")
    A(f"v_xor_b32 {vr(vDW+1)}, 0x80, {vr(vDW)}")
    if NOSWAP:
        A(f"v_lshlrev_b32 {vr(u3)}, 2, {vr(u1)}"); A(f"v_xor_b32 {vr(u3)}, {vr(u3)}, {vr(u2)}"); A(f"v_lshlrev_b32 {vr(u3)}, 4, {vr(u3)}")
        A(f"v_lshl_add_u32 {vr(vDW)}, {vr(u4)}, 13, {vr(u3)}"); A(f"v_mov_b32 {vr(vDW+1)}, {vr(vDW)}")
    A(f"v_lshrrev_b32 {vr(u3)}, 3, {vr(ln)}")
    A(f"v_lshl_add_u32 {vr(u0)}, {vr(u0)}, 6, {vr(u3)}")
    A(f"v_and_b32 {vr(u3)}, 7, {vr(ln)}")
    A(f"v_xor_b32 {vr(u3)}, {vr(u1)}, {vr(u3)}")
    A(f"v_lshlrev_b32 {vr(u3)}, 4, {vr(u3)}")
    A(f"v_lshl_add_u32 {vr(vDX)}, {vr(u0)}, 10, {vr(u3)}")
    A(f"v_xor_b32 {vr(vDX+1)}, 64, {vr(vDX)}")
    A(f"s_lshl_b32 {sr(sW4K)}, {sr(sWAVE)}, 12")
    A(f"s_lshl_b32 {sr(sW8K)}, {sr(sWAVE)}, 13")
    A(f"s_lshl_b32 {sr(sT)}, {sr(sB)}, 18")
    A(f"s_lshl_b32 {sr(sT+1)}, {sr(sH)}, 8")
    A("s_waitcnt lgkmcnt(0)")
    o += stamp()
    o += srd_at(sWQ, 6, sr(sT+1), 511*8192 + 256)
    o += srd_at(sX, 0, sr(sT), 0x40000)
    return o

def wo_piece_addr():
    return [f"v_lshrrev_b32 {vr(u0)}, 5, v0", f"v_and_b32 {vr(u1)}, 0x1e, {vr(u0)}", f"v_and_b32 {vr(u0)}, 1, {vr(u0)}",
            f"v_lshl_add_u32 {vr(u0)}, {vr(u1)}, 2, {vr(u0)}",
            f"v_and_b32 {vr(u1)}, 31, v0", f"v_lshlrev_b32 {vr(u1)}, 4, {vr(u1)}", f"v_lshl_add_u32 {vr(vWOF)}, {vr(u0)}, 10, {vr(u1)}"]
def wo_piece_dma():
    o = [m0_at(LWO)]
    for p in range(4):
        o.append(f"s_mov_b32 {sr(sDT)}, {1024*p}")
        o.append(f"buffer_load_dwordx4 {vr(vWOF)}, {sr(sWO2,4)}, {sr(sDT)} offen offset:{1024*p} nt lds ; #wo")
    return o

def warm_loads(nst):
    o = []; A = o.append
    A(f"v_lshrrev_b32 {vr(u3)}, 6, v0"); A(f"v_and_b32 {vr(u2)}, 15, v0"); A(f"v_lshl_add_u32 {vr(u3)}, {vr(u3)}, 4, {vr(u2)}")
    A(f"v_and_b32 {vr(u1)}, {nst - 1}, {vr(u3)}"); A(f"v_add_u32 {vr(u1)}, {sr(sRQ)}, {vr(u1)}"); A(f"v_add_u32 {vr(u1)}, 1, {vr(u1)}")
    A(f"v_and_b32 {vr(u1)}, 7, {vr(u1)}")
    A(f"v_lshrrev_b32 {vr(u2)}, 1, {vr(u3)}")
    A(f"v_lshlrev_b32 {vr(u0)}, 7, {vr(u1)}"); A(f"v_lshl_add_u32 {vr(u0)}, {vr(u2)}, 10, {vr(u0)}")
    A(f"s_and_b32 {sr(sT)}, {sr(sH)}, 7"); A(f"s_lshl_b32 {sr(sT)}, {sr(sT)}, 15")
    A(f"buffer_load_dword {vr(vDUM[1])}, {vr(u0)}, {sr(sX,4)}, {sr(sT)} offen ; #warm")
    A(f"v_lshlrev_b32 {vr(u0)}, 19, {vr(u1)}")
    A(f"v_lshrrev_b32 {vr(u3)}, 1, {vr(u2)}"); A(f"v_lshl_add_u32 {vr(u0)}, {vr(u3)}, 13, {vr(u0)}")
    A(f"v_and_b32 {vr(u3)}, 1, {vr(u2)}"); A(f"v_lshl_add_u32 {vr(u0)}, {vr(u3)}, 7, {vr(u0)}")
    A(f"s_and_b32 {sr(sT)}, {sr(sB)}, 3"); A(f"s_lshl_b32 {sr(sT)}, {sr(sT)}, 17")
    A(f"buffer_load_dword {vr(vDUM[2])}, {vr(u0)}, {sr(sWQ,4)}, {sr(sT)} offen ; #warm")
    return o

def setup_b():
    o = []; A = o.append
    A(f"s_lshl_b32 {sr(sT+2)}, {sr(sB)}, 5"); A(f"s_add_u32 {sr(sT+2)}, {sr(sT+2)}, {sr(sH)}")
    A(f"s_lshl_b32 {sr(sT)}, {sr(sT+2)}, 18")
    o += srd_at(sK, 2, sr(sT), 0x40000)
    o += srd_at(sV, 4, sr(sT), 0x40000)
    A(f"s_lshl_b32 {sr(sT+1)}, {sr(sT+2)}, 7"); A(f"s_add_u32 {sr(sT+1)}, {sr(sT+1)}, {FLAG_OFF}")
    o += srd_at(sFL, 14, sr(sT+1), 32)

    o += srd_at(sDB, 12, "0", 256)
    A(f"s_and_b32 {sr(sT+1)}, {sr(sT+2)}, 3"); A(f"s_lshl_b32 {sr(sT+1)}, {sr(sT+1)}, 6")
    o += srd_at(sDBW, 12, sr(sT+1), 4)
    A(f"s_lshr_b32 {sr(sT)}, {sr(sT+2)}, 1"); A(f"s_and_b32 {sr(sT+2)}, {sr(sT+2)}, 1")
    A(f"s_lshl_b32 {sr(sT+1)}, {sr(sT)}, 15"); A(f"s_lshl_b32 {sr(sT+3)}, {sr(sT+2)}, 9"); A(f"s_add_u32 {sr(sT+1)}, {sr(sT+1)}, {sr(sT+3)}")
    o += srd_at(sWO2, 8, sr(sT+1), 31*1024 + 512)
    A(f"s_lshl_b32 {sr(sT+2)}, {sr(sT+2)}, 2"); A(f"s_add_u32 {sr(sT+2)}, {sr(sT+2)}, {sr(sWAVE)}"); A(f"s_lshl_b32 {sr(sT+2)}, {sr(sT+2)}, 19")
    A(f"s_lshl_b32 {sr(sT)}, {sr(sT)}, 11"); A(f"s_add_u32 {sr(sT)}, {sr(sT)}, {sr(sT+2)}"); A(f"s_add_u32 {sr(sT)}, {sr(sT)}, {WOF_OFF}")
    o += srd_at(sWS2, 14, sr(sT), 262144 + 2048)
    A(f"s_lshl_b32 {sr(sT)}, {sr(sB)}, 2"); A(f"s_add_u32 {sr(sT)}, {sr(sT)}, {sr(sWAVE)}"); A(f"s_lshl_b32 {sr(sT)}, {sr(sT)}, 19")
    A(f"s_lshl_b32 {sr(sT+1)}, {sr(sH)}, 13"); A(f"s_add_u32 {sr(sT)}, {sr(sT)}, {sr(sT+1)}")
    o += srd_at(sO, 14, sr(sT), 262144 + 8192)
    if CFG.get("fewst"):
        A(f"s_cmp_eq_u32 {sr(sMT)}, 0"); A(f"s_cselect_b32 {sr(sO+2)}, {sr(sO+2)}, 0")
    rot = CFG.get("rot", "o")
    if rot == "j": A(f"s_lshr_b32 {sr(sROT)}, s2, 3"); A(f"s_add_u32 {sr(sROT)}, {sr(sROT)}, s2")
    elif rot == "b": A(f"s_lshl_b32 {sr(sROT)}, {sr(sB)}, 1"); A(f"s_lshr_b32 {sr(sT)}, {sr(sH)}, 4"); A(f"s_add_u32 {sr(sROT)}, {sr(sROT)}, {sr(sT)}")
    elif rot == "o": A(f"s_lshl_b32 {sr(sROT)}, {sr(sB)}, 2"); A(f"s_lshr_b32 {sr(sT)}, {sr(sH)}, 3"); A(f"s_add_u32 {sr(sROT)}, {sr(sROT)}, {sr(sT)}")
    elif rot == "q": A(f"s_lshl_b32 {sr(sROT)}, {sr(sB)}, 3"); A(f"s_lshr_b32 {sr(sT)}, {sr(sH)}, 2"); A(f"s_add_u32 {sr(sROT)}, {sr(sROT)}, {sr(sT)}")
    else: A(f"s_mov_b32 {sr(sROT)}, 0")
    A(f"s_mov_b32 {sr(sTK)}, 0")
    for i_, bit in enumerate(TB):
        A(f"s_bfe_u32 {sr(sT)}, {sr(sROT)}, {0x10000 + i_:#x}"); A(f"s_lshl_b32 {sr(sT)}, {sr(sT)}, {bit}"); A(f"s_or_b32 {sr(sTK)}, {sr(sTK)}, {sr(sT)}")
    A(f"s_mov_b32 {sr(sTILE)}, {sr(sTK)}")
    if CFG.get("itst"): A("s_mov_b32 s42, 0"); A("s_mov_b32 s43, 0x100")
    A(f"s_mov_b32 {sr(sTHR)}, 0x41000000")
    c = math.log2(math.e) / math.sqrt(128.0)
    A(f"s_mov_b32 {sr(sSC)}, 0x{struct.unpack('<I', struct.pack('<f', c))[0]:08x}")
    A(f"v_mov_b32 {vr(u4)}, 0")
    for i_, bit in enumerate(RB):
        A(f"v_bfe_u32 {vr(u3)}, v0, {4 + i_}, 1"); A(f"v_lshl_add_u32 {vr(u4)}, {vr(u3)}, {bit - 8}, {vr(u4)}")
    A(f"v_lshl_add_u32 {vr(vDV)}, {vr(u4)}, 8, {vr(u5)}")
    A(f"v_xor_b32 {vr(vDV+1)}, 0x80, {vr(vDV)}")
    g_, c16 = u1, u2
    A(f"v_lshrrev_b32 {vr(g_)}, 4, {vr(ln)}")
    A(f"v_and_b32 {vr(c16)}, 15, {vr(ln)}")
    A(f"v_xor_b32 {vr(u3)}, {vr(g_)}, {vr(c16)}")
    A(f"v_lshlrev_b32 {vr(u3)}, 4, {vr(u3)}")
    A(f"v_lshl_add_u32 {vr(vDK)}, {vr(u4)}, 8, {vr(u3)}")
    for p in range(1, 4): A(f"v_xor_b32 {vr(vDK+p)}, {64*p}, {vr(vDK)}")
    if P17:
        for p in (2, 3): A(f"v_add_u32 {vr(vDK+p)}, {131072 - 2048}, {vr(vDK+p)}")
    if CONT:
        A(f"s_lshl_b32 {sr(sW1K)}, {sr(sWAVE)}, 10")
        A(f"v_lshrrev_b32 {vr(vDK+1)}, 4, v0")
        A(f"v_xor_b32 {vr(vDK+2)}, {vr(vDK+1)}, {vr(c16)}"); A(f"v_lshlrev_b32 {vr(vDK+2)}, 4, {vr(vDK+2)}")
        A(f"v_lshl_add_u32 {vr(vDK)}, {vr(vDK+1)}, 8, {vr(vDK+2)}")
        A(f"v_and_b32 {vr(vDK+2)}, 7, {vr(vDK+1)}"); A(f"v_lshlrev_b32 {vr(vDK+2)}, 1, {vr(vDK+2)}")
        A(f"v_xor_b32 {vr(vDK+2)}, {vr(vDK+2)}, {vr(c16)}"); A(f"v_lshlrev_b32 {vr(vDK+2)}, 4, {vr(vDK+2)}")
        A(f"v_lshl_add_u32 {vr(vDV)}, {vr(vDK+1)}, 8, {vr(vDK+2)}")
    A(f"v_lshl_add_u32 {vr(vKA)}, {vr(c16)}, 8, {vr(u3)}")
    for s in range(1, 4): A(f"v_xor_b32 {vr(vKA+s)}, {64*s}, {vr(vKA)}")
    A(f"v_lshrrev_b32 {vr(u3)}, 1, {vr(c16)}")
    A(f"v_xor_b32 {vr(u3)}, {vr(g_)}, {vr(u3)}")
    A(f"v_lshlrev_b32 {vr(u3)}, 4, {vr(u3)}")
    A(f"v_lshl_add_u32 {vr(u3)}, {vr(c16)}, 7, {vr(u3)}")
    A(f"v_add_u32 {vr(u3)}, {sr(sW8K)}, {vr(u3)}")
    for sl in range(2):
        A(f"v_add_u32 {vr(vXA+2*sl)}, {LX[sl]}, {vr(u3)}")
        A(f"v_xor_b32 {vr(vXA+2*sl+1)}, 64, {vr(vXA+2*sl)}")
    A(f"v_cmp_eq_u32 vcc, 0, {vr(c16)}")
    A(f"v_mov_b32 {vr(u3)}, 0x3f803f80")
    r_, f_, c8 = u0, u4, u5
    A(f"v_bfe_u32 {vr(r_)}, {vr(ln)}, 2, 2")
    for j in range(4): A(f"v_cndmask_b32 {vr(vONES+j)}, 0, {vr(u3)}, vcc")
    A(f"v_bfe_u32 {vr(f_)}, {vr(ln)}, 2, 3")
    A(f"v_and_b32 {vr(c8)}, 3, {vr(ln)}")
    A(f"v_lshlrev_b32 {vr(c8)}, 3, {vr(c8)}")
    A(f"v_lshrrev_b32 {vr(u3)}, 2, {vr(ln)}")
    A(f"v_lshlrev_b32 {vr(vWOA)}, 9, {vr(u3)}")
    A(f"v_lshl_add_u32 {vr(vWOA)}, {vr(c8)}, 1, {vr(vWOA)}")
    A(f"s_lshl_b32 {sr(sT)}, {sr(sWAVE)}, 7"); A(f"s_add_u32 {sr(sT)}, {sr(sT)}, {LWO}")
    A(f"v_add_u32 {vr(vWOA)}, {sr(sT)}, {vr(vWOA)}")
    A(f"v_lshl_add_u32 {vr(c8)}, {vr(f_)}, 5, {vr(c8)}")
    A(f"v_lshl_add_u32 {vr(u3)}, {vr(u3)}, 8, {vr(c8)}")
    A(f"v_add_u32 {vr(vVA)}, {LV}, {vr(u3)}")
    for dt in range(1, 8): A(f"v_xor_b32 {vr(vVA+dt)}, {32*dt}, {vr(vVA)}")
    A(f"v_lshl_add_u32 {vr(u3)}, {vr(g_)}, 3, {vr(r_)}")
    A(f"v_lshl_add_u32 {vr(u3)}, {vr(u3)}, 8, {vr(c8)}")
    if NOSWAP:
        A(f"v_and_b32 {vr(u3)}, 0xff00, {vr(u3)}"); A(f"v_lshl_add_u32 {vr(u3)}, {vr(r_)}, 6, {vr(u3)}")
        A(f"v_and_b32 {vr(c8)}, 3, {vr(ln)}"); A(f"v_lshl_add_u32 {vr(u3)}, {vr(c8)}, 4, {vr(u3)}")
        A(f"v_add_u32 {vr(vWA)}, {LWQ[0]}, {vr(u3)}")
        for k in range(1, 4): A(f"v_xor_b32 {vr(vWA+k)}, {64*k}, {vr(vWA)}")
    else:
        A(f"v_add_u32 {vr(vWA)}, {LWQ[0]}, {vr(u3)}")
        for dt in range(1, 8): A(f"v_xor_b32 {vr(vWA+dt)}, {32*dt}, {vr(vWA)}")
    A(f"v_lshlrev_b32 {vr(vWOS)}, 4, {vr(ln)}")
    A(f"v_add_u32 {vr(vLIN)}, {sr(sW4K)}, {vr(vWOS)}")
    o += wo_piece_addr()
    o += phase_c_early()
    return o

def wo_reads():
    return [f"ds_read_b64_tr_b16 {ar(192+4*i+2*tt,2)}, {vr(vWOA)} offset:{(i//2)*64 + (i%2)*8 + tt*8192} ; #wo" for i in range(4) for tt in range(2)]
def wo_stores():
    return [[f"s_mov_b32 {sr(sT)}, {(i//2)*262144}", f"buffer_store_dwordx4 {ar(192+4*i,4)}, {vr(vWOS)}, {sr(sWS2,4)}, {sr(sT)} offen offset:{(i%2)*1024} sc1 ; #wst"] for i in range(4)]

def pairs(lst): return [lst[i:i+2] for i in range(0, len(lst), 2)]
def prologue():
    qs = stamp if CFG["qst"] else (lambda: [])
    o = setup_a()
    nw = int(CFG.get("nwarm", 2))
    if CFG.get("warmfirst"): o += warm_loads(nw)
    o += flat(qp_dma(0))
    if not CFG.get("warmfirst"): o += (warm_loads(nw) if nw else [])
    o += qs()
    o += setup_b()
    pt = CFG.get("pt", "")
    def pretouch(j, kind):
        if kind == "st": return [f"s_mov_b32 {sr(sDT)}, {j * 262144}", f"buffer_store_dword {vr(vWOF+1)}, {vr(vWOF+1)}, {sr(sO,4)}, {sr(sDT)} offen sc1 ; #pt"]
        if kind == "at": return [f"s_mov_b32 {sr(sDT)}, {j * 262144}", f"buffer_atomic_or {vr(vWOF+1)}, {vr(vWOF+1)}, {sr(sO,4)}, {sr(sDT)} offen sc1 ; #pt"]
        return [f"s_mov_b32 {sr(sDT)}, {j * 262144}", f"buffer_load_dword {vr(vWOF+2+j)}, {vr(vWOF+1)}, {sr(sO,4)}, {sr(sDT)} offen sc1 ; #pt"]
    if pt: o += [f"v_lshlrev_b32 {vr(vWOF+1)}, 3, {vr(vWOS)}"]
    if pt and pt[2:] == "0": o += pretouch(0, pt[:2]) + pretouch(1, pt[:2])
    prek = [x for x in CFG.get("prek", "").split(",") if x]
    for n in prek: o += (wo_piece_dma() if n == "wo" else kv_batch(n[0], int(n[1:])))
    if CFG.get("kvtlb"):
        o += [f"buffer_load_dword {ar(0)}, off, {sr(sK,4)}, 0 nt ; #tl", f"buffer_load_dword {ar(1)}, off, {sr(sV,4)}, 0 nt ; #tl"]
    o += qs()
    o += ["@wait st0", "s_barrier"] + stamp()
    kv = lambda *l: groups_of(sum([kv_batch(x[0], int(x[1:])) for x in l], []))
    bg = [int(x) for x in CFG.get("bg", "38,38,38,38,30,10,-14").split(",")]
    step = float(CFG.get("qstep", 4))
    B = [64 * s + bg[s] for s in range(7)]
    seq = [(st, dt, qb) for st in range(6) for dt in range(8) for qb in range(4) for i in range(2)]
    mf = sum([qp_mfmas(st) for st in range(6)], [])
    for st, qb in ((6, 0), (6, 1), (7, 0), (7, 1), (6, 2), (6, 3), (7, 2), (7, 3)):
        mf += qp_q(st, qb); seq += [(st, dt, qb) for dt in range(8) for i in range(2)]
    Q0 = len(mf)
    mf += [qk_one(0, kb, qb, (i if kb % 2 == 0 else 3 - i), i == 0, czero=True) for qb in range(4) for kb in range(4) for i in range(4)]
    first = {}; last = {}
    for g, (st, dt, qb) in enumerate(seq):
        for t in (f"x{st}_{qb}", f"w{st}_{dt}"):
            first.setdefault(t, g); last[t] = g
    xt = lambda k: ",".join(f"x{k}_{q}" for q in range(4))
    wt = lambda k: ",".join(f"w{k}_{d}" for d in range(8))
    nvm = {}; pre = {}; vm = {}
    def put_vm(g, grp):
        while g in vm or g in B: g += 1
        vm[g] = grp; return g
    npre = int(CFG.get("npre", 16)); nd1 = int(CFG.get("nd1", 6))
    r0 = qp_reads(0); d1 = qp_dma(1)
    o += r0[:npre] + flat(d1[:nd1])
    pos = -2
    for grp in d1[nd1:]: pos += 3; put_vm(int(pos), grp)
    XW = int(CFG.get("xw", 18))
    ekp = [x for x in CFG.get("ekp", "").split(",") if x]
    ek = dict(x.split(":") for x in CFG.get("ek", "5:K0").split(",") if x)
    for k in range(2, 8):
        for i, grp in enumerate(qp_dma(k)):
            e = 0 if k == 2 else (B[k-3] + 1 if i < 4 else B[k-3] + XW)
            if k == 7 and i >= 4: e = max(e, 0)
            pos = max(pos + step, e)
            if i == 4: grp = [f"@wait - lds={xt(k-2)}"] + grp
            put_vm(int(pos), grp)
        for n in ekp:
            j = k - int(CFG.get("ekp0", 3))
            if 0 <= j < 4:
                G_ = groups_of(wo_piece_dma()) if n == "wo" else kv(n)
                head = G_[0][:-1] if n != "wo" else G_[0][:1]
                grp = head + (G_[j] if (j or n == "wo") else G_[0][-1:]) if not (n == "wo" and j == 0) else G_[0]
                pos += 4; put_vm(int(pos), grp)
        if pt and pt[2:] != "0" and k - int(pt[2:]) in (0, 2):
            pos += 3; put_vm(int(pos), pretouch((k - int(pt[2:])) // 2, pt[:2]))
        if str(k) in ek:
            for grp in (groups_of(wo_piece_dma()) if ek[str(k)] == "wo" else kv(ek[str(k)])):
                pos += 3; put_vm(int(pos), grp)
    kstep = float(CFG.get("kstep", 9))
    LATEWO = CFG.get("latewo", False)
    BK, BQ = 384 + int(CFG.get("bk", 94)), Q0 + int(CFG.get("bq", 56))
    sched = [("K0", 0), ("wo", 0), ("K1", 0), ("V0", B[5] + 1), ("K2", BK + 1), ("V1", BK + 1)]
    if LATEWO: sched = [("K0", 0), ("K1", 0), ("V0", B[5] + 1), ("wo", 0), ("K2", BK + 1), ("V1", BK + 1)]
    for n, e in sched:
        if n in ek.values() or n in prek or n in ekp: continue
        for grp in (groups_of(wo_piece_dma()) if n == "wo" else kv(n)):
            pos = max(pos + (3 if n == "K0" and LATEWO else (float(CFG.get("kstep2", kstep)) if n in ("K2", "V1") else kstep)), e)
            put_vm(int(pos), grp)
    assert pos < Q0 + 64, pos
    if CFG["verbose"]: print("vm gaps:", sorted(vm))
    items = [(0, x) for x in r0[npre:]]
    for st in range(1, 8): items += [(st, x) for x in qp_reads(st)]
    R = []
    for st, x in items:
        t = x.split("#")[1]
        e = 0 if st == 0 else B[st-1] + 1
        if st >= 2: e = max(e, last[t[0] + str(st - 2) + t[2:]])
        d = first[t] - LAT
        if st < 7: d = min(d, B[st] - 8)
        if t[0] == "x" and 1 <= st <= 5: d = min(d, B[st-1] + XW - 7)
        R.append([e, max(d, e), x])
    R.sort(key=lambda r: (r[1], r[0]))
    rstep = float(CFG.get("rstep", 1.3)); nxt = 0
    for g in range(Q0):
        if g in vm or g in B: continue
        k = 0
        while k < 2:
            c = [r for r in R if r[0] <= g]
            if not c: break
            urgent = any(r[1] - g < i * 1.3 + 1 for i, r in enumerate(c))
            if not urgent and (k == 1 or g < nxt): break
            nvm.setdefault(g, []).append(c[0][2]); R.remove(c[0]); k += 1; nxt = g + rstep
    assert not R, R[:3]
    for t, g in first.items():
        (nvm.setdefault(g - 1, []) if g else o).insert(0 if g else len(o), f"@wait - lds={t}")
    for s in range(7):
        pre.setdefault(B[s], []).append(f"@wait st{s+1} lds={xt(s)},{wt(s)}")
        nvm.setdefault(B[s], []).append("s_barrier")
        if CFG["qst"]: pre[64 * s] = qs() + pre.get(64 * s, [])
    w0 = BQ if LATEWO else Q0
    nvm = merge(nvm, spread(pairs(wo_reads()), [g for g in range(w0 + 1, min(w0 + 12, Q0 + 64)) if g not in vm]))
    pre.setdefault(BK, []).append("@wait K0" if LATEWO else "@wait K0,wo"); nvm.setdefault(BK, []).append("s_barrier")
    nvm = merge(nvm, spread(pairs([rd_k(0, n) for n in range(16)]), [g for g in range(max(384 + 96, BK + 1), 384 + 122) if g not in vm]))
    pre.setdefault(Q0, []).append("@wait - lgkm=0"); pre[Q0] = stamp() + pre[Q0]
    pre.setdefault(BQ, []).append("@wait K1,V0,wo" if LATEWO else "@wait K1,V0 lds=wo"); nvm.setdefault(BQ, []).append("s_barrier")
    assert max(vm) < Q0 + 57
    nvm = merge(nvm, {Q0 + 57: [f"s_mov_b32 {sr(sTILE)}, {sr(sTK)}"], Q0 + 61: [f"s_mov_b32 {sr(sCNT)}, 0"]}, {Q0 + 58 + j_: [x] for j_, x in enumerate(tinc(sTK))})
    for g in sorted(vm):
        grp = vm[g]; sca = grp[:-1]
        prevv = max([x for x in vm if x < g], default=-1)
        gg = g
        for x in reversed(sca):
            nvm.setdefault(gg, []).insert(0, x)
            if gg - 1 > prevv and gg > 0: gg -= 1
        nvm.setdefault(g, []).append(grp[-1])
    va = [(f"v_accvgpr_write_b32 {ar(r)}, 0", 0, "z") for r in list(range(2, 128)) + [0, 1]]
    done = {0: 384 + 32, 1: 384 + 48, 2: 384 + 96, 3: 384 + 112}
    for qb in range(4):
        va += [(t, done[qb] + 4 * s + 3 + 3, f"q{qb}") for t, s in qconv_stream(qb)]
    va += [(f"v_mov_b32 {vr(vL+j)}, 0", Q0, "z") for j in range(16)]
    def initq(qb):
        n = vNEG + 4 * qb
        l = qmax(0, qb, n)
        for sw in ("v_permlane32_swap_b32", "v_permlane16_swap_b32"):
            l += [f"v_mov_b32 {vr(n+1)}, {vr(n)}", "s_nop 1", f"{sw} {vr(n)}, {vr(n+1)}", f"v_max_f32 {vr(n)}, {vr(n)}, {vr(n+1)}"]
        l += [f"v_sub_f32 {vr(n+j)}, 0, {vr(n)}" for j in (3, 2, 1, 0)]
        for ks in range(2):
            r = Ureg(0, ks, qb)
            l += [f"v_add_f32 {vr(r+j)}, {vr(r+j)}, {vr(n + j % 2)}" for j in range(8)]
        return l
    for qb in range(4): va += [(t, Q0 + 16 * qb + 15 + 3, "i") for t in initq(qb)]
    part, left = weave(mf, nvm, va, pre=pre, need={Q0 + 16 * q: f"q{q}" for q in range(4)})
    for k in range(1, 6):
        assert max(i for i, x in enumerate(part) if f"#x{k}_" in x) < part.index(f"@wait - lds={xt(k)}"), k
    for k in range(0, 6):
        assert max(i for i, x in enumerate(part) if f"#w{k}_" in x) < part.index(f"@wait st{k+1} lds={xt(k)},{wt(k)}"), k
    o += part
    o += qs()
    o += [rd_k(1, n) for n in EARLY_K]
    o += [f"v_mov_b32 {vr(vT+j)}, 0" for j in range(4)]
    o.append(f"buffer_store_dwordx4 {vr(vT,4)}, {vr(vLIN)}, {sr(sFL,4)}, 0 offen sc1 ; #wst")
    if CFG["verbose"]: print("QK0 leftover VALU:", len(left))
    ini = []
    lf_ = [t for t, _, _ in left]
    i = 0
    while i < len(lf_):
        m1 = re.match(r"v_add_f32 v(\d+), v\d+, v(\d+)", lf_[i])
        if m1 and int(m1.group(1)) % 2 == 0 and i + 1 < len(lf_) and lf_[i+1].startswith(f"v_add_f32 v{int(m1.group(1))+1},"):
            r = int(m1.group(1)); ini.append(f"v_pk_add_f32 {vr(r,2)}, {vr(r,2)}, {vr(int(m1.group(2)),2)}"); i += 2
        else: ini.append(lf_[i]); i += 1
    ex_ = [exp_i(0, it[1]) for it in E_FIRST if it[0] == "exp"]; cv_ = [cvt_i(0, it[1]) for it in E_FIRST if it[0] == "cvt"]
    ini += ex_ + cv_
    G = wo_stores() + (kv("K3", "V2") if DIST == 4 else [])
    G[0] = ["@wait - lds=wo"] + G[0]
    for i, g in enumerate(G):
        k = (i + 1) * len(ini) // (len(G) + 1)
        ini = ini[:k] + g + ini[k:]
    o += ini
    if CFG.get("nomax"): o.append("s_mov_b64 vcc, 0")
    o.append("@wait - lds=k0,k1,k2,k3")
    o += stamp()
    qd = CFG.get("qdiag", "")
    if "x" in qd: o = [x for x in o if not (re.search(r"#st[2-7]", x) and f"{sr(sX,4)}" in x)]
    if "r" in qd: o = [x for x in o if not re.search(r"#x[2-7]_", x)]
    if "w" in qd: o = [x for x in o if not (re.search(r"#st[2-7]", x) and f"{sr(sWQ,4)}" in x)]
    if "v" in qd: o = [x for x in o if not re.search(r"#w[2-7]_", x)]
    o, fifo, lf = resolve(o, [])
    return o, fifo, lf

sOFS = [64, 65, 3, 31, 98]
def phase_c_early():
    o = []; A = o.append
    t0, t1, t2 = sT, sT + 1, sT + 2
    A(f"s_lshr_b32 {sr(sHO)}, {sr(sH)}, 3")
    if CFG.get("hord", "m") == "c":
        A(f"s_and_b32 {sr(t0)}, {sr(sB)}, 3"); A(f"s_lshl_b32 {sr(t0)}, {sr(t0)}, 1"); A(f"s_and_b32 {sr(t1)}, {sr(sH)}, 1"); A(f"s_add_u32 {sr(t0)}, {sr(t0)}, {sr(t1)}")
        A(f"s_sub_u32 {sr(t1)}, {sr(sH)}, {sr(t0)}"); A(f"s_and_b32 {sr(t1)}, {sr(t1)}, 7"); A(f"s_lshl_b32 {sr(t0)}, {sr(t0)}, 13")
        A(f"s_and_b32 {sr(sHP)}, {sr(sH)}, 7"); A(f"s_lshl_b32 {sr(sHP)}, {sr(sHP)}, 13")
        for p in range(1, 8):
            A(f"s_cmp_gt_u32 {sr(t1)}, {p-1}"); A(f"s_cselect_b32 {sr(sHP+p)}, {p-1}, {p}")
            A(f"s_lshl_b32 {sr(sHP+p)}, {sr(sHP+p)}, 13"); A(f"s_add_u32 {sr(sHP+p)}, {sr(sHP+p)}, {sr(t0)}"); A(f"s_and_b32 {sr(sHP+p)}, {sr(sHP+p)}, 0xffff")
    else:
        A(f"s_and_b32 {sr(t0)}, {sr(sB)}, 3"); A(f"s_lshl_b32 {sr(t0)}, {sr(t0)}, 14"); A(f"s_add_u32 {sr(t0)}, {sr(t0)}, 8192")
        A(f"s_and_b32 {sr(sHP)}, {sr(sH)}, 7"); A(f"s_lshl_b32 {sr(sHP)}, {sr(sHP)}, 13")
        for p in range(1, 8):
            A(f"s_add_u32 {sr(sHP+p)}, {sr(sHP+p-1)}, {sr(t0)}"); A(f"s_and_b32 {sr(sHP+p)}, {sr(sHP+p)}, 0xffff")
    A(f"s_lshl_b32 {sr(sW2K)}, {sr(sWAVE)}, 11")
    A(f"s_and_b32 {sr(t0)}, {sr(sH)}, 6"); A(f"s_lshl_b32 {sr(t0)}, {sr(t0)}, 1"); A(f"s_add_u32 {sr(t0)}, {sr(t0)}, {sr(sWAVE)}")
    A(f"s_lshl_b32 {sr(t0)}, {sr(t0)}, 18"); A(f"s_lshl_b32 {sr(t2)}, {sr(sHO)}, 16"); A(f"s_add_u32 {sr(t0)}, {sr(t0)}, {sr(t2)}")
    A(f"s_add_u32 {sr(t0)}, {sr(t0)}, {WOF_OFF}"); A(f"s_sub_u32 {sr(t0)}, {sr(t0)}, {sr(sW4K)}")
    A(f"s_mov_b32 {sr(sOFS[0])}, {sr(t0)}")
    A(f"s_and_b32 {sr(t0)}, {sr(sH)}, 1"); A(f"s_lshl_b32 {sr(t1)}, {sr(sB)}, 1"); A(f"s_add_u32 {sr(t0)}, {sr(t0)}, {sr(t1)}")
    A(f"s_lshl_b32 {sr(t1)}, {sr(t0)}, 20"); A(f"s_add_u32 {sr(t1)}, {sr(t1)}, {sr(t2)}")
    A(f"s_mov_b32 {sr(sOFS[1])}, {sr(t1)}")
    A(f"s_lshl_b32 {sr(t0)}, {sr(t0)}, 17"); A(f"s_lshl_b32 {sr(t1)}, {sr(sHO)}, 15"); A(f"s_add_u32 {sr(t0)}, {sr(t0)}, {sr(t1)}")
    A(f"s_and_b32 {sr(t1)}, {sr(sH)}, 6"); A(f"s_lshl_b32 {sr(t1)}, {sr(t1)}, 7"); A(f"s_add_u32 {sr(t0)}, {sr(t0)}, {sr(t1)}")
    o += srd_at(sOUT, 10, sr(t0), 31 * 1024 + 256)
    A(f"s_lshl_b32 {sr(t0)}, {sr(sB)}, 12"); A(f"s_lshl_b32 {sr(t1)}, {sr(sHO)}, 10"); A(f"s_add_u32 {sr(t0)}, {sr(t0)}, {sr(t1)}")
    A(f"s_add_u32 {sr(t0)}, {sr(t0)}, {FLAG_OFF}")
    o += srd_at(sFLR, 14, sr(t0), 4)
    A(f"s_and_b32 {sr(t0)}, {sr(sH)}, 7"); A(f"s_lshl_b32 {sr(t1)}, {sr(sB)}, 5"); A(f"s_add_u32 {sr(t0)}, {sr(t0)}, {sr(t1)}")
    A(f"s_lshl_b32 {sr(t1)}, {sr(t0)}, 16"); A(f"s_lshl_b32 {sr(t2)}, {sr(sHO)}, 14"); A(f"s_add_u32 {sr(t1)}, {sr(t1)}, {sr(t2)}")
    A(f"s_add_u32 {sr(t1)}, {sr(t1)}, {PART_OFF}")
    A(f"s_mov_b32 {sr(sOFS[2])}, {sr(t1)}")
    A(f"s_lshl_b32 {sr(t1)}, {sr(t0)}, 7"); A(f"s_lshl_b32 {sr(t2)}, {sr(sHO)}, 2"); A(f"s_add_u32 {sr(t1)}, {sr(t1)}, {sr(t2)}")
    A(f"s_add_u32 {sr(t1)}, {sr(t1)}, {FLAG_OFF + 16}")
    A(f"s_mov_b32 {sr(sOFS[3])}, {sr(t1)}")
    A(f"s_lshl_b32 {sr(t1)}, {sr(sB)}, 5"); A(f"s_add_u32 {sr(t1)}, {sr(t1)}, {sr(sH)}"); A(f"s_lshl_b32 {sr(t1)}, {sr(t1)}, 16")
    A(f"s_add_u32 {sr(t1)}, {sr(t1)}, {PART_OFF}")
    A(f"s_mov_b32 {sr(sOFS[4])}, {sr(t1)}")
    return o

def phase_c_srds():
    return sum([srd_at(s_, 14, sr(f_), n_) for s_, f_, n_ in zip((sWFL, sOL, sPS, sPF2, sPL), sOFS,
                (65536 + 3 * 4096, 3 * 262144 + 65536, 3 * 524288 + 16384, 4, 65536))], [])

def acc(k, q2, t): return vS + 64 + 16 * k + 4 * (q2 * 2 + t)
def gsel(k, dst, sh): return [f"s_add_u32 {sr(dst)}, {sr(sHO)}, {k + 1}", f"s_and_b32 {sr(dst)}, {sr(dst)}, 3", f"s_lshl_b32 {sr(dst)}, {sr(dst)}, {sh}"]
def ofr(u, kl, q2): return 256 + 32 * (u % 2) + 4 * (kl * 2 + q2)
def sub_mfmas(k, v, pos):
    mf = []
    for j, (q2, t) in enumerate(((0, 0), (0, 1), (1, 1), (1, 0))):
        for i in range(4):
            kl = i if j % 2 == 0 else 3 - i
            d = vr(acc(k, q2, t), 4)
            mf.append(f"{MF} {d}, {rr(WREG[(pos * 4 + kl) * 2 + t],4)}, {rr(ofr(v,kl,q2),4)}, {d if (pos or i) else 0}")
    return mf
def tail_and_epilogue(u):
    p = u % 2
    o = []
    reads = [rd_v(slotV(15), n, t) for n in range(16) for t in range(2)]
    er = [(exp_i(p, it[1]), UNITS[it[1] // 8][1]) if it[0] == "exp" else (cvt_i(p, it[1]), UNITS[it[1] // 4][1]) for it in E_REST]
    va = []
    for i, (t, q) in enumerate(er):
        if t.startswith("v_cvt") and i and er[i-1][0].startswith("v_exp"): va.append(("s_nop 0", 0, f"e{q}"))
        va.append((t, 0, f"e{q}"))
    mf = []
    for qb in range(4):
        mf += [sum_one(p, qb, 0), sum_one(p, qb, 1)]
        mf += [pv_one(p, dt, qb, (i if dt % 2 == 0 else 1 - i)) for dt in range(8) for i in range(2)]
    vOST = vCW
    if CFG.get("local"): va.append((f"v_cmp_ne_u32 {sr(sGLB,2)}, {sr(sXCC)}, {vr(vCW)}", 0, "x"))
    va.append((f"v_and_b32 {vr(vOST)}, 0x3ff, {vr(vLIN)}", 0, "x"))
    tmp = 2
    NMF = len(mf)
    fill = {0: [], 1: [], 2: [], 3: []}
    tail_names = CFG.get("tailw", "").split(",")
    post_names = [x for x in ("R3u", "R3", "R5") if x not in tail_names and not (x == "R3u" and CFG.get("r3u"))]
    for qb in range(4):
        e0 = 18 * qb
        lsum = [f"v_mov_b32 {vr(vT+qb)}, {vr(vL+4*qb)}"] + allreduce("v_add_f32", vT + qb, vMX) + [f"v_rcp_f32 {vr(vT+qb)}, {vr(vT+qb)}"]
        va += [(t, max(12, e0 + 1 + 3), f"o{qb}") for t in lsum]
        F = fill[qb]
        for s in range(4):
            e = e0 + 2 + 4 * s + 3 + 3
            b_ = tmp + 8 * (s % 2)
            va += [(f"v_accvgpr_read_b32 {vr(b_+j)}, {ar(Oreg(qb,2*s)+j)}", e, f"o{qb}") for j in range(8)]
            va += [(f"@mul {b_+j} {vT+qb}", e, f"o{qb}") for j in range(8)]
            d = Ureg(p, s // 2, qb) + 4 * (1 - s % 2)
            ee = e0 + 17 if s % 2 == 1 else e
            va += [(f"v_cvt_pk_bf16_f32 {vr(d+j)}, {vr(b_+2*j)}, {vr(b_+2*j+1)}", max(e, ee), f"o{qb}") for j in range(4)]
            ld = flat(F[s * len(F) // 4:(s + 1) * len(F) // 4])
            va += [(t, NMF - 1 if qb == 3 else e, f"o{qb}") for t in ld]
            va += [(f"s_mov_b32 {sr(sT)}, {(qb//2)*262144 + (s//2)*4096}", e, f"o{qb}"),
                   (f"buffer_store_dwordx4 {vr(d,4)}, {vr(vOST)}, {sr(sO,4)}, {sr(sT)} offen offset:{(s%2)*2048 + (qb%2)*1024} {CFG.get('ost', 'plain' if CFG.get('local') else 'sc1').replace('+', ' ').replace('plain', '')} ; #ost", e, f"o{qb}")]
    if CFG.get("tord", True):
        E = {q: [x for x in va if x[2] == f"e{q}"] for q in range(4)}
        X = [x for x in va if x[2] == "x"]
        O_ = {q: [x for x in va if x[2] == f"o{q}"] for q in range(4)}
        rest = E[0] + E[1] + E[2] + E[3]
        n0 = int(CFG.get("tn0", 10))
        head, rest = rest[:n0], rest[n0:]
        r2 = [x for x in rest if x[2] != "e3"]; r3 = [x for x in rest if x[2] == "e3"]
        va = X + head + O_[0] + r2 + O_[1] + r3 + O_[2] + O_[3]
    va = [((f"v_mul_f32 {vr(int(t.split()[1]))}, {vr(int(t.split()[1]))}, {vr(int(t.split()[2]))}" if t.startswith("@mul") else t), e, k) for t, e, k in va]
    o += reads[:12]
    nvm = spread(pairs(reads[12:]), list(range(0, 10)))
    pre = {2 + 2 * dt: [f"@wait - lds=v{2*dt},v{2*dt+1}"] for dt in range(8)}
    early = sum([wo_loads(x) for x in tail_names if x], [])
    if early: nvm = merge(nvm, spread(early, list(range(10, int(CFG.get("tailhi", 44)), 2))))
    part, left = weave(mf, nvm, va, pre=pre, need={18 * q: f"e{q}" for q in range(4)})
    o += part
    o += stamp()
    o.append("s_nop 7")
    lf_ = [t for t, _, _ in left]
    i = 0
    while i < len(lf_):
        m1 = re.match(r"v_mul_f32 v(\d+), v\d+, v(\d+)", lf_[i]); m2 = re.match(r"v_mul_f32 v(\d+), v\d+, v(\d+)", lf_[i+1]) if i + 1 < len(lf_) else None
        if m1 and m2 and int(m1.group(1)) % 2 == 0 and int(m2.group(1)) == int(m1.group(1)) + 1:
            r = int(m1.group(1)); f_ = int(m1.group(2))
            sel = "op_sel_hi:[1,0]" if f_ % 2 == 0 else "op_sel:[0,1] op_sel_hi:[1,1]"
            o.append(f"v_pk_mul_f32 {vr(r,2)}, {vr(r,2)}, {vr(f_ - f_ % 2,2)} {sel}"); i += 2
        else:
            o.append(lf_[i]); i += 1
    A = o.append
    A(f"v_mov_b32 {vr(vMX)}, 1")
    A(f"v_and_b32 {vr(vT)}, 7, v0"); A(f"v_lshlrev_b32 {vr(vT)}, 7, {vr(vT)}")
    A(f"v_add_u32 {vr(vKA)}, 0x10000, {vr(vOST)}")
    A(f"s_mov_b32 {sr(sCNT)}, 0")
    if CFG.get("forceglobal"): A(f"s_mov_b64 {sr(sGLB,2)}, -1")
    if CFG.get("local"): A(f"s_and_b32 {sr(sGLB)}, {sr(sGLB)}, 0xff"); A(f"s_cmp_lg_u32 {sr(sGLB)}, 0")
    mode = CFG.get("sync", "cnt1")
    cnt = mode.startswith("cnt"); one = mode.endswith("1")
    assert cnt
    post = sum([wo_loads(x) for x in post_names], [])
    A(f"s_lshl_b32 {sr(sT)}, {sr(sWAVE)}, 14"); A(f"v_add_u32 v10, {sr(sT)}, {vr(vOST)}")
    for qb in range(4):
        for s_ in range(4):
            d = Ureg(p, s_ // 2, qb) + 4 * (1 - s_ % 2)
            A(f"ds_write_b128 v10, {vr(d,4)} offset:{(qb//2)*8192 + s_*2048 + (qb%2)*1024}")
    A(f"s_and_b32 {sr(sT+1)}, {sr(sH)}, 1"); A(f"s_lshl_b32 {sr(sT+1)}, {sr(sT+1)}, 15")
    for k in range(4):
        o += gsel(k, sT, 13) + [f"s_add_u32 {sr(sT)}, {sr(sT)}, {sr(sT+1)}", f"v_add_u32 {vr(11+k)}, {sr(sT)}, {vr(vOST)}"]
    A("@wait w7 lgkm=0"); A("s_barrier")
    ord_ = lambda k: [f"ds_read_b128 {rr(ofr(k,kl,q2),4)}, {vr(11+k)} offset:{(kl*2+q2)*1024} ; #h{k}_{q2}" for q2 in range(2) for kl in range(4)]
    NB = int(CFG.get("nbef", 2))
    def own(k, extra):
        nv = {7: [f"@wait - lds=h{k}_1"]}
        if k < 3:
            r = ord_(k + 1)
            for j, g in enumerate((0, 2, 4, 6)): nv.setdefault(g, []).extend(r[2*j:2*j+2])
        if extra: nv = merge(nv, spread(extra, [1, 3, 5, 8, 9, 10, 11, 12, 13, 14, 15]))
        return [f"@wait - lds=h{k}_0"] + weave(sub_mfmas(k, k, 0), nv)[0]
    o += ord_(0)
    npre = int(CFG.get("npost", 0))
    for k in range(NB):
        n_ = min(8, npre); o += own(k, post[:n_]); post = post[n_:]; npre -= n_
    A("@wait ost")
    A("s_barrier")
    if cnt: A(f"buffer_atomic_add {vr(vMX)}, {vr(vLIN)}, {sr(sFLR,4)}, 0 offen sc1 ; #flag")
    else: A(f"buffer_store_dword {vr(vMX)}, {vr(vLIN)}, {sr(sFL,4)}, 0 offen sc1 ; #flag")
    o += stamp()
    pl = f"buffer_load_dword {vr(vT+1)}, off, {sr(sFLR,4)}, 0 sc1" if cnt else f"buffer_load_dword {vr(vT+1)}, {vr(vT)}, {sr(sFLR,4)}, 0 offen sc1"
    want = 8 if cnt else 1
    NL = int(CFG.get("nlate", 0)); PL = int(CFG.get("plate", 0))
    latep = post[len(post) - PL:] if PL else []
    latep = [[x.replace(sr(sSP), sr(sTK)) for x in g] for g in latep]
    post = post[:len(post) - PL]
    for k in range(NB, 4 - NL):
        n_ = min(8, len(post)); o += own(k, post[:n_]); post = post[n_:]
    LATE.clear()
    for k in range(4 - NL, 4):
        n_ = min(8, len(latep)); LATE.extend(own(k, latep[:n_])); latep = latep[n_:]
    LATE.extend(flat(latep))
    o += flat(post)
    pw = int(CFG.get("pollwave", 1))
    if one: A(f"s_cmp_lg_u32 {sr(sWAVE)}, {pw}"); A("s_cbranch_scc1 L_go")
    NP_ = int(CFG.get("npoll", 1))
    pr = lambda j: pl.replace(vr(vT+1), vr(vT+j), 1) + " ; #~poll"
    for j in range(NP_ - 1):
        A(pr(j))
        if int(CFG.get("pgap", 0)): A("s_sleep " + str(int(CFG["pgap"])))
    A("L_poll:")
    for j in range(NP_):
        A(pr((j - 1) % NP_))
        A(f"s_waitcnt vmcnt({NP_ - 1}) ; keep")
        A(f"v_cmp_ne_u32 vcc, {want}, {vr(vT+j)}")
        A("s_cbranch_vccz L_go")
    A(f"s_add_u32 {sr(sCNT)}, {sr(sCNT)}, 1")
    A(f"s_cmp_lt_u32 {sr(sCNT)}, {CFG['spin']}")
    A("s_cbranch_scc1 L_poll")
    A("L_go:")
    if one: A("s_barrier")
    if CFG.get("local"): A(f"s_cmp_lg_u32 {sr(sGLB)}, 0"); A("s_cbranch_scc1 L_acq")
    A("L_acq_back:")
    o += stamp()
    return o

STAGED = []
LATE = []
def phase_c():
    o = []; A = o.append
    vOST = vCW
    D = int(CFG.get("cdist", 4))
    NS = 28
    LANDK = {2: vL, 1: vL + 8, 0: 10}
    OWN = acc(3, 0, 0)
    def dma(v):
        k, p = v // 7, 1 + v % 7
        g = []
        if v % 7 == 0: g += gsel(k, sG, 18) + [f"s_add_u32 {sr(sG)}, {sr(sG)}, {sr(sW2K)}"]
        g += [f"s_add_u32 {sr(sSP)}, {sr(sG)}, {sr(sHP+p)}", f"s_add_u32 m0, {sr(sW2K)}, {((v + 8) % 16) * 8192}", "s_nop 0"]
        ld = lambda j: f"buffer_load_dwordx4 {vr(vOST)}, {sr(sOL,4)}, {sr(sSP)} offen offset:{j*1024} sc1 lds ; #c{v}"
        return [g + [ld(0)], [ld(1)]]
    def reads(v):
        base = ((v + 8) % 16) * 8192
        return [f"ds_read_b128 {rr(ofr(v,kl,q2),4)}, {vr(vKA if base >= 65536 else vOST)} offset:{base % 65536 + (kl*2+q2)*1024} ; #u{v}_{q2}" for q2 in range(2) for kl in range(4)]
    N0 = int(CFG.get("n0", 2 * D))
    for v in range(N0): o += flat(dma(v))
    nxv = [N0]
    o += LATE
    BV = [int(x) for x in CFG.get("bv", "1,3,5,7,9,11,13,15,17,19,21,23,25").split(",")]
    o += [f"@wait c{BV[0]}", "s_barrier"] + stamp() + reads(0)
    N1 = int(CFG.get("n1", N0))
    for v in range(N0, N1): o += flat(dma(v))
    nxv = [max(N0, N1)]
    mf = []; nvm = {}; pre = {}; vm = {}
    pfg = int(CFG.get("pfg", 44))
    FB = {}
    for k in range(3): FB[k] = min(v for v in BV if 16 * v >= 112 * (k + 1) + pfg)
    for v in range(NS):
        k = v // 7
        mf += sub_mfmas(k, v, 1 + v % 7)
        g0 = 16 * v
        wt_ = ",".join(f"w{f}" for f in range(8 * (1 + v % 7), 8 * (2 + v % 7)))
        (nvm.setdefault(g0 - 1, []) if v else o).append(f"@wait {wt_} lds=u{v}_0")
        nvm.setdefault(g0 + 7, []).append(f"@wait - lds=u{v}_1")
        if v + 1 < NS:
            if v in BV:
                kk = [x for x in range(3) if FB[x] == v]
                upto = min([x for x in BV if x > v] + [NS - 1])
                assert upto < nxv[0] and upto - v <= 6, (v, upto, nxv)
                pre.setdefault(g0, []).append(f"@wait c{upto}" + (f",p{kk[0]}" if kk else ""))
                nvm.setdefault(g0, []).append("s_barrier")
                if kk:
                    vm[g0 + 2] = gsel(kk[0], sT, 10) + [f"s_add_u32 {sr(sPF2+2)}, {sr(sT)}, 4",
                                   f"buffer_store_dword {vr(vMX)}, {vr(vLIN)}, {sr(sPF2,4)}, {sr(sT)} offen sc1 ; #pf"]
            r = reads(v + 1)
            for j, g in enumerate((1, 3, 6, 8)): nvm.setdefault(g0 + g, []).extend(r[2*j:2*j+2])
        n2 = min(2, NS - nxv[0], v + 2 * D + 1 - nxv[0])
        G_ = sum([dma(nxv[0] + j) for j in range(max(n2, 0))], []); nxv[0] += max(n2, 0)
        for grp, g in zip(G_, (5, 12) if n2 == 1 else (4, 5, 11, 12)): vm[g0 + g] = [x for x in grp if x != "s_nop 0"]
        if v % 7 == 0 and v:
            kk = k - 1
            for q2 in range(2):
                a0 = acc(kk, q2, 0); pk = 2 + 4 * q2; e = g0 - 6 if q2 == 0 else g0 + 2
                for j in range(4): nvm.setdefault(e + (j // 2) * (1 if q2 == 0 else 2), []).append(f"v_cvt_pk_bf16_f32 {vr(pk + j)}, {vr(a0 + 2*j)}, {vr(a0 + 2*j + 1)}")
                g = g0 - 3 if q2 == 0 else g0 + 7
                while g in vm: g += 1
                vm[g] = (gsel(kk, sTK, 19) if q2 == 0 else []) + [f"buffer_store_dwordx4 {vr(pk, 4)}, {vr(vLIN)}, {sr(sPS,4)}, {sr(sTK)} offen offset:{q2*1024} sc1 ; #p{kk}"]
    assert FB[2] < NS - 1
    STAGED.clear()
    em = int(CFG.get("em", 40))
    for n in range(2):
        k = 2 - n
        gp = 16 * FB[n] + 2 + em
        gp = gp - gp % 16 + 9 + (16 if gp % 16 > 9 else 0)
        while gp in vm: gp += 1
        vm[gp] = gsel(k, sTILE, 2) + [f"buffer_load_dword {vr(vT+1)}, off, {sr(sFL,4)}, {sr(sTILE)} offset:16 sc1 ; #e{k}"]
        g1 = gp - gp % 16 + 48 + 9
        nvm.setdefault(g1, []).extend([f"@wait e{k}", f"v_cmp_ne_u32 vcc, 1, {vr(vT+1)}"])
        nvm.setdefault(g1 + 1, []).extend([f"s_cbranch_vccnz L_e{k}", f"L_e{k}_back:"])
        for j, g in enumerate((g1 + 5, g1 + 9)):
            while g in vm: g += 1
            vm[g] = ([f"s_lshl_b32 {sr(sTILE)}, {sr(sTILE)}, 12"] if j == 0 else []) + [f"buffer_load_dwordx4 {vr(LANDK[k] + 4*j, 4)}, {vr(vLIN)}, {sr(sPL,4)}, {sr(sTILE)} offen offset:{j*1024} sc1 ; #l{k}"]
        STAGED.append(k)
    lastpoll = NS * 16 - int(CFG.get("lp", 12))
    vm[lastpoll] = gsel(0, sTILE, 2) + [f"buffer_load_dword {vr(vT+1)}, off, {sr(sFL,4)}, {sr(sTILE)} offset:16 sc1 ; #lp"]
    prev = -1
    for g in sorted(vm):
        grp = vm[g]; sca = grp[:-1]
        lo = max([prev] + [q for q in range(g) if any(x.startswith("L_e") for x in nvm.get(q, []))])
        free = [q for q in range(lo + 1, g) if not any(x.startswith(("s_", "@")) for x in nvm.get(q, []))]
        if len(free) >= len(sca):
            for x, q in zip(sca, free[len(free) - len(sca):]): nvm.setdefault(q, []).insert(0, x)
        elif g - 1 > lo: nvm[g - 1] = sca + nvm.get(g - 1, [])
        else: nvm[g] = sca + ["s_nop 0"] + nvm.get(g, [])
        nvm.setdefault(g, []).append(grp[-1]); prev = g
    ad = ["v_and_b32 v10, 15, v0", "v_lshrrev_b32 v11, 4, v0", "v_lshlrev_b32 v11, 4, v11", "v_lshl_add_u32 v18, v10, 10, v11"]
    def unpack(k):
        u_ = acc(k, 0, 0)
        return [x for j in range(8) for x in (f"v_lshlrev_b32 {vr(u_+2*j)}, 16, {vr(LANDK[k]+j)}", f"v_and_b32 {vr(u_+2*j+1)}, 0xffff0000, {vr(LANDK[k]+j)}")]
    gs = NS * 16 - 44
    va = [(x, 20, "a") for x in ad] + [("@wait l2,l1", gs, "b")] + [(x, gs, "b") for x in unpack(2) + unpack(1)]
    va += [(f"v_add_f32 {vr(acc(1,0,0)+j)}, {vr(acc(1,0,0)+j)}, {vr(acc(2,0,0)+j)}", gs, "b") for j in range(16)]
    part, lft = weave(mf, nvm, va, pre=pre)
    o += part
    o += stamp()
    o += [x for x, _, _ in lft]
    A(f"s_mov_b32 {sr(sCNT)}, 0")
    A("@wait lp")
    A(f"v_cmp_ne_u32 vcc, 1, {vr(vT+1)}")
    A("s_cbranch_vccz L_go2")
    A("L_poll2:")
    A(f"buffer_load_dword {vr(vT+1)}, off, {sr(sFL,4)}, {sr(sTILE)} offset:16 sc1")
    A("s_waitcnt vmcnt(0)")
    A(f"v_cmp_ne_u32 vcc, 1, {vr(vT+1)}")
    A("s_cbranch_vccz L_go2")
    A(f"s_add_u32 {sr(sCNT)}, {sr(sCNT)}, 1")
    A(f"s_cmp_lt_u32 {sr(sCNT)}, {CFG['spin']}")
    A("s_cbranch_scc1 L_poll2")
    A("L_go2:")
    o += stamp()
    A(f"s_lshl_b32 {sr(sTILE)}, {sr(sTILE)}, 12")
    for j in range(2): A(f"buffer_load_dwordx4 {vr(LANDK[0] + 4*j, 4)}, {vr(vLIN)}, {sr(sPL,4)}, {sr(sTILE)} offen offset:{j*1024} sc1 ; #l0")
    A("s_nop 4")
    for j in range(0, 16, 2): A(f"v_pk_add_f32 {vr(OWN+j,2)}, {vr(OWN+j,2)}, {vr(acc(1,0,0)+j,2)}")
    A(f"s_mov_b32 {sr(sT)}, 16384")
    A("@wait l0")
    o += unpack(0)
    for j in range(0, 16, 2): A(f"v_pk_add_f32 {vr(OWN+j,2)}, {vr(OWN+j,2)}, {vr(acc(0,0,0)+j,2)}")
    for q2 in range(2):
        for j in range(4): A(f"v_cvt_pk_bf16_f32 {vr(2 + 4*q2 + j)}, {vr(OWN + 8*q2 + 2*j)}, {vr(OWN + 8*q2 + 2*j + 1)}")
        A(f"buffer_store_dwordx4 {vr(2 + 4*q2, 4)}, v18, {sr(sOUT,4)}, {sr(sT) if q2 else 0} offen {CFG.get('outst', 'nt').replace('+', ' ')}")
    return o

def peeled(lf):
    o = [f"s_mov_b32 {sr(sT)}, 0xe00fe000", f"v_cmp_ne_u32 vcc, {sr(sT)}, {vr(vCW)}", "s_cbranch_vccnz L_cw", "L_cw_back:"]
    for i in range(PEEL0, 15):
        loads = []
        tp = CFG.get("tpol", "nt").replace("+", " ")
        def touch(j, half):
            return [f"s_mov_b32 {sr(sDT)}, {j * 262144 + half * 4096}", f"s_mov_b32 {sr(sO+2)}, {j * 262144 + half * 4096 + 4096}",
                    f"buffer_load_dword {ar(240 + 2*j + half)}, {vr(vCW)}, {sr(sO,4)}, {sr(sDT)} offen {tp} ; #tch"]
        T = [touch(j, h_) for j in range(2) for h_ in range(2)] if CFG.get("local") and tp != "none" else []
        tsch = [int(x) for x in CFG.get("tsch", "13,13,13,13").split(",")]
        mine = [t for t, k in zip(T, tsch) if k == i]
        if i == 12 and CFG.get("local"):
            ids = [[f"v_and_b32 {vr(vCW)}, 63, v0", f"v_lshlrev_b32 {vr(vCW)}, 7, {vr(vCW)}", f"s_nop 0",
                    f"buffer_load_dword {ar(239)}, {vr(vCW)}, {sr(sFLR,4)}, 0 offen offset:4 sc1 ; #ids"]]
            loads = [(ids + mine, 0, NG)]
        fixed = {}
        if i == 12 and CFG.get("wtouch", False):
            tg = [int(x) for x in CFG.get("wtg", "65,68,93,107").split(",")]
            NP = len(tg)
            fixed[64] = [f"v_and_b32 {vr(vCW)}, {64 // NP - 1}, v0", f"v_lshlrev_b32 {vr(vCW)}, 7, {vr(vCW)}"]
            for j, g in enumerate(tg):
                off = j * 8192 // NP
                fixed.setdefault(g, []).append(f"buffer_load_dword {ar(252 + j)}, {vr(vCW)}, {sr(sWFL,4)}, {sr(sRX if off >= 4096 else sRW)} offen offset:{off % 4096} sc1 ; #wt")
        if i == 12 and int(CFG.get("r1n12", 0)): loads = [(wo_loads("R1")[:int(CFG["r1n12"])], 0, NG)]
        r1at = int(CFG.get("r1at", 14))
        if i == 13:
            g = mine + (wo_loads("R1")[:8] if r1at == 13 else [])
            if not CFG.get("local"): g = wo_loads("R1")[8:]
            loads = [(g, int(CFG.get("r1lo", 24)), int(CFG.get("r1hi", 75)))] if g else []
        if i == 14:
            loads = [(wo_loads("R2") + wo_loads("R4") + (wo_loads("R3u") if CFG.get("r3u") else []), 64, NG)]
            if int(CFG.get("r1n13", 8)) < 16: loads.insert(0, (wo_loads("R1")[:8], 0, 64))
            if CFG.get("local"):
                chk = [f"@wait ids,tch", f"v_accvgpr_read_b32 {vr(vCW)}, {ar(239)}"]
                r1 = wo_loads("R1")[(8 if r1at == 13 else 0):]
                k8 = len(r1) - 8
                r1[k8] = chk + r1[k8]
                loads.insert(0, (r1, 0, 64))
        o += iteration(i, f"L_r{i}", loads, phase_c_srds() if i == PEEL0 else (), fixed)
    o += stamp()
    o += tail_and_epilogue(3)
    o += phase_c()
    fifo = [f"K{PEEL0+2}"] * 4 + [f"V{PEEL0+1}"] * 4
    if CFG.get("skipst"): o = [x for x in o if "#ost" not in x]
    if CFG.get("skipp"): o = [x for x in o if not re.search(r"#p\d", x)]
    o, _, _ = resolve(o, fifo, lf)
    return o

def stamp_out():
    if not CFG["stamps"]: return []
    o = ["s_waitcnt vmcnt(0)"] + stamp()
    A = o.append
    A(f"s_lshl_b32 {sr(sT)}, s2, 10"); A(f"s_add_u32 {sr(sT)}, {sr(sT)}, {STAMP_OFF}")
    o += srd_at(4, 14, sr(sT), 1024)
    A("v_lshlrev_b32 v1, 2, v0")
    A(f"buffer_store_dword v{STV}, v1, s[4:7], 0 offen")
    if CFG.get("dbgout"):
        o += srd_at(4, 12, "0", 64)
        A("v_and_b32 v2, 63, v0")
        A("v_lshlrev_b32 v1, 1, v2"); A("v_add_u32 v1, 6, v1")
        A("v_and_b32 v3, 1, v2"); A("v_cmp_eq_u32 vcc, 0, v3"); A("v_mov_b32 v3, 0x1000"); A("s_nop 1")
        A("v_cndmask_b32 v1, v1, v3, vcc")
        A(f"v_cmp_lt_u32 vcc, {2*nstamp[0]}, v2"); A("s_nop 1"); A("v_cndmask_b32 v1, v1, v3, vcc")
        A(f"buffer_atomic_umax v{STV}, v1, s[4:7], 0 offen sc1")
        A(f"v_not_b32 v4, v{STV}")
        A("v_cmp_eq_u32 vcc, 1, v2"); A("s_nop 1"); A("v_cndmask_b32 v1, v3, 4, vcc")
        A(f"buffer_atomic_umax v4, v1, s[4:7], 0 offen sc1")
    return o

def kernel():
    pro, fifo, lf0 = prologue()
    _, _, lf = resolve(iteration(0, "x") + iteration(1, "x"), [])
    its = []
    for u in range(4):
        it, _, lf2 = resolve(iteration(u, f"L_r{u}"), [], lf)
        assert lf2 == lf
        its.append(it)
    assert len(lf0) >= len(lf) and lf0[len(lf0)-len(lf):] == lf or CFG["stamps"] or CFG.get("probe"), (lf0, lf)
    pe = peeled(lf)
    body = list(pro)
    body.append("L_loop:")
    for u in range(4):
        it = list(its[u])
        if u == 3:
            k = [i for i, x in enumerate(it) if x.startswith(MF)]
            it.insert(k[-3] + 1, f"s_cmp_lt_u32 {sr(sCNT)}, {NPASS}")
            it.insert(k[-4] + 1, f"s_add_u32 {sr(sCNT)}, {sr(sCNT)}, 1")
            it.append("s_cbranch_scc1 L_loop")
            its[3] = it
        body += it
    body += pe
    body += stamp_out()
    if CFG.get("fixdur"):
        body += ["L_fix:", "s_memrealtime s[40:41]", "s_waitcnt lgkmcnt(0)", "s_sub_u32 s40, s40, s42", f"s_cmp_lt_u32 s40, {int(CFG['fixdur'])*100}", "s_cbranch_scc1 L_fix"]
    body.append("L_end:")
    body.append("s_endpgm")
    for u in list(range(4)) + list(range(PEEL0, 15)):
        body += [f"L_r{u}a:", f"s_call_b64 {sr(sRET,2)}, L_ra{1 - u % 2}", f"s_branch L_r{u}a_back"]
        if CFG.get("evslow"): body += [f"L_r{u}z:", f"s_nop {int(CFG['evslow'][1:])}", f"s_branch L_r{u}z_back"]
        body += [f"L_r{u}b:", f"s_call_b64 {sr(sRET,2)}, L_rb", f"s_branch L_r{u}b_back"]
    body += ["L_cw:", f"s_mov_b32 {sr(sCNT)}, 0", "L_cw_loop:",
             f"v_and_b32 {vr(vCW)}, 3, v0", f"v_lshlrev_b32 {vr(vCW)}, 6, {vr(vCW)}",
             f"buffer_load_dword {vr(vCW)}, {vr(vCW)}, {sr(sDB,4)}, 0 offen sc1", "s_waitcnt vmcnt(0)",
             f"v_cmp_ne_u32 vcc, {sr(sT)}, {vr(vCW)}", "s_cbranch_vccz L_cw_back",
             f"s_add_u32 {sr(sCNT)}, {sr(sCNT)}, 1", f"s_cmp_lt_u32 {sr(sCNT)}, {CFG['spin']}", "s_cbranch_scc1 L_cw_loop",
             "s_branch L_cw_back"]
    if CFG.get("local"): body += ["L_pubg:", "buffer_wbl2 sc1", "s_waitcnt vmcnt(0)",
             f"buffer_store_dword {vr(vMX)}, {vr(vLIN)}, {sr(sFL,4)}, 0 offen sc1", "s_branch L_pubg_back"]
    if CFG.get("local"): body += ["L_acq:", "buffer_inv sc1", "s_waitcnt vmcnt(0)", "s_branch L_acq_back"]
    for k in STAGED:
        body += [f"L_e{k}:", f"s_mov_b32 {sr(sCNT)}, 0", f"L_e{k}_loop:",
                 f"buffer_load_dword {vr(vT+1)}, off, {sr(sFL,4)}, {sr(sTILE)} offset:16 sc1", "s_waitcnt vmcnt(0)",
                 f"v_cmp_ne_u32 vcc, 1, {vr(vT+1)}", f"s_cbranch_vccz L_e{k}_back",
                 f"s_add_u32 {sr(sCNT)}, {sr(sCNT)}, 1", f"s_cmp_lt_u32 {sr(sCNT)}, {CFG['spin']}", f"s_cbranch_scc1 L_e{k}_loop", f"s_branch L_e{k}_back"]
    for p in range(2): body += rare_a(p, f"L_ra{p}")
    body += rare_b("L_rb")
    loop = its[0] + its[1] + its[2] + its[3]
    check(pro + loop + loop + pe, "main")
    def with_rare(seq):
        o = []
        for x in seq:
            m = re.match(r"L_r(\d+)([ab])_back:", x)
            if m: o += (rare_a(1 - int(m.group(1)) % 2, "x") if m.group(2) == "a" else rare_b("x"))[1:]
            o.append(x)
        return o
    check(pro + with_rare(loop + pe), "rare")
    if CFG.get("jitter"):
        import random
        rnd = random.Random(int(CFG["jitter"][1:]))
        nb = []; cnt = 0; started = False
        for x in body:
            if x == "s_endpgm": started = False
            j = False
            if x.startswith("s_barrier"): started = True; j = True
            if x.startswith(MF): cnt += 1; j = cnt % 97 == 0
            pre_ = rnd.random() < 0.5
            blk = []
            if j and started:
                lab = f"L_j{len(nb)}"
                blk = ["s_cselect_b32 s101, 1, 0", "s_memrealtime s[40:41]", "s_waitcnt lgkmcnt(0)", f"s_lshl_b32 s41, {sr(sWAVE)}, 2", "s_xor_b32 s40, s40, s41", "s_xor_b32 s40, s40, s2",
                       f"s_and_b32 s40, s40, {rnd.choice([12, 28, 60])}", "s_cmp_lg_u32 s40, 0", f"s_cbranch_scc1 {lab}", f"s_sleep {rnd.choice([4, 16, 64])}", f"{lab}:", "s_cmp_lg_u32 s101, 0"]
            nb += (blk + [x]) if pre_ else ([x] + blk)
        return "\n".join(nb)
    lastscc = None
    for x in body:
        op = x.split()[0] if x.split() else ""
        if op == "s_addc_u32": assert lastscc == "s_add_u32" and prev.startswith("s_add_u32"), (prev, x)
        if op in ("s_cselect_b32", "s_cbranch_scc0", "s_cbranch_scc1"): assert lastscc.startswith("s_cmp"), (lastscc, x)
        if op.startswith(("s_add", "s_sub", "s_and", "s_or", "s_xor", "s_lshl", "s_lshr", "s_cmp", "s_bfe", "s_min", "s_max", "s_not")): lastscc = op
        prev = x
    if CFG["verbose"]:
        for g in range(NG): print(g, PLAN[g])
    return "\n".join(body)

if __name__ == "__main__":
    k = kernel()
    txt = file_text([dict(label=NAME + "_kernel", body=k, grid=256, block=256, lds=163840, vgpr=512, accum=256)], single=True)
    DOC = """; ---------------------------------------------------------------------------------------------
; Fused MHA block, one workgroup (4 waves, one per SIMD) per (batch, head); generated by a script.
;  A. Q^T = wq_h^T x_b^T   (x / wq streamed through LDS by LDS-DMA; scale*log2e folded into Q)
;  B. flash attention over 16 key tiles of 64: S^T = K Q^T - m (running max as MFMA C operand),
;     P = exp2(S), O^T += V^T P^T, l += 1^T P^T.  The max of every tile is checked; when it
;     exceeds the running max by more than 8 (log2) the rare path moves the max and rescales O, l.
;     every workgroup computes a 128x128 tile over K = 1024, the 4 octets' partial tiles are
;     reduced through d_ws.  wo is re-laid out into MFMA fragment order in d_ws during phase A.
;  Hand-offs: write-through (sc1) stores, vmcnt wait, barrier, one flag / counter per workgroup,
;  sc1 polls (bounded).  Flags are cleared by their owner at the start; d_debug counts that.
; ---------------------------------------------------------------------------------------------
"""
    txt = txt.replace('.amdgcn_target', DOC + '.amdgcn_target', 1)
    open(sys.argv[1], "w").write(txt)
```
